```python
import torch

def _softmax(x, axis=-1):
    return torch.softmax(x, dim=axis)

def _gelu(x):
    return torch.nn.functional.gelu(x, approximate='tanh')

def _silu(x):
    return torch.nn.functional.silu(x)

def _sigmoid(x):
    return torch.sigmoid(x)

def _layernorm(x, axis=-1, eps=1e-05):
    m = x.mean(dim=axis, keepdim=True)
    v = x.var(dim=axis, keepdim=True, unbiased=False)
    return (x - m) / torch.sqrt(v + eps)

def _scatter_add(tgt, idx, src, axis=0):
    return tgt.clone().index_add_(axis, idx, src)

def _segment_sum(src, seg, n):
    out = torch.zeros((n,) + src.shape[1:], dtype=src.dtype)
    return out.index_add_(0, seg, src)

def _pad(x, pw):
    flat = tuple((v for pair in reversed(pw) for v in pair))
    return torch.nn.functional.pad(x, flat)
kernel_name = 'adaLN_cond__ssm_conv_s4__geglu_ffn__prompt'

def setup_inputs():

    _w = lambda a: (lambda t: t.to(torch.bfloat16) if t.is_floating_point() else t)(torch.as_tensor(a))

    def _A_setup():
        B, L, D, N = (1, 2048, 512, 128)
        A_re = -(lambda _x: torch.exp(torch.as_tensor(_x)))((lambda *s: torch.randn(*s, dtype=torch.bfloat16) * 3.2)(D, N))
        A_im = torch.pi * (lambda *s: torch.randn(*s, dtype=torch.bfloat16) * 0.1)(D, N)
        B_re = (lambda *s: torch.randn(*s, dtype=torch.bfloat16) * 0.2)(D, N)
        B_im = (lambda *s: torch.randn(*s, dtype=torch.bfloat16) * 0.2)(D, N)
        C_re = (lambda *s: torch.randn(*s, dtype=torch.bfloat16) * 0.2)(D, N)
        C_im = (lambda *s: torch.randn(*s, dtype=torch.bfloat16) * 0.2)(D, N)
        log_dt = (lambda *s: torch.randn(*s, dtype=torch.bfloat16) * 0.1)(D) * 0.5 - 4.0
        Dskip = (lambda *s: torch.randn(*s, dtype=torch.bfloat16) * 0.1)(D)
        return {'u': _w((lambda *s: torch.randn(*s, dtype=torch.bfloat16) * 0.05)(B, L, D)), 'A_re': _w(A_re), 'A_im': _w(A_im), 'B_re': _w(B_re), 'B_im': _w(B_im), 'C_re': _w(C_re), 'C_im': _w(C_im), 'log_dt': _w(log_dt), 'Dskip': _w(Dskip)}
    _A_in = _A_setup()

    def _B_setup():
        B, S, D, F = (1, 2048, 512, 1792)
        return {'x': _w((lambda *s: torch.randn(*s, dtype=torch.bfloat16) * 0.05)(B, S, D)), 'w_gate': _w((lambda *s: torch.randn(*s, dtype=torch.bfloat16) * 0.05)(D, F)), 'w_up': _w((lambda *s: torch.randn(*s, dtype=torch.bfloat16) * 0.05)(D, F)), 'w_down': _w((lambda *s: torch.randn(*s, dtype=torch.bfloat16) * 0.05)(F, D))}
    _B_in = _B_setup()
    return {'A_u': _A_in['u'], 'A_A_re': _A_in['A_re'], 'A_A_im': _A_in['A_im'], 'A_B_re': _A_in['B_re'], 'A_B_im': _A_in['B_im'], 'A_C_re': _A_in['C_re'], 'A_C_im': _A_in['C_im'], 'A_log_dt': _A_in['log_dt'], 'A_Dskip': _A_in['Dskip'], 'B_x': _B_in['x'], 'B_w_gate': _B_in['w_gate'], 'B_w_up': _B_in['w_up'], 'B_w_down': _B_in['w_down'], 'c': _w((lambda *s: torch.randn(*s, dtype=torch.bfloat16) * 0.1)(1, 512) * 8.0), 'w_mod': _w((lambda *s: torch.randn(*s, dtype=torch.bfloat16) * 0.1)(512, 6 * 512) * 512 ** (-0.5) * 8.0)}

def reference(A_u, A_A_re, A_A_im, A_B_re, A_B_im, A_C_re, A_C_im, A_log_dt, A_Dskip, B_x, B_w_gate, B_w_up, B_w_down, c, w_mod):

    def _A_ref(u, A_re, A_im, B_re, B_im, C_re, C_im, log_dt, Dskip):
        Bsz, L, D = u.shape
        dt = torch.exp(log_dt)[:, None]
        A = A_re + 1j * A_im
        Bc = B_re + 1j * B_im
        Cc = C_re + 1j * C_im
        logdA = dt * A
        dB = dt * Bc
        l = (lambda x, dt: x.to(dt))(torch.arange(L), A_re.dtype)
        P = torch.exp(logdA[:, :, None] * l[None, None, :])
        K = torch.einsum('dn,dnl,dn->dl', Cc, P, dB).real
        L2 = 2 * L
        Kp = _pad(K, ((0, 0), (0, L)))
        up = (lambda x, *d: x.permute(*d))(u, 0, 2, 1)
        up = _pad(up, ((0, 0), (0, 0), (0, L)))
        Kf = (lambda x, axes=(-2, -1): torch.fft.rfft2(x.float(), dim=axes))(Kp[:, None, :], axes=(-2, -1))
        Uf = (lambda x, axes=(-2, -1): torch.fft.rfft2(x.float(), dim=axes))(up[:, :, None, :], axes=(-2, -1))
        Yf = Uf * Kf[None, :, :, :]
        y = (lambda x, s, axes=(-2, -1): torch.fft.irfft2(x, s=s, dim=axes).to(torch.bfloat16))(Yf, (1, L2), axes=(-2, -1))[:, :, 0, :L]
        y = (lambda x, *d: x.permute(*d))(y, 0, 2, 1) + u * Dskip[None, None, :]
        return y

    def _B_ref(x, w_gate, w_up, w_down):
        return _gelu(x @ w_gate) * (x @ w_up) @ w_down
    x = A_u
    mod = (_silu(c) @ w_mod).reshape(c.shape[0], 6, 1, -1)
    sa, ca, ga, sb, cb, gb = (mod[:, 0].clone(), mod[:, 1].clone(), mod[:, 2].clone(), mod[:, 3].clone(), mod[:, 4].clone(), mod[:, 5].clone())
    h = _layernorm(x, axis=-1) * (1 + ca) + sa
    x = x + ga * _A_ref(h, A_A_re, A_A_im, A_B_re, A_B_im, A_C_re, A_C_im, A_log_dt, A_Dskip)
    h = _layernorm(x, axis=-1) * (1 + cb) + sb
    x = x + gb * _B_ref(h, B_w_gate, B_w_up, B_w_down)
    return x
```

```python
from prog import *
from layout import *
LOG2E = 0x3fb8aa3b
sX,sARE,sAIM,sBRE,sBIM,sCRE,sCIM,sLDT,sDSK,sBX,sWG,sWU,sWD,sC,sWM,sOUT,sDBG,sWS = [8+2*i for i in range(18)]
rX,rWG,rWU,rWD,rWM,rWS,rWJ = 44,48,52,56,60,64,68
sXCD,sIDX,sP,sW,sTAG,sLD,sDS = 72,73,74,75,76,77,78
sT0,sT1,sT2,sT3,sT4,sT5 = 80,81,82,83,84,85
sSA,sG1,sGA,sGD = 86,88,90,92
sKS,sCG,sKE,sFS,sCNT = 94,95,96,97,98
sWO,sWA = 8,12
def sp(a,n=2): return f"s[{a}:{a+n-1}]"
def vr(a,n): return f"v[{a}:{a+n-1}]"
def mksrd(d,b,size):
    return [f"s_mov_b32 s{d}, s{b}", f"s_and_b32 s{d+1}, s{b+1}, 0xffff", f"s_mov_b32 s{d+2}, {size}", f"s_mov_b32 s{d+3}, 0x20000"]
vTID,vLANE = 0,1
vT = 2
vPAR = 16
vGA = 24
vROLE = 40
vFG = 120
vPOLL = 160
vXF = 192
vHF = 208
vFA,vKA,vUA,vYW,vYR,vWRA,vDRA,vL16 = 224,225,226,227,228,229,230,231
vGS = 232

def stamp(P, n, diag):
    if diag: P.I(f"s_memrealtime s[4:5]\ns_waitcnt lgkmcnt(0)\nv_writelane_b32 v255, s4, {n}")
def stamp_out(P, kidx, diag):
    if diag:
        P.I(f"""s_lshl_b32 s4, s2, 10
s_add_u32 s4, s4, {WS_STAMP + kidx*0x40000}
v_lshlrev_b32 v2, 2, v0
buffer_store_dword v255, v2, {sp(rWS,4)}, s4 offen""")

def entry(P, name, diag, pref_lines=256):
    P.I(f".globl {name}\n.p2align 8\n.type {name},@function\n{name}:\n@reset")
    P.I(f"""s_cmp_ge_u32 s2, 256
s_cbranch_scc1 L_{name}_exit
s_load_dwordx16 s[8:23], s[0:1], 0
s_load_dwordx16 s[24:39], s[0:1], 64
s_load_dwordx4 s[40:43], s[0:1], 128
s_getpc_b64 s[6:7]
s_and_b32 s{sXCD}, s2, 7
s_lshr_b32 s{sIDX}, s2, 3
v_and_b32 v{vLANE}, 63, v0
v_lshrrev_b32 v2, 6, v0
s_lshl_b32 s{sP}, s{sXCD}, 5
s_add_u32 s{sP}, s{sP}, s{sIDX}
v_readfirstlane_b32 s{sW}, v2
v_lshlrev_b32 v{vL16}, 4, v{vLANE}""")
    if diag: P.I("v_mov_b32 v255, 0")
    stamp(P,0,diag)

def code_prefetch(P, nlines):
    ng = (nlines+63)//64
    assert ng&(ng-1)==0
    P.I(f"""s_and_b32 s{sT0}, s{sIDX}, {ng-1}
s_lshl_b32 s{sT0}, s{sT0}, 13
v_lshl_add_u32 v3, v{vLANE}, 7, s{sT0}
s_cmp_lg_u32 s{sW}, 3
s_cbranch_scc1 L_nopf_{len(P.ins)}""")
    lbl=P.ins[-1].target
    P.I(f"global_load_dword v15, v3, s[6:7]\n{lbl}:")

def srds(P):
    P.extend(mksrd(rWS,sWS,WS_USED)); P.extend(mksrd(rX,sX,2097152)); P.extend(mksrd(rWM,sWM,3145728))
    P.I(f"s_cmp_lt_u32 s{sIDX}, 28\ns_cselect_b32 s{sT0}, 1835008, 0\ns_cselect_b32 s{sT1}, {WS_USED}, 0")
    for r,b in ((rWG,sWG),(rWU,sWU),(rWD,sWD)): P.extend(mksrd(r,b,f"s{sT0}"))
    P.extend(mksrd(rWJ,sWS,f"s{sT1}"))
    P.I(f"""s_and_b32 s{sCG}, s{sXCD}, 3
s_mul_i32 s{sCG}, s{sCG}, 7
s_lshr_b32 s{sT0}, s{sIDX}, 2
s_add_u32 s{sCG}, s{sCG}, s{sT0}
s_and_b32 s{sKE}, s{sXCD}, 4
s_and_b32 s{sT0}, s{sIDX}, 3
s_add_u32 s{sKE}, s{sKE}, s{sT0}
s_lshl_b32 s{sKS}, s{sKE}, 2
s_add_u32 s{sKS}, s{sKS}, s{sW}
s_mul_i32 s{sFS}, s{sXCD}, 28
s_add_u32 s{sFS}, s{sFS}, s{sIDX}""")

def load_params(P, NT):
    P.I(f"s_lshl_b32 s{sT0}, s{sP}, 9\nv_lshl_add_u32 v2, v0, 1, s{sT0}")
    for i in range(6): P.I(f"v_mov_b32 v{vPAR+i}, 0")
    for i,b in enumerate((sARE,sAIM,sBRE,sBIM,sCRE,sCIM)):
        P.I(f"global_load_short_d16_hi v{vPAR+i}, v2, {sp(b)} {NT}")
    P.I(f"s_lshl_b32 s{sT0}, s{sP}, 2\ns_load_dword s{sLD}, {sp(sLDT)}, s{sT0}\ns_load_dword s{sDS}, {sp(sDSK)}, s{sT0}")

def role_loads(P, uid, NT):
    R=vROLE
    P.I(f"s_cmp_eq_u32 s{sW}, 1\ns_cbranch_scc1 L_rl1_{uid}\ns_cmp_eq_u32 s{sW}, 2\ns_cbranch_scc1 L_rl2_{uid}\ns_cmp_eq_u32 s{sW}, 3\ns_cbranch_scc1 L_rle_{uid}")
    P.I(f"""v_and_b32 v2, 7, v{vLANE}
v_lshrrev_b32 v3, 3, v{vLANE}
v_lshlrev_b32 v2, 13, v2
v_lshl_add_u32 v2, v3, 4, v2
s_lshl_b32 s{sT0}, s{sIDX}, 16
s_lshl_b32 s{sT1}, s{sXCD}, 7
s_add_u32 s{sT0}, s{sT0}, s{sT1}
s_add_u32 s{sT1}, s{sT0}, 4096""")
    for r in range(8):
        P.I(f"buffer_load_dwordx4 {vr(R+4*r,4)}, v2, {sp(rX,4)}, s{sT0 if r<4 else sT1} offen offset:{(r%4)*1024}")
    P.I(f"s_branch L_rle_{uid}\nL_rl1_{uid}:")
    P.I(f"""v_and_b32 v2, 7, v{vLANE}
v_lshrrev_b32 v3, 3, v{vLANE}
v_lshlrev_b32 v2, 4, v2
v_lshl_add_u32 v2, v3, 10, v2
s_lshl_b32 s{sT0}, s2, 13""")
    for u in range(8):
        P.I(f"buffer_load_dwordx4 {vr(R+4*u,4)}, v2, {sp(rX,4)}, s{sT0} offen offset:{u*128}")
    P.I(f"s_branch L_rle_{uid}\nL_rl2_{uid}:")
    P.I(f"""s_cmp_ge_u32 s{sIDX}, 24
s_cbranch_scc1 L_rle_{uid}
s_and_b32 s{sT2}, s{sIDX}, 3
s_lshl_b32 s{sT0}, s{sT2}, 8
v_lshl_add_u32 v2, v{vLANE}, 2, s{sT0}
global_load_dword v{R}, v2, {sp(sC)}
v_lshrrev_b32 v3, 3, v{vLANE}
v_mul_u32_u24 v3, 6144, v3
v_lshrrev_b32 v4, 3, v{vLANE}
v_and_b32 v4, 2, v4
v_and_b32 v5, 7, v{vLANE}
v_xor_b32 v4, v4, v5
v_lshl_add_u32 v3, v4, 4, v3
v_xor_b32 v4, 64, v3
s_mul_i32 s{sT0}, s{sT2}, {128*6144}
s_lshr_b32 s{sT1}, s{sIDX}, 2
s_lshl_b32 s{sT1}, s{sT1}, 10
s_add_u32 s{sT0}, s{sT0}, s{sT1}
s_lshl_b32 s{sT1}, s{sXCD}, 7
s_add_u32 s{sT0}, s{sT0}, s{sT1}""")
    for u in range(16):
        P.I(f"s_mov_b32 m0, {L_MR+u*1024}")
        if u: P.I(f"s_add_u32 s{sT0}, s{sT0}, {8*6144}")
        P.I(f"buffer_load_dwordx4 v{3+(u&1)}, {sp(rWM,4)}, s{sT0} offen {NT} lds", tag='mr')
    P.I(f"L_rle_{uid}:")

def wd_loads(P, NT):
    P.I(f"""v_lshrrev_b32 v2, 2, v{vLANE}
v_and_b32 v3, 3, v{vLANE}
v_lshlrev_b32 v3, 4, v3
v_lshl_add_u32 v2, v2, 10, v3
s_lshr_b32 s{sT0}, s{sFS}, 1
s_lshl_b32 s{sT0}, s{sT0}, 14
s_and_b32 s{sT1}, s{sFS}, 1
s_lshl_b32 s{sT1}, s{sT1}, 9
s_add_u32 s{sT0}, s{sT0}, s{sT1}
s_lshl_b32 s{sT1}, s{sW}, 7
s_add_u32 s{sT0}, s{sT0}, s{sT1}
s_lshl_b32 s{sT1}, s{sW}, 11
s_add_u32 m0, s{sT1}, {L_DR}
s_add_u32 s{sT2}, s{sT0}, 64""")
    P.I(f"buffer_load_dwordx4 v2, {sp(rWD,4)}, s{sT0} offen lds", tag='dr')
    P.I(f"s_add_u32 m0, s{sT1}, {L_DR+1024}")
    P.I(f"buffer_load_dwordx4 v2, {sp(rWD,4)}, s{sT2} offen lds", tag='dr')
    P.I(f"""v_lshrrev_b32 v2, 5, v{vLANE}
v_bfe_u32 v3, v{vLANE}, 2, 2
v_lshl_add_u32 v2, v2, 3, v3
v_bfe_u32 v3, v{vLANE}, 4, 1
v_lshl_add_u32 v2, v2, 1, v3
v_and_b32 v3, 1, v{vLANE}
v_lshl_add_u32 v2, v2, 1, v3
v_bfe_u32 v3, v{vLANE}, 1, 1
v_lshl_add_u32 v2, v2, 1, v3
s_add_u32 s{sT1}, s{sT1}, {L_DR}
v_lshl_add_u32 v{vDRA}, v2, 3, s{sT1}""")
def wd_job(P, ST):
    R=vROLE
    P.I("@wait dr")
    for u in range(2):
        for hf in range(2):
            P.I(f"ds_read_b64_tr_b16 {vr(R+4*u+2*hf,2)}, v{vDRA} offset:{u*1024+hf*256}")
    P.I(f"""s_and_b32 s{sT0}, s{sFS}, 1
s_lshl_b32 s{sT0}, s{sT0}, 2
s_add_u32 s{sT0}, s{sT0}, s{sW}
s_mul_i32 s{sT0}, s{sT0}, {2*112}
s_lshr_b32 s{sT1}, s{sFS}, 1
s_add_u32 s{sT0}, s{sT0}, s{sT1}
s_lshl_b32 s{sT0}, s{sT0}, 10
s_add_u32 s{sT0}, s{sT0}, {WS_WDF}
s_add_u32 s{sT1}, s{sT0}, {112*1024}""")
    for u in range(2):
        P.I(f"buffer_store_dwordx4 {vr(R+4*u,4)}, v{vL16}, {sp(rWJ,4)}, s{sT0+u} offen {ST}")

def w_loads(P, NT):
    P.I(f"""v_lshrrev_b32 v2, 3, v{vLANE}
v_mul_u32_u24 v2, 3584, v2
v_lshrrev_b32 v3, 3, v{vLANE}
v_and_b32 v3, 2, v3
v_and_b32 v4, 7, v{vLANE}
v_xor_b32 v3, v3, v4
v_xor_b32 v4, 4, v3
v_lshl_add_u32 v3, v3, 4, v2
v_lshl_add_u32 v4, v4, 4, v2
s_mul_i32 s{sT0}, s{sKS}, {16*3584}
s_lshl_b32 s{sT1}, s{sCG}, 7
s_add_u32 s{sT0}, s{sT0}, s{sT1}
s_add_u32 s{sT2}, s{sT0}, {8*3584}
s_lshl_b32 s{sT1}, s{sW}, 12""")
    for mat,r in ((0,rWG),(1,rWU)):
        for u in range(2):
            P.I(f"s_add_u32 m0, s{sT1}, {L_WR+mat*2048+u*1024}")
            P.I(f"buffer_load_dwordx4 v{3+mat}, {sp(r,4)}, s{sT2 if u else sT0} offen {NT} lds", tag='wr')
    P.I(f"""v_bfe_u32 v2, v{vLANE}, 4, 1
v_lshrrev_b32 v3, 5, v{vLANE}
v_lshl_add_u32 v3, v2, 1, v3
v_bfe_u32 v4, v{vLANE}, 2, 2
v_lshl_add_u32 v3, v3, 3, v4
v_lshl_add_u32 v3, v3, 1, v2
v_bfe_u32 v4, v{vLANE}, 3, 1
v_lshl_add_u32 v3, v3, 1, v4
v_and_b32 v4, 1, v{vLANE}
v_lshl_add_u32 v3, v3, 1, v4
v_bfe_u32 v4, v{vLANE}, 1, 1
v_lshl_add_u32 v3, v3, 1, v4
s_add_u32 s{sT1}, s{sT1}, {L_WR}
v_lshl_add_u32 v{vWRA}, v3, 3, s{sT1}""")

def w_offsets(P):
    for m in range(4):
        P.I(f"""s_lshl_b32 s{sT0}, s{sCG}, 2
s_add_u32 s{sT0}, s{sT0}, {m}
s_mul_i32 s{sT1}, s{sT0}, 147
s_lshr_b32 s{sT1}, s{sT1}, 10
s_mul_i32 s{sT2}, s{sT1}, 7
s_sub_u32 s{sT0}, s{sT0}, s{sT2}
s_mul_i32 s{sT1}, s{sT1}, 231
s_cmp_lt_u32 s{sT0}, {G1}
s_cselect_b32 s{sT2}, {G1}, 1
s_cselect_b32 s{sT3}, 1, 33
s_mul_i32 s{sT0}, s{sT0}, s{sT3}
s_add_u32 s{sT0}, s{sT0}, s{sT1}
s_add_u32 s{sT0}, s{sT0}, {WS_WPF>>10}
s_mul_i32 s{sT3}, s{sT2}, s{sKS}
s_add_u32 s{sT3}, s{sT3}, s{sT0}
s_lshl_b32 s{sWO+m}, s{sT3}, 10
s_lshl_b32 s{sT2}, s{sT2}, 5
s_add_u32 s{sT2}, s{sT2}, s{sT0}
s_lshl_b32 s{sWA+m}, s{sT2}, 10""")

def role_jobs(P, uid, PUB):
    R=vROLE; G=vROLE+32
    P.I(f"s_cmp_eq_u32 s{sW}, 1\ns_cbranch_scc1 L_rj1_{uid}\ns_cmp_eq_u32 s{sW}, 2\ns_cbranch_scc1 L_rj2_{uid}\ns_cmp_eq_u32 s{sW}, 3\ns_cbranch_scc1 L_rje_{uid}")
    P.I(f"""v_and_b32 v2, 7, v{vLANE}
v_lshrrev_b32 v3, 3, v{vLANE}
v_mul_u32_u24 v3, {4*12288}, v3
v_lshl_add_u32 v2, v2, 4, v3
s_mul_i32 s{sT0}, s{sXCD}, {32*12288}
s_lshl_b32 s{sT1}, s{sIDX}, 7
s_add_u32 s{sT0}, s{sT0}, s{sT1}
s_add_u32 s{sT0}, s{sT0}, {WS_XG}""")
    for k in range(12): P.I(f"v_mov_b32 v{G+4*k+3}, s{sTAG}")
    for g in range(3):
        for j in range(4):
            k=g*4+j
            for e in range(3):
                r=min(3*g+e,7)
                P.I(f"v_mov_b32 v{G+4*k+e}, v{R+4*r+j}")
            P.I(f"s_add_u32 s{sT1}, s{sT0}, {j*12288+g*4096}")
            P.I(f"buffer_store_dwordx4 {vr(G+4*k,4)}, v2, {sp(rWS,4)}, s{sT1} offen {PUB}")
    P.I(f"s_branch L_rje_{uid}\nL_rj1_{uid}:")
    P.I(f"v_mov_b32 v2, 0\nv_mov_b32 v3, 0\nv_mov_b32 v4, 0\nv_mov_b32 v5, 0\ns_mov_b32 s{sT0}, 0x3f803f80")
    for k in range(32):
        P.I(f"v_dot2c_f32_bf16 v{2+(k&1)}, s{sT0}, v{R+k}\nv_dot2c_f32_bf16 v{4+(k&1)}, v{R+k}, v{R+k}")
    P.I(f"""v_mul_u32_u24 v8, 96, v{vLANE}
v_add_u32 v9, 32, v8
v_add_u32 v10, 64, v8
v_add_f32 v2, v2, v3
v_add_f32 v4, v4, v5""")
    for m in ("quad_perm:[1,0,3,2]","quad_perm:[2,3,0,1]","row_half_mirror"):
        P.I(f"v_add_f32_dpp v2, v2, v2 {m} row_mask:0xf bank_mask:0xf\nv_add_f32_dpp v4, v4, v4 {m} row_mask:0xf bank_mask:0xf")
    P.I(f"""v_mul_f32 v2, 0x3b000000, v2
v_mul_f32 v4, 0x3b000000, v4
v_fma_f32 v4, -v2, v2, v4
v_max_f32 v4, 0, v4
v_cvt_pk_bf16_f32 v4, v4, v4
v_and_b32 v4, 0xffff0000, v4
v_add_f32 v4, 0x3727c5ac, v4
v_cvt_pk_bf16_f32 v4, v4, v4
v_and_b32 v4, 0xffff0000, v4
v_sqrt_f32 v4, v4
v_mov_b32 v{G+3}, s{sTAG}
v_cvt_pk_bf16_f32 v2, v2, v4
ds_bpermute_b32 v{G}, v8, v2
ds_bpermute_b32 v{G+1}, v9, v2
ds_bpermute_b32 v{G+2}, v10, v2
v_lshlrev_b32 v3, 12, v{vLANE}
s_lshl_b32 s{sT0}, s2, 4
s_add_u32 s{sT0}, s{sT0}, {WS_SG}
s_waitcnt lgkmcnt(0)
s_mov_b64 exec, 7
buffer_store_dwordx4 {vr(G,4)}, v3, {sp(rWS,4)}, s{sT0} offen {PUB}
s_mov_b64 exec, -1
s_branch L_rje_{uid}
L_rj2_{uid}:""")
    P.I(f"""s_cmp_ge_u32 s{sIDX}, 24
s_cbranch_scc1 L_rje_{uid}
v_lshlrev_b32 v2, 16, v{R}
v_and_b32 v3, 0xffff0000, v{R}
v_mul_f32 v4, 0xbfb8aa3b, v2
v_mul_f32 v5, 0xbfb8aa3b, v3
v_exp_f32 v4, v4
v_exp_f32 v5, v5
v_lshlrev_b32 v6, 2, v{vLANE}
v_add_f32 v4, 1.0, v4
v_add_f32 v5, 1.0, v5
v_rcp_f32 v4, v4
v_rcp_f32 v5, v5
v_add_u32 v6, {L_SC}, v6
v_mul_f32 v2, v2, v4
v_mul_f32 v3, v3, v5
v_cvt_pk_bf16_f32 v2, v2, v3
ds_write_b32 v6, v2
v_and_b32 v6, 48, v{vLANE}
v_add_u32 v6, {L_SC}, v6""")
    for ks in range(4): P.I(f"ds_read_b128 {vr(R+4*ks,4)}, v6 offset:{ks*64}")
    P.I(f"""v_lshrrev_b32 v2, 4, v{vLANE}
v_bfe_u32 v3, v{vLANE}, 2, 2
v_lshl_add_u32 v2, v2, 3, v3
v_bfe_u32 v3, v{vLANE}, 3, 2
v_lshl_add_u32 v2, v2, 2, v3
v_and_b32 v3, 3, v{vLANE}
v_lshl_add_u32 v2, v2, 2, v3
v_lshlrev_b32 v2, 3, v2
v_add_u32 v8, {L_MR}, v2""")
    assert L_MR%128==0
    for ct in range(1,4): P.I(f"v_xor_b32 v{8+ct}, {ct*32}, v8")
    P.I("@wait mr")
    A=R+16; ACC=R+16+32
    seq=[(ks,ct) for ks in range(4) for ct in range(4)]
    def rd(n):
        ks,ct=seq[n]; a=A+4*(n%8)
        return [f"ds_read_b64_tr_b16 {vr(a+2*hf,2)}, v{8+ct} offset:{ks*4096+hf*512}" for hf in range(2)]
    for n in range(6): P.extend(rd(n))
    for n,(ks,ct) in enumerate(seq):
        P.I(f"v_mfma_f32_16x16x32_bf16 {vr(ACC+4*ct,4)}, {vr(A+4*(n%8),4)}, {vr(R+4*ks,4)}, {vr(ACC+4*ct,4) if ks else 0}")
        if n+6<16: P.extend(rd(n+6))
    P.I(f"""s_mov_b32 s{sT0}, 0xaaaaaaaa
s_mov_b32 s{sT1}, 0xaaaaaaaa
s_mov_b32 s{sT2}, 0xcccccccc
s_mov_b32 s{sT3}, 0xcccccccc
s_mov_b32 s{sT4}, 0xf0f0f0f0
s_mov_b32 s{sT5}, 0xf0f0f0f0
v_bfe_u32 v2, v{vLANE}, 1, 2
v_lshrrev_b32 v3, 4, v{vLANE}
v_lshl_add_u32 v2, v2, 2, v3
v_and_b32 v3, 1, v{vLANE}
v_lshl_add_u32 v2, v2, 1, v3
v_lshlrev_b32 v2, 4, v2
v_mov_b32 v{R+3}, s{sTAG}""")
    for ct in range(4):
        for e in range(2): P.I(f"v_cndmask_b32 v{A+2*ct+e}, v{ACC+4*ct+e}, v{ACC+4*ct+2+e}, {sp(sT0)}")
    for c2 in range(2):
        for e in range(2): P.I(f"v_cndmask_b32 v{A+8+2*c2+e}, v{A+4*c2+e}, v{A+4*c2+2+e}, {sp(sT2)}")
    for e in range(2): P.I(f"v_cndmask_b32 v{R+e}, v{A+8+e}, v{A+10+e}, {sp(sT4)}")
    P.I(f"""s_lshl_b32 s{sT0}, s{sIDX}, 12
s_lshl_b32 s{sT1}, s{sXCD}, 9
s_add_u32 s{sT0}, s{sT0}, s{sT1}
s_add_u32 s{sT0}, s{sT0}, {WS_MG}
s_mov_b32 exec_lo, 0x00ff00ff
s_mov_b32 exec_hi, 0x00ff00ff
buffer_store_dwordx4 {vr(R,4)}, v2, {sp(rWS,4)}, s{sT0} offen {PUB}
s_mov_b64 exec, -1
L_rje_{uid}:""")

def index_setup(P):
    P.I(f"v_lshlrev_b32 v2, 3, v0\nv_sub_u32 v2, 2047, v2\nv_cvt_f32_i32 v3, v2")
    for j in range(11):
        d=vGA+j
        if j%2==0:
            P.I(f"v_add_f32 v4, {float(-j)!r}, v3" if j in (2,4) else (f"v_mov_b32 v4, v3" if j==0 else f"v_add_f32 v4, {hex(f32(-j))}, v3"))
            P.I(f"v_add_f32 v5, -1.0, v4\nv_cvt_pk_bf16_f32 v6, v4, v5\nv_lshlrev_b32 v7, 16, v6")
        else:
            P.I(f"v_and_b32 v7, 0xffff0000, v6")
        P.I(f"""v_cvt_u32_f32 v8, v7
v_bfe_u32 v9, v7, 23, 8
v_subrev_u32 v9, 134, v9
v_med3_i32 v9, v9, 0, 3
v_lshrrev_b32 v10, 7, v8
v_and_b32 v11, 7, v8
v_lshl_or_b32 v10, v10, 3, v11
v_lshrrev_b32 v10, v9, v10
v_lshl_add_u32 v10, v9, 3, v10
v_bfe_u32 v11, v8, 3, 4
v_lshl_add_u32 v10, v10, 4, v11
v_lshlrev_b32 v10, 2, v10
v_add_u32 v{d}, {L_C}, v10""")
    P.I(f"v_cmp_eq_u32 vcc, 255, v0\nv_mov_b32 v4, {L_C+3072}")
    for j in (8,9,10): P.I(f"v_cndmask_b32 v{vGA+j}, v{vGA+j}, v4, vcc")
    P.I(f"""v_mov_b32 v4, 0
v_mov_b32 v5, 0
v_mov_b32 v6, 0
v_mov_b32 v7, 0
v_lshrrev_b32 v2, 5, v{vLANE}
v_mul_u32_u24 v2, {HP}, v2
v_and_b32 v3, 31, v{vLANE}
v_min_u32 v3, 29, v3
v_lshl_add_u32 v2, v3, 4, v2
v_add_u32 v2, {L_H}, v2
v_bfe_u32 v3, v{vLANE}, 1, 3
v_mul_u32_u24 v3, {KIP}, v3
v_and_b32 v8, 1, v{vLANE}
v_lshl_add_u32 v3, v8, 4, v3
v_add_u32 v3, {L_KI+4096}, v3
v_mov_b32 v8, {L_C+3072}
v_cmp_gt_u32 vcc, 128, v0
v_cndmask_b32 v3, v8, v3, vcc
v_cmp_gt_u32 vcc, 64, v0
v_cndmask_b32 v2, v3, v2, vcc
ds_write_b128 v2, v[4:7]""")
    P.I(f"""v_lshrrev_b32 v2, 7, v0
v_mul_u32_u24 v2, {64*FP}, v2
v_and_b32 v3, 127, v0
v_lshl_add_u32 v{vFA}, v3, 2, v2
s_lshr_b32 s{sT0}, s{sW}, 1
s_and_b32 s{sT1}, s{sW}, 1
s_lshl_b32 s{sT1}, s{sT1}, 8
s_mul_i32 s{sT2}, s{sT0}, {4*KIP}
s_add_u32 s{sT2}, s{sT2}, {L_KI + 2*(2044-16) - 3584 - 192}
s_sub_u32 s{sT2}, s{sT2}, s{sT1}
v_and_b32 v2, 3, v{vLANE}
v_mul_u32_u24 v2, {KIP}, v2
v_and_b32 v3, 48, v{vLANE}
v_add3_u32 v2, v2, v3, s{sT2}
v_and_b32 v4, 12, v{vLANE}
v_lshlrev_b32 v4, 1, v4
v_sub_u32 v{vKA}, v2, v4
s_mul_i32 s{sT2}, s{sT0}, {HP}
s_add_u32 s{sT2}, s{sT2}, {L_H + 448 - 192}
s_sub_u32 s{sT2}, s{sT2}, s{sT1}
v_and_b32 v2, 15, v{vLANE}
v_lshl_add_u32 v3, v2, 5, v3
v_add_u32 v{vUA}, s{sT2}, v3
s_mul_i32 s{sT2}, s{sW}, 10240
v_lshrrev_b32 v3, 4, v{vLANE}
v_mul_u32_u24 v3, 320, v3
v_lshl_add_u32 v3, v2, 4, v3
v_add_u32 v{vYW}, s{sT2}, v3
v_lshrrev_b32 v2, 5, v0
v_mul_u32_u24 v2, 1280, v2
v_and_b32 v3, 1, v0
v_mul_u32_u24 v3, 640, v3
v_bfe_u32 v4, v0, 1, 4
v_lshl_add_u32 v3, v4, 4, v3
v_add_u32 v{vYR}, v2, v3""")

import struct
def f32(x): return struct.unpack('<I',struct.pack('<f',x))[0]

def cmul(o,a,b,t):
    return [f"v_pk_mul_f32 {vr(t,2)}, {vr(a,2)}, {vr(b,2)} op_sel_hi:[0,1]",
            f"v_pk_fma_f32 {vr(o,2)}, {vr(a,2)}, {vr(b,2)}, {vr(t,2)} op_sel:[1,1,0] op_sel_hi:[1,0,1] neg_lo:[1,0,0]"]
def factor_gen():
    B=vFG; are,aim,bre,bim,cre,cim=[vPAR+i for i in range(6)]
    R1,R8,R128,LOc,TMP,PK = B,B+2,B+4,B+6,B+8,B+12
    Pc=[B+16+2*c for c in range(8)]
    zr,zi,dt=B+32,B+33,B+34; m,ph=B+36,B+38
    a=[]
    a+=[f"s_lshr_b32 s{sT0}, s{sW}, 1", f"s_lshl_b32 s{sT0}, s{sT0}, 4", f"s_lshr_b32 s{sT1}, s{sLD}, s{sT0}", f"s_lshl_b32 s{sT1}, s{sT1}, 16",
        f"v_mov_b32 v{dt}, {hex(LOG2E)}", f"v_mul_f32 v{dt}, s{sT1}, v{dt}", f"v_exp_f32 v{dt}, v{dt}", "s_nop 0", f"v_cvt_pk_bf16_f32 v{dt}, v{dt}, v{dt}", f"v_and_b32 v{dt}, 0xffff0000, v{dt}",
        f"v_mul_f32 v{zr}, v{dt}, v{are}", f"v_mul_f32 v{zi}, v{dt}, v{aim}", f"v_mul_f32 v{zr}, {hex(LOG2E)}, v{zr}", f"v_mul_f32 v{zi}, 0.15915494, v{zi}"]
    def cexp(o,sc,conj):
        L=[]
        if sc==1: L+=[f"v_exp_f32 v{m}, v{zr}", f"v_fract_f32 v{ph}, v{zi}"]
        else: L+=[f"v_mul_f32 v{m}, {hex(f32(sc))}, v{zr}", f"v_mul_f32 v{ph}, {hex(f32(sc))}, v{zi}", f"v_exp_f32 v{m}, v{m}", f"v_fract_f32 v{ph}, v{ph}"]
        L+=[f"v_cos_f32 v{o}, v{ph}", f"v_sin_f32 v{o+1}, v{ph}", "s_nop 0",
            f"v_pk_mul_f32 {vr(o,2)}, {vr(o,2)}, {vr(m,2)} op_sel_hi:[1,0]" + (" neg_hi:[1,0]" if conj else "")]
        return L
    a+=cexp(R8,8,False)+cexp(R1,1,True)+cexp(R128,128,True)
    a+=cmul(Pc[0],cre,bre,TMP)+[f"v_pk_mul_f32 {vr(Pc[0],2)}, {vr(Pc[0],2)}, {vr(dt,2)} op_sel_hi:[1,0] neg_hi:[1,0]"]
    n=[0]
    def put(row,src):
        k=PK+(n[0]&3); n[0]+=1
        return [f"v_cvt_pk_bf16_f32 v{k}, v{src}, v{src+1}", f"ds_write_b32 v{vFA}, v{k} offset:{L_F+row*FP}"]
    lo=[[f"v_mov_b32 v{PK+3}, 0x3f80", f"ds_write_b32 v{vFA}, v{PK+3} offset:{L_F+48*FP}"], None]
    hi=[]
    steps_lo=[('one',48),('put',49,R8)]+[('mul',48+b,LOc,(R8 if b==2 else LOc),R8) for b in range(2,16)]
    steps_hi=[('put',0,Pc[0])]+[('mul',c,Pc[c],Pc[c-1],R1) for c in range(1,8)]
    row=8
    for e in range(1,17):
        cs = range(8) if e<2 else range(0,8,2) if e<4 else (0,4) if e<8 else (0,)
        for c in cs:
            assert HI[row]==128*e+c
            steps_hi.append(('mul',row,Pc[c],Pc[c],R128)); row+=1
    order=[]
    for i in range(8): order+= [steps_hi[i], steps_lo[i]]
    order+=steps_hi[8:32]
    for i in range(9):
        order.append(steps_hi[32+i])
        if i<8: order.append(steps_lo[8+i])
    out=[]
    for k,s in enumerate(order):
        t=TMP+2*(k&1)
        if s[0]=='one':
            kk=PK+(n[0]&3); n[0]+=1
            out.append([f"v_mov_b32 v{kk}, 0x3f80", f"ds_write_b32 v{vFA}, v{kk} offset:{L_F+s[1]*FP}"])
        elif s[0]=='put': out.append(put(s[1],s[2]))
        else: out.append(cmul(s[2],s[3],s[4],t)+put(s[1],s[2]))
    return a,out

def kgen_mfma(P):
    A=vROLE; ACC=vFG
    P.I(f"""s_lshr_b32 s{sT0}, s{sW}, 1
s_and_b32 s{sT1}, s{sW}, 1
s_mul_i32 s{sT2}, s{sT0}, {64*FP}
s_mul_i32 s{sT3}, s{sT1}, {32*FP}
v_and_b32 v2, 15, v{vLANE}
v_mul_u32_u24 v3, {FP}, v2
v_and_b32 v4, 48, v{vLANE}
v_add3_u32 v3, v3, v4, s{sT2}
v_add_u32 v5, s{sT3}, v3
v_lshlrev_b32 v2, 2, v2
v_lshl_add_u32 v2, v4, 4, v2
s_lshl_b32 s{sT0}, s{sT0}, 1
s_add_u32 s{sT0}, s{sT0}, {L_C}
v_add_u32 v6, s{sT0}, v2
s_lshl_b32 s{sT1}, s{sT1}, 11
v_add_u32 v7, s{sT1}, v6
s_waitcnt lgkmcnt(0)
s_barrier""")
    def rd(ks):
        b=A+12*(ks%6)
        return [f"ds_read_b128 {vr(b,4)}, v3 offset:{48*FP+ks*64}", f"ds_read_b128 {vr(b+4,4)}, v5 offset:{ks*64}", f"ds_read_b128 {vr(b+8,4)}, v3 offset:{16*FP+ks*64}"]
    for ks in range(4): P.extend(rd(ks))
    for ks in range(8):
        b=A+12*(ks%6)
        P.I(f"v_mfma_f32_16x16x32_bf16 {vr(ACC,4)}, {vr(b+4,4)}, {vr(b,4)}, {vr(ACC,4) if ks else 0}")
        P.I(f"v_mfma_f32_16x16x32_bf16 {vr(ACC+4,4)}, {vr(b+8,4)}, {vr(b,4)}, {vr(ACC+4,4) if ks else 0}")
        if ks+4<8: P.extend(rd(ks+4))
    for t,(ad,off) in enumerate(((7,0),(6,1024))):
        for r2 in range(2):
            P.I(f"v_cvt_pk_bf16_f32 v{8+2*t+r2}, v{ACC+4*t+2*r2}, v{ACC+4*t+2*r2+1}")
            P.I(f"ds_write_b16 v{ad}, v{8+2*t+r2} offset:{off+128*r2}\nds_write_b16_d16_hi v{ad}, v{8+2*t+r2} offset:{off+128*r2+64}")

def poll_addr(P):
    P.I(f"""v_lshlrev_b32 v12, 4, v0
v_bfe_u32 v2, v{vLANE}, 2, 2
v_cmp_eq_u32 vcc, 3, v2
v_and_b32 v3, 3, v{vLANE}
v_cndmask_b32 v2, v2, 5, vcc
v_lshl_add_u32 v2, v2, 2, v3
s_lshl_b32 s{sT0}, s{sP}, 4
v_lshl_add_u32 v13, v2, 12, s{sT0}
v_lshrrev_b32 v2, 5, v{vLANE}
v_lshl_add_u32 v2, v2, 2, v3
v_bfe_u32 v3, v{vLANE}, 2, 3
v_lshlrev_b32 v3, 4, v3
v_lshl_add_u32 v2, v2, 12, v3
s_lshl_b32 s{sT0}, s{sKS}, 7
s_add_u32 s{sT0}, s{sT0}, {12*4096}
v_add_u32 v14, s{sT0}, v2""")
def poll_loads(P, LD):
    P.I(f"s_mul_i32 s{sT0}, s{sP}, 12288\ns_add_u32 s{sT0}, s{sT0}, {WS_XG}\ns_mov_b32 s{sT3}, {WS_MG}")
    P.I(f"buffer_load_dwordx4 {vr(vPOLL+24,4)}, v13, {sp(rWS,4)}, s{sT3} offen {LD}")
    for g in range(3):
        P.I(f"s_mov_b32 s{sT1}, {WS_SG+g*4096}\nbuffer_load_dwordx4 {vr(vPOLL+12+4*g,4)}, v12, {sp(rWS,4)}, s{sT1} offen {LD}")
        P.I(f"buffer_load_dwordx4 {vr(vPOLL+4*g,4)}, v12, {sp(rWS,4)}, s{sT0} offen {LD}")
        if g<2: P.I(f"s_add_u32 s{sT0}, s{sT0}, 4096")
    P.I(f"buffer_load_dwordx4 {vr(vPOLL+28,4)}, v14, {sp(rWS,4)}, s{sT3} offen {LD}")

def k_image(P):
    E=vROLE+16; O=vROLE+32
    P.I("s_waitcnt lgkmcnt(0)\ns_barrier")
    for j in range(11): P.I(f"ds_read_b32 v{E+j}, v{vGA+j}")
    P.I(f"s_mov_b32 s{sT4}, 0x05040100\ns_mov_b32 s{sT5}, 0x07060302\nv_lshlrev_b32 v2, 4, v0\nv_add_u32 v2, {L_KI}, v2")
    k=0
    for c in (3,2,1,0):
        for ch in range(2):
            o=O+4*k; k+=1
            for i in range(4):
                j=3-c+2*i
                P.I(f"v_perm_b32 v{o+i}, v{E+j+1}, v{E+j}, s{sT4+ch}")
            P.I(f"ds_write_b128 v2, {vr(o,4)} offset:{(ch*4+c)*KIP}")

def quadsum(regs):
    L=[]
    for m in ("quad_perm:[1,0,3,2]","quad_perm:[2,3,0,1]"):
        for r in regs: L.append(f"v_add_f32_dpp v{r}, v{r}, v{r} {m} row_mask:0xf bank_mask:0xf")
    return L
def make_h(P):
    Q=vPOLL
    mc=Q+24
    P.extend(quadsum([mc,mc+1]))
    P.I(f"""v_cvt_pk_bf16_f32 v3, v{mc}, v{mc+1}
v_lshlrev_b32 v2, 16, v3
v_and_b32 v3, 0xffff0000, v3
v_add_f32 v4, 1.0, v2
v_add_f32 v5, 1.0, v3
v_cvt_pk_bf16_f32 v5, v4, v5
s_lshl_b32 s{sT0}, s{sDS}, 16
s_and_b32 s{sT1}, s{sDS}, 0xffff0000
v_mul_f32 v6, s{sT0}, v2
v_mul_f32 v7, s{sT1}, v3
v_readlane_b32 s{sSA}, v2, 0
v_readlane_b32 s{sSA+1}, v3, 0
v_readlane_b32 s{sG1+1}, v5, 4
v_readlane_b32 s{sGA}, v2, 8
v_readlane_b32 s{sGA+1}, v3, 8
v_readlane_b32 s{sGD}, v6, 8
v_readlane_b32 s{sGD+1}, v7, 8
s_lshl_b32 s{sG1}, s{sG1+1}, 16
s_and_b32 s{sG1+1}, s{sG1+1}, 0xffff0000
v_mov_b32 v10, s{sSA}
v_mov_b32 v11, s{sSA+1}""")
    P.I(f"""s_lshl_b32 s{sT0}, s{sP}, 3
s_add_u32 s{sT0}, s{sT0}, {WS_GBF}
v_mov_b32 v8, 0
v_cmp_eq_u32 vcc, 12, v0
s_and_saveexec_b64 {sp(sT2)}, vcc
s_cbranch_execz L_nogb
buffer_store_dwordx2 v[2:3], v8, {sp(rWS,4)}, s{sT0} offen
L_nogb:
s_mov_b64 exec, {sp(sT2)}""")
    M=vROLE+8
    for r in range(8):
        st=Q+12+4*(r//3)+r%3; xr=Q+4*(r//3)+r%3
        P.I(f"""v_and_b32 v{M+2*r+1}, 0xffff0000, v{st}
v_lshlrev_b32 v{M+2*r}, 16, v{st}
v_rcp_f32 v{M+2*r+1}, v{M+2*r+1}
v_lshlrev_b32 v{vXF+2*r}, 16, v{xr}
v_and_b32 v{vXF+2*r+1}, 0xffff0000, v{xr}""")
    for r in range(8):
        P.I(f"v_pk_add_f32 {vr(vHF+2*r,2)}, {vr(vXF+2*r,2)}, {vr(M+2*r,2)} op_sel_hi:[1,0] neg_lo:[0,1] neg_hi:[0,1]")
    for r in range(8):
        P.I(f"v_pk_mul_f32 {vr(vHF+2*r,2)}, {vr(vHF+2*r,2)}, {vr(M+2*r,2)} op_sel:[0,1]")
    for r in range(8):
        P.I(f"v_pk_fma_f32 {vr(vHF+2*r,2)}, {vr(vHF+2*r,2)}, {sp(sG1)}, v[10:11]")
    O=vROLE+24
    P.I(f"v_add_u32 v2, {L_H+480}, v12")
    for ch in range(2):
        for i in range(4): P.I(f"v_cvt_pk_bf16_f32 v{O+4*ch+i}, v{vHF+4*i+ch}, v{vHF+4*i+2+ch}")
        P.I(f"ds_write_b128 v2, {vr(O+4*ch,4)} offset:{ch*HP}")

def w_setup():
    mw=vPOLL+28; L=quadsum([mw,mw+1])
    L+=f"""v_cvt_pk_bf16_f32 v3, v{mw}, v{mw+1}
v_lshlrev_b32 v4, 16, v3
v_and_b32 v5, 0xffff0000, v3
v_add_f32 v4, 1.0, v4
v_add_f32 v5, 1.0, v5
v_cvt_pk_bf16_f32 v4, v4, v5
v_lshrrev_b32 v5, 5, v{vLANE}
v_lshlrev_b32 v5, 6, v5""".split('\n')
    for k in range(4):
        L.append(f"ds_bpermute_b32 v{vGS+8+k}, v5, v3 offset:{16*k}")
        L.append(f"ds_bpermute_b32 v{vGS+2*k+1}, v5, v4 offset:{128+16*k}")
    return L
def w_side(ST):
    RAW=vPOLL; WP=vPOLL+16
    L=[]
    for k in range(4):
        L+=[f"v_lshlrev_b32 v{vGS+2*k}, 16, v{vGS+2*k+1}", f"v_and_b32 v{vGS+2*k+1}, 0xffff0000, v{vGS+2*k+1}"]
    for r in range(16): L.append(f"v_fma_f32 v{vXF+r}, v{vHF+r}, s{sGD+(r&1)}, v{vXF+r}")
    for m in range(4):
        for k in range(4):
            t=6+2*(k&1)
            L+=[f"v_lshlrev_b32 v{t}, 16, v{RAW+4*m+k}", f"v_and_b32 v{t+1}, 0xffff0000, v{RAW+4*m+k}",
                f"v_mul_f32 v{t}, v{t}, v{vGS+2*k}", f"v_mul_f32 v{t+1}, v{t+1}, v{vGS+2*k+1}", f"v_cvt_pk_bf16_f32 v{WP+4*m+k}, v{t}, v{t+1}"]
        L.append(f"buffer_store_dwordx4 {vr(WP+4*m,4)}, v{vL16}, {sp(rWJ,4)}, s{sWO+m} offen {ST}")
    return L
def w_reads():
    L=["@wait wr"]
    for m in range(4):
        if m: L.append(f"v_xor_b32 v2, {32*m}, v{vWRA}")
        for hf in range(2): L.append(f"ds_read_b64_tr_b16 {vr(vPOLL+4*m+2*hf,2)}, v{2 if m else vWRA} offset:{hf*512}")
    return L

def conv(P, side):
    ACC=16; KB=[48,48];
    def kf(b,u): return f"a[{32*b+4*u}:{32*b+4*u+3}]"
    def uf(b,s): return f"a[{64+32*b+4*s}:{64+32*b+4*s+3}]"
    def reads(vi):
        b=vi&1; L=[]
        for k in range(8):
            o=192-64*vi
            L.append(f"ds_read_b128 {uf(b,k)}, v{vUA} offset:{512*k+o}")
            for hf in range(2):
                L.append(f"ds_read_b64 a[{32*b+4*k+2*hf}:{32*b+4*k+2*hf+1}], v{vKA} offset:{512*(7-k)+o+8*hf}")
        return L
    order=sorted([(u,s) for u in range(8) for s in range(8) if u+s<8], key=lambda t:(max(t),t))
    P.extend(reads(0))
    first=set()
    for vi in range(4):
        b=vi&1; main=[]
        nxt = reads(vi+1) if vi<3 else []
        for n,(u,s) in enumerate(order):
            t=u+s; a=vr(ACC+4*t,4)
            main.append(f"v_mfma_f32_16x16x32_bf16 {a}, {kf(b,u)}, {uf(b,s)}, {a if t in first else 0}"); first.add(t)
            if n>=8 and nxt: main.append(nxt.pop(0))
        assert not nxt
        m2,side=interleave(main,side,1.0 if vi<3 else 2.0)
        P.extend(m2)
    P.extend(side)
    return ACC

def conv_epilogue(P, ACC):
    RAW=vPOLL; WP=vPOLL+16; S=vGS+12
    P.I(f"s_mov_b32 s{sT4}, 0x3f803f80")
    for k in range(8): P.I(f"v_mov_b32 v{S+k}, 0")
    dots=[]
    for k in range(4):
        for m in range(4):
            dots+= [f"v_dot2c_f32_bf16 v{S+2*m}, s{sT4}, v{WP+4*m+k}", f"v_dot2c_f32_bf16 v{S+2*m+1}, v{vGS+8+k}, v{RAW+4*m+k}"]
    for t in range(8):
        P.I(f"ds_write_b128 v{vYW}, {vr(ACC+4*t,4)} offset:{L_Y+1280*t}")
        P.extend(dots[4*t:4*t+4])
    P.I(f"s_lshl_b32 s{sT0}, s{sW}, 11\ns_add_u32 s{sT0}, s{sT0}, {L_S}\nv_lshl_add_u32 v2, v{vLANE}, 3, s{sT0}")
    for m in range(4): P.I(f"ds_write_b64 v2, {vr(S+2*m,2)} offset:{512*m}")
    P.I(f"""v_lshrrev_b32 v3, 5, v0
v_lshlrev_b32 v3, 18, v3
v_and_b32 v4, 31, v0
v_lshl_add_u32 v3, v4, 4, v3
s_lshr_b32 s{sT0}, s{sP}, 2
s_lshl_b32 s{sT0}, s{sT0}, 9
s_and_b32 s{sT1}, s{sP}, 3
s_lshl_b32 s{sT1}, s{sT1}, 2
s_add_u32 s{sT0}, s{sT0}, s{sT1}
s_add_u32 s{sT0}, s{sT0}, {WS_X1F}
s_waitcnt lgkmcnt(0)
s_barrier""")
    Y=48
    for g in range(2):
        for ch in range(2):
            for vh in range(2):
                P.I(f"ds_read_b128 {vr(Y+16*g+8*ch+4*vh,4)}, v{vYR} offset:{L_Y+(2*ch+vh)*10240+320*g}")
    A=80
    P.I(f"v_bfe_u32 v5, v0, 5, 2\nv_lshlrev_b32 v6, 9, v5\nv_lshl_add_u32 v6, v4, 3, v6\nv_add_u32 v6, {L_S}, v6")
    for w in range(4):
        for h in range(2): P.I(f"ds_read_b64 {vr(A+4*w+2*h,2)}, v6 offset:{2048*w+256*h}")
    for g in range(2):
        for r in range(4):
            l=4*g+r
            for ch in range(2):
                y=Y+16*g+8*ch+r
                P.I(f"v_add_f32 v{y}, v{y}, v{y+4}\nv_fma_f32 v{y}, v{y}, s{sGA+ch}, v{vXF+2*l+ch}")
            P.I(f"v_cvt_pk_bf16_f32 v{vHF+l}, v{Y+16*g+r}, v{Y+16*g+8+r}")
            P.I(f"buffer_store_dword v{vHF+l}, v3, {sp(rWS,4)}, s{sT0} offen")
            if l<7: P.I(f"s_add_u32 s{sT0}, s{sT0}, 32768")
    P.I(f"s_cmp_ge_u32 s{sW}, 2\ns_cbranch_scc1 L_noaux")
    for st in (8,4,2):
        for k in range(0,st,2): P.I(f"v_pk_add_f32 {vr(A+k,2)}, {vr(A+k,2)}, {vr(A+st+k,2)}")
    P.I(f"""s_cmp_eq_u32 s{sW}, 0
s_cselect_b32 s{sT2}, s{sWA}, s{sWA+2}
s_cselect_b32 s{sT3}, s{sWA+1}, s{sWA+3}
v_mov_b32 v5, s{sT2}
v_mov_b32 v7, s{sT3}
v_cmp_gt_u32 vcc, 32, v{vLANE}
s_lshr_b32 s{sT0}, s{sKE}, 2
s_lshl_b32 s{sT0}, s{sT0}, 9
v_cndmask_b32 v5, v7, v5, vcc
v_lshl_add_u32 v5, v4, 4, v5
s_and_b32 s{sT1}, s{sKE}, 3
s_lshl_b32 s{sT1}, s{sT1}, 2
s_add_u32 s{sT0}, s{sT0}, s{sT1}
v_cvt_pk_bf16_f32 v6, v{A}, v{A+1}
buffer_store_dword v6, v5, {sp(rWJ,4)}, s{sT0} offen
L_noaux:""")

def zero_flags(P):
    P.I(f"""s_lshl_b32 s{sT0}, s2, 6
s_add_u32 s{sT0}, s{sT0}, {WS_FLAG}
v_mov_b32 v2, 0
v_lshlrev_b32 v3, 2, v0
v_cmp_gt_u32 vcc, 16, v0
s_and_saveexec_b64 {sp(sT2)}, vcc
s_cbranch_execz L_nozf
buffer_store_dword v2, v3, {sp(rWS,4)}, s{sT0} offen
L_nozf:
s_mov_b64 exec, {sp(sT2)}""")

def build_split(P, diag, cfg):
    NT=cfg.get('NT','nt'); ST=cfg.get('ST','sc1')
    n='k1_kernel'
    entry(P,n,diag); code_prefetch(P,256)
    P.I("s_waitcnt lgkmcnt(0)"); srds(P); P.I(f"s_mov_b32 s{sTAG}, 0")
    stamp(P,1,diag)
    role_loads(P,'a',NT); wd_loads(P,NT); role_jobs(P,'a',''); wd_job(P,ST); zero_flags(P)
    stamp(P,2,diag); stamp_out(P,0,diag)
    P.I(f"L_{n}_exit:\ns_endpgm")
    n='k2_kernel'
    entry(P,n,diag)
    P.I("s_waitcnt lgkmcnt(0)"); load_params(P,NT); srds(P)
    stamp(P,1,diag)
    poll_addr(P); poll_loads(P,''); w_loads(P,NT); w_offsets(P); index_setup(P)
    stamp(P,2,diag)
    a,steps=factor_gen(); P.extend(a)
    stamp(P,3,diag)
    for s in steps: P.extend(s)
    stamp(P,4,diag)
    kgen_mfma(P); stamp(P,5,diag); k_image(P); stamp(P,6,diag); make_h(P); P.extend(w_setup())
    P.I("s_waitcnt lgkmcnt(0)\ns_barrier")
    stamp(P,7,diag)
    acc=conv(P, w_reads()+w_side(ST)); stamp(P,8,diag); conv_epilogue(P,acc)
    stamp(P,9,diag); stamp_out(P,1,diag)
    P.I(f"L_{n}_exit:\ns_endpgm")
    return [('k1_kernel',256,256,LDS_A,384),('k2_kernel',256,256,LDS_A,384)]
```

```python
from prog import *
from layout import *
from ka import sp, vr, mksrd, f32, stamp, stamp_out
import ka
rWS,rOUT = 64,68
sXCD,sIDX,sW = 72,73,75
sXB,sWB,sAB,sM0,sT0,sT1,sT2,sT3 = 76,77,78,79,80,81,82,83
sA0,sA1,sD0,sD1,sFL,sCNT,sX1,sK = 84,85,86,87,88,89,90,92
vLANE,vL16 = 1,2
RING=144
LDS_C=RING*1024
def entry(P,name,diag):
    P.I(f".globl {name}\n.p2align 8\n.type {name},@function\n{name}:\n@reset")
    P.I(f"""s_cmp_ge_u32 s2, 256
s_cbranch_scc1 L_{name}_exit
s_load_dwordx2 s[8:9], s[0:1], 136
s_load_dwordx2 s[10:11], s[0:1], 120
s_and_b32 s{sXCD}, s2, 7
s_lshr_b32 s{sIDX}, s2, 3
v_and_b32 v{vLANE}, 63, v0
v_lshrrev_b32 v3, 6, v0
v_lshlrev_b32 v{vL16}, 4, v{vLANE}
v_readfirstlane_b32 s{sW}, v3""")
    if diag: P.I("v_mov_b32 v255, 0")
    stamp(P,0,diag)
def srds(P):
    P.I("s_waitcnt lgkmcnt(0)")
    P.extend(mksrd(rWS,8,WS_USED)); P.extend(mksrd(rOUT,10,2097152))

X=128
def c_maps(P):
    P.I(f"""s_lshr_b32 s{sT0}, s{sXCD}, 2
s_lshl_b32 s{sT0}, s{sT0}, 5
s_and_b32 s{sT1}, s{sIDX}, 28
s_add_u32 s{sT0}, s{sT0}, s{sT1}
s_add_u32 s{sT0}, s{sT0}, s{sW}
s_and_b32 s{sT1}, s{sXCD}, 3
s_lshl_b32 s{sT2}, s{sT1}, 2
s_and_b32 s{sT3}, s{sIDX}, 3
s_add_u32 s{sT2}, s{sT2}, s{sT3}
s_lshl_b32 s{sXB}, s{sT0}, 15
s_add_u32 s{sXB}, s{sXB}, {WS_X1F}
s_mul_i32 s{sWB}, s{sT2}, {7*33*1024}
s_add_u32 s{sWB}, s{sWB}, {WS_WPF}
s_mul_i32 s{sAB}, s{sT0}, 112
s_mul_i32 s{sT2}, s{sT2}, 7
s_add_u32 s{sAB}, s{sAB}, s{sT2}
s_lshl_b32 s{sAB}, s{sAB}, 10
s_add_u32 s{sAB}, s{sAB}, {WS_ACT}
s_lshr_b32 s{sFL}, s{sT0}, 1
s_lshl_b32 s{sFL}, s{sFL}, 2
s_add_u32 s{sFL}, s{sFL}, s{sT1}
s_lshl_b32 s{sFL}, s{sFL}, 7
s_and_b32 s{sT0}, s{sT0}, 1
s_lshl_b32 s{sT0}, s{sT0}, 2
s_add_u32 s{sT0}, s{sT0}, s{sT3}
s_lshl_b32 s{sT0}, s{sT0}, 2
s_add_u32 s{sFL}, s{sFL}, s{sT0}
s_add_u32 s{sFL}, s{sFL}, {WS_FLAG}""")
def d_maps(P):
    P.I(f"""s_lshl_b32 s{sT0}, s{sXCD}, 2
s_lshr_b32 s{sT1}, s{sIDX}, 3
s_add_u32 s{sT0}, s{sT0}, s{sT1}
s_and_b32 s{sT1}, s{sIDX}, 7
s_mul_i32 s{sT2}, s{sW}, {28*1024}
s_mul_i32 s{sA0}, s{sT0}, {224*1024}
s_add_u32 s{sA0}, s{sA0}, s{sT2}
s_add_u32 s{sA0}, s{sA0}, {WS_ACT}
s_add_u32 s{sA1}, s{sA0}, {112*1024}
s_mul_i32 s{sD0}, s{sT1}, {224*1024}
s_add_u32 s{sD0}, s{sD0}, s{sT2}
s_add_u32 s{sD0}, s{sD0}, {WS_WDF}
s_add_u32 s{sD1}, s{sD0}, {112*1024}
s_lshl_b32 s{sK}, s{sT0}, 2
s_add_u32 s{sK}, s{sK}, s{sW}
s_lshl_b32 s{sK}, s{sK}, 7
s_add_u32 s{sK}, s{sK}, {WS_FLAG}
s_lshl_b32 s{sX1}, s{sT0}, 1
s_lshr_b32 s{sT2}, s{sW}, 1
s_add_u32 s{sX1}, s{sX1}, s{sT2}
s_lshl_b32 s{sX1+1}, s{sT1}, 1
s_and_b32 s{sT2}, s{sW}, 1
s_add_u32 s{sX1+1}, s{sX1+1}, s{sT2}""")

def wd_load_list():
    L=[]
    for f in range(28):
        for m,s in ((0,sD0),(1,sD1)):
            a=8*f+4*m
            L.append(f"buffer_load_dwordx4 a[{a}:{a+3}], v{vL16}, {sp(rWS,4)}, s{s} offen offset:{(f%4)*1024}")
        if f%4==3 and f<27: L+= [f"s_add_u32 s{sD0}, s{sD0}, 4096", f"s_add_u32 s{sD1}, s{sD1}, 4096"]
    return L

def phase_c(P, cfg, diag, wd_side):
    ST=cfg.get('AST','sc1')
    xr=lambda ks: vr(124+4*ks,4) if ks<32 else vr(44,4)
    ACC=[60+16*i for i in range(4)]
    WF=[20+4*i for i in range(6)]; NWF=6
    SQ,SM,ONE=48,52,56
    C0,C1,IR2=4,5,6; TA=8
    RA=[3,7,252]
    OUTR=[16,16]
    seq=[(t,ks) for ks in range(32) for t in range(G1)]
    AUXAT=cfg.get('AUXAT',10)
    t3=[(G1,ks) for ks in range(33)]
    seq+= t3[:AUXAT]+[(t,32) for t in range(G1)]+t3[AUXAT:]
    for t in range(G1+1,7): seq+=[(t,ks) for ks in range(33)]
    N=len(seq); assert N==231
    def gpos(t,ks): return (G1*ks+t) if t<G1 else 33*t+ks
    bounds=cfg.get('STG',[0,12,24,48,72,96,112,128,144,160,176,192,208,224,232])
    nst=len(bounds)-1
    for s in range(nst):
        assert sorted(gpos(*x) for x in seq[bounds[s]:bounds[s+1]])==list(range(bounds[s],min(bounds[s+1],N))), s
        assert bounds[s]//RING==(bounds[s+1]-1)//RING
    sizes_=sorted({(bounds[s+1]-bounds[s])//4 for s in range(nst)})
    QR={c:12+2*i for i,c in enumerate(sizes_)}
    for c,r in QR.items(): P.I(f"s_mul_i32 s{r}, s{sW}, {c*1024}\ns_add_u32 s{r+1}, s{r}, s{sWB}")
    stage_dma=[]
    for s in range(nst):
        c=(bounds[s+1]-bounds[s])//4; L=[]
        for u in range(c):
            if u%4==0: L+=[f"s_add_u32 m0, s{QR[c]}, {(bounds[s]%RING+u)*1024}", f"s_add_u32 s{sT0}, s{QR[c]+1}, {(bounds[s]+u)*1024}"]
            L.append((f"buffer_load_dwordx4 v{vL16}, {sp(rWS,4)}, s{sT0} offen offset:{(u%4)*1024} lds",f"w{s}"))
        stage_dma.append(L)
    def xload(ks):
        L=[f"buffer_load_dwordx4 {xr(ks)}, v{vL16}, {sp(rWS,4)}, s{sXB} offen offset:{(ks%4)*1024}"]
        if ks%4==3 and ks<31: L.append(f"s_add_u32 s{sXB}, s{sXB}, 4096")
        return L
    srds(P)
    stamp(P,1,diag)
    xdone=0; issued=0
    def issue_stage(s):
        nonlocal xdone
        L=[]
        need=max([ks for t,ks in seq[bounds[s]:min(bounds[s+1],N)] if ks<32]+[-1])+1
        while xdone<need: L+=xload(xdone); xdone+=1
        return L+stage_dma[s]
    PRE=cfg.get('PRE',4)
    for s in range(PRE): P.extend(issue_stage(s))
    issued=PRE
    P.I(f"""v_mov_b32 v{RA[0]}, v{vL16}
v_add_u32 v{RA[1]}, 0x10000, v{vL16}
v_add_u32 v{RA[2]}, 0x20000, v{vL16}
v_and_b32 v8, 15, v{vLANE}
v_bfe_u32 v9, v{vLANE}, 4, 1
v_cmp_eq_u32 vcc, v8, v9
v_mov_b32 v10, 0x3f803f80
v_cndmask_b32 v{ONE}, 0, v10, vcc
v_cndmask_b32 v{ONE+1}, 0, v10, vcc
v_cndmask_b32 v{ONE+2}, 0, v10, vcc
v_cndmask_b32 v{ONE+3}, 0, v10, vcc""")
    def rd(n):
        pos=(gpos(*seq[n])%RING)*1024
        return f"ds_read_b128 {vr(WF[n%NWF],4)}, v{RA[pos>>16]} offset:{pos&0xffff}"
    def accof(t): return ACC[t] if t<4 else ACC[t-4]
    def epi(t):
        a=accof(t); L=[]
        for i2 in range(4):
            T=TA+4*(i2&1)
            ia=[2*i2,2*i2+1]
            L+=[f"v_mul_f32 v{T+k}, v{a+i}, v{a+i}" for k,i in enumerate(ia)]
            L+=[f"v_fma_f32 v{T+k}, v{T+k}, v{C1}, v{C0}" for k,i in enumerate(ia)]
            L+=[f"v_mul_f32 v{T+k}, v{T+k}, v{a+i}" for k,i in enumerate(ia)]
            L+=[f"v_exp_f32 v{T}, v{T}", f"v_mul_f32 v{T+2}, v{a+ia[0]}, v{a+8+ia[0]}", f"v_exp_f32 v{T+1}, v{T+1}", f"v_mul_f32 v{T+3}, v{a+ia[1]}, v{a+8+ia[1]}"]
            L+=[f"v_fma_f32 v{T+k}, v{T+k}, v{IR2}, v{IR2}" for k in range(2)]
            L+=[f"v_rcp_f32 v{T}, v{T}", f"v_rcp_f32 v{T+1}, v{T+1}"]
            L+=[f"v_mul_f32 v{T+2}, v{T+2}, v{T}", f"v_mul_f32 v{T+3}, v{T+3}, v{T+1}"]
            L+=[f"v_cvt_pk_bf16_f32 v{16+i2}, v{T+2}, v{T+3}"]
        L.append((f"buffer_store_dwordx4 v[16:19], v{vL16}, {sp(rWS,4)}, s{sAB} offen offset:{(t%4)*1024} {ST}",'act'))
        if t==3: L.append(f"s_add_u32 s{sAB}, s{sAB}, 4096")
        return L
    k0=-2*0.7978845608028654*1.4426950408889634; k1=k0*0.044715
    fin=f"""v_and_b32 v8, 3, v{vLANE}
v_cmp_eq_u32 vcc, 1, v8
v_cmp_eq_u32 {sp(sT2)}, 2, v8
v_and_b32 v10, 16, v{vLANE}
v_cndmask_b32 v9, v{SQ}, v{SQ+1}, vcc
v_cmp_eq_u32 vcc, 3, v8
v_cndmask_b32 v9, v9, v{SQ+2}, {sp(sT2)}
v_and_b32 v11, 15, v{vLANE}
v_cndmask_b32 v9, v9, v{SQ+3}, vcc
v_lshlrev_b32 v11, 2, v11
v_cmp_eq_u32 vcc, 0, v10
ds_bpermute_b32 v12, v11, v{SM}
ds_bpermute_b32 v13, v11, v{SM+1}
v_mov_b32 v8, v9
v_nop
v_nop
v_permlane32_swap_b32 v8, v9
v_add_f32 v9, v8, v9
v_mul_f32 v9, 0x3b000000, v9
v_cndmask_b32 v12, v13, v12, vcc
v_mul_f32 v12, 0x3b000000, v12
v_fma_f32 v9, -v12, v12, v9
v_max_f32 v9, 0, v9
v_cvt_pk_bf16_f32 v9, v9, v9
v_and_b32 v9, 0xffff0000, v9
v_add_f32 v9, 0x3727c5ac, v9
v_cvt_pk_bf16_f32 v9, v9, v9
v_and_b32 v9, 0xffff0000, v9
v_sqrt_f32 v9, v9
v_nop
v_cvt_pk_bf16_f32 v44, -v12, v9
v_and_b32 v9, 0xffff0000, v44
v_mov_b32 v45, v44
v_rcp_f32 v8, v9
v_mov_b32 v46, v44
v_mov_b32 v47, v44
v_mul_f32 v{IR2}, v9, v9
v_mul_f32 v{C0}, {hex(f32(k0))}, v8
v_mul_f32 v10, v8, v8
v_mul_f32 v{C1}, {hex(f32(k1))}, v8
v_mul_f32 v{C1}, v{C1}, v10""".split('\n')
    done_at={}
    for n,(t,ks) in enumerate(seq): done_at[t]=n if ks==32 else done_at.get(t,-1)
    first_at={}
    for n,(t,ks) in enumerate(seq): first_at.setdefault(t,n)
    side=[(96+1,x) for x in fin]
    for t in range(6): side+=[(done_at[t]+3,x) for x in epi(t)]
    marks={}
    LOOK=cfg.get('LOOK',4)
    PER=cfg.get('PER',4.0)
    def cost(x):
        s=x[0] if isinstance(x,tuple) else x
        return 2 if s.split()[0] in TRANS else 1
    pend=[]
    def stage_of(n):
        for s in range(nst):
            if bounds[s]<=n<bounds[s+1]: return s
    def open_stage(s):
        nonlocal issued
        P.I(f"@wait w{s}\ns_barrier")
        while issued<nst and (bounds[issued+1]<=RING or (s>=2 and bounds[issued+1]-RING<=bounds[s-1])):
            pend.extend(issue_stage(issued)); issued+=1
            if bounds[issued]<=RING: break
    open_stage(0)
    for n in range(LOOK): P.I(rd(n))
    budget=0.0; started=set(); wd_from=cfg.get('WDFROM',100); wd_per=cfg.get('WDPER',0.3); wdb=0.0
    for n,(t,ks) in enumerate(seq):
        a=accof(t)
        if t>=4 and ks==0:
            while side and side[0][0]<=done_at[t-4]+3: P.extend([side.pop(0)[1]])
        if ks==32 and t==0:
            while side and side[0][0]<=97: P.extend([side.pop(0)[1]])
        P.I(f"v_mfma_f32_32x32x16_bf16 {vr(a,16)}, {vr(WF[n%NWF],4)}, {xr(ks)}, {vr(a,16) if t in started else 0}"); started.add(t)
        if n<96:
            x=124+4*ks
            if t==0: P.I(f"v_mfma_f32_4x4x4_16b_bf16 {vr(SQ,4)}, {vr(x,2)}, {vr(x,2)}, {vr(SQ,4) if ks else 0}")
            if t==1: P.I(f"v_mfma_f32_4x4x4_16b_bf16 {vr(SQ,4)}, {vr(x+2,2)}, {vr(x+2,2)}, {vr(SQ,4)}")
            if t==2: P.I(f"v_mfma_f32_16x16x32_bf16 {vr(SM,4)}, {vr(ONE,4)}, {vr(x,4)}, {vr(SM,4) if ks else 0}")
        m=n+LOOK
        if m<N:
            if m in bounds:
                while pend and any(isinstance(q,tuple) and q[1]==f"w{bounds.index(m)}" for q in pend): P.extend([pend.pop(0)])
                open_stage(bounds.index(m))
            P.I(rd(m))
        used=0
        while pend:
            q=pend.pop(0); P.extend([q]); s=q[0] if isinstance(q,tuple) else q
            if s.startswith('buffer'): used=1; break
        if not used and wd_side and n>=wd_from:
            wdb+=wd_per
            while wdb>=1 and wd_side:
                q=wd_side.pop(0); P.extend([q])
                if q.startswith('buffer'): wdb-=1; used=1
        budget=min(budget+PER-used, PER+1)
        while side and side[0][0]<=n and cost(side[0][1])<=budget:
            budget-=cost(side[0][1]); P.extend([side.pop(0)[1]])
        if n==95: stamp(P,2,diag)
    stamp(P,3,diag)
    left=len(side)
    P.extend([x for _,x in side]); P.extend(epi(6))
    return left

def phase_d(P, cfg, diag, wd_rest, LD):
    ACC=[4+16*i for i in range(4)]
    B0=68; NB=44
    XR=244
    loads=[]
    for f in range(28):
        for n,s in ((0,sA0),(1,sA1)):
            k=2*f+n; b=B0+4*(k%NB)
            L=[f"buffer_load_dwordx4 {vr(b,4)}, v{vL16}, {sp(rWS,4)}, s{s} offen offset:{(f%4)*1024} {LD}"]
            if n==1 and f%4==3 and f<27: L+=[f"s_add_u32 s{sA0}, s{sA0}, 4096", f"s_add_u32 s{sA1}, s{sA1}, 4096"]
            loads.append(L)
    nwd=sum(1 for q in wd_rest if q.startswith('buffer')); f0=28-nwd//2
    def wd_upto(f):
        nonlocal f0
        while wd_rest and f0<=f:
            c=0
            while wd_rest and (c<2 or not wd_rest[0].startswith('buffer')):
                q=wd_rest.pop(0); P.I(q); c+=q.startswith('buffer')
            f0+=1
    li=0
    AH=cfg.get('DAHEAD',NB//2)
    for f in range(AH):
        wd_upto(f); P.extend(loads[2*f]); P.extend(loads[2*f+1])
    li=AH
    extra=[f"s_lshl_b32 s{sT0}, s{sX1}, 15", f"s_lshl_b32 s{sT1}, s{sX1+1}, 11", f"s_add_u32 s{sT0}, s{sT0}, s{sT1}", f"s_add_u32 s{sT0}, s{sT0}, {WS_X1F}",
           f"buffer_load_dwordx4 {vr(XR,4)}, v{vL16}, {sp(rWS,4)}, s{sT0} offen", f"buffer_load_dwordx4 {vr(XR+4,4)}, v{vL16}, {sp(rWS,4)}, s{sT0} offen offset:1024",
           f"s_lshl_b32 s{sT0}, s{sX1+1}, 7", f"s_add_u32 s{sT0}, s{sT0}, {WS_GBF}", f"v_and_b32 v3, 32, v{vLANE}"]
    extra+=[f"buffer_load_dwordx4 a[{224+4*q}:{227+4*q}], v3, {sp(rWS,4)}, s{sT0} offen offset:{64*(q>>1)+16*(q&1)}" for q in range(4)]
    for f in range(28):
        for n in range(2):
            b=B0+4*((2*f+n)%NB)
            for m in range(2):
                a=ACC[2*n+m]
                P.I(f"v_mfma_f32_32x32x16_bf16 {vr(a,16)}, a[{8*f+4*m}:{8*f+4*m+3}], {vr(b,4)}, {vr(a,16) if f else 0}")
        if li<28:
            wd_upto(li); P.extend(loads[2*li]); P.extend(loads[2*li+1]); li+=1
        elif extra: P.extend(extra); extra=[]
    stamp(P,6,diag)
    P.I(f"s_lshl_b32 s{sT0}, s{sW}, 12\nv_add_u32 v3, s{sT0}, v{vL16}\ns_lshl_b32 s{sT0}, s{sW}, 14\nv_add_u32 v252, s{sT0}, v{vL16}")
    if cfg.get('fused_cd'): P.I("s_barrier")
    for t in range(4):
        for q in range(4): P.I(f"ds_write_b128 v3, {vr(ACC[t]+4*q,4)} offset:{t*16384+q*1024}")
    P.I(f"""s_lshr_b32 s{sT0}, s{sX1}, 3
s_lshl_b32 s{sT0}, s{sT0}, 8
s_and_b32 s{sT1}, s{sX1}, 7
s_add_u32 s{sT0}, s{sT0}, s{sT1}
s_lshl_b32 s{sT0}, s{sT0}, 10
s_lshl_b32 s{sT1}, s{sX1+1}, 6
s_add_u32 s{sT0}, s{sT0}, s{sT1}
v_and_b32 v253, 31, v{vLANE}
v_lshrrev_b32 v254, 5, v{vLANE}
v_lshlrev_b32 v253, 13, v253
v_lshl_add_u32 v253, v254, 4, v253""")
    GB=140; XF=160
    for k in range(16): P.I(f"v_accvgpr_read_b32 v{GB+k}, a{224+k}")
    for k in range(8): P.I(f"v_lshlrev_b32 v{XF+2*k}, 16, v{XR+k}\nv_and_b32 v{XF+2*k+1}, 0xffff0000, v{XR+k}")
    P.I("s_waitcnt lgkmcnt(0)\ns_barrier")
    R=68
    for q in range(4):
        for w in range(4): P.I(f"ds_read_b128 {vr(R+16*w+4*q,4)}, v252 offset:{w*4096+q*1024}")
    for hq in range(2):
        for k in range(8*hq,8*hq+8,2):
            P.I(f"v_pk_add_f32 {vr(R+k,2)}, {vr(R+k,2)}, {vr(R+16+k,2)}\nv_pk_add_f32 {vr(R+32+k,2)}, {vr(R+32+k,2)}, {vr(R+48+k,2)}")
        for k in range(8*hq,8*hq+8,2):
            P.I(f"v_pk_add_f32 {vr(R+k,2)}, {vr(R+k,2)}, {vr(R+32+k,2)}")
        for k in range(8*hq,8*hq+8,2):
            P.I(f"v_pk_fma_f32 {vr(R+k,2)}, {vr(R+k,2)}, {vr(GB+k,2)}, {vr(XF+k,2)}")
        for k in range(8*hq,8*hq+8,2):
            P.I(f"v_cvt_pk_bf16_f32 v{180+k//2}, v{R+k}, v{R+k+1}")
        P.I(f"buffer_store_dwordx4 {vr(180+4*hq,4)}, v253, {sp(rOUT,4)}, s{sT0} offen offset:{32*hq}")

def build_split(P, diag, cfg):
    n='k3_kernel'
    entry(P,n,diag); c_maps(P)
    left=phase_c(P,dict(cfg,AST=cfg.get('AST','')),diag,None)
    print('phase C: side instrs left exposed', left)
    stamp(P,4,diag); stamp_out(P,2,diag)
    P.I(f"L_{n}_exit:\ns_endpgm")
    n='k4_kernel'
    entry(P,n,diag); d_maps(P); srds(P); stamp(P,1,diag)
    phase_d(P,dict(cfg,DAHEAD=14),diag,wd_load_list(),'')
    stamp(P,7,diag); stamp_out(P,3,diag)
    P.I(f"L_{n}_exit:\ns_endpgm")
    return [('k3_kernel',256,256,LDS_C,256),('k4_kernel',256,256,98304,512)]
```

```python
WS_EPOCH = 0x0
WS_GBF   = 0x1000
WS_SG    = 0x10000
WS_MG    = 0x20000
WS_FLAG  = 0x40000
WS_STAMP = 0x1400000
WS_XG    = 0x100000
WS_X1F   = 0x400000
WS_WPF   = 0x600000
WS_WDF   = 0xA00000
WS_ACT   = 0xC00000
WS_DBG   = 0x1600000
WS_USED  = 0x2000000
FP   = 544
L_F  = 0
L_Y  = 0
L_S  = 40960
L_KI = 69632
KIP  = 4160
L_H  = 102912
HP   = 4608
L_C  = 112128
L_WR = 115328
L_DR = 131712
L_MR = 139904
L_SC = 156288
LDS_A = 156544
HI = [c+128*e for e in range(2) for c in range(8)] + [256+2*c+128*e for e in range(2) for c in range(4)] + [512+4*c+128*e for e in range(4) for c in range(2)] + [1024+128*e for e in range(8)] + [2048]
G1 = 3
```

```python
import re, subprocess, collections

TRANS = ('v_exp_f32','v_log_f32','v_rcp_f32','v_rsq_f32','v_sqrt_f32','v_sin_f32','v_cos_f32','v_rcp_iflag_f32')
def regs_of(tok):
    tok = tok.strip()
    tok = tok.lstrip('-')
    if tok.startswith('abs('): tok = tok[4:-1]
    if tok.startswith('|'): tok = tok.strip('|')
    m = re.fullmatch(r'([vsa])(\d+)', tok)
    if m: return [(m.group(1), int(m.group(2)))]
    m = re.fullmatch(r'([vsa])\[(\d+):(\d+)\]', tok)
    if m: return [(m.group(1), i) for i in range(int(m.group(2)), int(m.group(3))+1)]
    if tok == 'vcc': return [('s','vcc')]
    if tok in ('vcc_lo','vcc_hi'): return [('s','vcc')]
    if tok == 'exec' or tok in ('exec_lo','exec_hi'): return [('s','exec')]
    if tok == 'm0': return [('s','m0')]
    return []

class Ins:
    __slots__=('text','op','ops','mods','defs','uses','kind','tag','label','target','passes','srcc','size','note','srcab')
    def __init__(self, text, tag=None):
        self.text = text; self.tag = tag; self.label=None; self.target=None; self.passes=0; self.srcc=[]; self.srcab=[]; self.size=None; self.note=None
        t = text.split(';')[0].strip()
        if t.endswith(':'):
            self.label = t[:-1]; self.op='label'; self.kind='label'; self.defs=[]; self.uses=[]; self.ops=[]; self.mods=''
            return
        if t.startswith('.') or t.startswith('@'):
            self.op = t.split()[0]; self.kind='pseudo'; self.defs=[]; self.uses=[]; self.ops=t.split()[1:]; self.mods=''
            return
        sp = t.split(None,1)
        op = sp[0]; rest = sp[1] if len(sp)>1 else ''
        parts=[]; cur=''; d=0
        for ch in rest:
            if ch in '[(': d+=1
            if ch in '])': d-=1
            if ch==',' and d==0: parts.append(cur); cur=''
            else: cur+=ch
        if cur.strip(): parts.append(cur)
        mods=''
        if parts:
            last = parts[-1].strip().split(None,1)
            parts[-1]=last[0]
            if len(last)>1: mods=last[1]
        self.ops=[p.strip() for p in parts]; self.mods=mods
        base = re.sub(r'_(e32|e64|dpp|sdwa)$','',op)
        self.op = base
        R=[regs_of(p) for p in self.ops]
        flat=lambda L:[x for l in L for x in l]
        defs=[]; uses=[]
        if base.startswith('v_mfma'):
            self.kind='mfma'; defs=R[0]; uses=flat(R[1:]); self.srcc=R[3]; self.srcab=R[1]+R[2]
            self.passes = 8 if '32x32x16' in base else 4 if '16x16x32' in base else 2 if '4x4x4' in base else None
            assert self.passes, base
        elif base.startswith(('buffer_','global_')):
            self.kind='vmem'
            islds = ' lds' in (' '+mods) or '_lds_' in base
            if base.startswith(('buffer_wbl2','buffer_inv')): pass
            elif 'load' in base and not islds:
                defs=R[0]; uses=flat(R[1:])
                if 'd16' in base: uses+=R[0]
            elif 'atomic' in base and 'sc0' in mods:
                defs=R[0]; uses=flat(R) if base.startswith('buffer') else flat(R[1:])
            else: uses=flat(R)
            if islds: uses.append(('s','m0'))
        elif base.startswith('ds_'):
            self.kind='ds'
            if base.startswith(('ds_read','ds_bpermute','ds_permute','ds_swizzle')):
                defs=R[0]; uses=flat(R[1:])
                if 'd16' in base: uses+=R[0]
            else: uses=flat(R)
        elif base.startswith(('s_load','s_buffer_load','s_memtime','s_memrealtime')):
            self.kind='smem'; defs=R[0]; uses=flat(R[1:])
        elif base in ('s_waitcnt','s_nop','s_barrier','s_endpgm','s_sleep','s_setprio'):
            self.kind='sopp'
        elif base in ('s_branch',) or base.startswith('s_cbranch'):
            self.kind='branch'; self.target=self.ops[0]
            if 'vcc' in base: uses=[('s','vcc')]
            if 'exec' in base: uses=[('s','exec')]
        elif base.startswith('s_'):
            self.kind='salu'
            if base.startswith(('s_cmp','s_bitcmp')): uses=flat(R)
            else:
                defs=R[0]; uses=flat(R[1:])
                if 'saveexec' in base: defs=defs+[('s','exec')]; uses.append(('s','exec'))
                if base in ('s_addk_i32','s_mulk_i32'): uses+=R[0]
        elif base.startswith('v_'):
            self.kind='valu'
            if base.startswith('v_permlane') and 'swap' in base: defs=R[0]+R[1]; uses=R[0]+R[1]
            elif base in ('v_add_co_u32','v_sub_co_u32','v_addc_co_u32','v_subb_co_u32'): defs=R[0]+R[1]; uses=flat(R[2:])
            elif base=='v_nop': pass
            else:
                defs=R[0]; uses=flat(R[1:])
                if base.startswith(('v_fmac','v_dot2c','v_writelane','v_pk_fmac')) or 'dpp' in op or 'row_' in mods or 'quad_perm' in mods or 'sdwa' in op: uses+=R[0]
                if base.startswith('v_cmpx'): defs=defs+[('s','exec')]
        else:
            raise ValueError('unknown instr '+text)
        self.defs=defs; self.uses=uses
    def states(self):
        if self.kind in ('label','pseudo'): return 0
        if self.op=='s_nop': return int(self.ops[0],0)+1
        return 1
    def is_dpp(self): return self.kind=='valu' and ('row_' in self.mods or 'quad_perm' in self.mods or 'wave_' in self.mods or 'dpp' in self.text.split()[0])
    def is_dot(self): return self.op.startswith('v_dot')

def hazard(p, c):
    need=0
    pd=set(p.defs); cu=set(c.uses); cd=set(c.defs)
    pv = {r for r in pd if r[0] in 'va'}; ps = {r for r in pd if r[0]=='s'}
    if p.kind=='valu':
        if c.kind=='mfma' and pv & cu: need=max(need, 3 if p.is_dot() else 2)
        if p.op in TRANS and c.kind in ('valu','vmem','ds') and pv & cu: need=max(need,1)
        if c.kind=='vmem' and ps & cu: need=max(need,5)
        if c.kind=='valu' and ps & cu:
            need=max(need, 4 if c.op in ('v_readlane_b32','v_writelane_b32') else 2)
        if c.kind in ('salu','branch','smem') and ps & cu: need=max(need,1)
        if c.op in ('v_readlane_b32','v_readfirstlane_b32') and pv & cu: need=max(need,1)
        if c.kind=='valu' and c.is_dpp() and pv & cu: need=max(need,2)
        if c.op.startswith('v_permlane') and pv & cu: need=max(need,2)
        if ('s','exec') in ps:
            if c.kind=='mfma': need=max(need,4)
            if c.kind=='valu' and c.is_dpp(): need=max(need,5)
            if c.op.startswith(('v_permlane','v_readlane','v_readfirstlane','v_writelane')): need=max(need,4)
        if p.is_dot() and pv & (cu|cd) and c.kind in ('valu','vmem','ds'):
            if c.op==p.op and not (pv & set(x for o in c.ops[1:3] for x in regs_of(o))): pass
            else: need=max(need,3)
        if ('sdwa' in p.text or 'op_sel' in p.mods and not p.op.startswith('v_pk_')) and c.kind=='valu' and pv & (cu|cd): need=max(need,1)
    if p.kind=='mfma':
        idx={2:0,4:1,8:2}[p.passes]
        if c.kind=='mfma':
            if pv & set(c.srcab): need=max(need,(5,8,12)[idx])
            if pv & set(c.srcc):
                if list(p.defs)==list(c.srcc) and p.passes==c.passes: need=max(need,(2,0,0)[idx])
                else: need=max(need,(4,6,10)[idx])
            elif pv & cd: need=max(need,(5,8,12)[idx])
        elif c.kind in ('valu','vmem','ds') and pv & (cu|cd): need=max(need,(5,8,12)[idx])
        if c.kind=='valu' and set(p.srcc) & cd: need=max(need,(1,3,7)[idx])
    if p.kind=='vmem' and 'store' in p.op and ('x4' in p.op or 'x3' in p.op):
        data = regs_of(p.ops[0]) if p.op.startswith('buffer') else regs_of(p.ops[1])
        if set(data) & cd: need=max(need, 2 if c.kind=='valu' else 1)
    if p.kind=='salu' and ('s','m0') in ps and c.kind in ('vmem','ds') and ('s','m0') in cu: need=max(need,1)
    return need

class Prog:
    def __init__(self): self.ins=[]
    def I(self, text, tag=None):
        for line in text.split('\n'):
            if line.strip(): self.ins.append(Ins(line.strip(), tag))
    def extend(self, L):
        for x in L:
            if isinstance(x, Ins): self.ins.append(x)
            elif isinstance(x, tuple): self.I(x[0], x[1])
            else: self.I(x)
    def insert_waits(self):
        out=[]; saved=collections.defaultdict(list); seen=set()
        st=[([],[])]
        def need_wait(pred):
            nv=None; nl=None
            for vm,lg in st:
                for i,e in enumerate(vm):
                    if pred(e):
                        n=len(vm)-1-i; nv = n if nv is None else min(nv,n)
                for i,e in enumerate(lg):
                    if pred(e):
                        n=len(lg)-1-i
                        if any(x[2] for x in lg): n=0
                        nl = n if nl is None else min(nl,n)
            return nv,nl
        def apply(nv,nl):
            for k,(vm,lg) in enumerate(st):
                if nv is not None and len(vm)>nv: del vm[:len(vm)-nv]
                if nl is not None and len(lg)>nl:
                    if nl==0 or not any(x[2] for x in lg): del lg[:len(lg)-nl]
        def emit(nv,nl):
            if nv is not None: nv=min(nv,63)
            if nl is not None: nl=min(nl,15)
            t='s_waitcnt'+(f' vmcnt({nv})' if nv is not None else '')+(f' lgkmcnt({nl})' if nl is not None else '')
            if out and out[-1].op=='s_waitcnt' and out[-1].note=='auto':
                pv=re.search(r'vmcnt\((\d+)\)',out[-1].text); pl=re.search(r'lgkmcnt\((\d+)\)',out[-1].text)
                mv = nv if pv is None else (int(pv.group(1)) if nv is None else min(nv,int(pv.group(1))))
                ml = nl if pl is None else (int(pl.group(1)) if nl is None else min(nl,int(pl.group(1))))
                out.pop()
                t='s_waitcnt'+(f' vmcnt({mv})' if mv is not None else '')+(f' lgkmcnt({ml})' if ml is not None else '')
            w=Ins(t); w.note='auto'; out.append(w); apply(nv,nl)
        for x in self.ins:
            if x.kind=='label':
                seen.add(x.label)
                st = st + saved.pop(x.label,[])
                u=[]
                for s in st:
                    if s not in u: u.append(s)
                st=u
                out.append(x); continue
            if x.op=='@wait':
                tags=set(x.ops)
                nv,nl=need_wait(lambda e: e[1] in tags)
                if nv is not None or nl is not None: emit(nv,nl)
                continue
            if x.op=='@reset':
                st=[([],[])]; continue
            if x.kind=='pseudo': out.append(x); continue
            touched=set(x.uses)|set(x.defs)
            if touched:
                if x.kind=='ds' and x.defs and 'd16' in x.op:
                    touched2=set(x.uses)-set(x.defs)
                    nv,_=need_wait(lambda e: e[0] & touched); _,nl=need_wait(lambda e: e[0] & touched2)
                else:
                    nv,nl=need_wait(lambda e: e[0] & touched)
                if nv is not None or nl is not None: emit(nv,nl)
            if x.op=='s_waitcnt':
                pv=re.search(r'vmcnt\((\d+)\)',x.text); pl=re.search(r'lgkmcnt\((\d+)\)',x.text)
                apply(int(pv.group(1)) if pv else None, int(pl.group(1)) if pl else None)
            out.append(x)
            if x.kind=='vmem':
                for vm,lg in st: vm.append((frozenset(x.defs),x.tag,False))
            elif x.kind=='ds':
                for vm,lg in st: lg.append((frozenset(x.defs),x.tag,False))
            elif x.kind=='smem':
                for vm,lg in st: lg.append((frozenset(x.defs),x.tag,True))
            elif x.kind=='branch':
                if x.target in seen:
                    for vm,lg in st:
                        assert not any(e[0] for e in vm) and not any(e[0] for e in lg), f'loads pending at backward branch {x.text}'
                else:
                    saved[x.target] += [(list(vm),list(lg)) for vm,lg in st]
                if x.op=='s_branch': st=[]
            elif x.op=='s_endpgm': st=[]
        self.ins=out
    def insert_nops(self, verbose=False):
        total=0
        while True:
            L=self.ins; added=0
            brs=collections.defaultdict(list)
            for x in L:
                if x.kind=='branch': brs[x.target].append(x)
            i=0
            while i<len(L):
                c=L[i]
                if c.kind in ('label','pseudo','sopp'): i+=1; continue
                worst=0; who=None
                stack=[(i-1,0)]; visited=set()
                while stack:
                    j,dist=stack.pop()
                    while j>=0 and dist<13:
                        p=L[j]
                        if p.kind=='label':
                            if (j,dist) in visited: break
                            visited.add((j,dist))
                            for b in brs.get(p.label,[]): stack.append((L.index(b),dist))
                            k=j-1
                            while k>=0 and L[k].kind=='pseudo': k-=1
                            if k>=0 and L[k].op in ('s_branch','s_endpgm'): break
                            j-=1; continue
                        if p.kind!='pseudo':
                            if p.kind in ('valu','mfma','vmem','salu'):
                                h=hazard(p,c)
                                if h-dist>worst: worst=h-dist; who=p
                            dist+=p.states()
                        j-=1
                if worst>0:
                    n=Ins(f's_nop {worst-1}'); n.note='hz'
                    if verbose: print(f'  nop {worst}: {who.text}  ->  {c.text}')
                    L.insert(i,n); added+=worst; i+=1
                i+=1
            total+=added
            if not added: return total
    def text(self):
        out=[]
        for x in self.ins:
            if x.kind=='label' or x.text.startswith('.'): out.append(x.text)
            elif x.op.startswith('@'): continue
            else: out.append('    '+x.text)
        return '\n'.join(out)

_sz={}
def sizes(ins):
    todo=sorted({x.text.split(';')[0].strip() for x in ins if x.kind not in ('label','pseudo','branch')} - set(_sz))
    if todo:
        r=subprocess.run(['llvm-mc','-triple=amdgcn-amd-amdhsa','-mcpu=gfx950','-show-encoding'],input='\n'.join(todo)+'\n',capture_output=True,text=True)
        if r.returncode or r.stderr.strip(): print(r.stderr[:3000]); raise SystemExit('llvm-mc failed')
        enc=[l for l in r.stdout.split('\n') if 'encoding:' in l]
        assert len(enc)==len(todo),(len(enc),len(todo))
        for t,l in zip(todo,enc): _sz[t]=len(l.split('encoding:')[1].split(','))
    for x in ins:
        x.size = 0 if x.kind in ('label','pseudo') else 4 if x.kind=='branch' else _sz[x.text.split(';')[0].strip()]

E64_OK = ('v_mul_f32','v_add_f32','v_sub_f32','v_exp_f32','v_rcp_f32','v_mov_b32','v_lshlrev_b32','v_lshrrev_b32','v_and_b32','v_or_b32','v_add_u32','v_sub_u32',
          'v_sin_f32','v_cos_f32','v_fract_f32','v_sqrt_f32','v_rsq_f32','v_max_f32','v_min_f32','v_cvt_f32_u32','v_cvt_u32_f32','v_xor_b32','v_fmac_f32','v_subrev_u32','v_ashrrev_i32','v_mul_u32_u24','v_cvt_f32_i32','v_max_i32','v_min_i32','v_min_u32','v_max_u32')
def align8(P):
    sizes(P.ins)
    off=0; bad=0; run=[]
    for x in P.ins:
        if x.kind=='pseudo':
            if x.op=='.p2align': off=0; run=[]
            continue
        if x.kind=='label': continue
        if x.size>=8:
            if off%8:
                fixed=False
                for y in reversed(run):
                    w=y.text.split(None,1)
                    if y.kind=='valu' and w[0] in E64_OK and not y.is_dpp():
                        y.text=w[0]+'_e64 '+w[1]; y.size=8; off+=4; fixed=True; break
                if not fixed: bad+=1
            run=[]
        else: run.append(x)
        off+=x.size
    return bad

def interleave(main, side, per):
    out=[]; side=list(side); k=0
    def cost(t):
        s=t[0] if isinstance(t,tuple) else t
        o=s.split()[0]
        if o.startswith('@'): return 0
        return 2 if o in TRANS else 1
    budget=0.0
    for m in main:
        out.append(m)
        s=m[0] if isinstance(m,tuple) else m
        if s.startswith('v_mfma'):
            budget+=per
            while k<len(side) and cost(side[k])<=budget+1e-9:
                budget-=cost(side[k]); out.append(side[k]); k+=1
    return out, side[k:]
```

```python
import sys, json
sys.path.insert(0,'gen')
from prog import *
import ka, kc
REF='adaLN_cond__ssm_conv_s4__geglu_ffn__prompt.s.ref'
def kdesc(k,vg):
    return f""".p2align 6
.amdhsa_kernel {k}
  .amdhsa_next_free_vgpr {vg}
  .amdhsa_next_free_sgpr 102
  .amdhsa_accum_offset 256
  .amdhsa_group_segment_fixed_size 0
  .amdhsa_kernarg_size 144
  .amdhsa_user_sgpr_count 2
  .amdhsa_user_sgpr_kernarg_segment_ptr 1
  .amdhsa_system_sgpr_workgroup_id_x 1
  .amdhsa_float_denorm_mode_32 3
.end_amdhsa_kernel"""
def build(out, cfg, diag=False, verbose=False):
    P=Prog()
    L = (ka.build_fused if cfg.get('fused_ab') else ka.build_split)(P,diag,cfg)
    L+= (kc.build_fused if cfg.get('fused_cd') else kc.build_split)(P,diag,cfg)
    P.insert_waits(); nn=P.insert_nops(verbose); bad=align8(P)
    size=sum(x.size for x in P.ins)
    print(f'{out}: {len(P.ins)} lines, {size} bytes, nop states {nn}, misaligned 8B {bad}')
    hdr=[l for l in open(REF).read().split('\n') if l.startswith(';') and '@launch' not in l and 'Override launch' not in l and 'grid=ceil' not in l]
    hdr+=[f"; @launch kernel={k} grid=({g},1,1) block=({b},1,1) lds={l}" for k,g,b,l,v in L]
    pad = max(0,(33*1024-size)//4)
    txt='\n'.join(hdr)+'\n.amdgcn_target "amdgcn-amd-amdhsa--gfx950"\n.text\n'+P.text()+f'\n.rept {pad}\n    s_endpgm\n.endr\n.section .rodata,"a"\n'+'\n'.join(kdesc(k,v) for k,g,b,l,v in L)+'\n'
    open(out,'w').write(txt)
if __name__=='__main__':
    out=sys.argv[1]; cfg=json.loads(sys.argv[2]) if len(sys.argv)>2 else {}
    build(out,cfg,diag=cfg.get('diag',False),verbose=cfg.get('verbose',False))
```

```python
import sys, json
sys.path.insert(0,'gen')
from prog import *
import ka, kc
REF='adaLN_cond__ssm_conv_s4__geglu_ffn__prompt.s.ref'
def kdesc(k,vg):
    return f""".p2align 6
.amdhsa_kernel {k}
  .amdhsa_next_free_vgpr {vg}
  .amdhsa_next_free_sgpr 102
  .amdhsa_accum_offset {min(vg,256)}
  .amdhsa_group_segment_fixed_size 0
  .amdhsa_kernarg_size 144
  .amdhsa_user_sgpr_count 2
  .amdhsa_user_sgpr_kernarg_segment_ptr 1
  .amdhsa_system_sgpr_workgroup_id_x 1
  .amdhsa_float_denorm_mode_32 3
.end_amdhsa_kernel"""
def build(out, cfg, diag=False, verbose=False):
    P=Prog()
    L = (ka.build_fused if cfg.get('fused_ab') else ka.build_split)(P,diag,cfg)
    L+= (kc.build_fused if cfg.get('fused_cd') else kc.build_split)(P,diag,cfg)
    if cfg.get('empty'):
        P.I(".globl e_kernel\n.p2align 8\n.type e_kernel,@function\ne_kernel:\n@reset\ns_endpgm")
        E=[('e_kernel',256,256,0,32)]*cfg['empty']
        L = E+L if cfg.get('empty_first') else L+E
    P.insert_waits(); nn=P.insert_nops(verbose); bad=align8(P)
    size=sum(x.size for x in P.ins)
    print(f'{out}: {len(P.ins)} lines, {size} bytes, nop states {nn}, misaligned 8B {bad}')
    hdr=[l for l in open(REF).read().split('\n') if l.startswith(';') and '@launch' not in l and 'Override launch' not in l and 'grid=ceil' not in l]
    hdr+=[f"; @launch kernel={k} grid=({g},1,1) block=({b},1,1) lds={l}" for k,g,b,l,v in L]
    pad = max(0,(33*1024-size)//4)
    txt='\n'.join(hdr)+'\n.amdgcn_target "amdgcn-amd-amdhsa--gfx950"\n.text\n'+P.text()+f'\n.rept {pad}\n    s_endpgm\n.endr\n.section .rodata,"a"\n'+'\n'.join(dict.fromkeys(kdesc(k,v) for k,g,b,l,v in L))+'\n'
    open(out,'w').write(txt)
if __name__=='__main__':
    out=sys.argv[1]; cfg=json.loads(sys.argv[2]) if len(sys.argv)>2 else {}
    build(out,cfg,diag=cfg.get('diag',False),verbose=cfg.get('verbose',False))
```

```python
import sys, json
sys.path.insert(0,'gen')
from prog import *
import ka, kc
REF='adaLN_cond__ssm_conv_s4__geglu_ffn__prompt.s.ref'
def kdesc(k,vg):
    return f""".p2align 6
.amdhsa_kernel {k}
  .amdhsa_next_free_vgpr {vg}
  .amdhsa_next_free_sgpr 102
  .amdhsa_accum_offset {min(vg,256)}
  .amdhsa_group_segment_fixed_size 0
  .amdhsa_kernarg_size 144
  .amdhsa_user_sgpr_count 2
  .amdhsa_user_sgpr_kernarg_segment_ptr 1
  .amdhsa_system_sgpr_workgroup_id_x 1
  .amdhsa_float_denorm_mode_32 3
.end_amdhsa_kernel"""
def build(out, cfg, diag=False, verbose=False):
    P=Prog()
    L = (ka.build_fused if cfg.get('fused_ab') else ka.build_split)(P,diag,cfg)
    L+= (kc.build_fused if cfg.get('fused_cd') else kc.build_split)(P,diag,cfg)
    if cfg.get('empty'):
        P.I(".globl e_kernel\n.p2align 8\n.type e_kernel,@function\ne_kernel:\n@reset\ns_endpgm")
        E=[('e_kernel',256,256,0,32)]*cfg['empty']
        L = E+L if cfg.get('empty_first') else L+E
    if cfg.get('probe'):
        (ka_,ia),(kb_,ib)=cfg['probe']
        from layout import WS_STAMP
        P.I(f""".globl m_kernel
.p2align 8
.type m_kernel,@function
m_kernel:
@reset
s_cmp_lg_u32 s2, 0
s_cbranch_scc1 L_m_exit
s_load_dwordx2 s[4:5], s[0:1], 136
s_memrealtime s[10:11]
s_waitcnt lgkmcnt(0)
s_add_u32 s4, s4, {WS_STAMP}
s_addc_u32 s5, s5, 0
s_load_dword s6, s[4:5], {ka_*0x40000+ia*4}
s_load_dword s7, s[4:5], {kb_*0x40000+ib*4}
s_waitcnt lgkmcnt(0)
s_sub_u32 s6, s7, s6
s_min_u32 s6, s6, 10000
s_lshl_b32 s6, s6, 2
L_m_spin:
s_memrealtime s[12:13]
s_waitcnt lgkmcnt(0)
s_sub_u32 s12, s12, s10
s_cmp_lt_u32 s12, s6
s_cbranch_scc1 L_m_spin
L_m_exit:
s_endpgm""")
        L=L+[('m_kernel',1,64,0,32)]
    P.insert_waits(); nn=P.insert_nops(verbose); bad=align8(P)
    size=sum(x.size for x in P.ins)
    print(f'{out}: {len(P.ins)} lines, {size} bytes, nop states {nn}, misaligned 8B {bad}')
    hdr=[l for l in open(REF).read().split('\n') if l.startswith(';') and '@launch' not in l and 'Override launch' not in l and 'grid=ceil' not in l]
    hdr+=[f"; @launch kernel={k} grid=({g},1,1) block=({b},1,1) lds={l}" for k,g,b,l,v in L]
    pad = max(0,(33*1024-size)//4)
    txt='\n'.join(hdr)+'\n.amdgcn_target "amdgcn-amd-amdhsa--gfx950"\n.text\n'+P.text()+f'\n.rept {pad}\n    s_endpgm\n.endr\n.section .rodata,"a"\n'+'\n'.join(dict.fromkeys(kdesc(k,v) for k,g,b,l,v in L))+'\n'
    open(out,'w').write(txt)
if __name__=='__main__':
    out=sys.argv[1]; cfg=json.loads(sys.argv[2]) if len(sys.argv)>2 else {}
    build(out,cfg,diag=cfg.get('diag',False),verbose=cfg.get('verbose',False))
```

```python
from prog import *
from layout import *
LOG2E = 0x3fb8aa3b
sX,sARE,sAIM,sBRE,sBIM,sCRE,sCIM,sLDT,sDSK,sBX,sWG,sWU,sWD,sC,sWM,sOUT,sDBG,sWS = [8+2*i for i in range(18)]
rX,rWG,rWU,rWD,rWM,rWS,rWJ = 44,48,52,56,60,64,68
sXCD,sIDX,sP,sW,sTAG,sLD,sDS = 72,73,74,75,76,77,78
sT0,sT1,sT2,sT3,sT4,sT5 = 80,81,82,83,84,85
sSA,sG1,sGA,sGD = 86,88,90,92
sKS,sCG,sKE,sFS,sCNT = 94,95,96,97,98
sWO,sWA = 8,12
def sp(a,n=2): return f"s[{a}:{a+n-1}]"
def vr(a,n): return f"v[{a}:{a+n-1}]"
def mksrd(d,b,size):
    return [f"s_mov_b32 s{d}, s{b}", f"s_and_b32 s{d+1}, s{b+1}, 0xffff", f"s_mov_b32 s{d+2}, {size}", f"s_mov_b32 s{d+3}, 0x20000"]
vTID,vLANE = 0,1
vT = 2
vPAR = 16
vGA = 24
vROLE = 40
vFG = 120
vPOLL = 160
vXF = 192
vHF = 208
vFA,vKA,vUA,vYW,vYR,vWRA,vDRA,vL16 = 224,225,226,227,228,229,230,231
vGS = 232

def stamp(P, n, diag):
    if diag: P.I(f"s_memrealtime s[4:5]\ns_memtime s[100:101]\ns_waitcnt lgkmcnt(0)\nv_writelane_b32 v255, s4, {n}\nv_writelane_b32 v255, s100, {32+n}")
def stamp_out(P, kidx, diag):
    if diag:
        P.I(f"""s_lshl_b32 s4, s2, 10
s_add_u32 s4, s4, {WS_STAMP + kidx*0x40000}
v_lshlrev_b32 v2, 2, v0
buffer_store_dword v255, v2, {sp(rWS,4)}, s4 offen""")

def entry(P, name, diag, pref_lines=256):
    P.I(f".globl {name}\n.p2align 8\n.type {name},@function\n{name}:\n@reset")
    P.I(f"""s_cmp_ge_u32 s2, 256
s_cbranch_scc1 L_{name}_exit
s_load_dwordx16 s[8:23], s[0:1], 0
s_load_dwordx16 s[24:39], s[0:1], 64
s_load_dwordx4 s[40:43], s[0:1], 128
s_getpc_b64 s[6:7]
s_and_b32 s{sXCD}, s2, 7
s_lshr_b32 s{sIDX}, s2, 3
v_and_b32 v{vLANE}, 63, v0
v_lshrrev_b32 v2, 6, v0
s_lshl_b32 s{sP}, s{sXCD}, 5
s_add_u32 s{sP}, s{sP}, s{sIDX}
v_readfirstlane_b32 s{sW}, v2
v_lshlrev_b32 v{vL16}, 4, v{vLANE}""")
    if diag: P.I("v_mov_b32 v255, 0")
    stamp(P,0,diag)

def code_prefetch(P, nlines):
    ng = (nlines+63)//64
    assert ng&(ng-1)==0
    P.I(f"""s_and_b32 s{sT0}, s{sIDX}, {ng-1}
s_lshl_b32 s{sT0}, s{sT0}, 13
v_lshl_add_u32 v3, v{vLANE}, 7, s{sT0}
s_cmp_lg_u32 s{sW}, 3
s_cbranch_scc1 L_nopf_{len(P.ins)}""")
    lbl=P.ins[-1].target
    P.I(f"global_load_dword v15, v3, s[6:7]\n{lbl}:")

def srds(P):
    P.extend(mksrd(rWS,sWS,WS_USED)); P.extend(mksrd(rX,sX,2097152)); P.extend(mksrd(rWM,sWM,3145728))
    P.I(f"s_cmp_lt_u32 s{sIDX}, 28\ns_cselect_b32 s{sT0}, 1835008, 0\ns_cselect_b32 s{sT1}, {WS_USED}, 0")
    for r,b in ((rWG,sWG),(rWU,sWU),(rWD,sWD)): P.extend(mksrd(r,b,f"s{sT0}"))
    P.extend(mksrd(rWJ,sWS,f"s{sT1}"))
    P.I(f"""s_and_b32 s{sCG}, s{sXCD}, 3
s_mul_i32 s{sCG}, s{sCG}, 7
s_lshr_b32 s{sT0}, s{sIDX}, 2
s_add_u32 s{sCG}, s{sCG}, s{sT0}
s_and_b32 s{sKE}, s{sXCD}, 4
s_and_b32 s{sT0}, s{sIDX}, 3
s_add_u32 s{sKE}, s{sKE}, s{sT0}
s_lshl_b32 s{sKS}, s{sKE}, 2
s_add_u32 s{sKS}, s{sKS}, s{sW}
s_mul_i32 s{sFS}, s{sXCD}, 28
s_add_u32 s{sFS}, s{sFS}, s{sIDX}""")

def load_params(P, NT):
    P.I(f"s_lshl_b32 s{sT0}, s{sP}, 9\nv_lshl_add_u32 v2, v0, 1, s{sT0}")
    for i in range(6): P.I(f"v_mov_b32 v{vPAR+i}, 0")
    for i,b in enumerate((sARE,sAIM,sBRE,sBIM,sCRE,sCIM)):
        P.I(f"global_load_short_d16_hi v{vPAR+i}, v2, {sp(b)} {NT}")
    P.I(f"s_lshl_b32 s{sT0}, s{sP}, 2\ns_load_dword s{sLD}, {sp(sLDT)}, s{sT0}\ns_load_dword s{sDS}, {sp(sDSK)}, s{sT0}")

def role_loads(P, uid, NT):
    R=vROLE
    P.I(f"s_cmp_eq_u32 s{sW}, 1\ns_cbranch_scc1 L_rl1_{uid}\ns_cmp_eq_u32 s{sW}, 2\ns_cbranch_scc1 L_rl2_{uid}\ns_cmp_eq_u32 s{sW}, 3\ns_cbranch_scc1 L_rle_{uid}")
    P.I(f"""v_and_b32 v2, 7, v{vLANE}
v_lshrrev_b32 v3, 3, v{vLANE}
v_lshlrev_b32 v2, 13, v2
v_lshl_add_u32 v2, v3, 4, v2
s_lshl_b32 s{sT0}, s{sIDX}, 16
s_lshl_b32 s{sT1}, s{sXCD}, 7
s_add_u32 s{sT0}, s{sT0}, s{sT1}
s_add_u32 s{sT1}, s{sT0}, 4096""")
    for r in range(8):
        P.I(f"buffer_load_dwordx4 {vr(R+4*r,4)}, v2, {sp(rX,4)}, s{sT0 if r<4 else sT1} offen offset:{(r%4)*1024}")
    P.I(f"s_branch L_rle_{uid}\nL_rl1_{uid}:")
    P.I(f"""v_and_b32 v2, 7, v{vLANE}
v_lshrrev_b32 v3, 3, v{vLANE}
v_lshlrev_b32 v2, 4, v2
v_lshl_add_u32 v2, v3, 10, v2
s_lshl_b32 s{sT0}, s2, 13""")
    for u in range(8):
        P.I(f"buffer_load_dwordx4 {vr(R+4*u,4)}, v2, {sp(rX,4)}, s{sT0} offen offset:{u*128}")
    P.I(f"s_branch L_rle_{uid}\nL_rl2_{uid}:")
    P.I(f"""s_cmp_ge_u32 s{sIDX}, 24
s_cbranch_scc1 L_rle_{uid}
s_and_b32 s{sT2}, s{sIDX}, 3
s_lshl_b32 s{sT0}, s{sT2}, 8
v_lshl_add_u32 v2, v{vLANE}, 2, s{sT0}
global_load_dword v{R}, v2, {sp(sC)}
v_lshrrev_b32 v3, 3, v{vLANE}
v_mul_u32_u24 v3, 6144, v3
v_lshrrev_b32 v4, 3, v{vLANE}
v_and_b32 v4, 2, v4
v_and_b32 v5, 7, v{vLANE}
v_xor_b32 v4, v4, v5
v_lshl_add_u32 v3, v4, 4, v3
v_xor_b32 v4, 64, v3
s_mul_i32 s{sT0}, s{sT2}, {128*6144}
s_lshr_b32 s{sT1}, s{sIDX}, 2
s_lshl_b32 s{sT1}, s{sT1}, 10
s_add_u32 s{sT0}, s{sT0}, s{sT1}
s_lshl_b32 s{sT1}, s{sXCD}, 7
s_add_u32 s{sT0}, s{sT0}, s{sT1}""")
    for u in range(16):
        P.I(f"s_mov_b32 m0, {L_MR+u*1024}")
        if u: P.I(f"s_add_u32 s{sT0}, s{sT0}, {8*6144}")
        P.I(f"buffer_load_dwordx4 v{3+(u&1)}, {sp(rWM,4)}, s{sT0} offen {NT} lds", tag='mr')
    P.I(f"L_rle_{uid}:")

def wd_loads(P, NT):
    P.I(f"""v_lshrrev_b32 v2, 2, v{vLANE}
v_and_b32 v3, 3, v{vLANE}
v_lshlrev_b32 v3, 4, v3
v_lshl_add_u32 v2, v2, 10, v3
s_lshr_b32 s{sT0}, s{sFS}, 1
s_lshl_b32 s{sT0}, s{sT0}, 14
s_and_b32 s{sT1}, s{sFS}, 1
s_lshl_b32 s{sT1}, s{sT1}, 9
s_add_u32 s{sT0}, s{sT0}, s{sT1}
s_lshl_b32 s{sT1}, s{sW}, 7
s_add_u32 s{sT0}, s{sT0}, s{sT1}
s_lshl_b32 s{sT1}, s{sW}, 11
s_add_u32 m0, s{sT1}, {L_DR}
s_add_u32 s{sT2}, s{sT0}, 64""")
    P.I(f"buffer_load_dwordx4 v2, {sp(rWD,4)}, s{sT0} offen lds", tag='dr')
    P.I(f"s_add_u32 m0, s{sT1}, {L_DR+1024}")
    P.I(f"buffer_load_dwordx4 v2, {sp(rWD,4)}, s{sT2} offen lds", tag='dr')
    P.I(f"""v_lshrrev_b32 v2, 5, v{vLANE}
v_bfe_u32 v3, v{vLANE}, 2, 2
v_lshl_add_u32 v2, v2, 3, v3
v_bfe_u32 v3, v{vLANE}, 4, 1
v_lshl_add_u32 v2, v2, 1, v3
v_and_b32 v3, 1, v{vLANE}
v_lshl_add_u32 v2, v2, 1, v3
v_bfe_u32 v3, v{vLANE}, 1, 1
v_lshl_add_u32 v2, v2, 1, v3
s_add_u32 s{sT1}, s{sT1}, {L_DR}
v_lshl_add_u32 v{vDRA}, v2, 3, s{sT1}""")
def wd_job(P, ST):
    R=vROLE
    P.I("@wait dr")
    for u in range(2):
        for hf in range(2):
            P.I(f"ds_read_b64_tr_b16 {vr(R+4*u+2*hf,2)}, v{vDRA} offset:{u*1024+hf*256}")
    P.I(f"""s_and_b32 s{sT0}, s{sFS}, 1
s_lshl_b32 s{sT0}, s{sT0}, 2
s_add_u32 s{sT0}, s{sT0}, s{sW}
s_mul_i32 s{sT0}, s{sT0}, {2*112}
s_lshr_b32 s{sT1}, s{sFS}, 1
s_add_u32 s{sT0}, s{sT0}, s{sT1}
s_lshl_b32 s{sT0}, s{sT0}, 10
s_add_u32 s{sT0}, s{sT0}, {WS_WDF}
s_add_u32 s{sT1}, s{sT0}, {112*1024}""")
    for u in range(2):
        P.I(f"buffer_store_dwordx4 {vr(R+4*u,4)}, v{vL16}, {sp(rWJ,4)}, s{sT0+u} offen {ST}")

def w_loads(P, NT):
    P.I(f"""v_lshrrev_b32 v2, 3, v{vLANE}
v_mul_u32_u24 v2, 3584, v2
v_lshrrev_b32 v3, 3, v{vLANE}
v_and_b32 v3, 2, v3
v_and_b32 v4, 7, v{vLANE}
v_xor_b32 v3, v3, v4
v_xor_b32 v4, 4, v3
v_lshl_add_u32 v3, v3, 4, v2
v_lshl_add_u32 v4, v4, 4, v2
s_mul_i32 s{sT0}, s{sKS}, {16*3584}
s_lshl_b32 s{sT1}, s{sCG}, 7
s_add_u32 s{sT0}, s{sT0}, s{sT1}
s_add_u32 s{sT2}, s{sT0}, {8*3584}
s_lshl_b32 s{sT1}, s{sW}, 12""")
    for mat,r in ((0,rWG),(1,rWU)):
        for u in range(2):
            P.I(f"s_add_u32 m0, s{sT1}, {L_WR+mat*2048+u*1024}")
            P.I(f"buffer_load_dwordx4 v{3+mat}, {sp(r,4)}, s{sT2 if u else sT0} offen {NT} lds", tag='wr')
    P.I(f"""v_bfe_u32 v2, v{vLANE}, 4, 1
v_lshrrev_b32 v3, 5, v{vLANE}
v_lshl_add_u32 v3, v2, 1, v3
v_bfe_u32 v4, v{vLANE}, 2, 2
v_lshl_add_u32 v3, v3, 3, v4
v_lshl_add_u32 v3, v3, 1, v2
v_bfe_u32 v4, v{vLANE}, 3, 1
v_lshl_add_u32 v3, v3, 1, v4
v_and_b32 v4, 1, v{vLANE}
v_lshl_add_u32 v3, v3, 1, v4
v_bfe_u32 v4, v{vLANE}, 1, 1
v_lshl_add_u32 v3, v3, 1, v4
s_add_u32 s{sT1}, s{sT1}, {L_WR}
v_lshl_add_u32 v{vWRA}, v3, 3, s{sT1}""")

def w_offsets(P):
    for m in range(4):
        P.I(f"""s_lshl_b32 s{sT0}, s{sCG}, 2
s_add_u32 s{sT0}, s{sT0}, {m}
s_mul_i32 s{sT1}, s{sT0}, 147
s_lshr_b32 s{sT1}, s{sT1}, 10
s_mul_i32 s{sT2}, s{sT1}, 7
s_sub_u32 s{sT0}, s{sT0}, s{sT2}
s_mul_i32 s{sT1}, s{sT1}, 231
s_cmp_lt_u32 s{sT0}, {G1}
s_cselect_b32 s{sT2}, {G1}, 1
s_cselect_b32 s{sT3}, 1, 33
s_mul_i32 s{sT0}, s{sT0}, s{sT3}
s_add_u32 s{sT0}, s{sT0}, s{sT1}
s_add_u32 s{sT0}, s{sT0}, {WS_WPF>>10}
s_mul_i32 s{sT3}, s{sT2}, s{sKS}
s_add_u32 s{sT3}, s{sT3}, s{sT0}
s_lshl_b32 s{sWO+m}, s{sT3}, 10
s_lshl_b32 s{sT2}, s{sT2}, 5
s_add_u32 s{sT2}, s{sT2}, s{sT0}
s_lshl_b32 s{sWA+m}, s{sT2}, 10""")

def role_jobs(P, uid, PUB):
    R=vROLE; G=vROLE+32
    P.I(f"s_cmp_eq_u32 s{sW}, 1\ns_cbranch_scc1 L_rj1_{uid}\ns_cmp_eq_u32 s{sW}, 2\ns_cbranch_scc1 L_rj2_{uid}\ns_cmp_eq_u32 s{sW}, 3\ns_cbranch_scc1 L_rje_{uid}")
    P.I(f"""v_and_b32 v2, 7, v{vLANE}
v_lshrrev_b32 v3, 3, v{vLANE}
v_mul_u32_u24 v3, {4*12288}, v3
v_lshl_add_u32 v2, v2, 4, v3
s_mul_i32 s{sT0}, s{sXCD}, {32*12288}
s_lshl_b32 s{sT1}, s{sIDX}, 7
s_add_u32 s{sT0}, s{sT0}, s{sT1}
s_add_u32 s{sT0}, s{sT0}, {WS_XG}""")
    for k in range(12): P.I(f"v_mov_b32 v{G+4*k+3}, s{sTAG}")
    for g in range(3):
        for j in range(4):
            k=g*4+j
            for e in range(3):
                r=min(3*g+e,7)
                P.I(f"v_mov_b32 v{G+4*k+e}, v{R+4*r+j}")
            P.I(f"s_add_u32 s{sT1}, s{sT0}, {j*12288+g*4096}")
            P.I(f"buffer_store_dwordx4 {vr(G+4*k,4)}, v2, {sp(rWS,4)}, s{sT1} offen {PUB}")
    P.I(f"s_branch L_rje_{uid}\nL_rj1_{uid}:")
    P.I(f"v_mov_b32 v2, 0\nv_mov_b32 v3, 0\nv_mov_b32 v4, 0\nv_mov_b32 v5, 0\ns_mov_b32 s{sT0}, 0x3f803f80")
    for k in range(32):
        P.I(f"v_dot2c_f32_bf16 v{2+(k&1)}, s{sT0}, v{R+k}\nv_dot2c_f32_bf16 v{4+(k&1)}, v{R+k}, v{R+k}")
    P.I(f"""v_mul_u32_u24 v8, 96, v{vLANE}
v_add_u32 v9, 32, v8
v_add_u32 v10, 64, v8
v_add_f32 v2, v2, v3
v_add_f32 v4, v4, v5""")
    for m in ("quad_perm:[1,0,3,2]","quad_perm:[2,3,0,1]","row_half_mirror"):
        P.I(f"v_add_f32_dpp v2, v2, v2 {m} row_mask:0xf bank_mask:0xf\nv_add_f32_dpp v4, v4, v4 {m} row_mask:0xf bank_mask:0xf")
    P.I(f"""v_mul_f32 v2, 0x3b000000, v2
v_mul_f32 v4, 0x3b000000, v4
v_fma_f32 v4, -v2, v2, v4
v_max_f32 v4, 0, v4
v_cvt_pk_bf16_f32 v4, v4, v4
v_and_b32 v4, 0xffff0000, v4
v_add_f32 v4, 0x3727c5ac, v4
v_cvt_pk_bf16_f32 v4, v4, v4
v_and_b32 v4, 0xffff0000, v4
v_sqrt_f32 v4, v4
v_mov_b32 v{G+3}, s{sTAG}
v_cvt_pk_bf16_f32 v2, v2, v4
ds_bpermute_b32 v{G}, v8, v2
ds_bpermute_b32 v{G+1}, v9, v2
ds_bpermute_b32 v{G+2}, v10, v2
v_lshlrev_b32 v3, 12, v{vLANE}
s_lshl_b32 s{sT0}, s2, 4
s_add_u32 s{sT0}, s{sT0}, {WS_SG}
s_waitcnt lgkmcnt(0)
s_mov_b64 exec, 7
buffer_store_dwordx4 {vr(G,4)}, v3, {sp(rWS,4)}, s{sT0} offen {PUB}
s_mov_b64 exec, -1
s_branch L_rje_{uid}
L_rj2_{uid}:""")
    P.I(f"""s_cmp_ge_u32 s{sIDX}, 24
s_cbranch_scc1 L_rje_{uid}
v_lshlrev_b32 v2, 16, v{R}
v_and_b32 v3, 0xffff0000, v{R}
v_mul_f32 v4, 0xbfb8aa3b, v2
v_mul_f32 v5, 0xbfb8aa3b, v3
v_exp_f32 v4, v4
v_exp_f32 v5, v5
v_lshlrev_b32 v6, 2, v{vLANE}
v_add_f32 v4, 1.0, v4
v_add_f32 v5, 1.0, v5
v_rcp_f32 v4, v4
v_rcp_f32 v5, v5
v_add_u32 v6, {L_SC}, v6
v_mul_f32 v2, v2, v4
v_mul_f32 v3, v3, v5
v_cvt_pk_bf16_f32 v2, v2, v3
ds_write_b32 v6, v2
v_and_b32 v6, 48, v{vLANE}
v_add_u32 v6, {L_SC}, v6""")
    for ks in range(4): P.I(f"ds_read_b128 {vr(R+4*ks,4)}, v6 offset:{ks*64}")
    P.I(f"""v_lshrrev_b32 v2, 4, v{vLANE}
v_bfe_u32 v3, v{vLANE}, 2, 2
v_lshl_add_u32 v2, v2, 3, v3
v_bfe_u32 v3, v{vLANE}, 3, 2
v_lshl_add_u32 v2, v2, 2, v3
v_and_b32 v3, 3, v{vLANE}
v_lshl_add_u32 v2, v2, 2, v3
v_lshlrev_b32 v2, 3, v2
v_add_u32 v8, {L_MR}, v2""")
    assert L_MR%128==0
    for ct in range(1,4): P.I(f"v_xor_b32 v{8+ct}, {ct*32}, v8")
    P.I("@wait mr")
    A=R+16; ACC=R+16+32
    seq=[(ks,ct) for ks in range(4) for ct in range(4)]
    def rd(n):
        ks,ct=seq[n]; a=A+4*(n%8)
        return [f"ds_read_b64_tr_b16 {vr(a+2*hf,2)}, v{8+ct} offset:{ks*4096+hf*512}" for hf in range(2)]
    for n in range(6): P.extend(rd(n))
    for n,(ks,ct) in enumerate(seq):
        P.I(f"v_mfma_f32_16x16x32_bf16 {vr(ACC+4*ct,4)}, {vr(A+4*(n%8),4)}, {vr(R+4*ks,4)}, {vr(ACC+4*ct,4) if ks else 0}")
        if n+6<16: P.extend(rd(n+6))
    P.I(f"""s_mov_b32 s{sT0}, 0xaaaaaaaa
s_mov_b32 s{sT1}, 0xaaaaaaaa
s_mov_b32 s{sT2}, 0xcccccccc
s_mov_b32 s{sT3}, 0xcccccccc
s_mov_b32 s{sT4}, 0xf0f0f0f0
s_mov_b32 s{sT5}, 0xf0f0f0f0
v_bfe_u32 v2, v{vLANE}, 1, 2
v_lshrrev_b32 v3, 4, v{vLANE}
v_lshl_add_u32 v2, v2, 2, v3
v_and_b32 v3, 1, v{vLANE}
v_lshl_add_u32 v2, v2, 1, v3
v_lshlrev_b32 v2, 4, v2
v_mov_b32 v{R+3}, s{sTAG}""")
    for ct in range(4):
        for e in range(2): P.I(f"v_cndmask_b32 v{A+2*ct+e}, v{ACC+4*ct+e}, v{ACC+4*ct+2+e}, {sp(sT0)}")
    for c2 in range(2):
        for e in range(2): P.I(f"v_cndmask_b32 v{A+8+2*c2+e}, v{A+4*c2+e}, v{A+4*c2+2+e}, {sp(sT2)}")
    for e in range(2): P.I(f"v_cndmask_b32 v{R+e}, v{A+8+e}, v{A+10+e}, {sp(sT4)}")
    P.I(f"""s_lshl_b32 s{sT0}, s{sIDX}, 12
s_lshl_b32 s{sT1}, s{sXCD}, 9
s_add_u32 s{sT0}, s{sT0}, s{sT1}
s_add_u32 s{sT0}, s{sT0}, {WS_MG}
s_mov_b32 exec_lo, 0x00ff00ff
s_mov_b32 exec_hi, 0x00ff00ff
buffer_store_dwordx4 {vr(R,4)}, v2, {sp(rWS,4)}, s{sT0} offen {PUB}
s_mov_b64 exec, -1
L_rje_{uid}:""")

def index_setup(P):
    P.I(f"v_lshlrev_b32 v2, 3, v0\nv_sub_u32 v2, 2047, v2\nv_cvt_f32_i32 v3, v2")
    for j in range(11):
        d=vGA+j
        if j%2==0:
            P.I(f"v_add_f32 v4, {float(-j)!r}, v3" if j in (2,4) else (f"v_mov_b32 v4, v3" if j==0 else f"v_add_f32 v4, {hex(f32(-j))}, v3"))
            P.I(f"v_add_f32 v5, -1.0, v4\nv_cvt_pk_bf16_f32 v6, v4, v5\nv_lshlrev_b32 v7, 16, v6")
        else:
            P.I(f"v_and_b32 v7, 0xffff0000, v6")
        P.I(f"""v_cvt_u32_f32 v8, v7
v_bfe_u32 v9, v7, 23, 8
v_subrev_u32 v9, 134, v9
v_med3_i32 v9, v9, 0, 3
v_lshrrev_b32 v10, 7, v8
v_and_b32 v11, 7, v8
v_lshl_or_b32 v10, v10, 3, v11
v_lshrrev_b32 v10, v9, v10
v_lshl_add_u32 v10, v9, 3, v10
v_bfe_u32 v11, v8, 3, 4
v_lshl_add_u32 v10, v10, 4, v11
v_lshlrev_b32 v10, 2, v10
v_add_u32 v{d}, {L_C}, v10""")
    P.I(f"v_cmp_eq_u32 vcc, 255, v0\nv_mov_b32 v4, {L_C+3072}")
    for j in (8,9,10): P.I(f"v_cndmask_b32 v{vGA+j}, v{vGA+j}, v4, vcc")
    P.I(f"""v_mov_b32 v4, 0
v_mov_b32 v5, 0
v_mov_b32 v6, 0
v_mov_b32 v7, 0
v_lshrrev_b32 v2, 5, v{vLANE}
v_mul_u32_u24 v2, {HP}, v2
v_and_b32 v3, 31, v{vLANE}
v_min_u32 v3, 29, v3
v_lshl_add_u32 v2, v3, 4, v2
v_add_u32 v2, {L_H}, v2
v_bfe_u32 v3, v{vLANE}, 1, 3
v_mul_u32_u24 v3, {KIP}, v3
v_and_b32 v8, 1, v{vLANE}
v_lshl_add_u32 v3, v8, 4, v3
v_add_u32 v3, {L_KI+4096}, v3
v_mov_b32 v8, {L_C+3072}
v_cmp_gt_u32 vcc, 128, v0
v_cndmask_b32 v3, v8, v3, vcc
v_cmp_gt_u32 vcc, 64, v0
v_cndmask_b32 v2, v3, v2, vcc
ds_write_b128 v2, v[4:7]""")
    P.I(f"""v_lshrrev_b32 v2, 7, v0
v_mul_u32_u24 v2, {64*FP}, v2
v_and_b32 v3, 127, v0
v_lshl_add_u32 v{vFA}, v3, 2, v2
s_lshr_b32 s{sT0}, s{sW}, 1
s_and_b32 s{sT1}, s{sW}, 1
s_lshl_b32 s{sT1}, s{sT1}, 8
s_mul_i32 s{sT2}, s{sT0}, {4*KIP}
s_add_u32 s{sT2}, s{sT2}, {L_KI + 2*(2044-16) - 3584 - 192}
s_sub_u32 s{sT2}, s{sT2}, s{sT1}
v_and_b32 v2, 3, v{vLANE}
v_mul_u32_u24 v2, {KIP}, v2
v_and_b32 v3, 48, v{vLANE}
v_add3_u32 v2, v2, v3, s{sT2}
v_and_b32 v4, 12, v{vLANE}
v_lshlrev_b32 v4, 1, v4
v_sub_u32 v{vKA}, v2, v4
s_mul_i32 s{sT2}, s{sT0}, {HP}
s_add_u32 s{sT2}, s{sT2}, {L_H + 448 - 192}
s_sub_u32 s{sT2}, s{sT2}, s{sT1}
v_and_b32 v2, 15, v{vLANE}
v_lshl_add_u32 v3, v2, 5, v3
v_add_u32 v{vUA}, s{sT2}, v3
s_mul_i32 s{sT2}, s{sW}, 10240
v_lshrrev_b32 v3, 4, v{vLANE}
v_mul_u32_u24 v3, 320, v3
v_lshl_add_u32 v3, v2, 4, v3
v_add_u32 v{vYW}, s{sT2}, v3
v_lshrrev_b32 v2, 5, v0
v_mul_u32_u24 v2, 1280, v2
v_and_b32 v3, 1, v0
v_mul_u32_u24 v3, 640, v3
v_bfe_u32 v4, v0, 1, 4
v_lshl_add_u32 v3, v4, 4, v3
v_add_u32 v{vYR}, v2, v3""")

import struct
def f32(x): return struct.unpack('<I',struct.pack('<f',x))[0]

def cmul(o,a,b,t):
    return [f"v_pk_mul_f32 {vr(t,2)}, {vr(a,2)}, {vr(b,2)} op_sel_hi:[0,1]",
            f"v_pk_fma_f32 {vr(o,2)}, {vr(a,2)}, {vr(b,2)}, {vr(t,2)} op_sel:[1,1,0] op_sel_hi:[1,0,1] neg_lo:[1,0,0]"]
def factor_gen():
    B=vFG; are,aim,bre,bim,cre,cim=[vPAR+i for i in range(6)]
    R1,R8,R128,LOc,TMP,PK = B,B+2,B+4,B+6,B+8,B+12
    Pc=[B+16+2*c for c in range(8)]
    zr,zi,dt=B+32,B+33,B+34; m,ph=B+36,B+38
    a=[]
    a+=[f"s_lshr_b32 s{sT0}, s{sW}, 1", f"s_lshl_b32 s{sT0}, s{sT0}, 4", f"s_lshr_b32 s{sT1}, s{sLD}, s{sT0}", f"s_lshl_b32 s{sT1}, s{sT1}, 16",
        f"v_mov_b32 v{dt}, {hex(LOG2E)}", f"v_mul_f32 v{dt}, s{sT1}, v{dt}", f"v_exp_f32 v{dt}, v{dt}", "s_nop 0", f"v_cvt_pk_bf16_f32 v{dt}, v{dt}, v{dt}", f"v_and_b32 v{dt}, 0xffff0000, v{dt}",
        f"v_mul_f32 v{zr}, v{dt}, v{are}", f"v_mul_f32 v{zi}, v{dt}, v{aim}", f"v_mul_f32 v{zr}, {hex(LOG2E)}, v{zr}", f"v_mul_f32 v{zi}, 0.15915494, v{zi}"]
    def cexp(o,sc,conj):
        L=[]
        if sc==1: L+=[f"v_exp_f32 v{m}, v{zr}", f"v_fract_f32 v{ph}, v{zi}"]
        else: L+=[f"v_mul_f32 v{m}, {hex(f32(sc))}, v{zr}", f"v_mul_f32 v{ph}, {hex(f32(sc))}, v{zi}", f"v_exp_f32 v{m}, v{m}", f"v_fract_f32 v{ph}, v{ph}"]
        L+=[f"v_cos_f32 v{o}, v{ph}", f"v_sin_f32 v{o+1}, v{ph}", "s_nop 0",
            f"v_pk_mul_f32 {vr(o,2)}, {vr(o,2)}, {vr(m,2)} op_sel_hi:[1,0]" + (" neg_hi:[1,0]" if conj else "")]
        return L
    a+=cexp(R8,8,False)+cexp(R1,1,True)+cexp(R128,128,True)
    a+=cmul(Pc[0],cre,bre,TMP)+[f"v_pk_mul_f32 {vr(Pc[0],2)}, {vr(Pc[0],2)}, {vr(dt,2)} op_sel_hi:[1,0] neg_hi:[1,0]"]
    n=[0]
    def put(row,src):
        k=PK+(n[0]&3); n[0]+=1
        return [f"v_cvt_pk_bf16_f32 v{k}, v{src}, v{src+1}", f"ds_write_b32 v{vFA}, v{k} offset:{L_F+row*FP}"]
    lo=[[f"v_mov_b32 v{PK+3}, 0x3f80", f"ds_write_b32 v{vFA}, v{PK+3} offset:{L_F+48*FP}"], None]
    hi=[]
    steps_lo=[('one',48),('put',49,R8)]+[('mul',48+b,LOc,(R8 if b==2 else LOc),R8) for b in range(2,16)]
    steps_hi=[('put',0,Pc[0])]+[('mul',c,Pc[c],Pc[c-1],R1) for c in range(1,8)]
    row=8
    for e in range(1,17):
        cs = range(8) if e<2 else range(0,8,2) if e<4 else (0,4) if e<8 else (0,)
        for c in cs:
            assert HI[row]==128*e+c
            steps_hi.append(('mul',row,Pc[c],Pc[c],R128)); row+=1
    order=[]
    for i in range(8): order+= [steps_hi[i], steps_lo[i]]
    order+=steps_hi[8:32]
    for i in range(9):
        order.append(steps_hi[32+i])
        if i<8: order.append(steps_lo[8+i])
    out=[]
    for k,s in enumerate(order):
        t=TMP+2*(k&1)
        if s[0]=='one':
            kk=PK+(n[0]&3); n[0]+=1
            out.append([f"v_mov_b32 v{kk}, 0x3f80", f"ds_write_b32 v{vFA}, v{kk} offset:{L_F+s[1]*FP}"])
        elif s[0]=='put': out.append(put(s[1],s[2]))
        else: out.append(cmul(s[2],s[3],s[4],t)+put(s[1],s[2]))
    return a,out

def kgen_mfma(P):
    A=vROLE; ACC=vFG
    P.I(f"""s_lshr_b32 s{sT0}, s{sW}, 1
s_and_b32 s{sT1}, s{sW}, 1
s_mul_i32 s{sT2}, s{sT0}, {64*FP}
s_mul_i32 s{sT3}, s{sT1}, {32*FP}
v_and_b32 v2, 15, v{vLANE}
v_mul_u32_u24 v3, {FP}, v2
v_and_b32 v4, 48, v{vLANE}
v_add3_u32 v3, v3, v4, s{sT2}
v_add_u32 v5, s{sT3}, v3
v_lshlrev_b32 v2, 2, v2
v_lshl_add_u32 v2, v4, 4, v2
s_lshl_b32 s{sT0}, s{sT0}, 1
s_add_u32 s{sT0}, s{sT0}, {L_C}
v_add_u32 v6, s{sT0}, v2
s_lshl_b32 s{sT1}, s{sT1}, 11
v_add_u32 v7, s{sT1}, v6
s_waitcnt lgkmcnt(0)
s_barrier""")
    def rd(ks):
        b=A+12*(ks%6)
        return [f"ds_read_b128 {vr(b,4)}, v3 offset:{48*FP+ks*64}", f"ds_read_b128 {vr(b+4,4)}, v5 offset:{ks*64}", f"ds_read_b128 {vr(b+8,4)}, v3 offset:{16*FP+ks*64}"]
    for ks in range(4): P.extend(rd(ks))
    for ks in range(8):
        b=A+12*(ks%6)
        P.I(f"v_mfma_f32_16x16x32_bf16 {vr(ACC,4)}, {vr(b+4,4)}, {vr(b,4)}, {vr(ACC,4) if ks else 0}")
        P.I(f"v_mfma_f32_16x16x32_bf16 {vr(ACC+4,4)}, {vr(b+8,4)}, {vr(b,4)}, {vr(ACC+4,4) if ks else 0}")
        if ks+4<8: P.extend(rd(ks+4))
    for t,(ad,off) in enumerate(((7,0),(6,1024))):
        for r2 in range(2):
            P.I(f"v_cvt_pk_bf16_f32 v{8+2*t+r2}, v{ACC+4*t+2*r2}, v{ACC+4*t+2*r2+1}")
            P.I(f"ds_write_b16 v{ad}, v{8+2*t+r2} offset:{off+128*r2}\nds_write_b16_d16_hi v{ad}, v{8+2*t+r2} offset:{off+128*r2+64}")

def poll_addr(P):
    P.I(f"""v_lshlrev_b32 v12, 4, v0
v_bfe_u32 v2, v{vLANE}, 2, 2
v_cmp_eq_u32 vcc, 3, v2
v_and_b32 v3, 3, v{vLANE}
v_cndmask_b32 v2, v2, 5, vcc
v_lshl_add_u32 v2, v2, 2, v3
s_lshl_b32 s{sT0}, s{sP}, 4
v_lshl_add_u32 v13, v2, 12, s{sT0}
v_lshrrev_b32 v2, 5, v{vLANE}
v_lshl_add_u32 v2, v2, 2, v3
v_bfe_u32 v3, v{vLANE}, 2, 3
v_lshlrev_b32 v3, 4, v3
v_lshl_add_u32 v2, v2, 12, v3
s_lshl_b32 s{sT0}, s{sKS}, 7
s_add_u32 s{sT0}, s{sT0}, {12*4096}
v_add_u32 v14, s{sT0}, v2""")
def poll_loads(P, LD):
    P.I(f"s_mul_i32 s{sT0}, s{sP}, 12288\ns_add_u32 s{sT0}, s{sT0}, {WS_XG}\ns_mov_b32 s{sT3}, {WS_MG}")
    P.I(f"buffer_load_dwordx4 {vr(vPOLL+24,4)}, v13, {sp(rWS,4)}, s{sT3} offen {LD}")
    for g in range(3):
        P.I(f"s_mov_b32 s{sT1}, {WS_SG+g*4096}\nbuffer_load_dwordx4 {vr(vPOLL+12+4*g,4)}, v12, {sp(rWS,4)}, s{sT1} offen {LD}")
        P.I(f"buffer_load_dwordx4 {vr(vPOLL+4*g,4)}, v12, {sp(rWS,4)}, s{sT0} offen {LD}")
        if g<2: P.I(f"s_add_u32 s{sT0}, s{sT0}, 4096")
    P.I(f"buffer_load_dwordx4 {vr(vPOLL+28,4)}, v14, {sp(rWS,4)}, s{sT3} offen {LD}")

def k_image(P):
    E=vROLE+16; O=vROLE+32
    P.I("s_waitcnt lgkmcnt(0)\ns_barrier")
    for j in range(11): P.I(f"ds_read_b32 v{E+j}, v{vGA+j}")
    P.I(f"s_mov_b32 s{sT4}, 0x05040100\ns_mov_b32 s{sT5}, 0x07060302\nv_lshlrev_b32 v2, 4, v0\nv_add_u32 v2, {L_KI}, v2")
    k=0
    for c in (3,2,1,0):
        for ch in range(2):
            o=O+4*k; k+=1
            for i in range(4):
                j=3-c+2*i
                P.I(f"v_perm_b32 v{o+i}, v{E+j+1}, v{E+j}, s{sT4+ch}")
            P.I(f"ds_write_b128 v2, {vr(o,4)} offset:{(ch*4+c)*KIP}")

def quadsum(regs):
    L=[]
    for m in ("quad_perm:[1,0,3,2]","quad_perm:[2,3,0,1]"):
        for r in regs: L.append(f"v_add_f32_dpp v{r}, v{r}, v{r} {m} row_mask:0xf bank_mask:0xf")
    return L
def make_h(P):
    Q=vPOLL
    mc=Q+24
    P.extend(quadsum([mc,mc+1]))
    P.I(f"""v_cvt_pk_bf16_f32 v3, v{mc}, v{mc+1}
v_lshlrev_b32 v2, 16, v3
v_and_b32 v3, 0xffff0000, v3
v_add_f32 v4, 1.0, v2
v_add_f32 v5, 1.0, v3
v_cvt_pk_bf16_f32 v5, v4, v5
s_lshl_b32 s{sT0}, s{sDS}, 16
s_and_b32 s{sT1}, s{sDS}, 0xffff0000
v_mul_f32 v6, s{sT0}, v2
v_mul_f32 v7, s{sT1}, v3
v_readlane_b32 s{sSA}, v2, 0
v_readlane_b32 s{sSA+1}, v3, 0
v_readlane_b32 s{sG1+1}, v5, 4
v_readlane_b32 s{sGA}, v2, 8
v_readlane_b32 s{sGA+1}, v3, 8
v_readlane_b32 s{sGD}, v6, 8
v_readlane_b32 s{sGD+1}, v7, 8
s_lshl_b32 s{sG1}, s{sG1+1}, 16
s_and_b32 s{sG1+1}, s{sG1+1}, 0xffff0000
v_mov_b32 v10, s{sSA}
v_mov_b32 v11, s{sSA+1}""")
    P.I(f"""s_lshl_b32 s{sT0}, s{sP}, 3
s_add_u32 s{sT0}, s{sT0}, {WS_GBF}
v_mov_b32 v8, 0
v_cmp_eq_u32 vcc, 12, v0
s_and_saveexec_b64 {sp(sT2)}, vcc
s_cbranch_execz L_nogb
buffer_store_dwordx2 v[2:3], v8, {sp(rWS,4)}, s{sT0} offen
L_nogb:
s_mov_b64 exec, {sp(sT2)}""")
    M=vROLE+8
    for r in range(8):
        st=Q+12+4*(r//3)+r%3; xr=Q+4*(r//3)+r%3
        P.I(f"""v_and_b32 v{M+2*r+1}, 0xffff0000, v{st}
v_lshlrev_b32 v{M+2*r}, 16, v{st}
v_rcp_f32 v{M+2*r+1}, v{M+2*r+1}
v_lshlrev_b32 v{vXF+2*r}, 16, v{xr}
v_and_b32 v{vXF+2*r+1}, 0xffff0000, v{xr}""")
    for r in range(8):
        P.I(f"v_pk_add_f32 {vr(vHF+2*r,2)}, {vr(vXF+2*r,2)}, {vr(M+2*r,2)} op_sel_hi:[1,0] neg_lo:[0,1] neg_hi:[0,1]")
    for r in range(8):
        P.I(f"v_pk_mul_f32 {vr(vHF+2*r,2)}, {vr(vHF+2*r,2)}, {vr(M+2*r,2)} op_sel:[0,1]")
    for r in range(8):
        P.I(f"v_pk_fma_f32 {vr(vHF+2*r,2)}, {vr(vHF+2*r,2)}, {sp(sG1)}, v[10:11]")
    O=vROLE+24
    P.I(f"v_add_u32 v2, {L_H+480}, v12")
    for ch in range(2):
        for i in range(4): P.I(f"v_cvt_pk_bf16_f32 v{O+4*ch+i}, v{vHF+4*i+ch}, v{vHF+4*i+2+ch}")
        P.I(f"ds_write_b128 v2, {vr(O+4*ch,4)} offset:{ch*HP}")

def w_setup():
    mw=vPOLL+28; L=quadsum([mw,mw+1])
    L+=f"""v_cvt_pk_bf16_f32 v3, v{mw}, v{mw+1}
v_lshlrev_b32 v4, 16, v3
v_and_b32 v5, 0xffff0000, v3
v_add_f32 v4, 1.0, v4
v_add_f32 v5, 1.0, v5
v_cvt_pk_bf16_f32 v4, v4, v5
v_lshrrev_b32 v5, 5, v{vLANE}
v_lshlrev_b32 v5, 6, v5""".split('\n')
    for k in range(4):
        L.append(f"ds_bpermute_b32 v{vGS+8+k}, v5, v3 offset:{16*k}")
        L.append(f"ds_bpermute_b32 v{vGS+2*k+1}, v5, v4 offset:{128+16*k}")
    return L
def w_side(ST):
    RAW=vPOLL; WP=vPOLL+16
    L=[]
    for k in range(4):
        L+=[f"v_lshlrev_b32 v{vGS+2*k}, 16, v{vGS+2*k+1}", f"v_and_b32 v{vGS+2*k+1}, 0xffff0000, v{vGS+2*k+1}"]
    for r in range(16): L.append(f"v_fma_f32 v{vXF+r}, v{vHF+r}, s{sGD+(r&1)}, v{vXF+r}")
    for m in range(4):
        for k in range(4):
            t=6+2*(k&1)
            L+=[f"v_lshlrev_b32 v{t}, 16, v{RAW+4*m+k}", f"v_and_b32 v{t+1}, 0xffff0000, v{RAW+4*m+k}",
                f"v_mul_f32 v{t}, v{t}, v{vGS+2*k}", f"v_mul_f32 v{t+1}, v{t+1}, v{vGS+2*k+1}", f"v_cvt_pk_bf16_f32 v{WP+4*m+k}, v{t}, v{t+1}"]
        L.append(f"buffer_store_dwordx4 {vr(WP+4*m,4)}, v{vL16}, {sp(rWJ,4)}, s{sWO+m} offen {ST}")
    return L
def w_reads():
    L=["@wait wr"]
    for m in range(4):
        if m: L.append(f"v_xor_b32 v2, {32*m}, v{vWRA}")
        for hf in range(2): L.append(f"ds_read_b64_tr_b16 {vr(vPOLL+4*m+2*hf,2)}, v{2 if m else vWRA} offset:{hf*512}")
    return L

def conv(P, side):
    ACC=16; KB=[48,48];
    def kf(b,u): return f"a[{32*b+4*u}:{32*b+4*u+3}]"
    def uf(b,s): return f"a[{64+32*b+4*s}:{64+32*b+4*s+3}]"
    def reads(vi):
        b=vi&1; L=[]
        for k in range(8):
            o=192-64*vi
            L.append(f"ds_read_b128 {uf(b,k)}, v{vUA} offset:{512*k+o}")
            for hf in range(2):
                L.append(f"ds_read_b64 a[{32*b+4*k+2*hf}:{32*b+4*k+2*hf+1}], v{vKA} offset:{512*(7-k)+o+8*hf}")
        return L
    order=sorted([(u,s) for u in range(8) for s in range(8) if u+s<8], key=lambda t:(max(t),t))
    P.extend(reads(0))
    first=set()
    for vi in range(4):
        b=vi&1; main=[]
        nxt = reads(vi+1) if vi<3 else []
        for n,(u,s) in enumerate(order):
            t=u+s; a=vr(ACC+4*t,4)
            main.append(f"v_mfma_f32_16x16x32_bf16 {a}, {kf(b,u)}, {uf(b,s)}, {a if t in first else 0}"); first.add(t)
            if n>=8 and nxt: main.append(nxt.pop(0))
        assert not nxt
        m2,side=interleave(main,side,1.0 if vi<3 else 2.0)
        P.extend(m2)
    P.extend(side)
    return ACC

def conv_epilogue(P, ACC):
    RAW=vPOLL; WP=vPOLL+16; S=vGS+12
    P.I(f"s_mov_b32 s{sT4}, 0x3f803f80")
    for k in range(8): P.I(f"v_mov_b32 v{S+k}, 0")
    dots=[]
    for k in range(4):
        for m in range(4):
            dots+= [f"v_dot2c_f32_bf16 v{S+2*m}, s{sT4}, v{WP+4*m+k}", f"v_dot2c_f32_bf16 v{S+2*m+1}, v{vGS+8+k}, v{RAW+4*m+k}"]
    for t in range(8):
        P.I(f"ds_write_b128 v{vYW}, {vr(ACC+4*t,4)} offset:{L_Y+1280*t}")
        P.extend(dots[4*t:4*t+4])
    P.I(f"s_lshl_b32 s{sT0}, s{sW}, 11\ns_add_u32 s{sT0}, s{sT0}, {L_S}\nv_lshl_add_u32 v2, v{vLANE}, 3, s{sT0}")
    for m in range(4): P.I(f"ds_write_b64 v2, {vr(S+2*m,2)} offset:{512*m}")
    P.I(f"""v_lshrrev_b32 v3, 5, v0
v_lshlrev_b32 v3, 18, v3
v_and_b32 v4, 31, v0
v_lshl_add_u32 v3, v4, 4, v3
s_lshr_b32 s{sT0}, s{sP}, 2
s_lshl_b32 s{sT0}, s{sT0}, 9
s_and_b32 s{sT1}, s{sP}, 3
s_lshl_b32 s{sT1}, s{sT1}, 2
s_add_u32 s{sT0}, s{sT0}, s{sT1}
s_add_u32 s{sT0}, s{sT0}, {WS_X1F}
s_waitcnt lgkmcnt(0)
s_barrier""")
    Y=48
    for g in range(2):
        for ch in range(2):
            for vh in range(2):
                P.I(f"ds_read_b128 {vr(Y+16*g+8*ch+4*vh,4)}, v{vYR} offset:{L_Y+(2*ch+vh)*10240+320*g}")
    A=80
    P.I(f"v_bfe_u32 v5, v0, 5, 2\nv_lshlrev_b32 v6, 9, v5\nv_lshl_add_u32 v6, v4, 3, v6\nv_add_u32 v6, {L_S}, v6")
    for w in range(4):
        for h in range(2): P.I(f"ds_read_b64 {vr(A+4*w+2*h,2)}, v6 offset:{2048*w+256*h}")
    for g in range(2):
        for r in range(4):
            l=4*g+r
            for ch in range(2):
                y=Y+16*g+8*ch+r
                P.I(f"v_add_f32 v{y}, v{y}, v{y+4}\nv_fma_f32 v{y}, v{y}, s{sGA+ch}, v{vXF+2*l+ch}")
            P.I(f"v_cvt_pk_bf16_f32 v{vHF+l}, v{Y+16*g+r}, v{Y+16*g+8+r}")
            P.I(f"buffer_store_dword v{vHF+l}, v3, {sp(rWS,4)}, s{sT0} offen")
            if l<7: P.I(f"s_add_u32 s{sT0}, s{sT0}, 32768")
    P.I(f"s_cmp_ge_u32 s{sW}, 2\ns_cbranch_scc1 L_noaux")
    for st in (8,4,2):
        for k in range(0,st,2): P.I(f"v_pk_add_f32 {vr(A+k,2)}, {vr(A+k,2)}, {vr(A+st+k,2)}")
    P.I(f"""s_cmp_eq_u32 s{sW}, 0
s_cselect_b32 s{sT2}, s{sWA}, s{sWA+2}
s_cselect_b32 s{sT3}, s{sWA+1}, s{sWA+3}
v_mov_b32 v5, s{sT2}
v_mov_b32 v7, s{sT3}
v_cmp_gt_u32 vcc, 32, v{vLANE}
s_lshr_b32 s{sT0}, s{sKE}, 2
s_lshl_b32 s{sT0}, s{sT0}, 9
v_cndmask_b32 v5, v7, v5, vcc
v_lshl_add_u32 v5, v4, 4, v5
s_and_b32 s{sT1}, s{sKE}, 3
s_lshl_b32 s{sT1}, s{sT1}, 2
s_add_u32 s{sT0}, s{sT0}, s{sT1}
v_cvt_pk_bf16_f32 v6, v{A}, v{A+1}
buffer_store_dword v6, v5, {sp(rWJ,4)}, s{sT0} offen
L_noaux:""")

def zero_flags(P):
    P.I(f"""s_lshl_b32 s{sT0}, s2, 6
s_add_u32 s{sT0}, s{sT0}, {WS_FLAG}
v_mov_b32 v2, 0
v_lshlrev_b32 v3, 2, v0
v_cmp_gt_u32 vcc, 16, v0
s_and_saveexec_b64 {sp(sT2)}, vcc
s_cbranch_execz L_nozf
buffer_store_dword v2, v3, {sp(rWS,4)}, s{sT0} offen
L_nozf:
s_mov_b64 exec, {sp(sT2)}""")

def build_split(P, diag, cfg):
    NT=cfg.get('NT','nt'); ST=cfg.get('ST','sc1')
    n='k1_kernel'
    entry(P,n,diag); code_prefetch(P,256)
    P.I("s_waitcnt lgkmcnt(0)"); srds(P); P.I(f"s_mov_b32 s{sTAG}, 0")
    stamp(P,1,diag)
    role_loads(P,'a',NT); wd_loads(P,NT); role_jobs(P,'a',''); wd_job(P,ST); zero_flags(P)
    stamp(P,2,diag); stamp_out(P,0,diag)
    P.I(f"L_{n}_exit:\ns_endpgm")
    n='k2_kernel'
    entry(P,n,diag)
    P.I("s_waitcnt lgkmcnt(0)"); load_params(P,NT); srds(P)
    stamp(P,1,diag)
    poll_addr(P); poll_loads(P,''); w_loads(P,NT); w_offsets(P); index_setup(P)
    stamp(P,2,diag)
    a,steps=factor_gen(); P.extend(a)
    stamp(P,3,diag)
    for s in steps: P.extend(s)
    stamp(P,4,diag)
    kgen_mfma(P); stamp(P,5,diag); k_image(P); stamp(P,6,diag); make_h(P); P.extend(w_setup())
    P.I("s_waitcnt lgkmcnt(0)\ns_barrier")
    stamp(P,7,diag)
    acc=conv(P, w_reads()+w_side(ST)); stamp(P,8,diag); conv_epilogue(P,acc)
    stamp(P,9,diag); stamp_out(P,1,diag)
    P.I(f"L_{n}_exit:\ns_endpgm")
    return [('k1_kernel',256,256,LDS_A,384),('k2_kernel',256,256,LDS_A,384)]

def check_tags(P, diag):
    P.I(f"s_mov_b32 s{sCNT}, 0\nL_ka_chk:")
    P.I(f"""v_min3_u32 v2, v{vPOLL+27}, v{vPOLL+15}, v{vPOLL+3}
v_max3_u32 v3, v{vPOLL+27}, v{vPOLL+15}, v{vPOLL+3}
v_min3_u32 v2, v2, v{vPOLL+19}, v{vPOLL+7}
v_max3_u32 v3, v3, v{vPOLL+19}, v{vPOLL+7}
v_min3_u32 v2, v2, v{vPOLL+23}, v{vPOLL+11}
v_max3_u32 v3, v3, v{vPOLL+23}, v{vPOLL+11}
v_min3_u32 v2, v2, v{vPOLL+31}, s{sTAG}
v_max3_u32 v3, v3, v{vPOLL+31}, s{sTAG}
v_cmp_ne_u32 vcc, v2, v3
s_cbranch_vccnz L_ka_retry
L_ka_ok:""")
    if diag: P.I(f"s_add_u32 s{sCNT}, s{sCNT}, 1\nv_writelane_b32 v255, s{sCNT}, 31")
def retry_block(P):
    P.I(f"L_ka_retry:\ns_add_u32 s{sCNT}, s{sCNT}, 1\ns_cmp_gt_u32 s{sCNT}, 20000\ns_cbranch_scc1 L_ka_ok")
    poll_loads(P,'sc1')
    P.I("s_waitcnt vmcnt(0)\ns_branch L_ka_chk")
def epoch_update(P):
    P.I(f"""s_or_b32 s{sT0}, s2, s{sW}
s_cmp_lg_u32 s{sT0}, 0
s_cbranch_scc1 L_noep
v_mov_b32 v2, s{sTAG}
v_mov_b32 v3, {WS_EPOCH}
s_mov_b64 exec, 1
buffer_store_dword v2, v3, {sp(rWS,4)}, 0 offen
s_mov_b64 exec, -1
L_noep:""")
def build_fused(P, diag, cfg):
    NT=cfg.get('NT','nt'); ST=cfg.get('ST','sc1')
    n='ka_kernel'
    entry(P,n,diag); code_prefetch(P,256)
    P.I("s_waitcnt lgkmcnt(0)"); load_params(P,NT)
    P.I(f"s_load_dword s{sTAG}, {sp(sWS)}, {WS_EPOCH}")
    srds(P)
    role_loads(P,'a',NT); wd_loads(P,NT); w_loads(P,NT)
    stamp(P,1,diag)
    w_offsets(P); index_setup(P); poll_addr(P); zero_flags(P)
    P.I(f"s_waitcnt lgkmcnt(0)\ns_add_u32 s{sTAG}, s{sTAG}, 1\ns_barrier")
    stamp(P,2,diag)
    a,steps=factor_gen()
    cut=cfg.get('CUT',0)
    if cut>=0:
        P.extend(a)
        for s in steps[:cut]: P.extend(s)
    stamp(P,3,diag)
    role_jobs(P,'a','sc1')
    stamp(P,10,diag)
    if cut<0: P.extend(a); cut=0
    for s in steps[cut:]: P.extend(s)
    stamp(P,4,diag)
    kgen_mfma(P); stamp(P,5,diag); poll_loads(P,'sc1'); k_image(P); wd_job(P,ST); stamp(P,6,diag)
    check_tags(P,diag); stamp(P,11,diag)
    make_h(P); P.extend(w_setup())
    P.I("s_waitcnt lgkmcnt(0)\ns_barrier")
    stamp(P,7,diag)
    acc=conv(P, w_reads()+w_side(ST)); stamp(P,8,diag); conv_epilogue(P,acc)
    epoch_update(P)
    stamp(P,9,diag); stamp_out(P,0,diag)
    P.I(f"L_{n}_exit:\ns_endpgm")
    retry_block(P)
    return [(n,256,256,LDS_A,384)]
```

```python
from prog import *
from layout import *
from ka import sp, vr, mksrd, f32, stamp, stamp_out
import ka
rWS,rOUT = 64,68
sXCD,sIDX,sW = 72,73,75
sXB,sWB,sAB,sM0,sT0,sT1,sT2,sT3 = 76,77,78,79,80,81,82,83
sA0,sA1,sD0,sD1,sFL,sCNT,sX1,sK = 84,85,86,87,88,89,90,92
vLANE,vL16 = 1,2
RING=144
LDS_C=RING*1024
def entry(P,name,diag):
    P.I(f".globl {name}\n.p2align 8\n.type {name},@function\n{name}:\n@reset")
    P.I(f"""s_cmp_ge_u32 s2, 256
s_cbranch_scc1 L_{name}_exit
s_load_dwordx2 s[8:9], s[0:1], 136
s_load_dwordx2 s[10:11], s[0:1], 120
s_and_b32 s{sXCD}, s2, 7
s_lshr_b32 s{sIDX}, s2, 3
v_and_b32 v{vLANE}, 63, v0
v_lshrrev_b32 v3, 6, v0
v_lshlrev_b32 v{vL16}, 4, v{vLANE}
v_readfirstlane_b32 s{sW}, v3""")
    if diag: P.I("v_mov_b32 v255, 0")
    stamp(P,0,diag)
def srds(P):
    P.I("s_waitcnt lgkmcnt(0)")
    P.extend(mksrd(rWS,8,WS_USED)); P.extend(mksrd(rOUT,10,2097152))

X=128
def c_maps(P):
    P.I(f"""s_lshr_b32 s{sT0}, s{sXCD}, 2
s_lshl_b32 s{sT0}, s{sT0}, 5
s_and_b32 s{sT1}, s{sIDX}, 28
s_add_u32 s{sT0}, s{sT0}, s{sT1}
s_add_u32 s{sT0}, s{sT0}, s{sW}
s_and_b32 s{sT1}, s{sXCD}, 3
s_lshl_b32 s{sT2}, s{sT1}, 2
s_and_b32 s{sT3}, s{sIDX}, 3
s_add_u32 s{sT2}, s{sT2}, s{sT3}
s_lshl_b32 s{sXB}, s{sT0}, 15
s_add_u32 s{sXB}, s{sXB}, {WS_X1F}
s_mul_i32 s{sWB}, s{sT2}, {7*33*1024}
s_add_u32 s{sWB}, s{sWB}, {WS_WPF}
s_mul_i32 s{sAB}, s{sT0}, 112
s_mul_i32 s{sT2}, s{sT2}, 7
s_add_u32 s{sAB}, s{sAB}, s{sT2}
s_lshl_b32 s{sAB}, s{sAB}, 10
s_add_u32 s{sAB}, s{sAB}, {WS_ACT}
s_lshr_b32 s{sFL}, s{sT0}, 1
s_lshl_b32 s{sFL}, s{sFL}, 2
s_add_u32 s{sFL}, s{sFL}, s{sT1}
s_lshl_b32 s{sFL}, s{sFL}, 7
s_and_b32 s{sT0}, s{sT0}, 1
s_lshl_b32 s{sT0}, s{sT0}, 2
s_add_u32 s{sT0}, s{sT0}, s{sT3}
s_lshl_b32 s{sT0}, s{sT0}, 2
s_add_u32 s{sFL}, s{sFL}, s{sT0}
s_add_u32 s{sFL}, s{sFL}, {WS_FLAG}""")
def d_maps(P):
    P.I(f"""s_lshl_b32 s{sT0}, s{sXCD}, 2
s_lshr_b32 s{sT1}, s{sIDX}, 3
s_add_u32 s{sT0}, s{sT0}, s{sT1}
s_and_b32 s{sT1}, s{sIDX}, 7
s_mul_i32 s{sT2}, s{sW}, {28*1024}
s_mul_i32 s{sA0}, s{sT0}, {224*1024}
s_add_u32 s{sA0}, s{sA0}, s{sT2}
s_add_u32 s{sA0}, s{sA0}, {WS_ACT}
s_add_u32 s{sA1}, s{sA0}, {112*1024}
s_mul_i32 s{sD0}, s{sT1}, {224*1024}
s_add_u32 s{sD0}, s{sD0}, s{sT2}
s_add_u32 s{sD0}, s{sD0}, {WS_WDF}
s_add_u32 s{sD1}, s{sD0}, {112*1024}
s_lshl_b32 s{sK}, s{sT0}, 2
s_add_u32 s{sK}, s{sK}, s{sW}
s_lshl_b32 s{sK}, s{sK}, 7
s_add_u32 s{sK}, s{sK}, {WS_FLAG}
s_lshl_b32 s{sX1}, s{sT0}, 1
s_lshr_b32 s{sT2}, s{sW}, 1
s_add_u32 s{sX1}, s{sX1}, s{sT2}
s_lshl_b32 s{sX1+1}, s{sT1}, 1
s_and_b32 s{sT2}, s{sW}, 1
s_add_u32 s{sX1+1}, s{sX1+1}, s{sT2}""")

def wd_load_list():
    L=[]
    for f in range(28):
        for m,s in ((0,sD0),(1,sD1)):
            a=8*f+4*m
            L.append(f"buffer_load_dwordx4 a[{a}:{a+3}], v{vL16}, {sp(rWS,4)}, s{s} offen offset:{(f%4)*1024}")
        if f%4==3 and f<27: L+= [f"s_add_u32 s{sD0}, s{sD0}, 4096", f"s_add_u32 s{sD1}, s{sD1}, 4096"]
    return L

def phase_c(P, cfg, diag, wd_side):
    ST=cfg.get('AST','sc1')
    xr=lambda ks: vr(124+4*ks,4) if ks<32 else vr(44,4)
    ACC=[60+16*i for i in range(4)]
    WF=[20+4*i for i in range(6)]; NWF=6
    SQ,SM,ONE,SQ2=48,52,56,16
    C0,C1,IR2=4,5,6; TA=8
    RA=[3,7,252]
    OUTR=[16,16]
    seq=[(t,ks) for ks in range(32) for t in range(G1)]
    AUXAT=cfg.get('AUXAT',10)
    t3=[(G1,ks) for ks in range(33)]
    seq+= t3[:AUXAT]+[(t,32) for t in range(G1)]+t3[AUXAT:]
    for t in range(G1+1,7): seq+=[(t,ks) for ks in range(33)]
    N=len(seq); assert N==231
    def gpos(t,ks): return (G1*ks+t) if t<G1 else 33*t+ks
    bounds=cfg.get('STG',[0,12,24,36,48,60,72,84,96,112,128,144,160,176,192,208,224,232])
    nst=len(bounds)-1
    for s in range(nst):
        assert sorted(gpos(*x) for x in seq[bounds[s]:bounds[s+1]])==list(range(bounds[s],min(bounds[s+1],N))), s
        assert bounds[s]//RING==(bounds[s+1]-1)//RING
    sizes_=sorted({(bounds[s+1]-bounds[s])//4 for s in range(nst)})
    QR={c:12+2*i for i,c in enumerate(sizes_)}
    for c,r in QR.items(): P.I(f"s_mul_i32 s{r}, s{sW}, {c*1024}\ns_add_u32 s{r+1}, s{r}, s{sWB}")
    stage_dma=[]
    for s in range(nst):
        c=(bounds[s+1]-bounds[s])//4; L=[]
        for u in range(c):
            if u%4==0: L+=[f"s_add_u32 m0, s{QR[c]}, {(bounds[s]%RING+u)*1024}", f"s_add_u32 s{sT0}, s{QR[c]+1}, {(bounds[s]+u)*1024}"]
            L.append((f"buffer_load_dwordx4 v{vL16}, {sp(rWS,4)}, s{sT0} offen offset:{(u%4)*1024} lds",f"w{s}"))
        stage_dma.append(L)
    def xload(ks):
        L=[f"buffer_load_dwordx4 {xr(ks)}, v{vL16}, {sp(rWS,4)}, s{sXB} offen offset:{(ks%4)*1024}"]
        if ks%4==3 and ks<31: L.append(f"s_add_u32 s{sXB}, s{sXB}, 4096")
        return L
    srds(P)
    stamp(P,1,diag)
    LOOK=cfg.get('LOOK',5)
    mem=[]
    for s in range(nst):
        need=max(bounds[s]-LOOK,0)
        gate=-1
        if bounds[s+1]>RING:
            gate=max(q for q in range(nst) if bounds[q]<bounds[s+1]-RING)+2
        grp=[]
        for x in stage_dma[s]:
            grp.append(x)
            if isinstance(x,tuple): mem.append((need,gate,grp)); grp=[]
    for ks in range(32): mem.append((G1*ks,-1,xload(ks)))
    mem.sort(key=lambda e:e[0])
    DIST=cfg.get('DIST',30); PRE=cfg.get('PRE',14)
    for _ in range(PRE): P.extend(mem.pop(0)[2])
    P.I(f"""v_mov_b32 v{RA[0]}, v{vL16}
v_add_u32 v{RA[1]}, 0x10000, v{vL16}
v_add_u32 v{RA[2]}, 0x20000, v{vL16}
v_and_b32 v8, 15, v{vLANE}
v_bfe_u32 v9, v{vLANE}, 4, 1
v_cmp_eq_u32 vcc, v8, v9
v_mov_b32 v10, 0x3f803f80
v_cndmask_b32 v{ONE}, 0, v10, vcc
v_cndmask_b32 v{ONE+1}, 0, v10, vcc
v_cndmask_b32 v{ONE+2}, 0, v10, vcc
v_cndmask_b32 v{ONE+3}, 0, v10, vcc""")
    def rd(n):
        pos=(gpos(*seq[n])%RING)*1024
        return (f"ds_read_b128 {vr(WF[n%NWF],4)}, v{RA[pos>>16]} offset:{pos&0xffff}", f"r{n}")
    def accof(t): return ACC[t] if t<4 else ACC[t-4]
    EW=cfg.get('EW',4)
    def epi(t):
        a=accof(t); L=[]
        for g in range(8//EW):
            ia=list(range(EW*g,EW*g+EW)); T=TA
            L+=[f"v_mul_f32 v{T+k}, v{a+i}, v{a+i}" for k,i in enumerate(ia)]
            L+=[f"v_fma_f32 v{T+k}, v{T+k}, v{C1}, v{C0}" for k,i in enumerate(ia)]
            L+=[f"v_mul_f32 v{T+k}, v{T+k}, v{a+i}" for k,i in enumerate(ia)]
            for k,i in enumerate(ia): L+=[f"v_exp_f32 v{T+k}, v{T+k}", f"v_mul_f32 v{a+8+i}, v{a+i}, v{a+8+i}"]
            L+=[f"v_fma_f32 v{a+i}, v{T+k}, v{IR2}, v{IR2}" for k,i in enumerate(ia)]
            L+=[f"v_rcp_f32 v{a+i}, v{a+i}" for i in ia]
            tail =[f"v_mul_f32 v{a+8+i}, v{a+8+i}, v{a+i}" for i in ia]
            tail+=[f"v_cvt_pk_bf16_f32 v{16+i//2}, v{a+8+i}, v{a+9+i}" for i in ia[::2]]
            L+=tail
        L.append((f"buffer_store_dwordx4 v[16:19], v{vL16}, {sp(rWS,4)}, s{sAB} offen offset:{(t%4)*1024} {ST}",'act'))
        if t==3: L.append(f"s_add_u32 s{sAB}, s{sAB}, 4096")
        return L
    k0=-2*0.7978845608028654*1.4426950408889634; k1=k0*0.044715
    fin=f"""v_add_f32 v{SQ}, v{SQ}, v{SQ2}
v_add_f32 v{SQ+1}, v{SQ+1}, v{SQ2+1}
v_add_f32 v{SQ+2}, v{SQ+2}, v{SQ2+2}
v_add_f32 v{SQ+3}, v{SQ+3}, v{SQ2+3}
v_and_b32 v8, 3, v{vLANE}
v_cmp_eq_u32 vcc, 1, v8
v_cmp_eq_u32 {sp(sT2)}, 2, v8
v_and_b32 v10, 16, v{vLANE}
v_cndmask_b32 v9, v{SQ}, v{SQ+1}, vcc
v_cmp_eq_u32 vcc, 3, v8
v_cndmask_b32 v9, v9, v{SQ+2}, {sp(sT2)}
v_and_b32 v11, 15, v{vLANE}
v_cndmask_b32 v9, v9, v{SQ+3}, vcc
v_lshlrev_b32 v11, 2, v11
v_cmp_eq_u32 vcc, 0, v10
ds_bpermute_b32 v12, v11, v{SM}
ds_bpermute_b32 v13, v11, v{SM+1}
v_mov_b32 v8, v9
v_nop
v_nop
v_permlane32_swap_b32 v8, v9
v_add_f32 v9, v8, v9
v_mul_f32 v9, 0x3b000000, v9
v_cndmask_b32 v12, v13, v12, vcc
v_mul_f32 v12, 0x3b000000, v12
v_fma_f32 v9, -v12, v12, v9
v_max_f32 v9, 0, v9
v_cvt_pk_bf16_f32 v9, v9, v9
v_and_b32 v9, 0xffff0000, v9
v_add_f32 v9, 0x3727c5ac, v9
v_cvt_pk_bf16_f32 v9, v9, v9
v_and_b32 v9, 0xffff0000, v9
v_sqrt_f32 v9, v9
v_nop
v_cvt_pk_bf16_f32 v44, -v12, v9
v_and_b32 v9, 0xffff0000, v44
v_mov_b32 v45, v44
v_rcp_f32 v8, v9
v_mov_b32 v46, v44
v_mov_b32 v47, v44
v_mul_f32 v{IR2}, v9, v9
v_mul_f32 v{C0}, {hex(f32(k0))}, v8
v_mul_f32 v10, v8, v8
v_mul_f32 v{C1}, {hex(f32(k1))}, v8
v_mul_f32 v{C1}, v{C1}, v10""".split('\n')
    done_at={}
    for n,(t,ks) in enumerate(seq): done_at[t]=n if ks==32 else done_at.get(t,-1)
    first_at={}
    for n,(t,ks) in enumerate(seq): first_at.setdefault(t,n)
    side=[(96+1,x) for x in fin]
    for t in range(6): side+=[(done_at[t]+3,x) for x in epi(t)]
    marks={}
    PER=cfg.get('PER',4.0)
    def cost(x):
        s=x[0] if isinstance(x,tuple) else x
        return 2 if s.split()[0] in TRANS else 1
    opened=[-1]
    def open_stage(s):
        while mem and any(isinstance(q,tuple) and q[1]==f"w{s}" for e in mem for q in e[2]):
            assert mem[0][1]<=opened[0]; P.extend(mem.pop(0)[2])
        P.I(f"@wait w{s}\ns_barrier"); opened[0]=s
    open_stage(0)
    for n in range(LOOK): P.extend([rd(n)])
    budget=0.0; mb=0.0; started=set(); wd_from=cfg.get('WDFROM',100); wd_per=cfg.get('WDPER',0.3); wdb=0.0
    for n,(t,ks) in enumerate(seq):
        a=accof(t)
        if t>=4 and ks==0:
            while side and side[0][0]<=done_at[t-4]+3: P.extend([side.pop(0)[1]])
        if ks==32 and t==0:
            while side and side[0][0]<=97: P.extend([side.pop(0)[1]])
        WB=cfg.get('WB',2)
        if n%WB==0: P.I(f"@wait r{min(n+WB-1,N-1)}")
        P.I(f"v_mfma_f32_32x32x16_bf16 {vr(a,16)}, {vr(WF[n%NWF],4)}, {xr(ks)}, {vr(a,16) if t in started else 0}"); started.add(t)
        post=[]
        if n<96:
            x=124+4*ks
            if t==G1-1:
                post=[f"v_mfma_f32_4x4x4_16b_bf16 {vr(SQ,4)}, {vr(x,2)}, {vr(x,2)}, {vr(SQ,4) if ks else 0}",
                      f"v_mfma_f32_4x4x4_16b_bf16 {vr(SQ2,4)}, {vr(x+2,2)}, {vr(x+2,2)}, {vr(SQ2,4) if ks else 0}",
                      f"v_mfma_f32_16x16x32_bf16 {vr(SM,4)}, {vr(ONE,4)}, {vr(x,4)}, {vr(SM,4) if ks else 0}"]
        m=n+LOOK
        if m<N:
            if m in bounds: open_stage(bounds.index(m))
            P.extend([rd(m)])
        used=0
        rate = cfg.get('RATE1',0.6) if n<96 else cfg.get('RATE2',0.5)
        mb=min(mb+rate,1.0+rate)
        if mem and mb>=1 and mem[0][0]-DIST<=n and mem[0][1]<=opened[0]:
            P.extend(mem.pop(0)[2]); used=1; mb-=1
        while mem and mem[0][0]<=n+1: P.extend(mem.pop(0)[2])
        if not used and wd_side and n>=wd_from:
            wdb+=wd_per
            while wdb>=1 and wd_side:
                q=wd_side.pop(0); P.extend([q])
                if q.startswith('buffer'): wdb-=1; used=1
        budget=min(budget+PER-used, PER+1)
        while side and side[0][0]<=n and cost(side[0][1])<=budget:
            budget-=cost(side[0][1]); P.extend([side.pop(0)[1]])
        P.extend(post)
        if n==95: stamp(P,2,diag)
    stamp(P,3,diag)
    left=len(side)
    P.extend([x for _,x in side]); P.extend(epi(6))
    return left

def phase_d(P, cfg, diag, wd_rest, LD):
    ACC=[4+16*i for i in range(4)]
    B0=68; NB=44
    XR=244
    loads=[]
    for f in range(28):
        for n,s in ((0,sA0),(1,sA1)):
            k=2*f+n; b=B0+4*(k%NB)
            L=[f"buffer_load_dwordx4 {vr(b,4)}, v{vL16}, {sp(rWS,4)}, s{s} offen offset:{(f%4)*1024} {LD}"]
            if n==1 and f%4==3 and f<27: L+=[f"s_add_u32 s{sA0}, s{sA0}, 4096", f"s_add_u32 s{sA1}, s{sA1}, 4096"]
            loads.append(L)
    nwd=sum(1 for q in wd_rest if q.startswith('buffer')); f0=28-nwd//2
    def wd_upto(f):
        nonlocal f0
        while wd_rest and f0<=f:
            c=0
            while wd_rest and (c<2 or not wd_rest[0].startswith('buffer')):
                q=wd_rest.pop(0); P.I(q); c+=q.startswith('buffer')
            f0+=1
    li=0
    AH=cfg.get('DAHEAD',NB//2)
    for f in range(AH):
        wd_upto(f); P.extend(loads[2*f]); P.extend(loads[2*f+1])
    li=AH
    extra=[f"s_lshl_b32 s{sT0}, s{sX1}, 15", f"s_lshl_b32 s{sT1}, s{sX1+1}, 11", f"s_add_u32 s{sT0}, s{sT0}, s{sT1}", f"s_add_u32 s{sT0}, s{sT0}, {WS_X1F}",
           f"buffer_load_dwordx4 {vr(XR,4)}, v{vL16}, {sp(rWS,4)}, s{sT0} offen", f"buffer_load_dwordx4 {vr(XR+4,4)}, v{vL16}, {sp(rWS,4)}, s{sT0} offen offset:1024",
           f"s_lshl_b32 s{sT0}, s{sX1+1}, 7", f"s_add_u32 s{sT0}, s{sT0}, {WS_GBF}", f"v_and_b32 v3, 32, v{vLANE}"]
    extra+=[f"buffer_load_dwordx4 a[{224+4*q}:{227+4*q}], v3, {sp(rWS,4)}, s{sT0} offen offset:{64*(q>>1)+16*(q&1)}" for q in range(4)]
    for f in range(28):
        for n in range(2):
            b=B0+4*((2*f+n)%NB)
            for m in range(2):
                a=ACC[2*n+m]
                P.I(f"v_mfma_f32_32x32x16_bf16 {vr(a,16)}, a[{8*f+4*m}:{8*f+4*m+3}], {vr(b,4)}, {vr(a,16) if f else 0}")
        if li<28:
            wd_upto(li); P.extend(loads[2*li]); P.extend(loads[2*li+1]); li+=1
        elif extra: P.extend(extra); extra=[]
    stamp(P,6,diag)
    P.I(f"s_lshl_b32 s{sT0}, s{sW}, 12\nv_add_u32 v3, s{sT0}, v{vL16}\ns_lshl_b32 s{sT0}, s{sW}, 14\nv_add_u32 v252, s{sT0}, v{vL16}")
    if cfg.get('fused_cd'): P.I("s_barrier")
    for t in range(4):
        for q in range(4): P.I(f"ds_write_b128 v3, {vr(ACC[t]+4*q,4)} offset:{t*16384+q*1024}")
    P.I(f"""s_lshr_b32 s{sT0}, s{sX1}, 3
s_lshl_b32 s{sT0}, s{sT0}, 8
s_and_b32 s{sT1}, s{sX1}, 7
s_add_u32 s{sT0}, s{sT0}, s{sT1}
s_lshl_b32 s{sT0}, s{sT0}, 10
s_lshl_b32 s{sT1}, s{sX1+1}, 6
s_add_u32 s{sT0}, s{sT0}, s{sT1}
v_and_b32 v253, 31, v{vLANE}
v_lshrrev_b32 v254, 5, v{vLANE}
v_lshlrev_b32 v253, 13, v253
v_lshl_add_u32 v253, v254, 4, v253""")
    GB=140; XF=160
    for k in range(16): P.I(f"v_accvgpr_read_b32 v{GB+k}, a{224+k}")
    for k in range(8): P.I(f"v_lshlrev_b32 v{XF+2*k}, 16, v{XR+k}\nv_and_b32 v{XF+2*k+1}, 0xffff0000, v{XR+k}")
    P.I("s_waitcnt lgkmcnt(0)\ns_barrier")
    R=68
    for q in range(4):
        for w in range(4): P.I(f"ds_read_b128 {vr(R+16*w+4*q,4)}, v252 offset:{w*4096+q*1024}")
    for hq in range(2):
        for k in range(8*hq,8*hq+8,2):
            P.I(f"v_pk_add_f32 {vr(R+k,2)}, {vr(R+k,2)}, {vr(R+16+k,2)}\nv_pk_add_f32 {vr(R+32+k,2)}, {vr(R+32+k,2)}, {vr(R+48+k,2)}")
        for k in range(8*hq,8*hq+8,2):
            P.I(f"v_pk_add_f32 {vr(R+k,2)}, {vr(R+k,2)}, {vr(R+32+k,2)}")
        for k in range(8*hq,8*hq+8,2):
            P.I(f"v_pk_fma_f32 {vr(R+k,2)}, {vr(R+k,2)}, {vr(GB+k,2)}, {vr(XF+k,2)}")
        for k in range(8*hq,8*hq+8,2):
            P.I(f"v_cvt_pk_bf16_f32 v{180+k//2}, v{R+k}, v{R+k+1}")
        P.I(f"buffer_store_dwordx4 {vr(180+4*hq,4)}, v253, {sp(rOUT,4)}, s{sT0} offen offset:{32*hq}")

def build_split(P, diag, cfg):
    n='k3_kernel'
    entry(P,n,diag); c_maps(P)
    left=phase_c(P,dict(cfg,AST=cfg.get('AST','')),diag,None)
    print('phase C: side instrs left exposed', left)
    stamp(P,4,diag); stamp_out(P,2,diag)
    P.I(f"L_{n}_exit:\ns_endpgm")
    n='k4_kernel'
    entry(P,n,diag); d_maps(P); srds(P); stamp(P,1,diag)
    phase_d(P,dict(cfg,DAHEAD=14),diag,wd_load_list(),'')
    stamp(P,7,diag); stamp_out(P,3,diag)
    P.I(f"L_{n}_exit:\ns_endpgm")
    return [('k3_kernel',256,256,LDS_C,256),('k4_kernel',256,256,98304,512)]

def take_loads(L,n):
    out=[]
    while L and (n>0 or not L[0].startswith('buffer')):
        q=L.pop(0); out.append(q); n-=q.startswith('buffer')
    return out
def build_fused(P, diag, cfg):
    n='kc_kernel'
    entry(P,n,diag); c_maps(P); d_maps(P)
    wd=wd_load_list()
    left=phase_c(P,cfg,diag,wd)
    nleft=sum(q.startswith('buffer') for q in wd)
    print('phase C: side instrs left exposed', left, ' Wd loads left', nleft)
    stamp(P,4,diag)
    if nleft%2: P.extend(take_loads(wd,1))
    P.extend(take_loads(wd,cfg.get('WDA',8)))
    P.I(f"""v_mov_b32 v4, 1
v_mov_b32 v5, 0
v_and_b32 v6, 7, v{vLANE}
v_lshlrev_b32 v6, 2, v6
s_mov_b32 s{sCNT}, 0
@wait act
s_mov_b64 exec, 1
buffer_store_dword v4, v5, {sp(rWS,4)}, s{sFL} offen sc1
s_mov_b64 exec, -1""")
    stamp(P,8,diag)
    P.extend(take_loads(wd,cfg.get('WDB',8)))
    P.I(f"""L_kc_poll:
buffer_load_dword v7, v6, {sp(rWS,4)}, s{sK} offen sc1
s_add_u32 s{sCNT}, s{sCNT}, 1
s_cmp_gt_u32 s{sCNT}, 20000
s_cbranch_scc1 L_kc_go
v_cmp_ne_u32 vcc, 1, v7
s_cbranch_vccnz L_kc_poll
L_kc_go:""")
    if diag: P.I(f"v_writelane_b32 v255, s{sCNT}, 31")
    stamp(P,5,diag)
    phase_d(P,cfg,diag,wd,'sc1')
    stamp(P,7,diag); stamp_out(P,1 if cfg.get('fused_ab') else 2,diag)
    P.I(f"L_{n}_exit:\ns_endpgm")
    return [(n,256,256,LDS_C,512)]
```

```python
from prog import *
from layout import *
import struct
def f32(x): return struct.unpack('<I',struct.pack('<f',x))[0]
LOG2E = 0x3fb8aa3b
sX,sARE,sAIM,sBRE,sBIM,sCRE,sCIM,sLDT,sDSK,sBX,sWG,sWU,sWD,sC,sWM,sOUT,sDBG,sWS = [8+2*i for i in range(18)]
rR,rWG,rWU,rWD,rOUT,rWS,rWJ = 44,48,52,56,60,64,68
sXCD,sIDX,sP,sW,sTAG,sLD,sDS = 72,73,74,75,76,77,78
sT0,sT1,sT2,sT3,sT4,sT5 = 80,81,82,83,84,85
sWO,sWST,sWA = 86,87,88
sCG,sKE,sFS,sCNT = 95,96,97,98
def sp(a,n=2): return f"s[{a}:{a+n-1}]"
def vr(a,n): return f"v[{a}:{a+n-1}]"
def ar(a,n): return f"a[{a}:{a+n-1}]"
def mksrd(d,b,size):
    return [f"s_mov_b32 s{d}, s{b}", f"s_and_b32 s{d+1}, s{b+1}, 0xffff", f"s_mov_b32 s{d+2}, {size}", f"s_mov_b32 s{d+3}, 0x20000"]
vLANE = 1
vT16,vMC,vMW = 12,13,14
vPAR = 16
vTAB = 24
vRA = 32
vROLE = 40
vFG = 120
vPOLL = 160
vXF = 192
vHF = 208
vKA,vUA,vYW,vYR,vWRA,vXO,vGR,vL16 = 224,225,226,227,228,229,230,231
vMOD = 232
vKF,vKC,vGW,vSEL1,vSEL2 = 240,241,242,243,244

def stamp(P, n, diag):
    if diag: P.I(f"s_memrealtime s[4:5]\ns_memtime s[100:101]\ns_waitcnt lgkmcnt(0)\nv_writelane_b32 v255, s4, {n}\nv_writelane_b32 v255, s100, {32+n}")
def stamp0_issue(P, diag):
    if diag: P.I("v_mov_b32 v255, 0\ns_memrealtime s[4:5]\ns_memtime s[100:101]")
def stamp0_commit(P, diag):
    if diag: P.I("v_writelane_b32 v255, s4, 0\nv_writelane_b32 v255, s100, 32")
def stamp_out(P, kidx, diag):
    if diag:
        P.I(f"""s_lshl_b32 s4, s2, 10
s_add_u32 s4, s4, {WS_STAMP + kidx*0x40000}
v_lshlrev_b32 v2, 2, v0
buffer_store_dword v255, v2, {sp(rWS,4)}, s4 offen""")

def bf16_round(l):
    u=f32(float(l)); u=(u+0x7fff+((u>>16)&1))&0xffff0000
    return int(struct.unpack('<f',struct.pack('<I',u))[0])
def table_words():
    rec=[]
    for T in range(256):
        a=[]
        for j in range(11):
            lag=2047-8*T-j
            if lag<0: a.append(L_CZ); continue
            lam=bf16_round(lag); b=(lam>>3)&15; i=HI.index(lam-8*b)
            a.append(L_C+i*CP+4*b)
        a.append(0)
        w=T>>6; lane=T&63; ch=w>>1; vh=w&1
        ka_=L_KI+ch*4*KIP+(lane&3)*KIP+2*(2044-16)-3584-192-256*vh+(lane&48)-2*(lane&12)
        ua_=L_H+ch*HP+448-192-256*vh+32*(lane&15)+(lane&48)
        rec.append([a[2*k]|(a[2*k+1]<<16) for k in range(6)]+[ka_,ua_])
    return [rec[T][4*q+k] for q in range(2) for T in range(256) for k in range(4)]

def entry(P, name, diag, nlines):
    P.I(f".globl {name}\n.p2align 8\n.type {name},@function\n{name}:\n@reset")
    ng=(nlines+63)//64; assert ng&(ng-1)==0
    P.I(f"""s_cmp_ge_u32 s2, 256
s_cbranch_scc1 L_{name}_exit
s_load_dwordx16 s[8:23], s[0:1], 0
s_load_dwordx16 s[24:39], s[0:1], 64
s_load_dwordx4 s[40:43], s[0:1], 128
s_getpc_b64 s[6:7]
L_pc:
v_lshrrev_b32 v2, 6, v0
v_and_b32 v{vLANE}, 63, v0
s_lshr_b32 s{sIDX}, s2, 3
v_readfirstlane_b32 s{sW}, v2
s_and_b32 s{sT0}, s{sIDX}, {ng-1}
s_lshl_b32 s{sT0}, s{sT0}, 13
v_lshl_add_u32 v3, v{vLANE}, 7, s{sT0}
s_cmp_lg_u32 s{sW}, 3
s_cbranch_scc1 L_nopf
global_load_dword v15, v3, s[6:7]
L_nopf:""")
    stamp0_issue(P,diag)
    P.I(f"""s_and_b32 s{sXCD}, s2, 7
s_lshl_b32 s{sP}, s{sXCD}, 5
s_add_u32 s{sP}, s{sP}, s{sIDX}""")

def role_addr(P):
    P.I(f"""s_cmp_eq_u32 s{sW}, 0
s_cselect_b32 s{sT3}, 8, 1
s_lshl_b32 s{sT2}, s{sT3}, 10
s_lshl_b32 s{sT3}, s{sT3}, 7
s_lshr_b32 s{sT0}, s{sP}, 3
s_lshl_b32 s{sT0}, s{sT0}, 16
s_and_b32 s{sT4}, s{sP}, 7
s_lshl_b32 s{sT4}, s{sT4}, 7
s_add_u32 s{sT0}, s{sT0}, s{sT4}
s_lshl_b32 s{sT1}, s{sP}, 13
s_cmp_eq_u32 s{sW}, 0
s_cselect_b32 s{sT0}, s{sT0}, s{sT1}
s_lshr_b32 s92, s{sP}, 3
s_sub_u32 s92, s92, s{sXCD}
s_and_b32 s{sT5}, s92, 3
s_mul_i32 s{sT1}, s{sT5}, {128*6144}
s_add_u32 s{sT1}, s{sT1}, s{sT4}
s_and_b32 s{sT4}, s92, 28
s_lshl_b32 s{sT4}, s{sT4}, 8
s_add_u32 s{sT1}, s{sT1}, s{sT4}
s_cmp_lt_u32 s{sIDX}, 24
s_cselect_b32 s{sT4}, 3145728, 0
s_cmp_lt_u32 s{sW}, 2
s_cselect_b32 s{sT0}, s{sT0}, s{sT1}
s_cselect_b32 s{sT2}, s{sT2}, 6144
s_cselect_b32 s{sT3}, s{sT3}, {8*6144}
s_cselect_b32 s{rR+2}, 2097152, s{sT4}
s_cselect_b32 s{sCNT}, 1, 2
s_mov_b32 s{rR+3}, 0x20000
v_lshrrev_b32 v3, 3, v{vLANE}
v_mul_u32_u24 v3, s{sT2}, v3
v_lshrrev_b32 v4, 2, v{vLANE}
v_and_b32 v4, 4, v4
v_and_b32 v5, 7, v{vLANE}
v_xor_b32 v4, v4, v5
v_lshl_add_u32 v3, v4, 4, v3
v_xor_b32 v4, 32, v3
s_lshl_b32 s{sT1}, s{sW}, 13
s_add_u32 s{sT1}, s{sT1}, {L_RR}
s_lshl_b32 s{sT5}, s{sT5}, 8
v_lshl_add_u32 v5, v{vLANE}, 2, s{sT5}
s_lshl_b32 s{sT5}, s{sP}, 9
v_lshl_add_u32 v2, v0, 1, s{sT5}""")
    for i in range(6): P.I(f"v_mov_b32 v{vPAR+i}, 0")
def early_loads(P, NT, XNT):
    for i,b in enumerate((sARE,sAIM,sBRE,sBIM,sCRE,sCIM)):
        P.I(f"global_load_short_d16_hi v{vPAR+i}, v2, {sp(b)} {NT}")
    P.I(f"""s_cmp_lt_u32 s{sW}, 2
s_cselect_b64 {sp(rR)}, {sp(sX)}, {sp(sWM)}
s_and_b32 s{rR+1}, s{rR+1}, 0xffff
s_cmp_eq_u32 s{sW}, 3
s_cbranch_scc1 L_rle
global_load_dword v{vROLE}, v5, {sp(sC)}
@loopok
L_rl:""")
    for u in range(8):
        P.I(f"s_add_u32 m0, s{sT1}, {u*1024}")
        if u: P.I(f"s_add_u32 s{sT0}, s{sT0}, s{sT3}")
        else: P.I(f"s_sub_u32 s{sCNT}, s{sCNT}, 1")
        P.I(f"buffer_load_dwordx4 v{3+(u&1)}, {sp(rR,4)}, s{sT0} offen {XNT} lds", tag='rr')
    P.I(f"""s_add_u32 s{sT0}, s{sT0}, s{sT3}
s_add_u32 s{sT1}, s{sT1}, 8192
s_cmp_lg_u32 s{sCNT}, 0
s_cbranch_scc1 L_rl
L_rle:
s_lshl_b32 s{sT0}, s{sP}, 2
s_load_dword s{sLD}, {sp(sLDT)}, s{sT0}
s_load_dword s{sDS}, {sp(sDSK)}, s{sT0}
s_load_dword s{sTAG}, {sp(sWS)}, {WS_EPOCH}
s_add_u32 s6, s6, L_table-L_pc+4096
s_addc_u32 s7, s7, 0
v_lshlrev_b32 v{vT16}, 4, v0
global_load_dwordx4 {vr(vTAB,4)}, v{vT16}, s[6:7] offset:-4096
global_load_dwordx4 {vr(vTAB+4,4)}, v{vT16}, s[6:7]""")

def setup(P):
    P.extend(mksrd(rWS,sWS,WS_USED))
    P.I(f"s_cmp_lt_u32 s{sIDX}, 28\ns_cselect_b32 s{sT0}, 1835008, 0\ns_cselect_b32 s{sT1}, {WS_USED}, 0")
    for r,b in ((rWG,sWG),(rWU,sWU),(rWD,sWD)): P.extend(mksrd(r,b,f"s{sT0}"))
    P.extend(mksrd(rWJ,sWS,f"s{sT1}"))
    P.I(f"""s_and_b32 s{sCG}, s{sXCD}, 3
s_mul_i32 s{sCG}, s{sCG}, 7
s_lshr_b32 s{sT0}, s{sIDX}, 2
s_add_u32 s{sCG}, s{sCG}, s{sT0}
s_and_b32 s{sKE}, s{sXCD}, 4
s_and_b32 s{sT0}, s{sIDX}, 3
s_add_u32 s{sKE}, s{sKE}, s{sT0}
s_mul_i32 s{sFS}, s{sXCD}, 28
s_add_u32 s{sFS}, s{sFS}, s{sIDX}""")
    P.I(f"""s_lshl2_add_u32 s{sT0}, s{sCG}, s{sW}
s_mul_i32 s{sT1}, s{sT0}, 147
s_lshr_b32 s{sT1}, s{sT1}, 10
s_mul_i32 s{sT2}, s{sT1}, 7
s_sub_u32 s{sT0}, s{sT0}, s{sT2}
s_mul_i32 s{sT1}, s{sT1}, 231
s_cmp_lt_u32 s{sT0}, {G1}
s_cselect_b32 s{sT2}, {G1}, 1
s_cselect_b32 s{sT3}, 1, 33
s_mul_i32 s{sT0}, s{sT0}, s{sT3}
s_add_u32 s{sT0}, s{sT0}, s{sT1}
s_lshl_b32 s{sT0}, s{sT0}, 10
s_add_u32 s{sT0}, s{sT0}, {WS_WPF}
s_lshl_b32 s{sWST}, s{sT2}, 10
s_mul_i32 s{sT3}, s{sWST}, s{sKE}
s_lshl2_add_u32 s{sWO}, s{sT3}, s{sT0}
s_lshl_b32 s{sT2}, s{sT2}, 15
s_add_u32 s{sWA}, s{sT2}, s{sT0}
s_lshl_b32 s{sT0}, s{sKE}, 7
s_add_u32 s{sWA}, s{sWA}, s{sT0}""")
    L=vLANE
    P.I(f"""v_lshlrev_b32 v{vL16}, 4, v{L}
v_and_b32 v2, 15, v{L}
v_and_b32 v3, 48, v{L}
v_lshrrev_b32 v4, 4, v{L}
v_lshrrev_b32 v5, 5, v{L}
v_and_b32 v6, 3, v{L}
s_mul_i32 s{sT2}, s{sW}, 10240
s_add_u32 s{sT2}, s{sT2}, {L_Y}
v_mul_u32_u24 v7, 320, v4
v_lshl_add_u32 v7, v2, 4, v7
v_add_u32 v{vYW}, s{sT2}, v7
v_lshrrev_b32 v7, 5, v0
v_mul_u32_u24 v7, 1280, v7
v_and_b32 v8, 1, v0
v_mul_u32_u24 v9, 640, v8
v_bfe_u32 v10, v0, 1, 4
v_lshl_add_u32 v9, v10, 4, v9
v_add_u32 v{vYR}, v7, v9
v_lshrrev_b32 v7, 2, v0
v_lshlrev_b32 v7, 15, v7
v_lshl_add_u32 v{vXO}, v6, 4, v7
v_mul_u32_u24 v7, {FP}, v2
v_add_u32 v7, v7, v3
v_add_u32 v{vKF}, {L_F}, v7
v_mul_u32_u24 v7, {CP}, v2
s_mul_i32 s{sT2}, s{sW}, {16*CP}
v_add3_u32 v{vKC}, v7, v3, s{sT2}
v_bfe_u32 v7, v{L}, 2, 2
v_cmp_eq_u32 vcc, 3, v7
v_cmp_eq_u32 {sp(sT2)}, 1, v7
v_cvt_f32_u32 v{vSEL2}, v5
v_cndmask_b32 v9, v7, 5, vcc
v_cndmask_b32 v{vSEL1}, 0, 1.0, {sp(sT2)}
v_lshl_add_u32 v9, v9, 2, v6
v_lshlrev_b32 v{vMC}, 12, v9
v_lshl_add_u32 v9, v5, 2, v6
v_bfe_u32 v10, v{L}, 2, 3
v_lshlrev_b32 v11, 4, v10
v_lshl_add_u32 v{vMW}, v9, 12, v11
s_lshl_b32 s{sT2}, s{sW}, 6
s_add_u32 s{sT2}, s{sT2}, {L_GT+256}
v_lshl_add_u32 v10, v10, 3, s{sT2}
v_lshlrev_b32 v11, 8, v5
v_sub_u32 v{vGW}, v10, v11
v_lshlrev_b32 v10, 5, v5
v_add_u32 v{vGR}, {L_GT}, v10
v_and_b32 v9, 1, v4
v_lshl_add_u32 v10, v9, 1, v5
v_lshl_add_u32 v10, v10, 3, v7
v_lshl_add_u32 v10, v10, 1, v9
v_bfe_u32 v11, v{L}, 3, 1
v_lshl_add_u32 v10, v10, 1, v11
v_xor_b32 v10, s{sW}, v10
v_lshl_add_u32 v10, v10, 1, v8
v_bfe_u32 v11, v{L}, 1, 1
v_lshl_add_u32 v10, v10, 1, v11
v_lshlrev_b32 v10, 3, v10
v_add_u32 v{vWRA}, {L_WR}, v10""")
    P.I(f"v_mov_b32 v{vRA+2}, 0\nv_mov_b32 v{vRA+3}, 0\nv_mov_b32 v{vRA+4}, 0")
    P.I(f"""v_mul_u32_u24 v7, {HP}, v5
v_and_b32 v9, 31, v{L}
v_min_u32 v9, 29, v9
v_lshl_add_u32 v7, v9, 4, v7
v_add_u32 v7, {L_H}, v7
v_cmp_gt_u32 vcc, 64, v0
v_mov_b32 v9, {L_CZ}
v_mov_b32 v{vFG}, 0
v_cndmask_b32 v7, v9, v7, vcc
v_mov_b32 v{vFG+1}, 0
v_mov_b32 v{vFG+2}, 0
v_mov_b32 v{vFG+3}, 0
ds_write_b128 v7, {vr(vFG,4)}""")

def role_jobs(P, PUB, NT, diag):
    R=vROLE; G=vROLE+32; L=vLANE; A0=vRA
    sync=f"s_waitcnt lgkmcnt(0)\ns_add_u32 s{sTAG}, s{sTAG}, 1\ns_barrier"
    P.I(f"s_cmp_eq_u32 s{sW}, 1\ns_cbranch_scc1 L_rj1\ns_cmp_eq_u32 s{sW}, 2\ns_cbranch_scc1 L_rj2\ns_cmp_eq_u32 s{sW}, 3\ns_cbranch_scc1 L_rj3")
    P.I(f"""v_and_b32 v2, 7, v{L}
v_lshrrev_b32 v3, 3, v{L}
v_and_b32 v4, 2, v2
v_lshlrev_b32 v4, 1, v4
v_xor_b32 v4, v4, v3
v_lshlrev_b32 v4, 4, v4
v_lshl_add_u32 v4, v2, 7, v4
v_add_u32 v4, {L_RR}, v4
v_xor_b32 v5, 32, v4
v_mul_u32_u24 v3, {4*12288}, v3
v_lshl_add_u32 v2, v2, 4, v3
s_and_b32 s{sT0}, s{sP}, 7
s_mul_i32 s{sT0}, s{sT0}, {32*12288}
s_and_b32 s{sT1}, s{sP}, 0xf8
s_lshl4_add_u32 s{sT0}, s{sT1}, s{sT0}
s_add_u32 s{sT0}, s{sT0}, {WS_XG}""")
    P.I(sync)
    for k in range(12): P.I(f"v_mov_b32 v{G+4*k+3}, s{sTAG}")
    P.I("s_waitcnt vmcnt(0)"); stamp(P,2,diag)
    for r in range(8): P.I(f"ds_read_b128 {vr(R+4*r,4)}, v{4+(r&1)} offset:{r*1024}")
    for g in range(3):
        for j in range(4):
            k=g*4+j
            for e in range(3):
                if 3*g+e<8: P.I(f"v_mov_b32 v{G+4*k+e}, v{R+4*(3*g+e)+j}")
            P.I(f"s_add_u32 s{sT1}, s{sT0}, {j*12288+g*4096}")
            P.I(f"buffer_store_dwordx4 {vr(G+4*k,4)}, v2, {sp(rWS,4)}, s{sT1} offen {PUB}")
    P.I(f"s_branch L_rje\nL_rj1:")
    P.I(f"""v_mov_b32 v2, 0
v_mov_b32 v3, 0
v_mov_b32 v4, 0
v_mov_b32 v5, 0
s_mov_b32 s{sT1}, 0x3f803f80
v_add_u32 v6, {L_RR+8192}, v{vL16}
v_mul_u32_u24 v8, 96, v{L}
v_lshlrev_b32 v9, 12, v{L}
s_lshl4_add_u32 s{sT0}, s{sP}, {WS_SG}""")
    P.I(sync)
    P.I(f"v_mov_b32 v{G+3}, s{sTAG}\ns_waitcnt vmcnt(0)"); stamp(P,2,diag)
    for u in range(8): P.I(f"ds_read_b128 {vr(R+4*u,4)}, v6 offset:{u*1024}")
    for k in range(32):
        P.I(f"v_dot2c_f32_bf16 v{2+(k&1)}, s{sT1}, v{R+k}\nv_dot2c_f32_bf16 v{4+(k&1)}, v{R+k}, v{R+k}")
    P.I("v_add_f32 v2, v2, v3\nv_add_f32 v4, v4, v5")
    for m in ("quad_perm:[1,0,3,2]","quad_perm:[2,3,0,1]","row_half_mirror"):
        P.I(f"v_add_f32_dpp v2, v2, v2 {m} row_mask:0xf bank_mask:0xf\nv_add_f32_dpp v4, v4, v4 {m} row_mask:0xf bank_mask:0xf")
    P.I(f"""v_mul_f32 v2, 0x3b000000, v2
v_mul_f32 v4, 0x3b000000, v4
v_fma_f32 v4, -v2, v2, v4
v_max_f32 v4, 0, v4
v_cvt_pk_bf16_f32 v4, v4, v4
v_and_b32 v4, 0xffff0000, v4
v_add_f32 v4, 0x3727c5ac, v4
v_cvt_pk_bf16_f32 v4, v4, v4
v_and_b32 v4, 0xffff0000, v4
v_sqrt_f32 v4, v4
v_cvt_pk_bf16_f32 v2, v2, v4
ds_bpermute_b32 v{G}, v8, v2
ds_bpermute_b32 v{G+1}, v8, v2 offset:32
ds_bpermute_b32 v{G+2}, v8, v2 offset:64
s_waitcnt lgkmcnt(0)
s_mov_b64 exec, 7
buffer_store_dwordx4 {vr(G,4)}, v9, {sp(rWS,4)}, s{sT0} offen {PUB}
s_mov_b64 exec, -1
s_branch L_rje
L_rj2:""")
    assert L_MR%128==0
    P.I(f"""v_lshrrev_b32 v2, 4, v{L}
v_bfe_u32 v3, v{L}, 2, 2
v_lshl_add_u32 v4, v2, 3, v3
v_bfe_u32 v3, v{L}, 3, 1
v_lshl_add_u32 v4, v4, 1, v3
v_and_b32 v3, 1, v2
v_lshl_add_u32 v4, v4, 1, v3
v_and_b32 v3, 3, v{L}
v_lshl_add_u32 v4, v4, 2, v3
v_lshlrev_b32 v4, 3, v4
v_add_u32 v8, {L_MR}, v4
v_xor_b32 v9, 32, v8
v_xor_b32 v10, 64, v8
v_xor_b32 v11, 96, v8
v_bfe_u32 v4, v{L}, 1, 2
v_lshl_add_u32 v4, v4, 2, v2
v_and_b32 v3, 1, v{L}
v_lshl_add_u32 v4, v4, 1, v3
v_lshlrev_b32 v{A0}, 4, v4
v_lshlrev_b32 v6, 2, v{L}
v_add_u32 v6, {L_SC}, v6
v_and_b32 v7, 48, v{L}
v_add_u32 v7, {L_SC}, v7
s_lshl_b32 s{sT0}, s92, 12
s_and_b32 s{sT1}, s{sIDX}, 7
s_lshl_b32 s{sT1}, s{sT1}, 9
s_add_u32 s{sT0}, s{sT0}, s{sT1}
s_add_u32 s99, s{sT0}, {WS_MG}
s_mov_b32 s{sT0}, 0xaaaaaaaa
s_mov_b32 s{sT1}, 0xaaaaaaaa
s_mov_b32 s{sT2}, 0xcccccccc
s_mov_b32 s{sT3}, 0xcccccccc
s_mov_b32 s{sT4}, 0xf0f0f0f0
s_mov_b32 s{sT5}, 0xf0f0f0f0""")
    P.I(sync)
    P.I(f"""s_waitcnt vmcnt(18)
@forget {R}
v_lshlrev_b32 v2, 16, v{R}
v_and_b32 v3, 0xffff0000, v{R}
v_mul_f32 v4, 0xbfb8aa3b, v2
v_mul_f32 v5, 0xbfb8aa3b, v3
v_exp_f32 v4, v4
v_exp_f32 v5, v5
v_add_f32 v4, 1.0, v4
v_add_f32 v5, 1.0, v5
v_rcp_f32 v4, v4
v_rcp_f32 v5, v5
v_mul_f32 v2, v2, v4
v_mul_f32 v3, v3, v5
v_cvt_pk_bf16_f32 v2, v2, v3
ds_write_b32 v6, v2""")
    for ks in range(4): P.I(f"ds_read_b128 {vr(R+4*ks,4)}, v7 offset:{ks*64}")
    P.I("s_waitcnt vmcnt(0)"); stamp(P,2,diag)
    P.I(f"s_cmp_ge_u32 s{sIDX}, 24\ns_cbranch_scc1 L_rje")
    A=R+16; ACC=R+16+32
    seq=[(ks,ct) for ks in range(4) for ct in range(4)]
    def rd(n):
        ks,ct=seq[n]; a=A+4*(n%8)
        return [f"ds_read_b64_tr_b16 {vr(a+2*hf,2)}, v{8+ct} offset:{ks*4096+hf*512}" for hf in range(2)]
    for n in range(6): P.extend(rd(n))
    for n,(ks,ct) in enumerate(seq):
        P.I(f"v_mfma_f32_16x16x32_bf16 {vr(ACC+4*ct,4)}, {vr(A+4*(n%8),4)}, {vr(R+4*ks,4)}, {vr(ACC+4*ct,4) if ks else 0}")
        if n+6<16: P.extend(rd(n+6))
    P.I(f"v_mov_b32 v{R+3}, s{sTAG}")
    for ct in range(4):
        for e in range(2): P.I(f"v_cndmask_b32 v{A+2*ct+e}, v{ACC+4*ct+e}, v{ACC+4*ct+2+e}, {sp(sT0)}")
    for c2 in range(2):
        for e in range(2): P.I(f"v_cndmask_b32 v{A+8+2*c2+e}, v{A+4*c2+e}, v{A+4*c2+2+e}, {sp(sT2)}")
    for e in range(2): P.I(f"v_cndmask_b32 v{R+e}, v{A+8+e}, v{A+10+e}, {sp(sT4)}")
    P.I(f"""s_mov_b32 exec_lo, 0x00ff00ff
s_mov_b32 exec_hi, 0x00ff00ff
buffer_store_dwordx4 {vr(R,4)}, v{A0}, {sp(rWS,4)}, s99 offen {PUB}
s_mov_b64 exec, -1
s_branch L_rje
L_rj3:""")
    P.I(f"""v_lshrrev_b32 v2, 3, v{L}
v_and_b32 v3, 2, v2
v_mul_u32_u24 v2, 3584, v2
v_and_b32 v4, 7, v{L}
v_xor_b32 v3, v3, v4
v_xor_b32 v4, 4, v3
v_lshl_add_u32 v{A0+2}, v3, 4, v2
v_lshl_add_u32 v{A0+3}, v4, 4, v2
v_lshrrev_b32 v2, 2, v{L}
v_and_b32 v5, 3, v{L}
v_lshlrev_b32 v5, 4, v5
v_lshl_add_u32 v{A0+4}, v2, 10, v5
v_lshrrev_b32 v6, 5, v{L}
v_and_b32 v7, 3, v2
v_lshl_add_u32 v6, v6, 3, v7
v_bfe_u32 v7, v{L}, 4, 1
v_lshl_add_u32 v6, v6, 1, v7
v_and_b32 v8, 1, v{L}
v_lshl_add_u32 v6, v6, 1, v8
v_bfe_u32 v7, v{L}, 1, 1
v_lshl_add_u32 v6, v6, 1, v7
v_lshlrev_b32 v6, 3, v6
v_add_u32 v{A0}, {L_DR}, v6
v_bfe_u32 v7, v{L}, 1, 3
v_mul_u32_u24 v7, {KIP}, v7
v_lshl_add_u32 v7, v8, 4, v7
v_add_u32 v{A0+1}, {L_KI+4096}, v7
s_mul_i32 s{sT0}, s{sKE}, {64*3584}
s_lshl_b32 s{sT1}, s{sCG}, 7
s_add_u32 s90, s{sT0}, s{sT1}
s_lshr_b32 s{sT2}, s{sFS}, 1
s_lshl_b32 s{sT2}, s{sT2}, 14
s_and_b32 s{sT1}, s{sFS}, 1
s_lshl_b32 s{sT1}, s{sT1}, 9
s_add_u32 s91, s{sT2}, s{sT1}""")
    P.I(sync)
    P.I("s_waitcnt vmcnt(0)"); stamp(P,2,diag)
    P.I("L_rje:")
def raw_weight_loads(P, NT):
    A0=vRA
    P.I(f"s_cmp_lg_u32 s{sW}, 3\ns_cbranch_scc1 L_norw")
    for f in range(8):
        P.I(f"s_mov_b32 m0, {L_DR+f*1024-f*64}\ns_nop 0")
        P.I(f"buffer_load_dwordx4 v{A0+4}, {sp(rWD,4)}, s91 offen offset:{f*64} lds", tag='dr')
    for q in range(8):
        for mat,r in ((0,rWG),(1,rWU)):
            P.I(f"s_mov_b32 m0, {L_WR+(q>>1)*4096+mat*2048+(q&1)*1024}")
            P.I(f"s_add_u32 s90, s90, {8*3584}" if (q and not mat) else "s_nop 0")
            P.I(f"buffer_load_dwordx4 v{A0+2+mat}, {sp(r,4)}, s90 offen {NT} lds", tag='wr')
    P.I("L_norw:")

def cmul(o,a,b,t):
    return [f"v_pk_mul_f32 {vr(t,2)}, {vr(a,2)}, {vr(b,2)} op_sel_hi:[0,1]",
            f"v_pk_fma_f32 {vr(o,2)}, {vr(a,2)}, {vr(b,2)}, {vr(t,2)} op_sel:[1,1,0] op_sel_hi:[1,0,1] neg_lo:[1,0,0]"]
def factor_gen(P):
    B=vFG; are,aim,bre,bim,cre,cim=[vPAR+i for i in range(6)]
    R1,R8,R128,LOc,TMP,PK = B,B+2,B+4,B+6,B+8,B+12
    Pc=[B+16+2*c for c in range(8)]
    zr,zi,dt=B+32,B+33,B+34; M=[2,4,6]; PH=[8,9,10]
    P.I(f"""s_lshr_b32 s{sT0}, s{sW}, 1
s_mul_i32 s{sT1}, s{sT0}, {64*FP-512}
s_lshl_b32 s{sT2}, s{sW}, 8
s_add_u32 m0, s{sT1}, s{sT2}
s_lshl_b32 s{sT0}, s{sT0}, 4
s_lshr_b32 s{sT1}, s{sLD}, s{sT0}
s_lshl_b32 s{sT1}, s{sT1}, 16
v_mov_b32 v{dt}, {hex(LOG2E)}
v_mul_f32 v{dt}, s{sT1}, v{dt}
v_exp_f32 v{dt}, v{dt}""")
    P.extend(cmul(Pc[0],cre,bre,TMP))
    P.I(f"""v_cvt_pk_bf16_f32 v{dt}, v{dt}, v{dt}
v_and_b32 v{dt}, 0xffff0000, v{dt}
v_mul_f32 v{zr}, v{dt}, v{are}
v_mul_f32 v{zi}, v{dt}, v{aim}
v_mul_f32 v{zr}, {hex(LOG2E)}, v{zr}
v_mul_f32 v{zi}, 0.15915494, v{zi}
v_pk_mul_f32 {vr(Pc[0],2)}, {vr(Pc[0],2)}, {vr(dt,2)} op_sel_hi:[1,0] neg_hi:[1,0]""")
    cx=((R1,1,True),(R8,8,False),(R128,128,True))
    for (o,sc,cj),m,ph in zip(cx,M,PH):
        if sc==1: P.I(f"v_exp_f32 v{m}, v{zr}\nv_fract_f32 v{ph}, v{zi}")
        else: P.I(f"v_mul_f32 v{m}, {hex(f32(sc))}, v{zr}\nv_mul_f32 v{ph}, {hex(f32(sc))}, v{zi}\nv_exp_f32 v{m}, v{m}\nv_fract_f32 v{ph}, v{ph}")
        P.I(f"v_cos_f32 v{o}, v{ph}\nv_sin_f32 v{o+1}, v{ph}")
    for (o,sc,cj),m,ph in zip(cx,M,PH):
        P.I(f"v_pk_mul_f32 {vr(o,2)}, {vr(o,2)}, {vr(m,2)} op_sel_hi:[1,0]" + (" neg_hi:[1,0]" if cj else ""))
    steps_lo=[('one',48),('put',49,R8)]+[('mul',48+b,LOc,(R8 if b==2 else LOc),R8) for b in range(2,16)]
    steps_hi=[('put',0,Pc[0])]+[('mul',c,Pc[c],Pc[c-1],R1) for c in range(1,8)]
    row=8
    for e in range(1,17):
        cs = range(8) if e<2 else range(0,8,2) if e<4 else (0,4) if e<8 else (0,)
        for c in cs:
            assert HI[row]==128*e+c
            steps_hi.append(('mul',row,Pc[c],Pc[c],R128)); row+=1
    for k,s in enumerate(steps_lo+steps_hi):
        kk=PK+(k&3)
        if s[0]=='one': P.I(f"v_mov_b32 v{kk}, 0x3f80")
        else:
            if s[0]=='mul': P.extend(cmul(s[2],s[3],s[4],TMP+2*(k&1)))
            P.I(f"v_cvt_pk_bf16_f32 v{kk}, v{s[2]}, v{s[2]+1}")
        P.I(f"ds_write_addtid_b32 v{kk} offset:{L_F+s[1]*FP}")

def kgen(P, ST):
    A=vROLE; ACC=vFG
    P.I(f"""s_lshl_b32 s{sT0}, s{sDS}, 16
s_and_b32 s{sT1}, s{sDS}, 0xffff0000
v_cmp_eq_u32 vcc, 0, v0
v_mov_b32 v2, s{sT0}
v_mov_b32 v3, s{sT1}
s_mul_i32 s{sT2}, s{sW}, {16*FP}
v_cndmask_b32 v{ACC}, 0, v2, vcc
v_cndmask_b32 v{ACC+4}, 0, v3, vcc
v_add_u32 v5, s{sT2}, v{vKF}""")
    for r in (1,2,3,5,6,7): P.I(f"v_mov_b32 v{ACC+r}, 0")
    P.I(f"s_cmp_eq_u32 s{sW}, 3\ns_waitcnt lgkmcnt(0)\ns_barrier\ns_cbranch_scc1 L_wdjob")
    def rd(n):
        ks,ch=n>>1,n&1; b=A+8*(n%9)
        return [f"ds_read_b128 {vr(b,4)}, v{vKF} offset:{ch*64*FP+48*FP+ks*64}", f"ds_read_b128 {vr(b+4,4)}, v5 offset:{ch*64*FP+ks*64}"]
    for n in range(7): P.extend(rd(n))
    for n in range(16):
        b=A+8*(n%9); a=vr(ACC+4*(n&1),4)
        P.I(f"v_mfma_f32_16x16x32_bf16 {a}, {vr(b,4)}, {vr(b+4,4)}, {a}")
        if n+7<16: P.extend(rd(n+7))
    for r in range(4): P.I(f"v_cvt_pk_bf16_f32 v{8+r}, v{ACC+r}, v{ACC+4+r}")
    P.I(f"ds_write_b128 v{vKC}, v[8:11]\ns_branch L_kgen_end\nL_wdjob:")
    P.I(f"""ds_write_b128 v{vRA+1}, {vr(ACC,4)}
s_and_b32 s{sT0}, s{sFS}, 1
s_mul_i32 s{sT0}, s{sT0}, {8*112}
s_lshr_b32 s{sT1}, s{sFS}, 1
s_add_u32 s{sT0}, s{sT0}, s{sT1}
s_lshl_b32 s{sT0}, s{sT0}, 10
s_add_u32 s{sT0}, s{sT0}, {WS_WDF}
@wait dr""")
    for f in range(8):
        for hf in range(2): P.I(f"ds_read_b64_tr_b16 {vr(A+4*f+2*hf,2)}, v{vRA} offset:{f*1024+hf*256}")
    for f in range(8):
        P.I(f"buffer_store_dwordx4 {vr(A+4*f,4)}, v{vL16}, {sp(rWJ,4)}, s{sT0} offen {ST}", tag='wdst')
        if f<7: P.I(f"s_add_u32 s{sT0}, s{sT0}, {112*1024}")
    P.I("L_kgen_end:")

def poll_loads(P):
    LD='sc1'
    P.I(f"""s_mul_i32 s{sT0}, s{sP}, 12288
s_add_u32 s{sT0}, s{sT0}, {WS_XG}
s_lshl4_add_u32 s{sT3}, s{sP}, {WS_MG}
buffer_load_dwordx4 {vr(vPOLL+24,4)}, v{vMC}, {sp(rWS,4)}, s{sT3} offen {LD}
s_lshl2_add_u32 s{sT3}, s{sKE}, s{sW}
s_lshl_b32 s{sT3}, s{sT3}, 7
s_add_u32 s{sT3}, s{sT3}, {WS_MG+12*4096}
buffer_load_dwordx4 {vr(vPOLL+28,4)}, v{vMW}, {sp(rWS,4)}, s{sT3} offen {LD}""")
    for g in range(3):
        P.I(f"s_mov_b32 s{sT1}, {WS_SG+g*4096}\nbuffer_load_dwordx4 {vr(vPOLL+12+4*g,4)}, v{vT16}, {sp(rWS,4)}, s{sT1} offen {LD}")
        P.I(f"buffer_load_dwordx4 {vr(vPOLL+4*g,4)}, v{vT16}, {sp(rWS,4)}, s{sT0} offen {LD}")
        if g<2: P.I(f"s_add_u32 s{sT0}, s{sT0}, 4096")

def k_image(P):
    E=vROLE+40; O=vROLE; GA=vFG+8
    for j in range(11):
        P.I(f"v_lshrrev_b32 v{GA+j}, 16, v{vTAB+j//2}" if j&1 else f"v_and_b32 v{GA+j}, 0xffff, v{vTAB+j//2}")
    P.I(f"""v_mov_b32 v{vKA}, v{vTAB+6}
v_mov_b32 v{vUA}, v{vTAB+7}
s_mov_b32 s{sT4}, 0x05040100
s_mov_b32 s{sT5}, 0x07060302
v_add_u32 v2, {L_KI}, v{vT16}
s_waitcnt lgkmcnt(0)
s_barrier""")
    for j in range(11): P.I(f"ds_read_b32 v{E+j}, v{GA+j}")
    k=0
    for c in (3,2,1,0):
        for ch in range(2):
            o=O+4*k; k+=1
            for i in range(4):
                j=3-c+2*i
                P.I(f"v_perm_b32 v{o+i}, v{E+j+1}, v{E+j}, s{sT4+ch}")
            P.I(f"ds_write_b128 v2, {vr(o,4)} offset:{(ch*4+c)*KIP}")

def check_tags(P, diag):
    P.I(f"s_mov_b32 s{sCNT}, 0\nL_ka_chk:")
    P.I(f"""v_min3_u32 v2, v{vPOLL+27}, v{vPOLL+31}, s{sTAG}
v_max3_u32 v3, v{vPOLL+27}, v{vPOLL+31}, s{sTAG}
s_waitcnt vmcnt(0)
v_min3_u32 v2, v2, v{vPOLL+15}, v{vPOLL+3}
v_max3_u32 v3, v3, v{vPOLL+15}, v{vPOLL+3}
v_min3_u32 v2, v2, v{vPOLL+19}, v{vPOLL+7}
v_max3_u32 v3, v3, v{vPOLL+19}, v{vPOLL+7}
v_min3_u32 v2, v2, v{vPOLL+23}, v{vPOLL+11}
v_max3_u32 v3, v3, v{vPOLL+23}, v{vPOLL+11}
v_cmp_ne_u32 vcc, v2, v3
s_cbranch_vccnz L_ka_retry
L_ka_ok:""")
    if diag: P.I(f"s_add_u32 s{sCNT}, s{sCNT}, 1\nv_writelane_b32 v255, s{sCNT}, 31")
def retry_block(P):
    P.I(f"L_ka_retry:\ns_add_u32 s{sCNT}, s{sCNT}, 1\ns_cmp_gt_u32 s{sCNT}, 20000\ns_cbranch_scc1 L_ka_ok")
    poll_loads(P)
    P.I("s_waitcnt vmcnt(0)\ns_branch L_ka_chk")

def make_h(P):
    Q=vPOLL; mc=Q+24; mw=Q+28; Mm=vROLE; Mr=vROLE+8; O=vROLE+16
    dpp=" row_mask:0xf bank_mask:0xf"
    for m in ("quad_perm:[1,0,3,2]","quad_perm:[2,3,0,1]"):
        for r in (mc,mc+1,mw,mw+1): P.I(f"v_add_f32_dpp v{r}, v{r}, v{r} {m}{dpp}")
    for rnd in range(2):
        P.I(f"v_cvt_pk_bf16_f32 v{mc+1}, v{mc}, v{mc+1}\nv_cvt_pk_bf16_f32 v{mw+1}, v{mw}, v{mw+1}")
        P.I(f"v_lshlrev_b32 v{mc}, 16, v{mc+1}\nv_and_b32 v{mc+1}, 0xffff0000, v{mc+1}\nv_lshlrev_b32 v{mw}, 16, v{mw+1}\nv_and_b32 v{mw+1}, 0xffff0000, v{mw+1}")
        if rnd==0: P.I(f"v_add_f32 v{mc}, v{mc}, v{vSEL1}\nv_add_f32 v{mc+1}, v{mc+1}, v{vSEL1}\nv_add_f32 v{mw}, v{mw}, v{vSEL2}\nv_add_f32 v{mw+1}, v{mw+1}, v{vSEL2}")
    P.I(f"ds_write_b64 v{vGW}, {vr(mw,2)}")
    for k in range(4):
        for e in range(2): P.I(f"v_mov_b32_dpp v{vMOD+2*k+e}, v{mc+e} row_newbcast:{4*k}{dpp}")
    for r in range(8):
        st=Q+12+4*(r//3)+r%3; xr=Q+4*(r//3)+r%3
        P.I(f"""v_and_b32 v{Mr+r}, 0xffff0000, v{st}
v_lshlrev_b32 v{Mm+r}, 16, v{st}
v_rcp_f32 v{Mr+r}, v{Mr+r}
v_lshlrev_b32 v{vXF+r}, 16, v{xr}
v_and_b32 v{vXF+8+r}, 0xffff0000, v{xr}""")
    P.I(f"v_add_u32 v2, {L_H+480}, v{vT16}")
    for ch in range(2):
        sel=f"op_sel:[0,{ch},{ch}] op_sel_hi:[1,{ch},{ch}]"
        for r in range(0,8,2): P.I(f"v_pk_add_f32 {vr(vHF+8*ch+r,2)}, {vr(vXF+8*ch+r,2)}, {vr(Mm+r,2)} neg_lo:[0,1] neg_hi:[0,1]")
        for r in range(0,8,2): P.I(f"v_pk_mul_f32 {vr(vHF+8*ch+r,2)}, {vr(vHF+8*ch+r,2)}, {vr(Mr+r,2)}")
        for r in range(0,8,2): P.I(f"v_pk_fma_f32 {vr(vHF+8*ch+r,2)}, {vr(vHF+8*ch+r,2)}, {vr(vMOD+2,2)}, {vr(vMOD,2)} {sel}")
        for r in range(0,8,2): P.I(f"v_cvt_pk_bf16_f32 v{O+4*ch+r//2}, v{vHF+8*ch+r}, v{vHF+8*ch+r+1}")
        P.I(f"ds_write_b128 v2, {vr(O+4*ch,4)} offset:{ch*HP}")

def gb_store(P, ST):
    P.I(f"""s_cmp_lg_u32 s{sW}, 2
s_cbranch_scc1 L_nogb
s_lshl_b32 s{sT0}, s{sP}, 3
s_add_u32 s{sT0}, s{sT0}, {WS_GBF}
s_mov_b64 exec, 1
buffer_store_dwordx2 {vr(vMOD+6,2)}, v{vL16}, {sp(rWS,4)}, s{sT0} offen {ST}
s_mov_b64 exec, -1
L_nogb:""")
def w_side(ST):
    RAW=vPOLL; WP=vPOLL+16; GB=[48,64,80,96]; U=112; S1,S2=vHF,vHF+2
    rd=[]; main=[]; sums=[]
    for k in range(4):
        g=GB[k]
        rd.append([f"ds_read_b64_tr_b16 {vr(RAW+4*k+2*hf,2)}, v{vWRA} offset:{k*4096+hf*512}" for hf in range(2)]
                 +[f"ds_read_b128 {vr(g+4*q,4)}, v{vGR} offset:{k*64+q*16}" for q in range(2)])
        L=[]
        for d in range(4):
            u=U+8*k+2*d
            L+=[f"v_lshlrev_b32 v{u}, 16, v{RAW+4*k+d}", f"v_and_b32 v{u+1}, 0xffff0000, v{RAW+4*k+d}",
                f"v_mul_f32 v{g+2*d}, v{u}, v{g+2*d}", f"v_mul_f32 v{g+2*d+1}, v{u+1}, v{g+2*d+1}", f"v_cvt_pk_bf16_f32 v{WP+4*k+d}, v{g+2*d}, v{g+2*d+1}"]
        L.append((f"buffer_store_dwordx4 {vr(WP+4*k,4)}, v{vL16}, {sp(rWJ,4)}, s{sWO} offen {ST}",'wpst'))
        if k<3: L.append(f"s_add_u32 s{sWO}, s{sWO}, s{sWST}")
        main.append(L)
        for i in range(8):
            e=i&1; first=(k==0 and i<2)
            sums.append(f"v_mul_f32 v{S2+e}, v{U+8*k+i}, v{g+8+i}" if first else f"v_fmac_f32 v{S2+e}, v{U+8*k+i}, v{g+8+i}")
            if k==0 and i<2: continue
            sums.append(f"v_add_f32 v{S1+e}, v{g+e}, v{g+i}" if (k==0 and i<4) else f"v_add_f32 v{S1+e}, v{S1+e}, v{g+i}")
    rdsb=[f"ds_read_b128 {vr(GB[k]+8+4*q,4)}, v{vGR} offset:{256+k*64+q*16}" for k in range(4) for q in range(2)]
    tail=[f"v_add_f32 v{S1}, v{S1}, v{S1+1}", f"v_add_f32 v{S2}, v{S2}, v{S2+1}", f"v_mov_b32 v{S1+1}, v{S1}", f"v_mov_b32 v{S2+1}, v{S2}",
          f"v_lshlrev_b32 v2, 2, v{vLANE}", "s_nop 0",
          f"v_permlane32_swap_b32 v{S1}, v{S1+1}", f"v_permlane32_swap_b32 v{S2}, v{S2+1}",
          f"v_add_f32 v{S1}, v{S1}, v{S1+1}", f"v_add_f32 v{S2}, v{S2}, v{S2+1}", f"v_cvt_pk_bf16_f32 v{S1}, v{S1}, v{S2}",
          "s_mov_b32 exec_hi, 0", (f"buffer_store_dword v{S1}, v2, {sp(rWJ,4)}, s{sWA} offen {ST}",'auxst'), "s_mov_b32 exec_hi, -1"]
    return rd,main,rdsb,sums,tail

def conv(P, ST):
    ACC=16
    def kf(b,u): return ar(32*b+4*u,4)
    def uf(b,s): return ar(64+32*b+4*s,4)
    def reads(vi):
        b=vi&1; L=[]
        for k in range(8):
            o=192-64*vi
            L.append((f"ds_read_b128 {uf(b,k)}, v{vUA} offset:{512*k+o}",f"c{vi}_{k}"))
            for hf in range(2):
                L.append((f"ds_read_b64 {ar(32*b+4*k+2*hf,2)}, v{vKA} offset:{512*(7-k)+o+8*hf}",f"c{vi}_{k}"))
        return L
    order=sorted([(u,s) for u in range(8) for s in range(8) if u+s<8], key=lambda t:(max(t),t))
    rd,main,rdsb,sums,tail=w_side(ST)
    r0=reads(0)
    P.extend(r0[:12]); P.extend(rd[0]+rd[1]); P.extend(r0[12:])
    steps=[(None,main[0]+main[1]),(rd[2]+rd[3],main[2]+main[3]),(rdsb,sums),([],[])]
    first=set(); side=[]
    for vi in range(4):
        b=vi&1
        nxt = (steps[vi+1][0]+reads(vi+1)) if vi<3 else []
        side+=steps[vi][1]
        waits = {0:0,1:1,4:2,9:3,16:5,30:7} if vi==0 else {0:7}
        for n,(u,s) in enumerate(order):
            t=u+s; a=vr(ACC+4*t,4)
            if n in waits: P.I(f"@wait c{vi}_{waits[n]}")
            P.I(f"v_mfma_f32_16x16x32_bf16 {a}, {kf(b,u)}, {uf(b,s)}, {a if t in first else 0}"); first.add(t)
            slots=2-((n+1) in waits or n==35)
            start = 17 if vi==0 else 0
            if nxt and (vi>0 or n>=4):
                P.extend([nxt.pop(0)]); slots-=1
                if vi==0 and n<start and slots and nxt: P.extend([nxt.pop(0)]); slots-=1
            while slots>0 and side and n>=start:
                P.extend([side.pop(0)]); slots-=1
        assert not nxt, len(nxt)
        print('  conv step',vi,'side backlog',len(side))
    print('conv: side instrs left', len(side))
    P.extend(side)
    return ACC,tail

def conv_epilogue(P, ACC, tail, XST):
    tail=list(tail)
    for t in range(8):
        P.I(f"ds_write_b128 v{vYW}, {vr(ACC+4*t,4)} offset:{1280*t}")
        if t<2: P.extend(tail[:5]); tail=tail[5:]
        if t==2: P.extend(tail)
    P.I(f"s_lshl_b32 s{sT0}, s{sP}, 7\ns_add_u32 s{sT0}, s{sT0}, {WS_X1B}\ns_waitcnt lgkmcnt(0)\ns_barrier")
    Y=48
    for ch in range(2):
        for g in range(2):
            for vh in range(2):
                P.I(f"ds_read_b128 {vr(Y+16*ch+8*vh+4*g,4)}, v{vYR} offset:{L_Y+(2*ch+vh)*10240+320*g}")
    for ch in range(2):
        y=Y+16*ch
        for r in range(0,8,2): P.I(f"v_pk_add_f32 {vr(y+r,2)}, {vr(y+r,2)}, {vr(y+8+r,2)}")
        for r in range(0,8,2): P.I(f"v_pk_fma_f32 {vr(y+r,2)}, {vr(y+r,2)}, {vr(vMOD+4,2)}, {vr(vXF+8*ch+r,2)} op_sel:[0,{ch},0] op_sel_hi:[1,{ch},1]")
        for r in range(0,8,2): P.I(f"v_cvt_pk_bf16_f32 v{80+4*ch+r//2}, v{y+r}, v{y+r+1}")
        P.I(f"buffer_store_dwordx4 {vr(80+4*ch,4)}, v{vXO}, {sp(rWS,4)}, s{sT0} offen offset:{64*ch} {XST}", tag='x1st')

def zero_flags(P):
    P.I(f"""s_cmp_lg_u32 s{sW}, 0
s_cbranch_scc1 L_nozf
s_lshl_b32 s{sT0}, s2, 6
s_add_u32 s{sT0}, s{sT0}, {WS_FLAG}
v_mov_b32 v2, 0
v_lshlrev_b32 v3, 2, v0
s_mov_b64 exec, 0xffff
buffer_store_dword v2, v3, {sp(rWS,4)}, s{sT0} offen
s_mov_b64 exec, -1
s_cmp_lg_u32 s2, 0
s_cbranch_scc1 L_nozf
v_mov_b32 v2, s{sTAG}
s_mov_b64 exec, 1
buffer_store_dword v2, v3, {sp(rWS,4)}, {WS_EPOCH} offen
s_mov_b64 exec, -1
L_nozf:""")

def body(P, n, diag, cfg):
    NT=cfg.get('NT','nt'); ST=cfg.get('ST','sc1')
    entry(P,n,diag,256); role_addr(P)
    P.I("s_waitcnt lgkmcnt(0)"); stamp0_commit(P,diag); early_loads(P,NT,cfg.get('XNT',NT))
    stamp(P,1,diag)
    setup(P)
    role_jobs(P,'sc1',NT,diag)
    stamp(P,3,diag)
    factor_gen(P); raw_weight_loads(P,NT)
    stamp(P,4,diag)
    pa=cfg.get('POLLAT',1)
    if pa==0: poll_loads(P)
    kgen(P,ST); stamp(P,5,diag)
    if pa==1: poll_loads(P)
    k_image(P)
    if pa==2: poll_loads(P)
    stamp(P,6,diag)
    check_tags(P,diag); stamp(P,11,diag)
    make_h(P); gb_store(P,ST)
    P.I("s_waitcnt lgkmcnt(0)\ns_barrier")
    stamp(P,7,diag)
    acc,tail=conv(P,ST); stamp(P,8,diag); conv_epilogue(P,acc,tail,cfg.get('XST',''))
def build(P, diag, cfg):
    n='ka_kernel'
    body(P,n,diag,cfg); zero_flags(P)
    stamp(P,9,diag); stamp_out(P,0,diag)
    P.I(f"L_{n}_exit:\ns_endpgm")
    retry_block(P)
    return [(n,256,256,LDS_A,384)]
```

```python
from prog import *
from layout import *
from ka import sp, vr, ar, mksrd, f32, stamp, stamp_out, rWS, rOUT, sXCD, sIDX, sW
import ka
sXB,sWB,sAB,sXM,sFL,sPL,sA0,sA1,sD0,sD1,sNT,sMT,sFB,sCNT = range(8,22)
sQ=22
sT0,sT1,sT2,sT3,sT4 = 80,81,82,83,84
vLANE,vL16 = 1,2
NS=16; L_XS=0; L_RING=4*NS*1024; RING=96
LDS_C=L_RING+RING*1024
def entry(P,name,diag):
    P.I(f".globl {name}\n.p2align 8\n.type {name},@function\n{name}:\n@reset")
    P.I(f"""s_cmp_ge_u32 s2, 256
s_cbranch_scc1 L_{name}_exit
s_load_dwordx2 s[42:43], s[0:1], 136
s_load_dwordx2 s[38:39], s[0:1], 120
s_and_b32 s{sXCD}, s2, 7
s_lshr_b32 s{sIDX}, s2, 3
v_lshrrev_b32 v3, 6, v0
v_and_b32 v{vLANE}, 63, v0
v_readfirstlane_b32 s{sW}, v3""")
    ka.stamp0_issue(P,diag)
def srds(P,diag):
    P.I("s_waitcnt lgkmcnt(0)"); ka.stamp0_commit(P,diag)
    P.extend(mksrd(rWS,42,WS_USED)); P.extend(mksrd(rOUT,38,2097152))

def c_maps():
    return f"""s_lshr_b32 s{sT0}, s{sXCD}, 2
s_lshl_b32 s{sT0}, s{sT0}, 5
s_and_b32 s{sT1}, s{sIDX}, 28
s_add_u32 s{sT0}, s{sT0}, s{sT1}
s_add_u32 s{sT0}, s{sT0}, s{sW}
s_and_b32 s{sT1}, s{sXCD}, 3
s_and_b32 s{sT3}, s{sIDX}, 3
s_lshl2_add_u32 s{sT2}, s{sT1}, s{sT3}
s_lshl_b32 s{sXB}, s{sT0}, 15
s_add_u32 s{sXB}, s{sXB}, {WS_X1B}
s_mul_i32 s{sWB}, s{sT2}, {231*1024}
s_add_u32 s{sWB}, s{sWB}, {WS_WPF}
s_mul_i32 s{sXM}, s{sW}, {NS*1024}
s_mul_i32 s{sAB}, s{sT0}, 112
s_mul_i32 s{sT2}, s{sT2}, 7
s_add_u32 s{sAB}, s{sAB}, s{sT2}
s_lshl_b32 s{sAB}, s{sAB}, 10
s_add_u32 s{sAB}, s{sAB}, {WS_ACT}
s_lshr_b32 s{sFL}, s{sT0}, 1
s_lshl2_add_u32 s{sFL}, s{sFL}, s{sT1}
s_lshl_b32 s{sFL}, s{sFL}, 7
s_and_b32 s{sT0}, s{sT0}, 1
s_lshl2_add_u32 s{sT0}, s{sT0}, s{sT3}
s_lshl2_add_u32 s{sFL}, s{sT0}, s{sFL}
s_add_u32 s{sFL}, s{sFL}, {WS_FLAG}""".split('\n')
def d_maps():
    return f"""s_lshr_b32 s{sT1}, s{sIDX}, 3
s_lshl2_add_u32 s{sT2}, s{sXCD}, s{sT1}
s_and_b32 s{sT1}, s{sIDX}, 7
s_mul_i32 s{sT3}, s{sW}, {28*1024}
s_mul_i32 s{sA0}, s{sT2}, {224*1024}
s_add_u32 s{sA0}, s{sA0}, s{sT3}
s_add_u32 s{sA0}, s{sA0}, {WS_ACT}
s_mul_i32 s{sD0}, s{sT1}, {224*1024}
s_add_u32 s{sD0}, s{sD0}, s{sT3}
s_add_u32 s{sD0}, s{sD0}, {WS_WDF}
s_lshl2_add_u32 s{sPL}, s{sT2}, s{sW}
s_lshl_b32 s{sPL}, s{sPL}, 7
s_add_u32 s{sPL}, s{sPL}, {WS_FLAG}
s_lshl_b32 s{sNT}, s{sT2}, 1
s_and_b32 s{sT3}, s{sW}, 1
s_lshl_b32 s{sT3}, s{sT3}, 1
s_lshl2_add_u32 s{sMT}, s{sT1}, s{sT3}
s_lshr_b32 s{sT3}, s{sW}, 1
s_add_u32 s{sMT}, s{sMT}, s{sT3}""".split('\n')

class Stream:
    def __init__(s, base, tmp): s.base=base; s.tmp=tmp; s.cur=None
    def at(s, off):
        L=[]
        if s.cur is None or not (0<=off-s.cur<4096):
            s.cur=off; L.append(f"s_add_u32 s{s.tmp}, s{s.base}, {off}")
        return L, f"s{s.tmp} offen offset:{off-s.cur}"
def d_order(NA):
    p1=[7*jj+mt for jj in range(4) for mt in range(NA)]; p2=[7*jj+mt for jj in range(4) for mt in range(NA,7)]
    return p1,p2
def wd_load_list(NA):
    p1,p2=d_order(NA); S=[Stream(sD0,34),Stream(sD0,35)]; L=[]
    for f in p1+p2:
        for m in range(2):
            pre,o=S[m].at(m*112*1024+f*1024)
            L.append(pre+[f"buffer_load_dwordx4 {ar(8*f+4*m,4)}, v{vL16}, {sp(rWS,4)}, {o}"])
    return L
AX,AG=240,224
vXA,vPA,vPV,vONE1=253,254,252,251
def cost(x):
    s=x[0] if isinstance(x,tuple) else x
    o=s.split()[0]
    return 2 if (o in TRANS or o=='s_barrier') else 1

class PhaseC:
    def __init__(s, cfg):
        s.cfg=cfg
        seq=[(t,ks) for ks in range(32) for t in range(G1)]
        AUXAT=cfg.get('AUXAT',16-G1)
        t3=[(G1,ks) for ks in range(33)]
        seq+= t3[:AUXAT]+[(t,32) for t in range(G1)]+t3[AUXAT:]
        for t in range(G1+1,7): seq+=[(t,ks) for ks in range(33)]
        s.seq=seq; s.N=N=len(seq); assert N==231
        s.P1=32*G1
        b=cfg.get('STG') or ([0,8,16]+list(range(32,232,16))+[232])
        s.bounds=b; s.nst=len(b)-1
        for q in range(s.nst):
            assert sorted(s.gpos(*x) for x in seq[b[q]:b[q+1]])==list(range(b[q],min(b[q+1],N))), q
            assert b[q]//RING==(b[q+1]-1)//RING
        s.QR={c:sQ+2*i for i,c in enumerate(sorted({(b[q+1]-b[q])//4 for q in range(s.nst)}))}
        s.LOOK=cfg.get('LOOK',6); s.XL=cfg.get('XL',6)
        s.mem=[]; s.m0=None; s.now=-1
        for q in range(s.nst):
            gate=-1
            if b[q+1]>RING: gate=max(z for z in range(s.nst) if b[z]<b[q+1]-RING)+2
            for u in range((b[q+1]-b[q])//4): s.mem.append((max(b[q]-s.LOOK,0),gate,('w',q,u)))
        XG=cfg.get('XGRP',2)
        for ks in range(32): s.mem.append((max(G1*(ks-ks%XG)-s.XL,0),-1,('x',ks)))
        s.mem.sort(key=lambda e:e[0])
    def gpos(s,t,ks): return (G1*ks+t) if t<G1 else 33*t+ks
    def setup(s):
        L=[]
        for c,r in s.QR.items(): L+=[f"s_mul_i32 s{r}, s{sW}, {c*1024}", f"s_add_u32 s{r+1}, s{r}, s{sWB}"]
        L+=f"""v_lshlrev_b32 v{vL16}, 4, v{vLANE}
v_lshrrev_b32 v8, 5, v{vLANE}
v_bfe_u32 v9, v{vLANE}, 2, 2
v_lshl_add_u32 v8, v8, 3, v9
v_bfe_u32 v9, v{vLANE}, 4, 1
v_lshl_add_u32 v8, v8, 1, v9
v_and_b32 v10, 3, v{vLANE}
v_lshl_add_u32 v8, v8, 2, v10
v_lshl_add_u32 v{vXA}, v8, 3, s{sXM}
v_add_u32 v3, {L_RING}, v{vL16}
v_add_u32 v7, {L_RING+0x10000}, v{vL16}
v_and_b32 v8, 31, v{vLANE}
v_and_b32 v10, 32, v{vLANE}
v_lshlrev_b32 v10, 4, v10
v_lshl_add_u32 v8, v8, 2, v10
v_add_u32 v249, {L_RING}, v8
v_add_u32 v250, {L_RING+0x10000}, v8
v_and_b32 v8, 15, v{vLANE}
v_cmp_eq_u32 vcc, v8, v9
v_mov_b32 v10, 0x3f803f80
v_and_b32 v{vPA}, 7, v{vLANE}
v_lshlrev_b32 v{vPA}, 2, v{vPA}
v_cndmask_b32 v56, 0, v10, vcc
v_cndmask_b32 v57, 0, v10, vcc
v_cndmask_b32 v58, 0, v10, vcc
v_cndmask_b32 v59, 0, v10, vcc""".split('\n')
        return L
    def memop(s,e):
        if e[0]=='w':
            _,q,u=e; c=(s.bounds[q+1]-s.bounds[q])//4; key=('w',q,u//4); u0=u-u%4
            pre=[f"s_add_u32 m0, s{s.QR[c]}, {L_RING+(s.bounds[q]%RING+u0)*1024}", f"s_add_u32 s{sT0}, s{s.QR[c]+1}, {(s.bounds[q]+u0)*1024}"]
            tag=f"w{q}"; off=(u%4)*1024; ld=s.cfg.get('WLD','')
        else:
            ks=e[1]; key=('x',ks//4); k0=ks-ks%4
            assert ks<NS or s.now>=G1*(ks-NS), (ks,s.now)
            pre=[f"s_add_u32 m0, s{sXM}, {L_XS+(k0%NS)*1024}", f"s_add_u32 s{sT0}, s{sXB}, {k0*1024}"]
            tag=f"x{ks}"; off=(ks%4)*1024; ld=s.cfg.get('XLD','')
        L=[] if s.m0==key else pre
        s.m0=key
        return L+[(f"buffer_load_dwordx4 v{vL16}, {sp(rWS,4)}, s{sT0} offen offset:{off} {ld} lds",tag)]
    def pre(s,P,n,kinds='wx'):
        k=0
        while n>0 and k<len(s.mem):
            if s.mem[k][2][0] in kinds and s.mem[k][1]<0: P.extend(s.memop(s.mem.pop(k)[2])); n-=1
            else: k+=1
    def run(s,P,diag,wd,extra_side):
        cfg=s.cfg; seq=s.seq; N=s.N; bounds=s.bounds; mem=s.mem; LOOK=s.LOOK; XL=s.XL; P1=s.P1
        ST='sc1'; NA=cfg.get('NA',4)
        X0=120
        xr=lambda ks: vr(X0+4*ks,4) if ks<32 else vr(44,4)
        NACC=4; ACC=[72,88,104,56]
        WF=[20+4*i for i in range(6)]; NWF=6
        SQ,SM,ONE,SQ2=48,52,56,16
        C0,C1,IR2=4,5,6; TA=8
        RA=[3,7]; RA2=[249,250]
        def rd(n):
            pos=(s.gpos(*seq[n])%RING)*1024
            if seq[n][1]==32:
                return [(f"ds_read_b32 v{WF[n%NWF]+q}, v{RA2[pos>>16]} offset:{(pos&0xffff)+128*q}", f"r{n}") for q in range(4)]
            return [(f"ds_read_b128 {vr(WF[n%NWF],4)}, v{RA[pos>>16]} offset:{pos&0xffff}", f"r{n}")]
        def xrd(ks): return [f"@wait x{ks}"]+[f"ds_read_b64_tr_b16 {vr(X0+4*ks+2*hf,2)}, v{vXA} offset:{L_XS+(ks%NS)*1024+hf*256}" for hf in range(2)]
        accof=lambda t: ACC[t%NACC]
        EW=cfg.get('EW',4)
        def epi(t):
            a=accof(t); L=[]
            for g in range(8//EW):
                ia=list(range(EW*g,EW*g+EW)); T=TA
                L+=[f"v_mul_f32 v{T+k}, v{a+i}, v{a+i}" for k,i in enumerate(ia)]
                L+=[f"v_fma_f32 v{T+k}, v{T+k}, v{C1}, v{C0}" for k,i in enumerate(ia)]
                L+=[f"v_mul_f32 v{T+k}, v{T+k}, v{a+i}" for k,i in enumerate(ia)]
                for k,i in enumerate(ia): L+=[f"v_exp_f32 v{T+k}, v{T+k}", f"v_mul_f32 v{a+8+i}, v{a+i}, v{a+8+i}"]
                for k,i in enumerate(ia):
                    L+=[f"v_fma_f32 v{a+i}, v{T+k}, v{IR2}, v{IR2}"]
                    if k: L+=[f"v_rcp_f32 v{a+i-1}, v{a+i-1}"]
                L+=[f"v_mul_f32 v{a+8+ia[0]}, v{a+8+ia[0]}, v{a+ia[0]}", f"v_rcp_f32 v{a+ia[-1]}, v{a+ia[-1]}"]
                L+=[f"v_mul_f32 v{a+8+i}, v{a+8+i}, v{a+i}" for i in ia[1:]]
                L+=[f"v_cvt_pk_bf16_f32 v{16+i//2}, v{a+8+i}, v{a+9+i}" for i in ia[::2]]
            L.append((f"buffer_store_dwordx4 v[16:19], v{vL16}, {sp(rWS,4)}, s{sAB} offen offset:{(t%4)*1024} {ST}",f'act{t}'))
            if t==3: L.append(f"s_add_u32 s{sAB}, s{sAB}, 4096")
            return L
        k0=-2*0.7978845608028654*1.4426950408889634; k1=k0*0.044715
        fin=f"""v_and_b32 v11, 15, v{vLANE}
v_lshlrev_b32 v11, 2, v11
v_and_b32 v8, 3, v{vLANE}
v_cmp_eq_u32 vcc, 1, v8
v_cmp_eq_u32 {sp(sT2)}, 2, v8
v_and_b32 v10, 16, v{vLANE}
ds_bpermute_b32 v12, v11, v{SM}
ds_bpermute_b32 v13, v11, v{SM+1}
v_add_f32 v{SQ}, v{SQ}, v{SQ2}
v_add_f32 v{SQ+1}, v{SQ+1}, v{SQ2+1}
v_add_f32 v{SQ+2}, v{SQ+2}, v{SQ2+2}
v_add_f32 v{SQ+3}, v{SQ+3}, v{SQ2+3}
v_cndmask_b32 v9, v{SQ}, v{SQ+1}, vcc
v_cmp_eq_u32 vcc, 3, v8
v_cndmask_b32 v9, v9, v{SQ+2}, {sp(sT2)}
v_cmp_eq_u32 {sp(sT2)}, 0, v10
v_cndmask_b32 v9, v9, v{SQ+3}, vcc
v_mov_b32 v8, v9
v_nop
v_nop
v_permlane32_swap_b32 v8, v9
v_add_f32 v9, v8, v9
v_mul_f32 v9, 0x3b000000, v9
v_cndmask_b32 v12, v13, v12, {sp(sT2)}
v_mul_f32 v12, 0x3b000000, v12
v_fma_f32 v9, -v12, v12, v9
v_max_f32 v9, 0, v9
v_cvt_pk_bf16_f32 v9, v9, v9
v_and_b32 v9, 0xffff0000, v9
v_add_f32 v9, 0x3727c5ac, v9
v_cvt_pk_bf16_f32 v9, v9, v9
v_and_b32 v9, 0xffff0000, v9
v_sqrt_f32 v9, v9
v_nop
v_cvt_pk_bf16_f32 v44, -v12, v9
v_and_b32 v9, 0xffff0000, v44
v_mov_b32 v45, v44
v_rcp_f32 v8, v9
v_mov_b32 v46, v44
v_mov_b32 v47, v44
v_mul_f32 v{IR2}, v9, v9
v_mul_f32 v{C0}, {hex(f32(k0))}, v8
v_mul_f32 v10, v8, v8
v_mul_f32 v{C1}, {hex(f32(k1))}, v8
v_mul_f32 v{C1}, v{C1}, v10""".split('\n')
        done_at={}
        for n,(t,ks) in enumerate(seq):
            if ks==32: done_at[t]=n
        side=[(0,x) for x in extra_side]+[(P1,x) for x in fin]
        for t in range(6): side+=[(done_at[t]+3,x) for x in epi(t)]
        RX=cfg.get('RXAT',P1+40)
        blocks={RX:[f"s_lshl_b32 s{sT1}, s{sNT}, 5",f"s_add_u32 s{sT1}, s{sT1}, s{sMT}",f"s_lshl_b32 s{sT1}, s{sT1}, 10",f"s_add_u32 s{sT1}, s{sT1}, {WS_X1B}"],
                RX+1:['@m0',f"s_add_u32 m0, s{sXM}, {L_XS}",f"s_add_u32 s{sT4}, s{sT1}, {32768-1024}",(f"buffer_load_dwordx4 v{vL16}, {sp(rWS,4)}, s{sT1} offen {cfg.get('XLD','')} lds",'rx'),
                      (f"buffer_load_dwordx4 v{vL16}, {sp(rWS,4)}, s{sT4} offen offset:1024 {cfg.get('XLD','')} lds",'rx')],
                RX+3:[f"s_lshl_b32 s{sT1}, s{sMT}, 6",f"s_add_u32 s{sT1}, s{sT1}, {WS_GBF}",f"v_and_b32 v{vPV}, 32, v{vLANE}"],
                RX+4:[f"buffer_load_dwordx4 {ar(AG+4*q,4)}, v{vPV}, {sp(rWS,4)}, s{sT1} offen offset:{16*q} {cfg.get('WLD','')}" for q in range(2)],
                RX+44:["@wait rx"]+[f"ds_read_b64_tr_b16 {ar(AX+2*q,2)}, v{vXA} offset:{L_XS+(q>>1)*1024+(q&1)*256}" for q in range(4)],
                N-cfg.get('POLLB',8):[f"buffer_load_dword v{vPV}, v{vPA}, {sp(rWS,4)}, s{sPL} offen sc1"]}
        flagblk=[f"@wait act{NA-1}","s_mov_b64 exec, 1",f"buffer_store_dword v{vONE1}, v{vL16}, {sp(rWS,4)}, s{sFL} offen sc1","s_mov_b64 exec, -1"]
        flag_at=None
        opened=[-1]
        def emit(L):
            c=0
            for x in L:
                if x=='@m0': s.m0=None; continue
                P.extend([x]); c+=cost(x)
            return c
        def force(pred):
            c=0
            while any(pred(e[2]) for e in mem):
                assert mem[0][1]<=opened[0], mem[0]
                c+=emit(s.memop(mem.pop(0)[2]))
            return c
        def open_stage(q):
            c=force(lambda e: e[0]=='w' and e[1]==q)
            opened[0]=q
            return c+emit([f"@wait w{q}","s_barrier"])
        xnext=0
        open_stage(0)
        while G1*xnext<XL: force(lambda e: e==('x',xnext)); emit(xrd(xnext)); xnext+=1
        for n in range(LOOK): P.extend(rd(n))
        DIST=cfg.get('DIST',24); DIST2=cfg.get('DIST2',48); WB=cfg.get('WB',3)
        started=set(); mb=0.0; wdb=0.0
        P.I("@mark c1")
        for n,(t,ks) in enumerate(seq):
            a=accof(t)
            if n==P1: P.I("@mark c2")
            if t>=NACC and ks==0:
                while side and side[0][0]<=done_at[t-NACC]+3: print('  forced', n); emit([side.pop(0)[1]])
            if ks==32 and t==0:
                while side and side[0][0]<=P1: print('  forced fin'); emit([side.pop(0)[1]])
            if n%WB==0: P.I(f"@wait r{min(n+WB-1,N-1)}")
            P.I(f"v_mfma_f32_32x32x16_bf16 {vr(a,16)}, {vr(WF[n%NWF],4)}, {xr(ks)}, {vr(a,16) if t in started else 0}"); started.add(t)
            s.now=n
            free=6-((n+1)%WB==0)
            if xnext<32 and G1*xnext-XL<=n:
                free-=force(lambda e: e==('x',xnext)); free-=emit(xrd(xnext)); xnext+=1
            m=n+LOOK
            if m<N:
                if m in bounds: free-=open_stage(bounds.index(m))
                free-=emit(rd(m))
            used=False
            if n in blocks: free-=emit(blocks.pop(n)); used=True
            elif flag_at is not None and n>=flag_at and flagblk and free>=4: free-=emit(flagblk); flagblk=None; used=True
            rate = cfg.get('RATE1',0.9) if n<P1 else cfg.get('RATE2',0.5)
            mb=min(mb+rate,1.0+rate)
            if not used and mem and mb>=1 and mem[0][0]-(DIST if n<P1 else DIST2)<=n and mem[0][1]<=opened[0] and (free>=3 or n<P1) and (mem[0][2][0]=='w' or n>=G1*(mem[0][2][1]-NS)):
                free-=emit(s.memop(mem.pop(0)[2])); used=True; mb-=1
            if not used and wd and n>=cfg.get('WDFROM',P1+4):
                wdb=min(wdb+cfg.get('WDPER',0.2),2)
                if wdb>=1 and mb>=1 and free>=2: free-=emit(wd.pop(0)); wdb-=1; mb-=1
            while side and side[0][0]<=n and cost(side[0][1])<=free:
                x=side.pop(0)[1]; free-=emit([x])
                if isinstance(x,tuple) and x[1]==f'act{NA-1}': flag_at=n+cfg.get('FLAGD',30)
            if n<P1 and t==G1-1:
                x=X0+4*ks
                P.I(f"v_mfma_f32_4x4x4_16b_bf16 {vr(SQ,4)}, {vr(x,2)}, {vr(x,2)}, {vr(SQ,4) if ks else 0}")
                P.I(f"v_mfma_f32_4x4x4_16b_bf16 {vr(SQ2,4)}, {vr(x+2,2)}, {vr(x+2,2)}, {vr(SQ2,4) if ks else 0}")
                P.I(f"v_mfma_f32_16x16x32_bf16 {vr(SM,4)}, {vr(ONE,4)}, {vr(x,4)}, {vr(SM,4) if ks else 0}")
            if n==P1-1: stamp(P,12,diag)
        P.I("@mark end")
        assert not flagblk and not blocks and not mem
        print('phase C: side left', len(side), 'flag at', flag_at, 'Wd left', len(wd))
        stamp(P,13,diag)
        return [x for _,x in side]+epi(6)

def poll_check(P, name, need, diag):
    P.I(f"""L_{name}_chk:
v_cmp_ne_u32 vcc, v{vONE1}, v{vPV}
s_cbranch_vccnz L_{name}_retry
L_{name}_ok:""")
def poll_retry(P, name, off):
    P.I(f"""L_{name}_retry:
s_add_u32 s{sCNT}, s{sCNT}, 1
s_cmp_gt_u32 s{sCNT}, 40000
s_waitcnt vmcnt(0) lgkmcnt(0)
s_cbranch_scc1 L_{name}_ok
buffer_load_dword v{vPV}, v{vPA}, {sp(rWS,4)}, s{sPL} offen offset:{off} sc1
s_waitcnt vmcnt(0)
s_branch L_{name}_chk""")

def phase_d(P, cfg, diag, wd, ctail):
    NA=cfg.get('NA',4); p1,p2=d_order(NA)
    ACC=[[120,136],[152,168]]
    BUF=[184+4*i for i in range(16)]+[20+4*i for i in range(6)]
    NB=len(BUF)
    work=[(f,n) for f in p1 for n in range(2)]+[(f,0) for f in p2]+[(f,1) for f in p2]
    n1=2*len(p1); nA=n1+len(p2)
    S=[Stream(sA0,36),Stream(sA0,37)]
    order=p1+p2
    nwd0=56-len(wd)
    def load(k):
        nonlocal nwd0
        f,n=work[k]; L=[]
        while wd and nwd0<2*order.index(f)+2: L+=wd.pop(0); nwd0+=1
        pre,o=S[n].at(n*112*1024+f*1024)
        return L+pre+[f"buffer_load_dwordx4 {vr(BUF[k%NB],4)}, v{vL16}, {sp(rWS,4)}, {o} sc1"]
    AH=cfg.get('DAHEAD',14); assert AH<=NB
    poll_check(P,'p1',1,diag)
    stamp(P,14,diag)
    li=0; per=max(1,len(ctail)//AH)
    while ctail or li<AH:
        if li<AH: P.extend(load(li)); li+=1
        P.extend(ctail[:per]); ctail=ctail[per:]
    stamp(P,15,diag)
    P.I(f"v_add_u32 v3, s{sXM}, v{vL16}")
    started=set(); fl2=cfg.get('FL2',AH-4); pl2=n1-AH-cfg.get('PL2',6)
    assert fl2<pl2
    wr0=[f"ds_write_b128 v3, {vr(ACC[0][k&1]+8*((k>>1)&1)+4*(k>>2),4)} offset:{L_XS+(k&3)*2048+(k>>2)*1024}" for k in range(8)]
    wr1=[f"ds_write_b128 v3, {vr(ACC[1][k&1]+8*((k>>1)&1)+4*(k>>2),4)} offset:{L_XS+8192+(k&3)*2048+(k>>2)*1024}" for k in range(8)]
    for k,(f,n) in enumerate(work):
        for m in range(2):
            a=vr(ACC[n][m],16)
            P.I(f"v_mfma_f32_32x32x16_bf16 {a}, {ar(8*f+4*m,4)}, {vr(BUF[k%NB],4)}, {a if (n,m) in started else 0}"); started.add((n,m))
        if k==fl2: P.I(f"@wait act6\ns_mov_b64 exec, 1\nbuffer_store_dword v{vONE1}, v{vL16}, {sp(rWS,4)}, s{sFL} offen offset:64 sc1\ns_mov_b64 exec, -1")
        if k==pl2: P.I(f"buffer_load_dword v{vPV}, v{vPA}, {sp(rWS,4)}, s{sPL} offen offset:64 sc1")
        if li==n1: poll_check(P,'p2',2,diag); stamp(P,16,diag)
        if li<len(work): P.extend(load(li)); li+=1
        if k>nA+1 and wr0: P.I(wr0.pop(0))
    P.extend(wr0)
    stamp(P,17,diag)
    GB=44; XF=52; R=[184,216]
    P.I(f"""s_lshl_b32 s{sT0}, s{sW}, 11
v_add_u32 v4, s{sT0}, v{vL16}
s_lshl_b32 s{sT0}, s{sNT}, 15
s_lshl_b32 s{sT1}, s{sMT}, 5
s_add_u32 s{sT0}, s{sT0}, s{sT1}
s_add_u32 s{sT1}, s{sT0}, 32768
s_waitcnt lgkmcnt(0)
s_barrier""")
    def reads(n): return [f"ds_read_b128 {vr(R[n]+8*w+4*q,4)}, v4 offset:{L_XS+w*NS*1024+n*8192+q*1024}" for w in range(4) for q in range(2)]
    def final(n):
        r=R[n]; L=[]
        for k in range(0,8,2): L+=[f"v_pk_add_f32 {vr(r+k,2)}, {vr(r+k,2)}, {vr(r+8+k,2)}"]
        for k in range(0,8,2): L+=[f"v_pk_add_f32 {vr(r+16+k,2)}, {vr(r+16+k,2)}, {vr(r+24+k,2)}"]
        for k in range(0,8,2): L+=[f"v_pk_add_f32 {vr(r+k,2)}, {vr(r+k,2)}, {vr(r+16+k,2)}"]
        for k in range(0,8,2): L+=[f"v_pk_fma_f32 {vr(r+k,2)}, {vr(r+k,2)}, {vr(GB+k,2)}, {vr(XF+8*n+k,2)}"]
        for k in range(0,8,2): L+=[f"v_cvt_pk_bf16_f32 v{8+4*n+k//2}, v{r+k}, v{r+k+1}"]
        L.append(f"buffer_store_dwordx4 {vr(8+4*n,4)}, v5, {sp(rOUT,4)}, s{sT0+n} offen")
        return L
    P.extend(reads(0))
    fill=[f"v_and_b32 v5, 31, v{vLANE}", f"v_lshrrev_b32 v6, 5, v{vLANE}", f"v_lshlrev_b32 v5, 10, v5", f"v_lshl_add_u32 v5, v6, 4, v5"]
    fill+=[f"v_accvgpr_read_b32 v{GB+k}, a{AG+k}" for k in range(8)]
    for k in range(8): fill+=[f"v_accvgpr_read_b32 v{XF+2*k+1}, a{AX+k}"]
    for k in range(8): fill+=[f"v_lshlrev_b32 v{XF+2*k}, 16, v{XF+2*k+1}", f"v_and_b32 v{XF+2*k+1}, 0xffff0000, v{XF+2*k+1}"]
    for k in range(8):
        P.I(wr1[k]); P.extend(fill[:5]); fill=fill[5:]
    P.extend(fill)
    P.I("s_waitcnt lgkmcnt(0)\ns_barrier")
    P.extend(reads(1)); P.extend(final(0)); P.extend(final(1))

def build(P, diag, cfg):
    n='kc_kernel'
    C=PhaseC(cfg)
    entry(P,n,diag); P.extend(c_maps()); P.extend(C.setup())
    srds(P,diag); stamp(P,1,diag)
    C.pre(P,cfg.get('PRE',16))
    wd=wd_load_list(cfg.get('NA',4))
    extra=d_maps()+[f"s_mov_b32 s{sCNT}, 1",f"v_mov_b32 v{vONE1}, 1"]
    P.extend(extra)
    tail=C.run(P,diag,wd,[])
    phase_d(P,cfg,diag,wd,tail)
    if diag: P.I(f"v_writelane_b32 v255, s{sCNT}, 31")
    stamp(P,18,diag); stamp_out(P,1,diag)
    P.I(f"L_{n}_exit:\ns_endpgm")
    poll_retry(P,'p1',0); poll_retry(P,'p2',64)
    return [(n,256,256,LDS_C,512)]
```

```python
WS_EPOCH = 0x0
WS_GBF   = 0x1000
WS_SG    = 0x10000
WS_MG    = 0x20000
WS_FLAG  = 0x40000
WS_FX    = 0x48000
WS_FW    = 0x4A000
WS_XG    = 0x100000
WS_X1B   = 0x400000
WS_WPF   = 0x600000
WS_WDF   = 0xA00000
WS_ACT   = 0xC00000
WS_STAMP = 0x1400000
WS_USED  = 0x2000000
L_C  = 0
CP   = 80
L_CZ = 3840
FP   = 544
L_F  = 4096
L_Y  = 4096
L_KI = 73728
KIP  = 4160
L_RR = L_KI
L_MR = L_RR+16384
L_H  = 107008
HP   = 4608
L_WR = 116224
L_DR = 132608
L_SC = 140800
L_GT = 141056
LDS_A = 141568
HI = [c+128*e for e in range(2) for c in range(8)] + [256+2*c+128*e for e in range(2) for c in range(4)] + [512+4*c+128*e for e in range(4) for c in range(2)] + [1024+128*e for e in range(8)] + [2048]
import os
G1 = int(os.environ.get('G1','2'))
```

```python
from prog import *
from layout import *
LOG2E = 0x3fb8aa3b
sX,sARE,sAIM,sBRE,sBIM,sCRE,sCIM,sLDT,sDSK,sBX,sWG,sWU,sWD,sC,sWM,sOUT,sDBG,sWS = [8+2*i for i in range(18)]
rX,rWG,rWU,rWD,rWM,rWS,rWJ = 44,48,52,56,60,64,68
sXCD,sIDX,sP,sW,sTAG,sLD,sDS = 72,73,74,75,76,77,78
sT0,sT1,sT2,sT3,sT4,sT5 = 80,81,82,83,84,85
sSA,sG1,sGA,sGD = 86,88,90,92
sKS,sCG,sKE,sFS,sCNT = 94,95,96,97,98
sWO,sWA = 8,12
def sp(a,n=2): return f"s[{a}:{a+n-1}]"
def vr(a,n): return f"v[{a}:{a+n-1}]"
def mksrd(d,b,size):
    return [f"s_mov_b32 s{d}, s{b}", f"s_and_b32 s{d+1}, s{b+1}, 0xffff", f"s_mov_b32 s{d+2}, {size}", f"s_mov_b32 s{d+3}, 0x20000"]
vTID,vLANE = 0,1
vT = 2
vPAR = 16
vGA = 24
vROLE = 40
vFG = 120
vPOLL = 160
vXF = 192
vHF = 208
vFA,vKA,vUA,vYW,vYR,vWRA,vDRA,vL16 = 224,225,226,227,228,229,230,231
vGS = 232

def stamp(P, n, diag):
    if diag: P.I(f"s_memrealtime s[4:5]\ns_memtime s[100:101]\ns_waitcnt lgkmcnt(0)\nv_writelane_b32 v255, s4, {n}\nv_writelane_b32 v255, s100, {32+n}")
def stamp0_issue(P, diag):
    if diag: P.I("v_mov_b32 v255, 0\ns_memrealtime s[4:5]\ns_memtime s[100:101]")
def stamp0_commit(P, diag):
    if diag: P.I("v_writelane_b32 v255, s4, 0\nv_writelane_b32 v255, s100, 32")
def stamp_out(P, kidx, diag):
    if diag:
        P.I(f"""s_lshl_b32 s4, s2, 10
s_add_u32 s4, s4, {WS_STAMP + kidx*0x40000}
v_lshlrev_b32 v2, 2, v0
buffer_store_dword v255, v2, {sp(rWS,4)}, s4 offen""")

def entry(P, name, diag, pref_lines=256):
    P.I(f".globl {name}\n.p2align 8\n.type {name},@function\n{name}:\n@reset")
    P.I(f"""s_cmp_ge_u32 s2, 256
s_cbranch_scc1 L_{name}_exit
s_load_dwordx16 s[8:23], s[0:1], 0
s_load_dwordx16 s[24:39], s[0:1], 64
s_load_dwordx4 s[40:43], s[0:1], 128
s_getpc_b64 s[6:7]
s_and_b32 s{sXCD}, s2, 7
s_lshr_b32 s{sIDX}, s2, 3
v_and_b32 v{vLANE}, 63, v0
v_lshrrev_b32 v2, 6, v0
s_lshl_b32 s{sP}, s{sXCD}, 5
s_add_u32 s{sP}, s{sP}, s{sIDX}
v_readfirstlane_b32 s{sW}, v2
v_lshlrev_b32 v{vL16}, 4, v{vLANE}""")
    stamp0_issue(P,diag)

def code_prefetch(P, nlines):
    ng = (nlines+63)//64
    assert ng&(ng-1)==0
    P.I(f"""s_and_b32 s{sT0}, s{sIDX}, {ng-1}
s_lshl_b32 s{sT0}, s{sT0}, 13
v_lshl_add_u32 v3, v{vLANE}, 7, s{sT0}
s_cmp_lg_u32 s{sW}, 3
s_cbranch_scc1 L_nopf_{len(P.ins)}""")
    lbl=P.ins[-1].target
    P.I(f"global_load_dword v15, v3, s[6:7]\n{lbl}:")

def srds(P):
    P.extend(mksrd(rWS,sWS,WS_USED))
    P.I(f"s_cmp_lt_u32 s{sIDX}, 28\ns_cselect_b32 s{sT0}, 1835008, 0\ns_cselect_b32 s{sT1}, {WS_USED}, 0")
    for r,b in ((rWG,sWG),(rWU,sWU),(rWD,sWD)): P.extend(mksrd(r,b,f"s{sT0}"))
    P.extend(mksrd(rWJ,sWS,f"s{sT1}"))
    P.I(f"""s_and_b32 s{sCG}, s{sXCD}, 3
s_mul_i32 s{sCG}, s{sCG}, 7
s_lshr_b32 s{sT0}, s{sIDX}, 2
s_add_u32 s{sCG}, s{sCG}, s{sT0}
s_and_b32 s{sKE}, s{sXCD}, 4
s_and_b32 s{sT0}, s{sIDX}, 3
s_add_u32 s{sKE}, s{sKE}, s{sT0}
s_lshl_b32 s{sKS}, s{sKE}, 2
s_add_u32 s{sKS}, s{sKS}, s{sW}
s_mul_i32 s{sFS}, s{sXCD}, 28
s_add_u32 s{sFS}, s{sFS}, s{sIDX}""")

def load_params(P, NT):
    P.I(f"s_lshl_b32 s{sT0}, s{sP}, 9\nv_lshl_add_u32 v2, v0, 1, s{sT0}")
    for i in range(6): P.I(f"v_mov_b32 v{vPAR+i}, 0")
    for i,b in enumerate((sARE,sAIM,sBRE,sBIM,sCRE,sCIM)):
        P.I(f"global_load_short_d16_hi v{vPAR+i}, v2, {sp(b)} {NT}")
    P.I(f"s_lshl_b32 s{sT0}, s{sP}, 2\ns_load_dword s{sLD}, {sp(sLDT)}, s{sT0}\ns_load_dword s{sDS}, {sp(sDSK)}, s{sT0}")

rR=44
def role_addr(P):
    P.I(f"""s_cmp_eq_u32 s{sW}, 0
s_cselect_b32 s{sT3}, 8, 1
s_lshl_b32 s{sT2}, s{sT3}, 10
s_lshl_b32 s{sT3}, s{sT3}, 7
s_lshl_b32 s{sT0}, s{sIDX}, 16
s_lshl_b32 s{sT4}, s{sXCD}, 7
s_add_u32 s{sT0}, s{sT0}, s{sT4}
s_lshl_b32 s{sT1}, s2, 13
s_cmp_eq_u32 s{sW}, 0
s_cselect_b32 s{sT0}, s{sT0}, s{sT1}
s_and_b32 s{sT5}, s{sIDX}, 3
s_mul_i32 s{sT1}, s{sT5}, {128*6144}
s_add_u32 s{sT1}, s{sT1}, s{sT4}
s_and_b32 s{sT4}, s{sIDX}, 28
s_lshl_b32 s{sT4}, s{sT4}, 8
s_add_u32 s{sT1}, s{sT1}, s{sT4}
s_cmp_lt_u32 s{sIDX}, 24
s_cselect_b32 s{sT4}, 3145728, 0
s_cmp_lt_u32 s{sW}, 2
s_cselect_b32 s{sT0}, s{sT0}, s{sT1}
s_cselect_b32 s{sT2}, s{sT2}, 6144
s_cselect_b32 s{sT3}, s{sT3}, {8*6144}
s_cselect_b32 s{rR+2}, 2097152, s{sT4}
s_cselect_b32 s{sCNT}, 1, 2
s_mov_b32 s{rR+3}, 0x20000
v_lshrrev_b32 v3, 3, v{vLANE}
v_mul_u32_u24 v3, s{sT2}, v3
v_lshrrev_b32 v4, 2, v{vLANE}
v_and_b32 v4, 4, v4
v_and_b32 v5, 7, v{vLANE}
v_xor_b32 v4, v4, v5
v_lshl_add_u32 v3, v4, 4, v3
v_xor_b32 v4, 32, v3
s_lshl_b32 s{sT1}, s{sW}, 13
s_add_u32 s{sT1}, s{sT1}, {L_RR}
s_lshl_b32 s{sT5}, s{sT5}, 8
v_lshl_add_u32 v5, v{vLANE}, 2, s{sT5}
s_lshl_b32 s{sT5}, s{sP}, 9
v_lshl_add_u32 v2, v0, 1, s{sT5}""")
    for i in range(6): P.I(f"v_mov_b32 v{vPAR+i}, 0")
def early_loads(P, NT, XNT):
    for i,b in enumerate((sARE,sAIM,sBRE,sBIM,sCRE,sCIM)):
        P.I(f"global_load_short_d16_hi v{vPAR+i}, v2, {sp(b)} {NT}")
    P.I(f"""s_cmp_lt_u32 s{sW}, 2
s_cselect_b32 s{rR}, s{sX}, s{sWM}
s_cselect_b32 s{rR+1}, s{sX+1}, s{sWM+1}
s_and_b32 s{rR+1}, s{rR+1}, 0xffff
s_cmp_eq_u32 s{sW}, 3
s_cbranch_scc1 L_rle
global_load_dword v{vROLE}, v5, {sp(sC)}
@loopok
L_rl:""")
    for u in range(8):
        P.I(f"s_add_u32 m0, s{sT1}, {u*1024}")
        if u: P.I(f"s_add_u32 s{sT0}, s{sT0}, s{sT3}")
        else: P.I(f"s_sub_u32 s{sCNT}, s{sCNT}, 1")
        P.I(f"buffer_load_dwordx4 v{3+(u&1)}, {sp(rR,4)}, s{sT0} offen {XNT} lds", tag='rr')
    P.I(f"""s_add_u32 s{sT0}, s{sT0}, s{sT3}
s_add_u32 s{sT1}, s{sT1}, 8192
s_cmp_lg_u32 s{sCNT}, 0
s_cbranch_scc1 L_rl
L_rle:
s_lshl_b32 s{sT0}, s{sP}, 2
s_load_dword s{sLD}, {sp(sLDT)}, s{sT0}
s_load_dword s{sDS}, {sp(sDSK)}, s{sT0}
s_load_dword s{sTAG}, {sp(sWS)}, {WS_EPOCH}""")

def wd_loads(P, NT):
    P.I(f"""v_lshrrev_b32 v2, 2, v{vLANE}
v_and_b32 v3, 3, v{vLANE}
v_lshlrev_b32 v3, 4, v3
v_lshl_add_u32 v2, v2, 10, v3
s_lshr_b32 s{sT0}, s{sFS}, 1
s_lshl_b32 s{sT0}, s{sT0}, 14
s_and_b32 s{sT1}, s{sFS}, 1
s_lshl_b32 s{sT1}, s{sT1}, 9
s_add_u32 s{sT0}, s{sT0}, s{sT1}
s_lshl_b32 s{sT1}, s{sW}, 7
s_add_u32 s{sT0}, s{sT0}, s{sT1}
s_lshl_b32 s{sT1}, s{sW}, 11
s_add_u32 m0, s{sT1}, {L_DR}
s_add_u32 s{sT2}, s{sT0}, 64""")
    P.I(f"buffer_load_dwordx4 v2, {sp(rWD,4)}, s{sT0} offen lds", tag='dr')
    P.I(f"s_add_u32 m0, s{sT1}, {L_DR+1024}")
    P.I(f"buffer_load_dwordx4 v2, {sp(rWD,4)}, s{sT2} offen lds", tag='dr')
    P.I(f"""v_lshrrev_b32 v2, 5, v{vLANE}
v_bfe_u32 v3, v{vLANE}, 2, 2
v_lshl_add_u32 v2, v2, 3, v3
v_bfe_u32 v3, v{vLANE}, 4, 1
v_lshl_add_u32 v2, v2, 1, v3
v_and_b32 v3, 1, v{vLANE}
v_lshl_add_u32 v2, v2, 1, v3
v_bfe_u32 v3, v{vLANE}, 1, 1
v_lshl_add_u32 v2, v2, 1, v3
s_add_u32 s{sT1}, s{sT1}, {L_DR}
v_lshl_add_u32 v{vDRA}, v2, 3, s{sT1}""")
def wd_job(P, ST):
    R=vROLE
    P.I("@wait dr")
    for u in range(2):
        for hf in range(2):
            P.I(f"ds_read_b64_tr_b16 {vr(R+4*u+2*hf,2)}, v{vDRA} offset:{u*1024+hf*256}")
    P.I(f"""s_and_b32 s{sT0}, s{sFS}, 1
s_lshl_b32 s{sT0}, s{sT0}, 2
s_add_u32 s{sT0}, s{sT0}, s{sW}
s_mul_i32 s{sT0}, s{sT0}, {2*112}
s_lshr_b32 s{sT1}, s{sFS}, 1
s_add_u32 s{sT0}, s{sT0}, s{sT1}
s_lshl_b32 s{sT0}, s{sT0}, 10
s_add_u32 s{sT0}, s{sT0}, {WS_WDF}
s_add_u32 s{sT1}, s{sT0}, {112*1024}""")
    for u in range(2):
        P.I(f"buffer_store_dwordx4 {vr(R+4*u,4)}, v{vL16}, {sp(rWJ,4)}, s{sT0+u} offen {ST}")

def w_loads(P, NT):
    P.I(f"""v_lshrrev_b32 v2, 3, v{vLANE}
v_mul_u32_u24 v2, 3584, v2
v_lshrrev_b32 v3, 3, v{vLANE}
v_and_b32 v3, 2, v3
v_and_b32 v4, 7, v{vLANE}
v_xor_b32 v3, v3, v4
v_xor_b32 v4, 4, v3
v_lshl_add_u32 v3, v3, 4, v2
v_lshl_add_u32 v4, v4, 4, v2
s_mul_i32 s{sT0}, s{sKS}, {16*3584}
s_lshl_b32 s{sT1}, s{sCG}, 7
s_add_u32 s{sT0}, s{sT0}, s{sT1}
s_add_u32 s{sT2}, s{sT0}, {8*3584}
s_lshl_b32 s{sT1}, s{sW}, 12""")
    for mat,r in ((0,rWG),(1,rWU)):
        for u in range(2):
            P.I(f"s_add_u32 m0, s{sT1}, {L_WR+mat*2048+u*1024}")
            P.I(f"buffer_load_dwordx4 v{3+mat}, {sp(r,4)}, s{sT2 if u else sT0} offen {NT} lds", tag='wr')
    P.I(f"""v_bfe_u32 v2, v{vLANE}, 4, 1
v_lshrrev_b32 v3, 5, v{vLANE}
v_lshl_add_u32 v3, v2, 1, v3
v_bfe_u32 v4, v{vLANE}, 2, 2
v_lshl_add_u32 v3, v3, 3, v4
v_lshl_add_u32 v3, v3, 1, v2
v_bfe_u32 v4, v{vLANE}, 3, 1
v_lshl_add_u32 v3, v3, 1, v4
v_and_b32 v4, 1, v{vLANE}
v_lshl_add_u32 v3, v3, 1, v4
v_bfe_u32 v4, v{vLANE}, 1, 1
v_lshl_add_u32 v3, v3, 1, v4
s_add_u32 s{sT1}, s{sT1}, {L_WR}
v_lshl_add_u32 v{vWRA}, v3, 3, s{sT1}""")

def w_offsets(P):
    for m in range(4):
        P.I(f"""s_lshl_b32 s{sT0}, s{sCG}, 2
s_add_u32 s{sT0}, s{sT0}, {m}
s_mul_i32 s{sT1}, s{sT0}, 147
s_lshr_b32 s{sT1}, s{sT1}, 10
s_mul_i32 s{sT2}, s{sT1}, 7
s_sub_u32 s{sT0}, s{sT0}, s{sT2}
s_mul_i32 s{sT1}, s{sT1}, 231
s_cmp_lt_u32 s{sT0}, {G1}
s_cselect_b32 s{sT2}, {G1}, 1
s_cselect_b32 s{sT3}, 1, 33
s_mul_i32 s{sT0}, s{sT0}, s{sT3}
s_add_u32 s{sT0}, s{sT0}, s{sT1}
s_add_u32 s{sT0}, s{sT0}, {WS_WPF>>10}
s_mul_i32 s{sT3}, s{sT2}, s{sKS}
s_add_u32 s{sT3}, s{sT3}, s{sT0}
s_lshl_b32 s{sWO+m}, s{sT3}, 10
s_lshl_b32 s{sT2}, s{sT2}, 5
s_add_u32 s{sT2}, s{sT2}, s{sT0}
s_lshl_b32 s{sWA+m}, s{sT2}, 10""")

def role_jobs(P, uid, PUB):
    R=vROLE; G=vROLE+32
    P.I(f"s_cmp_eq_u32 s{sW}, 1\ns_cbranch_scc1 L_rj1_{uid}\ns_cmp_eq_u32 s{sW}, 2\ns_cbranch_scc1 L_rj2_{uid}\ns_cmp_eq_u32 s{sW}, 3\ns_cbranch_scc1 L_rje_{uid}")
    P.I(f"""v_and_b32 v2, 7, v{vLANE}
v_lshrrev_b32 v3, 3, v{vLANE}
v_and_b32 v4, 2, v2
v_lshlrev_b32 v4, 1, v4
v_xor_b32 v4, v4, v3
v_lshlrev_b32 v4, 4, v4
v_lshl_add_u32 v4, v2, 7, v4
v_add_u32 v4, {L_RR}, v4
v_xor_b32 v5, 32, v4
v_mul_u32_u24 v3, {4*12288}, v3
v_lshl_add_u32 v2, v2, 4, v3
s_mul_i32 s{sT0}, s{sXCD}, {32*12288}
s_lshl_b32 s{sT1}, s{sIDX}, 7
s_add_u32 s{sT0}, s{sT0}, s{sT1}
s_add_u32 s{sT0}, s{sT0}, {WS_XG}""")
    for k in range(12): P.I(f"v_mov_b32 v{G+4*k+3}, s{sTAG}")
    P.I("@wait rr")
    for r in range(8): P.I(f"ds_read_b128 {vr(R+4*r,4)}, v{4+(r&1)} offset:{r*1024}")
    for g in range(3):
        for j in range(4):
            k=g*4+j
            for e in range(3):
                r=min(3*g+e,7)
                P.I(f"v_mov_b32 v{G+4*k+e}, v{R+4*r+j}")
            P.I(f"s_add_u32 s{sT1}, s{sT0}, {j*12288+g*4096}")
            P.I(f"buffer_store_dwordx4 {vr(G+4*k,4)}, v2, {sp(rWS,4)}, s{sT1} offen {PUB}")
    P.I(f"s_branch L_rje_{uid}\nL_rj1_{uid}:")
    P.I(f"v_mov_b32 v2, 0\nv_mov_b32 v3, 0\nv_mov_b32 v4, 0\nv_mov_b32 v5, 0\ns_mov_b32 s{sT0}, 0x3f803f80\nv_add_u32 v6, {L_RR+8192}, v{vL16}\n@wait rr")
    for u in range(8): P.I(f"ds_read_b128 {vr(R+4*u,4)}, v6 offset:{u*1024}")
    for k in range(32):
        P.I(f"v_dot2c_f32_bf16 v{2+(k&1)}, s{sT0}, v{R+k}\nv_dot2c_f32_bf16 v{4+(k&1)}, v{R+k}, v{R+k}")
    P.I(f"""v_mul_u32_u24 v8, 96, v{vLANE}
v_add_u32 v9, 32, v8
v_add_u32 v10, 64, v8
v_add_f32 v2, v2, v3
v_add_f32 v4, v4, v5""")
    for m in ("quad_perm:[1,0,3,2]","quad_perm:[2,3,0,1]","row_half_mirror"):
        P.I(f"v_add_f32_dpp v2, v2, v2 {m} row_mask:0xf bank_mask:0xf\nv_add_f32_dpp v4, v4, v4 {m} row_mask:0xf bank_mask:0xf")
    P.I(f"""v_mul_f32 v2, 0x3b000000, v2
v_mul_f32 v4, 0x3b000000, v4
v_fma_f32 v4, -v2, v2, v4
v_max_f32 v4, 0, v4
v_cvt_pk_bf16_f32 v4, v4, v4
v_and_b32 v4, 0xffff0000, v4
v_add_f32 v4, 0x3727c5ac, v4
v_cvt_pk_bf16_f32 v4, v4, v4
v_and_b32 v4, 0xffff0000, v4
v_sqrt_f32 v4, v4
v_mov_b32 v{G+3}, s{sTAG}
v_cvt_pk_bf16_f32 v2, v2, v4
ds_bpermute_b32 v{G}, v8, v2
ds_bpermute_b32 v{G+1}, v9, v2
ds_bpermute_b32 v{G+2}, v10, v2
v_lshlrev_b32 v3, 12, v{vLANE}
s_lshl_b32 s{sT0}, s2, 4
s_add_u32 s{sT0}, s{sT0}, {WS_SG}
s_waitcnt lgkmcnt(0)
s_mov_b64 exec, 7
buffer_store_dwordx4 {vr(G,4)}, v3, {sp(rWS,4)}, s{sT0} offen {PUB}
s_mov_b64 exec, -1
s_branch L_rje_{uid}
L_rj2_{uid}:""")
    P.I(f"""s_cmp_ge_u32 s{sIDX}, 24
s_cbranch_scc1 L_rje_{uid}
v_lshlrev_b32 v2, 16, v{R}
v_and_b32 v3, 0xffff0000, v{R}
v_mul_f32 v4, 0xbfb8aa3b, v2
v_mul_f32 v5, 0xbfb8aa3b, v3
v_exp_f32 v4, v4
v_exp_f32 v5, v5
v_lshlrev_b32 v6, 2, v{vLANE}
v_add_f32 v4, 1.0, v4
v_add_f32 v5, 1.0, v5
v_rcp_f32 v4, v4
v_rcp_f32 v5, v5
v_add_u32 v6, {L_SC}, v6
v_mul_f32 v2, v2, v4
v_mul_f32 v3, v3, v5
v_cvt_pk_bf16_f32 v2, v2, v3
ds_write_b32 v6, v2
v_and_b32 v6, 48, v{vLANE}
v_add_u32 v6, {L_SC}, v6""")
    for ks in range(4): P.I(f"ds_read_b128 {vr(R+4*ks,4)}, v6 offset:{ks*64}")
    P.I(f"""v_lshrrev_b32 v2, 4, v{vLANE}
v_bfe_u32 v3, v{vLANE}, 2, 2
v_lshl_add_u32 v2, v2, 3, v3
v_bfe_u32 v3, v{vLANE}, 3, 1
v_lshl_add_u32 v2, v2, 1, v3
v_bfe_u32 v3, v{vLANE}, 4, 1
v_lshl_add_u32 v2, v2, 1, v3
v_and_b32 v3, 3, v{vLANE}
v_lshl_add_u32 v2, v2, 2, v3
v_lshlrev_b32 v2, 3, v2
v_add_u32 v8, {L_MR}, v2""")
    assert L_MR%128==0
    for ct in range(1,4): P.I(f"v_xor_b32 v{8+ct}, {ct*32}, v8")
    P.I("@wait rr")
    A=R+16; ACC=R+16+32
    seq=[(ks,ct) for ks in range(4) for ct in range(4)]
    def rd(n):
        ks,ct=seq[n]; a=A+4*(n%8)
        return [f"ds_read_b64_tr_b16 {vr(a+2*hf,2)}, v{8+ct} offset:{ks*4096+hf*512}" for hf in range(2)]
    for n in range(6): P.extend(rd(n))
    for n,(ks,ct) in enumerate(seq):
        P.I(f"v_mfma_f32_16x16x32_bf16 {vr(ACC+4*ct,4)}, {vr(A+4*(n%8),4)}, {vr(R+4*ks,4)}, {vr(ACC+4*ct,4) if ks else 0}")
        if n+6<16: P.extend(rd(n+6))
    P.I(f"""s_mov_b32 s{sT0}, 0xaaaaaaaa
s_mov_b32 s{sT1}, 0xaaaaaaaa
s_mov_b32 s{sT2}, 0xcccccccc
s_mov_b32 s{sT3}, 0xcccccccc
s_mov_b32 s{sT4}, 0xf0f0f0f0
s_mov_b32 s{sT5}, 0xf0f0f0f0
v_bfe_u32 v2, v{vLANE}, 1, 2
v_lshrrev_b32 v3, 4, v{vLANE}
v_lshl_add_u32 v2, v2, 2, v3
v_and_b32 v3, 1, v{vLANE}
v_lshl_add_u32 v2, v2, 1, v3
v_lshlrev_b32 v2, 4, v2
v_mov_b32 v{R+3}, s{sTAG}""")
    for ct in range(4):
        for e in range(2): P.I(f"v_cndmask_b32 v{A+2*ct+e}, v{ACC+4*ct+e}, v{ACC+4*ct+2+e}, {sp(sT0)}")
    for c2 in range(2):
        for e in range(2): P.I(f"v_cndmask_b32 v{A+8+2*c2+e}, v{A+4*c2+e}, v{A+4*c2+2+e}, {sp(sT2)}")
    for e in range(2): P.I(f"v_cndmask_b32 v{R+e}, v{A+8+e}, v{A+10+e}, {sp(sT4)}")
    P.I(f"""s_lshl_b32 s{sT0}, s{sIDX}, 12
s_lshl_b32 s{sT1}, s{sXCD}, 9
s_add_u32 s{sT0}, s{sT0}, s{sT1}
s_add_u32 s{sT0}, s{sT0}, {WS_MG}
s_mov_b32 exec_lo, 0x00ff00ff
s_mov_b32 exec_hi, 0x00ff00ff
buffer_store_dwordx4 {vr(R,4)}, v2, {sp(rWS,4)}, s{sT0} offen {PUB}
s_mov_b64 exec, -1
L_rje_{uid}:""")

def index_setup(P):
    P.I(f"v_lshlrev_b32 v2, 3, v0\nv_sub_u32 v2, 2047, v2\nv_cvt_f32_i32 v3, v2")
    for j in range(11):
        d=vGA+j
        if j%2==0:
            P.I(f"v_add_f32 v4, {float(-j)!r}, v3" if j in (2,4) else (f"v_mov_b32 v4, v3" if j==0 else f"v_add_f32 v4, {hex(f32(-j))}, v3"))
            P.I(f"v_add_f32 v5, -1.0, v4\nv_cvt_pk_bf16_f32 v6, v4, v5\nv_lshlrev_b32 v7, 16, v6")
        else:
            P.I(f"v_and_b32 v7, 0xffff0000, v6")
        P.I(f"""v_cvt_u32_f32 v8, v7
v_bfe_u32 v9, v7, 23, 8
v_subrev_u32 v9, 134, v9
v_med3_i32 v9, v9, 0, 3
v_lshrrev_b32 v10, 7, v8
v_and_b32 v11, 7, v8
v_lshl_or_b32 v10, v10, 3, v11
v_lshrrev_b32 v10, v9, v10
v_lshl_add_u32 v10, v9, 3, v10
v_bfe_u32 v11, v8, 3, 4
v_lshl_add_u32 v10, v10, 4, v11
v_lshlrev_b32 v10, 2, v10
v_add_u32 v{d}, {L_C}, v10""")
    P.I(f"v_cmp_eq_u32 vcc, 255, v0\nv_mov_b32 v4, {L_C+3072}")
    for j in (8,9,10): P.I(f"v_cndmask_b32 v{vGA+j}, v{vGA+j}, v4, vcc")
    P.I(f"""v_mov_b32 v4, 0
v_mov_b32 v5, 0
v_mov_b32 v6, 0
v_mov_b32 v7, 0
v_lshrrev_b32 v2, 5, v{vLANE}
v_mul_u32_u24 v2, {HP}, v2
v_and_b32 v3, 31, v{vLANE}
v_min_u32 v3, 29, v3
v_lshl_add_u32 v2, v3, 4, v2
v_add_u32 v2, {L_H}, v2
v_bfe_u32 v3, v{vLANE}, 1, 3
v_mul_u32_u24 v3, {KIP}, v3
v_and_b32 v8, 1, v{vLANE}
v_lshl_add_u32 v3, v8, 4, v3
v_add_u32 v{vFA}, {L_KI+4096}, v3
v_mov_b32 v3, {L_C+3072}
v_cmp_gt_u32 vcc, 64, v0
v_cndmask_b32 v2, v3, v2, vcc
ds_write_b128 v2, v[4:7]""")
    P.I(f"""s_lshr_b32 s{sT0}, s{sW}, 1
s_and_b32 s{sT1}, s{sW}, 1
s_lshl_b32 s{sT1}, s{sT1}, 8
s_mul_i32 s{sT2}, s{sT0}, {4*KIP}
s_add_u32 s{sT2}, s{sT2}, {L_KI + 2*(2044-16) - 3584 - 192}
s_sub_u32 s{sT2}, s{sT2}, s{sT1}
v_and_b32 v2, 3, v{vLANE}
v_mul_u32_u24 v2, {KIP}, v2
v_and_b32 v3, 48, v{vLANE}
v_add3_u32 v2, v2, v3, s{sT2}
v_and_b32 v4, 12, v{vLANE}
v_lshlrev_b32 v4, 1, v4
v_sub_u32 v{vKA}, v2, v4
s_mul_i32 s{sT2}, s{sT0}, {HP}
s_add_u32 s{sT2}, s{sT2}, {L_H + 448 - 192}
s_sub_u32 s{sT2}, s{sT2}, s{sT1}
v_and_b32 v2, 15, v{vLANE}
v_lshl_add_u32 v3, v2, 5, v3
v_add_u32 v{vUA}, s{sT2}, v3
s_mul_i32 s{sT2}, s{sW}, 10240
v_lshrrev_b32 v3, 4, v{vLANE}
v_mul_u32_u24 v3, 320, v3
v_lshl_add_u32 v3, v2, 4, v3
v_add_u32 v{vYW}, s{sT2}, v3
v_lshrrev_b32 v2, 5, v0
v_mul_u32_u24 v2, 1280, v2
v_and_b32 v3, 1, v0
v_mul_u32_u24 v3, 640, v3
v_bfe_u32 v4, v0, 1, 4
v_lshl_add_u32 v3, v4, 4, v3
v_add_u32 v{vYR}, v2, v3""")

import struct
def f32(x): return struct.unpack('<I',struct.pack('<f',x))[0]

def cmul(o,a,b,t):
    return [f"v_pk_mul_f32 {vr(t,2)}, {vr(a,2)}, {vr(b,2)} op_sel_hi:[0,1]",
            f"v_pk_fma_f32 {vr(o,2)}, {vr(a,2)}, {vr(b,2)}, {vr(t,2)} op_sel:[1,1,0] op_sel_hi:[1,0,1] neg_lo:[1,0,0]"]
def factor_gen():
    B=vFG; are,aim,bre,bim,cre,cim=[vPAR+i for i in range(6)]
    R1,R8,R128,LOc,TMP,PK = B,B+2,B+4,B+6,B+8,B+12
    Pc=[B+16+2*c for c in range(8)]
    zr,zi,dt=B+32,B+33,B+34; m,ph=B+36,B+38
    a=[]
    a+=[f"s_lshr_b32 s{sT0}, s{sW}, 1", f"s_mul_i32 s{sT1}, s{sT0}, {64*FP-512}", f"s_lshl_b32 s{sT2}, s{sW}, 8", f"s_add_u32 m0, s{sT1}, s{sT2}", f"s_lshl_b32 s{sT0}, s{sT0}, 4", f"s_lshr_b32 s{sT1}, s{sLD}, s{sT0}", f"s_lshl_b32 s{sT1}, s{sT1}, 16",
        f"v_mov_b32 v{dt}, {hex(LOG2E)}", f"v_mul_f32 v{dt}, s{sT1}, v{dt}", f"v_exp_f32 v{dt}, v{dt}", "s_nop 0", f"v_cvt_pk_bf16_f32 v{dt}, v{dt}, v{dt}", f"v_and_b32 v{dt}, 0xffff0000, v{dt}",
        f"v_mul_f32 v{zr}, v{dt}, v{are}", f"v_mul_f32 v{zi}, v{dt}, v{aim}", f"v_mul_f32 v{zr}, {hex(LOG2E)}, v{zr}", f"v_mul_f32 v{zi}, 0.15915494, v{zi}"]
    def cexp(o,sc,conj):
        L=[]
        if sc==1: L+=[f"v_exp_f32 v{m}, v{zr}", f"v_fract_f32 v{ph}, v{zi}"]
        else: L+=[f"v_mul_f32 v{m}, {hex(f32(sc))}, v{zr}", f"v_mul_f32 v{ph}, {hex(f32(sc))}, v{zi}", f"v_exp_f32 v{m}, v{m}", f"v_fract_f32 v{ph}, v{ph}"]
        L+=[f"v_cos_f32 v{o}, v{ph}", f"v_sin_f32 v{o+1}, v{ph}", "s_nop 0",
            f"v_pk_mul_f32 {vr(o,2)}, {vr(o,2)}, {vr(m,2)} op_sel_hi:[1,0]" + (" neg_hi:[1,0]" if conj else "")]
        return L
    a+=cexp(R8,8,False)+cexp(R1,1,True)+cexp(R128,128,True)
    a+=cmul(Pc[0],cre,bre,TMP)+[f"v_pk_mul_f32 {vr(Pc[0],2)}, {vr(Pc[0],2)}, {vr(dt,2)} op_sel_hi:[1,0] neg_hi:[1,0]"]
    n=[0]
    def put(row,src):
        k=PK+(n[0]&3); n[0]+=1
        return [f"v_cvt_pk_bf16_f32 v{k}, v{src}, v{src+1}", f"ds_write_addtid_b32 v{k} offset:{L_F+row*FP}"]
    lo=[[f"v_mov_b32 v{PK+3}, 0x3f80", f"ds_write_b32 v{vFA}, v{PK+3} offset:{L_F+48*FP}"], None]
    hi=[]
    steps_lo=[('one',48),('put',49,R8)]+[('mul',48+b,LOc,(R8 if b==2 else LOc),R8) for b in range(2,16)]
    steps_hi=[('put',0,Pc[0])]+[('mul',c,Pc[c],Pc[c-1],R1) for c in range(1,8)]
    row=8
    for e in range(1,17):
        cs = range(8) if e<2 else range(0,8,2) if e<4 else (0,4) if e<8 else (0,)
        for c in cs:
            assert HI[row]==128*e+c
            steps_hi.append(('mul',row,Pc[c],Pc[c],R128)); row+=1
    order=[]
    for i in range(8): order+= [steps_hi[i], steps_lo[i]]
    order+=steps_hi[8:32]
    for i in range(9):
        order.append(steps_hi[32+i])
        if i<8: order.append(steps_lo[8+i])
    out=[]
    for k,s in enumerate(order):
        t=TMP+2*(k&1)
        if s[0]=='one':
            kk=PK+(n[0]&3); n[0]+=1
            out.append([f"v_mov_b32 v{kk}, 0x3f80", f"ds_write_addtid_b32 v{kk} offset:{L_F+s[1]*FP}"])
        elif s[0]=='put': out.append(put(s[1],s[2]))
        else: out.append(cmul(s[2],s[3],s[4],t)+put(s[1],s[2]))
    return a,out

def kgen_mfma(P):
    A=vROLE; ACC=vFG
    P.I(f"""s_lshr_b32 s{sT0}, s{sW}, 1
s_and_b32 s{sT1}, s{sW}, 1
s_mul_i32 s{sT2}, s{sT0}, {64*FP}
s_mul_i32 s{sT3}, s{sT1}, {32*FP}
v_and_b32 v2, 15, v{vLANE}
v_mul_u32_u24 v3, {FP}, v2
v_and_b32 v4, 48, v{vLANE}
v_add3_u32 v3, v3, v4, s{sT2}
v_add_u32 v5, s{sT3}, v3
v_lshlrev_b32 v2, 2, v2
v_lshl_add_u32 v2, v4, 4, v2
s_lshl_b32 s{sT0}, s{sT0}, 1
s_add_u32 s{sT0}, s{sT0}, {L_C}
v_add_u32 v6, s{sT0}, v2
s_lshl_b32 s{sT1}, s{sT1}, 11
v_add_u32 v7, s{sT1}, v6
s_waitcnt lgkmcnt(0)
s_barrier""")
    def rd(ks):
        b=A+12*(ks%6)
        return [f"ds_read_b128 {vr(b,4)}, v3 offset:{48*FP+ks*64}", f"ds_read_b128 {vr(b+4,4)}, v5 offset:{ks*64}", f"ds_read_b128 {vr(b+8,4)}, v3 offset:{16*FP+ks*64}"]
    for ks in range(4): P.extend(rd(ks))
    for ks in range(8):
        b=A+12*(ks%6)
        P.I(f"v_mfma_f32_16x16x32_bf16 {vr(ACC,4)}, {vr(b+4,4)}, {vr(b,4)}, {vr(ACC,4) if ks else 0}")
        P.I(f"v_mfma_f32_16x16x32_bf16 {vr(ACC+4,4)}, {vr(b+8,4)}, {vr(b,4)}, {vr(ACC+4,4) if ks else 0}")
        if ks+4<8: P.extend(rd(ks+4))
    for t,(ad,off) in enumerate(((7,0),(6,1024))):
        for r2 in range(2):
            P.I(f"v_cvt_pk_bf16_f32 v{8+2*t+r2}, v{ACC+4*t+2*r2}, v{ACC+4*t+2*r2+1}")
            P.I(f"ds_write_b16 v{ad}, v{8+2*t+r2} offset:{off+128*r2}\nds_write_b16_d16_hi v{ad}, v{8+2*t+r2} offset:{off+128*r2+64}")

def poll_addr(P):
    P.I(f"""v_lshlrev_b32 v12, 4, v0
v_bfe_u32 v2, v{vLANE}, 2, 2
v_cmp_eq_u32 vcc, 3, v2
v_and_b32 v3, 3, v{vLANE}
v_cndmask_b32 v2, v2, 5, vcc
v_lshl_add_u32 v2, v2, 2, v3
s_lshl_b32 s{sT0}, s{sP}, 4
v_lshl_add_u32 v13, v2, 12, s{sT0}
v_lshrrev_b32 v2, 5, v{vLANE}
v_lshl_add_u32 v2, v2, 2, v3
v_bfe_u32 v3, v{vLANE}, 2, 3
v_lshlrev_b32 v3, 4, v3
v_lshl_add_u32 v2, v2, 12, v3
s_lshl_b32 s{sT0}, s{sKS}, 7
s_add_u32 s{sT0}, s{sT0}, {12*4096}
v_add_u32 v14, s{sT0}, v2""")
def poll_loads(P, LD):
    P.I(f"s_mul_i32 s{sT0}, s{sP}, 12288\ns_add_u32 s{sT0}, s{sT0}, {WS_XG}\ns_mov_b32 s{sT3}, {WS_MG}")
    P.I(f"buffer_load_dwordx4 {vr(vPOLL+24,4)}, v13, {sp(rWS,4)}, s{sT3} offen {LD}")
    for g in range(3):
        P.I(f"s_mov_b32 s{sT1}, {WS_SG+g*4096}\nbuffer_load_dwordx4 {vr(vPOLL+12+4*g,4)}, v12, {sp(rWS,4)}, s{sT1} offen {LD}")
        P.I(f"buffer_load_dwordx4 {vr(vPOLL+4*g,4)}, v12, {sp(rWS,4)}, s{sT0} offen {LD}")
        if g<2: P.I(f"s_add_u32 s{sT0}, s{sT0}, 4096")
    P.I(f"buffer_load_dwordx4 {vr(vPOLL+28,4)}, v14, {sp(rWS,4)}, s{sT3} offen {LD}")

def k_image(P):
    E=vROLE+16; O=vROLE+32
    P.I("s_waitcnt lgkmcnt(0)\ns_barrier")
    for j in range(11): P.I(f"ds_read_b32 v{E+j}, v{vGA+j}")
    P.I(f"s_cmp_lg_u32 s{sW}, 3\ns_cbranch_scc1 L_nopad\nv_mov_b32 v4, 0\nv_mov_b32 v5, 0\nv_mov_b32 v6, 0\nv_mov_b32 v7, 0\nds_write_b128 v{vFA}, v[4:7]\nL_nopad:")
    P.I(f"s_mov_b32 s{sT4}, 0x05040100\ns_mov_b32 s{sT5}, 0x07060302\nv_lshlrev_b32 v2, 4, v0\nv_add_u32 v2, {L_KI}, v2")
    k=0
    for c in (3,2,1,0):
        for ch in range(2):
            o=O+4*k; k+=1
            for i in range(4):
                j=3-c+2*i
                P.I(f"v_perm_b32 v{o+i}, v{E+j+1}, v{E+j}, s{sT4+ch}")
            P.I(f"ds_write_b128 v2, {vr(o,4)} offset:{(ch*4+c)*KIP}")

def quadsum(regs):
    L=[]
    for m in ("quad_perm:[1,0,3,2]","quad_perm:[2,3,0,1]"):
        for r in regs: L.append(f"v_add_f32_dpp v{r}, v{r}, v{r} {m} row_mask:0xf bank_mask:0xf")
    return L
def make_h(P):
    Q=vPOLL
    mc=Q+24
    P.extend(quadsum([mc,mc+1]))
    P.I(f"""v_cvt_pk_bf16_f32 v3, v{mc}, v{mc+1}
v_lshlrev_b32 v2, 16, v3
v_and_b32 v3, 0xffff0000, v3
v_add_f32 v4, 1.0, v2
v_add_f32 v5, 1.0, v3
v_cvt_pk_bf16_f32 v5, v4, v5
s_lshl_b32 s{sT0}, s{sDS}, 16
s_and_b32 s{sT1}, s{sDS}, 0xffff0000
v_mul_f32 v6, s{sT0}, v2
v_mul_f32 v7, s{sT1}, v3
v_readlane_b32 s{sSA}, v2, 0
v_readlane_b32 s{sSA+1}, v3, 0
v_readlane_b32 s{sG1+1}, v5, 4
v_readlane_b32 s{sGA}, v2, 8
v_readlane_b32 s{sGA+1}, v3, 8
v_readlane_b32 s{sGD}, v6, 8
v_readlane_b32 s{sGD+1}, v7, 8
s_lshl_b32 s{sG1}, s{sG1+1}, 16
s_and_b32 s{sG1+1}, s{sG1+1}, 0xffff0000
v_mov_b32 v10, s{sSA}
v_mov_b32 v11, s{sSA+1}""")
    P.I(f"""s_lshl_b32 s{sT0}, s{sP}, 3
s_add_u32 s{sT0}, s{sT0}, {WS_GBF}
v_mov_b32 v8, 0
v_cmp_eq_u32 vcc, 12, v0
s_and_saveexec_b64 {sp(sT2)}, vcc
s_cbranch_execz L_nogb
buffer_store_dwordx2 v[2:3], v8, {sp(rWS,4)}, s{sT0} offen
L_nogb:
s_mov_b64 exec, {sp(sT2)}""")
    M=vROLE+8
    for r in range(8):
        st=Q+12+4*(r//3)+r%3; xr=Q+4*(r//3)+r%3
        P.I(f"""v_and_b32 v{M+2*r+1}, 0xffff0000, v{st}
v_lshlrev_b32 v{M+2*r}, 16, v{st}
v_rcp_f32 v{M+2*r+1}, v{M+2*r+1}
v_lshlrev_b32 v{vXF+2*r}, 16, v{xr}
v_and_b32 v{vXF+2*r+1}, 0xffff0000, v{xr}""")
    for r in range(8):
        P.I(f"v_pk_add_f32 {vr(vHF+2*r,2)}, {vr(vXF+2*r,2)}, {vr(M+2*r,2)} op_sel_hi:[1,0] neg_lo:[0,1] neg_hi:[0,1]")
    for r in range(8):
        P.I(f"v_pk_mul_f32 {vr(vHF+2*r,2)}, {vr(vHF+2*r,2)}, {vr(M+2*r,2)} op_sel:[0,1]")
    for r in range(8):
        P.I(f"v_pk_fma_f32 {vr(vHF+2*r,2)}, {vr(vHF+2*r,2)}, {sp(sG1)}, v[10:11]")
    O=vROLE+24
    P.I(f"v_add_u32 v2, {L_H+480}, v12")
    for ch in range(2):
        for i in range(4): P.I(f"v_cvt_pk_bf16_f32 v{O+4*ch+i}, v{vHF+4*i+ch}, v{vHF+4*i+2+ch}")
        P.I(f"ds_write_b128 v2, {vr(O+4*ch,4)} offset:{ch*HP}")

def w_setup():
    mw=vPOLL+28; L=quadsum([mw,mw+1])
    L+=f"""v_cvt_pk_bf16_f32 v3, v{mw}, v{mw+1}
v_lshlrev_b32 v4, 16, v3
v_and_b32 v5, 0xffff0000, v3
v_add_f32 v4, 1.0, v4
v_add_f32 v5, 1.0, v5
v_cvt_pk_bf16_f32 v4, v4, v5
v_lshrrev_b32 v5, 5, v{vLANE}
v_lshlrev_b32 v5, 6, v5""".split('\n')
    for k in range(4):
        L.append(f"ds_bpermute_b32 v{vGS+8+k}, v5, v3 offset:{16*k}")
        L.append(f"ds_bpermute_b32 v{vGS+2*k+1}, v5, v4 offset:{128+16*k}")
    return L
def w_side(ST):
    RAW=vPOLL; WP=vPOLL+16
    L=[]
    for k in range(4):
        L+=[f"v_lshlrev_b32 v{vGS+2*k}, 16, v{vGS+2*k+1}", f"v_and_b32 v{vGS+2*k+1}, 0xffff0000, v{vGS+2*k+1}"]
    for r in range(16): L.append(f"v_fma_f32 v{vXF+r}, v{vHF+r}, s{sGD+(r&1)}, v{vXF+r}")
    for m in range(4):
        for k in range(4):
            t=6+2*(k&1)
            L+=[f"v_lshlrev_b32 v{t}, 16, v{RAW+4*m+k}", f"v_and_b32 v{t+1}, 0xffff0000, v{RAW+4*m+k}",
                f"v_mul_f32 v{t}, v{t}, v{vGS+2*k}", f"v_mul_f32 v{t+1}, v{t+1}, v{vGS+2*k+1}", f"v_cvt_pk_bf16_f32 v{WP+4*m+k}, v{t}, v{t+1}"]
        L.append(f"buffer_store_dwordx4 {vr(WP+4*m,4)}, v{vL16}, {sp(rWJ,4)}, s{sWO+m} offen {ST}")
    return L
def w_reads():
    L=["@wait wr"]
    for m in range(4):
        if m: L.append(f"v_xor_b32 v2, {32*m}, v{vWRA}")
        for hf in range(2): L.append(f"ds_read_b64_tr_b16 {vr(vPOLL+4*m+2*hf,2)}, v{2 if m else vWRA} offset:{hf*512}")
    return L

def conv(P, side):
    ACC=16; KB=[48,48];
    def kf(b,u): return f"a[{32*b+4*u}:{32*b+4*u+3}]"
    def uf(b,s): return f"a[{64+32*b+4*s}:{64+32*b+4*s+3}]"
    def reads(vi):
        b=vi&1; L=[]
        for k in range(8):
            o=192-64*vi
            L.append(f"ds_read_b128 {uf(b,k)}, v{vUA} offset:{512*k+o}")
            for hf in range(2):
                L.append(f"ds_read_b64 a[{32*b+4*k+2*hf}:{32*b+4*k+2*hf+1}], v{vKA} offset:{512*(7-k)+o+8*hf}")
        return L
    order=sorted([(u,s) for u in range(8) for s in range(8) if u+s<8], key=lambda t:(max(t),t))
    P.extend(reads(0))
    first=set()
    for vi in range(4):
        b=vi&1; main=[]
        nxt = reads(vi+1) if vi<3 else []
        for n,(u,s) in enumerate(order):
            t=u+s; a=vr(ACC+4*t,4)
            main.append(f"v_mfma_f32_16x16x32_bf16 {a}, {kf(b,u)}, {uf(b,s)}, {a if t in first else 0}"); first.add(t)
            if n>=8 and nxt: main.append(nxt.pop(0))
        assert not nxt
        m2,side=interleave(main,side,1.0 if vi<3 else 2.0)
        P.extend(m2)
    P.extend(side)
    return ACC

def conv_epilogue(P, ACC):
    RAW=vPOLL; WP=vPOLL+16; S=vGS+12
    P.I(f"s_mov_b32 s{sT4}, 0x3f803f80")
    for k in range(8): P.I(f"v_mov_b32 v{S+k}, 0")
    dots=[]
    for k in range(4):
        for m in range(4):
            dots+= [f"v_dot2c_f32_bf16 v{S+2*m}, s{sT4}, v{WP+4*m+k}", f"v_dot2c_f32_bf16 v{S+2*m+1}, v{vGS+8+k}, v{RAW+4*m+k}"]
    for t in range(8):
        P.I(f"ds_write_b128 v{vYW}, {vr(ACC+4*t,4)} offset:{L_Y+1280*t}")
        P.extend(dots[4*t:4*t+4])
    P.I(f"s_lshl_b32 s{sT0}, s{sW}, 11\ns_add_u32 s{sT0}, s{sT0}, {L_S}\nv_lshl_add_u32 v2, v{vLANE}, 3, s{sT0}")
    for m in range(4): P.I(f"ds_write_b64 v2, {vr(S+2*m,2)} offset:{512*m}")
    P.I(f"""v_lshrrev_b32 v3, 5, v0
v_lshlrev_b32 v3, 18, v3
v_and_b32 v4, 31, v0
v_lshl_add_u32 v3, v4, 4, v3
s_lshr_b32 s{sT0}, s{sP}, 2
s_lshl_b32 s{sT0}, s{sT0}, 9
s_and_b32 s{sT1}, s{sP}, 3
s_lshl_b32 s{sT1}, s{sT1}, 2
s_add_u32 s{sT0}, s{sT0}, s{sT1}
s_add_u32 s{sT0}, s{sT0}, {WS_X1F}
s_waitcnt lgkmcnt(0)
s_barrier""")
    Y=48
    for g in range(2):
        for ch in range(2):
            for vh in range(2):
                P.I(f"ds_read_b128 {vr(Y+16*g+8*ch+4*vh,4)}, v{vYR} offset:{L_Y+(2*ch+vh)*10240+320*g}")
    A=80
    P.I(f"v_bfe_u32 v5, v0, 5, 2\nv_lshlrev_b32 v6, 9, v5\nv_lshl_add_u32 v6, v4, 3, v6\nv_add_u32 v6, {L_S}, v6")
    for w in range(4):
        for h in range(2): P.I(f"ds_read_b64 {vr(A+4*w+2*h,2)}, v6 offset:{2048*w+256*h}")
    for g in range(2):
        for r in range(4):
            l=4*g+r
            for ch in range(2):
                y=Y+16*g+8*ch+r
                P.I(f"v_add_f32 v{y}, v{y}, v{y+4}\nv_fma_f32 v{y}, v{y}, s{sGA+ch}, v{vXF+2*l+ch}")
            P.I(f"v_cvt_pk_bf16_f32 v{vHF+l}, v{Y+16*g+r}, v{Y+16*g+8+r}")
            P.I(f"buffer_store_dword v{vHF+l}, v3, {sp(rWS,4)}, s{sT0} offen")
            if l<7: P.I(f"s_add_u32 s{sT0}, s{sT0}, 32768")
    P.I(f"s_cmp_ge_u32 s{sW}, 2\ns_cbranch_scc1 L_noaux")
    for st in (8,4,2):
        for k in range(0,st,2): P.I(f"v_pk_add_f32 {vr(A+k,2)}, {vr(A+k,2)}, {vr(A+st+k,2)}")
    P.I(f"""s_cmp_eq_u32 s{sW}, 0
s_cselect_b32 s{sT2}, s{sWA}, s{sWA+2}
s_cselect_b32 s{sT3}, s{sWA+1}, s{sWA+3}
v_mov_b32 v5, s{sT2}
v_mov_b32 v7, s{sT3}
v_cmp_gt_u32 vcc, 32, v{vLANE}
s_lshr_b32 s{sT0}, s{sKE}, 2
s_lshl_b32 s{sT0}, s{sT0}, 9
v_cndmask_b32 v5, v7, v5, vcc
v_lshl_add_u32 v5, v4, 4, v5
s_and_b32 s{sT1}, s{sKE}, 3
s_lshl_b32 s{sT1}, s{sT1}, 2
s_add_u32 s{sT0}, s{sT0}, s{sT1}
v_cvt_pk_bf16_f32 v6, v{A}, v{A+1}
buffer_store_dword v6, v5, {sp(rWJ,4)}, s{sT0} offen
L_noaux:""")

def zero_flags(P):
    P.I(f"""s_lshl_b32 s{sT0}, s2, 6
s_add_u32 s{sT0}, s{sT0}, {WS_FLAG}
v_mov_b32 v2, 0
v_lshlrev_b32 v3, 2, v0
v_cmp_gt_u32 vcc, 16, v0
s_and_saveexec_b64 {sp(sT2)}, vcc
s_cbranch_execz L_nozf
buffer_store_dword v2, v3, {sp(rWS,4)}, s{sT0} offen
L_nozf:
s_mov_b64 exec, {sp(sT2)}""")

def check_tags(P, diag):
    P.I(f"s_mov_b32 s{sCNT}, 0\nL_ka_chk:")
    P.I(f"""v_min3_u32 v2, v{vPOLL+27}, v{vPOLL+15}, v{vPOLL+3}
v_max3_u32 v3, v{vPOLL+27}, v{vPOLL+15}, v{vPOLL+3}
v_min3_u32 v2, v2, v{vPOLL+19}, v{vPOLL+7}
v_max3_u32 v3, v3, v{vPOLL+19}, v{vPOLL+7}
v_min3_u32 v2, v2, v{vPOLL+23}, v{vPOLL+11}
v_max3_u32 v3, v3, v{vPOLL+23}, v{vPOLL+11}
v_min3_u32 v2, v2, v{vPOLL+31}, s{sTAG}
v_max3_u32 v3, v3, v{vPOLL+31}, s{sTAG}
v_cmp_ne_u32 vcc, v2, v3
s_cbranch_vccnz L_ka_retry
L_ka_ok:""")
    if diag: P.I(f"s_add_u32 s{sCNT}, s{sCNT}, 1\nv_writelane_b32 v255, s{sCNT}, 31")
def retry_block(P):
    P.I(f"L_ka_retry:\ns_add_u32 s{sCNT}, s{sCNT}, 1\ns_cmp_gt_u32 s{sCNT}, 20000\ns_cbranch_scc1 L_ka_ok")
    poll_loads(P,'sc1')
    P.I("s_waitcnt vmcnt(0)\ns_branch L_ka_chk")
def epoch_update(P):
    P.I(f"""s_or_b32 s{sT0}, s2, s{sW}
s_cmp_lg_u32 s{sT0}, 0
s_cbranch_scc1 L_noep
v_mov_b32 v2, s{sTAG}
v_mov_b32 v3, {WS_EPOCH}
s_mov_b64 exec, 1
buffer_store_dword v2, v3, {sp(rWS,4)}, 0 offen
s_mov_b64 exec, -1
L_noep:""")
def build_fused(P, diag, cfg):
    NT=cfg.get('NT','nt'); ST=cfg.get('ST','sc1')
    n='ka_kernel'
    entry(P,n,diag); code_prefetch(P,256); role_addr(P)
    P.I("s_waitcnt lgkmcnt(0)"); stamp0_commit(P,diag); early_loads(P,NT,cfg.get('XNT',NT))
    stamp(P,1,diag)
    srds(P); w_offsets(P); index_setup(P); poll_addr(P)
    P.I(f"s_waitcnt lgkmcnt(0)\ns_add_u32 s{sTAG}, s{sTAG}, 1\ns_barrier")
    stamp(P,2,diag)
    a,steps=factor_gen()
    role_jobs(P,'a','sc1')
    stamp(P,10,diag)
    wat=cfg.get('WAT',0)
    if wat==0: wd_loads(P,NT); w_loads(P,NT)
    P.extend(a)
    stamp(P,3,diag)
    for s in steps: P.extend(s)
    if wat==1: wd_loads(P,NT); w_loads(P,NT)
    zero_flags(P)
    stamp(P,4,diag)
    kgen_mfma(P); stamp(P,5,diag); poll_loads(P,'sc1'); k_image(P); wd_job(P,ST); stamp(P,6,diag)
    check_tags(P,diag); stamp(P,11,diag)
    make_h(P); P.extend(w_setup())
    P.I("s_waitcnt lgkmcnt(0)\ns_barrier")
    stamp(P,7,diag)
    acc=conv(P, w_reads()+w_side(ST)); stamp(P,8,diag); conv_epilogue(P,acc)
    epoch_update(P)
    stamp(P,9,diag); stamp_out(P,0,diag)
    P.I(f"L_{n}_exit:\ns_endpgm")
    retry_block(P)
    return [(n,256,256,LDS_A,384)]
```

```python
WS_EPOCH = 0x0
WS_GBF   = 0x1000
WS_SG    = 0x10000
WS_MG    = 0x20000
WS_FLAG  = 0x40000
WS_STAMP = 0x1400000
WS_XG    = 0x100000
WS_X1F   = 0x400000
WS_WPF   = 0x600000
WS_WDF   = 0xA00000
WS_ACT   = 0xC00000
WS_DBG   = 0x1600000
WS_USED  = 0x2000000
FP   = 544
L_F  = 0
L_Y  = 0
L_S  = 40960
L_KI = 69632
KIP  = 4160
L_H  = 102912
HP   = 4608
L_C  = 112128
L_RR = 69632
L_MR = L_RR+16384
L_WR = 115328
L_DR = 131712
L_SC = 139904
LDS_A = 140160
HI = [c+128*e for e in range(2) for c in range(8)] + [256+2*c+128*e for e in range(2) for c in range(4)] + [512+4*c+128*e for e in range(4) for c in range(2)] + [1024+128*e for e in range(8)] + [2048]
G1 = 3
```

```python
import re, subprocess, collections

TRANS = ('v_exp_f32','v_log_f32','v_rcp_f32','v_rsq_f32','v_sqrt_f32','v_sin_f32','v_cos_f32','v_rcp_iflag_f32')
def regs_of(tok):
    tok = tok.strip()
    tok = tok.lstrip('-')
    if tok.startswith('abs('): tok = tok[4:-1]
    if tok.startswith('|'): tok = tok.strip('|')
    m = re.fullmatch(r'([vsa])(\d+)', tok)
    if m: return [(m.group(1), int(m.group(2)))]
    m = re.fullmatch(r'([vsa])\[(\d+):(\d+)\]', tok)
    if m: return [(m.group(1), i) for i in range(int(m.group(2)), int(m.group(3))+1)]
    if tok == 'vcc': return [('s','vcc')]
    if tok in ('vcc_lo','vcc_hi'): return [('s','vcc')]
    if tok == 'exec' or tok in ('exec_lo','exec_hi'): return [('s','exec')]
    if tok == 'm0': return [('s','m0')]
    return []

class Ins:
    __slots__=('text','op','ops','mods','defs','uses','kind','tag','label','target','passes','srcc','size','note','srcab')
    def __init__(self, text, tag=None):
        self.text = text; self.tag = tag; self.label=None; self.target=None; self.passes=0; self.srcc=[]; self.srcab=[]; self.size=None; self.note=None
        t = text.split(';')[0].strip()
        if t.endswith(':'):
            self.label = t[:-1]; self.op='label'; self.kind='label'; self.defs=[]; self.uses=[]; self.ops=[]; self.mods=''
            return
        if t.startswith('.') or t.startswith('@'):
            self.op = t.split()[0]; self.kind='pseudo'; self.defs=[]; self.uses=[]; self.ops=t.split()[1:]; self.mods=''
            return
        sp = t.split(None,1)
        op = sp[0]; rest = sp[1] if len(sp)>1 else ''
        parts=[]; cur=''; d=0
        for ch in rest:
            if ch in '[(': d+=1
            if ch in '])': d-=1
            if ch==',' and d==0: parts.append(cur); cur=''
            else: cur+=ch
        if cur.strip(): parts.append(cur)
        mods=''
        if parts:
            last = parts[-1].strip().split(None,1)
            parts[-1]=last[0]
            if len(last)>1: mods=last[1]
        self.ops=[p.strip() for p in parts]; self.mods=mods
        base = re.sub(r'_(e32|e64|dpp|sdwa)$','',op)
        self.op = base
        R=[regs_of(p) for p in self.ops]
        flat=lambda L:[x for l in L for x in l]
        defs=[]; uses=[]
        if base.startswith('v_mfma'):
            self.kind='mfma'; defs=R[0]; uses=flat(R[1:]); self.srcc=R[3]; self.srcab=R[1]+R[2]
            self.passes = 8 if '32x32x16' in base else 4 if '16x16x32' in base else 2 if '4x4x4' in base else None
            assert self.passes, base
        elif base.startswith(('buffer_','global_')):
            self.kind='vmem'
            islds = ' lds' in (' '+mods) or '_lds_' in base
            if base.startswith(('buffer_wbl2','buffer_inv')): pass
            elif 'load' in base and not islds:
                defs=R[0]; uses=flat(R[1:])
                if 'd16' in base: uses+=R[0]
            elif 'atomic' in base and 'sc0' in mods:
                defs=R[0]; uses=flat(R) if base.startswith('buffer') else flat(R[1:])
            else: uses=flat(R)
            if islds: uses.append(('s','m0'))
        elif base.startswith('ds_'):
            self.kind='ds'
            if base.startswith(('ds_read','ds_bpermute','ds_permute','ds_swizzle')):
                defs=R[0]; uses=flat(R[1:])
                if 'd16' in base: uses+=R[0]
            else: uses=flat(R)
            if 'addtid' in base: uses.append(('s','m0'))
        elif base.startswith(('s_load','s_buffer_load','s_memtime','s_memrealtime')):
            self.kind='smem'; defs=R[0]; uses=flat(R[1:])
        elif base in ('s_waitcnt','s_nop','s_barrier','s_endpgm','s_sleep','s_setprio'):
            self.kind='sopp'
        elif base in ('s_branch',) or base.startswith('s_cbranch'):
            self.kind='branch'; self.target=self.ops[0]
            if 'vcc' in base: uses=[('s','vcc')]
            if 'exec' in base: uses=[('s','exec')]
        elif base.startswith('s_'):
            self.kind='salu'
            if base.startswith(('s_cmp','s_bitcmp')): uses=flat(R)
            else:
                defs=R[0]; uses=flat(R[1:])
                if 'saveexec' in base: defs=defs+[('s','exec')]; uses.append(('s','exec'))
                if base in ('s_addk_i32','s_mulk_i32'): uses+=R[0]
        elif base.startswith('v_'):
            self.kind='valu'
            if base.startswith('v_permlane') and 'swap' in base: defs=R[0]+R[1]; uses=R[0]+R[1]
            elif base in ('v_add_co_u32','v_sub_co_u32','v_addc_co_u32','v_subb_co_u32'): defs=R[0]+R[1]; uses=flat(R[2:])
            elif base=='v_nop': pass
            else:
                defs=R[0]; uses=flat(R[1:])
                if base.startswith(('v_fmac','v_dot2c','v_writelane','v_pk_fmac')) or 'dpp' in op or 'row_' in mods or 'quad_perm' in mods or 'sdwa' in op: uses+=R[0]
                if base.startswith('v_cmpx'): defs=defs+[('s','exec')]
        else:
            raise ValueError('unknown instr '+text)
        self.defs=defs; self.uses=uses
    def states(self):
        if self.kind in ('label','pseudo'): return 0
        if self.op=='s_nop': return int(self.ops[0],0)+1
        return 1
    def is_dpp(self): return self.kind=='valu' and ('row_' in self.mods or 'quad_perm' in self.mods or 'wave_' in self.mods or 'dpp' in self.text.split()[0])
    def is_dot(self): return self.op.startswith('v_dot')

def hazard(p, c):
    need=0
    pd=set(p.defs); cu=set(c.uses); cd=set(c.defs)
    pv = {r for r in pd if r[0] in 'va'}; ps = {r for r in pd if r[0]=='s'}
    if p.kind=='valu':
        if c.kind=='mfma' and pv & cu: need=max(need, 3 if p.is_dot() else 2)
        if p.op in TRANS and c.kind in ('valu','vmem','ds') and pv & cu: need=max(need,1)
        if c.kind=='vmem' and ps & cu: need=max(need,5)
        if c.kind=='valu' and ps & cu:
            need=max(need, 4 if c.op in ('v_readlane_b32','v_writelane_b32') else 2)
        if c.kind in ('salu','branch','smem') and ps & cu: need=max(need,1)
        if c.op in ('v_readlane_b32','v_readfirstlane_b32') and pv & cu: need=max(need,1)
        if c.kind=='valu' and c.is_dpp() and pv & cu: need=max(need,2)
        if c.op.startswith('v_permlane') and pv & cu: need=max(need,2)
        if ('s','exec') in ps:
            if c.kind=='mfma': need=max(need,4)
            if c.kind=='valu' and c.is_dpp(): need=max(need,5)
            if c.op.startswith(('v_permlane','v_readlane','v_readfirstlane','v_writelane')): need=max(need,4)
        if p.is_dot() and pv & (cu|cd) and c.kind in ('valu','vmem','ds'):
            if c.op==p.op and not (pv & set(x for o in c.ops[1:3] for x in regs_of(o))): pass
            else: need=max(need,3)
        if ('sdwa' in p.text or 'op_sel' in p.mods and not p.op.startswith('v_pk_')) and c.kind=='valu' and pv & (cu|cd): need=max(need,1)
    if p.kind=='mfma':
        idx={2:0,4:1,8:2}[p.passes]
        if c.kind=='mfma':
            if pv & set(c.srcab): need=max(need,(5,8,12)[idx])
            if pv & set(c.srcc):
                if list(p.defs)==list(c.srcc) and p.passes==c.passes: need=max(need,(2,0,0)[idx])
                else: need=max(need,(4,6,10)[idx])
            elif pv & cd: need=max(need,(5,8,12)[idx])
        elif c.kind in ('valu','vmem','ds') and pv & (cu|cd): need=max(need,(5,8,12)[idx])
        if c.kind=='valu' and set(p.srcc) & cd: need=max(need,(1,3,7)[idx])
    if p.kind=='vmem' and 'store' in p.op and ('x4' in p.op or 'x3' in p.op):
        data = regs_of(p.ops[0]) if p.op.startswith('buffer') else regs_of(p.ops[1])
        if set(data) & cd: need=max(need, 2 if c.kind=='valu' else 1)
    if p.kind=='salu' and ('s','m0') in ps and c.kind in ('vmem','ds') and ('s','m0') in cu: need=max(need,1)
    return need

class Prog:
    def __init__(self): self.ins=[]
    def I(self, text, tag=None):
        for line in text.split('\n'):
            if line.strip(): self.ins.append(Ins(line.strip(), tag))
    def extend(self, L):
        for x in L:
            if isinstance(x, Ins): self.ins.append(x)
            elif isinstance(x, tuple): self.I(x[0], x[1])
            else: self.I(x)
    def insert_waits(self):
        out=[]; saved=collections.defaultdict(list); seen=set(); loopok=False
        st=[([],[])]
        def need_wait(pred):
            nv=None; nl=None
            for vm,lg in st:
                for i,e in enumerate(vm):
                    if pred(e):
                        n=len(vm)-1-i; nv = n if nv is None else min(nv,n)
                for i,e in enumerate(lg):
                    if pred(e):
                        n=len(lg)-1-i
                        if any(x[2] for x in lg): n=0
                        nl = n if nl is None else min(nl,n)
            return nv,nl
        def apply(nv,nl):
            for k,(vm,lg) in enumerate(st):
                if nv is not None and len(vm)>nv: del vm[:len(vm)-nv]
                if nl is not None and len(lg)>nl:
                    if nl==0 or not any(x[2] for x in lg): del lg[:len(lg)-nl]
        def emit(nv,nl):
            if nv is not None: nv=min(nv,63)
            if nl is not None: nl=min(nl,15)
            t='s_waitcnt'+(f' vmcnt({nv})' if nv is not None else '')+(f' lgkmcnt({nl})' if nl is not None else '')
            if out and out[-1].op=='s_waitcnt' and out[-1].note=='auto':
                pv=re.search(r'vmcnt\((\d+)\)',out[-1].text); pl=re.search(r'lgkmcnt\((\d+)\)',out[-1].text)
                mv = nv if pv is None else (int(pv.group(1)) if nv is None else min(nv,int(pv.group(1))))
                ml = nl if pl is None else (int(pl.group(1)) if nl is None else min(nl,int(pl.group(1))))
                out.pop()
                t='s_waitcnt'+(f' vmcnt({mv})' if mv is not None else '')+(f' lgkmcnt({ml})' if ml is not None else '')
            w=Ins(t); w.note='auto'; out.append(w); apply(nv,nl)
        for x in self.ins:
            if x.kind=='label':
                seen.add(x.label)
                st = st + saved.pop(x.label,[])
                u=[]
                for s in st:
                    if s not in u: u.append(s)
                st=u
                out.append(x); continue
            if x.op=='@wait':
                tags=set(x.ops)
                nv,nl=need_wait(lambda e: e[1] in tags)
                if nv is not None or nl is not None: emit(nv,nl)
                continue
            if x.op=='@loopok': loopok=True; continue
            if x.op=='@forget':
                rs={('v',int(o)) for o in x.ops}
                for vm,lg in st:
                    for i,e in enumerate(vm): vm[i]=(e[0]-rs,e[1],e[2])
                continue
            if x.op=='@reset':
                st=[([],[])]; continue
            if x.kind=='pseudo': out.append(x); continue
            touched=set(x.uses)|set(x.defs)
            if touched:
                if x.kind=='ds' and x.defs and 'd16' in x.op:
                    touched2=set(x.uses)-set(x.defs)
                    nv,_=need_wait(lambda e: e[0] & touched); _,nl=need_wait(lambda e: e[0] & touched2)
                else:
                    nv,nl=need_wait(lambda e: e[0] & touched)
                if nv is not None or nl is not None: emit(nv,nl)
            if x.op=='s_waitcnt':
                pv=re.search(r'vmcnt\((\d+)\)',x.text); pl=re.search(r'lgkmcnt\((\d+)\)',x.text)
                apply(int(pv.group(1)) if pv else None, int(pl.group(1)) if pl else None)
            out.append(x)
            if x.kind=='vmem':
                for vm,lg in st: vm.append((frozenset(x.defs),x.tag,False))
            elif x.kind=='ds':
                for vm,lg in st: lg.append((frozenset(x.defs),x.tag,False))
            elif x.kind=='smem':
                for vm,lg in st: lg.append((frozenset(x.defs),x.tag,True))
            elif x.kind=='branch':
                if x.target in seen and loopok: loopok=False
                elif x.target in seen:
                    for vm,lg in st:
                        assert not any(e[0] for e in vm) and not any(e[0] for e in lg), f'loads pending at backward branch {x.text}'
                else:
                    saved[x.target] += [(list(vm),list(lg)) for vm,lg in st]
                if x.op=='s_branch': st=[]
            elif x.op=='s_endpgm': st=[]
        self.ins=out
    def insert_nops(self, verbose=False):
        total=0
        while True:
            L=self.ins; added=0
            brs=collections.defaultdict(list)
            for x in L:
                if x.kind=='branch': brs[x.target].append(x)
            i=0
            while i<len(L):
                c=L[i]
                if c.kind in ('label','pseudo','sopp'): i+=1; continue
                worst=0; who=None
                stack=[(i-1,0)]; visited=set()
                while stack:
                    j,dist=stack.pop()
                    while j>=0 and dist<13:
                        p=L[j]
                        if p.kind=='label':
                            if (j,dist) in visited: break
                            visited.add((j,dist))
                            for b in brs.get(p.label,[]): stack.append((L.index(b),dist))
                            k=j-1
                            while k>=0 and L[k].kind=='pseudo': k-=1
                            if k>=0 and L[k].op in ('s_branch','s_endpgm'): break
                            j-=1; continue
                        if p.kind!='pseudo':
                            if p.kind in ('valu','mfma','vmem','salu'):
                                h=hazard(p,c)
                                if h-dist>worst: worst=h-dist; who=p
                            dist+=p.states()
                        j-=1
                if worst>0:
                    n=Ins(f's_nop {worst-1}'); n.note='hz'
                    if verbose: print(f'  nop {worst}: {who.text}  ->  {c.text}')
                    L.insert(i,n); added+=worst; i+=1
                i+=1
            total+=added
            if not added: return total
    def text(self):
        out=[]
        for x in self.ins:
            if x.kind=='label' or x.text.startswith('.'): out.append(x.text)
            elif x.op.startswith('@'): continue
            else: out.append('    '+x.text)
        return '\n'.join(out)

_sz={}
def sizes(ins):
    for x in ins:
        if 'L_' in x.text and x.kind=='salu': _sz[x.text.split(';')[0].strip()]=8
    todo=sorted({x.text.split(';')[0].strip() for x in ins if x.kind not in ('label','pseudo','branch')} - set(_sz))
    if todo:
        r=subprocess.run(['llvm-mc','-triple=amdgcn-amd-amdhsa','-mcpu=gfx950','-show-encoding'],input='\n'.join(todo)+'\n',capture_output=True,text=True)
        if r.returncode or r.stderr.strip(): print(r.stderr[:3000]); raise SystemExit('llvm-mc failed')
        enc=[l for l in r.stdout.split('\n') if 'encoding:' in l]
        assert len(enc)==len(todo),(len(enc),len(todo))
        for t,l in zip(todo,enc): _sz[t]=len(l.split('encoding:')[1].split(','))
    for x in ins:
        x.size = 0 if x.kind in ('label','pseudo') else 4 if x.kind=='branch' else _sz[x.text.split(';')[0].strip()]

E64_OK = ('v_mul_f32','v_add_f32','v_sub_f32','v_exp_f32','v_rcp_f32','v_mov_b32','v_lshlrev_b32','v_lshrrev_b32','v_and_b32','v_or_b32','v_add_u32','v_sub_u32',
          'v_sin_f32','v_cos_f32','v_fract_f32','v_sqrt_f32','v_rsq_f32','v_max_f32','v_min_f32','v_cvt_f32_u32','v_cvt_u32_f32','v_xor_b32','v_fmac_f32','v_subrev_u32','v_ashrrev_i32','v_mul_u32_u24','v_cvt_f32_i32','v_max_i32','v_min_i32','v_min_u32','v_max_u32')
def align8(P):
    sizes(P.ins)
    off=0; bad=0; run=[]
    for x in P.ins:
        if x.kind=='pseudo':
            if x.op=='.p2align': off=0; run=[]
            continue
        if x.kind=='label': continue
        if x.size>=8:
            if off%8:
                fixed=False
                for y in reversed(run):
                    w=y.text.split(None,1)
                    if y.kind=='valu' and w[0] in E64_OK and not y.is_dpp():
                        y.text=w[0]+'_e64 '+w[1]; y.size=8; off+=4; fixed=True; break
                if not fixed: bad+=1
            run=[]
        else: run.append(x)
        off+=x.size
    return bad

def interleave(main, side, per):
    out=[]; side=list(side); k=0
    def cost(t):
        s=t[0] if isinstance(t,tuple) else t
        o=s.split()[0]
        if o.startswith('@'): return 0
        return 2 if o in TRANS else 1
    budget=0.0
    for m in main:
        out.append(m)
        s=m[0] if isinstance(m,tuple) else m
        if s.startswith('v_mfma'):
            budget+=per
            while k<len(side) and cost(side[k])<=budget+1e-9:
                budget-=cost(side[k]); out.append(side[k]); k+=1
    return out, side[k:]

def gap_report(P, start, end, shape='32x32x16', cap=6):
    on=False; cur=None; over=0; n=0; hist=collections.Counter()
    for x in P.ins:
        if x.op=='@mark': on = True if x.ops[0]==start else False if x.ops[0]==end else on; cur=None; continue
        if not on or x.kind in ('label','pseudo'): continue
        if x.kind=='mfma':
            if cur is not None: hist[cur]+=1; over+=max(0,cur-cap); n+=1
            cur = 0 if shape in x.op else None
        elif cur is not None:
            cur += 2 if (x.op in TRANS or x.op=='s_barrier') else x.states()
    print(f'gaps {start}: n={n} overflow slots={over} hist={sorted(hist.items())}')
```

```python
import sys, json
sys.path.insert(0,'gen')
from prog import *
import ka, kc
REF='adaLN_cond__ssm_conv_s4__geglu_ffn__prompt.s.ref'
def kdesc(k,vg):
    return f""".p2align 6
.amdhsa_kernel {k}
  .amdhsa_next_free_vgpr {vg}
  .amdhsa_next_free_sgpr 102
  .amdhsa_accum_offset {min(vg,256)}
  .amdhsa_group_segment_fixed_size 0
  .amdhsa_kernarg_size 144
  .amdhsa_user_sgpr_count 2
  .amdhsa_user_sgpr_kernarg_segment_ptr 1
  .amdhsa_system_sgpr_workgroup_id_x 1
  .amdhsa_float_denorm_mode_32 3
.end_amdhsa_kernel"""
def build(out, cfg, diag=False, verbose=False):
    P=Prog()
    L = ka.build(P,diag,cfg) + kc.build(P,diag,cfg)
    if cfg.get('empty'):
        P.I(".globl e_kernel\n.p2align 8\n.type e_kernel,@function\ne_kernel:\n@reset\ns_endpgm")
        E=[('e_kernel',256,256,0,32)]*cfg['empty']
        L = E+L if cfg.get('empty_first') else L+E
    if cfg.get('probe'):
        (ka_,ia),(kb_,ib)=cfg['probe']
        from layout import WS_STAMP
        P.I(f""".globl m_kernel
.p2align 8
.type m_kernel,@function
m_kernel:
@reset
s_cmp_lg_u32 s2, 0
s_cbranch_scc1 L_m_exit
s_load_dwordx2 s[4:5], s[0:1], 136
s_memrealtime s[10:11]
s_waitcnt lgkmcnt(0)
s_add_u32 s4, s4, {WS_STAMP}
s_addc_u32 s5, s5, 0
s_load_dword s6, s[4:5], {ka_*0x40000+ia*4}
s_load_dword s7, s[4:5], {kb_*0x40000+ib*4}
s_waitcnt lgkmcnt(0)
s_sub_u32 s6, s7, s6
s_min_u32 s6, s6, 10000
s_lshl_b32 s6, s6, 2
L_m_spin:
s_memrealtime s[12:13]
s_waitcnt lgkmcnt(0)
s_sub_u32 s12, s12, s10
s_cmp_lt_u32 s12, s6
s_cbranch_scc1 L_m_spin
L_m_exit:
s_endpgm""")
        L=L+[('m_kernel',1,64,0,32)]
    P.insert_waits(); nn=P.insert_nops(verbose); bad=align8(P)
    gap_report(P,'c1','c2'); gap_report(P,'c2','end')
    size=sum(x.size for x in P.ins)
    print(f'{out}: {len(P.ins)} lines, {size} bytes, nop states {nn}, misaligned 8B {bad}')
    hdr=[l for l in open(REF).read().split('\n') if l.startswith(';') and '@launch' not in l and 'Override launch' not in l and 'grid=ceil' not in l]
    hdr+=[f"; @launch kernel={k} grid=({g},1,1) block=({b},1,1) lds={l}" for k,g,b,l,v in L]
    tw=ka.table_words()
    tab='\n.p2align 8\n.type L_table,@object\nL_table:\n'+'\n'.join('.long '+','.join(hex(w) for w in tw[i:i+8]) for i in range(0,len(tw),8))
    pad = max(0,(33*1024-size-4*len(tw))//4)
    tab+=f'\n.fill {pad}, 4, 0\n.size L_table, {4*len(tw)+4*pad}'
    txt='\n'.join(hdr)+'\n.amdgcn_target "amdgcn-amd-amdhsa--gfx950"\n.text\n'+P.text()+tab+'\n.section .rodata,"a"\n'+'\n'.join(dict.fromkeys(kdesc(k,v) for k,g,b,l,v in L))+'\n'
    open(out,'w').write(txt)
if __name__=='__main__':
    out=sys.argv[1]; cfg=json.loads(sys.argv[2]) if len(sys.argv)>2 else {}
    build(out,cfg,diag=cfg.get('diag',False),verbose=cfg.get('verbose',False))
```

```python
from prog import *
from layout import *
import struct
def f32(x): return struct.unpack('<I',struct.pack('<f',x))[0]
LOG2E = 0x3fb8aa3b
sX,sARE,sAIM,sBRE,sBIM,sCRE,sCIM,sLDT,sDSK,sBX,sWG,sWU,sWD,sC,sWM,sOUT,sDBG,sWS = [8+2*i for i in range(18)]
rR,rWG,rWU,rWD,rOUT,rWS,rWJ = 44,48,52,56,60,64,68
sXCD,sIDX,sP,sW,sTAG,sLD,sDS = 72,73,74,75,76,77,78
sT0,sT1,sT2,sT3,sT4,sT5 = 80,81,82,83,84,85
sWO,sWST,sWA = 86,87,88
sCG,sKE,sFS,sCNT = 95,96,97,98
def sp(a,n=2): return f"s[{a}:{a+n-1}]"
def vr(a,n): return f"v[{a}:{a+n-1}]"
def ar(a,n): return f"a[{a}:{a+n-1}]"
def mksrd(d,b,size):
    return [f"s_mov_b32 s{d}, s{b}", f"s_and_b32 s{d+1}, s{b+1}, 0xffff", f"s_mov_b32 s{d+2}, {size}", f"s_mov_b32 s{d+3}, 0x20000"]
vLANE = 1
vT16,vMC,vMW = 12,13,14
vPAR = 16
vTAB = 24
vRA = 32
vROLE = 40
vFG = 120
vPOLL = 160
vPOL2 = 152
vXF = 192
vHF = 208
vKA,vUA,vYW,vYR,vWRA,vXO,vGR,vL16 = 224,225,226,227,228,229,230,231
vMOD = 232
vKF,vKC,vGW,vSEL1,vSEL2 = 240,241,242,243,244

def stamp(P, n, diag):
    if diag: P.I(f"s_memrealtime s[4:5]\ns_memtime s[100:101]\ns_waitcnt lgkmcnt(0)\nv_writelane_b32 v255, s4, {n}\nv_writelane_b32 v255, s100, {32+n}")
def stamp0_issue(P, diag):
    if diag: P.I("v_mov_b32 v255, 0\ns_memrealtime s[4:5]\ns_memtime s[100:101]")
def stamp0_commit(P, diag):
    if diag: P.I("v_writelane_b32 v255, s4, 0\nv_writelane_b32 v255, s100, 32")
def stamp_out(P, kidx, diag):
    if diag:
        P.I(f"""s_lshl_b32 s4, s2, 10
s_add_u32 s4, s4, {WS_STAMP + kidx*0x40000}
v_lshlrev_b32 v2, 2, v0
buffer_store_dword v255, v2, {sp(rWS,4)}, s4 offen""")

def bf16_round(l):
    u=f32(float(l)); u=(u+0x7fff+((u>>16)&1))&0xffff0000
    return int(struct.unpack('<f',struct.pack('<I',u))[0])
def table_words():
    rec=[]
    for T in range(256):
        a=[]
        for j in range(11):
            lag=2047-8*T-j
            if lag<0: a.append(L_CZ); continue
            lam=bf16_round(lag); b=(lam>>3)&15; i=HI.index(lam-8*b)
            a.append(L_C+i*CP+4*b)
        a.append(0)
        w=T>>6; lane=T&63; ch=w>>1; vh=w&1
        ka_=L_KI+ch*4*KIP+(lane&3)*KIP+2*(2044-16)-3584-192-256*vh+(lane&48)-2*(lane&12)
        ua_=L_H+ch*HP+448-192-256*vh+32*(lane&15)+(lane&48)
        rec.append([a[2*k]|(a[2*k+1]<<16) for k in range(6)]+[ka_,ua_])
    return [rec[T][4*q+k] for q in range(2) for T in range(256) for k in range(4)]

def entry(P, name, diag, nlines):
    P.I(f".globl {name}\n.p2align 8\n.type {name},@function\n{name}:\n@reset")
    ng=(nlines+15)//16; assert ng&(ng-1)==0 and ng<=32
    P.I(f"""s_cmp_ge_u32 s2, 256
s_cbranch_scc1 L_{name}_exit
s_load_dwordx16 s[8:23], s[0:1], 0
s_load_dwordx16 s[24:39], s[0:1], 64
s_load_dwordx4 s[40:43], s[0:1], 128
s_getpc_b64 s[6:7]
L_pc:
v_lshrrev_b32 v2, 6, v0
v_and_b32 v{vLANE}, 63, v0
s_lshr_b32 s{sIDX}, s2, 3
v_readfirstlane_b32 s{sW}, v2
s_and_b32 s{sT0}, s{sIDX}, {ng-1}
s_lshl_b32 s{sT0}, s{sT0}, 11
v_lshl_add_u32 v3, v{vLANE}, 5, s{sT0}
s_cmp_lg_u32 s{sW}, 3
s_cbranch_scc1 L_nopf
global_load_dword v15, v3, s[6:7]
L_nopf:""")
    stamp0_issue(P,diag)
    P.I(f"""s_and_b32 s{sXCD}, s2, 7
s_lshl_b32 s{sP}, s{sXCD}, 5
s_add_u32 s{sP}, s{sP}, s{sIDX}""")

def role_addr(P):
    P.I(f"""s_cmp_eq_u32 s{sW}, 0
s_cselect_b32 s{sT3}, 8, 1
s_lshl_b32 s{sT2}, s{sT3}, 10
s_lshl_b32 s{sT3}, s{sT3}, 7
s_lshr_b32 s{sT0}, s{sP}, 3
s_lshl_b32 s{sT0}, s{sT0}, 16
s_and_b32 s{sT4}, s{sP}, 7
s_lshl_b32 s{sT4}, s{sT4}, 7
s_add_u32 s{sT0}, s{sT0}, s{sT4}
s_lshl_b32 s{sT1}, s{sP}, 13
s_cmp_eq_u32 s{sW}, 0
s_cselect_b32 s{sT0}, s{sT0}, s{sT1}
s_lshr_b32 s92, s{sP}, 3
s_sub_u32 s92, s92, s{sXCD}
s_and_b32 s{sT5}, s{sW}, 1
s_lshl1_add_u32 s92, s92, s{sT5}
s_and_b32 s{sT5}, s92, 7
s_mul_i32 s{sT1}, s{sT5}, {64*6144}
s_add_u32 s{sT1}, s{sT1}, s{sT4}
s_and_b32 s{sT4}, s92, 56
s_lshl_b32 s{sT4}, s{sT4}, 7
s_add_u32 s{sT1}, s{sT1}, s{sT4}
s_cmp_lt_u32 s{sIDX}, 24
s_cselect_b32 s{sT4}, 3145728, 0
s_cmp_lt_u32 s{sW}, 2
s_cselect_b32 s94, s{sT0}, s{sT1}
s_cselect_b32 s{sT2}, s{sT2}, 6144
s_cselect_b32 s79, s{sT3}, {8*6144}
s_cselect_b32 s{rR+2}, 2097152, s{sT4}
s_mov_b32 s{rR+3}, 0x20000
v_lshrrev_b32 v3, 3, v{vLANE}
v_mul_u32_u24 v3, s{sT2}, v3
v_lshrrev_b32 v4, 2, v{vLANE}
v_and_b32 v4, 4, v4
v_and_b32 v5, 7, v{vLANE}
v_xor_b32 v4, v4, v5
v_lshl_add_u32 v22, v4, 4, v3
v_xor_b32 v23, 32, v22
s_lshl_b32 s3, s{sW}, 13
s_add_u32 s3, s3, {L_RR}
s_lshl_b32 s{sT5}, s{sT5}, 7
v_lshl_add_u32 v5, v{vLANE}, 1, s{sT5}
s_lshl_b32 s{sT5}, s{sP}, 9
v_lshl_add_u32 v2, v0, 1, s{sT5}""")
    for i in range(6): P.I(f"v_mov_b32 v{vPAR+i}, 0")
    P.I(f"v_mov_b32 v{vROLE}, 0\ns_lshl_b32 s93, s{sP}, 2")
def early_loads(P, NT, XNT):
    par=[f"global_load_short_d16_hi v{vPAR+i}, v2, {sp(b)} {NT}" for i,b in enumerate((sARE,sAIM,sBRE,sBIM,sCRE,sCIM))]
    P.extend(par)
    P.I(f"""s_load_dword s{sTAG}, {sp(sWS)}, {WS_EPOCH}
s_load_dword s{sLD}, {sp(sLDT)}, s93
s_load_dword s{sDS}, {sp(sDSK)}, s93
s_cmp_lt_u32 s{sW}, 2
s_cselect_b64 {sp(rR)}, {sp(sX)}, {sp(sWM)}
s_and_b32 s{rR+1}, s{rR+1}, 0xffff""")
    P.I(f"global_load_short_d16_hi v{vROLE}, v5, {sp(sC)}")
    P.I(f"""s_add_u32 s6, s6, L_table-L_pc+4096
s_addc_u32 s7, s7, 0
v_lshlrev_b32 v{vT16}, 4, v0""")
def role_loads(P, XNT, cond, lbl):
    if cond: P.I(f"{cond} s{sW}, 2\ns_cbranch_scc0 {lbl}")
    for u in range(8):
        P.I(f"s_add_u32 m0, s3, {u*1024}")
        P.I(f"s_add_u32 s94, s94, s79" if u else "s_nop 0")
        P.I(f"buffer_load_dwordx4 v{22+(u&1)}, {sp(rR,4)}, s94 offen {XNT} lds", tag='rr')
    if cond: P.I(f"{lbl}:")
def table_loads(P):
    P.I(f"global_load_dwordx4 {vr(vTAB,4)}, v{vT16}, s[6:7] offset:-4096\nglobal_load_dwordx4 {vr(vTAB+4,4)}, v{vT16}, s[6:7]")

def setup(P, nowd=False):
    P.extend(mksrd(rWS,sWS,WS_USED))
    P.I(f"s_cmp_lt_u32 s{sIDX}, 28\ns_cselect_b32 s{sT0}, 1835008, 0\ns_cselect_b32 s{sT1}, {WS_USED}, 0")
    for r,b in ((rWG,sWG),(rWU,sWU),(rWD,sWD)): P.extend(mksrd(r,b,1835008 if (nowd and r==rWD) else f"s{sT0}"))
    P.extend(mksrd(rWJ,sWS,f"s{sT1}"))
    P.I(f"""s_and_b32 s{sCG}, s{sXCD}, 3
s_mul_i32 s{sCG}, s{sCG}, 7
s_lshr_b32 s{sT0}, s{sIDX}, 2
s_add_u32 s{sCG}, s{sCG}, s{sT0}
s_and_b32 s{sKE}, s{sXCD}, 4
s_and_b32 s{sT0}, s{sIDX}, 3
s_add_u32 s{sKE}, s{sKE}, s{sT0}""")
    P.I(f"""s_lshl2_add_u32 s{sT0}, s{sCG}, s{sW}
s_mul_i32 s{sT1}, s{sT0}, 147
s_lshr_b32 s{sT1}, s{sT1}, 10
s_mul_i32 s{sT2}, s{sT1}, 7
s_sub_u32 s{sT0}, s{sT0}, s{sT2}
s_mul_i32 s{sT1}, s{sT1}, 231
s_cmp_lt_u32 s{sT0}, {G1}
s_cselect_b32 s{sT2}, {G1}, 1
s_cselect_b32 s{sT3}, 1, 33
s_mul_i32 s{sT0}, s{sT0}, s{sT3}
s_add_u32 s{sT0}, s{sT0}, s{sT1}
s_lshl_b32 s{sT0}, s{sT0}, 10
s_add_u32 s{sT0}, s{sT0}, {WS_WPF}
s_lshl_b32 s{sWST}, s{sT2}, 10
s_mul_i32 s{sT3}, s{sWST}, s{sKE}
s_lshl2_add_u32 s{sWO}, s{sT3}, s{sT0}
s_lshl_b32 s{sT2}, s{sT2}, 15
s_add_u32 s{sWA}, s{sT2}, s{sT0}
s_lshl_b32 s{sT0}, s{sKE}, 7
s_add_u32 s{sWA}, s{sWA}, s{sT0}""")
    L=vLANE
    P.I(f"""v_lshlrev_b32 v{vL16}, 4, v{L}
v_and_b32 v2, 15, v{L}
v_and_b32 v3, 48, v{L}
v_lshrrev_b32 v4, 4, v{L}
v_lshrrev_b32 v5, 5, v{L}
v_and_b32 v6, 3, v{L}
s_mul_i32 s{sT2}, s{sW}, 10240
s_add_u32 s{sT2}, s{sT2}, {L_Y}
v_mul_u32_u24 v7, 320, v4
v_lshl_add_u32 v7, v2, 4, v7
v_add_u32 v{vYW}, s{sT2}, v7
v_lshrrev_b32 v7, 5, v0
v_mul_u32_u24 v7, 1280, v7
v_and_b32 v8, 1, v0
v_mul_u32_u24 v9, 640, v8
v_bfe_u32 v10, v0, 1, 4
v_lshl_add_u32 v9, v10, 4, v9
v_add_u32 v{vYR}, v7, v9
v_lshrrev_b32 v7, 2, v0
v_lshlrev_b32 v7, 15, v7
v_lshl_add_u32 v{vXO}, v6, 4, v7
v_mul_u32_u24 v7, {FP}, v2
v_add_u32 v7, v7, v3
v_add_u32 v{vKF}, {L_F}, v7
v_mul_u32_u24 v7, {CP}, v2
s_mul_i32 s{sT2}, s{sW}, {16*CP}
v_add3_u32 v{vKC}, v7, v3, s{sT2}
v_bfe_u32 v7, v{L}, 2, 2
v_cmp_eq_u32 vcc, 3, v7
v_cmp_eq_u32 {sp(sT2)}, 1, v7
v_cvt_f32_u32 v{vSEL2}, v5
v_cndmask_b32 v9, v7, 5, vcc
v_cndmask_b32 v{vSEL1}, 0, 1.0, {sp(sT2)}
v_lshl_add_u32 v9, v9, 3, v6
v_lshlrev_b32 v{vMC}, 12, v9
v_lshl_add_u32 v9, v5, 3, v6
v_bfe_u32 v10, v{L}, 2, 3
v_lshlrev_b32 v11, 4, v10
v_lshl_add_u32 v{vMW}, v9, 12, v11
s_lshl_b32 s{sT2}, s{sW}, 6
s_add_u32 s{sT2}, s{sT2}, {L_GT+256}
v_lshl_add_u32 v10, v10, 3, s{sT2}
v_lshlrev_b32 v11, 8, v5
v_sub_u32 v{vGW}, v10, v11
v_lshlrev_b32 v10, 5, v5
v_add_u32 v{vGR}, {L_GT}, v10
v_and_b32 v9, 1, v4
v_lshl_add_u32 v10, v9, 1, v5
v_lshl_add_u32 v10, v10, 3, v7
v_lshl_add_u32 v10, v10, 1, v9
v_bfe_u32 v11, v{L}, 3, 1
v_lshl_add_u32 v10, v10, 1, v11
v_xor_b32 v10, s{sW}, v10
v_lshl_add_u32 v10, v10, 1, v8
v_bfe_u32 v11, v{L}, 1, 1
v_lshl_add_u32 v10, v10, 1, v11
v_lshlrev_b32 v10, 3, v10
v_add_u32 v{vWRA}, {L_WR}, v10""")
    P.I(f"""v_mul_u32_u24 v7, {HP}, v5
v_and_b32 v9, 31, v{L}
v_min_u32 v9, 29, v9
v_lshl_add_u32 v7, v9, 4, v7
v_add_u32 v7, {L_H}, v7
v_cmp_gt_u32 vcc, 64, v0
v_mov_b32 v9, {L_CZ}
v_mov_b32 v{vFG}, 0
v_cndmask_b32 v7, v9, v7, vcc
v_mov_b32 v{vFG+1}, 0
v_mov_b32 v{vFG+2}, 0
v_mov_b32 v{vFG+3}, 0
ds_write_b128 v7, {vr(vFG,4)}""")
    A0=vRA
    P.I(f"""v_lshrrev_b32 v2, 3, v{L}
v_and_b32 v3, 2, v2
v_mul_u32_u24 v2, 3584, v2
v_and_b32 v4, 7, v{L}
v_xor_b32 v3, v3, v4
v_xor_b32 v4, 4, v3
v_lshl_add_u32 v{A0+2}, v3, 4, v2
v_lshl_add_u32 v{A0+3}, v4, 4, v2
v_and_b32 v8, 1, v{L}
v_bfe_u32 v7, v{L}, 1, 3
v_mul_u32_u24 v7, {KIP}, v7
v_lshl_add_u32 v7, v8, 4, v7
v_add_u32 v{A0+1}, {L_KI+4096}, v7
s_mul_i32 s{sT0}, s{sKE}, {64*3584}
s_lshl_b32 s{sT1}, s{sCG}, 7
s_add_u32 s90, s{sT0}, s{sT1}""")
    if not nowd: P.I(f"""v_lshrrev_b32 v2, 2, v{L}
v_and_b32 v5, 3, v{L}
v_lshlrev_b32 v5, 4, v5
v_lshl_add_u32 v{A0+4}, v2, 10, v5
v_lshrrev_b32 v6, 5, v{L}
v_and_b32 v7, 3, v2
v_lshl_add_u32 v6, v6, 3, v7
v_bfe_u32 v7, v{L}, 4, 1
v_lshl_add_u32 v6, v6, 1, v7
v_lshl_add_u32 v6, v6, 1, v8
v_bfe_u32 v7, v{L}, 1, 1
v_lshl_add_u32 v6, v6, 1, v7
v_lshlrev_b32 v6, 3, v6
v_add_u32 v{A0}, {L_DR}, v6
s_mul_i32 s{sFS}, s{sXCD}, 28
s_add_u32 s{sFS}, s{sFS}, s{sIDX}
s_lshr_b32 s{sT2}, s{sFS}, 1
s_lshl_b32 s{sT2}, s{sT2}, 14
s_and_b32 s{sT1}, s{sFS}, 1
s_lshl_b32 s{sT1}, s{sT1}, 9
s_add_u32 s91, s{sT2}, s{sT1}""")

def x_jobs(P, PUB, diag):
    R=vROLE; G=vROLE+32; L=vLANE
    P.I(f"s_cmp_ge_u32 s{sW}, 2\ns_cbranch_scc1 L_xje\ns_cmp_eq_u32 s{sW}, 1\ns_cbranch_scc1 L_rj1")
    P.I(f"""v_and_b32 v2, 7, v{L}
v_lshrrev_b32 v3, 3, v{L}
v_and_b32 v4, 2, v2
v_lshlrev_b32 v4, 1, v4
v_xor_b32 v4, v4, v3
v_lshlrev_b32 v4, 4, v4
v_lshl_add_u32 v4, v2, 7, v4
v_add_u32 v4, {L_RR}, v4
v_xor_b32 v5, 32, v4
v_mul_u32_u24 v3, {4*12288}, v3
v_lshl_add_u32 v2, v2, 4, v3
s_and_b32 s{sT0}, s{sP}, 7
s_mul_i32 s{sT0}, s{sT0}, {32*12288}
s_and_b32 s{sT1}, s{sP}, 0xf8
s_lshl4_add_u32 s{sT0}, s{sT1}, s{sT0}
s_add_u32 s{sT0}, s{sT0}, {WS_XG}""")
    for k in range(12): P.I(f"v_mov_b32 v{G+4*k+3}, s{sTAG}")
    P.I("s_waitcnt vmcnt(0)"); stamp(P,2,diag)
    for r in range(8): P.I(f"ds_read_b128 {vr(R+4*r,4)}, v{4+(r&1)} offset:{r*1024}")
    for g in range(3):
        for j in range(4):
            k=g*4+j
            for e in range(3):
                if 3*g+e<8: P.I(f"v_mov_b32 v{G+4*k+e}, v{R+4*(3*g+e)+j}")
            P.I(f"s_add_u32 s{sT1}, s{sT0}, {j*12288+g*4096}")
            P.I(f"buffer_store_dwordx4 {vr(G+4*k,4)}, v2, {sp(rWS,4)}, s{sT1} offen {PUB}")
    P.I(f"s_branch L_xje\nL_rj1:")
    P.I(f"""v_mov_b32 v2, 0
v_mov_b32 v3, 0
v_mov_b32 v4, 0
v_mov_b32 v5, 0
s_mov_b32 s{sT1}, 0x3f803f80
v_add_u32 v6, {L_RR+8192}, v{vL16}
v_mul_u32_u24 v8, 96, v{L}
v_lshlrev_b32 v9, 12, v{L}
s_lshl4_add_u32 s{sT0}, s{sP}, {WS_SG}""")
    P.I(f"v_mov_b32 v{G+3}, s{sTAG}\ns_waitcnt vmcnt(0)"); stamp(P,2,diag)
    for u in range(8): P.I(f"ds_read_b128 {vr(R+4*u,4)}, v6 offset:{u*1024}")
    for k in range(32):
        P.I(f"v_dot2c_f32_bf16 v{2+(k&1)}, s{sT1}, v{R+k}\nv_dot2c_f32_bf16 v{4+(k&1)}, v{R+k}, v{R+k}")
    P.I("v_add_f32 v2, v2, v3\nv_add_f32 v4, v4, v5")
    for m in ("quad_perm:[1,0,3,2]","quad_perm:[2,3,0,1]","row_half_mirror"):
        P.I(f"v_add_f32_dpp v2, v2, v2 {m} row_mask:0xf bank_mask:0xf\nv_add_f32_dpp v4, v4, v4 {m} row_mask:0xf bank_mask:0xf")
    P.I(f"""v_mul_f32 v2, 0x3b000000, v2
v_mul_f32 v4, 0x3b000000, v4
v_fma_f32 v4, -v2, v2, v4
v_max_f32 v4, 0, v4
v_cvt_pk_bf16_f32 v4, v4, v4
v_and_b32 v4, 0xffff0000, v4
v_add_f32 v4, 0x3727c5ac, v4
v_cvt_pk_bf16_f32 v4, v4, v4
v_and_b32 v4, 0xffff0000, v4
v_sqrt_f32 v4, v4
v_cvt_pk_bf16_f32 v2, v2, v4
ds_bpermute_b32 v{G}, v8, v2
ds_bpermute_b32 v{G+1}, v8, v2 offset:32
ds_bpermute_b32 v{G+2}, v8, v2 offset:64
s_waitcnt lgkmcnt(0)
s_mov_b64 exec, 7
buffer_store_dwordx4 {vr(G,4)}, v9, {sp(rWS,4)}, s{sT0} offen {PUB}
s_mov_b64 exec, -1
L_xje:""")
def mod_job(P, PUB, diag):
    R=vROLE; L=vLANE; A0=vRA
    P.I(f"s_cmp_lt_u32 s{sW}, 2\ns_cbranch_scc1 L_rje")
    assert L_MR%128==0
    P.I(f"""v_lshrrev_b32 v2, 4, v{L}
v_bfe_u32 v3, v{L}, 2, 2
v_lshl_add_u32 v4, v2, 3, v3
v_bfe_u32 v3, v{L}, 3, 1
v_lshl_add_u32 v4, v4, 1, v3
v_and_b32 v3, 1, v2
v_lshl_add_u32 v4, v4, 1, v3
v_and_b32 v3, 3, v{L}
v_lshl_add_u32 v4, v4, 2, v3
v_lshlrev_b32 v4, 3, v4
s_lshl_b32 s{sT0}, s{sW}, 13
s_add_u32 s{sT0}, s{sT0}, {L_RR}
v_add_u32 v8, s{sT0}, v4
v_xor_b32 v9, 32, v8
v_xor_b32 v10, 64, v8
v_xor_b32 v11, 96, v8
v_bfe_u32 v4, v{L}, 1, 2
v_lshl_add_u32 v4, v4, 2, v2
v_and_b32 v3, 1, v{L}
v_lshl_add_u32 v4, v4, 1, v3
v_lshlrev_b32 v{A0+5}, 4, v4
s_lshl_b32 s{sT0}, s{sW}, 7
s_add_u32 s{sT0}, s{sT0}, {L_SC-256}
v_lshl_add_u32 v6, v{L}, 1, s{sT0}
v_and_b32 v7, 48, v{L}
v_add_u32 v7, s{sT0}, v7
s_lshl_b32 s{sT0}, s92, 12
s_and_b32 s{sT1}, s{sIDX}, 7
s_lshl_b32 s{sT1}, s{sT1}, 9
s_add_u32 s{sT0}, s{sT0}, s{sT1}
s_add_u32 s99, s{sT0}, {WS_MG}
s_mov_b32 s{sT0}, 0xaaaaaaaa
s_mov_b32 s{sT1}, 0xaaaaaaaa
s_mov_b32 s{sT2}, 0xcccccccc
s_mov_b32 s{sT3}, 0xcccccccc
s_mov_b32 s{sT4}, 0xf0f0f0f0
s_mov_b32 s{sT5}, 0xf0f0f0f0""")
    P.I(f"""v_mul_f32 v4, 0xbfb8aa3b, v{R}
v_exp_f32 v4, v4
v_add_f32 v4, 1.0, v4
v_rcp_f32 v4, v4
v_mul_f32 v2, v{R}, v4
v_cvt_pk_bf16_f32 v2, v2, v2
ds_write_b16 v6, v2""")
    for ks in range(2): P.I(f"ds_read_b128 {vr(R+4*ks,4)}, v7 offset:{ks*64}")
    P.I("s_waitcnt vmcnt(0)"); stamp(P,2,diag)
    P.I(f"s_cmp_ge_u32 s{sIDX}, 24\ns_cbranch_scc1 L_rje")
    A=R+16; ACC=R+16+32
    seq=[(ks,ct) for ks in range(2) for ct in range(4)]
    for n,(ks,ct) in enumerate(seq):
        for hf in range(2): P.I(f"ds_read_b64_tr_b16 {vr(A+4*n+2*hf,2)}, v{8+ct} offset:{ks*4096+hf*512}")
    for n,(ks,ct) in enumerate(seq):
        P.I(f"v_mfma_f32_16x16x32_bf16 {vr(ACC+4*ct,4)}, {vr(A+4*n,4)}, {vr(R+4*ks,4)}, {vr(ACC+4*ct,4) if ks else 0}")
    P.I(f"v_mov_b32 v{R+3}, s{sTAG}")
    for ct in range(4):
        for e in range(2): P.I(f"v_cndmask_b32 v{A+2*ct+e}, v{ACC+4*ct+e}, v{ACC+4*ct+2+e}, {sp(sT0)}")
    for c2 in range(2):
        for e in range(2): P.I(f"v_cndmask_b32 v{A+8+2*c2+e}, v{A+4*c2+e}, v{A+4*c2+2+e}, {sp(sT2)}")
    for e in range(2): P.I(f"v_cndmask_b32 v{R+e}, v{A+8+e}, v{A+10+e}, {sp(sT4)}")
    P.I(f"""s_mov_b32 exec_lo, 0x00ff00ff
s_mov_b32 exec_hi, 0x00ff00ff
buffer_store_dwordx4 {vr(R,4)}, v{A0+5}, {sp(rWS,4)}, s99 offen {PUB}
s_mov_b64 exec, -1""")
    P.I("L_rje:")
def raw_wd_loads(P):
    P.I(f"s_lshl_b32 s{sT0}, s{sW}, 11\ns_lshl_b32 s{sT1}, s{sW}, 7\ns_add_u32 m0, s{sT0}, {L_DR}\ns_add_u32 s{sT1}, s{sT1}, s91")
    P.I(f"buffer_load_dwordx4 v{vRA+4}, {sp(rWD,4)}, s{sT1} offen lds", tag='dr')
    P.I(f"s_add_u32 m0, s{sT0}, {L_DR+1024-64}\nv_add_u32 v245, s{sT0}, v{vRA}")
    P.I(f"buffer_load_dwordx4 v{vRA+4}, {sp(rWD,4)}, s{sT1} offen offset:64 lds", tag='dr')
def wd_job(P, ST):
    A=144
    P.I("@wait dr")
    for f in range(2):
        for hf in range(2): P.I(f"ds_read_b64_tr_b16 {vr(A+4*f+2*hf,2)}, v245 offset:{f*1024+hf*256}")
    P.I(f"""s_and_b32 s{sT0}, s{sFS}, 1
s_lshl2_add_u32 s{sT0}, s{sT0}, s{sW}
s_mul_i32 s{sT0}, s{sT0}, {2*112}
s_lshr_b32 s{sT1}, s{sFS}, 1
s_add_u32 s{sT0}, s{sT0}, s{sT1}
s_lshl_b32 s{sT0}, s{sT0}, 10
s_add_u32 s{sT0}, s{sT0}, {WS_WDF}
s_add_u32 s{sT1}, s{sT0}, {112*1024}""")
    for f in range(2):
        P.I(f"buffer_store_dwordx4 {vr(A+4*f,4)}, v{vL16}, {sp(rWJ,4)}, s{sT0+f} offen {ST}", tag='wdst')
def raw_w_loads(P, NT):
    P.I(f"s_mul_i32 s{sT0}, s{sW}, {16*3584}\ns_add_u32 s{sT0}, s{sT0}, s90\ns_lshl_b32 s{sT1}, s{sW}, 12")
    for q in range(2):
        for mat,r in ((0,rWG),(1,rWU)):
            P.I(f"s_add_u32 m0, s{sT1}, {L_WR+mat*2048+q*1024}")
            P.I(f"s_add_u32 s{sT0}, s{sT0}, {8*3584}" if (q and not mat) else "s_nop 0")
            P.I(f"buffer_load_dwordx4 v{vRA+2+mat}, {sp(r,4)}, s{sT0} offen {NT} lds", tag='wr')

def cmul(o,a,b,t):
    return [f"v_pk_mul_f32 {vr(t,2)}, {vr(a,2)}, {vr(b,2)} op_sel_hi:[0,1]",
            f"v_pk_fma_f32 {vr(o,2)}, {vr(a,2)}, {vr(b,2)}, {vr(t,2)} op_sel:[1,1,0] op_sel_hi:[1,0,1] neg_lo:[1,0,0]"]
def factor_gen(P):
    B=vFG; are,aim,bre,bim,cre,cim=[vPAR+i for i in range(6)]
    R1,R8,R128,LOc,TMP,PK = B,B+2,B+4,B+6,B+8,B+12
    Pc=[B+16+2*c for c in range(8)]
    zr,zi,dt=B+32,B+33,B+34; M=[2,4,6]; PH=[8,9,10]
    P.I(f"""s_lshr_b32 s{sT0}, s{sW}, 1
s_mul_i32 s{sT1}, s{sT0}, {64*FP-512}
s_lshl_b32 s{sT2}, s{sW}, 8
s_add_u32 m0, s{sT1}, s{sT2}
s_lshl_b32 s{sT0}, s{sT0}, 4
s_lshr_b32 s{sT1}, s{sLD}, s{sT0}
s_lshl_b32 s{sT1}, s{sT1}, 16
v_mov_b32 v{dt}, {hex(LOG2E)}
v_mul_f32 v{dt}, s{sT1}, v{dt}
v_exp_f32 v{dt}, v{dt}""")
    P.extend(cmul(Pc[0],cre,bre,TMP))
    P.I(f"""v_cvt_pk_bf16_f32 v{dt}, v{dt}, v{dt}
v_and_b32 v{dt}, 0xffff0000, v{dt}
v_mul_f32 v{zr}, v{dt}, v{are}
v_mul_f32 v{zi}, v{dt}, v{aim}
v_mul_f32 v{zr}, {hex(LOG2E)}, v{zr}
v_mul_f32 v{zi}, 0.15915494, v{zi}
v_pk_mul_f32 {vr(Pc[0],2)}, {vr(Pc[0],2)}, {vr(dt,2)} op_sel_hi:[1,0] neg_hi:[1,0]""")
    cx=((R1,1,True),(R8,8,False),(R128,128,True))
    for (o,sc,cj),m,ph in zip(cx,M,PH):
        if sc==1: P.I(f"v_exp_f32 v{m}, v{zr}\nv_fract_f32 v{ph}, v{zi}")
        else: P.I(f"v_mul_f32 v{m}, {hex(f32(sc))}, v{zr}\nv_mul_f32 v{ph}, {hex(f32(sc))}, v{zi}\nv_exp_f32 v{m}, v{m}\nv_fract_f32 v{ph}, v{ph}")
        P.I(f"v_cos_f32 v{o}, v{ph}\nv_sin_f32 v{o+1}, v{ph}")
    for (o,sc,cj),m,ph in zip(cx,M,PH):
        P.I(f"v_pk_mul_f32 {vr(o,2)}, {vr(o,2)}, {vr(m,2)} op_sel_hi:[1,0]" + (" neg_hi:[1,0]" if cj else ""))
    steps_lo=[('one',48),('put',49,R8)]+[('mul',48+b,LOc,(R8 if b==2 else LOc),R8) for b in range(2,16)]
    steps_hi=[('put',0,Pc[0])]+[('mul',c,Pc[c],Pc[c-1],R1) for c in range(1,8)]
    row=8
    for e in range(1,17):
        cs = range(8) if e<2 else range(0,8,2) if e<4 else (0,4) if e<8 else (0,)
        for c in cs:
            assert HI[row]==128*e+c
            steps_hi.append(('mul',row,Pc[c],Pc[c],R128)); row+=1
    for k,s in enumerate(steps_lo+steps_hi):
        kk=PK+(k&3)
        if s[0]=='one': P.I(f"v_mov_b32 v{kk}, 0x3f80")
        else:
            if s[0]=='mul': P.extend(cmul(s[2],s[3],s[4],TMP+2*(k&1)))
            P.I(f"v_cvt_pk_bf16_f32 v{kk}, v{s[2]}, v{s[2]+1}")
        P.I(f"ds_write_addtid_b32 v{kk} offset:{L_F+s[1]*FP}")

def kgen(P, ST):
    A=vROLE; ACC=vFG
    P.I(f"""s_lshl_b32 s{sT0}, s{sDS}, 16
s_and_b32 s{sT1}, s{sDS}, 0xffff0000
v_cmp_eq_u32 vcc, 0, v0
v_mov_b32 v2, s{sT0}
v_mov_b32 v3, s{sT1}
s_mul_i32 s{sT2}, s{sW}, {16*FP}
v_cndmask_b32 v{ACC}, 0, v2, vcc
v_cndmask_b32 v{ACC+4}, 0, v3, vcc
v_add_u32 v5, s{sT2}, v{vKF}""")
    for r in (1,2,3,5,6,7): P.I(f"v_mov_b32 v{ACC+r}, 0")
    P.I(f"s_cmp_eq_u32 s{sW}, 3\ns_waitcnt lgkmcnt(0)\ns_barrier\ns_cbranch_scc1 L_wdjob")
    def rd(n):
        ks,ch=n>>1,n&1; b=A+8*(n%9)
        return [f"ds_read_b128 {vr(b,4)}, v{vKF} offset:{ch*64*FP+48*FP+ks*64}", f"ds_read_b128 {vr(b+4,4)}, v5 offset:{ch*64*FP+ks*64}"]
    for n in range(7): P.extend(rd(n))
    for n in range(16):
        b=A+8*(n%9); a=vr(ACC+4*(n&1),4)
        P.I(f"v_mfma_f32_16x16x32_bf16 {a}, {vr(b,4)}, {vr(b+4,4)}, {a}")
        if n+7<16: P.extend(rd(n+7))
    for r in range(4): P.I(f"v_cvt_pk_bf16_f32 v{8+r}, v{ACC+r}, v{ACC+4+r}")
    P.I(f"ds_write_b128 v{vKC}, v[8:11]\ns_branch L_kgen_end\nL_wdjob:")
    P.I(f"ds_write_b128 v{vRA+1}, {vr(ACC,4)}")
    P.I("L_kgen_end:")

def poll_groups():
    Q=Prog(); poll_loads(Q); G=[[]]
    for x in Q.ins:
        G[-1].append(x)
        if x.kind=='vmem': G.append([])
    return G[:-1]
def poll_loads(P):
    LD='sc1'
    P.I(f"s_mul_i32 s94, s{sP}, 12288\ns_add_u32 s94, s94, {WS_XG}")
    for g in range(3):
        P.I(f"buffer_load_dwordx4 {vr(vPOLL+4*g,4)}, v{vT16}, {sp(rWS,4)}, s94 offen {LD}")
        P.I(f"s_mov_b32 s79, {WS_SG+g*4096}\nbuffer_load_dwordx4 {vr(vPOLL+12+4*g,4)}, v{vT16}, {sp(rWS,4)}, s79 offen {LD}")
        if g<2: P.I(f"s_add_u32 s94, s94, 4096")
    P.I(f"""s_lshl4_add_u32 s3, s{sP}, {WS_MG}
buffer_load_dwordx4 {vr(vPOLL+24,4)}, v{vMC}, {sp(rWS,4)}, s3 offen {LD}
s_add_u32 s3, s3, {4*4096}
buffer_load_dwordx4 {vr(vPOL2,4)}, v{vMC}, {sp(rWS,4)}, s3 offen {LD}
s_lshl2_add_u32 s3, s{sKE}, s{sW}
s_lshl_b32 s3, s3, 7
s_add_u32 s3, s3, {WS_MG+24*4096}
buffer_load_dwordx4 {vr(vPOLL+28,4)}, v{vMW}, {sp(rWS,4)}, s3 offen {LD}
s_add_u32 s3, s3, {4*4096}""")
    P.I(f"buffer_load_dwordx4 {vr(vPOL2+4,4)}, v{vMW}, {sp(rWS,4)}, s3 offen {LD}", tag='poll')

vGA=140
def table_unpack(P):
    P.I(f"v_mov_b32 v{vUA}, v{vTAB+7}\nv_mov_b32 v{vKA}, v{vTAB+6}")
    for j in range(11):
        P.I(f"v_lshrrev_b32 v{vGA+j}, 16, v{vTAB+j//2}" if j&1 else f"v_and_b32 v{vGA+j}, 0xffff, v{vTAB+j//2}")
def k_image(P, G, npre, skip):
    E=vROLE+40; O=vROLE; GA=vGA
    for _ in range(npre): P.extend(G.pop(0))
    P.I(f"""s_mov_b32 s{sT4}, 0x05040100
s_mov_b32 s{sT5}, 0x07060302
v_add_u32 v2, {L_KI}, v{vT16}
s_waitcnt lgkmcnt(0)
s_barrier""")
    for j in range(11): P.I(f"ds_read_b32 v{E+j}, v{GA+j}")
    k=0
    for c in (3,2,1,0):
        for ch in range(2):
            o=O+4*k; k+=1
            for i in range(4):
                j=3-c+2*i
                P.I(f"v_perm_b32 v{o+i}, v{E+j+1}, v{E+j}, s{sT4+ch}")
            P.I(f"ds_write_b128 v2, {vr(o,4)} offset:{(ch*4+c)*KIP}")
            if G and k>skip: P.extend(G.pop(0))
    for g in G: P.extend(g)

def check_tags(P, diag):
    P.I(f"s_mov_b32 s{sCNT}, 0\nL_ka_chk:")
    P.I(f"""@wait poll
v_min3_u32 v2, v{vPOLL+27}, v{vPOLL+31}, s{sTAG}
v_max3_u32 v3, v{vPOLL+27}, v{vPOLL+31}, s{sTAG}
v_min3_u32 v2, v2, v{vPOL2+3}, v{vPOL2+7}
v_max3_u32 v3, v3, v{vPOL2+3}, v{vPOL2+7}
v_min3_u32 v2, v2, v{vPOLL+15}, v{vPOLL+3}
v_max3_u32 v3, v3, v{vPOLL+15}, v{vPOLL+3}
v_min3_u32 v2, v2, v{vPOLL+19}, v{vPOLL+7}
v_max3_u32 v3, v3, v{vPOLL+19}, v{vPOLL+7}
v_min3_u32 v2, v2, v{vPOLL+23}, v{vPOLL+11}
v_max3_u32 v3, v3, v{vPOLL+23}, v{vPOLL+11}
v_cmp_ne_u32 vcc, v2, v3
s_cbranch_vccnz L_ka_retry
L_ka_ok:""")
    if diag: P.I(f"s_add_u32 s{sCNT}, s{sCNT}, 1\nv_writelane_b32 v255, s{sCNT}, 31")
def retry_block(P):
    P.I(f"L_ka_retry:\ns_add_u32 s{sCNT}, s{sCNT}, 1\ns_cmp_gt_u32 s{sCNT}, 20000\ns_cbranch_scc1 L_ka_ok")
    poll_loads(P)
    P.I("s_waitcnt vmcnt(0)\ns_branch L_ka_chk")

def make_h(P):
    Q=vPOLL; mc=Q+24; mw=Q+28; Mm=vROLE; Mr=vROLE+8; O=vROLE+16
    dpp=" row_mask:0xf bank_mask:0xf"
    P.I(f"v_pk_add_f32 {vr(mc,2)}, {vr(mc,2)}, {vr(vPOL2,2)}\nv_pk_add_f32 {vr(mw,2)}, {vr(mw,2)}, {vr(vPOL2+4,2)}")
    for m in ("quad_perm:[1,0,3,2]","quad_perm:[2,3,0,1]"):
        for r in (mc,mc+1,mw,mw+1): P.I(f"v_add_f32_dpp v{r}, v{r}, v{r} {m}{dpp}")
    for rnd in range(2):
        P.I(f"v_cvt_pk_bf16_f32 v{mc+1}, v{mc}, v{mc+1}\nv_cvt_pk_bf16_f32 v{mw+1}, v{mw}, v{mw+1}")
        P.I(f"v_lshlrev_b32 v{mc}, 16, v{mc+1}\nv_and_b32 v{mc+1}, 0xffff0000, v{mc+1}\nv_lshlrev_b32 v{mw}, 16, v{mw+1}\nv_and_b32 v{mw+1}, 0xffff0000, v{mw+1}")
        if rnd==0: P.I(f"v_add_f32 v{mc}, v{mc}, v{vSEL1}\nv_add_f32 v{mc+1}, v{mc+1}, v{vSEL1}\nv_add_f32 v{mw}, v{mw}, v{vSEL2}\nv_add_f32 v{mw+1}, v{mw+1}, v{vSEL2}")
    P.I(f"ds_write_b64 v{vGW}, {vr(mw,2)}")
    for k in range(4):
        for e in range(2): P.I(f"v_mov_b32_dpp v{vMOD+2*k+e}, v{mc+e} row_newbcast:{4*k}{dpp}")
    for r in range(8):
        st=Q+12+4*(r//3)+r%3; xr=Q+4*(r//3)+r%3
        P.I(f"""v_and_b32 v{Mr+r}, 0xffff0000, v{st}
v_lshlrev_b32 v{Mm+r}, 16, v{st}
v_rcp_f32 v{Mr+r}, v{Mr+r}
v_lshlrev_b32 v{vXF+r}, 16, v{xr}
v_and_b32 v{vXF+8+r}, 0xffff0000, v{xr}""")
    P.I(f"v_add_u32 v2, {L_H+480}, v{vT16}")
    for ch in range(2):
        sel=f"op_sel:[0,{ch},{ch}] op_sel_hi:[1,{ch},{ch}]"
        for r in range(0,8,2): P.I(f"v_pk_add_f32 {vr(vHF+8*ch+r,2)}, {vr(vXF+8*ch+r,2)}, {vr(Mm+r,2)} neg_lo:[0,1] neg_hi:[0,1]")
        for r in range(0,8,2): P.I(f"v_pk_mul_f32 {vr(vHF+8*ch+r,2)}, {vr(vHF+8*ch+r,2)}, {vr(Mr+r,2)}")
        for r in range(0,8,2): P.I(f"v_pk_fma_f32 {vr(vHF+8*ch+r,2)}, {vr(vHF+8*ch+r,2)}, {vr(vMOD+2,2)}, {vr(vMOD,2)} {sel}")
        for r in range(0,8,2): P.I(f"v_cvt_pk_bf16_f32 v{O+4*ch+r//2}, v{vHF+8*ch+r}, v{vHF+8*ch+r+1}")
        P.I(f"ds_write_b128 v2, {vr(O+4*ch,4)} offset:{ch*HP}")

def gb_store(P, ST):
    P.I(f"""s_cmp_lg_u32 s{sW}, 2
s_cbranch_scc1 L_nogb
s_lshl_b32 s{sT0}, s{sP}, 3
s_add_u32 s{sT0}, s{sT0}, {WS_GBF}
s_mov_b64 exec, 1
buffer_store_dwordx2 {vr(vMOD+6,2)}, v{vL16}, {sp(rWS,4)}, s{sT0} offen {ST}
s_mov_b64 exec, -1
L_nogb:""")
def w_side(ST):
    RAW=vPOLL; WP=vPOLL+16; GB=[48,64,80,96]; U=112; S1,S2=vHF,vHF+2
    rd=[]; main=[]; sums=[]
    for k in range(4):
        g=GB[k]
        rd.append([f"ds_read_b64_tr_b16 {vr(RAW+4*k+2*hf,2)}, v{vWRA} offset:{k*4096+hf*512}" for hf in range(2)]
                 +[f"ds_read_b128 {vr(g+4*q,4)}, v{vGR} offset:{k*64+q*16}" for q in range(2)])
        L=[]
        for d in range(4):
            u=U+8*k+2*d
            L+=[f"v_lshlrev_b32 v{u}, 16, v{RAW+4*k+d}", f"v_and_b32 v{u+1}, 0xffff0000, v{RAW+4*k+d}",
                f"v_mul_f32 v{g+2*d}, v{u}, v{g+2*d}", f"v_mul_f32 v{g+2*d+1}, v{u+1}, v{g+2*d+1}", f"v_cvt_pk_bf16_f32 v{WP+4*k+d}, v{g+2*d}, v{g+2*d+1}"]
        L.append((f"buffer_store_dwordx4 {vr(WP+4*k,4)}, v{vL16}, {sp(rWJ,4)}, s{sWO} offen {ST}",'wpst'))
        if k<3: L.append(f"s_add_u32 s{sWO}, s{sWO}, s{sWST}")
        main.append(L)
        for i in range(8):
            e=i&1; first=(k==0 and i<2)
            sums.append(f"v_mul_f32 v{S2+e}, v{U+8*k+i}, v{g+8+i}" if first else f"v_fmac_f32 v{S2+e}, v{U+8*k+i}, v{g+8+i}")
            if k==0 and i<2: continue
            sums.append(f"v_add_f32 v{S1+e}, v{g+e}, v{g+i}" if (k==0 and i<4) else f"v_add_f32 v{S1+e}, v{S1+e}, v{g+i}")
    rdsb=[f"ds_read_b128 {vr(GB[k]+8+4*q,4)}, v{vGR} offset:{256+k*64+q*16}" for k in range(4) for q in range(2)]
    tail=[f"v_add_f32 v{S1}, v{S1}, v{S1+1}", f"v_add_f32 v{S2}, v{S2}, v{S2+1}", f"v_mov_b32 v{S1+1}, v{S1}", f"v_mov_b32 v{S2+1}, v{S2}",
          f"v_lshlrev_b32 v2, 2, v{vLANE}", "s_nop 0",
          f"v_permlane32_swap_b32 v{S1}, v{S1+1}", f"v_permlane32_swap_b32 v{S2}, v{S2+1}",
          f"v_add_f32 v{S1}, v{S1}, v{S1+1}", f"v_add_f32 v{S2}, v{S2}, v{S2+1}", f"v_cvt_pk_bf16_f32 v{S1}, v{S1}, v{S2}",
          "s_mov_b32 exec_hi, 0", (f"buffer_store_dword v{S1}, v2, {sp(rWJ,4)}, s{sWA} offen {ST}",'auxst'), "s_mov_b32 exec_hi, -1"]
    return rd,main,rdsb,sums,tail

def conv(P, ST, late, hook=None, nowd=False, extra0=[], extra3=[], midbar=[]):
    ACC=16
    def kf(b,u): return ar(32*b+4*u,4)
    def uf(b,s): return ar(64+32*b+4*s,4)
    def reads(vi):
        b=vi&1; L=[]
        for k in range(8):
            o=192-64*vi
            L.append((f"ds_read_b128 {uf(b,k)}, v{vUA} offset:{512*k+o}",f"c{vi}_{k}"))
            for hf in range(2):
                L.append((f"ds_read_b64 {ar(32*b+4*k+2*hf,2)}, v{vKA} offset:{512*(7-k)+o+8*hf}",f"c{vi}_{k}"))
        return L
    order=sorted([(u,s) for u in range(8) for s in range(8) if u+s<8], key=lambda t:(max(t),t))
    rd,main,rdsb,sums,tail=w_side(ST)
    r0=reads(0)
    if late:
        Q=Prog(); wd_job(Q,ST); wdj=[] if nowd else [(x.text,x.tag) for x in Q.ins[1:]]
        tabs=[x for r in rd for x in r[2:]]+rdsb+wdj[4:12]+extra0; trs=[(x,'wtr') for r in rd for x in r[:2]]+wdj[:4]
        P.extend(r0)
        steps=[[[],tabs] if v==0 else [[],[]] for v in range(5)]
        steps[late+1][0]=trs; steps[late][1]=steps[late][1]+['@wait wtr']+main[0]+wdj[12:]+main[1]+main[2]+main[3]+extra3+sums
    else:
        P.extend(r0[:12]); P.extend(rd[0]+rd[1]); P.extend(r0[12:])
        steps=[(None,main[0]+main[1]),(rd[2]+rd[3],main[2]+main[3]),(rdsb,sums),([],[]),([],[])]
    first=set(); side=[]
    for vi in range(4):
        b=vi&1
        nxt = steps[vi+1][0]+(reads(vi+1) if vi<3 else [])
        side+=steps[vi][1]
        waits = {0:0,1:1,4:2,9:3,16:5,30:7} if vi==0 else {0:7}
        start = 17 if vi==0 else 12 if vi==late else 0
        for n,(u,s) in enumerate(order):
            t=u+s; a=vr(ACC+4*t,4)
            if n in waits: P.I(f"@wait c{vi}_{waits[n]}")
            P.I(f"v_mfma_f32_16x16x32_bf16 {a}, {kf(b,u)}, {uf(b,s)}, {a if t in first else 0}"); first.add(t)
            slots=2-((n+1) in waits or n==35)
            if late and vi==late and n==0: P.I("@wait wr dr wdst\ns_barrier"); P.extend(midbar); continue
            if hook and (vi,n) in hook: P.extend(hook[(vi,n)]); continue
            if nxt and (vi>0 or n>=4):
                P.extend([nxt.pop(0)]); slots-=1
                if n<start and slots and nxt: P.extend([nxt.pop(0)]); slots-=1
            while slots>0 and side and n>=start:
                P.extend([side.pop(0)]); slots-=1
        assert not nxt, len(nxt)
        print('  conv step',vi,'side backlog',len(side))
    print('conv: side instrs left', len(side))
    return ACC,side+tail

def conv_epilogue(P, ACC, tail, XST, pre=[], prebar=[]):
    tail=list(tail); P.extend(pre)
    for t in range(8):
        P.I(f"ds_write_b128 v{vYW}, {vr(ACC+4*t,4)} offset:{1280*t}")
        k=min(max(5,-(-len(tail)//(8-t))),len(tail))
        if len(tail)-k<4: k=len(tail)
        P.extend(tail[:k]); tail=tail[k:]
    P.extend(prebar)
    P.I(f"s_lshl_b32 s{sT0}, s{sP}, 7\ns_add_u32 s{sT0}, s{sT0}, {WS_X1B}\ns_waitcnt lgkmcnt(0)\ns_barrier")
    Y=48
    for ch in range(2):
        for g in range(2):
            for vh in range(2):
                P.I(f"ds_read_b128 {vr(Y+16*ch+8*vh+4*g,4)}, v{vYR} offset:{L_Y+(2*ch+vh)*10240+320*g}")
    for ch in range(2):
        y=Y+16*ch
        for r in range(0,8,2): P.I(f"v_pk_add_f32 {vr(y+r,2)}, {vr(y+r,2)}, {vr(y+8+r,2)}")
        for r in range(0,8,2): P.I(f"v_pk_fma_f32 {vr(y+r,2)}, {vr(y+r,2)}, {vr(vMOD+4,2)}, {vr(vXF+8*ch+r,2)} op_sel:[0,{ch},0] op_sel_hi:[1,{ch},1]")
        for r in range(0,8,2): P.I(f"v_cvt_pk_bf16_f32 v{80+4*ch+r//2}, v{y+r}, v{y+r+1}")
        P.I(f"buffer_store_dwordx4 {vr(80+4*ch,4)}, v{vXO}, {sp(rWS,4)}, s{sT0} offen offset:{64*ch} {XST}", tag='x1st')

def zero_flags(P):
    P.I(f"""s_cmp_lg_u32 s{sW}, 0
s_cbranch_scc1 L_nozf
s_lshl_b32 s{sT0}, s2, 6
s_add_u32 s{sT0}, s{sT0}, {WS_FLAG}
v_mov_b32 v2, 0
v_lshlrev_b32 v3, 2, v0
s_mov_b64 exec, 0xffff
buffer_store_dword v2, v3, {sp(rWS,4)}, s{sT0} offen
s_mov_b64 exec, -1
s_cmp_lg_u32 s2, 0
s_cbranch_scc1 L_nozf
v_mov_b32 v2, s{sTAG}
s_mov_b64 exec, 1
buffer_store_dword v2, v3, {sp(rWS,4)}, {WS_EPOCH} offen
s_mov_b64 exec, -1
L_nozf:""")

def body(P, n, diag, cfg, H={}):
    NT=cfg.get('NT','nt'); ST=cfg.get('ST','sc1')
    entry(P,n,diag,256); role_addr(P)
    P.I("s_waitcnt lgkmcnt(0)"); stamp0_commit(P,diag); early_loads(P,NT,NT)
    if cfg.get('MDELAY',1):
        role_loads(P,NT,'s_cmp_lt_u32','L_rla'); table_loads(P); setup(P,H.get('nowd')); role_loads(P,NT,'s_cmp_ge_u32','L_rlb')
    else:
        role_loads(P,NT,None,None); table_loads(P); setup(P,H.get('nowd'))
    P.extend(H.get('setup',[]))
    P.I(f"s_waitcnt lgkmcnt(0)\ns_add_u32 s{sTAG}, s{sTAG}, 1\ns_barrier")
    stamp(P,1,diag)
    if 'idle' in H: H['idle'](P)
    if not H.get('own_param_wait'): P.I(f"s_waitcnt vmcnt({8 if cfg.get('MDELAY',1) else 10})")
    P.I("@forget "+" ".join(str(r) for r in list(range(vPAR,vPAR+6))+[vROLE]))
    x_jobs(P,'sc1',diag)
    stamp(P,3,diag)
    factor_gen(P)
    stamp(P,4,diag)
    mod_job(P,'sc1',diag)
    P.I("@forget "+" ".join(str(r) for r in range(vTAB,vTAB+8)))
    stamp(P,10,diag)
    wat=cfg.get('WAT',2)
    if wat<2 or wat==3: raw_wd_loads(P)
    if wat==0: raw_w_loads(P,NT)
    P.extend(H.get('warm0',[]))
    G=poll_groups()
    for _ in range(cfg.get('PEARLY',0)): P.extend(G.pop(0))
    table_unpack(P)
    kgen(P,ST); stamp(P,5,diag)
    k_image(P,G,cfg.get('PPRE',6),cfg.get('PSKIP',4))
    if wat==2 and not H.get('nowd'): raw_wd_loads(P)
    P.extend(H.get('warm1',[]))
    if wat>=1: raw_w_loads(P,NT)
    P.extend(H.get('warm2',[]))
    if wat<2 or wat==3: wd_job(P,ST)
    stamp(P,6,diag)
    check_tags(P,diag); stamp(P,11,diag)
    make_h(P)
    late=cfg.get('LATE',1) if wat>=2 else 0
    if not late:
        if wat==2: wd_job(P,ST)
        P.I("@wait wr")
    gb_store(P,ST)
    P.I("s_waitcnt lgkmcnt(0)\ns_barrier")
    stamp(P,7,diag)
    acc,tail=conv(P,ST,late,H.get('conv'),H.get('nowd') or wat==3,H.get('extra0',[]),H.get('extra3',[]),H.get('midbar',[])); stamp(P,8,diag); conv_epilogue(P,acc,tail,cfg.get('XST',''),H.get('pre',[]),H.get('prebar',[]))
def build(P, diag, cfg):
    n='ka_kernel'
    body(P,n,diag,cfg); zero_flags(P)
    stamp(P,9,diag); stamp_out(P,0,diag)
    P.I(f"L_{n}_exit:\ns_endpgm")
    retry_block(P)
    return [(n,256,256,LDS_A,384)]
```

```python
from prog import *
from layout import *
from ka import sp, vr, ar, mksrd, f32, stamp, stamp_out, rWS, rOUT, sXCD, sIDX, sW
import ka
sXB,sWB,sAB,sXM,sFL,sPL,sA0,sA1,sD0,sD1,sNT,sMT,sFB,sCNT = range(8,22)
sQ=22
sT0,sT1,sT2,sT3,sT4 = 80,81,82,83,84
vLANE,vL16 = 1,2
NS=16; L_XS=0; L_RING=4*NS*1024; RING=96
LDS_C=L_RING+RING*1024
def entry(P,name,diag):
    P.I(f".globl {name}\n.p2align 8\n.type {name},@function\n{name}:\n@reset")
    P.I(f"""s_cmp_ge_u32 s2, 256
s_cbranch_scc1 L_{name}_exit
s_load_dwordx2 s[42:43], s[0:1], 136
s_load_dwordx2 s[38:39], s[0:1], 120
s_and_b32 s{sXCD}, s2, 7
s_lshr_b32 s{sIDX}, s2, 3
v_lshrrev_b32 v3, 6, v0
v_and_b32 v{vLANE}, 63, v0
v_readfirstlane_b32 s{sW}, v3""")
    ka.stamp0_issue(P,diag)
def srds(P,diag):
    P.I("s_waitcnt lgkmcnt(0)"); ka.stamp0_commit(P,diag)
    P.extend(mksrd(rWS,42,WS_USED)); P.extend(mksrd(rOUT,38,2097152))

def c_maps():
    return f"""s_lshr_b32 s{sT0}, s{sXCD}, 2
s_lshl_b32 s{sT0}, s{sT0}, 5
s_and_b32 s{sT1}, s{sIDX}, 28
s_add_u32 s{sT0}, s{sT0}, s{sT1}
s_add_u32 s{sT0}, s{sT0}, s{sW}
s_and_b32 s{sT1}, s{sXCD}, 3
s_and_b32 s{sT3}, s{sIDX}, 3
s_lshl2_add_u32 s{sT2}, s{sT1}, s{sT3}
s_lshl_b32 s{sXB}, s{sT0}, 15
s_add_u32 s{sXB}, s{sXB}, {WS_X1B}
s_mul_i32 s{sWB}, s{sT2}, {231*1024}
s_add_u32 s{sWB}, s{sWB}, {WS_WPF}
s_mul_i32 s{sXM}, s{sW}, {NS*1024}
s_mul_i32 s{sAB}, s{sT0}, 112
s_mul_i32 s{sT2}, s{sT2}, 7
s_add_u32 s{sAB}, s{sAB}, s{sT2}
s_lshl_b32 s{sAB}, s{sAB}, 10
s_add_u32 s{sAB}, s{sAB}, {WS_ACT}
s_lshr_b32 s{sFL}, s{sT0}, 1
s_lshl2_add_u32 s{sFL}, s{sFL}, s{sT1}
s_lshl_b32 s{sFL}, s{sFL}, 7
s_and_b32 s{sT0}, s{sT0}, 1
s_lshl2_add_u32 s{sT0}, s{sT0}, s{sT3}
s_lshl2_add_u32 s{sFL}, s{sT0}, s{sFL}
s_add_u32 s{sFL}, s{sFL}, {WS_FLAG}""".split('\n')
def d_maps():
    return f"""s_lshr_b32 s{sT1}, s{sIDX}, 3
s_lshl2_add_u32 s{sT2}, s{sXCD}, s{sT1}
s_and_b32 s{sT1}, s{sIDX}, 7
s_mul_i32 s{sT3}, s{sW}, {28*1024}
s_mul_i32 s{sA0}, s{sT2}, {224*1024}
s_add_u32 s{sA0}, s{sA0}, s{sT3}
s_add_u32 s{sA0}, s{sA0}, {WS_ACT}
s_mul_i32 s{sD0}, s{sT1}, {224*1024}
s_add_u32 s{sD0}, s{sD0}, s{sT3}
s_add_u32 s{sD0}, s{sD0}, {WS_WDF}
s_lshl2_add_u32 s{sPL}, s{sT2}, s{sW}
s_lshl_b32 s{sPL}, s{sPL}, 7
s_add_u32 s{sPL}, s{sPL}, {WS_FLAG}
s_lshl_b32 s{sNT}, s{sT2}, 1
s_and_b32 s{sT3}, s{sW}, 1
s_lshl_b32 s{sT3}, s{sT3}, 1
s_lshl2_add_u32 s{sMT}, s{sT1}, s{sT3}
s_lshr_b32 s{sT3}, s{sW}, 1
s_add_u32 s{sMT}, s{sMT}, s{sT3}""".split('\n')

class Stream:
    def __init__(s, base, tmp): s.base=base; s.tmp=tmp; s.cur=None
    def at(s, off):
        L=[]
        if s.cur is None or not (0<=off-s.cur<4096):
            s.cur=off; L.append(f"s_add_u32 s{s.tmp}, s{s.base}, {off}")
        return L, f"s{s.tmp} offen offset:{off-s.cur}"
def d_order(NA):
    p1=[7*jj+mt for jj in range(4) for mt in range(NA)]; p2=[7*jj+mt for jj in range(4) for mt in range(NA,7)]
    return p1,p2
def wd_load_list(NA,LD=''):
    p1,p2=d_order(NA); S=[Stream(sD0,34),Stream(sD0,35)]; L=[]
    for f in p1+p2:
        for m in range(2):
            pre,o=S[m].at(m*112*1024+f*1024)
            L.append(pre+[f"buffer_load_dwordx4 {ar(8*f+4*m,4)}, v{vL16}, {sp(rWS,4)}, {o} {LD}"])
    return L
AX,AG=240,224
vXA,vPA,vPV,vONE1=253,254,252,251
def cost(x):
    s=x[0] if isinstance(x,tuple) else x
    o=s.split()[0]
    return 2 if (o in TRANS or o=='s_barrier') else 1

class RawWd:
    def __init__(s, order, srd, vsrc, sbase, stmp, pol=''):
        s.todo=list(order); s.flying=[]; s.done=set(); s.srd=srd; s.vsrc=vsrc; s.sbase=sbase; s.stmp=stmp; s.half=0; s.chalf=0; s.pol=pol; s.n=0
    def area(s, slots):
        assert not s.half
        s.slots=list(slots); s.n=0
    def issue_half(s, now):
        f=s.todo[0]; sl=s.slots[s.n%len(s.slots)]; u=s.half
        assert all(x[1]!=sl for x in s.flying)
        L=[f"s_add_u32 m0, s{sl[0]}, {sl[1]+u*1024}", f"s_add_u32 s{s.stmp}, s{s.sbase}, {f*16384+u*8192}",
           (f"buffer_load_dwordx4 v{s.vsrc}, {sp(s.srd,4)}, s{s.stmp} offen {s.pol} lds", f"rw{f}")]
        s.half^=1
        if not s.half: s.todo.pop(0); s.flying.append((f,sl,now)); s.n+=1
        return L
    def convert_half(s):
        f,sl,_=s.flying[0]; m=s.chalf
        L=([f"@wait rw{f}"] if m==0 else [])+[f"ds_read_b64_tr_b16 {ar(8*f+4*m+2*hf,2)}, v{sl[2][m]} offset:{sl[3]+hf*512}" for hf in range(2)]
        s.chalf^=1
        if not s.chalf: s.flying.pop(0); s.done.add(f)
        return L

class PhaseC:
    def __init__(s, cfg):
        s.cfg=cfg
        seq=[(t,ks) for ks in range(32) for t in range(G1)]
        AUXAT=cfg.get('AUXAT',16-G1)
        t3=[(G1,ks) for ks in range(33)]
        seq+= t3[:AUXAT]+[(t,32) for t in range(G1)]+t3[AUXAT:]
        for t in range(G1+1,7): seq+=[(t,ks) for ks in range(33)]
        s.seq=seq; s.N=N=len(seq); assert N==231
        s.P1=32*G1
        b=cfg.get('STG') or ([0,8,16]+list(range(32,232,16))+[232])
        s.bounds=b; s.nst=len(b)-1
        for q in range(s.nst):
            assert sorted(s.gpos(*x) for x in seq[b[q]:b[q+1]])==list(range(b[q],min(b[q+1],N))), q
            assert b[q]//RING==(b[q+1]-1)//RING
        s.QR={c:sQ+2*i for i,c in enumerate(sorted({(b[q+1]-b[q])//4 for q in range(s.nst)}))}
        s.LOOK=cfg.get('LOOK',6); s.XL=cfg.get('XL',6)
        s.mem=[]; s.m0=None; s.now=-1
        for q in range(s.nst):
            gate=-1
            if b[q+1]>RING: gate=max(z for z in range(s.nst) if b[z]<b[q+1]-RING)+2
            for u in range((b[q+1]-b[q])//4): s.mem.append((max(b[q]-s.LOOK,0),gate,('w',q,u)))
        XG=cfg.get('XGRP',2)
        for ks in range(32): s.mem.append((max(G1*(ks-ks%XG)-s.XL,0),-1,('x',ks)))
        s.mem.sort(key=lambda e:e[0])
    def gpos(s,t,ks): return (G1*ks+t) if t<G1 else 33*t+ks
    def setup(s):
        L=[]
        for c,r in s.QR.items(): L+=[f"s_mul_i32 s{r}, s{sW}, {c*1024}", f"s_add_u32 s{r+1}, s{r}, s{sWB}"]
        L+=f"""v_lshlrev_b32 v{vL16}, 4, v{vLANE}
v_lshrrev_b32 v8, 5, v{vLANE}
v_bfe_u32 v9, v{vLANE}, 2, 2
v_lshl_add_u32 v8, v8, 3, v9
v_bfe_u32 v9, v{vLANE}, 4, 1
v_lshl_add_u32 v8, v8, 1, v9
v_and_b32 v10, 3, v{vLANE}
v_lshl_add_u32 v8, v8, 2, v10
v_lshl_add_u32 v{vXA}, v8, 3, s{sXM}
v_add_u32 v3, {L_RING}, v{vL16}
v_add_u32 v7, {L_RING+0x10000}, v{vL16}
v_and_b32 v8, 31, v{vLANE}
v_and_b32 v10, 32, v{vLANE}
v_lshlrev_b32 v10, 4, v10
v_lshl_add_u32 v8, v8, 2, v10
v_add_u32 v249, {L_RING}, v8
v_add_u32 v250, {L_RING+0x10000}, v8
v_and_b32 v8, 15, v{vLANE}
v_cmp_eq_u32 vcc, v8, v9
v_mov_b32 v10, 0x3f803f80
v_and_b32 v{vPA}, 7, v{vLANE}
v_lshlrev_b32 v{vPA}, 2, v{vPA}
v_cndmask_b32 v56, 0, v10, vcc
v_cndmask_b32 v57, 0, v10, vcc
v_cndmask_b32 v58, 0, v10, vcc
v_cndmask_b32 v59, 0, v10, vcc""".split('\n')
        return L
    def memop(s,e):
        if e[0]=='w':
            _,q,u=e; c=(s.bounds[q+1]-s.bounds[q])//4; key=('w',q,u//4); u0=u-u%4
            pre=[f"s_add_u32 m0, s{s.QR[c]}, {L_RING+(s.bounds[q]%RING+u0)*1024}", f"s_add_u32 s{sT0}, s{s.QR[c]+1}, {(s.bounds[q]+u0)*1024}"]
            tag=f"w{q}"; off=(u%4)*1024; ld=s.cfg.get('WLD','')
        else:
            ks=e[1]; key=('x',ks//4); k0=ks-ks%4
            assert ks<NS or s.now>=G1*(ks-NS), (ks,s.now)
            pre=[f"s_add_u32 m0, s{sXM}, {L_XS+(k0%NS)*1024}", f"s_add_u32 s{sT0}, s{sXB}, {k0*1024}"]
            tag=f"x{ks}"; off=(ks%4)*1024; ld=s.cfg.get('XLD','')
        L=[] if s.m0==key else pre
        s.m0=key
        return L+[(f"buffer_load_dwordx4 v{vL16}, {sp(rWS,4)}, s{sT0} offen offset:{off} {ld} lds",tag)]
    def pre(s,P,n,kinds='wx'):
        k=0
        while n>0 and k<len(s.mem):
            if s.mem[k][2][0] in kinds and s.mem[k][1]<0: P.extend(s.memop(s.mem.pop(k)[2])); n-=1
            else: k+=1
    def run(s,P,diag,wd,extra_side,raw=None):
        cfg=s.cfg; seq=s.seq; N=s.N; bounds=s.bounds; mem=s.mem; LOOK=s.LOOK; XL=s.XL; P1=s.P1
        ST='sc1'; NA=cfg.get('NA',4)
        X0=120
        xr=lambda ks: vr(X0+4*ks,4) if ks<32 else vr(44,4)
        NACC=4; ACC=[72,88,104,56]
        WF=[20+4*i for i in range(6)]; NWF=6
        SQ,SM,ONE,SQ2=48,52,56,16
        C0,C1,IR2=4,5,6; TA=8
        RA=[3,7]; RA2=[249,250]
        def rd(n):
            pos=(s.gpos(*seq[n])%RING)*1024
            if seq[n][1]==32:
                return [(f"ds_read_b32 v{WF[n%NWF]+q}, v{RA2[pos>>16]} offset:{(pos&0xffff)+128*q}", f"r{n}") for q in range(4)]
            return [(f"ds_read_b128 {vr(WF[n%NWF],4)}, v{RA[pos>>16]} offset:{pos&0xffff}", f"r{n}")]
        def xrd(ks): return [f"@wait x{ks}"]+[f"ds_read_b64_tr_b16 {vr(X0+4*ks+2*hf,2)}, v{vXA} offset:{L_XS+(ks%NS)*1024+hf*256}" for hf in range(2)]
        accof=lambda t: ACC[t%NACC]
        EW=cfg.get('EW',4)
        def epi(t):
            a=accof(t); L=[]
            for g in range(8//EW):
                ia=list(range(EW*g,EW*g+EW)); T=TA
                L+=[f"v_mul_f32 v{T+k}, v{a+i}, v{a+i}" for k,i in enumerate(ia)]
                L+=[f"v_fma_f32 v{T+k}, v{T+k}, v{C1}, v{C0}" for k,i in enumerate(ia)]
                L+=[f"v_mul_f32 v{T+k}, v{T+k}, v{a+i}" for k,i in enumerate(ia)]
                for k,i in enumerate(ia): L+=[f"v_exp_f32 v{T+k}, v{T+k}", f"v_mul_f32 v{a+8+i}, v{a+i}, v{a+8+i}"]
                for k,i in enumerate(ia):
                    L+=[f"v_fma_f32 v{a+i}, v{T+k}, v{IR2}, v{IR2}"]
                    if k: L+=[f"v_rcp_f32 v{a+i-1}, v{a+i-1}"]
                L+=[f"v_mul_f32 v{a+8+ia[0]}, v{a+8+ia[0]}, v{a+ia[0]}", f"v_rcp_f32 v{a+ia[-1]}, v{a+ia[-1]}"]
                L+=[f"v_mul_f32 v{a+8+i}, v{a+8+i}, v{a+i}" for i in ia[1:]]
                L+=[f"v_cvt_pk_bf16_f32 v{16+i//2}, v{a+8+i}, v{a+9+i}" for i in ia[::2]]
            L.append((f"buffer_store_dwordx4 v[16:19], v{vL16}, {sp(rWS,4)}, s{sAB} offen offset:{(t%4)*1024} {ST}",f'act{t}'))
            if t==3: L.append(f"s_add_u32 s{sAB}, s{sAB}, 4096")
            return L
        if cfg.get('NOTRANS'):
            e0=epi; epi=lambda t:[y for x in e0(t) for y in ([x.replace('v_exp_f32','v_mov_b32').replace('v_rcp_f32','v_mov_b32')]*2 if isinstance(x,str) and x.split()[0] in TRANS else [x])]
        if cfg.get('NOEPI'):
            e1=epi; epi=lambda t:[x for x in e1(t) if not (isinstance(x,str) and x.startswith('v_'))]
        k0=-2*0.7978845608028654*1.4426950408889634; k1=k0*0.044715
        fin=f"""v_and_b32 v11, 15, v{vLANE}
v_lshlrev_b32 v11, 2, v11
v_and_b32 v8, 3, v{vLANE}
v_cmp_eq_u32 vcc, 1, v8
v_cmp_eq_u32 {sp(sT2)}, 2, v8
v_and_b32 v10, 16, v{vLANE}
ds_bpermute_b32 v12, v11, v{SM}
ds_bpermute_b32 v13, v11, v{SM+1}
v_add_f32 v{SQ}, v{SQ}, v{SQ2}
v_add_f32 v{SQ+1}, v{SQ+1}, v{SQ2+1}
v_add_f32 v{SQ+2}, v{SQ+2}, v{SQ2+2}
v_add_f32 v{SQ+3}, v{SQ+3}, v{SQ2+3}
v_cndmask_b32 v9, v{SQ}, v{SQ+1}, vcc
v_cmp_eq_u32 vcc, 3, v8
v_cndmask_b32 v9, v9, v{SQ+2}, {sp(sT2)}
v_cmp_eq_u32 {sp(sT2)}, 0, v10
v_cndmask_b32 v9, v9, v{SQ+3}, vcc
v_mov_b32 v8, v9
v_nop
v_nop
v_permlane32_swap_b32 v8, v9
v_add_f32 v9, v8, v9
v_mul_f32 v9, 0x3b000000, v9
v_cndmask_b32 v12, v13, v12, {sp(sT2)}
v_mul_f32 v12, 0x3b000000, v12
v_fma_f32 v9, -v12, v12, v9
v_max_f32 v9, 0, v9
v_cvt_pk_bf16_f32 v9, v9, v9
v_and_b32 v9, 0xffff0000, v9
v_add_f32 v9, 0x3727c5ac, v9
v_cvt_pk_bf16_f32 v9, v9, v9
v_and_b32 v9, 0xffff0000, v9
v_sqrt_f32 v9, v9
v_nop
v_cvt_pk_bf16_f32 v44, -v12, v9
v_and_b32 v9, 0xffff0000, v44
v_mov_b32 v45, v44
v_rcp_f32 v8, v9
v_mov_b32 v46, v44
v_mov_b32 v47, v44
v_mul_f32 v{IR2}, v9, v9
v_mul_f32 v{C0}, {hex(f32(k0))}, v8
v_mul_f32 v10, v8, v8
v_mul_f32 v{C1}, {hex(f32(k1))}, v8
v_mul_f32 v{C1}, v{C1}, v10""".split('\n')
        done_at={}
        for n,(t,ks) in enumerate(seq):
            if ks==32: done_at[t]=n
        side=[(0,x) for x in extra_side]+[(P1,x) for x in fin]
        for t in range(6): side+=[(done_at[t]+3,x) for x in epi(t)]
        RX=cfg.get('RXAT',P1+40)
        blocks={RX:[f"s_lshl_b32 s{sT1}, s{sNT}, 5",f"s_add_u32 s{sT1}, s{sT1}, s{sMT}",f"s_lshl_b32 s{sT1}, s{sT1}, 10",f"s_add_u32 s{sT1}, s{sT1}, {WS_X1B}"],
                RX+1:['@m0',f"s_add_u32 m0, s{sXM}, {L_XS}",f"s_add_u32 s{sT4}, s{sT1}, {32768-1024}",(f"buffer_load_dwordx4 v{vL16}, {sp(rWS,4)}, s{sT1} offen {cfg.get('XLD','')} lds",'rx'),
                      (f"buffer_load_dwordx4 v{vL16}, {sp(rWS,4)}, s{sT4} offen offset:1024 {cfg.get('XLD','')} lds",'rx')],
                RX+3:[f"s_lshl_b32 s{sT1}, s{sMT}, 6",f"s_add_u32 s{sT1}, s{sT1}, {WS_GBF}",f"v_and_b32 v{vPV}, 32, v{vLANE}"],
                RX+4:[f"buffer_load_dwordx4 {ar(AG+4*q,4)}, v{vPV}, {sp(rWS,4)}, s{sT1} offen offset:{16*q} {cfg.get('WLD','')}" for q in range(2)],
                RX+44:["@wait rx"]+[f"ds_read_b64_tr_b16 {ar(AX+2*q,2)}, v{vXA} offset:{L_XS+(q>>1)*1024+(q&1)*256}" for q in range(4)],
                N-cfg.get('POLLB',8):[f"buffer_load_dword v{vPV}, v{vPA}, {sp(rWS,4)}, s{sPL} offen sc1"]}
        flagblk=[f"@wait act{NA-1}","s_mov_b64 exec, 1",f"buffer_store_dword v{vONE1}, v{vL16}, {sp(rWS,4)}, s{sFL} offen sc1","s_mov_b64 exec, -1"]
        flag_at=None
        opened=[-1]
        def emit(L):
            c=0
            for x in L:
                if x=='@m0': s.m0=None; continue
                P.extend([x]); c+=cost(x)
            return c
        def force(pred):
            c=0
            while any(pred(e[2]) for e in mem):
                assert mem[0][1]<=opened[0], mem[0]
                c+=emit(s.memop(mem.pop(0)[2]))
            return c
        def open_stage(q):
            c=force(lambda e: e[0]=='w' and e[1]==q)
            opened[0]=q
            c+=emit([f"@wait w{q}","s_barrier"])
            if cfg.get('SSTAMP'): stamp(P,(2+q if q<10 else 9+q),diag)
            return c
        xnext=0
        open_stage(0)
        while G1*xnext<XL: force(lambda e: e==('x',xnext)); emit(xrd(xnext)); xnext+=1
        for n in range(LOOK): P.extend(rd(n))
        DIST=cfg.get('DIST',24); DIST2=cfg.get('DIST2',48); WB=cfg.get('WB',3)
        started=set(); mb=0.0; wdb=0.0
        P.I("@mark c1")
        for n,(t,ks) in enumerate(seq):
            a=accof(t)
            if n==P1: P.I("@mark c2")
            if t>=NACC and ks==0:
                while side and side[0][0]<=done_at[t-NACC]+3: emit([side.pop(0)[1]])
            if ks==32 and t==0:
                while side and side[0][0]<=P1: emit([side.pop(0)[1]])
            if n%WB==0: P.I(f"@wait r{min(n+WB-1,N-1)}")
            P.I(f"v_mfma_f32_32x32x16_bf16 {vr(a,16)}, {vr(WF[n%NWF],4)}, {xr(ks)}, {vr(a,16) if t in started else 0}"); started.add(t)
            s.now=n
            free=cfg.get('CAP',6)-((n+1)%WB==0)
            if xnext<32 and G1*xnext-XL<=n:
                free-=force(lambda e: e==('x',xnext)); free-=emit(xrd(xnext)); xnext+=1
            m=n+LOOK
            if m<N:
                if m in bounds: free-=open_stage(bounds.index(m))
                free-=emit(rd(m))
            used=False
            if n in blocks: free-=emit(blocks.pop(n)); used=True
            elif flag_at is not None and n>=flag_at and flagblk and free>=4: free-=emit(flagblk); flagblk=None; used=True
            rate = cfg.get('RATE1',0.9) if n<P1 else cfg.get('RATE2',0.5)
            mb=min(mb+rate,1.0+rate)
            if not used and mem and mb>=1 and mem[0][0]-(DIST if n<P1 else DIST2)<=n and mem[0][1]<=opened[0] and (free>=3 or n<P1) and (mem[0][2][0]=='w' or n>=G1*(mem[0][2][1]-NS)):
                free-=emit(s.memop(mem.pop(0)[2])); used=True; mb-=1
            if raw:
                if raw.flying and n>=raw.flying[0][2]+cfg.get('RAWD',40) and free>=3: free-=emit(raw.convert_half())
                if not used and raw.todo and len(raw.flying)<len(raw.slots) and cfg.get('WDFROM',P1+4)<=n<N-cfg.get('RAWD',40):
                    wdb=min(wdb+cfg.get('WDPER',0.2),2)
                    if wdb>=1 and mb>=1 and free>=3: free-=emit(['@m0']+raw.issue_half(n)); wdb-=1; mb-=1
            if not used and wd and n>=cfg.get('WDFROM',P1+4):
                wdb=min(wdb+cfg.get('WDPER',0.2),2)
                if wdb>=1 and mb>=1 and free>=2: free-=emit(wd.pop(0)); wdb-=1; mb-=1
            while side and side[0][0]<=n and cost(side[0][1])<=free:
                x=side.pop(0)[1]; free-=emit([x])
                if isinstance(x,tuple) and x[1]==f'act{NA-1}': flag_at=n+cfg.get('FLAGD',30)
            if n<P1 and t==G1-1:
                x=X0+4*ks
                P.I(f"v_mfma_f32_4x4x4_16b_bf16 {vr(SQ,4)}, {vr(x,2)}, {vr(x,2)}, {vr(SQ,4) if ks else 0}")
                P.I(f"v_mfma_f32_4x4x4_16b_bf16 {vr(SQ2,4)}, {vr(x+2,2)}, {vr(x+2,2)}, {vr(SQ2,4) if ks else 0}")
                P.I(f"v_mfma_f32_16x16x32_bf16 {vr(SM,4)}, {vr(ONE,4)}, {vr(x,4)}, {vr(SM,4) if ks else 0}")
            if n==P1-1: stamp(P,12,diag)
        P.I("@mark end")
        assert not flagblk and not blocks and not mem
        print('phase C: side left', len(side), 'flag at', flag_at, 'Wd left', len(wd), 'raw todo/flying', (len(raw.todo),len(raw.flying),raw.half,raw.chalf) if raw else None)
        stamp(P,13,diag)
        return [x for _,x in side]+epi(6)

def poll_check(P, name, need=None, diag=None, vPV=vPV):
    P.I(f"""L_{name}_chk:
v_cmp_ne_u32 vcc, v{vONE1}, v{vPV}
s_cbranch_vccnz L_{name}_retry
L_{name}_ok:""")
def poll_retry(P, name, off, vPV=vPV, vPA=vPA, sPL=sPL):
    P.I(f"""L_{name}_retry:
s_add_u32 s{sCNT}, s{sCNT}, 1
s_cmp_gt_u32 s{sCNT}, 40000
s_waitcnt vmcnt(0) lgkmcnt(0)
s_cbranch_scc1 L_{name}_ok
buffer_load_dword v{vPV}, v{vPA}, {sp(rWS,4)}, s{sPL} offen offset:{off} sc1
s_waitcnt vmcnt(0)
s_branch L_{name}_chk""")

def phase_d(P, cfg, diag, wd, ctail, raw=None):
    NA=cfg.get('NA',4); p1,p2=d_order(NA)
    ACC=[[120,136],[152,168]]
    BUF=[184+4*i for i in range(16)]+[20+4*i for i in range(6)]
    NB=len(BUF)
    work=[(f,n) for f in p1 for n in range(2)]+[(f,0) for f in p2]+[(f,1) for f in p2]
    n1=2*len(p1); nA=n1+len(p2)
    S=[Stream(sA0,36),Stream(sA0,37)]
    order=p1+p2
    nwd0=56-len(wd)
    def load(k):
        nonlocal nwd0
        f,n=work[k]; L=[]
        while wd and nwd0<2*order.index(f)+2: L+=wd.pop(0); nwd0+=1
        pre,o=S[n].at(n*112*1024+f*1024)
        return L+pre+[f"buffer_load_dwordx4 {vr(BUF[k%NB],4)}, v{vL16}, {sp(rWS,4)}, {o} sc1"]
    AH=cfg.get('DAHEAD',14); assert AH<=NB
    poll_check(P,'p1',1,diag)
    stamp(P,14,diag)
    li=0; per=max(1,len(ctail)//AH)
    while ctail or li<AH:
        if li<AH: P.extend(load(li)); li+=1
        P.extend(ctail[:per]); ctail=ctail[per:]
    stamp(P,15,diag)
    P.I(f"v_add_u32 v3, s{sXM}, v{vL16}")
    started=set(); fl2=cfg.get('FL2',AH-4); pl2=n1-AH-cfg.get('PL2',6)
    assert fl2<pl2
    wr0=[f"ds_write_b128 v3, {vr(ACC[0][k&1]+8*((k>>1)&1)+4*(k>>2),4)} offset:{L_XS+(k&3)*2048+(k>>2)*1024}" for k in range(8)]
    wr1=[f"ds_write_b128 v3, {vr(ACC[1][k&1]+8*((k>>1)&1)+4*(k>>2),4)} offset:{L_XS+8192+(k&3)*2048+(k>>2)*1024}" for k in range(8)]
    for k,(f,n) in enumerate(work):
        if raw:
            while raw.flying and (k>=raw.flying[0][2]-1000+AH): P.extend(raw.convert_half())
            assert f in raw.done, (k,f)
            assert k<=nA or not (raw.todo or raw.flying)
        for m in range(2):
            a=vr(ACC[n][m],16)
            P.I(f"v_mfma_f32_32x32x16_bf16 {a}, {ar(8*f+4*m,4)}, {vr(BUF[k%NB],4)}, {a if (n,m) in started else 0}"); started.add((n,m))
        if k==fl2: P.I(f"@wait act6\ns_mov_b64 exec, 1\nbuffer_store_dword v{vONE1}, v{vL16}, {sp(rWS,4)}, s{sFL} offen offset:64 sc1\ns_mov_b64 exec, -1")
        if k==pl2: P.I(f"buffer_load_dword v{vPV}, v{vPA}, {sp(rWS,4)}, s{sPL} offen offset:64 sc1")
        if li==n1: poll_check(P,'p2',2,diag); stamp(P,16,diag)
        if li<len(work): P.extend(load(li)); li+=1
        if raw and raw.todo and len(raw.flying)<len(raw.slots): P.extend(raw.issue_half(1000+k))
        if k>nA+1 and wr0: P.I(wr0.pop(0))
    P.extend(wr0)
    stamp(P,17,diag)
    GB=44; XF=52; R=[184,216]
    P.I(f"""s_lshl_b32 s{sT0}, s{sW}, 11
v_add_u32 v4, s{sT0}, v{vL16}
s_lshl_b32 s{sT0}, s{sNT}, 15
s_lshl_b32 s{sT1}, s{sMT}, 5
s_add_u32 s{sT0}, s{sT0}, s{sT1}
s_add_u32 s{sT1}, s{sT0}, 32768
s_waitcnt lgkmcnt(0)
s_barrier""")
    def reads(n): return [f"ds_read_b128 {vr(R[n]+8*w+4*q,4)}, v4 offset:{L_XS+w*NS*1024+n*8192+q*1024}" for w in range(4) for q in range(2)]
    def final(n):
        r=R[n]; L=[]
        for k in range(0,8,2): L+=[f"v_pk_add_f32 {vr(r+k,2)}, {vr(r+k,2)}, {vr(r+8+k,2)}"]
        for k in range(0,8,2): L+=[f"v_pk_add_f32 {vr(r+16+k,2)}, {vr(r+16+k,2)}, {vr(r+24+k,2)}"]
        for k in range(0,8,2): L+=[f"v_pk_add_f32 {vr(r+k,2)}, {vr(r+k,2)}, {vr(r+16+k,2)}"]
        for k in range(0,8,2): L+=[f"v_pk_fma_f32 {vr(r+k,2)}, {vr(r+k,2)}, {vr(GB+k,2)}, {vr(XF+8*n+k,2)}"]
        for k in range(0,8,2): L+=[f"v_cvt_pk_bf16_f32 v{8+4*n+k//2}, v{r+k}, v{r+k+1}"]
        L.append(f"buffer_store_dwordx4 {vr(8+4*n,4)}, v5, {sp(rOUT,4)}, s{sT0+n} offen")
        return L
    P.extend(reads(0))
    fill=[f"v_and_b32 v5, 31, v{vLANE}", f"v_lshrrev_b32 v6, 5, v{vLANE}", f"v_lshlrev_b32 v5, 10, v5", f"v_lshl_add_u32 v5, v6, 4, v5"]
    fill+=[f"v_accvgpr_read_b32 v{GB+k}, a{AG+k}" for k in range(8)]
    for k in range(8): fill+=[f"v_accvgpr_read_b32 v{XF+2*k+1}, a{AX+k}"]
    for k in range(8): fill+=[f"v_lshlrev_b32 v{XF+2*k}, 16, v{XF+2*k+1}", f"v_and_b32 v{XF+2*k+1}, 0xffff0000, v{XF+2*k+1}"]
    for k in range(8):
        P.I(wr1[k]); P.extend(fill[:5]); fill=fill[5:]
    P.extend(fill)
    P.I("s_waitcnt lgkmcnt(0)\ns_barrier")
    P.extend(reads(1)); P.extend(final(0)); P.extend(final(1))

def build(P, diag, cfg):
    n='kc_kernel'
    C=PhaseC(cfg)
    entry(P,n,diag); P.extend(c_maps()); P.extend(C.setup())
    srds(P,diag); stamp(P,1,diag)
    C.pre(P,cfg.get('PRE',16))
    wd=wd_load_list(cfg.get('NA',4))
    extra=d_maps()+[f"s_mov_b32 s{sCNT}, 1",f"v_mov_b32 v{vONE1}, 1"]
    P.extend(extra)
    tail=C.run(P,diag,wd,[])
    phase_d(P,cfg,diag,wd,tail)
    if diag: P.I(f"v_writelane_b32 v255, s{sCNT}, 31")
    stamp(P,18,diag); stamp_out(P,1,diag)
    P.I(f"L_{n}_exit:\ns_endpgm")
    poll_retry(P,'p1',0); poll_retry(P,'p2',64)
    return [(n,256,256,LDS_C,512)]
```

```python
WS_EPOCH = 0x0
WS_GBF   = 0x1000
WS_SG    = 0x10000
WS_MG    = 0x80000
WS_FLAG  = 0x20000
WS_FX    = 0x50000
WS_FW    = 0xC0000
WS_FD    = 0xE0000
WS_XG    = 0x100000
WS_X1B   = 0x400000
WS_WPF   = 0x600000
WS_WDF   = 0xA00000
WS_ACT   = 0xC00000
WS_STAMP = 0x1400000
WS_USED  = 0x2000000
L_C  = 0
CP   = 80
L_CZ = 3840
FP   = 544
L_F  = 4096
L_Y  = 4096
L_KI = 73728
KIP  = 4160
L_RR = L_KI
L_MR = L_RR+16384
L_H  = 107008
HP   = 4608
L_WR = 116224
L_SC = 132608
L_GT = 132864
L_DR = 133632
LDS_A = 141824
HI = [c+128*e for e in range(2) for c in range(8)] + [256+2*c+128*e for e in range(2) for c in range(4)] + [512+4*c+128*e for e in range(4) for c in range(2)] + [1024+128*e for e in range(8)] + [2048]
import os
G1 = int(os.environ.get('G1','2'))
```

```python
from prog import *
from layout import *
import ka, kc
from ka import sp, vr, mksrd, stamp, stamp_out, rWS, rWJ, rOUT, sW, sTAG, sP, sIDX, sXCD, sFS, sT0, sT1, sT2, sT3
NAME='adaLN_cond__ssm_conv_s4__geglu_ffn__prompt_kernel'
sFXo,sFDo,sFXi,sFDi = 40,41,99,93
vTG=251; vFV,vFA,vFB=247,246,252
T4=248
def build(P, diag, cfg):
    cfg=dict(cfg); cfg.update(XST='sc1',ST='sc1',WLD='sc1',XLD='sc1',WAT=3)
    C=kc.PhaseC(cfg)
    L=ka.vLANE
    def line(so, reg, r=rWS):
        return ["s_mov_b64 exec, 0xff", f"buffer_store_dwordx4 {vr(reg,4)}, v{ka.vL16}, {sp(r,4)}, s{so} offen sc1", "s_mov_b64 exec, -1"]
    H={}
    H['setup']=mksrd(rOUT,ka.sOUT,2097152)+f"""s_lshl_b32 s{sFXo}, s{sP}, 7
s_add_u32 s{sFXo}, s{sFXo}, {WS_FX}
s_lshl_b32 s{sFDo}, s{sFS}, 7
s_add_u32 s{sFDo}, s{sFDo}, {WS_FD}
v_min_u32 v{vFA}, 27, v{L}
v_lshlrev_b32 v{vFA}, 8, v{vFA}""".split('\n')
    def idle(P):
        for i in range(4): P.I(f"v_mov_b32 v{T4+i}, s{sTAG}")
        P.I(f"""s_bfe_u32 s{sT0}, s{sIDX}, 0x10002
s_mul_i32 s{sT1}, s{sW}, 56
s_add_u32 s{sT0}, s{sT0}, s{sT1}
s_lshl_b32 s{sT0}, s{sT0}, 7
s_add_u32 s{sFDi}, s{sT0}, {WS_FD}
s_cmp_lt_u32 s{sW}, 2
s_cbranch_scc1 L_warm
s_lshr_b32 s{sT0}, s{sP}, 1
s_lshl_b32 s{sT0}, s{sT0}, 7
s_add_u32 s{sT0}, s{sT0}, {WS_FLAG}
s_cmp_eq_u32 s{sW}, 2
s_cselect_b32 s{sT0}, s{sFXo}, s{sT0}""")
        for i in range(4): P.I(f"v_add_u32 v{4+i}, -1, v{T4}")
        P.I("s_waitcnt vmcnt(8)")
        P.extend(line(sT0,4))
        P.I("s_cbranch_scc1 L_main")
        P.extend(line(sFDo,4,rWJ))
        P.I("s_branch L_main\nL_warm:")
        if cfg.get('TOUCH',1):
            P.I(f"""s_cmp_eq_u32 s{sW}, 1
s_mov_b64 exec, 0
s_cbranch_scc1 L_touch1
s_branch L_touch0
L_touched:
s_mov_b64 exec, -1""")
        P.I("s_waitcnt vmcnt(8)\ns_branch L_main\n.p2align 12\nL_main:")
    H['idle']=idle; H['own_param_wait']=True
    H['midbar']=[f"s_cmp_lg_u32 s{sW}, 3","s_cbranch_scc1 L_nofd"]+line(sFDo,T4,rWJ)+["L_nofd:"]
    H['pre']=[f"buffer_load_dword v{vFV}, v{vFA}, {sp(rWS,4)}, s{sFDi} offen sc1"]
    H['extra0']=kc.d_maps()
    ka.body(P,NAME,diag,cfg,H)
    stamp(P,9,diag)
    wd=kc.wd_load_list(cfg.get('NA',4),'sc1')
    P.I(f"v_mov_b32 v{kc.vL16}, v{ka.vL16}\ns_mov_b32 s{kc.sCNT}, 1")
    kc.poll_check(P,'fd',vPV=vFV)
    stamp(P,22,diag)
    for i in range(cfg.get('WDA',8)): P.extend(wd.pop(0))
    P.I(f"s_cmp_lg_u32 s{sW}, 2\n@wait x1st\ns_barrier\ns_cbranch_scc1 L_nofx")
    P.extend(line(sFXo,T4))
    P.I(f"""s_cmp_lg_u32 s2, 0
s_cbranch_scc1 L_nofx
s_mov_b64 exec, 1
buffer_store_dword v{vTG}, v{ka.vL16}, {sp(rWS,4)}, {WS_EPOCH} offen
s_mov_b64 exec, -1
L_nofx:""")
    stamp(P,19,diag)
    fill=kc.c_maps()+C.setup()+[f"v_lshlrev_b32 v{vFA}, 7, v0", f"s_mov_b32 s{sFXi}, {WS_FX}"]
    nB=cfg.get('WDB',16)
    for i in range(nB):
        P.extend(wd.pop(0)); k=-(-len(fill)//(nB-i)); P.extend(fill[:k]); fill=fill[k:]
    P.extend(fill)
    P.I(f"buffer_load_dword v{vFV}, v{vFA}, {sp(rWS,4)}, s{sFXi} offen sc1")
    for i in range(cfg.get('WDC',6)): P.extend(wd.pop(0))
    stamp(P,20,diag)
    kc.poll_check(P,'fx',vPV=vFV)
    P.I("s_barrier")
    stamp(P,21,diag)
    C.pre(P,cfg.get('PRE',16))
    tail=C.run(P,diag,wd,[])
    kc.phase_d(P,cfg,diag,wd,tail)
    if diag: P.I(f"v_writelane_b32 v255, s{kc.sCNT}, 30")
    stamp(P,18,diag); stamp_out(P,0,diag)
    P.I(f"L_{NAME}_exit:\ns_endpgm\n@nomore")
    ka.retry_block(P)
    kc.poll_retry(P,'fd',0,vFV,vFA,sFDi); kc.poll_retry(P,'fx',0,vFV,vFA,sFXi)
    kc.poll_retry(P,'p1',0); kc.poll_retry(P,'p2',64)
    return [(NAME,256,256,kc.LDS_C,512)]
```

```python
from prog import *
from layout import *
from ka import sp, vr, mksrd, f32, stamp, stamp_out
import ka
rWS,rOUT = 64,68
sXCD,sIDX,sW = 72,73,75
sXB,sWB,sAB,sM0,sT0,sT1,sT2,sT3 = 76,77,78,79,80,81,82,83
sA0,sA1,sD0,sD1,sFL,sCNT,sX1,sK = 84,85,86,87,88,89,90,92
vLANE,vL16 = 1,2
RING=144
LDS_C=RING*1024
def entry(P,name,diag):
    P.I(f".globl {name}\n.p2align 8\n.type {name},@function\n{name}:\n@reset")
    P.I(f"""s_cmp_ge_u32 s2, 256
s_cbranch_scc1 L_{name}_exit
s_load_dwordx2 s[8:9], s[0:1], 136
s_load_dwordx2 s[10:11], s[0:1], 120
s_and_b32 s{sXCD}, s2, 7
s_lshr_b32 s{sIDX}, s2, 3
v_and_b32 v{vLANE}, 63, v0
v_lshrrev_b32 v3, 6, v0
v_lshlrev_b32 v{vL16}, 4, v{vLANE}
v_readfirstlane_b32 s{sW}, v3""")
    ka.stamp0_issue(P,diag)
def srds(P,diag):
    P.I("s_waitcnt lgkmcnt(0)"); ka.stamp0_commit(P,diag)
    P.extend(mksrd(rWS,8,WS_USED)); P.extend(mksrd(rOUT,10,2097152))

X=128
def c_maps(P):
    P.I(f"""s_lshr_b32 s{sT0}, s{sXCD}, 2
s_lshl_b32 s{sT0}, s{sT0}, 5
s_and_b32 s{sT1}, s{sIDX}, 28
s_add_u32 s{sT0}, s{sT0}, s{sT1}
s_add_u32 s{sT0}, s{sT0}, s{sW}
s_and_b32 s{sT1}, s{sXCD}, 3
s_lshl_b32 s{sT2}, s{sT1}, 2
s_and_b32 s{sT3}, s{sIDX}, 3
s_add_u32 s{sT2}, s{sT2}, s{sT3}
s_lshl_b32 s{sXB}, s{sT0}, 15
s_add_u32 s{sXB}, s{sXB}, {WS_X1F}
s_mul_i32 s{sWB}, s{sT2}, {7*33*1024}
s_add_u32 s{sWB}, s{sWB}, {WS_WPF}
s_mul_i32 s{sAB}, s{sT0}, 112
s_mul_i32 s{sT2}, s{sT2}, 7
s_add_u32 s{sAB}, s{sAB}, s{sT2}
s_lshl_b32 s{sAB}, s{sAB}, 10
s_add_u32 s{sAB}, s{sAB}, {WS_ACT}
s_lshr_b32 s{sFL}, s{sT0}, 1
s_lshl_b32 s{sFL}, s{sFL}, 2
s_add_u32 s{sFL}, s{sFL}, s{sT1}
s_lshl_b32 s{sFL}, s{sFL}, 7
s_and_b32 s{sT0}, s{sT0}, 1
s_lshl_b32 s{sT0}, s{sT0}, 2
s_add_u32 s{sT0}, s{sT0}, s{sT3}
s_lshl_b32 s{sT0}, s{sT0}, 2
s_add_u32 s{sFL}, s{sFL}, s{sT0}
s_add_u32 s{sFL}, s{sFL}, {WS_FLAG}""")
def d_maps(P):
    P.I(f"""s_lshl_b32 s{sT0}, s{sXCD}, 2
s_lshr_b32 s{sT1}, s{sIDX}, 3
s_add_u32 s{sT0}, s{sT0}, s{sT1}
s_and_b32 s{sT1}, s{sIDX}, 7
s_mul_i32 s{sT2}, s{sW}, {28*1024}
s_mul_i32 s{sA0}, s{sT0}, {224*1024}
s_add_u32 s{sA0}, s{sA0}, s{sT2}
s_add_u32 s{sA0}, s{sA0}, {WS_ACT}
s_add_u32 s{sA1}, s{sA0}, {112*1024}
s_mul_i32 s{sD0}, s{sT1}, {224*1024}
s_add_u32 s{sD0}, s{sD0}, s{sT2}
s_add_u32 s{sD0}, s{sD0}, {WS_WDF}
s_add_u32 s{sD1}, s{sD0}, {112*1024}
s_lshl_b32 s{sK}, s{sT0}, 2
s_add_u32 s{sK}, s{sK}, s{sW}
s_lshl_b32 s{sK}, s{sK}, 7
s_add_u32 s{sK}, s{sK}, {WS_FLAG}
s_lshl_b32 s{sX1}, s{sT0}, 1
s_lshr_b32 s{sT2}, s{sW}, 1
s_add_u32 s{sX1}, s{sX1}, s{sT2}
s_lshl_b32 s{sX1+1}, s{sT1}, 1
s_and_b32 s{sT2}, s{sW}, 1
s_add_u32 s{sX1+1}, s{sX1+1}, s{sT2}""")

def wd_load_list():
    L=[]
    for f in range(28):
        for m,s in ((0,sD0),(1,sD1)):
            a=8*f+4*m
            L.append(f"buffer_load_dwordx4 a[{a}:{a+3}], v{vL16}, {sp(rWS,4)}, s{s} offen offset:{(f%4)*1024}")
        if f%4==3 and f<27: L+= [f"s_add_u32 s{sD0}, s{sD0}, 4096", f"s_add_u32 s{sD1}, s{sD1}, 4096"]
    return L

def phase_c(P, cfg, diag, wd_side):
    ST=cfg.get('AST','sc1')
    xr=lambda ks: vr(124+4*ks,4) if ks<32 else vr(44,4)
    ACC=[60+16*i for i in range(4)]
    WF=[20+4*i for i in range(6)]; NWF=6
    SQ,SM,ONE,SQ2=48,52,56,16
    C0,C1,IR2=4,5,6; TA=8
    RA=[3,7,252]
    OUTR=[16,16]
    seq=[(t,ks) for ks in range(32) for t in range(G1)]
    AUXAT=cfg.get('AUXAT',10)
    t3=[(G1,ks) for ks in range(33)]
    seq+= t3[:AUXAT]+[(t,32) for t in range(G1)]+t3[AUXAT:]
    for t in range(G1+1,7): seq+=[(t,ks) for ks in range(33)]
    N=len(seq); assert N==231
    def gpos(t,ks): return (G1*ks+t) if t<G1 else 33*t+ks
    bounds=cfg.get('STG',[0,12,24,36,48,60,72,84,96,112,128,144,160,176,192,208,224,232])
    nst=len(bounds)-1
    for s in range(nst):
        assert sorted(gpos(*x) for x in seq[bounds[s]:bounds[s+1]])==list(range(bounds[s],min(bounds[s+1],N))), s
        assert bounds[s]//RING==(bounds[s+1]-1)//RING
    sizes_=sorted({(bounds[s+1]-bounds[s])//4 for s in range(nst)})
    QR={c:12+2*i for i,c in enumerate(sizes_)}
    for c,r in QR.items(): P.I(f"s_mul_i32 s{r}, s{sW}, {c*1024}\ns_add_u32 s{r+1}, s{r}, s{sWB}")
    stage_dma=[]
    for s in range(nst):
        c=(bounds[s+1]-bounds[s])//4; L=[]
        for u in range(c):
            if u%4==0: L+=[f"s_add_u32 m0, s{QR[c]}, {(bounds[s]%RING+u)*1024}", f"s_add_u32 s{sT0}, s{QR[c]+1}, {(bounds[s]+u)*1024}"]
            L.append((f"buffer_load_dwordx4 v{vL16}, {sp(rWS,4)}, s{sT0} offen offset:{(u%4)*1024} lds",f"w{s}"))
        stage_dma.append(L)
    def xload(ks):
        L=[f"buffer_load_dwordx4 {xr(ks)}, v{vL16}, {sp(rWS,4)}, s{sXB} offen offset:{(ks%4)*1024}"]
        if ks%4==3 and ks<31: L.append(f"s_add_u32 s{sXB}, s{sXB}, 4096")
        return L
    srds(P,diag)
    stamp(P,1,diag)
    LOOK=cfg.get('LOOK',5)
    mem=[]
    for s in range(nst):
        need=max(bounds[s]-LOOK,0)
        gate=-1
        if bounds[s+1]>RING:
            gate=max(q for q in range(nst) if bounds[q]<bounds[s+1]-RING)+2
        grp=[]
        for x in stage_dma[s]:
            grp.append(x)
            if isinstance(x,tuple): mem.append((need,gate,grp)); grp=[]
    for ks in range(32): mem.append((G1*ks,-1,xload(ks)))
    mem.sort(key=lambda e:e[0])
    DIST=cfg.get('DIST',30); PRE=cfg.get('PRE',14)
    for _ in range(PRE): P.extend(mem.pop(0)[2])
    P.I(f"""v_mov_b32 v{RA[0]}, v{vL16}
v_add_u32 v{RA[1]}, 0x10000, v{vL16}
v_add_u32 v{RA[2]}, 0x20000, v{vL16}
v_and_b32 v8, 15, v{vLANE}
v_bfe_u32 v9, v{vLANE}, 4, 1
v_cmp_eq_u32 vcc, v8, v9
v_mov_b32 v10, 0x3f803f80
v_cndmask_b32 v{ONE}, 0, v10, vcc
v_cndmask_b32 v{ONE+1}, 0, v10, vcc
v_cndmask_b32 v{ONE+2}, 0, v10, vcc
v_cndmask_b32 v{ONE+3}, 0, v10, vcc""")
    def rd(n):
        pos=(gpos(*seq[n])%RING)*1024
        return (f"ds_read_b128 {vr(WF[n%NWF],4)}, v{RA[pos>>16]} offset:{pos&0xffff}", f"r{n}")
    def accof(t): return ACC[t] if t<4 else ACC[t-4]
    EW=cfg.get('EW',4)
    def epi(t):
        a=accof(t); L=[]
        for g in range(8//EW):
            ia=list(range(EW*g,EW*g+EW)); T=TA
            L+=[f"v_mul_f32 v{T+k}, v{a+i}, v{a+i}" for k,i in enumerate(ia)]
            L+=[f"v_fma_f32 v{T+k}, v{T+k}, v{C1}, v{C0}" for k,i in enumerate(ia)]
            L+=[f"v_mul_f32 v{T+k}, v{T+k}, v{a+i}" for k,i in enumerate(ia)]
            for k,i in enumerate(ia): L+=[f"v_exp_f32 v{T+k}, v{T+k}", f"v_mul_f32 v{a+8+i}, v{a+i}, v{a+8+i}"]
            L+=[f"v_fma_f32 v{a+i}, v{T+k}, v{IR2}, v{IR2}" for k,i in enumerate(ia)]
            L+=[f"v_rcp_f32 v{a+i}, v{a+i}" for i in ia]
            tail =[f"v_mul_f32 v{a+8+i}, v{a+8+i}, v{a+i}" for i in ia]
            tail+=[f"v_cvt_pk_bf16_f32 v{16+i//2}, v{a+8+i}, v{a+9+i}" for i in ia[::2]]
            L+=tail
        L.append((f"buffer_store_dwordx4 v[16:19], v{vL16}, {sp(rWS,4)}, s{sAB} offen offset:{(t%4)*1024} {ST}",'act'))
        if t==3: L.append(f"s_add_u32 s{sAB}, s{sAB}, 4096")
        return L
    k0=-2*0.7978845608028654*1.4426950408889634; k1=k0*0.044715
    fin=f"""v_add_f32 v{SQ}, v{SQ}, v{SQ2}
v_add_f32 v{SQ+1}, v{SQ+1}, v{SQ2+1}
v_add_f32 v{SQ+2}, v{SQ+2}, v{SQ2+2}
v_add_f32 v{SQ+3}, v{SQ+3}, v{SQ2+3}
v_and_b32 v8, 3, v{vLANE}
v_cmp_eq_u32 vcc, 1, v8
v_cmp_eq_u32 {sp(sT2)}, 2, v8
v_and_b32 v10, 16, v{vLANE}
v_cndmask_b32 v9, v{SQ}, v{SQ+1}, vcc
v_cmp_eq_u32 vcc, 3, v8
v_cndmask_b32 v9, v9, v{SQ+2}, {sp(sT2)}
v_and_b32 v11, 15, v{vLANE}
v_cndmask_b32 v9, v9, v{SQ+3}, vcc
v_lshlrev_b32 v11, 2, v11
v_cmp_eq_u32 vcc, 0, v10
ds_bpermute_b32 v12, v11, v{SM}
ds_bpermute_b32 v13, v11, v{SM+1}
v_mov_b32 v8, v9
v_nop
v_nop
v_permlane32_swap_b32 v8, v9
v_add_f32 v9, v8, v9
v_mul_f32 v9, 0x3b000000, v9
v_cndmask_b32 v12, v13, v12, vcc
v_mul_f32 v12, 0x3b000000, v12
v_fma_f32 v9, -v12, v12, v9
v_max_f32 v9, 0, v9
v_cvt_pk_bf16_f32 v9, v9, v9
v_and_b32 v9, 0xffff0000, v9
v_add_f32 v9, 0x3727c5ac, v9
v_cvt_pk_bf16_f32 v9, v9, v9
v_and_b32 v9, 0xffff0000, v9
v_sqrt_f32 v9, v9
v_nop
v_cvt_pk_bf16_f32 v44, -v12, v9
v_and_b32 v9, 0xffff0000, v44
v_mov_b32 v45, v44
v_rcp_f32 v8, v9
v_mov_b32 v46, v44
v_mov_b32 v47, v44
v_mul_f32 v{IR2}, v9, v9
v_mul_f32 v{C0}, {hex(f32(k0))}, v8
v_mul_f32 v10, v8, v8
v_mul_f32 v{C1}, {hex(f32(k1))}, v8
v_mul_f32 v{C1}, v{C1}, v10""".split('\n')
    done_at={}
    for n,(t,ks) in enumerate(seq): done_at[t]=n if ks==32 else done_at.get(t,-1)
    first_at={}
    for n,(t,ks) in enumerate(seq): first_at.setdefault(t,n)
    side=[(96+1,x) for x in fin]
    for t in range(6): side+=[(done_at[t]+3,x) for x in epi(t)]
    marks={}
    PER=cfg.get('PER',4.0)
    def cost(x):
        s=x[0] if isinstance(x,tuple) else x
        return 2 if s.split()[0] in TRANS else 1
    opened=[-1]
    def open_stage(s):
        while mem and any(isinstance(q,tuple) and q[1]==f"w{s}" for e in mem for q in e[2]):
            assert mem[0][1]<=opened[0]; P.extend(mem.pop(0)[2])
        P.I(f"@wait w{s}\ns_barrier"); opened[0]=s
    open_stage(0)
    for n in range(LOOK): P.extend([rd(n)])
    budget=0.0; mb=0.0; started=set(); wd_from=cfg.get('WDFROM',100); wd_per=cfg.get('WDPER',0.3); wdb=0.0
    for n,(t,ks) in enumerate(seq):
        a=accof(t)
        if t>=4 and ks==0:
            while side and side[0][0]<=done_at[t-4]+3: P.extend([side.pop(0)[1]])
        if ks==32 and t==0:
            while side and side[0][0]<=97: P.extend([side.pop(0)[1]])
        WB=cfg.get('WB',2)
        if n%WB==0: P.I(f"@wait r{min(n+WB-1,N-1)}")
        P.I(f"v_mfma_f32_32x32x16_bf16 {vr(a,16)}, {vr(WF[n%NWF],4)}, {xr(ks)}, {vr(a,16) if t in started else 0}"); started.add(t)
        post=[]
        if n<96:
            x=124+4*ks
            if t==G1-1:
                post=[f"v_mfma_f32_4x4x4_16b_bf16 {vr(SQ,4)}, {vr(x,2)}, {vr(x,2)}, {vr(SQ,4) if ks else 0}",
                      f"v_mfma_f32_4x4x4_16b_bf16 {vr(SQ2,4)}, {vr(x+2,2)}, {vr(x+2,2)}, {vr(SQ2,4) if ks else 0}",
                      f"v_mfma_f32_16x16x32_bf16 {vr(SM,4)}, {vr(ONE,4)}, {vr(x,4)}, {vr(SM,4) if ks else 0}"]
        m=n+LOOK
        if m<N:
            if m in bounds: open_stage(bounds.index(m))
            P.extend([rd(m)])
        used=0
        rate = cfg.get('RATE1',0.6) if n<96 else cfg.get('RATE2',0.5)
        mb=min(mb+rate,1.0+rate)
        if mem and mb>=1 and mem[0][0]-DIST<=n and mem[0][1]<=opened[0]:
            P.extend(mem.pop(0)[2]); used=1; mb-=1
        while mem and mem[0][0]<=n+1: P.extend(mem.pop(0)[2])
        if not used and wd_side and n>=wd_from:
            wdb+=wd_per
            while wdb>=1 and wd_side:
                q=wd_side.pop(0); P.extend([q])
                if q.startswith('buffer'): wdb-=1; used=1
        budget=min(budget+PER-used, PER+1)
        while side and side[0][0]<=n and cost(side[0][1])<=budget:
            budget-=cost(side[0][1]); P.extend([side.pop(0)[1]])
        P.extend(post)
        if n==95: stamp(P,2,diag)
    stamp(P,3,diag)
    left=len(side)
    P.extend([x for _,x in side]); P.extend(epi(6))
    return left

def phase_d(P, cfg, diag, wd_rest, LD):
    ACC=[4+16*i for i in range(4)]
    B0=68; NB=44
    XR=244
    loads=[]
    for f in range(28):
        for n,s in ((0,sA0),(1,sA1)):
            k=2*f+n; b=B0+4*(k%NB)
            L=[f"buffer_load_dwordx4 {vr(b,4)}, v{vL16}, {sp(rWS,4)}, s{s} offen offset:{(f%4)*1024} {LD}"]
            if n==1 and f%4==3 and f<27: L+=[f"s_add_u32 s{sA0}, s{sA0}, 4096", f"s_add_u32 s{sA1}, s{sA1}, 4096"]
            loads.append(L)
    nwd=sum(1 for q in wd_rest if q.startswith('buffer')); f0=28-nwd//2
    def wd_upto(f):
        nonlocal f0
        while wd_rest and f0<=f:
            c=0
            while wd_rest and (c<2 or not wd_rest[0].startswith('buffer')):
                q=wd_rest.pop(0); P.I(q); c+=q.startswith('buffer')
            f0+=1
    li=0
    AH=cfg.get('DAHEAD',NB//2)
    for f in range(AH):
        wd_upto(f); P.extend(loads[2*f]); P.extend(loads[2*f+1])
    li=AH
    extra=[f"s_lshl_b32 s{sT0}, s{sX1}, 15", f"s_lshl_b32 s{sT1}, s{sX1+1}, 11", f"s_add_u32 s{sT0}, s{sT0}, s{sT1}", f"s_add_u32 s{sT0}, s{sT0}, {WS_X1F}",
           f"buffer_load_dwordx4 {vr(XR,4)}, v{vL16}, {sp(rWS,4)}, s{sT0} offen", f"buffer_load_dwordx4 {vr(XR+4,4)}, v{vL16}, {sp(rWS,4)}, s{sT0} offen offset:1024",
           f"s_lshl_b32 s{sT0}, s{sX1+1}, 7", f"s_add_u32 s{sT0}, s{sT0}, {WS_GBF}", f"v_and_b32 v3, 32, v{vLANE}"]
    extra+=[f"buffer_load_dwordx4 a[{224+4*q}:{227+4*q}], v3, {sp(rWS,4)}, s{sT0} offen offset:{64*(q>>1)+16*(q&1)}" for q in range(4)]
    for f in range(28):
        for n in range(2):
            b=B0+4*((2*f+n)%NB)
            for m in range(2):
                a=ACC[2*n+m]
                P.I(f"v_mfma_f32_32x32x16_bf16 {vr(a,16)}, a[{8*f+4*m}:{8*f+4*m+3}], {vr(b,4)}, {vr(a,16) if f else 0}")
        if li<28:
            wd_upto(li); P.extend(loads[2*li]); P.extend(loads[2*li+1]); li+=1
        elif extra: P.extend(extra); extra=[]
    stamp(P,6,diag)
    P.I(f"s_lshl_b32 s{sT0}, s{sW}, 12\nv_add_u32 v3, s{sT0}, v{vL16}\ns_lshl_b32 s{sT0}, s{sW}, 14\nv_add_u32 v252, s{sT0}, v{vL16}")
    if cfg.get('fused_cd'): P.I("s_barrier")
    for t in range(4):
        for q in range(4): P.I(f"ds_write_b128 v3, {vr(ACC[t]+4*q,4)} offset:{t*16384+q*1024}")
    P.I(f"""s_lshr_b32 s{sT0}, s{sX1}, 3
s_lshl_b32 s{sT0}, s{sT0}, 8
s_and_b32 s{sT1}, s{sX1}, 7
s_add_u32 s{sT0}, s{sT0}, s{sT1}
s_lshl_b32 s{sT0}, s{sT0}, 10
s_lshl_b32 s{sT1}, s{sX1+1}, 6
s_add_u32 s{sT0}, s{sT0}, s{sT1}
v_and_b32 v253, 31, v{vLANE}
v_lshrrev_b32 v254, 5, v{vLANE}
v_lshlrev_b32 v253, 13, v253
v_lshl_add_u32 v253, v254, 4, v253""")
    GB=140; XF=160
    for k in range(16): P.I(f"v_accvgpr_read_b32 v{GB+k}, a{224+k}")
    for k in range(8): P.I(f"v_lshlrev_b32 v{XF+2*k}, 16, v{XR+k}\nv_and_b32 v{XF+2*k+1}, 0xffff0000, v{XR+k}")
    P.I("s_waitcnt lgkmcnt(0)\ns_barrier")
    R=68
    for q in range(4):
        for w in range(4): P.I(f"ds_read_b128 {vr(R+16*w+4*q,4)}, v252 offset:{w*4096+q*1024}")
    for hq in range(2):
        for k in range(8*hq,8*hq+8,2):
            P.I(f"v_pk_add_f32 {vr(R+k,2)}, {vr(R+k,2)}, {vr(R+16+k,2)}\nv_pk_add_f32 {vr(R+32+k,2)}, {vr(R+32+k,2)}, {vr(R+48+k,2)}")
        for k in range(8*hq,8*hq+8,2):
            P.I(f"v_pk_add_f32 {vr(R+k,2)}, {vr(R+k,2)}, {vr(R+32+k,2)}")
        for k in range(8*hq,8*hq+8,2):
            P.I(f"v_pk_fma_f32 {vr(R+k,2)}, {vr(R+k,2)}, {vr(GB+k,2)}, {vr(XF+k,2)}")
        for k in range(8*hq,8*hq+8,2):
            P.I(f"v_cvt_pk_bf16_f32 v{180+k//2}, v{R+k}, v{R+k+1}")
        P.I(f"buffer_store_dwordx4 {vr(180+4*hq,4)}, v253, {sp(rOUT,4)}, s{sT0} offen offset:{32*hq}")

def build_split(P, diag, cfg):
    n='k3_kernel'
    entry(P,n,diag); c_maps(P)
    left=phase_c(P,dict(cfg,AST=cfg.get('AST','')),diag,None)
    print('phase C: side instrs left exposed', left)
    stamp(P,4,diag); stamp_out(P,2,diag)
    P.I(f"L_{n}_exit:\ns_endpgm")
    n='k4_kernel'
    entry(P,n,diag); d_maps(P); srds(P,diag); stamp(P,1,diag)
    phase_d(P,dict(cfg,DAHEAD=14),diag,wd_load_list(),'')
    stamp(P,7,diag); stamp_out(P,3,diag)
    P.I(f"L_{n}_exit:\ns_endpgm")
    return [('k3_kernel',256,256,LDS_C,256),('k4_kernel',256,256,98304,512)]

def take_loads(L,n):
    out=[]
    while L and (n>0 or not L[0].startswith('buffer')):
        q=L.pop(0); out.append(q); n-=q.startswith('buffer')
    return out
def build_fused(P, diag, cfg):
    n='kc_kernel'
    entry(P,n,diag); c_maps(P); d_maps(P)
    wd=wd_load_list()
    left=phase_c(P,cfg,diag,wd)
    nleft=sum(q.startswith('buffer') for q in wd)
    print('phase C: side instrs left exposed', left, ' Wd loads left', nleft)
    stamp(P,4,diag)
    if nleft%2: P.extend(take_loads(wd,1))
    P.extend(take_loads(wd,cfg.get('WDA',8)))
    P.I(f"""v_mov_b32 v4, 1
v_mov_b32 v5, 0
v_and_b32 v6, 7, v{vLANE}
v_lshlrev_b32 v6, 2, v6
s_mov_b32 s{sCNT}, 0
@wait act
s_mov_b64 exec, 1
buffer_store_dword v4, v5, {sp(rWS,4)}, s{sFL} offen sc1
s_mov_b64 exec, -1""")
    stamp(P,8,diag)
    P.extend(take_loads(wd,cfg.get('WDB',8)))
    P.I(f"""L_kc_poll:
buffer_load_dword v7, v6, {sp(rWS,4)}, s{sK} offen sc1
s_add_u32 s{sCNT}, s{sCNT}, 1
s_cmp_gt_u32 s{sCNT}, 20000
s_cbranch_scc1 L_kc_go
v_cmp_ne_u32 vcc, 1, v7
s_cbranch_vccnz L_kc_poll
L_kc_go:""")
    if diag: P.I(f"v_writelane_b32 v255, s{sCNT}, 31")
    stamp(P,5,diag)
    phase_d(P,cfg,diag,wd,'sc1')
    stamp(P,7,diag); stamp_out(P,1 if cfg.get('fused_ab') else 2,diag)
    P.I(f"L_{n}_exit:\ns_endpgm")
    return [(n,256,256,LDS_C,512)]
```

```python
import re, subprocess, collections

TRANS = ('v_exp_f32','v_log_f32','v_rcp_f32','v_rsq_f32','v_sqrt_f32','v_sin_f32','v_cos_f32','v_rcp_iflag_f32')
def regs_of(tok):
    tok = tok.strip()
    tok = tok.lstrip('-')
    if tok.startswith('abs('): tok = tok[4:-1]
    if tok.startswith('|'): tok = tok.strip('|')
    m = re.fullmatch(r'([vsa])(\d+)', tok)
    if m: return [(m.group(1), int(m.group(2)))]
    m = re.fullmatch(r'([vsa])\[(\d+):(\d+)\]', tok)
    if m: return [(m.group(1), i) for i in range(int(m.group(2)), int(m.group(3))+1)]
    if tok == 'vcc': return [('s','vcc')]
    if tok in ('vcc_lo','vcc_hi'): return [('s','vcc')]
    if tok == 'exec' or tok in ('exec_lo','exec_hi'): return [('s','exec')]
    if tok == 'm0': return [('s','m0')]
    return []

class Ins:
    __slots__=('text','op','ops','mods','defs','uses','kind','tag','label','target','passes','srcc','size','note','srcab')
    def __init__(self, text, tag=None):
        self.text = text; self.tag = tag; self.label=None; self.target=None; self.passes=0; self.srcc=[]; self.srcab=[]; self.size=None; self.note=None
        t = text.split(';')[0].strip()
        if t.endswith(':'):
            self.label = t[:-1]; self.op='label'; self.kind='label'; self.defs=[]; self.uses=[]; self.ops=[]; self.mods=''
            return
        if t.startswith('.') or t.startswith('@'):
            self.op = t.split()[0]; self.kind='pseudo'; self.defs=[]; self.uses=[]; self.ops=t.split()[1:]; self.mods=''
            return
        sp = t.split(None,1)
        op = sp[0]; rest = sp[1] if len(sp)>1 else ''
        parts=[]; cur=''; d=0
        for ch in rest:
            if ch in '[(': d+=1
            if ch in '])': d-=1
            if ch==',' and d==0: parts.append(cur); cur=''
            else: cur+=ch
        if cur.strip(): parts.append(cur)
        mods=''
        if parts:
            last = parts[-1].strip().split(None,1)
            parts[-1]=last[0]
            if len(last)>1: mods=last[1]
        self.ops=[p.strip() for p in parts]; self.mods=mods
        base = re.sub(r'_(e32|e64|dpp|sdwa)$','',op)
        self.op = base
        R=[regs_of(p) for p in self.ops]
        flat=lambda L:[x for l in L for x in l]
        defs=[]; uses=[]
        if base.startswith('v_mfma'):
            self.kind='mfma'; defs=R[0]; uses=flat(R[1:]); self.srcc=R[3]; self.srcab=R[1]+R[2]
            self.passes = 8 if '32x32x16' in base else 4 if '16x16x32' in base else 2 if '4x4x4' in base else None
            assert self.passes, base
        elif base.startswith(('buffer_','global_')):
            self.kind='vmem'
            islds = ' lds' in (' '+mods) or '_lds_' in base
            if base.startswith(('buffer_wbl2','buffer_inv')): pass
            elif 'load' in base and not islds:
                defs=R[0]; uses=flat(R[1:])
                if 'd16' in base: uses+=R[0]
            elif 'atomic' in base and 'sc0' in mods:
                defs=R[0]; uses=flat(R) if base.startswith('buffer') else flat(R[1:])
            else: uses=flat(R)
            if islds: uses.append(('s','m0'))
        elif base.startswith('ds_'):
            self.kind='ds'
            if base.startswith(('ds_read','ds_bpermute','ds_permute','ds_swizzle')):
                defs=R[0]; uses=flat(R[1:])
                if 'd16' in base: uses+=R[0]
            else: uses=flat(R)
            if 'addtid' in base: uses.append(('s','m0'))
        elif base.startswith(('s_load','s_buffer_load','s_memtime','s_memrealtime')):
            self.kind='smem'; defs=R[0]; uses=flat(R[1:])
        elif base in ('s_waitcnt','s_nop','s_barrier','s_endpgm','s_sleep','s_setprio'):
            self.kind='sopp'
        elif base in ('s_branch',) or base.startswith('s_cbranch'):
            self.kind='branch'; self.target=self.ops[0]
            if 'vcc' in base: uses=[('s','vcc')]
            if 'exec' in base: uses=[('s','exec')]
        elif base.startswith('s_'):
            self.kind='salu'
            if base.startswith(('s_cmp','s_bitcmp')): uses=flat(R)
            else:
                defs=R[0]; uses=flat(R[1:])
                if 'saveexec' in base: defs=defs+[('s','exec')]; uses.append(('s','exec'))
                if base in ('s_addk_i32','s_mulk_i32'): uses+=R[0]
        elif base.startswith('v_'):
            self.kind='valu'
            if base.startswith('v_permlane') and 'swap' in base: defs=R[0]+R[1]; uses=R[0]+R[1]
            elif base in ('v_add_co_u32','v_sub_co_u32','v_addc_co_u32','v_subb_co_u32'): defs=R[0]+R[1]; uses=flat(R[2:])
            elif base=='v_nop': pass
            else:
                defs=R[0]; uses=flat(R[1:])
                if base.startswith(('v_fmac','v_dot2c','v_writelane','v_pk_fmac')) or 'dpp' in op or 'row_' in mods or 'quad_perm' in mods or 'sdwa' in op: uses+=R[0]
                if base.startswith('v_cmpx'): defs=defs+[('s','exec')]
        else:
            raise ValueError('unknown instr '+text)
        self.defs=defs; self.uses=uses
    def states(self):
        if self.kind in ('label','pseudo'): return 0
        if self.op=='s_nop': return int(self.ops[0],0)+1
        return 1
    def is_dpp(self): return self.kind=='valu' and ('row_' in self.mods or 'quad_perm' in self.mods or 'wave_' in self.mods or 'dpp' in self.text.split()[0])
    def is_dot(self): return self.op.startswith('v_dot')

def hazard(p, c):
    need=0
    pd=set(p.defs); cu=set(c.uses); cd=set(c.defs)
    pv = {r for r in pd if r[0] in 'va'}; ps = {r for r in pd if r[0]=='s'}
    if p.kind=='valu':
        if c.kind=='mfma' and pv & cu: need=max(need, 3 if p.is_dot() else 2)
        if p.op in TRANS and c.kind in ('valu','vmem','ds') and pv & cu: need=max(need,1)
        if c.kind=='vmem' and ps & cu: need=max(need,5)
        if c.kind=='valu' and ps & cu:
            need=max(need, 4 if c.op in ('v_readlane_b32','v_writelane_b32') else 2)
        if c.kind in ('salu','branch','smem') and ps & cu: need=max(need,1)
        if c.op in ('v_readlane_b32','v_readfirstlane_b32') and pv & cu: need=max(need,1)
        if c.kind=='valu' and c.is_dpp() and pv & cu: need=max(need,2)
        if c.op.startswith('v_permlane') and pv & cu: need=max(need,2)
        if ('s','exec') in ps:
            if c.kind=='mfma': need=max(need,4)
            if c.kind=='valu' and c.is_dpp(): need=max(need,5)
            if c.op.startswith(('v_permlane','v_readlane','v_readfirstlane','v_writelane')): need=max(need,4)
        if p.is_dot() and pv & (cu|cd) and c.kind in ('valu','vmem','ds'):
            if c.op==p.op and not (pv & set(x for o in c.ops[1:3] for x in regs_of(o))): pass
            else: need=max(need,3)
        if ('sdwa' in p.text or 'op_sel' in p.mods and not p.op.startswith('v_pk_')) and c.kind=='valu' and pv & (cu|cd): need=max(need,1)
    if p.kind=='mfma':
        idx={2:0,4:1,8:2}[p.passes]
        if c.kind=='mfma':
            if pv & set(c.srcab): need=max(need,(5,8,12)[idx])
            if pv & set(c.srcc):
                if list(p.defs)==list(c.srcc) and p.passes==c.passes: need=max(need,(2,0,0)[idx])
                else: need=max(need,(4,6,10)[idx])
            elif pv & cd: need=max(need,(5,8,12)[idx])
        elif c.kind in ('valu','vmem','ds') and pv & (cu|cd): need=max(need,(5,8,12)[idx])
        if c.kind=='valu' and set(p.srcc) & cd: need=max(need,(1,3,7)[idx])
    if p.kind=='vmem' and 'store' in p.op and ('x4' in p.op or 'x3' in p.op):
        data = regs_of(p.ops[0]) if p.op.startswith('buffer') else regs_of(p.ops[1])
        if set(data) & cd: need=max(need, 2 if c.kind=='valu' else 1)
    if p.kind=='salu' and ('s','m0') in ps and c.kind in ('vmem','ds') and ('s','m0') in cu: need=max(need,1)
    return need

class Prog:
    def __init__(self): self.ins=[]
    def I(self, text, tag=None):
        for line in text.split('\n'):
            if line.strip(): self.ins.append(Ins(line.strip(), tag))
    def extend(self, L):
        for x in L:
            if isinstance(x, Ins): self.ins.append(x)
            elif isinstance(x, tuple): self.I(x[0], x[1])
            else: self.I(x)
    def insert_waits(self):
        out=[]; saved=collections.defaultdict(list); seen=set(); loopok=False
        st=[([],[])]
        def need_wait(pred):
            nv=None; nl=None
            for vm,lg in st:
                for i,e in enumerate(vm):
                    if pred(e):
                        n=len(vm)-1-i; nv = n if nv is None else min(nv,n)
                for i,e in enumerate(lg):
                    if pred(e):
                        n=len(lg)-1-i
                        if any(x[2] for x in lg): n=0
                        nl = n if nl is None else min(nl,n)
            return nv,nl
        def apply(nv,nl):
            for k,(vm,lg) in enumerate(st):
                if nv is not None and len(vm)>nv: del vm[:len(vm)-nv]
                if nl is not None and len(lg)>nl:
                    if nl==0 or not any(x[2] for x in lg): del lg[:len(lg)-nl]
        def emit(nv,nl):
            if nv is not None: nv=min(nv,63)
            if nl is not None: nl=min(nl,15)
            t='s_waitcnt'+(f' vmcnt({nv})' if nv is not None else '')+(f' lgkmcnt({nl})' if nl is not None else '')
            if out and out[-1].op=='s_waitcnt' and out[-1].note=='auto':
                pv=re.search(r'vmcnt\((\d+)\)',out[-1].text); pl=re.search(r'lgkmcnt\((\d+)\)',out[-1].text)
                mv = nv if pv is None else (int(pv.group(1)) if nv is None else min(nv,int(pv.group(1))))
                ml = nl if pl is None else (int(pl.group(1)) if nl is None else min(nl,int(pl.group(1))))
                out.pop()
                t='s_waitcnt'+(f' vmcnt({mv})' if mv is not None else '')+(f' lgkmcnt({ml})' if ml is not None else '')
            w=Ins(t); w.note='auto'; out.append(w); apply(nv,nl)
        for x in self.ins:
            if x.kind=='label':
                seen.add(x.label)
                st = st + saved.pop(x.label,[])
                u=[]
                for s in st:
                    if s not in u: u.append(s)
                st=u
                out.append(x); continue
            if x.op=='@wait':
                tags=set(x.ops)
                nv,nl=need_wait(lambda e: e[1] in tags)
                if nv is not None or nl is not None: emit(nv,nl)
                continue
            if x.op=='@loopok': loopok=True; continue
            if x.op=='@forget':
                rs={('v',int(o)) for o in x.ops}
                for vm,lg in st:
                    for i,e in enumerate(vm): vm[i]=(e[0]-rs,e[1],e[2])
                continue
            if x.op=='@reset':
                st=[([],[])]; continue
            if x.kind=='pseudo': out.append(x); continue
            touched=set(x.uses)|set(x.defs)
            if touched:
                if x.kind=='ds' and x.defs and 'd16' in x.op:
                    touched2=set(x.uses)-set(x.defs)
                    nv,_=need_wait(lambda e: e[0] & touched); _,nl=need_wait(lambda e: e[0] & touched2)
                else:
                    nv,nl=need_wait(lambda e: e[0] & touched)
                if nv is not None or nl is not None: emit(nv,nl)
            if x.op=='s_waitcnt':
                pv=re.search(r'vmcnt\((\d+)\)',x.text); pl=re.search(r'lgkmcnt\((\d+)\)',x.text)
                apply(int(pv.group(1)) if pv else None, int(pl.group(1)) if pl else None)
            out.append(x)
            if x.kind=='vmem':
                for vm,lg in st: vm.append((frozenset(x.defs),x.tag,False))
            elif x.kind=='ds':
                for vm,lg in st: lg.append((frozenset(x.defs),x.tag,False))
            elif x.kind=='smem':
                for vm,lg in st: lg.append((frozenset(x.defs),x.tag,True))
            elif x.kind=='branch':
                if x.target in seen and loopok: loopok=False
                elif x.target in seen:
                    for vm,lg in st:
                        assert not any(e[0] for e in vm) and not any(e[0] for e in lg), f'loads pending at backward branch {x.text}'
                else:
                    saved['L_touched' if x.target.startswith('L_touch') else x.target] += [(list(vm),list(lg)) for vm,lg in st]
                if x.op=='s_branch': st=[]
            elif x.op=='s_endpgm': st=[]
        self.ins=out
    def insert_nops(self, verbose=False):
        total=0
        while True:
            L=self.ins; added=0
            brs=collections.defaultdict(list)
            for x in L:
                if x.kind=='branch': brs[x.target].append(x)
            i=0
            while i<len(L):
                c=L[i]
                if c.kind in ('label','pseudo','sopp'): i+=1; continue
                worst=0; who=None
                stack=[(i-1,0)]; visited=set()
                while stack:
                    j,dist=stack.pop()
                    while j>=0 and dist<13:
                        p=L[j]
                        if p.kind=='label':
                            if (j,dist) in visited: break
                            visited.add((j,dist))
                            for b in brs.get(p.label,[]): stack.append((L.index(b),dist))
                            k=j-1
                            while k>=0 and L[k].kind=='pseudo': k-=1
                            if k>=0 and L[k].op in ('s_branch','s_endpgm'): break
                            j-=1; continue
                        if p.kind!='pseudo':
                            if p.kind in ('valu','mfma','vmem','salu'):
                                h=hazard(p,c)
                                if h-dist>worst: worst=h-dist; who=p
                            dist+=p.states()
                        j-=1
                if worst>0:
                    n=Ins(f's_nop {worst-1}'); n.note='hz'
                    if verbose: print(f'  nop {worst}: {who.text}  ->  {c.text}')
                    L.insert(i,n); added+=worst; i+=1
                i+=1
            total+=added
            if not added: return total
    def text(self):
        out=[]
        for x in self.ins:
            if x.kind=='label' or x.text.startswith('.'): out.append(x.text)
            elif x.op.startswith('@'): continue
            else: out.append('    '+x.text)
        return '\n'.join(out)

_sz={}
def sizes(ins):
    for x in ins:
        if 'L_' in x.text and x.kind=='salu': _sz[x.text.split(';')[0].strip()]=8
    todo=sorted({x.text.split(';')[0].strip() for x in ins if x.kind not in ('label','pseudo','branch')} - set(_sz))
    if todo:
        r=subprocess.run(['llvm-mc','-triple=amdgcn-amd-amdhsa','-mcpu=gfx950','-show-encoding'],input='\n'.join(todo)+'\n',capture_output=True,text=True)
        if r.returncode or r.stderr.strip(): print(r.stderr[:3000]); raise SystemExit('llvm-mc failed')
        enc=[l for l in r.stdout.split('\n') if 'encoding:' in l]
        assert len(enc)==len(todo),(len(enc),len(todo))
        for t,l in zip(todo,enc): _sz[t]=len(l.split('encoding:')[1].split(','))
    for x in ins:
        x.size = 0 if x.kind in ('label','pseudo') else 4 if x.kind=='branch' else _sz[x.text.split(';')[0].strip()]

E64_OK = ('v_mul_f32','v_add_f32','v_sub_f32','v_exp_f32','v_rcp_f32','v_mov_b32','v_lshlrev_b32','v_lshrrev_b32','v_and_b32','v_or_b32','v_add_u32','v_sub_u32',
          'v_sin_f32','v_cos_f32','v_fract_f32','v_sqrt_f32','v_rsq_f32','v_max_f32','v_min_f32','v_cvt_f32_u32','v_cvt_u32_f32','v_xor_b32','v_fmac_f32','v_subrev_u32','v_ashrrev_i32','v_mul_u32_u24','v_cvt_f32_i32','v_max_i32','v_min_i32','v_min_u32','v_max_u32','v_cndmask_b32','v_cmp_eq_u32','v_cmp_ne_u32','v_cmp_gt_u32','v_cmp_lt_u32')
def align8(P):
    sizes(P.ins)
    segs=[[]]
    for x in P.ins:
        if x.kind=='pseudo' and x.op=='.p2align': segs.append([])
        elif x.kind not in ('pseudo','label'): segs[-1].append(x)
    bad=0
    for S in segs:
        INF=10**9; cost=[0,INF]; back=[]
        for x in S:
            flex = x.size==4 and x.kind=='valu' and x.text.split()[0] in E64_OK and not x.is_dpp()
            nc=[INF,INF]; bk=[None,None]
            for par in (0,1):
                if cost[par]>=INF: continue
                for sz in ((4,8) if flex else (x.size,)):
                    c=cost[par]+(100 if (sz>=8 and par) else 0)+(1 if sz!=x.size else 0)
                    np_=(par+sz//4)&1
                    if c<nc[np_]: nc[np_]=c; bk[np_]=(par,sz)
            back.append(bk); cost=nc
        par=0 if cost[0]<=cost[1] else 1
        bad+=cost[par]//100
        for x,bk in zip(reversed(S),reversed(back)):
            par,sz=bk[par]
            if sz!=x.size:
                w=x.text.split(None,1); x.text=w[0]+'_e64 '+w[1]; x.size=8
    return bad

def interleave(main, side, per):
    out=[]; side=list(side); k=0
    def cost(t):
        s=t[0] if isinstance(t,tuple) else t
        o=s.split()[0]
        if o.startswith('@'): return 0
        return 2 if o in TRANS else 1
    budget=0.0
    for m in main:
        out.append(m)
        s=m[0] if isinstance(m,tuple) else m
        if s.startswith('v_mfma'):
            budget+=per
            while k<len(side) and cost(side[k])<=budget+1e-9:
                budget-=cost(side[k]); out.append(side[k]); k+=1
    return out, side[k:]

def gap_report(P, start, end, shape='32x32x16', cap=6):
    on=False; cur=None; over=0; n=0; hist=collections.Counter()
    for x in P.ins:
        if x.op=='@mark': on = True if x.ops[0]==start else False if x.ops[0]==end else on; cur=None; continue
        if not on or x.kind in ('label','pseudo'): continue
        if x.kind=='mfma':
            if cur is not None: hist[cur]+=1; over+=max(0,cur-cap); n+=1
            cur = 0 if shape in x.op else None
        elif cur is not None:
            cur += 2 if (x.op in TRANS or x.op=='s_barrier') else x.states()
    print(f'gaps {start}: n={n} overflow slots={over} hist={sorted(hist.items())}')

def page_touch(P, start, chains):
    sizes(P.ins)
    i=[j for j,x in enumerate(P.ins) if x.label==start][0]
    off=0; page=1; spots=[]; full=True
    j=i+1
    while j<len(P.ins):
        x=P.ins[j]
        if x.op=='@nomore': break
        if x.kind not in ('label','pseudo'):
            if off>=page*4096 and full:
                spots.append(j); off+=8; page+=1
            off+=x.size
            if ('s','exec') in x.defs: full = x.text.replace(' ','')=='s_mov_b64exec,-1'
        j+=1
    nc=len(chains)
    for k in reversed(range(len(spots))):
        nxt = f"L_touch{k+nc}" if k+nc<len(spots) else chains[k%nc]
        new=[Ins(f"L_touch{k}:"), Ins(f"s_cbranch_execz {nxt}"), Ins("s_nop 0")]
        P.ins[spots[k]:spots[k]]=new
    sizes(P.ins)
    return len(spots)
```

```python
import sys, json
sys.path.insert(0,'gen')
from prog import *
import ka, kc, mega
REF='adaLN_cond__ssm_conv_s4__geglu_ffn__prompt.s.ref'
def kdesc(k,vg):
    return f""".p2align 6
.amdhsa_kernel {k}
  .amdhsa_next_free_vgpr {vg}
  .amdhsa_next_free_sgpr 102
  .amdhsa_accum_offset {min(vg,256)}
  .amdhsa_group_segment_fixed_size 0
  .amdhsa_kernarg_size 144
  .amdhsa_user_sgpr_count 2
  .amdhsa_user_sgpr_kernarg_segment_ptr 1
  .amdhsa_system_sgpr_workgroup_id_x 1
  .amdhsa_float_denorm_mode_32 3
.end_amdhsa_kernel"""
def build(out, cfg, diag=False, verbose=False):
    P=Prog()
    L = mega.build(P,diag,cfg)
    if cfg.get('empty'):
        P.I(".globl e_kernel\n.p2align 8\n.type e_kernel,@function\ne_kernel:\n@reset\ns_endpgm")
        E=[('e_kernel',256,256,0,32)]*cfg['empty']
        L = E+L if cfg.get('empty_first') else L+E
    if cfg.get('probe'):
        (ka_,ia),(kb_,ib)=cfg['probe']
        from layout import WS_STAMP
        P.I(f""".globl m_kernel
.p2align 8
.type m_kernel,@function
m_kernel:
@reset
s_cmp_lg_u32 s2, 0
s_cbranch_scc1 L_m_exit
s_load_dwordx2 s[4:5], s[0:1], 136
s_memrealtime s[10:11]
s_waitcnt lgkmcnt(0)
s_add_u32 s4, s4, {WS_STAMP}
s_addc_u32 s5, s5, 0
s_load_dword s6, s[4:5], {ka_*0x40000+ia*4}
s_load_dword s7, s[4:5], {kb_*0x40000+ib*4}
s_waitcnt lgkmcnt(0)
s_sub_u32 s6, s7, s6
s_min_u32 s6, s6, 10000
s_lshl_b32 s6, s6, 2
L_m_spin:
s_memrealtime s[12:13]
s_waitcnt lgkmcnt(0)
s_sub_u32 s12, s12, s10
s_cmp_lt_u32 s12, s6
s_cbranch_scc1 L_m_spin
L_m_exit:
s_endpgm""")
        L=L+[('m_kernel',1,64,0,32)]
    P.insert_waits(); nn=P.insert_nops(verbose); bad=align8(P)
    if cfg.get('TOUCH',1): print('pages touched', page_touch(P,'L_main',['L_touched']))
    gap_report(P,'c1','c2'); gap_report(P,'c2','end'); gap_report(P,'d','end')
    size=sum(x.size for x in P.ins)
    print(f'{out}: {len(P.ins)} lines, {size} bytes, nop states {nn}, misaligned 8B {bad}')
    hdr=[l for l in open(REF).read().split('\n') if l.startswith(';') and '@launch' not in l and 'Override launch' not in l and 'grid=ceil' not in l]
    hdr+=[f"; @launch {'kernel='+k+' ' if len(L)>1 else ''}grid=({g},1,1) block=({b},1,1) lds={l}" for k,g,b,l,v in L]
    tw=ka.table_words()
    tab='\n.p2align 8\n.type L_table,@object\nL_table:\n'+'\n'.join('.long '+','.join(hex(w) for w in tw[i:i+8]) for i in range(0,len(tw),8))
    pad = max(0,(33*1024-size-4*len(tw))//4)
    tab+=f'\n.fill {pad}, 4, 0\n.size L_table, {4*len(tw)+4*pad}'
    txt='\n'.join(hdr)+'\n.amdgcn_target "amdgcn-amd-amdhsa--gfx950"\n.text\n'+P.text()+tab+'\n.section .rodata,"a"\n'+'\n'.join(dict.fromkeys(kdesc(k,v) for k,g,b,l,v in L))+'\n'
    open(out,'w').write(txt)
if __name__=='__main__':
    out=sys.argv[1]; cfg=json.loads(sys.argv[2]) if len(sys.argv)>2 else {}
    build(out,cfg,diag=cfg.get('diag',False),verbose=cfg.get('verbose',False))
```

```python
from prog import *
from layout import *
import struct
def f32(x): return struct.unpack('<I',struct.pack('<f',x))[0]
LOG2E = 0x3fb8aa3b
sX,sARE,sAIM,sBRE,sBIM,sCRE,sCIM,sLDT,sDSK,sBX,sWG,sWU,sWD,sC,sWM,sOUT,sDBG,sWS = [8+2*i for i in range(18)]
rR,rWG,rWU,rWD,rOUT,rWS,rWJ = 44,48,52,56,60,64,68
sXCD,sIDX,sP,sW,sTAG,sLD,sDS = 72,73,74,75,76,77,78
sT0,sT1,sT2,sT3,sT4,sT5 = 80,81,82,83,84,85
sWO,sWST,sWA = 86,87,88
sCG,sKE,sFS,sCNT = 95,96,97,98
def sp(a,n=2): return f"s[{a}:{a+n-1}]"
def vr(a,n): return f"v[{a}:{a+n-1}]"
def ar(a,n): return f"a[{a}:{a+n-1}]"
def mksrd(d,b,size):
    return [f"s_mov_b32 s{d}, s{b}", f"s_and_b32 s{d+1}, s{b+1}, 0xffff", f"s_mov_b32 s{d+2}, {size}", f"s_mov_b32 s{d+3}, 0x20000"]
vLANE = 1
vT16,vMC,vMW = 12,13,14
vPAR = 16
vTAB = 24
vRA = 32
vROLE = 40
vFG = 120
vPOLL = 160
vPOL2 = 152
vXF = 192
vHF = 208
vKA,vUA,vYW,vYR,vWRA,vXO,vGR,vL16 = 224,225,226,227,228,229,230,231
vMOD = 232
vKF,vKC,vGW,vSEL1,vSEL2 = 240,241,242,243,244

def stamp(P, n, diag):
    if diag: P.I(f"s_memrealtime s[4:5]\ns_memtime s[100:101]\ns_waitcnt lgkmcnt(0)\nv_writelane_b32 v255, s4, {n}\nv_writelane_b32 v255, s100, {32+n}")
def stamp0_issue(P, diag):
    if diag: P.I("v_mov_b32 v255, 0\ns_memrealtime s[4:5]\ns_memtime s[100:101]")
def stamp0_commit(P, diag):
    if diag: P.I("v_writelane_b32 v255, s4, 0\nv_writelane_b32 v255, s100, 32")
def stamp_out(P, kidx, diag):
    if diag:
        P.I(f"""s_lshl_b32 s4, s2, 10
s_add_u32 s4, s4, {WS_STAMP + kidx*0x40000}
v_lshlrev_b32 v2, 2, v0
buffer_store_dword v255, v2, {sp(rWS,4)}, s4 offen""")

def bf16_round(l):
    u=f32(float(l)); u=(u+0x7fff+((u>>16)&1))&0xffff0000
    return int(struct.unpack('<f',struct.pack('<I',u))[0])
def table_words():
    rec=[]
    for T in range(256):
        a=[]
        for j in range(11):
            lag=2047-8*T-j
            if lag<0: a.append(L_CZ); continue
            lam=bf16_round(lag); b=(lam>>3)&15; i=HI.index(lam-8*b)
            a.append(L_C+i*CP+4*b)
        a.append(0)
        w=T>>6; lane=T&63; ch=w>>1; vh=w&1
        ka_=L_KI+ch*4*KIP+(lane&3)*KIP+2*(2044-16)-3584-192-256*vh+(lane&48)-2*(lane&12)
        ua_=L_H+ch*HP+448-192-256*vh+32*(lane&15)+(lane&48)
        rec.append([a[2*k]|(a[2*k+1]<<16) for k in range(6)]+[ka_,ua_])
    return [rec[T][4*q+k] for q in range(2) for T in range(256) for k in range(4)]

def entry(P, name, diag, nlines):
    P.I(f".globl {name}\n.p2align 8\n.type {name},@function\n{name}:\n@reset")
    ng=(nlines+15)//16; assert ng&(ng-1)==0 and ng<=32
    P.I(f"""s_cmp_ge_u32 s2, 256
s_cbranch_scc1 L_{name}_exit
s_load_dwordx16 s[8:23], s[0:1], 0
s_load_dwordx16 s[24:39], s[0:1], 64
s_load_dwordx4 s[40:43], s[0:1], 128
s_getpc_b64 s[6:7]
L_pc:
v_lshrrev_b32 v2, 6, v0
v_and_b32 v{vLANE}, 63, v0
s_lshr_b32 s{sIDX}, s2, 3
v_readfirstlane_b32 s{sW}, v2
s_and_b32 s{sT0}, s{sIDX}, {ng-1}
s_lshl_b32 s{sT0}, s{sT0}, 11
v_lshl_add_u32 v3, v{vLANE}, 5, s{sT0}
s_cmp_lg_u32 s{sW}, 3
s_cbranch_scc1 L_nopf
global_load_dword v15, v3, s[6:7]
L_nopf:""")
    stamp0_issue(P,diag)
    P.I(f"""s_and_b32 s{sXCD}, s2, 7
s_lshl_b32 s{sP}, s{sXCD}, 5
s_add_u32 s{sP}, s{sP}, s{sIDX}""")

def role_addr(P):
    P.I(f"""s_cmp_eq_u32 s{sW}, 0
s_cselect_b32 s{sT3}, 8, 1
s_lshl_b32 s{sT2}, s{sT3}, 10
s_lshl_b32 s{sT3}, s{sT3}, 7
s_lshr_b32 s{sT0}, s{sP}, 3
s_lshl_b32 s{sT0}, s{sT0}, 16
s_and_b32 s{sT4}, s{sP}, 7
s_lshl_b32 s{sT4}, s{sT4}, 7
s_add_u32 s{sT0}, s{sT0}, s{sT4}
s_lshl_b32 s{sT1}, s{sP}, 13
s_cmp_eq_u32 s{sW}, 0
s_cselect_b32 s{sT0}, s{sT0}, s{sT1}
s_and_b32 s{sT5}, s{sW}, 1
s_sub_u32 s92, 7, s{sT5}
s_lshr_b32 s{sT1}, s{sP}, s92
s_lshl1_add_u32 s{sT1}, s{sT5}, s{sT1}
s_lshl_b32 s{sT1}, s{sT1}, 10
s_add_u32 s{sT4}, s{sT4}, s{sT1}
s_and_b32 s{sT1}, s{sP}, 0xf8
s_add_u32 s92, s{sT5}, 2
s_lshl_b32 s{sT1}, s{sT1}, s92
s_and_b32 s{sT5}, s{sT1}, 511
s_mul_i32 s{sT1}, s{sT5}, 6144
s_add_u32 s{sT1}, s{sT1}, s{sT4}
s_mov_b32 s{sT4}, 3145728
s_cmp_lt_u32 s{sW}, 2
s_cselect_b32 s94, s{sT0}, s{sT1}
s_cselect_b32 s{sT2}, s{sT2}, 6144
s_cselect_b32 s79, s{sT3}, {8*6144}
s_cselect_b32 s{rR+2}, 2097152, s{sT4}
s_mov_b32 s{rR+3}, 0x20000
v_lshrrev_b32 v3, 3, v{vLANE}
v_mul_u32_u24 v3, s{sT2}, v3
v_lshrrev_b32 v4, 2, v{vLANE}
v_and_b32 v4, 4, v4
v_and_b32 v5, 7, v{vLANE}
v_xor_b32 v4, v4, v5
v_lshl_add_u32 v22, v4, 4, v3
v_xor_b32 v23, 32, v22
s_lshl_b32 s3, s{sW}, 13
s_add_u32 s3, s3, {L_RR}
v_add_u32 v5, s{sT5}, v{vLANE}
v_and_b32 v5, 511, v5
v_lshlrev_b32 v5, 1, v5
s_lshl_b32 s{sT5}, s{sP}, 9
v_lshl_add_u32 v2, v0, 1, s{sT5}""")
    for i in range(6): P.I(f"v_mov_b32 v{vPAR+i}, 0")
    P.I(f"v_mov_b32 v{vROLE}, 0\ns_lshl_b32 s93, s{sP}, 2")
def early_loads(P, NT, XNT):
    par=[f"global_load_short_d16_hi v{vPAR+i}, v2, {sp(b)} {NT}" for i,b in enumerate((sARE,sAIM,sBRE,sBIM,sCRE,sCIM))]
    P.extend(par)
    P.I(f"""s_load_dword s{sTAG}, {sp(sWS)}, {WS_EPOCH}
s_load_dword s{sLD}, {sp(sLDT)}, s93
s_load_dword s{sDS}, {sp(sDSK)}, s93
s_cmp_lt_u32 s{sW}, 2
s_cselect_b64 {sp(rR)}, {sp(sX)}, {sp(sWM)}
s_and_b32 s{rR+1}, s{rR+1}, 0xffff""")
    P.I(f"global_load_short_d16_hi v{vROLE}, v5, {sp(sC)}")
    P.I(f"""s_add_u32 s6, s6, L_table-L_pc+4096
s_addc_u32 s7, s7, 0
v_lshlrev_b32 v{vT16}, 4, v0""")
def role_loads(P, XNT, late):
    lbl='L_rlb' if late else 'L_rla'
    P.I(f"s_cmp_eq_u32 s{sW}, 3\ns_cbranch_scc{0 if late else 1} {lbl}")
    for u in range(8):
        if u==4 and not late: P.I(f"s_cmp_eq_u32 s{sW}, 2\ns_cbranch_scc1 {lbl}")
        P.I(f"s_add_u32 m0, s3, {u*1024}")
        P.I(f"s_add_u32 s94, s94, s79" if u else "s_nop 0")
        P.I(f"buffer_load_dwordx4 v{22+(u&1)}, {sp(rR,4)}, s94 offen {XNT} lds", tag='rr')
    P.I(f"{lbl}:")
def table_loads(P):
    P.I(f"global_load_dwordx4 {vr(vTAB,4)}, v{vT16}, s[6:7] offset:-4096\nglobal_load_dwordx4 {vr(vTAB+4,4)}, v{vT16}, s[6:7]")

def setup(P, nowd=False):
    P.extend(mksrd(rWS,sWS,WS_USED))
    P.I(f"s_cmp_lt_u32 s{sIDX}, 28\ns_cselect_b32 s{sT0}, 1835008, 0\ns_cselect_b32 s{sT1}, {WS_USED}, 0")
    for r,b in ((rWG,sWG),(rWU,sWU),(rWD,sWD)): P.extend(mksrd(r,b,1835008 if (nowd and r==rWD) else f"s{sT0}"))
    P.extend(mksrd(rWJ,sWS,f"s{sT1}"))
    P.I(f"""s_and_b32 s{sCG}, s{sXCD}, 3
s_mul_i32 s{sCG}, s{sCG}, 7
s_lshr_b32 s{sT0}, s{sIDX}, 2
s_add_u32 s{sCG}, s{sCG}, s{sT0}
s_and_b32 s{sKE}, s{sXCD}, 4
s_and_b32 s{sT0}, s{sIDX}, 3
s_add_u32 s{sKE}, s{sKE}, s{sT0}""")
    P.I(f"""s_lshl2_add_u32 s{sT0}, s{sCG}, s{sW}
s_mul_i32 s{sT1}, s{sT0}, 147
s_lshr_b32 s{sT1}, s{sT1}, 10
s_mul_i32 s{sT2}, s{sT1}, 7
s_sub_u32 s{sT0}, s{sT0}, s{sT2}
s_mul_i32 s{sT1}, s{sT1}, 231
s_cmp_lt_u32 s{sT0}, {G1}
s_cselect_b32 s{sT2}, {G1}, 1
s_cselect_b32 s{sT3}, 1, 33
s_mul_i32 s{sT0}, s{sT0}, s{sT3}
s_add_u32 s{sT0}, s{sT0}, s{sT1}
s_lshl_b32 s{sT0}, s{sT0}, 10
s_add_u32 s{sT0}, s{sT0}, {WS_WPF}
s_lshl_b32 s{sWST}, s{sT2}, 10
s_mul_i32 s{sT3}, s{sWST}, s{sKE}
s_lshl2_add_u32 s{sWO}, s{sT3}, s{sT0}
s_lshl_b32 s{sT2}, s{sT2}, 15
s_add_u32 s{sWA}, s{sT2}, s{sT0}
s_lshl_b32 s{sT0}, s{sKE}, 7
s_add_u32 s{sWA}, s{sWA}, s{sT0}""")
    L=vLANE
    P.I(f"""v_lshlrev_b32 v{vL16}, 4, v{L}
v_and_b32 v2, 15, v{L}
v_and_b32 v3, 48, v{L}
v_lshrrev_b32 v4, 4, v{L}
v_lshrrev_b32 v5, 5, v{L}
v_and_b32 v6, 3, v{L}
s_mul_i32 s{sT2}, s{sW}, 10240
s_add_u32 s{sT2}, s{sT2}, {L_Y}
v_mul_u32_u24 v7, 320, v4
v_lshl_add_u32 v7, v2, 4, v7
v_add_u32 v{vYW}, s{sT2}, v7
v_lshrrev_b32 v7, 5, v0
v_mul_u32_u24 v7, 1280, v7
v_and_b32 v8, 1, v0
v_mul_u32_u24 v9, 640, v8
v_bfe_u32 v10, v0, 1, 4
v_lshl_add_u32 v9, v10, 4, v9
v_add_u32 v{vYR}, v7, v9
v_lshrrev_b32 v7, 2, v0
v_lshlrev_b32 v7, 15, v7
v_lshl_add_u32 v{vXO}, v6, 4, v7
v_mul_u32_u24 v7, {FP}, v2
v_add_u32 v7, v7, v3
v_add_u32 v{vKF}, {L_F}, v7
v_mul_u32_u24 v7, {CP}, v2
s_mul_i32 s{sT2}, s{sW}, {16*CP}
v_add3_u32 v{vKC}, v7, v3, s{sT2}
v_bfe_u32 v7, v{L}, 2, 2
v_cvt_f32_u32 v{vSEL2}, v5
v_and_b32 v9, 31, v{L}
v_lshlrev_b32 v{vMC}, 12, v9
v_and_b32 v9, 8, v{L}
v_lshl_add_u32 v9, v9, 1, v2
v_lshlrev_b32 v{vSEL1}, 12, v9
v_lshl_add_u32 v9, v5, 3, v6
v_bfe_u32 v10, v{L}, 2, 3
v_lshlrev_b32 v11, 4, v10
v_lshl_add_u32 v{vMW}, v9, 12, v11
s_lshl_b32 s{sT2}, s{sW}, 6
s_add_u32 s{sT2}, s{sT2}, {L_GT+256}
v_lshl_add_u32 v10, v10, 3, s{sT2}
v_lshlrev_b32 v11, 8, v5
v_sub_u32 v{vGW}, v10, v11
v_lshlrev_b32 v10, 5, v5
v_add_u32 v{vGR}, {L_GT}, v10
v_and_b32 v9, 1, v4
v_lshl_add_u32 v10, v9, 1, v5
v_lshl_add_u32 v10, v10, 3, v7
v_lshl_add_u32 v10, v10, 1, v9
v_bfe_u32 v11, v{L}, 3, 1
v_lshl_add_u32 v10, v10, 1, v11
v_xor_b32 v10, s{sW}, v10
v_lshl_add_u32 v10, v10, 1, v8
v_bfe_u32 v11, v{L}, 1, 1
v_lshl_add_u32 v10, v10, 1, v11
v_lshlrev_b32 v10, 3, v10
v_add_u32 v{vWRA}, {L_WR}, v10""")
    P.I(f"""v_mul_u32_u24 v7, {HP}, v5
v_and_b32 v9, 31, v{L}
v_min_u32 v9, 29, v9
v_lshl_add_u32 v7, v9, 4, v7
v_add_u32 v7, {L_H}, v7
v_cmp_gt_u32 vcc, 64, v0
v_mov_b32 v9, {L_CZ}
v_mov_b32 v{vFG}, 0
v_cndmask_b32 v7, v9, v7, vcc
v_mov_b32 v{vFG+1}, 0
v_mov_b32 v{vFG+2}, 0
v_mov_b32 v{vFG+3}, 0
ds_write_b128 v7, {vr(vFG,4)}""")
    A0=vRA
    P.I(f"""v_lshrrev_b32 v2, 3, v{L}
v_and_b32 v3, 2, v2
v_mul_u32_u24 v2, 3584, v2
v_and_b32 v4, 7, v{L}
v_xor_b32 v3, v3, v4
v_xor_b32 v4, 4, v3
v_lshl_add_u32 v{A0+2}, v3, 4, v2
v_lshl_add_u32 v{A0+3}, v4, 4, v2
v_and_b32 v8, 1, v{L}
v_bfe_u32 v7, v{L}, 1, 3
v_mul_u32_u24 v7, {KIP}, v7
v_lshl_add_u32 v7, v8, 4, v7
v_add_u32 v{A0+1}, {L_KI+4096}, v7
s_mul_i32 s{sT0}, s{sKE}, {64*3584}
s_lshl_b32 s{sT1}, s{sCG}, 7
s_add_u32 s90, s{sT0}, s{sT1}""")
    if not nowd: P.I(f"""v_lshrrev_b32 v2, 2, v{L}
v_and_b32 v5, 3, v{L}
v_lshlrev_b32 v5, 4, v5
v_lshl_add_u32 v{A0+4}, v2, 10, v5
v_lshrrev_b32 v6, 5, v{L}
v_and_b32 v7, 3, v2
v_lshl_add_u32 v6, v6, 3, v7
v_bfe_u32 v7, v{L}, 4, 1
v_lshl_add_u32 v6, v6, 1, v7
v_lshl_add_u32 v6, v6, 1, v8
v_bfe_u32 v7, v{L}, 1, 1
v_lshl_add_u32 v6, v6, 1, v7
v_lshlrev_b32 v6, 3, v6
v_add_u32 v{A0}, {L_DR}, v6
s_mul_i32 s{sFS}, s{sXCD}, 28
s_add_u32 s{sFS}, s{sFS}, s{sIDX}
s_lshr_b32 s{sT2}, s{sFS}, 1
s_lshl_b32 s{sT2}, s{sT2}, 14
s_and_b32 s{sT1}, s{sFS}, 1
s_lshl_b32 s{sT1}, s{sT1}, 9
s_add_u32 s91, s{sT2}, s{sT1}""")

def x_jobs(P, PUB, diag):
    R=vROLE; G=vROLE+32; L=vLANE
    P.I(f"s_cmp_eq_u32 s{sW}, 2\ns_cbranch_scc1 L_rj2\ns_cmp_eq_u32 s{sW}, 1\ns_cbranch_scc1 L_rj1")
    P.I(f"""v_and_b32 v2, 7, v{L}
v_lshrrev_b32 v3, 3, v{L}
v_and_b32 v4, 2, v2
v_lshlrev_b32 v4, 1, v4
v_xor_b32 v4, v4, v3
v_lshlrev_b32 v4, 4, v4
v_lshl_add_u32 v4, v2, 7, v4
v_add_u32 v4, {L_RR}, v4
v_xor_b32 v5, 32, v4
v_mul_u32_u24 v3, {4*12288}, v3
v_lshl_add_u32 v2, v2, 4, v3
s_and_b32 s{sT0}, s{sP}, 7
s_mul_i32 s{sT0}, s{sT0}, {32*12288}
s_and_b32 s{sT1}, s{sP}, 0xf8
s_lshl4_add_u32 s{sT0}, s{sT1}, s{sT0}
s_add_u32 s{sT0}, s{sT0}, {WS_XG}""")
    for k in range(12): P.I(f"v_mov_b32 v{G+4*k+3}, s{sTAG}")
    P.I("s_waitcnt vmcnt(0)"); stamp(P,2,diag)
    for r in range(8): P.I(f"ds_read_b128 {vr(R+4*r,4)}, v{4+(r&1)} offset:{r*1024}")
    for g in range(3):
        for j in range(4):
            k=g*4+j
            for e in range(3):
                if 3*g+e<8: P.I(f"v_mov_b32 v{G+4*k+e}, v{R+4*(3*g+e)+j}")
            P.I(f"s_add_u32 s{sT1}, s{sT0}, {j*12288+g*4096}")
            P.I(f"buffer_store_dwordx4 {vr(G+4*k,4)}, v2, {sp(rWS,4)}, s{sT1} offen {PUB}")
    P.I(f"s_branch L_xje\nL_rj1:")
    P.I(f"""v_mov_b32 v2, 0
v_mov_b32 v3, 0
v_mov_b32 v4, 0
v_mov_b32 v5, 0
s_mov_b32 s{sT1}, 0x3f803f80
v_add_u32 v6, {L_RR+8192}, v{vL16}
v_mul_u32_u24 v8, 96, v{L}
v_lshlrev_b32 v9, 12, v{L}
s_lshl4_add_u32 s{sT0}, s{sP}, {WS_SG}""")
    P.I(f"v_mov_b32 v{G+3}, s{sTAG}\ns_waitcnt vmcnt(0)"); stamp(P,2,diag)
    for u in range(8): P.I(f"ds_read_b128 {vr(R+4*u,4)}, v6 offset:{u*1024}")
    for k in range(32):
        P.I(f"v_dot2c_f32_bf16 v{2+(k&1)}, s{sT1}, v{R+k}\nv_dot2c_f32_bf16 v{4+(k&1)}, v{R+k}, v{R+k}")
    P.I("v_add_f32 v2, v2, v3\nv_add_f32 v4, v4, v5")
    for m in ("quad_perm:[1,0,3,2]","quad_perm:[2,3,0,1]","row_half_mirror"):
        P.I(f"v_add_f32_dpp v2, v2, v2 {m} row_mask:0xf bank_mask:0xf\nv_add_f32_dpp v4, v4, v4 {m} row_mask:0xf bank_mask:0xf")
    P.I(f"""v_mul_f32 v2, 0x3b000000, v2
v_mul_f32 v4, 0x3b000000, v4
v_fma_f32 v4, -v2, v2, v4
v_max_f32 v4, 0, v4
v_cvt_pk_bf16_f32 v4, v4, v4
v_and_b32 v4, 0xffff0000, v4
v_add_f32 v4, 0x3727c5ac, v4
v_cvt_pk_bf16_f32 v4, v4, v4
v_and_b32 v4, 0xffff0000, v4
v_sqrt_f32 v4, v4
v_cvt_pk_bf16_f32 v2, v2, v4
ds_bpermute_b32 v{G}, v8, v2
ds_bpermute_b32 v{G+1}, v8, v2 offset:32
ds_bpermute_b32 v{G+2}, v8, v2 offset:64
s_waitcnt lgkmcnt(0)
s_mov_b64 exec, 7
buffer_store_dwordx4 {vr(G,4)}, v9, {sp(rWS,4)}, s{sT0} offen {PUB}
s_mov_b64 exec, -1
s_branch L_xje
L_rj2:""")
    mod_job(P,PUB,diag,1)
    P.I("L_xje:")
def mod_job(P, PUB, diag, nks):
    R=vROLE; L=vLANE; A0=vRA; w=nks+1
    assert L_MR%128==0
    P.I(f"""v_lshrrev_b32 v2, 4, v{L}
v_bfe_u32 v3, v{L}, 2, 2
v_lshl_add_u32 v4, v2, 3, v3
v_bfe_u32 v3, v{L}, 3, 1
v_lshl_add_u32 v4, v4, 1, v3
v_and_b32 v3, 1, v2
v_lshl_add_u32 v4, v4, 1, v3
v_and_b32 v3, 3, v{L}
v_lshl_add_u32 v4, v4, 2, v3
v_lshlrev_b32 v4, 3, v4
v_add_u32 v8, {L_RR+w*8192}, v4
v_xor_b32 v9, 32, v8
v_xor_b32 v10, 64, v8
v_xor_b32 v11, 96, v8
v_bfe_u32 v4, v{L}, 1, 2
v_lshl_add_u32 v4, v4, 2, v2
v_and_b32 v3, 1, v{L}
v_lshl_add_u32 v4, v4, 1, v3
v_lshlrev_b32 v{A0+5}, 4, v4
s_mov_b32 s{sT0}, {L_SC+(w-2)*128}
v_lshl_add_u32 v6, v{L}, 1, s{sT0}
v_and_b32 v7, 48, v{L}
v_add_u32 v7, s{sT0}, v7
s_lshl_b32 s{sT0}, s{sP}, 9
s_add_u32 s99, s{sT0}, {WS_MG+(w-2)*0x20000}
s_mov_b32 s{sT0}, 0xaaaaaaaa
s_mov_b32 s{sT1}, 0xaaaaaaaa
s_mov_b32 s{sT2}, 0xcccccccc
s_mov_b32 s{sT3}, 0xcccccccc
s_mov_b32 s{sT4}, 0xf0f0f0f0
s_mov_b32 s{sT5}, 0xf0f0f0f0""")
    if nks==1: P.I("s_waitcnt vmcnt(6)")
    P.I(f"""v_mul_f32 v4, 0xbfb8aa3b, v{R}
v_exp_f32 v4, v4
v_add_f32 v4, 1.0, v4
v_rcp_f32 v4, v4
v_mul_f32 v2, v{R}, v4
v_cvt_pk_bf16_f32 v2, v2, v2
ds_write_b16 v6, v2""")
    for ks in range(nks): P.I(f"ds_read_b128 {vr(R+4*ks,4)}, v7 offset:{ks*64}")
    P.I("s_waitcnt vmcnt(0)" if nks==1 else "@wait rr"); stamp(P,2,diag)
    A=R+16; ACC=R+16+32
    seq=[(ks,ct) for ks in range(nks) for ct in range(4)]
    for n,(ks,ct) in enumerate(seq):
        for hf in range(2): P.I(f"ds_read_b64_tr_b16 {vr(A+4*n+2*hf,2)}, v{8+ct} offset:{ks*4096+hf*512}")
    for n,(ks,ct) in enumerate(seq):
        P.I(f"v_mfma_f32_16x16x32_bf16 {vr(ACC+4*ct,4)}, {vr(A+4*n,4)}, {vr(R+4*ks,4)}, {vr(ACC+4*ct,4) if ks else 0}")
    P.I(f"v_mov_b32 v{R+3}, s{sTAG}")
    for ct in range(4):
        for e in range(2): P.I(f"v_cndmask_b32 v{A+2*ct+e}, v{ACC+4*ct+e}, v{ACC+4*ct+2+e}, {sp(sT0)}")
    for c2 in range(2):
        for e in range(2): P.I(f"v_cndmask_b32 v{A+8+2*c2+e}, v{A+4*c2+e}, v{A+4*c2+2+e}, {sp(sT2)}")
    for e in range(2): P.I(f"v_cndmask_b32 v{R+e}, v{A+8+e}, v{A+10+e}, {sp(sT4)}")
    P.I(f"""s_mov_b32 exec_lo, 0x00ff00ff
s_mov_b32 exec_hi, 0x00ff00ff
buffer_store_dwordx4 {vr(R,4)}, v{A0+5}, {sp(rWS,4)}, s99 offen {PUB}
s_mov_b64 exec, -1""")
def raw_wd_loads(P, NT):
    P.I(f"s_lshl_b32 s{sT0}, s{sW}, 11\ns_lshl_b32 s{sT1}, s{sW}, 7\ns_add_u32 m0, s{sT0}, {L_DR}\ns_add_u32 s{sT1}, s{sT1}, s91")
    P.I(f"buffer_load_dwordx4 v{vRA+4}, {sp(rWD,4)}, s{sT1} offen {NT} lds", tag='dr')
    P.I(f"s_add_u32 m0, s{sT0}, {L_DR+1024-64}\nv_add_u32 v245, s{sT0}, v{vRA}")
    P.I(f"buffer_load_dwordx4 v{vRA+4}, {sp(rWD,4)}, s{sT1} offen offset:64 {NT} lds", tag='dr')
def wd_job(P, ST):
    A=vHF+8
    P.I("@wait dr")
    for f in range(2):
        for hf in range(2): P.I(f"ds_read_b64_tr_b16 {vr(A+4*f+2*hf,2)}, v245 offset:{f*1024+hf*256}")
    P.I(f"""s_and_b32 s{sT0}, s{sFS}, 1
s_lshl2_add_u32 s{sT0}, s{sT0}, s{sW}
s_mul_i32 s{sT0}, s{sT0}, {2*112}
s_lshr_b32 s{sT1}, s{sFS}, 1
s_add_u32 s{sT0}, s{sT0}, s{sT1}
s_lshl_b32 s{sT0}, s{sT0}, 10
s_add_u32 s{sT0}, s{sT0}, {WS_WDF}
s_add_u32 s{sT1}, s{sT0}, {112*1024}""")
    for f in range(2):
        P.I(f"buffer_store_dwordx4 {vr(A+4*f,4)}, v{vL16}, {sp(rWJ,4)}, s{sT0+f} offen {ST}", tag='wdst')
def raw_w_loads(P, NT):
    P.I(f"s_mul_i32 s{sT0}, s{sW}, {16*3584}\ns_add_u32 s{sT0}, s{sT0}, s90\ns_lshl_b32 s{sT1}, s{sW}, 12")
    for q in range(2):
        for mat,r in ((0,rWG),(1,rWU)):
            P.I(f"s_add_u32 m0, s{sT1}, {L_WR+mat*2048+q*1024}")
            P.I(f"s_add_u32 s{sT0}, s{sT0}, {8*3584}" if (q and not mat) else "s_nop 0")
            P.I(f"buffer_load_dwordx4 v{vRA+2+mat}, {sp(r,4)}, s{sT0} offen {NT} lds", tag='wr')

def cmul(o,a,b,t):
    return [f"v_pk_mul_f32 {vr(t,2)}, {vr(a,2)}, {vr(b,2)} op_sel_hi:[0,1]",
            f"v_pk_fma_f32 {vr(o,2)}, {vr(a,2)}, {vr(b,2)}, {vr(t,2)} op_sel:[1,1,0] op_sel_hi:[1,0,1] neg_lo:[1,0,0]"]
def factor_gen(P):
    B=vFG; are,aim,bre,bim,cre,cim=[vPAR+i for i in range(6)]
    R1,R8,R128,LOc,TMP,PK = B,B+2,B+4,B+6,B+8,B+12
    Pc=[B+16+2*c for c in range(8)]
    zr,zi,dt=B+32,B+33,B+34; M=[2,4,6]; PH=[8,9,10]
    P.I(f"""s_lshr_b32 s{sT0}, s{sW}, 1
s_mul_i32 s{sT1}, s{sT0}, {64*FP-512}
s_lshl_b32 s{sT2}, s{sW}, 8
s_add_u32 m0, s{sT1}, s{sT2}
s_lshl_b32 s{sT0}, s{sT0}, 4
s_lshr_b32 s{sT1}, s{sLD}, s{sT0}
s_lshl_b32 s{sT1}, s{sT1}, 16
v_mov_b32 v{dt}, {hex(LOG2E)}
v_mul_f32 v{dt}, s{sT1}, v{dt}
v_exp_f32 v{dt}, v{dt}""")
    P.extend(cmul(Pc[0],cre,bre,TMP))
    P.I(f"""v_cvt_pk_bf16_f32 v{dt}, v{dt}, v{dt}
v_and_b32 v{dt}, 0xffff0000, v{dt}
v_mul_f32 v{zr}, v{dt}, v{are}
v_mul_f32 v{zi}, v{dt}, v{aim}
v_mul_f32 v{zr}, {hex(LOG2E)}, v{zr}
v_mul_f32 v{zi}, 0.15915494, v{zi}
v_pk_mul_f32 {vr(Pc[0],2)}, {vr(Pc[0],2)}, {vr(dt,2)} op_sel_hi:[1,0] neg_hi:[1,0]""")
    cx=((R1,1,True),(R8,8,False),(R128,128,True))
    for (o,sc,cj),m,ph in zip(cx,M,PH):
        if sc==1: P.I(f"v_exp_f32 v{m}, v{zr}\nv_fract_f32 v{ph}, v{zi}")
        else: P.I(f"v_mul_f32 v{m}, {hex(f32(sc))}, v{zr}\nv_mul_f32 v{ph}, {hex(f32(sc))}, v{zi}\nv_exp_f32 v{m}, v{m}\nv_fract_f32 v{ph}, v{ph}")
        P.I(f"v_cos_f32 v{o}, v{ph}\nv_sin_f32 v{o+1}, v{ph}")
    for (o,sc,cj),m,ph in zip(cx,M,PH):
        P.I(f"v_pk_mul_f32 {vr(o,2)}, {vr(o,2)}, {vr(m,2)} op_sel_hi:[1,0]" + (" neg_hi:[1,0]" if cj else ""))
    steps_lo=[('one',48),('put',49,R8)]+[('mul',48+b,LOc,(R8 if b==2 else LOc),R8) for b in range(2,16)]
    steps_hi=[('put',0,Pc[0])]+[('mul',c,Pc[c],Pc[c-1],R1) for c in range(1,8)]
    row=8
    for e in range(1,17):
        cs = range(8) if e<2 else range(0,8,2) if e<4 else (0,4) if e<8 else (0,)
        for c in cs:
            assert HI[row]==128*e+c
            steps_hi.append(('mul',row,Pc[c],Pc[c],R128)); row+=1
    for k,s in enumerate(steps_lo+steps_hi):
        kk=PK+(k&3)
        if s[0]=='one': P.I(f"v_mov_b32 v{kk}, 0x3f80")
        else:
            if s[0]=='mul': P.extend(cmul(s[2],s[3],s[4],TMP+2*(k&1)))
            P.I(f"v_cvt_pk_bf16_f32 v{kk}, v{s[2]}, v{s[2]+1}")
        P.I(f"ds_write_addtid_b32 v{kk} offset:{L_F+s[1]*FP}")

def kgen(P, diag, mid=[]):
    A=vROLE; ACC=vFG
    P.I(f"""s_lshl_b32 s{sT0}, s{sDS}, 16
s_and_b32 s{sT1}, s{sDS}, 0xffff0000
v_cmp_eq_u32 vcc, 0, v0
v_mov_b32 v2, s{sT0}
v_mov_b32 v3, s{sT1}
s_mul_i32 s{sT2}, s{sW}, {16*FP}
v_cndmask_b32 v{ACC}, 0, v2, vcc
v_cndmask_b32 v{ACC+4}, 0, v3, vcc
v_add_u32 v5, s{sT2}, v{vKF}""")
    for r in (1,2,3,5,6,7): P.I(f"v_mov_b32 v{ACC+r}, 0")
    P.I(f"s_cmp_eq_u32 s{sW}, 3\ns_waitcnt lgkmcnt(0)\ns_barrier\ns_cbranch_scc1 L_wdjob")
    def rd(n):
        ks,ch=n>>1,n&1; b=A+8*(n%9)
        return [f"ds_read_b128 {vr(b,4)}, v{vKF} offset:{ch*64*FP+48*FP+ks*64}", f"ds_read_b128 {vr(b+4,4)}, v5 offset:{ch*64*FP+ks*64}"]
    for n in range(7): P.extend(rd(n))
    for n in range(16):
        b=A+8*(n%9); a=vr(ACC+4*(n&1),4)
        P.I(f"v_mfma_f32_16x16x32_bf16 {a}, {vr(b,4)}, {vr(b+4,4)}, {a}")
        if n+7<16: P.extend(rd(n+7))
    for r in range(4): P.I(f"v_cvt_pk_bf16_f32 v{8+r}, v{ACC+r}, v{ACC+4+r}")
    P.I(f"ds_write_b128 v{vKC}, v[8:11]\ns_branch L_kgen_end\nL_wdjob:")
    mod_job(P,'sc1',diag,2)
    P.I(f"ds_write_b128 v{vRA+1}, {vr(ACC,4)}")
    P.I("L_kgen_end:")

def poll_groups(extra=None):
    Q=Prog(); poll_loads(Q); G=[[]]
    if extra: extra(Q)
    for x in Q.ins:
        G[-1].append(x)
        if x.kind=='vmem': G.append([])
    return G[:-1]
def poll_loads(P):
    LD='sc1'
    P.I(f"s_mul_i32 s94, s{sP}, 12288\ns_add_u32 s94, s94, {WS_XG}")
    for g in range(3):
        P.I(f"buffer_load_dwordx4 {vr(vPOLL+4*g,4)}, v{vT16}, {sp(rWS,4)}, s94 offen {LD}")
        P.I(f"s_mov_b32 s79, {WS_SG+g*4096}\nbuffer_load_dwordx4 {vr(vPOLL+12+4*g,4)}, v{vT16}, {sp(rWS,4)}, s79 offen {LD}")
        if g<2: P.I(f"s_add_u32 s94, s94, 4096")
    P.I(f"s_lshl4_add_u32 s3, s{sP}, {WS_MG}")
    P.I(f"buffer_load_dwordx4 {vr(vPOLL+24,4)}, v{vMC}, {sp(rWS,4)}, s3 offen {LD}", tag='poll')
vQ=144
def poll2_loads(P):
    P.I(f"""s_lshl4_add_u32 s3, s{sP}, {WS_MG+0x20000}
buffer_load_dwordx4 {vr(vQ,4)}, v{vSEL1}, {sp(rWS,4)}, s3 offen sc1
s_lshl2_add_u32 s3, s{sKE}, s{sW}
s_lshl_b32 s3, s3, 7
s_add_u32 s3, s3, {WS_MG+0x20000+8*4096}
buffer_load_dwordx4 {vr(vQ+4,4)}, v{vMW}, {sp(rWS,4)}, s3 offen sc1
s_add_u32 s3, s3, {4*4096}""")
    P.I(f"buffer_load_dwordx4 {vr(vQ+8,4)}, v{vMW}, {sp(rWS,4)}, s3 offen sc1", tag='poll2')
def poll2_work(ST):
    mc,mw=vQ,vQ+4; dpp=" row_mask:0xf bank_mask:0xf"
    L=[["L_p2_chk:","@wait poll2",f"v_min3_u32 v2, v{vQ+3}, v{vQ+7}, v{vQ+11}",f"v_max3_u32 v3, v{vQ+3}, v{vQ+7}, v{vQ+11}",f"v_min_u32 v2, s{sTAG}, v2",f"v_max_u32 v3, s{sTAG}, v3",
        "v_cmp_ne_u32 vcc, v2, v3","s_cbranch_vccnz L_q_retry","L_q_ok:"]]
    L[0][0]="L_q_chk:"
    X=[f"v_add_f32 v{mw}, v{mw}, v{vQ+8}",f"v_add_f32 v{mw+1}, v{mw+1}, v{vQ+9}"]
    for m in ("quad_perm:[1,0,3,2]","quad_perm:[2,3,0,1]"):
        X+=[f"v_add_f32_dpp v{r}, v{r}, v{r} {m}{dpp}" for r in (mc,mc+1,mw,mw+1)]
    X+=[f"v_add_f32_dpp v{r}, v{r}, v{r} row_half_mirror{dpp}" for r in (mc,mc+1)]
    X+=[f"v_cvt_pk_bf16_f32 v{mw+1}, v{mw}, v{mw+1}", f"v_cvt_pk_bf16_f32 v{mc+1}, v{mc}, v{mc+1}",
        f"v_lshlrev_b32 v{mw}, 16, v{mw+1}", f"v_and_b32 v{mw+1}, 0xffff0000, v{mw+1}", f"v_lshlrev_b32 v{mc}, 16, v{mc+1}", f"v_and_b32 v{mc+1}, 0xffff0000, v{mc+1}",
        f"v_add_f32 v{mw}, v{mw}, v{vSEL2}", f"v_add_f32 v{mw+1}, v{mw+1}, v{vSEL2}", f"v_cvt_pk_bf16_f32 v{mw+1}, v{mw}, v{mw+1}",
        f"v_lshlrev_b32 v{mw}, 16, v{mw+1}", f"v_and_b32 v{mw+1}, 0xffff0000, v{mw+1}", f"ds_write_b64 v{vGW}, {vr(mw,2)}"]
    late=[f"v_mov_b32_dpp v{vMOD+4+2*k+e}, v{mc+e} row_newbcast:{8*k}{dpp}" for k in range(2) for e in range(2)]
    return L[0],X,late
def retry2_block(P):
    P.I(f"L_q_retry:\ns_add_u32 s{sCNT}, s{sCNT}, 1\ns_cmp_gt_u32 s{sCNT}, 20000\ns_waitcnt vmcnt(0) lgkmcnt(0)\ns_cbranch_scc1 L_q_ok")
    poll2_loads(P)
    P.I("s_waitcnt vmcnt(0)\ns_branch L_q_chk")

vGA=140
def table_unpack(P):
    P.I(f"v_mov_b32 v{vUA}, v{vTAB+7}\nv_mov_b32 v{vKA}, v{vTAB+6}")
    for j in range(11):
        P.I(f"v_lshrrev_b32 v{vGA+j}, 16, v{vTAB+j//2}" if j&1 else f"v_and_b32 v{vGA+j}, 0xffff, v{vTAB+j//2}")
def k_image(P, G, npre, skip):
    E=vROLE+40; O=vROLE; GA=vGA
    for _ in range(npre): P.extend(G.pop(0))
    P.I(f"""s_mov_b32 s{sT4}, 0x05040100
s_mov_b32 s{sT5}, 0x07060302
v_add_u32 v2, {L_KI}, v{vT16}
s_waitcnt lgkmcnt(0)
s_barrier""")
    for j in range(11): P.I(f"ds_read_b32 v{E+j}, v{GA+j}")
    k=0
    for c in (3,2,1,0):
        for ch in range(2):
            o=O+4*k; k+=1
            for i in range(4):
                j=3-c+2*i
                P.I(f"v_perm_b32 v{o+i}, v{E+j+1}, v{E+j}, s{sT4+ch}")
            P.I(f"ds_write_b128 v2, {vr(o,4)} offset:{(ch*4+c)*KIP}")
            if G and k>skip: P.extend(G.pop(0))
    for g in G: P.extend(g)

def check_tags(P, diag):
    P.I(f"s_mov_b32 s{sCNT}, 0\nL_ka_chk:")
    P.I(f"""@wait poll
v_min_u32 v2, s{sTAG}, v{vPOLL+27}
v_max_u32 v3, s{sTAG}, v{vPOLL+27}
v_min3_u32 v2, v2, v{vPOLL+15}, v{vPOLL+3}
v_max3_u32 v3, v3, v{vPOLL+15}, v{vPOLL+3}
v_min3_u32 v2, v2, v{vPOLL+19}, v{vPOLL+7}
v_max3_u32 v3, v3, v{vPOLL+19}, v{vPOLL+7}
v_min3_u32 v2, v2, v{vPOLL+23}, v{vPOLL+11}
v_max3_u32 v3, v3, v{vPOLL+23}, v{vPOLL+11}
v_cmp_ne_u32 vcc, v2, v3
s_cbranch_vccnz L_ka_retry
L_ka_ok:""")
    if diag: P.I(f"s_add_u32 s{sCNT}, s{sCNT}, 1\nv_writelane_b32 v255, s{sCNT}, 31")
def retry_block(P):
    P.I(f"L_ka_retry:\ns_add_u32 s{sCNT}, s{sCNT}, 1\ns_cmp_gt_u32 s{sCNT}, 20000\ns_waitcnt lgkmcnt(0)\ns_cbranch_scc1 L_ka_ok")
    poll_loads(P)
    P.I("s_waitcnt vmcnt(0)\ns_branch L_ka_chk")

def make_h(P):
    Q=vPOLL; mc=Q+24; mw=Q+28; Mm=vROLE; Mr=vROLE+8; O=vROLE+16
    dpp=" row_mask:0xf bank_mask:0xf"
    chain=[]
    for m in ("quad_perm:[1,0,3,2]","quad_perm:[2,3,0,1]","row_half_mirror","row_mirror"):
        chain.append([f"v_add_f32_dpp v{r}, v{r}, v{r} {m}{dpp}" for r in (mc,mc+1)])
    chain+=[[f"v_cvt_pk_bf16_f32 v{mc}, v{mc}, v{mc+1}", f"v_mov_b32 v{mc+1}, v{mc}"],
            [f"v_permlane16_swap_b32 v{mc}, v{mc+1}", f"v_lshlrev_b32 v{vMOD}, 16, v{mc}", f"v_and_b32 v{vMOD+1}, 0xffff0000, v{mc}", f"v_lshlrev_b32 v{mc}, 16, v{mc+1}", f"v_and_b32 v{mc+1}, 0xffff0000, v{mc+1}"],
            [f"v_add_f32 v{mc}, 1.0, v{mc}", f"v_add_f32 v{mc+1}, 1.0, v{mc+1}", f"v_cvt_pk_bf16_f32 v{mc}, v{mc}, v{mc+1}"],
            [f"v_lshlrev_b32 v{vMOD+2}, 16, v{mc}", f"v_and_b32 v{vMOD+3}, 0xffff0000, v{mc}"]]
    for r in range(8):
        st=Q+12+4*(r//3)+r%3; xr=Q+4*(r//3)+r%3
        P.extend(chain[r])
        P.I(f"""v_and_b32 v{Mr+r}, 0xffff0000, v{st}
v_lshlrev_b32 v{Mm+r}, 16, v{st}
v_rcp_f32 v{Mr+r}, v{Mr+r}
v_lshlrev_b32 v{vXF+r}, 16, v{xr}
v_and_b32 v{vXF+8+r}, 0xffff0000, v{xr}""")
    P.I(f"v_add_u32 v2, {L_H+480}, v{vT16}")
    for ch in range(2):
        sel=f"op_sel:[0,{ch},{ch}] op_sel_hi:[1,{ch},{ch}]"
        for r in range(0,8,2): P.I(f"v_pk_add_f32 {vr(vHF+8*ch+r,2)}, {vr(vXF+8*ch+r,2)}, {vr(Mm+r,2)} neg_lo:[0,1] neg_hi:[0,1]")
        for r in range(0,8,2): P.I(f"v_pk_mul_f32 {vr(vHF+8*ch+r,2)}, {vr(vHF+8*ch+r,2)}, {vr(Mr+r,2)}")
        for r in range(0,8,2): P.I(f"v_pk_fma_f32 {vr(vHF+8*ch+r,2)}, {vr(vHF+8*ch+r,2)}, {vr(vMOD+2,2)}, {vr(vMOD,2)} {sel}")
        for r in range(0,8,2): P.I(f"v_cvt_pk_bf16_f32 v{O+4*ch+r//2}, v{vHF+8*ch+r}, v{vHF+8*ch+r+1}")
        P.I(f"ds_write_b128 v2, {vr(O+4*ch,4)} offset:{ch*HP}")

def gb_store(P, ST):
    P.I(f"""s_cmp_lg_u32 s{sW}, 2
s_cbranch_scc1 L_nogb
s_lshl3_add_u32 s{sT2}, s{sP}, {WS_GBF}
s_mov_b64 exec, 1
buffer_store_dwordx2 {vr(vMOD+6,2)}, v{vL16}, {sp(rWS,4)}, s{sT2} offen {ST}
s_mov_b64 exec, -1
L_nogb:""")
def w_side(ST):
    RAW=vPOLL; WP=vPOLL+16; GB=[48,64,80,96]; U=112; S1,S2=vHF,vHF+2
    rd=[]; main=[]; sums=[]
    for k in range(4):
        g=GB[k]
        rd.append([f"ds_read_b64_tr_b16 {vr(RAW+4*k+2*hf,2)}, v{vWRA} offset:{k*4096+hf*512}" for hf in range(2)]
                 +[f"ds_read_b128 {vr(g+4*q,4)}, v{vGR} offset:{k*64+q*16}" for q in range(2)])
        L=[]
        for d in range(4):
            u=U+8*k+2*d
            L+=[f"v_lshlrev_b32 v{u}, 16, v{RAW+4*k+d}", f"v_and_b32 v{u+1}, 0xffff0000, v{RAW+4*k+d}",
                f"v_mul_f32 v{g+2*d}, v{u}, v{g+2*d}", f"v_mul_f32 v{g+2*d+1}, v{u+1}, v{g+2*d+1}", f"v_cvt_pk_bf16_f32 v{WP+4*k+d}, v{g+2*d}, v{g+2*d+1}"]
        L.append((f"buffer_store_dwordx4 {vr(WP+4*k,4)}, v{vL16}, {sp(rWJ,4)}, s{sWO} offen {ST}",'wpst'))
        if k<3: L.append(f"s_add_u32 s{sWO}, s{sWO}, s{sWST}")
        main.append(L)
        for i in range(8):
            e=i&1; first=(k==0 and i<2)
            sums.append(f"v_mul_f32 v{S2+e}, v{U+8*k+i}, v{g+8+i}" if first else f"v_fmac_f32 v{S2+e}, v{U+8*k+i}, v{g+8+i}")
            if k==0 and i<2: continue
            sums.append(f"v_add_f32 v{S1+e}, v{g+e}, v{g+i}" if (k==0 and i<4) else f"v_add_f32 v{S1+e}, v{S1+e}, v{g+i}")
    rdsb=[f"ds_read_b128 {vr(GB[k]+8+4*q,4)}, v{vGR} offset:{256+k*64+q*16}" for k in range(4) for q in range(2)]
    tail=[f"v_add_f32 v{S1}, v{S1}, v{S1+1}", f"v_add_f32 v{S2}, v{S2}, v{S2+1}", f"v_mov_b32 v{S1+1}, v{S1}", f"v_mov_b32 v{S2+1}, v{S2}",
          f"v_lshlrev_b32 v2, 2, v{vLANE}", "s_nop 0",
          f"v_permlane32_swap_b32 v{S1}, v{S1+1}", f"v_permlane32_swap_b32 v{S2}, v{S2+1}",
          f"v_add_f32 v{S1}, v{S1}, v{S1+1}", f"v_add_f32 v{S2}, v{S2}, v{S2+1}", f"v_cvt_pk_bf16_f32 v{S1}, v{S1}, v{S2}",
          "s_mov_b32 exec_hi, 0", (f"buffer_store_dword v{S1}, v2, {sp(rWJ,4)}, s{sWA} offen {ST}",'auxst'), "s_mov_b32 exec_hi, -1"]
    return rd,main,rdsb,sums,tail

def conv_reads(vi):
    b=vi&1; o=192-64*vi
    U=[(f"ds_read_b128 {ar(64+32*b+4*k,4)}, v{vUA} offset:{512*k+o}",f"c{vi}_{k}") for k in range(8)]
    K=[[(f"ds_read_b64 {ar(32*b+4*k+2*hf,2)}, v{vKA} offset:{512*(7-k)+o+8*hf}",f"c{vi}_{k}") for hf in range(2)] for k in range(8)]
    return U,K
def conv(P, ST, cfg, midbar, wdj):
    ACC=16
    order=sorted([(u,s) for u in range(8) for s in range(8) if u+s<8], key=lambda t:(t[1],t[0]))
    rd,main,rdsb,sums,tail=w_side(ST)
    chk,work,bc=poll2_work(ST)
    Q=Prog(); gb_store(Q,ST); gbs=[[x.text for x in Q.ins]]
    P.extend(conv_reads(0)[0])
    first=set(); side=[]; QAT=cfg.get('QAT',20)
    for vi in range(4):
        b=vi&1; nxt=[]
        if vi==1: nxt+=[(x,'wtr') for r in rd[:2] for x in r]+wdj[:4]
        if vi<3:
            U,K=conv_reads(vi+1); nxt+=[y for k in range(8) for y in [U[k]]+K[k]]
        if vi==0: side+=work
        if vi==1: side+=['@wait wtr']+rd[2]+rd[3]+main[0]+wdj[4:]+main[1]+rdsb+main[2]+main[3]+bc+gbs+sums
        waits = {0:0,8:1,15:7} if vi==0 else {0:7}
        start = QAT+1 if vi==0 else 8 if vi==1 else 0
        for n,(u,s) in enumerate(order if (vi==0 or not cfg.get('ORD',1)) else sorted(order,key=lambda t:(t[0]+t[1],t[0]))):
            t=u+s; a=vr(ACC+4*t,4)
            if n in waits: P.I(f"@wait c{vi}_{waits[n]}")
            P.I(f"v_mfma_f32_16x16x32_bf16 {a}, {ar(32*b+4*u,4)}, {ar(64+32*b+4*s,4)}, {a if t in first else 0}"); first.add(t)
            slots=2-((n+1) in waits or n==35)
            if vi==1 and n==0: P.I("@wait wr dr wdst\ns_waitcnt lgkmcnt(0)\ns_barrier"); P.extend(midbar); continue
            if vi==0 and n==QAT: P.extend(chk); continue
            if nxt:
                P.extend([nxt.pop(0)]); slots-=1
                if n<start and slots and nxt: P.extend([nxt.pop(0)]); slots-=1
            while slots>0 and side and n>=start:
                x=side.pop(0)
                if isinstance(x,list): P.extend(x); slots=0
                else: P.extend([x]); slots-=1
        assert not nxt, len(nxt)
        if vi==0: P.extend(side); print('  conv step 0 spill',len(side)); side=[]
        print('  conv step',vi,'side backlog',len(side))
    assert not any(isinstance(x,list) for x in side)
    return ACC,side+tail

def conv_epilogue(P, ACC, tail, XST, pre=[], prebar=[], postbar=[]):
    tail=list(tail); P.extend(pre)
    for t in range(8):
        P.I(f"ds_write_b128 v{vYW}, {vr(ACC+4*t,4)} offset:{1280*t}")
        k=min(max(5,-(-len(tail)//(8-t))),len(tail))
        if len(tail)-k<4: k=len(tail)
        P.extend(tail[:k]); tail=tail[k:]
    P.extend(prebar)
    P.I(f"s_lshl_b32 s{sT0}, s{sP}, 7\ns_add_u32 s{sT0}, s{sT0}, {WS_X1B}\ns_waitcnt lgkmcnt(0)\ns_barrier")
    Y=48
    for ch in range(2):
        for g in range(2):
            for vh in range(2):
                P.I(f"ds_read_b128 {vr(Y+16*ch+8*vh+4*g,4)}, v{vYR} offset:{L_Y+(2*ch+vh)*10240+320*g}")
    P.extend(postbar)
    for ch in range(2):
        y=Y+16*ch
        for r in range(0,8,2): P.I(f"v_pk_add_f32 {vr(y+r,2)}, {vr(y+r,2)}, {vr(y+8+r,2)}")
        for r in range(0,8,2): P.I(f"v_pk_fma_f32 {vr(y+r,2)}, {vr(y+r,2)}, {vr(vMOD+4,2)}, {vr(vXF+8*ch+r,2)} op_sel:[0,{ch},0] op_sel_hi:[1,{ch},1]")
        for r in range(0,8,2): P.I(f"v_cvt_pk_bf16_f32 v{80+4*ch+r//2}, v{y+r}, v{y+r+1}")
        P.I(f"buffer_store_dwordx4 {vr(80+4*ch,4)}, v{vXO}, {sp(rWS,4)}, s{sT0} offen offset:{64*ch} {XST}", tag='x1st')

def body(P, n, diag, cfg, H):
    NT=cfg.get('NT','nt'); ST='sc1'
    entry(P,n,diag,256); role_addr(P)
    P.I("s_waitcnt lgkmcnt(0)"); stamp0_commit(P,diag); early_loads(P,NT,NT)
    role_loads(P,NT,0); table_loads(P); setup(P); P.extend(H['setup']); role_loads(P,NT,1)
    P.I(f"s_waitcnt lgkmcnt(0)\ns_add_u32 s{sTAG}, s{sTAG}, 1\ns_barrier")
    stamp(P,1,diag)
    H['idle'](P)
    P.I("@forget "+" ".join(str(r) for r in list(range(vPAR,vPAR+6))+[vROLE]+list(range(vTAB,vTAB+8))))
    x_jobs(P,'sc1',diag)
    P.I("@forget "+" ".join(str(r) for r in list(range(vPAR,vPAR+6))+[vROLE]+list(range(vTAB,vTAB+8))))
    stamp(P,3,diag)
    da,wa=cfg.get('DAT',0),cfg.get('WAT',1)
    def raws(k):
        if da==k: raw_wd_loads(P,cfg.get('DNT',NT))
        if wa==k: raw_w_loads(P,NT)
    raws(0)
    factor_gen(P)
    stamp(P,4,diag)
    raws(1)
    G=poll_groups((lambda Q: raw_w_loads(Q,NT)) if wa==3 else None)
    for _ in range(cfg.get('PEARLY',0)): P.extend(G.pop(0))
    table_unpack(P)
    kgen(P,diag); stamp(P,5,diag)
    k_image(P,G,min(len(G),cfg.get('PPRE',5)),cfg.get('PSKIP',0))
    raws(2)
    wdj=[]
    if da<2: wd_job(P,ST)
    else:
        Q=Prog(); wd_job(Q,ST); wdj=[(x.text,x.tag) for x in Q.ins[1:]]
    stamp(P,6,diag)
    P.I("s_waitcnt lgkmcnt(0)\ns_barrier")
    for k in conv_reads(0)[1]: P.extend(k)
    check_tags(P,diag); stamp(P,11,diag)
    poll2_loads(P)
    make_h(P)
    P.I("s_waitcnt lgkmcnt(0)\ns_barrier")
    stamp(P,7,diag)
    acc,tail=conv(P,ST,cfg,H['midbar'] if da<2 else [],wdj); stamp(P,8,diag)
    conv_epilogue(P,acc,tail,ST,H.get('pre',[]),H.get('prebar',[]),H.get('postbar',[]))
```

```python
from prog import *
from layout import *
from ka import sp, vr, ar, mksrd, f32, stamp, stamp_out, rWS, rOUT, sXCD, sIDX, sW
import ka
sXB,sWB,sAB,sXM,sFL,sPL,sA0,sA1,sD0,sD1,sNT,sMT,sFB,sCNT = range(8,22)
sQ=22
sT0,sT1,sT2,sT3,sT4 = 80,81,82,83,84
vLANE,vL16,vWL = 1,2,14
NS=16; L_XS=0; L_RING=4*NS*1024; RING=96
LDS_C=L_RING+RING*1024
def entry(P,name,diag):
    P.I(f".globl {name}\n.p2align 8\n.type {name},@function\n{name}:\n@reset")
    P.I(f"""s_cmp_ge_u32 s2, 256
s_cbranch_scc1 L_{name}_exit
s_load_dwordx2 s[42:43], s[0:1], 136
s_load_dwordx2 s[38:39], s[0:1], 120
s_and_b32 s{sXCD}, s2, 7
s_lshr_b32 s{sIDX}, s2, 3
v_lshrrev_b32 v3, 6, v0
v_and_b32 v{vLANE}, 63, v0
v_readfirstlane_b32 s{sW}, v3""")
    ka.stamp0_issue(P,diag)
def srds(P,diag):
    P.I("s_waitcnt lgkmcnt(0)"); ka.stamp0_commit(P,diag)
    P.extend(mksrd(rWS,42,WS_USED)); P.extend(mksrd(rOUT,38,2097152))

def c_maps():
    return f"""s_lshr_b32 s{sT0}, s{sXCD}, 2
s_lshl_b32 s{sT0}, s{sT0}, 5
s_and_b32 s{sT1}, s{sIDX}, 28
s_add_u32 s{sT0}, s{sT0}, s{sT1}
s_add_u32 s{sT0}, s{sT0}, s{sW}
s_and_b32 s{sT1}, s{sXCD}, 3
s_and_b32 s{sT3}, s{sIDX}, 3
s_lshl2_add_u32 s{sT2}, s{sT1}, s{sT3}
s_lshl_b32 s{sXB}, s{sT0}, 15
s_add_u32 s{sXB}, s{sXB}, {WS_X1B}
s_mul_i32 s{sWB}, s{sT2}, {231*1024}
s_add_u32 s{sWB}, s{sWB}, {WS_WPF}
s_mul_i32 s{sXM}, s{sW}, {NS*1024}
s_mul_i32 s{sAB}, s{sT0}, 112
s_mul_i32 s{sT2}, s{sT2}, 7
s_add_u32 s{sAB}, s{sAB}, s{sT2}
s_lshl_b32 s{sAB}, s{sAB}, 10
s_add_u32 s{sAB}, s{sAB}, {WS_ACT}
s_lshr_b32 s{sFL}, s{sT0}, 1
s_lshl2_add_u32 s{sFL}, s{sFL}, s{sT1}
s_lshl_b32 s{sFL}, s{sFL}, 10
s_and_b32 s{sT0}, s{sT0}, 1
s_lshl2_add_u32 s{sT0}, s{sT0}, s{sT3}
s_lshl2_add_u32 s{sFL}, s{sT0}, s{sFL}
s_add_u32 s{sFL}, s{sFL}, {WS_FLAG}""".split('\n')
def d_maps():
    return f"""s_lshr_b32 s{sT1}, s{sIDX}, 3
s_lshl2_add_u32 s{sT2}, s{sXCD}, s{sT1}
s_and_b32 s{sT1}, s{sIDX}, 7
s_mul_i32 s{sT3}, s{sW}, {28*1024}
s_mul_i32 s{sA0}, s{sT2}, {224*1024}
s_add_u32 s{sA0}, s{sA0}, s{sT3}
s_add_u32 s{sA0}, s{sA0}, {WS_ACT}
s_mul_i32 s{sD0}, s{sT1}, {224*1024}
s_add_u32 s{sD0}, s{sD0}, s{sT3}
s_add_u32 s{sD0}, s{sD0}, {WS_WDF}
s_add_u32 s{sD1}, s{sD0}, {112*1024}
s_bitcmp1_b32 s{sW}, 0
s_cselect_b32 s{sPL}, {112*1024}, 0
s_add_u32 s{sD0}, s{sD0}, s{sPL}
s_sub_u32 s{sD1}, s{sD1}, s{sPL}
s_lshl2_add_u32 s{sPL}, s{sT2}, s{sW}
s_lshl_b32 s{sPL}, s{sPL}, 10
s_add_u32 s{sPL}, s{sPL}, {WS_FLAG}
s_lshl_b32 s{sNT}, s{sT2}, 1
s_and_b32 s{sT3}, s{sW}, 1
s_lshl_b32 s{sT3}, s{sT3}, 1
s_lshl2_add_u32 s{sMT}, s{sT1}, s{sT3}
s_lshr_b32 s{sT3}, s{sW}, 1
s_add_u32 s{sMT}, s{sMT}, s{sT3}
s_lshl_b32 s{sT3}, s{sT3}, 8
v_lshlrev_b32 v{vL16}, 4, v{vLANE}
v_xor_b32 v{vWL}, s{sT3}, v{vL16}""".split('\n')

class Stream:
    def __init__(s, base, tmp): s.base=base; s.tmp=tmp; s.cur=None
    def at(s, off):
        L=[]
        if s.cur is None or not (0<=off-s.cur<4096):
            s.cur=off; L.append(f"s_add_u32 s{s.tmp}, s{s.base}, {off}")
        return L, f"s{s.tmp} offen offset:{off-s.cur}"
ASTG0=[3,5,7]
def d_parts(cfg):
    e=[0]+cfg.get('ASTG',ASTG0)
    return [[7*jj+mt for jj in range(4) for mt in range(a,b)] for a,b in zip(e,e[1:])]
def flag_store(s):
    return ["s_mov_b64 exec, 1",f"buffer_store_dword v{vONE1}, v{vL16}, {sp(rWS,4)}, s{sFL} offen offset:{128*s} sc1","s_mov_b64 exec, -1"]
def flag_poll(s): return f"buffer_load_dword v{vPV}, v{vPA}, {sp(rWS,4)}, s{sPL} offen offset:{128*s} sc1"
def wd_load_list(cfg,LD=''):
    S=[Stream(sD0,34),Stream(sD1,35)]; L=[]
    for f in sum(d_parts(cfg),[]):
        for m in range(2):
            pre,o=S[m].at(f*1024)
            L.append(pre+[f"buffer_load_dwordx4 {ar(8*f+4*m,4)}, v{vWL}, {sp(rWS,4)}, {o} {LD}"])
    return L
AX,AG=240,224
vXA,vPA,vPV,vONE1=253,254,252,251
def cost(x):
    s=x[0] if isinstance(x,tuple) else x
    o=s.split()[0]
    return 2 if (o in TRANS or o=='s_barrier') else 1

class RawWd:
    def __init__(s, order, srd, vsrc, sbase, stmp, pol=''):
        s.todo=list(order); s.flying=[]; s.done=set(); s.srd=srd; s.vsrc=vsrc; s.sbase=sbase; s.stmp=stmp; s.half=0; s.chalf=0; s.pol=pol; s.n=0
    def area(s, slots):
        assert not s.half
        s.slots=list(slots); s.n=0
    def issue_half(s, now):
        f=s.todo[0]; sl=s.slots[s.n%len(s.slots)]; u=s.half
        assert all(x[1]!=sl for x in s.flying)
        L=[f"s_add_u32 m0, s{sl[0]}, {sl[1]+u*1024}", f"s_add_u32 s{s.stmp}, s{s.sbase}, {f*16384+u*8192}",
           (f"buffer_load_dwordx4 v{s.vsrc}, {sp(s.srd,4)}, s{s.stmp} offen {s.pol} lds", f"rw{f}")]
        s.half^=1
        if not s.half: s.todo.pop(0); s.flying.append((f,sl,now)); s.n+=1
        return L
    def convert_half(s):
        f,sl,_=s.flying[0]; m=s.chalf
        L=([f"@wait rw{f}"] if m==0 else [])+[f"ds_read_b64_tr_b16 {ar(8*f+4*m+2*hf,2)}, v{sl[2][m]} offset:{sl[3]+hf*512}" for hf in range(2)]
        s.chalf^=1
        if not s.chalf: s.flying.pop(0); s.done.add(f)
        return L

class PhaseC:
    def __init__(s, cfg):
        s.cfg=cfg
        seq=[(t,ks) for ks in range(32) for t in range(G1)]
        AUXAT=cfg.get('AUXAT',16-G1)
        t3=[(G1,ks) for ks in range(33)]
        seq+= t3[:AUXAT]+[(t,32) for t in range(G1)]+t3[AUXAT:]
        for t in range(G1+1,7): seq+=[(t,ks) for ks in range(33)]
        s.seq=seq; s.N=N=len(seq); assert N==231
        s.P1=32*G1
        b=cfg.get('STG') or ([0,8,16]+list(range(32,232,16))+[232])
        s.bounds=b; s.nst=len(b)-1
        for q in range(s.nst):
            assert sorted(s.gpos(*x) for x in seq[b[q]:b[q+1]])==list(range(b[q],min(b[q+1],N))), q
            assert b[q]//RING==(b[q+1]-1)//RING
        s.QR={c:sQ+2*i for i,c in enumerate(sorted({(b[q+1]-b[q])//4 for q in range(s.nst)}))}
        s.LOOK=cfg.get('LOOK',6); s.XL=cfg.get('XL',6)
        s.mem=[]; s.m0=None; s.now=-1
        for q in range(s.nst):
            gate=-1
            if b[q+1]>RING: gate=max(z for z in range(s.nst) if b[z]<b[q+1]-RING)+2
            for u in range((b[q+1]-b[q])//4): s.mem.append((max(b[q]-s.LOOK,0),gate,('w',q,u)))
        XG=cfg.get('XGRP',2)
        for ks in range(32): s.mem.append((max(G1*(ks-ks%XG)-s.XL,0),-1,('x',ks)))
        s.mem.sort(key=lambda e:e[0])
    def gpos(s,t,ks): return (G1*ks+t) if t<G1 else 33*t+ks
    def setup(s):
        L=[]
        for c,r in s.QR.items(): L+=[f"s_mul_i32 s{r}, s{sW}, {c*1024}", f"s_add_u32 s{r+1}, s{r}, s{sWB}"]
        L+=f"""v_lshlrev_b32 v{vL16}, 4, v{vLANE}
v_lshrrev_b32 v8, 5, v{vLANE}
v_bfe_u32 v9, v{vLANE}, 2, 2
v_lshl_add_u32 v8, v8, 3, v9
v_bfe_u32 v9, v{vLANE}, 4, 1
v_lshl_add_u32 v8, v8, 1, v9
v_and_b32 v10, 3, v{vLANE}
v_lshl_add_u32 v8, v8, 2, v10
v_lshl_add_u32 v{vXA}, v8, 3, s{sXM}
v_add_u32 v3, {L_RING}, v{vL16}
v_add_u32 v7, {L_RING+0x10000}, v{vL16}
v_and_b32 v8, 31, v{vLANE}
v_and_b32 v10, 32, v{vLANE}
v_lshlrev_b32 v10, 4, v10
v_lshl_add_u32 v8, v8, 2, v10
v_add_u32 v249, {L_RING}, v8
v_add_u32 v250, {L_RING+0x10000}, v8
v_and_b32 v8, 15, v{vLANE}
v_cmp_eq_u32 vcc, v8, v9
v_mov_b32 v10, 0x3f803f80
v_and_b32 v{vPA}, 7, v{vLANE}
v_lshlrev_b32 v{vPA}, 2, v{vPA}
v_cndmask_b32 v56, 0, v10, vcc
v_cndmask_b32 v57, 0, v10, vcc
v_cndmask_b32 v58, 0, v10, vcc
v_cndmask_b32 v59, 0, v10, vcc""".split('\n')
        return L
    def memop(s,e):
        if e[0]=='w':
            _,q,u=e; c=(s.bounds[q+1]-s.bounds[q])//4; key=('w',q,u//4); u0=u-u%4
            pre=[f"s_add_u32 m0, s{s.QR[c]}, {L_RING+(s.bounds[q]%RING+u0)*1024}", f"s_add_u32 s{sT0}, s{s.QR[c]+1}, {(s.bounds[q]+u0)*1024}"]
            tag=f"w{q}"; off=(u%4)*1024; ld=s.cfg.get('WLD','')
        else:
            ks=e[1]; key=('x',ks//4); k0=ks-ks%4
            assert ks<NS or s.now>=G1*(ks-NS), (ks,s.now)
            pre=[f"s_add_u32 m0, s{sXM}, {L_XS+(k0%NS)*1024}", f"s_add_u32 s{sT0}, s{sXB}, {k0*1024}"]
            tag=f"x{ks}"; off=(ks%4)*1024; ld=s.cfg.get('XLD','')
        L=[] if s.m0==key else pre
        s.m0=key
        return L+[(f"buffer_load_dwordx4 v{vL16}, {sp(rWS,4)}, s{sT0} offen offset:{off} {ld} lds",tag)]
    def pre(s,P,n,kinds='wx'):
        k=0
        while n>0 and k<len(s.mem):
            if s.mem[k][2][0] in kinds and s.mem[k][1]<0: P.extend(s.memop(s.mem.pop(k)[2])); n-=1
            else: k+=1
    def run(s,P,diag,wd,extra_side,D,raw=None):
        cfg=s.cfg; seq=s.seq; N=s.N; bounds=s.bounds; mem=s.mem; LOOK=s.LOOK; XL=s.XL; P1=s.P1
        ST='sc1'; ends=cfg.get('ASTG',ASTG0)
        X0=120
        xr=lambda ks: vr(X0+4*ks,4) if ks<32 else vr(44,4)
        NACC=4; ACC=[72,88,104,56]
        WF=[20+4*i for i in range(6)]; NWF=6
        SQ,SM,ONE,SQ2=48,52,56,16
        C0,C1,IR2=4,5,6; TA=8
        RA=[3,7]; RA2=[249,250]
        def rd(n):
            pos=(s.gpos(*seq[n])%RING)*1024
            if seq[n][1]==32:
                return [(f"ds_read_b32 v{WF[n%NWF]+q}, v{RA2[pos>>16]} offset:{(pos&0xffff)+128*q}", f"r{n}") for q in range(4)]
            return [(f"ds_read_b128 {vr(WF[n%NWF],4)}, v{RA[pos>>16]} offset:{pos&0xffff}", f"r{n}")]
        def xrd(ks): return [f"@wait x{ks}"]+[f"ds_read_b64_tr_b16 {vr(X0+4*ks+2*hf,2)}, v{vXA} offset:{L_XS+(ks%NS)*1024+hf*256}" for hf in range(2)]
        accof=lambda t: ACC[t%NACC]
        EW=cfg.get('EW',4)
        def epi(t):
            a=accof(t); L=[]
            for g in range(8//EW):
                ia=list(range(EW*g,EW*g+EW)); T=TA
                L+=[f"v_mul_f32 v{T+k}, v{a+i}, v{a+i}" for k,i in enumerate(ia)]
                L+=[f"v_fma_f32 v{T+k}, v{T+k}, v{C1}, v{C0}" for k,i in enumerate(ia)]
                L+=[f"v_mul_f32 v{T+k}, v{T+k}, v{a+i}" for k,i in enumerate(ia)]
                for k,i in enumerate(ia): L+=[f"v_exp_f32 v{T+k}, v{T+k}", f"v_mul_f32 v{a+8+i}, v{a+i}, v{a+8+i}"]
                for k,i in enumerate(ia):
                    L+=[f"v_fma_f32 v{a+i}, v{T+k}, v{IR2}, v{IR2}"]
                    if k: L+=[f"v_rcp_f32 v{a+i-1}, v{a+i-1}"]
                L+=[f"v_mul_f32 v{a+8+ia[0]}, v{a+8+ia[0]}, v{a+ia[0]}", f"v_rcp_f32 v{a+ia[-1]}, v{a+ia[-1]}"]
                L+=[f"v_mul_f32 v{a+8+i}, v{a+8+i}, v{a+i}" for i in ia[1:]]
                L+=[f"v_cvt_pk_bf16_f32 v{16+i//2}, v{a+8+i}, v{a+9+i}" for i in ia[::2]]
            L.append((f"buffer_store_dwordx4 v[16:19], v{vL16}, {sp(rWS,4)}, s{sAB} offen offset:{(t%4)*1024} {ST}",f'act{t}'))
            if t==3: L.append(f"s_add_u32 s{sAB}, s{sAB}, 4096")
            return L
        if cfg.get('NOTRANS'):
            e0=epi; epi=lambda t:[y for x in e0(t) for y in ([x.replace('v_exp_f32','v_mov_b32').replace('v_rcp_f32','v_mov_b32')]*2 if isinstance(x,str) and x.split()[0] in TRANS else [x])]
        if cfg.get('NOST'):
            e2=epi; epi=lambda t:[(('s_nop 0',x[1]) if isinstance(x,tuple) else x) for x in e2(t)]
        if cfg.get('NOEPI'):
            e1=epi; epi=lambda t:[x for x in e1(t) if not (isinstance(x,str) and x.startswith('v_'))]
        k0=-2*0.7978845608028654*1.4426950408889634; k1=k0*0.044715
        fin=f"""v_and_b32 v11, 15, v{vLANE}
v_lshlrev_b32 v11, 2, v11
v_and_b32 v8, 3, v{vLANE}
v_cmp_eq_u32 vcc, 1, v8
v_cmp_eq_u32 {sp(sT2)}, 2, v8
v_and_b32 v10, 16, v{vLANE}
ds_bpermute_b32 v12, v11, v{SM}
ds_bpermute_b32 v13, v11, v{SM+1}
v_add_f32 v{SQ}, v{SQ}, v{SQ2}
v_add_f32 v{SQ+1}, v{SQ+1}, v{SQ2+1}
v_add_f32 v{SQ+2}, v{SQ+2}, v{SQ2+2}
v_add_f32 v{SQ+3}, v{SQ+3}, v{SQ2+3}
v_cndmask_b32 v9, v{SQ}, v{SQ+1}, vcc
v_cmp_eq_u32 vcc, 3, v8
v_cndmask_b32 v9, v9, v{SQ+2}, {sp(sT2)}
v_cmp_eq_u32 {sp(sT2)}, 0, v10
v_cndmask_b32 v9, v9, v{SQ+3}, vcc
v_mov_b32 v8, v9
v_nop
v_nop
v_permlane32_swap_b32 v8, v9
v_add_f32 v9, v8, v9
v_mul_f32 v9, 0x3b000000, v9
v_cndmask_b32 v12, v13, v12, {sp(sT2)}
v_mul_f32 v12, 0x3b000000, v12
v_fma_f32 v9, -v12, v12, v9
v_max_f32 v9, 0, v9
v_cvt_pk_bf16_f32 v9, v9, v9
v_and_b32 v9, 0xffff0000, v9
v_add_f32 v9, 0x3727c5ac, v9
v_cvt_pk_bf16_f32 v9, v9, v9
v_and_b32 v9, 0xffff0000, v9
v_sqrt_f32 v9, v9
v_nop
v_cvt_pk_bf16_f32 v44, -v12, v9
v_and_b32 v9, 0xffff0000, v44
v_mov_b32 v45, v44
v_rcp_f32 v8, v9
v_mov_b32 v46, v44
v_mov_b32 v47, v44
v_mul_f32 v{IR2}, v9, v9
v_mul_f32 v{C0}, {hex(f32(k0))}, v8
v_mul_f32 v10, v8, v8
v_mul_f32 v{C1}, {hex(f32(k1))}, v8
v_mul_f32 v{C1}, v{C1}, v10""".split('\n')
        done_at={}
        for n,(t,ks) in enumerate(seq):
            if ks==32: done_at[t]=n
        side=[(0,x) for x in extra_side]+[(P1,x) for x in fin]
        for t in range(6): side+=[(done_at[t]+3,x) for x in epi(t)]
        RX=cfg.get('RXAT',P1+40)
        blocks={RX:[f"s_lshl_b32 s{sT1}, s{sNT}, 5",f"s_add_u32 s{sT1}, s{sT1}, s{sMT}",f"s_lshl_b32 s{sT1}, s{sT1}, 10",f"s_add_u32 s{sT1}, s{sT1}, {WS_X1B}"],
                RX+1:['@m0',f"s_add_u32 m0, s{sXM}, {L_XS}",f"s_add_u32 s{sT4}, s{sT1}, {32768-1024}",(f"buffer_load_dwordx4 v{vL16}, {sp(rWS,4)}, s{sT1} offen {cfg.get('XLD','')} lds",'rx'),
                      (f"buffer_load_dwordx4 v{vL16}, {sp(rWS,4)}, s{sT4} offen offset:1024 {cfg.get('XLD','')} lds",'rx')],
                RX+3:[f"s_lshl_b32 s{sT1}, s{sMT}, 6",f"s_add_u32 s{sT1}, s{sT1}, {WS_GBF}",f"v_and_b32 v{vPV}, 32, v{vLANE}"],
                RX+4:[f"buffer_load_dwordx4 {ar(AG+4*q,4)}, v{vPV}, {sp(rWS,4)}, s{sT1} offen offset:{16*q} {cfg.get('WLD','')}" for q in range(2)],
                RX+44:["@wait rx"]+[f"ds_read_b64_tr_b16 {ar(AX+2*q,2)}, v{vXA} offset:{L_XS+(q>>1)*1024+(q&1)*256}" for q in range(4)],
                cfg.get('P0AT',217):[flag_poll(0)]}
        C0AT=cfg.get('C0AT',999)
        D.nflag=0; flag_at={}; log=[]
        opened=[-1]
        def emit(L):
            c=0
            for x in L:
                if x=='@m0': s.m0=None; continue
                P.extend([x]); c+=cost(x)
            return c
        def force(pred):
            c=0
            while any(pred(e[2]) for e in mem):
                assert mem[0][1]<=opened[0], mem[0]
                c+=emit(s.memop(mem.pop(0)[2]))
            return c
        def open_stage(q):
            c=force(lambda e: e[0]=='w' and e[1]==q)
            opened[0]=q
            x_=cfg.get('XBAR',0) if bounds[q]>P1 else 0
            c+=emit([[f"@wait w{q}","s_barrier"],[f"@wait w{q}"],["s_barrier"],[]][x_])
            if cfg.get('SSTAMP'): stamp(P,(2+q if q<10 else 9+q),diag)
            return c
        xnext=0
        open_stage(0)
        while G1*xnext<XL: force(lambda e: e==('x',xnext)); emit(xrd(xnext)); xnext+=1
        for n in range(LOOK): P.extend(rd(n))
        DIST=cfg.get('DIST',24); DIST2=cfg.get('DIST2',48); WB=cfg.get('WB',3)
        started=set(); mb=0.0; wdb=0.0
        P.I("@mark c1")
        for n,(t,ks) in enumerate(seq):
            a=accof(t)
            if n==P1: P.I("@mark c2")
            if t>=NACC and ks==0:
                while side and side[0][0]<=done_at[t-NACC]+3: emit([side.pop(0)[1]])
            if ks==32 and t==0:
                while side and side[0][0]<=P1: emit([side.pop(0)[1]])
            if n%WB==0: P.I(f"@wait r{min(n+WB-1,N-1)}")
            P.I(f"v_mfma_f32_32x32x16_bf16 {vr(a,16)}, {vr(WF[n%NWF],4)}, {xr(ks)}, {vr(a,16) if t in started else 0}"); started.add(t)
            s.now=n
            free=cfg.get('CAP',6)-((n+1)%WB==0)
            if xnext<32 and G1*xnext-XL<=n:
                free-=force(lambda e: e==('x',xnext)); free-=emit(xrd(xnext)); xnext+=1
            m=n+LOOK
            if m<N:
                if m in bounds: free-=open_stage(bounds.index(m))
                free-=emit(rd(m))
            used=False
            if n in blocks: free-=emit(blocks.pop(n)); used=True
            elif n>=flag_at.get(D.nflag,999) and free>=4:
                free-=emit([f"@wait act{ends[D.nflag]-1}"]+flag_store(D.nflag)); D.nflag+=1; used=True; log.append(n)
            if n==C0AT: poll_check(P,'p0'); stamp(P,14,diag); free-=3; used=True
            rate = cfg.get('RATE1',0.9) if n<P1 else cfg.get('RATE2',0.5)
            mb=min(mb+rate,1.0+rate)
            if not used and mem and mb>=1 and mem[0][0]-(DIST if n<P1 else DIST2)<=n and mem[0][1]<=opened[0] and (free>=3 or n<P1) and (mem[0][2][0]=='w' or n>=G1*(mem[0][2][1]-NS)):
                free-=emit(s.memop(mem.pop(0)[2])); used=True; mb-=1
            if raw:
                if raw.flying and n>=raw.flying[0][2]+cfg.get('RAWD',40) and free>=3: free-=emit(raw.convert_half())
                if not used and raw.todo and len(raw.flying)<len(raw.slots) and cfg.get('WDFROM',P1+4)<=n<N-cfg.get('RAWD',40):
                    wdb=min(wdb+cfg.get('WDPER',0.2),2)
                    if wdb>=1 and mb>=1 and free>=3: free-=emit(['@m0']+raw.issue_half(n)); wdb-=1; mb-=1
            if not used and n>C0AT and mb>=1 and free>=2 and D.li<min(cfg.get('DAHEAD',14),n-197) and D.can_load():
                free-=emit(D.load()); mb-=1; used=True
            if not used and wd and cfg.get('WDFROM',P1+4)<=n<C0AT:
                wdb=min(wdb+cfg.get('WDPER',0.2),2)
                if wdb>=1 and mb>=1 and free>=2: free-=emit(wd.pop(0)); wdb-=1; mb-=1
            while side and side[0][0]<=n and cost(side[0][1])<=free:
                x=side.pop(0)[1]; free-=emit([x])
                if isinstance(x,tuple) and x[1].startswith('act'):
                    log.append((x[1],n))
                    if int(x[1][3:])+1 in ends: flag_at[ends.index(int(x[1][3:])+1)]=n+cfg.get('FLAGD',26)
            if n<P1 and t==G1-1:
                x=X0+4*ks
                P.I(f"v_mfma_f32_4x4x4_16b_bf16 {vr(SQ,4)}, {vr(x,2)}, {vr(x,2)}, {vr(SQ,4) if ks else 0}")
                P.I(f"v_mfma_f32_4x4x4_16b_bf16 {vr(SQ2,4)}, {vr(x+2,2)}, {vr(x+2,2)}, {vr(SQ2,4) if ks else 0}")
                P.I(f"v_mfma_f32_16x16x32_bf16 {vr(SM,4)}, {vr(ONE,4)}, {vr(x,4)}, {vr(SM,4) if ks else 0}")
            if n==P1-1: stamp(P,12,diag)
        P.I("@mark end")
        assert D.nflag and not blocks and not mem
        print('phase C: side left', len(side), 'stores/flags', log, 'Wd left', len(wd), 'raw todo/flying', (len(raw.todo),len(raw.flying),raw.half,raw.chalf) if raw else None)
        stamp(P,13,diag)
        return [x for _,x in side]+epi(6), {q:v-N for q,v in flag_at.items()}

def poll_check(P, name, need=None, diag=None, vPV=vPV):
    P.I(f"""L_{name}_chk:
v_cmp_ne_u32 vcc, v{vONE1}, v{vPV}
s_cbranch_vccnz L_{name}_retry
L_{name}_ok:""")
def poll_retry(P, name, off, vPV=vPV, vPA=vPA, sPL=sPL):
    P.I(f"""L_{name}_retry:
s_add_u32 s{sCNT}, s{sCNT}, 1
s_cmp_gt_u32 s{sCNT}, 40000
s_waitcnt vmcnt(0) lgkmcnt(0)
s_cbranch_scc1 L_{name}_ok
buffer_load_dword v{vPV}, v{vPA}, {sp(rWS,4)}, s{sPL} offen offset:{off} sc1
s_waitcnt vmcnt(0)
s_branch L_{name}_chk""")

class PhaseD:
    def __init__(s, P, cfg, diag, wd):
        s.P=P; s.cfg=cfg; s.diag=diag; s.wd=wd
        s.parts=d_parts(cfg); s.ends=cfg.get('ASTG',ASTG0); s.order=sum(s.parts,[])
        s.ACC=[[184,200],[216,232]]; s.BUF=[120+4*i for i in range(16)]; s.NB=16
        SK=cfg.get('DSKEW',8)
        s.work=[(f,n) for i,f in enumerate(s.order) for n in range(2) if n==0 or i<28-SK]+[(f,1) for f in s.order[28-SK:]]
        s.first={q:min(k for k,(f,n) in enumerate(s.work) if f in s.parts[q]) for q in range(len(s.parts))}
        s.S=[Stream(sA0,36),Stream(sA0,37)]; s.li=0; s.nflag=0; s.polled=0
    def can_load(s):
        for q,k0 in s.first.items():
            if q and s.li==k0 and s.nflag<(len(s.ends) if q>=s.cfg.get('CK',1) else q+1): return False
        return True
    def load(s):
        k=s.li; s.li+=1; f,n=s.work[k]; L=[]; PL=s.cfg.get('PL2',8)
        nxt=s.polled+1
        if nxt in s.first and k>=max(s.first[nxt]-PL,s.first[nxt-1]+1) and s.nflag>nxt: L.append(flag_poll(nxt)); s.polled=nxt
        for q,k0 in s.first.items():
            if q and k==k0:
                assert s.polled>=q
                s.P.extend(L); L=[]; poll_check(s.P,f'p{q}'); stamp(s.P,22+q,s.diag)
        while s.wd and 56-len(s.wd)<2*s.order.index(f)+2: L+=s.wd.pop(0)
        pre,o=s.S[n].at(n*112*1024+f*1024)
        return L+pre+[f"buffer_load_dwordx4 {vr(s.BUF[k%s.NB],4)}, v{vL16}, {sp(rWS,4)}, {o} sc1"]
    def run(s, ctail, flag_due):
        P=s.P; cfg=s.cfg; diag=s.diag; work=s.work; ACC=s.ACC; ends=s.ends
        AH=cfg.get('DAHEAD',14); assert AH<=s.NB
        nA=max(k for k,(f,n) in enumerate(work) if n==0)
        GB=44; XF=56; R=[120,144]; RD=[72,73,74]; VO,VW=75,76
        fill=f"""v_add_u32 v{VW}, s{sXM}, v{vL16}
s_lshl_b32 s{sT2}, s{sNT}, 15
s_lshl_b32 s{sT1}, s{sMT}, 5
s_add_u32 s{sT2}, s{sT2}, s{sT1}
s_add_u32 s{sT3}, s{sT2}, 32768
v_and_b32 v{VO}, 31, v{vLANE}
v_lshrrev_b32 v77, 5, v{vLANE}
v_lshlrev_b32 v{VO}, 10, v{VO}
v_lshl_add_u32 v{VO}, v77, 4, v{VO}""".split('\n')
        fill+=[f"v_xor_b32 v{RD[j-1]}, {j*NS*1024}, v{VW}" for j in (1,2,3)]
        fill+=[f"v_accvgpr_read_b32 v{GB+k}, a{AG+k}" for k in range(8)]
        fill+=[f"v_accvgpr_read_b32 v{XF+2*k+1}, a{AX+k}" for k in range(8)]
        for k in range(8): fill+=[f"v_lshlrev_b32 v{XF+2*k}, 16, v{XF+2*k+1}", f"v_and_b32 v{XF+2*k+1}, 0xffff0000, v{XF+2*k+1}"]
        side=list(ctail)+fill
        wr=[[f"ds_write_b128 v{VW}, {vr(ACC[n][j&1]+8*(j>>1)+4*q,4)} offset:{L_XS+n*8192+j*2048+q*1024}" for j in (1,2,3) for q in range(2)] for n in range(2)]
        started=set(); g=0; FD=cfg.get('FLAGD2',26)
        if cfg.get('C0AT',999)>=231: poll_check(P,'p0'); stamp(P,14,diag)
        TL=cfg.get('TAILLD',6)
        if TL:
            nt=len(ctail); per=-(-nt//TL)
            while nt>0:
                if s.li<AH and s.can_load(): P.extend(s.load())
                c=min(per,nt); P.extend(side[:c]); side=side[c:]; nt-=c
            while s.nflag<len(ends)-1:
                P.I(f"@wait act{ends[s.nflag]-1}"); P.extend(flag_store(s.nflag)); s.nflag+=1
            while s.li<AH and s.can_load(): P.extend(s.load())
            flag_due[len(ends)-1]=cfg.get('FL2',10)
        stamp(P,15,diag)
        P.I("@mark d")
        for k,(f,n) in enumerate(work):
            while s.li<=k:
                if not s.can_load():
                    P.extend(side); side=[]
                    P.I(f"@wait act{ends[s.nflag]-1}"); P.extend(flag_store(s.nflag)); s.nflag+=1; print('  D: forced flag at',k)
                else: P.extend(s.load())
            for m in range(2):
                a=vr(ACC[n][m],16)
                P.I(f"v_mfma_f32_32x32x16_bf16 {a}, {ar(8*f+4*m,4)}, {vr(s.BUF[k%s.NB],4)}, {a if (n,m) in started else 0}"); started.add((n,m))
                g+=1; free=6-m
                if s.nflag<len(ends) and g>=flag_due.get(s.nflag,999):
                    P.I(f"@wait act{ends[s.nflag]-1}"); P.extend(flag_store(s.nflag)); print('  D: flag',s.nflag,'at item',k,'li',s.li); s.nflag+=1; free-=4
                if s.li<len(work) and s.li<=k+AH-(1-m) and s.li-s.NB<k+m and s.can_load():
                    L=s.load(); P.extend(L); free-=len(L)
                if m and k>nA+1 and wr[0]: P.I(wr[0].pop(0)); free=0
                while side and g>=2 and cost(side[0])<=free:
                    x=side.pop(0); P.extend([x]); free-=cost(x)
                    if isinstance(x,tuple) and int(x[1][3:])+1 in ends: flag_due[ends.index(int(x[1][3:])+1)]=g+FD
        P.I("@mark end")
        assert not side and s.nflag==len(ends)
        P.extend(wr[0])
        stamp(P,17,diag)
        def reads(n): return [f"ds_read_b128 {vr(R[n]+8*(j-1)+4*q,4)}, v{RD[j-1]} offset:{L_XS+n*8192+j*2048+q*1024}" for j in (1,2,3) for q in range(2)]
        def final(n):
            r=R[n]; a=ACC[n][0]; L=[]
            for k in range(0,8,2): L+=[f"v_pk_add_f32 {vr(r+k,2)}, {vr(r+k,2)}, {vr(a+k,2)}"]
            for k in range(0,8,2): L+=[f"v_pk_add_f32 {vr(r+8+k,2)}, {vr(r+8+k,2)}, {vr(r+16+k,2)}"]
            for k in range(0,8,2): L+=[f"v_pk_add_f32 {vr(r+k,2)}, {vr(r+k,2)}, {vr(r+8+k,2)}"]
            for k in range(0,8,2): L+=[f"v_pk_fma_f32 {vr(r+k,2)}, {vr(r+k,2)}, {vr(GB+k,2)}, {vr(XF+8*n+k,2)}"]
            for k in range(0,8,2): L+=[f"v_cvt_pk_bf16_f32 v{8+4*n+k//2}, v{r+k}, v{r+k+1}"]
            L.append(f"buffer_store_dwordx4 {vr(8+4*n,4)}, v{VO}, {sp(rOUT,4)}, s{sT2+n} offen {cfg.get('OST','')}")
            return L
        P.extend(wr[1])
        P.I("s_waitcnt lgkmcnt(0)\ns_barrier")
        P.extend(reads(0)); P.extend(reads(1)); P.extend(final(0)); P.extend(final(1))
```

```python
from prog import *
from layout import *
import ka, kc
from ka import sp, vr, mksrd, stamp, stamp_out, rWS, rWJ, rOUT, sW, sTAG, sP, sIDX, sXCD, sFS, sCG, sKE, sT0, sT1, sT2, sT3
NAME='adaLN_cond__ssm_conv_s4__geglu_ffn__prompt_kernel'
sFXo,sFDo,sFXi,sFDi,sFWo,sFWi = 40,41,99,93,89,92
vTG=251; vFV,vFA,vFB=247,246,252
T4=248
def build(P, diag, cfg):
    cfg=dict(cfg); cfg.update(XST='sc1',ST='sc1',WLD='sc1',XLD='sc1')
    C=kc.PhaseC(cfg)
    L=ka.vLANE
    def line(so, reg, r=rWS):
        return ["s_mov_b64 exec, 0xff", f"buffer_store_dwordx4 {vr(reg,4)}, v{ka.vL16}, {sp(r,4)}, s{so} offen sc1", "s_mov_b64 exec, -1"]
    H={}
    H['setup']=mksrd(rOUT,ka.sOUT,2097152)+f"""s_lshl_b32 s{sFXo}, s{sP}, 7
s_add_u32 s{sFXo}, s{sFXo}, {WS_FX}
s_lshl_b32 s{sFDo}, s{sFS}, 7
s_add_u32 s{sFDo}, s{sFDo}, {WS_FD}
s_lshl3_add_u32 s{sFWo}, s{sCG}, s{sKE}
s_lshl_b32 s{sFWo}, s{sFWo}, 7
s_add_u32 s{sFWo}, s{sFWo}, {WS_FW}
v_min_u32 v{vFA}, 27, v{L}
v_lshlrev_b32 v{vFA}, 8, v{vFA}""".split('\n')
    def idle(P):
        for i in range(4): P.I(f"v_mov_b32 v{T4+i}, s{sTAG}")
        P.I(f"""s_bfe_u32 s{sT0}, s{sIDX}, 0x10002
s_mul_i32 s{sT1}, s{sW}, 56
s_add_u32 s{sT0}, s{sT0}, s{sT1}
s_lshl_b32 s{sT0}, s{sT0}, 7
s_add_u32 s{sFDi}, s{sT0}, {WS_FD}
s_cmp_lg_u32 s{sW}, 3
s_cbranch_scc1 L_main""")
        if cfg.get('TOUCH',1): P.I("s_mov_b64 exec, 0\ns_branch L_touch0\nL_touched:\ns_mov_b64 exec, -1")
        P.I(f"s_lshl_b32 s{sT0}, s{sP}, 9\ns_add_u32 s{sT0}, s{sT0}, {WS_FLAG}")
        for i in range(4): P.I(f"v_add_u32 v{4+i}, -1, v{T4}")
        P.I("s_waitcnt vmcnt(8)\ns_mov_b32 exec_hi, 0")
        P.I(line(sT0,4)[1]); P.I("s_mov_b64 exec, 0xff")
        P.I(line(sFXo,4)[1]); P.I(line(sFDo,4,rWJ)[1]); P.I(line(sFWo,4,rWJ)[1])
        P.I("s_mov_b64 exec, -1\ns_branch L_xje\n.p2align 12\nL_main:")
    H['idle']=idle; H['own_param_wait']=True
    H['midbar']=[f"s_cmp_lg_u32 s{sW}, 3","s_cbranch_scc1 L_nofd"]+line(sFDo,T4,rWJ)+["L_nofd:"]
    H['pre']=[f"buffer_load_dword v{vFV}, v{vFA}, {sp(rWS,4)}, s{sFDi} offen sc1"]
    FW=cfg.get('FW',0)
    if FW:
        H['prebar']=["@wait wpst"]
        H['postbar']=[f"s_cmp_lg_u32 s{sW}, 3","s_cbranch_scc1 L_nofw"]+line(sFWo,T4,rWJ)+["L_nofw:"]
    ka.body(P,NAME,diag,cfg,H)
    stamp(P,9,diag)
    wd=kc.wd_load_list(cfg,'sc1')
    P.extend(kc.d_maps())
    P.I(f"s_mov_b32 s{kc.sCNT}, 1")
    kc.poll_check(P,'fd',vPV=vFV)
    for i in range(cfg.get('WDA',8)): P.extend(wd.pop(0))
    P.I(f"s_cmp_lg_u32 s{sW}, 3\n@wait x1st\ns_barrier\ns_cbranch_scc1 L_nofx")
    P.extend(line(sFXo,T4))
    P.I(f"""s_cmp_lg_u32 s2, 0
s_cbranch_scc1 L_nofx
s_mov_b64 exec, 1
buffer_store_dword v{vTG}, v{ka.vL16}, {sp(rWS,4)}, {WS_EPOCH} offen
s_mov_b64 exec, -1
L_nofx:""")
    stamp(P,19,diag)
    fill=kc.c_maps()+C.setup()+[f"v_lshlrev_b32 v{vFA}, 7, v0", f"s_mov_b32 s{sFXi}, {WS_FX}"]
    fill+=f"""s_and_b32 s{sT1}, s{sXCD}, 3
s_and_b32 s{sT2}, s{sIDX}, 3
s_lshl2_add_u32 s{sT1}, s{sT1}, s{sT2}
s_mul_i32 s{sT1}, s{sT1}, 7
s_lshr_b32 s{sT1}, s{sT1}, 2
s_lshl_b32 s{sT1}, s{sT1}, 10
s_add_u32 s{sFWi}, s{sT1}, {WS_FW}
v_and_b32 v{vFB}, 0x780, v{vFA}""".split('\n')
    nB=cfg.get('WDB',8 if FW else 16)
    for i in range(nB):
        P.extend(wd.pop(0)); k=-(-len(fill)//(nB-i)); P.extend(fill[:k]); fill=fill[k:]
    P.extend(fill)
    if FW:
        P.I(f"buffer_load_dword v{vFV}, v{vFB}, {sp(rWS,4)}, s{sFWi} offen sc1")
        for i in range(cfg.get('WDB2',6)): P.extend(wd.pop(0))
        kc.poll_check(P,'fw',vPV=vFV)
        stamp(P,22,diag)
        C.pre(P,cfg.get('WPA',8),'w')
    P.I(f"buffer_load_dword v{vFV}, v{vFA}, {sp(rWS,4)}, s{sFXi} offen sc1")
    if FW: C.pre(P,8*G1-cfg.get('WPA',8),'w')
    for i in range(cfg.get('WDC',0 if FW else 6)): P.extend(wd.pop(0))
    stamp(P,20,diag)
    kc.poll_check(P,'fx',vPV=vFV)
    P.I("s_barrier")
    stamp(P,21,diag)
    C.pre(P,cfg.get('PRE',12 if FW else 16))
    D=kc.PhaseD(P,cfg,diag,wd)
    D.run(*C.run(P,diag,wd,[],D))
    if diag: P.I(f"v_writelane_b32 v255, s{kc.sCNT}, 30")
    stamp(P,18,diag); stamp_out(P,0,diag)
    P.I(f"L_{NAME}_exit:\ns_endpgm\n@nomore")
    ka.retry_block(P); ka.retry2_block(P)
    kc.poll_retry(P,'fd',0,vFV,vFA,sFDi); kc.poll_retry(P,'fx',0,vFV,vFA,sFXi)
    if FW: kc.poll_retry(P,'fw',0,vFV,vFB,sFWi)
    for s_ in range(len(kc.d_parts(cfg))): kc.poll_retry(P,f'p{s_}',128*s_)
    return [(NAME,256,256,kc.LDS_C,512)]
```

```python
from prog import *
from layout import *
import struct
def f32(x): return struct.unpack('<I',struct.pack('<f',x))[0]
LOG2E = 0x3fb8aa3b
sX,sARE,sAIM,sBRE,sBIM,sCRE,sCIM,sLDT,sDSK,sBX,sWG,sWU,sWD,sC,sWM,sOUT,sDBG,sWS = [8+2*i for i in range(18)]
rR,rWG,rWU,rWD,rOUT,rWS,rWJ = 44,48,52,56,60,64,68
sXCD,sIDX,sP,sW,sTAG,sLD,sDS = 72,73,74,75,76,77,78
sT0,sT1,sT2,sT3,sT4,sT5 = 80,81,82,83,84,85
sWO,sWST,sWA = 86,87,88
sCG,sKE,sFS,sCNT = 26,27,97,98
def sp(a,n=2): return f"s[{a}:{a+n-1}]"
def vr(a,n): return f"v[{a}:{a+n-1}]"
def ar(a,n): return f"a[{a}:{a+n-1}]"
def mksrd(d,b,size):
    return [f"s_mov_b32 s{d}, s{b}", f"s_and_b32 s{d+1}, s{b+1}, 0xffff", f"s_mov_b32 s{d+2}, {size}", f"s_mov_b32 s{d+3}, 0x20000"]
vLANE = 1
vT16,vMC,vMW = 12,13,14
vPAR = 16
vTAB = 24
vRA = 32
vROLE = 40
vFG = 120
vPOLL = 160
vPOL2 = 152
vXF = 192
vHF = 208
vKA,vUA,vYW,vYR,vWRA,vXO,vGR,vL16 = 224,225,226,227,228,229,230,231
vMOD = 232
vKF,vKC,vGW,vSEL1,vSEL2 = 240,241,242,243,244

def stamp(P, n, diag):
    if diag: P.I(f"s_memrealtime s[4:5]\ns_memtime s[100:101]\ns_waitcnt lgkmcnt(0)\nv_writelane_b32 v255, s4, {n}\nv_writelane_b32 v255, s100, {32+n}")
def stamp0_issue(P, diag):
    if diag: P.I("v_mov_b32 v255, 0\ns_memrealtime s[4:5]\ns_memtime s[100:101]")
def stamp0_commit(P, diag):
    if diag: P.I("v_writelane_b32 v255, s4, 0\nv_writelane_b32 v255, s100, 32")
def stamp_out(P, kidx, diag):
    if diag:
        P.I(f"""s_lshl_b32 s4, s2, 10
s_add_u32 s4, s4, {WS_STAMP + kidx*0x40000}
v_lshlrev_b32 v2, 2, v0
buffer_store_dword v255, v2, {sp(rWS,4)}, s4 offen""")

def bf16_round(l):
    u=f32(float(l)); u=(u+0x7fff+((u>>16)&1))&0xffff0000
    return int(struct.unpack('<f',struct.pack('<I',u))[0])
def table_words():
    rec=[]
    for T in range(256):
        a=[]
        for j in range(11):
            lag=2047-8*T-j
            if lag<0: a.append(L_CZ); continue
            lam=bf16_round(lag); b=(lam>>3)&15; i=HI.index(lam-8*b)
            a.append(L_C+i*CP+4*b)
        a.append(0)
        w=T>>6; lane=T&63; ch=w>>1; vh=w&1
        ka_=L_KI+ch*4*KIP+(lane&3)*KIP+2*(2044-16)-3584-192-256*vh+(lane&48)-2*(lane&12)
        ua_=L_H+ch*HP+448-192-256*vh+32*(lane&15)+(lane&48)
        rec.append([a[2*k]|(a[2*k+1]<<16) for k in range(6)]+[ka_,ua_])
    return [rec[T][4*q+k] for q in range(2) for T in range(256) for k in range(4)]

def entry(P, name, diag, nlines, perm):
    P.I(f".globl {name}\n.p2align 8\n.type {name},@function\n{name}:\n@reset")
    ng=(nlines+15)//16; assert ng&(ng-1)==0 and ng<=32
    P.I(f"""s_cmp_ge_u32 s2, 256
s_cbranch_scc1 L_{name}_exit
s_load_dwordx16 s[8:23], s[0:1], 0
s_load_dwordx16 s[24:39], s[0:1], 64
s_load_dwordx4 s[40:43], s[0:1], 128
s_getpc_b64 s[6:7]
L_pc:
v_lshrrev_b32 v2, 6, v0
v_and_b32 v{vLANE}, 63, v0
s_lshr_b32 s{sIDX}, s2, 3
v_readfirstlane_b32 s{sW}, v2
s_and_b32 s{sT0}, s{sIDX}, {ng-1}
s_lshl_b32 s{sT0}, s{sT0}, 11
v_lshl_add_u32 v3, v{vLANE}, 5, s{sT0}
s_cmp_lg_u32 s{sW}, 3
s_cbranch_scc1 L_nopf
global_load_dword v15, v3, s[6:7]
L_nopf:""")
    stamp0_issue(P,diag)
    P.I(f"s_and_b32 s{sXCD}, s2, 7")
    if perm: P.I(f"s_lshl_b32 s{sXCD}, s{sXCD}, 2\ns_lshr_b32 s{sXCD}, {hex(sum(v<<(4*k) for k,v in enumerate(perm)))}, s{sXCD}\ns_and_b32 s{sXCD}, s{sXCD}, 7")
    P.I(f"""s_lshl_b32 s{sP}, s{sXCD}, 5
s_add_u32 s{sP}, s{sP}, s{sIDX}""")

def role_addr(P):
    P.I(f"""s_cmp_eq_u32 s{sW}, 0
s_cselect_b32 s{sT3}, 8, 1
s_lshl_b32 s{sT2}, s{sT3}, 10
s_lshl_b32 s{sT3}, s{sT3}, 7
s_lshr_b32 s{sT0}, s{sP}, 3
s_lshl_b32 s{sT0}, s{sT0}, 16
s_and_b32 s{sT4}, s{sP}, 7
s_lshl_b32 s{sT4}, s{sT4}, 7
s_add_u32 s{sT0}, s{sT0}, s{sT4}
s_lshl_b32 s{sT1}, s{sP}, 13
s_cmp_eq_u32 s{sW}, 0
s_cselect_b32 s{sT0}, s{sT0}, s{sT1}
s_and_b32 s{sT5}, s{sW}, 1
s_sub_u32 s92, 7, s{sT5}
s_lshr_b32 s{sT1}, s{sP}, s92
s_lshl1_add_u32 s{sT1}, s{sT5}, s{sT1}
s_lshl_b32 s{sT1}, s{sT1}, 10
s_add_u32 s{sT4}, s{sT4}, s{sT1}
s_and_b32 s{sT1}, s{sP}, 0xf8
s_add_u32 s92, s{sT5}, 2
s_lshl_b32 s{sT1}, s{sT1}, s92
s_and_b32 s{sT5}, s{sT1}, 511
s_mul_i32 s{sT1}, s{sT5}, 6144
s_add_u32 s{sT1}, s{sT1}, s{sT4}
s_mov_b32 s{sT4}, 3145728
s_cmp_lt_u32 s{sW}, 2
s_cselect_b32 s94, s{sT0}, s{sT1}
s_cselect_b32 s{sT2}, s{sT2}, 6144
s_cselect_b32 s79, s{sT3}, {8*6144}
s_cselect_b32 s{rR+2}, 2097152, s{sT4}
s_mov_b32 s{rR+3}, 0x20000
v_lshrrev_b32 v3, 3, v{vLANE}
v_mul_u32_u24 v3, s{sT2}, v3
v_lshrrev_b32 v4, 2, v{vLANE}
v_and_b32 v4, 4, v4
v_and_b32 v5, 7, v{vLANE}
v_xor_b32 v4, v4, v5
v_lshl_add_u32 v22, v4, 4, v3
v_xor_b32 v23, 32, v22
s_lshl_b32 s3, s{sW}, 13
s_add_u32 s3, s3, {L_RR}
v_add_u32 v5, s{sT5}, v{vLANE}
v_and_b32 v5, 511, v5
v_lshlrev_b32 v5, 1, v5
s_lshl_b32 s{sT5}, s{sP}, 9
v_lshl_add_u32 v2, v0, 1, s{sT5}""")
    for i in range(6): P.I(f"v_mov_b32 v{vPAR+i}, 0")
    P.I(f"v_mov_b32 v{vROLE}, 0\ns_lshl_b32 s93, s{sP}, 2")
def early_loads(P, NT, XNT):
    par=[f"global_load_short_d16_hi v{vPAR+i}, v2, {sp(b)} {NT}" for i,b in enumerate((sARE,sAIM,sBRE,sBIM,sCRE,sCIM))]
    P.extend(par)
    P.I(f"""s_load_dword s{sTAG}, {sp(sWS)}, {WS_EPOCH}
s_load_dword s{sLD}, {sp(sLDT)}, s93
s_load_dword s{sDS}, {sp(sDSK)}, s93
s_cmp_lt_u32 s{sW}, 2
s_cselect_b64 {sp(rR)}, {sp(sX)}, {sp(sWM)}
s_and_b32 s{rR+1}, s{rR+1}, 0xffff""")
    P.I(f"global_load_short_d16_hi v{vROLE}, v5, {sp(sC)}")
    P.I(f"""s_add_u32 s6, s6, L_table-L_pc+4096
s_addc_u32 s7, s7, 0
v_lshlrev_b32 v{vT16}, 4, v0""")
def role_loads(P, XNT, late):
    lbl='L_rlb' if late else 'L_rla'
    P.I(f"s_cmp_eq_u32 s{sW}, 3\ns_cbranch_scc{0 if late else 1} {lbl}")
    for u in range(8):
        if u==4 and not late: P.I(f"s_cmp_eq_u32 s{sW}, 2\ns_cbranch_scc1 {lbl}")
        P.I(f"s_add_u32 m0, s3, {u*1024}")
        P.I(f"s_add_u32 s94, s94, s79" if u else "s_nop 0")
        P.I(f"buffer_load_dwordx4 v{22+(u&1)}, {sp(rR,4)}, s94 offen {XNT} lds", tag='rr')
    P.I(f"{lbl}:")
def table_loads(P):
    P.I(f"global_load_dwordx4 {vr(vTAB,4)}, v{vT16}, s[6:7] offset:-4096\nglobal_load_dwordx4 {vr(vTAB+4,4)}, v{vT16}, s[6:7]")

def setup(P, nowd=False, X='', wmap=0):
    P.extend(mksrd(rWS,sWS,WS_USED))
    P.I(f"s_cmp_lt_u32 s{sIDX}, 28\ns_cselect_b32 s{sT0}, 1835008, 0\ns_cselect_b32 s{sT1}, {WS_USED}, 0")
    for r,b in ((rWG,sWG),(rWU,sWU),(rWD,sWD)): P.extend(mksrd(r,b,1835008 if (nowd and r==rWD) else f"s{sT0}"))
    P.extend(mksrd(rWJ,sWS,f"s{sT1}"))
    if 'w' in X: P.I(f"s_mov_b32 s{rWG+2}, 0\ns_mov_b32 s{rWU+2}, 0")
    if 'm' in X: P.I(f"s_mov_b32 s{rR+2}, 0")
    if 'd' in X: P.I(f"s_mov_b32 s{rWD+2}, 0")
    if 's' in X: P.I(f"s_min_u32 s{rWJ+2}, s{rWJ+2}, {WS_XG}")
    if wmap: P.I(f"s_mov_b32 s{sCG}, s{sIDX}\ns_mov_b32 s{sKE}, s{sXCD}")
    else: P.I(f"""s_and_b32 s{sCG}, s{sXCD}, 3
s_mul_i32 s{sCG}, s{sCG}, 7
s_lshr_b32 s{sT0}, s{sIDX}, 2
s_add_u32 s{sCG}, s{sCG}, s{sT0}
s_and_b32 s{sKE}, s{sXCD}, 4
s_and_b32 s{sT0}, s{sIDX}, 3
s_add_u32 s{sKE}, s{sKE}, s{sT0}""")
    P.I(f"""s_lshl2_add_u32 s{sT0}, s{sCG}, s{sW}
s_mul_i32 s{sT1}, s{sT0}, 147
s_lshr_b32 s{sT1}, s{sT1}, 10
s_mul_i32 s{sT2}, s{sT1}, 7
s_sub_u32 s{sT0}, s{sT0}, s{sT2}
s_mul_i32 s{sT1}, s{sT1}, 231
s_cmp_lt_u32 s{sT0}, {G1}
s_cselect_b32 s{sT2}, {G1}, 1
s_cselect_b32 s{sT3}, 1, 33
s_mul_i32 s{sT0}, s{sT0}, s{sT3}
s_add_u32 s{sT0}, s{sT0}, s{sT1}
s_lshl_b32 s{sT0}, s{sT0}, 10
s_add_u32 s{sT0}, s{sT0}, {WS_WPF}
s_lshl_b32 s{sWST}, s{sT2}, 10
s_mul_i32 s{sT3}, s{sWST}, s{sKE}
s_lshl2_add_u32 s{sWO}, s{sT3}, s{sT0}
s_lshl_b32 s{sT2}, s{sT2}, 15
s_add_u32 s{sWA}, s{sT2}, s{sT0}
s_lshl_b32 s{sT0}, s{sKE}, 7
s_add_u32 s{sWA}, s{sWA}, s{sT0}""")
    L=vLANE
    P.I(f"""v_lshlrev_b32 v{vL16}, 4, v{L}
v_and_b32 v2, 15, v{L}
v_and_b32 v3, 48, v{L}
v_lshrrev_b32 v4, 4, v{L}
v_lshrrev_b32 v5, 5, v{L}
v_and_b32 v6, 3, v{L}
s_mul_i32 s{sT2}, s{sW}, 10240
s_add_u32 s{sT2}, s{sT2}, {L_Y}
v_mul_u32_u24 v7, 320, v4
v_lshl_add_u32 v7, v2, 4, v7
v_add_u32 v{vYW}, s{sT2}, v7
v_lshrrev_b32 v7, 5, v0
v_mul_u32_u24 v7, 1280, v7
v_and_b32 v8, 1, v0
v_mul_u32_u24 v9, 640, v8
v_bfe_u32 v10, v0, 1, 4
v_lshl_add_u32 v9, v10, 4, v9
v_add_u32 v{vYR}, v7, v9
v_lshrrev_b32 v7, 2, v0
v_lshlrev_b32 v7, 15, v7
v_lshl_add_u32 v{vXO}, v6, 4, v7
v_mul_u32_u24 v7, {FP}, v2
v_add_u32 v7, v7, v3
v_add_u32 v{vKF}, {L_F}, v7
v_mul_u32_u24 v7, {CP}, v2
s_mul_i32 s{sT2}, s{sW}, {16*CP}
v_add3_u32 v{vKC}, v7, v3, s{sT2}
v_bfe_u32 v7, v{L}, 2, 2
v_cvt_f32_u32 v{vSEL2}, v5
v_and_b32 v9, 31, v{L}
v_lshlrev_b32 v{vMC}, 12, v9
v_and_b32 v9, 8, v{L}
v_lshl_add_u32 v9, v9, 1, v2
v_lshlrev_b32 v{vSEL1}, 12, v9
v_lshl_add_u32 v9, v5, 3, v6
v_bfe_u32 v10, v{L}, 2, 3
v_lshlrev_b32 v11, 4, v10
v_lshl_add_u32 v{vMW}, v9, 12, v11
s_lshl_b32 s{sT2}, s{sW}, 6
s_add_u32 s{sT2}, s{sT2}, {L_GT+256}
v_lshl_add_u32 v10, v10, 3, s{sT2}
v_lshlrev_b32 v11, 8, v5
v_sub_u32 v{vGW}, v10, v11
v_lshlrev_b32 v10, 5, v5
v_add_u32 v{vGR}, {L_GT}, v10
v_and_b32 v9, 1, v4
v_lshl_add_u32 v10, v9, 1, v5
v_lshl_add_u32 v10, v10, 3, v7
v_lshl_add_u32 v10, v10, 1, v9
v_bfe_u32 v11, v{L}, 3, 1
v_lshl_add_u32 v10, v10, 1, v11
v_xor_b32 v10, s{sW}, v10
v_lshl_add_u32 v10, v10, 1, v8
v_bfe_u32 v11, v{L}, 1, 1
v_lshl_add_u32 v10, v10, 1, v11
v_lshlrev_b32 v10, 3, v10
v_add_u32 v{vWRA}, {L_WR}, v10""")
    P.I(f"""v_mul_u32_u24 v7, {HP}, v5
v_and_b32 v9, 31, v{L}
v_min_u32 v9, 29, v9
v_lshl_add_u32 v7, v9, 4, v7
v_add_u32 v7, {L_H}, v7
v_cmp_gt_u32 vcc, 64, v0
v_mov_b32 v9, {L_CZ}
v_mov_b32 v{vFG}, 0
v_cndmask_b32 v7, v9, v7, vcc
v_mov_b32 v{vFG+1}, 0
v_mov_b32 v{vFG+2}, 0
v_mov_b32 v{vFG+3}, 0
ds_write_b128 v7, {vr(vFG,4)}""")
    A0=vRA
    P.I(f"""v_lshrrev_b32 v2, 3, v{L}
v_and_b32 v3, 2, v2
v_mul_u32_u24 v2, 3584, v2
v_and_b32 v4, 7, v{L}
v_xor_b32 v3, v3, v4
v_xor_b32 v4, 4, v3
v_lshl_add_u32 v{A0+2}, v3, 4, v2
v_lshl_add_u32 v{A0+3}, v4, 4, v2
v_and_b32 v8, 1, v{L}
v_bfe_u32 v7, v{L}, 1, 3
v_mul_u32_u24 v7, {KIP}, v7
v_lshl_add_u32 v7, v8, 4, v7
v_add_u32 v{A0+1}, {L_KI+4096}, v7
s_mul_i32 s{sT0}, s{sKE}, {64*3584}
s_lshl_b32 s{sT1}, s{sCG}, 7
s_add_u32 s90, s{sT0}, s{sT1}""")
    if not nowd: P.I(f"""v_lshrrev_b32 v2, 2, v{L}
v_and_b32 v5, 3, v{L}
v_lshlrev_b32 v5, 4, v5
v_lshl_add_u32 v{A0+4}, v2, 10, v5
v_lshrrev_b32 v6, 5, v{L}
v_and_b32 v7, 3, v2
v_lshl_add_u32 v6, v6, 3, v7
v_bfe_u32 v7, v{L}, 4, 1
v_lshl_add_u32 v6, v6, 1, v7
v_lshl_add_u32 v6, v6, 1, v8
v_bfe_u32 v7, v{L}, 1, 1
v_lshl_add_u32 v6, v6, 1, v7
v_lshlrev_b32 v6, 3, v6
v_add_u32 v{A0}, {L_DR}, v6
s_mul_i32 s{sFS}, s{sXCD}, 28
s_add_u32 s{sFS}, s{sFS}, s{sIDX}
s_lshr_b32 s{sT2}, s{sFS}, 1
s_lshl_b32 s{sT2}, s{sT2}, 14
s_and_b32 s{sT1}, s{sFS}, 1
s_lshl_b32 s{sT1}, s{sT1}, 9
s_add_u32 s91, s{sT2}, s{sT1}""")

def x_jobs(P, PUB, diag):
    R=vROLE; G=vROLE+32; L=vLANE
    P.I(f"s_cmp_eq_u32 s{sW}, 2\ns_cbranch_scc1 L_rj2\ns_cmp_eq_u32 s{sW}, 1\ns_cbranch_scc1 L_rj1")
    P.I(f"""v_and_b32 v2, 7, v{L}
v_lshrrev_b32 v3, 3, v{L}
v_and_b32 v4, 2, v2
v_lshlrev_b32 v4, 1, v4
v_xor_b32 v4, v4, v3
v_lshlrev_b32 v4, 4, v4
v_lshl_add_u32 v4, v2, 7, v4
v_add_u32 v4, {L_RR}, v4
v_xor_b32 v5, 32, v4
v_mul_u32_u24 v3, {4*12288}, v3
v_lshl_add_u32 v2, v2, 4, v3
s_and_b32 s{sT0}, s{sP}, 7
s_mul_i32 s{sT0}, s{sT0}, {32*12288}
s_and_b32 s{sT1}, s{sP}, 0xf8
s_lshl4_add_u32 s{sT0}, s{sT1}, s{sT0}
s_add_u32 s{sT0}, s{sT0}, {WS_XG}""")
    for k in range(12): P.I(f"v_mov_b32 v{G+4*k+3}, s{sTAG}")
    P.I("s_waitcnt vmcnt(0)"); stamp(P,2,diag)
    for r in range(8): P.I(f"ds_read_b128 {vr(R+4*r,4)}, v{4+(r&1)} offset:{r*1024}")
    for g in range(3):
        for j in range(4):
            k=g*4+j
            for e in range(3):
                if 3*g+e<8: P.I(f"v_mov_b32 v{G+4*k+e}, v{R+4*(3*g+e)+j}")
            P.I(f"s_add_u32 s{sT1}, s{sT0}, {j*12288+g*4096}")
            P.I(f"buffer_store_dwordx4 {vr(G+4*k,4)}, v2, {sp(rWS,4)}, s{sT1} offen {PUB}")
    P.I(f"s_branch L_xje\nL_rj1:")
    P.I(f"""v_mov_b32 v2, 0
v_mov_b32 v3, 0
v_mov_b32 v4, 0
v_mov_b32 v5, 0
s_mov_b32 s{sT1}, 0x3f803f80
v_add_u32 v6, {L_RR+8192}, v{vL16}
v_mul_u32_u24 v8, 96, v{L}
v_lshlrev_b32 v9, 12, v{L}
s_lshl4_add_u32 s{sT0}, s{sP}, {WS_SG}""")
    P.I(f"v_mov_b32 v{G+3}, s{sTAG}\ns_waitcnt vmcnt(0)"); stamp(P,2,diag)
    for u in range(8): P.I(f"ds_read_b128 {vr(R+4*u,4)}, v6 offset:{u*1024}")
    for k in range(32):
        P.I(f"v_dot2c_f32_bf16 v{2+(k&1)}, s{sT1}, v{R+k}\nv_dot2c_f32_bf16 v{4+(k&1)}, v{R+k}, v{R+k}")
    P.I("v_add_f32 v2, v2, v3\nv_add_f32 v4, v4, v5")
    for m in ("quad_perm:[1,0,3,2]","quad_perm:[2,3,0,1]","row_half_mirror"):
        P.I(f"v_add_f32_dpp v2, v2, v2 {m} row_mask:0xf bank_mask:0xf\nv_add_f32_dpp v4, v4, v4 {m} row_mask:0xf bank_mask:0xf")
    P.I(f"""v_mul_f32 v2, 0x3b000000, v2
v_mul_f32 v4, 0x3b000000, v4
v_fma_f32 v4, -v2, v2, v4
v_max_f32 v4, 0, v4
v_cvt_pk_bf16_f32 v4, v4, v4
v_and_b32 v4, 0xffff0000, v4
v_add_f32 v4, 0x3727c5ac, v4
v_cvt_pk_bf16_f32 v4, v4, v4
v_and_b32 v4, 0xffff0000, v4
v_sqrt_f32 v4, v4
v_cvt_pk_bf16_f32 v2, v2, v4
ds_bpermute_b32 v{G}, v8, v2
ds_bpermute_b32 v{G+1}, v8, v2 offset:32
ds_bpermute_b32 v{G+2}, v8, v2 offset:64
s_waitcnt lgkmcnt(0)
s_mov_b64 exec, 7
buffer_store_dwordx4 {vr(G,4)}, v9, {sp(rWS,4)}, s{sT0} offen {PUB}
s_mov_b64 exec, -1
s_branch L_xje
L_rj2:""")
    mod_job(P,PUB,diag,1)
    P.I("L_xje:")
def mod_job(P, PUB, diag, nks):
    R=vROLE; L=vLANE; A0=vRA; w=nks+1
    assert L_MR%128==0
    P.I(f"""v_lshrrev_b32 v2, 4, v{L}
v_bfe_u32 v3, v{L}, 2, 2
v_lshl_add_u32 v4, v2, 3, v3
v_bfe_u32 v3, v{L}, 3, 1
v_lshl_add_u32 v4, v4, 1, v3
v_and_b32 v3, 1, v2
v_lshl_add_u32 v4, v4, 1, v3
v_and_b32 v3, 3, v{L}
v_lshl_add_u32 v4, v4, 2, v3
v_lshlrev_b32 v4, 3, v4
v_add_u32 v8, {L_RR+w*8192}, v4
v_xor_b32 v9, 32, v8
v_xor_b32 v10, 64, v8
v_xor_b32 v11, 96, v8
v_bfe_u32 v4, v{L}, 1, 2
v_lshl_add_u32 v4, v4, 2, v2
v_and_b32 v3, 1, v{L}
v_lshl_add_u32 v4, v4, 1, v3
v_lshlrev_b32 v{A0+5}, 4, v4
s_mov_b32 s{sT0}, {L_SC+(w-2)*128}
v_lshl_add_u32 v6, v{L}, 1, s{sT0}
v_and_b32 v7, 48, v{L}
v_add_u32 v7, s{sT0}, v7
s_lshl_b32 s{sT0}, s{sP}, 9
s_add_u32 s99, s{sT0}, {WS_MG+(w-2)*0x20000}
s_mov_b32 s{sT0}, 0xaaaaaaaa
s_mov_b32 s{sT1}, 0xaaaaaaaa
s_mov_b32 s{sT2}, 0xcccccccc
s_mov_b32 s{sT3}, 0xcccccccc
s_mov_b32 s{sT4}, 0xf0f0f0f0
s_mov_b32 s{sT5}, 0xf0f0f0f0""")
    if nks==1: P.I("s_waitcnt vmcnt(6)")
    P.I(f"""v_mul_f32 v4, 0xbfb8aa3b, v{R}
v_exp_f32 v4, v4
v_add_f32 v4, 1.0, v4
v_rcp_f32 v4, v4
v_mul_f32 v2, v{R}, v4
v_cvt_pk_bf16_f32 v2, v2, v2
ds_write_b16 v6, v2""")
    for ks in range(nks): P.I(f"ds_read_b128 {vr(R+4*ks,4)}, v7 offset:{ks*64}")
    P.I("s_waitcnt vmcnt(0)" if nks==1 else "@wait rr"); stamp(P,2,diag)
    A=R+16; ACC=R+16+32
    seq=[(ks,ct) for ks in range(nks) for ct in range(4)]
    for n,(ks,ct) in enumerate(seq):
        for hf in range(2): P.I(f"ds_read_b64_tr_b16 {vr(A+4*n+2*hf,2)}, v{8+ct} offset:{ks*4096+hf*512}")
    for n,(ks,ct) in enumerate(seq):
        P.I(f"v_mfma_f32_16x16x32_bf16 {vr(ACC+4*ct,4)}, {vr(A+4*n,4)}, {vr(R+4*ks,4)}, {vr(ACC+4*ct,4) if ks else 0}")
    P.I(f"v_mov_b32 v{R+3}, s{sTAG}")
    for ct in range(4):
        for e in range(2): P.I(f"v_cndmask_b32 v{A+2*ct+e}, v{ACC+4*ct+e}, v{ACC+4*ct+2+e}, {sp(sT0)}")
    for c2 in range(2):
        for e in range(2): P.I(f"v_cndmask_b32 v{A+8+2*c2+e}, v{A+4*c2+e}, v{A+4*c2+2+e}, {sp(sT2)}")
    for e in range(2): P.I(f"v_cndmask_b32 v{R+e}, v{A+8+e}, v{A+10+e}, {sp(sT4)}")
    P.I(f"""s_mov_b32 exec_lo, 0x00ff00ff
s_mov_b32 exec_hi, 0x00ff00ff
buffer_store_dwordx4 {vr(R,4)}, v{A0+5}, {sp(rWS,4)}, s99 offen {PUB}
s_mov_b64 exec, -1""")
def raw_wd_loads(P, NT):
    P.I(f"s_lshl_b32 s{sT0}, s{sW}, 11\ns_lshl_b32 s{sT1}, s{sW}, 7\ns_add_u32 m0, s{sT0}, {L_DR}\ns_add_u32 s{sT1}, s{sT1}, s91")
    P.I(f"buffer_load_dwordx4 v{vRA+4}, {sp(rWD,4)}, s{sT1} offen {NT} lds", tag='dr')
    P.I(f"s_add_u32 m0, s{sT0}, {L_DR+1024-64}\nv_add_u32 v245, s{sT0}, v{vRA}")
    P.I(f"buffer_load_dwordx4 v{vRA+4}, {sp(rWD,4)}, s{sT1} offen offset:64 {NT} lds", tag='dr')
def wd_job(P, ST):
    A=vHF+8
    P.I("@wait dr")
    for f in range(2):
        for hf in range(2): P.I(f"ds_read_b64_tr_b16 {vr(A+4*f+2*hf,2)}, v245 offset:{f*1024+hf*256}")
    P.I(f"""s_and_b32 s{sT0}, s{sFS}, 1
s_lshl2_add_u32 s{sT0}, s{sT0}, s{sW}
s_mul_i32 s{sT0}, s{sT0}, {2*112}
s_lshr_b32 s{sT1}, s{sFS}, 1
s_add_u32 s{sT0}, s{sT0}, s{sT1}
s_lshl_b32 s{sT0}, s{sT0}, 10
s_add_u32 s{sT0}, s{sT0}, {WS_WDF}
s_add_u32 s{sT1}, s{sT0}, {112*1024}""")
    for f in range(2):
        P.I(f"buffer_store_dwordx4 {vr(A+4*f,4)}, v{vL16}, {sp(rWJ,4)}, s{sT0+f} offen {ST}", tag='wdst')
def raw_w_loads(P, NT):
    P.I(f"s_mul_i32 s95, s{sW}, {16*3584}\ns_add_u32 s95, s95, s90\ns_lshl_b32 s96, s{sW}, 12")
    for q in range(2):
        for mat,r in ((0,rWG),(1,rWU)):
            P.I(f"s_add_u32 m0, s96, {L_WR+mat*2048+q*1024}")
            P.I(f"s_add_u32 s95, s95, {8*3584}" if (q and not mat) else "s_nop 0")
            P.I(f"buffer_load_dwordx4 v{vRA+2+mat}, {sp(r,4)}, s95 offen {NT} lds", tag='wr')

def cmul(o,a,b,t):
    return [f"v_pk_mul_f32 {vr(t,2)}, {vr(a,2)}, {vr(b,2)} op_sel_hi:[0,1]",
            f"v_pk_fma_f32 {vr(o,2)}, {vr(a,2)}, {vr(b,2)}, {vr(t,2)} op_sel:[1,1,0] op_sel_hi:[1,0,1] neg_lo:[1,0,0]"]
def factor_gen(P, lo=0, hi=99):
    B=vFG; are,aim,bre,bim,cre,cim=[vPAR+i for i in range(6)]
    R1,R8,R128,LOc,TMP,PK = B,B+2,B+4,B+6,B+8,B+12
    Pc=[B+16+2*c for c in range(8)]
    zr,zi,dt=B+32,B+33,B+34; M=[2,4,6]; PH=[8,9,10]
    P.I(f"s_lshr_b32 s{sT0}, s{sW}, 1\ns_mul_i32 s{sT1}, s{sT0}, {64*FP-512}\ns_lshl_b32 s{sT2}, s{sW}, 8\ns_add_u32 m0, s{sT1}, s{sT2}")
    P0=P
    if lo: P=Prog()
    P.I(f"""s_lshl_b32 s{sT0}, s{sT0}, 4
s_lshr_b32 s{sT1}, s{sLD}, s{sT0}
s_lshl_b32 s{sT1}, s{sT1}, 16
v_mov_b32 v{dt}, {hex(LOG2E)}
v_mul_f32 v{dt}, s{sT1}, v{dt}
v_exp_f32 v{dt}, v{dt}""")
    P.extend(cmul(Pc[0],cre,bre,TMP))
    P.I(f"""v_cvt_pk_bf16_f32 v{dt}, v{dt}, v{dt}
v_and_b32 v{dt}, 0xffff0000, v{dt}
v_mul_f32 v{zr}, v{dt}, v{are}
v_mul_f32 v{zi}, v{dt}, v{aim}
v_mul_f32 v{zr}, {hex(LOG2E)}, v{zr}
v_mul_f32 v{zi}, 0.15915494, v{zi}
v_pk_mul_f32 {vr(Pc[0],2)}, {vr(Pc[0],2)}, {vr(dt,2)} op_sel_hi:[1,0] neg_hi:[1,0]""")
    cx=((R1,1,True),(R8,8,False),(R128,128,True))
    for (o,sc,cj),m,ph in zip(cx,M,PH):
        if sc==1: P.I(f"v_exp_f32 v{m}, v{zr}\nv_fract_f32 v{ph}, v{zi}")
        else: P.I(f"v_mul_f32 v{m}, {hex(f32(sc))}, v{zr}\nv_mul_f32 v{ph}, {hex(f32(sc))}, v{zi}\nv_exp_f32 v{m}, v{m}\nv_fract_f32 v{ph}, v{ph}")
        P.I(f"v_cos_f32 v{o}, v{ph}\nv_sin_f32 v{o+1}, v{ph}")
    for (o,sc,cj),m,ph in zip(cx,M,PH):
        P.I(f"v_pk_mul_f32 {vr(o,2)}, {vr(o,2)}, {vr(m,2)} op_sel_hi:[1,0]" + (" neg_hi:[1,0]" if cj else ""))
    P=P0
    steps_lo=[('one',48),('put',49,R8)]+[('mul',48+b,LOc,(R8 if b==2 else LOc),R8) for b in range(2,16)]
    steps_hi=[('put',0,Pc[0])]+[('mul',c,Pc[c],Pc[c-1],R1) for c in range(1,8)]
    row=8
    for e in range(1,17):
        cs = range(8) if e<2 else range(0,8,2) if e<4 else (0,4) if e<8 else (0,)
        for c in cs:
            assert HI[row]==128*e+c
            steps_hi.append(('mul',row,Pc[c],Pc[c],R128)); row+=1
    for k,s in enumerate(steps_lo+steps_hi):
        if not lo<=k<hi: continue
        kk=PK+(k&3)
        if s[0]=='one': P.I(f"v_mov_b32 v{kk}, 0x3f80")
        else:
            if s[0]=='mul': P.extend(cmul(s[2],s[3],s[4],TMP+2*(k&1)))
            P.I(f"v_cvt_pk_bf16_f32 v{kk}, v{s[2]}, v{s[2]+1}")
        P.I(f"ds_write_addtid_b32 v{kk} offset:{L_F+s[1]*FP}")

def kgen(P, diag, mid=[], skip=0, order=0):
    A=vROLE; ACC=vFG
    P.I(f"""s_lshl_b32 s{sT0}, s{sDS}, 16
s_and_b32 s{sT1}, s{sDS}, 0xffff0000
v_cmp_eq_u32 vcc, 0, v0
v_mov_b32 v2, s{sT0}
v_mov_b32 v3, s{sT1}
s_mul_i32 s{sT2}, s{sW}, {16*FP}
v_cndmask_b32 v{ACC}, 0, v2, vcc
v_cndmask_b32 v{ACC+4}, 0, v3, vcc
v_add_u32 v5, s{sT2}, v{vKF}""")
    for r in (1,2,3,5,6,7): P.I(f"v_mov_b32 v{ACC+r}, 0")
    P.I(f"s_cmp_eq_u32 s{sW}, 3\ns_waitcnt lgkmcnt(0)\ns_barrier\ns_cbranch_scc1 L_wdjob")
    def rd(n):
        ks,ch=n>>1,n&1; b=A+8*(n%9)
        return [f"ds_read_b128 {vr(b,4)}, v{vKF} offset:{ch*64*FP+48*FP+ks*64}", f"ds_read_b128 {vr(b+4,4)}, v5 offset:{ch*64*FP+ks*64}"]
    for n in range(7): P.extend(rd(n))
    m2=[[Ins(x.text,x.tag) for x in g] for g in mid]; mid=list(mid)
    for n in range(16):
        if mid and n>=skip: P.extend(mid.pop(0))
        b=A+8*(n%9); a=vr(ACC+4*(n&1),4)
        P.I(f"v_mfma_f32_16x16x32_bf16 {a}, {vr(b,4)}, {vr(b+4,4)}, {a}")
        if n+7<16: P.extend(rd(n+7))
    for r in range(4): P.I(f"v_cvt_pk_bf16_f32 v{8+r}, v{ACC+r}, v{ACC+4+r}")
    P.I(f"ds_write_b128 v{vKC}, v[8:11]\ns_branch L_kgen_end\nL_wdjob:")
    if order==0:
        for g in m2: P.extend(g)
    mod_job(P,'sc1',diag,2)
    if order==1:
        for g in m2: P.extend(g)
    P.I(f"ds_write_b128 v{vRA+1}, {vr(ACC,4)}")
    P.I("L_kgen_end:")

def poll_groups(extra=None):
    Q=Prog(); poll_loads(Q); G=[[]]
    if extra: extra(Q)
    for x in Q.ins:
        G[-1].append(x)
        if x.kind=='vmem': G.append([])
    return G[:-1]
def poll_loads(P):
    LD='sc1'
    P.I(f"s_mul_i32 s94, s{sP}, 12288\ns_add_u32 s94, s94, {WS_XG}")
    for g in range(3):
        P.I(f"buffer_load_dwordx4 {vr(vPOLL+4*g,4)}, v{vT16}, {sp(rWS,4)}, s94 offen {LD}")
        P.I(f"s_mov_b32 s79, {WS_SG+g*4096}\nbuffer_load_dwordx4 {vr(vPOLL+12+4*g,4)}, v{vT16}, {sp(rWS,4)}, s79 offen {LD}")
        if g<2: P.I(f"s_add_u32 s94, s94, 4096")
    P.I(f"s_lshl4_add_u32 s3, s{sP}, {WS_MG}")
    P.I(f"buffer_load_dwordx4 {vr(vPOLL+24,4)}, v{vMC}, {sp(rWS,4)}, s3 offen {LD}", tag='poll')
vQ=144
def poll2_loads(P):
    P.I(f"""s_lshl4_add_u32 s3, s{sP}, {WS_MG+0x20000}
buffer_load_dwordx4 {vr(vQ,4)}, v{vSEL1}, {sp(rWS,4)}, s3 offen sc1
s_lshl2_add_u32 s3, s{sKE}, s{sW}
s_lshl_b32 s3, s3, 7
s_add_u32 s3, s3, {WS_MG+0x20000+8*4096}
buffer_load_dwordx4 {vr(vQ+4,4)}, v{vMW}, {sp(rWS,4)}, s3 offen sc1
s_add_u32 s3, s3, {4*4096}""")
    P.I(f"buffer_load_dwordx4 {vr(vQ+8,4)}, v{vMW}, {sp(rWS,4)}, s3 offen sc1", tag='poll2')
def poll2_work(ST):
    mc,mw=vQ,vQ+4; dpp=" row_mask:0xf bank_mask:0xf"
    L=[["L_p2_chk:","@wait poll2",f"v_min3_u32 v2, v{vQ+3}, v{vQ+7}, v{vQ+11}",f"v_max3_u32 v3, v{vQ+3}, v{vQ+7}, v{vQ+11}",f"v_min_u32 v2, s{sTAG}, v2",f"v_max_u32 v3, s{sTAG}, v3",
        "v_cmp_ne_u32 vcc, v2, v3","s_cbranch_vccnz L_q_retry","L_q_ok:"]]
    L[0][0]="L_q_chk:"
    X=[f"v_add_f32 v{mw}, v{mw}, v{vQ+8}",f"v_add_f32 v{mw+1}, v{mw+1}, v{vQ+9}"]
    for m in ("quad_perm:[1,0,3,2]","quad_perm:[2,3,0,1]"):
        X+=[f"v_add_f32_dpp v{r}, v{r}, v{r} {m}{dpp}" for r in (mc,mc+1,mw,mw+1)]
    X+=[f"v_add_f32_dpp v{r}, v{r}, v{r} row_half_mirror{dpp}" for r in (mc,mc+1)]
    X+=[f"v_cvt_pk_bf16_f32 v{mw+1}, v{mw}, v{mw+1}", f"v_cvt_pk_bf16_f32 v{mc+1}, v{mc}, v{mc+1}",
        f"v_lshlrev_b32 v{mw}, 16, v{mw+1}", f"v_and_b32 v{mw+1}, 0xffff0000, v{mw+1}", f"v_lshlrev_b32 v{mc}, 16, v{mc+1}", f"v_and_b32 v{mc+1}, 0xffff0000, v{mc+1}",
        f"v_add_f32 v{mw}, v{mw}, v{vSEL2}", f"v_add_f32 v{mw+1}, v{mw+1}, v{vSEL2}", f"v_cvt_pk_bf16_f32 v{mw+1}, v{mw}, v{mw+1}",
        f"v_lshlrev_b32 v{mw}, 16, v{mw+1}", f"v_and_b32 v{mw+1}, 0xffff0000, v{mw+1}", f"ds_write_b64 v{vGW}, {vr(mw,2)}"]
    late=[f"v_mov_b32_dpp v{vMOD+4+2*k+e}, v{mc+e} row_newbcast:{8*k}{dpp}" for k in range(2) for e in range(2)]
    return L[0],X,late
def retry2_block(P):
    P.I(f"L_q_retry:\ns_add_u32 s{sCNT}, s{sCNT}, 1\ns_cmp_gt_u32 s{sCNT}, 20000\ns_waitcnt vmcnt(0) lgkmcnt(0)\ns_cbranch_scc1 L_q_ok")
    poll2_loads(P)
    P.I("s_waitcnt vmcnt(0)\ns_branch L_q_chk")

vGA=140
def table_unpack(P):
    P.I(f"v_mov_b32 v{vUA}, v{vTAB+7}\nv_mov_b32 v{vKA}, v{vTAB+6}")
    for j in range(11):
        P.I(f"v_lshrrev_b32 v{vGA+j}, 16, v{vTAB+j//2}" if j&1 else f"v_and_b32 v{vGA+j}, 0xffff, v{vTAB+j//2}")
def k_image(P, G, npre, skip):
    E=vROLE+40; O=vROLE; GA=vGA
    for _ in range(npre): P.extend(G.pop(0))
    P.I(f"""s_mov_b32 s{sT4}, 0x05040100
s_mov_b32 s{sT5}, 0x07060302
v_add_u32 v2, {L_KI}, v{vT16}
s_waitcnt lgkmcnt(0)
s_barrier""")
    for j in range(11): P.I(f"ds_read_b32 v{E+j}, v{GA+j}")
    k=0
    for c in (3,2,1,0):
        for ch in range(2):
            o=O+4*k; k+=1
            for i in range(4):
                j=3-c+2*i
                P.I(f"v_perm_b32 v{o+i}, v{E+j+1}, v{E+j}, s{sT4+ch}")
            P.I(f"ds_write_b128 v2, {vr(o,4)} offset:{(ch*4+c)*KIP}")
            if G and k>skip: P.extend(G.pop(0))
    for g in G: P.extend(g)

def check_tags(P, diag):
    P.I(f"s_mov_b32 s{sCNT}, 0\nL_ka_chk:")
    P.I(f"""@wait poll
v_min_u32 v2, s{sTAG}, v{vPOLL+27}
v_max_u32 v3, s{sTAG}, v{vPOLL+27}
v_min3_u32 v2, v2, v{vPOLL+15}, v{vPOLL+3}
v_max3_u32 v3, v3, v{vPOLL+15}, v{vPOLL+3}
v_min3_u32 v2, v2, v{vPOLL+19}, v{vPOLL+7}
v_max3_u32 v3, v3, v{vPOLL+19}, v{vPOLL+7}
v_min3_u32 v2, v2, v{vPOLL+23}, v{vPOLL+11}
v_max3_u32 v3, v3, v{vPOLL+23}, v{vPOLL+11}
v_cmp_ne_u32 vcc, v2, v3
s_cbranch_vccnz L_ka_retry
L_ka_ok:""")
    if diag: P.I(f"s_add_u32 s{sCNT}, s{sCNT}, 1\nv_writelane_b32 v255, s{sCNT}, 31")
def retry_block(P):
    P.I(f"L_ka_retry:\ns_add_u32 s{sCNT}, s{sCNT}, 1\ns_cmp_gt_u32 s{sCNT}, 20000\ns_waitcnt lgkmcnt(0)\ns_cbranch_scc1 L_ka_ok")
    poll_loads(P)
    P.I("s_waitcnt vmcnt(0)\ns_branch L_ka_chk")

def make_h(P):
    Q=vPOLL; mc=Q+24; mw=Q+28; Mm=vROLE; Mr=vROLE+8; O=vROLE+16
    dpp=" row_mask:0xf bank_mask:0xf"
    chain=[]
    for m in ("quad_perm:[1,0,3,2]","quad_perm:[2,3,0,1]","row_half_mirror","row_mirror"):
        chain.append([f"v_add_f32_dpp v{r}, v{r}, v{r} {m}{dpp}" for r in (mc,mc+1)])
    chain+=[[f"v_cvt_pk_bf16_f32 v{mc}, v{mc}, v{mc+1}", f"v_mov_b32 v{mc+1}, v{mc}"],
            [f"v_permlane16_swap_b32 v{mc}, v{mc+1}", f"v_lshlrev_b32 v{vMOD}, 16, v{mc}", f"v_and_b32 v{vMOD+1}, 0xffff0000, v{mc}", f"v_lshlrev_b32 v{mc}, 16, v{mc+1}", f"v_and_b32 v{mc+1}, 0xffff0000, v{mc+1}"],
            [f"v_add_f32 v{mc}, 1.0, v{mc}", f"v_add_f32 v{mc+1}, 1.0, v{mc+1}", f"v_cvt_pk_bf16_f32 v{mc}, v{mc}, v{mc+1}"],
            [f"v_lshlrev_b32 v{vMOD+2}, 16, v{mc}", f"v_and_b32 v{vMOD+3}, 0xffff0000, v{mc}"]]
    for r in range(8):
        st=Q+12+4*(r//3)+r%3; xr=Q+4*(r//3)+r%3
        P.extend(chain[r])
        P.I(f"""v_and_b32 v{Mr+r}, 0xffff0000, v{st}
v_lshlrev_b32 v{Mm+r}, 16, v{st}
v_rcp_f32 v{Mr+r}, v{Mr+r}
v_lshlrev_b32 v{vXF+r}, 16, v{xr}
v_and_b32 v{vXF+8+r}, 0xffff0000, v{xr}""")
    P.I(f"v_add_u32 v2, {L_H+480}, v{vT16}")
    for ch in range(2):
        sel=f"op_sel:[0,{ch},{ch}] op_sel_hi:[1,{ch},{ch}]"
        for r in range(0,8,2): P.I(f"v_pk_add_f32 {vr(vHF+8*ch+r,2)}, {vr(vXF+8*ch+r,2)}, {vr(Mm+r,2)} neg_lo:[0,1] neg_hi:[0,1]")
        for r in range(0,8,2): P.I(f"v_pk_mul_f32 {vr(vHF+8*ch+r,2)}, {vr(vHF+8*ch+r,2)}, {vr(Mr+r,2)}")
        for r in range(0,8,2): P.I(f"v_pk_fma_f32 {vr(vHF+8*ch+r,2)}, {vr(vHF+8*ch+r,2)}, {vr(vMOD+2,2)}, {vr(vMOD,2)} {sel}")
        for r in range(0,8,2): P.I(f"v_cvt_pk_bf16_f32 v{O+4*ch+r//2}, v{vHF+8*ch+r}, v{vHF+8*ch+r+1}")
        P.I(f"ds_write_b128 v2, {vr(O+4*ch,4)} offset:{ch*HP}")

def gb_store(P, ST):
    P.I(f"""s_cmp_lg_u32 s{sW}, 2
s_cbranch_scc1 L_nogb
s_lshl3_add_u32 s{sT2}, s{sP}, {WS_GBF}
s_mov_b64 exec, 1
buffer_store_dwordx2 {vr(vMOD+6,2)}, v{vL16}, {sp(rWS,4)}, s{sT2} offen {ST}
s_mov_b64 exec, -1
L_nogb:""")
def w_side(ST):
    RAW=vPOLL; WP=vPOLL+16; GB=[48,64,80,96]; U=112; S1,S2=vHF,vHF+2
    rd=[]; main=[]; sums=[]
    for k in range(4):
        g=GB[k]
        rd.append([f"ds_read_b64_tr_b16 {vr(RAW+4*k+2*hf,2)}, v{vWRA} offset:{k*4096+hf*512}" for hf in range(2)]
                 +[f"ds_read_b128 {vr(g+4*q,4)}, v{vGR} offset:{k*64+q*16}" for q in range(2)])
        L=[]
        for d in range(4):
            u=U+8*k+2*d
            L+=[f"v_lshlrev_b32 v{u}, 16, v{RAW+4*k+d}", f"v_and_b32 v{u+1}, 0xffff0000, v{RAW+4*k+d}",
                f"v_mul_f32 v{g+2*d}, v{u}, v{g+2*d}", f"v_mul_f32 v{g+2*d+1}, v{u+1}, v{g+2*d+1}", f"v_cvt_pk_bf16_f32 v{WP+4*k+d}, v{g+2*d}, v{g+2*d+1}"]
        L.append((f"buffer_store_dwordx4 {vr(WP+4*k,4)}, v{vL16}, {sp(rWJ,4)}, s{sWO} offen {ST}",'wpst'))
        if k<3: L.append(f"s_add_u32 s{sWO}, s{sWO}, s{sWST}")
        main.append(L)
        for i in range(8):
            e=i&1; first=(k==0 and i<2)
            sums.append(f"v_mul_f32 v{S2+e}, v{U+8*k+i}, v{g+8+i}" if first else f"v_fmac_f32 v{S2+e}, v{U+8*k+i}, v{g+8+i}")
            if k==0 and i<2: continue
            sums.append(f"v_add_f32 v{S1+e}, v{g+e}, v{g+i}" if (k==0 and i<4) else f"v_add_f32 v{S1+e}, v{S1+e}, v{g+i}")
    rdsb=[f"ds_read_b128 {vr(GB[k]+8+4*q,4)}, v{vGR} offset:{256+k*64+q*16}" for k in range(4) for q in range(2)]
    tail=[f"v_add_f32 v{S1}, v{S1}, v{S1+1}", f"v_add_f32 v{S2}, v{S2}, v{S2+1}", f"v_mov_b32 v{S1+1}, v{S1}", f"v_mov_b32 v{S2+1}, v{S2}",
          f"v_lshlrev_b32 v2, 2, v{vLANE}", "s_nop 0",
          f"v_permlane32_swap_b32 v{S1}, v{S1+1}", f"v_permlane32_swap_b32 v{S2}, v{S2+1}",
          f"v_add_f32 v{S1}, v{S1}, v{S1+1}", f"v_add_f32 v{S2}, v{S2}, v{S2+1}", f"v_cvt_pk_bf16_f32 v{S1}, v{S1}, v{S2}",
          "s_mov_b32 exec_hi, 0", (f"buffer_store_dword v{S1}, v2, {sp(rWJ,4)}, s{sWA} offen {ST}",'auxst'), "s_mov_b32 exec_hi, -1"]
    return rd,main,rdsb,sums,tail

def conv_reads(vi):
    b=vi&1; o=192-64*vi
    U=[(f"ds_read_b128 {ar(64+32*b+4*k,4)}, v{vUA} offset:{512*k+o}",f"c{vi}_{k}") for k in range(8)]
    K=[[(f"ds_read_b64 {ar(32*b+4*k+2*hf,2)}, v{vKA} offset:{512*(7-k)+o+8*hf}",f"c{vi}_{k}") for hf in range(2)] for k in range(8)]
    return U,K
def conv(P, ST, cfg, midbar, wdj):
    ACC=16
    order=sorted([(u,s) for u in range(8) for s in range(8) if u+s<8], key=lambda t:(t[1],t[0]))
    rd,main,rdsb,sums,tail=w_side(ST)
    chk,work,bc=poll2_work(ST)
    Q=Prog(); gb_store(Q,ST); gbs=[[x.text for x in Q.ins]]
    P.extend(conv_reads(0)[0])
    first=set(); side=[]; QAT=cfg.get('QAT',20); LV=cfg.get('LV',1); FV=cfg.get('FV',LV); SL=cfg.get('SUMLATE',0)
    for vi in range(4):
        b=vi&1; nxt=[]
        if vi==LV: nxt+=[(x,'wtr') for r in rd[:2] for x in r]+wdj[:4]
        if vi<3:
            U,K=conv_reads(vi+1); nxt+=[y for k in range(8) for y in [U[k]]+K[k]]
        if vi==0: side+=work
        if vi==1 and LV>1: side+=bc+gbs
        if vi==LV: side+=['@wait wtr']+rd[2]+rd[3]+main[0]+wdj[4:]+main[1]+([] if SL else rdsb)+main[2]+main[3]+(bc+gbs if LV==1 else [])+([] if SL else sums)
        waits = {0:0,8:1,15:7} if vi==0 else {0:7}
        start = QAT+1 if vi==0 else 8 if vi==LV else 0
        for n,(u,s) in enumerate(order if (vi==0 or not cfg.get('ORD',1)) else sorted(order,key=lambda t:(t[0]+t[1],t[0]))):
            t=u+s; a=vr(ACC+4*t,4)
            if n in waits: P.I(f"@wait c{vi}_{waits[n]}")
            P.I(f"v_mfma_f32_16x16x32_bf16 {a}, {ar(32*b+4*u,4)}, {ar(64+32*b+4*s,4)}, {a if t in first else 0}"); first.add(t)
            slots=2-((n+1) in waits or n==35)
            if vi==0 and FV==0 and n==0: P.extend(midbar); continue
            if vi in (LV,FV) and n==0:
                P.I("@wait"+(" wr dr" if vi==LV else "")+(" wdst" if vi==FV else "")+"\ns_waitcnt lgkmcnt(0)\ns_barrier")
                if vi==FV: P.extend(midbar)
                continue
            if vi==0 and n==QAT: P.extend(chk); continue
            if nxt:
                P.extend([nxt.pop(0)]); slots-=1
                if n<start and slots and nxt: P.extend([nxt.pop(0)]); slots-=1
            while slots>0 and side and n>=start:
                x=side.pop(0)
                if isinstance(x,list): P.extend(x); slots=0
                else: P.extend([x]); slots-=1
        assert not nxt, len(nxt)
        if vi==0: P.extend(side); print('  conv step 0 spill',len(side)); side=[]
        print('  conv step',vi,'side backlog',len(side))
    assert not any(isinstance(x,list) for x in side)
    if SL: return ACC,side,rdsb+sums+tail
    return ACC,side+tail,[]

def conv_epilogue(P, ACC, tail, XST, pre=[], prebar=[], postbar=[], tmax=99, after=[]):
    tail=list(tail); P.extend(pre)
    for t in range(8):
        P.I(f"ds_write_b128 v{vYW}, {vr(ACC+4*t,4)} offset:{1280*t}")
        k=min(max(5,-(-len(tail)//(8-t))),len(tail),tmax)
        if len(tail)-k<4: k=len(tail)
        P.extend(tail[:k]); tail=tail[k:]
    P.extend(prebar)
    P.I(f"s_lshl_b32 s{sT0}, s{sP}, 7\ns_add_u32 s{sT0}, s{sT0}, {WS_X1B}\ns_waitcnt lgkmcnt(0)\ns_barrier")
    Y=16
    for ch in range(2):
        for g in range(2):
            for vh in range(2):
                P.I(f"ds_read_b128 {vr(Y+16*ch+8*vh+4*g,4)}, v{vYR} offset:{L_Y+(2*ch+vh)*10240+320*g}")
    P.extend(postbar)
    for ch in range(2):
        y=Y+16*ch
        for r in range(0,8,2): P.I(f"v_pk_add_f32 {vr(y+r,2)}, {vr(y+r,2)}, {vr(y+8+r,2)}")
        for r in range(0,8,2): P.I(f"v_pk_fma_f32 {vr(y+r,2)}, {vr(y+r,2)}, {vr(vMOD+4,2)}, {vr(vXF+8*ch+r,2)} op_sel:[0,{ch},0] op_sel_hi:[1,{ch},1]")
        for r in range(0,8,2): P.I(f"v_cvt_pk_bf16_f32 v{4+4*ch+r//2}, v{y+r}, v{y+r+1}")
        P.I(f"buffer_store_dwordx4 {vr(4+4*ch,4)}, v{vXO}, {sp(rWS,4)}, s{sT0} offen offset:{64*ch} {XST}", tag='x1st')
    print('  after the x1 stores:', len(tail), '+', len(after))
    P.extend(tail); P.extend(after)

def body(P, n, diag, cfg, H):
    NT=cfg.get('NT','nt'); ST='sc1'
    entry(P,n,diag,256,cfg.get('PERM',[2,3,0,5,1,7,4,6] if cfg.get('QSYNC',0) else None)); role_addr(P)
    P.I("s_waitcnt lgkmcnt(0)"); stamp0_commit(P,diag); early_loads(P,NT,NT)
    role_loads(P,NT,0); table_loads(P); setup(P,False,cfg.get('X',''),cfg.get('WMAP',0) or cfg.get('QSYNC',0)); P.extend(H['setup']); role_loads(P,NT,1)
    P.I(f"s_waitcnt lgkmcnt(0)\ns_add_u32 s{sTAG}, s{sTAG}, 1\ns_barrier")
    stamp(P,1,diag)
    H['idle'](P)
    P.I("@forget "+" ".join(str(r) for r in list(range(vPAR,vPAR+6))+[vROLE]+list(range(vTAB,vTAB+8))))
    cut=cfg.get('CUT',0)
    if cut:
        P.I(f"s_waitcnt vmcnt(10)\ns_cmp_lg_u32 s{sW}, 2\ns_cbranch_scc1 L_f1\ns_waitcnt vmcnt(6)\nL_f1:")
        P.I("@forget "+" ".join(str(r) for r in list(range(vPAR,vPAR+6))+[vROLE]+list(range(vTAB,vTAB+8))))
        factor_gen(P,0,cut)
        stamp(P,10,diag)
        P.I(f"s_cmp_eq_u32 s{sW}, 3\ns_cbranch_scc1 L_xje")
    x_jobs(P,'sc1',diag)
    P.I("@forget "+" ".join(str(r) for r in list(range(vPAR,vPAR+6))+[vROLE]+list(range(vTAB,vTAB+8))))
    stamp(P,3,diag)
    da,wa=cfg.get('DAT',0),cfg.get('WAT',1)
    def raws(k):
        if da==k: raw_wd_loads(P,cfg.get('DNT',NT))
        if wa==k: raw_w_loads(P,NT)
    raws(0)
    factor_gen(P,cut)
    stamp(P,4,diag)
    raws(1)
    G=poll_groups((lambda Q: raw_w_loads(Q,NT)) if wa==3 else None)
    for _ in range(cfg.get('PEARLY',0)): P.extend(G.pop(0))
    table_unpack(P)
    npm=cfg.get('PMID',0); mid=G[:npm]; G=G[npm:]
    kgen(P,diag,mid,cfg.get('PMSKIP',0),cfg.get('PMORD',0)); stamp(P,5,diag)
    k_image(P,G,min(len(G),cfg.get('PPRE',5)),cfg.get('PSKIP',0))
    raws(2)
    wdj=[]
    if da<2: wd_job(P,ST)
    else:
        Q=Prog(); wd_job(Q,ST); wdj=[(x.text,x.tag) for x in Q.ins[1:]]
    stamp(P,6,diag)
    P.I("s_waitcnt lgkmcnt(0)\ns_barrier")
    for k in conv_reads(0)[1]: P.extend(k)
    check_tags(P,diag); stamp(P,11,diag)
    poll2_loads(P); raws(4)
    make_h(P)
    if cfg.get('FV',1)==0: P.I("@wait wdst")
    P.I("s_waitcnt lgkmcnt(0)\ns_barrier")
    stamp(P,7,diag)
    acc,tail,after=conv(P,ST,cfg,H['midbar'] if da<2 else [],wdj); stamp(P,8,diag)
    conv_epilogue(P,acc,tail,ST,H.get('pre',[]),H.get('prebar',[]),H.get('postbar',[]),cfg.get('TMAX',99),after)
```

```python
from prog import *
from layout import *
from ka import sp, vr, ar, mksrd, f32, stamp, stamp_out, rWS, rOUT, sXCD, sIDX, sW
import ka
sXB,sWB,sAB,sXM,sFL,sPL,sA0,sA1,sD0,sD1,sNT,sMT,sFB,sCNT = range(8,22)
sQ=22
sT0,sT1,sT2,sT3,sT4 = 80,81,82,83,84
vLANE,vL16,vWL = 1,2,14
NS=16; L_XS=0; L_RING=4*NS*1024; RING=96
LDS_C=L_RING+RING*1024
def entry(P,name,diag):
    P.I(f".globl {name}\n.p2align 8\n.type {name},@function\n{name}:\n@reset")
    P.I(f"""s_cmp_ge_u32 s2, 256
s_cbranch_scc1 L_{name}_exit
s_load_dwordx2 s[42:43], s[0:1], 136
s_load_dwordx2 s[38:39], s[0:1], 120
s_and_b32 s{sXCD}, s2, 7
s_lshr_b32 s{sIDX}, s2, 3
v_lshrrev_b32 v3, 6, v0
v_and_b32 v{vLANE}, 63, v0
v_readfirstlane_b32 s{sW}, v3""")
    ka.stamp0_issue(P,diag)
def srds(P,diag):
    P.I("s_waitcnt lgkmcnt(0)"); ka.stamp0_commit(P,diag)
    P.extend(mksrd(rWS,42,WS_USED)); P.extend(mksrd(rOUT,38,2097152))

def c_maps():
    return f"""s_lshr_b32 s{sT0}, s{sXCD}, 2
s_lshl_b32 s{sT0}, s{sT0}, 5
s_and_b32 s{sT1}, s{sIDX}, 28
s_add_u32 s{sT0}, s{sT0}, s{sT1}
s_add_u32 s{sT0}, s{sT0}, s{sW}
s_and_b32 s{sT1}, s{sXCD}, 3
s_and_b32 s{sT3}, s{sIDX}, 3
s_lshl2_add_u32 s{sT2}, s{sT1}, s{sT3}
s_lshl_b32 s{sXB}, s{sT0}, 15
s_add_u32 s{sXB}, s{sXB}, {WS_X1B}
s_mul_i32 s{sWB}, s{sT2}, {231*1024}
s_add_u32 s{sWB}, s{sWB}, {WS_WPF}
s_mul_i32 s{sXM}, s{sW}, {NS*1024}
s_mul_i32 s{sAB}, s{sT0}, 112
s_mul_i32 s{sT2}, s{sT2}, 7
s_add_u32 s{sAB}, s{sAB}, s{sT2}
s_lshl_b32 s{sAB}, s{sAB}, 10
s_add_u32 s{sAB}, s{sAB}, {WS_ACT}
s_lshr_b32 s{sFL}, s{sT0}, 1
s_lshl2_add_u32 s{sFL}, s{sFL}, s{sT1}
s_lshl_b32 s{sFL}, s{sFL}, 10
s_and_b32 s{sT0}, s{sT0}, 1
s_lshl2_add_u32 s{sT0}, s{sT0}, s{sT3}
s_lshl2_add_u32 s{sFL}, s{sT0}, s{sFL}
s_add_u32 s{sFL}, s{sFL}, {WS_FLAG}""".split('\n')
def d_maps(DM=0):
    head=f"""s_lshr_b32 s{sT1}, s{sIDX}, 3
s_lshl2_add_u32 s{sT2}, s{sXCD}, s{sT1}
s_and_b32 s{sT1}, s{sIDX}, 7""" if not DM else f"""s_lshr_b32 s{sT1}, s{sIDX}, 2
s_lshr_b32 s{sT2}, s{sXCD}, 1
s_lshl3_add_u32 s{sT2}, s{sT2}, s{sT1}
s_and_b32 s{sT1}, s{sIDX}, 3
s_and_b32 s{sT3}, s{sXCD}, 1
s_lshl2_add_u32 s{sT1}, s{sT3}, s{sT1}"""
    return f"""{head}
s_mul_i32 s{sT3}, s{sW}, {28*1024}
s_mul_i32 s{sA0}, s{sT2}, {224*1024}
s_add_u32 s{sA0}, s{sA0}, s{sT3}
s_add_u32 s{sA0}, s{sA0}, {WS_ACT}
s_mul_i32 s{sD0}, s{sT1}, {224*1024}
s_add_u32 s{sD0}, s{sD0}, s{sT3}
s_add_u32 s{sD0}, s{sD0}, {WS_WDF}
s_add_u32 s{sD1}, s{sD0}, {112*1024}
s_bitcmp1_b32 s{sW}, 0
s_cselect_b32 s{sPL}, {112*1024}, 0
s_add_u32 s{sD0}, s{sD0}, s{sPL}
s_sub_u32 s{sD1}, s{sD1}, s{sPL}
s_lshl2_add_u32 s{sPL}, s{sT2}, s{sW}
s_lshl_b32 s{sPL}, s{sPL}, 10
s_add_u32 s{sPL}, s{sPL}, {WS_FLAG}
s_lshl_b32 s{sNT}, s{sT2}, 1
s_and_b32 s{sT3}, s{sW}, 1
s_lshl_b32 s{sT3}, s{sT3}, 1
s_lshl2_add_u32 s{sMT}, s{sT1}, s{sT3}
s_lshr_b32 s{sT3}, s{sW}, 1
s_add_u32 s{sMT}, s{sMT}, s{sT3}
s_lshl_b32 s{sT3}, s{sT3}, 8
v_lshlrev_b32 v{vL16}, 4, v{vLANE}
v_xor_b32 v{vWL}, s{sT3}, v{vL16}""".split('\n')

class Stream:
    def __init__(s, base, tmp): s.base=base; s.tmp=tmp; s.cur=None
    def at(s, off):
        L=[]
        if s.cur is None or not (0<=off-s.cur<4096):
            s.cur=off; L.append(f"s_add_u32 s{s.tmp}, s{s.base}, {off}")
        return L, f"s{s.tmp} offen offset:{off-s.cur}"
ASTG0=[3,5,7]
def d_parts(cfg):
    e=[0]+cfg.get('ASTG',ASTG0)
    return [[7*jj+mt for jj in range(4) for mt in range(a,b)] for a,b in zip(e,e[1:])]
def flag_store(s):
    return ["s_mov_b64 exec, 1",f"buffer_store_dword v{vONE1}, v{vL16}, {sp(rWS,4)}, s{sFL} offen offset:{128*s} sc1","s_mov_b64 exec, -1"]
def flag_poll(s): return f"buffer_load_dword v{vPV}, v{vPA}, {sp(rWS,4)}, s{sPL} offen offset:{128*s} sc1"
def wd_load_list(cfg,LD=''):
    S=[Stream(sD0,34),Stream(sD1,35)]; L=[]
    for f in sum(d_parts(cfg),[]):
        for m in range(2):
            pre,o=S[m].at(f*1024)
            L.append(pre+[f"buffer_load_dwordx4 {ar(8*f+4*m,4)}, v{vWL}, {sp(rWS,4)}, {o} {LD}"])
    return L
AX,AG=240,224
vXA,vPA,vPV,vONE1=253,254,252,251
vQV,vQA,sQP=15,248,99
def qpoll(q): return [f"s_mov_b32 s{sQP}, {WS_FX+(q<<(6+FS))}", f"buffer_load_dword v{vQV}, v{vQA}, {sp(rWS,4)}, s{sQP} offen sc1"]
def cost(x):
    s=x[0] if isinstance(x,tuple) else x
    o=s.split()[0]
    return 2 if (o in TRANS or o=='s_barrier') else 1

class RawWd:
    def __init__(s, order, srd, vsrc, sbase, stmp, pol=''):
        s.todo=list(order); s.flying=[]; s.done=set(); s.srd=srd; s.vsrc=vsrc; s.sbase=sbase; s.stmp=stmp; s.half=0; s.chalf=0; s.pol=pol; s.n=0
    def area(s, slots):
        assert not s.half
        s.slots=list(slots); s.n=0
    def issue_half(s, now):
        f=s.todo[0]; sl=s.slots[s.n%len(s.slots)]; u=s.half
        assert all(x[1]!=sl for x in s.flying)
        L=[f"s_add_u32 m0, s{sl[0]}, {sl[1]+u*1024}", f"s_add_u32 s{s.stmp}, s{s.sbase}, {f*16384+u*8192}",
           (f"buffer_load_dwordx4 v{s.vsrc}, {sp(s.srd,4)}, s{s.stmp} offen {s.pol} lds", f"rw{f}")]
        s.half^=1
        if not s.half: s.todo.pop(0); s.flying.append((f,sl,now)); s.n+=1
        return L
    def convert_half(s):
        f,sl,_=s.flying[0]; m=s.chalf
        L=([f"@wait rw{f}"] if m==0 else [])+[f"ds_read_b64_tr_b16 {ar(8*f+4*m+2*hf,2)}, v{sl[2][m]} offset:{sl[3]+hf*512}" for hf in range(2)]
        s.chalf^=1
        if not s.chalf: s.flying.pop(0); s.done.add(f)
        return L

class PhaseC:
    def __init__(s, cfg):
        s.cfg=cfg
        seq=[(t,ks) for ks in range(32) for t in range(G1)]
        AUXAT=cfg.get('AUXAT',16-G1)
        t3=[(G1,ks) for ks in range(33)]
        seq+= t3[:AUXAT]+[(t,32) for t in range(G1)]+t3[AUXAT:]
        for t in range(G1+1,7): seq+=[(t,ks) for ks in range(33)]
        s.seq=seq; s.N=N=len(seq); assert N==231
        s.P1=32*G1
        b=cfg.get('STG') or ([0,8,16]+list(range(32,232,16))+[232])
        s.bounds=b; s.nst=len(b)-1
        for q in range(s.nst):
            assert sorted(s.gpos(*x) for x in seq[b[q]:b[q+1]])==list(range(b[q],min(b[q+1],N))), q
            assert b[q]//RING==(b[q+1]-1)//RING
        s.QR={c:sQ+2*i for i,c in enumerate(sorted({(b[q+1]-b[q])//4 for q in range(s.nst)}))}
        s.LOOK=cfg.get('LOOK',6); s.XL=cfg.get('XL',6)
        s.mem=[]; s.m0=None; s.now=-1
        QG=s.QG=cfg.get('QG',[-1,0,2,3])
        for q in range(s.nst):
            gate=-1
            if b[q+1]>RING: gate=max(z for z in range(s.nst) if b[z]<b[q+1]-RING)+2
            if cfg.get('QSYNC',0): gate=max(gate,QG[min(3,(b[q+1]-1)//(8*G1))])
            for u in range((b[q+1]-b[q])//4): s.mem.append((max(b[q]-s.LOOK,0),gate,('w',q,u)))
        XG=cfg.get('XGRP',2)
        for ks in range(32): s.mem.append((max(G1*(ks-ks%XG)-s.XL,0),QG[ks>>3] if cfg.get('QSYNC',0) else -1,('x',ks)))
        s.mem.sort(key=lambda e:e[0])
    def gpos(s,t,ks): return (G1*ks+t) if t<G1 else 33*t+ks
    def setup(s):
        L=[]
        for c,r in s.QR.items(): L+=[f"s_mul_i32 s{r}, s{sW}, {c*1024}", f"s_add_u32 s{r+1}, s{r}, s{sWB}"]
        L+=f"""v_lshlrev_b32 v{vL16}, 4, v{vLANE}
v_lshrrev_b32 v8, 5, v{vLANE}
v_bfe_u32 v9, v{vLANE}, 2, 2
v_lshl_add_u32 v8, v8, 3, v9
v_bfe_u32 v9, v{vLANE}, 4, 1
v_lshl_add_u32 v8, v8, 1, v9
v_and_b32 v10, 3, v{vLANE}
v_lshl_add_u32 v8, v8, 2, v10
v_lshl_add_u32 v{vXA}, v8, 3, s{sXM}
v_add_u32 v3, {L_RING}, v{vL16}
v_add_u32 v7, {L_RING+0x10000}, v{vL16}
v_and_b32 v8, 31, v{vLANE}
v_and_b32 v10, 32, v{vLANE}
v_lshlrev_b32 v10, 4, v10
v_lshl_add_u32 v8, v8, 2, v10
v_add_u32 v249, {L_RING}, v8
v_add_u32 v250, {L_RING+0x10000}, v8
v_and_b32 v8, 15, v{vLANE}
v_cmp_eq_u32 vcc, v8, v9
v_mov_b32 v10, 0x3f803f80
v_and_b32 v{vPA}, 7, v{vLANE}
v_lshlrev_b32 v{vPA}, 2, v{vPA}
v_cndmask_b32 v56, 0, v10, vcc
v_cndmask_b32 v57, 0, v10, vcc
v_cndmask_b32 v58, 0, v10, vcc
v_cndmask_b32 v59, 0, v10, vcc""".split('\n')
        return L
    def memop(s,e):
        if e[0]=='w':
            _,q,u=e; c=(s.bounds[q+1]-s.bounds[q])//4; key=('w',q,u//4); u0=u-u%4
            pre=[f"s_add_u32 m0, s{s.QR[c]}, {L_RING+(s.bounds[q]%RING+u0)*1024}", f"s_add_u32 s{sT0}, s{s.QR[c]+1}, {(s.bounds[q]+u0)*1024}"]
            tag=f"w{q}"; off=(u%4)*1024; ld=s.cfg.get('WLD','')
        else:
            ks=e[1]; key=('x',ks//4); k0=ks-ks%4
            assert ks<NS or s.now>=G1*(ks-NS), (ks,s.now)
            pre=[f"s_add_u32 m0, s{sXM}, {L_XS+(k0%NS)*1024}", f"s_add_u32 s{sT0}, s{sXB}, {k0*1024}"]
            tag=f"x{ks}"; off=(ks%4)*1024; ld=s.cfg.get('XLD','')
        L=[] if s.m0==key else pre
        s.m0=key
        return L+[(f"buffer_load_dwordx4 v{vL16}, {sp(rWS,4)}, s{sT0} offen offset:{off} {ld} lds",tag)]
    def pre(s,P,n,kinds='wx'):
        k=0
        while n>0 and k<len(s.mem):
            if s.mem[k][2][0] in kinds and s.mem[k][1]<0: P.extend(s.memop(s.mem.pop(k)[2])); n-=1
            else: k+=1
    def run(s,P,diag,wd,extra_side,D,raw=None):
        cfg=s.cfg; seq=s.seq; N=s.N; bounds=s.bounds; mem=s.mem; LOOK=s.LOOK; XL=s.XL; P1=s.P1
        ST='sc1'; ends=cfg.get('ASTG',ASTG0)
        X0=120
        xr=lambda ks: vr(X0+4*ks,4) if ks<32 else vr(44,4)
        NACC=4; ACC=[72,88,104,56]
        WF=[20+4*i for i in range(6)]; NWF=6
        SQ,SM,ONE,SQ2=48,52,56,16
        C0,C1,IR2=4,5,6; TA=8
        RA=[3,7]; RA2=[249,250]
        def rd(n):
            pos=(s.gpos(*seq[n])%RING)*1024
            if seq[n][1]==32:
                return [(f"ds_read_b32 v{WF[n%NWF]+q}, v{RA2[pos>>16]} offset:{(pos&0xffff)+128*q}", f"r{n}") for q in range(4)]
            return [(f"ds_read_b128 {vr(WF[n%NWF],4)}, v{RA[pos>>16]} offset:{pos&0xffff}", f"r{n}")]
        def xrd(ks): return [f"@wait x{ks}"]+[f"ds_read_b64_tr_b16 {vr(X0+4*ks+2*hf,2)}, v{vXA} offset:{L_XS+(ks%NS)*1024+hf*256}" for hf in range(2)]
        accof=lambda t: ACC[t%NACC]
        EW=cfg.get('EW',4)
        def epi(t):
            a=accof(t); L=[]
            for g in range(8//EW):
                ia=list(range(EW*g,EW*g+EW)); T=TA
                L+=[f"v_mul_f32 v{T+k}, v{a+i}, v{a+i}" for k,i in enumerate(ia)]
                L+=[f"v_fma_f32 v{T+k}, v{T+k}, v{C1}, v{C0}" for k,i in enumerate(ia)]
                L+=[f"v_mul_f32 v{T+k}, v{T+k}, v{a+i}" for k,i in enumerate(ia)]
                for k,i in enumerate(ia): L+=[f"v_exp_f32 v{T+k}, v{T+k}", f"v_mul_f32 v{a+8+i}, v{a+i}, v{a+8+i}"]
                for k,i in enumerate(ia):
                    L+=[f"v_fma_f32 v{a+i}, v{T+k}, v{IR2}, v{IR2}"]
                    if k: L+=[f"v_rcp_f32 v{a+i-1}, v{a+i-1}"]
                L+=[f"v_mul_f32 v{a+8+ia[0]}, v{a+8+ia[0]}, v{a+ia[0]}", f"v_rcp_f32 v{a+ia[-1]}, v{a+ia[-1]}"]
                L+=[f"v_mul_f32 v{a+8+i}, v{a+8+i}, v{a+i}" for i in ia[1:]]
                L+=[f"v_cvt_pk_bf16_f32 v{16+i//2}, v{a+8+i}, v{a+9+i}" for i in ia[::2]]
            L.append((f"buffer_store_dwordx4 v[16:19], v{vL16}, {sp(rWS,4)}, s{sAB} offen offset:{(t%4)*1024} {ST}",f'act{t}'))
            if t==3: L.append(f"s_add_u32 s{sAB}, s{sAB}, 4096")
            return L
        if cfg.get('NOTRANS'):
            e0=epi; epi=lambda t:[y for x in e0(t) for y in ([x.replace('v_exp_f32','v_mov_b32').replace('v_rcp_f32','v_mov_b32')]*2 if isinstance(x,str) and x.split()[0] in TRANS else [x])]
        if cfg.get('NOST'):
            e2=epi; epi=lambda t:[(('s_nop 0',x[1]) if isinstance(x,tuple) else x) for x in e2(t)]
        if cfg.get('NOEPI'):
            e1=epi; epi=lambda t:[x for x in e1(t) if not (isinstance(x,str) and x.startswith('v_'))]
        k0=-2*0.7978845608028654*1.4426950408889634; k1=k0*0.044715
        fin=f"""v_and_b32 v11, 15, v{vLANE}
v_lshlrev_b32 v11, 2, v11
v_and_b32 v8, 3, v{vLANE}
v_cmp_eq_u32 vcc, 1, v8
v_cmp_eq_u32 {sp(sT2)}, 2, v8
v_and_b32 v10, 16, v{vLANE}
ds_bpermute_b32 v12, v11, v{SM}
ds_bpermute_b32 v13, v11, v{SM+1}
v_add_f32 v{SQ}, v{SQ}, v{SQ2}
v_add_f32 v{SQ+1}, v{SQ+1}, v{SQ2+1}
v_add_f32 v{SQ+2}, v{SQ+2}, v{SQ2+2}
v_add_f32 v{SQ+3}, v{SQ+3}, v{SQ2+3}
v_cndmask_b32 v9, v{SQ}, v{SQ+1}, vcc
v_cmp_eq_u32 vcc, 3, v8
v_cndmask_b32 v9, v9, v{SQ+2}, {sp(sT2)}
v_cmp_eq_u32 {sp(sT2)}, 0, v10
v_cndmask_b32 v9, v9, v{SQ+3}, vcc
v_mov_b32 v8, v9
v_nop
v_nop
v_permlane32_swap_b32 v8, v9
v_add_f32 v9, v8, v9
v_mul_f32 v9, 0x3b000000, v9
v_cndmask_b32 v12, v13, v12, {sp(sT2)}
v_mul_f32 v12, 0x3b000000, v12
v_fma_f32 v9, -v12, v12, v9
v_max_f32 v9, 0, v9
v_cvt_pk_bf16_f32 v9, v9, v9
v_and_b32 v9, 0xffff0000, v9
v_add_f32 v9, 0x3727c5ac, v9
v_cvt_pk_bf16_f32 v9, v9, v9
v_and_b32 v9, 0xffff0000, v9
v_sqrt_f32 v9, v9
v_nop
v_cvt_pk_bf16_f32 v44, -v12, v9
v_and_b32 v9, 0xffff0000, v44
v_mov_b32 v45, v44
v_rcp_f32 v8, v9
v_mov_b32 v46, v44
v_mov_b32 v47, v44
v_mul_f32 v{IR2}, v9, v9
v_mul_f32 v{C0}, {hex(f32(k0))}, v8
v_mul_f32 v10, v8, v8
v_mul_f32 v{C1}, {hex(f32(k1))}, v8
v_mul_f32 v{C1}, v{C1}, v10""".split('\n')
        done_at={}
        for n,(t,ks) in enumerate(seq):
            if ks==32: done_at[t]=n
        side=[(0,x) for x in extra_side]+[(P1,x) for x in fin]
        for t in range(6): side+=[(done_at[t]+3,x) for x in epi(t)]
        RX=cfg.get('RXAT',P1+40)
        blocks={RX:[f"s_lshl_b32 s{sT1}, s{sNT}, 5",f"s_add_u32 s{sT1}, s{sT1}, s{sMT}",f"s_lshl_b32 s{sT1}, s{sT1}, 10",f"s_add_u32 s{sT1}, s{sT1}, {WS_X1B}"],
                RX+1:['@m0',f"s_add_u32 m0, s{sXM}, {L_XS}",f"s_add_u32 s{sT4}, s{sT1}, {32768-1024}",(f"buffer_load_dwordx4 v{vL16}, {sp(rWS,4)}, s{sT1} offen {cfg.get('XLD','')} lds",'rx'),
                      (f"buffer_load_dwordx4 v{vL16}, {sp(rWS,4)}, s{sT4} offen offset:1024 {cfg.get('XLD','')} lds",'rx')],
                RX+3:[f"s_lshl_b32 s{sT1}, s{sMT}, 6",f"s_add_u32 s{sT1}, s{sT1}, {WS_GBF}",f"v_and_b32 v{vPV}, 32, v{vLANE}"],
                RX+4:[f"buffer_load_dwordx4 {ar(AG+4*q,4)}, v{vPV}, {sp(rWS,4)}, s{sT1} offen offset:{16*q} {cfg.get('WLD','')}" for q in range(2)],
                RX+44:["@wait rx"]+[f"ds_read_b64_tr_b16 {ar(AX+2*q,2)}, v{vXA} offset:{L_XS+(q>>1)*1024+(q&1)*256}" for q in range(4)],
                cfg.get('P0AT',217):[flag_poll(0)]}
        if cfg.get('QSYNC',0):
            for q,at in zip((2,3),cfg.get('QAT2',[1,14])): blocks[at]=qpoll(q)
        C0AT=cfg.get('C0AT',999)
        D.nflag=0; flag_at={}; log=[]
        opened=[-1]
        def emit(L):
            c=0
            for x in L:
                if x=='@m0': s.m0=None; continue
                P.extend([x]); c+=cost(x)
            return c
        def force(pred):
            c=0
            while any(pred(e[2]) for e in mem):
                assert mem[0][1]<=opened[0], mem[0]
                c+=emit(s.memop(mem.pop(0)[2]))
            return c
        def open_stage(q):
            c=force(lambda e: e[0]=='w' and e[1]==q)
            opened[0]=q
            if cfg.get('QSYNC',0) and q in s.QG: poll_check(P,f'fx{s.QG.index(q)}',vPV=vQV); c+=3; stamp(P,25+s.QG.index(q),diag)
            x_=cfg.get('XBAR',0) if bounds[q]>P1 else 0
            c+=emit([[f"@wait w{q}","s_barrier"],[f"@wait w{q}"],["s_barrier"],[]][x_])
            if cfg.get('QSYNC',0) and q in s.QG:
                for _ in range(cfg.get('QBURST',[5,3,2])[s.QG.index(q)-1]):
                    if mem[0][1]<=q and (mem[0][2][0]=='w' or s.now>=G1*(mem[0][2][1]-NS)): c+=emit(s.memop(mem.pop(0)[2]))
            if cfg.get('SSTAMP'): stamp(P,(2+q if q<10 else 9+q),diag)
            return c
        xnext=0
        open_stage(0)
        while G1*xnext<XL: force(lambda e: e==('x',xnext)); emit(xrd(xnext)); xnext+=1
        for n in range(LOOK): P.extend(rd(n))
        DIST=cfg.get('DIST',24); DIST2=cfg.get('DIST2',48); WB=cfg.get('WB',3)
        started=set(); mb=0.0; wdb=0.0
        P.I("@mark c1")
        for n,(t,ks) in enumerate(seq):
            a=accof(t)
            if n==P1: P.I("@mark c2")
            if t>=NACC and ks==0:
                while side and side[0][0]<=done_at[t-NACC]+3: emit([side.pop(0)[1]])
            if ks==32 and t==0:
                while side and side[0][0]<=P1: emit([side.pop(0)[1]])
            if n%WB==0: P.I(f"@wait r{min(n+WB-1,N-1)}")
            P.I(f"v_mfma_f32_32x32x16_bf16 {vr(a,16)}, {vr(WF[n%NWF],4)}, {xr(ks)}, {vr(a,16) if t in started else 0}"); started.add(t)
            s.now=n
            free=cfg.get('CAP',6)-((n+1)%WB==0)
            if xnext<32 and G1*xnext-XL<=n:
                free-=force(lambda e: e==('x',xnext)); free-=emit(xrd(xnext)); xnext+=1
            m=n+LOOK
            if m<N:
                if m in bounds: free-=open_stage(bounds.index(m))
                free-=emit(rd(m))
            used=False
            if n in blocks: free-=emit(blocks.pop(n)); used=True
            elif n>=flag_at.get(D.nflag,999) and free>=4:
                free-=emit([f"@wait act{ends[D.nflag]-1}"]+flag_store(D.nflag)); D.nflag+=1; used=True; log.append(n)
            if n==C0AT: poll_check(P,'p0'); stamp(P,14,diag); free-=3; used=True
            rate = cfg.get('RATE1',0.9) if n<P1 else cfg.get('RATE2',0.5)
            mb=min(mb+rate,1.0+rate)
            if not used and mem and mb>=1 and mem[0][0]-(DIST if n<P1 else DIST2)<=n and mem[0][1]<=opened[0] and (free>=3 or n<P1) and (mem[0][2][0]=='w' or n>=G1*(mem[0][2][1]-NS)):
                free-=emit(s.memop(mem.pop(0)[2])); used=True; mb-=1
            if raw:
                if raw.flying and n>=raw.flying[0][2]+cfg.get('RAWD',40) and free>=3: free-=emit(raw.convert_half())
                if not used and raw.todo and len(raw.flying)<len(raw.slots) and cfg.get('WDFROM',P1+4)<=n<N-cfg.get('RAWD',40):
                    wdb=min(wdb+cfg.get('WDPER',0.2),2)
                    if wdb>=1 and mb>=1 and free>=3: free-=emit(['@m0']+raw.issue_half(n)); wdb-=1; mb-=1
            if not used and n>C0AT and mb>=1 and free>=2 and D.li<min(cfg.get('DAHEAD',14),n-197) and D.can_load():
                free-=emit(D.load()); mb-=1; used=True
            if not used and wd and cfg.get('WDFROM',P1+4)<=n<C0AT:
                wdb=min(wdb+cfg.get('WDPER',0.2),2)
                if wdb>=1 and mb>=1 and free>=2: free-=emit(wd.pop(0)); wdb-=1; mb-=1
            while side and side[0][0]<=n and cost(side[0][1])<=free:
                x=side.pop(0)[1]; free-=emit([x])
                if isinstance(x,tuple) and x[1].startswith('act'):
                    log.append((x[1],n))
                    if int(x[1][3:])+1 in ends: flag_at[ends.index(int(x[1][3:])+1)]=n+cfg.get('FLAGD',26)
            if n<P1 and t==G1-1:
                x=X0+4*ks
                P.I(f"v_mfma_f32_4x4x4_16b_bf16 {vr(SQ,4)}, {vr(x,2)}, {vr(x,2)}, {vr(SQ,4) if ks else 0}")
                P.I(f"v_mfma_f32_4x4x4_16b_bf16 {vr(SQ2,4)}, {vr(x+2,2)}, {vr(x+2,2)}, {vr(SQ2,4) if ks else 0}")
                P.I(f"v_mfma_f32_16x16x32_bf16 {vr(SM,4)}, {vr(ONE,4)}, {vr(x,4)}, {vr(SM,4) if ks else 0}")
            if n==P1-1: stamp(P,12,diag)
        P.I("@mark end")
        assert D.nflag and not blocks and not mem
        print('phase C: side left', len(side), 'stores/flags', log, 'Wd left', len(wd), 'raw todo/flying', (len(raw.todo),len(raw.flying),raw.half,raw.chalf) if raw else None)
        stamp(P,13,diag)
        return [x for _,x in side]+epi(6), {q:v-N for q,v in flag_at.items()}

def poll_check(P, name, need=None, diag=None, vPV=vPV):
    P.I(f"""L_{name}_chk:
v_cmp_ne_u32 vcc, v{vONE1}, v{vPV}
s_cbranch_vccnz L_{name}_retry
L_{name}_ok:""")
def poll_retry(P, name, off, vPV=vPV, vPA=vPA, sPL=sPL):
    P.I(f"""L_{name}_retry:
s_add_u32 s{sCNT}, s{sCNT}, 1
s_cmp_gt_u32 s{sCNT}, 40000
s_waitcnt vmcnt(0) lgkmcnt(0)
s_cbranch_scc1 L_{name}_ok
buffer_load_dword v{vPV}, v{vPA}, {sp(rWS,4)}, s{sPL} offen offset:{off} sc1
s_waitcnt vmcnt(0)
s_branch L_{name}_chk""")

class PhaseD:
    def __init__(s, P, cfg, diag, wd):
        s.P=P; s.cfg=cfg; s.diag=diag; s.wd=wd
        s.parts=d_parts(cfg); s.ends=cfg.get('ASTG',ASTG0); s.order=sum(s.parts,[])
        s.ACC=[[184,200],[216,232]]; s.BUF=[120+4*i for i in range(16)]; s.NB=16
        SK=cfg.get('DSKEW',8)
        s.work=[(f,n) for i,f in enumerate(s.order) for n in range(2) if n==0 or i<28-SK]+[(f,1) for f in s.order[28-SK:]]
        s.first={q:min(k for k,(f,n) in enumerate(s.work) if f in s.parts[q]) for q in range(len(s.parts))}
        s.S=[Stream(sA0,36),Stream(sA0,37)]; s.li=0; s.nflag=0; s.polled=0
    def can_load(s):
        for q,k0 in s.first.items():
            if q and s.li==k0 and s.nflag<(len(s.ends) if q>=s.cfg.get('CK',1) else q+1): return False
        return True
    def load(s):
        k=s.li; s.li+=1; f,n=s.work[k]; L=[]; PL=s.cfg.get('PL2',8)
        nxt=s.polled+1
        if nxt in s.first and k>=max(s.first[nxt]-PL,s.first[nxt-1]+1) and s.nflag>nxt: L.append(flag_poll(nxt)); s.polled=nxt
        for q,k0 in s.first.items():
            if q and k==k0:
                assert s.polled>=q
                s.P.extend(L); L=[]; poll_check(s.P,f'p{q}'); stamp(s.P,22+q,s.diag)
        while s.wd and 56-len(s.wd)<2*s.order.index(f)+2: L+=s.wd.pop(0)
        pre,o=s.S[n].at(n*112*1024+f*1024)
        return L+pre+[f"buffer_load_dwordx4 {vr(s.BUF[k%s.NB],4)}, v{vL16}, {sp(rWS,4)}, {o} sc1"]
    def run(s, ctail, flag_due):
        P=s.P; cfg=s.cfg; diag=s.diag; work=s.work; ACC=s.ACC; ends=s.ends
        AH=cfg.get('DAHEAD',14); assert AH<=s.NB
        nA=max(k for k,(f,n) in enumerate(work) if n==0)
        GB=44; XF=56; R=[120,144]; RD=[72,73,74]; VO,VW=75,76
        fill=f"""v_add_u32 v{VW}, s{sXM}, v{vL16}
s_lshl_b32 s{sT2}, s{sNT}, 15
s_lshl_b32 s{sT1}, s{sMT}, 5
s_add_u32 s{sT2}, s{sT2}, s{sT1}
s_add_u32 s{sT3}, s{sT2}, 32768
v_and_b32 v{VO}, 31, v{vLANE}
v_lshrrev_b32 v77, 5, v{vLANE}
v_lshlrev_b32 v{VO}, 10, v{VO}
v_lshl_add_u32 v{VO}, v77, 4, v{VO}""".split('\n')
        fill+=[f"v_xor_b32 v{RD[j-1]}, {j*NS*1024}, v{VW}" for j in (1,2,3)]
        fill+=[f"v_accvgpr_read_b32 v{GB+k}, a{AG+k}" for k in range(8)]
        fill+=[f"v_accvgpr_read_b32 v{XF+2*k+1}, a{AX+k}" for k in range(8)]
        for k in range(8): fill+=[f"v_lshlrev_b32 v{XF+2*k}, 16, v{XF+2*k+1}", f"v_and_b32 v{XF+2*k+1}, 0xffff0000, v{XF+2*k+1}"]
        side=list(ctail)+fill
        wr=[[f"ds_write_b128 v{VW}, {vr(ACC[n][j&1]+8*(j>>1)+4*q,4)} offset:{L_XS+n*8192+j*2048+q*1024}" for j in (1,2,3) for q in range(2)] for n in range(2)]
        started=set(); g=0; FD=cfg.get('FLAGD2',26)
        if cfg.get('C0AT',999)>=231: poll_check(P,'p0'); stamp(P,14,diag)
        TL=cfg.get('TAILLD',6)
        if TL:
            nt=len(ctail); per=-(-nt//TL)
            while nt>0:
                if s.li<AH and s.can_load(): P.extend(s.load())
                c=min(per,nt); P.extend(side[:c]); side=side[c:]; nt-=c
            while s.nflag<len(ends)-1:
                P.I(f"@wait act{ends[s.nflag]-1}"); P.extend(flag_store(s.nflag)); s.nflag+=1
            while s.li<AH and s.can_load(): P.extend(s.load())
            flag_due[len(ends)-1]=cfg.get('FL2',10)
        stamp(P,15,diag)
        P.I("@mark d")
        for k,(f,n) in enumerate(work):
            while s.li<=k:
                if not s.can_load():
                    P.extend(side); side=[]
                    P.I(f"@wait act{ends[s.nflag]-1}"); P.extend(flag_store(s.nflag)); s.nflag+=1; print('  D: forced flag at',k)
                else: P.extend(s.load())
            for m in range(2):
                a=vr(ACC[n][m],16)
                P.I(f"v_mfma_f32_32x32x16_bf16 {a}, {ar(8*f+4*m,4)}, {vr(s.BUF[k%s.NB],4)}, {a if (n,m) in started else 0}"); started.add((n,m))
                g+=1; free=6-m
                if s.nflag<len(ends) and g>=flag_due.get(s.nflag,999):
                    P.I(f"@wait act{ends[s.nflag]-1}"); P.extend(flag_store(s.nflag)); print('  D: flag',s.nflag,'at item',k,'li',s.li); s.nflag+=1; free-=4
                if s.li<len(work) and s.li<=k+AH-(1-m) and s.li-s.NB<k+m and s.can_load():
                    L=s.load(); P.extend(L); free-=len(L)
                if m and k>nA+1 and wr[0]: P.I(wr[0].pop(0)); free=0
                while side and g>=2 and cost(side[0])<=free:
                    x=side.pop(0); P.extend([x]); free-=cost(x)
                    if isinstance(x,tuple) and int(x[1][3:])+1 in ends: flag_due[ends.index(int(x[1][3:])+1)]=g+FD
        P.I("@mark end")
        assert not side and s.nflag==len(ends)
        P.extend(wr[0])
        stamp(P,17,diag)
        def reads(n): return [f"ds_read_b128 {vr(R[n]+8*(j-1)+4*q,4)}, v{RD[j-1]} offset:{L_XS+n*8192+j*2048+q*1024}" for j in (1,2,3) for q in range(2)]
        def final(n):
            r=R[n]; a=ACC[n][0]; L=[]
            for k in range(0,8,2): L+=[f"v_pk_add_f32 {vr(r+k,2)}, {vr(r+k,2)}, {vr(a+k,2)}"]
            for k in range(0,8,2): L+=[f"v_pk_add_f32 {vr(r+8+k,2)}, {vr(r+8+k,2)}, {vr(r+16+k,2)}"]
            for k in range(0,8,2): L+=[f"v_pk_add_f32 {vr(r+k,2)}, {vr(r+k,2)}, {vr(r+8+k,2)}"]
            for k in range(0,8,2): L+=[f"v_pk_fma_f32 {vr(r+k,2)}, {vr(r+k,2)}, {vr(GB+k,2)}, {vr(XF+8*n+k,2)}"]
            for k in range(0,8,2): L+=[f"v_cvt_pk_bf16_f32 v{8+4*n+k//2}, v{r+k}, v{r+k+1}"]
            L.append(f"buffer_store_dwordx4 {vr(8+4*n,4)}, v{VO}, {sp(rOUT,4)}, s{sT2+n} offen {cfg.get('OST','')}")
            return L
        P.extend(wr[1])
        P.I("s_waitcnt lgkmcnt(0)\ns_barrier")
        P.extend(reads(0)); P.extend(reads(1)); P.extend(final(0)); P.extend(final(1))
```

```python
from prog import *
from layout import *
import ka, kc
from ka import sp, vr, mksrd, stamp, stamp_out, rWS, rWJ, rOUT, sW, sTAG, sP, sIDX, sXCD, sFS, sCG, sKE, sT0, sT1, sT2, sT3
NAME='adaLN_cond__ssm_conv_s4__geglu_ffn__prompt_kernel'
sFXo,sFDo,sFXi,sFDi,sFWo,sFWi = 40,41,99,93,89,92
vTG=251; vFV,vFA,vFB=247,246,252
T4=248
def build(P, diag, cfg):
    cfg=dict(cfg); cfg.update(XST='sc1',ST='sc1',WLD='sc1',XLD='sc1')
    kc.FS=cfg.get('FS',4)
    C=kc.PhaseC(cfg)
    L=ka.vLANE
    FS=cfg.get('FS',4)
    EX=hex((1<<(1<<(FS-4)))-1)
    def line(so, reg, r=rWS):
        return [f"s_mov_b64 exec, {EX}", f"buffer_store_dwordx4 {vr(reg,4)}, v{ka.vL16}, {sp(r,4)}, s{so} offen sc1", "s_mov_b64 exec, -1"]
    H={}
    H['setup']=mksrd(rOUT,ka.sOUT,2097152)+f"""s_lshl_b32 s{sFXo}, s{sP}, {FS}
s_add_u32 s{sFXo}, s{sFXo}, {WS_FX}
s_and_b32 s{sT0}, s{sFS}, 1
s_mul_i32 s{sT0}, s{sT0}, 112
s_lshr_b32 s{sFDo}, s{sFS}, 1
s_add_u32 s{sFDo}, s{sFDo}, s{sT0}
s_lshl_b32 s{sFDo}, s{sFDo}, {FS}
s_add_u32 s{sFDo}, s{sFDo}, {WS_FD}
s_lshl3_add_u32 s{sFWo}, s{sCG}, s{sKE}
s_lshl_b32 s{sFWo}, s{sFWo}, {FS}
s_add_u32 s{sFWo}, s{sFWo}, {WS_FW}
v_min_u32 v{vFA}, 27, v{L}
v_lshlrev_b32 v{vFA}, {FS}, v{vFA}""".split('\n')
    def idle(P):
        for i in range(4): P.I(f"v_mov_b32 v{T4+i}, s{sTAG}")
        P.I(f"""{f's_and_b32 s{sT0}, s{sXCD}, 1' if cfg.get('DM',0) else f's_bfe_u32 s{sT0}, s{sIDX}, 0x10002'}
s_lshl2_add_u32 s{sT0}, s{sT0}, s{sW}
s_mul_i32 s{sT0}, s{sT0}, {28<<FS}
s_add_u32 s{sFDi}, s{sT0}, {WS_FD}
s_cmp_lg_u32 s{sW}, 3
s_cbranch_scc1 L_main""")
        if cfg.get('TOUCH',1): P.I("s_mov_b64 exec, 0\ns_branch L_touch0\nL_touched:\ns_mov_b64 exec, -1")
        P.I(f"s_lshl_b32 s{sT0}, s{sP}, 9\ns_add_u32 s{sT0}, s{sT0}, {WS_FLAG}")
        for i in range(4): P.I(f"v_add_u32 v{4+i}, -1, v{T4}")
        P.I("s_waitcnt vmcnt(8)\ns_mov_b32 exec_hi, 0")
        P.I(line(sT0,4)[1]); P.I(f"s_mov_b64 exec, {EX}")
        P.I(line(sFXo,4)[1]); P.I(line(sFDo,4,rWJ)[1])
        if cfg.get('FW',0): P.I(line(sFWo,4,rWJ)[1])
        P.I(f"s_mov_b64 exec, -1\ns_branch {'L_f1' if cfg.get('CUT',0) else 'L_xje'}\n.p2align 12\nL_main:")
    H['idle']=idle; H['own_param_wait']=True
    H['midbar']=[f"s_cmp_lg_u32 s{sW}, 3","s_cbranch_scc1 L_nofd"]+line(sFDo,T4,rWJ)+["L_nofd:"]
    H['postbar' if cfg.get('FDP',0) else 'pre']=[f"buffer_load_dword v{vFV}, v{vFA}, {sp(rWS,4)}, s{sFDi} offen sc1"]
    FW=cfg.get('FW',0)
    if FW:
        H['prebar']=["@wait wpst"]
        H['postbar']=[f"s_cmp_lg_u32 s{sW}, 3","s_cbranch_scc1 L_nofw"]+line(sFWo,T4,rWJ)+["L_nofw:"]
    ka.body(P,NAME,diag,cfg,H)
    stamp(P,9,diag)
    wd=kc.wd_load_list(cfg,'sc1')
    P.extend(kc.d_maps(cfg.get('DM',0)))
    P.I(f"s_mov_b32 s{kc.sCNT}, 1")
    kc.poll_check(P,'fd',vPV=vFV)
    for i in range(cfg.get('WDA',8)): P.extend(wd.pop(0))
    P.I(f"s_cmp_lg_u32 s{sW}, 3\n@wait x1st auxst wpst\ns_barrier\ns_cbranch_scc1 L_nofx")
    P.extend(line(sFXo,T4))
    P.I(f"""s_cmp_lg_u32 s2, 0
s_cbranch_scc1 L_nofx
s_mov_b64 exec, 1
buffer_store_dword v{vTG}, v{ka.vL16}, {sp(rWS,4)}, {WS_EPOCH} offen
s_mov_b64 exec, -1
L_nofx:""")
    stamp(P,19,diag)
    fill=kc.c_maps()+C.setup()+[f"v_lshlrev_b32 v{vFA}, {FS}, v0", f"s_mov_b32 s{sFXi}, {WS_FX}"]
    fill+=f"""s_and_b32 s{sT1}, s{sXCD}, 3
s_and_b32 s{sT2}, s{sIDX}, 3
s_lshl2_add_u32 s{sT1}, s{sT1}, s{sT2}
s_mul_i32 s{sT1}, s{sT1}, 7
s_lshr_b32 s{sT1}, s{sT1}, 2
s_lshl_b32 s{sT1}, s{sT1}, {3+FS}
s_add_u32 s{sFWi}, s{sT1}, {WS_FW}
v_and_b32 v{vFB}, {15<<FS}, v{vFA}""".split('\n')
    nB=cfg.get('WDB',8 if FW else 16)
    for i in range(nB):
        P.extend(wd.pop(0)); k=-(-len(fill)//(nB-i)); P.extend(fill[:k]); fill=fill[k:]
    P.extend(fill)
    if FW:
        P.I(f"buffer_load_dword v{vFV}, v{vFB}, {sp(rWS,4)}, s{sFWi} offen sc1")
        for i in range(cfg.get('WDB2',6)): P.extend(wd.pop(0))
        kc.poll_check(P,'fw',vPV=vFV)
        stamp(P,22,diag)
        C.pre(P,cfg.get('WPA',8),'w')
    QS=cfg.get('QSYNC',0)
    if QS:
        P.I(f"v_and_b32 v{kc.vQA}, 15, v{L}\ns_lshl_b32 s{sT1}, s{sW}, {4+FS}\nv_lshl_add_u32 v{kc.vQA}, v{kc.vQA}, {FS}, s{sT1}")
        P.extend(kc.qpoll(0))
        for i in range(cfg.get('WDC',6)): P.extend(wd.pop(0))
        stamp(P,20,diag)
        kc.poll_check(P,'fx0',vPV=kc.vQV)
        P.I("s_barrier")
        stamp(P,21,diag)
        C.pre(P,cfg.get('QPRE',5)); P.extend(kc.qpoll(1)); C.pre(P,99)
    else:
        P.I(f"buffer_load_dword v{vFV}, v{vFA}, {sp(rWS,4)}, s{sFXi} offen sc1")
        if FW: C.pre(P,8*G1-cfg.get('WPA',8),'w')
        for i in range(cfg.get('WDC',0 if FW else 6)): P.extend(wd.pop(0))
        stamp(P,20,diag)
        kc.poll_check(P,'fx',vPV=vFV)
        P.I("s_barrier")
        stamp(P,21,diag)
        C.pre(P,cfg.get('PRE',12 if FW else 16))
    D=kc.PhaseD(P,cfg,diag,wd)
    D.run(*C.run(P,diag,wd,[],D))
    if diag: P.I(f"v_writelane_b32 v255, s{kc.sCNT}, 30")
    if diag: P.I("s_getreg_b32 s4, hwreg(HW_REG_XCC_ID)\ns_and_b32 s4, s4, 15\nv_writelane_b32 v255, s4, 10")
    stamp(P,18,diag); stamp_out(P,0,diag)
    if cfg.get('DBGOUT') is not None:
        P.I(f"""s_cmp_ge_u32 s2, 8
s_cbranch_scc1 L_{NAME}_exit
s_cmp_lg_u32 s{sW}, 0
s_cbranch_scc1 L_{NAME}_exit
s_load_dwordx2 s[4:5], s[0:1], 128
v_readlane_b32 s6, v255, {cfg['DBGOUT']}
s_getreg_b32 s7, hwreg(HW_REG_XCC_ID)
s_and_b32 s7, s7, 15
s_and_b32 s6, s6, 0xffff
v_mov_b32 v4, s6
v_mov_b32 v5, s7
s_lshl_b32 s6, s2, 2
v_mov_b32 v6, s6
s_waitcnt lgkmcnt(0)
s_mov_b64 exec, 1
global_store_dword v6, v4, s[4:5]
global_store_dword v6, v5, s[4:5] offset:32""")
    P.I(f"L_{NAME}_exit:\ns_endpgm\n@nomore")
    ka.retry_block(P); ka.retry2_block(P)
    kc.poll_retry(P,'fd',0,vFV,vFA,sFDi);
    if QS:
        for q in range(4): kc.poll_retry(P,f'fx{q}',0,kc.vQV,kc.vQA,kc.sQP)
    else: kc.poll_retry(P,'fx',0,vFV,vFA,sFXi)
    if FW: kc.poll_retry(P,'fw',0,vFV,vFB,sFWi)
    for s_ in range(len(kc.d_parts(cfg))): kc.poll_retry(P,f'p{s_}',128*s_)
    return [(NAME,256,256,kc.LDS_C,512)]
```

```python
import sys, json
sys.path.insert(0,'gen')
from prog import *
import ka, kc, mega
REF='adaLN_cond__ssm_conv_s4__geglu_ffn__prompt.s.ref'
def kdesc(k,vg):
    return f""".p2align 6
.amdhsa_kernel {k}
  .amdhsa_next_free_vgpr {vg}
  .amdhsa_next_free_sgpr 102
  .amdhsa_accum_offset {min(vg,256)}
  .amdhsa_group_segment_fixed_size 0
  .amdhsa_kernarg_size 144
  .amdhsa_user_sgpr_count 2
  .amdhsa_user_sgpr_kernarg_segment_ptr 1
  .amdhsa_system_sgpr_workgroup_id_x 1
  .amdhsa_float_denorm_mode_32 3
.end_amdhsa_kernel"""
def build(out, cfg, diag=False, verbose=False):
    cfg=dict(json.load(open('best.json')),**cfg)
    P=Prog()
    L = mega.build(P,diag,cfg)
    if cfg.get('empty'):
        P.I(".globl e_kernel\n.p2align 8\n.type e_kernel,@function\ne_kernel:\n@reset\ns_endpgm")
        E=[('e_kernel',256,256,0,32)]*cfg['empty']
        L = E+L if cfg.get('empty_first') else L+E
    if cfg.get('probe'):
        ib,stat,mask,val,mul=cfg['probe']
        from layout import WS_STAMP
        P.I(f""".globl m_kernel
.p2align 8
.type m_kernel,@function
m_kernel:
@reset
s_cmp_lg_u32 s2, 0
s_cbranch_scc1 L_m_exit
s_load_dwordx2 s[4:5], s[0:1], 136
s_waitcnt lgkmcnt(0)
s_add_u32 s4, s4, {WS_STAMP}
s_addc_u32 s5, s5, 0
s_mov_b32 s8, 0
s_mov_b32 s14, -1
s_mov_b32 s15, {0 if stat!='min' else -1}
s_mov_b32 s17, 0
s_load_dword s16, s[4:5], 0
s_waitcnt lgkmcnt(0)
s_sub_u32 s16, s16, 1000
L_m_loop:
s_lshl_b32 s9, s8, 10
s_load_dword s6, s[4:5], s9
s_add_u32 s9, s9, {ib*4}
s_load_dword s7, s[4:5], s9
s_waitcnt lgkmcnt(0)
s_sub_u32 s6, s6, s16
s_sub_u32 s7, s7, s16
s_min_u32 s14, s14, s6
s_and_b32 s9, s8, {mask}
s_cmp_lg_u32 s9, {val}
s_cbranch_scc1 L_m_skip
{dict(min='s_min_u32',max='s_max_u32',avg='s_add_u32')[stat]} s15, s15, s7
L_m_skip:
s_add_u32 s8, s8, 1
s_cmp_lt_u32 s8, 256
s_cbranch_scc1 L_m_loop
s_lshr_b32 s15, s15, {(8-bin(mask).count('1')) if stat=='avg' else 0}
s_sub_u32 s6, s15, s14
s_min_u32 s6, s6, 5000
s_mul_i32 s6, s6, {mul}
s_memrealtime s[10:11]
s_waitcnt lgkmcnt(0)
L_m_spin:
s_memrealtime s[12:13]
s_waitcnt lgkmcnt(0)
s_sub_u32 s12, s12, s10
s_cmp_lt_u32 s12, s6
s_cbranch_scc1 L_m_spin
L_m_exit:
s_endpgm""")
        L=L+[('m_kernel',1,64,0,32)]
    P.insert_waits(); nn=P.insert_nops(verbose); bad=align8(P)
    if cfg.get('TOUCH',1): print('pages touched', page_touch(P,'L_main',['L_touched']))
    gap_report(P,'c1','c2'); gap_report(P,'c2','end'); gap_report(P,'d','end')
    size=sum(x.size for x in P.ins)
    print(f'{out}: {len(P.ins)} lines, {size} bytes, nop states {nn}, misaligned 8B {bad}')
    hdr=[l for l in open(REF).read().split('\n') if l.startswith(';') and '@launch' not in l and 'Override launch' not in l and 'grid=ceil' not in l]
    hdr+=[f"; @launch {'kernel='+k+' ' if len(L)>1 else ''}grid=({g},1,1) block=({b},1,1) lds={l}" for k,g,b,l,v in L]
    tw=ka.table_words()
    tab='\n.p2align 8\n.type L_table,@object\nL_table:\n'+'\n'.join('.long '+','.join(hex(w) for w in tw[i:i+8]) for i in range(0,len(tw),8))
    pad = max(0,(33*1024-size-4*len(tw))//4)
    tab+=f'\n.fill {pad}, 4, 0\n.size L_table, {4*len(tw)+4*pad}'
    txt='\n'.join(hdr)+'\n.amdgcn_target "amdgcn-amd-amdhsa--gfx950"\n.text\n'+P.text()+tab+'\n.section .rodata,"a"\n'+'\n'.join(dict.fromkeys(kdesc(k,v) for k,g,b,l,v in L))+'\n'
    open(out,'w').write(txt)
if __name__=='__main__':
    out=sys.argv[1]; cfg=json.loads(sys.argv[2]) if len(sys.argv)>2 else {}
    build(out,cfg,diag=cfg.get('diag',False),verbose=cfg.get('verbose',False))
```

```python
import sys, json
sys.path.insert(0,'gen')
from prog import *
import ka, kc, mega
REF='adaLN_cond__ssm_conv_s4__geglu_ffn__prompt.s.ref'
def kdesc(k,vg):
    return f""".p2align 6
.amdhsa_kernel {k}
  .amdhsa_next_free_vgpr {vg}
  .amdhsa_next_free_sgpr 102
  .amdhsa_accum_offset {min(vg,256)}
  .amdhsa_group_segment_fixed_size 0
  .amdhsa_kernarg_size 144
  .amdhsa_user_sgpr_count 2
  .amdhsa_user_sgpr_kernarg_segment_ptr 1
  .amdhsa_system_sgpr_workgroup_id_x 1
  .amdhsa_float_denorm_mode_32 3
.end_amdhsa_kernel"""
def build(out, cfg, diag=False, verbose=False):
    cfg=dict(json.load(open('best.json')),**cfg)
    P=Prog()
    L = mega.build(P,diag,cfg)
    if cfg.get('empty'):
        P.I(".globl e_kernel\n.p2align 8\n.type e_kernel,@function\ne_kernel:\n@reset\ns_endpgm")
        E=[('e_kernel',256,256,0,32)]*cfg['empty']
        L = E+L if cfg.get('empty_first') else L+E
    if cfg.get('probe'):
        ib,stat,mask,val,mul=cfg['probe'][:5]; pm=(cfg['probe']+[''])[5]
        from layout import WS_STAMP
        P.I(f""".globl m_kernel
.p2align 8
.type m_kernel,@function
m_kernel:
@reset
s_cmp_lg_u32 s2, 0
s_cbranch_scc1 L_m_exit
s_load_dwordx2 s[4:5], s[0:1], 136
s_waitcnt lgkmcnt(0)
s_add_u32 s4, s4, {WS_STAMP}
s_addc_u32 s5, s5, 0
s_mov_b32 s8, 0
s_mov_b32 s14, -1
s_mov_b32 s15, {0 if stat!='min' else -1}
s_mov_b32 s17, 0
s_load_dword s16, s[4:5], 0
s_waitcnt lgkmcnt(0)
s_sub_u32 s16, s16, 1000
{'s_mov_b32 s16, 0' if pm else ''}
L_m_loop:
s_lshl_b32 s9, s8, 10
s_load_dword s6, s[4:5], s9
s_add_u32 s9, s9, {ib*4}
s_load_dword s7, s[4:5], s9
s_waitcnt lgkmcnt(0)
s_sub_u32 s6, s6, s16
s_sub_u32 s7, s7, s16
{'s_min_u32 s14, s14, s6' if not pm else 's_mov_b32 s14, 0' if pm=='raw' else ''}
s_and_b32 s9, s8, {mask}
s_cmp_lg_u32 s9, {val}
s_cbranch_scc1 L_m_skip
{dict(min='s_min_u32',max='s_max_u32',avg='s_add_u32')[stat]} s15, s15, s7
{'s_min_u32 s14, s14, s7' if pm=='self' else ''}
L_m_skip:
s_add_u32 s8, s8, 1
s_cmp_lt_u32 s8, 256
s_cbranch_scc1 L_m_loop
s_lshr_b32 s15, s15, {(8-bin(mask).count('1')) if stat=='avg' else 0}
s_sub_u32 s6, s15, s14
s_min_u32 s6, s6, 5000
s_mul_i32 s6, s6, {mul}
s_memrealtime s[10:11]
s_waitcnt lgkmcnt(0)
L_m_spin:
s_memrealtime s[12:13]
s_waitcnt lgkmcnt(0)
s_sub_u32 s12, s12, s10
s_cmp_lt_u32 s12, s6
s_cbranch_scc1 L_m_spin
L_m_exit:
s_endpgm""")
        L=L+[('m_kernel',1,64,0,32)]
    P.insert_waits(); nn=P.insert_nops(verbose); bad=align8(P)
    if cfg.get('TOUCH',1): print('pages touched', page_touch(P,'L_main',['L_touched']))
    gap_report(P,'c1','c2'); gap_report(P,'c2','end'); gap_report(P,'d','end')
    size=sum(x.size for x in P.ins)
    print(f'{out}: {len(P.ins)} lines, {size} bytes, nop states {nn}, misaligned 8B {bad}')
    hdr=[l for l in open(REF).read().split('\n') if l.startswith(';') and '@launch' not in l and 'Override launch' not in l and 'grid=ceil' not in l]
    hdr+=[f"; @launch {'kernel='+k+' ' if len(L)>1 else ''}grid=({g},1,1) block=({b},1,1) lds={l}" for k,g,b,l,v in L]
    tw=ka.table_words()
    tab='\n.p2align 8\n.type L_table,@object\nL_table:\n'+'\n'.join('.long '+','.join(hex(w) for w in tw[i:i+8]) for i in range(0,len(tw),8))
    pad = max(0,(33*1024-size-4*len(tw))//4)
    tab+=f'\n.fill {pad}, 4, 0\n.size L_table, {4*len(tw)+4*pad}'
    txt='\n'.join(hdr)+'\n.amdgcn_target "amdgcn-amd-amdhsa--gfx950"\n.text\n'+P.text()+tab+'\n.section .rodata,"a"\n'+'\n'.join(dict.fromkeys(kdesc(k,v) for k,g,b,l,v in L))+'\n'
    open(out,'w').write(txt)
if __name__=='__main__':
    out=sys.argv[1]; cfg=json.loads(sys.argv[2]) if len(sys.argv)>2 else {}
    build(out,cfg,diag=cfg.get('diag',False),verbose=cfg.get('verbose',False))
```

```python
import sys, json
sys.path.insert(0,'gen')
from prog import *
import ka, kc, mega
REF='adaLN_cond__ssm_conv_s4__geglu_ffn__prompt.s.ref'
def kdesc(k,vg):
    return f""".p2align 6
.amdhsa_kernel {k}
  .amdhsa_next_free_vgpr {vg}
  .amdhsa_next_free_sgpr 102
  .amdhsa_accum_offset {min(vg,256)}
  .amdhsa_group_segment_fixed_size 0
  .amdhsa_kernarg_size 144
  .amdhsa_user_sgpr_count 2
  .amdhsa_user_sgpr_kernarg_segment_ptr 1
  .amdhsa_system_sgpr_workgroup_id_x 1
  .amdhsa_float_denorm_mode_32 3
.end_amdhsa_kernel"""
def build(out, cfg, diag=False, verbose=False):
    cfg=dict(json.load(open('best.json')),**cfg)
    P=Prog()
    L = mega.build(P,diag,cfg)
    if cfg.get('empty'):
        P.I(".globl e_kernel\n.p2align 8\n.type e_kernel,@function\ne_kernel:\n@reset\ns_endpgm")
        E=[('e_kernel',256,256,0,32)]*cfg['empty']
        L = E+L if cfg.get('empty_first') else L+E
    if cfg.get('probe'):
        ib,stat,mask,val,mul=cfg['probe'][:5]; pm=(cfg['probe']+[''])[5]
        from layout import WS_STAMP
        P.I(f""".globl m_kernel
.p2align 8
.type m_kernel,@function
m_kernel:
@reset
s_cmp_lg_u32 s2, 0
s_cbranch_scc1 L_m_exit
s_load_dwordx2 s[4:5], s[0:1], 136
s_waitcnt lgkmcnt(0)
s_add_u32 s4, s4, {WS_STAMP}
s_addc_u32 s5, s5, 0
s_load_dword s16, s[4:5], 0
v_lshlrev_b32 v1, 10, v0
global_load_dword v2, v1, s[4:5]
global_load_dword v3, v1, s[4:5] offset:{ib*4}
v_mov_b32 v4, 0
v_mov_b32 v5, -1
v_mov_b32 v6, {0 if stat!='min' else -1}
ds_write_b32 v4, v5
ds_write_b32 v4, v6 offset:4
s_waitcnt vmcnt(0) lgkmcnt(0)
s_barrier
s_sub_u32 s16, s16, 1000
{'s_mov_b32 s16, 0' if pm else ''}
v_subrev_u32 v2, s16, v2
v_subrev_u32 v3, s16, v3
{'ds_min_u32 v4, v2' if not pm else 'ds_min_u32 v4, v4' if pm=='raw' else ''}
v_and_b32 v7, {mask}, v0
v_cmp_eq_u32 vcc, {val}, v7
s_and_saveexec_b64 s[18:19], vcc
{dict(min='ds_min_u32',max='ds_max_u32',avg='ds_add_u32',sum='ds_add_u32')[stat]} v4, v3 offset:4
{'ds_min_u32 v4, v3' if pm=='self' else ''}
s_mov_b64 exec, s[18:19]
s_waitcnt lgkmcnt(0)
s_barrier
ds_read_b64 v[8:9], v4
s_waitcnt lgkmcnt(0)
v_readfirstlane_b32 s14, v8
v_readfirstlane_b32 s15, v9
s_lshr_b32 s15, s15, {(8-bin(mask).count('1')) if stat=='avg' else 0}
s_sub_u32 s6, s15, s14
s_min_u32 s6, s6, 5000
s_mul_i32 s6, s6, {mul}
s_memrealtime s[10:11]
s_waitcnt lgkmcnt(0)
L_m_spin:
s_memrealtime s[12:13]
s_waitcnt lgkmcnt(0)
s_sub_u32 s12, s12, s10
s_cmp_lt_u32 s12, s6
s_cbranch_scc1 L_m_spin
L_m_exit:
s_endpgm""")
        L=L+[('m_kernel',1,256,64,32)]
    P.insert_waits(); nn=P.insert_nops(verbose); bad=align8(P)
    if cfg.get('TOUCH',1): print('pages touched', page_touch(P,'L_page',['L_touched']))
    gap_report(P,'c1','c2'); gap_report(P,'c2','end'); gap_report(P,'d','end',*(('16x16x32',2) if cfg.get('M16') else ()))
    size=sum(x.size for x in P.ins)
    print(f'{out}: {len(P.ins)} lines, {size} bytes, nop states {nn}, misaligned 8B {bad}')
    hdr=[l for l in open(REF).read().split('\n') if l.startswith(';') and '@launch' not in l and 'Override launch' not in l and 'grid=ceil' not in l]
    hdr+=[f"; @launch {'kernel='+k+' ' if len(L)>1 else ''}grid=({g},1,1) block=({b},1,1) lds={l}" for k,g,b,l,v in L]
    tw=ka.table_words()
    tab='\n.p2align 8\n.type L_table,@object\nL_table:\n'+'\n'.join('.long '+','.join(hex(w) for w in tw[i:i+8]) for i in range(0,len(tw),8))
    pad = max(0,(33*1024-size-4*len(tw))//4)
    tab+=f'\n.fill {pad}, 4, 0\n.size L_table, {4*len(tw)+4*pad}'
    txt='\n'.join(hdr)+'\n.amdgcn_target "amdgcn-amd-amdhsa--gfx950"\n.text\n'+P.text()+tab+'\n.section .rodata,"a"\n'+'\n'.join(dict.fromkeys(kdesc(k,v) for k,g,b,l,v in L))+'\n'
    open(out,'w').write(txt)
if __name__=='__main__':
    out=sys.argv[1]; cfg=json.loads(sys.argv[2]) if len(sys.argv)>2 else {}
    build(out,cfg,diag=cfg.get('diag',False),verbose=cfg.get('verbose',False))
```

```python
from prog import *
from layout import *
import struct
def f32(x): return struct.unpack('<I',struct.pack('<f',x))[0]
LOG2E = 0x3fb8aa3b
XIN = 0
sX,sARE,sAIM,sBRE,sBIM,sCRE,sCIM,sLDT,sDSK,sBX,sWG,sWU,sWD,sC,sWM,sOUT,sDBG,sWS = [8+2*i for i in range(18)]
rR,rWG,rWU,rWD,rOUT,rWS,rWJ = 44,48,52,56,60,64,68
sXCD,sIDX,sP,sW,sTAG,sLD,sDS = 72,73,74,75,76,77,78
sT0,sT1,sT2,sT3,sT4,sT5 = 80,81,82,83,84,85
sWO,sWST,sWA = 86,87,88
sCG,sKE,sFS,sCNT = 26,27,97,98
def sp(a,n=2): return f"s[{a}:{a+n-1}]"
def vr(a,n): return f"v[{a}:{a+n-1}]"
def ar(a,n): return f"a[{a}:{a+n-1}]"
def mksrd(d,b,size):
    return [f"s_mov_b32 s{d}, s{b}", f"s_and_b32 s{d+1}, s{b+1}, 0xffff", f"s_mov_b32 s{d+2}, {size}", f"s_mov_b32 s{d+3}, 0x20000"]
vLANE = 1
vT16,vMC,vMW = 12,13,14
vPAR = 16
vTAB = 24
vRA = 32
vROLE = 40
vFG = 120
vPOLL = 160
vPOL2 = 152
vXF = 192
vHF = 208
vKA,vUA,vYW,vYR,vWRA,vXO,vGR,vL16 = 224,225,226,227,228,229,230,231
vMOD = 232
vKF,vKC,vGW,vSEL1,vSEL2 = 240,241,242,243,244

def stamp(P, n, diag):
    if diag: P.I(f"s_memrealtime s[4:5]\ns_memtime s[100:101]\ns_waitcnt lgkmcnt(0)\nv_writelane_b32 v255, s4, {n}\nv_writelane_b32 v255, s100, {32+n}")
def stamp0_issue(P, diag):
    if diag: P.I("v_mov_b32 v255, 0\ns_memrealtime s[4:5]\ns_memtime s[100:101]")
def stamp0_commit(P, diag):
    if diag: P.I("v_writelane_b32 v255, s4, 0\nv_writelane_b32 v255, s100, 32")
def stamp_out(P, kidx, diag):
    if diag:
        P.I(f"""s_lshl_b32 s4, s2, 10
s_add_u32 s4, s4, {WS_STAMP + kidx*0x40000}
v_lshlrev_b32 v2, 2, v0
buffer_store_dword v255, v2, {sp(rWS,4)}, s4 offen""")

def bf16_round(l):
    u=f32(float(l)); u=(u+0x7fff+((u>>16)&1))&0xffff0000
    return int(struct.unpack('<f',struct.pack('<I',u))[0])
def table_words():
    rec=[]
    for T in range(256):
        a=[]
        for j in range(11):
            lag=2047-8*T-j
            if lag<0: a.append(L_CZ); continue
            lam=bf16_round(lag); b=(lam>>3)&15; i=HI.index(lam-8*b)
            a.append(L_C+i*CP+4*b)
        a.append(0)
        w=T>>6; lane=T&63; ch=w>>1; vh=w&1
        ka_=L_KI+ch*4*KIP+(lane&3)*KIP+2*(2044-16)-3584-192-256*vh+(lane&48)-2*(lane&12)
        ua_=L_H+ch*HP+448-192-256*vh+32*(lane&15)+(lane&48)
        rec.append([a[2*k]|(a[2*k+1]<<16) for k in range(6)]+[ka_,ua_])
    return [rec[T][4*q+k] for q in range(2) for T in range(256) for k in range(4)]

def entry(P, name, diag, nlines, perm):
    P.I(f".globl {name}\n.p2align 8\n.type {name},@function\n{name}:\n@reset")
    ng=(nlines+15)//16; assert ng&(ng-1)==0 and ng<=32
    P.I(f"""s_cmp_ge_u32 s2, 256
s_cbranch_scc1 L_{name}_exit
s_load_dwordx16 s[8:23], s[0:1], 0
s_load_dwordx16 s[24:39], s[0:1], 64
s_load_dwordx4 s[40:43], s[0:1], 128
s_getpc_b64 s[6:7]
L_pc:
v_lshrrev_b32 v2, 6, v0
v_and_b32 v{vLANE}, 63, v0
s_lshr_b32 s{sIDX}, s2, 3
v_readfirstlane_b32 s{sW}, v2
s_and_b32 s{sT0}, s{sIDX}, {ng-1}
s_lshl_b32 s{sT0}, s{sT0}, 11
v_lshl_add_u32 v3, v{vLANE}, 5, s{sT0}
s_cmp_lg_u32 s{sW}, 3
s_cbranch_scc1 L_nopf
global_load_dword v15, v3, s[6:7]
L_nopf:""")
    stamp0_issue(P,diag)
    P.I(f"s_and_b32 s{sXCD}, s2, 7")
    if perm: P.I(f"s_lshl_b32 s{sXCD}, s{sXCD}, 2\ns_lshr_b32 s{sXCD}, {hex(sum(v<<(4*k) for k,v in enumerate(perm)))}, s{sXCD}\ns_and_b32 s{sXCD}, s{sXCD}, 7")
    P.I(f"""s_lshl_b32 s{sP}, s{sXCD}, 5
s_add_u32 s{sP}, s{sP}, s{sIDX}""")

def role_addr(P, loc=0):
    P.I(f"""s_cmp_eq_u32 s{sW}, 0
s_cselect_b32 s{sT3}, 8, 1
s_lshl_b32 s{sT2}, s{sT3}, 10
s_lshl_b32 s{sT3}, s{sT3}, 7
s_and_b32 s{sT4}, s{sP}, 7
s_lshl_b32 s{sT4}, s{sT4}, 7""")
    if loc: P.I(f"s_lshl_b32 s{sT0}, s{sIDX}, 9\ns_add_u32 s{sT0}, s{sT0}, s{sXCD}\ns_lshl_b32 s{sT0}, s{sT0}, 7")
    else: P.I(f"s_lshr_b32 s{sT0}, s{sP}, 3\ns_lshl_b32 s{sT0}, s{sT0}, 16\ns_add_u32 s{sT0}, s{sT0}, s{sT4}")
    P.I(f"""s_lshl_b32 s{sT1}, s{sP}, 13
s_cmp_eq_u32 s{sW}, 0
s_cselect_b32 s{sT0}, s{sT0}, s{sT1}
s_and_b32 s{sT5}, s{sW}, 1
s_sub_u32 s92, 7, s{sT5}
s_lshr_b32 s{sT1}, s{sP}, s92
s_lshl1_add_u32 s{sT1}, s{sT5}, s{sT1}
s_lshl_b32 s{sT1}, s{sT1}, 10
s_add_u32 s{sT4}, s{sT4}, s{sT1}
s_and_b32 s{sT1}, s{sP}, 0xf8
s_add_u32 s92, s{sT5}, 2
s_lshl_b32 s{sT1}, s{sT1}, s92
s_and_b32 s{sT5}, s{sT1}, 511
s_mul_i32 s{sT1}, s{sT5}, 6144
s_add_u32 s{sT1}, s{sT1}, s{sT4}
s_mov_b32 s{sT4}, 3145728
s_cmp_lt_u32 s{sW}, 2
s_cselect_b32 s94, s{sT0}, s{sT1}
s_cselect_b32 s{sT2}, s{sT2}, 6144
s_cselect_b32 s79, s{sT3}, {8*6144}
s_cselect_b32 s{rR+2}, 2097152, s{sT4}
s_mov_b32 s{rR+3}, 0x20000
v_lshrrev_b32 v3, 3, v{vLANE}
v_mul_u32_u24 v3, s{sT2}, v3
v_lshrrev_b32 v4, 2, v{vLANE}
v_and_b32 v4, 4, v4
v_and_b32 v5, 7, v{vLANE}
v_xor_b32 v4, v4, v5
v_lshl_add_u32 v22, v4, 4, v3
v_xor_b32 v23, 32, v22
s_lshl_b32 s3, s{sW}, 13
s_add_u32 s3, s3, {L_RR}
v_add_u32 v5, s{sT5}, v{vLANE}
v_and_b32 v5, 511, v5
v_lshlrev_b32 v5, 1, v5
s_lshl_b32 s{sT5}, s{sP}, 9
v_lshl_add_u32 v2, v0, 1, s{sT5}""")
    for i in range(6): P.I(f"v_mov_b32 v{vPAR+i}, 0")
    P.I(f"v_mov_b32 v{vROLE}, 0\ns_lshl_b32 s93, s{sP}, 2")
def early_loads(P, NT, XNT):
    par=[f"global_load_short_d16_hi v{vPAR+i}, v2, {sp(b)} {NT}" for i,b in enumerate((sARE,sAIM,sBRE,sBIM,sCRE,sCIM))]
    P.extend(par)
    P.I(f"""s_load_dword s{sTAG}, {sp(sWS)}, {WS_EPOCH}
s_load_dword s{sLD}, {sp(sLDT)}, s93
s_load_dword s{sDS}, {sp(sDSK)}, s93
s_cmp_lt_u32 s{sW}, 2
s_cselect_b64 {sp(rR)}, {sp(sX)}, {sp(sWM)}
s_and_b32 s{rR+1}, s{rR+1}, 0xffff""")
    P.I(f"global_load_short_d16_hi v{vROLE}, v5, {sp(sC)}")
    P.I(f"""s_add_u32 s6, s6, L_table-L_pc+4096
s_addc_u32 s7, s7, 0
v_lshlrev_b32 v{vT16}, 4, v0""")
def role_loads(P, XNT, late):
    lbl='L_rlb' if late else 'L_rla'
    P.I(f"s_cmp_eq_u32 s{sW}, 3\ns_cbranch_scc{0 if late else 1} {lbl}")
    for u in range(8):
        if u==4 and not late: P.I(f"s_cmp_eq_u32 s{sW}, 2\ns_cbranch_scc1 {lbl}")
        P.I(f"s_add_u32 m0, s3, {u*1024}")
        P.I(f"s_add_u32 s94, s94, s79" if u else "s_nop 0")
        P.I(f"buffer_load_dwordx4 v{22+(u&1)}, {sp(rR,4)}, s94 offen {XNT} lds", tag='rr')
    P.I(f"{lbl}:")
def table_loads(P):
    P.I(f"global_load_dwordx4 {vr(vTAB,4)}, v{vT16}, s[6:7] offset:-4096\nglobal_load_dwordx4 {vr(vTAB+4,4)}, v{vT16}, s[6:7]")

def setup(P, nowd=False, X='', wmap=0):
    P.extend(mksrd(rWS,sWS,WS_USED))
    P.I(f"s_cmp_lt_u32 s{sIDX}, 28\ns_cselect_b32 s{sT0}, 1835008, 0\ns_cselect_b32 s{sT1}, {WS_USED}, 0")
    for r,b in ((rWG,sWG),(rWU,sWU),(rWD,sWD)): P.extend(mksrd(r,b,1835008 if (nowd and r==rWD) else f"s{sT0}"))
    P.extend(mksrd(rWJ,sWS,f"s{sT1}"))
    if 'w' in X: P.I(f"s_mov_b32 s{rWG+2}, 0\ns_mov_b32 s{rWU+2}, 0")
    if 'm' in X: P.I(f"s_mov_b32 s{rR+2}, 0")
    if 'd' in X: P.I(f"s_mov_b32 s{rWD+2}, 0")
    if 's' in X: P.I(f"s_min_u32 s{rWJ+2}, s{rWJ+2}, {WS_XG}")
    if wmap: P.I(f"s_mov_b32 s{sCG}, s{sIDX}\ns_mov_b32 s{sKE}, s{sXCD}")
    else: P.I(f"""s_and_b32 s{sCG}, s{sXCD}, 3
s_mul_i32 s{sCG}, s{sCG}, 7
s_lshr_b32 s{sT0}, s{sIDX}, 2
s_add_u32 s{sCG}, s{sCG}, s{sT0}
s_and_b32 s{sKE}, s{sXCD}, 4
s_and_b32 s{sT0}, s{sIDX}, 3
s_add_u32 s{sKE}, s{sKE}, s{sT0}""")
    P.I(f"""s_lshl2_add_u32 s{sT0}, s{sCG}, s{sW}
s_mul_i32 s{sT1}, s{sT0}, 147
s_lshr_b32 s{sT1}, s{sT1}, 10
s_mul_i32 s{sT2}, s{sT1}, 7
s_sub_u32 s{sT0}, s{sT0}, s{sT2}
s_mul_i32 s{sT1}, s{sT1}, 231
s_cmp_lt_u32 s{sT0}, {G1}
s_cselect_b32 s{sT2}, {G1}, 1
s_cselect_b32 s{sT3}, 1, 33
s_mul_i32 s{sT0}, s{sT0}, s{sT3}
s_add_u32 s{sT0}, s{sT0}, s{sT1}
s_lshl_b32 s{sT0}, s{sT0}, 10
s_add_u32 s{sT0}, s{sT0}, {WS_WPF}
s_lshl_b32 s{sWST}, s{sT2}, 10
s_mul_i32 s{sT3}, s{sWST}, s{sKE}
s_lshl2_add_u32 s{sWO}, s{sT3}, s{sT0}
s_lshl_b32 s{sT2}, s{sT2}, 15
s_add_u32 s{sWA}, s{sT2}, s{sT0}
s_lshl_b32 s{sT0}, s{sKE}, 7
s_add_u32 s{sWA}, s{sWA}, s{sT0}""")
    L=vLANE
    P.I(f"""v_lshlrev_b32 v{vL16}, 4, v{L}
v_and_b32 v2, 15, v{L}
v_and_b32 v3, 48, v{L}
v_lshrrev_b32 v4, 4, v{L}
v_lshrrev_b32 v5, 5, v{L}
v_and_b32 v6, 3, v{L}
s_mul_i32 s{sT2}, s{sW}, 10240
s_add_u32 s{sT2}, s{sT2}, {L_Y}
v_mul_u32_u24 v7, 320, v4
v_lshl_add_u32 v7, v2, 4, v7
v_add_u32 v{vYW}, s{sT2}, v7
v_lshrrev_b32 v7, 5, v0
v_mul_u32_u24 v7, 1280, v7
v_and_b32 v8, 1, v0
v_mul_u32_u24 v9, 640, v8
v_bfe_u32 v10, v0, 1, 4
v_lshl_add_u32 v9, v10, 4, v9
v_add_u32 v{vYR}, v7, v9
v_lshrrev_b32 v7, 2, v0
{f"s_and_b32 s{sT2}, s{sP}, 7" if XIN else ""}
{f"v_xor_b32 v7, s{sT2}, v7" if XIN else ""}
v_lshlrev_b32 v7, {7 if XIN else 15}, v7
v_lshl_add_u32 v{vXO}, v6, 4, v7
v_mul_u32_u24 v7, {FP}, v2
v_add_u32 v7, v7, v3
v_add_u32 v{vKF}, {L_F}, v7
v_mul_u32_u24 v7, {CP}, v2
s_mul_i32 s{sT2}, s{sW}, {16*CP}
v_add3_u32 v{vKC}, v7, v3, s{sT2}
v_bfe_u32 v7, v{L}, 2, 2
v_cvt_f32_u32 v{vSEL2}, v5
v_and_b32 v9, 31, v{L}
v_lshlrev_b32 v{vMC}, 12, v9
v_and_b32 v9, 8, v{L}
v_lshl_add_u32 v9, v9, 1, v2
v_lshlrev_b32 v{vSEL1}, 12, v9
v_lshl_add_u32 v9, v5, 3, v6
v_bfe_u32 v10, v{L}, 2, 3
v_lshlrev_b32 v11, 4, v10
v_lshl_add_u32 v{vMW}, v9, 12, v11
s_lshl_b32 s{sT2}, s{sW}, 6
s_add_u32 s{sT2}, s{sT2}, {L_GT+256}
v_lshl_add_u32 v10, v10, 3, s{sT2}
v_lshlrev_b32 v11, 8, v5
v_sub_u32 v{vGW}, v10, v11
v_lshlrev_b32 v10, 5, v5
v_add_u32 v{vGR}, {L_GT}, v10
v_and_b32 v9, 1, v4
v_lshl_add_u32 v10, v9, 1, v5
v_lshl_add_u32 v10, v10, 3, v7
v_lshl_add_u32 v10, v10, 1, v9
v_bfe_u32 v11, v{L}, 3, 1
v_lshl_add_u32 v10, v10, 1, v11
v_xor_b32 v10, s{sW}, v10
v_lshl_add_u32 v10, v10, 1, v8
v_bfe_u32 v11, v{L}, 1, 1
v_lshl_add_u32 v10, v10, 1, v11
v_lshlrev_b32 v10, 3, v10
v_add_u32 v{vWRA}, {L_WR}, v10""")
    P.I(f"""v_mul_u32_u24 v7, {HP}, v5
v_and_b32 v9, 31, v{L}
v_min_u32 v9, 29, v9
v_lshl_add_u32 v7, v9, 4, v7
v_add_u32 v7, {L_H}, v7
v_cmp_gt_u32 vcc, 64, v0
v_mov_b32 v9, {L_CZ}
v_mov_b32 v{vFG}, 0
v_cndmask_b32 v7, v9, v7, vcc
v_mov_b32 v{vFG+1}, 0
v_mov_b32 v{vFG+2}, 0
v_mov_b32 v{vFG+3}, 0
ds_write_b128 v7, {vr(vFG,4)}""")
    A0=vRA
    P.I(f"""v_lshrrev_b32 v2, 3, v{L}
v_and_b32 v3, 2, v2
v_mul_u32_u24 v2, 3584, v2
v_and_b32 v4, 7, v{L}
v_xor_b32 v3, v3, v4
v_xor_b32 v4, 4, v3
v_lshl_add_u32 v{A0+2}, v3, 4, v2
v_lshl_add_u32 v{A0+3}, v4, 4, v2
v_and_b32 v8, 1, v{L}
v_bfe_u32 v7, v{L}, 1, 3
v_mul_u32_u24 v7, {KIP}, v7
v_lshl_add_u32 v7, v8, 4, v7
v_add_u32 v{A0+1}, {L_KI+4096}, v7
s_mul_i32 s{sT0}, s{sKE}, {64*3584}
s_lshl_b32 s{sT1}, s{sCG}, 7
s_add_u32 s90, s{sT0}, s{sT1}""")
    if not nowd: P.I(f"""v_lshrrev_b32 v2, 2, v{L}
v_and_b32 v5, 3, v{L}
v_lshlrev_b32 v5, 4, v5
v_lshl_add_u32 v{A0+4}, v2, 10, v5
v_lshrrev_b32 v6, 5, v{L}
v_and_b32 v7, 3, v2
v_lshl_add_u32 v6, v6, 3, v7
v_bfe_u32 v7, v{L}, 4, 1
v_lshl_add_u32 v6, v6, 1, v7
v_lshl_add_u32 v6, v6, 1, v8
v_bfe_u32 v7, v{L}, 1, 1
v_lshl_add_u32 v6, v6, 1, v7
v_lshlrev_b32 v6, 3, v6
v_add_u32 v{A0}, {L_DR}, v6
s_mul_i32 s{sFS}, s{sXCD}, 28
s_add_u32 s{sFS}, s{sFS}, s{sIDX}
s_lshr_b32 s{sT2}, s{sFS}, 1
s_lshl_b32 s{sT2}, s{sT2}, 14
s_and_b32 s{sT1}, s{sFS}, 1
s_lshl_b32 s{sT1}, s{sT1}, 9
s_add_u32 s91, s{sT2}, s{sT1}""")

def x_jobs(P, PUB, diag, loc=0):
    R=vROLE; G=vROLE+32; L=vLANE
    P.I(f"s_cmp_eq_u32 s{sW}, 2\ns_cbranch_scc1 L_rj2\ns_cmp_eq_u32 s{sW}, 1\ns_cbranch_scc1 L_rj1")
    P.I(f"""v_and_b32 v2, 7, v{L}
v_lshrrev_b32 v3, 3, v{L}
v_and_b32 v4, 2, v2
v_lshlrev_b32 v4, 1, v4
v_xor_b32 v4, v4, v3
v_lshlrev_b32 v4, 4, v4
v_lshl_add_u32 v4, v2, 7, v4
v_add_u32 v4, {L_RR}, v4
v_xor_b32 v5, 32, v4
v_mul_u32_u24 v3, {4*12288}, v3
v_lshl_add_u32 v2, v2, 4, v3
{f"s_mov_b32 s{sT0}, s{sXCD}" if loc else f"s_and_b32 s{sT0}, s{sP}, 7"}
s_mul_i32 s{sT0}, s{sT0}, {32*12288}
{f"s_lshl_b32 s{sT1}, s{sIDX}, 3" if loc else f"s_and_b32 s{sT1}, s{sP}, 0xf8"}
s_lshl4_add_u32 s{sT0}, s{sT1}, s{sT0}
s_add_u32 s{sT0}, s{sT0}, {WS_XG}""")
    for k in range(12): P.I(f"v_mov_b32 v{G+4*k+3}, s{sTAG}")
    P.I("s_waitcnt vmcnt(0)"); stamp(P,2,diag)
    for r in range(8): P.I(f"ds_read_b128 {vr(R+4*r,4)}, v{4+(r&1)} offset:{r*1024}")
    for g in range(3):
        for j in range(4):
            k=g*4+j
            for e in range(3):
                if 3*g+e<8: P.I(f"v_mov_b32 v{G+4*k+e}, v{R+4*(3*g+e)+j}")
            P.I(f"s_add_u32 s{sT1}, s{sT0}, {j*12288+g*4096}")
            P.I(f"buffer_store_dwordx4 {vr(G+4*k,4)}, v2, {sp(rWS,4)}, s{sT1} offen {'' if loc==1 else PUB}")
    P.I(f"s_branch L_xje\nL_rj1:")
    P.I(f"""v_mov_b32 v2, 0
v_mov_b32 v3, 0
v_mov_b32 v4, 0
v_mov_b32 v5, 0
s_mov_b32 s{sT1}, 0x3f803f80
v_add_u32 v6, {L_RR+8192}, v{vL16}
v_mul_u32_u24 v8, 96, v{L}
v_lshlrev_b32 v9, 12, v{L}
s_lshl4_add_u32 s{sT0}, s{sP}, {WS_SG}""")
    P.I(f"v_mov_b32 v{G+3}, s{sTAG}\ns_waitcnt vmcnt(0)"); stamp(P,2,diag)
    for u in range(8): P.I(f"ds_read_b128 {vr(R+4*u,4)}, v6 offset:{u*1024}")
    for k in range(32):
        P.I(f"v_dot2c_f32_bf16 v{2+(k&1)}, s{sT1}, v{R+k}\nv_dot2c_f32_bf16 v{4+(k&1)}, v{R+k}, v{R+k}")
    P.I("v_add_f32 v2, v2, v3\nv_add_f32 v4, v4, v5")
    for m in ("quad_perm:[1,0,3,2]","quad_perm:[2,3,0,1]","row_half_mirror"):
        P.I(f"v_add_f32_dpp v2, v2, v2 {m} row_mask:0xf bank_mask:0xf\nv_add_f32_dpp v4, v4, v4 {m} row_mask:0xf bank_mask:0xf")
    P.I(f"""v_mul_f32 v2, 0x3b000000, v2
v_mul_f32 v4, 0x3b000000, v4
v_fma_f32 v4, -v2, v2, v4
v_max_f32 v4, 0, v4
v_cvt_pk_bf16_f32 v4, v4, v4
v_and_b32 v4, 0xffff0000, v4
v_add_f32 v4, 0x3727c5ac, v4
v_cvt_pk_bf16_f32 v4, v4, v4
v_and_b32 v4, 0xffff0000, v4
v_sqrt_f32 v4, v4
v_cvt_pk_bf16_f32 v2, v2, v4
ds_bpermute_b32 v{G}, v8, v2
ds_bpermute_b32 v{G+1}, v8, v2 offset:32
ds_bpermute_b32 v{G+2}, v8, v2 offset:64
s_waitcnt lgkmcnt(0)
s_mov_b64 exec, 7
buffer_store_dwordx4 {vr(G,4)}, v9, {sp(rWS,4)}, s{sT0} offen {PUB}
s_mov_b64 exec, -1
s_branch L_xje
L_rj2:""")
    mod_job(P,PUB,diag,1)
    P.I("L_xje:")
def mod_job(P, PUB, diag, nks):
    R=vROLE; L=vLANE; A0=vRA; w=nks+1
    assert L_MR%128==0
    P.I(f"""v_lshrrev_b32 v2, 4, v{L}
v_bfe_u32 v3, v{L}, 2, 2
v_lshl_add_u32 v4, v2, 3, v3
v_bfe_u32 v3, v{L}, 3, 1
v_lshl_add_u32 v4, v4, 1, v3
v_and_b32 v3, 1, v2
v_lshl_add_u32 v4, v4, 1, v3
v_and_b32 v3, 3, v{L}
v_lshl_add_u32 v4, v4, 2, v3
v_lshlrev_b32 v4, 3, v4
v_add_u32 v8, {L_RR+w*8192}, v4
v_xor_b32 v9, 32, v8
v_xor_b32 v10, 64, v8
v_xor_b32 v11, 96, v8
v_bfe_u32 v4, v{L}, 1, 2
v_lshl_add_u32 v4, v4, 2, v2
v_and_b32 v3, 1, v{L}
v_lshl_add_u32 v4, v4, 1, v3
v_lshlrev_b32 v{A0+5}, 4, v4
s_mov_b32 s{sT0}, {L_SC+(w-2)*128}
v_lshl_add_u32 v6, v{L}, 1, s{sT0}
v_and_b32 v7, 48, v{L}
v_add_u32 v7, s{sT0}, v7
s_lshl_b32 s{sT0}, s{sP}, 9
s_add_u32 s99, s{sT0}, {WS_MG+(w-2)*0x20000}
s_mov_b32 s{sT0}, 0xaaaaaaaa
s_mov_b32 s{sT1}, 0xaaaaaaaa
s_mov_b32 s{sT2}, 0xcccccccc
s_mov_b32 s{sT3}, 0xcccccccc
s_mov_b32 s{sT4}, 0xf0f0f0f0
s_mov_b32 s{sT5}, 0xf0f0f0f0""")
    if nks==1: P.I("s_waitcnt vmcnt(6)")
    P.I(f"""v_mul_f32 v4, 0xbfb8aa3b, v{R}
v_exp_f32 v4, v4
v_add_f32 v4, 1.0, v4
v_rcp_f32 v4, v4
v_mul_f32 v2, v{R}, v4
v_cvt_pk_bf16_f32 v2, v2, v2
ds_write_b16 v6, v2""")
    for ks in range(nks): P.I(f"ds_read_b128 {vr(R+4*ks,4)}, v7 offset:{ks*64}")
    P.I("s_waitcnt vmcnt(0)" if nks==1 else "@wait rr"); stamp(P,2,diag)
    A=R+16; ACC=R+16+32
    seq=[(ks,ct) for ks in range(nks) for ct in range(4)]
    for n,(ks,ct) in enumerate(seq):
        for hf in range(2): P.I(f"ds_read_b64_tr_b16 {vr(A+4*n+2*hf,2)}, v{8+ct} offset:{ks*4096+hf*512}")
    for n,(ks,ct) in enumerate(seq):
        P.I(f"v_mfma_f32_16x16x32_bf16 {vr(ACC+4*ct,4)}, {vr(A+4*n,4)}, {vr(R+4*ks,4)}, {vr(ACC+4*ct,4) if ks else 0}")
    P.I(f"v_mov_b32 v{R+3}, s{sTAG}")
    for ct in range(4):
        for e in range(2): P.I(f"v_cndmask_b32 v{A+2*ct+e}, v{ACC+4*ct+e}, v{ACC+4*ct+2+e}, {sp(sT0)}")
    for c2 in range(2):
        for e in range(2): P.I(f"v_cndmask_b32 v{A+8+2*c2+e}, v{A+4*c2+e}, v{A+4*c2+2+e}, {sp(sT2)}")
    for e in range(2): P.I(f"v_cndmask_b32 v{R+e}, v{A+8+e}, v{A+10+e}, {sp(sT4)}")
    P.I(f"""s_mov_b32 exec_lo, 0x00ff00ff
s_mov_b32 exec_hi, 0x00ff00ff
buffer_store_dwordx4 {vr(R,4)}, v{A0+5}, {sp(rWS,4)}, s99 offen {PUB}
s_mov_b64 exec, -1""")
def raw_wd_loads(P, NT):
    P.I(f"s_lshl_b32 s{sT0}, s{sW}, 11\ns_lshl_b32 s{sT1}, s{sW}, 7\ns_add_u32 m0, s{sT0}, {L_DR}\ns_add_u32 s{sT1}, s{sT1}, s91")
    P.I(f"buffer_load_dwordx4 v{vRA+4}, {sp(rWD,4)}, s{sT1} offen {NT} lds", tag='dr')
    P.I(f"s_add_u32 m0, s{sT0}, {L_DR+1024-64}\nv_add_u32 v245, s{sT0}, v{vRA}")
    P.I(f"buffer_load_dwordx4 v{vRA+4}, {sp(rWD,4)}, s{sT1} offen offset:64 {NT} lds", tag='dr')
def wd_job(P, ST):
    A=vHF+8
    P.I("@wait dr")
    for f in range(2):
        for hf in range(2): P.I(f"ds_read_b64_tr_b16 {vr(A+4*f+2*hf,2)}, v245 offset:{f*1024+hf*256}")
    P.I(f"""s_and_b32 s{sT0}, s{sFS}, 1
s_lshl2_add_u32 s{sT0}, s{sT0}, s{sW}
s_mul_i32 s{sT0}, s{sT0}, {2*112}
s_lshr_b32 s{sT1}, s{sFS}, 1
s_add_u32 s{sT0}, s{sT0}, s{sT1}
s_lshl_b32 s{sT0}, s{sT0}, 10
s_add_u32 s{sT0}, s{sT0}, {WS_WDF}
s_add_u32 s{sT1}, s{sT0}, {112*1024}""")
    for f in range(2):
        P.I(f"buffer_store_dwordx4 {vr(A+4*f,4)}, v{vL16}, {sp(rWJ,4)}, s{sT0+f} offen {ST}", tag='wdst')
def raw_w_loads(P, NT):
    P.I(f"s_mul_i32 s95, s{sW}, {16*3584}\ns_add_u32 s95, s95, s90\ns_lshl_b32 s96, s{sW}, 12")
    for q in range(2):
        for mat,r in ((0,rWG),(1,rWU)):
            P.I(f"s_add_u32 m0, s96, {L_WR+mat*2048+q*1024}")
            P.I(f"s_add_u32 s95, s95, {8*3584}" if (q and not mat) else "s_nop 0")
            P.I(f"buffer_load_dwordx4 v{vRA+2+mat}, {sp(r,4)}, s95 offen {NT} lds", tag='wr')

def cmul(o,a,b,t):
    return [f"v_pk_mul_f32 {vr(t,2)}, {vr(a,2)}, {vr(b,2)} op_sel_hi:[0,1]",
            f"v_pk_fma_f32 {vr(o,2)}, {vr(a,2)}, {vr(b,2)}, {vr(t,2)} op_sel:[1,1,0] op_sel_hi:[1,0,1] neg_lo:[1,0,0]"]
def factor_gen(P, lo=0, hi=99):
    B=vFG; are,aim,bre,bim,cre,cim=[vPAR+i for i in range(6)]
    R1,R8,R128,LOc,TMP,PK = B,B+2,B+4,B+6,B+8,B+12
    Pc=[B+16+2*c for c in range(8)]
    zr,zi,dt=B+32,B+33,B+34; M=[2,4,6]; PH=[8,9,10]
    P.I(f"s_lshr_b32 s{sT0}, s{sW}, 1\ns_mul_i32 s{sT1}, s{sT0}, {64*FP-512}\ns_lshl_b32 s{sT2}, s{sW}, 8\ns_add_u32 m0, s{sT1}, s{sT2}")
    P0=P
    if lo: P=Prog()
    P.I(f"""s_lshl_b32 s{sT0}, s{sT0}, 4
s_lshr_b32 s{sT1}, s{sLD}, s{sT0}
s_lshl_b32 s{sT1}, s{sT1}, 16
v_mov_b32 v{dt}, {hex(LOG2E)}
v_mul_f32 v{dt}, s{sT1}, v{dt}
v_exp_f32 v{dt}, v{dt}""")
    P.extend(cmul(Pc[0],cre,bre,TMP))
    P.I(f"""v_cvt_pk_bf16_f32 v{dt}, v{dt}, v{dt}
v_and_b32 v{dt}, 0xffff0000, v{dt}
v_mul_f32 v{zr}, v{dt}, v{are}
v_mul_f32 v{zi}, v{dt}, v{aim}
v_mul_f32 v{zr}, {hex(LOG2E)}, v{zr}
v_mul_f32 v{zi}, 0.15915494, v{zi}
v_pk_mul_f32 {vr(Pc[0],2)}, {vr(Pc[0],2)}, {vr(dt,2)} op_sel_hi:[1,0] neg_hi:[1,0]""")
    cx=((R1,1,True),(R8,8,False),(R128,128,True))
    for (o,sc,cj),m,ph in zip(cx,M,PH):
        if sc==1: P.I(f"v_exp_f32 v{m}, v{zr}\nv_fract_f32 v{ph}, v{zi}")
        else: P.I(f"v_mul_f32 v{m}, {hex(f32(sc))}, v{zr}\nv_mul_f32 v{ph}, {hex(f32(sc))}, v{zi}\nv_exp_f32 v{m}, v{m}\nv_fract_f32 v{ph}, v{ph}")
        P.I(f"v_cos_f32 v{o}, v{ph}\nv_sin_f32 v{o+1}, v{ph}")
    for (o,sc,cj),m,ph in zip(cx,M,PH):
        P.I(f"v_pk_mul_f32 {vr(o,2)}, {vr(o,2)}, {vr(m,2)} op_sel_hi:[1,0]" + (" neg_hi:[1,0]" if cj else ""))
    P=P0
    steps_lo=[('one',48),('put',49,R8)]+[('mul',48+b,LOc,(R8 if b==2 else LOc),R8) for b in range(2,16)]
    steps_hi=[('put',0,Pc[0])]+[('mul',c,Pc[c],Pc[c-1],R1) for c in range(1,8)]
    row=8
    for e in range(1,17):
        cs = range(8) if e<2 else range(0,8,2) if e<4 else (0,4) if e<8 else (0,)
        for c in cs:
            assert HI[row]==128*e+c
            steps_hi.append(('mul',row,Pc[c],Pc[c],R128)); row+=1
    for k,s in enumerate(steps_lo+steps_hi):
        if not lo<=k<hi: continue
        kk=PK+(k&3)
        if s[0]=='one': P.I(f"v_mov_b32 v{kk}, 0x3f80")
        else:
            if s[0]=='mul': P.extend(cmul(s[2],s[3],s[4],TMP+2*(k&1)))
            P.I(f"v_cvt_pk_bf16_f32 v{kk}, v{s[2]}, v{s[2]+1}")
        P.I(f"ds_write_addtid_b32 v{kk} offset:{L_F+s[1]*FP}")

def kgen(P, diag, mid=[], skip=0, order=0):
    A=vROLE; ACC=vFG
    P.I(f"""s_lshl_b32 s{sT0}, s{sDS}, 16
s_and_b32 s{sT1}, s{sDS}, 0xffff0000
v_cmp_eq_u32 vcc, 0, v0
v_mov_b32 v2, s{sT0}
v_mov_b32 v3, s{sT1}
s_mul_i32 s{sT2}, s{sW}, {16*FP}
v_cndmask_b32 v{ACC}, 0, v2, vcc
v_cndmask_b32 v{ACC+4}, 0, v3, vcc
v_add_u32 v5, s{sT2}, v{vKF}""")
    for r in (1,2,3,5,6,7): P.I(f"v_mov_b32 v{ACC+r}, 0")
    P.I(f"s_cmp_eq_u32 s{sW}, 3\ns_waitcnt lgkmcnt(0)\ns_barrier\ns_cbranch_scc1 L_wdjob")
    def rd(n):
        ks,ch=n>>1,n&1; b=A+8*(n%9)
        return [f"ds_read_b128 {vr(b,4)}, v{vKF} offset:{ch*64*FP+48*FP+ks*64}", f"ds_read_b128 {vr(b+4,4)}, v5 offset:{ch*64*FP+ks*64}"]
    for n in range(7): P.extend(rd(n))
    m2=[[Ins(x.text,x.tag) for x in g] for g in mid]; mid=list(mid)
    for n in range(16):
        if mid and n>=skip: P.extend(mid.pop(0))
        b=A+8*(n%9); a=vr(ACC+4*(n&1),4)
        P.I(f"v_mfma_f32_16x16x32_bf16 {a}, {vr(b,4)}, {vr(b+4,4)}, {a}")
        if n+7<16: P.extend(rd(n+7))
    for r in range(4): P.I(f"v_cvt_pk_bf16_f32 v{8+r}, v{ACC+r}, v{ACC+4+r}")
    P.I(f"ds_write_b128 v{vKC}, v[8:11]\ns_branch L_kgen_end\nL_wdjob:")
    if order==0:
        for g in m2: P.extend(g)
    mod_job(P,'sc1',diag,2)
    if order==1:
        for g in m2: P.extend(g)
    P.I(f"ds_write_b128 v{vRA+1}, {vr(ACC,4)}")
    P.I("L_kgen_end:")

def poll_groups(extra=None, XL='sc1', xfirst=0):
    Q=Prog(); poll_loads(Q,XL,xfirst); G=[[]]
    if extra: extra(Q)
    for x in Q.ins:
        G[-1].append(x)
        if x.kind=='vmem': G.append([])
    return G[:-1]
def poll_loads(P, XL='sc1', xfirst=0):
    LD='sc1'
    P.I(f"s_mul_i32 s94, s{sP}, 12288\ns_add_u32 s94, s94, {WS_XG}")
    X=[(f"s_add_u32 s94, s94, 4096\n" if g else "")+f"buffer_load_dwordx4 {vr(vPOLL+4*g,4)}, v{vT16}, {sp(rWS,4)}, s94 offen {XL}" for g in range(3)]
    S=[f"s_mov_b32 s79, {WS_SG+g*4096}\nbuffer_load_dwordx4 {vr(vPOLL+12+4*g,4)}, v{vT16}, {sp(rWS,4)}, s79 offen {LD}" for g in range(3)]
    for t in (X+S if xfirst==1 else S+X if xfirst==2 else [y for p in zip(X,S) for y in p]): P.I(t)
    P.I(f"s_lshl4_add_u32 s3, s{sP}, {WS_MG}")
    P.I(f"buffer_load_dwordx4 {vr(vPOLL+24,4)}, v{vMC}, {sp(rWS,4)}, s3 offen {LD}", tag='poll')
vQ=144
def poll2_loads(P):
    P.I(f"""s_lshl4_add_u32 s3, s{sP}, {WS_MG+0x20000}
buffer_load_dwordx4 {vr(vQ,4)}, v{vSEL1}, {sp(rWS,4)}, s3 offen sc1
s_lshl2_add_u32 s3, s{sKE}, s{sW}
s_lshl_b32 s3, s3, 7
s_add_u32 s3, s3, {WS_MG+0x20000+8*4096}
buffer_load_dwordx4 {vr(vQ+4,4)}, v{vMW}, {sp(rWS,4)}, s3 offen sc1
s_add_u32 s3, s3, {4*4096}""")
    P.I(f"buffer_load_dwordx4 {vr(vQ+8,4)}, v{vMW}, {sp(rWS,4)}, s3 offen sc1", tag='poll2')
def poll2_work(ST):
    mc,mw=vQ,vQ+4; dpp=" row_mask:0xf bank_mask:0xf"
    L=[["L_p2_chk:","@wait poll2",f"v_min3_u32 v2, v{vQ+3}, v{vQ+7}, v{vQ+11}",f"v_max3_u32 v3, v{vQ+3}, v{vQ+7}, v{vQ+11}",f"v_min_u32 v2, s{sTAG}, v2",f"v_max_u32 v3, s{sTAG}, v3",
        "v_cmp_ne_u32 vcc, v2, v3","s_cbranch_vccnz L_q_retry","L_q_ok:"]]
    L[0][0]="L_q_chk:"
    X=[f"v_add_f32 v{mw}, v{mw}, v{vQ+8}",f"v_add_f32 v{mw+1}, v{mw+1}, v{vQ+9}"]
    for m in ("quad_perm:[1,0,3,2]","quad_perm:[2,3,0,1]"):
        X+=[f"v_add_f32_dpp v{r}, v{r}, v{r} {m}{dpp}" for r in (mc,mc+1,mw,mw+1)]
    X+=[f"v_add_f32_dpp v{r}, v{r}, v{r} row_half_mirror{dpp}" for r in (mc,mc+1)]
    X+=[f"v_cvt_pk_bf16_f32 v{mw+1}, v{mw}, v{mw+1}", f"v_cvt_pk_bf16_f32 v{mc+1}, v{mc}, v{mc+1}",
        f"v_lshlrev_b32 v{mw}, 16, v{mw+1}", f"v_and_b32 v{mw+1}, 0xffff0000, v{mw+1}", f"v_lshlrev_b32 v{mc}, 16, v{mc+1}", f"v_and_b32 v{mc+1}, 0xffff0000, v{mc+1}",
        f"v_add_f32 v{mw}, v{mw}, v{vSEL2}", f"v_add_f32 v{mw+1}, v{mw+1}, v{vSEL2}", f"v_cvt_pk_bf16_f32 v{mw+1}, v{mw}, v{mw+1}",
        f"v_lshlrev_b32 v{mw}, 16, v{mw+1}", f"v_and_b32 v{mw+1}, 0xffff0000, v{mw+1}", f"ds_write_b64 v{vGW}, {vr(mw,2)}"]
    late=[f"v_mov_b32_dpp v{vMOD+4+2*k+e}, v{mc+e} row_newbcast:{8*k}{dpp}" for k in range(2) for e in range(2)]
    return L[0],X,late
def writeback(cnt, lbl, on):
    return [f"s_and_b32 s4, s{cnt}, 3","s_cmp_lg_u32 s4, 0",f"s_cbranch_scc1 {lbl}","buffer_wbl2 sc1","s_waitcnt vmcnt(0)",f"{lbl}:"] if on else []
def retry2_block(P, loc=0):
    P.I(f"L_q_retry:\ns_add_u32 s{sCNT}, s{sCNT}, 1\ns_cmp_gt_u32 s{sCNT}, 20000\ns_waitcnt vmcnt(0) lgkmcnt(0)\ns_cbranch_scc1 L_q_ok")
    P.extend(writeback(sCNT,'L_q_nowb',loc))
    poll2_loads(P)
    P.I("s_waitcnt vmcnt(0)\ns_branch L_q_chk")

vGA=140
def table_unpack(P):
    P.I(f"v_mov_b32 v{vUA}, v{vTAB+7}\nv_mov_b32 v{vKA}, v{vTAB+6}")
    for j in range(11):
        P.I(f"v_lshrrev_b32 v{vGA+j}, 16, v{vTAB+j//2}" if j&1 else f"v_and_b32 v{vGA+j}, 0xffff, v{vTAB+j//2}")
def k_image(P, G, npre, skip):
    E=vROLE+40; O=vROLE; GA=vGA
    for _ in range(npre): P.extend(G.pop(0))
    P.I(f"""s_mov_b32 s{sT4}, 0x05040100
s_mov_b32 s{sT5}, 0x07060302
v_add_u32 v2, {L_KI}, v{vT16}
s_waitcnt lgkmcnt(0)
s_barrier""")
    for j in range(11): P.I(f"ds_read_b32 v{E+j}, v{GA+j}")
    k=0
    for c in (3,2,1,0):
        for ch in range(2):
            o=O+4*k; k+=1
            for i in range(4):
                j=3-c+2*i
                P.I(f"v_perm_b32 v{o+i}, v{E+j+1}, v{E+j}, s{sT4+ch}")
            P.I(f"ds_write_b128 v2, {vr(o,4)} offset:{(ch*4+c)*KIP}")
            if G and k>skip: P.extend(G.pop(0))
    for g in G: P.extend(g)

def check_tags(P, diag):
    P.I(f"s_mov_b32 s{sCNT}, 0\nL_ka_chk:")
    P.I(f"""@wait poll
v_min_u32 v2, s{sTAG}, v{vPOLL+27}
v_max_u32 v3, s{sTAG}, v{vPOLL+27}
v_min3_u32 v2, v2, v{vPOLL+15}, v{vPOLL+3}
v_max3_u32 v3, v3, v{vPOLL+15}, v{vPOLL+3}
v_min3_u32 v2, v2, v{vPOLL+19}, v{vPOLL+7}
v_max3_u32 v3, v3, v{vPOLL+19}, v{vPOLL+7}
v_min3_u32 v2, v2, v{vPOLL+23}, v{vPOLL+11}
v_max3_u32 v3, v3, v{vPOLL+23}, v{vPOLL+11}
v_cmp_ne_u32 vcc, v2, v3
s_cbranch_vccnz L_ka_retry
L_ka_ok:""")
    if diag: P.I(f"s_add_u32 s{sCNT}, s{sCNT}, 1\nv_writelane_b32 v255, s{sCNT}, 31")
def retry_block(P, loc=0):
    P.I(f"L_ka_retry:\ns_add_u32 s{sCNT}, s{sCNT}, 1\ns_cmp_gt_u32 s{sCNT}, 20000\ns_waitcnt lgkmcnt(0)\ns_cbranch_scc1 L_ka_ok")
    P.extend(writeback(sCNT,'L_ka_nowb',loc))
    poll_loads(P)
    P.I("s_waitcnt vmcnt(0)\ns_branch L_ka_chk")

def make_h(P):
    Q=vPOLL; mc=Q+24; mw=Q+28; Mm=vROLE; Mr=vROLE+8; O=vROLE+16
    dpp=" row_mask:0xf bank_mask:0xf"
    chain=[]
    for m in ("quad_perm:[1,0,3,2]","quad_perm:[2,3,0,1]","row_half_mirror","row_mirror"):
        chain.append([f"v_add_f32_dpp v{r}, v{r}, v{r} {m}{dpp}" for r in (mc,mc+1)])
    chain+=[[f"v_cvt_pk_bf16_f32 v{mc}, v{mc}, v{mc+1}", f"v_mov_b32 v{mc+1}, v{mc}"],
            [f"v_permlane16_swap_b32 v{mc}, v{mc+1}", f"v_lshlrev_b32 v{vMOD}, 16, v{mc}", f"v_and_b32 v{vMOD+1}, 0xffff0000, v{mc}", f"v_lshlrev_b32 v{mc}, 16, v{mc+1}", f"v_and_b32 v{mc+1}, 0xffff0000, v{mc+1}"],
            [f"v_add_f32 v{mc}, 1.0, v{mc}", f"v_add_f32 v{mc+1}, 1.0, v{mc+1}", f"v_cvt_pk_bf16_f32 v{mc}, v{mc}, v{mc+1}"],
            [f"v_lshlrev_b32 v{vMOD+2}, 16, v{mc}", f"v_and_b32 v{vMOD+3}, 0xffff0000, v{mc}"]]
    for r in range(8):
        st=Q+12+4*(r//3)+r%3; xr=Q+4*(r//3)+r%3
        P.extend(chain[r])
        P.I(f"""v_and_b32 v{Mr+r}, 0xffff0000, v{st}
v_lshlrev_b32 v{Mm+r}, 16, v{st}
v_rcp_f32 v{Mr+r}, v{Mr+r}
v_lshlrev_b32 v{vXF+r}, 16, v{xr}
v_and_b32 v{vXF+8+r}, 0xffff0000, v{xr}""")
    P.I(f"v_add_u32 v2, {L_H+480}, v{vT16}")
    for ch in range(2):
        sel=f"op_sel:[0,{ch},{ch}] op_sel_hi:[1,{ch},{ch}]"
        for r in range(0,8,2): P.I(f"v_pk_add_f32 {vr(vHF+8*ch+r,2)}, {vr(vXF+8*ch+r,2)}, {vr(Mm+r,2)} neg_lo:[0,1] neg_hi:[0,1]")
        for r in range(0,8,2): P.I(f"v_pk_mul_f32 {vr(vHF+8*ch+r,2)}, {vr(vHF+8*ch+r,2)}, {vr(Mr+r,2)}")
        for r in range(0,8,2): P.I(f"v_pk_fma_f32 {vr(vHF+8*ch+r,2)}, {vr(vHF+8*ch+r,2)}, {vr(vMOD+2,2)}, {vr(vMOD,2)} {sel}")
        for r in range(0,8,2): P.I(f"v_cvt_pk_bf16_f32 v{O+4*ch+r//2}, v{vHF+8*ch+r}, v{vHF+8*ch+r+1}")
        P.I(f"ds_write_b128 v2, {vr(O+4*ch,4)} offset:{ch*HP}")

def gb_store(P, ST):
    P.I(f"""s_cmp_lg_u32 s{sW}, 2
s_cbranch_scc1 L_nogb
s_lshl3_add_u32 s{sT2}, s{sP}, {WS_GBF}
s_mov_b64 exec, 1
buffer_store_dwordx2 {vr(vMOD+6,2)}, v{vL16}, {sp(rWS,4)}, s{sT2} offen {ST}
s_mov_b64 exec, -1
L_nogb:""")
def w_side(ST):
    RAW=vPOLL; WP=vPOLL+16; GB=[48,64,80,96]; U=112; S1,S2=vHF,vHF+2
    rd=[]; main=[]; sums=[]
    for k in range(4):
        g=GB[k]
        rd.append([f"ds_read_b64_tr_b16 {vr(RAW+4*k+2*hf,2)}, v{vWRA} offset:{k*4096+hf*512}" for hf in range(2)]
                 +[f"ds_read_b128 {vr(g+4*q,4)}, v{vGR} offset:{k*64+q*16}" for q in range(2)])
        L=[]
        for d in range(4):
            u=U+8*k+2*d
            L+=[f"v_lshlrev_b32 v{u}, 16, v{RAW+4*k+d}", f"v_and_b32 v{u+1}, 0xffff0000, v{RAW+4*k+d}",
                f"v_mul_f32 v{g+2*d}, v{u}, v{g+2*d}", f"v_mul_f32 v{g+2*d+1}, v{u+1}, v{g+2*d+1}", f"v_cvt_pk_bf16_f32 v{WP+4*k+d}, v{g+2*d}, v{g+2*d+1}"]
        L.append((f"buffer_store_dwordx4 {vr(WP+4*k,4)}, v{vL16}, {sp(rWJ,4)}, s{sWO} offen {ST}",'wpst'))
        if k<3: L.append(f"s_add_u32 s{sWO}, s{sWO}, s{sWST}")
        main.append(L)
        for i in range(8):
            e=i&1; first=(k==0 and i<2)
            sums.append(f"v_mul_f32 v{S2+e}, v{U+8*k+i}, v{g+8+i}" if first else f"v_fmac_f32 v{S2+e}, v{U+8*k+i}, v{g+8+i}")
            if k==0 and i<2: continue
            sums.append(f"v_add_f32 v{S1+e}, v{g+e}, v{g+i}" if (k==0 and i<4) else f"v_add_f32 v{S1+e}, v{S1+e}, v{g+i}")
    rdsb=[f"ds_read_b128 {vr(GB[k]+8+4*q,4)}, v{vGR} offset:{256+k*64+q*16}" for k in range(4) for q in range(2)]
    tail=[f"v_add_f32 v{S1}, v{S1}, v{S1+1}", f"v_add_f32 v{S2}, v{S2}, v{S2+1}", f"v_mov_b32 v{S1+1}, v{S1}", f"v_mov_b32 v{S2+1}, v{S2}",
          f"v_lshlrev_b32 v2, 2, v{vLANE}", "s_nop 0",
          f"v_permlane32_swap_b32 v{S1}, v{S1+1}", f"v_permlane32_swap_b32 v{S2}, v{S2+1}",
          f"v_add_f32 v{S1}, v{S1}, v{S1+1}", f"v_add_f32 v{S2}, v{S2}, v{S2+1}", f"v_cvt_pk_bf16_f32 v{S1}, v{S1}, v{S2}",
          "s_mov_b32 exec_hi, 0", (f"buffer_store_dword v{S1}, v2, {sp(rWJ,4)}, s{sWA} offen {ST}",'auxst'), "s_mov_b32 exec_hi, -1"]
    return rd,main,rdsb,sums,tail

def conv_reads(vi):
    b=vi&1; o=192-64*vi
    U=[(f"ds_read_b128 {ar(64+32*b+4*k,4)}, v{vUA} offset:{512*k+o}",f"c{vi}_{k}") for k in range(8)]
    K=[[(f"ds_read_b64 {ar(32*b+4*k+2*hf,2)}, v{vKA} offset:{512*(7-k)+o+8*hf}",f"c{vi}_{k}") for hf in range(2)] for k in range(8)]
    return U,K
def conv(P, ST, cfg, midbar, wdj):
    ACC=16
    order=sorted([(u,s) for u in range(8) for s in range(8) if u+s<8], key=lambda t:(t[1],t[0]))
    rd,main,rdsb,sums,tail=w_side(ST)
    chk,work,bc=poll2_work(ST)
    Q=Prog(); gb_store(Q,ST); gbs=[[x.text for x in Q.ins]]
    P.extend(conv_reads(0)[0])
    first=set(); side=[]; QAT=cfg.get('QAT',20); LV=cfg.get('LV',1); FV=cfg.get('FV',LV); SL=cfg.get('SUMLATE',0)
    for vi in range(4):
        b=vi&1; nxt=[]
        if vi==LV: nxt+=[(x,'wtr') for r in rd[:2] for x in r]+wdj[:4]
        if vi<3:
            U,K=conv_reads(vi+1); nxt+=[y for k in range(8) for y in [U[k]]+K[k]]
        if vi==0: side+=work
        if vi==1 and LV>1: side+=bc+gbs
        if vi==LV: side+=['@wait wtr']+rd[2]+rd[3]+main[0]+wdj[4:]+main[1]+([] if SL else rdsb)+main[2]+main[3]+(bc+gbs if LV==1 else [])+([] if SL else sums)
        waits = {0:0,8:1,15:7} if vi==0 else {0:7}
        start = QAT+1 if vi==0 else 8 if vi==LV else 0
        for n,(u,s) in enumerate(order if (vi==0 or not cfg.get('ORD',1)) else sorted(order,key=lambda t:(t[0]+t[1],t[0]))):
            t=u+s; a=vr(ACC+4*t,4)
            if n in waits: P.I(f"@wait c{vi}_{waits[n]}")
            P.I(f"v_mfma_f32_16x16x32_bf16 {a}, {ar(32*b+4*u,4)}, {ar(64+32*b+4*s,4)}, {a if t in first else 0}"); first.add(t)
            slots=2-((n+1) in waits or n==35)
            if vi==0 and FV==0 and n==0: P.extend(midbar); continue
            if vi in (LV,FV) and n==0:
                P.I("@wait"+(" wr dr" if vi==LV else "")+(" wdst" if vi==FV else "")+"\ns_waitcnt lgkmcnt(0)\ns_barrier")
                if vi==FV: P.extend(midbar)
                continue
            if vi==0 and n==QAT: P.extend(chk); continue
            if nxt:
                P.extend([nxt.pop(0)]); slots-=1
                if n<start and slots and nxt: P.extend([nxt.pop(0)]); slots-=1
            while slots>0 and side and n>=start:
                x=side.pop(0)
                if isinstance(x,list): P.extend(x); slots=0
                else: P.extend([x]); slots-=1
        assert not nxt, len(nxt)
        if vi==0: P.extend(side); print('  conv step 0 spill',len(side)); side=[]
        print('  conv step',vi,'side backlog',len(side))
    assert not any(isinstance(x,list) for x in side)
    if SL: return ACC,side,rdsb+sums+tail
    return ACC,side+tail,[]

def conv_epilogue(P, ACC, tail, XST, pre=[], prebar=[], postbar=[], tmax=99, after=[]):
    tail=list(tail); P.extend(pre)
    for t in range(8):
        P.I(f"ds_write_b128 v{vYW}, {vr(ACC+4*t,4)} offset:{1280*t}")
        k=min(max(5,-(-len(tail)//(8-t))),len(tail),tmax)
        if len(tail)-k<4: k=len(tail)
        P.extend(tail[:k]); tail=tail[k:]
    P.extend(prebar)
    P.I(f"s_mul_i32 s{sT0}, s{sP}, {12288 if XIN else 128}\ns_add_u32 s{sT0}, s{sT0}, {WS_XG if XIN else WS_X1B}\ns_waitcnt lgkmcnt(0)\ns_barrier")
    Y=16
    for ch in range(2):
        for g in range(2):
            for vh in range(2):
                P.I(f"ds_read_b128 {vr(Y+16*ch+8*vh+4*g,4)}, v{vYR} offset:{L_Y+(2*ch+vh)*10240+320*g}")
    P.extend(postbar)
    for ch in range(2):
        y=Y+16*ch
        for r in range(0,8,2): P.I(f"v_pk_add_f32 {vr(y+r,2)}, {vr(y+r,2)}, {vr(y+8+r,2)}")
        for r in range(0,8,2): P.I(f"v_pk_fma_f32 {vr(y+r,2)}, {vr(y+r,2)}, {vr(vMOD+4,2)}, {vr(vXF+8*ch+r,2)} op_sel:[0,{ch},0] op_sel_hi:[1,{ch},1]")
        for r in range(0,8,2): P.I(f"v_cvt_pk_bf16_f32 v{4+4*ch+r//2}, v{y+r}, v{y+r+1}")
        P.I(f"buffer_store_dwordx4 {vr(4+4*ch,4)}, v{vXO}, {sp(rWS,4)}, s{sT0} offen offset:{64*ch} {XST}", tag='x1st')
    print('  after the x1 stores:', len(tail), '+', len(after))
    P.extend(tail); P.extend(after)

def body(P, n, diag, cfg, H):
    NT=cfg.get('NT','nt'); ST='sc1'
    entry(P,n,diag,256,cfg.get('PERM',[2,3,0,5,1,7,4,6] if cfg.get('QSYNC',0) else None)); role_addr(P,cfg.get('LOC',0))
    P.I("s_waitcnt lgkmcnt(0)"); stamp0_commit(P,diag)
    if cfg.get('WSB',0): P.I(f"s_add_u32 s{sWS}, s{sWS}, {cfg['WSB']<<20}\ns_addc_u32 s{sWS+1}, s{sWS+1}, 0")
    early_loads(P,NT,NT)
    role_loads(P,NT,0); table_loads(P); setup(P,False,cfg.get('X',''),cfg.get('WMAP',0) or cfg.get('QSYNC',0)); P.extend(H['setup']); role_loads(P,NT,1)
    P.I(f"s_waitcnt lgkmcnt(0)\ns_or_b32 s{sTAG}, s{sTAG}, 0x7f800000\ns_add_u32 s{sTAG}, s{sTAG}, 1\ns_or_b32 s{sTAG}, s{sTAG}, 0x7f800000\ns_barrier")
    stamp(P,1,diag)
    H['idle'](P)
    P.I("@forget "+" ".join(str(r) for r in list(range(vPAR,vPAR+6))+[vROLE]+list(range(vTAB,vTAB+8))))
    cut=cfg.get('CUT',0)
    if cut:
        P.I(f"s_waitcnt vmcnt(10)\ns_cmp_lg_u32 s{sW}, 2\ns_cbranch_scc1 L_f1\ns_waitcnt vmcnt(6)\nL_f1:")
        P.I("@forget "+" ".join(str(r) for r in list(range(vPAR,vPAR+6))+[vROLE]+list(range(vTAB,vTAB+8))))
        factor_gen(P,0,cut)
        stamp(P,10,diag)
        P.I(f"s_cmp_eq_u32 s{sW}, 3\ns_cbranch_scc1 L_xje")
    x_jobs(P,'sc1',diag,cfg.get('LOC',0))
    P.I("@forget "+" ".join(str(r) for r in list(range(vPAR,vPAR+6))+[vROLE]+list(range(vTAB,vTAB+8))))
    stamp(P,3,diag)
    da,wa=cfg.get('DAT',0),cfg.get('WAT',1)
    def raws(k):
        if da==k: raw_wd_loads(P,cfg.get('DNT',NT))
        if wa==k: raw_w_loads(P,NT)
    raws(0)
    factor_gen(P,cut)
    stamp(P,4,diag)
    raws(1)
    G=poll_groups((lambda Q: raw_w_loads(Q,NT)) if wa==3 else None, cfg.get('XLP','') if cfg.get('LOC',0)==1 else 'sc1', cfg.get('XFIRST',0))
    for _ in range(cfg.get('PEARLY',0)): P.extend(G.pop(0))
    table_unpack(P)
    npm=cfg.get('PMID',0); mid=G[:npm]; G=G[npm:]
    kgen(P,diag,mid,cfg.get('PMSKIP',0),cfg.get('PMORD',0)); stamp(P,5,diag)
    k_image(P,G,min(len(G),cfg.get('PPRE',5)),cfg.get('PSKIP',0))
    raws(2)
    wdj=[]
    if da<2: wd_job(P,ST)
    else:
        Q=Prog(); wd_job(Q,ST); wdj=[(x.text,x.tag) for x in Q.ins[1:]]
    stamp(P,6,diag)
    P.I("s_waitcnt lgkmcnt(0)\ns_barrier")
    for k in conv_reads(0)[1]: P.extend(k)
    check_tags(P,diag); stamp(P,11,diag)
    poll2_loads(P); raws(4)
    make_h(P)
    if cfg.get('FV',1)==0: P.I("@wait wdst")
    P.I("s_waitcnt lgkmcnt(0)\ns_barrier")
    stamp(P,7,diag)
    acc,tail,after=conv(P,ST,cfg,H['midbar'] if da<2 else [],wdj); stamp(P,8,diag)
    conv_epilogue(P,acc,tail,ST,H.get('pre',[]),H.get('prebar',[]),H.get('postbar',[]),cfg.get('TMAX',99),after)
```

```python
from prog import *
from layout import *
from ka import sp, vr, ar, mksrd, f32, stamp, stamp_out, rWS, rOUT, sXCD, sIDX, sW
import ka
sXB,sWB,sAB,sXM,sFL,sPL,sA0,sA1,sD0,sD1,sNT,sMT,sFB,sCNT = range(8,22)
sQ=22
sT0,sT1,sT2,sT3,sT4 = 80,81,82,83,84
vLANE,vL16,vWL = 1,2,14
NS=16; L_XS=0; L_RING=4*NS*1024; RING=96
LDS_C=L_RING+RING*1024
def entry(P,name,diag):
    P.I(f".globl {name}\n.p2align 8\n.type {name},@function\n{name}:\n@reset")
    P.I(f"""s_cmp_ge_u32 s2, 256
s_cbranch_scc1 L_{name}_exit
s_load_dwordx2 s[42:43], s[0:1], 136
s_load_dwordx2 s[38:39], s[0:1], 120
s_and_b32 s{sXCD}, s2, 7
s_lshr_b32 s{sIDX}, s2, 3
v_lshrrev_b32 v3, 6, v0
v_and_b32 v{vLANE}, 63, v0
v_readfirstlane_b32 s{sW}, v3""")
    ka.stamp0_issue(P,diag)
def srds(P,diag):
    P.I("s_waitcnt lgkmcnt(0)"); ka.stamp0_commit(P,diag)
    P.extend(mksrd(rWS,42,WS_USED)); P.extend(mksrd(rOUT,38,2097152))

def xsrc(v, snt):
    return [f"v_lshrrev_b32 v12, 3, v{vLANE}", f"v_xor_b32 v{v}, s{snt}, v12", f"v_mul_u32_u24 v12, 96, v12", f"v_add_u32 v12, v12, v{v}",
            f"v_and_b32 v{v}, 7, v{vLANE}", f"v_lshl_add_u32 v{v}, v12, 3, v{v}", f"v_lshlrev_b32 v{v}, 4, v{v}"]
def c_maps():
    xb=f"s_lshl_b32 s{sXB}, s{sT0}, 15\ns_add_u32 s{sXB}, s{sXB}, {WS_X1B}"
    if ka.XIN: xb="\n".join(xsrc(13,sT0))
    return f"""s_lshr_b32 s{sT0}, s{sXCD}, 2
s_lshl_b32 s{sT0}, s{sT0}, 5
s_and_b32 s{sT1}, s{sIDX}, 28
s_add_u32 s{sT0}, s{sT0}, s{sT1}
s_add_u32 s{sT0}, s{sT0}, s{sW}
s_and_b32 s{sT1}, s{sXCD}, 3
s_and_b32 s{sT3}, s{sIDX}, 3
s_lshl2_add_u32 s{sT2}, s{sT1}, s{sT3}
{xb}
s_mul_i32 s{sWB}, s{sT2}, {231*1024}
s_add_u32 s{sWB}, s{sWB}, {WS_WPF}
s_mul_i32 s{sXM}, s{sW}, {NS*1024}
s_mul_i32 s{sAB}, s{sT0}, 112
s_mul_i32 s{sT2}, s{sT2}, 7
s_add_u32 s{sAB}, s{sAB}, s{sT2}
s_lshl_b32 s{sAB}, s{sAB}, 10
s_add_u32 s{sAB}, s{sAB}, {WS_ACT}
s_lshr_b32 s{sFL}, s{sT0}, 1
s_lshl2_add_u32 s{sFL}, s{sFL}, s{sT1}
s_lshl_b32 s{sFL}, s{sFL}, 10
s_and_b32 s{sT0}, s{sT0}, 1
s_lshl2_add_u32 s{sT0}, s{sT0}, s{sT3}
s_lshl2_add_u32 s{sFL}, s{sT0}, s{sFL}
s_add_u32 s{sFL}, s{sFL}, {WS_FLAG}""".split('\n')
def d_maps(DM=0):
    head=f"""s_lshr_b32 s{sT1}, s{sIDX}, 3
s_lshl2_add_u32 s{sT2}, s{sXCD}, s{sT1}
s_and_b32 s{sT1}, s{sIDX}, 7""" if not DM else f"""s_lshr_b32 s{sT1}, s{sIDX}, 2
s_lshr_b32 s{sT2}, s{sXCD}, 1
s_lshl3_add_u32 s{sT2}, s{sT2}, s{sT1}
s_and_b32 s{sT1}, s{sIDX}, 3
s_and_b32 s{sT3}, s{sXCD}, 1
s_lshl2_add_u32 s{sT1}, s{sT3}, s{sT1}"""
    return f"""{head}
s_mul_i32 s{sT3}, s{sW}, {28*1024}
s_mul_i32 s{sA0}, s{sT2}, {224*1024}
s_add_u32 s{sA0}, s{sA0}, s{sT3}
s_add_u32 s{sA0}, s{sA0}, {WS_ACT}
s_mul_i32 s{sD0}, s{sT1}, {224*1024}
s_add_u32 s{sD0}, s{sD0}, s{sT3}
s_add_u32 s{sD0}, s{sD0}, {WS_WDF}
s_add_u32 s{sD1}, s{sD0}, {112*1024}
s_bitcmp1_b32 s{sW}, 0
s_cselect_b32 s{sPL}, {112*1024}, 0
s_add_u32 s{sD0}, s{sD0}, s{sPL}
s_sub_u32 s{sD1}, s{sD1}, s{sPL}
s_lshl2_add_u32 s{sPL}, s{sT2}, s{sW}
s_lshl_b32 s{sPL}, s{sPL}, 10
s_add_u32 s{sPL}, s{sPL}, {WS_FLAG}
s_lshl_b32 s{sNT}, s{sT2}, 1
s_and_b32 s{sT3}, s{sW}, 1
s_lshl_b32 s{sT3}, s{sT3}, 1
s_lshl2_add_u32 s{sMT}, s{sT1}, s{sT3}
s_lshr_b32 s{sT3}, s{sW}, 1
s_add_u32 s{sMT}, s{sMT}, s{sT3}
s_lshl_b32 s{sT3}, s{sT3}, 8
v_lshlrev_b32 v{vL16}, 4, v{vLANE}
v_xor_b32 v{vWL}, s{sT3}, v{vL16}""".split('\n')

class Stream:
    def __init__(s, base, tmp): s.base=base; s.tmp=tmp; s.cur=None
    def at(s, off):
        L=[]
        if s.cur is None or not (0<=off-s.cur<4096):
            s.cur=off; L.append(f"s_add_u32 s{s.tmp}, s{s.base}, {off}")
        return L, f"s{s.tmp} offen offset:{off-s.cur}"
ASTG0=[3,5,7]
def d_parts(cfg):
    e=[0]+cfg.get('ASTG',ASTG0)
    return [[7*jj+mt for jj in range(4) for mt in range(a,b)] for a,b in zip(e,e[1:])]
def flag_store(s):
    return ["s_mov_b64 exec, 1",f"buffer_store_dword v{vONE1}, v{vL16}, {sp(rWS,4)}, s{sFL} offen offset:{128*s} sc1","s_mov_b64 exec, -1"]
def flag_poll(s): return f"buffer_load_dword v{vPV}, v{vPA}, {sp(rWS,4)}, s{sPL} offen offset:{128*s} sc1"
def wd_load_list(cfg,LD=''):
    S=[Stream(sD0,34),Stream(sD1,35)]; L=[]
    for f in sum(d_parts(cfg),[]):
        for m in range(2):
            pre,o=S[m].at(f*1024)
            L.append(pre+[f"buffer_load_dwordx4 {ar(8*f+4*m,4)}, v{vWL}, {sp(rWS,4)}, {o} {LD}"])
    return L
AX,AG=240,224
vXA,vPA,vPV,vONE1=253,254,252,251
vQV,vQA,sQP=15,248,99
def qpoll(q): return [f"s_mov_b32 s{sQP}, {WS_FX+(q<<(6+FS))}", f"buffer_load_dword v{vQV}, v{vQA}, {sp(rWS,4)}, s{sQP} offen sc1"]
def cost(x):
    s=x[0] if isinstance(x,tuple) else x
    o=s.split()[0]
    return 2 if (o in TRANS or o=='s_barrier') else 1

class RawWd:
    def __init__(s, order, srd, vsrc, sbase, stmp, pol=''):
        s.todo=list(order); s.flying=[]; s.done=set(); s.srd=srd; s.vsrc=vsrc; s.sbase=sbase; s.stmp=stmp; s.half=0; s.chalf=0; s.pol=pol; s.n=0
    def area(s, slots):
        assert not s.half
        s.slots=list(slots); s.n=0
    def issue_half(s, now):
        f=s.todo[0]; sl=s.slots[s.n%len(s.slots)]; u=s.half
        assert all(x[1]!=sl for x in s.flying)
        L=[f"s_add_u32 m0, s{sl[0]}, {sl[1]+u*1024}", f"s_add_u32 s{s.stmp}, s{s.sbase}, {f*16384+u*8192}",
           (f"buffer_load_dwordx4 v{s.vsrc}, {sp(s.srd,4)}, s{s.stmp} offen {s.pol} lds", f"rw{f}")]
        s.half^=1
        if not s.half: s.todo.pop(0); s.flying.append((f,sl,now)); s.n+=1
        return L
    def convert_half(s):
        f,sl,_=s.flying[0]; m=s.chalf
        L=([f"@wait rw{f}"] if m==0 else [])+[f"ds_read_b64_tr_b16 {ar(8*f+4*m+2*hf,2)}, v{sl[2][m]} offset:{sl[3]+hf*512}" for hf in range(2)]
        s.chalf^=1
        if not s.chalf: s.flying.pop(0); s.done.add(f)
        return L

class PhaseC:
    def __init__(s, cfg):
        s.cfg=cfg
        seq=[(t,ks) for ks in range(32) for t in range(G1)]
        AUXAT=cfg.get('AUXAT',16-G1)
        t3=[(G1,ks) for ks in range(33)]
        seq+= t3[:AUXAT]+[(t,32) for t in range(G1)]+t3[AUXAT:]
        for t in range(G1+1,7): seq+=[(t,ks) for ks in range(33)]
        s.seq=seq; s.N=N=len(seq); assert N==231
        s.P1=32*G1
        b=cfg.get('STG') or ([0,8,16]+list(range(32,232,16))+[232])
        s.bounds=b; s.nst=len(b)-1
        for q in range(s.nst):
            assert sorted(s.gpos(*x) for x in seq[b[q]:b[q+1]])==list(range(b[q],min(b[q+1],N))), q
            assert b[q]//RING==(b[q+1]-1)//RING
        s.QR={c:sQ+2*i for i,c in enumerate(sorted({(b[q+1]-b[q])//4 for q in range(s.nst)}))}
        s.LOOK=cfg.get('LOOK',6); s.XL=cfg.get('XL',6)
        s.mem=[]; s.m0=None; s.now=-1
        QG=s.QG=cfg.get('QG',[-1,0,2,3])
        for q in range(s.nst):
            gate=-1
            if b[q+1]>RING: gate=max(z for z in range(s.nst) if b[z]<b[q+1]-RING)+2
            if cfg.get('QSYNC',0): gate=max(gate,QG[min(3,(b[q+1]-1)//(8*G1))])
            for u in range((b[q+1]-b[q])//4): s.mem.append((max(b[q]-s.LOOK,0),gate,('w',q,u)))
        XG=cfg.get('XGRP',2)
        for ks in range(32): s.mem.append((max(G1*(ks-ks%XG)-s.XL,0),QG[ks>>3] if cfg.get('QSYNC',0) else -1,('x',ks)))
        s.mem.sort(key=lambda e:e[0])
    def gpos(s,t,ks): return (G1*ks+t) if t<G1 else 33*t+ks
    def setup(s):
        L=[]
        for c,r in s.QR.items(): L+=[f"s_mul_i32 s{r}, s{sW}, {c*1024}", f"s_add_u32 s{r+1}, s{r}, s{sWB}"]
        L+=f"""v_lshlrev_b32 v{vL16}, 4, v{vLANE}
v_lshrrev_b32 v8, 5, v{vLANE}
v_bfe_u32 v9, v{vLANE}, 2, 2
v_lshl_add_u32 v8, v8, 3, v9
v_bfe_u32 v9, v{vLANE}, 4, 1
v_lshl_add_u32 v8, v8, 1, v9
v_and_b32 v10, 3, v{vLANE}
v_lshl_add_u32 v8, v8, 2, v10
v_lshl_add_u32 v{vXA}, v8, 3, s{sXM}
v_add_u32 v3, {L_RING}, v{vL16}
v_add_u32 v7, {L_RING+0x10000}, v{vL16}
v_and_b32 v8, 31, v{vLANE}
v_and_b32 v10, 32, v{vLANE}
v_lshlrev_b32 v10, 4, v10
v_lshl_add_u32 v8, v8, 2, v10
v_add_u32 v249, {L_RING}, v8
v_add_u32 v250, {L_RING+0x10000}, v8
v_and_b32 v8, 15, v{vLANE}
v_cmp_eq_u32 vcc, v8, v9
v_mov_b32 v10, 0x3f803f80
v_and_b32 v{vPA}, 7, v{vLANE}
v_lshlrev_b32 v{vPA}, 2, v{vPA}
v_cndmask_b32 v56, 0, v10, vcc
v_cndmask_b32 v57, 0, v10, vcc
v_cndmask_b32 v58, 0, v10, vcc
v_cndmask_b32 v59, 0, v10, vcc""".split('\n')
        return L
    def memop(s,e):
        if e[0]=='w':
            _,q,u=e; c=(s.bounds[q+1]-s.bounds[q])//4; key=('w',q,u//4); u0=u-u%4
            pre=[f"s_add_u32 m0, s{s.QR[c]}, {L_RING+(s.bounds[q]%RING+u0)*1024}", f"s_add_u32 s{sT0}, s{s.QR[c]+1}, {(s.bounds[q]+u0)*1024}"]
            tag=f"w{q}"; off=(u%4)*1024; ld=s.cfg.get('WLD','')
        else:
            ks=e[1]; key=('x',ks//4); k0=ks-ks%4
            assert ks<NS or s.now>=G1*(ks-NS), (ks,s.now)
            pre=[f"s_add_u32 m0, s{sXM}, {L_XS+(k0%NS)*1024}", f"s_add_u32 s{sT0}, s{sXB}, {k0*1024}"]
            tag=f"x{ks}"; off=(ks%4)*1024; ld=s.cfg.get('XLD','')
        L=[] if s.m0==key else pre
        s.m0=key
        if e[0]=='x' and ka.XIN:
            return L[:1]+[f"s_mov_b32 s{sXB}, {WS_XG+ks*98304-off}",(f"buffer_load_dwordx4 v13, {sp(rWS,4)}, s{sXB} offen offset:{off} {ld} lds",tag)]
        return L+[(f"buffer_load_dwordx4 v{vL16}, {sp(rWS,4)}, s{sT0} offen offset:{off} {ld} lds",tag)]
    def pre(s,P,n,kinds='wx'):
        k=0
        while n>0 and k<len(s.mem):
            if s.mem[k][2][0] in kinds and s.mem[k][1]<0: P.extend(s.memop(s.mem.pop(k)[2])); n-=1
            else: k+=1
    def run(s,P,diag,wd,extra_side,D,raw=None):
        cfg=s.cfg; seq=s.seq; N=s.N; bounds=s.bounds; mem=s.mem; LOOK=s.LOOK; XL=s.XL; P1=s.P1
        ST='sc1'; ends=cfg.get('ASTG',ASTG0)
        X0=120
        xr=lambda ks: vr(X0+4*ks,4) if ks<32 else vr(44,4)
        NACC=4; ACC=[72,88,104,56]
        WF=[20+4*i for i in range(6)]; NWF=6
        SQ,SM,ONE,SQ2=48,52,56,16
        C0,C1,IR2=4,5,6; TA=8
        RA=[3,7]; RA2=[249,250]
        def rd(n):
            pos=(s.gpos(*seq[n])%RING)*1024
            if seq[n][1]==32:
                return [(f"ds_read_b32 v{WF[n%NWF]+q}, v{RA2[pos>>16]} offset:{(pos&0xffff)+128*q}", f"r{n}") for q in range(4)]
            return [(f"ds_read_b128 {vr(WF[n%NWF],4)}, v{RA[pos>>16]} offset:{pos&0xffff}", f"r{n}")]
        def xrd(ks): return [f"@wait x{ks}"]+[f"ds_read_b64_tr_b16 {vr(X0+4*ks+2*hf,2)}, v{vXA} offset:{L_XS+(ks%NS)*1024+hf*256}" for hf in range(2)]
        accof=lambda t: ACC[t%NACC]
        EW=cfg.get('EW',4)
        def epi(t):
            a=accof(t); L=[]
            for g in range(8//EW):
                ia=list(range(EW*g,EW*g+EW)); T=TA
                L+=[f"v_mul_f32 v{T+k}, v{a+i}, v{a+i}" for k,i in enumerate(ia)]
                L+=[f"v_fma_f32 v{T+k}, v{T+k}, v{C1}, v{C0}" for k,i in enumerate(ia)]
                L+=[f"v_mul_f32 v{T+k}, v{T+k}, v{a+i}" for k,i in enumerate(ia)]
                for k,i in enumerate(ia): L+=[f"v_exp_f32 v{T+k}, v{T+k}", f"v_mul_f32 v{a+8+i}, v{a+i}, v{a+8+i}"]
                for k,i in enumerate(ia):
                    L+=[f"v_fma_f32 v{a+i}, v{T+k}, v{IR2}, v{IR2}"]
                    if k: L+=[f"v_rcp_f32 v{a+i-1}, v{a+i-1}"]
                L+=[f"v_mul_f32 v{a+8+ia[0]}, v{a+8+ia[0]}, v{a+ia[0]}", f"v_rcp_f32 v{a+ia[-1]}, v{a+ia[-1]}"]
                L+=[f"v_mul_f32 v{a+8+i}, v{a+8+i}, v{a+i}" for i in ia[1:]]
                L+=[f"v_cvt_pk_bf16_f32 v{16+i//2}, v{a+8+i}, v{a+9+i}" for i in ia[::2]]
            L.append((f"buffer_store_dwordx4 v[16:19], v{vL16}, {sp(rWS,4)}, s{sAB} offen offset:{(t%4)*1024} {ST}",f'act{t}'))
            if t==3: L.append(f"s_add_u32 s{sAB}, s{sAB}, 4096")
            return L
        if cfg.get('NOTRANS'):
            e0=epi; epi=lambda t:[y for x in e0(t) for y in ([x.replace('v_exp_f32','v_mov_b32').replace('v_rcp_f32','v_mov_b32')]*2 if isinstance(x,str) and x.split()[0] in TRANS else [x])]
        if cfg.get('NOST'):
            e2=epi; epi=lambda t:[(('s_nop 0',x[1]) if isinstance(x,tuple) else x) for x in e2(t)]
        if cfg.get('NOEPI'):
            e1=epi; epi=lambda t:[x for x in e1(t) if not (isinstance(x,str) and x.startswith('v_'))]
        k0=-2*0.7978845608028654*1.4426950408889634; k1=k0*0.044715
        fin=f"""v_and_b32 v11, 15, v{vLANE}
v_lshlrev_b32 v11, 2, v11
v_and_b32 v8, 3, v{vLANE}
v_cmp_eq_u32 vcc, 1, v8
v_cmp_eq_u32 {sp(sT2)}, 2, v8
v_and_b32 v10, 16, v{vLANE}
ds_bpermute_b32 v12, v11, v{SM}
ds_bpermute_b32 v13, v11, v{SM+1}
v_add_f32 v{SQ}, v{SQ}, v{SQ2}
v_add_f32 v{SQ+1}, v{SQ+1}, v{SQ2+1}
v_add_f32 v{SQ+2}, v{SQ+2}, v{SQ2+2}
v_add_f32 v{SQ+3}, v{SQ+3}, v{SQ2+3}
v_cndmask_b32 v9, v{SQ}, v{SQ+1}, vcc
v_cmp_eq_u32 vcc, 3, v8
v_cndmask_b32 v9, v9, v{SQ+2}, {sp(sT2)}
v_cmp_eq_u32 {sp(sT2)}, 0, v10
v_cndmask_b32 v9, v9, v{SQ+3}, vcc
v_mov_b32 v8, v9
v_nop
v_nop
v_permlane32_swap_b32 v8, v9
v_add_f32 v9, v8, v9
v_mul_f32 v9, 0x3b000000, v9
v_cndmask_b32 v12, v13, v12, {sp(sT2)}
v_mul_f32 v12, 0x3b000000, v12
v_fma_f32 v9, -v12, v12, v9
v_max_f32 v9, 0, v9
v_cvt_pk_bf16_f32 v9, v9, v9
v_and_b32 v9, 0xffff0000, v9
v_add_f32 v9, 0x3727c5ac, v9
v_cvt_pk_bf16_f32 v9, v9, v9
v_and_b32 v9, 0xffff0000, v9
v_sqrt_f32 v9, v9
v_nop
v_cvt_pk_bf16_f32 v44, -v12, v9
v_and_b32 v9, 0xffff0000, v44
v_mov_b32 v45, v44
v_rcp_f32 v8, v9
v_mov_b32 v46, v44
v_mov_b32 v47, v44
v_mul_f32 v{IR2}, v9, v9
v_mul_f32 v{C0}, {hex(f32(k0))}, v8
v_mul_f32 v10, v8, v8
v_mul_f32 v{C1}, {hex(f32(k1))}, v8
v_mul_f32 v{C1}, v{C1}, v10""".split('\n')
        done_at={}
        for n,(t,ks) in enumerate(seq):
            if ks==32: done_at[t]=n
        side=[(0,x) for x in extra_side]+[(P1,x) for x in fin]
        for t in range(6): side+=[(done_at[t]+3,x) for x in epi(t)]
        RX=cfg.get('RXAT',P1+40)
        blocks={RX:[f"s_lshl_b32 s{sT1}, s{sNT}, 5",f"s_add_u32 s{sT1}, s{sT1}, s{sMT}",f"s_lshl_b32 s{sT1}, s{sT1}, 10",f"s_add_u32 s{sT1}, s{sT1}, {WS_X1B}"],
                RX+1:['@m0',f"s_add_u32 m0, s{sXM}, {L_XS}",f"s_add_u32 s{sT4}, s{sT1}, {32768-1024}",(f"buffer_load_dwordx4 v{vL16}, {sp(rWS,4)}, s{sT1} offen {cfg.get('XLD','')} lds",'rx'),
                      (f"buffer_load_dwordx4 v{vL16}, {sp(rWS,4)}, s{sT4} offen offset:1024 {cfg.get('XLD','')} lds",'rx')],
                RX+3:[f"s_lshl_b32 s{sT1}, s{sMT}, 6",f"s_add_u32 s{sT1}, s{sT1}, {WS_GBF}",f"v_and_b32 v{vPV}, 32, v{vLANE}"],
                RX+4:[f"buffer_load_dwordx4 {ar(AG+4*q,4)}, v{vPV}, {sp(rWS,4)}, s{sT1} offen offset:{16*q} {cfg.get('WLD','')}" for q in range(2)],
                RX+44:["@wait rx"]+[f"ds_read_b64_tr_b16 {ar(AX+2*q,2)}, v{vXA} offset:{L_XS+(q>>1)*1024+(q&1)*256}" for q in range(4)],
                cfg.get('P0AT',217):[flag_poll(0)]}
        if ka.XIN:
            xs=xsrc(13,sNT)
            blocks[RX-2]=xs[:4]; blocks[RX-1]=xs[4:]+["v_xor_b32 v12, 128, v13"]
            blocks[RX]=[f"s_mul_i32 s{sT1}, s{sMT}, 98304",f"s_add_u32 s{sT1}, s{sT1}, {WS_XG}"]
            blocks[RX+1]=['@m0',f"s_add_u32 m0, s{sXM}, {L_XS}",f"s_sub_u32 s{sT4}, s{sT1}, 1024",(f"buffer_load_dwordx4 v13, {sp(rWS,4)}, s{sT1} offen sc1 lds",'rx'),
                      (f"buffer_load_dwordx4 v12, {sp(rWS,4)}, s{sT4} offen offset:1024 sc1 lds",'rx')]
        if cfg.get('QSYNC',0):
            for q,at in zip((2,3),cfg.get('QAT2',[1,14])): blocks[at]=qpoll(q)
        C0AT=cfg.get('C0AT',999)
        D.nflag=0; flag_at={}; log=[]
        opened=[-1]
        def emit(L):
            c=0
            for x in L:
                if x=='@m0': s.m0=None; continue
                P.extend([x]); c+=cost(x)
            return c
        def force(pred):
            c=0
            while any(pred(e[2]) for e in mem):
                assert mem[0][1]<=opened[0], mem[0]
                c+=emit(s.memop(mem.pop(0)[2]))
            return c
        def open_stage(q):
            c=force(lambda e: e[0]=='w' and e[1]==q)
            opened[0]=q
            if cfg.get('QSYNC',0) and q in s.QG: poll_check(P,f'fx{s.QG.index(q)}',vPV=vQV); c+=3; stamp(P,25+s.QG.index(q),diag)
            x_=cfg.get('XBAR',0) if bounds[q]>P1 else 0
            c+=emit([[f"@wait w{q}","s_barrier"],[f"@wait w{q}"],["s_barrier"],[]][x_])
            if cfg.get('QSYNC',0) and q in s.QG:
                for _ in range(cfg.get('QBURST',[5,3,2])[s.QG.index(q)-1]):
                    if mem[0][1]<=q and (mem[0][2][0]=='w' or s.now>=G1*(mem[0][2][1]-NS)): c+=emit(s.memop(mem.pop(0)[2]))
            if cfg.get('SSTAMP'): stamp(P,(2+q if q<10 else 9+q),diag)
            return c
        xnext=0
        open_stage(0)
        while G1*xnext<XL: force(lambda e: e==('x',xnext)); emit(xrd(xnext)); xnext+=1
        for n in range(LOOK): P.extend(rd(n))
        DIST=cfg.get('DIST',24); DIST2=cfg.get('DIST2',48); WB=cfg.get('WB',3)
        started=set(); mb=0.0; wdb=0.0
        P.I("@mark c1")
        for n,(t,ks) in enumerate(seq):
            a=accof(t)
            if n==P1: P.I("@mark c2")
            if t>=NACC and ks==0:
                while side and side[0][0]<=done_at[t-NACC]+3: emit([side.pop(0)[1]])
            if ks==32 and t==0:
                while side and side[0][0]<=P1: emit([side.pop(0)[1]])
            if n%WB==0: P.I(f"@wait r{min(n+WB-1,N-1)}")
            P.I(f"v_mfma_f32_32x32x16_bf16 {vr(a,16)}, {vr(WF[n%NWF],4)}, {xr(ks)}, {vr(a,16) if t in started else 0}"); started.add(t)
            s.now=n
            free=cfg.get('CAP',6)-((n+1)%WB==0)
            if xnext<32 and G1*xnext-XL<=n:
                free-=force(lambda e: e==('x',xnext)); free-=emit(xrd(xnext)); xnext+=1
            m=n+LOOK
            if m<N:
                if m in bounds: free-=open_stage(bounds.index(m))
                free-=emit(rd(m))
            used=False
            if n in blocks: free-=emit(blocks.pop(n)); used=True
            elif n>=flag_at.get(D.nflag,999) and free>=4:
                free-=emit([f"@wait act{ends[D.nflag]-1}"]+flag_store(D.nflag)); D.nflag+=1; used=True; log.append(n)
            if n==C0AT: poll_check(P,'p0'); stamp(P,14,diag); free-=3; used=True
            rate = cfg.get('RATE1',0.9) if n<P1 else cfg.get('RATE2',0.5)
            mb=min(mb+rate,1.0+rate)
            if not used and mem and mb>=1 and mem[0][0]-(DIST if n<P1 else DIST2)<=n and mem[0][1]<=opened[0] and (free>=3 or n<P1) and (mem[0][2][0]=='w' or n>=G1*(mem[0][2][1]-NS)):
                free-=emit(s.memop(mem.pop(0)[2])); used=True; mb-=1
            if raw:
                if raw.flying and n>=raw.flying[0][2]+cfg.get('RAWD',40) and free>=3: free-=emit(raw.convert_half())
                if not used and raw.todo and len(raw.flying)<len(raw.slots) and cfg.get('WDFROM',P1+4)<=n<N-cfg.get('RAWD',40):
                    wdb=min(wdb+cfg.get('WDPER',0.2),2)
                    if wdb>=1 and mb>=1 and free>=3: free-=emit(['@m0']+raw.issue_half(n)); wdb-=1; mb-=1
            if not used and n>C0AT and mb>=1 and free>=2 and D.li<min(cfg.get('DAHEAD',14),n-197) and D.can_load():
                free-=emit(D.load()); mb-=1; used=True
            if not used and wd and cfg.get('WDFROM',P1+4)<=n<C0AT:
                wdb=min(wdb+(cfg.get('WDPER1',0.2) if n<P1 else cfg.get('WDPER',0.2)),2)
                if wdb>=1 and mb>=1 and free>=2: free-=emit(wd.pop(0)); wdb-=1; mb-=1
            while side and side[0][0]<=n and cost(side[0][1])<=free:
                x=side.pop(0)[1]; free-=emit([x])
                if isinstance(x,tuple) and x[1].startswith('act'):
                    log.append((x[1],n))
                    if int(x[1][3:])+1 in ends: flag_at[ends.index(int(x[1][3:])+1)]=n+cfg.get('FLAGD',26)
            if n<P1 and t==G1-1:
                x=X0+4*ks
                P.I(f"v_mfma_f32_4x4x4_16b_bf16 {vr(SQ,4)}, {vr(x,2)}, {vr(x,2)}, {vr(SQ,4) if ks else 0}")
                P.I(f"v_mfma_f32_4x4x4_16b_bf16 {vr(SQ2,4)}, {vr(x+2,2)}, {vr(x+2,2)}, {vr(SQ2,4) if ks else 0}")
                P.I(f"v_mfma_f32_16x16x32_bf16 {vr(SM,4)}, {vr(ONE,4)}, {vr(x,4)}, {vr(SM,4) if ks else 0}")
            if n==P1-1: stamp(P,12,diag)
        P.I("@mark end")
        assert D.nflag and not blocks and not mem
        print('phase C: side left', len(side), 'stores/flags', log, 'Wd left', len(wd), 'raw todo/flying', (len(raw.todo),len(raw.flying),raw.half,raw.chalf) if raw else None)
        stamp(P,13,diag)
        return [x for _,x in side]+epi(6), {q:v-N for q,v in flag_at.items()}

def poll_check(P, name, need=None, diag=None, vPV=vPV):
    P.I(f"""L_{name}_chk:
v_cmp_ne_u32 vcc, v{vONE1}, v{vPV}
s_cbranch_vccnz L_{name}_retry
L_{name}_ok:""")
def poll_retry(P, name, off, vPV=vPV, vPA=vPA, sPL=sPL, loc=0):
    P.I(f"""L_{name}_retry:
s_add_u32 s{sCNT}, s{sCNT}, 1
s_cmp_gt_u32 s{sCNT}, 40000
s_waitcnt vmcnt(0) lgkmcnt(0)
s_cbranch_scc1 L_{name}_ok""")
    P.extend(ka.writeback(sCNT,f'L_{name}_nowb',loc))
    P.I(f"""buffer_load_dword v{vPV}, v{vPA}, {sp(rWS,4)}, s{sPL} offen offset:{off} sc1
s_waitcnt vmcnt(0)
s_branch L_{name}_chk""")

class PhaseD:
    def __init__(s, P, cfg, diag, wd):
        s.P=P; s.cfg=cfg; s.diag=diag; s.wd=wd
        s.parts=d_parts(cfg); s.ends=cfg.get('ASTG',ASTG0); s.order=sum(s.parts,[])
        s.ACC=[[184,200],[216,232]]; s.BUF=[120+4*i for i in range(16)]; s.NB=16
        SK=cfg.get('DSKEW',8)
        s.work=[(f,n) for i,f in enumerate(s.order) for n in range(2) if n==0 or i<28-SK]+[(f,1) for f in s.order[28-SK:]]
        s.first={q:min(k for k,(f,n) in enumerate(s.work) if f in s.parts[q]) for q in range(len(s.parts))}
        s.S=[Stream(sA0,36),Stream(sA0,37)]; s.li=0; s.nflag=0; s.polled=0
    def can_load(s):
        for q,k0 in s.first.items():
            if q and s.li==k0 and s.nflag<(len(s.ends) if q>=s.cfg.get('CK',1) else q+1): return False
        return True
    def load(s):
        k=s.li; s.li+=1; f,n=s.work[k]; L=[]; PL=s.cfg.get('PL2',8)
        nxt=s.polled+1
        if nxt in s.first and k>=max(s.first[nxt]-PL,s.first[nxt-1]+1) and s.nflag>nxt: L.append(flag_poll(nxt)); s.polled=nxt
        for q,k0 in s.first.items():
            if q and k==k0:
                assert s.polled>=q
                s.P.extend(L); L=[]; poll_check(s.P,f'p{q}'); stamp(s.P,22+q,s.diag)
        while s.wd and 56-len(s.wd)<2*s.order.index(f)+2: L+=s.wd.pop(0)
        pre,o=s.S[n].at(n*112*1024+f*1024)
        return L+pre+[f"buffer_load_dwordx4 {vr(s.BUF[k%s.NB],4)}, v{vL16}, {sp(rWS,4)}, {o} sc1"]
    def run(s, ctail, flag_due):
        P=s.P; cfg=s.cfg; diag=s.diag; work=s.work; ACC=s.ACC; ends=s.ends
        AH=cfg.get('DAHEAD',14); assert AH<=s.NB
        nA=max(k for k,(f,n) in enumerate(work) if n==0)
        GB=44; XF=56; R=[120,144]; RD=[72,73,74]; VO,VW=75,76
        fill=f"""v_add_u32 v{VW}, s{sXM}, v{vL16}
s_lshl_b32 s{sT2}, s{sNT}, 15
s_lshl_b32 s{sT1}, s{sMT}, 5
s_add_u32 s{sT2}, s{sT2}, s{sT1}
s_add_u32 s{sT3}, s{sT2}, 32768
v_and_b32 v{VO}, 31, v{vLANE}
v_lshrrev_b32 v77, 5, v{vLANE}
v_lshlrev_b32 v{VO}, 10, v{VO}
v_lshl_add_u32 v{VO}, v77, 4, v{VO}""".split('\n')
        fill+=[f"v_xor_b32 v{RD[j-1]}, {j*NS*1024}, v{VW}" for j in (1,2,3)]
        fill+=[f"v_accvgpr_read_b32 v{GB+k}, a{AG+k}" for k in range(8)]
        fill+=[f"v_accvgpr_read_b32 v{XF+2*k+1}, a{AX+k}" for k in range(8)]
        for k in range(8): fill+=[f"v_lshlrev_b32 v{XF+2*k}, 16, v{XF+2*k+1}", f"v_and_b32 v{XF+2*k+1}, 0xffff0000, v{XF+2*k+1}"]
        side=list(ctail)+fill
        wr=[[f"ds_write_b128 v{VW}, {vr(ACC[n][j&1]+8*(j>>1)+4*q,4)} offset:{L_XS+n*8192+j*2048+q*1024}" for j in (1,2,3) for q in range(2)] for n in range(2)]
        started=set(); g=0; FD=cfg.get('FLAGD2',26)
        if cfg.get('C0AT',999)>=231: poll_check(P,'p0'); stamp(P,14,diag)
        TL=cfg.get('TAILLD',6)
        if TL:
            nt=len(ctail); per=-(-nt//TL)
            while nt>0:
                if s.li<AH and s.can_load(): P.extend(s.load())
                c=min(per,nt); P.extend(side[:c]); side=side[c:]; nt-=c
            while s.nflag<len(ends)-1:
                P.I(f"@wait act{ends[s.nflag]-1}"); P.extend(flag_store(s.nflag)); s.nflag+=1
            while s.li<AH and s.can_load(): P.extend(s.load())
            flag_due[len(ends)-1]=cfg.get('FL2',10)
        stamp(P,15,diag)
        P.I("@mark d")
        for k,(f,n) in enumerate(work):
            while s.li<=k:
                if not s.can_load():
                    P.extend(side); side=[]
                    P.I(f"@wait act{ends[s.nflag]-1}"); P.extend(flag_store(s.nflag)); s.nflag+=1; print('  D: forced flag at',k)
                else: P.extend(s.load())
            for m in range(2):
                a=vr(ACC[n][m],16)
                P.I(f"v_mfma_f32_32x32x16_bf16 {a}, {ar(8*f+4*m,4)}, {vr(s.BUF[k%s.NB],4)}, {a if (n,m) in started else 0}"); started.add((n,m))
                g+=1; free=6-m
                if s.nflag<len(ends) and g>=flag_due.get(s.nflag,999):
                    P.I(f"@wait act{ends[s.nflag]-1}"); P.extend(flag_store(s.nflag)); print('  D: flag',s.nflag,'at item',k,'li',s.li); s.nflag+=1; free-=4
                if s.li<len(work) and s.li<=k+AH-(1-m) and s.li-s.NB<k+m and s.can_load():
                    L=s.load(); P.extend(L); free-=len(L)
                if m and k>nA+1 and wr[0]: P.I(wr[0].pop(0)); free=0
                while side and g>=2 and cost(side[0])<=free:
                    x=side.pop(0); P.extend([x]); free-=cost(x)
                    if isinstance(x,tuple) and int(x[1][3:])+1 in ends: flag_due[ends.index(int(x[1][3:])+1)]=g+FD
        P.I("@mark end")
        assert not side and s.nflag==len(ends)
        P.extend(wr[0])
        stamp(P,17,diag)
        def reads(n): return [f"ds_read_b128 {vr(R[n]+8*(j-1)+4*q,4)}, v{RD[j-1]} offset:{L_XS+n*8192+j*2048+q*1024}" for j in (1,2,3) for q in range(2)]
        def final(n):
            r=R[n]; a=ACC[n][0]; L=[]
            for k in range(0,8,2): L+=[f"v_pk_add_f32 {vr(r+k,2)}, {vr(r+k,2)}, {vr(a+k,2)}"]
            for k in range(0,8,2): L+=[f"v_pk_add_f32 {vr(r+8+k,2)}, {vr(r+8+k,2)}, {vr(r+16+k,2)}"]
            for k in range(0,8,2): L+=[f"v_pk_add_f32 {vr(r+k,2)}, {vr(r+k,2)}, {vr(r+8+k,2)}"]
            for k in range(0,8,2): L+=[f"v_pk_fma_f32 {vr(r+k,2)}, {vr(r+k,2)}, {vr(GB+k,2)}, {vr(XF+8*n+k,2)}"]
            for k in range(0,8,2): L+=[f"v_cvt_pk_bf16_f32 v{8+4*n+k//2}, v{r+k}, v{r+k+1}"]
            L.append(f"buffer_store_dwordx4 {vr(8+4*n,4)}, v{VO}, {sp(rOUT,4)}, s{sT2+n} offen {cfg.get('OST','')}")
            return L
        P.extend(wr[1])
        P.I("s_waitcnt lgkmcnt(0)\ns_barrier")
        P.extend(reads(0)); P.extend(reads(1)); P.extend(final(0)); P.extend(final(1))
```

```python
from prog import *
from layout import *
import ka, kc
from ka import sp, vr, mksrd, stamp, stamp_out, rWS, rWJ, rOUT, sW, sTAG, sP, sIDX, sXCD, sFS, sCG, sKE, sT0, sT1, sT2, sT3
NAME='adaLN_cond__ssm_conv_s4__geglu_ffn__prompt_kernel'
sFXo,sFDo,sFXi,sFDi,sFWo,sFWi = 40,41,99,93,89,92
vTG=251; vFV,vFA,vFB=247,246,252
T4=248
def build(P, diag, cfg):
    cfg=dict(cfg); cfg.update(XST='sc1',ST='sc1',WLD='sc1',XLD='sc1')
    kc.FS=cfg.get('FS',4); ka.XIN=cfg.get('XIN',0)
    C=kc.PhaseC(cfg)
    L=ka.vLANE
    FS=cfg.get('FS',4)
    EX=hex((1<<(1<<(FS-4)))-1)
    def line(so, reg, r=rWS):
        return [f"s_mov_b64 exec, {EX}", f"buffer_store_dwordx4 {vr(reg,4)}, v{ka.vL16}, {sp(r,4)}, s{so} offen sc1", "s_mov_b64 exec, -1"]
    H={}
    H['setup']=mksrd(rOUT,ka.sOUT,2097152)+f"""s_lshl_b32 s{sFXo}, s{sP}, {FS}
s_add_u32 s{sFXo}, s{sFXo}, {WS_FX}
s_and_b32 s{sT0}, s{sFS}, 1
s_mul_i32 s{sT0}, s{sT0}, 112
s_lshr_b32 s{sFDo}, s{sFS}, 1
s_add_u32 s{sFDo}, s{sFDo}, s{sT0}
s_lshl_b32 s{sFDo}, s{sFDo}, {FS}
s_add_u32 s{sFDo}, s{sFDo}, {WS_FD}
s_lshl3_add_u32 s{sFWo}, s{sCG}, s{sKE}
s_lshl_b32 s{sFWo}, s{sFWo}, {FS}
s_add_u32 s{sFWo}, s{sFWo}, {WS_FW}
v_min_u32 v{vFA}, 27, v{L}
v_lshlrev_b32 v{vFA}, {FS}, v{vFA}""".split('\n')
    def idle(P):
        for i in range(4): P.I(f"v_mov_b32 v{T4+i}, s{sTAG}")
        P.I(f"""{f's_and_b32 s{sT0}, s{sXCD}, 1' if cfg.get('DM',0) else f's_bfe_u32 s{sT0}, s{sIDX}, 0x10002'}
s_lshl2_add_u32 s{sT0}, s{sT0}, s{sW}
s_mul_i32 s{sT0}, s{sT0}, {28<<FS}
s_add_u32 s{sFDi}, s{sT0}, {WS_FD}
s_cmp_lg_u32 s{sW}, 3
s_cbranch_scc1 L_main""")
        if cfg.get('TOUCH',1): P.I("s_mov_b64 exec, 0\ns_branch L_touch0\nL_touched:\ns_mov_b64 exec, -1")
        P.I(f"s_lshl_b32 s{sT0}, s{sP}, 9\ns_add_u32 s{sT0}, s{sT0}, {WS_FLAG}")
        for i in range(4): P.I(f"v_add_u32 v{4+i}, -1, v{T4}")
        P.I(f"s_waitcnt vmcnt({0 if cfg.get('M2AT',0) else 8})\ns_mov_b32 exec_hi, 0")
        P.I(line(sT0,4)[1]); P.I(f"s_mov_b64 exec, {EX}")
        P.I(line(sFXo,4)[1]); P.I(line(sFDo,4,rWJ)[1])
        if cfg.get('FW',0): P.I(line(sFWo,4,rWJ)[1])
        P.I(f"s_mov_b64 exec, -1\ns_branch {'L_f1' if cfg.get('CUT',0) else 'L_xje'}\n.p2align 12\nL_main:")
    H['idle']=idle; H['own_param_wait']=True
    H['midbar']=[f"s_cmp_lg_u32 s{sW}, 3","s_cbranch_scc1 L_nofd"]+line(sFDo,T4,rWJ)+["L_nofd:"]
    H['postbar' if cfg.get('FDP',0) else 'pre']=[f"buffer_load_dword v{vFV}, v{vFA}, {sp(rWS,4)}, s{sFDi} offen sc1"]
    FW=cfg.get('FW',0)
    if FW:
        H['prebar']=["@wait wpst"]
        H['postbar']=[f"s_cmp_lg_u32 s{sW}, 3","s_cbranch_scc1 L_nofw"]+line(sFWo,T4,rWJ)+["L_nofw:"]
    ka.body(P,NAME,diag,cfg,H)
    stamp(P,9,diag)
    wd=kc.wd_load_list(cfg,'sc1')
    P.extend(kc.d_maps(cfg.get('DM',0)))
    P.I(f"s_mov_b32 s{kc.sCNT}, 1")
    kc.poll_check(P,'fd',vPV=vFV)
    if diag: P.I(f"v_writelane_b32 v255, s{kc.sCNT}, 62\nv_writelane_b32 v255, s{ka.sCNT}, 61")
    for i in range(cfg.get('WDA',8)): P.extend(wd.pop(0))
    P.I(f"s_cmp_lg_u32 s{sW}, 3\n@wait x1st auxst wpst\ns_barrier\ns_cbranch_scc1 L_nofx")
    P.extend(line(sFXo,T4))
    P.I(f"""s_cmp_lg_u32 s2, 0
s_cbranch_scc1 L_nofx
s_mov_b64 exec, 1
buffer_store_dword v{vTG}, v{ka.vL16}, {sp(rWS,4)}, {WS_EPOCH} offen
s_mov_b64 exec, -1
L_nofx:""")
    stamp(P,19,diag)
    fill=kc.c_maps()+C.setup()+[f"v_lshlrev_b32 v{vFA}, {FS}, v0", f"s_mov_b32 s{sFXi}, {WS_FX}"]
    fill+=f"""s_and_b32 s{sT1}, s{sXCD}, 3
s_and_b32 s{sT2}, s{sIDX}, 3
s_lshl2_add_u32 s{sT1}, s{sT1}, s{sT2}
s_mul_i32 s{sT1}, s{sT1}, 7
s_lshr_b32 s{sT1}, s{sT1}, 2
s_lshl_b32 s{sT1}, s{sT1}, {3+FS}
s_add_u32 s{sFWi}, s{sT1}, {WS_FW}
v_and_b32 v{vFB}, {15<<FS}, v{vFA}""".split('\n')
    nB=cfg.get('WDB',8 if FW else 16)
    for i in range(nB):
        P.extend(wd.pop(0)); k=-(-len(fill)//(nB-i)); P.extend(fill[:k]); fill=fill[k:]
    P.extend(fill)
    if FW:
        P.I(f"buffer_load_dword v{vFV}, v{vFB}, {sp(rWS,4)}, s{sFWi} offen sc1")
        for i in range(cfg.get('WDB2',6)): P.extend(wd.pop(0))
        kc.poll_check(P,'fw',vPV=vFV)
        stamp(P,22,diag)
        C.pre(P,cfg.get('WPA',8),'w')
    QS=cfg.get('QSYNC',0)
    if QS:
        P.I(f"v_and_b32 v{kc.vQA}, 15, v{L}\ns_lshl_b32 s{sT1}, s{sW}, {4+FS}\nv_lshl_add_u32 v{kc.vQA}, v{kc.vQA}, {FS}, s{sT1}")
        P.extend(kc.qpoll(0))
        for i in range(cfg.get('WDC',6)): P.extend(wd.pop(0))
        stamp(P,20,diag)
        kc.poll_check(P,'fx0',vPV=kc.vQV)
        P.I("s_barrier")
        stamp(P,21,diag)
        C.pre(P,cfg.get('QPRE',5)); P.extend(kc.qpoll(1)); C.pre(P,99)
    else:
        P.I(f"buffer_load_dword v{vFV}, v{vFA}, {sp(rWS,4)}, s{sFXi} offen sc1")
        if FW: C.pre(P,8*G1-cfg.get('WPA',8),'w')
        for i in range(cfg.get('WDC',0 if FW else 6)): P.extend(wd.pop(0))
        stamp(P,20,diag)
        kc.poll_check(P,'fx',vPV=vFV)
        P.I("s_barrier")
        stamp(P,21,diag)
        C.pre(P,cfg.get('PRE',12 if FW else 16))
    if diag: P.I(f"v_writelane_b32 v255, s{kc.sCNT}, 63")
    D=kc.PhaseD(P,cfg,diag,wd)
    D.run(*C.run(P,diag,wd,[],D))
    if diag: P.I(f"v_writelane_b32 v255, s{kc.sCNT}, 30")
    if diag: P.I("s_getreg_b32 s4, hwreg(HW_REG_XCC_ID)\ns_and_b32 s4, s4, 15\nv_writelane_b32 v255, s4, 10")
    stamp(P,18,diag); stamp_out(P,0,diag)
    if cfg.get('DBGOUT') is not None:
        P.I(f"""s_cmp_ge_u32 s2, 8
s_cbranch_scc1 L_{NAME}_exit
s_cmp_lg_u32 s{sW}, 0
s_cbranch_scc1 L_{NAME}_exit
s_load_dwordx2 s[4:5], s[0:1], 128
v_readlane_b32 s6, v255, {cfg['DBGOUT']}
s_getreg_b32 s7, hwreg(HW_REG_XCC_ID)
s_and_b32 s7, s7, 15
s_and_b32 s6, s6, 0xffff
v_mov_b32 v4, s6
v_mov_b32 v5, s7
s_lshl_b32 s6, s2, 2
v_mov_b32 v6, s6
s_waitcnt lgkmcnt(0)
s_mov_b64 exec, 1
global_store_dword v6, v4, s[4:5]
global_store_dword v6, v5, s[4:5] offset:32""")
    P.I(f"L_{NAME}_exit:\ns_endpgm\n@nomore")
    loc=cfg.get('LOC',0)==1
    ka.retry_block(P,loc); ka.retry2_block(P,loc)
    kc.poll_retry(P,'fd',0,vFV,vFA,sFDi,loc);
    if QS:
        for q in range(4): kc.poll_retry(P,f'fx{q}',0,kc.vQV,kc.vQA,kc.sQP,loc)
    else: kc.poll_retry(P,'fx',0,vFV,vFA,sFXi,loc)
    if FW: kc.poll_retry(P,'fw',0,vFV,vFB,sFWi,loc)
    for s_ in range(len(kc.d_parts(cfg))): kc.poll_retry(P,f'p{s_}',128*s_)
    return [(NAME,256,256,kc.LDS_C,512)]
```

```python
from prog import *
from layout import *
import struct
def f32(x): return struct.unpack('<I',struct.pack('<f',x))[0]
LOG2E = 0x3fb8aa3b
XIN = 0
sX,sARE,sAIM,sBRE,sBIM,sCRE,sCIM,sLDT,sDSK,sBX,sWG,sWU,sWD,sC,sWM,sOUT,sDBG,sWS = [8+2*i for i in range(18)]
rR,rWG,rWU,rWD,rOUT,rWS,rWJ = 44,48,52,56,60,64,68
sXCD,sIDX,sP,sW,sTAG,sLD,sDS = 72,73,74,75,76,77,78
sT0,sT1,sT2,sT3,sT4,sT5 = 80,81,82,83,84,85
sWO,sWST,sWA = 86,87,88
sCG,sKE,sFS,sCNT = 26,27,97,98
def sp(a,n=2): return f"s[{a}:{a+n-1}]"
def vr(a,n): return f"v[{a}:{a+n-1}]"
def ar(a,n): return f"a[{a}:{a+n-1}]"
def mksrd(d,b,size):
    return [f"s_mov_b32 s{d}, s{b}", f"s_and_b32 s{d+1}, s{b+1}, 0xffff", f"s_mov_b32 s{d+2}, {size}", f"s_mov_b32 s{d+3}, 0x20000"]
vLANE = 1
vT16,vMC,vMW = 12,13,14
vPAR = 16
vTAB = 24
vRA = 32
vROLE = 40
vFG = 120
vPOLL = 160
vPOL2 = 152
vXF = 192
vHF = 208
vKA,vUA,vYW,vYR,vWRA,vXO,vGR,vL16 = 224,225,226,227,228,229,230,231
vMOD = 232
vKF,vKC,vGW,vSEL1,vSEL2 = 240,241,242,243,244

def stamp(P, n, diag):
    if diag: P.I(f"s_memrealtime s[4:5]\ns_memtime s[100:101]\ns_waitcnt lgkmcnt(0)\nv_writelane_b32 v255, s4, {n}\nv_writelane_b32 v255, s100, {32+n}")
def stamp0_issue(P, diag):
    if diag: P.I("v_mov_b32 v255, 0\ns_memrealtime s[4:5]\ns_memtime s[100:101]")
def stamp0_commit(P, diag):
    if diag: P.I("v_writelane_b32 v255, s4, 0\nv_writelane_b32 v255, s100, 32")
def stamp_out(P, kidx, diag):
    if diag:
        P.I(f"""s_lshl_b32 s4, s2, 10
s_add_u32 s4, s4, {WS_STAMP + kidx*0x40000}
v_lshlrev_b32 v2, 2, v0
buffer_store_dword v255, v2, {sp(rWS,4)}, s4 offen""")

def bf16_round(l):
    u=f32(float(l)); u=(u+0x7fff+((u>>16)&1))&0xffff0000
    return int(struct.unpack('<f',struct.pack('<I',u))[0])
def table_words():
    rec=[]
    for T in range(256):
        a=[]
        for j in range(11):
            lag=2047-8*T-j
            if lag<0: a.append(L_CZ); continue
            lam=bf16_round(lag); b=(lam>>3)&15; i=HI.index(lam-8*b)
            a.append(L_C+i*CP+4*b)
        a.append(0)
        w=T>>6; lane=T&63; ch=w>>1; vh=w&1
        ka_=L_KI+ch*4*KIP+(lane&3)*KIP+2*(2044-16)-3584-192-256*vh+(lane&48)-2*(lane&12)
        ua_=L_H+ch*HP+448-192-256*vh+32*(lane&15)+(lane&48)
        rec.append([a[2*k]|(a[2*k+1]<<16) for k in range(6)]+[ka_,ua_])
    return [rec[T][4*q+k] for q in range(2) for T in range(256) for k in range(4)]

def entry(P, name, diag, nlines, perm):
    P.I(f".globl {name}\n.p2align 8\n.type {name},@function\n{name}:\n@reset")
    ng=(nlines+15)//16; assert ng&(ng-1)==0 and ng<=32
    P.I(f"""s_cmp_ge_u32 s2, 256
s_cbranch_scc1 L_{name}_exit
s_load_dwordx16 s[8:23], s[0:1], 0
s_load_dwordx16 s[24:39], s[0:1], 64
s_load_dwordx4 s[40:43], s[0:1], 128
s_getpc_b64 s[6:7]
L_pc:
v_lshrrev_b32 v2, 6, v0
v_and_b32 v{vLANE}, 63, v0
s_lshr_b32 s{sIDX}, s2, 3
v_readfirstlane_b32 s{sW}, v2
s_and_b32 s{sT0}, s{sIDX}, {ng-1}
s_lshl_b32 s{sT0}, s{sT0}, 11
v_lshl_add_u32 v3, v{vLANE}, 5, s{sT0}
s_cmp_lg_u32 s{sW}, 3
s_cbranch_scc1 L_nopf
global_load_dword v15, v3, s[6:7]
L_nopf:""")
    stamp0_issue(P,diag)
    P.I(f"s_and_b32 s{sXCD}, s2, 7")
    if perm: P.I(f"s_lshl_b32 s{sXCD}, s{sXCD}, 2\ns_lshr_b32 s{sXCD}, {hex(sum(v<<(4*k) for k,v in enumerate(perm)))}, s{sXCD}\ns_and_b32 s{sXCD}, s{sXCD}, 7")
    P.I(f"""s_lshl_b32 s{sP}, s{sXCD}, 5
s_add_u32 s{sP}, s{sP}, s{sIDX}""")

def role_addr(P, loc=0):
    P.I(f"""s_cmp_eq_u32 s{sW}, 0
s_cselect_b32 s{sT3}, 8, 1
s_lshl_b32 s{sT2}, s{sT3}, 10
s_lshl_b32 s{sT3}, s{sT3}, 7
s_and_b32 s{sT4}, s{sP}, 7
s_lshl_b32 s{sT4}, s{sT4}, 7""")
    if loc: P.I(f"s_lshl_b32 s{sT0}, s{sIDX}, 9\ns_add_u32 s{sT0}, s{sT0}, s{sXCD}\ns_lshl_b32 s{sT0}, s{sT0}, 7")
    else: P.I(f"s_lshr_b32 s{sT0}, s{sP}, 3\ns_lshl_b32 s{sT0}, s{sT0}, 16\ns_add_u32 s{sT0}, s{sT0}, s{sT4}")
    P.I(f"""s_lshl_b32 s{sT1}, s{sP}, 13
s_cmp_eq_u32 s{sW}, 0
s_cselect_b32 s{sT0}, s{sT0}, s{sT1}
s_and_b32 s{sT5}, s{sW}, 1
s_sub_u32 s92, 7, s{sT5}
s_lshr_b32 s{sT1}, s{sP}, s92
s_lshl1_add_u32 s{sT1}, s{sT5}, s{sT1}
s_lshl_b32 s{sT1}, s{sT1}, 10
s_add_u32 s{sT4}, s{sT4}, s{sT1}
s_and_b32 s{sT1}, s{sP}, 0xf8
s_add_u32 s92, s{sT5}, 2
s_lshl_b32 s{sT1}, s{sT1}, s92
s_and_b32 s{sT5}, s{sT1}, 511
s_mul_i32 s{sT1}, s{sT5}, 6144
s_add_u32 s{sT1}, s{sT1}, s{sT4}
s_mov_b32 s{sT4}, 3145728
s_cmp_lt_u32 s{sW}, 2
s_cselect_b32 s94, s{sT0}, s{sT1}
s_cselect_b32 s{sT2}, s{sT2}, 6144
s_cselect_b32 s79, s{sT3}, {8*6144}
s_cselect_b32 s{rR+2}, 2097152, s{sT4}
s_mov_b32 s{rR+3}, 0x20000
v_lshrrev_b32 v3, 3, v{vLANE}
v_mul_u32_u24 v3, s{sT2}, v3
v_lshrrev_b32 v4, 2, v{vLANE}
v_and_b32 v4, 4, v4
v_and_b32 v5, 7, v{vLANE}
v_xor_b32 v4, v4, v5
v_lshl_add_u32 v22, v4, 4, v3
v_xor_b32 v23, 32, v22
s_lshl_b32 s3, s{sW}, 13
s_add_u32 s3, s3, {L_RR}
v_add_u32 v5, s{sT5}, v{vLANE}
v_and_b32 v5, 511, v5
v_lshlrev_b32 v5, 1, v5
s_lshl_b32 s{sT5}, s{sP}, 9
v_lshl_add_u32 v2, v0, 1, s{sT5}""")
    for i in range(6): P.I(f"v_mov_b32 v{vPAR+i}, 0")
    P.I(f"v_mov_b32 v{vROLE}, 0\ns_lshl_b32 s93, s{sP}, 2")
def param_loads(P, NT):
    P.extend([f"global_load_short_d16_hi v{vPAR+i}, v2, {sp(b)} {NT}" for i,b in enumerate((sARE,sAIM,sBRE,sBIM,sCRE,sCIM))])
def early_loads(P, NT, pfirst):
    if pfirst: param_loads(P,NT)
    P.I(f"""s_load_dword s{sTAG}, {sp(sWS)}, {WS_EPOCH}
s_load_dword s{sLD}, {sp(sLDT)}, s93
s_load_dword s{sDS}, {sp(sDSK)}, s93
s_cmp_lt_u32 s{sW}, 2
s_cselect_b64 {sp(rR)}, {sp(sX)}, {sp(sWM)}
s_and_b32 s{rR+1}, s{rR+1}, 0xffff""")
    P.I(f"global_load_short_d16_hi v{vROLE}, v5, {sp(sC)}")
    P.I(f"""s_add_u32 s6, s6, L_table-L_pc+4096
s_addc_u32 s7, s7, 0
v_lshlrev_b32 v{vT16}, 4, v0""")
def role_loads(P, XNT, late):
    lbl='L_rlb' if late else 'L_rla'
    P.I(f"s_cmp_eq_u32 s{sW}, 3\ns_cbranch_scc{0 if late else 1} {lbl}")
    for u in range(8):
        if u==4 and not late: P.I(f"s_cmp_eq_u32 s{sW}, 2\ns_cbranch_scc1 {lbl}")
        P.I(f"s_add_u32 m0, s3, {u*1024}")
        P.I(f"s_add_u32 s94, s94, s79" if u else "s_nop 0")
        P.I(f"buffer_load_dwordx4 v{22+(u&1)}, {sp(rR,4)}, s94 offen {XNT} lds", tag='rr')
    P.I(f"{lbl}:")
def table_loads(P):
    P.I(f"global_load_dwordx4 {vr(vTAB,4)}, v{vT16}, s[6:7] offset:-4096\nglobal_load_dwordx4 {vr(vTAB+4,4)}, v{vT16}, s[6:7]")

def setup(P, nowd=False, X='', wmap=0):
    P.extend(mksrd(rWS,sWS,WS_USED))
    P.I(f"s_cmp_lt_u32 s{sIDX}, 28\ns_cselect_b32 s{sT0}, 1835008, 0\ns_cselect_b32 s{sT1}, {WS_USED}, 0")
    for r,b in ((rWG,sWG),(rWU,sWU),(rWD,sWD)): P.extend(mksrd(r,b,1835008 if (nowd and r==rWD) else f"s{sT0}"))
    P.extend(mksrd(rWJ,sWS,f"s{sT1}"))
    if 'w' in X: P.I(f"s_mov_b32 s{rWG+2}, 0\ns_mov_b32 s{rWU+2}, 0")
    if 'm' in X: P.I(f"s_mov_b32 s{rR+2}, 0")
    if 'd' in X: P.I(f"s_mov_b32 s{rWD+2}, 0")
    if 's' in X: P.I(f"s_min_u32 s{rWJ+2}, s{rWJ+2}, {WS_XG}")
    if wmap: P.I(f"s_mov_b32 s{sCG}, s{sIDX}\ns_mov_b32 s{sKE}, s{sXCD}")
    else: P.I(f"""s_and_b32 s{sCG}, s{sXCD}, 3
s_mul_i32 s{sCG}, s{sCG}, 7
s_lshr_b32 s{sT0}, s{sIDX}, 2
s_add_u32 s{sCG}, s{sCG}, s{sT0}
s_and_b32 s{sKE}, s{sXCD}, 4
s_and_b32 s{sT0}, s{sIDX}, 3
s_add_u32 s{sKE}, s{sKE}, s{sT0}""")
    P.I(f"""s_lshl2_add_u32 s{sT0}, s{sCG}, s{sW}
s_mul_i32 s{sT1}, s{sT0}, 147
s_lshr_b32 s{sT1}, s{sT1}, 10
s_mul_i32 s{sT2}, s{sT1}, 7
s_sub_u32 s{sT0}, s{sT0}, s{sT2}
s_mul_i32 s{sT1}, s{sT1}, 231
s_cmp_lt_u32 s{sT0}, {G1}
s_cselect_b32 s{sT2}, {G1}, 1
s_cselect_b32 s{sT3}, 1, 33
s_mul_i32 s{sT0}, s{sT0}, s{sT3}
s_add_u32 s{sT0}, s{sT0}, s{sT1}
s_lshl_b32 s{sT0}, s{sT0}, 10
s_add_u32 s{sT0}, s{sT0}, {WS_WPF}
s_lshl_b32 s{sWST}, s{sT2}, 10
s_mul_i32 s{sT3}, s{sWST}, s{sKE}
s_lshl2_add_u32 s{sWO}, s{sT3}, s{sT0}
s_lshl_b32 s{sT2}, s{sT2}, 15
s_add_u32 s{sWA}, s{sT2}, s{sT0}
s_lshl_b32 s{sT0}, s{sKE}, 7
s_add_u32 s{sWA}, s{sWA}, s{sT0}""")
    L=vLANE
    P.I(f"""v_lshlrev_b32 v{vL16}, 4, v{L}
v_and_b32 v2, 15, v{L}
v_and_b32 v3, 48, v{L}
v_lshrrev_b32 v4, 4, v{L}
v_lshrrev_b32 v5, 5, v{L}
v_and_b32 v6, 3, v{L}
s_mul_i32 s{sT2}, s{sW}, 10240
s_add_u32 s{sT2}, s{sT2}, {L_Y}
v_mul_u32_u24 v7, 320, v4
v_lshl_add_u32 v7, v2, 4, v7
v_add_u32 v{vYW}, s{sT2}, v7
v_lshrrev_b32 v7, 5, v0
v_mul_u32_u24 v7, 1280, v7
v_and_b32 v8, 1, v0
v_mul_u32_u24 v9, 640, v8
v_bfe_u32 v10, v0, 1, 4
v_lshl_add_u32 v9, v10, 4, v9
v_add_u32 v{vYR}, v7, v9
v_lshrrev_b32 v7, 2, v0
{f"s_and_b32 s{sT2}, s{sP}, 7" if XIN else ""}
{f"v_xor_b32 v7, s{sT2}, v7" if XIN else ""}
v_lshlrev_b32 v7, {7 if XIN else 15}, v7
v_lshl_add_u32 v{vXO}, v6, 4, v7
v_mul_u32_u24 v7, {FP}, v2
v_add_u32 v7, v7, v3
v_add_u32 v{vKF}, {L_F}, v7
v_mul_u32_u24 v7, {CP}, v2
s_mul_i32 s{sT2}, s{sW}, {16*CP}
v_add3_u32 v{vKC}, v7, v3, s{sT2}
v_bfe_u32 v7, v{L}, 2, 2
v_cvt_f32_u32 v{vSEL2}, v5
v_and_b32 v9, 31, v{L}
v_lshlrev_b32 v{vMC}, 12, v9
v_and_b32 v9, 8, v{L}
v_lshl_add_u32 v9, v9, 1, v2
v_lshlrev_b32 v{vSEL1}, 12, v9
v_lshl_add_u32 v9, v5, 3, v6
v_bfe_u32 v10, v{L}, 2, 3
v_lshlrev_b32 v11, 4, v10
v_lshl_add_u32 v{vMW}, v9, 12, v11
s_lshl_b32 s{sT2}, s{sW}, 6
s_add_u32 s{sT2}, s{sT2}, {L_GT+256}
v_lshl_add_u32 v10, v10, 3, s{sT2}
v_lshlrev_b32 v11, 8, v5
v_sub_u32 v{vGW}, v10, v11
v_lshlrev_b32 v10, 5, v5
v_add_u32 v{vGR}, {L_GT}, v10
v_and_b32 v9, 1, v4
v_lshl_add_u32 v10, v9, 1, v5
v_lshl_add_u32 v10, v10, 3, v7
v_lshl_add_u32 v10, v10, 1, v9
v_bfe_u32 v11, v{L}, 3, 1
v_lshl_add_u32 v10, v10, 1, v11
v_xor_b32 v10, s{sW}, v10
v_lshl_add_u32 v10, v10, 1, v8
v_bfe_u32 v11, v{L}, 1, 1
v_lshl_add_u32 v10, v10, 1, v11
v_lshlrev_b32 v10, 3, v10
v_add_u32 v{vWRA}, {L_WR}, v10""")
    P.I(f"""v_mul_u32_u24 v7, {HP}, v5
v_and_b32 v9, 31, v{L}
v_min_u32 v9, 29, v9
v_lshl_add_u32 v7, v9, 4, v7
v_add_u32 v7, {L_H}, v7
v_cmp_gt_u32 vcc, 64, v0
v_mov_b32 v9, {L_CZ}
v_mov_b32 v{vFG}, 0
v_cndmask_b32 v7, v9, v7, vcc
v_mov_b32 v{vFG+1}, 0
v_mov_b32 v{vFG+2}, 0
v_mov_b32 v{vFG+3}, 0
ds_write_b128 v7, {vr(vFG,4)}""")
    A0=vRA
    P.I(f"""v_lshrrev_b32 v2, 3, v{L}
v_and_b32 v3, 2, v2
v_mul_u32_u24 v2, 3584, v2
v_and_b32 v4, 7, v{L}
v_xor_b32 v3, v3, v4
v_xor_b32 v4, 4, v3
v_lshl_add_u32 v{A0+2}, v3, 4, v2
v_lshl_add_u32 v{A0+3}, v4, 4, v2
v_and_b32 v8, 1, v{L}
v_bfe_u32 v7, v{L}, 1, 3
v_mul_u32_u24 v7, {KIP}, v7
v_lshl_add_u32 v7, v8, 4, v7
v_add_u32 v{A0+1}, {L_KI+4096}, v7
s_mul_i32 s{sT0}, s{sKE}, {64*3584}
s_lshl_b32 s{sT1}, s{sCG}, 7
s_add_u32 s90, s{sT0}, s{sT1}""")
    if not nowd: P.I(f"""v_lshrrev_b32 v2, 2, v{L}
v_and_b32 v5, 3, v{L}
v_lshlrev_b32 v5, 4, v5
v_lshl_add_u32 v{A0+4}, v2, 10, v5
v_lshrrev_b32 v6, 5, v{L}
v_and_b32 v7, 3, v2
v_lshl_add_u32 v6, v6, 3, v7
v_bfe_u32 v7, v{L}, 4, 1
v_lshl_add_u32 v6, v6, 1, v7
v_lshl_add_u32 v6, v6, 1, v8
v_bfe_u32 v7, v{L}, 1, 1
v_lshl_add_u32 v6, v6, 1, v7
v_lshlrev_b32 v6, 3, v6
v_add_u32 v{A0}, {L_DR}, v6
s_mul_i32 s{sFS}, s{sXCD}, 28
s_add_u32 s{sFS}, s{sFS}, s{sIDX}
s_lshr_b32 s{sT2}, s{sFS}, 1
s_lshl_b32 s{sT2}, s{sT2}, 14
s_and_b32 s{sT1}, s{sFS}, 1
s_lshl_b32 s{sT1}, s{sT1}, 9
s_add_u32 s91, s{sT2}, s{sT1}""")

def x_jobs(P, PUB, diag, loc=0):
    R=vROLE; G=vROLE+32; L=vLANE
    P.I(f"s_cmp_eq_u32 s{sW}, 2\ns_cbranch_scc1 L_rj2\ns_cmp_eq_u32 s{sW}, 1\ns_cbranch_scc1 L_rj1")
    P.I(f"""v_and_b32 v2, 7, v{L}
v_lshrrev_b32 v3, 3, v{L}
v_and_b32 v4, 2, v2
v_lshlrev_b32 v4, 1, v4
v_xor_b32 v4, v4, v3
v_lshlrev_b32 v4, 4, v4
v_lshl_add_u32 v4, v2, 7, v4
v_add_u32 v4, {L_RR}, v4
v_xor_b32 v5, 32, v4
v_mul_u32_u24 v3, {4*12288}, v3
v_lshl_add_u32 v2, v2, 4, v3
{f"s_mov_b32 s{sT0}, s{sXCD}" if loc else f"s_and_b32 s{sT0}, s{sP}, 7"}
s_mul_i32 s{sT0}, s{sT0}, {32*12288}
{f"s_lshl_b32 s{sT1}, s{sIDX}, 3" if loc else f"s_and_b32 s{sT1}, s{sP}, 0xf8"}
s_lshl4_add_u32 s{sT0}, s{sT1}, s{sT0}
s_add_u32 s{sT0}, s{sT0}, {WS_XG}""")
    for k in range(12): P.I(f"v_mov_b32 v{G+4*k+3}, s{sTAG}")
    P.I(f"s_waitcnt vmcnt({JW})"); stamp(P,2,diag)
    for r in range(8): P.I(f"ds_read_b128 {vr(R+4*r,4)}, v{4+(r&1)} offset:{r*1024}")
    for g in range(3):
        for j in range(4):
            k=g*4+j
            for e in range(3):
                if 3*g+e<8: P.I(f"v_mov_b32 v{G+4*k+e}, v{R+4*(3*g+e)+j}")
            P.I(f"s_add_u32 s{sT1}, s{sT0}, {j*12288+g*4096}")
            P.I(f"buffer_store_dwordx4 {vr(G+4*k,4)}, v2, {sp(rWS,4)}, s{sT1} offen {'' if loc==1 else PUB}")
    P.I(f"s_waitcnt vmcnt(12)\ns_branch L_xje\nL_rj1:")
    P.I(f"""v_mov_b32 v2, 0
v_mov_b32 v3, 0
v_mov_b32 v4, 0
v_mov_b32 v5, 0
s_mov_b32 s{sT1}, 0x3f803f80
v_add_u32 v6, {L_RR+8192}, v{vL16}
v_mul_u32_u24 v8, 96, v{L}
v_lshlrev_b32 v9, 12, v{L}
s_lshl4_add_u32 s{sT0}, s{sP}, {WS_SG}""")
    P.I(f"v_mov_b32 v{G+3}, s{sTAG}\ns_waitcnt vmcnt({JW})"); stamp(P,2,diag)
    for u in range(8): P.I(f"ds_read_b128 {vr(R+4*u,4)}, v6 offset:{u*1024}")
    for k in range(32):
        P.I(f"v_dot2c_f32_bf16 v{2+(k&1)}, s{sT1}, v{R+k}\nv_dot2c_f32_bf16 v{4+(k&1)}, v{R+k}, v{R+k}")
    P.I("v_add_f32 v2, v2, v3\nv_add_f32 v4, v4, v5")
    for m in ("quad_perm:[1,0,3,2]","quad_perm:[2,3,0,1]","row_half_mirror"):
        P.I(f"v_add_f32_dpp v2, v2, v2 {m} row_mask:0xf bank_mask:0xf\nv_add_f32_dpp v4, v4, v4 {m} row_mask:0xf bank_mask:0xf")
    P.I(f"""v_mul_f32 v2, 0x3b000000, v2
v_mul_f32 v4, 0x3b000000, v4
v_fma_f32 v4, -v2, v2, v4
v_max_f32 v4, 0, v4
v_cvt_pk_bf16_f32 v4, v4, v4
v_and_b32 v4, 0xffff0000, v4
v_add_f32 v4, 0x3727c5ac, v4
v_cvt_pk_bf16_f32 v4, v4, v4
v_and_b32 v4, 0xffff0000, v4
v_sqrt_f32 v4, v4
v_cvt_pk_bf16_f32 v2, v2, v4
ds_bpermute_b32 v{G}, v8, v2
ds_bpermute_b32 v{G+1}, v8, v2 offset:32
ds_bpermute_b32 v{G+2}, v8, v2 offset:64
s_waitcnt lgkmcnt(0)
s_mov_b64 exec, 7
buffer_store_dwordx4 {vr(G,4)}, v9, {sp(rWS,4)}, s{sT0} offen {PUB}
s_mov_b64 exec, -1
s_waitcnt vmcnt(1)
s_branch L_xje
L_rj2:""")
    mod_job(P,PUB,diag,1)
    P.I("s_waitcnt vmcnt(1)")
    P.I("L_xje:")
def mod_job(P, PUB, diag, nks):
    R=vROLE; L=vLANE; A0=vRA; w=nks+1
    assert L_MR%128==0
    P.I(f"""v_lshrrev_b32 v2, 4, v{L}
v_bfe_u32 v3, v{L}, 2, 2
v_lshl_add_u32 v4, v2, 3, v3
v_bfe_u32 v3, v{L}, 3, 1
v_lshl_add_u32 v4, v4, 1, v3
v_and_b32 v3, 1, v2
v_lshl_add_u32 v4, v4, 1, v3
v_and_b32 v3, 3, v{L}
v_lshl_add_u32 v4, v4, 2, v3
v_lshlrev_b32 v4, 3, v4
v_add_u32 v8, {L_RR+w*8192}, v4
v_xor_b32 v9, 32, v8
v_xor_b32 v10, 64, v8
v_xor_b32 v11, 96, v8
v_bfe_u32 v4, v{L}, 1, 2
v_lshl_add_u32 v4, v4, 2, v2
v_and_b32 v3, 1, v{L}
v_lshl_add_u32 v4, v4, 1, v3
v_lshlrev_b32 v{A0+5}, 4, v4
s_mov_b32 s{sT0}, {L_SC+(w-2)*128}
v_lshl_add_u32 v6, v{L}, 1, s{sT0}
v_and_b32 v7, 48, v{L}
v_add_u32 v7, s{sT0}, v7
s_lshl_b32 s{sT0}, s{sP}, 9
s_add_u32 s99, s{sT0}, {WS_MG+(w-2)*0x20000}
s_mov_b32 s{sT0}, 0xaaaaaaaa
s_mov_b32 s{sT1}, 0xaaaaaaaa
s_mov_b32 s{sT2}, 0xcccccccc
s_mov_b32 s{sT3}, 0xcccccccc
s_mov_b32 s{sT4}, 0xf0f0f0f0
s_mov_b32 s{sT5}, 0xf0f0f0f0""")
    if nks==1: P.I(f"s_waitcnt vmcnt({12 if JW else 6})")
    P.I(f"""v_mul_f32 v4, 0xbfb8aa3b, v{R}
v_exp_f32 v4, v4
v_add_f32 v4, 1.0, v4
v_rcp_f32 v4, v4
v_mul_f32 v2, v{R}, v4
v_cvt_pk_bf16_f32 v2, v2, v2
ds_write_b16 v6, v2""")
    for ks in range(nks): P.I(f"ds_read_b128 {vr(R+4*ks,4)}, v7 offset:{ks*64}")
    P.I(f"s_waitcnt vmcnt({JW})" if nks==1 else "@wait rr"); stamp(P,2,diag)
    A=R+16; ACC=R+16+32
    seq=[(ks,ct) for ks in range(nks) for ct in range(4)]
    for n,(ks,ct) in enumerate(seq):
        for hf in range(2): P.I(f"ds_read_b64_tr_b16 {vr(A+4*n+2*hf,2)}, v{8+ct} offset:{ks*4096+hf*512}")
    for n,(ks,ct) in enumerate(seq):
        P.I(f"v_mfma_f32_16x16x32_bf16 {vr(ACC+4*ct,4)}, {vr(A+4*n,4)}, {vr(R+4*ks,4)}, {vr(ACC+4*ct,4) if ks else 0}")
    P.I(f"v_mov_b32 v{R+3}, s{sTAG}")
    for ct in range(4):
        for e in range(2): P.I(f"v_cndmask_b32 v{A+2*ct+e}, v{ACC+4*ct+e}, v{ACC+4*ct+2+e}, {sp(sT0)}")
    for c2 in range(2):
        for e in range(2): P.I(f"v_cndmask_b32 v{A+8+2*c2+e}, v{A+4*c2+e}, v{A+4*c2+2+e}, {sp(sT2)}")
    for e in range(2): P.I(f"v_cndmask_b32 v{R+e}, v{A+8+e}, v{A+10+e}, {sp(sT4)}")
    P.I(f"""s_mov_b32 exec_lo, 0x00ff00ff
s_mov_b32 exec_hi, 0x00ff00ff
buffer_store_dwordx4 {vr(R,4)}, v{A0+5}, {sp(rWS,4)}, s99 offen {PUB}
s_mov_b64 exec, -1""")
def raw_wd_loads(P, NT):
    P.I(f"s_lshl_b32 s{sT0}, s{sW}, 11\ns_lshl_b32 s{sT1}, s{sW}, 7\ns_add_u32 m0, s{sT0}, {L_DR}\ns_add_u32 s{sT1}, s{sT1}, s91")
    P.I(f"buffer_load_dwordx4 v{vRA+4}, {sp(rWD,4)}, s{sT1} offen {NT} lds", tag='dr')
    P.I(f"s_add_u32 m0, s{sT0}, {L_DR+1024-64}\nv_add_u32 v245, s{sT0}, v{vRA}")
    P.I(f"buffer_load_dwordx4 v{vRA+4}, {sp(rWD,4)}, s{sT1} offen offset:64 {NT} lds", tag='dr')
def wd_job(P, ST):
    A=vHF+8
    P.I("@wait dr")
    for f in range(2):
        for hf in range(2): P.I(f"ds_read_b64_tr_b16 {vr(A+4*f+2*hf,2)}, v245 offset:{f*1024+hf*256}")
    P.I(f"""s_and_b32 s{sT0}, s{sFS}, 1
s_lshl2_add_u32 s{sT0}, s{sT0}, s{sW}
s_mul_i32 s{sT0}, s{sT0}, {2*112}
s_lshr_b32 s{sT1}, s{sFS}, 1
s_add_u32 s{sT0}, s{sT0}, s{sT1}
s_lshl_b32 s{sT0}, s{sT0}, 10
s_add_u32 s{sT0}, s{sT0}, {WS_WDF}
s_add_u32 s{sT1}, s{sT0}, {112*1024}""")
    for f in range(2):
        P.I(f"buffer_store_dwordx4 {vr(A+4*f,4)}, v{vL16}, {sp(rWJ,4)}, s{sT0+f} offen {ST}", tag='wdst')
def raw_w_loads(P, NT):
    P.I(f"s_mul_i32 s95, s{sW}, {16*3584}\ns_add_u32 s95, s95, s90\ns_lshl_b32 s96, s{sW}, 12")
    for q in range(2):
        for mat,r in ((0,rWG),(1,rWU)):
            P.I(f"s_add_u32 m0, s96, {L_WR+mat*2048+q*1024}")
            P.I(f"s_add_u32 s95, s95, {8*3584}" if (q and not mat) else "s_nop 0")
            P.I(f"buffer_load_dwordx4 v{vRA+2+mat}, {sp(r,4)}, s95 offen {NT} lds", tag='wr')

def cmul(o,a,b,t):
    return [f"v_pk_mul_f32 {vr(t,2)}, {vr(a,2)}, {vr(b,2)} op_sel_hi:[0,1]",
            f"v_pk_fma_f32 {vr(o,2)}, {vr(a,2)}, {vr(b,2)}, {vr(t,2)} op_sel:[1,1,0] op_sel_hi:[1,0,1] neg_lo:[1,0,0]"]
def factor_gen(P, lo=0, hi=99):
    B=vFG; are,aim,bre,bim,cre,cim=[vPAR+i for i in range(6)]
    R1,R8,R128,LOc,TMP,PK = B,B+2,B+4,B+6,B+8,B+12
    Pc=[B+16+2*c for c in range(8)]
    zr,zi,dt=B+32,B+33,B+34; M=[2,4,6]; PH=[8,9,10]
    P.I(f"s_lshr_b32 s{sT0}, s{sW}, 1\ns_mul_i32 s{sT1}, s{sT0}, {64*FP-512}\ns_lshl_b32 s{sT2}, s{sW}, 8\ns_add_u32 m0, s{sT1}, s{sT2}")
    P0=P
    if lo: P=Prog()
    P.I(f"""s_lshl_b32 s{sT0}, s{sT0}, 4
s_lshr_b32 s{sT1}, s{sLD}, s{sT0}
s_lshl_b32 s{sT1}, s{sT1}, 16
v_mov_b32 v{dt}, {hex(LOG2E)}
v_mul_f32 v{dt}, s{sT1}, v{dt}
v_exp_f32 v{dt}, v{dt}""")
    P.extend(cmul(Pc[0],cre,bre,TMP))
    P.I(f"""v_cvt_pk_bf16_f32 v{dt}, v{dt}, v{dt}
v_and_b32 v{dt}, 0xffff0000, v{dt}
v_mul_f32 v{zr}, v{dt}, v{are}
v_mul_f32 v{zi}, v{dt}, v{aim}
v_mul_f32 v{zr}, {hex(LOG2E)}, v{zr}
v_mul_f32 v{zi}, 0.15915494, v{zi}
v_pk_mul_f32 {vr(Pc[0],2)}, {vr(Pc[0],2)}, {vr(dt,2)} op_sel_hi:[1,0] neg_hi:[1,0]""")
    cx=((R1,1,True),(R8,8,False),(R128,128,True))
    for (o,sc,cj),m,ph in zip(cx,M,PH):
        if sc==1: P.I(f"v_exp_f32 v{m}, v{zr}\nv_fract_f32 v{ph}, v{zi}")
        else: P.I(f"v_mul_f32 v{m}, {hex(f32(sc))}, v{zr}\nv_mul_f32 v{ph}, {hex(f32(sc))}, v{zi}\nv_exp_f32 v{m}, v{m}\nv_fract_f32 v{ph}, v{ph}")
        P.I(f"v_cos_f32 v{o}, v{ph}\nv_sin_f32 v{o+1}, v{ph}")
    for (o,sc,cj),m,ph in zip(cx,M,PH):
        P.I(f"v_pk_mul_f32 {vr(o,2)}, {vr(o,2)}, {vr(m,2)} op_sel_hi:[1,0]" + (" neg_hi:[1,0]" if cj else ""))
    P=P0
    steps_lo=[('one',48),('put',49,R8)]+[('mul',48+b,LOc,(R8 if b==2 else LOc),R8) for b in range(2,16)]
    steps_hi=[('put',0,Pc[0])]+[('mul',c,Pc[c],Pc[c-1],R1) for c in range(1,8)]
    row=8
    for e in range(1,17):
        cs = range(8) if e<2 else range(0,8,2) if e<4 else (0,4) if e<8 else (0,)
        for c in cs:
            assert HI[row]==128*e+c
            steps_hi.append(('mul',row,Pc[c],Pc[c],R128)); row+=1
    for k,s in enumerate(steps_lo+steps_hi):
        if not lo<=k<hi: continue
        kk=PK+(k&3)
        if s[0]=='one': P.I(f"v_mov_b32 v{kk}, 0x3f80")
        else:
            if s[0]=='mul': P.extend(cmul(s[2],s[3],s[4],TMP+2*(k&1)))
            P.I(f"v_cvt_pk_bf16_f32 v{kk}, v{s[2]}, v{s[2]+1}")
        P.I(f"ds_write_addtid_b32 v{kk} offset:{L_F+s[1]*FP}")

def kgen(P, diag, mid=[], skip=0, order=0):
    A=vROLE; ACC=vFG
    P.I(f"""s_lshl_b32 s{sT0}, s{sDS}, 16
s_and_b32 s{sT1}, s{sDS}, 0xffff0000
v_cmp_eq_u32 vcc, 0, v0
v_mov_b32 v2, s{sT0}
v_mov_b32 v3, s{sT1}
s_mul_i32 s{sT2}, s{sW}, {16*FP}
v_cndmask_b32 v{ACC}, 0, v2, vcc
v_cndmask_b32 v{ACC+4}, 0, v3, vcc
v_add_u32 v5, s{sT2}, v{vKF}""")
    for r in (1,2,3,5,6,7): P.I(f"v_mov_b32 v{ACC+r}, 0")
    P.I(f"s_cmp_eq_u32 s{sW}, 3\ns_waitcnt lgkmcnt(0)\ns_barrier\ns_cbranch_scc1 L_wdjob")
    def rd(n):
        ks,ch=n>>1,n&1; b=A+8*(n%9)
        return [f"ds_read_b128 {vr(b,4)}, v{vKF} offset:{ch*64*FP+48*FP+ks*64}", f"ds_read_b128 {vr(b+4,4)}, v5 offset:{ch*64*FP+ks*64}"]
    for n in range(7): P.extend(rd(n))
    m2=[[Ins(x.text,x.tag) for x in g] for g in mid]; mid=list(mid)
    for n in range(16):
        if mid and n>=skip: P.extend(mid.pop(0))
        b=A+8*(n%9); a=vr(ACC+4*(n&1),4)
        P.I(f"v_mfma_f32_16x16x32_bf16 {a}, {vr(b,4)}, {vr(b+4,4)}, {a}")
        if n+7<16: P.extend(rd(n+7))
    for r in range(4): P.I(f"v_cvt_pk_bf16_f32 v{8+r}, v{ACC+r}, v{ACC+4+r}")
    P.I(f"ds_write_b128 v{vKC}, v[8:11]\ns_branch L_kgen_end\nL_wdjob:")
    if order==0:
        for g in m2: P.extend(g)
    mod_job(P,'sc1',diag,2)
    if order==1:
        for g in m2: P.extend(g)
    P.I(f"ds_write_b128 v{vRA+1}, {vr(ACC,4)}")
    P.I("L_kgen_end:")

def poll_groups(extra=None, XL='sc1', xfirst=0):
    Q=Prog(); poll_loads(Q,XL,xfirst); G=[[]]
    if extra: extra(Q)
    for x in Q.ins:
        G[-1].append(x)
        if x.kind=='vmem': G.append([])
    return G[:-1]
def poll_loads(P, XL='sc1', xfirst=0):
    LD='sc1'
    P.I(f"s_mul_i32 s94, s{sP}, 12288\ns_add_u32 s94, s94, {WS_XG}")
    X=[(f"s_add_u32 s94, s94, 4096\n" if g else "")+f"buffer_load_dwordx4 {vr(vPOLL+4*g,4)}, v{vT16}, {sp(rWS,4)}, s94 offen {XL}" for g in range(3)]
    S=[f"s_mov_b32 s79, {WS_SG+g*4096}\nbuffer_load_dwordx4 {vr(vPOLL+12+4*g,4)}, v{vT16}, {sp(rWS,4)}, s79 offen {LD}" for g in range(3)]
    for t in (X+S if xfirst==1 else S+X if xfirst==2 else [y for p in zip(X,S) for y in p]): P.I(t)
    P.I(f"s_lshl4_add_u32 s3, s{sP}, {WS_MG}")
    P.I(f"buffer_load_dwordx4 {vr(vPOLL+24,4)}, v{vMC}, {sp(rWS,4)}, s3 offen {LD}", tag='poll')
vQ=144
def poll2_loads(P):
    P.I(f"""s_lshl4_add_u32 s3, s{sP}, {WS_MG+0x20000}
buffer_load_dwordx4 {vr(vQ,4)}, v{vSEL1}, {sp(rWS,4)}, s3 offen sc1
s_lshl2_add_u32 s3, s{sKE}, s{sW}
s_lshl_b32 s3, s3, 7
s_add_u32 s3, s3, {WS_MG+0x20000+8*4096}
buffer_load_dwordx4 {vr(vQ+4,4)}, v{vMW}, {sp(rWS,4)}, s3 offen sc1
s_add_u32 s3, s3, {4*4096}""")
    P.I(f"buffer_load_dwordx4 {vr(vQ+8,4)}, v{vMW}, {sp(rWS,4)}, s3 offen sc1", tag='poll2')
def poll2_work(ST):
    mc,mw=vQ,vQ+4; dpp=" row_mask:0xf bank_mask:0xf"
    L=[["L_p2_chk:","@wait poll2",f"v_min3_u32 v2, v{vQ+3}, v{vQ+7}, v{vQ+11}",f"v_max3_u32 v3, v{vQ+3}, v{vQ+7}, v{vQ+11}",f"v_min_u32 v2, s{sTAG}, v2",f"v_max_u32 v3, s{sTAG}, v3",
        "v_cmp_ne_u32 vcc, v2, v3","s_cbranch_vccnz L_q_retry","L_q_ok:"]]
    L[0][0]="L_q_chk:"
    X=[f"v_add_f32 v{mw}, v{mw}, v{vQ+8}",f"v_add_f32 v{mw+1}, v{mw+1}, v{vQ+9}"]
    for m in ("quad_perm:[1,0,3,2]","quad_perm:[2,3,0,1]"):
        X+=[f"v_add_f32_dpp v{r}, v{r}, v{r} {m}{dpp}" for r in (mc,mc+1,mw,mw+1)]
    X+=[f"v_add_f32_dpp v{r}, v{r}, v{r} row_half_mirror{dpp}" for r in (mc,mc+1)]
    X+=[f"v_cvt_pk_bf16_f32 v{mw+1}, v{mw}, v{mw+1}", f"v_cvt_pk_bf16_f32 v{mc+1}, v{mc}, v{mc+1}",
        f"v_lshlrev_b32 v{mw}, 16, v{mw+1}", f"v_and_b32 v{mw+1}, 0xffff0000, v{mw+1}", f"v_lshlrev_b32 v{mc}, 16, v{mc+1}", f"v_and_b32 v{mc+1}, 0xffff0000, v{mc+1}",
        f"v_add_f32 v{mw}, v{mw}, v{vSEL2}", f"v_add_f32 v{mw+1}, v{mw+1}, v{vSEL2}", f"v_cvt_pk_bf16_f32 v{mw+1}, v{mw}, v{mw+1}",
        f"v_lshlrev_b32 v{mw}, 16, v{mw+1}", f"v_and_b32 v{mw+1}, 0xffff0000, v{mw+1}", f"ds_write_b64 v{vGW}, {vr(mw,2)}"]
    late=[f"v_mov_b32_dpp v{vMOD+4+2*k+e}, v{mc+e} row_newbcast:{8*k}{dpp}" for k in range(2) for e in range(2)]
    return L[0],X,late
def writeback(cnt, lbl, on):
    return [f"s_and_b32 s4, s{cnt}, 3","s_cmp_lg_u32 s4, 0",f"s_cbranch_scc1 {lbl}","buffer_wbl2 sc1","s_waitcnt vmcnt(0)",f"{lbl}:"] if on else []
def retry2_block(P, loc=0):
    P.I(f"L_q_retry:\ns_add_u32 s{sCNT}, s{sCNT}, 1\ns_cmp_gt_u32 s{sCNT}, 20000\ns_waitcnt vmcnt(0) lgkmcnt(0)\ns_cbranch_scc1 L_q_ok")
    P.extend(writeback(sCNT,'L_q_nowb',loc))
    poll2_loads(P)
    P.I("s_waitcnt vmcnt(0)\ns_branch L_q_chk")

vGA=140
def table_unpack(P):
    P.I(f"v_mov_b32 v{vUA}, v{vTAB+7}\nv_mov_b32 v{vKA}, v{vTAB+6}")
    for j in range(11):
        P.I(f"v_lshrrev_b32 v{vGA+j}, 16, v{vTAB+j//2}" if j&1 else f"v_and_b32 v{vGA+j}, 0xffff, v{vTAB+j//2}")
def k_image(P, G, npre, skip):
    E=vROLE+40; O=vROLE; GA=vGA
    for _ in range(npre): P.extend(G.pop(0))
    P.I(f"""s_mov_b32 s{sT4}, 0x05040100
s_mov_b32 s{sT5}, 0x07060302
v_add_u32 v2, {L_KI}, v{vT16}
s_waitcnt lgkmcnt(0)
s_barrier""")
    for j in range(11): P.I(f"ds_read_b32 v{E+j}, v{GA+j}")
    k=0
    for c in (3,2,1,0):
        for ch in range(2):
            o=O+4*k; k+=1
            for i in range(4):
                j=3-c+2*i
                P.I(f"v_perm_b32 v{o+i}, v{E+j+1}, v{E+j}, s{sT4+ch}")
            P.I(f"ds_write_b128 v2, {vr(o,4)} offset:{(ch*4+c)*KIP}")
            if G and k>skip: P.extend(G.pop(0))
    for g in G: P.extend(g)

def check_tags(P, diag):
    P.I(f"s_mov_b32 s{sCNT}, 0\nL_ka_chk:")
    P.I(f"""@wait poll
v_min_u32 v2, s{sTAG}, v{vPOLL+27}
v_max_u32 v3, s{sTAG}, v{vPOLL+27}
v_min3_u32 v2, v2, v{vPOLL+15}, v{vPOLL+3}
v_max3_u32 v3, v3, v{vPOLL+15}, v{vPOLL+3}
v_min3_u32 v2, v2, v{vPOLL+19}, v{vPOLL+7}
v_max3_u32 v3, v3, v{vPOLL+19}, v{vPOLL+7}
v_min3_u32 v2, v2, v{vPOLL+23}, v{vPOLL+11}
v_max3_u32 v3, v3, v{vPOLL+23}, v{vPOLL+11}
v_cmp_ne_u32 vcc, v2, v3
s_cbranch_vccnz L_ka_retry
L_ka_ok:""")
    if diag: P.I(f"s_add_u32 s{sCNT}, s{sCNT}, 1\nv_writelane_b32 v255, s{sCNT}, 31")
def retry_block(P, loc=0):
    P.I(f"L_ka_retry:\ns_add_u32 s{sCNT}, s{sCNT}, 1\ns_cmp_gt_u32 s{sCNT}, 20000\ns_waitcnt lgkmcnt(0)\ns_cbranch_scc1 L_ka_ok")
    P.extend(writeback(sCNT,'L_ka_nowb',loc))
    poll_loads(P)
    P.I("s_waitcnt vmcnt(0)\ns_branch L_ka_chk")

def make_h(P):
    Q=vPOLL; mc=Q+24; mw=Q+28; Mm=vROLE; Mr=vROLE+8; O=vROLE+16
    dpp=" row_mask:0xf bank_mask:0xf"
    chain=[]
    for m in ("quad_perm:[1,0,3,2]","quad_perm:[2,3,0,1]","row_half_mirror","row_mirror"):
        chain.append([f"v_add_f32_dpp v{r}, v{r}, v{r} {m}{dpp}" for r in (mc,mc+1)])
    chain+=[[f"v_cvt_pk_bf16_f32 v{mc}, v{mc}, v{mc+1}", f"v_mov_b32 v{mc+1}, v{mc}"],
            [f"v_permlane16_swap_b32 v{mc}, v{mc+1}", f"v_lshlrev_b32 v{vMOD}, 16, v{mc}", f"v_and_b32 v{vMOD+1}, 0xffff0000, v{mc}", f"v_lshlrev_b32 v{mc}, 16, v{mc+1}", f"v_and_b32 v{mc+1}, 0xffff0000, v{mc+1}"],
            [f"v_add_f32 v{mc}, 1.0, v{mc}", f"v_add_f32 v{mc+1}, 1.0, v{mc+1}", f"v_cvt_pk_bf16_f32 v{mc}, v{mc}, v{mc+1}"],
            [f"v_lshlrev_b32 v{vMOD+2}, 16, v{mc}", f"v_and_b32 v{vMOD+3}, 0xffff0000, v{mc}"]]
    for r in range(8):
        st=Q+12+4*(r//3)+r%3; xr=Q+4*(r//3)+r%3
        P.extend(chain[r])
        P.I(f"""v_and_b32 v{Mr+r}, 0xffff0000, v{st}
v_lshlrev_b32 v{Mm+r}, 16, v{st}
v_rcp_f32 v{Mr+r}, v{Mr+r}
v_lshlrev_b32 v{vXF+r}, 16, v{xr}
v_and_b32 v{vXF+8+r}, 0xffff0000, v{xr}""")
    P.I(f"v_add_u32 v2, {L_H+480}, v{vT16}")
    for ch in range(2):
        sel=f"op_sel:[0,{ch},{ch}] op_sel_hi:[1,{ch},{ch}]"
        for r in range(0,8,2): P.I(f"v_pk_add_f32 {vr(vHF+8*ch+r,2)}, {vr(vXF+8*ch+r,2)}, {vr(Mm+r,2)} neg_lo:[0,1] neg_hi:[0,1]")
        for r in range(0,8,2): P.I(f"v_pk_mul_f32 {vr(vHF+8*ch+r,2)}, {vr(vHF+8*ch+r,2)}, {vr(Mr+r,2)}")
        for r in range(0,8,2): P.I(f"v_pk_fma_f32 {vr(vHF+8*ch+r,2)}, {vr(vHF+8*ch+r,2)}, {vr(vMOD+2,2)}, {vr(vMOD,2)} {sel}")
        for r in range(0,8,2): P.I(f"v_cvt_pk_bf16_f32 v{O+4*ch+r//2}, v{vHF+8*ch+r}, v{vHF+8*ch+r+1}")
        P.I(f"ds_write_b128 v2, {vr(O+4*ch,4)} offset:{ch*HP}")

def gb_store(P, ST):
    P.I(f"""s_cmp_lg_u32 s{sW}, 2
s_cbranch_scc1 L_nogb
s_lshl3_add_u32 s{sT2}, s{sP}, {WS_GBF}
s_mov_b64 exec, 1
buffer_store_dwordx2 {vr(vMOD+6,2)}, v{vL16}, {sp(rWS,4)}, s{sT2} offen {ST}
s_mov_b64 exec, -1
L_nogb:""")
def w_side(ST):
    RAW=vPOLL; WP=vPOLL+16; GB=[48,64,80,96]; U=112; S1,S2=vHF,vHF+2
    rd=[]; main=[]; sums=[]
    for k in range(4):
        g=GB[k]
        rd.append([f"ds_read_b64_tr_b16 {vr(RAW+4*k+2*hf,2)}, v{vWRA} offset:{k*4096+hf*512}" for hf in range(2)]
                 +[f"ds_read_b128 {vr(g+4*q,4)}, v{vGR} offset:{k*64+q*16}" for q in range(2)])
        L=[]
        for d in range(4):
            u=U+8*k+2*d
            L+=[f"v_lshlrev_b32 v{u}, 16, v{RAW+4*k+d}", f"v_and_b32 v{u+1}, 0xffff0000, v{RAW+4*k+d}",
                f"v_mul_f32 v{g+2*d}, v{u}, v{g+2*d}", f"v_mul_f32 v{g+2*d+1}, v{u+1}, v{g+2*d+1}", f"v_cvt_pk_bf16_f32 v{WP+4*k+d}, v{g+2*d}, v{g+2*d+1}"]
        L.append((f"buffer_store_dwordx4 {vr(WP+4*k,4)}, v{vL16}, {sp(rWJ,4)}, s{sWO} offen {ST}",'wpst'))
        if k<3: L.append(f"s_add_u32 s{sWO}, s{sWO}, s{sWST}")
        main.append(L)
        for i in range(8):
            e=i&1; first=(k==0 and i<2)
            sums.append(f"v_mul_f32 v{S2+e}, v{U+8*k+i}, v{g+8+i}" if first else f"v_fmac_f32 v{S2+e}, v{U+8*k+i}, v{g+8+i}")
            if k==0 and i<2: continue
            sums.append(f"v_add_f32 v{S1+e}, v{g+e}, v{g+i}" if (k==0 and i<4) else f"v_add_f32 v{S1+e}, v{S1+e}, v{g+i}")
    rdsb=[f"ds_read_b128 {vr(GB[k]+8+4*q,4)}, v{vGR} offset:{256+k*64+q*16}" for k in range(4) for q in range(2)]
    tail=[f"v_add_f32 v{S1}, v{S1}, v{S1+1}", f"v_add_f32 v{S2}, v{S2}, v{S2+1}", f"v_mov_b32 v{S1+1}, v{S1}", f"v_mov_b32 v{S2+1}, v{S2}",
          f"v_lshlrev_b32 v2, 2, v{vLANE}", "s_nop 0",
          f"v_permlane32_swap_b32 v{S1}, v{S1+1}", f"v_permlane32_swap_b32 v{S2}, v{S2+1}",
          f"v_add_f32 v{S1}, v{S1}, v{S1+1}", f"v_add_f32 v{S2}, v{S2}, v{S2+1}", f"v_cvt_pk_bf16_f32 v{S1}, v{S1}, v{S2}",
          "s_mov_b32 exec_hi, 0", (f"buffer_store_dword v{S1}, v2, {sp(rWJ,4)}, s{sWA} offen {ST}",'auxst'), "s_mov_b32 exec_hi, -1"]
    return rd,main,rdsb,sums,tail

def conv_reads(vi):
    b=vi&1; o=192-64*vi
    U=[(f"ds_read_b128 {ar(64+32*b+4*k,4)}, v{vUA} offset:{512*k+o}",f"c{vi}_{k}") for k in range(8)]
    K=[[(f"ds_read_b64 {ar(32*b+4*k+2*hf,2)}, v{vKA} offset:{512*(7-k)+o+8*hf}",f"c{vi}_{k}") for hf in range(2)] for k in range(8)]
    return U,K
def conv(P, ST, cfg, midbar, wdj):
    ACC=16
    order=sorted([(u,s) for u in range(8) for s in range(8) if u+s<8], key=lambda t:(t[1],t[0]))
    rd,main,rdsb,sums,tail=w_side(ST)
    chk,work,bc=poll2_work(ST)
    Q=Prog(); gb_store(Q,ST); gbs=[[x.text for x in Q.ins]]
    P.extend(conv_reads(0)[0])
    first=set(); side=[]; QAT=cfg.get('QAT',20); LV=cfg.get('LV',1); FV=cfg.get('FV',LV); SL=cfg.get('SUMLATE',0)
    for vi in range(4):
        b=vi&1; nxt=[]
        if vi==LV: nxt+=[(x,'wtr') for r in rd[:2] for x in r]+wdj[:4]
        if vi<3:
            U,K=conv_reads(vi+1); nxt+=[y for k in range(8) for y in [U[k]]+K[k]]
        if vi==0: side+=work
        if vi==1 and LV>1: side+=bc+gbs
        if vi==LV: side+=['@wait wtr']+rd[2]+rd[3]+main[0]+wdj[4:]+main[1]+([] if SL else rdsb)+main[2]+main[3]+(bc+gbs if LV==1 else [])+([] if SL else sums)
        waits = {0:0,8:1,15:7} if vi==0 else {0:7}
        start = QAT+1 if vi==0 else 8 if vi==LV else 0
        for n,(u,s) in enumerate(order if (vi==0 or not cfg.get('ORD',1)) else sorted(order,key=lambda t:(t[0]+t[1],t[0]))):
            t=u+s; a=vr(ACC+4*t,4)
            if n in waits: P.I(f"@wait c{vi}_{waits[n]}")
            P.I(f"v_mfma_f32_16x16x32_bf16 {a}, {ar(32*b+4*u,4)}, {ar(64+32*b+4*s,4)}, {a if t in first else 0}"); first.add(t)
            slots=2-((n+1) in waits or n==35)
            if vi==0 and FV==0 and n==0: P.extend(midbar); continue
            if vi in (LV,FV) and n==0:
                P.I("@wait"+(" wr dr" if vi==LV else "")+(" wdst" if vi==FV else "")+"\ns_waitcnt lgkmcnt(0)\ns_barrier")
                if vi==FV: P.extend(midbar)
                continue
            if vi==0 and n==QAT: P.extend(chk); continue
            if nxt:
                P.extend([nxt.pop(0)]); slots-=1
                if n<start and slots and nxt: P.extend([nxt.pop(0)]); slots-=1
            while slots>0 and side and n>=start:
                x=side.pop(0)
                if isinstance(x,list): P.extend(x); slots=0
                else: P.extend([x]); slots-=1
        assert not nxt, len(nxt)
        if vi==0: P.extend(side); print('  conv step 0 spill',len(side)); side=[]
        print('  conv step',vi,'side backlog',len(side))
    assert not any(isinstance(x,list) for x in side)
    if SL: return ACC,side,rdsb+sums+tail
    return ACC,side+tail,[]

def conv_epilogue(P, ACC, tail, XST, pre=[], prebar=[], postbar=[], tmax=99, after=[]):
    tail=list(tail); P.extend(pre)
    for t in range(8):
        P.I(f"ds_write_b128 v{vYW}, {vr(ACC+4*t,4)} offset:{1280*t}")
        k=min(max(5,-(-len(tail)//(8-t))),len(tail),tmax)
        if len(tail)-k<4: k=len(tail)
        P.extend(tail[:k]); tail=tail[k:]
    P.extend(prebar)
    P.I(f"s_mul_i32 s{sT0}, s{sP}, {12288 if XIN else 128}\ns_add_u32 s{sT0}, s{sT0}, {WS_XG if XIN else WS_X1B}\ns_waitcnt lgkmcnt(0)\ns_barrier")
    Y=16
    for ch in range(2):
        for g in range(2):
            for vh in range(2):
                P.I(f"ds_read_b128 {vr(Y+16*ch+8*vh+4*g,4)}, v{vYR} offset:{L_Y+(2*ch+vh)*10240+320*g}")
    P.extend(postbar)
    for ch in range(2):
        y=Y+16*ch
        for r in range(0,8,2): P.I(f"v_pk_add_f32 {vr(y+r,2)}, {vr(y+r,2)}, {vr(y+8+r,2)}")
        for r in range(0,8,2): P.I(f"v_pk_fma_f32 {vr(y+r,2)}, {vr(y+r,2)}, {vr(vMOD+4,2)}, {vr(vXF+8*ch+r,2)} op_sel:[0,{ch},0] op_sel_hi:[1,{ch},1]")
        for r in range(0,8,2): P.I(f"v_cvt_pk_bf16_f32 v{4+4*ch+r//2}, v{y+r}, v{y+r+1}")
        P.I(f"buffer_store_dwordx4 {vr(4+4*ch,4)}, v{vXO}, {sp(rWS,4)}, s{sT0} offen offset:{64*ch} {XST}", tag='x1st')
    print('  after the x1 stores:', len(tail), '+', len(after))
    P.extend(tail); P.extend(after)

def body(P, n, diag, cfg, H):
    NT=cfg.get('NT','nt'); ST='sc1'
    entry(P,n,diag,256,cfg.get('PERM',[2,3,0,5,1,7,4,6] if cfg.get('QSYNC',0) else None)); role_addr(P,cfg.get('LOC',0))
    P.I("s_waitcnt lgkmcnt(0)"); stamp0_commit(P,diag)
    if cfg.get('WSB',0): P.I(f"s_add_u32 s{sWS}, s{sWS}, {cfg['WSB']<<20}\ns_addc_u32 s{sWS+1}, s{sWS+1}, 0")
    po=cfg.get('PORD',0); m2=cfg.get('M2AT',0); global JW
    assert not (po and cfg.get('CUT',0)) and not (m2 and cfg.get('CUT',0))
    JW=(8 if po else 0)
    early_loads(P,NT,not po)
    role_loads(P,cfg.get('XNT',NT),0)
    if po: param_loads(P,NT)
    table_loads(P); setup(P,False,cfg.get('X',''),cfg.get('WMAP',0) or cfg.get('QSYNC',0)); P.extend(H['setup'])
    if m2==0: role_loads(P,NT,1)
    P.I(f"s_waitcnt lgkmcnt(0)\ns_or_b32 s{sTAG}, s{sTAG}, 0x7f800000\ns_add_u32 s{sTAG}, s{sTAG}, 1\ns_or_b32 s{sTAG}, s{sTAG}, 0x7f800000\ns_barrier")
    stamp(P,1,diag)
    H['idle'](P)
    P.I("@forget "+" ".join(str(r) for r in list(range(vPAR,vPAR+6))+[vROLE]+list(range(vTAB,vTAB+8))))
    cut=cfg.get('CUT',0)
    if cut:
        P.I(f"s_waitcnt vmcnt(10)\ns_cmp_lg_u32 s{sW}, 2\ns_cbranch_scc1 L_f1\ns_waitcnt vmcnt(6)\nL_f1:")
        P.I("@forget "+" ".join(str(r) for r in list(range(vPAR,vPAR+6))+[vROLE]+list(range(vTAB,vTAB+8))))
        factor_gen(P,0,cut)
        stamp(P,10,diag)
        P.I(f"s_cmp_eq_u32 s{sW}, 3\ns_cbranch_scc1 L_xje")
    x_jobs(P,'sc1',diag,cfg.get('LOC',0))
    P.I("@forget "+" ".join(str(r) for r in list(range(vPAR,vPAR+6))+[vROLE]+list(range(vTAB,vTAB+8))))
    stamp(P,3,diag)
    da,wa=cfg.get('DAT',0),cfg.get('WAT',1)
    def raws(k):
        if da==k: raw_wd_loads(P,cfg.get('DNT',NT))
        if wa==k: raw_w_loads(P,NT)
    if m2==1: role_loads(P,NT,1)
    raws(0)
    factor_gen(P,cut)
    stamp(P,4,diag)
    if m2==2: role_loads(P,NT,1)
    raws(1)
    G=poll_groups((lambda Q: raw_w_loads(Q,NT)) if wa==3 else None, cfg.get('XLP','') if cfg.get('LOC',0)==1 else 'sc1', cfg.get('XFIRST',0))
    for _ in range(cfg.get('PEARLY',0)): P.extend(G.pop(0))
    table_unpack(P)
    npm=cfg.get('PMID',0); mid=G[:npm]; G=G[npm:]
    kgen(P,diag,mid,cfg.get('PMSKIP',0),cfg.get('PMORD',0)); stamp(P,5,diag)
    k_image(P,G,min(len(G),cfg.get('PPRE',5)),cfg.get('PSKIP',0))
    raws(2)
    wdj=[]
    if da<2: wd_job(P,ST)
    else:
        Q=Prog(); wd_job(Q,ST); wdj=[(x.text,x.tag) for x in Q.ins[1:]]
    stamp(P,6,diag)
    P.I("s_waitcnt lgkmcnt(0)\ns_barrier")
    for k in conv_reads(0)[1]: P.extend(k)
    check_tags(P,diag); stamp(P,11,diag)
    poll2_loads(P); raws(4)
    make_h(P)
    if cfg.get('FV',1)==0: P.I("@wait wdst")
    P.I("s_waitcnt lgkmcnt(0)\ns_barrier")
    stamp(P,7,diag)
    acc,tail,after=conv(P,ST,cfg,H['midbar'] if da<2 else [],wdj); stamp(P,8,diag)
    conv_epilogue(P,acc,tail,ST,H.get('pre',[]),H.get('prebar',[]),H.get('postbar',[]),cfg.get('TMAX',99),after)
```

```python
from prog import *
from layout import *
import struct
def f32(x): return struct.unpack('<I',struct.pack('<f',x))[0]
LOG2E = 0x3fb8aa3b
XIN = 0
sX,sARE,sAIM,sBRE,sBIM,sCRE,sCIM,sLDT,sDSK,sBX,sWG,sWU,sWD,sC,sWM,sOUT,sDBG,sWS = [8+2*i for i in range(18)]
rR,rWG,rWU,rWD,rOUT,rWS,rWJ = 44,48,52,56,60,64,68
sXCD,sIDX,sP,sW,sTAG,sLD,sDS = 72,73,74,75,76,77,78
sT0,sT1,sT2,sT3,sT4,sT5 = 80,81,82,83,84,85
sWO,sWST,sWA = 86,87,88
sCG,sKE,sFS,sCNT = 26,27,97,98
def sp(a,n=2): return f"s[{a}:{a+n-1}]"
def vr(a,n): return f"v[{a}:{a+n-1}]"
def ar(a,n): return f"a[{a}:{a+n-1}]"
def mksrd(d,b,size):
    return [f"s_mov_b32 s{d}, s{b}", f"s_and_b32 s{d+1}, s{b+1}, 0xffff", f"s_mov_b32 s{d+2}, {size}", f"s_mov_b32 s{d+3}, 0x20000"]
vLANE = 1
vT16,vMC,vMW = 12,13,14
vPAR = 16
vTAB = 24
vRA = 32
vROLE = 40
vFG = 120
vPOLL = 160
vPOL2 = 152
vXF = 192
vHF = 208
vKA,vUA,vYW,vYR,vWRA,vXO,vGR,vL16 = 224,225,226,227,228,229,230,231
vMOD = 232
vKF,vKC,vGW,vSEL1,vSEL2 = 240,241,242,243,244

ONLY=None
def stamp(P, n, diag):
    if diag and (ONLY is None or n in ONLY): P.I(f"s_memrealtime s[4:5]\ns_memtime s[100:101]\ns_waitcnt lgkmcnt(0)\nv_writelane_b32 v255, s4, {n}\nv_writelane_b32 v255, s100, {32+n}")
def stamp0_issue(P, diag):
    if diag: P.I("v_mov_b32 v255, 0\ns_memrealtime s[4:5]\ns_memtime s[100:101]")
def stamp0_commit(P, diag):
    if diag: P.I("v_writelane_b32 v255, s4, 0\nv_writelane_b32 v255, s100, 32")
def stamp_out(P, kidx, diag):
    if diag:
        P.I(f"""s_lshl_b32 s4, s2, 10
s_add_u32 s4, s4, {WS_STAMP + kidx*0x40000}
v_lshlrev_b32 v2, 2, v0
buffer_store_dword v255, v2, {sp(rWS,4)}, s4 offen""")

def bf16_round(l):
    u=f32(float(l)); u=(u+0x7fff+((u>>16)&1))&0xffff0000
    return int(struct.unpack('<f',struct.pack('<I',u))[0])
def table_words():
    rec=[]
    for T in range(256):
        a=[]
        for j in range(11):
            lag=2047-8*T-j
            if lag<0: a.append(L_CZ); continue
            lam=bf16_round(lag); b=(lam>>3)&15; i=HI.index(lam-8*b)
            a.append(L_C+i*CP+4*b)
        a.append(0)
        w=T>>6; lane=T&63; ch=w>>1; vh=w&1
        ka_=L_KI+ch*4*KIP+(lane&3)*KIP+2*(2044-16)-3584-192-256*vh+(lane&48)-2*(lane&12)
        ua_=L_H+ch*HP+448-192-256*vh+32*(lane&15)+(lane&48)
        rec.append([a[2*k]|(a[2*k+1]<<16) for k in range(6)]+[ka_,ua_])
    return [rec[T][4*q+k] for q in range(2) for T in range(256) for k in range(4)]

def entry(P, name, diag, nlines, perm):
    P.I(f".globl {name}\n.p2align 8\n.type {name},@function\n{name}:\n@reset")
    ng=(nlines+15)//16; assert ng&(ng-1)==0 and ng<=32
    P.I(f"""s_cmp_ge_u32 s2, 256
s_cbranch_scc1 L_{name}_exit
s_load_dwordx16 s[8:23], s[0:1], 0
s_load_dwordx16 s[24:39], s[0:1], 64
s_load_dwordx4 s[40:43], s[0:1], 128
s_getpc_b64 s[6:7]
L_pc:
v_lshrrev_b32 v2, 6, v0
v_and_b32 v{vLANE}, 63, v0
s_lshr_b32 s{sIDX}, s2, 3
v_readfirstlane_b32 s{sW}, v2
s_and_b32 s{sT0}, s{sIDX}, {ng-1}
s_lshl_b32 s{sT0}, s{sT0}, 11
v_lshl_add_u32 v3, v{vLANE}, 5, s{sT0}
s_cmp_lg_u32 s{sW}, 3
s_cbranch_scc1 L_nopf
global_load_dword v15, v3, s[6:7]
L_nopf:""")
    stamp0_issue(P,diag)
    P.I(f"s_and_b32 s{sXCD}, s2, 7")
    if perm: P.I(f"s_lshl_b32 s{sXCD}, s{sXCD}, 2\ns_lshr_b32 s{sXCD}, {hex(sum(v<<(4*k) for k,v in enumerate(perm)))}, s{sXCD}\ns_and_b32 s{sXCD}, s{sXCD}, 7")
    P.I(f"""s_lshl_b32 s{sP}, s{sXCD}, 5
s_add_u32 s{sP}, s{sP}, s{sIDX}""")

def role_addr(P, loc=0):
    P.I(f"""s_cmp_eq_u32 s{sW}, 0
s_cselect_b32 s{sT3}, 8, 1
s_lshl_b32 s{sT2}, s{sT3}, 10
s_lshl_b32 s{sT3}, s{sT3}, 7
s_and_b32 s{sT4}, s{sP}, 7
s_lshl_b32 s{sT4}, s{sT4}, 7""")
    if loc: P.I(f"s_lshl_b32 s{sT0}, s{sIDX}, 9\ns_add_u32 s{sT0}, s{sT0}, s{sXCD}\ns_lshl_b32 s{sT0}, s{sT0}, 7")
    else: P.I(f"s_lshr_b32 s{sT0}, s{sP}, 3\ns_lshl_b32 s{sT0}, s{sT0}, 16\ns_add_u32 s{sT0}, s{sT0}, s{sT4}")
    P.I(f"""s_lshl_b32 s{sT1}, s{sP}, 13
s_cmp_eq_u32 s{sW}, 0
s_cselect_b32 s{sT0}, s{sT0}, s{sT1}
s_and_b32 s{sT5}, s{sW}, 1
s_sub_u32 s92, 7, s{sT5}
s_lshr_b32 s{sT1}, s{sP}, s92
s_lshl1_add_u32 s{sT1}, s{sT5}, s{sT1}
s_lshl_b32 s{sT1}, s{sT1}, 10
s_add_u32 s{sT4}, s{sT4}, s{sT1}
s_and_b32 s{sT1}, s{sP}, 0xf8
s_add_u32 s92, s{sT5}, 2
s_lshl_b32 s{sT1}, s{sT1}, s92
s_and_b32 s{sT5}, s{sT1}, 511
s_mul_i32 s{sT1}, s{sT5}, 6144
s_add_u32 s{sT1}, s{sT1}, s{sT4}
s_mov_b32 s{sT4}, 3145728
s_cmp_lt_u32 s{sW}, 2
s_cselect_b32 s94, s{sT0}, s{sT1}
s_cselect_b32 s{sT2}, s{sT2}, 6144
s_cselect_b32 s79, s{sT3}, {8*6144}
s_cselect_b32 s{rR+2}, 2097152, s{sT4}
s_mov_b32 s{rR+3}, 0x20000
v_lshrrev_b32 v3, 3, v{vLANE}
v_mul_u32_u24 v3, s{sT2}, v3
v_lshrrev_b32 v4, 2, v{vLANE}
v_and_b32 v4, 4, v4
v_and_b32 v5, 7, v{vLANE}
v_xor_b32 v4, v4, v5
v_lshl_add_u32 v22, v4, 4, v3
v_xor_b32 v23, 32, v22
s_lshl_b32 s3, s{sW}, 13
s_add_u32 s3, s3, {L_RR}
v_add_u32 v5, s{sT5}, v{vLANE}
v_and_b32 v5, 511, v5
v_lshlrev_b32 v5, 1, v5
s_lshl_b32 s{sT5}, s{sP}, 9
v_lshl_add_u32 v2, v0, 1, s{sT5}""")
    for i in range(6): P.I(f"v_mov_b32 v{vPAR+i}, 0")
    P.I(f"v_mov_b32 v{vROLE}, 0\ns_lshl_b32 s93, s{sP}, 2")
def param_loads(P, NT):
    P.extend([f"global_load_short_d16_hi v{vPAR+i}, v2, {sp(b)} {NT}" for i,b in enumerate((sARE,sAIM,sBRE,sBIM,sCRE,sCIM))])
def early_loads(P, NT, pfirst):
    if pfirst: param_loads(P,NT)
    P.I(f"""s_load_dword s{sTAG}, {sp(sWS)}, {WS_EPOCH}
s_load_dword s{sLD}, {sp(sLDT)}, s93
s_load_dword s{sDS}, {sp(sDSK)}, s93
s_cmp_lt_u32 s{sW}, 2
s_cselect_b64 {sp(rR)}, {sp(sX)}, {sp(sWM)}
s_and_b32 s{rR+1}, s{rR+1}, 0xffff""")
    P.I(f"global_load_short_d16_hi v{vROLE}, v5, {sp(sC)}")
    P.I(f"""s_add_u32 s6, s6, L_table-L_pc+4096
s_addc_u32 s7, s7, 0
v_lshlrev_b32 v{vT16}, 4, v0""")
def role_loads(P, XNT, late):
    lbl='L_rlb' if late else 'L_rla'
    P.I(f"s_cmp_eq_u32 s{sW}, 3\ns_cbranch_scc{0 if late else 1} {lbl}")
    for u in range(8):
        if u==4 and not late: P.I(f"s_cmp_eq_u32 s{sW}, 2\ns_cbranch_scc1 {lbl}")
        P.I(f"s_add_u32 m0, s3, {u*1024}")
        P.I(f"s_add_u32 s94, s94, s79" if u else "s_nop 0")
        P.I(f"buffer_load_dwordx4 v{22+(u&1)}, {sp(rR,4)}, s94 offen {XNT} lds", tag='rr')
    P.I(f"{lbl}:")
def table_loads(P):
    P.I(f"global_load_dwordx4 {vr(vTAB,4)}, v{vT16}, s[6:7] offset:-4096\nglobal_load_dwordx4 {vr(vTAB+4,4)}, v{vT16}, s[6:7]")

def setup(P, nowd=False, X='', wmap=0):
    P.extend(mksrd(rWS,sWS,WS_USED))
    P.I(f"s_cmp_lt_u32 s{sIDX}, 28\ns_cselect_b32 s{sT0}, 1835008, 0\ns_cselect_b32 s{sT1}, {WS_USED}, 0")
    for r,b in ((rWG,sWG),(rWU,sWU),(rWD,sWD)): P.extend(mksrd(r,b,1835008 if (nowd and r==rWD) else f"s{sT0}"))
    P.extend(mksrd(rWJ,sWS,f"s{sT1}"))
    if 'w' in X: P.I(f"s_mov_b32 s{rWG+2}, 0\ns_mov_b32 s{rWU+2}, 0")
    if 'm' in X: P.I(f"s_mov_b32 s{rR+2}, 0")
    if 'd' in X: P.I(f"s_mov_b32 s{rWD+2}, 0")
    if 's' in X: P.I(f"s_min_u32 s{rWJ+2}, s{rWJ+2}, {WS_XG}")
    if wmap: P.I(f"s_mov_b32 s{sCG}, s{sIDX}\ns_mov_b32 s{sKE}, s{sXCD}")
    else: P.I(f"""s_and_b32 s{sCG}, s{sXCD}, 3
s_mul_i32 s{sCG}, s{sCG}, 7
s_lshr_b32 s{sT0}, s{sIDX}, 2
s_add_u32 s{sCG}, s{sCG}, s{sT0}
s_and_b32 s{sKE}, s{sXCD}, 4
s_and_b32 s{sT0}, s{sIDX}, 3
s_add_u32 s{sKE}, s{sKE}, s{sT0}""")
    P.I(f"""s_lshl2_add_u32 s{sT0}, s{sCG}, s{sW}
s_mul_i32 s{sT1}, s{sT0}, 147
s_lshr_b32 s{sT1}, s{sT1}, 10
s_mul_i32 s{sT2}, s{sT1}, 7
s_sub_u32 s{sT0}, s{sT0}, s{sT2}
s_mul_i32 s{sT1}, s{sT1}, 231
s_cmp_lt_u32 s{sT0}, {G1}
s_cselect_b32 s{sT2}, {G1}, 1
s_cselect_b32 s{sT3}, 1, 33
s_mul_i32 s{sT0}, s{sT0}, s{sT3}
s_add_u32 s{sT0}, s{sT0}, s{sT1}
s_lshl_b32 s{sT0}, s{sT0}, 10
s_add_u32 s{sT0}, s{sT0}, {WS_WPF}
s_lshl_b32 s{sWST}, s{sT2}, 10
s_mul_i32 s{sT3}, s{sWST}, s{sKE}
s_lshl2_add_u32 s{sWO}, s{sT3}, s{sT0}
s_lshl_b32 s{sT2}, s{sT2}, 15
s_add_u32 s{sWA}, s{sT2}, s{sT0}
s_lshl_b32 s{sT0}, s{sKE}, 7
s_add_u32 s{sWA}, s{sWA}, s{sT0}""")
    L=vLANE
    P.I(f"""v_lshlrev_b32 v{vL16}, 4, v{L}
v_and_b32 v2, 15, v{L}
v_and_b32 v3, 48, v{L}
v_lshrrev_b32 v4, 4, v{L}
v_lshrrev_b32 v5, 5, v{L}
v_and_b32 v6, 3, v{L}
s_mul_i32 s{sT2}, s{sW}, 10240
s_add_u32 s{sT2}, s{sT2}, {L_Y}
v_mul_u32_u24 v7, 320, v4
v_lshl_add_u32 v7, v2, 4, v7
v_add_u32 v{vYW}, s{sT2}, v7
v_lshrrev_b32 v7, 5, v0
v_mul_u32_u24 v7, 1280, v7
v_and_b32 v8, 1, v0
v_mul_u32_u24 v9, 640, v8
v_bfe_u32 v10, v0, 1, 4
v_lshl_add_u32 v9, v10, 4, v9
v_add_u32 v{vYR}, v7, v9
v_lshrrev_b32 v7, 2, v0
{f"s_and_b32 s{sT2}, s{sP}, 7" if XIN else ""}
{f"v_xor_b32 v7, s{sT2}, v7" if XIN else ""}
v_lshlrev_b32 v7, {7 if XIN else 15}, v7
v_lshl_add_u32 v{vXO}, v6, 4, v7
v_mul_u32_u24 v7, {FP}, v2
v_add_u32 v7, v7, v3
v_add_u32 v{vKF}, {L_F}, v7
v_mul_u32_u24 v7, {CP}, v2
s_mul_i32 s{sT2}, s{sW}, {16*CP}
v_add3_u32 v{vKC}, v7, v3, s{sT2}
v_bfe_u32 v7, v{L}, 2, 2
v_cvt_f32_u32 v{vSEL2}, v5
v_and_b32 v9, 31, v{L}
v_lshlrev_b32 v{vMC}, 12, v9
v_and_b32 v9, 8, v{L}
v_lshl_add_u32 v9, v9, 1, v2
v_lshlrev_b32 v{vSEL1}, 12, v9
v_lshl_add_u32 v9, v5, 3, v6
v_bfe_u32 v10, v{L}, 2, 3
v_lshlrev_b32 v11, 4, v10
v_lshl_add_u32 v{vMW}, v9, 12, v11
s_lshl_b32 s{sT2}, s{sW}, 6
s_add_u32 s{sT2}, s{sT2}, {L_GT+256}
v_lshl_add_u32 v10, v10, 3, s{sT2}
v_lshlrev_b32 v11, 8, v5
v_sub_u32 v{vGW}, v10, v11
v_lshlrev_b32 v10, 5, v5
v_add_u32 v{vGR}, {L_GT}, v10
v_and_b32 v9, 1, v4
v_lshl_add_u32 v10, v9, 1, v5
v_lshl_add_u32 v10, v10, 3, v7
v_lshl_add_u32 v10, v10, 1, v9
v_bfe_u32 v11, v{L}, 3, 1
v_lshl_add_u32 v10, v10, 1, v11
v_xor_b32 v10, s{sW}, v10
v_lshl_add_u32 v10, v10, 1, v8
v_bfe_u32 v11, v{L}, 1, 1
v_lshl_add_u32 v10, v10, 1, v11
v_lshlrev_b32 v10, 3, v10
v_add_u32 v{vWRA}, {L_WR}, v10""")
    P.I(f"""v_mul_u32_u24 v7, {HP}, v5
v_and_b32 v9, 31, v{L}
v_min_u32 v9, 29, v9
v_lshl_add_u32 v7, v9, 4, v7
v_add_u32 v7, {L_H}, v7
v_cmp_gt_u32 vcc, 64, v0
v_mov_b32 v9, {L_CZ}
v_mov_b32 v{vFG}, 0
v_cndmask_b32 v7, v9, v7, vcc
v_mov_b32 v{vFG+1}, 0
v_mov_b32 v{vFG+2}, 0
v_mov_b32 v{vFG+3}, 0
ds_write_b128 v7, {vr(vFG,4)}""")
    A0=vRA
    P.I(f"""v_lshrrev_b32 v2, 3, v{L}
v_and_b32 v3, 2, v2
v_mul_u32_u24 v2, 3584, v2
v_and_b32 v4, 7, v{L}
v_xor_b32 v3, v3, v4
v_xor_b32 v4, 4, v3
v_lshl_add_u32 v{A0+2}, v3, 4, v2
v_lshl_add_u32 v{A0+3}, v4, 4, v2
v_and_b32 v8, 1, v{L}
v_bfe_u32 v7, v{L}, 1, 3
v_mul_u32_u24 v7, {KIP}, v7
v_lshl_add_u32 v7, v8, 4, v7
v_add_u32 v{A0+1}, {L_KI+4096}, v7
s_mul_i32 s{sT0}, s{sKE}, {64*3584}
s_lshl_b32 s{sT1}, s{sCG}, 7
s_add_u32 s90, s{sT0}, s{sT1}""")
    if not nowd: P.I(f"""v_lshrrev_b32 v2, 2, v{L}
v_and_b32 v5, 3, v{L}
v_lshlrev_b32 v5, 4, v5
v_lshl_add_u32 v{A0+4}, v2, 10, v5
v_lshrrev_b32 v6, 5, v{L}
v_and_b32 v7, 3, v2
v_lshl_add_u32 v6, v6, 3, v7
v_bfe_u32 v7, v{L}, 4, 1
v_lshl_add_u32 v6, v6, 1, v7
v_lshl_add_u32 v6, v6, 1, v8
v_bfe_u32 v7, v{L}, 1, 1
v_lshl_add_u32 v6, v6, 1, v7
v_lshlrev_b32 v6, 3, v6
v_add_u32 v{A0}, {L_DR}, v6
s_mul_i32 s{sFS}, s{sXCD}, 28
s_add_u32 s{sFS}, s{sFS}, s{sIDX}
s_lshr_b32 s{sT2}, s{sFS}, 1
s_lshl_b32 s{sT2}, s{sT2}, 14
s_and_b32 s{sT1}, s{sFS}, 1
s_lshl_b32 s{sT1}, s{sT1}, 9
s_add_u32 s91, s{sT2}, s{sT1}""")

def x_jobs(P, PUB, diag, loc=0):
    R=vROLE; G=vROLE+32; L=vLANE
    P.I(f"s_cmp_eq_u32 s{sW}, 2\ns_cbranch_scc1 L_rj2\ns_cmp_eq_u32 s{sW}, 1\ns_cbranch_scc1 L_rj1")
    P.I(f"""v_and_b32 v2, 7, v{L}
v_lshrrev_b32 v3, 3, v{L}
v_and_b32 v4, 2, v2
v_lshlrev_b32 v4, 1, v4
v_xor_b32 v4, v4, v3
v_lshlrev_b32 v4, 4, v4
v_lshl_add_u32 v4, v2, 7, v4
v_add_u32 v4, {L_RR}, v4
v_xor_b32 v5, 32, v4
v_mul_u32_u24 v3, {4*12288}, v3
v_lshl_add_u32 v2, v2, 4, v3
{f"s_mov_b32 s{sT0}, s{sXCD}" if loc else f"s_and_b32 s{sT0}, s{sP}, 7"}
s_mul_i32 s{sT0}, s{sT0}, {32*12288}
{f"s_lshl_b32 s{sT1}, s{sIDX}, 3" if loc else f"s_and_b32 s{sT1}, s{sP}, 0xf8"}
s_lshl4_add_u32 s{sT0}, s{sT1}, s{sT0}
s_add_u32 s{sT0}, s{sT0}, {WS_XG}""")
    for k in range(12): P.I(f"v_mov_b32 v{G+4*k+3}, s{sTAG}")
    P.I(f"s_waitcnt vmcnt({JW})"); stamp(P,2,diag)
    for r in range(8): P.I(f"ds_read_b128 {vr(R+4*r,4)}, v{4+(r&1)} offset:{r*1024}")
    for g in range(3):
        for j in range(4):
            k=g*4+j
            for e in range(3):
                if 3*g+e<8: P.I(f"v_mov_b32 v{G+4*k+e}, v{R+4*(3*g+e)+j}")
            P.I(f"s_add_u32 s{sT1}, s{sT0}, {j*12288+g*4096}")
            P.I(f"buffer_store_dwordx4 {vr(G+4*k,4)}, v2, {sp(rWS,4)}, s{sT1} offen {'' if loc==1 else PUB}")
    P.I(f"s_waitcnt vmcnt(12)\ns_branch L_xje\nL_rj1:")
    P.I(f"""v_mov_b32 v2, 0
v_mov_b32 v3, 0
v_mov_b32 v4, 0
v_mov_b32 v5, 0
s_mov_b32 s{sT1}, 0x3f803f80
v_add_u32 v6, {L_RR+8192}, v{vL16}
v_mul_u32_u24 v8, 96, v{L}
v_lshlrev_b32 v9, 12, v{L}
s_lshl4_add_u32 s{sT0}, s{sP}, {WS_SG}""")
    P.I(f"v_mov_b32 v{G+3}, s{sTAG}\ns_waitcnt vmcnt({JW})"); stamp(P,2,diag)
    for u in range(8): P.I(f"ds_read_b128 {vr(R+4*u,4)}, v6 offset:{u*1024}")
    for k in range(32):
        P.I(f"v_dot2c_f32_bf16 v{2+(k&1)}, s{sT1}, v{R+k}\nv_dot2c_f32_bf16 v{4+(k&1)}, v{R+k}, v{R+k}")
    P.I("v_add_f32 v2, v2, v3\nv_add_f32 v4, v4, v5")
    for m in ("quad_perm:[1,0,3,2]","quad_perm:[2,3,0,1]","row_half_mirror"):
        P.I(f"v_add_f32_dpp v2, v2, v2 {m} row_mask:0xf bank_mask:0xf\nv_add_f32_dpp v4, v4, v4 {m} row_mask:0xf bank_mask:0xf")
    P.I(f"""v_mul_f32 v2, 0x3b000000, v2
v_mul_f32 v4, 0x3b000000, v4
v_fma_f32 v4, -v2, v2, v4
v_max_f32 v4, 0, v4
v_cvt_pk_bf16_f32 v4, v4, v4
v_and_b32 v4, 0xffff0000, v4
v_add_f32 v4, 0x3727c5ac, v4
v_cvt_pk_bf16_f32 v4, v4, v4
v_and_b32 v4, 0xffff0000, v4
v_sqrt_f32 v4, v4
v_cvt_pk_bf16_f32 v2, v2, v4
ds_bpermute_b32 v{G}, v8, v2
ds_bpermute_b32 v{G+1}, v8, v2 offset:32
ds_bpermute_b32 v{G+2}, v8, v2 offset:64
s_waitcnt lgkmcnt(0)
s_mov_b64 exec, 7
buffer_store_dwordx4 {vr(G,4)}, v9, {sp(rWS,4)}, s{sT0} offen {PUB}
s_mov_b64 exec, -1
s_waitcnt vmcnt(1)
s_branch L_xje
L_rj2:""")
    mod_job(P,PUB,diag,1)
    P.I("s_waitcnt vmcnt(1)")
    P.I("L_xje:")
def mod_job(P, PUB, diag, nks):
    R=vROLE; L=vLANE; A0=vRA; w=nks+1
    assert L_MR%128==0
    P.I(f"""v_lshrrev_b32 v2, 4, v{L}
v_bfe_u32 v3, v{L}, 2, 2
v_lshl_add_u32 v4, v2, 3, v3
v_bfe_u32 v3, v{L}, 3, 1
v_lshl_add_u32 v4, v4, 1, v3
v_and_b32 v3, 1, v2
v_lshl_add_u32 v4, v4, 1, v3
v_and_b32 v3, 3, v{L}
v_lshl_add_u32 v4, v4, 2, v3
v_lshlrev_b32 v4, 3, v4
v_add_u32 v8, {L_RR+w*8192}, v4
v_xor_b32 v9, 32, v8
v_xor_b32 v10, 64, v8
v_xor_b32 v11, 96, v8
v_bfe_u32 v4, v{L}, 1, 2
v_lshl_add_u32 v4, v4, 2, v2
v_and_b32 v3, 1, v{L}
v_lshl_add_u32 v4, v4, 1, v3
v_lshlrev_b32 v{A0+5}, 4, v4
s_mov_b32 s{sT0}, {L_SC+(w-2)*128}
v_lshl_add_u32 v6, v{L}, 1, s{sT0}
v_and_b32 v7, 48, v{L}
v_add_u32 v7, s{sT0}, v7
s_lshl_b32 s{sT0}, s{sP}, 9
s_add_u32 s99, s{sT0}, {WS_MG+(w-2)*0x20000}
s_mov_b32 s{sT0}, 0xaaaaaaaa
s_mov_b32 s{sT1}, 0xaaaaaaaa
s_mov_b32 s{sT2}, 0xcccccccc
s_mov_b32 s{sT3}, 0xcccccccc
s_mov_b32 s{sT4}, 0xf0f0f0f0
s_mov_b32 s{sT5}, 0xf0f0f0f0""")
    if nks==1: P.I(f"s_waitcnt vmcnt({12 if JW else 6})")
    P.I(f"""v_mul_f32 v4, 0xbfb8aa3b, v{R}
v_exp_f32 v4, v4
v_add_f32 v4, 1.0, v4
v_rcp_f32 v4, v4
v_mul_f32 v2, v{R}, v4
v_cvt_pk_bf16_f32 v2, v2, v2
ds_write_b16 v6, v2""")
    for ks in range(nks): P.I(f"ds_read_b128 {vr(R+4*ks,4)}, v7 offset:{ks*64}")
    P.I(f"s_waitcnt vmcnt({JW})" if nks==1 else "@wait rr"); stamp(P,2,diag)
    A=R+16; ACC=R+16+32
    seq=[(ks,ct) for ks in range(nks) for ct in range(4)]
    for n,(ks,ct) in enumerate(seq):
        for hf in range(2): P.I(f"ds_read_b64_tr_b16 {vr(A+4*n+2*hf,2)}, v{8+ct} offset:{ks*4096+hf*512}")
    for n,(ks,ct) in enumerate(seq):
        P.I(f"v_mfma_f32_16x16x32_bf16 {vr(ACC+4*ct,4)}, {vr(A+4*n,4)}, {vr(R+4*ks,4)}, {vr(ACC+4*ct,4) if ks else 0}")
    P.I(f"v_mov_b32 v{R+3}, s{sTAG}")
    for ct in range(4):
        for e in range(2): P.I(f"v_cndmask_b32 v{A+2*ct+e}, v{ACC+4*ct+e}, v{ACC+4*ct+2+e}, {sp(sT0)}")
    for c2 in range(2):
        for e in range(2): P.I(f"v_cndmask_b32 v{A+8+2*c2+e}, v{A+4*c2+e}, v{A+4*c2+2+e}, {sp(sT2)}")
    for e in range(2): P.I(f"v_cndmask_b32 v{R+e}, v{A+8+e}, v{A+10+e}, {sp(sT4)}")
    P.I(f"""s_mov_b32 exec_lo, 0x00ff00ff
s_mov_b32 exec_hi, 0x00ff00ff
buffer_store_dwordx4 {vr(R,4)}, v{A0+5}, {sp(rWS,4)}, s99 offen {PUB}
s_mov_b64 exec, -1""")
def raw_wd_loads(P, NT):
    P.I(f"s_lshl_b32 s{sT0}, s{sW}, 11\ns_lshl_b32 s{sT1}, s{sW}, 7\ns_add_u32 m0, s{sT0}, {L_DR}\ns_add_u32 s{sT1}, s{sT1}, s91")
    P.I(f"buffer_load_dwordx4 v{vRA+4}, {sp(rWD,4)}, s{sT1} offen {NT} lds", tag='dr')
    P.I(f"s_add_u32 m0, s{sT0}, {L_DR+1024-64}\nv_add_u32 v245, s{sT0}, v{vRA}")
    P.I(f"buffer_load_dwordx4 v{vRA+4}, {sp(rWD,4)}, s{sT1} offen offset:64 {NT} lds", tag='dr')
def wd_job(P, ST):
    A=vHF+8
    P.I("@wait dr")
    for f in range(2):
        for hf in range(2): P.I(f"ds_read_b64_tr_b16 {vr(A+4*f+2*hf,2)}, v245 offset:{f*1024+hf*256}")
    P.I(f"""s_and_b32 s{sT0}, s{sFS}, 1
s_lshl2_add_u32 s{sT0}, s{sT0}, s{sW}
s_mul_i32 s{sT0}, s{sT0}, {2*112}
s_lshr_b32 s{sT1}, s{sFS}, 1
s_add_u32 s{sT0}, s{sT0}, s{sT1}
s_lshl_b32 s{sT0}, s{sT0}, 10
s_add_u32 s{sT0}, s{sT0}, {WS_WDF}
s_add_u32 s{sT1}, s{sT0}, {112*1024}""")
    for f in range(2):
        P.I(f"buffer_store_dwordx4 {vr(A+4*f,4)}, v{vL16}, {sp(rWJ,4)}, s{sT0+f} offen {ST}", tag='wdst')
def raw_w_loads(P, NT):
    P.I(f"s_mul_i32 s95, s{sW}, {16*3584}\ns_add_u32 s95, s95, s90\ns_lshl_b32 s96, s{sW}, 12")
    for q in range(2):
        for mat,r in ((0,rWG),(1,rWU)):
            P.I(f"s_add_u32 m0, s96, {L_WR+mat*2048+q*1024}")
            P.I(f"s_add_u32 s95, s95, {8*3584}" if (q and not mat) else "s_nop 0")
            P.I(f"buffer_load_dwordx4 v{vRA+2+mat}, {sp(r,4)}, s95 offen {NT} lds", tag='wr')

def cmul(o,a,b,t):
    return [f"v_pk_mul_f32 {vr(t,2)}, {vr(a,2)}, {vr(b,2)} op_sel_hi:[0,1]",
            f"v_pk_fma_f32 {vr(o,2)}, {vr(a,2)}, {vr(b,2)}, {vr(t,2)} op_sel:[1,1,0] op_sel_hi:[1,0,1] neg_lo:[1,0,0]"]
def factor_gen(P, lo=0, hi=99):
    B=vFG; are,aim,bre,bim,cre,cim=[vPAR+i for i in range(6)]
    R1,R8,R128,LOc,TMP,PK = B,B+2,B+4,B+6,B+8,B+12
    Pc=[B+16+2*c for c in range(8)]
    zr,zi,dt=B+32,B+33,B+34; M=[2,4,6]; PH=[8,9,10]
    P.I(f"s_lshr_b32 s{sT0}, s{sW}, 1\ns_mul_i32 s{sT1}, s{sT0}, {64*FP-512}\ns_lshl_b32 s{sT2}, s{sW}, 8\ns_add_u32 m0, s{sT1}, s{sT2}")
    P0=P
    if lo: P=Prog()
    P.I(f"""s_lshl_b32 s{sT0}, s{sT0}, 4
s_lshr_b32 s{sT1}, s{sLD}, s{sT0}
s_lshl_b32 s{sT1}, s{sT1}, 16
v_mov_b32 v{dt}, {hex(LOG2E)}
v_mul_f32 v{dt}, s{sT1}, v{dt}
v_exp_f32 v{dt}, v{dt}""")
    P.extend(cmul(Pc[0],cre,bre,TMP))
    P.I(f"""v_cvt_pk_bf16_f32 v{dt}, v{dt}, v{dt}
v_and_b32 v{dt}, 0xffff0000, v{dt}
v_mul_f32 v{zr}, v{dt}, v{are}
v_mul_f32 v{zi}, v{dt}, v{aim}
v_mul_f32 v{zr}, {hex(LOG2E)}, v{zr}
v_mul_f32 v{zi}, 0.15915494, v{zi}
v_pk_mul_f32 {vr(Pc[0],2)}, {vr(Pc[0],2)}, {vr(dt,2)} op_sel_hi:[1,0] neg_hi:[1,0]""")
    cx=((R1,1,True),(R8,8,False),(R128,128,True))
    for (o,sc,cj),m,ph in zip(cx,M,PH):
        if sc==1: P.I(f"v_exp_f32 v{m}, v{zr}\nv_fract_f32 v{ph}, v{zi}")
        else: P.I(f"v_mul_f32 v{m}, {hex(f32(sc))}, v{zr}\nv_mul_f32 v{ph}, {hex(f32(sc))}, v{zi}\nv_exp_f32 v{m}, v{m}\nv_fract_f32 v{ph}, v{ph}")
        P.I(f"v_cos_f32 v{o}, v{ph}\nv_sin_f32 v{o+1}, v{ph}")
    for (o,sc,cj),m,ph in zip(cx,M,PH):
        P.I(f"v_pk_mul_f32 {vr(o,2)}, {vr(o,2)}, {vr(m,2)} op_sel_hi:[1,0]" + (" neg_hi:[1,0]" if cj else ""))
    P=P0
    steps_lo=[('one',48),('put',49,R8)]+[('mul',48+b,LOc,(R8 if b==2 else LOc),R8) for b in range(2,16)]
    steps_hi=[('put',0,Pc[0])]+[('mul',c,Pc[c],Pc[c-1],R1) for c in range(1,8)]
    row=8
    for e in range(1,17):
        cs = range(8) if e<2 else range(0,8,2) if e<4 else (0,4) if e<8 else (0,)
        for c in cs:
            assert HI[row]==128*e+c
            steps_hi.append(('mul',row,Pc[c],Pc[c],R128)); row+=1
    for k,s in enumerate(steps_lo+steps_hi):
        if not lo<=k<hi: continue
        kk=PK+(k&3)
        if s[0]=='one': P.I(f"v_mov_b32 v{kk}, 0x3f80")
        else:
            if s[0]=='mul': P.extend(cmul(s[2],s[3],s[4],TMP+2*(k&1)))
            P.I(f"v_cvt_pk_bf16_f32 v{kk}, v{s[2]}, v{s[2]+1}")
        P.I(f"ds_write_addtid_b32 v{kk} offset:{L_F+s[1]*FP}")

vKH=156
def kgen_init(P):
    ACC=vHF
    P.I(f"""s_lshl_b32 s{sT0}, s{sDS}, 16
s_and_b32 s{sT1}, s{sDS}, 0xffff0000
v_cmp_eq_u32 vcc, 0, v0
v_mov_b32 v2, s{sT0}
v_mov_b32 v3, s{sT1}
s_mul_i32 s{sT2}, s{sW}, {16*FP}
v_cndmask_b32 v{ACC}, 0, v2, vcc
v_cndmask_b32 v{ACC+4}, 0, v3, vcc
v_add_u32 v{vKH}, s{sT2}, v{vKF}""")
    for r in (1,2,3,5,6,7): P.I(f"v_mov_b32 v{ACC+r}, 0")
def kgen(P, diag, mid=[], skip=0, order=0):
    A=vROLE; ACC=vHF
    Q=Prog(); table_unpack(Q); tu=[x.text for x in Q.ins]
    P.I(f"s_cmp_eq_u32 s{sW}, 3\ns_cbranch_scc1 L_wdjob\ns_waitcnt lgkmcnt(0)\ns_barrier")
    def rd(n):
        ks,ch=n>>1,n&1; b=A+8*(n%9)
        return [f"ds_read_b128 {vr(b,4)}, v{vKF} offset:{ch*64*FP+48*FP+ks*64}", f"ds_read_b128 {vr(b+4,4)}, v{vKH} offset:{ch*64*FP+ks*64}"]
    for n in range(7): P.extend(rd(n))
    P.extend(tu[:5])
    m2=[[Ins(x.text,x.tag) for x in g] for g in mid]; mid=list(mid)
    for n in range(16):
        if mid and n>=skip: P.extend(mid.pop(0))
        b=A+8*(n%9); a=vr(ACC+4*(n&1),4)
        P.I(f"v_mfma_f32_16x16x32_bf16 {a}, {vr(b,4)}, {vr(b+4,4)}, {a}")
        if n+7<16: P.extend(rd(n+7))
    P.extend(tu[5:])
    for r in range(4): P.I(f"v_cvt_pk_bf16_f32 v{8+r}, v{ACC+r}, v{ACC+4+r}")
    P.I(f"ds_write_b128 v{vKC}, v[8:11]\ns_branch L_kgen_end\nL_wdjob:")
    P.I("s_waitcnt lgkmcnt(0)\ns_barrier")
    P.extend(tu)
    if order==0:
        for g in m2: P.extend(g)
    mod_job(P,'sc1',diag,2)
    if order==1:
        for g in m2: P.extend(g)
    P.I(f"ds_write_b128 v{vRA+1}, {vr(ACC,4)}")
    P.I("L_kgen_end:")

def poll_groups(extra=None, XL='sc1', xfirst=0):
    Q=Prog(); poll_loads(Q,XL,xfirst); G=[[]]
    if extra: extra(Q)
    for x in Q.ins:
        G[-1].append(x)
        if x.kind=='vmem': G.append([])
    return G[:-1]
def poll_loads(P, XL='sc1', xfirst=0):
    LD='sc1'
    P.I(f"s_mul_i32 s94, s{sP}, 12288\ns_add_u32 s94, s94, {WS_XG}")
    X=[(f"s_add_u32 s94, s94, 4096\n" if g else "")+f"buffer_load_dwordx4 {vr(vPOLL+4*g,4)}, v{vT16}, {sp(rWS,4)}, s94 offen {XL}" for g in range(3)]
    S=[f"s_mov_b32 s79, {WS_SG+g*4096}\nbuffer_load_dwordx4 {vr(vPOLL+12+4*g,4)}, v{vT16}, {sp(rWS,4)}, s79 offen {LD}" for g in range(3)]
    M=[f"s_lshl4_add_u32 s3, s{sP}, {WS_MG}\nbuffer_load_dwordx4 {vr(vPOLL+24,4)}, v{vMC}, {sp(rWS,4)}, s3 offen {LD}"]
    for t in (X+S+M if xfirst==1 else S+M+X if xfirst==2 else M+S+X if xfirst==3 else [y for p in zip(X,S) for y in p]+M): P.I(t, tag='pollx' if t in X else 'poll')
vQ=144
def poll2_loads(P):
    P.I(f"""s_lshl4_add_u32 s3, s{sP}, {WS_MG+0x20000}
buffer_load_dwordx4 {vr(vQ,4)}, v{vSEL1}, {sp(rWS,4)}, s3 offen sc1
s_lshl2_add_u32 s3, s{sKE}, s{sW}
s_lshl_b32 s3, s3, 7
s_add_u32 s3, s3, {WS_MG+0x20000+8*4096}
buffer_load_dwordx4 {vr(vQ+4,4)}, v{vMW}, {sp(rWS,4)}, s3 offen sc1
s_add_u32 s3, s3, {4*4096}""")
    P.I(f"buffer_load_dwordx4 {vr(vQ+8,4)}, v{vMW}, {sp(rWS,4)}, s3 offen sc1", tag='poll2')
def poll2_work(ST):
    mc,mw=vQ,vQ+4; dpp=" row_mask:0xf bank_mask:0xf"
    L=[["L_p2_chk:","@wait poll2",f"v_min3_u32 v2, v{vQ+3}, v{vQ+7}, v{vQ+11}",f"v_max3_u32 v3, v{vQ+3}, v{vQ+7}, v{vQ+11}",f"v_min_u32 v2, s{sTAG}, v2",f"v_max_u32 v3, s{sTAG}, v3",
        "v_cmp_ne_u32 vcc, v2, v3","s_cbranch_vccnz L_q_retry","L_q_ok:"]]
    L[0][0]="L_q_chk:"
    X=[f"v_add_f32 v{mw}, v{mw}, v{vQ+8}",f"v_add_f32 v{mw+1}, v{mw+1}, v{vQ+9}"]
    for m in ("quad_perm:[1,0,3,2]","quad_perm:[2,3,0,1]"):
        X+=[f"v_add_f32_dpp v{r}, v{r}, v{r} {m}{dpp}" for r in (mc,mc+1,mw,mw+1)]
    X+=[f"v_add_f32_dpp v{r}, v{r}, v{r} row_half_mirror{dpp}" for r in (mc,mc+1)]
    X+=[f"v_cvt_pk_bf16_f32 v{mw+1}, v{mw}, v{mw+1}", f"v_cvt_pk_bf16_f32 v{mc+1}, v{mc}, v{mc+1}",
        f"v_lshlrev_b32 v{mw}, 16, v{mw+1}", f"v_and_b32 v{mw+1}, 0xffff0000, v{mw+1}", f"v_lshlrev_b32 v{mc}, 16, v{mc+1}", f"v_and_b32 v{mc+1}, 0xffff0000, v{mc+1}",
        f"v_add_f32 v{mw}, v{mw}, v{vSEL2}", f"v_add_f32 v{mw+1}, v{mw+1}, v{vSEL2}", f"v_cvt_pk_bf16_f32 v{mw+1}, v{mw}, v{mw+1}",
        f"v_lshlrev_b32 v{mw}, 16, v{mw+1}", f"v_and_b32 v{mw+1}, 0xffff0000, v{mw+1}", f"ds_write_b64 v{vGW}, {vr(mw,2)}"]
    late=[f"v_mov_b32_dpp v{vMOD+4+2*k+e}, v{mc+e} row_newbcast:{8*k}{dpp}" for k in range(2) for e in range(2)]
    return L[0],X,late
def writeback(cnt, lbl, on):
    return [f"s_and_b32 s4, s{cnt}, 3","s_cmp_lg_u32 s4, 0",f"s_cbranch_scc1 {lbl}","buffer_wbl2 sc1","s_waitcnt vmcnt(0)",f"{lbl}:"] if on else []
def retry2_block(P, loc=0):
    P.I(f"L_q_retry:\ns_add_u32 s{sCNT}, s{sCNT}, 1\ns_cmp_gt_u32 s{sCNT}, 20000\ns_waitcnt vmcnt(0) lgkmcnt(0)\ns_cbranch_scc1 L_q_ok")
    P.extend(writeback(sCNT,'L_q_nowb',loc))
    poll2_loads(P)
    P.I("s_waitcnt vmcnt(0)\ns_branch L_q_chk")

vGA=140
def table_unpack(P):
    P.I(f"v_mov_b32 v{vUA}, v{vTAB+7}\nv_mov_b32 v{vKA}, v{vTAB+6}")
    for j in range(11):
        P.I(f"v_lshrrev_b32 v{vGA+j}, 16, v{vTAB+j//2}" if j&1 else f"v_and_b32 v{vGA+j}, 0xffff, v{vTAB+j//2}")
def k_image(P, G, npre, skip):
    E=vROLE+40; O=vROLE; GA=vGA
    for _ in range(npre): P.extend(G.pop(0))
    P.I(f"""s_mov_b32 s{sT4}, 0x05040100
s_mov_b32 s{sT5}, 0x07060302
v_add_u32 v2, {L_KI}, v{vT16}
s_waitcnt lgkmcnt(0)
s_barrier""")
    for j in range(11): P.I(f"ds_read_b32 v{E+j}, v{GA+j}")
    k=0
    for c in (3,2,1,0):
        for ch in range(2):
            o=O+4*k; k+=1
            for i in range(4):
                j=3-c+2*i
                P.I(f"v_perm_b32 v{o+i}, v{E+j+1}, v{E+j}, s{sT4+ch}")
            P.I(f"ds_write_b128 v2, {vr(o,4)} offset:{(ch*4+c)*KIP}")
            if G and k>skip: P.extend(G.pop(0))
    for g in G: P.extend(g)

def retry_block(P, loc=0):
    P.I(f"L_ka_retry:\ns_add_u32 s{sCNT}, s{sCNT}, 1\ns_cmp_gt_u32 s{sCNT}, 20000\ns_waitcnt vmcnt(0) lgkmcnt(0)\ns_cbranch_scc1 L_ka_ok")
    P.extend(writeback(sCNT,'L_ka_nowb',loc))
    poll_loads(P)
    P.I("s_waitcnt vmcnt(0)\ns_branch L_ka_chk")

def make_h(P, diag, q2=False):
    Q=vPOLL; mc=Q+24; Mm=vROLE; Mr=vROLE+8; O=vROLE+16; A=vROLE+24; B=vROLE+40
    dpp=" row_mask:0xf bank_mask:0xf"
    P.I(f"s_mov_b32 s{sCNT}, 0\nv_add_u32 v4, {L_H+480}, v{vT16}\nL_ka_chk:\n@wait poll")
    chain=[]
    for m in ("quad_perm:[1,0,3,2]","quad_perm:[2,3,0,1]","row_half_mirror","row_mirror"):
        chain.append([f"v_add_f32_dpp v{r}, v{r}, v{r} {m}{dpp}" for r in (mc,mc+1)])
    chain+=[[f"v_cvt_pk_bf16_f32 v{mc}, v{mc}, v{mc+1}", f"v_mov_b32 v{mc+1}, v{mc}"],
            [f"v_permlane16_swap_b32 v{mc}, v{mc+1}", f"v_lshlrev_b32 v{vMOD}, 16, v{mc}", f"v_and_b32 v{vMOD+1}, 0xffff0000, v{mc}", f"v_lshlrev_b32 v{mc}, 16, v{mc+1}", f"v_and_b32 v{mc+1}, 0xffff0000, v{mc+1}"],
            [f"v_add_f32 v{mc}, 1.0, v{mc}", f"v_add_f32 v{mc+1}, 1.0, v{mc+1}", f"v_cvt_pk_bf16_f32 v{mc}, v{mc}, v{mc+1}"],
            [f"v_lshlrev_b32 v{vMOD+2}, 16, v{mc}", f"v_and_b32 v{vMOD+3}, 0xffff0000, v{mc}"]]
    for r in range(8):
        st=Q+12+4*(r//3)+r%3
        P.extend(chain[r])
        P.I(f"v_and_b32 v{Mr+r}, 0xffff0000, v{st}\nv_lshlrev_b32 v{Mm+r}, 16, v{st}\nv_rcp_f32 v{Mr+r}, v{Mr+r}")
    P.I(f"""v_min3_u32 v2, s{sTAG}, v{Q+27}, v{Q+15}
v_max3_u32 v3, s{sTAG}, v{Q+27}, v{Q+15}
v_min3_u32 v2, v2, v{Q+19}, v{Q+23}
v_max3_u32 v3, v3, v{Q+19}, v{Q+23}""")
    for ch in range(2):
        for r in range(0,8,2): P.I(f"v_pk_mul_f32 {vr(A+8*ch+r,2)}, {vr(Mr+r,2)}, {vr(vMOD+2,2)} op_sel:[0,{ch}] op_sel_hi:[1,{ch}]")
    for ch in range(2):
        for r in range(0,8,2): P.I(f"v_pk_fma_f32 {vr(B+8*ch+r,2)}, {vr(Mm+r,2)}, {vr(A+8*ch+r,2)}, {vr(vMOD,2)} op_sel:[0,0,{ch}] op_sel_hi:[1,1,{ch}] neg_lo:[1,0,0] neg_hi:[1,0,0]")
    P.I(f"""@wait pollx
v_min3_u32 v2, v2, v{Q+3}, v{Q+7}
v_max3_u32 v3, v3, v{Q+3}, v{Q+7}
v_min_u32 v2, v2, v{Q+11}
v_max_u32 v3, v3, v{Q+11}
v_cmp_ne_u32 vcc, v2, v3""")
    xr=lambda r: Q+4*(r//3)+r%3
    P.I(f"v_lshlrev_b32 v{vXF}, 16, v{xr(0)}\ns_cbranch_vccnz L_ka_retry\nL_ka_ok:")
    if diag: P.I(f"s_add_u32 s{sCNT}, s{sCNT}, 1\nv_writelane_b32 v255, s{sCNT}, 31")
    stamp(P,11,diag)
    if q2: poll2_loads(P)
    for ch in range(2):
        for r in range(8):
            if ch or r: P.I(f"v_and_b32 v{vXF+8+r}, 0xffff0000, v{xr(r)}" if ch else f"v_lshlrev_b32 v{vXF+r}, 16, v{xr(r)}")
        for r in range(0,8,2): P.I(f"v_pk_fma_f32 {vr(A+8*ch+r,2)}, {vr(vXF+8*ch+r,2)}, {vr(A+8*ch+r,2)}, {vr(B+8*ch+r,2)}")
        for r in range(0,8,2): P.I(f"v_cvt_pk_bf16_f32 v{O+4*ch+r//2}, v{A+8*ch+r}, v{A+8*ch+r+1}")
        P.I(f"ds_write_b128 v4, {vr(O+4*ch,4)} offset:{ch*HP}")

def gb_store(P, ST):
    P.I(f"""s_cmp_lg_u32 s{sW}, 2
s_cbranch_scc1 L_nogb
s_lshl3_add_u32 s{sT2}, s{sP}, {WS_GBF}
s_mov_b64 exec, 1
buffer_store_dwordx2 {vr(vMOD+6,2)}, v{vL16}, {sp(rWS,4)}, s{sT2} offen {ST}
s_mov_b64 exec, -1
L_nogb:""")
def w_side(ST):
    RAW=vPOLL; WP=vPOLL+16; GB=[48,64,80,96]; U=112; S1,S2=vHF,vHF+2
    rd=[]; main=[]; sums=[]
    for k in range(4):
        g=GB[k]
        rd.append([f"ds_read_b64_tr_b16 {vr(RAW+4*k+2*hf,2)}, v{vWRA} offset:{k*4096+hf*512}" for hf in range(2)]
                 +[f"ds_read_b128 {vr(g+4*q,4)}, v{vGR} offset:{k*64+q*16}" for q in range(2)])
        L=[]
        for d in range(4):
            u=U+8*k+2*d
            L+=[f"v_lshlrev_b32 v{u}, 16, v{RAW+4*k+d}", f"v_and_b32 v{u+1}, 0xffff0000, v{RAW+4*k+d}",
                f"v_mul_f32 v{g+2*d}, v{u}, v{g+2*d}", f"v_mul_f32 v{g+2*d+1}, v{u+1}, v{g+2*d+1}", f"v_cvt_pk_bf16_f32 v{WP+4*k+d}, v{g+2*d}, v{g+2*d+1}"]
        L.append((f"buffer_store_dwordx4 {vr(WP+4*k,4)}, v{vL16}, {sp(rWJ,4)}, s{sWO} offen {ST}",'wpst'))
        if k<3: L.append(f"s_add_u32 s{sWO}, s{sWO}, s{sWST}")
        main.append(L)
        for i in range(8):
            e=i&1; first=(k==0 and i<2)
            sums.append(f"v_mul_f32 v{S2+e}, v{U+8*k+i}, v{g+8+i}" if first else f"v_fmac_f32 v{S2+e}, v{U+8*k+i}, v{g+8+i}")
            if k==0 and i<2: continue
            sums.append(f"v_add_f32 v{S1+e}, v{g+e}, v{g+i}" if (k==0 and i<4) else f"v_add_f32 v{S1+e}, v{S1+e}, v{g+i}")
    rdsb=[f"ds_read_b128 {vr(GB[k]+8+4*q,4)}, v{vGR} offset:{256+k*64+q*16}" for k in range(4) for q in range(2)]
    tail=[f"v_add_f32 v{S1}, v{S1}, v{S1+1}", f"v_add_f32 v{S2}, v{S2}, v{S2+1}", f"v_mov_b32 v{S1+1}, v{S1}", f"v_mov_b32 v{S2+1}, v{S2}",
          f"v_lshlrev_b32 v2, 2, v{vLANE}", "s_nop 0",
          f"v_permlane32_swap_b32 v{S1}, v{S1+1}", f"v_permlane32_swap_b32 v{S2}, v{S2+1}",
          f"v_add_f32 v{S1}, v{S1}, v{S1+1}", f"v_add_f32 v{S2}, v{S2}, v{S2+1}", f"v_cvt_pk_bf16_f32 v{S1}, v{S1}, v{S2}",
          "s_mov_b32 exec_hi, 0", (f"buffer_store_dword v{S1}, v2, {sp(rWJ,4)}, s{sWA} offen {ST}",'auxst'), "s_mov_b32 exec_hi, -1"]
    return rd,main,rdsb,sums,tail

def conv_reads(vi):
    b=vi&1; o=192-64*vi
    U=[(f"ds_read_b128 {ar(64+32*b+4*k,4)}, v{vUA} offset:{512*k+o}",f"c{vi}_{k}") for k in range(8)]
    K=[[(f"ds_read_b64 {ar(32*b+4*k+2*hf,2)}, v{vKA} offset:{512*(7-k)+o+8*hf}",f"c{vi}_{k}") for hf in range(2)] for k in range(8)]
    return U,K
def conv(P, ST, cfg, midbar, wdj, wd0):
    ACC=16
    order=sorted([(u,s) for u in range(8) for s in range(8) if u+s<8], key=lambda t:(t[1],t[0]))
    rd,main,rdsb,sums,tail=w_side(ST)
    chk,work,bc=poll2_work(ST)
    Q=Prog(); gb_store(Q,ST); gbs=[[x.text for x in Q.ins]]
    P.extend(conv_reads(0)[0])
    first=set(); side=[]; QAT=cfg.get('QAT',20); LV=cfg.get('LV',1); FV=cfg.get('FV',LV); SL=cfg.get('SUMLATE',0)
    for vi in range(4):
        b=vi&1; nxt=[]
        if vi==LV: nxt+=[(x,'wtr') for r in rd[:2] for x in r]+wdj[:4]
        if vi<3:
            U,K=conv_reads(vi+1); nxt+=[y for k in range(8) for y in [U[k]]+K[k]]
        if vi==0: side+=work
        if vi==1 and LV>1: side+=bc+gbs
        if vi==LV: side+=['@wait wtr']+rd[2]+rd[3]+main[0]+wdj[4:]+main[1]+([] if SL else rdsb)+main[2]+main[3]+(bc+gbs if LV==1 else [])+([] if SL else sums)
        waits = {0:0,8:1,15:7} if vi==0 else {0:7}
        start = QAT+1 if vi==0 else 8 if vi==LV else 0
        for n,(u,s) in enumerate(order if (vi==0 or not cfg.get('ORD',1)) else sorted(order,key=lambda t:(t[0]+t[1],t[0]))):
            t=u+s; a=vr(ACC+4*t,4)
            if n in waits: P.I(f"@wait c{vi}_{waits[n]}")
            P.I(f"v_mfma_f32_16x16x32_bf16 {a}, {ar(32*b+4*u,4)}, {ar(64+32*b+4*s,4)}, {a if t in first else 0}"); first.add(t)
            slots=2-((n+1) in waits or n==35)
            if vi==0 and FV==0 and n==0: P.extend(midbar); continue
            if vi in (LV,FV) and n==0:
                P.I("@wait"+(" wr dr" if vi==LV else "")+(" wdst" if vi==FV else "")+"\ns_waitcnt lgkmcnt(0)\ns_barrier")
                if vi==FV: P.extend(midbar)
                continue
            if vi==0 and n==QAT: P.extend(chk); continue
            if nxt:
                P.extend([nxt.pop(0)]); slots-=1
                if n<start and slots and nxt: P.extend([nxt.pop(0)]); slots-=1
            while slots>0 and wd0 and vi==0 and not nxt and n<QAT: P.extend([wd0.pop(0)]); slots-=1
            while slots>0 and side and n>=start:
                x=side.pop(0)
                if isinstance(x,list): P.extend(x); slots=0
                else: P.extend([x]); slots-=1
        assert not nxt, len(nxt)
        if vi==0: P.extend(side+wd0); print('  conv step 0 spill',len(side),len(wd0)); side=[]; wd0=[]
        print('  conv step',vi,'side backlog',len(side))
    assert not any(isinstance(x,list) for x in side)
    if SL: return ACC,side,rdsb+sums+tail
    return ACC,side+tail,[]

def conv_epilogue(P, ACC, tail, XST, pre=[], prebar=[], postbar=[], tmax=99, after=[]):
    tail=list(tail); P.extend(pre)
    for t in range(8):
        P.I(f"ds_write_b128 v{vYW}, {vr(ACC+4*t,4)} offset:{1280*t}")
        k=min(max(5,-(-len(tail)//(8-t))),len(tail),tmax)
        if len(tail)-k<4: k=len(tail)
        P.extend(tail[:k]); tail=tail[k:]
    P.extend(prebar)
    P.I(f"s_mul_i32 s{sT0}, s{sP}, {12288 if XIN else 128}\ns_add_u32 s{sT0}, s{sT0}, {WS_XG if XIN else WS_X1B}\ns_waitcnt lgkmcnt(0)\ns_barrier")
    Y=16
    for ch in range(2):
        for g in range(2):
            for vh in range(2):
                P.I(f"ds_read_b128 {vr(Y+16*ch+8*vh+4*g,4)}, v{vYR} offset:{L_Y+(2*ch+vh)*10240+320*g}")
    P.extend(postbar)
    for ch in range(2):
        y=Y+16*ch
        for r in range(0,8,2): P.I(f"v_pk_add_f32 {vr(y+r,2)}, {vr(y+r,2)}, {vr(y+8+r,2)}")
        for r in range(0,8,2): P.I(f"v_pk_fma_f32 {vr(y+r,2)}, {vr(y+r,2)}, {vr(vMOD+4,2)}, {vr(vXF+8*ch+r,2)} op_sel:[0,{ch},0] op_sel_hi:[1,{ch},1]")
        for r in range(0,8,2): P.I(f"v_cvt_pk_bf16_f32 v{4+4*ch+r//2}, v{y+r}, v{y+r+1}")
        P.I(f"buffer_store_dwordx4 {vr(4+4*ch,4)}, v{vXO}, {sp(rWS,4)}, s{sT0} offen offset:{64*ch} {XST}", tag='x1st')
    print('  after the x1 stores:', len(tail), '+', len(after))
    P.extend(tail); P.extend(after)

def body(P, n, diag, cfg, H):
    NT=cfg.get('NT','nt'); ST='sc1'
    entry(P,n,diag,256,cfg.get('PERM',[2,3,0,5,1,7,4,6] if cfg.get('QSYNC',0) else None)); role_addr(P,cfg.get('LOC',0))
    P.I("s_waitcnt lgkmcnt(0)"); stamp0_commit(P,diag)
    if cfg.get('WSB',0): P.I(f"s_add_u32 s{sWS}, s{sWS}, {cfg['WSB']<<20}\ns_addc_u32 s{sWS+1}, s{sWS+1}, 0")
    po=cfg.get('PORD',0); m2=cfg.get('M2AT',0); global JW
    assert not (po and cfg.get('CUT',0)) and not (m2 and cfg.get('CUT',0))
    JW=(8 if po else 0)
    early_loads(P,NT,not po)
    role_loads(P,cfg.get('XNT',NT),0)
    if po: param_loads(P,NT)
    table_loads(P); setup(P,False,cfg.get('X',''),cfg.get('WMAP',0) or cfg.get('QSYNC',0)); P.extend(H['setup'])
    if m2==0: role_loads(P,NT,1)
    P.I(f"s_waitcnt lgkmcnt(0)\ns_or_b32 s{sTAG}, s{sTAG}, 0x7f800000\ns_add_u32 s{sTAG}, s{sTAG}, 1\ns_or_b32 s{sTAG}, s{sTAG}, 0x7f800000\ns_barrier")
    stamp(P,1,diag)
    kgen_init(P)
    H['idle'](P)
    P.I("@forget "+" ".join(str(r) for r in list(range(vPAR,vPAR+6))+[vROLE]+list(range(vTAB,vTAB+8))))
    cut=cfg.get('CUT',0)
    if cut:
        P.I(f"s_waitcnt vmcnt(10)\ns_cmp_lg_u32 s{sW}, 2\ns_cbranch_scc1 L_f1\ns_waitcnt vmcnt(6)\nL_f1:")
        P.I("@forget "+" ".join(str(r) for r in list(range(vPAR,vPAR+6))+[vROLE]+list(range(vTAB,vTAB+8))))
        factor_gen(P,0,cut)
        stamp(P,10,diag)
        P.I(f"s_cmp_eq_u32 s{sW}, 3\ns_cbranch_scc1 L_xje")
    x_jobs(P,'sc1',diag,cfg.get('LOC',0))
    P.I("@forget "+" ".join(str(r) for r in list(range(vPAR,vPAR+6))+[vROLE]+list(range(vTAB,vTAB+8))))
    stamp(P,3,diag)
    da,wa=cfg.get('DAT',0),cfg.get('WAT',1)
    def raws(k):
        if da==k: raw_wd_loads(P,cfg.get('DNT',NT))
        if wa==k: raw_w_loads(P,NT)
    if m2==1: role_loads(P,NT,1)
    raws(0)
    factor_gen(P,cut)
    stamp(P,4,diag)
    if m2==2: role_loads(P,NT,1)
    raws(1)
    G=poll_groups((lambda Q: raw_w_loads(Q,NT)) if wa==3 else None, cfg.get('XLP','') if cfg.get('LOC',0)==1 else 'sc1', cfg.get('XFIRST',0))
    for _ in range(cfg.get('PEARLY',0)): P.extend(G.pop(0))
    npm=cfg.get('PMID',0); mid=G[:npm]; G=G[npm:]
    if wa==5:
        Q=Prog(); raw_w_loads(Q,NT); W4=[[]]
        for x in Q.ins:
            W4[-1].append(x)
            if x.kind=='vmem': W4.append([])
        mid=W4[:-1]+mid
    kgen(P,diag,mid,cfg.get('PMSKIP',0),cfg.get('PMORD',0)); stamp(P,5,diag)
    k_image(P,G,min(len(G),cfg.get('PPRE',5)),cfg.get('PSKIP',0))
    raws(2)
    wdj=[]
    wj=cfg.get('WJAT',0); wd0=[]
    if cfg.get('Q2AT',1)==2: poll2_loads(P)
    if da<2 and wj:
        Q=Prog(); wd_job(Q,ST); wd0=[(x.text,x.tag) for x in Q.ins]
    elif da<2: wd_job(P,ST)
    else:
        Q=Prog(); wd_job(Q,ST); wdj=[(x.text,x.tag) for x in Q.ins[1:]]
    stamp(P,6,diag)
    P.I("s_waitcnt lgkmcnt(0)\ns_barrier")
    for k in conv_reads(0)[1]: P.extend(k)
    q2=cfg.get('Q2AT',1)
    if q2==0: poll2_loads(P)
    make_h(P,diag,q2==3)
    if q2==1: poll2_loads(P)
    raws(4)
    if cfg.get('FV',1)==0: P.I("@wait wdst")
    P.I("s_waitcnt lgkmcnt(0)\ns_barrier")
    stamp(P,7,diag)
    acc,tail,after=conv(P,ST,cfg,H['midbar'] if da<2 else [],wdj,wd0); stamp(P,8,diag)
    conv_epilogue(P,acc,tail,ST,H.get('pre',[]),H.get('prebar',[]),H.get('postbar',[]),cfg.get('TMAX',99),after)
```

```python
from prog import *
from layout import *
from ka import sp, vr, ar, mksrd, f32, stamp, stamp_out, rWS, rOUT, sXCD, sIDX, sW
import ka
sXB,sWB,sAB,sXM,sFL,sPL,sA0,sA1,sD0,sD1,sNT,sMT,sFB,sCNT = range(8,22)
sQ=22
sT0,sT1,sT2,sT3,sT4 = 80,81,82,83,84
vLANE,vL16,vWL = 1,2,14
NS=16; L_XS=0; L_RING=4*NS*1024; RING=96
LDS_C=L_RING+RING*1024
def entry(P,name,diag):
    P.I(f".globl {name}\n.p2align 8\n.type {name},@function\n{name}:\n@reset")
    P.I(f"""s_cmp_ge_u32 s2, 256
s_cbranch_scc1 L_{name}_exit
s_load_dwordx2 s[42:43], s[0:1], 136
s_load_dwordx2 s[38:39], s[0:1], 120
s_and_b32 s{sXCD}, s2, 7
s_lshr_b32 s{sIDX}, s2, 3
v_lshrrev_b32 v3, 6, v0
v_and_b32 v{vLANE}, 63, v0
v_readfirstlane_b32 s{sW}, v3""")
    ka.stamp0_issue(P,diag)
def srds(P,diag):
    P.I("s_waitcnt lgkmcnt(0)"); ka.stamp0_commit(P,diag)
    P.extend(mksrd(rWS,42,WS_USED)); P.extend(mksrd(rOUT,38,2097152))

def xsrc(v, snt):
    return [f"v_lshrrev_b32 v12, 3, v{vLANE}", f"v_xor_b32 v{v}, s{snt}, v12", f"v_mul_u32_u24 v12, 96, v12", f"v_add_u32 v12, v12, v{v}",
            f"v_and_b32 v{v}, 7, v{vLANE}", f"v_lshl_add_u32 v{v}, v12, 3, v{v}", f"v_lshlrev_b32 v{v}, 4, v{v}"]
def c_maps():
    xb=f"s_lshl_b32 s{sXB}, s{sT0}, 15\ns_add_u32 s{sXB}, s{sXB}, {WS_X1B}"
    if ka.XIN: xb="\n".join(xsrc(13,sT0))
    return f"""s_lshr_b32 s{sT0}, s{sXCD}, 2
s_lshl_b32 s{sT0}, s{sT0}, 5
s_and_b32 s{sT1}, s{sIDX}, 28
s_add_u32 s{sT0}, s{sT0}, s{sT1}
s_add_u32 s{sT0}, s{sT0}, s{sW}
s_and_b32 s{sT1}, s{sXCD}, 3
s_and_b32 s{sT3}, s{sIDX}, 3
s_lshl2_add_u32 s{sT2}, s{sT1}, s{sT3}
{xb}
s_mul_i32 s{sWB}, s{sT2}, {231*1024}
s_add_u32 s{sWB}, s{sWB}, {WS_WPF}
s_mul_i32 s{sXM}, s{sW}, {NS*1024}
s_mul_i32 s{sAB}, s{sT0}, 112
s_mul_i32 s{sT2}, s{sT2}, 7
s_add_u32 s{sAB}, s{sAB}, s{sT2}
s_lshl_b32 s{sAB}, s{sAB}, 10
s_add_u32 s{sAB}, s{sAB}, {WS_ACT}
s_lshr_b32 s{sFL}, s{sT0}, 1
s_lshl2_add_u32 s{sFL}, s{sFL}, s{sT1}
s_lshl_b32 s{sFL}, s{sFL}, 10
s_and_b32 s{sT0}, s{sT0}, 1
s_lshl2_add_u32 s{sT0}, s{sT0}, s{sT3}
s_lshl2_add_u32 s{sFL}, s{sT0}, s{sFL}
s_add_u32 s{sFL}, s{sFL}, {WS_FLAG}""".split('\n')
def d_maps(DM=0):
    head=f"""s_lshr_b32 s{sT1}, s{sIDX}, 3
s_lshl2_add_u32 s{sT2}, s{sXCD}, s{sT1}
s_and_b32 s{sT1}, s{sIDX}, 7""" if not DM else f"""s_lshr_b32 s{sT1}, s{sIDX}, 2
s_lshr_b32 s{sT2}, s{sXCD}, 1
s_lshl3_add_u32 s{sT2}, s{sT2}, s{sT1}
s_and_b32 s{sT1}, s{sIDX}, 3
s_and_b32 s{sT3}, s{sXCD}, 1
s_lshl2_add_u32 s{sT1}, s{sT3}, s{sT1}"""
    return f"""{head}
s_mul_i32 s{sT3}, s{sW}, {28*1024}
s_mul_i32 s{sA0}, s{sT2}, {224*1024}
s_add_u32 s{sA0}, s{sA0}, s{sT3}
s_add_u32 s{sA0}, s{sA0}, {WS_ACT}
s_mul_i32 s{sD0}, s{sT1}, {224*1024}
s_add_u32 s{sD0}, s{sD0}, s{sT3}
s_add_u32 s{sD0}, s{sD0}, {WS_WDF}
s_add_u32 s{sD1}, s{sD0}, {112*1024}
s_bitcmp1_b32 s{sW}, 0
s_cselect_b32 s{sPL}, {112*1024}, 0
s_add_u32 s{sD0}, s{sD0}, s{sPL}
s_sub_u32 s{sD1}, s{sD1}, s{sPL}
s_lshl2_add_u32 s{sPL}, s{sT2}, s{sW}
s_lshl_b32 s{sPL}, s{sPL}, 10
s_add_u32 s{sPL}, s{sPL}, {WS_FLAG}
s_mov_b32 s52, s{ka.sTAG}
s_mov_b32 s53, s{ka.sTAG}
s_lshl_b32 s{sNT}, s{sT2}, 1
s_and_b32 s{sT3}, s{sW}, 1
s_lshl_b32 s{sT3}, s{sT3}, 1
s_lshl2_add_u32 s{sMT}, s{sT1}, s{sT3}
s_lshr_b32 s{sT3}, s{sW}, 1
s_add_u32 s{sMT}, s{sMT}, s{sT3}
s_lshl_b32 s{sT3}, s{sT3}, 8
v_lshlrev_b32 v{vL16}, 4, v{vLANE}
v_xor_b32 v{vWL}, s{sT3}, v{vL16}""".split('\n')

class Stream:
    def __init__(s, base, tmp): s.base=base; s.tmp=tmp; s.cur=None
    def at(s, off):
        L=[]
        if s.cur is None or not (0<=off-s.cur<4096):
            s.cur=off; L.append(f"s_add_u32 s{s.tmp}, s{s.base}, {off}")
        return L, f"s{s.tmp} offen offset:{off-s.cur}"
ASTG0=[3,5,7]
def d_parts(cfg):
    e=[0]+cfg.get('ASTG',ASTG0)
    return [[7*jj+mt for jj in range(4) for mt in range(a,b)] for a,b in zip(e,e[1:])]
def flag_store(s):
    return ["s_mov_b64 exec, 1",f"buffer_store_dword v{vONE1}, v{vL16}, {sp(rWS,4)}, s{sFL} offen offset:{128*s} sc1","s_mov_b64 exec, -1"]
def flag_poll(s): return f"buffer_load_dword v{vPV}, v{vPA}, {sp(rWS,4)}, s{sPL} offen offset:{128*s} sc1"
def sflag_poll(s): return f"s_buffer_load_dwordx8 s[44:51], {sp(rWS,4)}, s{sPL} offset:{128*s} glc"
def spoll_check(P, name):
    P.I(f"L_{name}_chk:\ns_waitcnt lgkmcnt(0)")
    for i in range(4): P.I(f"s_xor_b64 s[{44+2*i}:{45+2*i}], s[{44+2*i}:{45+2*i}], s[52:53]")
    P.I(f"s_or_b64 s[44:45], s[44:45], s[46:47]\ns_or_b64 s[48:49], s[48:49], s[50:51]\ns_or_b64 s[44:45], s[44:45], s[48:49]\ns_cbranch_scc1 L_{name}_retry\nL_{name}_ok:")
def spoll_retry(P, name, s):
    P.I(f"L_{name}_retry:\ns_add_u32 s{sCNT}, s{sCNT}, 1\ns_cmp_gt_u32 s{sCNT}, 40000\n@loopok\ns_cbranch_scc1 L_{name}_ok\n{sflag_poll(s)}\n@loopok\ns_branch L_{name}_chk")
def wd_load_list(cfg,LD=''):
    S=[Stream(sD0,34),Stream(sD1,35)]; L=[]
    for f in sum(d_parts(cfg),[]):
        for m in range(2):
            pre,o=S[m].at(f*1024)
            L.append(pre+[f"buffer_load_dwordx4 {ar(8*f+4*m,4)}, v{vWL}, {sp(rWS,4)}, {o} {LD}"])
    return L
AX,AG=240,224
vXA,vPA,vPV,vONE1=253,254,252,251
vQV,vQA,sQP=15,248,99
def qpoll(q): return [f"s_mov_b32 s{sQP}, {WS_FX+(q<<(6+FS))}", f"buffer_load_dword v{vQV}, v{vQA}, {sp(rWS,4)}, s{sQP} offen sc1"]
def cost(x):
    s=x[0] if isinstance(x,tuple) else x
    o=s.split()[0]
    return 2 if (o in TRANS or o=='s_barrier') else 1

class RawWd:
    def __init__(s, order, srd, vsrc, sbase, stmp, pol=''):
        s.todo=list(order); s.flying=[]; s.done=set(); s.srd=srd; s.vsrc=vsrc; s.sbase=sbase; s.stmp=stmp; s.half=0; s.chalf=0; s.pol=pol; s.n=0
    def area(s, slots):
        assert not s.half
        s.slots=list(slots); s.n=0
    def issue_half(s, now):
        f=s.todo[0]; sl=s.slots[s.n%len(s.slots)]; u=s.half
        assert all(x[1]!=sl for x in s.flying)
        L=[f"s_add_u32 m0, s{sl[0]}, {sl[1]+u*1024}", f"s_add_u32 s{s.stmp}, s{s.sbase}, {f*16384+u*8192}",
           (f"buffer_load_dwordx4 v{s.vsrc}, {sp(s.srd,4)}, s{s.stmp} offen {s.pol} lds", f"rw{f}")]
        s.half^=1
        if not s.half: s.todo.pop(0); s.flying.append((f,sl,now)); s.n+=1
        return L
    def convert_half(s):
        f,sl,_=s.flying[0]; m=s.chalf
        L=([f"@wait rw{f}"] if m==0 else [])+[f"ds_read_b64_tr_b16 {ar(8*f+4*m+2*hf,2)}, v{sl[2][m]} offset:{sl[3]+hf*512}" for hf in range(2)]
        s.chalf^=1
        if not s.chalf: s.flying.pop(0); s.done.add(f)
        return L

class PhaseC:
    def __init__(s, cfg):
        s.cfg=cfg
        seq=[(t,ks) for ks in range(32) for t in range(G1)]
        AUXAT=cfg.get('AUXAT',16-G1)
        t3=[(G1,ks) for ks in range(33)]
        seq+= t3[:AUXAT]+[(t,32) for t in range(G1)]+t3[AUXAT:]
        for t in range(G1+1,7): seq+=[(t,ks) for ks in range(33)]
        s.seq=seq; s.N=N=len(seq); assert N==231
        s.P1=32*G1
        b=cfg.get('STG') or ([0,8,16]+list(range(32,232,16))+[232])
        s.bounds=b; s.nst=len(b)-1
        for q in range(s.nst):
            assert sorted(s.gpos(*x) for x in seq[b[q]:b[q+1]])==list(range(b[q],min(b[q+1],N))), q
            assert b[q]//RING==(b[q+1]-1)//RING
        s.QR={c:sQ+2*i for i,c in enumerate(sorted({(b[q+1]-b[q])//4 for q in range(s.nst)}))}
        s.LOOK=cfg.get('LOOK',6); s.XL=cfg.get('XL',6)
        s.mem=[]; s.m0=None; s.now=-1
        QG=s.QG=cfg.get('QG',[-1,0,2,3])
        for q in range(s.nst):
            gate=-1
            if b[q+1]>RING: gate=max(z for z in range(s.nst) if b[z]<b[q+1]-RING)+2
            if cfg.get('QSYNC',0): gate=max(gate,QG[min(3,(b[q+1]-1)//(8*G1))])
            for u in range((b[q+1]-b[q])//4): s.mem.append((max(b[q]-s.LOOK,0),gate,('w',q,u)))
        XG=cfg.get('XGRP',2)
        for ks in range(32): s.mem.append((max(G1*(ks-ks%XG)-s.XL,0),QG[ks>>3] if cfg.get('QSYNC',0) else -1,('x',ks)))
        s.mem.sort(key=lambda e:e[0])
    def gpos(s,t,ks): return (G1*ks+t) if t<G1 else 33*t+ks
    def setup(s):
        L=[]
        for c,r in s.QR.items(): L+=[f"s_mul_i32 s{r}, s{sW}, {c*1024}", f"s_add_u32 s{r+1}, s{r}, s{sWB}"]
        L+=f"""v_lshlrev_b32 v{vL16}, 4, v{vLANE}
v_lshrrev_b32 v8, 5, v{vLANE}
v_bfe_u32 v9, v{vLANE}, 2, 2
v_lshl_add_u32 v8, v8, 3, v9
v_bfe_u32 v9, v{vLANE}, 4, 1
v_lshl_add_u32 v8, v8, 1, v9
v_and_b32 v10, 3, v{vLANE}
v_lshl_add_u32 v8, v8, 2, v10
v_lshl_add_u32 v{vXA}, v8, 3, s{sXM}
v_add_u32 v3, {L_RING}, v{vL16}
v_add_u32 v7, {L_RING+0x10000}, v{vL16}
v_and_b32 v8, 31, v{vLANE}
v_and_b32 v10, 32, v{vLANE}
v_lshlrev_b32 v10, 4, v10
v_lshl_add_u32 v8, v8, 2, v10
v_add_u32 v249, {L_RING}, v8
v_add_u32 v250, {L_RING+0x10000}, v8
v_and_b32 v8, 15, v{vLANE}
v_cmp_eq_u32 vcc, v8, v9
v_mov_b32 v10, 0x3f803f80
v_and_b32 v{vPA}, 7, v{vLANE}
v_lshlrev_b32 v{vPA}, 2, v{vPA}
v_cndmask_b32 v56, 0, v10, vcc
v_cndmask_b32 v57, 0, v10, vcc
v_cndmask_b32 v58, 0, v10, vcc
v_cndmask_b32 v59, 0, v10, vcc""".split('\n')
        return L
    def memop(s,e):
        if e[0]=='w':
            _,q,u=e; c=(s.bounds[q+1]-s.bounds[q])//4; key=('w',q,u//4); u0=u-u%4
            pre=[f"s_add_u32 m0, s{s.QR[c]}, {L_RING+(s.bounds[q]%RING+u0)*1024}", f"s_add_u32 s{sT0}, s{s.QR[c]+1}, {(s.bounds[q]+u0)*1024}"]
            tag=f"w{q}"; off=(u%4)*1024; ld=s.cfg.get('WLD','')
        else:
            ks=e[1]; key=('x',ks//4); k0=ks-ks%4
            assert ks<NS or s.now>=G1*(ks-NS), (ks,s.now)
            pre=[f"s_add_u32 m0, s{sXM}, {L_XS+(k0%NS)*1024}", f"s_add_u32 s{sT0}, s{sXB}, {k0*1024}"]
            tag=f"x{ks}"; off=(ks%4)*1024; ld=s.cfg.get('XLD','')
        L=[] if s.m0==key else pre
        s.m0=key
        if e[0]=='x' and ka.XIN:
            return L[:1]+[f"s_mov_b32 s{sXB}, {WS_XG+ks*98304-off}",(f"buffer_load_dwordx4 v13, {sp(rWS,4)}, s{sXB} offen offset:{off} {ld} lds",tag)]
        return L+[(f"buffer_load_dwordx4 v{vL16}, {sp(rWS,4)}, s{sT0} offen offset:{off} {ld} lds",tag)]
    def pre(s,P,n,kinds='wx'):
        k=0
        while n>0 and k<len(s.mem):
            if s.mem[k][2][0] in kinds and s.mem[k][1]<0: P.extend(s.memop(s.mem.pop(k)[2])); n-=1
            else: k+=1
    def run(s,P,diag,wd,extra_side,D,raw=None):
        cfg=s.cfg; seq=s.seq; N=s.N; bounds=s.bounds; mem=s.mem; LOOK=s.LOOK; XL=s.XL; P1=s.P1
        ST='sc1'; ends=cfg.get('ASTG',ASTG0)
        X0=120
        xr=lambda ks: vr(X0+4*ks,4) if ks<32 else vr(44,4)
        NACC=4; ACC=[72,88,104,56]
        WF=[20+4*i for i in range(6)]; NWF=6
        SQ,SM,ONE,SQ2=48,52,56,16
        C0,C1,IR2=4,5,6; TA=8
        RA=[3,7]; RA2=[249,250]
        def rd(n):
            pos=(s.gpos(*seq[n])%RING)*1024
            if seq[n][1]==32:
                return [(f"ds_read_b32 v{WF[n%NWF]+q}, v{RA2[pos>>16]} offset:{(pos&0xffff)+128*q}", f"r{n}") for q in range(4)]
            return [(f"ds_read_b128 {vr(WF[n%NWF],4)}, v{RA[pos>>16]} offset:{pos&0xffff}", f"r{n}")]
        def xrd(ks): return [f"@wait x{ks}"]+[f"ds_read_b64_tr_b16 {vr(X0+4*ks+2*hf,2)}, v{vXA} offset:{L_XS+(ks%NS)*1024+hf*256}" for hf in range(2)]
        accof=lambda t: ACC[t%NACC]
        EW=cfg.get('EW',4)
        def epi(t):
            a=accof(t); L=[]
            for g in range(8//EW):
                ia=list(range(EW*g,EW*g+EW)); T=TA
                L+=[f"v_mul_f32 v{T+k}, v{a+i}, v{a+i}" for k,i in enumerate(ia)]
                L+=[f"v_fma_f32 v{T+k}, v{T+k}, v{C1}, v{C0}" for k,i in enumerate(ia)]
                L+=[f"v_mul_f32 v{T+k}, v{T+k}, v{a+i}" for k,i in enumerate(ia)]
                for k,i in enumerate(ia): L+=[f"v_exp_f32 v{T+k}, v{T+k}", f"v_mul_f32 v{a+8+i}, v{a+i}, v{a+8+i}"]
                for k,i in enumerate(ia):
                    L+=[f"v_fma_f32 v{a+i}, v{T+k}, v{IR2}, v{IR2}"]
                    if k: L+=[f"v_rcp_f32 v{a+i-1}, v{a+i-1}"]
                L+=[f"v_mul_f32 v{a+8+ia[0]}, v{a+8+ia[0]}, v{a+ia[0]}", f"v_rcp_f32 v{a+ia[-1]}, v{a+ia[-1]}"]
                L+=[f"v_mul_f32 v{a+8+i}, v{a+8+i}, v{a+i}" for i in ia[1:]]
                L+=[f"v_cvt_pk_bf16_f32 v{16+i//2}, v{a+8+i}, v{a+9+i}" for i in ia[::2]]
            L.append((f"buffer_store_dwordx4 v[16:19], v{vL16}, {sp(rWS,4)}, s{sAB} offen offset:{(t%4)*1024} {ST}",f'act{t}'))
            if t==3: L.append(f"s_add_u32 s{sAB}, s{sAB}, 4096")
            return L
        if cfg.get('NOTRANS'):
            e0=epi; epi=lambda t:[y for x in e0(t) for y in ([x.replace('v_exp_f32','v_mov_b32').replace('v_rcp_f32','v_mov_b32')]*2 if isinstance(x,str) and x.split()[0] in TRANS else [x])]
        if cfg.get('NOST'):
            e2=epi; epi=lambda t:[(('s_nop 0',x[1]) if isinstance(x,tuple) else x) for x in e2(t)]
        if cfg.get('NOEPI'):
            e1=epi; epi=lambda t:[x for x in e1(t) if not (isinstance(x,str) and x.startswith('v_'))]
        k0=-2*0.7978845608028654*1.4426950408889634; k1=k0*0.044715
        fin=f"""v_and_b32 v11, 15, v{vLANE}
v_lshlrev_b32 v11, 2, v11
v_and_b32 v8, 3, v{vLANE}
v_cmp_eq_u32 vcc, 1, v8
v_cmp_eq_u32 {sp(sT2)}, 2, v8
v_and_b32 v10, 16, v{vLANE}
ds_bpermute_b32 v12, v11, v{SM}
ds_bpermute_b32 v13, v11, v{SM+1}
v_add_f32 v{SQ}, v{SQ}, v{SQ2}
v_add_f32 v{SQ+1}, v{SQ+1}, v{SQ2+1}
v_add_f32 v{SQ+2}, v{SQ+2}, v{SQ2+2}
v_add_f32 v{SQ+3}, v{SQ+3}, v{SQ2+3}
v_cndmask_b32 v9, v{SQ}, v{SQ+1}, vcc
v_cmp_eq_u32 vcc, 3, v8
v_cndmask_b32 v9, v9, v{SQ+2}, {sp(sT2)}
v_cmp_eq_u32 {sp(sT2)}, 0, v10
v_cndmask_b32 v9, v9, v{SQ+3}, vcc
v_mov_b32 v8, v9
v_nop
v_nop
v_permlane32_swap_b32 v8, v9
v_add_f32 v9, v8, v9
v_mul_f32 v9, 0x3b000000, v9
v_cndmask_b32 v12, v13, v12, {sp(sT2)}
v_mul_f32 v12, 0x3b000000, v12
v_fma_f32 v9, -v12, v12, v9
v_max_f32 v9, 0, v9
v_cvt_pk_bf16_f32 v9, v9, v9
v_and_b32 v9, 0xffff0000, v9
v_add_f32 v9, 0x3727c5ac, v9
v_cvt_pk_bf16_f32 v9, v9, v9
v_and_b32 v9, 0xffff0000, v9
v_sqrt_f32 v9, v9
v_nop
v_cvt_pk_bf16_f32 v44, -v12, v9
v_and_b32 v9, 0xffff0000, v44
v_mov_b32 v45, v44
v_rcp_f32 v8, v9
v_mov_b32 v46, v44
v_mov_b32 v47, v44
v_mul_f32 v{IR2}, v9, v9
v_mul_f32 v{C0}, {hex(f32(k0))}, v8
v_mul_f32 v10, v8, v8
v_mul_f32 v{C1}, {hex(f32(k1))}, v8
v_mul_f32 v{C1}, v{C1}, v10""".split('\n')
        done_at={}
        for n,(t,ks) in enumerate(seq):
            if ks==32: done_at[t]=n
        side=[(0,x) for x in extra_side]+[(P1,x) for x in fin]
        for t in range(6): side+=[(done_at[t]+3,x) for x in epi(t)]
        RX=cfg.get('RXAT',P1+40)
        blocks={RX:[f"s_lshl_b32 s{sT1}, s{sNT}, 5",f"s_add_u32 s{sT1}, s{sT1}, s{sMT}",f"s_lshl_b32 s{sT1}, s{sT1}, 10",f"s_add_u32 s{sT1}, s{sT1}, {WS_X1B}"],
                RX+1:['@m0',f"s_add_u32 m0, s{sXM}, {L_XS}",f"s_add_u32 s{sT4}, s{sT1}, {32768-1024}",(f"buffer_load_dwordx4 v{vL16}, {sp(rWS,4)}, s{sT1} offen {cfg.get('XLD','')} lds",'rx'),
                      (f"buffer_load_dwordx4 v{vL16}, {sp(rWS,4)}, s{sT4} offen offset:1024 {cfg.get('XLD','')} lds",'rx')],
                RX+3:[f"s_lshl_b32 s{sT1}, s{sMT}, 6",f"s_add_u32 s{sT1}, s{sT1}, {WS_GBF}",f"v_and_b32 v{vPV}, 32, v{vLANE}"],
                RX+4:[f"buffer_load_dwordx4 {ar(AG+4*q,4)}, v{vPV}, {sp(rWS,4)}, s{sT1} offen offset:{16*q} {cfg.get('WLD','')}" for q in range(2)],
                RX+44:["@wait rx"]+[f"ds_read_b64_tr_b16 {ar(AX+2*q,2)}, v{vXA} offset:{L_XS+(q>>1)*1024+(q&1)*256}" for q in range(4)],
                cfg.get('P0AT',217):[flag_poll(0)]}
        if ka.XIN:
            xs=xsrc(13,sNT)
            blocks[RX-2]=xs[:4]; blocks[RX-1]=xs[4:]+["v_xor_b32 v12, 128, v13"]
            blocks[RX]=[f"s_mul_i32 s{sT1}, s{sMT}, 98304",f"s_add_u32 s{sT1}, s{sT1}, {WS_XG}"]
            blocks[RX+1]=['@m0',f"s_add_u32 m0, s{sXM}, {L_XS}",f"s_sub_u32 s{sT4}, s{sT1}, 1024",(f"buffer_load_dwordx4 v13, {sp(rWS,4)}, s{sT1} offen sc1 lds",'rx'),
                      (f"buffer_load_dwordx4 v12, {sp(rWS,4)}, s{sT4} offen offset:1024 sc1 lds",'rx')]
        if cfg.get('QSYNC',0):
            for q,at in zip((2,3),cfg.get('QAT2',[1,14])): blocks[at]=qpoll(q)
        C0AT=cfg.get('C0AT',999)
        D.nflag=0; flag_at={}; log=[]
        opened=[-1]
        def emit(L):
            c=0
            for x in L:
                if x=='@m0': s.m0=None; continue
                P.extend([x]); c+=cost(x)
            return c
        def force(pred):
            c=0
            while any(pred(e[2]) for e in mem):
                assert mem[0][1]<=opened[0], mem[0]
                c+=emit(s.memop(mem.pop(0)[2]))
            return c
        def open_stage(q):
            c=force(lambda e: e[0]=='w' and e[1]==q)
            opened[0]=q
            if cfg.get('QSYNC',0) and q in s.QG: poll_check(P,f'fx{s.QG.index(q)}',vPV=vQV); c+=3; stamp(P,25+s.QG.index(q),diag)
            x_=cfg.get('XBAR',0) if bounds[q]>P1 else 0
            c+=emit([[f"@wait w{q}","s_barrier"],[f"@wait w{q}"],["s_barrier"],[]][x_])
            if cfg.get('QSYNC',0) and q in s.QG:
                for _ in range(cfg.get('QBURST',[5,3,2])[s.QG.index(q)-1]):
                    if mem[0][1]<=q and (mem[0][2][0]=='w' or s.now>=G1*(mem[0][2][1]-NS)): c+=emit(s.memop(mem.pop(0)[2]))
            if cfg.get('SSTAMP'): stamp(P,(2+q if q<10 else 9+q),diag)
            return c
        xnext=0
        open_stage(0)
        while G1*xnext<XL: force(lambda e: e==('x',xnext)); emit(xrd(xnext)); xnext+=1
        for n in range(LOOK): P.extend(rd(n))
        DIST=cfg.get('DIST',24); DIST2=cfg.get('DIST2',48); WB=cfg.get('WB',3)
        started=set(); mb=0.0; wdb=0.0; quiet=0
        P.I("@mark c1")
        for n,(t,ks) in enumerate(seq):
            a=accof(t)
            if n==P1: P.I("@mark c2")
            if t>=NACC and ks==0:
                while side and side[0][0]<=done_at[t-NACC]+3: emit([side.pop(0)[1]])
            if ks==32 and t==0:
                while side and side[0][0]<=P1: emit([side.pop(0)[1]])
            if n%WB==0: P.I(f"@wait r{min(n+WB-1,N-1)}")
            P.I(f"v_mfma_f32_32x32x16_bf16 {vr(a,16)}, {vr(WF[n%NWF],4)}, {xr(ks)}, {vr(a,16) if t in started else 0}"); started.add(t)
            s.now=n
            free=cfg.get('CAP',6)-((n+1)%WB==0)
            if xnext<32 and G1*xnext-XL<=n:
                free-=force(lambda e: e==('x',xnext)); free-=emit(xrd(xnext)); xnext+=1
            m=n+LOOK
            if m<N:
                if m in bounds: free-=open_stage(bounds.index(m))
                free-=emit(rd(m))
            used=False
            if n in blocks: free-=emit(blocks.pop(n)); used=True
            elif n>=flag_at.get(D.nflag,999) and free>=4:
                free-=emit([f"@wait act{ends[D.nflag]-1}"]+flag_store(D.nflag)); D.nflag+=1; used=True; log.append(n)
            if n==C0AT: poll_check(P,'p0'); stamp(P,14,diag); free-=3; used=True
            rate = cfg.get('RATE1',0.9) if n<P1 else cfg.get('RATE2',0.5)
            mb=min(mb+rate,1.0+(rate if n<P1 else cfg.get('BURST2',rate)))
            if n<quiet: mb=min(mb,0.99)
            nxt_st=[i for i,(r_,x_) in enumerate(side[:cfg.get('PREQ',0)]) if isinstance(x_,tuple) and r_<=n]
            if nxt_st: mb=min(mb,0.99)
            if not used and mem and mb>=1 and mem[0][0]-(DIST if n<P1 else DIST2)<=n and mem[0][1]<=opened[0] and (free>=3 or n<P1) and (mem[0][2][0]=='w' or n>=G1*(mem[0][2][1]-NS)):
                free-=emit(s.memop(mem.pop(0)[2])); used=True; mb-=1
            if raw:
                if raw.flying and n>=raw.flying[0][2]+cfg.get('RAWD',40) and free>=3: free-=emit(raw.convert_half())
                if not used and raw.todo and len(raw.flying)<len(raw.slots) and cfg.get('WDFROM',P1+4)<=n<N-cfg.get('RAWD',40):
                    wdb=min(wdb+cfg.get('WDPER',0.2),2)
                    if wdb>=1 and mb>=1 and free>=3: free-=emit(['@m0']+raw.issue_half(n)); wdb-=1; mb-=1
            if not used and n>C0AT and mb>=1 and free>=2 and D.li<min(cfg.get('DAHEAD',14),n-197) and D.can_load():
                free-=emit(D.load()); mb-=1; used=True
            if not used and wd and cfg.get('WDFROM',P1+4)<=n<C0AT:
                wdb=min(wdb+(cfg.get('WDPER1',0.2) if n<P1 else cfg.get('WDPER',0.2)),2)
                if wdb>=1 and mb>=1 and free>=2: free-=emit(wd.pop(0)); wdb-=1; mb-=1
            while side and side[0][0]<=n and cost(side[0][1])<=free:
                x=side.pop(0)[1]; free-=emit([x])
                if isinstance(x,tuple) and x[1].startswith('act'):
                    log.append((x[1],n)); quiet=n+1+cfg.get('QUIET',0)
                    if cfg.get('STEND',0): free=0
                    if int(x[1][3:])+1 in ends: flag_at[ends.index(int(x[1][3:])+1)]=n+cfg.get('FLAGD',26)
            if n<P1 and t==G1-1:
                x=X0+4*ks
                P.I(f"v_mfma_f32_4x4x4_16b_bf16 {vr(SQ,4)}, {vr(x,2)}, {vr(x,2)}, {vr(SQ,4) if ks else 0}")
                P.I(f"v_mfma_f32_4x4x4_16b_bf16 {vr(SQ2,4)}, {vr(x+2,2)}, {vr(x+2,2)}, {vr(SQ2,4) if ks else 0}")
                P.I(f"v_mfma_f32_16x16x32_bf16 {vr(SM,4)}, {vr(ONE,4)}, {vr(x,4)}, {vr(SM,4) if ks else 0}")
            if n==P1-1: stamp(P,12,diag)
        P.I("@mark end")
        assert D.nflag and not blocks and not mem
        print('phase C: side left', len(side), 'stores/flags', log, 'Wd left', len(wd), 'raw todo/flying', (len(raw.todo),len(raw.flying),raw.half,raw.chalf) if raw else None)
        stamp(P,13,diag)
        return [x for _,x in side]+epi(6), {q:v-N for q,v in flag_at.items()}

def poll_check(P, name, need=None, diag=None, vPV=vPV):
    P.I(f"""L_{name}_chk:
v_cmp_ne_u32 vcc, v{vONE1}, v{vPV}
s_cbranch_vccnz L_{name}_retry
L_{name}_ok:""")
def poll_retry(P, name, off, vPV=vPV, vPA=vPA, sPL=sPL, loc=0):
    P.I(f"""L_{name}_retry:
s_add_u32 s{sCNT}, s{sCNT}, 1
s_cmp_gt_u32 s{sCNT}, 40000
s_waitcnt vmcnt(0) lgkmcnt(0)
s_cbranch_scc1 L_{name}_ok""")
    P.extend(ka.writeback(sCNT,f'L_{name}_nowb',loc))
    P.I(f"""buffer_load_dword v{vPV}, v{vPA}, {sp(rWS,4)}, s{sPL} offen offset:{off} sc1
s_waitcnt vmcnt(0)
s_branch L_{name}_chk""")

class PhaseD:
    def __init__(s, P, cfg, diag, wd):
        s.P=P; s.cfg=cfg; s.diag=diag; s.wd=wd
        s.parts=d_parts(cfg); s.ends=cfg.get('ASTG',ASTG0); s.order=sum(s.parts,[])
        s.ACC=[[184,200],[216,232]]; s.BUF=[120+4*i for i in range(16)]; s.NB=16
        SK=cfg.get('DSKEW',8)
        s.work=[(f,n) for i,f in enumerate(s.order) for n in range(2) if n==0 or i<28-SK]+[(f,1) for f in s.order[28-SK:]]
        s.first={q:min(k for k,(f,n) in enumerate(s.work) if f in s.parts[q]) for q in range(len(s.parts))}
        s.S=[Stream(sA0,36),Stream(sA0,37)]; s.li=0; s.nflag=0; s.polled=0; s.inD=False
    def can_load(s):
        for q,k0 in s.first.items():
            if q and s.li==k0 and s.nflag<(len(s.ends) if q>=s.cfg.get('CK',1) else q+1): return False
        return True
    def load(s):
        k=s.li; s.li+=1; f,n=s.work[k]; L=[]; PL=s.cfg.get('PL2',8)
        nxt=s.polled+1
        if nxt in s.first and k>=max(s.first[nxt]-PL,s.first[nxt-1]+1) and s.nflag>nxt and (s.inD or not s.cfg.get('SPOLL',0)): L.append((sflag_poll if s.cfg.get('SPOLL',0) else flag_poll)(nxt)); s.polled=nxt
        for q,k0 in s.first.items():
            if q and k==k0:
                assert s.polled>=q
                s.P.extend(L); L=[]; (spoll_check if s.cfg.get('SPOLL',0) else poll_check)(s.P,f'p{q}'); stamp(s.P,22+q,s.diag)
        while s.wd and 56-len(s.wd)<2*s.order.index(f)+2: L+=s.wd.pop(0)
        pre,o=s.S[n].at(n*112*1024+f*1024)
        return L+pre+[f"buffer_load_dwordx4 {vr(s.BUF[k%s.NB],4)}, v{vL16}, {sp(rWS,4)}, {o} sc1"]
    def run(s, ctail, flag_due):
        P=s.P; cfg=s.cfg; diag=s.diag; work=s.work; ACC=s.ACC; ends=s.ends
        AH=cfg.get('DAHEAD',14); assert AH<=s.NB; s.inD=True
        nA=max(k for k,(f,n) in enumerate(work) if n==0)
        GB=44; XF=56; R=[120,144]; RD=[72,73,74]; VO,VW=75,76
        fill=f"""v_add_u32 v{VW}, s{sXM}, v{vL16}
s_lshl_b32 s{sT2}, s{sNT}, 15
s_lshl_b32 s{sT1}, s{sMT}, 5
s_add_u32 s{sT2}, s{sT2}, s{sT1}
s_add_u32 s{sT3}, s{sT2}, 32768
v_and_b32 v{VO}, 31, v{vLANE}
v_lshrrev_b32 v77, 5, v{vLANE}
v_lshlrev_b32 v{VO}, 10, v{VO}
v_lshl_add_u32 v{VO}, v77, 4, v{VO}""".split('\n')
        fill+=[f"v_xor_b32 v{RD[j-1]}, {j*NS*1024}, v{VW}" for j in (1,2,3)]
        fill+=[f"v_accvgpr_read_b32 v{GB+k}, a{AG+k}" for k in range(8)]
        fill+=[f"v_accvgpr_read_b32 v{XF+2*k+1}, a{AX+k}" for k in range(8)]
        for k in range(8): fill+=[f"v_lshlrev_b32 v{XF+2*k}, 16, v{XF+2*k+1}", f"v_and_b32 v{XF+2*k+1}, 0xffff0000, v{XF+2*k+1}"]
        side=list(ctail)+fill
        wr=[[f"ds_write_b128 v{VW}, {vr(ACC[n][j&1]+8*(j>>1)+4*q,4)} offset:{L_XS+n*8192+j*2048+q*1024}" for j in (2,1,3) for q in range(2)] for n in range(2)]
        started=set(); g=0; FD=cfg.get('FLAGD2',26)
        if cfg.get('C0AT',999)>=231: poll_check(P,'p0'); stamp(P,14,diag)
        TL=cfg.get('TAILLD',6)
        if TL:
            nt=len(ctail); per=-(-nt//TL)
            while nt>0:
                if s.li<AH and s.can_load(): P.extend(s.load())
                c=min(per,nt); P.extend(side[:c]); side=side[c:]; nt-=c
            while s.nflag<len(ends)-1:
                P.I(f"@wait act{ends[s.nflag]-1}"); P.extend(flag_store(s.nflag)); s.nflag+=1
            while s.li<AH and s.can_load(): P.extend(s.load())
            flag_due[len(ends)-1]=cfg.get('FL2',10)
        stamp(P,15,diag)
        P.I("@mark d")
        for k,(f,n) in enumerate(work):
            while s.li<=k:
                if not s.can_load():
                    P.extend(side); side=[]
                    P.I(f"@wait act{ends[s.nflag]-1}"); P.extend(flag_store(s.nflag)); s.nflag+=1; print('  D: forced flag at',k)
                else: P.extend(s.load())
            for m in range(2):
                a=vr(ACC[n][m],16)
                P.I(f"v_mfma_f32_32x32x16_bf16 {a}, {ar(8*f+4*m,4)}, {vr(s.BUF[k%s.NB],4)}, {a if (n,m) in started else 0}"); started.add((n,m))
                g+=1; free=6-m
                if s.nflag<len(ends) and g>=flag_due.get(s.nflag,999):
                    P.I(f"@wait act{ends[s.nflag]-1}"); P.extend(flag_store(s.nflag)); print('  D: flag',s.nflag,'at item',k,'li',s.li); s.nflag+=1; free-=4
                if s.li<len(work) and s.li<=k+AH-(1-m) and s.li-s.NB<k+m and s.can_load():
                    L=s.load(); P.extend(L); free-=len(L)
                if m and k>nA+1 and wr[0]: P.I(wr[0].pop(0)); free=0
                while side and g>=2 and cost(side[0])<=free:
                    x=side.pop(0); P.extend([x]); free-=cost(x)
                    if isinstance(x,tuple) and int(x[1][3:])+1 in ends: flag_due[ends.index(int(x[1][3:])+1)]=g+FD
        P.I("@mark end")
        assert not side and s.nflag==len(ends)
        P.extend(wr[0])
        stamp(P,17,diag)
        def reads(n): return [f"ds_read_b128 {vr(R[n]+8*(j-1)+4*q,4)}, v{RD[j-1]} offset:{L_XS+n*8192+j*2048+q*1024}" for j in (1,2,3) for q in range(2)]
        def final(n):
            r=R[n]; a=ACC[n][0]; L=[]
            for k in range(0,8,2): L+=[f"v_pk_add_f32 {vr(r+k,2)}, {vr(r+k,2)}, {vr(a+k,2)}"]
            for k in range(0,8,2): L+=[f"v_pk_add_f32 {vr(r+8+k,2)}, {vr(r+8+k,2)}, {vr(r+16+k,2)}"]
            for k in range(0,8,2): L+=[f"v_pk_add_f32 {vr(r+k,2)}, {vr(r+k,2)}, {vr(r+8+k,2)}"]
            for k in range(0,8,2): L+=[f"v_pk_fma_f32 {vr(r+k,2)}, {vr(r+k,2)}, {vr(GB+k,2)}, {vr(XF+8*n+k,2)}"]
            for k in range(0,8,2): L+=[f"v_cvt_pk_bf16_f32 v{8+4*n+k//2}, v{r+k}, v{r+k+1}"]
            if not cfg.get('NOOUT'): L.append(f"buffer_store_dwordx4 {vr(8+4*n,4)}, v{VO}, {sp(rOUT,4)}, s{sT2+n} offen {cfg.get('OST','')}")
            return L
        P.extend(wr[1])
        P.I("s_waitcnt lgkmcnt(0)\ns_barrier")
        P.extend(reads(0)); P.extend(reads(1)); P.extend(final(0)); P.extend(final(1))
```

```python
from prog import *
from layout import *
import ka, kc
from ka import sp, vr, mksrd, stamp, stamp_out, rWS, rWJ, rOUT, sW, sTAG, sP, sIDX, sXCD, sFS, sCG, sKE, sT0, sT1, sT2, sT3
NAME='adaLN_cond__ssm_conv_s4__geglu_ffn__prompt_kernel'
sFXo,sFDo,sFXi,sFDi,sFWo,sFWi = 40,41,99,93,89,92
vTG=251; vFV,vFA,vFB=247,246,252
T4=248
def build(P, diag, cfg):
    cfg=dict(cfg); cfg.update(XST='sc1',ST='sc1',WLD='sc1',XLD='sc1')
    kc.FS=cfg.get('FS',4); ka.XIN=cfg.get('XIN',0); ka.ONLY=cfg.get('ONLY')
    C=kc.PhaseC(cfg)
    L=ka.vLANE
    FS=cfg.get('FS',4)
    EX=hex((1<<(1<<(FS-4)))-1)
    def line(so, reg, r=rWS):
        return [f"s_mov_b64 exec, {EX}", f"buffer_store_dwordx4 {vr(reg,4)}, v{ka.vL16}, {sp(r,4)}, s{so} offen sc1", "s_mov_b64 exec, -1"]
    H={}
    H['setup']=mksrd(rOUT,ka.sOUT,2097152)+f"""s_lshl_b32 s{sFXo}, s{sP}, {FS}
s_add_u32 s{sFXo}, s{sFXo}, {WS_FX}
s_and_b32 s{sT0}, s{sFS}, 1
s_mul_i32 s{sT0}, s{sT0}, 112
s_lshr_b32 s{sFDo}, s{sFS}, 1
s_add_u32 s{sFDo}, s{sFDo}, s{sT0}
s_lshl_b32 s{sFDo}, s{sFDo}, {FS}
s_add_u32 s{sFDo}, s{sFDo}, {WS_FD}
s_lshl3_add_u32 s{sFWo}, s{sCG}, s{sKE}
s_lshl_b32 s{sFWo}, s{sFWo}, {FS}
s_add_u32 s{sFWo}, s{sFWo}, {WS_FW}
v_min_u32 v{vFA}, 27, v{L}
v_lshlrev_b32 v{vFA}, {FS}, v{vFA}""".split('\n')
    def idle(P):
        for i in range(4): P.I(f"v_mov_b32 v{T4+i}, s{sTAG}")
        P.I(f"""{f's_and_b32 s{sT0}, s{sXCD}, 1' if cfg.get('DM',0) else f's_bfe_u32 s{sT0}, s{sIDX}, 0x10002'}
s_lshl2_add_u32 s{sT0}, s{sT0}, s{sW}
s_mul_i32 s{sT0}, s{sT0}, {28<<FS}
s_add_u32 s{sFDi}, s{sT0}, {WS_FD}
s_cmp_lg_u32 s{sW}, 3
s_cbranch_scc1 L_main""")
        if cfg.get('TOUCH',1): P.I("s_mov_b64 exec, 0\ns_branch L_touch0\nL_touched:\ns_mov_b64 exec, -1")
        P.I(f"s_lshl_b32 s{sT0}, s{sP}, 9\ns_add_u32 s{sT0}, s{sT0}, {WS_FLAG}")
        for i in range(4): P.I(f"v_add_u32 v{4+i}, -1, v{T4}")
        P.I(f"s_waitcnt vmcnt({0 if cfg.get('M2AT',0) else 8})\ns_mov_b32 exec_hi, 0")
        P.I(line(sT0,4)[1]); P.I(f"s_mov_b64 exec, {EX}")
        P.I(line(sFXo,4)[1]); P.I(line(sFDo,4,rWJ)[1])
        if cfg.get('FW',0): P.I(line(sFWo,4,rWJ)[1])
        P.I(f"s_mov_b64 exec, -1\ns_branch {'L_f1' if cfg.get('CUT',0) else 'L_xje'}\n.p2align 12\nL_main:")
    H['idle']=idle; H['own_param_wait']=True
    H['midbar']=[f"s_cmp_lg_u32 s{sW}, 3","s_cbranch_scc1 L_nofd"]+line(sFDo,T4,rWJ)+["L_nofd:"]
    H['postbar' if cfg.get('FDP',0) else 'pre']=[f"buffer_load_dword v{vFV}, v{vFA}, {sp(rWS,4)}, s{sFDi} offen sc1"]
    FW=cfg.get('FW',0)
    if FW:
        H['prebar']=["@wait wpst"]
        H['postbar']=[f"s_cmp_lg_u32 s{sW}, 3","s_cbranch_scc1 L_nofw"]+line(sFWo,T4,rWJ)+["L_nofw:"]
    ka.body(P,NAME,diag,cfg,H)
    stamp(P,9,diag)
    wd=kc.wd_load_list(cfg,'sc1')
    P.extend(kc.d_maps(cfg.get('DM',0)))
    P.I(f"s_mov_b32 s{kc.sCNT}, 1")
    kc.poll_check(P,'fd',vPV=vFV)
    if diag: P.I(f"v_writelane_b32 v255, s{kc.sCNT}, 62\nv_writelane_b32 v255, s{ka.sCNT}, 61")
    for i in range(cfg.get('WDA',8)): P.extend(wd.pop(0))
    P.I(f"s_cmp_lg_u32 s{sW}, 3\n@wait x1st auxst wpst\ns_barrier\ns_cbranch_scc1 L_nofx")
    P.extend(line(sFXo,T4))
    P.I(f"""s_cmp_lg_u32 s2, 0
s_cbranch_scc1 L_nofx
s_mov_b64 exec, 1
buffer_store_dword v{vTG}, v{ka.vL16}, {sp(rWS,4)}, {WS_EPOCH} offen
s_mov_b64 exec, -1
L_nofx:""")
    stamp(P,19,diag)
    fill=kc.c_maps()+C.setup()+[f"v_lshlrev_b32 v{vFA}, {FS}, v0", f"s_mov_b32 s{sFXi}, {WS_FX}"]
    fill+=f"""s_and_b32 s{sT1}, s{sXCD}, 3
s_and_b32 s{sT2}, s{sIDX}, 3
s_lshl2_add_u32 s{sT1}, s{sT1}, s{sT2}
s_mul_i32 s{sT1}, s{sT1}, 7
s_lshr_b32 s{sT1}, s{sT1}, 2
s_lshl_b32 s{sT1}, s{sT1}, {3+FS}
s_add_u32 s{sFWi}, s{sT1}, {WS_FW}
v_and_b32 v{vFB}, {15<<FS}, v{vFA}""".split('\n')
    ot=cfg.get('OTOUCH',0)
    if ot:
        P.I(f"""v_lshrrev_b32 v4, 3, v{L}
v_and_b32 v5, 7, v{L}
v_lshlrev_b32 v4, 10, v4
v_lshl_add_u32 v4, v5, 4, v4
s_lshl1_add_u32 s{sT1}, s{kc.sNT}, s{sW}
s_lshl_b32 s{sT1}, s{sT1}, 14
s_lshr_b32 s{sT2}, s{kc.sMT}, 2
s_lshl_b32 s{sT2}, s{sT2}, 7
s_add_u32 s{sT1}, s{sT1}, s{sT2}
s_add_u32 s{sT2}, s{sT1}, 8192""")
        for u in range(2):
            if ot==1: P.I(f"buffer_store_dwordx4 v[16:19], v4, {sp(rOUT,4)}, s{sT1+u} offen sc1")
            else: P.I(f"buffer_load_dwordx4 v[{16+4*u}:{19+4*u}], v4, {sp(rOUT,4)}, s{sT1+u} offen")
    nB=cfg.get('WDB',8 if FW else 16)
    for i in range(nB):
        P.extend(wd.pop(0)); k=-(-len(fill)//(nB-i)); P.extend(fill[:k]); fill=fill[k:]
    P.extend(fill)
    if FW:
        P.I(f"buffer_load_dword v{vFV}, v{vFB}, {sp(rWS,4)}, s{sFWi} offen sc1")
        for i in range(cfg.get('WDB2',6)): P.extend(wd.pop(0))
        kc.poll_check(P,'fw',vPV=vFV)
        stamp(P,22,diag)
        C.pre(P,cfg.get('WPA',8),'w')
    QS=cfg.get('QSYNC',0)
    if QS:
        P.I(f"v_and_b32 v{kc.vQA}, 15, v{L}\ns_lshl_b32 s{sT1}, s{sW}, {4+FS}\nv_lshl_add_u32 v{kc.vQA}, v{kc.vQA}, {FS}, s{sT1}")
        P.extend(kc.qpoll(0))
        for i in range(cfg.get('WDC',6)): P.extend(wd.pop(0))
        stamp(P,20,diag)
        kc.poll_check(P,'fx0',vPV=kc.vQV)
        P.I("s_barrier")
        stamp(P,21,diag)
        C.pre(P,cfg.get('QPRE',5)); P.extend(kc.qpoll(1)); C.pre(P,99)
    else:
        P.I(f"buffer_load_dword v{vFV}, v{vFA}, {sp(rWS,4)}, s{sFXi} offen sc1")
        if FW: C.pre(P,8*G1-cfg.get('WPA',8),'w')
        for i in range(cfg.get('WDC',0 if FW else 6)): P.extend(wd.pop(0))
        stamp(P,20,diag)
        kc.poll_check(P,'fx',vPV=vFV)
        P.I("s_barrier")
        stamp(P,21,diag)
        C.pre(P,cfg.get('PRE',12 if FW else 16))
    if diag: P.I(f"v_writelane_b32 v255, s{kc.sCNT}, 63")
    D=kc.PhaseD(P,cfg,diag,wd)
    D.run(*C.run(P,diag,wd,[],D))
    if diag: P.I(f"v_writelane_b32 v255, s{kc.sCNT}, 30")
    if diag: P.I("s_getreg_b32 s4, hwreg(HW_REG_XCC_ID)\ns_and_b32 s4, s4, 15\nv_writelane_b32 v255, s4, 10")
    stamp(P,18,diag); stamp_out(P,0,diag)
    if cfg.get('DBGOUT') is not None:
        P.I(f"""s_cmp_ge_u32 s2, 8
s_cbranch_scc1 L_{NAME}_exit
s_cmp_lg_u32 s{sW}, 0
s_cbranch_scc1 L_{NAME}_exit
s_load_dwordx2 s[4:5], s[0:1], 128
v_readlane_b32 s6, v255, {cfg['DBGOUT']}
s_getreg_b32 s7, hwreg(HW_REG_XCC_ID)
s_and_b32 s7, s7, 15
s_and_b32 s6, s6, 0xffff
v_mov_b32 v4, s6
v_mov_b32 v5, s7
s_lshl_b32 s6, s2, 2
v_mov_b32 v6, s6
s_waitcnt lgkmcnt(0)
s_mov_b64 exec, 1
global_store_dword v6, v4, s[4:5]
global_store_dword v6, v5, s[4:5] offset:32""")
    P.I(f"L_{NAME}_exit:\ns_endpgm\n@nomore")
    loc=cfg.get('LOC',0)==1
    ka.retry_block(P,loc); ka.retry2_block(P,loc)
    kc.poll_retry(P,'fd',0,vFV,vFA,sFDi,loc);
    if QS:
        for q in range(4): kc.poll_retry(P,f'fx{q}',0,kc.vQV,kc.vQA,kc.sQP,loc)
    else: kc.poll_retry(P,'fx',0,vFV,vFA,sFXi,loc)
    if FW: kc.poll_retry(P,'fw',0,vFV,vFB,sFWi,loc)
    for s_ in range(len(kc.d_parts(cfg))):
        if s_ and cfg.get('SPOLL',0): kc.spoll_retry(P,f'p{s_}',s_)
        else: kc.poll_retry(P,f'p{s_}',128*s_)
    return [(NAME,256,256,kc.LDS_C,512)]
```

```python
from prog import *
from layout import *
import struct
def f32(x): return struct.unpack('<I',struct.pack('<f',x))[0]
LOG2E = 0x3fb8aa3b
XIN = 0
sX,sARE,sAIM,sBRE,sBIM,sCRE,sCIM,sLDT,sDSK,sBX,sWG,sWU,sWD,sC,sWM,sOUT,sDBG,sWS = [8+2*i for i in range(18)]
rR,rWG,rWU,rWD,rOUT,rWS,rWJ = 44,48,52,56,60,64,68
sXCD,sIDX,sP,sW,sTAG,sLD,sDS = 72,73,74,75,76,77,78
sT0,sT1,sT2,sT3,sT4,sT5 = 80,81,82,83,84,85
sWO,sWST,sWA = 86,87,88
sCG,sKE,sFS,sCNT = 26,27,97,98
def sp(a,n=2): return f"s[{a}:{a+n-1}]"
def vr(a,n): return f"v[{a}:{a+n-1}]"
def ar(a,n): return f"a[{a}:{a+n-1}]"
def mksrd(d,b,size):
    return [f"s_mov_b32 s{d}, s{b}", f"s_and_b32 s{d+1}, s{b+1}, 0xffff", f"s_mov_b32 s{d+2}, {size}", f"s_mov_b32 s{d+3}, 0x20000"]
vLANE = 1
vT16,vMC,vMW = 12,13,14
vPAR = 16
vTAB = 24
vRA = 32
vROLE = 40
vFG = 120
vPOLL = 160
vPOL2 = 152
vXF = 192
vHF = 208
vKA,vUA,vYW,vYR,vWRA,vXO,vGR,vL16 = 224,225,226,227,228,229,230,231
vMOD = 232
vKF,vKC,vGW,vSEL1,vSEL2 = 240,241,242,243,244

ONLY=None
import os
LATE0=int(os.environ.get('LATE0','0'))
def stamp(P, n, diag):
    if diag and (ONLY is None or n in ONLY): P.I(f"s_memrealtime s[4:5]\ns_memtime s[100:101]\ns_waitcnt lgkmcnt(0)\nv_writelane_b32 v255, s4, {n}\nv_writelane_b32 v255, s100, {32+n}")
def stamp0_issue(P, diag):
    if diag: P.I("v_mov_b32 v255, 0\ns_memrealtime s[4:5]\ns_memtime s[100:101]")
def stamp0_commit(P, diag):
    if diag: P.I("v_writelane_b32 v255, s4, 0\nv_writelane_b32 v255, s100, 32")
def stamp_out(P, kidx, diag):
    if diag:
        P.I(f"""s_lshl_b32 s4, s2, 10
s_add_u32 s4, s4, {WS_STAMP + kidx*0x40000}
v_lshlrev_b32 v2, 2, v0
buffer_store_dword v255, v2, {sp(rWS,4)}, s4 offen""")

def bf16_round(l):
    u=f32(float(l)); u=(u+0x7fff+((u>>16)&1))&0xffff0000
    return int(struct.unpack('<f',struct.pack('<I',u))[0])
def table_words():
    rec=[]
    for T in range(256):
        a=[]
        for j in range(11):
            lag=2047-8*T-j
            if lag<0: a.append(L_CZ); continue
            lam=bf16_round(lag); b=(lam>>3)&15; i=HI.index(lam-8*b)
            a.append(L_C+i*CP+4*b)
        a.append(0)
        w=T>>6; lane=T&63; ch=w>>1; vh=w&1
        ka_=L_KI+ch*4*KIP+(lane&3)*KIP+2*(2044-16)-3584-192-256*vh+(lane&48)-2*(lane&12)
        ua_=L_H+ch*HP+448-192-256*vh+32*(lane&15)+(lane&48)
        rec.append([a[2*k]|(a[2*k+1]<<16) for k in range(6)]+[ka_,ua_])
    return [rec[T][4*q+k] for q in range(2) for T in range(256) for k in range(4)]

def entry(P, name, diag, nlines, perm):
    P.I(f".globl {name}\n.p2align 8\n.type {name},@function\n{name}:\n@reset")
    ng=(nlines+15)//16; assert ng&(ng-1)==0 and ng<=32
    if LATE0: P.I(f"s_and_b32 s4, s2, 7\ns_cbranch_scc1 L_nolate\ns_sleep {LATE0}\nL_nolate:")
    P.I(f"""s_cmp_ge_u32 s2, 256
s_cbranch_scc1 L_{name}_exit
s_load_dwordx16 s[8:23], s[0:1], 0
s_load_dwordx16 s[24:39], s[0:1], 64
s_load_dwordx4 s[40:43], s[0:1], 128
s_getpc_b64 s[6:7]
L_pc:
v_lshrrev_b32 v2, 6, v0
v_and_b32 v{vLANE}, 63, v0
s_lshr_b32 s{sIDX}, s2, 3
v_readfirstlane_b32 s{sW}, v2
s_and_b32 s{sT0}, s{sIDX}, {ng-1}
s_lshl_b32 s{sT0}, s{sT0}, 11
v_lshl_add_u32 v3, v{vLANE}, 5, s{sT0}
s_cmp_lg_u32 s{sW}, 3
s_cbranch_scc1 L_nopf
global_load_dword v15, v3, s[6:7]
L_nopf:""")
    stamp0_issue(P,diag)
    P.I(f"s_and_b32 s{sXCD}, s2, 7")
    if perm: P.I(f"s_lshl_b32 s{sXCD}, s{sXCD}, 2\ns_lshr_b32 s{sXCD}, {hex(sum(v<<(4*k) for k,v in enumerate(perm)))}, s{sXCD}\ns_and_b32 s{sXCD}, s{sXCD}, 7")
    P.I(f"""s_lshl_b32 s{sP}, s{sXCD}, 5
s_add_u32 s{sP}, s{sP}, s{sIDX}""")

def role_addr(P, loc=0):
    P.I(f"""s_cmp_eq_u32 s{sW}, 0
s_cselect_b32 s{sT3}, 8, 1
s_lshl_b32 s{sT2}, s{sT3}, 10
s_lshl_b32 s{sT3}, s{sT3}, 7
s_and_b32 s{sT4}, s{sP}, 7
s_lshl_b32 s{sT4}, s{sT4}, 7""")
    if loc: P.I(f"s_lshl_b32 s{sT0}, s{sIDX}, 9\ns_add_u32 s{sT0}, s{sT0}, s{sXCD}\ns_lshl_b32 s{sT0}, s{sT0}, 7")
    else: P.I(f"s_lshr_b32 s{sT0}, s{sP}, 3\ns_lshl_b32 s{sT0}, s{sT0}, 16\ns_add_u32 s{sT0}, s{sT0}, s{sT4}")
    P.I(f"""s_lshl_b32 s{sT1}, s{sP}, 13
s_cmp_eq_u32 s{sW}, 0
s_cselect_b32 s{sT0}, s{sT0}, s{sT1}
s_and_b32 s{sT5}, s{sW}, 1
s_sub_u32 s92, 7, s{sT5}
s_lshr_b32 s{sT1}, s{sP}, s92
s_lshl1_add_u32 s{sT1}, s{sT5}, s{sT1}
s_lshl_b32 s{sT1}, s{sT1}, 10
s_add_u32 s{sT4}, s{sT4}, s{sT1}
s_and_b32 s{sT1}, s{sP}, 0xf8
s_add_u32 s92, s{sT5}, 2
s_lshl_b32 s{sT1}, s{sT1}, s92
s_and_b32 s{sT5}, s{sT1}, 511
s_mul_i32 s{sT1}, s{sT5}, 6144
s_add_u32 s{sT1}, s{sT1}, s{sT4}
s_mov_b32 s{sT4}, 3145728
s_cmp_lt_u32 s{sW}, 2
s_cselect_b32 s94, s{sT0}, s{sT1}
s_cselect_b32 s{sT2}, s{sT2}, 6144
s_cselect_b32 s79, s{sT3}, {8*6144}
s_cselect_b32 s{rR+2}, 2097152, s{sT4}
s_mov_b32 s{rR+3}, 0x20000
v_lshrrev_b32 v3, 3, v{vLANE}
v_mul_u32_u24 v3, s{sT2}, v3
v_lshrrev_b32 v4, 2, v{vLANE}
v_and_b32 v4, 4, v4
v_and_b32 v5, 7, v{vLANE}
v_xor_b32 v4, v4, v5
v_lshl_add_u32 v22, v4, 4, v3
v_xor_b32 v23, 32, v22
s_lshl_b32 s3, s{sW}, 13
s_add_u32 s3, s3, {L_RR}
v_add_u32 v5, s{sT5}, v{vLANE}
v_and_b32 v5, 511, v5
v_lshlrev_b32 v5, 1, v5
s_lshl_b32 s{sT5}, s{sP}, 9
v_lshl_add_u32 v2, v0, 1, s{sT5}""")
    for i in range(6): P.I(f"v_mov_b32 v{vPAR+i}, 0")
    P.I(f"v_mov_b32 v{vROLE}, 0\ns_lshl_b32 s93, s{sP}, 2")
def param_loads(P, NT):
    P.extend([f"global_load_short_d16_hi v{vPAR+i}, v2, {sp(b)} {NT}" for i,b in enumerate((sARE,sAIM,sBRE,sBIM,sCRE,sCIM))])
def early_loads(P, NT, pfirst):
    if pfirst: param_loads(P,NT)
    P.I(f"""s_load_dword s{sTAG}, {sp(sWS)}, {WS_EPOCH}
s_load_dword s{sLD}, {sp(sLDT)}, s93
s_load_dword s{sDS}, {sp(sDSK)}, s93
s_cmp_lt_u32 s{sW}, 2
s_cselect_b64 {sp(rR)}, {sp(sX)}, {sp(sWM)}
s_and_b32 s{rR+1}, s{rR+1}, 0xffff""")
    P.I(f"global_load_short_d16_hi v{vROLE}, v5, {sp(sC)}")
    P.I(f"""s_add_u32 s6, s6, L_table-L_pc+4096
s_addc_u32 s7, s7, 0
v_lshlrev_b32 v{vT16}, 4, v0""")
def role_loads(P, XNT, late):
    lbl='L_rlb' if late else 'L_rla'
    P.I(f"s_cmp_eq_u32 s{sW}, 3\ns_cbranch_scc{0 if late else 1} {lbl}")
    for u in range(8):
        if u==4 and not late: P.I(f"s_cmp_eq_u32 s{sW}, 2\ns_cbranch_scc1 {lbl}")
        P.I(f"s_add_u32 m0, s3, {u*1024}")
        P.I(f"s_add_u32 s94, s94, s79" if u else "s_nop 0")
        P.I(f"buffer_load_dwordx4 v{22+(u&1)}, {sp(rR,4)}, s94 offen {XNT} lds", tag='rr')
    P.I(f"{lbl}:")
def table_loads(P):
    P.I(f"global_load_dwordx4 {vr(vTAB,4)}, v{vT16}, s[6:7] offset:-4096\nglobal_load_dwordx4 {vr(vTAB+4,4)}, v{vT16}, s[6:7]")

def setup(P, nowd=False, X='', wmap=0):
    P.extend(mksrd(rWS,sWS,WS_USED))
    P.I(f"{f's_cmp_lg_u32 s{sXCD}, 0' if wmap>=2 else f's_cmp_lt_u32 s{sIDX}, 28'}\ns_cselect_b32 s{sT0}, 1835008, 0\ns_cselect_b32 s{sT1}, {WS_USED}, 0")
    for r,b in ((rWG,sWG),(rWU,sWU),(rWD,sWD)): P.extend(mksrd(r,b,1835008 if (nowd and r==rWD) else f"s{sT0}"))
    P.extend(mksrd(rWJ,sWS,f"s{sT1}"))
    if 'w' in X: P.I(f"s_mov_b32 s{rWG+2}, 0\ns_mov_b32 s{rWU+2}, 0")
    if 'm' in X: P.I(f"s_mov_b32 s{rR+2}, 0")
    if 'd' in X: P.I(f"s_mov_b32 s{rWD+2}, 0")
    if 's' in X: P.I(f"s_min_u32 s{rWJ+2}, s{rWJ+2}, {WS_XG}")
    if wmap>=2:
        P.I(f"s_max_u32 s{sFS}, s{sP}, 32\ns_sub_u32 s{sFS}, s{sFS}, 32")
        if wmap==2: P.I(f"s_lshr_b32 s{sCG}, s{sFS}, 3\ns_and_b32 s{sKE}, s{sFS}, 7")
        else: P.I(f"s_mul_i32 s{sKE}, s{sFS}, 586\ns_lshr_b32 s{sKE}, s{sKE}, 14\ns_mul_i32 s{sCG}, s{sKE}, 28\ns_sub_u32 s{sCG}, s{sFS}, s{sCG}")
    elif wmap: P.I(f"s_mov_b32 s{sCG}, s{sIDX}\ns_mov_b32 s{sKE}, s{sXCD}")
    else: P.I(f"""s_and_b32 s{sCG}, s{sXCD}, 3
s_mul_i32 s{sCG}, s{sCG}, 7
s_lshr_b32 s{sT0}, s{sIDX}, 2
s_add_u32 s{sCG}, s{sCG}, s{sT0}
s_and_b32 s{sKE}, s{sXCD}, 4
s_and_b32 s{sT0}, s{sIDX}, 3
s_add_u32 s{sKE}, s{sKE}, s{sT0}""")
    P.I(f"""s_lshl2_add_u32 s{sT0}, s{sCG}, s{sW}
s_mul_i32 s{sT1}, s{sT0}, 147
s_lshr_b32 s{sT1}, s{sT1}, 10
s_mul_i32 s{sT2}, s{sT1}, 7
s_sub_u32 s{sT0}, s{sT0}, s{sT2}
s_mul_i32 s{sT1}, s{sT1}, 231
s_cmp_lt_u32 s{sT0}, {G1}
s_cselect_b32 s{sT2}, {G1}, 1
s_cselect_b32 s{sT3}, 1, 33
s_mul_i32 s{sT0}, s{sT0}, s{sT3}
s_add_u32 s{sT0}, s{sT0}, s{sT1}
s_lshl_b32 s{sT0}, s{sT0}, 10
s_add_u32 s{sT0}, s{sT0}, {WS_WPF}
s_lshl_b32 s{sWST}, s{sT2}, 10
s_mul_i32 s{sT3}, s{sWST}, s{sKE}
s_lshl2_add_u32 s{sWO}, s{sT3}, s{sT0}
s_lshl_b32 s{sT2}, s{sT2}, 15
s_add_u32 s{sWA}, s{sT2}, s{sT0}
s_lshl_b32 s{sT0}, s{sKE}, 7
s_add_u32 s{sWA}, s{sWA}, s{sT0}""")
    L=vLANE
    P.I(f"""v_lshlrev_b32 v{vL16}, 4, v{L}
v_and_b32 v2, 15, v{L}
v_and_b32 v3, 48, v{L}
v_lshrrev_b32 v4, 4, v{L}
v_lshrrev_b32 v5, 5, v{L}
v_and_b32 v6, 3, v{L}
s_mul_i32 s{sT2}, s{sW}, 10240
s_add_u32 s{sT2}, s{sT2}, {L_Y}
v_mul_u32_u24 v7, 320, v4
v_lshl_add_u32 v7, v2, 4, v7
v_add_u32 v{vYW}, s{sT2}, v7
v_lshrrev_b32 v7, 5, v0
v_mul_u32_u24 v7, 1280, v7
v_and_b32 v8, 1, v0
v_mul_u32_u24 v9, 640, v8
v_bfe_u32 v10, v0, 1, 4
v_lshl_add_u32 v9, v10, 4, v9
v_add_u32 v{vYR}, v7, v9
v_lshrrev_b32 v7, 2, v0
{f"s_and_b32 s{sT2}, s{sP}, 7" if XIN else ""}
{f"v_xor_b32 v7, s{sT2}, v7" if XIN else ""}
v_lshlrev_b32 v7, {7 if XIN else 15}, v7
v_lshl_add_u32 v{vXO}, v6, 4, v7
v_mul_u32_u24 v7, {FP}, v2
v_add_u32 v7, v7, v3
v_add_u32 v{vKF}, {L_F}, v7
v_mul_u32_u24 v7, {CP}, v2
s_mul_i32 s{sT2}, s{sW}, {16*CP}
v_add3_u32 v{vKC}, v7, v3, s{sT2}
v_bfe_u32 v7, v{L}, 2, 2
v_cvt_f32_u32 v{vSEL2}, v5
v_and_b32 v9, 31, v{L}
v_lshlrev_b32 v{vMC}, 12, v9
v_and_b32 v9, 8, v{L}
v_lshl_add_u32 v9, v9, 1, v2
v_lshlrev_b32 v{vSEL1}, 12, v9
v_lshl_add_u32 v9, v5, 3, v6
v_bfe_u32 v10, v{L}, 2, 3
v_lshlrev_b32 v11, 4, v10
v_lshl_add_u32 v{vMW}, v9, 12, v11
s_lshl_b32 s{sT2}, s{sW}, 6
s_add_u32 s{sT2}, s{sT2}, {L_GT+256}
v_lshl_add_u32 v10, v10, 3, s{sT2}
v_lshlrev_b32 v11, 8, v5
v_sub_u32 v{vGW}, v10, v11
v_lshlrev_b32 v10, 5, v5
v_add_u32 v{vGR}, {L_GT}, v10
v_and_b32 v9, 1, v4
v_lshl_add_u32 v10, v9, 1, v5
v_lshl_add_u32 v10, v10, 3, v7
v_lshl_add_u32 v10, v10, 1, v9
v_bfe_u32 v11, v{L}, 3, 1
v_lshl_add_u32 v10, v10, 1, v11
v_xor_b32 v10, s{sW}, v10
v_lshl_add_u32 v10, v10, 1, v8
v_bfe_u32 v11, v{L}, 1, 1
v_lshl_add_u32 v10, v10, 1, v11
v_lshlrev_b32 v10, 3, v10
v_add_u32 v{vWRA}, {L_WR}, v10""")
    P.I(f"""v_mul_u32_u24 v7, {HP}, v5
v_and_b32 v9, 31, v{L}
v_min_u32 v9, 29, v9
v_lshl_add_u32 v7, v9, 4, v7
v_add_u32 v7, {L_H}, v7
v_cmp_gt_u32 vcc, 64, v0
v_mov_b32 v9, {L_CZ}
v_mov_b32 v{vFG}, 0
v_cndmask_b32 v7, v9, v7, vcc
v_mov_b32 v{vFG+1}, 0
v_mov_b32 v{vFG+2}, 0
v_mov_b32 v{vFG+3}, 0
ds_write_b128 v7, {vr(vFG,4)}""")
    A0=vRA
    P.I(f"""v_lshrrev_b32 v2, 3, v{L}
v_and_b32 v3, 2, v2
v_mul_u32_u24 v2, 3584, v2
v_and_b32 v4, 7, v{L}
v_xor_b32 v3, v3, v4
v_xor_b32 v4, 4, v3
v_lshl_add_u32 v{A0+2}, v3, 4, v2
v_lshl_add_u32 v{A0+3}, v4, 4, v2
v_and_b32 v8, 1, v{L}
v_bfe_u32 v7, v{L}, 1, 3
v_mul_u32_u24 v7, {KIP}, v7
v_lshl_add_u32 v7, v8, 4, v7
v_add_u32 v{A0+1}, {L_KI+4096}, v7
s_mul_i32 s{sT0}, s{sKE}, {64*3584}
s_lshl_b32 s{sT1}, s{sCG}, 7
s_add_u32 s90, s{sT0}, s{sT1}""")
    if not nowd: P.I(f"""v_lshrrev_b32 v2, 2, v{L}
v_and_b32 v5, 3, v{L}
v_lshlrev_b32 v5, 4, v5
v_lshl_add_u32 v{A0+4}, v2, 10, v5
v_lshrrev_b32 v6, 5, v{L}
v_and_b32 v7, 3, v2
v_lshl_add_u32 v6, v6, 3, v7
v_bfe_u32 v7, v{L}, 4, 1
v_lshl_add_u32 v6, v6, 1, v7
v_lshl_add_u32 v6, v6, 1, v8
v_bfe_u32 v7, v{L}, 1, 1
v_lshl_add_u32 v6, v6, 1, v7
v_lshlrev_b32 v6, 3, v6
v_add_u32 v{A0}, {L_DR}, v6
{"" if wmap>=2 else f"s_mul_i32 s{sFS}, s{sXCD}, 28"}
{"" if wmap>=2 else f"s_add_u32 s{sFS}, s{sFS}, s{sIDX}"}
s_lshr_b32 s{sT2}, s{sFS}, 1
s_lshl_b32 s{sT2}, s{sT2}, 14
s_and_b32 s{sT1}, s{sFS}, 1
s_lshl_b32 s{sT1}, s{sT1}, 9
s_add_u32 s91, s{sT2}, s{sT1}""")

def x_jobs(P, PUB, diag, loc=0):
    R=vROLE; G=vROLE+32; L=vLANE
    P.I(f"s_cmp_eq_u32 s{sW}, 2\ns_cbranch_scc1 L_rj2\ns_cmp_eq_u32 s{sW}, 1\ns_cbranch_scc1 L_rj1")
    P.I(f"""v_and_b32 v2, 7, v{L}
v_lshrrev_b32 v3, 3, v{L}
v_and_b32 v4, 2, v2
v_lshlrev_b32 v4, 1, v4
v_xor_b32 v4, v4, v3
v_lshlrev_b32 v4, 4, v4
v_lshl_add_u32 v4, v2, 7, v4
v_add_u32 v4, {L_RR}, v4
v_xor_b32 v5, 32, v4
v_mul_u32_u24 v3, {4*12288}, v3
v_lshl_add_u32 v2, v2, 4, v3
{f"s_mov_b32 s{sT0}, s{sXCD}" if loc else f"s_and_b32 s{sT0}, s{sP}, 7"}
s_mul_i32 s{sT0}, s{sT0}, {32*12288}
{f"s_lshl_b32 s{sT1}, s{sIDX}, 3" if loc else f"s_and_b32 s{sT1}, s{sP}, 0xf8"}
s_lshl4_add_u32 s{sT0}, s{sT1}, s{sT0}
s_add_u32 s{sT0}, s{sT0}, {WS_XG}""")
    for k in range(12): P.I(f"v_mov_b32 v{G+4*k+3}, s{sTAG}")
    P.I(f"s_waitcnt vmcnt({JW})"); stamp(P,2,diag)
    for r in range(8): P.I(f"ds_read_b128 {vr(R+4*r,4)}, v{4+(r&1)} offset:{r*1024}")
    for g in range(3):
        for j in range(4):
            k=g*4+j
            for e in range(3):
                if 3*g+e<8: P.I(f"v_mov_b32 v{G+4*k+e}, v{R+4*(3*g+e)+j}")
            P.I(f"s_add_u32 s{sT1}, s{sT0}, {j*12288+g*4096}")
            P.I(f"buffer_store_dwordx4 {vr(G+4*k,4)}, v2, {sp(rWS,4)}, s{sT1} offen {'' if loc==1 else PUB}")
    P.I(f"s_waitcnt vmcnt(12)\ns_branch L_xje\nL_rj1:")
    P.I(f"""v_mov_b32 v2, 0
v_mov_b32 v3, 0
v_mov_b32 v4, 0
v_mov_b32 v5, 0
s_mov_b32 s{sT1}, 0x3f803f80
v_add_u32 v6, {L_RR+8192}, v{vL16}
v_mul_u32_u24 v8, 96, v{L}
v_lshlrev_b32 v9, 12, v{L}
s_lshl4_add_u32 s{sT0}, s{sP}, {WS_SG}""")
    P.I(f"v_mov_b32 v{G+3}, s{sTAG}\ns_waitcnt vmcnt({JW})"); stamp(P,2,diag)
    for u in range(8): P.I(f"ds_read_b128 {vr(R+4*u,4)}, v6 offset:{u*1024}")
    for k in range(32):
        P.I(f"v_dot2c_f32_bf16 v{2+(k&1)}, s{sT1}, v{R+k}\nv_dot2c_f32_bf16 v{4+(k&1)}, v{R+k}, v{R+k}")
    P.I("v_add_f32 v2, v2, v3\nv_add_f32 v4, v4, v5")
    for m in ("quad_perm:[1,0,3,2]","quad_perm:[2,3,0,1]","row_half_mirror"):
        P.I(f"v_add_f32_dpp v2, v2, v2 {m} row_mask:0xf bank_mask:0xf\nv_add_f32_dpp v4, v4, v4 {m} row_mask:0xf bank_mask:0xf")
    P.I(f"""v_mul_f32 v2, 0x3b000000, v2
v_mul_f32 v4, 0x3b000000, v4
v_fma_f32 v4, -v2, v2, v4
v_max_f32 v4, 0, v4
v_cvt_pk_bf16_f32 v4, v4, v4
v_and_b32 v4, 0xffff0000, v4
v_add_f32 v4, 0x3727c5ac, v4
v_cvt_pk_bf16_f32 v4, v4, v4
v_and_b32 v4, 0xffff0000, v4
v_sqrt_f32 v4, v4
v_cvt_pk_bf16_f32 v2, v2, v4
ds_bpermute_b32 v{G}, v8, v2
ds_bpermute_b32 v{G+1}, v8, v2 offset:32
ds_bpermute_b32 v{G+2}, v8, v2 offset:64
s_waitcnt lgkmcnt(0)
s_mov_b64 exec, 7
buffer_store_dwordx4 {vr(G,4)}, v9, {sp(rWS,4)}, s{sT0} offen {PUB}
s_mov_b64 exec, -1
s_waitcnt vmcnt(1)
s_branch L_xje
L_rj2:""")
    mod_job(P,PUB,diag,1)
    P.I("s_waitcnt vmcnt(1)")
    P.I("L_xje:")
def mod_job(P, PUB, diag, nks):
    R=vROLE; L=vLANE; A0=vRA; w=nks+1
    assert L_MR%128==0
    P.I(f"""v_lshrrev_b32 v2, 4, v{L}
v_bfe_u32 v3, v{L}, 2, 2
v_lshl_add_u32 v4, v2, 3, v3
v_bfe_u32 v3, v{L}, 3, 1
v_lshl_add_u32 v4, v4, 1, v3
v_and_b32 v3, 1, v2
v_lshl_add_u32 v4, v4, 1, v3
v_and_b32 v3, 3, v{L}
v_lshl_add_u32 v4, v4, 2, v3
v_lshlrev_b32 v4, 3, v4
v_add_u32 v8, {L_RR+w*8192}, v4
v_xor_b32 v9, 32, v8
v_xor_b32 v10, 64, v8
v_xor_b32 v11, 96, v8
v_bfe_u32 v4, v{L}, 1, 2
v_lshl_add_u32 v4, v4, 2, v2
v_and_b32 v3, 1, v{L}
v_lshl_add_u32 v4, v4, 1, v3
v_lshlrev_b32 v{A0+5}, 4, v4
s_mov_b32 s{sT0}, {L_SC+(w-2)*128}
v_lshl_add_u32 v6, v{L}, 1, s{sT0}
v_and_b32 v7, 48, v{L}
v_add_u32 v7, s{sT0}, v7
s_lshl_b32 s{sT0}, s{sP}, 9
s_add_u32 s99, s{sT0}, {WS_MG+(w-2)*0x20000}
s_mov_b32 s{sT0}, 0xaaaaaaaa
s_mov_b32 s{sT1}, 0xaaaaaaaa
s_mov_b32 s{sT2}, 0xcccccccc
s_mov_b32 s{sT3}, 0xcccccccc
s_mov_b32 s{sT4}, 0xf0f0f0f0
s_mov_b32 s{sT5}, 0xf0f0f0f0""")
    if nks==1: P.I(f"s_waitcnt vmcnt({12 if JW else 6})")
    P.I(f"""v_mul_f32 v4, 0xbfb8aa3b, v{R}
v_exp_f32 v4, v4
v_add_f32 v4, 1.0, v4
v_rcp_f32 v4, v4
v_mul_f32 v2, v{R}, v4
v_cvt_pk_bf16_f32 v2, v2, v2
ds_write_b16 v6, v2""")
    for ks in range(nks): P.I(f"ds_read_b128 {vr(R+4*ks,4)}, v7 offset:{ks*64}")
    P.I(f"s_waitcnt vmcnt({JW})" if nks==1 else "@wait rr"); stamp(P,2,diag)
    A=R+16; ACC=R+16+32
    seq=[(ks,ct) for ks in range(nks) for ct in range(4)]
    for n,(ks,ct) in enumerate(seq):
        for hf in range(2): P.I(f"ds_read_b64_tr_b16 {vr(A+4*n+2*hf,2)}, v{8+ct} offset:{ks*4096+hf*512}")
    for n,(ks,ct) in enumerate(seq):
        P.I(f"v_mfma_f32_16x16x32_bf16 {vr(ACC+4*ct,4)}, {vr(A+4*n,4)}, {vr(R+4*ks,4)}, {vr(ACC+4*ct,4) if ks else 0}")
    P.I(f"v_mov_b32 v{R+3}, s{sTAG}")
    for ct in range(4):
        for e in range(2): P.I(f"v_cndmask_b32 v{A+2*ct+e}, v{ACC+4*ct+e}, v{ACC+4*ct+2+e}, {sp(sT0)}")
    for c2 in range(2):
        for e in range(2): P.I(f"v_cndmask_b32 v{A+8+2*c2+e}, v{A+4*c2+e}, v{A+4*c2+2+e}, {sp(sT2)}")
    for e in range(2): P.I(f"v_cndmask_b32 v{R+e}, v{A+8+e}, v{A+10+e}, {sp(sT4)}")
    P.I(f"""s_mov_b32 exec_lo, 0x00ff00ff
s_mov_b32 exec_hi, 0x00ff00ff
buffer_store_dwordx4 {vr(R,4)}, v{A0+5}, {sp(rWS,4)}, s99 offen {PUB}
s_mov_b64 exec, -1""")
def raw_wd_loads(P, NT):
    P.I(f"s_lshl_b32 s{sT0}, s{sW}, 11\ns_lshl_b32 s{sT1}, s{sW}, 7\ns_add_u32 m0, s{sT0}, {L_DR}\ns_add_u32 s{sT1}, s{sT1}, s91")
    P.I(f"buffer_load_dwordx4 v{vRA+4}, {sp(rWD,4)}, s{sT1} offen {NT} lds", tag='dr')
    P.I(f"s_add_u32 m0, s{sT0}, {L_DR+1024-64}\nv_add_u32 v245, s{sT0}, v{vRA}")
    P.I(f"buffer_load_dwordx4 v{vRA+4}, {sp(rWD,4)}, s{sT1} offen offset:64 {NT} lds", tag='dr')
def wd_job(P, ST):
    A=vHF+8
    P.I("@wait dr")
    for f in range(2):
        for hf in range(2): P.I(f"ds_read_b64_tr_b16 {vr(A+4*f+2*hf,2)}, v245 offset:{f*1024+hf*256}")
    P.I(f"""s_and_b32 s{sT0}, s{sFS}, 1
s_lshl2_add_u32 s{sT0}, s{sT0}, s{sW}
s_mul_i32 s{sT0}, s{sT0}, {2*112}
s_lshr_b32 s{sT1}, s{sFS}, 1
s_add_u32 s{sT0}, s{sT0}, s{sT1}
s_lshl_b32 s{sT0}, s{sT0}, 10
s_add_u32 s{sT0}, s{sT0}, {WS_WDF}
s_add_u32 s{sT1}, s{sT0}, {112*1024}""")
    for f in range(2):
        P.I(f"buffer_store_dwordx4 {vr(A+4*f,4)}, v{vL16}, {sp(rWJ,4)}, s{sT0+f} offen {ST}", tag='wdst')
def raw_w_loads(P, NT):
    P.I(f"s_mul_i32 s95, s{sW}, {16*3584}\ns_add_u32 s95, s95, s90\ns_lshl_b32 s96, s{sW}, 12")
    for q in range(2):
        for mat,r in ((0,rWG),(1,rWU)):
            P.I(f"s_add_u32 m0, s96, {L_WR+mat*2048+q*1024}")
            P.I(f"s_add_u32 s95, s95, {8*3584}" if (q and not mat) else "s_nop 0")
            P.I(f"buffer_load_dwordx4 v{vRA+2+mat}, {sp(r,4)}, s95 offen {NT} lds", tag='wr')

def cmul(o,a,b,t):
    return [f"v_pk_mul_f32 {vr(t,2)}, {vr(a,2)}, {vr(b,2)} op_sel_hi:[0,1]",
            f"v_pk_fma_f32 {vr(o,2)}, {vr(a,2)}, {vr(b,2)}, {vr(t,2)} op_sel:[1,1,0] op_sel_hi:[1,0,1] neg_lo:[1,0,0]"]
def factor_gen(P, lo=0, hi=99):
    B=vFG; are,aim,bre,bim,cre,cim=[vPAR+i for i in range(6)]
    R1,R8,R128,LOc,TMP,PK = B,B+2,B+4,B+6,B+8,B+12
    Pc=[B+16+2*c for c in range(8)]
    zr,zi,dt=B+32,B+33,B+34; M=[2,4,6]; PH=[8,9,10]
    P.I(f"s_lshr_b32 s{sT0}, s{sW}, 1\ns_mul_i32 s{sT1}, s{sT0}, {64*FP-512}\ns_lshl_b32 s{sT2}, s{sW}, 8\ns_add_u32 m0, s{sT1}, s{sT2}")
    P0=P
    if lo: P=Prog()
    P.I(f"""s_lshl_b32 s{sT0}, s{sT0}, 4
s_lshr_b32 s{sT1}, s{sLD}, s{sT0}
s_lshl_b32 s{sT1}, s{sT1}, 16
v_mov_b32 v{dt}, {hex(LOG2E)}
v_mul_f32 v{dt}, s{sT1}, v{dt}
v_exp_f32 v{dt}, v{dt}""")
    P.extend(cmul(Pc[0],cre,bre,TMP))
    P.I(f"""v_cvt_pk_bf16_f32 v{dt}, v{dt}, v{dt}
v_and_b32 v{dt}, 0xffff0000, v{dt}
v_mul_f32 v{zr}, v{dt}, v{are}
v_mul_f32 v{zi}, v{dt}, v{aim}
v_mul_f32 v{zr}, {hex(LOG2E)}, v{zr}
v_mul_f32 v{zi}, 0.15915494, v{zi}
v_pk_mul_f32 {vr(Pc[0],2)}, {vr(Pc[0],2)}, {vr(dt,2)} op_sel_hi:[1,0] neg_hi:[1,0]""")
    cx=((R1,1,True),(R8,8,False),(R128,128,True))
    for (o,sc,cj),m,ph in zip(cx,M,PH):
        if sc==1: P.I(f"v_exp_f32 v{m}, v{zr}\nv_fract_f32 v{ph}, v{zi}")
        else: P.I(f"v_mul_f32 v{m}, {hex(f32(sc))}, v{zr}\nv_mul_f32 v{ph}, {hex(f32(sc))}, v{zi}\nv_exp_f32 v{m}, v{m}\nv_fract_f32 v{ph}, v{ph}")
        P.I(f"v_cos_f32 v{o}, v{ph}\nv_sin_f32 v{o+1}, v{ph}")
    for (o,sc,cj),m,ph in zip(cx,M,PH):
        P.I(f"v_pk_mul_f32 {vr(o,2)}, {vr(o,2)}, {vr(m,2)} op_sel_hi:[1,0]" + (" neg_hi:[1,0]" if cj else ""))
    P=P0
    steps_lo=[('one',48),('put',49,R8)]+[('mul',48+b,LOc,(R8 if b==2 else LOc),R8) for b in range(2,16)]
    steps_hi=[('put',0,Pc[0])]+[('mul',c,Pc[c],Pc[c-1],R1) for c in range(1,8)]
    row=8
    for e in range(1,17):
        cs = range(8) if e<2 else range(0,8,2) if e<4 else (0,4) if e<8 else (0,)
        for c in cs:
            assert HI[row]==128*e+c
            steps_hi.append(('mul',row,Pc[c],Pc[c],R128)); row+=1
    for k,s in enumerate(steps_lo+steps_hi):
        if not lo<=k<hi: continue
        kk=PK+(k&3)
        if s[0]=='one': P.I(f"v_mov_b32 v{kk}, 0x3f80")
        else:
            if s[0]=='mul': P.extend(cmul(s[2],s[3],s[4],TMP+2*(k&1)))
            P.I(f"v_cvt_pk_bf16_f32 v{kk}, v{s[2]}, v{s[2]+1}")
        P.I(f"ds_write_addtid_b32 v{kk} offset:{L_F+s[1]*FP}")

vKH=156
def kgen_init(P):
    ACC=vHF
    P.I(f"""s_lshl_b32 s{sT0}, s{sDS}, 16
s_and_b32 s{sT1}, s{sDS}, 0xffff0000
v_cmp_eq_u32 vcc, 0, v0
v_mov_b32 v2, s{sT0}
v_mov_b32 v3, s{sT1}
s_mul_i32 s{sT2}, s{sW}, {16*FP}
v_cndmask_b32 v{ACC}, 0, v2, vcc
v_cndmask_b32 v{ACC+4}, 0, v3, vcc
v_add_u32 v{vKH}, s{sT2}, v{vKF}""")
    for r in (1,2,3,5,6,7): P.I(f"v_mov_b32 v{ACC+r}, 0")
def kgen(P, diag, mid=[], skip=0, order=0):
    A=vROLE; ACC=vHF
    Q=Prog(); table_unpack(Q); tu=[x.text for x in Q.ins]
    P.I(f"s_cmp_eq_u32 s{sW}, 3\ns_cbranch_scc1 L_wdjob\ns_waitcnt lgkmcnt(0)\ns_barrier")
    def rd(n):
        ks,ch=n>>1,n&1; b=A+8*(n%9)
        return [f"ds_read_b128 {vr(b,4)}, v{vKF} offset:{ch*64*FP+48*FP+ks*64}", f"ds_read_b128 {vr(b+4,4)}, v{vKH} offset:{ch*64*FP+ks*64}"]
    for n in range(7): P.extend(rd(n))
    P.extend(tu[:5])
    m2=[[Ins(x.text,x.tag) for x in g] for g in mid]; mid=list(mid)
    for n in range(16):
        if mid and n>=skip: P.extend(mid.pop(0))
        b=A+8*(n%9); a=vr(ACC+4*(n&1),4)
        P.I(f"v_mfma_f32_16x16x32_bf16 {a}, {vr(b,4)}, {vr(b+4,4)}, {a}")
        if n+7<16: P.extend(rd(n+7))
    P.extend(tu[5:])
    for r in range(4): P.I(f"v_cvt_pk_bf16_f32 v{8+r}, v{ACC+r}, v{ACC+4+r}")
    P.I(f"ds_write_b128 v{vKC}, v[8:11]\ns_branch L_kgen_end\nL_wdjob:")
    P.I("s_waitcnt lgkmcnt(0)\ns_barrier")
    P.extend(tu)
    if order==0:
        for g in m2: P.extend(g)
    mod_job(P,'sc1',diag,2)
    if order==1:
        for g in m2: P.extend(g)
    P.I(f"ds_write_b128 v{vRA+1}, {vr(ACC,4)}")
    P.I("L_kgen_end:")

def poll_groups(extra=None, XL='sc1', xfirst=0):
    Q=Prog(); poll_loads(Q,XL,xfirst); G=[[]]
    if extra: extra(Q)
    for x in Q.ins:
        G[-1].append(x)
        if x.kind=='vmem': G.append([])
    return G[:-1]
def poll_loads(P, XL='sc1', xfirst=0):
    LD='sc1'
    P.I(f"s_mul_i32 s94, s{sP}, 12288\ns_add_u32 s94, s94, {WS_XG}")
    X=[(f"s_add_u32 s94, s94, 4096\n" if g else "")+f"buffer_load_dwordx4 {vr(vPOLL+4*g,4)}, v{vT16}, {sp(rWS,4)}, s94 offen {XL}" for g in range(3)]
    S=[f"s_mov_b32 s79, {WS_SG+g*4096}\nbuffer_load_dwordx4 {vr(vPOLL+12+4*g,4)}, v{vT16}, {sp(rWS,4)}, s79 offen {LD}" for g in range(3)]
    M=[f"s_lshl4_add_u32 s3, s{sP}, {WS_MG}\nbuffer_load_dwordx4 {vr(vPOLL+24,4)}, v{vMC}, {sp(rWS,4)}, s3 offen {LD}"]
    for t in (X+S+M if xfirst==1 else S+M+X if xfirst==2 else M+S+X if xfirst==3 else [y for p in zip(X,S) for y in p]+M): P.I(t, tag='pollx' if t in X else 'poll')
vQ=144
def poll2_loads(P):
    P.I(f"""s_lshl4_add_u32 s3, s{sP}, {WS_MG+0x20000}
buffer_load_dwordx4 {vr(vQ,4)}, v{vSEL1}, {sp(rWS,4)}, s3 offen sc1
s_lshl2_add_u32 s3, s{sKE}, s{sW}
s_lshl_b32 s3, s3, 7
s_add_u32 s3, s3, {WS_MG+0x20000+8*4096}
buffer_load_dwordx4 {vr(vQ+4,4)}, v{vMW}, {sp(rWS,4)}, s3 offen sc1
s_add_u32 s3, s3, {4*4096}""")
    P.I(f"buffer_load_dwordx4 {vr(vQ+8,4)}, v{vMW}, {sp(rWS,4)}, s3 offen sc1", tag='poll2')
def poll2_work(ST):
    mc,mw=vQ,vQ+4; dpp=" row_mask:0xf bank_mask:0xf"
    L=[["L_p2_chk:","@wait poll2",f"v_min3_u32 v2, v{vQ+3}, v{vQ+7}, v{vQ+11}",f"v_max3_u32 v3, v{vQ+3}, v{vQ+7}, v{vQ+11}",f"v_min_u32 v2, s{sTAG}, v2",f"v_max_u32 v3, s{sTAG}, v3",
        "v_cmp_ne_u32 vcc, v2, v3","s_cbranch_vccnz L_q_retry","L_q_ok:"]]
    L[0][0]="L_q_chk:"
    X=[f"v_add_f32 v{mw}, v{mw}, v{vQ+8}",f"v_add_f32 v{mw+1}, v{mw+1}, v{vQ+9}"]
    for m in ("quad_perm:[1,0,3,2]","quad_perm:[2,3,0,1]"):
        X+=[f"v_add_f32_dpp v{r}, v{r}, v{r} {m}{dpp}" for r in (mc,mc+1,mw,mw+1)]
    X+=[f"v_add_f32_dpp v{r}, v{r}, v{r} row_half_mirror{dpp}" for r in (mc,mc+1)]
    X+=[f"v_cvt_pk_bf16_f32 v{mw+1}, v{mw}, v{mw+1}", f"v_cvt_pk_bf16_f32 v{mc+1}, v{mc}, v{mc+1}",
        f"v_lshlrev_b32 v{mw}, 16, v{mw+1}", f"v_and_b32 v{mw+1}, 0xffff0000, v{mw+1}", f"v_lshlrev_b32 v{mc}, 16, v{mc+1}", f"v_and_b32 v{mc+1}, 0xffff0000, v{mc+1}",
        f"v_add_f32 v{mw}, v{mw}, v{vSEL2}", f"v_add_f32 v{mw+1}, v{mw+1}, v{vSEL2}", f"v_cvt_pk_bf16_f32 v{mw+1}, v{mw}, v{mw+1}",
        f"v_lshlrev_b32 v{mw}, 16, v{mw+1}", f"v_and_b32 v{mw+1}, 0xffff0000, v{mw+1}", f"ds_write_b64 v{vGW}, {vr(mw,2)}"]
    late=[f"v_mov_b32_dpp v{vMOD+4+2*k+e}, v{mc+e} row_newbcast:{8*k}{dpp}" for k in range(2) for e in range(2)]
    return L[0],X,late
def writeback(cnt, lbl, on):
    return [f"s_and_b32 s4, s{cnt}, 3","s_cmp_lg_u32 s4, 0",f"s_cbranch_scc1 {lbl}","buffer_wbl2 sc1","s_waitcnt vmcnt(0)",f"{lbl}:"] if on else []
def retry2_block(P, loc=0):
    P.I(f"L_q_retry:\ns_add_u32 s{sCNT}, s{sCNT}, 1\ns_cmp_gt_u32 s{sCNT}, 20000\ns_waitcnt vmcnt(0) lgkmcnt(0)\ns_cbranch_scc1 L_q_ok")
    P.extend(writeback(sCNT,'L_q_nowb',loc))
    poll2_loads(P)
    P.I("s_waitcnt vmcnt(0)\ns_branch L_q_chk")

vGA=140
def table_unpack(P):
    P.I(f"v_mov_b32 v{vUA}, v{vTAB+7}\nv_mov_b32 v{vKA}, v{vTAB+6}")
    for j in range(11):
        P.I(f"v_lshrrev_b32 v{vGA+j}, 16, v{vTAB+j//2}" if j&1 else f"v_and_b32 v{vGA+j}, 0xffff, v{vTAB+j//2}")
def k_image(P, G, npre, skip):
    E=vROLE+40; O=vROLE; GA=vGA
    for _ in range(npre): P.extend(G.pop(0))
    P.I(f"""s_mov_b32 s{sT4}, 0x05040100
s_mov_b32 s{sT5}, 0x07060302
v_add_u32 v2, {L_KI}, v{vT16}
s_waitcnt lgkmcnt(0)
s_barrier""")
    for j in range(11): P.I(f"ds_read_b32 v{E+j}, v{GA+j}")
    k=0
    for c in (3,2,1,0):
        for ch in range(2):
            o=O+4*k; k+=1
            for i in range(4):
                j=3-c+2*i
                P.I(f"v_perm_b32 v{o+i}, v{E+j+1}, v{E+j}, s{sT4+ch}")
            P.I(f"ds_write_b128 v2, {vr(o,4)} offset:{(ch*4+c)*KIP}")
            if G and k>skip: P.extend(G.pop(0))
    for g in G: P.extend(g)

def retry_block(P, loc=0):
    P.I(f"L_ka_retry:\ns_add_u32 s{sCNT}, s{sCNT}, 1\ns_cmp_gt_u32 s{sCNT}, 20000\ns_waitcnt vmcnt(0) lgkmcnt(0)\ns_cbranch_scc1 L_ka_ok")
    P.extend(writeback(sCNT,'L_ka_nowb',loc))
    poll_loads(P)
    P.I("s_waitcnt vmcnt(0)\ns_branch L_ka_chk")

def make_h(P, diag, q2=False):
    Q=vPOLL; mc=Q+24; Mm=vROLE; Mr=vROLE+8; O=vROLE+16; A=vROLE+24; B=vROLE+40
    dpp=" row_mask:0xf bank_mask:0xf"
    P.I(f"s_mov_b32 s{sCNT}, 0\nv_add_u32 v4, {L_H+480}, v{vT16}\nL_ka_chk:\n@wait poll")
    chain=[]
    for m in ("quad_perm:[1,0,3,2]","quad_perm:[2,3,0,1]","row_half_mirror","row_mirror"):
        chain.append([f"v_add_f32_dpp v{r}, v{r}, v{r} {m}{dpp}" for r in (mc,mc+1)])
    chain+=[[f"v_cvt_pk_bf16_f32 v{mc}, v{mc}, v{mc+1}", f"v_mov_b32 v{mc+1}, v{mc}"],
            [f"v_permlane16_swap_b32 v{mc}, v{mc+1}", f"v_lshlrev_b32 v{vMOD}, 16, v{mc}", f"v_and_b32 v{vMOD+1}, 0xffff0000, v{mc}", f"v_lshlrev_b32 v{mc}, 16, v{mc+1}", f"v_and_b32 v{mc+1}, 0xffff0000, v{mc+1}"],
            [f"v_add_f32 v{mc}, 1.0, v{mc}", f"v_add_f32 v{mc+1}, 1.0, v{mc+1}", f"v_cvt_pk_bf16_f32 v{mc}, v{mc}, v{mc+1}"],
            [f"v_lshlrev_b32 v{vMOD+2}, 16, v{mc}", f"v_and_b32 v{vMOD+3}, 0xffff0000, v{mc}"]]
    for r in range(8):
        st=Q+12+4*(r//3)+r%3
        P.extend(chain[r])
        P.I(f"v_and_b32 v{Mr+r}, 0xffff0000, v{st}\nv_lshlrev_b32 v{Mm+r}, 16, v{st}\nv_rcp_f32 v{Mr+r}, v{Mr+r}")
    P.I(f"""v_min3_u32 v2, s{sTAG}, v{Q+27}, v{Q+15}
v_max3_u32 v3, s{sTAG}, v{Q+27}, v{Q+15}
v_min3_u32 v2, v2, v{Q+19}, v{Q+23}
v_max3_u32 v3, v3, v{Q+19}, v{Q+23}""")
    for ch in range(2):
        for r in range(0,8,2): P.I(f"v_pk_mul_f32 {vr(A+8*ch+r,2)}, {vr(Mr+r,2)}, {vr(vMOD+2,2)} op_sel:[0,{ch}] op_sel_hi:[1,{ch}]")
    for ch in range(2):
        for r in range(0,8,2): P.I(f"v_pk_fma_f32 {vr(B+8*ch+r,2)}, {vr(Mm+r,2)}, {vr(A+8*ch+r,2)}, {vr(vMOD,2)} op_sel:[0,0,{ch}] op_sel_hi:[1,1,{ch}] neg_lo:[1,0,0] neg_hi:[1,0,0]")
    P.I(f"""@wait pollx
v_min3_u32 v2, v2, v{Q+3}, v{Q+7}
v_max3_u32 v3, v3, v{Q+3}, v{Q+7}
v_min_u32 v2, v2, v{Q+11}
v_max_u32 v3, v3, v{Q+11}
v_cmp_ne_u32 vcc, v2, v3""")
    xr=lambda r: Q+4*(r//3)+r%3
    P.I(f"v_lshlrev_b32 v{vXF}, 16, v{xr(0)}\ns_cbranch_vccnz L_ka_retry\nL_ka_ok:")
    if diag: P.I(f"s_add_u32 s{sCNT}, s{sCNT}, 1\nv_writelane_b32 v255, s{sCNT}, 31")
    stamp(P,11,diag)
    if q2: poll2_loads(P)
    for ch in range(2):
        for r in range(8):
            if ch or r: P.I(f"v_and_b32 v{vXF+8+r}, 0xffff0000, v{xr(r)}" if ch else f"v_lshlrev_b32 v{vXF+r}, 16, v{xr(r)}")
        for r in range(0,8,2): P.I(f"v_pk_fma_f32 {vr(A+8*ch+r,2)}, {vr(vXF+8*ch+r,2)}, {vr(A+8*ch+r,2)}, {vr(B+8*ch+r,2)}")
        for r in range(0,8,2): P.I(f"v_cvt_pk_bf16_f32 v{O+4*ch+r//2}, v{A+8*ch+r}, v{A+8*ch+r+1}")
        P.I(f"ds_write_b128 v4, {vr(O+4*ch,4)} offset:{ch*HP}")

def gb_store(P, ST):
    P.I(f"""s_cmp_lg_u32 s{sW}, 2
s_cbranch_scc1 L_nogb
s_lshl3_add_u32 s{sT2}, s{sP}, {WS_GBF}
s_mov_b64 exec, 1
buffer_store_dwordx2 {vr(vMOD+6,2)}, v{vL16}, {sp(rWS,4)}, s{sT2} offen {ST}
s_mov_b64 exec, -1
L_nogb:""")
def w_side(ST):
    RAW=vPOLL; WP=vPOLL+16; GB=[48,64,80,96]; U=112; S1,S2=vHF,vHF+2
    rd=[]; main=[]; sums=[]
    for k in range(4):
        g=GB[k]
        rd.append([f"ds_read_b64_tr_b16 {vr(RAW+4*k+2*hf,2)}, v{vWRA} offset:{k*4096+hf*512}" for hf in range(2)]
                 +[f"ds_read_b128 {vr(g+4*q,4)}, v{vGR} offset:{k*64+q*16}" for q in range(2)])
        L=[]
        for d in range(4):
            u=U+8*k+2*d
            L+=[f"v_lshlrev_b32 v{u}, 16, v{RAW+4*k+d}", f"v_and_b32 v{u+1}, 0xffff0000, v{RAW+4*k+d}",
                f"v_mul_f32 v{g+2*d}, v{u}, v{g+2*d}", f"v_mul_f32 v{g+2*d+1}, v{u+1}, v{g+2*d+1}", f"v_cvt_pk_bf16_f32 v{WP+4*k+d}, v{g+2*d}, v{g+2*d+1}"]
        L.append((f"buffer_store_dwordx4 {vr(WP+4*k,4)}, v{vL16}, {sp(rWJ,4)}, s{sWO} offen {ST}",'wpst'))
        if k<3: L.append(f"s_add_u32 s{sWO}, s{sWO}, s{sWST}")
        main.append(L)
        for i in range(8):
            e=i&1; first=(k==0 and i<2)
            sums.append(f"v_mul_f32 v{S2+e}, v{U+8*k+i}, v{g+8+i}" if first else f"v_fmac_f32 v{S2+e}, v{U+8*k+i}, v{g+8+i}")
            if k==0 and i<2: continue
            sums.append(f"v_add_f32 v{S1+e}, v{g+e}, v{g+i}" if (k==0 and i<4) else f"v_add_f32 v{S1+e}, v{S1+e}, v{g+i}")
    rdsb=[f"ds_read_b128 {vr(GB[k]+8+4*q,4)}, v{vGR} offset:{256+k*64+q*16}" for k in range(4) for q in range(2)]
    tail=[f"v_add_f32 v{S1}, v{S1}, v{S1+1}", f"v_add_f32 v{S2}, v{S2}, v{S2+1}", f"v_mov_b32 v{S1+1}, v{S1}", f"v_mov_b32 v{S2+1}, v{S2}",
          f"v_lshlrev_b32 v2, 2, v{vLANE}", "s_nop 0",
          f"v_permlane32_swap_b32 v{S1}, v{S1+1}", f"v_permlane32_swap_b32 v{S2}, v{S2+1}",
          f"v_add_f32 v{S1}, v{S1}, v{S1+1}", f"v_add_f32 v{S2}, v{S2}, v{S2+1}", f"v_cvt_pk_bf16_f32 v{S1}, v{S1}, v{S2}",
          "s_mov_b32 exec_hi, 0", (f"buffer_store_dword v{S1}, v2, {sp(rWJ,4)}, s{sWA} offen {ST}",'auxst'), "s_mov_b32 exec_hi, -1"]
    return rd,main,rdsb,sums,tail

def conv_reads(vi):
    b=vi&1; o=192-64*vi
    U=[(f"ds_read_b128 {ar(64+32*b+4*k,4)}, v{vUA} offset:{512*k+o}",f"c{vi}_{k}") for k in range(8)]
    K=[[(f"ds_read_b64 {ar(32*b+4*k+2*hf,2)}, v{vKA} offset:{512*(7-k)+o+8*hf}",f"c{vi}_{k}") for hf in range(2)] for k in range(8)]
    return U,K
def conv(P, ST, cfg, midbar, wdj, wd0):
    ACC=16
    order=sorted([(u,s) for u in range(8) for s in range(8) if u+s<8], key=lambda t:(t[1],t[0]))
    rd,main,rdsb,sums,tail=w_side(ST)
    chk,work,bc=poll2_work(ST)
    Q=Prog(); gb_store(Q,ST); gbs=[[x.text for x in Q.ins]]
    P.extend(conv_reads(0)[0])
    first=set(); side=[]; QAT=cfg.get('QAT',20); LV=cfg.get('LV',1); FV=cfg.get('FV',LV); SL=cfg.get('SUMLATE',0)
    for vi in range(4):
        b=vi&1; nxt=[]
        if vi==LV: nxt+=[(x,'wtr') for r in rd[:2] for x in r]+wdj[:4]
        if vi<3:
            U,K=conv_reads(vi+1); nxt+=[y for k in range(8) for y in [U[k]]+K[k]]
        if vi==0: side+=work
        if vi==1 and LV>1: side+=bc+gbs
        if vi==LV: side+=['@wait wtr']+rd[2]+rd[3]+main[0]+wdj[4:]+main[1]+([] if SL else rdsb)+main[2]+main[3]+(bc+gbs if LV==1 else [])+([] if SL else sums)
        waits = {0:0,8:1,15:7} if vi==0 else {0:7}
        start = QAT+1 if vi==0 else 8 if vi==LV else 0
        for n,(u,s) in enumerate(order if (vi==0 or not cfg.get('ORD',1)) else sorted(order,key=lambda t:(t[0]+t[1],t[0]))):
            t=u+s; a=vr(ACC+4*t,4)
            if n in waits: P.I(f"@wait c{vi}_{waits[n]}")
            P.I(f"v_mfma_f32_16x16x32_bf16 {a}, {ar(32*b+4*u,4)}, {ar(64+32*b+4*s,4)}, {a if t in first else 0}"); first.add(t)
            slots=2-((n+1) in waits or n==35)
            if vi==0 and FV==0 and n==0: P.extend(midbar); continue
            if vi in (LV,FV) and n==0:
                P.I("@wait"+(" wr dr" if vi==LV else "")+(" wdst" if vi==FV else "")+"\ns_waitcnt lgkmcnt(0)\ns_barrier")
                if vi==FV: P.extend(midbar)
                continue
            if vi==0 and n==QAT: P.extend(chk); continue
            if nxt:
                P.extend([nxt.pop(0)]); slots-=1
                if n<start and slots and nxt: P.extend([nxt.pop(0)]); slots-=1
            while slots>0 and wd0 and vi==0 and not nxt and n<QAT: P.extend([wd0.pop(0)]); slots-=1
            while slots>0 and side and n>=start:
                x=side.pop(0)
                if isinstance(x,list): P.extend(x); slots=0
                else: P.extend([x]); slots-=1
        assert not nxt, len(nxt)
        if vi==0: P.extend(side+wd0); print('  conv step 0 spill',len(side),len(wd0)); side=[]; wd0=[]
        print('  conv step',vi,'side backlog',len(side))
    assert not any(isinstance(x,list) for x in side)
    if SL: return ACC,side,rdsb+sums+tail
    return ACC,side+tail,[]

def conv_epilogue(P, ACC, tail, XST, pre=[], prebar=[], postbar=[], tmax=99, after=[]):
    tail=list(tail); P.extend(pre)
    for t in range(8):
        P.I(f"ds_write_b128 v{vYW}, {vr(ACC+4*t,4)} offset:{1280*t}")
        k=min(max(5,-(-len(tail)//(8-t))),len(tail),tmax)
        if len(tail)-k<4: k=len(tail)
        P.extend(tail[:k]); tail=tail[k:]
    P.extend(prebar)
    P.I(f"s_mul_i32 s{sT0}, s{sP}, {12288 if XIN else 128}\ns_add_u32 s{sT0}, s{sT0}, {WS_XG if XIN else WS_X1B}\ns_waitcnt lgkmcnt(0)\ns_barrier")
    Y=16
    for ch in range(2):
        for g in range(2):
            for vh in range(2):
                P.I(f"ds_read_b128 {vr(Y+16*ch+8*vh+4*g,4)}, v{vYR} offset:{L_Y+(2*ch+vh)*10240+320*g}")
    P.extend(postbar)
    for ch in range(2):
        y=Y+16*ch
        for r in range(0,8,2): P.I(f"v_pk_add_f32 {vr(y+r,2)}, {vr(y+r,2)}, {vr(y+8+r,2)}")
        for r in range(0,8,2): P.I(f"v_pk_fma_f32 {vr(y+r,2)}, {vr(y+r,2)}, {vr(vMOD+4,2)}, {vr(vXF+8*ch+r,2)} op_sel:[0,{ch},0] op_sel_hi:[1,{ch},1]")
        for r in range(0,8,2): P.I(f"v_cvt_pk_bf16_f32 v{4+4*ch+r//2}, v{y+r}, v{y+r+1}")
        P.I(f"buffer_store_dwordx4 {vr(4+4*ch,4)}, v{vXO}, {sp(rWS,4)}, s{sT0} offen offset:{64*ch} {XST}", tag='x1st')
    print('  after the x1 stores:', len(tail), '+', len(after))
    P.extend(tail); P.extend(after)

def body(P, n, diag, cfg, H):
    NT=cfg.get('NT','nt'); ST='sc1'
    entry(P,n,diag,256,cfg.get('PERM',[2,3,0,5,1,7,4,6] if cfg.get('QSYNC',0) else None)); role_addr(P,cfg.get('LOC',0))
    P.I("s_waitcnt lgkmcnt(0)"); stamp0_commit(P,diag)
    if cfg.get('WSB',0): P.I(f"s_add_u32 s{sWS}, s{sWS}, {cfg['WSB']<<20}\ns_addc_u32 s{sWS+1}, s{sWS+1}, 0")
    po=cfg.get('PORD',0); m2=cfg.get('M2AT',0); global JW
    assert not (po and cfg.get('CUT',0)) and not (m2 and cfg.get('CUT',0))
    JW=(8 if po else 0)
    early_loads(P,NT,not po)
    role_loads(P,cfg.get('XNT',NT),0)
    if po: param_loads(P,NT)
    table_loads(P); setup(P,False,cfg.get('X',''),cfg.get('WMAP',0) or cfg.get('QSYNC',0)); P.extend(H['setup'])
    if m2==0: role_loads(P,NT,1)
    P.I(f"s_waitcnt lgkmcnt(0)\ns_or_b32 s{sTAG}, s{sTAG}, 0x7f800000\ns_add_u32 s{sTAG}, s{sTAG}, 1\ns_or_b32 s{sTAG}, s{sTAG}, 0x7f800000\ns_barrier")
    stamp(P,1,diag)
    kgen_init(P)
    H['idle'](P)
    P.I("@forget "+" ".join(str(r) for r in list(range(vPAR,vPAR+6))+[vROLE]+list(range(vTAB,vTAB+8))))
    cut=cfg.get('CUT',0)
    if cut:
        P.I(f"s_waitcnt vmcnt(10)\ns_cmp_lg_u32 s{sW}, 2\ns_cbranch_scc1 L_f1\ns_waitcnt vmcnt(6)\nL_f1:")
        P.I("@forget "+" ".join(str(r) for r in list(range(vPAR,vPAR+6))+[vROLE]+list(range(vTAB,vTAB+8))))
        factor_gen(P,0,cut)
        stamp(P,10,diag)
        P.I(f"s_cmp_eq_u32 s{sW}, 3\ns_cbranch_scc1 L_xje")
    x_jobs(P,'sc1',diag,cfg.get('LOC',0))
    P.I("@forget "+" ".join(str(r) for r in list(range(vPAR,vPAR+6))+[vROLE]+list(range(vTAB,vTAB+8))))
    stamp(P,3,diag)
    da,wa=cfg.get('DAT',0),cfg.get('WAT',1)
    def raws(k):
        if da==k: raw_wd_loads(P,cfg.get('DNT',NT))
        if wa==k: raw_w_loads(P,NT)
    if m2==1: role_loads(P,NT,1)
    raws(0)
    factor_gen(P,cut)
    stamp(P,4,diag)
    if m2==2: role_loads(P,NT,1)
    raws(1)
    G=poll_groups((lambda Q: raw_w_loads(Q,NT)) if wa==3 else None, cfg.get('XLP','') if cfg.get('LOC',0)==1 else 'sc1', cfg.get('XFIRST',0))
    for _ in range(cfg.get('PEARLY',0)): P.extend(G.pop(0))
    npm=cfg.get('PMID',0); mid=G[:npm]; G=G[npm:]
    if wa==5:
        Q=Prog(); raw_w_loads(Q,NT); W4=[[]]
        for x in Q.ins:
            W4[-1].append(x)
            if x.kind=='vmem': W4.append([])
        mid=W4[:-1]+mid
    kgen(P,diag,mid,cfg.get('PMSKIP',0),cfg.get('PMORD',0)); stamp(P,5,diag)
    k_image(P,G,min(len(G),cfg.get('PPRE',5)),cfg.get('PSKIP',0))
    raws(2)
    wdj=[]
    wj=cfg.get('WJAT',0); wd0=[]
    if cfg.get('Q2AT',1)==2: poll2_loads(P)
    if da<2 and wj:
        Q=Prog(); wd_job(Q,ST); wd0=[(x.text,x.tag) for x in Q.ins]
    elif da<2: wd_job(P,ST)
    else:
        Q=Prog(); wd_job(Q,ST); wdj=[(x.text,x.tag) for x in Q.ins[1:]]
    stamp(P,6,diag)
    P.I("s_waitcnt lgkmcnt(0)\ns_barrier")
    for k in conv_reads(0)[1]: P.extend(k)
    q2=cfg.get('Q2AT',1)
    if q2==0: poll2_loads(P)
    make_h(P,diag,q2==3)
    if q2==1: poll2_loads(P)
    raws(4)
    if cfg.get('FV',1)==0: P.I("@wait wdst")
    P.I("s_waitcnt lgkmcnt(0)\ns_barrier")
    stamp(P,7,diag)
    acc,tail,after=conv(P,ST,cfg,H['midbar'] if da<2 else [],wdj,wd0); stamp(P,8,diag)
    conv_epilogue(P,acc,tail,ST,H.get('pre',[]),H.get('prebar',[]),H.get('postbar',[]),cfg.get('TMAX',99),after)
```

```python
from prog import *
from layout import *
import struct
def f32(x): return struct.unpack('<I',struct.pack('<f',x))[0]
LOG2E = 0x3fb8aa3b
XIN = 0
sX,sARE,sAIM,sBRE,sBIM,sCRE,sCIM,sLDT,sDSK,sBX,sWG,sWU,sWD,sC,sWM,sOUT,sDBG,sWS = [8+2*i for i in range(18)]
rR,rWG,rWU,rWD,rOUT,rWS,rWJ = 44,48,52,56,60,64,68
sXCD,sIDX,sP,sW,sTAG,sLD,sDS = 72,73,74,75,76,77,78
sT0,sT1,sT2,sT3,sT4,sT5 = 80,81,82,83,84,85
sWO,sWST,sWA = 86,87,88
sCG,sKE,sFS,sCNT = 26,27,97,98
def sp(a,n=2): return f"s[{a}:{a+n-1}]"
def vr(a,n): return f"v[{a}:{a+n-1}]"
def ar(a,n): return f"a[{a}:{a+n-1}]"
def mksrd(d,b,size):
    return [f"s_mov_b32 s{d}, s{b}", f"s_and_b32 s{d+1}, s{b+1}, 0xffff", f"s_mov_b32 s{d+2}, {size}", f"s_mov_b32 s{d+3}, 0x20000"]
vLANE = 1
vT16,vMC,vMW = 12,13,14
vPAR = 16
vTAB = 24
vRA = 32
vROLE = 40
vFG = 120
vPOLL = 160
vPOL2 = 152
vXF = 192
vHF = 208
vKA,vUA,vYW,vYR,vWRA,vXO,vGR,vL16 = 224,225,226,227,228,229,230,231
vMOD = 232
vKF,vKC,vGW,vSEL1,vSEL2 = 240,241,242,243,244

ONLY=None
import os
LATE0=int(os.environ.get('LATE0','0'))
JIT=os.environ.get('JIT','')
def stamp(P, n, diag):
    if JIT:
        P.I(f"s_waitcnt lgkmcnt(0)\ns_memtime s[100:101]\ns_waitcnt lgkmcnt(0)\ns_cselect_b32 s5, 1, 0\ns_lshr_b32 s100, s100, 3\ns_and_b32 s100, s100, {JIT}\ns_cbranch_scc1 L_jit{len(P.ins)}\ns_sleep 40\nL_jit{len(P.ins)}:\ns_cmp_lg_u32 s5, 0")
    if diag and (ONLY is None or n in ONLY): P.I(f"s_memrealtime s[4:5]\ns_memtime s[100:101]\ns_waitcnt lgkmcnt(0)\nv_writelane_b32 v255, s4, {n}\nv_writelane_b32 v255, s100, {32+n}")
def stamp0_issue(P, diag):
    if diag: P.I("v_mov_b32 v255, 0\ns_memrealtime s[4:5]\ns_memtime s[100:101]")
def stamp0_commit(P, diag):
    if diag: P.I("v_writelane_b32 v255, s4, 0\nv_writelane_b32 v255, s100, 32")
def stamp_out(P, kidx, diag):
    if diag:
        P.I(f"""s_lshl_b32 s4, s2, 10
s_add_u32 s4, s4, {WS_STAMP + kidx*0x40000}
v_lshlrev_b32 v2, 2, v0
buffer_store_dword v255, v2, {sp(rWS,4)}, s4 offen""")

def bf16_round(l):
    u=f32(float(l)); u=(u+0x7fff+((u>>16)&1))&0xffff0000
    return int(struct.unpack('<f',struct.pack('<I',u))[0])
def table_words():
    rec=[]
    for T in range(256):
        a=[]
        for j in range(11):
            lag=2047-8*T-j
            if lag<0: a.append(L_CZ); continue
            lam=bf16_round(lag); b=(lam>>3)&15; i=HI.index(lam-8*b)
            a.append(L_C+i*CP+4*b)
        a.append(0)
        w=T>>6; lane=T&63; ch=w>>1; vh=w&1
        ka_=L_KI+ch*4*KIP+(lane&3)*KIP+2*(2044-16)-3584-192-256*vh+(lane&48)-2*(lane&12)
        ua_=L_H+ch*HP+448-192-256*vh+32*(lane&15)+(lane&48)
        rec.append([a[2*k]|(a[2*k+1]<<16) for k in range(6)]+[ka_,ua_])
    return [rec[T][4*q+k] for q in range(2) for T in range(256) for k in range(4)]

def entry(P, name, diag, nlines, perm):
    P.I(f".globl {name}\n.p2align 8\n.type {name},@function\n{name}:\n@reset")
    ng=(nlines+15)//16; assert ng&(ng-1)==0 and ng<=32
    if LATE0: P.I(f"s_and_b32 s4, s2, 7\ns_cbranch_scc1 L_nolate\ns_sleep {LATE0}\nL_nolate:")
    P.I(f"""s_cmp_ge_u32 s2, 256
s_cbranch_scc1 L_{name}_exit
s_load_dwordx16 s[8:23], s[0:1], 0
s_load_dwordx16 s[24:39], s[0:1], 64
s_load_dwordx4 s[40:43], s[0:1], 128
s_getpc_b64 s[6:7]
L_pc:
s_mov_b64 exec, -1
v_lshrrev_b32 v2, 6, v0
v_and_b32 v{vLANE}, 63, v0
s_lshr_b32 s{sIDX}, s2, 3
v_readfirstlane_b32 s{sW}, v2
s_and_b32 s{sT0}, s{sIDX}, {ng-1}
s_lshl_b32 s{sT0}, s{sT0}, 11
v_lshl_add_u32 v3, v{vLANE}, 5, s{sT0}
s_cmp_lg_u32 s{sW}, 3
s_cbranch_scc1 L_nopf
global_load_dword v15, v3, s[6:7]
L_nopf:""")
    stamp0_issue(P,diag)
    P.I(f"s_and_b32 s{sXCD}, s2, 7")
    if perm: P.I(f"s_lshl_b32 s{sXCD}, s{sXCD}, 2\ns_lshr_b32 s{sXCD}, {hex(sum(v<<(4*k) for k,v in enumerate(perm)))}, s{sXCD}\ns_and_b32 s{sXCD}, s{sXCD}, 7")
    P.I(f"""s_lshl_b32 s{sP}, s{sXCD}, 5
s_add_u32 s{sP}, s{sP}, s{sIDX}""")

def role_addr(P, loc=0):
    P.I(f"""s_cmp_eq_u32 s{sW}, 0
s_cselect_b32 s{sT3}, 8, 1
s_lshl_b32 s{sT2}, s{sT3}, 10
s_lshl_b32 s{sT3}, s{sT3}, 7
s_and_b32 s{sT4}, s{sP}, 7
s_lshl_b32 s{sT4}, s{sT4}, 7""")
    if loc: P.I(f"s_lshl_b32 s{sT0}, s{sIDX}, 9\ns_add_u32 s{sT0}, s{sT0}, s{sXCD}\ns_lshl_b32 s{sT0}, s{sT0}, 7")
    else: P.I(f"s_lshr_b32 s{sT0}, s{sP}, 3\ns_lshl_b32 s{sT0}, s{sT0}, 16\ns_add_u32 s{sT0}, s{sT0}, s{sT4}")
    P.I(f"""s_lshl_b32 s{sT1}, s{sP}, 13
s_cmp_eq_u32 s{sW}, 0
s_cselect_b32 s{sT0}, s{sT0}, s{sT1}
s_and_b32 s{sT5}, s{sW}, 1
s_sub_u32 s92, 7, s{sT5}
s_lshr_b32 s{sT1}, s{sP}, s92
s_lshl1_add_u32 s{sT1}, s{sT5}, s{sT1}
s_lshl_b32 s{sT1}, s{sT1}, 10
s_add_u32 s{sT4}, s{sT4}, s{sT1}
s_and_b32 s{sT1}, s{sP}, 0xf8
s_add_u32 s92, s{sT5}, 2
s_lshl_b32 s{sT1}, s{sT1}, s92
s_and_b32 s{sT5}, s{sT1}, 511
s_mul_i32 s{sT1}, s{sT5}, 6144
s_add_u32 s{sT1}, s{sT1}, s{sT4}
s_mov_b32 s{sT4}, 3145728
s_cmp_lt_u32 s{sW}, 2
s_cselect_b32 s94, s{sT0}, s{sT1}
s_cselect_b32 s{sT2}, s{sT2}, 6144
s_cselect_b32 s79, s{sT3}, {8*6144}
s_cselect_b32 s{rR+2}, 2097152, s{sT4}
s_mov_b32 s{rR+3}, 0x20000
v_lshrrev_b32 v3, 3, v{vLANE}
v_mul_u32_u24 v3, s{sT2}, v3
v_lshrrev_b32 v4, 2, v{vLANE}
v_and_b32 v4, 4, v4
v_and_b32 v5, 7, v{vLANE}
v_xor_b32 v4, v4, v5
v_lshl_add_u32 v22, v4, 4, v3
v_xor_b32 v23, 32, v22
s_lshl_b32 s3, s{sW}, 13
s_add_u32 s3, s3, {L_RR}
v_add_u32 v5, s{sT5}, v{vLANE}
v_and_b32 v5, 511, v5
v_lshlrev_b32 v5, 1, v5
s_lshl_b32 s{sT5}, s{sP}, 9
v_lshl_add_u32 v2, v0, 1, s{sT5}""")
    for i in range(6): P.I(f"v_mov_b32 v{vPAR+i}, 0")
    P.I(f"v_mov_b32 v{vROLE}, 0\ns_lshl_b32 s93, s{sP}, 2")
def param_loads(P, NT):
    P.extend([f"global_load_short_d16_hi v{vPAR+i}, v2, {sp(b)} {NT}" for i,b in enumerate((sARE,sAIM,sBRE,sBIM,sCRE,sCIM))])
def early_loads(P, NT, pfirst):
    if pfirst: param_loads(P,NT)
    P.I(f"""s_load_dword s{sTAG}, {sp(sWS)}, {WS_EPOCH}
s_load_dword s{sLD}, {sp(sLDT)}, s93
s_load_dword s{sDS}, {sp(sDSK)}, s93
s_cmp_lt_u32 s{sW}, 2
s_cselect_b64 {sp(rR)}, {sp(sX)}, {sp(sWM)}
s_and_b32 s{rR+1}, s{rR+1}, 0xffff""")
    P.I(f"global_load_short_d16_hi v{vROLE}, v5, {sp(sC)}")
    P.I(f"""s_add_u32 s6, s6, L_table-L_pc+4096
s_addc_u32 s7, s7, 0
v_lshlrev_b32 v{vT16}, 4, v0""")
def role_loads(P, XNT, late):
    lbl='L_rlb' if late else 'L_rla'
    P.I(f"s_cmp_eq_u32 s{sW}, 3\ns_cbranch_scc{0 if late else 1} {lbl}")
    for u in range(8):
        if u==4 and not late: P.I(f"s_cmp_eq_u32 s{sW}, 2\ns_cbranch_scc1 {lbl}")
        P.I(f"s_add_u32 m0, s3, {u*1024}")
        P.I(f"s_add_u32 s94, s94, s79" if u else "s_nop 0")
        P.I(f"buffer_load_dwordx4 v{22+(u&1)}, {sp(rR,4)}, s94 offen {XNT} lds", tag='rr')
    P.I(f"{lbl}:")
def table_loads(P):
    P.I(f"global_load_dwordx4 {vr(vTAB,4)}, v{vT16}, s[6:7] offset:-4096\nglobal_load_dwordx4 {vr(vTAB+4,4)}, v{vT16}, s[6:7]")

def setup(P, nowd=False, X='', wmap=0):
    P.extend(mksrd(rWS,sWS,WS_USED))
    P.I(f"{f's_cmp_lg_u32 s{sXCD}, 0' if wmap>=2 else f's_cmp_lt_u32 s{sIDX}, 28'}\ns_cselect_b32 s{sT0}, 1835008, 0\ns_cselect_b32 s{sT1}, {WS_USED}, 0")
    for r,b in ((rWG,sWG),(rWU,sWU),(rWD,sWD)): P.extend(mksrd(r,b,1835008 if (nowd and r==rWD) else f"s{sT0}"))
    P.extend(mksrd(rWJ,sWS,f"s{sT1}"))
    if 'w' in X: P.I(f"s_mov_b32 s{rWG+2}, 0\ns_mov_b32 s{rWU+2}, 0")
    if 'm' in X: P.I(f"s_mov_b32 s{rR+2}, 0")
    if 'd' in X: P.I(f"s_mov_b32 s{rWD+2}, 0")
    if 's' in X: P.I(f"s_min_u32 s{rWJ+2}, s{rWJ+2}, {WS_XG}")
    if wmap>=2:
        P.I(f"s_max_u32 s{sFS}, s{sP}, 32\ns_sub_u32 s{sFS}, s{sFS}, 32")
        if wmap==2: P.I(f"s_lshr_b32 s{sCG}, s{sFS}, 3\ns_and_b32 s{sKE}, s{sFS}, 7")
        else: P.I(f"s_mul_i32 s{sKE}, s{sFS}, 586\ns_lshr_b32 s{sKE}, s{sKE}, 14\ns_mul_i32 s{sCG}, s{sKE}, 28\ns_sub_u32 s{sCG}, s{sFS}, s{sCG}")
    elif wmap: P.I(f"s_mov_b32 s{sCG}, s{sIDX}\ns_mov_b32 s{sKE}, s{sXCD}")
    else: P.I(f"""s_and_b32 s{sCG}, s{sXCD}, 3
s_mul_i32 s{sCG}, s{sCG}, 7
s_lshr_b32 s{sT0}, s{sIDX}, 2
s_add_u32 s{sCG}, s{sCG}, s{sT0}
s_and_b32 s{sKE}, s{sXCD}, 4
s_and_b32 s{sT0}, s{sIDX}, 3
s_add_u32 s{sKE}, s{sKE}, s{sT0}""")
    P.I(f"""s_lshl2_add_u32 s{sT0}, s{sCG}, s{sW}
s_mul_i32 s{sT1}, s{sT0}, 147
s_lshr_b32 s{sT1}, s{sT1}, 10
s_mul_i32 s{sT2}, s{sT1}, 7
s_sub_u32 s{sT0}, s{sT0}, s{sT2}
s_mul_i32 s{sT1}, s{sT1}, 231
s_cmp_lt_u32 s{sT0}, {G1}
s_cselect_b32 s{sT2}, {G1}, 1
s_cselect_b32 s{sT3}, 1, 33
s_mul_i32 s{sT0}, s{sT0}, s{sT3}
s_add_u32 s{sT0}, s{sT0}, s{sT1}
s_lshl_b32 s{sT0}, s{sT0}, 10
s_add_u32 s{sT0}, s{sT0}, {WS_WPF}
s_lshl_b32 s{sWST}, s{sT2}, 10
s_mul_i32 s{sT3}, s{sWST}, s{sKE}
s_lshl2_add_u32 s{sWO}, s{sT3}, s{sT0}
s_lshl_b32 s{sT2}, s{sT2}, 15
s_add_u32 s{sWA}, s{sT2}, s{sT0}
s_lshl_b32 s{sT0}, s{sKE}, 7
s_add_u32 s{sWA}, s{sWA}, s{sT0}""")
    L=vLANE
    P.I(f"""v_lshlrev_b32 v{vL16}, 4, v{L}
v_and_b32 v2, 15, v{L}
v_and_b32 v3, 48, v{L}
v_lshrrev_b32 v4, 4, v{L}
v_lshrrev_b32 v5, 5, v{L}
v_and_b32 v6, 3, v{L}
s_mul_i32 s{sT2}, s{sW}, 10240
s_add_u32 s{sT2}, s{sT2}, {L_Y}
v_mul_u32_u24 v7, 320, v4
v_lshl_add_u32 v7, v2, 4, v7
v_add_u32 v{vYW}, s{sT2}, v7
v_lshrrev_b32 v7, 5, v0
v_mul_u32_u24 v7, 1280, v7
v_and_b32 v8, 1, v0
v_mul_u32_u24 v9, 640, v8
v_bfe_u32 v10, v0, 1, 4
v_lshl_add_u32 v9, v10, 4, v9
v_add_u32 v{vYR}, v7, v9
v_lshrrev_b32 v7, 2, v0
{f"s_and_b32 s{sT2}, s{sP}, 7" if XIN else ""}
{f"v_xor_b32 v7, s{sT2}, v7" if XIN else ""}
v_lshlrev_b32 v7, {7 if XIN else 15}, v7
v_lshl_add_u32 v{vXO}, v6, 4, v7
v_mul_u32_u24 v7, {FP}, v2
v_add_u32 v7, v7, v3
v_add_u32 v{vKF}, {L_F}, v7
v_mul_u32_u24 v7, {CP}, v2
s_mul_i32 s{sT2}, s{sW}, {16*CP}
v_add3_u32 v{vKC}, v7, v3, s{sT2}
v_bfe_u32 v7, v{L}, 2, 2
v_cvt_f32_u32 v{vSEL2}, v5
v_and_b32 v9, 31, v{L}
v_lshlrev_b32 v{vMC}, 12, v9
v_and_b32 v9, 8, v{L}
v_lshl_add_u32 v9, v9, 1, v2
v_lshlrev_b32 v{vSEL1}, 12, v9
v_lshl_add_u32 v9, v5, 3, v6
v_bfe_u32 v10, v{L}, 2, 3
v_lshlrev_b32 v11, 4, v10
v_lshl_add_u32 v{vMW}, v9, 12, v11
s_lshl_b32 s{sT2}, s{sW}, 6
s_add_u32 s{sT2}, s{sT2}, {L_GT+256}
v_lshl_add_u32 v10, v10, 3, s{sT2}
v_lshlrev_b32 v11, 8, v5
v_sub_u32 v{vGW}, v10, v11
v_lshlrev_b32 v10, 5, v5
v_add_u32 v{vGR}, {L_GT}, v10
v_and_b32 v9, 1, v4
v_lshl_add_u32 v10, v9, 1, v5
v_lshl_add_u32 v10, v10, 3, v7
v_lshl_add_u32 v10, v10, 1, v9
v_bfe_u32 v11, v{L}, 3, 1
v_lshl_add_u32 v10, v10, 1, v11
v_xor_b32 v10, s{sW}, v10
v_lshl_add_u32 v10, v10, 1, v8
v_bfe_u32 v11, v{L}, 1, 1
v_lshl_add_u32 v10, v10, 1, v11
v_lshlrev_b32 v10, 3, v10
v_add_u32 v{vWRA}, {L_WR}, v10""")
    P.I(f"""v_mul_u32_u24 v7, {HP}, v5
v_and_b32 v9, 31, v{L}
v_min_u32 v9, 29, v9
v_lshl_add_u32 v7, v9, 4, v7
v_add_u32 v7, {L_H}, v7
v_cmp_gt_u32 vcc, 64, v0
v_mov_b32 v9, {L_CZ}
v_mov_b32 v{vFG}, 0
v_cndmask_b32 v7, v9, v7, vcc
v_mov_b32 v{vFG+1}, 0
v_mov_b32 v{vFG+2}, 0
v_mov_b32 v{vFG+3}, 0
ds_write_b128 v7, {vr(vFG,4)}""")
    A0=vRA
    P.I(f"""v_lshrrev_b32 v2, 3, v{L}
v_and_b32 v3, 2, v2
v_mul_u32_u24 v2, 3584, v2
v_and_b32 v4, 7, v{L}
v_xor_b32 v3, v3, v4
v_xor_b32 v4, 4, v3
v_lshl_add_u32 v{A0+2}, v3, 4, v2
v_lshl_add_u32 v{A0+3}, v4, 4, v2
v_and_b32 v8, 1, v{L}
v_bfe_u32 v7, v{L}, 1, 3
v_mul_u32_u24 v7, {KIP}, v7
v_lshl_add_u32 v7, v8, 4, v7
v_add_u32 v{A0+1}, {L_KI+4096}, v7
s_mul_i32 s{sT0}, s{sKE}, {64*3584}
s_lshl_b32 s{sT1}, s{sCG}, 7
s_add_u32 s90, s{sT0}, s{sT1}""")
    if not nowd: P.I(f"""v_lshrrev_b32 v2, 2, v{L}
v_and_b32 v5, 3, v{L}
v_lshlrev_b32 v5, 4, v5
v_lshl_add_u32 v{A0+4}, v2, 10, v5
v_lshrrev_b32 v6, 5, v{L}
v_and_b32 v7, 3, v2
v_lshl_add_u32 v6, v6, 3, v7
v_bfe_u32 v7, v{L}, 4, 1
v_lshl_add_u32 v6, v6, 1, v7
v_lshl_add_u32 v6, v6, 1, v8
v_bfe_u32 v7, v{L}, 1, 1
v_lshl_add_u32 v6, v6, 1, v7
v_lshlrev_b32 v6, 3, v6
v_add_u32 v{A0}, {L_DR}, v6
{"" if wmap>=2 else f"s_mul_i32 s{sFS}, s{sXCD}, 28"}
{"" if wmap>=2 else f"s_add_u32 s{sFS}, s{sFS}, s{sIDX}"}
s_lshr_b32 s{sT2}, s{sFS}, 1
s_lshl_b32 s{sT2}, s{sT2}, 14
s_and_b32 s{sT1}, s{sFS}, 1
s_lshl_b32 s{sT1}, s{sT1}, 9
s_add_u32 s91, s{sT2}, s{sT1}""")

def x_jobs(P, PUB, diag, loc=0):
    R=vROLE; G=vROLE+32; L=vLANE
    P.I(f"s_cmp_eq_u32 s{sW}, 2\ns_cbranch_scc1 L_rj2\ns_cmp_eq_u32 s{sW}, 1\ns_cbranch_scc1 L_rj1")
    P.I(f"""v_and_b32 v2, 7, v{L}
v_lshrrev_b32 v3, 3, v{L}
v_and_b32 v4, 2, v2
v_lshlrev_b32 v4, 1, v4
v_xor_b32 v4, v4, v3
v_lshlrev_b32 v4, 4, v4
v_lshl_add_u32 v4, v2, 7, v4
v_add_u32 v4, {L_RR}, v4
v_xor_b32 v5, 32, v4
v_mul_u32_u24 v3, {4*12288}, v3
v_lshl_add_u32 v2, v2, 4, v3
{f"s_mov_b32 s{sT0}, s{sXCD}" if loc else f"s_and_b32 s{sT0}, s{sP}, 7"}
s_mul_i32 s{sT0}, s{sT0}, {32*12288}
{f"s_lshl_b32 s{sT1}, s{sIDX}, 3" if loc else f"s_and_b32 s{sT1}, s{sP}, 0xf8"}
s_lshl4_add_u32 s{sT0}, s{sT1}, s{sT0}
s_add_u32 s{sT0}, s{sT0}, {WS_XG}""")
    for k in range(12): P.I(f"v_mov_b32 v{G+4*k+3}, s{sTAG}")
    P.I(f"s_waitcnt vmcnt({JW})"); stamp(P,2,diag)
    for r in range(8): P.I(f"ds_read_b128 {vr(R+4*r,4)}, v{4+(r&1)} offset:{r*1024}")
    for g in range(3):
        for j in range(4):
            k=g*4+j
            for e in range(3):
                if 3*g+e<8: P.I(f"v_mov_b32 v{G+4*k+e}, v{R+4*(3*g+e)+j}")
            P.I(f"s_add_u32 s{sT1}, s{sT0}, {j*12288+g*4096}")
            P.I(f"buffer_store_dwordx4 {vr(G+4*k,4)}, v2, {sp(rWS,4)}, s{sT1} offen {'' if loc==1 else PUB}")
    P.I(f"s_waitcnt vmcnt(12)\ns_branch L_xje\nL_rj1:")
    P.I(f"""v_mov_b32 v2, 0
v_mov_b32 v3, 0
v_mov_b32 v4, 0
v_mov_b32 v5, 0
s_mov_b32 s{sT1}, 0x3f803f80
v_add_u32 v6, {L_RR+8192}, v{vL16}
v_mul_u32_u24 v8, 96, v{L}
v_lshlrev_b32 v9, 12, v{L}
s_lshl4_add_u32 s{sT0}, s{sP}, {WS_SG}""")
    P.I(f"v_mov_b32 v{G+3}, s{sTAG}\ns_waitcnt vmcnt({JW})"); stamp(P,2,diag)
    for u in range(8): P.I(f"ds_read_b128 {vr(R+4*u,4)}, v6 offset:{u*1024}")
    for k in range(32):
        P.I(f"v_dot2c_f32_bf16 v{2+(k&1)}, s{sT1}, v{R+k}\nv_dot2c_f32_bf16 v{4+(k&1)}, v{R+k}, v{R+k}")
    P.I("v_add_f32 v2, v2, v3\nv_add_f32 v4, v4, v5")
    for m in ("quad_perm:[1,0,3,2]","quad_perm:[2,3,0,1]","row_half_mirror"):
        P.I(f"v_add_f32_dpp v2, v2, v2 {m} row_mask:0xf bank_mask:0xf\nv_add_f32_dpp v4, v4, v4 {m} row_mask:0xf bank_mask:0xf")
    P.I(f"""v_mul_f32 v2, 0x3b000000, v2
v_mul_f32 v4, 0x3b000000, v4
v_fma_f32 v4, -v2, v2, v4
v_max_f32 v4, 0, v4
v_cvt_pk_bf16_f32 v4, v4, v4
v_and_b32 v4, 0xffff0000, v4
v_add_f32 v4, 0x3727c5ac, v4
v_cvt_pk_bf16_f32 v4, v4, v4
v_and_b32 v4, 0xffff0000, v4
v_sqrt_f32 v4, v4
v_cvt_pk_bf16_f32 v2, v2, v4
ds_bpermute_b32 v{G}, v8, v2
ds_bpermute_b32 v{G+1}, v8, v2 offset:32
ds_bpermute_b32 v{G+2}, v8, v2 offset:64
s_waitcnt lgkmcnt(0)
s_mov_b64 exec, 7
buffer_store_dwordx4 {vr(G,4)}, v9, {sp(rWS,4)}, s{sT0} offen {PUB}
s_mov_b64 exec, -1
s_waitcnt vmcnt(1)
s_branch L_xje
L_rj2:""")
    mod_job(P,PUB,diag,1)
    P.I("s_waitcnt vmcnt(1)")
    P.I("L_xje:")
def mod_job(P, PUB, diag, nks):
    R=vROLE; L=vLANE; A0=vRA; w=nks+1
    assert L_MR%128==0
    P.I(f"""v_lshrrev_b32 v2, 4, v{L}
v_bfe_u32 v3, v{L}, 2, 2
v_lshl_add_u32 v4, v2, 3, v3
v_bfe_u32 v3, v{L}, 3, 1
v_lshl_add_u32 v4, v4, 1, v3
v_and_b32 v3, 1, v2
v_lshl_add_u32 v4, v4, 1, v3
v_and_b32 v3, 3, v{L}
v_lshl_add_u32 v4, v4, 2, v3
v_lshlrev_b32 v4, 3, v4
v_add_u32 v8, {L_RR+w*8192}, v4
v_xor_b32 v9, 32, v8
v_xor_b32 v10, 64, v8
v_xor_b32 v11, 96, v8
v_bfe_u32 v4, v{L}, 1, 2
v_lshl_add_u32 v4, v4, 2, v2
v_and_b32 v3, 1, v{L}
v_lshl_add_u32 v4, v4, 1, v3
v_lshlrev_b32 v{A0+5}, 4, v4
s_mov_b32 s{sT0}, {L_SC+(w-2)*128}
v_lshl_add_u32 v6, v{L}, 1, s{sT0}
v_and_b32 v7, 48, v{L}
v_add_u32 v7, s{sT0}, v7
s_lshl_b32 s{sT0}, s{sP}, 9
s_add_u32 s99, s{sT0}, {WS_MG+(w-2)*0x20000}
s_mov_b32 s{sT0}, 0xaaaaaaaa
s_mov_b32 s{sT1}, 0xaaaaaaaa
s_mov_b32 s{sT2}, 0xcccccccc
s_mov_b32 s{sT3}, 0xcccccccc
s_mov_b32 s{sT4}, 0xf0f0f0f0
s_mov_b32 s{sT5}, 0xf0f0f0f0""")
    if nks==1: P.I(f"s_waitcnt vmcnt({12 if JW else 6})")
    P.I(f"""v_mul_f32 v4, 0xbfb8aa3b, v{R}
v_exp_f32 v4, v4
v_add_f32 v4, 1.0, v4
v_rcp_f32 v4, v4
v_mul_f32 v2, v{R}, v4
v_cvt_pk_bf16_f32 v2, v2, v2
ds_write_b16 v6, v2""")
    for ks in range(nks): P.I(f"ds_read_b128 {vr(R+4*ks,4)}, v7 offset:{ks*64}")
    P.I(f"s_waitcnt vmcnt({JW})" if nks==1 else "@wait rr"); stamp(P,2,diag)
    A=R+16; ACC=R+16+32
    seq=[(ks,ct) for ks in range(nks) for ct in range(4)]
    for n,(ks,ct) in enumerate(seq):
        for hf in range(2): P.I(f"ds_read_b64_tr_b16 {vr(A+4*n+2*hf,2)}, v{8+ct} offset:{ks*4096+hf*512}")
    for n,(ks,ct) in enumerate(seq):
        P.I(f"v_mfma_f32_16x16x32_bf16 {vr(ACC+4*ct,4)}, {vr(A+4*n,4)}, {vr(R+4*ks,4)}, {vr(ACC+4*ct,4) if ks else 0}")
    P.I(f"v_mov_b32 v{R+3}, s{sTAG}")
    for ct in range(4):
        for e in range(2): P.I(f"v_cndmask_b32 v{A+2*ct+e}, v{ACC+4*ct+e}, v{ACC+4*ct+2+e}, {sp(sT0)}")
    for c2 in range(2):
        for e in range(2): P.I(f"v_cndmask_b32 v{A+8+2*c2+e}, v{A+4*c2+e}, v{A+4*c2+2+e}, {sp(sT2)}")
    for e in range(2): P.I(f"v_cndmask_b32 v{R+e}, v{A+8+e}, v{A+10+e}, {sp(sT4)}")
    P.I(f"""s_mov_b32 exec_lo, 0x00ff00ff
s_mov_b32 exec_hi, 0x00ff00ff
buffer_store_dwordx4 {vr(R,4)}, v{A0+5}, {sp(rWS,4)}, s99 offen {PUB}
s_mov_b64 exec, -1""")
def raw_wd_loads(P, NT):
    P.I(f"s_lshl_b32 s{sT0}, s{sW}, 11\ns_lshl_b32 s{sT1}, s{sW}, 7\ns_add_u32 m0, s{sT0}, {L_DR}\ns_add_u32 s{sT1}, s{sT1}, s91")
    P.I(f"buffer_load_dwordx4 v{vRA+4}, {sp(rWD,4)}, s{sT1} offen {NT} lds", tag='dr')
    P.I(f"s_add_u32 m0, s{sT0}, {L_DR+1024-64}\nv_add_u32 v245, s{sT0}, v{vRA}")
    P.I(f"buffer_load_dwordx4 v{vRA+4}, {sp(rWD,4)}, s{sT1} offen offset:64 {NT} lds", tag='dr')
def wd_job(P, ST):
    A=vHF+8
    P.I("@wait dr")
    for f in range(2):
        for hf in range(2): P.I(f"ds_read_b64_tr_b16 {vr(A+4*f+2*hf,2)}, v245 offset:{f*1024+hf*256}")
    P.I(f"""s_and_b32 s{sT0}, s{sFS}, 1
s_lshl2_add_u32 s{sT0}, s{sT0}, s{sW}
s_mul_i32 s{sT0}, s{sT0}, {2*112}
s_lshr_b32 s{sT1}, s{sFS}, 1
s_add_u32 s{sT0}, s{sT0}, s{sT1}
s_lshl_b32 s{sT0}, s{sT0}, 10
s_add_u32 s{sT0}, s{sT0}, {WS_WDF}
s_add_u32 s{sT1}, s{sT0}, {112*1024}""")
    for f in range(2):
        P.I(f"buffer_store_dwordx4 {vr(A+4*f,4)}, v{vL16}, {sp(rWJ,4)}, s{sT0+f} offen {ST}", tag='wdst')
def raw_w_loads(P, NT):
    P.I(f"s_mul_i32 s95, s{sW}, {16*3584}\ns_add_u32 s95, s95, s90\ns_lshl_b32 s96, s{sW}, 12")
    for q in range(2):
        for mat,r in ((0,rWG),(1,rWU)):
            P.I(f"s_add_u32 m0, s96, {L_WR+mat*2048+q*1024}")
            P.I(f"s_add_u32 s95, s95, {8*3584}" if (q and not mat) else "s_nop 0")
            P.I(f"buffer_load_dwordx4 v{vRA+2+mat}, {sp(r,4)}, s95 offen {NT} lds", tag='wr')

def cmul(o,a,b,t):
    return [f"v_pk_mul_f32 {vr(t,2)}, {vr(a,2)}, {vr(b,2)} op_sel_hi:[0,1]",
            f"v_pk_fma_f32 {vr(o,2)}, {vr(a,2)}, {vr(b,2)}, {vr(t,2)} op_sel:[1,1,0] op_sel_hi:[1,0,1] neg_lo:[1,0,0]"]
def factor_gen(P, lo=0, hi=99):
    B=vFG; are,aim,bre,bim,cre,cim=[vPAR+i for i in range(6)]
    R1,R8,R128,LOc,TMP,PK = B,B+2,B+4,B+6,B+8,B+12
    Pc=[B+16+2*c for c in range(8)]
    zr,zi,dt=B+32,B+33,B+34; M=[2,4,6]; PH=[8,9,10]
    P.I(f"s_lshr_b32 s{sT0}, s{sW}, 1\ns_mul_i32 s{sT1}, s{sT0}, {64*FP-512}\ns_lshl_b32 s{sT2}, s{sW}, 8\ns_add_u32 m0, s{sT1}, s{sT2}")
    P0=P
    if lo: P=Prog()
    P.I(f"""s_lshl_b32 s{sT0}, s{sT0}, 4
s_lshr_b32 s{sT1}, s{sLD}, s{sT0}
s_lshl_b32 s{sT1}, s{sT1}, 16
v_mov_b32 v{dt}, {hex(LOG2E)}
v_mul_f32 v{dt}, s{sT1}, v{dt}
v_exp_f32 v{dt}, v{dt}""")
    P.extend(cmul(Pc[0],cre,bre,TMP))
    P.I(f"""v_cvt_pk_bf16_f32 v{dt}, v{dt}, v{dt}
v_and_b32 v{dt}, 0xffff0000, v{dt}
v_mul_f32 v{zr}, v{dt}, v{are}
v_mul_f32 v{zi}, v{dt}, v{aim}
v_mul_f32 v{zr}, {hex(LOG2E)}, v{zr}
v_mul_f32 v{zi}, 0.15915494, v{zi}
v_pk_mul_f32 {vr(Pc[0],2)}, {vr(Pc[0],2)}, {vr(dt,2)} op_sel_hi:[1,0] neg_hi:[1,0]""")
    cx=((R1,1,True),(R8,8,False),(R128,128,True))
    for (o,sc,cj),m,ph in zip(cx,M,PH):
        if sc==1: P.I(f"v_exp_f32 v{m}, v{zr}\nv_fract_f32 v{ph}, v{zi}")
        else: P.I(f"v_mul_f32 v{m}, {hex(f32(sc))}, v{zr}\nv_mul_f32 v{ph}, {hex(f32(sc))}, v{zi}\nv_exp_f32 v{m}, v{m}\nv_fract_f32 v{ph}, v{ph}")
        P.I(f"v_cos_f32 v{o}, v{ph}\nv_sin_f32 v{o+1}, v{ph}")
    for (o,sc,cj),m,ph in zip(cx,M,PH):
        P.I(f"v_pk_mul_f32 {vr(o,2)}, {vr(o,2)}, {vr(m,2)} op_sel_hi:[1,0]" + (" neg_hi:[1,0]" if cj else ""))
    P=P0
    steps_lo=[('one',48),('put',49,R8)]+[('mul',48+b,LOc,(R8 if b==2 else LOc),R8) for b in range(2,16)]
    steps_hi=[('put',0,Pc[0])]+[('mul',c,Pc[c],Pc[c-1],R1) for c in range(1,8)]
    row=8
    for e in range(1,17):
        cs = range(8) if e<2 else range(0,8,2) if e<4 else (0,4) if e<8 else (0,)
        for c in cs:
            assert HI[row]==128*e+c
            steps_hi.append(('mul',row,Pc[c],Pc[c],R128)); row+=1
    for k,s in enumerate(steps_lo+steps_hi):
        if not lo<=k<hi: continue
        kk=PK+(k&3)
        if s[0]=='one': P.I(f"v_mov_b32 v{kk}, 0x3f80")
        else:
            if s[0]=='mul': P.extend(cmul(s[2],s[3],s[4],TMP+2*(k&1)))
            P.I(f"v_cvt_pk_bf16_f32 v{kk}, v{s[2]}, v{s[2]+1}")
        P.I(f"ds_write_addtid_b32 v{kk} offset:{L_F+s[1]*FP}")

vKH=156
def kgen_init(P):
    ACC=vHF
    P.I(f"""s_lshl_b32 s{sT0}, s{sDS}, 16
s_and_b32 s{sT1}, s{sDS}, 0xffff0000
v_cmp_eq_u32 vcc, 0, v0
v_mov_b32 v2, s{sT0}
v_mov_b32 v3, s{sT1}
s_mul_i32 s{sT2}, s{sW}, {16*FP}
v_cndmask_b32 v{ACC}, 0, v2, vcc
v_cndmask_b32 v{ACC+4}, 0, v3, vcc
v_add_u32 v{vKH}, s{sT2}, v{vKF}""")
    for r in (1,2,3,5,6,7): P.I(f"v_mov_b32 v{ACC+r}, 0")
def kgen(P, diag, mid=[], skip=0, order=0):
    A=vROLE; ACC=vHF
    Q=Prog(); table_unpack(Q); tu=[x.text for x in Q.ins]
    P.I(f"s_cmp_eq_u32 s{sW}, 3\ns_cbranch_scc1 L_wdjob\ns_waitcnt lgkmcnt(0)\ns_barrier")
    def rd(n):
        ks,ch=n>>1,n&1; b=A+8*(n%9)
        return [f"ds_read_b128 {vr(b,4)}, v{vKF} offset:{ch*64*FP+48*FP+ks*64}", f"ds_read_b128 {vr(b+4,4)}, v{vKH} offset:{ch*64*FP+ks*64}"]
    for n in range(7): P.extend(rd(n))
    P.extend(tu[:5])
    m2=[[Ins(x.text,x.tag) for x in g] for g in mid]; mid=list(mid)
    for n in range(16):
        if mid and n>=skip: P.extend(mid.pop(0))
        b=A+8*(n%9); a=vr(ACC+4*(n&1),4)
        P.I(f"v_mfma_f32_16x16x32_bf16 {a}, {vr(b,4)}, {vr(b+4,4)}, {a}")
        if n+7<16: P.extend(rd(n+7))
    P.extend(tu[5:])
    for r in range(4): P.I(f"v_cvt_pk_bf16_f32 v{8+r}, v{ACC+r}, v{ACC+4+r}")
    P.I(f"ds_write_b128 v{vKC}, v[8:11]\ns_branch L_kgen_end\nL_wdjob:")
    P.I("s_waitcnt lgkmcnt(0)\ns_barrier")
    P.extend(tu)
    if order==0:
        for g in m2: P.extend(g)
    mod_job(P,'sc1',diag,2)
    if order==1:
        for g in m2: P.extend(g)
    P.I(f"ds_write_b128 v{vRA+1}, {vr(ACC,4)}")
    P.I("L_kgen_end:")

def poll_groups(extra=None, XL='sc1', xfirst=0):
    Q=Prog(); poll_loads(Q,XL,xfirst); G=[[]]
    if extra: extra(Q)
    for x in Q.ins:
        G[-1].append(x)
        if x.kind=='vmem': G.append([])
    return G[:-1]
def poll_loads(P, XL='sc1', xfirst=0):
    LD='sc1'
    P.I(f"s_mul_i32 s94, s{sP}, 12288\ns_add_u32 s94, s94, {WS_XG}")
    X=[(f"s_add_u32 s94, s94, 4096\n" if g else "")+f"buffer_load_dwordx4 {vr(vPOLL+4*g,4)}, v{vT16}, {sp(rWS,4)}, s94 offen {XL}" for g in range(3)]
    S=[f"s_mov_b32 s79, {WS_SG+g*4096}\nbuffer_load_dwordx4 {vr(vPOLL+12+4*g,4)}, v{vT16}, {sp(rWS,4)}, s79 offen {LD}" for g in range(3)]
    M=[f"s_lshl4_add_u32 s3, s{sP}, {WS_MG}\nbuffer_load_dwordx4 {vr(vPOLL+24,4)}, v{vMC}, {sp(rWS,4)}, s3 offen {LD}"]
    for t in (X+S+M if xfirst==1 else S+M+X if xfirst==2 else M+S+X if xfirst==3 else [y for p in zip(X,S) for y in p]+M): P.I(t, tag='pollx' if t in X else 'poll')
vQ=144
def poll2_loads(P):
    P.I(f"""s_lshl4_add_u32 s3, s{sP}, {WS_MG+0x20000}
buffer_load_dwordx4 {vr(vQ,4)}, v{vSEL1}, {sp(rWS,4)}, s3 offen sc1
s_lshl2_add_u32 s3, s{sKE}, s{sW}
s_lshl_b32 s3, s3, 7
s_add_u32 s3, s3, {WS_MG+0x20000+8*4096}
buffer_load_dwordx4 {vr(vQ+4,4)}, v{vMW}, {sp(rWS,4)}, s3 offen sc1
s_add_u32 s3, s3, {4*4096}""")
    P.I(f"buffer_load_dwordx4 {vr(vQ+8,4)}, v{vMW}, {sp(rWS,4)}, s3 offen sc1", tag='poll2')
def poll2_work(ST):
    mc,mw=vQ,vQ+4; dpp=" row_mask:0xf bank_mask:0xf"
    L=[["L_p2_chk:","@wait poll2",f"v_min3_u32 v2, v{vQ+3}, v{vQ+7}, v{vQ+11}",f"v_max3_u32 v3, v{vQ+3}, v{vQ+7}, v{vQ+11}",f"v_min_u32 v2, s{sTAG}, v2",f"v_max_u32 v3, s{sTAG}, v3",
        "v_cmp_ne_u32 vcc, v2, v3","s_cbranch_vccnz L_q_retry","L_q_ok:"]]
    L[0][0]="L_q_chk:"
    X=[f"v_add_f32 v{mw}, v{mw}, v{vQ+8}",f"v_add_f32 v{mw+1}, v{mw+1}, v{vQ+9}"]
    for m in ("quad_perm:[1,0,3,2]","quad_perm:[2,3,0,1]"):
        X+=[f"v_add_f32_dpp v{r}, v{r}, v{r} {m}{dpp}" for r in (mc,mc+1,mw,mw+1)]
    X+=[f"v_add_f32_dpp v{r}, v{r}, v{r} row_half_mirror{dpp}" for r in (mc,mc+1)]
    X+=[f"v_cvt_pk_bf16_f32 v{mw+1}, v{mw}, v{mw+1}", f"v_cvt_pk_bf16_f32 v{mc+1}, v{mc}, v{mc+1}",
        f"v_lshlrev_b32 v{mw}, 16, v{mw+1}", f"v_and_b32 v{mw+1}, 0xffff0000, v{mw+1}", f"v_lshlrev_b32 v{mc}, 16, v{mc+1}", f"v_and_b32 v{mc+1}, 0xffff0000, v{mc+1}",
        f"v_add_f32 v{mw}, v{mw}, v{vSEL2}", f"v_add_f32 v{mw+1}, v{mw+1}, v{vSEL2}", f"v_cvt_pk_bf16_f32 v{mw+1}, v{mw}, v{mw+1}",
        f"v_lshlrev_b32 v{mw}, 16, v{mw+1}", f"v_and_b32 v{mw+1}, 0xffff0000, v{mw+1}", f"ds_write_b64 v{vGW}, {vr(mw,2)}"]
    late=[f"v_mov_b32_dpp v{vMOD+4+2*k+e}, v{mc+e} row_newbcast:{8*k}{dpp}" for k in range(2) for e in range(2)]
    return L[0],X,late
def writeback(cnt, lbl, on):
    return [f"s_and_b32 s4, s{cnt}, 3","s_cmp_lg_u32 s4, 0",f"s_cbranch_scc1 {lbl}","buffer_wbl2 sc1","s_waitcnt vmcnt(0)",f"{lbl}:"] if on else []
def retry2_block(P, loc=0):
    P.I(f"L_q_retry:\ns_add_u32 s{sCNT}, s{sCNT}, 1\ns_cmp_gt_u32 s{sCNT}, 20000\ns_waitcnt vmcnt(0) lgkmcnt(0)\ns_cbranch_scc1 L_q_ok")
    P.extend(writeback(sCNT,'L_q_nowb',loc))
    poll2_loads(P)
    P.I("s_waitcnt vmcnt(0)\ns_branch L_q_chk")

vGA=140
def table_unpack(P):
    P.I(f"v_mov_b32 v{vUA}, v{vTAB+7}\nv_mov_b32 v{vKA}, v{vTAB+6}")
    for j in range(11):
        P.I(f"v_lshrrev_b32 v{vGA+j}, 16, v{vTAB+j//2}" if j&1 else f"v_and_b32 v{vGA+j}, 0xffff, v{vTAB+j//2}")
def k_image(P, G, npre, skip):
    E=vROLE+40; O=vROLE; GA=vGA
    for _ in range(npre): P.extend(G.pop(0))
    P.I(f"""s_mov_b32 s{sT4}, 0x05040100
s_mov_b32 s{sT5}, 0x07060302
v_add_u32 v2, {L_KI}, v{vT16}
s_waitcnt lgkmcnt(0)
s_barrier""")
    for j in range(11): P.I(f"ds_read_b32 v{E+j}, v{GA+j}")
    k=0
    for c in (3,2,1,0):
        for ch in range(2):
            o=O+4*k; k+=1
            for i in range(4):
                j=3-c+2*i
                P.I(f"v_perm_b32 v{o+i}, v{E+j+1}, v{E+j}, s{sT4+ch}")
            P.I(f"ds_write_b128 v2, {vr(o,4)} offset:{(ch*4+c)*KIP}")
            if G and k>skip: P.extend(G.pop(0))
    for g in G: P.extend(g)

def retry_block(P, loc=0):
    P.I(f"L_ka_retry:\ns_add_u32 s{sCNT}, s{sCNT}, 1\ns_cmp_gt_u32 s{sCNT}, 20000\ns_waitcnt vmcnt(0) lgkmcnt(0)\ns_cbranch_scc1 L_ka_ok")
    P.extend(writeback(sCNT,'L_ka_nowb',loc))
    poll_loads(P)
    P.I("s_waitcnt vmcnt(0)\ns_branch L_ka_chk")

def make_h(P, diag, q2=False):
    Q=vPOLL; mc=Q+24; Mm=vROLE; Mr=vROLE+8; O=vROLE+16; A=vROLE+24; B=vROLE+40
    dpp=" row_mask:0xf bank_mask:0xf"
    P.I(f"s_mov_b32 s{sCNT}, 0\nv_add_u32 v4, {L_H+480}, v{vT16}\nL_ka_chk:\n@wait poll")
    chain=[]
    for m in ("quad_perm:[1,0,3,2]","quad_perm:[2,3,0,1]","row_half_mirror","row_mirror"):
        chain.append([f"v_add_f32_dpp v{r}, v{r}, v{r} {m}{dpp}" for r in (mc,mc+1)])
    chain+=[[f"v_cvt_pk_bf16_f32 v{mc}, v{mc}, v{mc+1}", f"v_mov_b32 v{mc+1}, v{mc}"],
            [f"v_permlane16_swap_b32 v{mc}, v{mc+1}", f"v_lshlrev_b32 v{vMOD}, 16, v{mc}", f"v_and_b32 v{vMOD+1}, 0xffff0000, v{mc}", f"v_lshlrev_b32 v{mc}, 16, v{mc+1}", f"v_and_b32 v{mc+1}, 0xffff0000, v{mc+1}"],
            [f"v_add_f32 v{mc}, 1.0, v{mc}", f"v_add_f32 v{mc+1}, 1.0, v{mc+1}", f"v_cvt_pk_bf16_f32 v{mc}, v{mc}, v{mc+1}"],
            [f"v_lshlrev_b32 v{vMOD+2}, 16, v{mc}", f"v_and_b32 v{vMOD+3}, 0xffff0000, v{mc}"]]
    for r in range(8):
        st=Q+12+4*(r//3)+r%3
        P.extend(chain[r])
        P.I(f"v_and_b32 v{Mr+r}, 0xffff0000, v{st}\nv_lshlrev_b32 v{Mm+r}, 16, v{st}\nv_rcp_f32 v{Mr+r}, v{Mr+r}")
    P.I(f"""v_min3_u32 v2, s{sTAG}, v{Q+27}, v{Q+15}
v_max3_u32 v3, s{sTAG}, v{Q+27}, v{Q+15}
v_min3_u32 v2, v2, v{Q+19}, v{Q+23}
v_max3_u32 v3, v3, v{Q+19}, v{Q+23}""")
    for ch in range(2):
        for r in range(0,8,2): P.I(f"v_pk_mul_f32 {vr(A+8*ch+r,2)}, {vr(Mr+r,2)}, {vr(vMOD+2,2)} op_sel:[0,{ch}] op_sel_hi:[1,{ch}]")
    for ch in range(2):
        for r in range(0,8,2): P.I(f"v_pk_fma_f32 {vr(B+8*ch+r,2)}, {vr(Mm+r,2)}, {vr(A+8*ch+r,2)}, {vr(vMOD,2)} op_sel:[0,0,{ch}] op_sel_hi:[1,1,{ch}] neg_lo:[1,0,0] neg_hi:[1,0,0]")
    P.I(f"""@wait pollx
v_min3_u32 v2, v2, v{Q+3}, v{Q+7}
v_max3_u32 v3, v3, v{Q+3}, v{Q+7}
v_min_u32 v2, v2, v{Q+11}
v_max_u32 v3, v3, v{Q+11}
v_cmp_ne_u32 vcc, v2, v3""")
    xr=lambda r: Q+4*(r//3)+r%3
    P.I(f"v_lshlrev_b32 v{vXF}, 16, v{xr(0)}\ns_cbranch_vccnz L_ka_retry\nL_ka_ok:")
    if diag: P.I(f"s_add_u32 s{sCNT}, s{sCNT}, 1\nv_writelane_b32 v255, s{sCNT}, 31")
    stamp(P,11,diag)
    if q2: poll2_loads(P)
    for ch in range(2):
        for r in range(8):
            if ch or r: P.I(f"v_and_b32 v{vXF+8+r}, 0xffff0000, v{xr(r)}" if ch else f"v_lshlrev_b32 v{vXF+r}, 16, v{xr(r)}")
        for r in range(0,8,2): P.I(f"v_pk_fma_f32 {vr(A+8*ch+r,2)}, {vr(vXF+8*ch+r,2)}, {vr(A+8*ch+r,2)}, {vr(B+8*ch+r,2)}")
        for r in range(0,8,2): P.I(f"v_cvt_pk_bf16_f32 v{O+4*ch+r//2}, v{A+8*ch+r}, v{A+8*ch+r+1}")
        P.I(f"ds_write_b128 v4, {vr(O+4*ch,4)} offset:{ch*HP}")

def gb_store(P, ST):
    P.I(f"""s_cmp_lg_u32 s{sW}, 2
s_cbranch_scc1 L_nogb
s_lshl3_add_u32 s{sT2}, s{sP}, {WS_GBF}
s_mov_b64 exec, 1
buffer_store_dwordx2 {vr(vMOD+6,2)}, v{vL16}, {sp(rWS,4)}, s{sT2} offen {ST}
s_mov_b64 exec, -1
L_nogb:""")
def w_side(ST):
    RAW=vPOLL; WP=vPOLL+16; GB=[48,64,80,96]; U=112; S1,S2=vHF,vHF+2
    rd=[]; main=[]; sums=[]
    for k in range(4):
        g=GB[k]
        rd.append([f"ds_read_b64_tr_b16 {vr(RAW+4*k+2*hf,2)}, v{vWRA} offset:{k*4096+hf*512}" for hf in range(2)]
                 +[f"ds_read_b128 {vr(g+4*q,4)}, v{vGR} offset:{k*64+q*16}" for q in range(2)])
        L=[]
        for d in range(4):
            u=U+8*k+2*d
            L+=[f"v_lshlrev_b32 v{u}, 16, v{RAW+4*k+d}", f"v_and_b32 v{u+1}, 0xffff0000, v{RAW+4*k+d}",
                f"v_mul_f32 v{g+2*d}, v{u}, v{g+2*d}", f"v_mul_f32 v{g+2*d+1}, v{u+1}, v{g+2*d+1}", f"v_cvt_pk_bf16_f32 v{WP+4*k+d}, v{g+2*d}, v{g+2*d+1}"]
        L.append((f"buffer_store_dwordx4 {vr(WP+4*k,4)}, v{vL16}, {sp(rWJ,4)}, s{sWO} offen {ST}",'wpst'))
        if k<3: L.append(f"s_add_u32 s{sWO}, s{sWO}, s{sWST}")
        main.append(L)
        for i in range(8):
            e=i&1; first=(k==0 and i<2)
            sums.append(f"v_mul_f32 v{S2+e}, v{U+8*k+i}, v{g+8+i}" if first else f"v_fmac_f32 v{S2+e}, v{U+8*k+i}, v{g+8+i}")
            if k==0 and i<2: continue
            sums.append(f"v_add_f32 v{S1+e}, v{g+e}, v{g+i}" if (k==0 and i<4) else f"v_add_f32 v{S1+e}, v{S1+e}, v{g+i}")
    rdsb=[f"ds_read_b128 {vr(GB[k]+8+4*q,4)}, v{vGR} offset:{256+k*64+q*16}" for k in range(4) for q in range(2)]
    tail=[f"v_add_f32 v{S1}, v{S1}, v{S1+1}", f"v_add_f32 v{S2}, v{S2}, v{S2+1}", f"v_mov_b32 v{S1+1}, v{S1}", f"v_mov_b32 v{S2+1}, v{S2}",
          f"v_lshlrev_b32 v2, 2, v{vLANE}", "s_nop 0",
          f"v_permlane32_swap_b32 v{S1}, v{S1+1}", f"v_permlane32_swap_b32 v{S2}, v{S2+1}",
          f"v_add_f32 v{S1}, v{S1}, v{S1+1}", f"v_add_f32 v{S2}, v{S2}, v{S2+1}", f"v_cvt_pk_bf16_f32 v{S1}, v{S1}, v{S2}",
          "s_mov_b32 exec_hi, 0", (f"buffer_store_dword v{S1}, v2, {sp(rWJ,4)}, s{sWA} offen {ST}",'auxst'), "s_mov_b64 exec, -1"]
    return rd,main,rdsb,sums,tail

def conv_reads(vi):
    b=vi&1; o=192-64*vi
    U=[(f"ds_read_b128 {ar(64+32*b+4*k,4)}, v{vUA} offset:{512*k+o}",f"c{vi}_{k}") for k in range(8)]
    K=[[(f"ds_read_b64 {ar(32*b+4*k+2*hf,2)}, v{vKA} offset:{512*(7-k)+o+8*hf}",f"c{vi}_{k}") for hf in range(2)] for k in range(8)]
    return U,K
def conv(P, ST, cfg, midbar, wdj, wd0, H={}):
    ACC=16
    order=sorted([(u,s) for u in range(8) for s in range(8) if u+s<8], key=lambda t:(t[1],t[0]))
    rd,main,rdsb,sums,tail=w_side(ST)
    chk,work,bc=poll2_work(ST)
    Q=Prog(); gb_store(Q,ST); gbs=[[x.text for x in Q.ins]]
    P.extend(conv_reads(0)[0])
    v2s=list(H.get('v2side',[])); v3m=list(H.get('v3mem',[])); go=False
    first=set(); side=[]; QAT=cfg.get('QAT',20); LV=cfg.get('LV',1); FV=cfg.get('FV',LV); SL=cfg.get('SUMLATE',0)
    for vi in range(4):
        b=vi&1; nxt=[]
        if vi==LV: nxt+=[(x,'wtr') for r in rd[:2] for x in r]+wdj[:4]
        if vi<3:
            U,K=conv_reads(vi+1); nxt+=[y for k in range(8) for y in [U[k]]+K[k]]
        if vi==0 and LV: side+=work
        if vi==1 and LV>1: side+=bc+gbs
        if vi==LV: side+=['@wait wtr']+rd[2]+rd[3]+main[0]+wdj[4:]+main[1]+([] if SL else rdsb)+main[2]+main[3]+(bc+gbs if LV<=1 else [])+([] if SL else sums)
        waits = {0:0,8:1,15:7} if vi==0 else {0:7}
        start = 8 if vi==LV else QAT+1 if vi==0 else 0
        for n,(u,s) in enumerate(order if (vi==0 or not cfg.get('ORD',1)) else sorted(order,key=lambda t:(t[0]+t[1],t[0]))):
            t=u+s; a=vr(ACC+4*t,4)
            if n in waits: P.I(f"@wait c{vi}_{waits[n]}")
            P.I(f"v_mfma_f32_16x16x32_bf16 {a}, {ar(32*b+4*u,4)}, {ar(64+32*b+4*s,4)}, {a if t in first else 0}"); first.add(t)
            slots=2-((n+1) in waits or n==35)
            if vi==0 and FV==0 and n==0: P.extend(midbar); continue
            if vi in (LV,FV) and n==0 and vi:
                P.I("@wait"+(" wr dr" if vi==LV else "")+(" wdst" if vi==FV else "")+"\ns_waitcnt lgkmcnt(0)\ns_barrier")
                if vi==FV: P.extend(midbar)
                continue
            if vi==0 and n==QAT and LV: P.extend(chk); continue
            if (vi,n) in H.get('hook',{}):
                if vi==3: assert not v2s; go=True
                P.extend(H['hook'][(vi,n)]); slots-=len(H['hook'][(vi,n)])
            elif go and v3m and n%cfg.get('WDVS',2)==0:
                x=v3m.pop(0); P.extend(x); slots-=len(x)
            if nxt:
                P.extend([nxt.pop(0)]); slots-=1
                if n<start and slots and nxt: P.extend([nxt.pop(0)]); slots-=1
            while slots>0 and wd0 and vi==0 and not nxt and n<QAT: P.extend([wd0.pop(0)]); slots-=1
            while slots>0 and v2s and vi==0 and not nxt and (n<QAT and len(v2s)>2 or n>QAT and not side): P.extend([v2s.pop(0)]); slots-=1
            while slots>0 and side and n>=start:
                x=side.pop(0)
                if isinstance(x,list): P.extend(x); slots=0
                else: P.extend([x]); slots-=1
        assert not nxt, len(nxt)
        if vi==0 and LV: P.extend(side+wd0+v2s); print('  conv step 0 spill',len(side),len(wd0),len(v2s)); side=[]; wd0=[]; v2s=[]
        print('  conv step',vi,'side backlog',len(side))
    for x in v3m: side+=x
    assert not any(isinstance(x,list) for x in side)
    if SL: return ACC,side,rdsb+sums+tail
    return ACC,side+tail,[]

def conv_epilogue(P, ACC, tail, XST, pre=[], prebar=[], postbar=[], tmax=99, after=[]):
    tail=list(tail); P.extend(pre)
    for t in range(8):
        P.I(f"ds_write_b128 v{vYW}, {vr(ACC+4*t,4)} offset:{1280*t}")
        k=min(max(5,-(-len(tail)//(8-t))),len(tail),tmax)
        if len(tail)-k<4: k=len(tail)
        P.extend(tail[:k]); tail=tail[k:]
    P.extend(prebar)
    P.I(f"s_mul_i32 s{sT0}, s{sP}, {12288 if XIN else 128}\ns_add_u32 s{sT0}, s{sT0}, {WS_XG if XIN else WS_X1B}\ns_waitcnt lgkmcnt(0)\ns_barrier")
    Y=16
    for ch in range(2):
        for g in range(2):
            for vh in range(2):
                P.I(f"ds_read_b128 {vr(Y+16*ch+8*vh+4*g,4)}, v{vYR} offset:{L_Y+(2*ch+vh)*10240+320*g}")
    P.extend(postbar)
    for ch in range(2):
        y=Y+16*ch
        for r in range(0,8,2): P.I(f"v_pk_add_f32 {vr(y+r,2)}, {vr(y+r,2)}, {vr(y+8+r,2)}")
        for r in range(0,8,2): P.I(f"v_pk_fma_f32 {vr(y+r,2)}, {vr(y+r,2)}, {vr(vMOD+4,2)}, {vr(vXF+8*ch+r,2)} op_sel:[0,{ch},0] op_sel_hi:[1,{ch},1]")
        for r in range(0,8,2): P.I(f"v_cvt_pk_bf16_f32 v{4+4*ch+r//2}, v{y+r}, v{y+r+1}")
        P.I(f"buffer_store_dwordx4 {vr(4+4*ch,4)}, v{vXO}, {sp(rWS,4)}, s{sT0} offen offset:{64*ch} {XST}", tag='x1st')
    print('  after the x1 stores:', len(tail), '+', len(after))
    P.extend(tail); P.extend(after)

def body(P, n, diag, cfg, H):
    NT=cfg.get('NT','nt'); ST='sc1'
    entry(P,n,diag,256,cfg.get('PERM',[2,3,0,5,1,7,4,6] if cfg.get('QSYNC',0) else None)); role_addr(P,cfg.get('LOC',0))
    P.I("s_waitcnt lgkmcnt(0)"); stamp0_commit(P,diag)
    if cfg.get('WSB',0): P.I(f"s_add_u32 s{sWS}, s{sWS}, {cfg['WSB']<<20}\ns_addc_u32 s{sWS+1}, s{sWS+1}, 0")
    po=cfg.get('PORD',0); m2=cfg.get('M2AT',0); global JW
    assert not (po and cfg.get('CUT',0)) and not (m2 and cfg.get('CUT',0))
    JW=(8 if po else 0)
    early_loads(P,NT,not po)
    role_loads(P,cfg.get('XNT',NT),0)
    if po: param_loads(P,NT)
    table_loads(P); setup(P,False,cfg.get('X',''),cfg.get('WMAP',0) or cfg.get('QSYNC',0)); P.extend(H['setup'])
    if m2==0: role_loads(P,NT,1)
    P.I(f"s_waitcnt lgkmcnt(0)\ns_or_b32 s{sTAG}, s{sTAG}, 0x7f800000\ns_add_u32 s{sTAG}, s{sTAG}, 1\ns_or_b32 s{sTAG}, s{sTAG}, 0x7f800000\ns_barrier")
    stamp(P,1,diag)
    kgen_init(P)
    H['idle'](P)
    P.I("@forget "+" ".join(str(r) for r in list(range(vPAR,vPAR+6))+[vROLE]+list(range(vTAB,vTAB+8))))
    cut=cfg.get('CUT',0)
    if cut:
        P.I(f"s_waitcnt vmcnt(10)\ns_cmp_lg_u32 s{sW}, 2\ns_cbranch_scc1 L_f1\ns_waitcnt vmcnt(6)\nL_f1:")
        P.I("@forget "+" ".join(str(r) for r in list(range(vPAR,vPAR+6))+[vROLE]+list(range(vTAB,vTAB+8))))
        factor_gen(P,0,cut)
        stamp(P,10,diag)
        P.I(f"s_cmp_eq_u32 s{sW}, 3\ns_cbranch_scc1 L_xje")
    x_jobs(P,'sc1',diag,cfg.get('LOC',0))
    P.I("@forget "+" ".join(str(r) for r in list(range(vPAR,vPAR+6))+[vROLE]+list(range(vTAB,vTAB+8))))
    stamp(P,3,diag)
    da,wa=cfg.get('DAT',0),cfg.get('WAT',1)
    def raws(k):
        if da==k: raw_wd_loads(P,cfg.get('DNT',NT))
        if wa==k: raw_w_loads(P,NT)
    if m2==1: role_loads(P,NT,1)
    raws(0)
    factor_gen(P,cut)
    stamp(P,4,diag)
    if m2==2: role_loads(P,NT,1)
    raws(1)
    G=poll_groups((lambda Q: raw_w_loads(Q,NT)) if wa==3 else None, cfg.get('XLP','') if cfg.get('LOC',0)==1 else 'sc1', cfg.get('XFIRST',0))
    for _ in range(cfg.get('PEARLY',0)): P.extend(G.pop(0))
    npm=cfg.get('PMID',0); mid=G[:npm]; G=G[npm:]
    if wa==5:
        Q=Prog(); raw_w_loads(Q,NT); W4=[[]]
        for x in Q.ins:
            W4[-1].append(x)
            if x.kind=='vmem': W4.append([])
        mid=W4[:-1]+mid
    kgen(P,diag,mid,cfg.get('PMSKIP',0),cfg.get('PMORD',0)); stamp(P,5,diag)
    k_image(P,G,min(len(G),cfg.get('PPRE',5)),cfg.get('PSKIP',0))
    raws(2)
    wdj=[]
    wj=cfg.get('WJAT',0); wd0=[]
    if cfg.get('Q2AT',1)==2: poll2_loads(P)
    if da<2 and wj:
        Q=Prog(); wd_job(Q,ST); wd0=[(x.text,x.tag) for x in Q.ins]
    elif da<2: wd_job(P,ST)
    else:
        Q=Prog(); wd_job(Q,ST); wdj=[(x.text,x.tag) for x in Q.ins[1:]]
    stamp(P,6,diag)
    P.I("s_waitcnt lgkmcnt(0)\ns_barrier")
    for k in conv_reads(0)[1]: P.extend(k)
    q2=cfg.get('Q2AT',1)
    if q2==0: poll2_loads(P)
    make_h(P,diag,q2==3)
    if q2==1: poll2_loads(P)
    raws(4)
    if cfg.get('LV',1)==0:
        chk,work,_=poll2_work(ST); P.extend(chk+work+["@wait wr"])
    if cfg.get('FV',1)==0: P.I("@wait wdst")
    P.I("s_waitcnt lgkmcnt(0)\ns_barrier")
    stamp(P,7,diag)
    acc,tail,after=conv(P,ST,cfg,H['midbar'] if da<2 else [],wdj,wd0,H); stamp(P,8,diag)
    conv_epilogue(P,acc,tail,ST,H.get('pre',[]),H.get('prebar',[]),H.get('postbar',[]),cfg.get('TMAX',99),after)
```

```python
from prog import *
from layout import *
from ka import sp, vr, ar, mksrd, f32, stamp, stamp_out, rWS, rOUT, sXCD, sIDX, sW
import ka, re
sXB,sWB,sAB,sXM,sFL,sPL,sA0,sA1,sD0,sD1,sNT,sMT,sFB,sCNT = range(8,22)
sQ=22
sT0,sT1,sT2,sT3,sT4 = 80,81,82,83,84
vLANE,vL16,vWL = 1,2,14
NS=16; L_XS=0; L_RING=4*NS*1024; RING=96
LDS_C=L_RING+RING*1024
def entry(P,name,diag):
    P.I(f".globl {name}\n.p2align 8\n.type {name},@function\n{name}:\n@reset")
    P.I(f"""s_cmp_ge_u32 s2, 256
s_cbranch_scc1 L_{name}_exit
s_load_dwordx2 s[42:43], s[0:1], 136
s_load_dwordx2 s[38:39], s[0:1], 120
s_and_b32 s{sXCD}, s2, 7
s_lshr_b32 s{sIDX}, s2, 3
v_lshrrev_b32 v3, 6, v0
v_and_b32 v{vLANE}, 63, v0
v_readfirstlane_b32 s{sW}, v3""")
    ka.stamp0_issue(P,diag)
def srds(P,diag):
    P.I("s_waitcnt lgkmcnt(0)"); ka.stamp0_commit(P,diag)
    P.extend(mksrd(rWS,42,WS_USED)); P.extend(mksrd(rOUT,38,2097152))

def xsrc(v, snt):
    return [f"v_lshrrev_b32 v12, 3, v{vLANE}", f"v_xor_b32 v{v}, s{snt}, v12", f"v_mul_u32_u24 v12, 96, v12", f"v_add_u32 v12, v12, v{v}",
            f"v_and_b32 v{v}, 7, v{vLANE}", f"v_lshl_add_u32 v{v}, v12, 3, v{v}", f"v_lshlrev_b32 v{v}, 4, v{v}"]
def c_maps():
    xb=f"s_lshl_b32 s{sXB}, s{sT0}, 15\ns_add_u32 s{sXB}, s{sXB}, {WS_X1B}"
    if ka.XIN: xb="\n".join(xsrc(13,sT0))
    return f"""s_lshr_b32 s{sT0}, s{sXCD}, 2
s_lshl_b32 s{sT0}, s{sT0}, 5
s_and_b32 s{sT1}, s{sIDX}, 28
s_add_u32 s{sT0}, s{sT0}, s{sT1}
s_add_u32 s{sT0}, s{sT0}, s{sW}
s_and_b32 s{sT1}, s{sXCD}, 3
s_and_b32 s{sT3}, s{sIDX}, 3
s_lshl2_add_u32 s{sT2}, s{sT1}, s{sT3}
{xb}
s_mul_i32 s{sWB}, s{sT2}, {231*1024}
s_add_u32 s{sWB}, s{sWB}, {WS_WPF}
s_mul_i32 s{sXM}, s{sW}, {NS*1024}
s_mul_i32 s{sAB}, s{sT0}, 112
s_mul_i32 s{sT2}, s{sT2}, 7
s_add_u32 s{sAB}, s{sAB}, s{sT2}
s_lshl_b32 s{sAB}, s{sAB}, 10
s_add_u32 s{sAB}, s{sAB}, {WS_ACT}
s_lshr_b32 s{sFL}, s{sT0}, 1
s_lshl2_add_u32 s{sFL}, s{sFL}, s{sT1}
s_lshl_b32 s{sFL}, s{sFL}, 10
s_and_b32 s{sT0}, s{sT0}, 1
s_lshl2_add_u32 s{sT0}, s{sT0}, s{sT3}
s_lshl2_add_u32 s{sFL}, s{sT0}, s{sFL}
s_add_u32 s{sFL}, s{sFL}, {WS_FLAG}""".split('\n')
def d_maps(DM=0, M16=0, ROWO=0):
    head=f"""s_lshr_b32 s{sT1}, s{sIDX}, 3
s_lshl2_add_u32 s{sT2}, s{sXCD}, s{sT1}
s_and_b32 s{sT1}, s{sIDX}, 7""" if not DM else f"""s_lshr_b32 s{sT1}, s{sIDX}, 2
s_lshr_b32 s{sT2}, s{sXCD}, 1
s_lshl3_add_u32 s{sT2}, s{sT2}, s{sT1}
s_and_b32 s{sT1}, s{sIDX}, 3
s_and_b32 s{sT3}, s{sXCD}, 1
s_lshl2_add_u32 s{sT1}, s{sT3}, s{sT1}"""
    return f"""{head}
s_mul_i32 s{sT3}, s{sW}, {28*1024}
s_mul_i32 s{sA0}, s{sT2}, {224*1024}
s_add_u32 s{sA0}, s{sA0}, s{sT3}
s_add_u32 s{sA0}, s{sA0}, {WS_ACT}
s_mul_i32 s{sD0}, s{sT1}, {224*1024}
s_add_u32 s{sD0}, s{sD0}, s{sT3}
s_add_u32 s{sD0}, s{sD0}, {WS_WDF}
s_add_u32 s{sD1}, s{sD0}, {112*1024}
s_bitcmp1_b32 s{sW}, 0
s_cselect_b32 s{sPL}, {0 if ROWO else 112*1024}, 0
s_add_u32 s{sD0}, s{sD0}, s{sPL}
s_sub_u32 s{sD1}, s{sD1}, s{sPL}
s_lshl2_add_u32 s{sPL}, s{sT2}, s{sW}
s_lshl_b32 s{sPL}, s{sPL}, 10
s_add_u32 s{sPL}, s{sPL}, {WS_FLAG}
s_mov_b32 s52, s{ka.sTAG}
s_mov_b32 s53, s{ka.sTAG}
s_lshl_b32 s{sNT}, s{sT2}, 1
s_and_b32 s{sT3}, s{sW}, 1
s_lshl_b32 s{sT3}, s{sT3}, 1
s_lshl2_add_u32 s{sMT}, s{sT1}, s{sT3}
s_lshr_b32 s{sT3}, s{sW}, 1
s_add_u32 s{sMT}, s{sMT}, s{sT3}
{f"s_mov_b32 s{sT3}, 0" if ROWO else f"s_lshl_b32 s{sT3}, s{sT3}, 8"}
v_lshlrev_b32 v{vL16}, 4, v{vLANE}
v_xor_b32 v{vWL}, s{sT3}, v{vL16}""".split('\n')[:-1 if M16 else None]+(f"""v_lshrrev_b32 v{vWL}, 5, v{vLANE}
v_mul_u32_u24 v{vWL}, 7168, v{vWL}
v_and_b32 v{vWL+1}, 16, v{vLANE}
v_lshl_add_u32 v{vWL}, v{vWL+1}, 5, v{vWL}
v_and_b32 v{vWL+1}, 15, v{vLANE}
v_lshl_add_u32 v{vWL}, v{vWL+1}, 4, v{vWL}
v_or_b32 v{vWL}, s{sT3}, v{vWL}
v_xor_b32 v{vWL+1}, 0x100, v{vWL}""".split('\n') if M16 else [])

class Stream:
    def __init__(s, base, tmp): s.base=base; s.tmp=tmp; s.cur=None
    def at(s, off):
        L=[]
        if s.cur is None or not (0<=off-s.cur<4096):
            s.cur=off; L.append(f"s_add_u32 s{s.tmp}, s{s.base}, {off}")
        return L, f"s{s.tmp} offen offset:{off-s.cur}"
ASTG0=[3,5,7]
def d_parts(cfg):
    e=[0]+cfg.get('ASTG',ASTG0)
    return [[7*jj+mt for jj in ((0,2) if cfg.get('M16',0) else range(4)) for mt in range(a,b)] for a,b in zip(e,e[1:])]
def kap(f): return 16*(f if f<7 else f-7)
def wd_order(cfg):
    if cfg.get('WDLIN',0)==2: return list(range(16,28))+list(range(16))
    return sorted(sum(d_parts(cfg),[])) if cfg.get('WDLIN',0) else sum(d_parts(cfg),[])
def flag_store(s):
    return ["s_mov_b64 exec, 1",f"buffer_store_dword v{vONE1}, v{vL16}, {sp(rWS,4)}, s{sFL} offen offset:{128*s} sc1","s_mov_b64 exec, -1"]
def flag_poll(s): return f"buffer_load_dword v{vPV}, v{vPA}, {sp(rWS,4)}, s{sPL} offen offset:{128*s} sc1"
def sflag_poll(s): return f"s_buffer_load_dwordx8 s[44:51], {sp(rWS,4)}, s{sPL} offset:{128*s} glc"
def spoll_check(P, name):
    P.I(f"L_{name}_chk:\ns_waitcnt lgkmcnt(0)")
    for i in range(4): P.I(f"s_xor_b64 s[{44+2*i}:{45+2*i}], s[{44+2*i}:{45+2*i}], s[52:53]")
    P.I(f"s_or_b64 s[44:45], s[44:45], s[46:47]\ns_or_b64 s[48:49], s[48:49], s[50:51]\ns_or_b64 s[44:45], s[44:45], s[48:49]\ns_cbranch_scc1 L_{name}_retry\nL_{name}_ok:")
def spoll_retry(P, name, s):
    P.I(f"L_{name}_retry:\ns_add_u32 s{sCNT}, s{sCNT}, 1\ns_cmp_gt_u32 s{sCNT}, 40000\n@loopok\ns_cbranch_scc1 L_{name}_ok\n{sflag_poll(s)}\n@loopok\ns_branch L_{name}_chk")
def wd_load_list(cfg,LD=''):
    S=[Stream(sD0,34),Stream(sD1,35)]; L=[]
    if cfg.get('M16',0):
        for f in wd_order(cfg):
            for j in range(4):
                pre,o=S[j&1].at(f*1024)
                L.append(pre+[f"buffer_load_dwordx4 {ar(kap(f)+4*j,4)}, v{vWL+(j>>1)}, {sp(rWS,4)}, {o} {LD}"])
        return L
    for f in wd_order(cfg):
        for m in range(2):
            pre,o=S[m].at(f*1024)
            L.append(pre+[f"buffer_load_dwordx4 {ar(8*f+4*m,4)}, v{vWL}, {sp(rWS,4)}, {o} {LD}"])
    return L
AX,AG=240,224
vXA,vPA,vPV,vONE1=253,254,252,251
vQV,vQA,sQP=15,248,99
def qpoll(q): return [f"s_mov_b32 s{sQP}, {WS_FX+(q<<(6+FS))}", f"buffer_load_dword v{vQV}, v{vQA}, {sp(rWS,4)}, s{sQP} offen sc1"]
def cost(x):
    s=x[0] if isinstance(x,tuple) else x
    o=s.split()[0]
    return 2 if (o in TRANS or o=='s_barrier') else 1

class RawWd:
    def __init__(s, order, srd, vsrc, sbase, stmp, pol=''):
        s.todo=list(order); s.flying=[]; s.done=set(); s.srd=srd; s.vsrc=vsrc; s.sbase=sbase; s.stmp=stmp; s.half=0; s.chalf=0; s.pol=pol; s.n=0
    def area(s, slots):
        assert not s.half
        s.slots=list(slots); s.n=0
    def issue_half(s, now):
        f=s.todo[0]; sl=s.slots[s.n%len(s.slots)]; u=s.half
        assert all(x[1]!=sl for x in s.flying)
        L=[f"s_add_u32 m0, s{sl[0]}, {sl[1]+u*1024}", f"s_add_u32 s{s.stmp}, s{s.sbase}, {f*16384+u*8192}",
           (f"buffer_load_dwordx4 v{s.vsrc}, {sp(s.srd,4)}, s{s.stmp} offen {s.pol} lds", f"rw{f}")]
        s.half^=1
        if not s.half: s.todo.pop(0); s.flying.append((f,sl,now)); s.n+=1
        return L
    def convert_half(s):
        f,sl,_=s.flying[0]; m=s.chalf
        L=([f"@wait rw{f}"] if m==0 else [])+[f"ds_read_b64_tr_b16 {ar(8*f+4*m+2*hf,2)}, v{sl[2][m]} offset:{sl[3]+hf*512}" for hf in range(2)]
        s.chalf^=1
        if not s.chalf: s.flying.pop(0); s.done.add(f)
        return L

class PhaseC:
    def __init__(s, cfg):
        s.cfg=cfg
        seq=[(t,ks) for ks in range(32) for t in range(G1)]
        AUXAT=cfg.get('AUXAT',16-G1)
        t3=[(G1,ks) for ks in range(33)]
        seq+= t3[:AUXAT]+[(t,32) for t in range(G1)]+t3[AUXAT:]
        for t in range(G1+1,7): seq+=[(t,ks) for ks in range(33)]
        s.seq=seq; s.N=N=len(seq); assert N==231
        s.P1=32*G1
        b=cfg.get('STG') or ([0,8,16]+list(range(32,232,16))+[232])
        s.bounds=b; s.nst=len(b)-1
        for q in range(s.nst):
            assert sorted(s.gpos(*x) for x in seq[b[q]:b[q+1]])==list(range(b[q],min(b[q+1],N))), q
            assert s.lpos(b[q+1]-1)-s.lpos(b[q])==(b[q+1]-1-b[q])*1024
        s.QR={c:sQ+2*i for i,c in enumerate(sorted({(b[q+1]-b[q])//4 for q in range(s.nst)}))}
        s.LOOK=cfg.get('LOOK',6); s.XL=cfg.get('XL',6)
        s.mem=[]; s.m0=None; s.now=-1
        QG=s.QG=cfg.get('QG',[-1,0,2,3])
        for q in range(s.nst):
            gate=-1
            if cfg.get('BIG',0):
                if b[q]>=224: gate=max(z for z in range(s.nst) if b[z]<b[q+1]-160)+2
                elif 96<=b[q]<160: gate=max(z for z in range(s.nst) if b[z]<b[q+1]-96)+2
                elif b[q]>=160: gate=min(z for z in range(s.nst) if b[z]-s.LOOK>=s.P1)
            elif b[q+1]>RING: gate=max(z for z in range(s.nst) if b[z]<b[q+1]-RING)+2
            if cfg.get('QSYNC',0): gate=max(gate,QG[min(3,(b[q+1]-1)//(8*G1))])
            for u in range((b[q+1]-b[q])//4): s.mem.append((max(b[q]-s.LOOK,0),gate,('w',q,u)))
        XG=cfg.get('XGRP',2)
        for ks in range(32): s.mem.append((max(G1*(ks-ks%XG)-s.XL,0),QG[ks>>3] if cfg.get('QSYNC',0) else -1,('x',ks)))
        s.mem.sort(key=lambda e:e[0])
    def lpos(s,g):
        if s.cfg.get('BIG',0): return L_RING+(g%96)*1024 if g<160 else (g-160)*1024 if g<224 else L_RING+(g-160)*1024
        return L_RING+(g%RING)*1024
    def gpos(s,t,ks): return (G1*ks+t) if t<G1 else 33*t+ks
    def setup(s):
        L=[]
        for c,r in s.QR.items(): L+=[f"s_mul_i32 s{r}, s{sW}, {c*1024}", f"s_add_u32 s{r+1}, s{r}, s{sWB}"]
        L+=f"""v_lshlrev_b32 v{vL16}, 4, v{vLANE}
v_lshrrev_b32 v8, 5, v{vLANE}
v_bfe_u32 v9, v{vLANE}, 2, 2
v_lshl_add_u32 v8, v8, 3, v9
v_bfe_u32 v9, v{vLANE}, 4, 1
v_lshl_add_u32 v8, v8, 1, v9
v_and_b32 v10, 3, v{vLANE}
v_lshl_add_u32 v8, v8, 2, v10
v_lshl_add_u32 v{vXA}, v8, 3, s{sXM}
v_add_u32 v3, {L_RING}, v{vL16}
v_add_u32 v7, {L_RING+0x10000}, v{vL16}
v_and_b32 v8, 31, v{vLANE}
v_and_b32 v10, 32, v{vLANE}
v_lshlrev_b32 v10, 4, v10
v_lshl_add_u32 v8, v8, 2, v10
v_add_u32 v249, {L_RING}, v8
v_add_u32 v250, {L_RING+0x10000}, v8
v_and_b32 v8, 15, v{vLANE}
v_cmp_eq_u32 vcc, v8, v9
v_mov_b32 v10, 0x3f803f80
v_and_b32 v{vPA}, 7, v{vLANE}
v_lshlrev_b32 v{vPA}, 2, v{vPA}
v_cndmask_b32 v56, 0, v10, vcc
v_cndmask_b32 v57, 0, v10, vcc
v_cndmask_b32 v58, 0, v10, vcc
v_cndmask_b32 v59, 0, v10, vcc""".split('\n')
        if s.cfg.get('BIG',0):
            assert not s.cfg.get('M16',0) and s.cfg.get('RXD',0)
            L.append(f"v_add_u32 v248, {-L_RING}, v249")
        if s.cfg.get('M16',0): L.append(f"v_and_b32 v248, v{vWL}, v{vWL+1}")
        return L
    def memop(s,e):
        if e[0]=='w':
            _,q,u=e; c=(s.bounds[q+1]-s.bounds[q])//4; key=('w',q,u//4); u0=u-u%4
            pre=[f"s_add_u32 m0, s{s.QR[c]}, {s.lpos(s.bounds[q])+u0*1024}", f"s_add_u32 s{sT0}, s{s.QR[c]+1}, {(s.bounds[q]+u0)*1024}"]
            tag=f"w{q}"; off=(u%4)*1024; ld=s.cfg.get('WLD','')
        else:
            ks=e[1]; key=('x',ks//4); k0=ks-ks%4
            assert ks<NS or s.now>=G1*(ks-NS), (ks,s.now)
            pre=[f"s_add_u32 m0, s{sXM}, {L_XS+(k0%NS)*1024}", f"s_add_u32 s{sT0}, s{sXB}, {k0*1024}"]
            tag=f"x{ks}"; off=(ks%4)*1024; ld=s.cfg.get('XLD','')
        L=[] if s.m0==key else pre
        s.m0=key
        if e[0]=='x' and ka.XIN:
            return L[:1]+[f"s_mov_b32 s{sXB}, {WS_XG+ks*98304-off}",(f"buffer_load_dwordx4 v13, {sp(rWS,4)}, s{sXB} offen offset:{off} {ld} lds",tag)]
        return L+[(f"buffer_load_dwordx4 v{vL16}, {sp(rWS,4)}, s{sT0} offen offset:{off} {ld} lds",tag)]
    def pre(s,P,n,kinds='wx'):
        k=0
        while n>0 and k<len(s.mem):
            if s.mem[k][2][0] in kinds and s.mem[k][1]<0: P.extend(s.memop(s.mem.pop(k)[2])); n-=1
            else: k+=1
    def run(s,P,diag,wd,extra_side,D,raw=None):
        cfg=s.cfg; seq=s.seq; N=s.N; bounds=s.bounds; mem=s.mem; LOOK=s.LOOK; XL=s.XL; P1=s.P1
        ST='sc1'; ends=cfg.get('ASTG',ASTG0)
        X0=120
        xr=lambda ks: vr(X0+4*ks,4) if ks<32 else vr(44,4)
        NACC=4; ACC=[72,88,104,56]
        WF=[20+4*i for i in range(6)]; NWF=6
        SQ,SM,ONE,SQ2=48,52,56,16
        C0,C1,IR2=4,5,6; TA=8
        RA=[vL16,3,7]; RA2=[248,249,250]
        def rd(n):
            pos=s.lpos(s.gpos(*seq[n]))
            if seq[n][1]==32:
                return [(f"ds_read_b32 v{WF[n%NWF]+q}, v{RA2[pos>>16]} offset:{(pos&0xffff)+128*q}", f"r{n}") for q in range(4)]
            return [(f"ds_read_b128 {vr(WF[n%NWF],4)}, v{RA[pos>>16]} offset:{pos&0xffff}", f"r{n}")]
        def xrd(ks): return [f"@wait x{ks}"]+[f"ds_read_b64_tr_b16 {vr(X0+4*ks+2*hf,2)}, v{vXA} offset:{L_XS+(ks%NS)*1024+hf*256}" for hf in range(2)]
        accof=lambda t: ACC[t%NACC]
        EW=cfg.get('EW',4)
        def epi(t):
            a=accof(t); L=[]
            for g in range(8//EW):
                ia=list(range(EW*g,EW*g+EW)); T=TA
                L+=[f"v_mul_f32 v{T+k}, v{a+i}, v{a+i}" for k,i in enumerate(ia)]
                L+=[f"v_fma_f32 v{T+k}, v{T+k}, v{C1}, v{C0}" for k,i in enumerate(ia)]
                L+=[f"v_mul_f32 v{T+k}, v{T+k}, v{a+i}" for k,i in enumerate(ia)]
                for k,i in enumerate(ia): L+=[f"v_exp_f32 v{T+k}, v{T+k}", f"v_mul_f32 v{a+8+i}, v{a+i}, v{a+8+i}"]
                for k,i in enumerate(ia):
                    L+=[f"v_fma_f32 v{a+i}, v{T+k}, v{IR2}, v{IR2}"]
                    if k: L+=[f"v_rcp_f32 v{a+i-1}, v{a+i-1}"]
                L+=[f"v_mul_f32 v{a+8+ia[0]}, v{a+8+ia[0]}, v{a+ia[0]}", f"v_rcp_f32 v{a+ia[-1]}, v{a+ia[-1]}"]
                L+=[f"v_mul_f32 v{a+8+i}, v{a+8+i}, v{a+i}" for i in ia[1:]]
                L+=[f"v_cvt_pk_bf16_f32 v{16+i//2}, v{a+8+i}, v{a+9+i}" for i in ia[::2]]
            L.append((f"buffer_store_dwordx4 v[16:19], v{vL16}, {sp(rWS,4)}, s{sAB} offen offset:{(t%4)*1024} {ST}",f'act{t}'))
            if t==3: L.append(f"s_add_u32 s{sAB}, s{sAB}, 4096")
            return L
        if cfg.get('NOTRANS'):
            e0=epi; epi=lambda t:[y for x in e0(t) for y in ([x.replace('v_exp_f32','v_mov_b32').replace('v_rcp_f32','v_mov_b32')]*2 if isinstance(x,str) and x.split()[0] in TRANS else [x])]
        if cfg.get('NOST'):
            e2=epi; epi=lambda t:[(('s_nop 0',x[1]) if isinstance(x,tuple) else x) for x in e2(t)]
        if cfg.get('NOEPI'):
            e1=epi; epi=lambda t:[x for x in e1(t) if not (isinstance(x,str) and x.startswith('v_'))]
        k0=-2*0.7978845608028654*1.4426950408889634; k1=k0*0.044715
        fin=f"""v_and_b32 v11, 15, v{vLANE}
v_lshlrev_b32 v11, 2, v11
v_and_b32 v8, 3, v{vLANE}
v_cmp_eq_u32 vcc, 1, v8
v_cmp_eq_u32 {sp(sT2)}, 2, v8
v_and_b32 v10, 16, v{vLANE}
ds_bpermute_b32 v12, v11, v{SM}
ds_bpermute_b32 v13, v11, v{SM+1}
v_add_f32 v{SQ}, v{SQ}, v{SQ2}
v_add_f32 v{SQ+1}, v{SQ+1}, v{SQ2+1}
v_add_f32 v{SQ+2}, v{SQ+2}, v{SQ2+2}
v_add_f32 v{SQ+3}, v{SQ+3}, v{SQ2+3}
v_cndmask_b32 v9, v{SQ}, v{SQ+1}, vcc
v_cmp_eq_u32 vcc, 3, v8
v_cndmask_b32 v9, v9, v{SQ+2}, {sp(sT2)}
v_cmp_eq_u32 {sp(sT2)}, 0, v10
v_cndmask_b32 v9, v9, v{SQ+3}, vcc
v_mov_b32 v8, v9
v_nop
v_nop
v_permlane32_swap_b32 v8, v9
v_add_f32 v9, v8, v9
v_mul_f32 v9, 0x3b000000, v9
v_cndmask_b32 v12, v13, v12, {sp(sT2)}
v_mul_f32 v12, 0x3b000000, v12
v_fma_f32 v9, -v12, v12, v9
v_max_f32 v9, 0, v9
v_cvt_pk_bf16_f32 v9, v9, v9
v_and_b32 v9, 0xffff0000, v9
v_add_f32 v9, 0x3727c5ac, v9
v_cvt_pk_bf16_f32 v9, v9, v9
v_and_b32 v9, 0xffff0000, v9
v_sqrt_f32 v9, v9
v_nop
v_cvt_pk_bf16_f32 v44, -v12, v9
v_and_b32 v9, 0xffff0000, v44
v_mov_b32 v45, v44
v_rcp_f32 v8, v9
v_mov_b32 v46, v44
v_mov_b32 v47, v44
v_mul_f32 v{IR2}, v9, v9
v_mul_f32 v{C0}, {hex(f32(k0))}, v8
v_mul_f32 v10, v8, v8
v_mul_f32 v{C1}, {hex(f32(k1))}, v8
v_mul_f32 v{C1}, v{C1}, v10""".split('\n')
        done_at={}
        for n,(t,ks) in enumerate(seq):
            if ks==32: done_at[t]=n
        side=[(0,x) for x in extra_side]+[(P1,x) for x in fin]
        for t in range(6): side+=[(done_at[t]+3,x) for x in epi(t)]
        RX=cfg.get('RXAT',P1+40)
        blocks={RX:[f"s_lshl_b32 s{sT1}, s{sNT}, 5",f"s_add_u32 s{sT1}, s{sT1}, s{sMT}",f"s_lshl_b32 s{sT1}, s{sT1}, 10",f"s_add_u32 s{sT1}, s{sT1}, {WS_X1B}"],
                RX+1:['@m0',f"s_add_u32 m0, s{sXM}, {L_XS}",f"s_add_u32 s{sT4}, s{sT1}, {32768-1024}",(f"buffer_load_dwordx4 v{vL16}, {sp(rWS,4)}, s{sT1} offen {cfg.get('XLD','')} lds",'rx'),
                      (f"buffer_load_dwordx4 v{vL16}, {sp(rWS,4)}, s{sT4} offen offset:1024 {cfg.get('XLD','')} lds",'rx')],
                RX+3:[f"s_lshl_b32 s{sT1}, s{sMT}, 6",f"s_add_u32 s{sT1}, s{sT1}, {WS_GBF}",f"v_and_b32 v{vPV}, 32, v{vLANE}"],
                RX+4:[f"buffer_load_dwordx4 {ar(AG+4*q,4)}, v{vPV}, {sp(rWS,4)}, s{sT1} offen offset:{16*q} {cfg.get('WLD','')}" for q in range(2)],
                RX+44:["@wait rx"]+[f"ds_read_b64_tr_b16 {ar(AX+2*q,2)}, v{vXA} offset:{L_XS+(q>>1)*1024+(q&1)*256}" for q in range(4)],
                cfg.get('P0AT',217):[flag_poll(0)]}
        if ka.XIN:
            xs=xsrc(13,sNT)
            blocks[RX-2]=xs[:4]; blocks[RX-1]=xs[4:]+["v_xor_b32 v12, 128, v13"]
            blocks[RX]=[f"s_mul_i32 s{sT1}, s{sMT}, 98304",f"s_add_u32 s{sT1}, s{sT1}, {WS_XG}"]
            blocks[RX+1]=['@m0',f"s_add_u32 m0, s{sXM}, {L_XS}",f"s_sub_u32 s{sT4}, s{sT1}, 1024",(f"buffer_load_dwordx4 v13, {sp(rWS,4)}, s{sT1} offen sc1 lds",'rx'),
                      (f"buffer_load_dwordx4 v12, {sp(rWS,4)}, s{sT4} offen offset:1024 sc1 lds",'rx')]
        if cfg.get('RXD',0):
            for z in (RX-2,RX-1,RX,RX+1,RX+3,RX+4,RX+44): blocks.pop(z,None)
        if cfg.get('QSYNC',0):
            for q,at in zip((2,3),cfg.get('QAT2',[1,14])): blocks[at]=qpoll(q)
        C0AT=cfg.get('C0AT',999)
        D.nflag=0; flag_at={}; log=[]
        opened=[-1]
        def emit(L):
            c=0
            for x in L:
                if x=='@m0': s.m0=None; continue
                P.extend([x]); c+=cost(x)
            return c
        def force(pred):
            c=0
            while any(pred(e[2]) for e in mem):
                assert mem[0][1]<=opened[0], mem[0]
                c+=emit(s.memop(mem.pop(0)[2]))
            return c
        def open_stage(q):
            c=force(lambda e: e[0]=='w' and e[1]==q)
            opened[0]=q
            if cfg.get('QSYNC',0) and q in s.QG: poll_check(P,f'fx{s.QG.index(q)}',vPV=vQV); c+=3; stamp(P,25+s.QG.index(q),diag)
            x_=cfg.get('XBAR',0) if bounds[q]>P1 else 0
            c+=emit([[f"@wait w{q}","s_barrier"],[f"@wait w{q}"],["s_barrier"],[]][x_])
            if cfg.get('QSYNC',0) and q in s.QG:
                for _ in range(cfg.get('QBURST',[5,3,2])[s.QG.index(q)-1]):
                    if mem[0][1]<=q and (mem[0][2][0]=='w' or s.now>=G1*(mem[0][2][1]-NS)): c+=emit(s.memop(mem.pop(0)[2]))
            if cfg.get('SSTAMP'): stamp(P,(2+q if q<10 else 9+q),diag)
            return c
        xnext=0
        open_stage(0)
        while G1*xnext<XL: force(lambda e: e==('x',xnext)); emit(xrd(xnext)); xnext+=1
        for n in range(LOOK): P.extend(rd(n))
        DIST=cfg.get('DIST',24); DIST2=cfg.get('DIST2',48); WB=cfg.get('WB',3)
        started=set(); mb=0.0; wdb=0.0; quiet=0
        P.I("@mark c1")
        for n,(t,ks) in enumerate(seq):
            a=accof(t)
            if n==P1: P.I("@mark c2")
            if t>=NACC and ks==0:
                while side and side[0][0]<=done_at[t-NACC]+3:
                    x=side.pop(0)[1]; emit([x])
                    if isinstance(x,tuple):
                        log.append((x[1],n))
                        if int(x[1][3:])+1 in ends: flag_at[ends.index(int(x[1][3:])+1)]=n+cfg.get('FLAGD',26)
            if ks==32 and t==0:
                while side and side[0][0]<=P1: emit([side.pop(0)[1]])
            if n%WB==0: P.I(f"@wait r{min(n+WB-1,N-1)}")
            P.I(f"v_mfma_f32_32x32x16_bf16 {vr(a,16)}, {vr(WF[n%NWF],4)}, {xr(ks)}, {vr(a,16) if t in started else 0}"); started.add(t)
            s.now=n
            free=cfg.get('CAP',6)-((n+1)%WB==0)
            if xnext<32 and G1*xnext-XL<=n:
                free-=force(lambda e: e==('x',xnext)); free-=emit(xrd(xnext)); xnext+=1
            m=n+LOOK
            if m<N:
                if m in bounds: free-=open_stage(bounds.index(m))
                free-=emit(rd(m))
            used=False
            if n in blocks: free-=emit(blocks.pop(n)); used=True
            elif n>=flag_at.get(D.nflag,999) and free>=4:
                free-=emit([f"@wait act{ends[D.nflag]-1}"]+flag_store(D.nflag)); D.nflag+=1; used=True; log.append(n)
            if n==C0AT: poll_check(P,'p0'); stamp(P,14,diag); free-=3; used=True
            rate = cfg.get('RATE1',0.9) if n<P1 else cfg.get('RATE2',0.5)
            mb=min(mb+rate,1.0+(rate if n<P1 else cfg.get('BURST2',rate)))
            if n<quiet: mb=min(mb,0.99)
            nxt_st=[i for i,(r_,x_) in enumerate(side[:cfg.get('PREQ',0)]) if isinstance(x_,tuple) and r_<=n]
            if nxt_st: mb=min(mb,0.99)
            if not used and mem and mb>=1 and mem[0][0]-(DIST if n<P1 else DIST2)<=n and mem[0][1]<=opened[0] and (free>=3 or n<P1) and (mem[0][2][0]=='w' or n>=G1*(mem[0][2][1]-NS)):
                free-=emit(s.memop(mem.pop(0)[2])); used=True; mb-=1
            if raw:
                if raw.flying and n>=raw.flying[0][2]+cfg.get('RAWD',40) and free>=3: free-=emit(raw.convert_half())
                if not used and raw.todo and len(raw.flying)<len(raw.slots) and cfg.get('WDFROM',P1+4)<=n<N-cfg.get('RAWD',40):
                    wdb=min(wdb+cfg.get('WDPER',0.2),2)
                    if wdb>=1 and mb>=1 and free>=3: free-=emit(['@m0']+raw.issue_half(n)); wdb-=1; mb-=1
            if not used and n>C0AT and mb>=1 and free>=2 and D.li<min(cfg.get('DAHEAD',14),n-197) and D.can_load():
                free-=emit(D.load()); mb-=1; used=True
            if not used and wd and cfg.get('WDFROM',P1+4)<=n<C0AT:
                wdb=min(wdb+(cfg.get('WDPER1',0.2) if n<P1 else cfg.get('WDPER',0.2)),2)
                if wdb>=1 and mb>=1 and free>=2: free-=emit(wd.pop(0)); wdb-=1; mb-=1
            while side and side[0][0]<=n and cost(side[0][1])<=free:
                x=side.pop(0)[1]; free-=emit([x])
                if isinstance(x,tuple) and x[1].startswith('act'):
                    log.append((x[1],n)); quiet=n+1+cfg.get('QUIET',0)
                    if cfg.get('STEND',0): free=0
                    if int(x[1][3:])+1 in ends: flag_at[ends.index(int(x[1][3:])+1)]=n+cfg.get('FLAGD',26)
            if n<P1 and t==G1-1:
                x=X0+4*ks
                P.I(f"v_mfma_f32_4x4x4_16b_bf16 {vr(SQ,4)}, {vr(x,2)}, {vr(x,2)}, {vr(SQ,4) if ks else 0}")
                P.I(f"v_mfma_f32_4x4x4_16b_bf16 {vr(SQ2,4)}, {vr(x+2,2)}, {vr(x+2,2)}, {vr(SQ2,4) if ks else 0}")
                P.I(f"v_mfma_f32_16x16x32_bf16 {vr(SM,4)}, {vr(ONE,4)}, {vr(x,4)}, {vr(SM,4) if ks else 0}")
            if n==P1-1: stamp(P,12,diag)
        P.I("@mark end")
        assert D.nflag and not blocks and not mem
        print('phase C: side left', len(side), 'stores/flags', log, 'Wd left', len(wd), 'raw todo/flying', (len(raw.todo),len(raw.flying),raw.half,raw.chalf) if raw else None)
        stamp(P,13,diag)
        return [x for _,x in side]+epi(6), {q:v-N for q,v in flag_at.items()}

def poll_check(P, name, need=None, diag=None, vPV=vPV):
    P.I(f"""L_{name}_chk:
v_cmp_ne_u32 vcc, v{vONE1}, v{vPV}
s_cbranch_vccnz L_{name}_retry
L_{name}_ok:""")
def poll_retry(P, name, off, vPV=vPV, vPA=vPA, sPL=sPL, loc=0):
    P.I(f"""L_{name}_retry:
s_add_u32 s{sCNT}, s{sCNT}, 1
s_cmp_gt_u32 s{sCNT}, 40000
s_waitcnt vmcnt(0) lgkmcnt(0)
s_cbranch_scc1 L_{name}_ok""")
    P.extend(ka.writeback(sCNT,f'L_{name}_nowb',loc))
    P.I(f"""buffer_load_dword v{vPV}, v{vPA}, {sp(rWS,4)}, s{sPL} offen offset:{off} sc1
s_waitcnt vmcnt(0)
s_branch L_{name}_chk""")

class PhaseD:
    def __init__(s, P, cfg, diag, wd):
        s.P=P; s.cfg=cfg; s.diag=diag; s.wd=wd
        s.parts=d_parts(cfg); s.ends=cfg.get('ASTG',ASTG0); s.order=sum(s.parts,[])
        s.ACC=[[184,200],[216,232]]; s.BUF=[120+4*i for i in range(16)]; s.NB=16
        SK=cfg.get('DSKEW',8)
        s.M16=cfg.get('M16',0)
        if s.M16:
            s.work=[(f,nb) for i,f in enumerate(s.order) for nb in range(4) if nb<2 or i<14-SK//2]+[(f,nb) for f in s.order[14-SK//2:] for nb in (2,3)]
        else: s.work=[(f,n) for i,f in enumerate(s.order) for n in range(2) if n==0 or i<28-SK]+[(f,1) for f in s.order[28-SK:]]
        s.first={q:min(k for k,(f,n) in enumerate(s.work) if f in s.parts[q]) for q in range(len(s.parts))}
        s.S=[Stream(sA0,36),Stream(sA0,37)]; s.li=0; s.nflag=0; s.polled=0; s.inD=False
    def can_load(s):
        for q,k0 in s.first.items():
            if q and s.li==k0 and s.nflag<(len(s.ends) if q>=s.cfg.get('CK',1) else q+1): return False
        return True
    def load(s):
        k=s.li; s.li+=1; f,n=s.work[k]; L=[]; PL=s.cfg.get('PL2',8)
        nxt=s.polled+1
        if nxt in s.first and k>=max(s.first[nxt]-PL,s.first[nxt-1]+1) and s.nflag>nxt and (s.inD or not s.cfg.get('SPOLL',0)): L.append((sflag_poll if s.cfg.get('SPOLL',0) else flag_poll)(nxt)); s.polled=nxt
        for q,k0 in s.first.items():
            if q and k==k0:
                assert s.polled>=q
                s.P.extend(L); L=[]; (spoll_check if s.cfg.get('SPOLL',0) else poll_check)(s.P,f'p{q}'); stamp(s.P,22+q,s.diag)
        while s.wd and 56-len(s.wd)<(4 if s.M16 else 2)*(wd_order(s.cfg).index(f)+1): L+=s.wd.pop(0)
        if s.M16:
            pre,o=s.S[n>>1].at((n>>1)*112*1024+f*1024+(n&1)*256)
            return L+pre+[f"buffer_load_dwordx4 {vr(s.BUF[k%s.NB],4)}, v248, {sp(rWS,4)}, {o} sc1"]
        pre,o=s.S[n].at(n*112*1024+f*1024)
        return L+pre+[f"buffer_load_dwordx4 {vr(s.BUF[k%s.NB],4)}, v{vL16}, {sp(rWS,4)}, {o} sc1"]
    def run(s, ctail, flag_due):
        P=s.P; cfg=s.cfg; diag=s.diag; work=s.work; ACC=s.ACC; ends=s.ends
        AH=cfg.get('DAHEAD',14); assert AH<=s.NB; s.inD=True
        M16=s.M16; NM=4 if M16 else 2
        nA=max(k for k,(f,n) in enumerate(work) if n<(2 if M16 else 1))
        GB=44; XF=56; R=[120,144]; RD=[72,73,74]; VO,VW=75,76
        fill=f"""v_add_u32 v{VW}, s{sXM}, v{vL16}
s_lshl_b32 s{sT2}, s{sNT}, 15
s_lshl_b32 s{sT1}, s{sMT}, 5
s_add_u32 s{sT2}, s{sT2}, s{sT1}
s_add_u32 s{sT3}, s{sT2}, 32768
v_and_b32 v{VO}, 31, v{vLANE}
v_lshrrev_b32 v77, 5, v{vLANE}
v_lshlrev_b32 v{VO}, 10, v{VO}
v_lshl_add_u32 v{VO}, v77, 4, v{VO}""".split('\n')
        XA=vXA
        if M16:
            assert cfg.get('RXD',0); XA=79
            fill=fill[:-4]+f"""v_lshrrev_b32 v77, 5, v{vLANE}
v_and_b32 v{VO}, 15, v{vLANE}
v_lshl_add_u32 v{VO}, v77, 4, v{VO}
v_and_b32 v78, 16, v{vLANE}
v_lshl_add_u32 v{VO}, v{VO}, 10, v78
v_bfe_u32 v79, v{vLANE}, 2, 2
v_lshlrev_b32 v79, 1, v79
v_add3_u32 v79, v79, v78, v77
v_and_b32 v77, 3, v{vLANE}
v_lshl_add_u32 v79, v79, 2, v77
v_lshl_add_u32 v79, v79, 3, s{sXM}""".split('\n')
        fill+=[f"v_xor_b32 v{RD[j-1]}, {j*NS*1024}, v{VW}" for j in (1,2,3)]
        late={}
        if cfg.get('RXD',0):
            assert ka.XIN
            fill+=xsrc(13,sNT)+["v_xor_b32 v12, 128, v13", f"s_mul_i32 s{sT1}, s{sMT}, 98304", f"s_add_u32 s{sT1}, s{sT1}, {WS_XG}", f"s_add_u32 m0, s{sXM}, {L_XS}", f"s_sub_u32 s{sT4}, s{sT1}, 1024",
                  f"s_lshl_b32 s{sT0}, s{sMT}, 6", f"s_add_u32 s{sT0}, s{sT0}, {WS_GBF}", (f"v_lshlrev_b32 v78, 1, v78" if M16 else f"v_and_b32 v78, 32, v{vLANE}")]
            r0=cfg.get('RXD')
            late[r0]=[(f"buffer_load_dwordx4 v13, {sp(rWS,4)}, s{sT1} offen sc1 lds",'rx')]
            late[r0+1]=[(f"buffer_load_dwordx4 v12, {sp(rWS,4)}, s{sT4} offen offset:1024 sc1 lds",'rx')]
            late[r0+2]=[f"buffer_load_dwordx4 {vr(GB+4*q,4)}, v78, {sp(rWS,4)}, s{sT0} offen offset:{16*q} sc1" for q in range(2)]
            late[r0+3+AH]=["@wait rx"]+[f"ds_read_b64_tr_b16 {vr(80+2*q,2)}, v{XA} offset:{L_XS+(q>>1)*1024+(q&1)*256}" for q in range(4)]
            for z in range(4): late[r0+6+AH+z]=[y for k in (2*z,2*z+1) for y in (f"v_lshlrev_b32 v{XF+2*k}, 16, v{80+k}", f"v_and_b32 v{XF+2*k+1}, 0xffff0000, v{80+k}")]
        else:
            fill+=[f"v_accvgpr_read_b32 v{GB+k}, a{AG+k}" for k in range(8)]
            fill+=[f"v_accvgpr_read_b32 v{XF+2*k+1}, a{AX+k}" for k in range(8)]
            for k in range(8): fill+=[f"v_lshlrev_b32 v{XF+2*k}, 16, v{XF+2*k+1}", f"v_and_b32 v{XF+2*k+1}, 0xffff0000, v{XF+2*k+1}"]
        ROWO=cfg.get('ROWO',0)
        if ROWO:
            assert cfg.get('RXD',0) and cfg.get('EARLY0',0) and not M16
            L_XE=L_RING+48*1024; VW1,RA_,RX_,XW=77,72,73,74
            fill=f"""v_lshrrev_b32 v79, 5, v{vLANE}
v_lshlrev_b32 v79, 6, v79
v_xor_b32 v79, v79, v{vL16}
v_add_u32 v{VW}, s{sXM}, v79
v_xor_b32 v{VW1}, 128, v{VW}
s_lshr_b32 s{sT1}, s{sW}, 1
s_lshl_b32 s{sT1}, s{sT1}, 7
v_xor_b32 v79, s{sT1}, v79
s_lshl_b32 s{sT1}, s{sW}, 11
s_add_u32 s{sT1}, s{sT1}, {L_XE}
v_add_u32 v{XW}, s{sT1}, v79
v_lshrrev_b32 v{VO}, 3, v{vLANE}
s_lshl_b32 s{sT1}, s{sW}, 3
v_add_u32 v{VO}, s{sT1}, v{VO}
v_and_b32 v78, 3, v{vLANE}
v_lshlrev_b32 v78, 2, v78
v_xor_b32 v{RA_}, v78, v{VO}
v_and_b32 v78, 1, v{vLANE}
v_lshl_add_u32 v{RA_}, v78, 5, v{RA_}
v_bfe_u32 v78, v{vLANE}, 2, 1
v_lshl_add_u32 v{RA_}, v78, 7, v{RA_}
v_and_b32 v78, 2, v{vLANE}
v_lshl_add_u32 v{RA_}, v78, 7, v{RA_}
v_lshlrev_b32 v{RA_}, 4, v{RA_}
v_add_u32 v{RX_}, {L_XE}, v{RA_}
v_and_b32 v78, 7, v{vLANE}
v_lshlrev_b32 v{VO}, 10, v{VO}
v_lshl_add_u32 v{VO}, v78, 4, v{VO}
v_lshlrev_b32 v78, 5, v78
s_lshr_b32 s{sT0}, s{sMT}, 2
s_lshl_b32 s{sT2}, s{sNT}, 8
s_add_u32 s{sT2}, s{sT2}, s{sT0}
s_lshl_b32 s{sT2}, s{sT2}, 7
s_add_u32 s{sT3}, s{sT2}, 32768
s_lshl_b32 s{sT0}, s{sT0}, 8
s_add_u32 s{sT0}, s{sT0}, {WS_GBF}""".split('\n')
            fill+=xsrc(13,sNT)+["v_xor_b32 v12, 128, v13", f"s_mul_i32 s{sT1}, s{sMT}, 98304", f"s_add_u32 s{sT1}, s{sT1}, {WS_XG}", f"s_add_u32 m0, s{sXM}, {L_XS}", f"s_sub_u32 s{sT4}, s{sT1}, 1024"]
            for z in range(4): late.pop(r0+6+AH+z)
            for n in range(2): late[r0+6+AH+n]=[f"ds_write_b128 v{XW}, {vr(80+4*n,4)} offset:{n*1024}"]
        side=list(ctail)+fill
        piece=(lambda n,j,q: 184+16*(2*n+q)+4*j) if M16 else (lambda n,j,q: ACC[n][j&1]+8*(j>>1)+4*q)
        wr=[[f"ds_write_b128 v{VW}, {vr(piece(n,j,q),4)} offset:{L_XS+n*8192+j*2048+q*1024}" for j,q in ([(j,q) for q in range(2) for j in (1,2,3)] if M16 else [(j,q) for j in (2,1,3) for q in range(2)])] for n in range(2)]
        def reads(n): return [f"ds_read_b128 {vr(R[n]+8*(j-1)+4*q,4)}, v{RD[j-1]} offset:{L_XS+n*8192+j*2048+q*1024}" for j in (1,2,3) for q in range(2)]
        if ROWO:
            R=[88,120]
            wr=[[f"ds_write_b128 v{VW1 if j>>1 else VW}, {vr(piece(n,j,q),4)} offset:{L_XS+n*8192+j*2048+q*1024}" for j in (0,2,1,3) for q in range(2)] for n in range(2)]
            def reads(n):
                L=[f"ds_read_b128 {vr(80+4*z,4)}, v{RX_} offset:{z*1024}" for z in range(2)] if n==0 else []
                return L+[f"ds_read_b128 {vr(R[n]+8*z+4*q,4)}, v{RA_} offset:{L_XS+z*NS*1024+n*8192+q*1024}" for z in range(4) for q in range(2)]
        def plain(L):
            o=[]
            for x in L:
                m=re.match(r"v_pk_(add|fma)_f32 (.*)",x)
                if not m: o.append(x); continue
                rs=[int(t) for t in re.findall(r"v\[(\d+):",x)]
                o+=[f"v_{m.group(1)}_f32 "+", ".join(f"v{r+e}" for r in rs) for e in range(2)]
            return o
        def final(n):
            r=R[n]; L=[]
            unp=lambda z:[y for k in range(4*z,4*z+4) for y in (f"v_lshlrev_b32 v{XF+2*k}, 16, v{80+k}", f"v_and_b32 v{XF+2*k+1}, 0xffff0000, v{80+k}")]
            if ROWO:
                L+=unp(n)
                for k in range(0,8,2): L+=[f"v_pk_add_f32 {vr(r+k,2)}, {vr(r+k,2)}, {vr(r+8+k,2)}"]
                for k in range(0,8,2): L+=[f"v_pk_add_f32 {vr(r+16+k,2)}, {vr(r+16+k,2)}, {vr(r+24+k,2)}"]
                for k in range(0,8,2): L+=[f"v_pk_add_f32 {vr(r+k,2)}, {vr(r+k,2)}, {vr(r+16+k,2)}"]
            else:
                for k in range(0,8,2): L+=[f"v_pk_add_f32 {vr(r+k,2)}, {vr(r+k,2)}, {vr(piece(n,0,k>>2)+(k&3),2)}"]
                for k in range(0,8,2): L+=[f"v_pk_add_f32 {vr(r+8+k,2)}, {vr(r+8+k,2)}, {vr(r+16+k,2)}"]
                for k in range(0,8,2): L+=[f"v_pk_add_f32 {vr(r+k,2)}, {vr(r+k,2)}, {vr(r+8+k,2)}"]
            if M16: L+=[f"v_permlane32_swap_b32 v{r+k}, v{r+4+k}" for k in range(4)]
            for k in range(0,8,2): L+=[f"v_pk_fma_f32 {vr(r+k,2)}, {vr(r+k,2)}, {vr(GB+k,2)}, {vr(XF+8*n+k,2)}"]
            for k in range(0,8,2): L+=[f"v_cvt_pk_bf16_f32 v{8+4*n+k//2}, v{r+k}, v{r+k+1}"]
            if not cfg.get('NOOUT'): L.append(f"buffer_store_dwordx4 {vr(8+4*n,4)}, v{VO}, {sp(rOUT,4)}, s{sT2+n} offen {cfg.get('OST','')}")
            return L
        E0=cfg.get('EARLY0',0); e0=None
        if E0: R[0]=88
        started=set(); g=0; FD=cfg.get('FLAGD2',26)
        if cfg.get('C0AT',999)>=231: poll_check(P,'p0'); stamp(P,14,diag)
        TL=cfg.get('TAILLD',6)
        if TL:
            nt=len(ctail); per=-(-nt//TL)
            while nt>0:
                if s.li<AH and s.can_load(): P.extend(s.load())
                c=min(per,nt); P.extend(side[:c]); side=side[c:]; nt-=c
            while s.nflag<len(ends)-1:
                P.I(f"@wait act{ends[s.nflag]-1}"); P.extend(flag_store(s.nflag)); s.nflag+=1
            while s.li<AH and s.can_load(): P.extend(s.load())
            flag_due[len(ends)-1]=cfg.get('FL2',10)
        stamp(P,15,diag)
        P.I("@mark d")
        for k,(f,n) in enumerate(work):
            while s.li<=k:
                if not s.can_load():
                    P.extend(side); side=[]
                    P.I(f"@wait act{ends[s.nflag]-1}"); P.extend(flag_store(s.nflag)); s.nflag+=1; print('  D: forced flag at',k)
                else: P.extend(s.load())
            for m4 in range(NM):
                if M16:
                    j=(1,2,3,0)[m4]; a=vr(184+16*n+4*j,4)
                    P.I(f"v_mfma_f32_16x16x32_bf16 {a}, {ar(kap(f)+4*j,4)}, {vr(s.BUF[k%s.NB],4)}, {a if (n,j) in started else 0}"); started.add((n,j))
                    free=2-(m4==3); m=m4>>1
                    if not m4&1:
                        if m4==0 and s.li<len(work) and s.li<=k+AH-1 and s.li-s.NB<k and s.can_load():
                            L=s.load(); P.extend(L); free-=len(L)
                        while side and g>=2 and cost(side[0])<=free and not isinstance(side[0],tuple):
                            x=side.pop(0); P.extend([x]); free-=cost(x)
                        continue
                    g+=1
                else:
                    m=m4; a=vr(ACC[n][m],16)
                    P.I(f"v_mfma_f32_32x32x16_bf16 {a}, {ar(8*f+4*m,4)}, {vr(s.BUF[k%s.NB],4)}, {a if (n,m) in started else 0}"); started.add((n,m))
                    g+=1; free=6-m
                if s.nflag<len(ends) and g>=flag_due.get(s.nflag,999):
                    P.I(f"@wait act{ends[s.nflag]-1}"); P.extend(flag_store(s.nflag)); print('  D: flag',s.nflag,'at item',k,'li',s.li); s.nflag+=1; free-=4
                if s.li<len(work) and s.li<=k+AH-(1-m)-(1 if M16 else 0) and s.li-s.NB<k+m and s.can_load():
                    L=s.load(); P.extend(L); free-=len(L)
                if m==0 and k in late:
                    assert not side
                    L=late.pop(k); P.extend(L); free-=len(L)
                if (m or E0==2) and k>nA+1 and wr[0]: P.I(wr[0].pop(0)); free=0
                elif E0 and not wr[0] and e0 is None and m:
                    assert not side and not late
                    P.I("s_waitcnt lgkmcnt(0)\ns_barrier"); e0=g; side=reads(0)+['s_waitcnt lgkmcnt(0)']+plain(final(0)); free-=3
                while side and g>=2 and cost(side[0])<=free and not (e0 is not None and g<e0+3+ROWO and not side[0].startswith('ds_')):
                    x=side.pop(0); P.extend([x]); free-=cost(x)
                    if isinstance(x,tuple) and int(x[1][3:])+1 in ends: flag_due[ends.index(int(x[1][3:])+1)]=g+FD
        P.I("@mark end")
        if E0: print('  D: early finish left',len(side),e0)
        rest0=side if E0 else []; side=[] if E0 else side
        assert not side and not late and s.nflag==len(ends) and (e0 is not None or not E0)
        P.extend(wr[0])
        stamp(P,17,diag)
        for i,x in enumerate(wr[1]):
            if i==0: P.extend(rest0[:8]); rest0=rest0[8:]
            P.I(x); P.extend(rest0[:3]); rest0=rest0[3:]
        P.I("s_waitcnt lgkmcnt(0)\ns_barrier")
        if E0: P.extend(reads(1)); P.extend(rest0); P.extend(final(1))
        else: P.extend(reads(0)); P.extend(reads(1)); P.extend(final(0)); P.extend(final(1))
```

```python
from prog import *
from layout import *
import ka, kc
from ka import sp, vr, mksrd, stamp, stamp_out, rWS, rWJ, rOUT, sW, sTAG, sP, sIDX, sXCD, sFS, sCG, sKE, sT0, sT1, sT2, sT3
NAME='adaLN_cond__ssm_conv_s4__geglu_ffn__prompt_kernel'
sFXo,sFDo,sFXi,sFDi,sFWo,sFWi = 40,41,99,93,89,92
vTG=251; vFV,vFA,vFB=247,246,252
T4=248
def build(P, diag, cfg):
    cfg=dict(cfg); cfg.update(XST='sc1',ST='sc1',WLD='sc1',XLD='sc1')
    kc.FS=cfg.get('FS',4); ka.XIN=cfg.get('XIN',0); ka.ONLY=cfg.get('ONLY')
    C=kc.PhaseC(cfg)
    L=ka.vLANE
    FS=cfg.get('FS',4)
    EX=hex((1<<(1<<(FS-4)))-1)
    def line(so, reg, r=rWS):
        return [f"s_mov_b64 exec, {EX}", f"buffer_store_dwordx4 {vr(reg,4)}, v{ka.vL16}, {sp(r,4)}, s{so} offen sc1", "s_mov_b64 exec, -1"]
    H={}
    H['setup']=mksrd(rOUT,ka.sOUT,2097152)+f"""s_lshl_b32 s{sFXo}, s{sP}, {FS}
s_add_u32 s{sFXo}, s{sFXo}, {WS_FX}
s_and_b32 s{sT0}, s{sFS}, 1
s_mul_i32 s{sT0}, s{sT0}, 112
s_lshr_b32 s{sFDo}, s{sFS}, 1
s_add_u32 s{sFDo}, s{sFDo}, s{sT0}
s_lshl_b32 s{sFDo}, s{sFDo}, {FS}
s_add_u32 s{sFDo}, s{sFDo}, {WS_FD}
s_lshl3_add_u32 s{sFWo}, s{sCG}, s{sKE}
s_lshl_b32 s{sFWo}, s{sFWo}, {FS}
s_add_u32 s{sFWo}, s{sFWo}, {WS_FW}
v_min_u32 v{vFA}, 27, v{L}
v_lshlrev_b32 v{vFA}, {FS}, v{vFA}""".split('\n')
    def idle(P):
        for i in range(4): P.I(f"v_mov_b32 v{T4+i}, s{sTAG}")
        P.I(f"""{f's_and_b32 s{sT0}, s{sXCD}, 1' if cfg.get('DM',0) else f's_bfe_u32 s{sT0}, s{sIDX}, 0x10002'}
s_lshl2_add_u32 s{sT0}, s{sT0}, s{sW}
s_mul_i32 s{sT0}, s{sT0}, {28<<FS}
s_add_u32 s{sFDi}, s{sT0}, {WS_FD}
s_cmp_lg_u32 s{sW}, 3
s_cbranch_scc1 L_main""")
        if cfg.get('TOUCH',1): P.I("s_mov_b64 exec, 0\ns_branch L_touch0\nL_touched:\ns_mov_b64 exec, -1")
        P.I(f"s_lshl_b32 s{sT0}, s{sP}, 9\ns_add_u32 s{sT0}, s{sT0}, {WS_FLAG}")
        for i in range(4): P.I(f"v_add_u32 v{4+i}, -1, v{T4}")
        P.I(f"s_waitcnt vmcnt({0 if cfg.get('M2AT',0) else 8})\ns_mov_b32 exec_hi, 0")
        P.I(line(sT0,4)[1]); P.I(f"s_mov_b64 exec, {EX}")
        P.I(line(sFXo,4)[1]); P.I(line(sFDo,4,rWJ)[1])
        if cfg.get('FW',0): P.I(line(sFWo,4,rWJ)[1])
        P.I(f"s_mov_b64 exec, -1\ns_branch {'L_f1' if cfg.get('CUT',0) else 'L_xje'}\n.p2align 12\nL_main:")
    H['idle']=idle; H['own_param_wait']=True
    H['midbar']=[f"s_cmp_lg_u32 s{sW}, 3","s_cbranch_scc1 L_nofd"]+line(sFDo,T4,rWJ)+["L_nofd:"]
    H['postbar' if cfg.get('FDP',0) else 'pre']=[f"buffer_load_dword v{vFV}, v{vFA}, {sp(rWS,4)}, s{sFDi} offen sc1"]
    wd=kc.wd_load_list(cfg,'sc1'); dm=kc.d_maps(cfg.get('DM',0),cfg.get('M16',0))
    WV=cfg.get('WDV',0)
    if WV:
        assert cfg.get('WDLIN')==2 and WV<=24 and not cfg.get('M16',0)
        Q=Prog(); kc.poll_check(Q,'fd',vPV=vFV)
        H['setup']+=[x for x in dm if x.startswith('s_') and 's52' not in x and 's53' not in x]+[f"s_mov_b32 s{kc.sFB}, s{kc.sT3}", f"s_mov_b32 s{kc.sCNT}, 1"]
        H['v2side']=[x for x in dm if 's52' in x or 's53' in x]+["s_nop 0", f"v_xor_b32 v{kc.vWL}, s{kc.sFB}, v{ka.vL16}"]
        H['hook']={tuple(cfg.get('WDVP',[2,14])):H.pop('pre'), tuple(cfg.get('WDVC',[3,2])):[x.text for x in Q.ins]}
        H['v3mem']=[wd.pop(0) for _ in range(WV)]
    FW=cfg.get('FW',0)
    if FW:
        H['prebar']=["@wait wpst"]
        H['postbar']=[f"s_cmp_lg_u32 s{sW}, 3","s_cbranch_scc1 L_nofw"]+line(sFWo,T4,rWJ)+["L_nofw:"]
    ka.body(P,NAME,diag,cfg,H)
    stamp(P,9,diag)
    if WV: P.I(f"v_mov_b32 v{kc.vL16}, v{ka.vL16}")
    else:
        P.extend(dm); P.I(f"s_mov_b32 s{kc.sCNT}, 1")
        kc.poll_check(P,'fd',vPV=vFV)
    if diag: P.I(f"v_writelane_b32 v255, s{kc.sCNT}, 62\nv_writelane_b32 v255, s{ka.sCNT}, 61")
    for i in range(cfg.get('WDA',8)): P.extend(wd.pop(0))
    P.I(f"s_cmp_lg_u32 s{sW}, 3\n@wait x1st auxst wpst\ns_barrier\ns_cbranch_scc1 L_nofx")
    P.extend(line(sFXo,T4))
    P.I(f"""s_cmp_lg_u32 s2, 0
s_cbranch_scc1 L_nofx
s_mov_b64 exec, 1
buffer_store_dword v{vTG}, v{ka.vL16}, {sp(rWS,4)}, {WS_EPOCH} offen
s_mov_b64 exec, -1
L_nofx:""")
    stamp(P,19,diag)
    fill=kc.c_maps()+C.setup()+[f"v_lshlrev_b32 v{vFA}, {FS}, v0", f"s_mov_b32 s{sFXi}, {WS_FX}"]
    fill+=f"""s_and_b32 s{sT1}, s{sXCD}, 3
s_and_b32 s{sT2}, s{sIDX}, 3
s_lshl2_add_u32 s{sT1}, s{sT1}, s{sT2}
s_mul_i32 s{sT1}, s{sT1}, 7
s_lshr_b32 s{sT1}, s{sT1}, 2
s_lshl_b32 s{sT1}, s{sT1}, {3+FS}
s_add_u32 s{sFWi}, s{sT1}, {WS_FW}
v_and_b32 v{vFB}, {15<<FS}, v{vFA}""".split('\n')
    ot=cfg.get('OTOUCH',0)
    if ot:
        P.I(f"""v_lshrrev_b32 v4, 3, v{L}
v_and_b32 v5, 7, v{L}
v_lshlrev_b32 v4, 10, v4
v_lshl_add_u32 v4, v5, 4, v4
s_lshl1_add_u32 s{sT1}, s{kc.sNT}, s{sW}
s_lshl_b32 s{sT1}, s{sT1}, 14
s_lshr_b32 s{sT2}, s{kc.sMT}, 2
s_lshl_b32 s{sT2}, s{sT2}, 7
s_add_u32 s{sT1}, s{sT1}, s{sT2}
s_add_u32 s{sT2}, s{sT1}, 8192""")
        for u in range(2):
            if ot==1: P.I(f"buffer_store_dwordx4 v[16:19], v4, {sp(rOUT,4)}, s{sT1+u} offen sc1")
            else: P.I(f"buffer_load_dwordx4 v[{16+4*u}:{19+4*u}], v4, {sp(rOUT,4)}, s{sT1+u} offen")
    nB=cfg.get('WDB',8 if FW else 16)
    for i in range(nB):
        P.extend(wd.pop(0)); k=-(-len(fill)//(nB-i)); P.extend(fill[:k]); fill=fill[k:]
    P.extend(fill)
    if FW:
        P.I(f"buffer_load_dword v{vFV}, v{vFB}, {sp(rWS,4)}, s{sFWi} offen sc1")
        for i in range(cfg.get('WDB2',6)): P.extend(wd.pop(0))
        kc.poll_check(P,'fw',vPV=vFV)
        stamp(P,22,diag)
        C.pre(P,cfg.get('WPA',8),'w')
    QS=cfg.get('QSYNC',0)
    if QS:
        P.I(f"v_and_b32 v{kc.vQA}, 15, v{L}\ns_lshl_b32 s{sT1}, s{sW}, {4+FS}\nv_lshl_add_u32 v{kc.vQA}, v{kc.vQA}, {FS}, s{sT1}")
        P.extend(kc.qpoll(0))
        for i in range(cfg.get('WDC',6)): P.extend(wd.pop(0))
        stamp(P,20,diag)
        kc.poll_check(P,'fx0',vPV=kc.vQV)
        P.I("s_barrier")
        stamp(P,21,diag)
        C.pre(P,cfg.get('QPRE',5)); P.extend(kc.qpoll(1)); C.pre(P,99)
    else:
        P.I(f"buffer_load_dword v{vFV}, v{vFA}, {sp(rWS,4)}, s{sFXi} offen sc1")
        if FW: C.pre(P,8*G1-cfg.get('WPA',8),'w')
        for i in range(cfg.get('WDC',0 if FW else 6)): P.extend(wd.pop(0))
        stamp(P,20,diag)
        kc.poll_check(P,'fx',vPV=vFV)
        P.I("s_barrier")
        stamp(P,21,diag)
        C.pre(P,cfg.get('PRE',12 if FW else 16))
    if diag: P.I(f"v_writelane_b32 v255, s{kc.sCNT}, 63")
    D=kc.PhaseD(P,cfg,diag,wd)
    D.run(*C.run(P,diag,wd,[],D))
    if diag: P.I(f"v_writelane_b32 v255, s{kc.sCNT}, 30")
    if diag: P.I("s_getreg_b32 s4, hwreg(HW_REG_XCC_ID)\ns_and_b32 s4, s4, 15\nv_writelane_b32 v255, s4, 10")
    stamp(P,18,diag); stamp_out(P,0,diag)
    if cfg.get('DBGOUT') is not None:
        P.I(f"""s_cmp_ge_u32 s2, 8
s_cbranch_scc1 L_{NAME}_exit
s_cmp_lg_u32 s{sW}, 0
s_cbranch_scc1 L_{NAME}_exit
s_load_dwordx2 s[4:5], s[0:1], 128
v_readlane_b32 s6, v255, {cfg['DBGOUT']}
s_getreg_b32 s7, hwreg(HW_REG_XCC_ID)
s_and_b32 s7, s7, 15
s_and_b32 s6, s6, 0xffff
v_mov_b32 v4, s6
v_mov_b32 v5, s7
s_lshl_b32 s6, s2, 2
v_mov_b32 v6, s6
s_waitcnt lgkmcnt(0)
s_mov_b64 exec, 1
global_store_dword v6, v4, s[4:5]
global_store_dword v6, v5, s[4:5] offset:32""")
    P.I(f"L_{NAME}_exit:\ns_endpgm\n@nomore")
    loc=cfg.get('LOC',0)==1
    ka.retry_block(P,loc); ka.retry2_block(P,loc)
    kc.poll_retry(P,'fd',0,vFV,vFA,sFDi,loc);
    if QS:
        for q in range(4): kc.poll_retry(P,f'fx{q}',0,kc.vQV,kc.vQA,kc.sQP,loc)
    else: kc.poll_retry(P,'fx',0,vFV,vFA,sFXi,loc)
    if FW: kc.poll_retry(P,'fw',0,vFV,vFB,sFWi,loc)
    for s_ in range(len(kc.d_parts(cfg))):
        if s_ and cfg.get('SPOLL',0): kc.spoll_retry(P,f'p{s_}',s_)
        else: kc.poll_retry(P,f'p{s_}',128*s_)
    return [(NAME,256,256,kc.LDS_C,512)]
```

```python
from prog import *
from layout import *
from ka import sp, vr, ar, mksrd, f32, stamp, stamp_out, rWS, rOUT, sXCD, sIDX, sW
import ka, re
sXB,sWB,sAB,sXM,sFL,sPL,sA0,sA1,sD0,sD1,sNT,sMT,sFB,sCNT = range(8,22)
sQ=22
sT0,sT1,sT2,sT3,sT4 = 80,81,82,83,84
vLANE,vL16,vWL = 1,2,14
NS=16; L_XS=0; L_RING=4*NS*1024; RING=96
LDS_C=L_RING+RING*1024
def entry(P,name,diag):
    P.I(f".globl {name}\n.p2align 8\n.type {name},@function\n{name}:\n@reset")
    P.I(f"""s_cmp_ge_u32 s2, 256
s_cbranch_scc1 L_{name}_exit
s_load_dwordx2 s[42:43], s[0:1], 136
s_load_dwordx2 s[38:39], s[0:1], 120
s_and_b32 s{sXCD}, s2, 7
s_lshr_b32 s{sIDX}, s2, 3
v_lshrrev_b32 v3, 6, v0
v_and_b32 v{vLANE}, 63, v0
v_readfirstlane_b32 s{sW}, v3""")
    ka.stamp0_issue(P,diag)
def srds(P,diag):
    P.I("s_waitcnt lgkmcnt(0)"); ka.stamp0_commit(P,diag)
    P.extend(mksrd(rWS,42,WS_USED)); P.extend(mksrd(rOUT,38,2097152))

def xsrc(v, snt):
    return [f"v_lshrrev_b32 v12, 3, v{vLANE}", f"v_xor_b32 v{v}, s{snt}, v12", f"v_mul_u32_u24 v12, 96, v12", f"v_add_u32 v12, v12, v{v}",
            f"v_and_b32 v{v}, 7, v{vLANE}", f"v_lshl_add_u32 v{v}, v12, 3, v{v}", f"v_lshlrev_b32 v{v}, 4, v{v}"]
def c_maps():
    xb=f"s_lshl_b32 s{sXB}, s{sT0}, 15\ns_add_u32 s{sXB}, s{sXB}, {WS_X1B}"
    if ka.XIN: xb="\n".join(xsrc(13,sT0))
    return f"""s_lshr_b32 s{sT0}, s{sXCD}, 2
s_lshl_b32 s{sT0}, s{sT0}, 5
s_and_b32 s{sT1}, s{sIDX}, 28
s_add_u32 s{sT0}, s{sT0}, s{sT1}
s_add_u32 s{sT0}, s{sT0}, s{sW}
s_and_b32 s{sT1}, s{sXCD}, 3
s_and_b32 s{sT3}, s{sIDX}, 3
s_lshl2_add_u32 s{sT2}, s{sT1}, s{sT3}
{xb}
s_mul_i32 s{sWB}, s{sT2}, {231*1024}
s_add_u32 s{sWB}, s{sWB}, {WS_WPF}
s_mul_i32 s{sXM}, s{sW}, {NS*1024}
s_mul_i32 s{sAB}, s{sT0}, 112
s_mul_i32 s{sT2}, s{sT2}, 7
s_add_u32 s{sAB}, s{sAB}, s{sT2}
s_lshl_b32 s{sAB}, s{sAB}, 10
s_add_u32 s{sAB}, s{sAB}, {WS_ACT}
s_lshr_b32 s{sFL}, s{sT0}, 1
s_lshl2_add_u32 s{sFL}, s{sFL}, s{sT1}
s_lshl_b32 s{sFL}, s{sFL}, 10
s_and_b32 s{sT0}, s{sT0}, 1
s_lshl2_add_u32 s{sT0}, s{sT0}, s{sT3}
s_lshl2_add_u32 s{sFL}, s{sT0}, s{sFL}
s_add_u32 s{sFL}, s{sFL}, {WS_FLAG}""".split('\n')
def d_maps(DM=0, M16=0):
    head=f"""s_lshr_b32 s{sT1}, s{sIDX}, 3
s_lshl2_add_u32 s{sT2}, s{sXCD}, s{sT1}
s_and_b32 s{sT1}, s{sIDX}, 7""" if not DM else f"""s_lshr_b32 s{sT1}, s{sIDX}, 2
s_lshr_b32 s{sT2}, s{sXCD}, 1
s_lshl3_add_u32 s{sT2}, s{sT2}, s{sT1}
s_and_b32 s{sT1}, s{sIDX}, 3
s_and_b32 s{sT3}, s{sXCD}, 1
s_lshl2_add_u32 s{sT1}, s{sT3}, s{sT1}"""
    return f"""{head}
s_mul_i32 s{sT3}, s{sW}, {28*1024}
s_mul_i32 s{sA0}, s{sT2}, {224*1024}
s_add_u32 s{sA0}, s{sA0}, s{sT3}
s_add_u32 s{sA0}, s{sA0}, {WS_ACT}
s_mul_i32 s{sD0}, s{sT1}, {224*1024}
s_add_u32 s{sD0}, s{sD0}, s{sT3}
s_add_u32 s{sD0}, s{sD0}, {WS_WDF}
s_add_u32 s{sD1}, s{sD0}, {112*1024}
s_bitcmp1_b32 s{sW}, 0
s_cselect_b32 s{sPL}, {112*1024}, 0
s_add_u32 s{sD0}, s{sD0}, s{sPL}
s_sub_u32 s{sD1}, s{sD1}, s{sPL}
s_lshl2_add_u32 s{sPL}, s{sT2}, s{sW}
s_lshl_b32 s{sPL}, s{sPL}, 10
s_add_u32 s{sPL}, s{sPL}, {WS_FLAG}
s_mov_b32 s52, s{ka.sTAG}
s_mov_b32 s53, s{ka.sTAG}
s_lshl_b32 s{sNT}, s{sT2}, 1
s_and_b32 s{sT3}, s{sW}, 1
s_lshl_b32 s{sT3}, s{sT3}, 1
s_lshl2_add_u32 s{sMT}, s{sT1}, s{sT3}
s_lshr_b32 s{sT3}, s{sW}, 1
s_add_u32 s{sMT}, s{sMT}, s{sT3}
s_lshl_b32 s{sT3}, s{sT3}, 8
v_lshlrev_b32 v{vL16}, 4, v{vLANE}
v_xor_b32 v{vWL}, s{sT3}, v{vL16}""".split('\n')[:-1 if M16 else None]+(f"""v_lshrrev_b32 v{vWL}, 5, v{vLANE}
v_mul_u32_u24 v{vWL}, 7168, v{vWL}
v_and_b32 v{vWL+1}, 16, v{vLANE}
v_lshl_add_u32 v{vWL}, v{vWL+1}, 5, v{vWL}
v_and_b32 v{vWL+1}, 15, v{vLANE}
v_lshl_add_u32 v{vWL}, v{vWL+1}, 4, v{vWL}
v_or_b32 v{vWL}, s{sT3}, v{vWL}
v_xor_b32 v{vWL+1}, 0x100, v{vWL}""".split('\n') if M16 else [])

class Stream:
    def __init__(s, base, tmp): s.base=base; s.tmp=tmp; s.cur=None
    def at(s, off):
        L=[]
        if s.cur is None or not (0<=off-s.cur<4096):
            s.cur=off; L.append(f"s_add_u32 s{s.tmp}, s{s.base}, {off}")
        return L, f"s{s.tmp} offen offset:{off-s.cur}"
ASTG0=[3,5,7]
def d_parts(cfg):
    e=[0]+cfg.get('ASTG',ASTG0)
    return [[7*jj+mt for jj in ((0,2) if cfg.get('M16',0) else range(4)) for mt in range(a,b)] for a,b in zip(e,e[1:])]
def kap(f): return 16*(f if f<7 else f-7)
def wd_order(cfg):
    if cfg.get('WDLIN',0)==2: return list(range(16,28))+list(range(16))
    return sorted(sum(d_parts(cfg),[])) if cfg.get('WDLIN',0) else sum(d_parts(cfg),[])
def flag_store(s):
    return ["s_mov_b64 exec, 1",f"buffer_store_dword v{vONE1}, v{vL16}, {sp(rWS,4)}, s{sFL} offen offset:{128*s} sc1","s_mov_b64 exec, -1"]
def flag_poll(s): return f"buffer_load_dword v{vPV}, v{vPA}, {sp(rWS,4)}, s{sPL} offen offset:{128*s} sc1"
def sflag_poll(s): return f"s_buffer_load_dwordx8 s[44:51], {sp(rWS,4)}, s{sPL} offset:{128*s} glc"
def spoll_check(P, name):
    P.I(f"L_{name}_chk:\ns_waitcnt lgkmcnt(0)")
    for i in range(4): P.I(f"s_xor_b64 s[{44+2*i}:{45+2*i}], s[{44+2*i}:{45+2*i}], s[52:53]")
    P.I(f"s_or_b64 s[44:45], s[44:45], s[46:47]\ns_or_b64 s[48:49], s[48:49], s[50:51]\ns_or_b64 s[44:45], s[44:45], s[48:49]\ns_cbranch_scc1 L_{name}_retry\nL_{name}_ok:")
def spoll_retry(P, name, s):
    P.I(f"L_{name}_retry:\ns_add_u32 s{sCNT}, s{sCNT}, 1\ns_cmp_gt_u32 s{sCNT}, 40000\n@loopok\ns_cbranch_scc1 L_{name}_ok\n{sflag_poll(s)}\n@loopok\ns_branch L_{name}_chk")
def wd_load_list(cfg,LD=''):
    S=[Stream(sD0,34),Stream(sD1,35)]; L=[]
    if cfg.get('M16',0):
        for f in wd_order(cfg):
            for j in range(4):
                pre,o=S[j&1].at(f*1024)
                L.append(pre+[f"buffer_load_dwordx4 {ar(kap(f)+4*j,4)}, v{vWL+(j>>1)}, {sp(rWS,4)}, {o} {LD}"])
        return L
    for f in wd_order(cfg):
        for m in range(2):
            pre,o=S[m].at(f*1024)
            L.append(pre+[f"buffer_load_dwordx4 {ar(8*f+4*m,4)}, v{vWL}, {sp(rWS,4)}, {o} {LD}"])
    return L
AX,AG=240,224
vXA,vPA,vPV,vONE1=253,254,252,251
vQV,vQA,sQP=15,248,99
def qpoll(q): return [f"s_mov_b32 s{sQP}, {WS_FX+(q<<(6+FS))}", f"buffer_load_dword v{vQV}, v{vQA}, {sp(rWS,4)}, s{sQP} offen sc1"]
def cost(x):
    s=x[0] if isinstance(x,tuple) else x
    o=s.split()[0]
    return 2 if (o in TRANS or o=='s_barrier') else 1

class RawWd:
    def __init__(s, order, srd, vsrc, sbase, stmp, pol=''):
        s.todo=list(order); s.flying=[]; s.done=set(); s.srd=srd; s.vsrc=vsrc; s.sbase=sbase; s.stmp=stmp; s.half=0; s.chalf=0; s.pol=pol; s.n=0
    def area(s, slots):
        assert not s.half
        s.slots=list(slots); s.n=0
    def issue_half(s, now):
        f=s.todo[0]; sl=s.slots[s.n%len(s.slots)]; u=s.half
        assert all(x[1]!=sl for x in s.flying)
        L=[f"s_add_u32 m0, s{sl[0]}, {sl[1]+u*1024}", f"s_add_u32 s{s.stmp}, s{s.sbase}, {f*16384+u*8192}",
           (f"buffer_load_dwordx4 v{s.vsrc}, {sp(s.srd,4)}, s{s.stmp} offen {s.pol} lds", f"rw{f}")]
        s.half^=1
        if not s.half: s.todo.pop(0); s.flying.append((f,sl,now)); s.n+=1
        return L
    def convert_half(s):
        f,sl,_=s.flying[0]; m=s.chalf
        L=([f"@wait rw{f}"] if m==0 else [])+[f"ds_read_b64_tr_b16 {ar(8*f+4*m+2*hf,2)}, v{sl[2][m]} offset:{sl[3]+hf*512}" for hf in range(2)]
        s.chalf^=1
        if not s.chalf: s.flying.pop(0); s.done.add(f)
        return L

class PhaseC:
    def __init__(s, cfg):
        s.cfg=cfg
        seq=[(t,ks) for ks in range(32) for t in range(G1)]
        AUXAT=cfg.get('AUXAT',16-G1)
        t3=[(G1,ks) for ks in range(33)]
        seq+= t3[:AUXAT]+[(t,32) for t in range(G1)]+t3[AUXAT:]
        for t in range(G1+1,7): seq+=[(t,ks) for ks in range(33)]
        s.seq=seq; s.N=N=len(seq); assert N==231
        s.P1=32*G1
        b=cfg.get('STG') or ([0,8,16]+list(range(32,232,16))+[232])
        s.bounds=b; s.nst=len(b)-1
        for q in range(s.nst):
            assert sorted(s.gpos(*x) for x in seq[b[q]:b[q+1]])==list(range(b[q],min(b[q+1],N))), q
            assert s.lpos(b[q+1]-1)-s.lpos(b[q])==(b[q+1]-1-b[q])*1024
        s.QR={c:sQ+2*i for i,c in enumerate(sorted({(b[q+1]-b[q])//4 for q in range(s.nst)}))}
        s.LOOK=cfg.get('LOOK',6); s.XL=cfg.get('XL',6)
        s.mem=[]; s.m0=None; s.now=-1
        QG=s.QG=cfg.get('QG',[-1,0,2,3])
        for q in range(s.nst):
            gate=-1
            if cfg.get('BIG',0):
                if b[q]>=224: gate=max(z for z in range(s.nst) if b[z]<b[q+1]-160)+2
                elif 96<=b[q]<160: gate=max(z for z in range(s.nst) if b[z]<b[q+1]-96)+2
                elif b[q]>=160: gate=min(z for z in range(s.nst) if b[z]-s.LOOK>=s.P1)
            elif b[q+1]>RING: gate=max(z for z in range(s.nst) if b[z]<b[q+1]-RING)+2
            if cfg.get('QSYNC',0): gate=max(gate,QG[min(3,(b[q+1]-1)//(8*G1))])
            for u in range((b[q+1]-b[q])//4): s.mem.append((max(b[q]-s.LOOK,0),gate,('w',q,u)))
        XG=cfg.get('XGRP',2)
        for ks in range(32): s.mem.append((max(G1*(ks-ks%XG)-s.XL,0),QG[ks>>3] if cfg.get('QSYNC',0) else -1,('x',ks)))
        s.mem.sort(key=lambda e:e[0])
    def lpos(s,g):
        if s.cfg.get('BIG',0): return L_RING+(g%96)*1024 if g<160 else (g-160)*1024 if g<224 else L_RING+(g-160)*1024
        return L_RING+(g%RING)*1024
    def gpos(s,t,ks): return (G1*ks+t) if t<G1 else 33*t+ks
    def setup(s):
        L=[]
        for c,r in s.QR.items(): L+=[f"s_mul_i32 s{r}, s{sW}, {c*1024}", f"s_add_u32 s{r+1}, s{r}, s{sWB}"]
        L+=f"""v_lshlrev_b32 v{vL16}, 4, v{vLANE}
v_lshrrev_b32 v8, 5, v{vLANE}
v_bfe_u32 v9, v{vLANE}, 2, 2
v_lshl_add_u32 v8, v8, 3, v9
v_bfe_u32 v9, v{vLANE}, 4, 1
v_lshl_add_u32 v8, v8, 1, v9
v_and_b32 v10, 3, v{vLANE}
v_lshl_add_u32 v8, v8, 2, v10
v_lshl_add_u32 v{vXA}, v8, 3, s{sXM}
v_add_u32 v3, {L_RING}, v{vL16}
v_add_u32 v7, {L_RING+0x10000}, v{vL16}
v_and_b32 v8, 31, v{vLANE}
v_and_b32 v10, 32, v{vLANE}
v_lshlrev_b32 v10, 4, v10
v_lshl_add_u32 v8, v8, 2, v10
v_add_u32 v249, {L_RING}, v8
v_add_u32 v250, {L_RING+0x10000}, v8
v_and_b32 v8, 15, v{vLANE}
v_cmp_eq_u32 vcc, v8, v9
v_mov_b32 v10, 0x3f803f80
v_and_b32 v{vPA}, 7, v{vLANE}
v_lshlrev_b32 v{vPA}, 2, v{vPA}
v_cndmask_b32 v56, 0, v10, vcc
v_cndmask_b32 v57, 0, v10, vcc
v_cndmask_b32 v58, 0, v10, vcc
v_cndmask_b32 v59, 0, v10, vcc""".split('\n')
        if s.cfg.get('BIG',0):
            assert not s.cfg.get('M16',0) and s.cfg.get('RXD',0)
            L.append(f"v_add_u32 v248, {-L_RING}, v249")
        if s.cfg.get('M16',0): L.append(f"v_and_b32 v248, v{vWL}, v{vWL+1}")
        return L
    def memop(s,e):
        if e[0]=='w':
            _,q,u=e; c=(s.bounds[q+1]-s.bounds[q])//4; key=('w',q,u//4); u0=u-u%4
            pre=[f"s_add_u32 m0, s{s.QR[c]}, {s.lpos(s.bounds[q])+u0*1024}", f"s_add_u32 s{sT0}, s{s.QR[c]+1}, {(s.bounds[q]+u0)*1024}"]
            tag=f"w{q}"; off=(u%4)*1024; ld=s.cfg.get('WLD','')
        else:
            ks=e[1]; key=('x',ks//4); k0=ks-ks%4
            assert ks<NS or s.now>=G1*(ks-NS), (ks,s.now)
            pre=[f"s_add_u32 m0, s{sXM}, {L_XS+(k0%NS)*1024}", f"s_add_u32 s{sT0}, s{sXB}, {k0*1024}"]
            tag=f"x{ks}"; off=(ks%4)*1024; ld=s.cfg.get('XLD','')
        L=[] if s.m0==key else pre
        s.m0=key
        if e[0]=='x' and ka.XIN:
            return L[:1]+[f"s_mov_b32 s{sXB}, {WS_XG+ks*98304-off}",(f"buffer_load_dwordx4 v13, {sp(rWS,4)}, s{sXB} offen offset:{off} {ld} lds",tag)]
        return L+[(f"buffer_load_dwordx4 v{vL16}, {sp(rWS,4)}, s{sT0} offen offset:{off} {ld} lds",tag)]
    def pre(s,P,n,kinds='wx'):
        k=0
        while n>0 and k<len(s.mem):
            if s.mem[k][2][0] in kinds and s.mem[k][1]<0: P.extend(s.memop(s.mem.pop(k)[2])); n-=1
            else: k+=1
    def run(s,P,diag,wd,extra_side,D,raw=None):
        cfg=s.cfg; seq=s.seq; N=s.N; bounds=s.bounds; mem=s.mem; LOOK=s.LOOK; XL=s.XL; P1=s.P1
        ST='sc1'; ends=cfg.get('ASTG',ASTG0)
        X0=120
        xr=lambda ks: vr(X0+4*ks,4) if ks<32 else vr(44,4)
        NACC=4; ACC=[72,88,104,56]
        WF=[20+4*i for i in range(6)]; NWF=6
        SQ,SM,ONE,SQ2=48,52,56,16
        C0,C1,IR2=4,5,6; TA=8
        RA=[vL16,3,7]; RA2=[248,249,250]
        def rd(n):
            pos=s.lpos(s.gpos(*seq[n]))
            if seq[n][1]==32:
                return [(f"ds_read_b32 v{WF[n%NWF]+q}, v{RA2[pos>>16]} offset:{(pos&0xffff)+128*q}", f"r{n}") for q in range(4)]
            return [(f"ds_read_b128 {vr(WF[n%NWF],4)}, v{RA[pos>>16]} offset:{pos&0xffff}", f"r{n}")]
        def xrd(ks): return [f"@wait x{ks}"]+[f"ds_read_b64_tr_b16 {vr(X0+4*ks+2*hf,2)}, v{vXA} offset:{L_XS+(ks%NS)*1024+hf*256}" for hf in range(2)]
        accof=lambda t: ACC[t%NACC]
        EW=cfg.get('EW',4)
        def epi(t):
            a=accof(t); L=[]
            for g in range(8//EW):
                ia=list(range(EW*g,EW*g+EW)); T=TA
                L+=[f"v_mul_f32 v{T+k}, v{a+i}, v{a+i}" for k,i in enumerate(ia)]
                L+=[f"v_fma_f32 v{T+k}, v{T+k}, v{C1}, v{C0}" for k,i in enumerate(ia)]
                L+=[f"v_mul_f32 v{T+k}, v{T+k}, v{a+i}" for k,i in enumerate(ia)]
                for k,i in enumerate(ia): L+=[f"v_exp_f32 v{T+k}, v{T+k}", f"v_mul_f32 v{a+8+i}, v{a+i}, v{a+8+i}"]
                for k,i in enumerate(ia):
                    L+=[f"v_fma_f32 v{a+i}, v{T+k}, v{IR2}, v{IR2}"]
                    if k: L+=[f"v_rcp_f32 v{a+i-1}, v{a+i-1}"]
                L+=[f"v_mul_f32 v{a+8+ia[0]}, v{a+8+ia[0]}, v{a+ia[0]}", f"v_rcp_f32 v{a+ia[-1]}, v{a+ia[-1]}"]
                L+=[f"v_mul_f32 v{a+8+i}, v{a+8+i}, v{a+i}" for i in ia[1:]]
                L+=[f"v_cvt_pk_bf16_f32 v{16+i//2}, v{a+8+i}, v{a+9+i}" for i in ia[::2]]
            L.append((f"buffer_store_dwordx4 v[16:19], v{vL16}, {sp(rWS,4)}, s{sAB} offen offset:{(t%4)*1024} {ST}",f'act{t}'))
            if t==3: L.append(f"s_add_u32 s{sAB}, s{sAB}, 4096")
            return L
        if cfg.get('NOTRANS'):
            e0=epi; epi=lambda t:[y for x in e0(t) for y in ([x.replace('v_exp_f32','v_mov_b32').replace('v_rcp_f32','v_mov_b32')]*2 if isinstance(x,str) and x.split()[0] in TRANS else [x])]
        if cfg.get('NOST'):
            e2=epi; epi=lambda t:[(('s_nop 0',x[1]) if isinstance(x,tuple) else x) for x in e2(t)]
        if cfg.get('NOEPI'):
            e1=epi; epi=lambda t:[x for x in e1(t) if not (isinstance(x,str) and x.startswith('v_'))]
        k0=-2*0.7978845608028654*1.4426950408889634; k1=k0*0.044715
        fin=f"""v_and_b32 v11, 15, v{vLANE}
v_lshlrev_b32 v11, 2, v11
v_and_b32 v8, 3, v{vLANE}
v_cmp_eq_u32 vcc, 1, v8
v_cmp_eq_u32 {sp(sT2)}, 2, v8
v_and_b32 v10, 16, v{vLANE}
ds_bpermute_b32 v12, v11, v{SM}
ds_bpermute_b32 v13, v11, v{SM+1}
v_add_f32 v{SQ}, v{SQ}, v{SQ2}
v_add_f32 v{SQ+1}, v{SQ+1}, v{SQ2+1}
v_add_f32 v{SQ+2}, v{SQ+2}, v{SQ2+2}
v_add_f32 v{SQ+3}, v{SQ+3}, v{SQ2+3}
v_cndmask_b32 v9, v{SQ}, v{SQ+1}, vcc
v_cmp_eq_u32 vcc, 3, v8
v_cndmask_b32 v9, v9, v{SQ+2}, {sp(sT2)}
v_cmp_eq_u32 {sp(sT2)}, 0, v10
v_cndmask_b32 v9, v9, v{SQ+3}, vcc
v_mov_b32 v8, v9
v_nop
v_nop
v_permlane32_swap_b32 v8, v9
v_add_f32 v9, v8, v9
v_mul_f32 v9, 0x3b000000, v9
v_cndmask_b32 v12, v13, v12, {sp(sT2)}
v_mul_f32 v12, 0x3b000000, v12
v_fma_f32 v9, -v12, v12, v9
v_max_f32 v9, 0, v9
v_cvt_pk_bf16_f32 v9, v9, v9
v_and_b32 v9, 0xffff0000, v9
v_add_f32 v9, 0x3727c5ac, v9
v_cvt_pk_bf16_f32 v9, v9, v9
v_and_b32 v9, 0xffff0000, v9
v_sqrt_f32 v9, v9
v_nop
v_cvt_pk_bf16_f32 v44, -v12, v9
v_and_b32 v9, 0xffff0000, v44
v_mov_b32 v45, v44
v_rcp_f32 v8, v9
v_mov_b32 v46, v44
v_mov_b32 v47, v44
v_mul_f32 v{IR2}, v9, v9
v_mul_f32 v{C0}, {hex(f32(k0))}, v8
v_mul_f32 v10, v8, v8
v_mul_f32 v{C1}, {hex(f32(k1))}, v8
v_mul_f32 v{C1}, v{C1}, v10""".split('\n')
        done_at={}
        for n,(t,ks) in enumerate(seq):
            if ks==32: done_at[t]=n
        side=[(0,x) for x in extra_side]+[(P1,x) for x in fin]
        for t in range(6): side+=[(done_at[t]+3,x) for x in epi(t)]
        RX=cfg.get('RXAT',P1+40)
        blocks={RX:[f"s_lshl_b32 s{sT1}, s{sNT}, 5",f"s_add_u32 s{sT1}, s{sT1}, s{sMT}",f"s_lshl_b32 s{sT1}, s{sT1}, 10",f"s_add_u32 s{sT1}, s{sT1}, {WS_X1B}"],
                RX+1:['@m0',f"s_add_u32 m0, s{sXM}, {L_XS}",f"s_add_u32 s{sT4}, s{sT1}, {32768-1024}",(f"buffer_load_dwordx4 v{vL16}, {sp(rWS,4)}, s{sT1} offen {cfg.get('XLD','')} lds",'rx'),
                      (f"buffer_load_dwordx4 v{vL16}, {sp(rWS,4)}, s{sT4} offen offset:1024 {cfg.get('XLD','')} lds",'rx')],
                RX+3:[f"s_lshl_b32 s{sT1}, s{sMT}, 6",f"s_add_u32 s{sT1}, s{sT1}, {WS_GBF}",f"v_and_b32 v{vPV}, 32, v{vLANE}"],
                RX+4:[f"buffer_load_dwordx4 {ar(AG+4*q,4)}, v{vPV}, {sp(rWS,4)}, s{sT1} offen offset:{16*q} {cfg.get('WLD','')}" for q in range(2)],
                RX+44:["@wait rx"]+[f"ds_read_b64_tr_b16 {ar(AX+2*q,2)}, v{vXA} offset:{L_XS+(q>>1)*1024+(q&1)*256}" for q in range(4)],
                cfg.get('P0AT',217):[flag_poll(0)]}
        if ka.XIN:
            xs=xsrc(13,sNT)
            blocks[RX-2]=xs[:4]; blocks[RX-1]=xs[4:]+["v_xor_b32 v12, 128, v13"]
            blocks[RX]=[f"s_mul_i32 s{sT1}, s{sMT}, 98304",f"s_add_u32 s{sT1}, s{sT1}, {WS_XG}"]
            blocks[RX+1]=['@m0',f"s_add_u32 m0, s{sXM}, {L_XS}",f"s_sub_u32 s{sT4}, s{sT1}, 1024",(f"buffer_load_dwordx4 v13, {sp(rWS,4)}, s{sT1} offen sc1 lds",'rx'),
                      (f"buffer_load_dwordx4 v12, {sp(rWS,4)}, s{sT4} offen offset:1024 sc1 lds",'rx')]
        if cfg.get('RXD',0):
            for z in (RX-2,RX-1,RX,RX+1,RX+3,RX+4,RX+44): blocks.pop(z,None)
        if cfg.get('QSYNC',0):
            for q,at in zip((2,3),cfg.get('QAT2',[1,14])): blocks[at]=qpoll(q)
        C0AT=cfg.get('C0AT',999)
        D.nflag=0; flag_at={}; log=[]
        opened=[-1]
        def emit(L):
            c=0
            for x in L:
                if x=='@m0': s.m0=None; continue
                P.extend([x]); c+=cost(x)
            return c
        def force(pred):
            c=0
            while any(pred(e[2]) for e in mem):
                assert mem[0][1]<=opened[0], mem[0]
                c+=emit(s.memop(mem.pop(0)[2]))
            return c
        def open_stage(q):
            c=force(lambda e: e[0]=='w' and e[1]==q)
            opened[0]=q
            if cfg.get('QSYNC',0) and q in s.QG: poll_check(P,f'fx{s.QG.index(q)}',vPV=vQV); c+=3; stamp(P,25+s.QG.index(q),diag)
            x_=cfg.get('XBAR',0) if bounds[q]>P1 else 0
            c+=emit([[f"@wait w{q}","s_barrier"],[f"@wait w{q}"],["s_barrier"],[]][x_])
            if cfg.get('QSYNC',0) and q in s.QG:
                for _ in range(cfg.get('QBURST',[5,3,2])[s.QG.index(q)-1]):
                    if mem[0][1]<=q and (mem[0][2][0]=='w' or s.now>=G1*(mem[0][2][1]-NS)): c+=emit(s.memop(mem.pop(0)[2]))
            if cfg.get('SSTAMP'): stamp(P,(2+q if q<10 else 9+q),diag)
            return c
        xnext=0
        open_stage(0)
        while G1*xnext<XL: force(lambda e: e==('x',xnext)); emit(xrd(xnext)); xnext+=1
        for n in range(LOOK): P.extend(rd(n))
        DIST=cfg.get('DIST',24); DIST2=cfg.get('DIST2',48); WB=cfg.get('WB',3)
        started=set(); mb=0.0; wdb=0.0; quiet=0
        P.I("@mark c1")
        for n,(t,ks) in enumerate(seq):
            a=accof(t)
            if n==P1: P.I("@mark c2")
            if t>=NACC and ks==0:
                while side and side[0][0]<=done_at[t-NACC]+3:
                    x=side.pop(0)[1]; emit([x])
                    if isinstance(x,tuple):
                        log.append((x[1],n))
                        if int(x[1][3:])+1 in ends: flag_at[ends.index(int(x[1][3:])+1)]=n+cfg.get('FLAGD',26)
            if ks==32 and t==0:
                while side and side[0][0]<=P1: emit([side.pop(0)[1]])
            if n%WB==0: P.I(f"@wait r{min(n+WB-1,N-1)}")
            P.I(f"v_mfma_f32_32x32x16_bf16 {vr(a,16)}, {vr(WF[n%NWF],4)}, {xr(ks)}, {vr(a,16) if t in started else 0}"); started.add(t)
            s.now=n
            free=cfg.get('CAP',6)-((n+1)%WB==0)
            if xnext<32 and G1*xnext-XL<=n:
                free-=force(lambda e: e==('x',xnext)); free-=emit(xrd(xnext)); xnext+=1
            m=n+LOOK
            if m<N:
                if m in bounds: free-=open_stage(bounds.index(m))
                free-=emit(rd(m))
            used=False
            if n in blocks: free-=emit(blocks.pop(n)); used=True
            elif n>=flag_at.get(D.nflag,999) and free>=4:
                free-=emit([f"@wait act{ends[D.nflag]-1}"]+flag_store(D.nflag)); D.nflag+=1; used=True; log.append(n)
            if n==C0AT: poll_check(P,'p0'); stamp(P,14,diag); free-=3; used=True
            rate = cfg.get('RATE1',0.9) if n<P1 else cfg.get('RATE2',0.5)
            mb=min(mb+rate,1.0+(rate if n<P1 else cfg.get('BURST2',rate)))
            if n<quiet: mb=min(mb,0.99)
            nxt_st=[i for i,(r_,x_) in enumerate(side[:cfg.get('PREQ',0)]) if isinstance(x_,tuple) and r_<=n]
            if nxt_st: mb=min(mb,0.99)
            if not used and mem and mb>=1 and mem[0][0]-(DIST if n<P1 else DIST2)<=n and mem[0][1]<=opened[0] and (free>=3 or n<P1) and (mem[0][2][0]=='w' or n>=G1*(mem[0][2][1]-NS)):
                free-=emit(s.memop(mem.pop(0)[2])); used=True; mb-=1
            if raw:
                if raw.flying and n>=raw.flying[0][2]+cfg.get('RAWD',40) and free>=3: free-=emit(raw.convert_half())
                if not used and raw.todo and len(raw.flying)<len(raw.slots) and cfg.get('WDFROM',P1+4)<=n<N-cfg.get('RAWD',40):
                    wdb=min(wdb+cfg.get('WDPER',0.2),2)
                    if wdb>=1 and mb>=1 and free>=3: free-=emit(['@m0']+raw.issue_half(n)); wdb-=1; mb-=1
            if not used and n>C0AT and mb>=1 and free>=2 and D.li<min(cfg.get('DAHEAD',14),n-197) and D.can_load():
                free-=emit(D.load()); mb-=1; used=True
            if not used and wd and cfg.get('WDFROM',P1+4)<=n<C0AT:
                wdb=min(wdb+(cfg.get('WDPER1',0.2) if n<P1 else cfg.get('WDPER',0.2)),2)
                if wdb>=1 and mb>=1 and free>=2: free-=emit(wd.pop(0)); wdb-=1; mb-=1
            while side and side[0][0]<=n and cost(side[0][1])<=free:
                x=side.pop(0)[1]; free-=emit([x])
                if isinstance(x,tuple) and x[1].startswith('act'):
                    log.append((x[1],n)); quiet=n+1+cfg.get('QUIET',0)
                    if cfg.get('STEND',0): free=0
                    if int(x[1][3:])+1 in ends: flag_at[ends.index(int(x[1][3:])+1)]=n+cfg.get('FLAGD',26)
            if n<P1 and t==G1-1:
                x=X0+4*ks
                P.I(f"v_mfma_f32_4x4x4_16b_bf16 {vr(SQ,4)}, {vr(x,2)}, {vr(x,2)}, {vr(SQ,4) if ks else 0}")
                P.I(f"v_mfma_f32_4x4x4_16b_bf16 {vr(SQ2,4)}, {vr(x+2,2)}, {vr(x+2,2)}, {vr(SQ2,4) if ks else 0}")
                P.I(f"v_mfma_f32_16x16x32_bf16 {vr(SM,4)}, {vr(ONE,4)}, {vr(x,4)}, {vr(SM,4) if ks else 0}")
            if n==P1-1: stamp(P,12,diag)
        P.I("@mark end")
        assert D.nflag and not blocks and not mem
        print('phase C: side left', len(side), 'stores/flags', log, 'Wd left', len(wd), 'raw todo/flying', (len(raw.todo),len(raw.flying),raw.half,raw.chalf) if raw else None)
        stamp(P,13,diag)
        return [x for _,x in side]+epi(6), {q:v-N for q,v in flag_at.items()}

def poll_check(P, name, need=None, diag=None, vPV=vPV):
    P.I(f"""L_{name}_chk:
v_cmp_ne_u32 vcc, v{vONE1}, v{vPV}
s_cbranch_vccnz L_{name}_retry
L_{name}_ok:""")
def poll_retry(P, name, off, vPV=vPV, vPA=vPA, sPL=sPL, loc=0):
    P.I(f"""L_{name}_retry:
s_add_u32 s{sCNT}, s{sCNT}, 1
s_cmp_gt_u32 s{sCNT}, 40000
s_waitcnt vmcnt(0) lgkmcnt(0)
s_cbranch_scc1 L_{name}_ok""")
    P.extend(ka.writeback(sCNT,f'L_{name}_nowb',loc))
    P.I(f"""buffer_load_dword v{vPV}, v{vPA}, {sp(rWS,4)}, s{sPL} offen offset:{off} sc1
s_waitcnt vmcnt(0)
s_branch L_{name}_chk""")

class PhaseD:
    def __init__(s, P, cfg, diag, wd):
        s.P=P; s.cfg=cfg; s.diag=diag; s.wd=wd
        s.parts=d_parts(cfg); s.ends=cfg.get('ASTG',ASTG0); s.order=sum(s.parts,[])
        s.ACC=[[184,200],[216,232]]; s.BUF=[120+4*i for i in range(16)]; s.NB=16
        SK=cfg.get('DSKEW',8)
        s.M16=cfg.get('M16',0)
        if s.M16:
            s.work=[(f,nb) for i,f in enumerate(s.order) for nb in range(4) if nb<2 or i<14-SK//2]+[(f,nb) for f in s.order[14-SK//2:] for nb in (2,3)]
        else: s.work=[(f,n) for i,f in enumerate(s.order) for n in range(2) if n==0 or i<28-SK]+[(f,1) for f in s.order[28-SK:]]
        s.first={q:min(k for k,(f,n) in enumerate(s.work) if f in s.parts[q]) for q in range(len(s.parts))}
        s.S=[Stream(sA0,36),Stream(sA0,37)]; s.li=0; s.nflag=0; s.polled=0; s.inD=False
    def can_load(s):
        for q,k0 in s.first.items():
            if q and s.li==k0 and s.nflag<(len(s.ends) if q>=s.cfg.get('CK',1) else q+1): return False
        return True
    def load(s):
        k=s.li; s.li+=1; f,n=s.work[k]; L=[]; PL=s.cfg.get('PL2',8)
        nxt=s.polled+1
        if nxt in s.first and k>=max(s.first[nxt]-PL,s.first[nxt-1]+1) and s.nflag>nxt and (s.inD or not s.cfg.get('SPOLL',0)): L.append((sflag_poll if s.cfg.get('SPOLL',0) else flag_poll)(nxt)); s.polled=nxt
        for q,k0 in s.first.items():
            if q and k==k0:
                assert s.polled>=q
                s.P.extend(L); L=[]; (spoll_check if s.cfg.get('SPOLL',0) else poll_check)(s.P,f'p{q}'); stamp(s.P,22+q,s.diag)
        while s.wd and 56-len(s.wd)<(4 if s.M16 else 2)*(wd_order(s.cfg).index(f)+1): L+=s.wd.pop(0)
        if s.M16:
            pre,o=s.S[n>>1].at((n>>1)*112*1024+f*1024+(n&1)*256)
            return L+pre+[f"buffer_load_dwordx4 {vr(s.BUF[k%s.NB],4)}, v248, {sp(rWS,4)}, {o} sc1"]
        pre,o=s.S[n].at(n*112*1024+f*1024)
        return L+pre+[f"buffer_load_dwordx4 {vr(s.BUF[k%s.NB],4)}, v{vL16}, {sp(rWS,4)}, {o} sc1"]
    def run(s, ctail, flag_due):
        P=s.P; cfg=s.cfg; diag=s.diag; work=s.work; ACC=s.ACC; ends=s.ends
        AH=cfg.get('DAHEAD',14); assert AH<=s.NB; s.inD=True
        M16=s.M16; NM=4 if M16 else 2
        nA=max(k for k,(f,n) in enumerate(work) if n<(2 if M16 else 1))
        GB=44; XF=56; R=[120,144]; RD=[72,73,74]; VO,VW=75,76
        fill=f"""v_add_u32 v{VW}, s{sXM}, v{vL16}
s_lshl_b32 s{sT2}, s{sNT}, 15
s_lshl_b32 s{sT1}, s{sMT}, 5
s_add_u32 s{sT2}, s{sT2}, s{sT1}
s_add_u32 s{sT3}, s{sT2}, 32768
v_and_b32 v{VO}, 31, v{vLANE}
v_lshrrev_b32 v77, 5, v{vLANE}
v_lshlrev_b32 v{VO}, 10, v{VO}
v_lshl_add_u32 v{VO}, v77, 4, v{VO}""".split('\n')
        if cfg.get('XFULL'):
            fill+=f"""v_lshrrev_b32 v{VO}, 3, v{vLANE}
v_and_b32 v77, 7, v{vLANE}
v_lshlrev_b32 v{VO}, 10, v{VO}
v_lshl_add_u32 v{VO}, v77, 4, v{VO}
s_and_b32 s{sT2}, s{sT2}, 0xffffff80
s_lshl_b32 s{sT1}, s{sW}, 13
s_add_u32 s{sT2}, s{sT2}, s{sT1}
s_add_u32 s{sT3}, s{sT2}, 32768""".split('\n')
        XA=vXA
        if M16:
            assert cfg.get('RXD',0); XA=79
            fill=fill[:-4]+f"""v_lshrrev_b32 v77, 5, v{vLANE}
v_and_b32 v{VO}, 15, v{vLANE}
v_lshl_add_u32 v{VO}, v77, 4, v{VO}
v_and_b32 v78, 16, v{vLANE}
v_lshl_add_u32 v{VO}, v{VO}, 10, v78
v_bfe_u32 v79, v{vLANE}, 2, 2
v_lshlrev_b32 v79, 1, v79
v_add3_u32 v79, v79, v78, v77
v_and_b32 v77, 3, v{vLANE}
v_lshl_add_u32 v79, v79, 2, v77
v_lshl_add_u32 v79, v79, 3, s{sXM}""".split('\n')
        fill+=[f"v_xor_b32 v{RD[j-1]}, {j*NS*1024}, v{VW}" for j in (1,2,3)]
        late={}
        if cfg.get('RXD',0):
            assert ka.XIN
            fill+=xsrc(13,sNT)+["v_xor_b32 v12, 128, v13", f"s_mul_i32 s{sT1}, s{sMT}, 98304", f"s_add_u32 s{sT1}, s{sT1}, {WS_XG}", f"s_add_u32 m0, s{sXM}, {L_XS}", f"s_sub_u32 s{sT4}, s{sT1}, 1024",
                  f"s_lshl_b32 s{sT0}, s{sMT}, 6", f"s_add_u32 s{sT0}, s{sT0}, {WS_GBF}", (f"v_lshlrev_b32 v78, 1, v78" if M16 else f"v_and_b32 v78, 32, v{vLANE}")]
            r0=cfg.get('RXD')
            late[r0]=[(f"buffer_load_dwordx4 v13, {sp(rWS,4)}, s{sT1} offen sc1 lds",'rx')]
            late[r0+1]=[(f"buffer_load_dwordx4 v12, {sp(rWS,4)}, s{sT4} offen offset:1024 sc1 lds",'rx')]
            late[r0+2]=[f"buffer_load_dwordx4 {vr(GB+4*q,4)}, v78, {sp(rWS,4)}, s{sT0} offen offset:{16*q} sc1" for q in range(2)]
            late[r0+3+AH]=["@wait rx"]+[f"ds_read_b64_tr_b16 {vr(80+2*q,2)}, v{XA} offset:{L_XS+(q>>1)*1024+(q&1)*256}" for q in range(4)]
            for z in range(4): late[r0+6+AH+z]=[y for k in (2*z,2*z+1) for y in (f"v_lshlrev_b32 v{XF+2*k}, 16, v{80+k}", f"v_and_b32 v{XF+2*k+1}, 0xffff0000, v{80+k}")]
        else:
            fill+=[f"v_accvgpr_read_b32 v{GB+k}, a{AG+k}" for k in range(8)]
            fill+=[f"v_accvgpr_read_b32 v{XF+2*k+1}, a{AX+k}" for k in range(8)]
            for k in range(8): fill+=[f"v_lshlrev_b32 v{XF+2*k}, 16, v{XF+2*k+1}", f"v_and_b32 v{XF+2*k+1}, 0xffff0000, v{XF+2*k+1}"]
        side=list(ctail)+fill
        piece=(lambda n,j,q: 184+16*(2*n+q)+4*j) if M16 else (lambda n,j,q: ACC[n][j&1]+8*(j>>1)+4*q)
        wr=[[f"ds_write_b128 v{VW}, {vr(piece(n,j,q),4)} offset:{L_XS+n*8192+j*2048+q*1024}" for j,q in ([(j,q) for q in range(2) for j in (1,2,3)] if M16 else [(j,q) for j in (2,1,3) for q in range(2)])] for n in range(2)]
        def reads(n): return [f"ds_read_b128 {vr(R[n]+8*(j-1)+4*q,4)}, v{RD[j-1]} offset:{L_XS+n*8192+j*2048+q*1024}" for j in (1,2,3) for q in range(2)]
        def plain(L):
            o=[]
            for x in L:
                m=re.match(r"v_pk_(add|fma)_f32 (.*)",x)
                if not m: o.append(x); continue
                rs=[int(t) for t in re.findall(r"v\[(\d+):",x)]
                o+=[f"v_{m.group(1)}_f32 "+", ".join(f"v{r+e}" for r in rs) for e in range(2)]
            return o
        def final(n):
            r=R[n]; L=[]
            for k in range(0,8,2): L+=[f"v_pk_add_f32 {vr(r+k,2)}, {vr(r+k,2)}, {vr(piece(n,0,k>>2)+(k&3),2)}"]
            for k in range(0,8,2): L+=[f"v_pk_add_f32 {vr(r+8+k,2)}, {vr(r+8+k,2)}, {vr(r+16+k,2)}"]
            for k in range(0,8,2): L+=[f"v_pk_add_f32 {vr(r+k,2)}, {vr(r+k,2)}, {vr(r+8+k,2)}"]
            if M16: L+=[f"v_permlane32_swap_b32 v{r+k}, v{r+4+k}" for k in range(4)]
            for k in range(0,8,2): L+=[f"v_pk_fma_f32 {vr(r+k,2)}, {vr(r+k,2)}, {vr(GB+k,2)}, {vr(XF+8*n+k,2)}"]
            for k in range(0,8,2): L+=[f"v_cvt_pk_bf16_f32 v{8+4*n+k//2}, v{r+k}, v{r+k+1}"]
            if not cfg.get('NOOUT'): L.append(f"buffer_store_dwordx4 {vr(8+4*n,4)}, v{VO}, {sp(rOUT,4)}, s{sT2+n} offen {cfg.get('OST','')}")
            return L
        E0=cfg.get('EARLY0',0); e0=None
        if E0: R[0]=88
        started=set(); g=0; FD=cfg.get('FLAGD2',26)
        if cfg.get('C0AT',999)>=231: poll_check(P,'p0'); stamp(P,14,diag)
        TL=cfg.get('TAILLD',6)
        if TL:
            nt=len(ctail); per=-(-nt//TL)
            while nt>0:
                if s.li<AH and s.can_load(): P.extend(s.load())
                c=min(per,nt); P.extend(side[:c]); side=side[c:]; nt-=c
            while s.nflag<len(ends)-1:
                P.I(f"@wait act{ends[s.nflag]-1}"); P.extend(flag_store(s.nflag)); s.nflag+=1
            while s.li<AH and s.can_load(): P.extend(s.load())
            flag_due[len(ends)-1]=cfg.get('FL2',10)
        stamp(P,15,diag)
        P.I("@mark d")
        for k,(f,n) in enumerate(work):
            while s.li<=k:
                if not s.can_load():
                    P.extend(side); side=[]
                    P.I(f"@wait act{ends[s.nflag]-1}"); P.extend(flag_store(s.nflag)); s.nflag+=1; print('  D: forced flag at',k)
                else: P.extend(s.load())
            for m4 in range(NM):
                if M16:
                    j=(1,2,3,0)[m4]; a=vr(184+16*n+4*j,4)
                    P.I(f"v_mfma_f32_16x16x32_bf16 {a}, {ar(kap(f)+4*j,4)}, {vr(s.BUF[k%s.NB],4)}, {a if (n,j) in started else 0}"); started.add((n,j))
                    free=2-(m4==3); m=m4>>1
                    if not m4&1:
                        if m4==0 and s.li<len(work) and s.li<=k+AH-1 and s.li-s.NB<k and s.can_load():
                            L=s.load(); P.extend(L); free-=len(L)
                        while side and g>=2 and cost(side[0])<=free and not isinstance(side[0],tuple):
                            x=side.pop(0); P.extend([x]); free-=cost(x)
                        continue
                    g+=1
                else:
                    m=m4; a=vr(ACC[n][m],16)
                    P.I(f"v_mfma_f32_32x32x16_bf16 {a}, {ar(8*f+4*m,4)}, {vr(s.BUF[k%s.NB],4)}, {a if (n,m) in started else 0}"); started.add((n,m))
                    g+=1; free=6-m
                if s.nflag<len(ends) and g>=flag_due.get(s.nflag,999):
                    P.I(f"@wait act{ends[s.nflag]-1}"); P.extend(flag_store(s.nflag)); print('  D: flag',s.nflag,'at item',k,'li',s.li); s.nflag+=1; free-=4
                if s.li<len(work) and s.li<=k+AH-(1-m)-(1 if M16 else 0) and s.li-s.NB<k+m and s.can_load():
                    L=s.load(); P.extend(L); free-=len(L)
                if m==0 and k in late:
                    assert not side
                    L=late.pop(k); P.extend(L); free-=len(L)
                if (m or E0==2) and k>nA+1 and wr[0]: P.I(wr[0].pop(0)); free=0
                elif E0 and not wr[0] and e0 is None and m:
                    assert not side and not late
                    P.I("s_waitcnt lgkmcnt(0)\ns_barrier"); e0=g; side=reads(0)+['s_waitcnt lgkmcnt(0)']+plain(final(0)); free-=3
                while side and g>=2 and cost(side[0])<=free and not (e0 is not None and g<e0+3 and not side[0].startswith('ds_')):
                    x=side.pop(0); P.extend([x]); free-=cost(x)
                    if isinstance(x,tuple) and int(x[1][3:])+1 in ends: flag_due[ends.index(int(x[1][3:])+1)]=g+FD
        P.I("@mark end")
        if E0: print('  D: early finish left',len(side),e0)
        rest0=side if E0 else []; side=[] if E0 else side
        assert not side and not late and s.nflag==len(ends) and (e0 is not None or not E0)
        P.extend(wr[0])
        stamp(P,17,diag)
        for i,x in enumerate(wr[1]):
            if i==0: P.extend(rest0[:8]); rest0=rest0[8:]
            P.I(x); P.extend(rest0[:3]); rest0=rest0[3:]
        P.I("s_waitcnt lgkmcnt(0)\ns_barrier")
        if E0: P.extend(reads(1)); P.extend(rest0); P.extend(final(1))
        else: P.extend(reads(0)); P.extend(reads(1)); P.extend(final(0)); P.extend(final(1))
```

```python
from prog import *
from layout import *
import struct
def f32(x): return struct.unpack('<I',struct.pack('<f',x))[0]
LOG2E = 0x3fb8aa3b
XIN = 0
sX,sARE,sAIM,sBRE,sBIM,sCRE,sCIM,sLDT,sDSK,sBX,sWG,sWU,sWD,sC,sWM,sOUT,sDBG,sWS = [8+2*i for i in range(18)]
rR,rWG,rWU,rWD,rOUT,rWS,rWJ = 44,48,52,56,60,64,68
sXCD,sIDX,sP,sW,sTAG,sLD,sDS = 72,73,74,75,76,77,78
sT0,sT1,sT2,sT3,sT4,sT5 = 80,81,82,83,84,85
sWO,sWST,sWA = 86,87,88
sCG,sKE,sFS,sCNT = 26,27,97,98
def sp(a,n=2): return f"s[{a}:{a+n-1}]"
def vr(a,n): return f"v[{a}:{a+n-1}]"
def ar(a,n): return f"a[{a}:{a+n-1}]"
def mksrd(d,b,size):
    return [f"s_mov_b32 s{d}, s{b}", f"s_and_b32 s{d+1}, s{b+1}, 0xffff", f"s_mov_b32 s{d+2}, {size}", f"s_mov_b32 s{d+3}, 0x20000"]
vLANE = 1
vT16,vMC,vMW = 12,13,14
vPAR = 16
vTAB = 24
vRA = 32
vROLE = 40
vFG = 120
vPOLL = 160
vPOL2 = 152
vXF = 192
vHF = 208
vKA,vUA,vYW,vYR,vWRA,vXO,vGR,vL16 = 224,225,226,227,228,229,230,231
vMOD = 232
vKF,vKC,vGW,vSEL1,vSEL2 = 240,241,242,243,244

ONLY=None
import os
LATE0=int(os.environ.get('LATE0','0'))
JIT=os.environ.get('JIT','')
def stamp(P, n, diag):
    if JIT:
        P.I(f"s_waitcnt lgkmcnt(0)\ns_memtime s[100:101]\ns_waitcnt lgkmcnt(0)\ns_cselect_b32 s5, 1, 0\ns_lshr_b32 s100, s100, 3\ns_and_b32 s100, s100, {JIT}\ns_cbranch_scc1 L_jit{len(P.ins)}\ns_sleep 40\nL_jit{len(P.ins)}:\ns_cmp_lg_u32 s5, 0")
    if diag and (ONLY is None or n in ONLY): P.I(f"s_memrealtime s[4:5]\ns_memtime s[100:101]\ns_waitcnt lgkmcnt(0)\nv_writelane_b32 v255, s4, {n}\nv_writelane_b32 v255, s100, {32+n}")
def stamp0_issue(P, diag):
    if diag: P.I("v_mov_b32 v255, 0\ns_memrealtime s[4:5]\ns_memtime s[100:101]")
def stamp0_commit(P, diag):
    if diag: P.I("v_writelane_b32 v255, s4, 0\nv_writelane_b32 v255, s100, 32")
def stamp_out(P, kidx, diag):
    if diag:
        P.I(f"""s_lshl_b32 s4, s2, 10
s_add_u32 s4, s4, {WS_STAMP + kidx*0x40000}
v_lshlrev_b32 v2, 2, v0
buffer_store_dword v255, v2, {sp(rWS,4)}, s4 offen""")

def bf16_round(l):
    u=f32(float(l)); u=(u+0x7fff+((u>>16)&1))&0xffff0000
    return int(struct.unpack('<f',struct.pack('<I',u))[0])
def table_words():
    rec=[]
    for T in range(256):
        a=[]
        for j in range(11):
            lag=2047-8*T-j
            if lag<0: a.append(L_CZ); continue
            lam=bf16_round(lag); b=(lam>>3)&15; i=HI.index(lam-8*b)
            a.append(L_C+i*CP+4*b)
        a.append(0)
        w=T>>6; lane=T&63; ch=w>>1; vh=w&1
        ka_=L_KI+ch*4*KIP+(lane&3)*KIP+2*(2044-16)-3584-192-256*vh+(lane&48)-2*(lane&12)
        ua_=L_H+ch*HP+448-192-256*vh+32*(lane&15)+(lane&48)
        rec.append([a[2*k]|(a[2*k+1]<<16) for k in range(6)]+[ka_,ua_])
    return [rec[T][4*q+k] for q in range(2) for T in range(256) for k in range(4)]

def entry(P, name, diag, nlines, perm):
    P.I(f".globl {name}\n.p2align 8\n.type {name},@function\n{name}:\n@reset")
    ng=(nlines+15)//16; assert ng&(ng-1)==0 and ng<=32
    if LATE0: P.I(f"s_and_b32 s4, s2, 7\ns_cbranch_scc1 L_nolate\ns_sleep {LATE0}\nL_nolate:")
    P.I(f"""s_cmp_ge_u32 s2, 256
s_cbranch_scc1 L_{name}_exit
s_load_dwordx16 s[8:23], s[0:1], 0
s_load_dwordx16 s[24:39], s[0:1], 64
s_load_dwordx4 s[40:43], s[0:1], 128
s_getpc_b64 s[6:7]
L_pc:
s_mov_b64 exec, -1
v_lshrrev_b32 v2, 6, v0
v_and_b32 v{vLANE}, 63, v0
s_lshr_b32 s{sIDX}, s2, 3
v_readfirstlane_b32 s{sW}, v2
s_and_b32 s{sT0}, s{sIDX}, {ng-1}
s_lshl_b32 s{sT0}, s{sT0}, 11
v_lshl_add_u32 v3, v{vLANE}, 5, s{sT0}
s_cmp_lg_u32 s{sW}, 3
s_cbranch_scc1 L_nopf
global_load_dword v15, v3, s[6:7]
L_nopf:""")
    stamp0_issue(P,diag)
    P.I(f"s_and_b32 s{sXCD}, s2, 7")
    if perm: P.I(f"s_lshl_b32 s{sXCD}, s{sXCD}, 2\ns_lshr_b32 s{sXCD}, {hex(sum(v<<(4*k) for k,v in enumerate(perm)))}, s{sXCD}\ns_and_b32 s{sXCD}, s{sXCD}, 7")
    P.I(f"""s_lshl_b32 s{sP}, s{sXCD}, 5
s_add_u32 s{sP}, s{sP}, s{sIDX}""")

def role_addr(P, loc=0):
    P.I(f"""s_cmp_eq_u32 s{sW}, 0
s_cselect_b32 s{sT3}, 8, 1
s_lshl_b32 s{sT2}, s{sT3}, 10
s_lshl_b32 s{sT3}, s{sT3}, 7
s_and_b32 s{sT4}, s{sP}, 7
s_lshl_b32 s{sT4}, s{sT4}, 7""")
    if loc: P.I(f"s_lshl_b32 s{sT0}, s{sIDX}, 9\ns_add_u32 s{sT0}, s{sT0}, s{sXCD}\ns_lshl_b32 s{sT0}, s{sT0}, 7")
    else: P.I(f"s_lshr_b32 s{sT0}, s{sP}, 3\ns_lshl_b32 s{sT0}, s{sT0}, 16\ns_add_u32 s{sT0}, s{sT0}, s{sT4}")
    P.I(f"""s_lshl_b32 s{sT1}, s{sP}, 13
s_cmp_eq_u32 s{sW}, 0
s_cselect_b32 s{sT0}, s{sT0}, s{sT1}
s_and_b32 s{sT5}, s{sW}, 1
s_sub_u32 s92, 7, s{sT5}
s_lshr_b32 s{sT1}, s{sP}, s92
s_lshl1_add_u32 s{sT1}, s{sT5}, s{sT1}
s_lshl_b32 s{sT1}, s{sT1}, 10
s_add_u32 s{sT4}, s{sT4}, s{sT1}
s_and_b32 s{sT1}, s{sP}, 0xf8
s_add_u32 s92, s{sT5}, 2
s_lshl_b32 s{sT1}, s{sT1}, s92
s_and_b32 s{sT5}, s{sT1}, 511
s_mul_i32 s{sT1}, s{sT5}, 6144
s_add_u32 s{sT1}, s{sT1}, s{sT4}
s_mov_b32 s{sT4}, 3145728
s_cmp_lt_u32 s{sW}, 2
s_cselect_b32 s94, s{sT0}, s{sT1}
s_cselect_b32 s{sT2}, s{sT2}, 6144
s_cselect_b32 s79, s{sT3}, {8*6144}
s_cselect_b32 s{rR+2}, 2097152, s{sT4}
s_mov_b32 s{rR+3}, 0x20000
v_lshrrev_b32 v3, 3, v{vLANE}
v_mul_u32_u24 v3, s{sT2}, v3
v_lshrrev_b32 v4, 2, v{vLANE}
v_and_b32 v4, 4, v4
v_and_b32 v5, 7, v{vLANE}
v_xor_b32 v4, v4, v5
v_lshl_add_u32 v22, v4, 4, v3
v_xor_b32 v23, 32, v22
s_lshl_b32 s3, s{sW}, 13
s_add_u32 s3, s3, {L_RR}
v_add_u32 v5, s{sT5}, v{vLANE}
v_and_b32 v5, 511, v5
v_lshlrev_b32 v5, 1, v5
s_lshl_b32 s{sT5}, s{sP}, 9
v_lshl_add_u32 v2, v0, 1, s{sT5}""")
    for i in range(6): P.I(f"v_mov_b32 v{vPAR+i}, 0")
    P.I(f"v_mov_b32 v{vROLE}, 0\ns_lshl_b32 s93, s{sP}, 2")
def param_loads(P, NT):
    P.extend([f"global_load_short_d16_hi v{vPAR+i}, v2, {sp(b)} {NT}" for i,b in enumerate((sARE,sAIM,sBRE,sBIM,sCRE,sCIM))])
def early_loads(P, NT, pfirst):
    if pfirst: param_loads(P,NT)
    P.I(f"""s_load_dword s{sTAG}, {sp(sWS)}, {WS_EPOCH}
s_load_dword s{sLD}, {sp(sLDT)}, s93
s_load_dword s{sDS}, {sp(sDSK)}, s93
s_cmp_lt_u32 s{sW}, 2
s_cselect_b64 {sp(rR)}, {sp(sX)}, {sp(sWM)}
s_and_b32 s{rR+1}, s{rR+1}, 0xffff""")
    P.I(f"global_load_short_d16_hi v{vROLE}, v5, {sp(sC)}")
    P.I(f"""s_add_u32 s6, s6, L_table-L_pc+4096
s_addc_u32 s7, s7, 0
v_lshlrev_b32 v{vT16}, 4, v0""")
def role_loads(P, XNT, late):
    lbl='L_rlb' if late else 'L_rla'
    P.I(f"s_cmp_eq_u32 s{sW}, 3\ns_cbranch_scc{0 if late else 1} {lbl}")
    for u in range(8):
        if u==4 and not late: P.I(f"s_cmp_eq_u32 s{sW}, 2\ns_cbranch_scc1 {lbl}")
        P.I(f"s_add_u32 m0, s3, {u*1024}")
        P.I(f"s_add_u32 s94, s94, s79" if u else "s_nop 0")
        P.I(f"buffer_load_dwordx4 v{22+(u&1)}, {sp(rR,4)}, s94 offen {XNT} lds", tag='rr')
    P.I(f"{lbl}:")
def table_loads(P):
    P.I(f"global_load_dwordx4 {vr(vTAB,4)}, v{vT16}, s[6:7] offset:-4096\nglobal_load_dwordx4 {vr(vTAB+4,4)}, v{vT16}, s[6:7]")

def setup(P, nowd=False, X='', wmap=0):
    P.extend(mksrd(rWS,sWS,WS_USED))
    P.I(f"{f's_cmp_lg_u32 s{sXCD}, 0' if wmap>=2 else f's_cmp_lt_u32 s{sIDX}, 28'}\ns_cselect_b32 s{sT0}, 1835008, 0\ns_cselect_b32 s{sT1}, {WS_USED}, 0")
    for r,b in ((rWG,sWG),(rWU,sWU),(rWD,sWD)): P.extend(mksrd(r,b,1835008 if (nowd and r==rWD) else f"s{sT0}"))
    P.extend(mksrd(rWJ,sWS,f"s{sT1}"))
    if 'w' in X: P.I(f"s_mov_b32 s{rWG+2}, 0\ns_mov_b32 s{rWU+2}, 0")
    if 'm' in X: P.I(f"s_mov_b32 s{rR+2}, 0")
    if 'd' in X: P.I(f"s_mov_b32 s{rWD+2}, 0")
    if 's' in X: P.I(f"s_min_u32 s{rWJ+2}, s{rWJ+2}, {WS_XG}")
    if wmap>=2:
        P.I(f"s_max_u32 s{sFS}, s{sP}, 32\ns_sub_u32 s{sFS}, s{sFS}, 32")
        if wmap==2: P.I(f"s_lshr_b32 s{sCG}, s{sFS}, 3\ns_and_b32 s{sKE}, s{sFS}, 7")
        else: P.I(f"s_mul_i32 s{sKE}, s{sFS}, 586\ns_lshr_b32 s{sKE}, s{sKE}, 14\ns_mul_i32 s{sCG}, s{sKE}, 28\ns_sub_u32 s{sCG}, s{sFS}, s{sCG}")
    elif wmap: P.I(f"s_mov_b32 s{sCG}, s{sIDX}\ns_mov_b32 s{sKE}, s{sXCD}")
    else: P.I(f"""s_and_b32 s{sCG}, s{sXCD}, 3
s_mul_i32 s{sCG}, s{sCG}, 7
s_lshr_b32 s{sT0}, s{sIDX}, 2
s_add_u32 s{sCG}, s{sCG}, s{sT0}
s_and_b32 s{sKE}, s{sXCD}, 4
s_and_b32 s{sT0}, s{sIDX}, 3
s_add_u32 s{sKE}, s{sKE}, s{sT0}""")
    P.I(f"""s_lshl2_add_u32 s{sT0}, s{sCG}, s{sW}
s_mul_i32 s{sT1}, s{sT0}, 147
s_lshr_b32 s{sT1}, s{sT1}, 10
s_mul_i32 s{sT2}, s{sT1}, 7
s_sub_u32 s{sT0}, s{sT0}, s{sT2}
s_mul_i32 s{sT1}, s{sT1}, 231
s_cmp_lt_u32 s{sT0}, {G1}
s_cselect_b32 s{sT2}, {G1}, 1
s_cselect_b32 s{sT3}, 1, 33
s_mul_i32 s{sT0}, s{sT0}, s{sT3}
s_add_u32 s{sT0}, s{sT0}, s{sT1}
s_lshl_b32 s{sT0}, s{sT0}, 10
s_add_u32 s{sT0}, s{sT0}, {WS_WPF}
s_lshl_b32 s{sWST}, s{sT2}, 10
s_mul_i32 s{sT3}, s{sWST}, s{sKE}
s_lshl2_add_u32 s{sWO}, s{sT3}, s{sT0}
s_lshl_b32 s{sT2}, s{sT2}, 15
s_add_u32 s{sWA}, s{sT2}, s{sT0}
s_lshl_b32 s{sT0}, s{sKE}, 7
s_add_u32 s{sWA}, s{sWA}, s{sT0}""")
    L=vLANE
    P.I(f"""v_lshlrev_b32 v{vL16}, 4, v{L}
v_and_b32 v2, 15, v{L}
v_and_b32 v3, 48, v{L}
v_lshrrev_b32 v4, 4, v{L}
v_lshrrev_b32 v5, 5, v{L}
v_and_b32 v6, 3, v{L}
s_mul_i32 s{sT2}, s{sW}, 10240
s_add_u32 s{sT2}, s{sT2}, {L_Y}
v_mul_u32_u24 v7, 320, v4
v_lshl_add_u32 v7, v2, 4, v7
v_add_u32 v{vYW}, s{sT2}, v7
v_lshrrev_b32 v7, 5, v0
v_mul_u32_u24 v7, 1280, v7
v_and_b32 v8, 1, v0
v_mul_u32_u24 v9, 640, v8
v_bfe_u32 v10, v0, 1, 4
v_lshl_add_u32 v9, v10, 4, v9
v_add_u32 v{vYR}, v7, v9
v_lshrrev_b32 v7, 2, v0
{f"s_and_b32 s{sT2}, s{sP}, 7" if XIN else ""}
{f"v_xor_b32 v7, s{sT2}, v7" if XIN else ""}
v_lshlrev_b32 v7, {7 if XIN else 15}, v7
v_lshl_add_u32 v{vXO}, v6, 4, v7
v_mul_u32_u24 v7, {FP}, v2
v_add_u32 v7, v7, v3
v_add_u32 v{vKF}, {L_F}, v7
v_mul_u32_u24 v7, {CP}, v2
s_mul_i32 s{sT2}, s{sW}, {16*CP}
v_add3_u32 v{vKC}, v7, v3, s{sT2}
v_bfe_u32 v7, v{L}, 2, 2
v_cvt_f32_u32 v{vSEL2}, v5
v_and_b32 v9, 31, v{L}
v_lshlrev_b32 v{vMC}, 12, v9
v_and_b32 v9, 8, v{L}
v_lshl_add_u32 v9, v9, 1, v2
v_lshlrev_b32 v{vSEL1}, 12, v9
v_lshl_add_u32 v9, v5, 3, v6
v_bfe_u32 v10, v{L}, 2, 3
v_lshlrev_b32 v11, 4, v10
v_lshl_add_u32 v{vMW}, v9, 12, v11
s_lshl_b32 s{sT2}, s{sW}, 6
s_add_u32 s{sT2}, s{sT2}, {L_GT+256}
v_lshl_add_u32 v10, v10, 3, s{sT2}
v_lshlrev_b32 v11, 8, v5
v_sub_u32 v{vGW}, v10, v11
v_lshlrev_b32 v10, 5, v5
v_add_u32 v{vGR}, {L_GT}, v10
v_and_b32 v9, 1, v4
v_lshl_add_u32 v10, v9, 1, v5
v_lshl_add_u32 v10, v10, 3, v7
v_lshl_add_u32 v10, v10, 1, v9
v_bfe_u32 v11, v{L}, 3, 1
v_lshl_add_u32 v10, v10, 1, v11
v_xor_b32 v10, s{sW}, v10
v_lshl_add_u32 v10, v10, 1, v8
v_bfe_u32 v11, v{L}, 1, 1
v_lshl_add_u32 v10, v10, 1, v11
v_lshlrev_b32 v10, 3, v10
v_add_u32 v{vWRA}, {L_WR}, v10""")
    P.I(f"""v_mul_u32_u24 v7, {HP}, v5
v_and_b32 v9, 31, v{L}
v_min_u32 v9, 29, v9
v_lshl_add_u32 v7, v9, 4, v7
v_add_u32 v7, {L_H}, v7
v_cmp_gt_u32 vcc, 64, v0
v_mov_b32 v9, {L_CZ}
v_mov_b32 v{vFG}, 0
v_cndmask_b32 v7, v9, v7, vcc
v_mov_b32 v{vFG+1}, 0
v_mov_b32 v{vFG+2}, 0
v_mov_b32 v{vFG+3}, 0
ds_write_b128 v7, {vr(vFG,4)}""")
    A0=vRA
    P.I(f"""v_lshrrev_b32 v2, 3, v{L}
v_and_b32 v3, 2, v2
v_mul_u32_u24 v2, 3584, v2
v_and_b32 v4, 7, v{L}
v_xor_b32 v3, v3, v4
v_xor_b32 v4, 4, v3
v_lshl_add_u32 v{A0+2}, v3, 4, v2
v_lshl_add_u32 v{A0+3}, v4, 4, v2
v_and_b32 v8, 1, v{L}
v_bfe_u32 v7, v{L}, 1, 3
v_mul_u32_u24 v7, {KIP}, v7
v_lshl_add_u32 v7, v8, 4, v7
v_add_u32 v{A0+1}, {L_KI+4096}, v7
s_mul_i32 s{sT0}, s{sKE}, {64*3584}
s_lshl_b32 s{sT1}, s{sCG}, 7
s_add_u32 s90, s{sT0}, s{sT1}""")
    if not nowd: P.I(f"""v_lshrrev_b32 v2, 2, v{L}
v_and_b32 v5, 3, v{L}
v_lshlrev_b32 v5, 4, v5
v_lshl_add_u32 v{A0+4}, v2, 10, v5
v_lshrrev_b32 v6, 5, v{L}
v_and_b32 v7, 3, v2
v_lshl_add_u32 v6, v6, 3, v7
v_bfe_u32 v7, v{L}, 4, 1
v_lshl_add_u32 v6, v6, 1, v7
v_lshl_add_u32 v6, v6, 1, v8
v_bfe_u32 v7, v{L}, 1, 1
v_lshl_add_u32 v6, v6, 1, v7
v_lshlrev_b32 v6, 3, v6
v_add_u32 v{A0}, {L_DR}, v6
{"" if wmap>=2 else f"s_mul_i32 s{sFS}, s{sXCD}, 28"}
{"" if wmap>=2 else f"s_add_u32 s{sFS}, s{sFS}, s{sIDX}"}
s_lshr_b32 s{sT2}, s{sFS}, 1
s_lshl_b32 s{sT2}, s{sT2}, 14
s_and_b32 s{sT1}, s{sFS}, 1
s_lshl_b32 s{sT1}, s{sT1}, 9
s_add_u32 s91, s{sT2}, s{sT1}""")

def x_jobs(P, PUB, diag, loc=0):
    R=vROLE; G=vROLE+32; L=vLANE
    P.I(f"s_cmp_eq_u32 s{sW}, 2\ns_cbranch_scc1 L_rj2\ns_cmp_eq_u32 s{sW}, 1\ns_cbranch_scc1 L_rj1")
    P.I(f"""v_and_b32 v2, 7, v{L}
v_lshrrev_b32 v3, 3, v{L}
v_and_b32 v4, 2, v2
v_lshlrev_b32 v4, 1, v4
v_xor_b32 v4, v4, v3
v_lshlrev_b32 v4, 4, v4
v_lshl_add_u32 v4, v2, 7, v4
v_add_u32 v4, {L_RR}, v4
v_xor_b32 v5, 32, v4
v_mul_u32_u24 v3, {4*12288}, v3
v_lshl_add_u32 v2, v2, 4, v3
{f"s_mov_b32 s{sT0}, s{sXCD}" if loc else f"s_and_b32 s{sT0}, s{sP}, 7"}
s_mul_i32 s{sT0}, s{sT0}, {32*12288}
{f"s_lshl_b32 s{sT1}, s{sIDX}, 3" if loc else f"s_and_b32 s{sT1}, s{sP}, 0xf8"}
s_lshl4_add_u32 s{sT0}, s{sT1}, s{sT0}
s_add_u32 s{sT0}, s{sT0}, {WS_XG}""")
    for k in range(12): P.I(f"v_mov_b32 v{G+4*k+3}, s{sTAG}")
    P.I(f"s_waitcnt vmcnt({JW})"); stamp(P,2,diag)
    for r in range(8): P.I(f"ds_read_b128 {vr(R+4*r,4)}, v{4+(r&1)} offset:{r*1024}")
    for g in range(3):
        for j in range(4):
            k=g*4+j
            for e in range(3):
                if 3*g+e<8: P.I(f"v_mov_b32 v{G+4*k+e}, v{R+4*(3*g+e)+j}")
            P.I(f"s_add_u32 s{sT1}, s{sT0}, {j*12288+g*4096}")
            P.I(f"buffer_store_dwordx4 {vr(G+4*k,4)}, v2, {sp(rWS,4)}, s{sT1} offen {'' if loc==1 else PUB}")
    P.I(f"s_waitcnt vmcnt(12)\ns_branch L_xje\nL_rj1:")
    P.I(f"""v_mov_b32 v2, 0
v_mov_b32 v3, 0
v_mov_b32 v4, 0
v_mov_b32 v5, 0
s_mov_b32 s{sT1}, 0x3f803f80
v_add_u32 v6, {L_RR+8192}, v{vL16}
v_mul_u32_u24 v8, 96, v{L}
v_lshlrev_b32 v9, {4 if SGP else 12}, v{L}
s_lshl_b32 s{sT0}, s{sP}, {SGP or 4}
s_add_u32 s{sT0}, s{sT0}, {WS_SG}""")
    P.I(f"v_mov_b32 v{G+3}, s{sTAG}\ns_waitcnt vmcnt({JW})"); stamp(P,2,diag)
    for u in range(8): P.I(f"ds_read_b128 {vr(R+4*u,4)}, v6 offset:{u*1024}")
    for k in range(32):
        P.I(f"v_dot2c_f32_bf16 v{2+(k&1)}, s{sT1}, v{R+k}\nv_dot2c_f32_bf16 v{4+(k&1)}, v{R+k}, v{R+k}")
    P.I("v_add_f32 v2, v2, v3\nv_add_f32 v4, v4, v5")
    for m in ("quad_perm:[1,0,3,2]","quad_perm:[2,3,0,1]","row_half_mirror"):
        P.I(f"v_add_f32_dpp v2, v2, v2 {m} row_mask:0xf bank_mask:0xf\nv_add_f32_dpp v4, v4, v4 {m} row_mask:0xf bank_mask:0xf")
    P.I(f"""v_mul_f32 v2, 0x3b000000, v2
v_mul_f32 v4, 0x3b000000, v4
v_fma_f32 v4, -v2, v2, v4
v_max_f32 v4, 0, v4
v_cvt_pk_bf16_f32 v4, v4, v4
v_and_b32 v4, 0xffff0000, v4
v_add_f32 v4, 0x3727c5ac, v4
v_cvt_pk_bf16_f32 v4, v4, v4
v_and_b32 v4, 0xffff0000, v4
v_sqrt_f32 v4, v4
v_cvt_pk_bf16_f32 v2, v2, v4
ds_bpermute_b32 v{G}, v8, v2
ds_bpermute_b32 v{G+1}, v8, v2 offset:32
ds_bpermute_b32 v{G+2}, v8, v2 offset:64
s_waitcnt lgkmcnt(0)
s_mov_b64 exec, {(1<<(1<<(SGP-4)))-1 if SGP else 7}
buffer_store_dwordx4 {vr(G,4)}, v9, {sp(rWS,4)}, s{sT0} offen {PUB}
s_mov_b64 exec, -1
s_waitcnt vmcnt(1)
s_branch L_xje
L_rj2:""")
    mod_job(P,PUB,diag,1)
    P.I("s_waitcnt vmcnt(1)")
    P.I("L_xje:")
def mod_job(P, PUB, diag, nks):
    R=vROLE; L=vLANE; A0=vRA; w=nks+1
    assert L_MR%128==0
    P.I(f"""v_lshrrev_b32 v2, 4, v{L}
v_bfe_u32 v3, v{L}, 2, 2
v_lshl_add_u32 v4, v2, 3, v3
v_bfe_u32 v3, v{L}, 3, 1
v_lshl_add_u32 v4, v4, 1, v3
v_and_b32 v3, 1, v2
v_lshl_add_u32 v4, v4, 1, v3
v_and_b32 v3, 3, v{L}
v_lshl_add_u32 v4, v4, 2, v3
v_lshlrev_b32 v4, 3, v4
v_add_u32 v8, {L_RR+w*8192}, v4
v_xor_b32 v9, 32, v8
v_xor_b32 v10, 64, v8
v_xor_b32 v11, 96, v8
v_bfe_u32 v4, v{L}, 1, 2
v_lshl_add_u32 v4, v4, 2, v2
v_and_b32 v3, 1, v{L}
v_lshl_add_u32 v4, v4, 1, v3
v_lshlrev_b32 v{A0+5}, 4, v4
s_mov_b32 s{sT0}, {L_SC+(w-2)*128}
v_lshl_add_u32 v6, v{L}, 1, s{sT0}
v_and_b32 v7, 48, v{L}
v_add_u32 v7, s{sT0}, v7
s_lshl_b32 s{sT0}, s{sP}, 9
s_add_u32 s99, s{sT0}, {WS_MG+(w-2)*0x20000}
s_mov_b32 s{sT0}, 0xaaaaaaaa
s_mov_b32 s{sT1}, 0xaaaaaaaa
s_mov_b32 s{sT2}, 0xcccccccc
s_mov_b32 s{sT3}, 0xcccccccc
s_mov_b32 s{sT4}, 0xf0f0f0f0
s_mov_b32 s{sT5}, 0xf0f0f0f0""")
    if nks==1: P.I(f"s_waitcnt vmcnt({12 if JW else 6})")
    P.I(f"""v_mul_f32 v4, 0xbfb8aa3b, v{R}
v_exp_f32 v4, v4
v_add_f32 v4, 1.0, v4
v_rcp_f32 v4, v4
v_mul_f32 v2, v{R}, v4
v_cvt_pk_bf16_f32 v2, v2, v2
ds_write_b16 v6, v2""")
    for ks in range(nks): P.I(f"ds_read_b128 {vr(R+4*ks,4)}, v7 offset:{ks*64}")
    P.I(f"s_waitcnt vmcnt({JW})" if nks==1 else "@wait rr"); stamp(P,2,diag)
    A=R+16; ACC=R+16+32
    seq=[(ks,ct) for ks in range(nks) for ct in range(4)]
    for n,(ks,ct) in enumerate(seq):
        for hf in range(2): P.I(f"ds_read_b64_tr_b16 {vr(A+4*n+2*hf,2)}, v{8+ct} offset:{ks*4096+hf*512}")
    for n,(ks,ct) in enumerate(seq):
        P.I(f"v_mfma_f32_16x16x32_bf16 {vr(ACC+4*ct,4)}, {vr(A+4*n,4)}, {vr(R+4*ks,4)}, {vr(ACC+4*ct,4) if ks else 0}")
    P.I(f"v_mov_b32 v{R+3}, s{sTAG}")
    for ct in range(4):
        for e in range(2): P.I(f"v_cndmask_b32 v{A+2*ct+e}, v{ACC+4*ct+e}, v{ACC+4*ct+2+e}, {sp(sT0)}")
    for c2 in range(2):
        for e in range(2): P.I(f"v_cndmask_b32 v{A+8+2*c2+e}, v{A+4*c2+e}, v{A+4*c2+2+e}, {sp(sT2)}")
    for e in range(2): P.I(f"v_cndmask_b32 v{R+e}, v{A+8+e}, v{A+10+e}, {sp(sT4)}")
    P.I(f"""s_mov_b32 exec_lo, 0x00ff00ff
s_mov_b32 exec_hi, 0x00ff00ff
buffer_store_dwordx4 {vr(R,4)}, v{A0+5}, {sp(rWS,4)}, s99 offen {PUB}
s_mov_b64 exec, -1""")
def raw_wd_loads(P, NT):
    P.I(f"s_lshl_b32 s{sT0}, s{sW}, 11\ns_lshl_b32 s{sT1}, s{sW}, 7\ns_add_u32 m0, s{sT0}, {L_DR}\ns_add_u32 s{sT1}, s{sT1}, s91")
    P.I(f"buffer_load_dwordx4 v{vRA+4}, {sp(rWD,4)}, s{sT1} offen {NT} lds", tag='dr')
    P.I(f"s_add_u32 m0, s{sT0}, {L_DR+1024-64}\nv_add_u32 v245, s{sT0}, v{vRA}")
    P.I(f"buffer_load_dwordx4 v{vRA+4}, {sp(rWD,4)}, s{sT1} offen offset:64 {NT} lds", tag='dr')
def wd_job(P, ST):
    A=vHF+8
    P.I("@wait dr")
    for f in range(2):
        for hf in range(2): P.I(f"ds_read_b64_tr_b16 {vr(A+4*f+2*hf,2)}, v245 offset:{f*1024+hf*256}")
    P.I(f"""s_and_b32 s{sT0}, s{sFS}, 1
s_lshl2_add_u32 s{sT0}, s{sT0}, s{sW}
s_mul_i32 s{sT0}, s{sT0}, {2*112}
s_lshr_b32 s{sT1}, s{sFS}, 1
s_add_u32 s{sT0}, s{sT0}, s{sT1}
s_lshl_b32 s{sT0}, s{sT0}, 10
s_add_u32 s{sT0}, s{sT0}, {WS_WDF}
s_add_u32 s{sT1}, s{sT0}, {112*1024}""")
    for f in range(2):
        P.I(f"buffer_store_dwordx4 {vr(A+4*f,4)}, v{vL16}, {sp(rWJ,4)}, s{sT0+f} offen {ST}", tag='wdst')
def raw_w_loads(P, NT):
    P.I(f"s_mul_i32 s95, s{sW}, {16*3584}\ns_add_u32 s95, s95, s90\ns_lshl_b32 s96, s{sW}, 12")
    for q in range(2):
        for mat,r in ((0,rWG),(1,rWU)):
            P.I(f"s_add_u32 m0, s96, {L_WR+mat*2048+q*1024}")
            P.I(f"s_add_u32 s95, s95, {8*3584}" if (q and not mat) else "s_nop 0")
            P.I(f"buffer_load_dwordx4 v{vRA+2+mat}, {sp(r,4)}, s95 offen {NT} lds", tag='wr')

def cmul(o,a,b,t):
    return [f"v_pk_mul_f32 {vr(t,2)}, {vr(a,2)}, {vr(b,2)} op_sel_hi:[0,1]",
            f"v_pk_fma_f32 {vr(o,2)}, {vr(a,2)}, {vr(b,2)}, {vr(t,2)} op_sel:[1,1,0] op_sel_hi:[1,0,1] neg_lo:[1,0,0]"]
def factor_gen(P, lo=0, hi=99):
    B=vFG; are,aim,bre,bim,cre,cim=[vPAR+i for i in range(6)]
    R1,R8,R128,LOc,TMP,PK = B,B+2,B+4,B+6,B+8,B+12
    Pc=[B+16+2*c for c in range(8)]
    zr,zi,dt=B+32,B+33,B+34; M=[2,4,6]; PH=[8,9,10]
    P.I(f"s_lshr_b32 s{sT0}, s{sW}, 1\ns_mul_i32 s{sT1}, s{sT0}, {64*FP-512}\ns_lshl_b32 s{sT2}, s{sW}, 8\ns_add_u32 m0, s{sT1}, s{sT2}")
    P0=P
    if lo: P=Prog()
    P.I(f"""s_lshl_b32 s{sT0}, s{sT0}, 4
s_lshr_b32 s{sT1}, s{sLD}, s{sT0}
s_lshl_b32 s{sT1}, s{sT1}, 16
v_mov_b32 v{dt}, {hex(LOG2E)}
v_mul_f32 v{dt}, s{sT1}, v{dt}
v_exp_f32 v{dt}, v{dt}""")
    P.extend(cmul(Pc[0],cre,bre,TMP))
    P.I(f"""v_cvt_pk_bf16_f32 v{dt}, v{dt}, v{dt}
v_and_b32 v{dt}, 0xffff0000, v{dt}
v_mul_f32 v{zr}, v{dt}, v{are}
v_mul_f32 v{zi}, v{dt}, v{aim}
v_mul_f32 v{zr}, {hex(LOG2E)}, v{zr}
v_mul_f32 v{zi}, 0.15915494, v{zi}
v_pk_mul_f32 {vr(Pc[0],2)}, {vr(Pc[0],2)}, {vr(dt,2)} op_sel_hi:[1,0] neg_hi:[1,0]""")
    cx=((R1,1,True),(R8,8,False),(R128,128,True))
    for (o,sc,cj),m,ph in zip(cx,M,PH):
        if sc==1: P.I(f"v_exp_f32 v{m}, v{zr}\nv_fract_f32 v{ph}, v{zi}")
        else: P.I(f"v_mul_f32 v{m}, {hex(f32(sc))}, v{zr}\nv_mul_f32 v{ph}, {hex(f32(sc))}, v{zi}\nv_exp_f32 v{m}, v{m}\nv_fract_f32 v{ph}, v{ph}")
        P.I(f"v_cos_f32 v{o}, v{ph}\nv_sin_f32 v{o+1}, v{ph}")
    for (o,sc,cj),m,ph in zip(cx,M,PH):
        P.I(f"v_pk_mul_f32 {vr(o,2)}, {vr(o,2)}, {vr(m,2)} op_sel_hi:[1,0]" + (" neg_hi:[1,0]" if cj else ""))
    P=P0
    steps_lo=[('one',48),('put',49,R8)]+[('mul',48+b,LOc,(R8 if b==2 else LOc),R8) for b in range(2,16)]
    steps_hi=[('put',0,Pc[0])]+[('mul',c,Pc[c],Pc[c-1],R1) for c in range(1,8)]
    row=8
    for e in range(1,17):
        cs = range(8) if e<2 else range(0,8,2) if e<4 else (0,4) if e<8 else (0,)
        for c in cs:
            assert HI[row]==128*e+c
            steps_hi.append(('mul',row,Pc[c],Pc[c],R128)); row+=1
    for k,s in enumerate(steps_lo+steps_hi):
        if not lo<=k<hi: continue
        kk=PK+(k&3)
        if s[0]=='one': P.I(f"v_mov_b32 v{kk}, 0x3f80")
        else:
            if s[0]=='mul': P.extend(cmul(s[2],s[3],s[4],TMP+2*(k&1)))
            P.I(f"v_cvt_pk_bf16_f32 v{kk}, v{s[2]}, v{s[2]+1}")
        P.I(f"ds_write_addtid_b32 v{kk} offset:{L_F+s[1]*FP}")

vKH=156
def kgen_init(P):
    ACC=vHF
    P.I(f"""s_lshl_b32 s{sT0}, s{sDS}, 16
s_and_b32 s{sT1}, s{sDS}, 0xffff0000
v_cmp_eq_u32 vcc, 0, v0
v_mov_b32 v2, s{sT0}
v_mov_b32 v3, s{sT1}
s_mul_i32 s{sT2}, s{sW}, {16*FP}
v_cndmask_b32 v{ACC}, 0, v2, vcc
v_cndmask_b32 v{ACC+4}, 0, v3, vcc
v_add_u32 v{vKH}, s{sT2}, v{vKF}""")
    for r in (1,2,3,5,6,7): P.I(f"v_mov_b32 v{ACC+r}, 0")
def kgen(P, diag, mid=[], skip=0, order=0):
    A=vROLE; ACC=vHF
    Q=Prog(); table_unpack(Q); tu=[x.text for x in Q.ins]
    P.I(f"s_cmp_eq_u32 s{sW}, 3\ns_cbranch_scc1 L_wdjob\ns_waitcnt lgkmcnt(0)\ns_barrier")
    def rd(n):
        ks,ch=n>>1,n&1; b=A+8*(n%9)
        return [f"ds_read_b128 {vr(b,4)}, v{vKF} offset:{ch*64*FP+48*FP+ks*64}", f"ds_read_b128 {vr(b+4,4)}, v{vKH} offset:{ch*64*FP+ks*64}"]
    for n in range(7): P.extend(rd(n))
    P.extend(tu[:5])
    m2=[[Ins(x.text,x.tag) for x in g] for g in mid]; mid=list(mid)
    for n in range(16):
        if mid and n>=skip: P.extend(mid.pop(0))
        b=A+8*(n%9); a=vr(ACC+4*(n&1),4)
        P.I(f"v_mfma_f32_16x16x32_bf16 {a}, {vr(b,4)}, {vr(b+4,4)}, {a}")
        if n+7<16: P.extend(rd(n+7))
    P.extend(tu[5:])
    for r in range(4): P.I(f"v_cvt_pk_bf16_f32 v{8+r}, v{ACC+r}, v{ACC+4+r}")
    P.I(f"ds_write_b128 v{vKC}, v[8:11]\ns_branch L_kgen_end\nL_wdjob:")
    P.I("s_waitcnt lgkmcnt(0)\ns_barrier")
    P.extend(tu)
    if order==0:
        for g in m2: P.extend(g)
    mod_job(P,'sc1',diag,2)
    if order==1:
        for g in m2: P.extend(g)
    P.I(f"ds_write_b128 v{vRA+1}, {vr(ACC,4)}")
    P.I("L_kgen_end:")

def poll_groups(extra=None, XL='sc1', xfirst=0, SL='sc1'):
    Q=Prog(); poll_loads(Q,XL,xfirst,SL); G=[[]]
    if extra: extra(Q)
    for x in Q.ins:
        G[-1].append(x)
        if x.kind=='vmem': G.append([])
    return G[:-1]
def poll_loads(P, XL='sc1', xfirst=0, SL='sc1'):
    LD='sc1'
    P.I(f"s_mul_i32 s94, s{sP}, 12288\ns_add_u32 s94, s94, {WS_XG}")
    X=[(f"s_add_u32 s94, s94, 4096\n" if g else "")+f"buffer_load_dwordx4 {vr(vPOLL+4*g,4)}, v{vT16}, {sp(rWS,4)}, s94 offen {XL}" for g in range(3)]
    S=[f"s_mov_b32 s79, {WS_SG+g*4096}\nbuffer_load_dwordx4 {vr(vPOLL+12+4*g,4)}, v{vT16}, {sp(rWS,4)}, s79 offen {LD}" for g in range(3)]
    if SGP: S=[(f"s_mov_b32 s79, {WS_SG}\nv_lshlrev_b32 v157, {SGP}, v0\n" if g==0 else "")+f"buffer_load_dwordx4 {vr(vPOLL+12+4*g,4)}, v157, {sp(rWS,4)}, s79 offen offset:{16*g} {SL}" for g in range(3)]
    M=[f"s_lshl4_add_u32 s3, s{sP}, {WS_MG}\nbuffer_load_dwordx4 {vr(vPOLL+24,4)}, v{vMC}, {sp(rWS,4)}, s3 offen {LD}"]
    for t in (X+S+M if xfirst==1 else S+M+X if xfirst==2 else M+S+X if xfirst==3 else [y for p in zip(X,S) for y in p]+M): P.I(t, tag='pollx' if t in X else 'poll')
vQ=144
def poll2_loads(P):
    P.I(f"""s_lshl4_add_u32 s3, s{sP}, {WS_MG+0x20000}
buffer_load_dwordx4 {vr(vQ,4)}, v{vSEL1}, {sp(rWS,4)}, s3 offen sc1
s_lshl2_add_u32 s3, s{sKE}, s{sW}
s_lshl_b32 s3, s3, 7
s_add_u32 s3, s3, {WS_MG+0x20000+8*4096}
buffer_load_dwordx4 {vr(vQ+4,4)}, v{vMW}, {sp(rWS,4)}, s3 offen sc1
s_add_u32 s3, s3, {4*4096}""")
    P.I(f"buffer_load_dwordx4 {vr(vQ+8,4)}, v{vMW}, {sp(rWS,4)}, s3 offen sc1", tag='poll2')
def poll2_work(ST):
    mc,mw=vQ,vQ+4; dpp=" row_mask:0xf bank_mask:0xf"
    L=[["L_p2_chk:","@wait poll2",f"v_min3_u32 v2, v{vQ+3}, v{vQ+7}, v{vQ+11}",f"v_max3_u32 v3, v{vQ+3}, v{vQ+7}, v{vQ+11}",f"v_min_u32 v2, s{sTAG}, v2",f"v_max_u32 v3, s{sTAG}, v3",
        "v_cmp_ne_u32 vcc, v2, v3","s_cbranch_vccnz L_q_retry","L_q_ok:"]]
    L[0][0]="L_q_chk:"
    X=[f"v_add_f32 v{mw}, v{mw}, v{vQ+8}",f"v_add_f32 v{mw+1}, v{mw+1}, v{vQ+9}"]
    for m in ("quad_perm:[1,0,3,2]","quad_perm:[2,3,0,1]"):
        X+=[f"v_add_f32_dpp v{r}, v{r}, v{r} {m}{dpp}" for r in (mc,mc+1,mw,mw+1)]
    X+=[f"v_add_f32_dpp v{r}, v{r}, v{r} row_half_mirror{dpp}" for r in (mc,mc+1)]
    X+=[f"v_cvt_pk_bf16_f32 v{mw+1}, v{mw}, v{mw+1}", f"v_cvt_pk_bf16_f32 v{mc+1}, v{mc}, v{mc+1}",
        f"v_lshlrev_b32 v{mw}, 16, v{mw+1}", f"v_and_b32 v{mw+1}, 0xffff0000, v{mw+1}", f"v_lshlrev_b32 v{mc}, 16, v{mc+1}", f"v_and_b32 v{mc+1}, 0xffff0000, v{mc+1}",
        f"v_add_f32 v{mw}, v{mw}, v{vSEL2}", f"v_add_f32 v{mw+1}, v{mw+1}, v{vSEL2}", f"v_cvt_pk_bf16_f32 v{mw+1}, v{mw}, v{mw+1}",
        f"v_lshlrev_b32 v{mw}, 16, v{mw+1}", f"v_and_b32 v{mw+1}, 0xffff0000, v{mw+1}", f"ds_write_b64 v{vGW}, {vr(mw,2)}"]
    late=[f"v_mov_b32_dpp v{vMOD+4+2*k+e}, v{mc+e} row_newbcast:{8*k}{dpp}" for k in range(2) for e in range(2)]
    return L[0],X,late
BACKOFF=0; PREW=0; SGP=0
def writeback(cnt, lbl, on):
    if not on: return (["s_waitcnt vmcnt(0)"] if PREW else [])+([f"s_sleep {BACKOFF}"] if BACKOFF else [])
    return [f"s_and_b32 s4, s{cnt}, 3","s_cmp_lg_u32 s4, 0",f"s_cbranch_scc1 {lbl}","buffer_wbl2 sc1","s_waitcnt vmcnt(0)",f"{lbl}:"] if on else []
def retry2_block(P, loc=0, mask=0):
    P.I(f"L_q_retry:\ns_add_u32 s{sCNT}, s{sCNT}, 1\ns_cmp_gt_u32 s{sCNT}, 20000\n@loopok\ns_cbranch_scc1 L_q_ok")
    P.extend(writeback(sCNT,'L_q_nowb',loc))
    if mask: P.I("s_mov_b64 exec, vcc")
    poll2_loads(P)
    if mask: P.I("s_mov_b64 exec, -1")
    P.I("s_waitcnt vmcnt(0) lgkmcnt(0)\ns_branch L_q_chk")

vGA=140
def table_unpack(P):
    P.I(f"v_mov_b32 v{vUA}, v{vTAB+7}\nv_mov_b32 v{vKA}, v{vTAB+6}")
    for j in range(11):
        P.I(f"v_lshrrev_b32 v{vGA+j}, 16, v{vTAB+j//2}" if j&1 else f"v_and_b32 v{vGA+j}, 0xffff, v{vTAB+j//2}")
def k_image(P, G, npre, skip):
    E=vROLE+40; O=vROLE; GA=vGA
    for _ in range(npre): P.extend(G.pop(0))
    P.I(f"""s_mov_b32 s{sT4}, 0x05040100
s_mov_b32 s{sT5}, 0x07060302
v_add_u32 v2, {L_KI}, v{vT16}
s_waitcnt lgkmcnt(0)
s_barrier""")
    for j in range(11): P.I(f"ds_read_b32 v{E+j}, v{GA+j}")
    k=0
    for c in (3,2,1,0):
        for ch in range(2):
            o=O+4*k; k+=1
            for i in range(4):
                j=3-c+2*i
                P.I(f"v_perm_b32 v{o+i}, v{E+j+1}, v{E+j}, s{sT4+ch}")
            P.I(f"ds_write_b128 v2, {vr(o,4)} offset:{(ch*4+c)*KIP}")
            if G and k>skip: P.extend(G.pop(0))
    for g in G: P.extend(g)

def retry_block(P, loc=0, mask=0):
    P.I(f"L_ka_retry:\ns_add_u32 s{sCNT}, s{sCNT}, 1\ns_cmp_gt_u32 s{sCNT}, 20000\n@loopok\ns_cbranch_scc1 L_ka_ok")
    P.extend(writeback(sCNT,'L_ka_nowb',loc))
    if mask:
        G=poll_groups(None,'sc1',3)
        P.extend(G[0]); P.I("s_mov_b64 exec, vcc")
        for g in G[1:]: P.extend(g)
        P.I("s_mov_b64 exec, -1")
    else: poll_loads(P)
    P.I("s_waitcnt vmcnt(0) lgkmcnt(0)\ns_branch L_ka_chk")

def make_h(P, diag, q2=False):
    Q=vPOLL; mc=Q+24; Mm=vROLE; Mr=vROLE+8; O=vROLE+16; A=vROLE+24; B=vROLE+40
    dpp=" row_mask:0xf bank_mask:0xf"
    P.I(f"s_mov_b32 s{sCNT}, 0\nv_add_u32 v4, {L_H+480}, v{vT16}\nL_ka_chk:\n@wait poll")
    chain=[]
    for m in ("quad_perm:[1,0,3,2]","quad_perm:[2,3,0,1]","row_half_mirror","row_mirror"):
        chain.append([f"v_add_f32_dpp v{r}, v{r}, v{r} {m}{dpp}" for r in (mc,mc+1)])
    chain+=[[f"v_cvt_pk_bf16_f32 v{mc}, v{mc}, v{mc+1}", f"v_mov_b32 v{mc+1}, v{mc}"],
            [f"v_permlane16_swap_b32 v{mc}, v{mc+1}", f"v_lshlrev_b32 v{vMOD}, 16, v{mc}", f"v_and_b32 v{vMOD+1}, 0xffff0000, v{mc}", f"v_lshlrev_b32 v{mc}, 16, v{mc+1}", f"v_and_b32 v{mc+1}, 0xffff0000, v{mc+1}"],
            [f"v_add_f32 v{mc}, 1.0, v{mc}", f"v_add_f32 v{mc+1}, 1.0, v{mc+1}", f"v_cvt_pk_bf16_f32 v{mc}, v{mc}, v{mc+1}"],
            [f"v_lshlrev_b32 v{vMOD+2}, 16, v{mc}", f"v_and_b32 v{vMOD+3}, 0xffff0000, v{mc}"]]
    for r in range(8):
        st=Q+12+4*(r//3)+r%3
        P.extend(chain[r])
        P.I(f"v_and_b32 v{Mr+r}, 0xffff0000, v{st}\nv_lshlrev_b32 v{Mm+r}, 16, v{st}\nv_rcp_f32 v{Mr+r}, v{Mr+r}")
    P.I(f"""v_min3_u32 v2, s{sTAG}, v{Q+27}, v{Q+15}
v_max3_u32 v3, s{sTAG}, v{Q+27}, v{Q+15}
v_min3_u32 v2, v2, v{Q+19}, v{Q+23}
v_max3_u32 v3, v3, v{Q+19}, v{Q+23}""")
    for ch in range(2):
        for r in range(0,8,2): P.I(f"v_pk_mul_f32 {vr(A+8*ch+r,2)}, {vr(Mr+r,2)}, {vr(vMOD+2,2)} op_sel:[0,{ch}] op_sel_hi:[1,{ch}]")
    for ch in range(2):
        for r in range(0,8,2): P.I(f"v_pk_fma_f32 {vr(B+8*ch+r,2)}, {vr(Mm+r,2)}, {vr(A+8*ch+r,2)}, {vr(vMOD,2)} op_sel:[0,0,{ch}] op_sel_hi:[1,1,{ch}] neg_lo:[1,0,0] neg_hi:[1,0,0]")
    P.I(f"""@wait pollx
v_min3_u32 v2, v2, v{Q+3}, v{Q+7}
v_max3_u32 v3, v3, v{Q+3}, v{Q+7}
v_min_u32 v2, v2, v{Q+11}
v_max_u32 v3, v3, v{Q+11}
v_cmp_ne_u32 vcc, v2, v3""")
    xr=lambda r: Q+4*(r//3)+r%3
    P.I(f"v_lshlrev_b32 v{vXF}, 16, v{xr(0)}\ns_cbranch_vccnz L_ka_retry\nL_ka_ok:")
    if diag: P.I(f"s_add_u32 s{sCNT}, s{sCNT}, 1\nv_writelane_b32 v255, s{sCNT}, 31")
    stamp(P,11,diag)
    if q2: poll2_loads(P)
    for ch in range(2):
        for r in range(8):
            if ch or r: P.I(f"v_and_b32 v{vXF+8+r}, 0xffff0000, v{xr(r)}" if ch else f"v_lshlrev_b32 v{vXF+r}, 16, v{xr(r)}")
        for r in range(0,8,2): P.I(f"v_pk_fma_f32 {vr(A+8*ch+r,2)}, {vr(vXF+8*ch+r,2)}, {vr(A+8*ch+r,2)}, {vr(B+8*ch+r,2)}")
        for r in range(0,8,2): P.I(f"v_cvt_pk_bf16_f32 v{O+4*ch+r//2}, v{A+8*ch+r}, v{A+8*ch+r+1}")
        P.I(f"ds_write_b128 v4, {vr(O+4*ch,4)} offset:{ch*HP}")

def gb_store(P, ST):
    P.I(f"""s_cmp_lg_u32 s{sW}, 2
s_cbranch_scc1 L_nogb
s_lshl3_add_u32 s{sT2}, s{sP}, {WS_GBF}
s_mov_b64 exec, 1
buffer_store_dwordx2 {vr(vMOD+6,2)}, v{vL16}, {sp(rWS,4)}, s{sT2} offen {ST}
s_mov_b64 exec, -1
L_nogb:""")
def w_side(ST):
    RAW=vPOLL; WP=vPOLL+16; GB=[48,64,80,96]; U=112; S1,S2=vHF,vHF+2
    rd=[]; main=[]; sums=[]
    for k in range(4):
        g=GB[k]
        rd.append([f"ds_read_b64_tr_b16 {vr(RAW+4*k+2*hf,2)}, v{vWRA} offset:{k*4096+hf*512}" for hf in range(2)]
                 +[f"ds_read_b128 {vr(g+4*q,4)}, v{vGR} offset:{k*64+q*16}" for q in range(2)])
        L=[]
        for d in range(4):
            u=U+8*k+2*d
            L+=[f"v_lshlrev_b32 v{u}, 16, v{RAW+4*k+d}", f"v_and_b32 v{u+1}, 0xffff0000, v{RAW+4*k+d}",
                f"v_mul_f32 v{g+2*d}, v{u}, v{g+2*d}", f"v_mul_f32 v{g+2*d+1}, v{u+1}, v{g+2*d+1}", f"v_cvt_pk_bf16_f32 v{WP+4*k+d}, v{g+2*d}, v{g+2*d+1}"]
        L.append((f"buffer_store_dwordx4 {vr(WP+4*k,4)}, v{vL16}, {sp(rWJ,4)}, s{sWO} offen {ST}",'wpst'))
        if k<3: L.append(f"s_add_u32 s{sWO}, s{sWO}, s{sWST}")
        main.append(L)
        for i in range(8):
            e=i&1; first=(k==0 and i<2)
            sums.append(f"v_mul_f32 v{S2+e}, v{U+8*k+i}, v{g+8+i}" if first else f"v_fmac_f32 v{S2+e}, v{U+8*k+i}, v{g+8+i}")
            if k==0 and i<2: continue
            sums.append(f"v_add_f32 v{S1+e}, v{g+e}, v{g+i}" if (k==0 and i<4) else f"v_add_f32 v{S1+e}, v{S1+e}, v{g+i}")
    rdsb=[f"ds_read_b128 {vr(GB[k]+8+4*q,4)}, v{vGR} offset:{256+k*64+q*16}" for k in range(4) for q in range(2)]
    tail=[f"v_add_f32 v{S1}, v{S1}, v{S1+1}", f"v_add_f32 v{S2}, v{S2}, v{S2+1}", f"v_mov_b32 v{S1+1}, v{S1}", f"v_mov_b32 v{S2+1}, v{S2}",
          f"v_lshlrev_b32 v2, 2, v{vLANE}", "s_nop 0",
          f"v_permlane32_swap_b32 v{S1}, v{S1+1}", f"v_permlane32_swap_b32 v{S2}, v{S2+1}",
          f"v_add_f32 v{S1}, v{S1}, v{S1+1}", f"v_add_f32 v{S2}, v{S2}, v{S2+1}", f"v_cvt_pk_bf16_f32 v{S1}, v{S1}, v{S2}",
          "s_mov_b32 exec_hi, 0", (f"buffer_store_dword v{S1}, v2, {sp(rWJ,4)}, s{sWA} offen {ST}",'auxst'), "s_mov_b64 exec, -1"]
    return rd,main,rdsb,sums,tail

def conv_reads(vi):
    b=vi&1; o=192-64*vi
    U=[(f"ds_read_b128 {ar(64+32*b+4*k,4)}, v{vUA} offset:{512*k+o}",f"c{vi}_{k}") for k in range(8)]
    K=[[(f"ds_read_b64 {ar(32*b+4*k+2*hf,2)}, v{vKA} offset:{512*(7-k)+o+8*hf}",f"c{vi}_{k}") for hf in range(2)] for k in range(8)]
    return U,K
def conv(P, ST, cfg, midbar, wdj, wd0, H={}):
    ACC=16
    order=sorted([(u,s) for u in range(8) for s in range(8) if u+s<8], key=lambda t:(t[1],t[0]))
    rd,main,rdsb,sums,tail=w_side(ST)
    chk,work,bc=poll2_work(ST)
    Q=Prog(); gb_store(Q,ST); gbs=[[x.text for x in Q.ins]]
    P.extend(conv_reads(0)[0])
    v2s=list(H.get('v2side',[])); v3m=list(H.get('v3mem',[])); go=False
    first=set(); side=[]; QAT=cfg.get('QAT',20); LV=cfg.get('LV',1); FV=cfg.get('FV',LV); SL=cfg.get('SUMLATE',0)
    for vi in range(4):
        b=vi&1; nxt=[]
        if vi==LV: nxt+=[(x,'wtr') for r in rd[:2] for x in r]+wdj[:4]
        if vi<3:
            U,K=conv_reads(vi+1); nxt+=[y for k in range(8) for y in [U[k]]+K[k]]
        if vi==0 and LV: side+=work
        if vi==1 and LV>1: side+=bc+gbs
        if vi==LV: side+=['@wait wtr']+rd[2]+rd[3]+main[0]+wdj[4:]+main[1]+([] if SL else rdsb)+main[2]+main[3]+(bc+gbs if LV<=1 else [])+([] if SL else sums)
        waits = {0:0,8:1,15:7} if vi==0 else {0:7}
        start = 8 if vi==LV else QAT+1 if vi==0 else 0
        for n,(u,s) in enumerate(order if (vi==0 or not cfg.get('ORD',1)) else sorted(order,key=lambda t:(t[0]+t[1],t[0]))):
            t=u+s; a=vr(ACC+4*t,4)
            if n in waits: P.I(f"@wait c{vi}_{waits[n]}")
            P.I(f"v_mfma_f32_16x16x32_bf16 {a}, {ar(32*b+4*u,4)}, {ar(64+32*b+4*s,4)}, {a if t in first else 0}"); first.add(t)
            slots=2-((n+1) in waits or n==35)
            if vi==0 and FV==0 and n==0: P.extend(midbar); continue
            if vi in (LV,FV) and n==0 and vi:
                P.I("@wait"+(" wr dr" if vi==LV else "")+(" wdst" if vi==FV else "")+"\ns_waitcnt lgkmcnt(0)\ns_barrier")
                if vi==FV: P.extend(midbar)
                continue
            if vi==0 and n==QAT and LV: P.extend(chk); continue
            if (vi,n) in H.get('hook',{}):
                if vi==3: assert not v2s; go=True
                P.extend(H['hook'][(vi,n)]); slots-=len(H['hook'][(vi,n)])
            elif go and v3m and n%cfg.get('WDVS',2)==0:
                x=v3m.pop(0); P.extend(x); slots-=len(x)
            if nxt:
                P.extend([nxt.pop(0)]); slots-=1
                if n<start and slots and nxt: P.extend([nxt.pop(0)]); slots-=1
            while slots>0 and wd0 and vi==0 and not nxt and n<QAT: P.extend([wd0.pop(0)]); slots-=1
            while slots>0 and v2s and vi==0 and not nxt and (n<QAT and len(v2s)>2 or n>QAT and not side): P.extend([v2s.pop(0)]); slots-=1
            while slots>0 and side and n>=start:
                x=side.pop(0)
                if isinstance(x,list): P.extend(x); slots=0
                else: P.extend([x]); slots-=1
        assert not nxt, len(nxt)
        if vi==0 and LV: P.extend(side+wd0+v2s); print('  conv step 0 spill',len(side),len(wd0),len(v2s)); side=[]; wd0=[]; v2s=[]
        print('  conv step',vi,'side backlog',len(side))
    for x in v3m: side+=x
    assert not any(isinstance(x,list) for x in side)
    if SL: return ACC,side,rdsb+sums+tail
    return ACC,side+tail,[]

def conv_epilogue(P, ACC, tail, XST, pre=[], prebar=[], postbar=[], tmax=99, after=[]):
    tail=list(tail); P.extend(pre)
    for t in range(8):
        P.I(f"ds_write_b128 v{vYW}, {vr(ACC+4*t,4)} offset:{1280*t}")
        k=min(max(5,-(-len(tail)//(8-t))),len(tail),tmax)
        if len(tail)-k<4: k=len(tail)
        P.extend(tail[:k]); tail=tail[k:]
    P.extend(prebar)
    P.I(f"s_mul_i32 s{sT0}, s{sP}, {12288 if XIN else 128}\ns_add_u32 s{sT0}, s{sT0}, {WS_XG if XIN else WS_X1B}\ns_waitcnt lgkmcnt(0)\ns_barrier")
    Y=16
    for ch in range(2):
        for g in range(2):
            for vh in range(2):
                P.I(f"ds_read_b128 {vr(Y+16*ch+8*vh+4*g,4)}, v{vYR} offset:{L_Y+(2*ch+vh)*10240+320*g}")
    P.extend(postbar)
    for ch in range(2):
        y=Y+16*ch
        for r in range(0,8,2): P.I(f"v_pk_add_f32 {vr(y+r,2)}, {vr(y+r,2)}, {vr(y+8+r,2)}")
        for r in range(0,8,2): P.I(f"v_pk_fma_f32 {vr(y+r,2)}, {vr(y+r,2)}, {vr(vMOD+4,2)}, {vr(vXF+8*ch+r,2)} op_sel:[0,{ch},0] op_sel_hi:[1,{ch},1]")
        for r in range(0,8,2): P.I(f"v_cvt_pk_bf16_f32 v{4+4*ch+r//2}, v{y+r}, v{y+r+1}")
        P.I(f"buffer_store_dwordx4 {vr(4+4*ch,4)}, v{vXO}, {sp(rWS,4)}, s{sT0} offen offset:{64*ch} {XST}", tag='x1st')
    print('  after the x1 stores:', len(tail), '+', len(after))
    P.extend(tail); P.extend(after)

def body(P, n, diag, cfg, H):
    NT=cfg.get('NT','nt'); ST='sc1'
    entry(P,n,diag,256,cfg.get('PERM',[2,3,0,5,1,7,4,6] if cfg.get('QSYNC',0) else None)); role_addr(P,cfg.get('LOC',0))
    P.I("s_waitcnt lgkmcnt(0)"); stamp0_commit(P,diag)
    if cfg.get('WSB',0): P.I(f"s_add_u32 s{sWS}, s{sWS}, {cfg['WSB']<<20}\ns_addc_u32 s{sWS+1}, s{sWS+1}, 0")
    po=cfg.get('PORD',0); m2=cfg.get('M2AT',0); global JW
    assert not (po and cfg.get('CUT',0)) and not (m2 and cfg.get('CUT',0))
    JW=(8 if po else 0)
    early_loads(P,NT,not po)
    role_loads(P,cfg.get('XNT',NT),0)
    if po: param_loads(P,NT)
    table_loads(P); setup(P,False,cfg.get('X',''),cfg.get('WMAP',0) or cfg.get('QSYNC',0)); P.extend(H['setup'])
    if m2==0: role_loads(P,NT,1)
    P.I(f"s_waitcnt lgkmcnt(0)\ns_or_b32 s{sTAG}, s{sTAG}, 0x7f800000\ns_add_u32 s{sTAG}, s{sTAG}, 1\ns_or_b32 s{sTAG}, s{sTAG}, 0x7f800000\ns_barrier")
    stamp(P,1,diag)
    kgen_init(P)
    H['idle'](P)
    P.I("@forget "+" ".join(str(r) for r in list(range(vPAR,vPAR+6))+[vROLE]+list(range(vTAB,vTAB+8))))
    cut=cfg.get('CUT',0)
    if cut:
        P.I(f"s_waitcnt vmcnt(10)\ns_cmp_lg_u32 s{sW}, 2\ns_cbranch_scc1 L_f1\ns_waitcnt vmcnt(6)\nL_f1:")
        P.I("@forget "+" ".join(str(r) for r in list(range(vPAR,vPAR+6))+[vROLE]+list(range(vTAB,vTAB+8))))
        factor_gen(P,0,cut)
        stamp(P,10,diag)
        P.I(f"s_cmp_eq_u32 s{sW}, 3\ns_cbranch_scc1 L_xje")
    x_jobs(P,'sc1',diag,cfg.get('LOC',0))
    P.I("@forget "+" ".join(str(r) for r in list(range(vPAR,vPAR+6))+[vROLE]+list(range(vTAB,vTAB+8))))
    stamp(P,3,diag)
    da,wa=cfg.get('DAT',0),cfg.get('WAT',1)
    def raws(k):
        if da==k: raw_wd_loads(P,cfg.get('DNT',NT))
        if wa==k: raw_w_loads(P,NT)
    if m2==1: role_loads(P,NT,1)
    raws(0)
    factor_gen(P,cut)
    stamp(P,4,diag)
    if m2==2: role_loads(P,NT,1)
    raws(1)
    G=poll_groups((lambda Q: raw_w_loads(Q,NT)) if wa==3 else None, cfg.get('XLP','') if cfg.get('LOC',0)==1 else 'sc1', cfg.get('XFIRST',0), '')
    for _ in range(cfg.get('PEARLY',0)): P.extend(G.pop(0))
    npm=cfg.get('PMID',0); mid=G[:npm]; G=G[npm:]
    if wa==5:
        Q=Prog(); raw_w_loads(Q,NT); W4=[[]]
        for x in Q.ins:
            W4[-1].append(x)
            if x.kind=='vmem': W4.append([])
        mid=W4[:-1]+mid
    kgen(P,diag,mid,cfg.get('PMSKIP',0),cfg.get('PMORD',0)); stamp(P,5,diag)
    k_image(P,G,min(len(G),cfg.get('PPRE',5)),cfg.get('PSKIP',0))
    raws(2)
    wdj=[]
    wj=cfg.get('WJAT',0); wd0=[]
    if cfg.get('Q2AT',1)==2: poll2_loads(P)
    if da<2 and wj:
        Q=Prog(); wd_job(Q,ST); wd0=[(x.text,x.tag) for x in Q.ins]
    elif da<2: wd_job(P,ST)
    else:
        Q=Prog(); wd_job(Q,ST); wdj=[(x.text,x.tag) for x in Q.ins[1:]]
    stamp(P,6,diag)
    P.I("s_waitcnt lgkmcnt(0)\ns_barrier")
    for k in conv_reads(0)[1]: P.extend(k)
    q2=cfg.get('Q2AT',1)
    if q2==0: poll2_loads(P)
    make_h(P,diag,q2==3)
    if q2==1: poll2_loads(P)
    raws(4)
    if cfg.get('LV',1)==0:
        chk,work,_=poll2_work(ST); P.extend(chk+work+["@wait wr"])
    if cfg.get('FV',1)==0: P.I("@wait wdst")
    P.I("s_waitcnt lgkmcnt(0)\ns_barrier")
    stamp(P,7,diag)
    acc,tail,after=conv(P,ST,cfg,H['midbar'] if da<2 else [],wdj,wd0,H); stamp(P,8,diag)
    conv_epilogue(P,acc,tail,ST,H.get('pre',[]),H.get('prebar',[]),H.get('postbar',[]),cfg.get('TMAX',99),after)
```

```python
from prog import *
from layout import *
from ka import sp, vr, ar, mksrd, f32, stamp, stamp_out, rWS, rOUT, sXCD, sIDX, sW
import ka, re
sXB,sWB,sAB,sXM,sFL,sPL,sA0,sA1,sD0,sD1,sNT,sMT,sFB,sCNT = range(8,22)
sQ=22
sT0,sT1,sT2,sT3,sT4 = 80,81,82,83,84
vLANE,vL16,vWL = 1,2,14
NS=16; L_XS=0; L_RING=4*NS*1024; RING=96
LDS_C=L_RING+RING*1024
def entry(P,name,diag):
    P.I(f".globl {name}\n.p2align 8\n.type {name},@function\n{name}:\n@reset")
    P.I(f"""s_cmp_ge_u32 s2, 256
s_cbranch_scc1 L_{name}_exit
s_load_dwordx2 s[42:43], s[0:1], 136
s_load_dwordx2 s[38:39], s[0:1], 120
s_and_b32 s{sXCD}, s2, 7
s_lshr_b32 s{sIDX}, s2, 3
v_lshrrev_b32 v3, 6, v0
v_and_b32 v{vLANE}, 63, v0
v_readfirstlane_b32 s{sW}, v3""")
    ka.stamp0_issue(P,diag)
def srds(P,diag):
    P.I("s_waitcnt lgkmcnt(0)"); ka.stamp0_commit(P,diag)
    P.extend(mksrd(rWS,42,WS_USED)); P.extend(mksrd(rOUT,38,2097152))

def xsrc(v, snt):
    return [f"v_lshrrev_b32 v12, 3, v{vLANE}", f"v_xor_b32 v{v}, s{snt}, v12", f"v_mul_u32_u24 v12, 96, v12", f"v_add_u32 v12, v12, v{v}",
            f"v_and_b32 v{v}, 7, v{vLANE}", f"v_lshl_add_u32 v{v}, v12, 3, v{v}", f"v_lshlrev_b32 v{v}, 4, v{v}"]
def c_maps():
    xb=f"s_lshl_b32 s{sXB}, s{sT0}, 15\ns_add_u32 s{sXB}, s{sXB}, {WS_X1B}"
    if ka.XIN: xb="\n".join(xsrc(13,sT0))
    return f"""s_lshr_b32 s{sT0}, s{sXCD}, 2
s_lshl_b32 s{sT0}, s{sT0}, 5
s_and_b32 s{sT1}, s{sIDX}, 28
s_add_u32 s{sT0}, s{sT0}, s{sT1}
s_add_u32 s{sT0}, s{sT0}, s{sW}
s_and_b32 s{sT1}, s{sXCD}, 3
s_and_b32 s{sT3}, s{sIDX}, 3
s_lshl2_add_u32 s{sT2}, s{sT1}, s{sT3}
{xb}
s_mul_i32 s{sWB}, s{sT2}, {231*1024}
s_add_u32 s{sWB}, s{sWB}, {WS_WPF}
s_mul_i32 s{sXM}, s{sW}, {NS*1024}
s_mul_i32 s{sAB}, s{sT0}, 112
s_mul_i32 s{sT2}, s{sT2}, 7
s_add_u32 s{sAB}, s{sAB}, s{sT2}
s_lshl_b32 s{sAB}, s{sAB}, 10
s_add_u32 s{sAB}, s{sAB}, {WS_ACT}
s_lshr_b32 s{sFL}, s{sT0}, 1
s_lshl2_add_u32 s{sFL}, s{sFL}, s{sT1}
s_lshl_b32 s{sFL}, s{sFL}, 10
s_and_b32 s{sT0}, s{sT0}, 1
s_lshl2_add_u32 s{sT0}, s{sT0}, s{sT3}
s_lshl2_add_u32 s{sFL}, s{sT0}, s{sFL}
s_add_u32 s{sFL}, s{sFL}, {WS_FLAG}""".split('\n')
def d_maps(DM=0, M16=0, ROWO=0):
    head=f"""s_lshr_b32 s{sT1}, s{sIDX}, 3
s_lshl2_add_u32 s{sT2}, s{sXCD}, s{sT1}
s_and_b32 s{sT1}, s{sIDX}, 7""" if not DM else f"""s_lshr_b32 s{sT1}, s{sIDX}, 2
s_lshr_b32 s{sT2}, s{sXCD}, 1
s_lshl3_add_u32 s{sT2}, s{sT2}, s{sT1}
s_and_b32 s{sT1}, s{sIDX}, 3
s_and_b32 s{sT3}, s{sXCD}, 1
s_lshl2_add_u32 s{sT1}, s{sT3}, s{sT1}"""
    return f"""{head}
s_mul_i32 s{sT3}, s{sW}, {28*1024}
s_mul_i32 s{sA0}, s{sT2}, {224*1024}
s_add_u32 s{sA0}, s{sA0}, s{sT3}
s_add_u32 s{sA0}, s{sA0}, {WS_ACT}
s_mul_i32 s{sD0}, s{sT1}, {224*1024}
s_add_u32 s{sD0}, s{sD0}, s{sT3}
s_add_u32 s{sD0}, s{sD0}, {WS_WDF}
s_add_u32 s{sD1}, s{sD0}, {112*1024}
s_bitcmp1_b32 s{sW}, 0
s_cselect_b32 s{sPL}, {0 if ROWO else 112*1024}, 0
s_add_u32 s{sD0}, s{sD0}, s{sPL}
s_sub_u32 s{sD1}, s{sD1}, s{sPL}
s_lshl2_add_u32 s{sPL}, s{sT2}, s{sW}
s_lshl_b32 s{sPL}, s{sPL}, 10
s_add_u32 s{sPL}, s{sPL}, {WS_FLAG}
s_mov_b32 s52, s{ka.sTAG}
s_mov_b32 s53, s{ka.sTAG}
s_lshl_b32 s{sNT}, s{sT2}, 1
s_and_b32 s{sT3}, s{sW}, 1
s_lshl_b32 s{sT3}, s{sT3}, 1
s_lshl2_add_u32 s{sMT}, s{sT1}, s{sT3}
s_lshr_b32 s{sT3}, s{sW}, 1
s_add_u32 s{sMT}, s{sMT}, s{sT3}
{f"s_mov_b32 s{sT3}, 0" if ROWO else f"s_lshl_b32 s{sT3}, s{sT3}, 8"}
v_lshlrev_b32 v{vL16}, 4, v{vLANE}
v_xor_b32 v{vWL}, s{sT3}, v{vL16}""".split('\n')[:-1 if M16 else None]+(f"""v_lshrrev_b32 v{vWL}, 5, v{vLANE}
v_mul_u32_u24 v{vWL}, 7168, v{vWL}
v_and_b32 v{vWL+1}, 16, v{vLANE}
v_lshl_add_u32 v{vWL}, v{vWL+1}, 5, v{vWL}
v_and_b32 v{vWL+1}, 15, v{vLANE}
v_lshl_add_u32 v{vWL}, v{vWL+1}, 4, v{vWL}
v_or_b32 v{vWL}, s{sT3}, v{vWL}
v_xor_b32 v{vWL+1}, 0x100, v{vWL}""".split('\n') if M16 else [])

class Stream:
    def __init__(s, base, tmp): s.base=base; s.tmp=tmp; s.cur=None
    def at(s, off):
        L=[]
        if s.cur is None or not (0<=off-s.cur<4096):
            s.cur=off; L.append(f"s_add_u32 s{s.tmp}, s{s.base}, {off}")
        return L, f"s{s.tmp} offen offset:{off-s.cur}"
ASTG0=[3,5,7]
def d_parts(cfg):
    e=[0]+cfg.get('ASTG',ASTG0)
    return [[7*jj+mt for jj in ((0,2) if cfg.get('M16',0) else range(4)) for mt in range(a,b)] for a,b in zip(e,e[1:])]
def kap(f): return 16*(f if f<7 else f-7)
def wd_order(cfg):
    if cfg.get('WDLIN',0)==2: return list(range(16,28))+list(range(16))
    return sorted(sum(d_parts(cfg),[])) if cfg.get('WDLIN',0) else sum(d_parts(cfg),[])
def flag_store(s):
    return ["s_mov_b64 exec, 1",f"buffer_store_dword v{vONE1}, v{vL16}, {sp(rWS,4)}, s{sFL} offen offset:{128*s} sc1","s_mov_b64 exec, -1"]
def flag_poll(s): return f"buffer_load_dword v{vPV}, v{vPA}, {sp(rWS,4)}, s{sPL} offen offset:{128*s} sc1"
def sflag_poll(s): return f"s_buffer_load_dwordx8 s[44:51], {sp(rWS,4)}, s{sPL} offset:{128*s} glc"
def spoll_check(P, name):
    P.I(f"L_{name}_chk:\ns_waitcnt lgkmcnt(0)")
    for i in range(4): P.I(f"s_xor_b64 s[{44+2*i}:{45+2*i}], s[{44+2*i}:{45+2*i}], s[52:53]")
    P.I(f"s_or_b64 s[44:45], s[44:45], s[46:47]\ns_or_b64 s[48:49], s[48:49], s[50:51]\ns_or_b64 s[44:45], s[44:45], s[48:49]\ns_cbranch_scc1 L_{name}_retry\nL_{name}_ok:")
def spoll_retry(P, name, s):
    P.I(f"L_{name}_retry:\ns_add_u32 s{sCNT}, s{sCNT}, 1\ns_cmp_gt_u32 s{sCNT}, 40000\n@loopok\ns_cbranch_scc1 L_{name}_ok\n{sflag_poll(s)}\n@loopok\ns_branch L_{name}_chk")
def wd_load_list(cfg,LD=''):
    S=[Stream(sD0,34),Stream(sD1,35)]; L=[]
    if cfg.get('M16',0):
        for f in wd_order(cfg):
            for j in range(4):
                pre,o=S[j&1].at(f*1024)
                L.append(pre+[f"buffer_load_dwordx4 {ar(kap(f)+4*j,4)}, v{vWL+(j>>1)}, {sp(rWS,4)}, {o} {LD}"])
        return L
    for f in wd_order(cfg):
        for m in range(2):
            pre,o=S[m].at(f*1024)
            L.append(pre+[f"buffer_load_dwordx4 {ar(8*f+4*m,4)}, v{vWL}, {sp(rWS,4)}, {o} {LD}"])
    return L
AX,AG=240,224
vXA,vPA,vPV,vONE1=253,254,252,251
vQV,vQA,sQP=15,248,99
def qpoll(q): return [f"s_mov_b32 s{sQP}, {WS_FX+(q<<(6+FS))}", f"buffer_load_dword v{vQV}, v{vQA}, {sp(rWS,4)}, s{sQP} offen sc1"]
def cost(x):
    s=x[0] if isinstance(x,tuple) else x
    o=s.split()[0]
    return 2 if (o in TRANS or o=='s_barrier') else 1

class RawWd:
    def __init__(s, order, srd, vsrc, sbase, stmp, pol=''):
        s.todo=list(order); s.flying=[]; s.done=set(); s.srd=srd; s.vsrc=vsrc; s.sbase=sbase; s.stmp=stmp; s.half=0; s.chalf=0; s.pol=pol; s.n=0
    def area(s, slots):
        assert not s.half
        s.slots=list(slots); s.n=0
    def issue_half(s, now):
        f=s.todo[0]; sl=s.slots[s.n%len(s.slots)]; u=s.half
        assert all(x[1]!=sl for x in s.flying)
        L=[f"s_add_u32 m0, s{sl[0]}, {sl[1]+u*1024}", f"s_add_u32 s{s.stmp}, s{s.sbase}, {f*16384+u*8192}",
           (f"buffer_load_dwordx4 v{s.vsrc}, {sp(s.srd,4)}, s{s.stmp} offen {s.pol} lds", f"rw{f}")]
        s.half^=1
        if not s.half: s.todo.pop(0); s.flying.append((f,sl,now)); s.n+=1
        return L
    def convert_half(s):
        f,sl,_=s.flying[0]; m=s.chalf
        L=([f"@wait rw{f}"] if m==0 else [])+[f"ds_read_b64_tr_b16 {ar(8*f+4*m+2*hf,2)}, v{sl[2][m]} offset:{sl[3]+hf*512}" for hf in range(2)]
        s.chalf^=1
        if not s.chalf: s.flying.pop(0); s.done.add(f)
        return L

class PhaseC:
    def __init__(s, cfg):
        s.cfg=cfg
        seq=[(t,ks) for ks in range(32) for t in range(G1)]
        AUXAT=cfg.get('AUXAT',16-G1)
        t3=[(G1,ks) for ks in range(33)]
        seq+= t3[:AUXAT]+[(t,32) for t in range(G1)]+t3[AUXAT:]
        for t in range(G1+1,7): seq+=[(t,ks) for ks in range(33)]
        s.seq=seq; s.N=N=len(seq); assert N==231
        s.P1=32*G1
        b=cfg.get('STG') or ([0,8,16]+list(range(32,232,16))+[232])
        s.bounds=b; s.nst=len(b)-1
        for q in range(s.nst):
            assert sorted(s.gpos(*x) for x in seq[b[q]:b[q+1]])==list(range(b[q],min(b[q+1],N))), q
            assert s.lpos(b[q+1]-1)-s.lpos(b[q])==(b[q+1]-1-b[q])*1024
        s.QR={c:sQ+2*i for i,c in enumerate(sorted({(b[q+1]-b[q])//4 for q in range(s.nst)}))}
        s.LOOK=cfg.get('LOOK',6); s.XL=cfg.get('XL',6)
        s.mem=[]; s.m0=None; s.now=-1
        QG=s.QG=cfg.get('QG',[-1,0,2,3])
        for q in range(s.nst):
            gate=-1
            if cfg.get('BIG',0):
                if b[q]>=224: gate=max(z for z in range(s.nst) if b[z]<b[q+1]-160)+2
                elif 96<=b[q]<160: gate=max(z for z in range(s.nst) if b[z]<b[q+1]-96)+2
                elif b[q]>=160: gate=min(z for z in range(s.nst) if b[z]-s.LOOK>=s.P1)
            elif b[q+1]>RING: gate=max(z for z in range(s.nst) if b[z]<b[q+1]-RING)+2
            if cfg.get('QSYNC',0): gate=max(gate,QG[min(3,(b[q+1]-1)//(8*G1))])
            for u in range((b[q+1]-b[q])//4): s.mem.append((max(b[q]-s.LOOK,0),gate,('w',q,u)))
        XG=cfg.get('XGRP',2)
        for ks in range(32): s.mem.append((max(G1*(ks-ks%XG)-s.XL,0),QG[ks>>3] if cfg.get('QSYNC',0) else -1,('x',ks)))
        s.mem.sort(key=lambda e:e[0])
    def lpos(s,g):
        if s.cfg.get('BIG',0): return L_RING+(g%96)*1024 if g<160 else (g-160)*1024 if g<224 else L_RING+(g-160)*1024
        return L_RING+(g%RING)*1024
    def gpos(s,t,ks): return (G1*ks+t) if t<G1 else 33*t+ks
    def setup(s):
        L=[]
        for c,r in s.QR.items(): L+=[f"s_mul_i32 s{r}, s{sW}, {c*1024}", f"s_add_u32 s{r+1}, s{r}, s{sWB}"]
        L+=f"""v_lshlrev_b32 v{vL16}, 4, v{vLANE}
v_lshrrev_b32 v8, 5, v{vLANE}
v_bfe_u32 v9, v{vLANE}, 2, 2
v_lshl_add_u32 v8, v8, 3, v9
v_bfe_u32 v9, v{vLANE}, 4, 1
v_lshl_add_u32 v8, v8, 1, v9
v_and_b32 v10, 3, v{vLANE}
v_lshl_add_u32 v8, v8, 2, v10
v_lshl_add_u32 v{vXA}, v8, 3, s{sXM}
v_add_u32 v3, {L_RING}, v{vL16}
v_add_u32 v7, {L_RING+0x10000}, v{vL16}
v_and_b32 v8, 31, v{vLANE}
v_and_b32 v10, 32, v{vLANE}
v_lshlrev_b32 v10, 4, v10
v_lshl_add_u32 v8, v8, 2, v10
v_add_u32 v249, {L_RING}, v8
v_add_u32 v250, {L_RING+0x10000}, v8
v_and_b32 v8, 15, v{vLANE}
v_cmp_eq_u32 vcc, v8, v9
v_mov_b32 v10, 0x3f803f80
v_and_b32 v{vPA}, 7, v{vLANE}
v_lshlrev_b32 v{vPA}, 2, v{vPA}
v_cndmask_b32 v56, 0, v10, vcc
v_cndmask_b32 v57, 0, v10, vcc
v_cndmask_b32 v58, 0, v10, vcc
v_cndmask_b32 v59, 0, v10, vcc""".split('\n')
        if s.cfg.get('BIG',0):
            assert not s.cfg.get('M16',0) and s.cfg.get('RXD',0)
            L.append(f"v_add_u32 v248, {-L_RING}, v249")
        if s.cfg.get('M16',0): L.append(f"v_and_b32 v248, v{vWL}, v{vWL+1}")
        return L
    def memop(s,e):
        if e[0]=='w':
            _,q,u=e; c=(s.bounds[q+1]-s.bounds[q])//4; key=('w',q,u//4); u0=u-u%4
            pre=[f"s_add_u32 m0, s{s.QR[c]}, {s.lpos(s.bounds[q])+u0*1024}", f"s_add_u32 s{sT0}, s{s.QR[c]+1}, {(s.bounds[q]+u0)*1024}"]
            tag=f"w{q}"; off=(u%4)*1024; ld=s.cfg.get('WLD','')
        else:
            ks=e[1]; key=('x',ks//4); k0=ks-ks%4
            assert ks<NS or s.now>=G1*(ks-NS), (ks,s.now)
            pre=[f"s_add_u32 m0, s{sXM}, {L_XS+(k0%NS)*1024}", f"s_add_u32 s{sT0}, s{sXB}, {k0*1024}"]
            tag=f"x{ks}"; off=(ks%4)*1024; ld=s.cfg.get('XLD','')
        L=[] if s.m0==key else pre
        s.m0=key
        if e[0]=='x' and ka.XIN:
            return L[:1]+[f"s_mov_b32 s{sXB}, {WS_XG+ks*98304-off}",(f"buffer_load_dwordx4 v13, {sp(rWS,4)}, s{sXB} offen offset:{off} {ld} lds",tag)]
        return L+[(f"buffer_load_dwordx4 v{vL16}, {sp(rWS,4)}, s{sT0} offen offset:{off} {ld} lds",tag)]
    def pre(s,P,n,kinds='wx'):
        k=0
        while n>0 and k<len(s.mem):
            if s.mem[k][2][0] in kinds and s.mem[k][1]<0: P.extend(s.memop(s.mem.pop(k)[2])); n-=1
            else: k+=1
    def run(s,P,diag,wd,extra_side,D,raw=None):
        cfg=s.cfg; seq=s.seq; N=s.N; bounds=s.bounds; mem=s.mem; LOOK=s.LOOK; XL=s.XL; P1=s.P1
        ST='sc1'; ends=cfg.get('ASTG',ASTG0)
        X0=120
        xr=lambda ks: vr(X0+4*ks,4) if ks<32 else vr(44,4)
        NACC=4; ACC=[72,88,104,56]
        WF=[20+4*i for i in range(6)]; NWF=6
        SQ,SM,ONE,SQ2=48,52,56,16
        C0,C1,IR2=4,5,6; TA=8
        RA=[vL16,3,7]; RA2=[248,249,250]
        def rd(n):
            pos=s.lpos(s.gpos(*seq[n]))
            if seq[n][1]==32:
                return [(f"ds_read_b32 v{WF[n%NWF]+q}, v{RA2[pos>>16]} offset:{(pos&0xffff)+128*q}", f"r{n}") for q in range(4)]
            return [(f"ds_read_b128 {vr(WF[n%NWF],4)}, v{RA[pos>>16]} offset:{pos&0xffff}", f"r{n}")]
        def xrd(ks): return [f"@wait x{ks}"]+[f"ds_read_b64_tr_b16 {vr(X0+4*ks+2*hf,2)}, v{vXA} offset:{L_XS+(ks%NS)*1024+hf*256}" for hf in range(2)]
        accof=lambda t: ACC[t%NACC]
        EW=cfg.get('EW',4)
        def epi(t):
            a=accof(t); L=[]
            for g in range(8//EW):
                ia=list(range(EW*g,EW*g+EW)); T=TA
                L+=[f"v_mul_f32 v{T+k}, v{a+i}, v{a+i}" for k,i in enumerate(ia)]
                L+=[f"v_fma_f32 v{T+k}, v{T+k}, v{C1}, v{C0}" for k,i in enumerate(ia)]
                L+=[f"v_mul_f32 v{T+k}, v{T+k}, v{a+i}" for k,i in enumerate(ia)]
                for k,i in enumerate(ia): L+=[f"v_exp_f32 v{T+k}, v{T+k}", f"v_mul_f32 v{a+8+i}, v{a+i}, v{a+8+i}"]
                for k,i in enumerate(ia):
                    L+=[f"v_fma_f32 v{a+i}, v{T+k}, v{IR2}, v{IR2}"]
                    if k: L+=[f"v_rcp_f32 v{a+i-1}, v{a+i-1}"]
                L+=[f"v_mul_f32 v{a+8+ia[0]}, v{a+8+ia[0]}, v{a+ia[0]}", f"v_rcp_f32 v{a+ia[-1]}, v{a+ia[-1]}"]
                L+=[f"v_mul_f32 v{a+8+i}, v{a+8+i}, v{a+i}" for i in ia[1:]]
                L+=[f"v_cvt_pk_bf16_f32 v{16+i//2}, v{a+8+i}, v{a+9+i}" for i in ia[::2]]
            L.append((f"buffer_store_dwordx4 v[16:19], v{vL16}, {sp(rWS,4)}, s{sAB} offen offset:{(t%4)*1024} {ST}",f'act{t}'))
            if t==3: L.append(f"s_add_u32 s{sAB}, s{sAB}, 4096")
            return L
        if cfg.get('NOTRANS'):
            e0=epi; epi=lambda t:[y for x in e0(t) for y in ([x.replace('v_exp_f32','v_mov_b32').replace('v_rcp_f32','v_mov_b32')]*2 if isinstance(x,str) and x.split()[0] in TRANS else [x])]
        if cfg.get('NOST'):
            e2=epi; epi=lambda t:[(('s_nop 0',x[1]) if isinstance(x,tuple) else x) for x in e2(t)]
        if cfg.get('NOEPI'):
            e1=epi; epi=lambda t:[x for x in e1(t) if not (isinstance(x,str) and x.startswith('v_'))]
        k0=-2*0.7978845608028654*1.4426950408889634; k1=k0*0.044715
        fin=f"""v_and_b32 v11, 15, v{vLANE}
v_lshlrev_b32 v11, 2, v11
v_and_b32 v8, 3, v{vLANE}
v_cmp_eq_u32 vcc, 1, v8
v_cmp_eq_u32 {sp(sT2)}, 2, v8
v_and_b32 v10, 16, v{vLANE}
ds_bpermute_b32 v12, v11, v{SM}
ds_bpermute_b32 v13, v11, v{SM+1}
v_add_f32 v{SQ}, v{SQ}, v{SQ2}
v_add_f32 v{SQ+1}, v{SQ+1}, v{SQ2+1}
v_add_f32 v{SQ+2}, v{SQ+2}, v{SQ2+2}
v_add_f32 v{SQ+3}, v{SQ+3}, v{SQ2+3}
v_cndmask_b32 v9, v{SQ}, v{SQ+1}, vcc
v_cmp_eq_u32 vcc, 3, v8
v_cndmask_b32 v9, v9, v{SQ+2}, {sp(sT2)}
v_cmp_eq_u32 {sp(sT2)}, 0, v10
v_cndmask_b32 v9, v9, v{SQ+3}, vcc
v_mov_b32 v8, v9
v_nop
v_nop
v_permlane32_swap_b32 v8, v9
v_add_f32 v9, v8, v9
v_mul_f32 v9, 0x3b000000, v9
v_cndmask_b32 v12, v13, v12, {sp(sT2)}
v_mul_f32 v12, 0x3b000000, v12
v_fma_f32 v9, -v12, v12, v9
v_max_f32 v9, 0, v9
v_cvt_pk_bf16_f32 v9, v9, v9
v_and_b32 v9, 0xffff0000, v9
v_add_f32 v9, 0x3727c5ac, v9
v_cvt_pk_bf16_f32 v9, v9, v9
v_and_b32 v9, 0xffff0000, v9
v_sqrt_f32 v9, v9
v_nop
v_cvt_pk_bf16_f32 v44, -v12, v9
v_and_b32 v9, 0xffff0000, v44
v_mov_b32 v45, v44
v_rcp_f32 v8, v9
v_mov_b32 v46, v44
v_mov_b32 v47, v44
v_mul_f32 v{IR2}, v9, v9
v_mul_f32 v{C0}, {hex(f32(k0))}, v8
v_mul_f32 v10, v8, v8
v_mul_f32 v{C1}, {hex(f32(k1))}, v8
v_mul_f32 v{C1}, v{C1}, v10""".split('\n')
        done_at={}
        for n,(t,ks) in enumerate(seq):
            if ks==32: done_at[t]=n
        side=[(0,x) for x in extra_side]+[(P1,x) for x in fin]
        for t in range(6): side+=[(done_at[t]+3,x) for x in epi(t)]
        RX=cfg.get('RXAT',P1+40)
        blocks={RX:[f"s_lshl_b32 s{sT1}, s{sNT}, 5",f"s_add_u32 s{sT1}, s{sT1}, s{sMT}",f"s_lshl_b32 s{sT1}, s{sT1}, 10",f"s_add_u32 s{sT1}, s{sT1}, {WS_X1B}"],
                RX+1:['@m0',f"s_add_u32 m0, s{sXM}, {L_XS}",f"s_add_u32 s{sT4}, s{sT1}, {32768-1024}",(f"buffer_load_dwordx4 v{vL16}, {sp(rWS,4)}, s{sT1} offen {cfg.get('XLD','')} lds",'rx'),
                      (f"buffer_load_dwordx4 v{vL16}, {sp(rWS,4)}, s{sT4} offen offset:1024 {cfg.get('XLD','')} lds",'rx')],
                RX+3:[f"s_lshl_b32 s{sT1}, s{sMT}, 6",f"s_add_u32 s{sT1}, s{sT1}, {WS_GBF}",f"v_and_b32 v{vPV}, 32, v{vLANE}"],
                RX+4:[f"buffer_load_dwordx4 {ar(AG+4*q,4)}, v{vPV}, {sp(rWS,4)}, s{sT1} offen offset:{16*q} {cfg.get('WLD','')}" for q in range(2)],
                RX+44:["@wait rx"]+[f"ds_read_b64_tr_b16 {ar(AX+2*q,2)}, v{vXA} offset:{L_XS+(q>>1)*1024+(q&1)*256}" for q in range(4)],
                cfg.get('P0AT',217):[flag_poll(0)]}
        if ka.XIN:
            xs=xsrc(13,sNT)
            blocks[RX-2]=xs[:4]; blocks[RX-1]=xs[4:]+["v_xor_b32 v12, 128, v13"]
            blocks[RX]=[f"s_mul_i32 s{sT1}, s{sMT}, 98304",f"s_add_u32 s{sT1}, s{sT1}, {WS_XG}"]
            blocks[RX+1]=['@m0',f"s_add_u32 m0, s{sXM}, {L_XS}",f"s_sub_u32 s{sT4}, s{sT1}, 1024",(f"buffer_load_dwordx4 v13, {sp(rWS,4)}, s{sT1} offen sc1 lds",'rx'),
                      (f"buffer_load_dwordx4 v12, {sp(rWS,4)}, s{sT4} offen offset:1024 sc1 lds",'rx')]
        if cfg.get('RXD',0):
            for z in (RX-2,RX-1,RX,RX+1,RX+3,RX+4,RX+44): blocks.pop(z,None)
        if cfg.get('QSYNC',0):
            for q,at in zip((2,3),cfg.get('QAT2',[1,14])): blocks[at]=qpoll(q)
        C0AT=cfg.get('C0AT',999)
        D.nflag=0; flag_at={}; log=[]
        opened=[-1]
        def emit(L):
            c=0
            for x in L:
                if x=='@m0': s.m0=None; continue
                P.extend([x]); c+=cost(x)
            return c
        def force(pred):
            c=0
            while any(pred(e[2]) for e in mem):
                assert mem[0][1]<=opened[0], mem[0]
                c+=emit(s.memop(mem.pop(0)[2]))
            return c
        def open_stage(q):
            c=force(lambda e: e[0]=='w' and e[1]==q)
            opened[0]=q
            if cfg.get('QSYNC',0) and q in s.QG: poll_check(P,f'fx{s.QG.index(q)}',vPV=vQV); c+=3; stamp(P,25+s.QG.index(q),diag)
            x_=cfg.get('XBAR',0) if bounds[q]>P1 else 0
            c+=emit([[f"@wait w{q}","s_barrier"],[f"@wait w{q}"],["s_barrier"],[]][x_])
            if cfg.get('QSYNC',0) and q in s.QG:
                for _ in range(cfg.get('QBURST',[5,3,2])[s.QG.index(q)-1]):
                    if mem[0][1]<=q and (mem[0][2][0]=='w' or s.now>=G1*(mem[0][2][1]-NS)): c+=emit(s.memop(mem.pop(0)[2]))
            if cfg.get('SSTAMP'): stamp(P,(2+q if q<10 else 9+q),diag)
            return c
        xnext=0
        open_stage(0)
        while G1*xnext<XL: force(lambda e: e==('x',xnext)); emit(xrd(xnext)); xnext+=1
        for n in range(LOOK): P.extend(rd(n))
        DIST=cfg.get('DIST',24); DIST2=cfg.get('DIST2',48); WB=cfg.get('WB',3)
        started=set(); mb=0.0; wdb=0.0; quiet=0
        P.I("@mark c1")
        for n,(t,ks) in enumerate(seq):
            a=accof(t)
            if n==P1: P.I("@mark c2")
            if t>=NACC and ks==0:
                while side and side[0][0]<=done_at[t-NACC]+3:
                    x=side.pop(0)[1]; emit([x])
                    if isinstance(x,tuple):
                        log.append((x[1],n))
                        if int(x[1][3:])+1 in ends: flag_at[ends.index(int(x[1][3:])+1)]=n+cfg.get('FLAGD',26)
            if ks==32 and t==0:
                while side and side[0][0]<=P1: emit([side.pop(0)[1]])
            if n%WB==0: P.I(f"@wait r{min(n+WB-1,N-1)}")
            P.I(f"v_mfma_f32_32x32x16_bf16 {vr(a,16)}, {vr(WF[n%NWF],4)}, {xr(ks)}, {vr(a,16) if t in started else 0}"); started.add(t)
            s.now=n
            free=cfg.get('CAP',6)-((n+1)%WB==0)
            if xnext<32 and G1*xnext-XL<=n:
                free-=force(lambda e: e==('x',xnext)); free-=emit(xrd(xnext)); xnext+=1
            m=n+LOOK
            if m<N:
                if m in bounds: free-=open_stage(bounds.index(m))
                free-=emit(rd(m))
            used=False
            if n in blocks: free-=emit(blocks.pop(n)); used=True
            elif n>=flag_at.get(D.nflag,999) and free>=4:
                free-=emit([f"@wait act{ends[D.nflag]-1}"]+flag_store(D.nflag)); D.nflag+=1; used=True; log.append(n)
            if n==C0AT: poll_check(P,'p0'); stamp(P,14,diag); free-=3; used=True
            rate = cfg.get('RATE1',0.9) if n<P1 else cfg.get('RATE2',0.5)
            mb=min(mb+rate,1.0+(rate if n<P1 else cfg.get('BURST2',rate)))
            if n<quiet: mb=min(mb,0.99)
            nxt_st=[i for i,(r_,x_) in enumerate(side[:cfg.get('PREQ',0)]) if isinstance(x_,tuple) and r_<=n]
            if nxt_st: mb=min(mb,0.99)
            if not used and mem and mb>=1 and mem[0][0]-(DIST if n<P1 else DIST2)<=n and mem[0][1]<=opened[0] and (free>=3 or n<P1) and (mem[0][2][0]=='w' or n>=G1*(mem[0][2][1]-NS)):
                free-=emit(s.memop(mem.pop(0)[2])); used=True; mb-=1
            if raw:
                if raw.flying and n>=raw.flying[0][2]+cfg.get('RAWD',40) and free>=3: free-=emit(raw.convert_half())
                if not used and raw.todo and len(raw.flying)<len(raw.slots) and cfg.get('WDFROM',P1+4)<=n<N-cfg.get('RAWD',40):
                    wdb=min(wdb+cfg.get('WDPER',0.2),2)
                    if wdb>=1 and mb>=1 and free>=3: free-=emit(['@m0']+raw.issue_half(n)); wdb-=1; mb-=1
            if not used and n>C0AT and mb>=1 and free>=2 and D.li<min(cfg.get('DAHEAD',14),n-197) and D.can_load():
                free-=emit(D.load()); mb-=1; used=True
            if not used and wd and cfg.get('WDFROM',P1+4)<=n<C0AT:
                wdb=min(wdb+(cfg.get('WDPER1',0.2) if n<P1 else cfg.get('WDPER',0.2)),2)
                if wdb>=1 and mb>=1 and free>=2: free-=emit(wd.pop(0)); wdb-=1; mb-=1
            while side and side[0][0]<=n and cost(side[0][1])<=free:
                x=side.pop(0)[1]; free-=emit([x])
                if isinstance(x,tuple) and x[1].startswith('act'):
                    log.append((x[1],n)); quiet=n+1+cfg.get('QUIET',0)
                    if cfg.get('STEND',0): free=0
                    if int(x[1][3:])+1 in ends: flag_at[ends.index(int(x[1][3:])+1)]=n+cfg.get('FLAGD',26)
            if n<P1 and t==G1-1:
                x=X0+4*ks
                P.I(f"v_mfma_f32_4x4x4_16b_bf16 {vr(SQ,4)}, {vr(x,2)}, {vr(x,2)}, {vr(SQ,4) if ks else 0}")
                P.I(f"v_mfma_f32_4x4x4_16b_bf16 {vr(SQ2,4)}, {vr(x+2,2)}, {vr(x+2,2)}, {vr(SQ2,4) if ks else 0}")
                P.I(f"v_mfma_f32_16x16x32_bf16 {vr(SM,4)}, {vr(ONE,4)}, {vr(x,4)}, {vr(SM,4) if ks else 0}")
            if n==P1-1: stamp(P,12,diag)
        P.I("@mark end")
        assert D.nflag and not blocks and not mem
        print('phase C: side left', len(side), 'stores/flags', log, 'Wd left', len(wd), 'raw todo/flying', (len(raw.todo),len(raw.flying),raw.half,raw.chalf) if raw else None)
        stamp(P,13,diag)
        return [x for _,x in side]+epi(6), {q:v-N for q,v in flag_at.items()}

def poll_check(P, name, need=None, diag=None, vPV=vPV):
    P.I(f"""L_{name}_chk:
v_cmp_ne_u32 vcc, v{vONE1}, v{vPV}
s_cbranch_vccnz L_{name}_retry
L_{name}_ok:""")
def poll_retry(P, name, off, vPV=vPV, vPA=vPA, sPL=sPL, loc=0, mask=0):
    P.I(f"""L_{name}_retry:
s_add_u32 s{sCNT}, s{sCNT}, 1
s_cmp_gt_u32 s{sCNT}, 40000
@loopok
s_cbranch_scc1 L_{name}_ok""")
    P.extend(ka.writeback(sCNT,f'L_{name}_nowb',loc))
    P.I(f"""{"s_mov_b64 exec, vcc" if mask else ""}
buffer_load_dword v{vPV}, v{vPA}, {sp(rWS,4)}, s{sPL} offen offset:{off} sc1
{"s_mov_b64 exec, -1" if mask else ""}
s_waitcnt vmcnt(0) lgkmcnt(0)
s_branch L_{name}_chk""")

class PhaseD:
    def __init__(s, P, cfg, diag, wd):
        s.P=P; s.cfg=cfg; s.diag=diag; s.wd=wd
        s.parts=d_parts(cfg); s.ends=cfg.get('ASTG',ASTG0); s.order=sum(s.parts,[])
        s.ACC=[[184,200],[216,232]]; s.BUF=[120+4*i for i in range(16)]; s.NB=16
        SK=cfg.get('DSKEW',8)
        s.M16=cfg.get('M16',0)
        if s.M16:
            s.work=[(f,nb) for i,f in enumerate(s.order) for nb in range(4) if nb<2 or i<14-SK//2]+[(f,nb) for f in s.order[14-SK//2:] for nb in (2,3)]
        else: s.work=[(f,n) for i,f in enumerate(s.order) for n in range(2) if n==0 or i<28-SK]+[(f,1) for f in s.order[28-SK:]]
        s.first={q:min(k for k,(f,n) in enumerate(s.work) if f in s.parts[q]) for q in range(len(s.parts))}
        s.S=[Stream(sA0,36),Stream(sA0,37)]; s.li=0; s.nflag=0; s.polled=0; s.inD=False
    def can_load(s):
        for q,k0 in s.first.items():
            if q and s.li==k0 and s.nflag<(len(s.ends) if q>=s.cfg.get('CK',1) else q+1): return False
        return True
    def load(s):
        k=s.li; s.li+=1; f,n=s.work[k]; L=[]; PL=s.cfg.get('PL2',8)
        nxt=s.polled+1
        if nxt in s.first and k>=max(s.first[nxt]-PL,s.first[nxt-1]+1) and s.nflag>nxt and (s.inD or not s.cfg.get('SPOLL',0)): L.append((sflag_poll if s.cfg.get('SPOLL',0) else flag_poll)(nxt)); s.polled=nxt
        for q,k0 in s.first.items():
            if q and k==k0:
                assert s.polled>=q
                s.P.extend(L); L=[]; (spoll_check if s.cfg.get('SPOLL',0) else poll_check)(s.P,f'p{q}'); stamp(s.P,22+q,s.diag)
        while s.wd and 56-len(s.wd)<(4 if s.M16 else 2)*(wd_order(s.cfg).index(f)+1): L+=s.wd.pop(0)
        if s.M16:
            pre,o=s.S[n>>1].at((n>>1)*112*1024+f*1024+(n&1)*256)
            return L+pre+[f"buffer_load_dwordx4 {vr(s.BUF[k%s.NB],4)}, v248, {sp(rWS,4)}, {o} sc1"]
        pre,o=s.S[n].at(n*112*1024+f*1024)
        return L+pre+[f"buffer_load_dwordx4 {vr(s.BUF[k%s.NB],4)}, v{vL16}, {sp(rWS,4)}, {o} sc1"]
    def run(s, ctail, flag_due):
        P=s.P; cfg=s.cfg; diag=s.diag; work=s.work; ACC=s.ACC; ends=s.ends
        AH=cfg.get('DAHEAD',14); assert AH<=s.NB; s.inD=True
        M16=s.M16; NM=4 if M16 else 2
        nA=max(k for k,(f,n) in enumerate(work) if n<(2 if M16 else 1))
        GB=44; XF=56; R=[120,144]; RD=[72,73,74]; VO,VW=75,76
        fill=f"""v_add_u32 v{VW}, s{sXM}, v{vL16}
s_lshl_b32 s{sT2}, s{sNT}, 15
s_lshl_b32 s{sT1}, s{sMT}, 5
s_add_u32 s{sT2}, s{sT2}, s{sT1}
s_add_u32 s{sT3}, s{sT2}, 32768
v_and_b32 v{VO}, 31, v{vLANE}
v_lshrrev_b32 v77, 5, v{vLANE}
v_lshlrev_b32 v{VO}, 10, v{VO}
v_lshl_add_u32 v{VO}, v77, 4, v{VO}""".split('\n')
        XA=vXA
        if M16:
            assert cfg.get('RXD',0); XA=79
            fill=fill[:-4]+f"""v_lshrrev_b32 v77, 5, v{vLANE}
v_and_b32 v{VO}, 15, v{vLANE}
v_lshl_add_u32 v{VO}, v77, 4, v{VO}
v_and_b32 v78, 16, v{vLANE}
v_lshl_add_u32 v{VO}, v{VO}, 10, v78
v_bfe_u32 v79, v{vLANE}, 2, 2
v_lshlrev_b32 v79, 1, v79
v_add3_u32 v79, v79, v78, v77
v_and_b32 v77, 3, v{vLANE}
v_lshl_add_u32 v79, v79, 2, v77
v_lshl_add_u32 v79, v79, 3, s{sXM}""".split('\n')
        fill+=[f"v_xor_b32 v{RD[j-1]}, {j*NS*1024}, v{VW}" for j in (1,2,3)]
        late={}
        if cfg.get('RXD',0):
            assert ka.XIN
            fill+=xsrc(13,sNT)+["v_xor_b32 v12, 128, v13", f"s_mul_i32 s{sT1}, s{sMT}, 98304", f"s_add_u32 s{sT1}, s{sT1}, {WS_XG}", f"s_add_u32 m0, s{sXM}, {L_XS}", f"s_sub_u32 s{sT4}, s{sT1}, 1024",
                  f"s_lshl_b32 s{sT0}, s{sMT}, 6", f"s_add_u32 s{sT0}, s{sT0}, {WS_GBF}", (f"v_lshlrev_b32 v78, 1, v78" if M16 else f"v_and_b32 v78, 32, v{vLANE}")]
            r0=cfg.get('RXD')
            late[r0]=[(f"buffer_load_dwordx4 v13, {sp(rWS,4)}, s{sT1} offen sc1 lds",'rx')]
            late[r0+1]=[(f"buffer_load_dwordx4 v12, {sp(rWS,4)}, s{sT4} offen offset:1024 sc1 lds",'rx')]
            late[r0+2]=[f"buffer_load_dwordx4 {vr(GB+4*q,4)}, v78, {sp(rWS,4)}, s{sT0} offen offset:{16*q} sc1" for q in range(2)]
            late[r0+3+AH]=["@wait rx"]+[f"ds_read_b64_tr_b16 {vr(80+2*q,2)}, v{XA} offset:{L_XS+(q>>1)*1024+(q&1)*256}" for q in range(4)]
            for z in range(4): late[r0+6+AH+z]=[y for k in (2*z,2*z+1) for y in (f"v_lshlrev_b32 v{XF+2*k}, 16, v{80+k}", f"v_and_b32 v{XF+2*k+1}, 0xffff0000, v{80+k}")]
        else:
            fill+=[f"v_accvgpr_read_b32 v{GB+k}, a{AG+k}" for k in range(8)]
            fill+=[f"v_accvgpr_read_b32 v{XF+2*k+1}, a{AX+k}" for k in range(8)]
            for k in range(8): fill+=[f"v_lshlrev_b32 v{XF+2*k}, 16, v{XF+2*k+1}", f"v_and_b32 v{XF+2*k+1}, 0xffff0000, v{XF+2*k+1}"]
        ROWO=cfg.get('ROWO',0)
        if ROWO:
            assert cfg.get('RXD',0) and cfg.get('EARLY0',0) and not M16
            L_XE=L_RING+48*1024; VW1,RA_,RX_,XW=77,72,73,74
            fill=f"""v_lshrrev_b32 v79, 5, v{vLANE}
v_lshlrev_b32 v79, 6, v79
v_xor_b32 v79, v79, v{vL16}
v_add_u32 v{VW}, s{sXM}, v79
v_xor_b32 v{VW1}, 128, v{VW}
s_lshr_b32 s{sT1}, s{sW}, 1
s_lshl_b32 s{sT1}, s{sT1}, 7
v_xor_b32 v79, s{sT1}, v79
s_lshl_b32 s{sT1}, s{sW}, 11
s_add_u32 s{sT1}, s{sT1}, {L_XE}
v_add_u32 v{XW}, s{sT1}, v79
v_lshrrev_b32 v{VO}, 3, v{vLANE}
s_lshl_b32 s{sT1}, s{sW}, 3
v_add_u32 v{VO}, s{sT1}, v{VO}
v_and_b32 v78, 3, v{vLANE}
v_lshlrev_b32 v78, 2, v78
v_xor_b32 v{RA_}, v78, v{VO}
v_and_b32 v78, 1, v{vLANE}
v_lshl_add_u32 v{RA_}, v78, 5, v{RA_}
v_bfe_u32 v78, v{vLANE}, 2, 1
v_lshl_add_u32 v{RA_}, v78, 7, v{RA_}
v_and_b32 v78, 2, v{vLANE}
v_lshl_add_u32 v{RA_}, v78, 7, v{RA_}
v_lshlrev_b32 v{RA_}, 4, v{RA_}
v_add_u32 v{RX_}, {L_XE}, v{RA_}
v_and_b32 v78, 7, v{vLANE}
v_lshlrev_b32 v{VO}, 10, v{VO}
v_lshl_add_u32 v{VO}, v78, 4, v{VO}
v_lshlrev_b32 v78, 5, v78
s_lshr_b32 s{sT0}, s{sMT}, 2
s_lshl_b32 s{sT2}, s{sNT}, 8
s_add_u32 s{sT2}, s{sT2}, s{sT0}
s_lshl_b32 s{sT2}, s{sT2}, 7
s_add_u32 s{sT3}, s{sT2}, 32768
s_lshl_b32 s{sT0}, s{sT0}, 8
s_add_u32 s{sT0}, s{sT0}, {WS_GBF}""".split('\n')
            fill+=xsrc(13,sNT)+["v_xor_b32 v12, 128, v13", f"s_mul_i32 s{sT1}, s{sMT}, 98304", f"s_add_u32 s{sT1}, s{sT1}, {WS_XG}", f"s_add_u32 m0, s{sXM}, {L_XS}", f"s_sub_u32 s{sT4}, s{sT1}, 1024"]
            for z in range(4): late.pop(r0+6+AH+z)
            for n in range(2): late[r0+6+AH+n]=[f"ds_write_b128 v{XW}, {vr(80+4*n,4)} offset:{n*1024}"]
        side=list(ctail)+fill
        piece=(lambda n,j,q: 184+16*(2*n+q)+4*j) if M16 else (lambda n,j,q: ACC[n][j&1]+8*(j>>1)+4*q)
        wr=[[f"ds_write_b128 v{VW}, {vr(piece(n,j,q),4)} offset:{L_XS+n*8192+j*2048+q*1024}" for j,q in ([(j,q) for q in range(2) for j in (1,2,3)] if M16 else [(j,q) for j in (2,1,3) for q in range(2)])] for n in range(2)]
        def reads(n): return [f"ds_read_b128 {vr(R[n]+8*(j-1)+4*q,4)}, v{RD[j-1]} offset:{L_XS+n*8192+j*2048+q*1024}" for j in (1,2,3) for q in range(2)]
        if ROWO:
            R=[88,120]
            wr=[[f"ds_write_b128 v{VW1 if j>>1 else VW}, {vr(piece(n,j,q),4)} offset:{L_XS+n*8192+j*2048+q*1024}" for j in (0,2,1,3) for q in range(2)] for n in range(2)]
            def reads(n):
                L=[f"ds_read_b128 {vr(80+4*z,4)}, v{RX_} offset:{z*1024}" for z in range(2)] if n==0 else []
                return L+[f"ds_read_b128 {vr(R[n]+8*z+4*q,4)}, v{RA_} offset:{L_XS+z*NS*1024+n*8192+q*1024}" for z in range(4) for q in range(2)]
        def plain(L):
            o=[]
            for x in L:
                m=re.match(r"v_pk_(add|fma)_f32 (.*)",x)
                if not m: o.append(x); continue
                rs=[int(t) for t in re.findall(r"v\[(\d+):",x)]
                o+=[f"v_{m.group(1)}_f32 "+", ".join(f"v{r+e}" for r in rs) for e in range(2)]
            return o
        def final(n):
            r=R[n]; L=[]
            unp=lambda z:[y for k in range(4*z,4*z+4) for y in (f"v_lshlrev_b32 v{XF+2*k}, 16, v{80+k}", f"v_and_b32 v{XF+2*k+1}, 0xffff0000, v{80+k}")]
            if ROWO:
                L+=unp(n)
                for k in range(0,8,2): L+=[f"v_pk_add_f32 {vr(r+k,2)}, {vr(r+k,2)}, {vr(r+8+k,2)}"]
                for k in range(0,8,2): L+=[f"v_pk_add_f32 {vr(r+16+k,2)}, {vr(r+16+k,2)}, {vr(r+24+k,2)}"]
                for k in range(0,8,2): L+=[f"v_pk_add_f32 {vr(r+k,2)}, {vr(r+k,2)}, {vr(r+16+k,2)}"]
            else:
                for k in range(0,8,2): L+=[f"v_pk_add_f32 {vr(r+k,2)}, {vr(r+k,2)}, {vr(piece(n,0,k>>2)+(k&3),2)}"]
                for k in range(0,8,2): L+=[f"v_pk_add_f32 {vr(r+8+k,2)}, {vr(r+8+k,2)}, {vr(r+16+k,2)}"]
                for k in range(0,8,2): L+=[f"v_pk_add_f32 {vr(r+k,2)}, {vr(r+k,2)}, {vr(r+8+k,2)}"]
            if M16: L+=[f"v_permlane32_swap_b32 v{r+k}, v{r+4+k}" for k in range(4)]
            for k in range(0,8,2): L+=[f"v_pk_fma_f32 {vr(r+k,2)}, {vr(r+k,2)}, {vr(GB+k,2)}, {vr(XF+8*n+k,2)}"]
            for k in range(0,8,2): L+=[f"v_cvt_pk_bf16_f32 v{8+4*n+k//2}, v{r+k}, v{r+k+1}"]
            if not cfg.get('NOOUT'): L.append(f"buffer_store_dwordx4 {vr(8+4*n,4)}, v{VO}, {sp(rOUT,4)}, s{sT2+n} offen {cfg.get('OST','')}")
            return L
        E0=cfg.get('EARLY0',0); e0=None
        if E0: R[0]=88
        started=set(); g=0; FD=cfg.get('FLAGD2',26)
        if cfg.get('C0AT',999)>=231: poll_check(P,'p0'); stamp(P,14,diag)
        TL=cfg.get('TAILLD',6)
        if TL:
            nt=len(ctail); per=-(-nt//TL)
            while nt>0:
                if s.li<AH and s.can_load(): P.extend(s.load())
                c=min(per,nt); P.extend(side[:c]); side=side[c:]; nt-=c
            while s.nflag<len(ends)-1:
                P.I(f"@wait act{ends[s.nflag]-1}"); P.extend(flag_store(s.nflag)); s.nflag+=1
            while s.li<AH and s.can_load(): P.extend(s.load())
            flag_due[len(ends)-1]=cfg.get('FL2',10)
        stamp(P,15,diag)
        P.I("@mark d")
        for k,(f,n) in enumerate(work):
            while s.li<=k:
                if not s.can_load():
                    P.extend(side); side=[]
                    P.I(f"@wait act{ends[s.nflag]-1}"); P.extend(flag_store(s.nflag)); s.nflag+=1; print('  D: forced flag at',k)
                else: P.extend(s.load())
            for m4 in range(NM):
                if M16:
                    j=(1,2,3,0)[m4]; a=vr(184+16*n+4*j,4)
                    P.I(f"v_mfma_f32_16x16x32_bf16 {a}, {ar(kap(f)+4*j,4)}, {vr(s.BUF[k%s.NB],4)}, {a if (n,j) in started else 0}"); started.add((n,j))
                    free=2-(m4==3); m=m4>>1
                    if not m4&1:
                        if m4==0 and s.li<len(work) and s.li<=k+AH-1 and s.li-s.NB<k and s.can_load():
                            L=s.load(); P.extend(L); free-=len(L)
                        while side and g>=2 and cost(side[0])<=free and not isinstance(side[0],tuple):
                            x=side.pop(0); P.extend([x]); free-=cost(x)
                        continue
                    g+=1
                else:
                    m=m4; a=vr(ACC[n][m],16)
                    P.I(f"v_mfma_f32_32x32x16_bf16 {a}, {ar(8*f+4*m,4)}, {vr(s.BUF[k%s.NB],4)}, {a if (n,m) in started else 0}"); started.add((n,m))
                    g+=1; free=6-m
                if s.nflag<len(ends) and g>=flag_due.get(s.nflag,999):
                    P.I(f"@wait act{ends[s.nflag]-1}"); P.extend(flag_store(s.nflag)); print('  D: flag',s.nflag,'at item',k,'li',s.li); s.nflag+=1; free-=4
                if s.li<len(work) and s.li<=k+AH-(1-m)-(1 if M16 else 0) and s.li-s.NB<k+m and s.can_load():
                    L=s.load(); P.extend(L); free-=len(L)
                if m==0 and k in late:
                    assert not side
                    L=late.pop(k); P.extend(L); free-=len(L)
                if (m or E0==2) and k>nA+1 and wr[0]: P.I(wr[0].pop(0)); free=0
                elif E0 and not wr[0] and e0 is None and m:
                    assert not side and not late
                    P.I("s_waitcnt lgkmcnt(0)\ns_barrier"); e0=g; side=reads(0)+['s_waitcnt lgkmcnt(0)']+plain(final(0)); free-=3
                while side and g>=2 and cost(side[0])<=free and not (e0 is not None and g<e0+3+ROWO and not side[0].startswith('ds_')):
                    x=side.pop(0); P.extend([x]); free-=cost(x)
                    if isinstance(x,tuple) and int(x[1][3:])+1 in ends: flag_due[ends.index(int(x[1][3:])+1)]=g+FD
        P.I("@mark end")
        if E0: print('  D: early finish left',len(side),e0)
        rest0=side if E0 else []; side=[] if E0 else side
        assert not side and not late and s.nflag==len(ends) and (e0 is not None or not E0)
        P.extend(wr[0])
        stamp(P,17,diag)
        for i,x in enumerate(wr[1]):
            if i==0: P.extend(rest0[:8]); rest0=rest0[8:]
            P.I(x); P.extend(rest0[:3]); rest0=rest0[3:]
        P.I("s_waitcnt lgkmcnt(0)\ns_barrier")
        if E0: P.extend(reads(1)); P.extend(rest0); P.extend(final(1))
        else: P.extend(reads(0)); P.extend(reads(1)); P.extend(final(0)); P.extend(final(1))
```

```python
from prog import *
from layout import *
import ka, kc
from ka import sp, vr, mksrd, stamp, stamp_out, rWS, rWJ, rOUT, sW, sTAG, sP, sIDX, sXCD, sFS, sCG, sKE, sT0, sT1, sT2, sT3
NAME='adaLN_cond__ssm_conv_s4__geglu_ffn__prompt_kernel'
sFXo,sFDo,sFXi,sFDi,sFWo,sFWi = 40,41,99,93,89,92
vTG=251; vFV,vFA,vFB=247,246,252
T4=248
def build(P, diag, cfg):
    cfg=dict(cfg); cfg.update(XST='sc1',ST='sc1',WLD='sc1',XLD='sc1')
    kc.FS=cfg.get('FS',4); ka.XIN=cfg.get('XIN',0); ka.ONLY=cfg.get('ONLY'); ka.BACKOFF=cfg.get('BACKOFF',0); ka.PREW=cfg.get('PREW',1); ka.SGP=cfg.get('SGP',0)
    C=kc.PhaseC(cfg)
    L=ka.vLANE
    FS=cfg.get('FS',4)
    EX=hex((1<<(1<<(FS-4)))-1)
    def line(so, reg, r=rWS):
        return [f"s_mov_b64 exec, {EX}", f"buffer_store_dwordx4 {vr(reg,4)}, v{ka.vL16}, {sp(r,4)}, s{so} offen sc1", "s_mov_b64 exec, -1"]
    H={}
    H['setup']=mksrd(rOUT,ka.sOUT,2097152)+f"""s_lshl_b32 s{sFXo}, s{sP}, {FS}
s_add_u32 s{sFXo}, s{sFXo}, {WS_FX}
s_and_b32 s{sT0}, s{sFS}, 1
s_mul_i32 s{sT0}, s{sT0}, 112
s_lshr_b32 s{sFDo}, s{sFS}, 1
s_add_u32 s{sFDo}, s{sFDo}, s{sT0}
s_lshl_b32 s{sFDo}, s{sFDo}, {FS}
s_add_u32 s{sFDo}, s{sFDo}, {WS_FD}
s_lshl3_add_u32 s{sFWo}, s{sCG}, s{sKE}
s_lshl_b32 s{sFWo}, s{sFWo}, {FS}
s_add_u32 s{sFWo}, s{sFWo}, {WS_FW}
v_min_u32 v{vFA}, 27, v{L}
v_lshlrev_b32 v{vFA}, {FS}, v{vFA}""".split('\n')
    def idle(P):
        for i in range(4): P.I(f"v_mov_b32 v{T4+i}, s{sTAG}")
        P.I(f"""{f's_and_b32 s{sT0}, s{sXCD}, 1' if cfg.get('DM',0) else f's_bfe_u32 s{sT0}, s{sIDX}, 0x10002'}
s_lshl2_add_u32 s{sT0}, s{sT0}, s{sW}
s_mul_i32 s{sT0}, s{sT0}, {28<<FS}
s_add_u32 s{sFDi}, s{sT0}, {WS_FD}
s_cmp_lg_u32 s{sW}, 3
s_cbranch_scc1 L_main""")
        if cfg.get('TOUCH',1): P.I("s_mov_b64 exec, 0\ns_branch L_touch0\nL_touched:\ns_mov_b64 exec, -1")
        P.I(f"s_lshl_b32 s{sT0}, s{sP}, 9\ns_add_u32 s{sT0}, s{sT0}, {WS_FLAG}")
        for i in range(4): P.I(f"v_add_u32 v{4+i}, -1, v{T4}")
        P.I(f"s_waitcnt vmcnt({0 if cfg.get('M2AT',0) else 8})\ns_mov_b32 exec_hi, 0")
        P.I(line(sT0,4)[1]); P.I(f"s_mov_b64 exec, {EX}")
        P.I(line(sFXo,4)[1]); P.I(line(sFDo,4,rWJ)[1])
        if cfg.get('FW',0): P.I(line(sFWo,4,rWJ)[1])
        P.I(f"s_mov_b64 exec, -1\ns_branch {'L_f1' if cfg.get('CUT',0) else 'L_xje'}\n.p2align 12\nL_main:")
    H['idle']=idle; H['own_param_wait']=True
    H['midbar']=[f"s_cmp_lg_u32 s{sW}, 3","s_cbranch_scc1 L_nofd"]+line(sFDo,T4,rWJ)+["L_nofd:"]
    H['postbar' if cfg.get('FDP',0) else 'pre']=[f"buffer_load_dword v{vFV}, v{vFA}, {sp(rWS,4)}, s{sFDi} offen sc1"]
    wd=kc.wd_load_list(cfg,'sc1'); dm=kc.d_maps(cfg.get('DM',0),cfg.get('M16',0),cfg.get('ROWO',0))
    WV=cfg.get('WDV',0)
    if WV:
        assert cfg.get('WDLIN')==2 and WV<=24 and not cfg.get('M16',0)
        Q=Prog(); kc.poll_check(Q,'fd',vPV=vFV)
        H['setup']+=[x for x in dm if x.startswith('s_') and 's52' not in x and 's53' not in x]+[f"s_mov_b32 s{kc.sFB}, s{kc.sT3}", f"s_mov_b32 s{kc.sCNT}, 1"]
        H['v2side']=[x for x in dm if 's52' in x or 's53' in x]+["s_nop 0", f"v_xor_b32 v{kc.vWL}, s{kc.sFB}, v{ka.vL16}"]
        H['hook']={tuple(cfg.get('WDVP',[2,14])):H.pop('pre'), tuple(cfg.get('WDVC',[3,2])):[x.text for x in Q.ins]}
        H['v3mem']=[wd.pop(0) for _ in range(WV)]
    FW=cfg.get('FW',0)
    if FW:
        H['prebar']=["@wait wpst"]
        H['postbar']=[f"s_cmp_lg_u32 s{sW}, 3","s_cbranch_scc1 L_nofw"]+line(sFWo,T4,rWJ)+["L_nofw:"]
    ka.body(P,NAME,diag,cfg,H)
    stamp(P,9,diag)
    if WV: P.I(f"v_mov_b32 v{kc.vL16}, v{ka.vL16}")
    else:
        P.extend(dm); P.I(f"s_mov_b32 s{kc.sCNT}, 1")
        kc.poll_check(P,'fd',vPV=vFV)
    if diag: P.I(f"v_writelane_b32 v255, s{kc.sCNT}, 62\nv_writelane_b32 v255, s{ka.sCNT}, 61")
    for i in range(cfg.get('WDA',8)): P.extend(wd.pop(0))
    P.I(f"s_cmp_lg_u32 s{sW}, 3\n@wait x1st auxst wpst\ns_barrier\ns_cbranch_scc1 L_nofx")
    P.extend(line(sFXo,T4))
    P.I(f"""s_cmp_lg_u32 s2, 0
s_cbranch_scc1 L_nofx
s_mov_b64 exec, 1
buffer_store_dword v{vTG}, v{ka.vL16}, {sp(rWS,4)}, {WS_EPOCH} offen
s_mov_b64 exec, -1
L_nofx:""")
    stamp(P,19,diag)
    fill=kc.c_maps()+C.setup()+[f"v_lshlrev_b32 v{vFA}, {FS}, v0", f"s_mov_b32 s{sFXi}, {WS_FX}"]
    fill+=f"""s_and_b32 s{sT1}, s{sXCD}, 3
s_and_b32 s{sT2}, s{sIDX}, 3
s_lshl2_add_u32 s{sT1}, s{sT1}, s{sT2}
s_mul_i32 s{sT1}, s{sT1}, 7
s_lshr_b32 s{sT1}, s{sT1}, 2
s_lshl_b32 s{sT1}, s{sT1}, {3+FS}
s_add_u32 s{sFWi}, s{sT1}, {WS_FW}
v_and_b32 v{vFB}, {15<<FS}, v{vFA}""".split('\n')
    ot=cfg.get('OTOUCH',0)
    if ot:
        P.I(f"""v_lshrrev_b32 v4, 3, v{L}
v_and_b32 v5, 7, v{L}
v_lshlrev_b32 v4, 10, v4
v_lshl_add_u32 v4, v5, 4, v4
s_lshl1_add_u32 s{sT1}, s{kc.sNT}, s{sW}
s_lshl_b32 s{sT1}, s{sT1}, 14
s_lshr_b32 s{sT2}, s{kc.sMT}, 2
s_lshl_b32 s{sT2}, s{sT2}, 7
s_add_u32 s{sT1}, s{sT1}, s{sT2}
s_add_u32 s{sT2}, s{sT1}, 8192""")
        for u in range(2):
            if ot==1: P.I(f"buffer_store_dwordx4 v[16:19], v4, {sp(rOUT,4)}, s{sT1+u} offen sc1")
            else: P.I(f"buffer_load_dwordx4 v[{16+4*u}:{19+4*u}], v4, {sp(rOUT,4)}, s{sT1+u} offen")
    nB=cfg.get('WDB',8 if FW else 16)
    for i in range(nB):
        P.extend(wd.pop(0)); k=-(-len(fill)//(nB-i)); P.extend(fill[:k]); fill=fill[k:]
    P.extend(fill)
    if FW:
        P.I(f"buffer_load_dword v{vFV}, v{vFB}, {sp(rWS,4)}, s{sFWi} offen sc1")
        for i in range(cfg.get('WDB2',6)): P.extend(wd.pop(0))
        kc.poll_check(P,'fw',vPV=vFV)
        stamp(P,22,diag)
        C.pre(P,cfg.get('WPA',8),'w')
    QS=cfg.get('QSYNC',0)
    if QS:
        P.I(f"v_and_b32 v{kc.vQA}, 15, v{L}\ns_lshl_b32 s{sT1}, s{sW}, {4+FS}\nv_lshl_add_u32 v{kc.vQA}, v{kc.vQA}, {FS}, s{sT1}")
        P.extend(kc.qpoll(0))
        for i in range(cfg.get('WDC',6)): P.extend(wd.pop(0))
        stamp(P,20,diag)
        kc.poll_check(P,'fx0',vPV=kc.vQV)
        P.I("s_barrier")
        stamp(P,21,diag)
        C.pre(P,cfg.get('QPRE',5)); P.extend(kc.qpoll(1)); C.pre(P,99)
    else:
        P.I(f"buffer_load_dword v{vFV}, v{vFA}, {sp(rWS,4)}, s{sFXi} offen sc1")
        if FW: C.pre(P,8*G1-cfg.get('WPA',8),'w')
        for i in range(cfg.get('WDC',0 if FW else 6)): P.extend(wd.pop(0))
        stamp(P,20,diag)
        kc.poll_check(P,'fx',vPV=vFV)
        P.I("s_barrier")
        stamp(P,21,diag)
        C.pre(P,cfg.get('PRE',12 if FW else 16))
    if diag: P.I(f"v_writelane_b32 v255, s{kc.sCNT}, 63")
    D=kc.PhaseD(P,cfg,diag,wd)
    D.run(*C.run(P,diag,wd,[],D))
    if diag: P.I(f"v_writelane_b32 v255, s{kc.sCNT}, 30")
    if diag: P.I("s_getreg_b32 s4, hwreg(HW_REG_XCC_ID)\ns_and_b32 s4, s4, 15\nv_writelane_b32 v255, s4, 10")
    stamp(P,18,diag); stamp_out(P,0,diag)
    if cfg.get('DBGOUT') is not None:
        P.I(f"""s_cmp_ge_u32 s2, 8
s_cbranch_scc1 L_{NAME}_exit
s_cmp_lg_u32 s{sW}, 0
s_cbranch_scc1 L_{NAME}_exit
s_load_dwordx2 s[4:5], s[0:1], 128
v_readlane_b32 s6, v255, {cfg['DBGOUT']}
s_getreg_b32 s7, hwreg(HW_REG_XCC_ID)
s_and_b32 s7, s7, 15
s_and_b32 s6, s6, 0xffff
v_mov_b32 v4, s6
v_mov_b32 v5, s7
s_lshl_b32 s6, s2, 2
v_mov_b32 v6, s6
s_waitcnt lgkmcnt(0)
s_mov_b64 exec, 1
global_store_dword v6, v4, s[4:5]
global_store_dword v6, v5, s[4:5] offset:32""")
    P.I(f"L_{NAME}_exit:\ns_endpgm\n@nomore")
    loc=cfg.get('LOC',0)==1
    mk=cfg.get('RMASK',0)
    ka.retry_block(P,loc,mk); ka.retry2_block(P,loc,mk)
    kc.poll_retry(P,'fd',0,vFV,vFA,sFDi,loc,mk);
    if QS:
        for q in range(4): kc.poll_retry(P,f'fx{q}',0,kc.vQV,kc.vQA,kc.sQP,loc)
    else: kc.poll_retry(P,'fx',0,vFV,vFA,sFXi,loc,mk)
    if FW: kc.poll_retry(P,'fw',0,vFV,vFB,sFWi,loc)
    for s_ in range(len(kc.d_parts(cfg))):
        if s_ and cfg.get('SPOLL',0): kc.spoll_retry(P,f'p{s_}',s_)
        else: kc.poll_retry(P,f'p{s_}',128*s_)
    return [(NAME,256,256,kc.LDS_C,512)]
```

```python
from prog import *
from layout import *
import struct
def f32(x): return struct.unpack('<I',struct.pack('<f',x))[0]
LOG2E = 0x3fb8aa3b
XIN = 0
sX,sARE,sAIM,sBRE,sBIM,sCRE,sCIM,sLDT,sDSK,sBX,sWG,sWU,sWD,sC,sWM,sOUT,sDBG,sWS = [8+2*i for i in range(18)]
rR,rWG,rWU,rWD,rOUT,rWS,rWJ = 44,48,52,56,60,64,68
sXCD,sIDX,sP,sW,sTAG,sLD,sDS = 72,73,74,75,76,77,78
sT0,sT1,sT2,sT3,sT4,sT5 = 80,81,82,83,84,85
sWO,sWST,sWA = 86,87,88
sCG,sKE,sFS,sCNT = 26,27,97,98
def sp(a,n=2): return f"s[{a}:{a+n-1}]"
def vr(a,n): return f"v[{a}:{a+n-1}]"
def ar(a,n): return f"a[{a}:{a+n-1}]"
def mksrd(d,b,size):
    return [f"s_mov_b32 s{d}, s{b}", f"s_and_b32 s{d+1}, s{b+1}, 0xffff", f"s_mov_b32 s{d+2}, {size}", f"s_mov_b32 s{d+3}, 0x20000"]
vLANE = 1
vT16,vMC,vMW = 12,13,14
vPAR = 16
vTAB = 24
vRA = 32
vROLE = 40
vFG = 120
vPOLL = 160
vPOL2 = 152
vXF = 192
vHF = 208
vKA,vUA,vYW,vYR,vWRA,vXO,vGR,vL16 = 224,225,226,227,228,229,230,231
vMOD = 232
vKF,vKC,vGW,vSEL1,vSEL2 = 240,241,242,243,244

ONLY=None
import os
LATE0=int(os.environ.get('LATE0','0'))
JIT=os.environ.get('JIT','')
def stamp(P, n, diag):
    if JIT:
        P.I(f"s_waitcnt lgkmcnt(0)\ns_memtime s[100:101]\ns_waitcnt lgkmcnt(0)\ns_cselect_b32 s5, 1, 0\ns_lshr_b32 s100, s100, 3\ns_and_b32 s100, s100, {JIT}\ns_cbranch_scc1 L_jit{len(P.ins)}\ns_sleep 40\nL_jit{len(P.ins)}:\ns_cmp_lg_u32 s5, 0")
    if diag and (ONLY is None or n in ONLY): P.I(f"s_memrealtime s[4:5]\ns_memtime s[100:101]\ns_waitcnt lgkmcnt(0)\nv_writelane_b32 v255, s4, {n}\nv_writelane_b32 v255, s100, {32+n}")
def stamp0_issue(P, diag):
    if diag: P.I("v_mov_b32 v255, 0\ns_memrealtime s[4:5]\ns_memtime s[100:101]")
def stamp0_commit(P, diag):
    if diag: P.I("v_writelane_b32 v255, s4, 0\nv_writelane_b32 v255, s100, 32")
def stamp_out(P, kidx, diag):
    if diag:
        P.I(f"""s_lshl_b32 s4, s2, 10
s_add_u32 s4, s4, {WS_STAMP + kidx*0x40000}
v_lshlrev_b32 v2, 2, v0
buffer_store_dword v255, v2, {sp(rWS,4)}, s4 offen""")

def bf16_round(l):
    u=f32(float(l)); u=(u+0x7fff+((u>>16)&1))&0xffff0000
    return int(struct.unpack('<f',struct.pack('<I',u))[0])
def table_words():
    rec=[]
    for T in range(256):
        a=[]
        for j in range(11):
            lag=2047-8*T-j
            if lag<0: a.append(L_CZ); continue
            lam=bf16_round(lag); b=(lam>>3)&15; i=HI.index(lam-8*b)
            a.append(L_C+i*CP+4*b)
        a.append(0)
        w=T>>6; lane=T&63; ch=w>>1; vh=w&1
        ka_=L_KI+ch*4*KIP+(lane&3)*KIP+2*(2044-16)-3584-192-256*vh+(lane&48)-2*(lane&12)
        ua_=L_H+ch*HP+448-192-256*vh+32*(lane&15)+(lane&48)
        rec.append([a[2*k]|(a[2*k+1]<<16) for k in range(6)]+[ka_,ua_])
    return [rec[T][4*q+k] for q in range(2) for T in range(256) for k in range(4)]

def entry(P, name, diag, nlines, perm):
    P.I(f".globl {name}\n.p2align 8\n.type {name},@function\n{name}:\n@reset")
    ng=(nlines+15)//16; assert ng&(ng-1)==0 and ng<=32
    if LATE0: P.I(f"s_and_b32 s4, s2, 7\ns_cbranch_scc1 L_nolate\ns_sleep {LATE0}\nL_nolate:")
    P.I(f"""s_cmp_ge_u32 s2, 256
s_cbranch_scc1 L_{name}_exit
s_load_dwordx16 s[8:23], s[0:1], 0
s_load_dwordx16 s[24:39], s[0:1], 64
s_load_dwordx4 s[40:43], s[0:1], 128
s_getpc_b64 s[6:7]
L_pc:
s_mov_b64 exec, -1
v_lshrrev_b32 v2, 6, v0
v_and_b32 v{vLANE}, 63, v0
s_lshr_b32 s{sIDX}, s2, 3
v_readfirstlane_b32 s{sW}, v2
s_and_b32 s{sT0}, s{sIDX}, {ng-1}
s_lshl_b32 s{sT0}, s{sT0}, 11
v_lshl_add_u32 v3, v{vLANE}, 5, s{sT0}
s_cmp_lg_u32 s{sW}, 3
s_cbranch_scc1 L_nopf
global_load_dword v15, v3, s[6:7]
L_nopf:""")
    stamp0_issue(P,diag)
    P.I(f"s_and_b32 s{sXCD}, s2, 7")
    if perm: P.I(f"s_lshl_b32 s{sXCD}, s{sXCD}, 2\ns_lshr_b32 s{sXCD}, {hex(sum(v<<(4*k) for k,v in enumerate(perm)))}, s{sXCD}\ns_and_b32 s{sXCD}, s{sXCD}, 7")
    P.I(f"""s_lshl_b32 s{sP}, s{sXCD}, 5
s_add_u32 s{sP}, s{sP}, s{sIDX}""")

def role_addr(P, loc=0):
    P.I(f"""s_cmp_eq_u32 s{sW}, 0
s_cselect_b32 s{sT3}, 8, 1
s_lshl_b32 s{sT2}, s{sT3}, 10
s_lshl_b32 s{sT3}, s{sT3}, 7
s_and_b32 s{sT4}, s{sP}, 7
s_lshl_b32 s{sT4}, s{sT4}, 7""")
    if loc: P.I(f"s_lshl_b32 s{sT0}, s{sIDX}, 9\ns_add_u32 s{sT0}, s{sT0}, s{sXCD}\ns_lshl_b32 s{sT0}, s{sT0}, 7")
    else: P.I(f"s_lshr_b32 s{sT0}, s{sP}, 3\ns_lshl_b32 s{sT0}, s{sT0}, 16\ns_add_u32 s{sT0}, s{sT0}, s{sT4}")
    P.I(f"""s_lshl_b32 s{sT1}, s{sP}, 13
s_cmp_eq_u32 s{sW}, 0
s_cselect_b32 s{sT0}, s{sT0}, s{sT1}
s_and_b32 s{sT5}, s{sW}, 1
s_sub_u32 s92, 7, s{sT5}
s_lshr_b32 s{sT1}, s{sP}, s92
s_lshl1_add_u32 s{sT1}, s{sT5}, s{sT1}
s_lshl_b32 s{sT1}, s{sT1}, 10
s_add_u32 s{sT4}, s{sT4}, s{sT1}
s_and_b32 s{sT1}, s{sP}, 0xf8
s_add_u32 s92, s{sT5}, 2
s_lshl_b32 s{sT1}, s{sT1}, s92
s_and_b32 s{sT5}, s{sT1}, 511
s_mul_i32 s{sT1}, s{sT5}, 6144
s_add_u32 s{sT1}, s{sT1}, s{sT4}
s_mov_b32 s{sT4}, 3145728
s_cmp_lt_u32 s{sW}, 2
s_cselect_b32 s94, s{sT0}, s{sT1}
s_cselect_b32 s{sT2}, s{sT2}, 6144
s_cselect_b32 s79, s{sT3}, {8*6144}
s_cselect_b32 s{rR+2}, 2097152, s{sT4}
s_mov_b32 s{rR+3}, 0x20000
v_lshrrev_b32 v3, 3, v{vLANE}
v_mul_u32_u24 v3, s{sT2}, v3
v_lshrrev_b32 v4, 2, v{vLANE}
v_and_b32 v4, 4, v4
v_and_b32 v5, 7, v{vLANE}
v_xor_b32 v4, v4, v5
v_lshl_add_u32 v22, v4, 4, v3
v_xor_b32 v23, 32, v22
s_lshl_b32 s3, s{sW}, 13
s_add_u32 s3, s3, {L_RR}
v_add_u32 v5, s{sT5}, v{vLANE}
v_and_b32 v5, 511, v5
v_lshlrev_b32 v5, 1, v5
s_lshl_b32 s{sT5}, s{sP}, 9
v_lshl_add_u32 v2, v0, 1, s{sT5}""")
    for i in range(6): P.I(f"v_mov_b32 v{vPAR+i}, 0")
    P.I(f"v_mov_b32 v{vROLE}, 0\ns_lshl_b32 s93, s{sP}, 2")
def param_loads(P, NT):
    P.extend([f"global_load_short_d16_hi v{vPAR+i}, v2, {sp(b)} {NT}" for i,b in enumerate((sARE,sAIM,sBRE,sBIM,sCRE,sCIM))])
def early_loads(P, NT, pfirst):
    if pfirst: param_loads(P,NT)
    P.I(f"""s_load_dword s{sTAG}, {sp(sWS)}, {WS_EPOCH}
s_load_dword s{sLD}, {sp(sLDT)}, s93
s_load_dword s{sDS}, {sp(sDSK)}, s93
s_cmp_lt_u32 s{sW}, 2
s_cselect_b64 {sp(rR)}, {sp(sX)}, {sp(sWM)}
s_and_b32 s{rR+1}, s{rR+1}, 0xffff""")
    P.I(f"global_load_short_d16_hi v{vROLE}, v5, {sp(sC)}")
    P.I(f"""s_add_u32 s6, s6, L_table-L_pc+4096
s_addc_u32 s7, s7, 0
v_lshlrev_b32 v{vT16}, 4, v0""")
def role_loads(P, XNT, late):
    lbl='L_rlb' if late else 'L_rla'
    P.I(f"s_cmp_eq_u32 s{sW}, 3\ns_cbranch_scc{0 if late else 1} {lbl}")
    for u in range(8):
        if u==4 and not late: P.I(f"s_cmp_eq_u32 s{sW}, 2\ns_cbranch_scc1 {lbl}")
        P.I(f"s_add_u32 m0, s3, {u*1024}")
        P.I(f"s_add_u32 s94, s94, s79" if u else "s_nop 0")
        P.I(f"buffer_load_dwordx4 v{22+(u&1)}, {sp(rR,4)}, s94 offen {XNT} lds", tag='rr')
    P.I(f"{lbl}:")
def table_loads(P):
    P.I(f"global_load_dwordx4 {vr(vTAB,4)}, v{vT16}, s[6:7] offset:-4096\nglobal_load_dwordx4 {vr(vTAB+4,4)}, v{vT16}, s[6:7]")

def setup(P, nowd=False, X='', wmap=0):
    P.extend(mksrd(rWS,sWS,WS_USED))
    P.I(f"{f's_cmp_lg_u32 s{sXCD}, 0' if wmap>=2 else f's_cmp_lt_u32 s{sIDX}, 28'}\ns_cselect_b32 s{sT0}, 1835008, 0\ns_cselect_b32 s{sT1}, {WS_USED}, 0")
    for r,b in ((rWG,sWG),(rWU,sWU),(rWD,sWD)): P.extend(mksrd(r,b,1835008 if (nowd and r==rWD) else f"s{sT0}"))
    P.extend(mksrd(rWJ,sWS,f"s{sT1}"))
    if 'w' in X: P.I(f"s_mov_b32 s{rWG+2}, 0\ns_mov_b32 s{rWU+2}, 0")
    if 'm' in X: P.I(f"s_mov_b32 s{rR+2}, 0")
    if 'd' in X: P.I(f"s_mov_b32 s{rWD+2}, 0")
    if 's' in X: P.I(f"s_min_u32 s{rWJ+2}, s{rWJ+2}, {WS_XG}")
    if wmap>=2:
        P.I(f"s_max_u32 s{sFS}, s{sP}, 32\ns_sub_u32 s{sFS}, s{sFS}, 32")
        if wmap==2: P.I(f"s_lshr_b32 s{sCG}, s{sFS}, 3\ns_and_b32 s{sKE}, s{sFS}, 7")
        else: P.I(f"s_mul_i32 s{sKE}, s{sFS}, 586\ns_lshr_b32 s{sKE}, s{sKE}, 14\ns_mul_i32 s{sCG}, s{sKE}, 28\ns_sub_u32 s{sCG}, s{sFS}, s{sCG}")
    elif wmap: P.I(f"s_mov_b32 s{sCG}, s{sIDX}\ns_mov_b32 s{sKE}, s{sXCD}")
    else: P.I(f"""s_and_b32 s{sCG}, s{sXCD}, 3
s_mul_i32 s{sCG}, s{sCG}, 7
s_lshr_b32 s{sT0}, s{sIDX}, 2
s_add_u32 s{sCG}, s{sCG}, s{sT0}
s_and_b32 s{sKE}, s{sXCD}, 4
s_and_b32 s{sT0}, s{sIDX}, 3
s_add_u32 s{sKE}, s{sKE}, s{sT0}""")
    P.I(f"""s_lshl2_add_u32 s{sT0}, s{sCG}, s{sW}
s_mul_i32 s{sT1}, s{sT0}, 147
s_lshr_b32 s{sT1}, s{sT1}, 10
s_mul_i32 s{sT2}, s{sT1}, 7
s_sub_u32 s{sT0}, s{sT0}, s{sT2}
s_mul_i32 s{sT1}, s{sT1}, 231
s_cmp_lt_u32 s{sT0}, {G1}
s_cselect_b32 s{sT2}, {G1}, 1
s_cselect_b32 s{sT3}, 1, 33
s_mul_i32 s{sT0}, s{sT0}, s{sT3}
s_add_u32 s{sT0}, s{sT0}, s{sT1}
s_lshl_b32 s{sT0}, s{sT0}, 10
s_add_u32 s{sT0}, s{sT0}, {WS_WPF}
s_lshl_b32 s{sWST}, s{sT2}, 10
s_mul_i32 s{sT3}, s{sWST}, s{sKE}
s_lshl2_add_u32 s{sWO}, s{sT3}, s{sT0}
s_lshl_b32 s{sT2}, s{sT2}, 15
s_add_u32 s{sWA}, s{sT2}, s{sT0}
s_lshl_b32 s{sT0}, s{sKE}, 7
s_add_u32 s{sWA}, s{sWA}, s{sT0}""")
    L=vLANE
    P.I(f"""v_lshlrev_b32 v{vL16}, 4, v{L}
v_and_b32 v2, 15, v{L}
v_and_b32 v3, 48, v{L}
v_lshrrev_b32 v4, 4, v{L}
v_lshrrev_b32 v5, 5, v{L}
v_and_b32 v6, 3, v{L}
s_mul_i32 s{sT2}, s{sW}, 10240
s_add_u32 s{sT2}, s{sT2}, {L_Y}
v_mul_u32_u24 v7, 320, v4
v_lshl_add_u32 v7, v2, 4, v7
v_add_u32 v{vYW}, s{sT2}, v7
v_lshrrev_b32 v7, 5, v0
v_mul_u32_u24 v7, 1280, v7
v_and_b32 v8, 1, v0
v_mul_u32_u24 v9, 640, v8
v_bfe_u32 v10, v0, 1, 4
v_lshl_add_u32 v9, v10, 4, v9
v_add_u32 v{vYR}, v7, v9
v_lshrrev_b32 v7, 2, v0
{f"s_and_b32 s{sT2}, s{sP}, 7" if XIN else ""}
{f"v_xor_b32 v7, s{sT2}, v7" if XIN else ""}
v_lshlrev_b32 v7, {7 if XIN else 15}, v7
v_lshl_add_u32 v{vXO}, v6, 4, v7
v_mul_u32_u24 v7, {FP}, v2
v_add_u32 v7, v7, v3
v_add_u32 v{vKF}, {L_F}, v7
v_mul_u32_u24 v7, {CP}, v2
s_mul_i32 s{sT2}, s{sW}, {16*CP}
v_add3_u32 v{vKC}, v7, v3, s{sT2}
v_bfe_u32 v7, v{L}, 2, 2
v_cvt_f32_u32 v{vSEL2}, v5
v_and_b32 v9, 31, v{L}
v_lshlrev_b32 v{vMC}, 12, v9
v_and_b32 v9, 8, v{L}
v_lshl_add_u32 v9, v9, 1, v2
v_lshlrev_b32 v{vSEL1}, 12, v9
v_lshl_add_u32 v9, v5, 3, v6
v_bfe_u32 v10, v{L}, 2, 3
v_lshlrev_b32 v11, 4, v10
v_lshl_add_u32 v{vMW}, v9, 12, v11
s_lshl_b32 s{sT2}, s{sW}, 6
s_add_u32 s{sT2}, s{sT2}, {L_GT+256}
v_lshl_add_u32 v10, v10, 3, s{sT2}
v_lshlrev_b32 v11, 8, v5
v_sub_u32 v{vGW}, v10, v11
v_lshlrev_b32 v10, 5, v5
v_add_u32 v{vGR}, {L_GT}, v10
v_and_b32 v9, 1, v4
v_lshl_add_u32 v10, v9, 1, v5
v_lshl_add_u32 v10, v10, 3, v7
v_lshl_add_u32 v10, v10, 1, v9
v_bfe_u32 v11, v{L}, 3, 1
v_lshl_add_u32 v10, v10, 1, v11
v_xor_b32 v10, s{sW}, v10
v_lshl_add_u32 v10, v10, 1, v8
v_bfe_u32 v11, v{L}, 1, 1
v_lshl_add_u32 v10, v10, 1, v11
v_lshlrev_b32 v10, 3, v10
v_add_u32 v{vWRA}, {L_WR}, v10""")
    P.I(f"""v_mul_u32_u24 v7, {HP}, v5
v_and_b32 v9, 31, v{L}
v_min_u32 v9, 29, v9
v_lshl_add_u32 v7, v9, 4, v7
v_add_u32 v7, {L_H}, v7
v_cmp_gt_u32 vcc, 64, v0
v_mov_b32 v9, {L_CZ}
v_mov_b32 v{vFG}, 0
v_cndmask_b32 v7, v9, v7, vcc
v_mov_b32 v{vFG+1}, 0
v_mov_b32 v{vFG+2}, 0
v_mov_b32 v{vFG+3}, 0
ds_write_b128 v7, {vr(vFG,4)}""")
    A0=vRA
    P.I(f"""v_lshrrev_b32 v2, 3, v{L}
v_and_b32 v3, 2, v2
v_mul_u32_u24 v2, 3584, v2
v_and_b32 v4, 7, v{L}
v_xor_b32 v3, v3, v4
v_xor_b32 v4, 4, v3
v_lshl_add_u32 v{A0+2}, v3, 4, v2
v_lshl_add_u32 v{A0+3}, v4, 4, v2
v_and_b32 v8, 1, v{L}
v_bfe_u32 v7, v{L}, 1, 3
v_mul_u32_u24 v7, {KIP}, v7
v_lshl_add_u32 v7, v8, 4, v7
v_add_u32 v{A0+1}, {L_KI+4096}, v7
s_mul_i32 s{sT0}, s{sKE}, {64*3584}
s_lshl_b32 s{sT1}, s{sCG}, 7
s_add_u32 s90, s{sT0}, s{sT1}""")
    if not nowd: P.I(f"""v_lshrrev_b32 v2, 2, v{L}
v_and_b32 v5, 3, v{L}
v_lshlrev_b32 v5, 4, v5
v_lshl_add_u32 v{A0+4}, v2, 10, v5
v_lshrrev_b32 v6, 5, v{L}
v_and_b32 v7, 3, v2
v_lshl_add_u32 v6, v6, 3, v7
v_bfe_u32 v7, v{L}, 4, 1
v_lshl_add_u32 v6, v6, 1, v7
v_lshl_add_u32 v6, v6, 1, v8
v_bfe_u32 v7, v{L}, 1, 1
v_lshl_add_u32 v6, v6, 1, v7
v_lshlrev_b32 v6, 3, v6
v_add_u32 v{A0}, {L_DR}, v6
{"" if wmap>=2 else f"s_mul_i32 s{sFS}, s{sXCD}, 28"}
{"" if wmap>=2 else f"s_add_u32 s{sFS}, s{sFS}, s{sIDX}"}
s_lshr_b32 s{sT2}, s{sFS}, 1
s_lshl_b32 s{sT2}, s{sT2}, 14
s_and_b32 s{sT1}, s{sFS}, 1
s_lshl_b32 s{sT1}, s{sT1}, 9
s_add_u32 s91, s{sT2}, s{sT1}""")

def x_jobs(P, PUB, diag, loc=0):
    R=vROLE; G=vROLE+32; L=vLANE
    P.I(f"s_cmp_eq_u32 s{sW}, 2\ns_cbranch_scc1 L_rj2\ns_cmp_eq_u32 s{sW}, 1\ns_cbranch_scc1 L_rj1")
    P.I(f"""v_and_b32 v2, 7, v{L}
v_lshrrev_b32 v3, 3, v{L}
v_and_b32 v4, 2, v2
v_lshlrev_b32 v4, 1, v4
v_xor_b32 v4, v4, v3
v_lshlrev_b32 v4, 4, v4
v_lshl_add_u32 v4, v2, 7, v4
v_add_u32 v4, {L_RR}, v4
v_xor_b32 v5, 32, v4
v_mul_u32_u24 v3, {4*12288}, v3
v_lshl_add_u32 v2, v2, 4, v3
{f"s_mov_b32 s{sT0}, s{sXCD}" if loc else f"s_and_b32 s{sT0}, s{sP}, 7"}
s_mul_i32 s{sT0}, s{sT0}, {32*12288}
{f"s_lshl_b32 s{sT1}, s{sIDX}, 3" if loc else f"s_and_b32 s{sT1}, s{sP}, 0xf8"}
s_lshl4_add_u32 s{sT0}, s{sT1}, s{sT0}
s_add_u32 s{sT0}, s{sT0}, {WS_XG}""")
    for k in range(12): P.I(f"v_mov_b32 v{G+4*k+3}, s{sTAG}")
    P.I(f"s_waitcnt vmcnt({JW})"); stamp(P,2,diag)
    for r in range(8): P.I(f"ds_read_b128 {vr(R+4*r,4)}, v{4+(r&1)} offset:{r*1024}")
    for g in range(3):
        for j in range(4):
            k=g*4+j
            for e in range(3):
                if 3*g+e<8: P.I(f"v_mov_b32 v{G+4*k+e}, v{R+4*(3*g+e)+j}")
            P.I(f"s_add_u32 s{sT1}, s{sT0}, {j*12288+g*4096}")
            P.I(f"buffer_store_dwordx4 {vr(G+4*k,4)}, v2, {sp(rWS,4)}, s{sT1} offen {'' if loc==1 else PUB}")
    P.I(f"s_waitcnt vmcnt(12)\ns_branch L_xje\nL_rj1:")
    P.I(f"""v_mov_b32 v2, 0
v_mov_b32 v3, 0
v_mov_b32 v4, 0
v_mov_b32 v5, 0
s_mov_b32 s{sT1}, 0x3f803f80
v_add_u32 v6, {L_RR+8192}, v{vL16}
v_mul_u32_u24 v8, 96, v{L}
v_lshlrev_b32 v9, {4 if SGP else 12}, v{L}
s_lshl_b32 s{sT0}, s{sP}, {SGP or 4}
s_add_u32 s{sT0}, s{sT0}, {WS_SG}""")
    P.I(f"v_mov_b32 v{G+3}, s{sTAG}\ns_waitcnt vmcnt({JW})"); stamp(P,2,diag)
    for u in range(8): P.I(f"ds_read_b128 {vr(R+4*u,4)}, v6 offset:{u*1024}")
    for k in range(32):
        P.I(f"v_dot2c_f32_bf16 v{2+(k&1)}, s{sT1}, v{R+k}\nv_dot2c_f32_bf16 v{4+(k&1)}, v{R+k}, v{R+k}")
    P.I("v_add_f32 v2, v2, v3\nv_add_f32 v4, v4, v5")
    for m in ("quad_perm:[1,0,3,2]","quad_perm:[2,3,0,1]","row_half_mirror"):
        P.I(f"v_add_f32_dpp v2, v2, v2 {m} row_mask:0xf bank_mask:0xf\nv_add_f32_dpp v4, v4, v4 {m} row_mask:0xf bank_mask:0xf")
    P.I(f"""v_mul_f32 v2, 0x3b000000, v2
v_mul_f32 v4, 0x3b000000, v4
v_fma_f32 v4, -v2, v2, v4
v_max_f32 v4, 0, v4
v_cvt_pk_bf16_f32 v4, v4, v4
v_and_b32 v4, 0xffff0000, v4
v_add_f32 v4, 0x3727c5ac, v4
v_cvt_pk_bf16_f32 v4, v4, v4
v_and_b32 v4, 0xffff0000, v4
v_sqrt_f32 v4, v4
v_cvt_pk_bf16_f32 v2, v2, v4
ds_bpermute_b32 v{G}, v8, v2
ds_bpermute_b32 v{G+1}, v8, v2 offset:32
ds_bpermute_b32 v{G+2}, v8, v2 offset:64
s_waitcnt lgkmcnt(0)
s_mov_b64 exec, {(1<<(1<<(SGP-4)))-1 if SGP else 7}
buffer_store_dwordx4 {vr(G,4)}, v9, {sp(rWS,4)}, s{sT0} offen {PUB}
s_mov_b64 exec, -1
s_waitcnt vmcnt(1)
s_branch L_xje
L_rj2:""")
    mod_job(P,PUB,diag,1)
    P.I("s_waitcnt vmcnt(1)")
    P.I("L_xje:")
def mod_job(P, PUB, diag, nks):
    R=vROLE; L=vLANE; A0=vRA; w=nks+1
    assert L_MR%128==0
    P.I(f"""v_lshrrev_b32 v2, 4, v{L}
v_bfe_u32 v3, v{L}, 2, 2
v_lshl_add_u32 v4, v2, 3, v3
v_bfe_u32 v3, v{L}, 3, 1
v_lshl_add_u32 v4, v4, 1, v3
v_and_b32 v3, 1, v2
v_lshl_add_u32 v4, v4, 1, v3
v_and_b32 v3, 3, v{L}
v_lshl_add_u32 v4, v4, 2, v3
v_lshlrev_b32 v4, 3, v4
v_add_u32 v8, {L_RR+w*8192}, v4
v_xor_b32 v9, 32, v8
v_xor_b32 v10, 64, v8
v_xor_b32 v11, 96, v8
v_bfe_u32 v4, v{L}, 1, 2
v_lshl_add_u32 v4, v4, 2, v2
v_and_b32 v3, 1, v{L}
v_lshl_add_u32 v4, v4, 1, v3
v_lshlrev_b32 v{A0+5}, 4, v4
s_mov_b32 s{sT0}, {L_SC+(w-2)*128}
v_lshl_add_u32 v6, v{L}, 1, s{sT0}
v_and_b32 v7, 48, v{L}
v_add_u32 v7, s{sT0}, v7
s_lshl_b32 s{sT0}, s{sP}, 9
s_add_u32 s99, s{sT0}, {WS_MG+(w-2)*0x20000}
s_mov_b32 s{sT0}, 0xaaaaaaaa
s_mov_b32 s{sT1}, 0xaaaaaaaa
s_mov_b32 s{sT2}, 0xcccccccc
s_mov_b32 s{sT3}, 0xcccccccc
s_mov_b32 s{sT4}, 0xf0f0f0f0
s_mov_b32 s{sT5}, 0xf0f0f0f0""")
    if nks==1: P.I(f"s_waitcnt vmcnt({12 if JW else 6})")
    P.I(f"""v_mul_f32 v4, 0xbfb8aa3b, v{R}
v_exp_f32 v4, v4
v_add_f32 v4, 1.0, v4
v_rcp_f32 v4, v4
v_mul_f32 v2, v{R}, v4
v_cvt_pk_bf16_f32 v2, v2, v2
ds_write_b16 v6, v2""")
    for ks in range(nks): P.I(f"ds_read_b128 {vr(R+4*ks,4)}, v7 offset:{ks*64}")
    P.I(f"s_waitcnt vmcnt({JW})" if nks==1 else "@wait rr"); stamp(P,2,diag)
    A=R+16; ACC=R+16+32
    seq=[(ks,ct) for ks in range(nks) for ct in range(4)]
    for n,(ks,ct) in enumerate(seq):
        for hf in range(2): P.I(f"ds_read_b64_tr_b16 {vr(A+4*n+2*hf,2)}, v{8+ct} offset:{ks*4096+hf*512}")
    for n,(ks,ct) in enumerate(seq):
        P.I(f"v_mfma_f32_16x16x32_bf16 {vr(ACC+4*ct,4)}, {vr(A+4*n,4)}, {vr(R+4*ks,4)}, {vr(ACC+4*ct,4) if ks else 0}")
    P.I(f"v_mov_b32 v{R+3}, s{sTAG}")
    for ct in range(4):
        for e in range(2): P.I(f"v_cndmask_b32 v{A+2*ct+e}, v{ACC+4*ct+e}, v{ACC+4*ct+2+e}, {sp(sT0)}")
    for c2 in range(2):
        for e in range(2): P.I(f"v_cndmask_b32 v{A+8+2*c2+e}, v{A+4*c2+e}, v{A+4*c2+2+e}, {sp(sT2)}")
    for e in range(2): P.I(f"v_cndmask_b32 v{R+e}, v{A+8+e}, v{A+10+e}, {sp(sT4)}")
    P.I(f"""s_mov_b32 exec_lo, 0x00ff00ff
s_mov_b32 exec_hi, 0x00ff00ff
buffer_store_dwordx4 {vr(R,4)}, v{A0+5}, {sp(rWS,4)}, s99 offen {PUB}
s_mov_b64 exec, -1""")
def raw_wd_loads(P, NT):
    P.I(f"s_lshl_b32 s{sT0}, s{sW}, 11\ns_lshl_b32 s{sT1}, s{sW}, 7\ns_add_u32 m0, s{sT0}, {L_DR}\ns_add_u32 s{sT1}, s{sT1}, s91")
    P.I(f"buffer_load_dwordx4 v{vRA+4}, {sp(rWD,4)}, s{sT1} offen {NT} lds", tag='dr')
    P.I(f"s_add_u32 m0, s{sT0}, {L_DR+1024-64}\nv_add_u32 v245, s{sT0}, v{vRA}")
    P.I(f"buffer_load_dwordx4 v{vRA+4}, {sp(rWD,4)}, s{sT1} offen offset:64 {NT} lds", tag='dr')
def wd_job(P, ST):
    A=vHF+8
    P.I("@wait dr")
    for f in range(2):
        for hf in range(2): P.I(f"ds_read_b64_tr_b16 {vr(A+4*f+2*hf,2)}, v245 offset:{f*1024+hf*256}")
    P.I(f"""s_and_b32 s{sT0}, s{sFS}, 1
s_lshl2_add_u32 s{sT0}, s{sT0}, s{sW}
s_mul_i32 s{sT0}, s{sT0}, {2*112}
s_lshr_b32 s{sT1}, s{sFS}, 1
s_add_u32 s{sT0}, s{sT0}, s{sT1}
s_lshl_b32 s{sT0}, s{sT0}, 10
s_add_u32 s{sT0}, s{sT0}, {WS_WDF}
s_add_u32 s{sT1}, s{sT0}, {112*1024}""")
    for f in range(2):
        P.I(f"buffer_store_dwordx4 {vr(A+4*f,4)}, v{vL16}, {sp(rWJ,4)}, s{sT0+f} offen {ST}", tag='wdst')
def raw_w_loads(P, NT):
    P.I(f"s_mul_i32 s95, s{sW}, {16*3584}\ns_add_u32 s95, s95, s90\ns_lshl_b32 s96, s{sW}, 12")
    for q in range(2):
        for mat,r in ((0,rWG),(1,rWU)):
            P.I(f"s_add_u32 m0, s96, {L_WR+mat*2048+q*1024}")
            P.I(f"s_add_u32 s95, s95, {8*3584}" if (q and not mat) else "s_nop 0")
            P.I(f"buffer_load_dwordx4 v{vRA+2+mat}, {sp(r,4)}, s95 offen {NT} lds", tag='wr')

def cmul(o,a,b,t):
    return [f"v_pk_mul_f32 {vr(t,2)}, {vr(a,2)}, {vr(b,2)} op_sel_hi:[0,1]",
            f"v_pk_fma_f32 {vr(o,2)}, {vr(a,2)}, {vr(b,2)}, {vr(t,2)} op_sel:[1,1,0] op_sel_hi:[1,0,1] neg_lo:[1,0,0]"]
def factor_gen(P, lo=0, hi=99):
    B=vFG; are,aim,bre,bim,cre,cim=[vPAR+i for i in range(6)]
    R1,R8,R128,LOc,TMP,PK = B,B+2,B+4,B+6,B+8,B+12
    Pc=[B+16+2*c for c in range(8)]
    zr,zi,dt=B+32,B+33,B+34; M=[2,4,6]; PH=[8,9,10]
    P.I(f"s_lshr_b32 s{sT0}, s{sW}, 1\ns_mul_i32 s{sT1}, s{sT0}, {64*FP-512}\ns_lshl_b32 s{sT2}, s{sW}, 8\ns_add_u32 m0, s{sT1}, s{sT2}")
    P0=P
    if lo: P=Prog()
    P.I(f"""s_lshl_b32 s{sT0}, s{sT0}, 4
s_lshr_b32 s{sT1}, s{sLD}, s{sT0}
s_lshl_b32 s{sT1}, s{sT1}, 16
v_mov_b32 v{dt}, {hex(LOG2E)}
v_mul_f32 v{dt}, s{sT1}, v{dt}
v_exp_f32 v{dt}, v{dt}""")
    P.extend(cmul(Pc[0],cre,bre,TMP))
    P.I(f"""v_cvt_pk_bf16_f32 v{dt}, v{dt}, v{dt}
v_and_b32 v{dt}, 0xffff0000, v{dt}
v_mul_f32 v{zr}, v{dt}, v{are}
v_mul_f32 v{zi}, v{dt}, v{aim}
v_mul_f32 v{zr}, {hex(LOG2E)}, v{zr}
v_mul_f32 v{zi}, 0.15915494, v{zi}
v_pk_mul_f32 {vr(Pc[0],2)}, {vr(Pc[0],2)}, {vr(dt,2)} op_sel_hi:[1,0] neg_hi:[1,0]""")
    cx=((R1,1,True),(R8,8,False),(R128,128,True))
    for (o,sc,cj),m,ph in zip(cx,M,PH):
        if sc==1: P.I(f"v_exp_f32 v{m}, v{zr}\nv_fract_f32 v{ph}, v{zi}")
        else: P.I(f"v_mul_f32 v{m}, {hex(f32(sc))}, v{zr}\nv_mul_f32 v{ph}, {hex(f32(sc))}, v{zi}\nv_exp_f32 v{m}, v{m}\nv_fract_f32 v{ph}, v{ph}")
        P.I(f"v_cos_f32 v{o}, v{ph}\nv_sin_f32 v{o+1}, v{ph}")
    for (o,sc,cj),m,ph in zip(cx,M,PH):
        P.I(f"v_pk_mul_f32 {vr(o,2)}, {vr(o,2)}, {vr(m,2)} op_sel_hi:[1,0]" + (" neg_hi:[1,0]" if cj else ""))
    P=P0
    steps_lo=[('one',48),('put',49,R8)]+[('mul',48+b,LOc,(R8 if b==2 else LOc),R8) for b in range(2,16)]
    steps_hi=[('put',0,Pc[0])]+[('mul',c,Pc[c],Pc[c-1],R1) for c in range(1,8)]
    row=8
    for e in range(1,17):
        cs = range(8) if e<2 else range(0,8,2) if e<4 else (0,4) if e<8 else (0,)
        for c in cs:
            assert HI[row]==128*e+c
            steps_hi.append(('mul',row,Pc[c],Pc[c],R128)); row+=1
    for k,s in enumerate(steps_lo+steps_hi):
        if not lo<=k<hi: continue
        kk=PK+(k&3)
        if s[0]=='one': P.I(f"v_mov_b32 v{kk}, 0x3f80")
        else:
            if s[0]=='mul': P.extend(cmul(s[2],s[3],s[4],TMP+2*(k&1)))
            P.I(f"v_cvt_pk_bf16_f32 v{kk}, v{s[2]}, v{s[2]+1}")
        P.I(f"ds_write_addtid_b32 v{kk} offset:{L_F+s[1]*FP}")

vKH=156
def kgen_init(P):
    ACC=vHF
    P.I(f"""s_lshl_b32 s{sT0}, s{sDS}, 16
s_and_b32 s{sT1}, s{sDS}, 0xffff0000
v_cmp_eq_u32 vcc, 0, v0
v_mov_b32 v2, s{sT0}
v_mov_b32 v3, s{sT1}
s_mul_i32 s{sT2}, s{sW}, {16*FP}
v_cndmask_b32 v{ACC}, 0, v2, vcc
v_cndmask_b32 v{ACC+4}, 0, v3, vcc
v_add_u32 v{vKH}, s{sT2}, v{vKF}""")
    for r in (1,2,3,5,6,7): P.I(f"v_mov_b32 v{ACC+r}, 0")
def kgen(P, diag, mid=[], skip=0, order=0):
    A=vROLE; ACC=vHF
    Q=Prog(); table_unpack(Q); tu=[x.text for x in Q.ins]
    P.I(f"s_cmp_eq_u32 s{sW}, 3\ns_cbranch_scc1 L_wdjob\ns_waitcnt lgkmcnt(0)\ns_barrier")
    def rd(n):
        ks,ch=n>>1,n&1; b=A+8*(n%9)
        return [f"ds_read_b128 {vr(b,4)}, v{vKF} offset:{ch*64*FP+48*FP+ks*64}", f"ds_read_b128 {vr(b+4,4)}, v{vKH} offset:{ch*64*FP+ks*64}"]
    for n in range(7): P.extend(rd(n))
    P.extend(tu[:5])
    m2=[[Ins(x.text,x.tag) for x in g] for g in mid]; mid=list(mid)
    for n in range(16):
        if mid and n>=skip: P.extend(mid.pop(0))
        b=A+8*(n%9); a=vr(ACC+4*(n&1),4)
        P.I(f"v_mfma_f32_16x16x32_bf16 {a}, {vr(b,4)}, {vr(b+4,4)}, {a}")
        if n+7<16: P.extend(rd(n+7))
    P.extend(tu[5:])
    for r in range(4): P.I(f"v_cvt_pk_bf16_f32 v{8+r}, v{ACC+r}, v{ACC+4+r}")
    P.I(f"ds_write_b128 v{vKC}, v[8:11]\ns_branch L_kgen_end\nL_wdjob:")
    P.I("s_waitcnt lgkmcnt(0)\ns_barrier")
    P.extend(tu)
    if order==0:
        for g in m2: P.extend(g)
    mod_job(P,'sc1',diag,2)
    if order==1:
        for g in m2: P.extend(g)
    P.I(f"ds_write_b128 v{vRA+1}, {vr(ACC,4)}")
    P.I("L_kgen_end:")

def poll_groups(extra=None, XL='sc1', xfirst=0, SL='sc1'):
    Q=Prog(); poll_loads(Q,XL,xfirst,SL); G=[[]]
    if extra: extra(Q)
    for x in Q.ins:
        G[-1].append(x)
        if x.kind=='vmem': G.append([])
    return G[:-1]
def poll_loads(P, XL='sc1', xfirst=0, SL='sc1'):
    LD='sc1'
    P.I(f"s_mul_i32 s94, s{sP}, 12288\ns_add_u32 s94, s94, {WS_XG}")
    X=[(f"s_add_u32 s94, s94, 4096\n" if g else "")+f"buffer_load_dwordx4 {vr(vPOLL+4*g,4)}, v{vT16}, {sp(rWS,4)}, s94 offen {XL}" for g in range(3)]
    S=[f"s_mov_b32 s79, {WS_SG+g*4096}\nbuffer_load_dwordx4 {vr(vPOLL+12+4*g,4)}, v{vT16}, {sp(rWS,4)}, s79 offen {LD}" for g in range(3)]
    if SGP: S=[(f"s_mov_b32 s79, {WS_SG}\nv_lshlrev_b32 v157, {SGP}, v0\n" if g==0 else "")+f"buffer_load_dwordx4 {vr(vPOLL+12+4*g,4)}, v157, {sp(rWS,4)}, s79 offen offset:{16*g} {SL}" for g in range(3)]
    M=[f"s_lshl4_add_u32 s3, s{sP}, {WS_MG}\nbuffer_load_dwordx4 {vr(vPOLL+24,4)}, v{vMC}, {sp(rWS,4)}, s3 offen {LD}"]
    for t in (X+S+M if xfirst==1 else S+M+X if xfirst==2 else M+S+X if xfirst==3 else [y for p in zip(X,S) for y in p]+M): P.I(t, tag='pollx' if t in X else 'poll')
vQ=144
def poll2_loads(P):
    P.I(f"""s_lshl4_add_u32 s3, s{sP}, {WS_MG+0x20000}
buffer_load_dwordx4 {vr(vQ,4)}, v{vSEL1}, {sp(rWS,4)}, s3 offen sc1
s_lshl2_add_u32 s3, s{sKE}, s{sW}
s_lshl_b32 s3, s3, 7
s_add_u32 s3, s3, {WS_MG+0x20000+8*4096}
buffer_load_dwordx4 {vr(vQ+4,4)}, v{vMW}, {sp(rWS,4)}, s3 offen sc1
s_add_u32 s3, s3, {4*4096}""")
    P.I(f"buffer_load_dwordx4 {vr(vQ+8,4)}, v{vMW}, {sp(rWS,4)}, s3 offen sc1", tag='poll2')
def poll2_work(ST):
    mc,mw=vQ,vQ+4; dpp=" row_mask:0xf bank_mask:0xf"
    L=[["L_p2_chk:","@wait poll2",f"v_min3_u32 v2, v{vQ+3}, v{vQ+7}, v{vQ+11}",f"v_max3_u32 v3, v{vQ+3}, v{vQ+7}, v{vQ+11}",f"v_min_u32 v2, s{sTAG}, v2",f"v_max_u32 v3, s{sTAG}, v3",
        "v_cmp_ne_u32 vcc, v2, v3","s_cbranch_vccnz L_q_retry","L_q_ok:"]]
    L[0][0]="L_q_chk:"
    X=[f"v_add_f32 v{mw}, v{mw}, v{vQ+8}",f"v_add_f32 v{mw+1}, v{mw+1}, v{vQ+9}"]
    for m in ("quad_perm:[1,0,3,2]","quad_perm:[2,3,0,1]"):
        X+=[f"v_add_f32_dpp v{r}, v{r}, v{r} {m}{dpp}" for r in (mc,mc+1,mw,mw+1)]
    X+=[f"v_add_f32_dpp v{r}, v{r}, v{r} row_half_mirror{dpp}" for r in (mc,mc+1)]
    X+=[f"v_cvt_pk_bf16_f32 v{mw+1}, v{mw}, v{mw+1}", f"v_cvt_pk_bf16_f32 v{mc+1}, v{mc}, v{mc+1}",
        f"v_lshlrev_b32 v{mw}, 16, v{mw+1}", f"v_and_b32 v{mw+1}, 0xffff0000, v{mw+1}", f"v_lshlrev_b32 v{mc}, 16, v{mc+1}", f"v_and_b32 v{mc+1}, 0xffff0000, v{mc+1}",
        f"v_add_f32 v{mw}, v{mw}, v{vSEL2}", f"v_add_f32 v{mw+1}, v{mw+1}, v{vSEL2}", f"v_cvt_pk_bf16_f32 v{mw+1}, v{mw}, v{mw+1}",
        f"v_lshlrev_b32 v{mw}, 16, v{mw+1}", f"v_and_b32 v{mw+1}, 0xffff0000, v{mw+1}", f"ds_write_b64 v{vGW}, {vr(mw,2)}"]
    late=[f"v_mov_b32_dpp v{vMOD+4+2*k+e}, v{mc+e} row_newbcast:{8*k}{dpp}" for k in range(2) for e in range(2)]
    return L[0],X,late
BACKOFF=0; PREW=0; SGP=0
def writeback(cnt, lbl, on):
    if not on: return (["s_waitcnt vmcnt(0)"] if PREW else [])+([f"s_sleep {BACKOFF}"] if BACKOFF else [])
    return [f"s_and_b32 s4, s{cnt}, 3","s_cmp_lg_u32 s4, 0",f"s_cbranch_scc1 {lbl}","buffer_wbl2 sc1","s_waitcnt vmcnt(0)",f"{lbl}:"] if on else []
def retry2_block(P, loc=0, mask=0):
    P.I(f"L_q_retry:\ns_add_u32 s{sCNT}, s{sCNT}, 1\ns_cmp_gt_u32 s{sCNT}, 20000\n@loopok\ns_cbranch_scc1 L_q_ok")
    P.extend(writeback(sCNT,'L_q_nowb',loc))
    if mask: P.I("s_mov_b64 exec, vcc")
    poll2_loads(P)
    if mask: P.I("s_mov_b64 exec, -1")
    P.I("s_waitcnt vmcnt(0) lgkmcnt(0)\ns_branch L_q_chk")

vGA=140
def table_unpack(P):
    P.I(f"v_mov_b32 v{vUA}, v{vTAB+7}\nv_mov_b32 v{vKA}, v{vTAB+6}")
    for j in range(11):
        P.I(f"v_lshrrev_b32 v{vGA+j}, 16, v{vTAB+j//2}" if j&1 else f"v_and_b32 v{vGA+j}, 0xffff, v{vTAB+j//2}")
def k_image(P, G, npre, skip, w0at=0):
    E=vROLE+40; O=vROLE; GA=vGA
    G0=[[Ins(x.text,x.tag) for x in g] for g in G[:npre]] if w0at else []
    if w0at: P.I(f"@wait dr\ns_cmp_eq_u32 s{sW}, 0\ns_cbranch_scc1 L_w0a")
    for _ in range(npre): P.extend(G.pop(0))
    if w0at: P.I("L_w0a:")
    P.I(f"""s_mov_b32 s{sT4}, 0x05040100
s_mov_b32 s{sT5}, 0x07060302
v_add_u32 v2, {L_KI}, v{vT16}
s_waitcnt lgkmcnt(0)
s_barrier""")
    for j in range(11): P.I(f"ds_read_b32 v{E+j}, v{GA+j}")
    k=0
    for c in (3,2,1,0):
        for ch in range(2):
            o=O+4*k; k+=1
            for i in range(4):
                j=3-c+2*i
                P.I(f"v_perm_b32 v{o+i}, v{E+j+1}, v{E+j}, s{sT4+ch}")
            P.I(f"ds_write_b128 v2, {vr(o,4)} offset:{(ch*4+c)*KIP}")
            if k==w0at:
                P.I(f"s_cmp_lg_u32 s{sW}, 0\ns_cbranch_scc1 L_w0b\n@forget "+" ".join(str(r) for r in range(vPOLL,vPOLL+28)))
                for g in G0: P.extend(g)
                P.I("L_w0b:")
            if G and k>skip: P.extend(G.pop(0))
    for g in G: P.extend(g)

def retry_block(P, loc=0, mask=0):
    P.I(f"L_ka_retry:\ns_add_u32 s{sCNT}, s{sCNT}, 1\ns_cmp_gt_u32 s{sCNT}, 20000\n@loopok\ns_cbranch_scc1 L_ka_ok")
    P.extend(writeback(sCNT,'L_ka_nowb',loc))
    if mask:
        G=poll_groups(None,'sc1',3)
        P.extend(G[0]); P.I("s_mov_b64 exec, vcc")
        for g in G[1:]: P.extend(g)
        P.I("s_mov_b64 exec, -1")
    else: poll_loads(P)
    P.I("s_waitcnt vmcnt(0) lgkmcnt(0)\ns_branch L_ka_chk")

def make_h(P, diag, q2=False):
    Q=vPOLL; mc=Q+24; Mm=vROLE; Mr=vROLE+8; O=vROLE+16; A=vROLE+24; B=vROLE+40
    dpp=" row_mask:0xf bank_mask:0xf"
    P.I(f"s_mov_b32 s{sCNT}, 0\nv_add_u32 v4, {L_H+480}, v{vT16}\nL_ka_chk:\n@wait poll")
    chain=[]
    for m in ("quad_perm:[1,0,3,2]","quad_perm:[2,3,0,1]","row_half_mirror","row_mirror"):
        chain.append([f"v_add_f32_dpp v{r}, v{r}, v{r} {m}{dpp}" for r in (mc,mc+1)])
    chain+=[[f"v_cvt_pk_bf16_f32 v{mc}, v{mc}, v{mc+1}", f"v_mov_b32 v{mc+1}, v{mc}"],
            [f"v_permlane16_swap_b32 v{mc}, v{mc+1}", f"v_lshlrev_b32 v{vMOD}, 16, v{mc}", f"v_and_b32 v{vMOD+1}, 0xffff0000, v{mc}", f"v_lshlrev_b32 v{mc}, 16, v{mc+1}", f"v_and_b32 v{mc+1}, 0xffff0000, v{mc+1}"],
            [f"v_add_f32 v{mc}, 1.0, v{mc}", f"v_add_f32 v{mc+1}, 1.0, v{mc+1}", f"v_cvt_pk_bf16_f32 v{mc}, v{mc}, v{mc+1}"],
            [f"v_lshlrev_b32 v{vMOD+2}, 16, v{mc}", f"v_and_b32 v{vMOD+3}, 0xffff0000, v{mc}"]]
    for r in range(8):
        st=Q+12+4*(r//3)+r%3
        P.extend(chain[r])
        P.I(f"v_and_b32 v{Mr+r}, 0xffff0000, v{st}\nv_lshlrev_b32 v{Mm+r}, 16, v{st}\nv_rcp_f32 v{Mr+r}, v{Mr+r}")
    P.I(f"""v_min3_u32 v2, s{sTAG}, v{Q+27}, v{Q+15}
v_max3_u32 v3, s{sTAG}, v{Q+27}, v{Q+15}
v_min3_u32 v2, v2, v{Q+19}, v{Q+23}
v_max3_u32 v3, v3, v{Q+19}, v{Q+23}""")
    for ch in range(2):
        for r in range(0,8,2): P.I(f"v_pk_mul_f32 {vr(A+8*ch+r,2)}, {vr(Mr+r,2)}, {vr(vMOD+2,2)} op_sel:[0,{ch}] op_sel_hi:[1,{ch}]")
    for ch in range(2):
        for r in range(0,8,2): P.I(f"v_pk_fma_f32 {vr(B+8*ch+r,2)}, {vr(Mm+r,2)}, {vr(A+8*ch+r,2)}, {vr(vMOD,2)} op_sel:[0,0,{ch}] op_sel_hi:[1,1,{ch}] neg_lo:[1,0,0] neg_hi:[1,0,0]")
    P.I(f"""@wait pollx
v_min3_u32 v2, v2, v{Q+3}, v{Q+7}
v_max3_u32 v3, v3, v{Q+3}, v{Q+7}
v_min_u32 v2, v2, v{Q+11}
v_max_u32 v3, v3, v{Q+11}
v_cmp_ne_u32 vcc, v2, v3""")
    xr=lambda r: Q+4*(r//3)+r%3
    P.I(f"v_lshlrev_b32 v{vXF}, 16, v{xr(0)}\ns_cbranch_vccnz L_ka_retry\nL_ka_ok:")
    if diag: P.I(f"s_add_u32 s{sCNT}, s{sCNT}, 1\nv_writelane_b32 v255, s{sCNT}, 31")
    stamp(P,11,diag)
    if q2: poll2_loads(P)
    for ch in range(2):
        for r in range(8):
            if ch or r: P.I(f"v_and_b32 v{vXF+8+r}, 0xffff0000, v{xr(r)}" if ch else f"v_lshlrev_b32 v{vXF+r}, 16, v{xr(r)}")
        for r in range(0,8,2): P.I(f"v_pk_fma_f32 {vr(A+8*ch+r,2)}, {vr(vXF+8*ch+r,2)}, {vr(A+8*ch+r,2)}, {vr(B+8*ch+r,2)}")
        for r in range(0,8,2): P.I(f"v_cvt_pk_bf16_f32 v{O+4*ch+r//2}, v{A+8*ch+r}, v{A+8*ch+r+1}")
        P.I(f"ds_write_b128 v4, {vr(O+4*ch,4)} offset:{ch*HP}")

def gb_store(P, ST):
    P.I(f"""s_cmp_lg_u32 s{sW}, 2
s_cbranch_scc1 L_nogb
s_lshl3_add_u32 s{sT2}, s{sP}, {WS_GBF}
s_mov_b64 exec, 1
buffer_store_dwordx2 {vr(vMOD+6,2)}, v{vL16}, {sp(rWS,4)}, s{sT2} offen {ST}
s_mov_b64 exec, -1
L_nogb:""")
def w_side(ST):
    RAW=vPOLL; WP=vPOLL+16; GB=[48,64,80,96]; U=112; S1,S2=vHF,vHF+2
    rd=[]; main=[]; sums=[]
    for k in range(4):
        g=GB[k]
        rd.append([f"ds_read_b64_tr_b16 {vr(RAW+4*k+2*hf,2)}, v{vWRA} offset:{k*4096+hf*512}" for hf in range(2)]
                 +[f"ds_read_b128 {vr(g+4*q,4)}, v{vGR} offset:{k*64+q*16}" for q in range(2)])
        L=[]
        for d in range(4):
            u=U+8*k+2*d
            L+=[f"v_lshlrev_b32 v{u}, 16, v{RAW+4*k+d}", f"v_and_b32 v{u+1}, 0xffff0000, v{RAW+4*k+d}",
                f"v_mul_f32 v{g+2*d}, v{u}, v{g+2*d}", f"v_mul_f32 v{g+2*d+1}, v{u+1}, v{g+2*d+1}", f"v_cvt_pk_bf16_f32 v{WP+4*k+d}, v{g+2*d}, v{g+2*d+1}"]
        L.append((f"buffer_store_dwordx4 {vr(WP+4*k,4)}, v{vL16}, {sp(rWJ,4)}, s{sWO} offen {ST}",'wpst'))
        if k<3: L.append(f"s_add_u32 s{sWO}, s{sWO}, s{sWST}")
        main.append(L)
        for i in range(8):
            e=i&1; first=(k==0 and i<2)
            sums.append(f"v_mul_f32 v{S2+e}, v{U+8*k+i}, v{g+8+i}" if first else f"v_fmac_f32 v{S2+e}, v{U+8*k+i}, v{g+8+i}")
            if k==0 and i<2: continue
            sums.append(f"v_add_f32 v{S1+e}, v{g+e}, v{g+i}" if (k==0 and i<4) else f"v_add_f32 v{S1+e}, v{S1+e}, v{g+i}")
    rdsb=[f"ds_read_b128 {vr(GB[k]+8+4*q,4)}, v{vGR} offset:{256+k*64+q*16}" for k in range(4) for q in range(2)]
    tail=[f"v_add_f32 v{S1}, v{S1}, v{S1+1}", f"v_add_f32 v{S2}, v{S2}, v{S2+1}", f"v_mov_b32 v{S1+1}, v{S1}", f"v_mov_b32 v{S2+1}, v{S2}",
          f"v_lshlrev_b32 v2, 2, v{vLANE}", "s_nop 0",
          f"v_permlane32_swap_b32 v{S1}, v{S1+1}", f"v_permlane32_swap_b32 v{S2}, v{S2+1}",
          f"v_add_f32 v{S1}, v{S1}, v{S1+1}", f"v_add_f32 v{S2}, v{S2}, v{S2+1}", f"v_cvt_pk_bf16_f32 v{S1}, v{S1}, v{S2}",
          "s_mov_b32 exec_hi, 0", (f"buffer_store_dword v{S1}, v2, {sp(rWJ,4)}, s{sWA} offen {ST}",'auxst'), "s_mov_b64 exec, -1"]
    return rd,main,rdsb,sums,tail

def conv_reads(vi):
    b=vi&1; o=192-64*vi
    U=[(f"ds_read_b128 {ar(64+32*b+4*k,4)}, v{vUA} offset:{512*k+o}",f"c{vi}_{k}") for k in range(8)]
    K=[[(f"ds_read_b64 {ar(32*b+4*k+2*hf,2)}, v{vKA} offset:{512*(7-k)+o+8*hf}",f"c{vi}_{k}") for hf in range(2)] for k in range(8)]
    return U,K
def conv(P, ST, cfg, midbar, wdj, wd0, H={}):
    ACC=16
    order=sorted([(u,s) for u in range(8) for s in range(8) if u+s<8], key=lambda t:(t[1],t[0]))
    rd,main,rdsb,sums,tail=w_side(ST)
    chk,work,bc=poll2_work(ST)
    Q=Prog(); gb_store(Q,ST); gbs=[[x.text for x in Q.ins]]
    P.extend(conv_reads(0)[0])
    v2s=list(H.get('v2side',[])); v3m=list(H.get('v3mem',[])); go=False
    first=set(); side=[]; QAT=cfg.get('QAT',20); LV=cfg.get('LV',1); FV=cfg.get('FV',LV); SL=cfg.get('SUMLATE',0)
    for vi in range(4):
        b=vi&1; nxt=[]
        if vi==LV: nxt+=[(x,'wtr') for r in rd[:2] for x in r]+wdj[:4]
        if vi<3:
            U,K=conv_reads(vi+1); nxt+=[y for k in range(8) for y in [U[k]]+K[k]]
        if vi==0 and LV: side+=work
        if vi==1 and LV>1: side+=bc+gbs
        if vi==LV: side+=['@wait wtr']+rd[2]+rd[3]+main[0]+wdj[4:]+main[1]+([] if SL else rdsb)+main[2]+main[3]+(bc+gbs if LV<=1 else [])+([] if SL else sums)
        waits = {0:0,8:1,15:7} if vi==0 else {0:7}
        start = 8 if vi==LV else QAT+1 if vi==0 else 0
        for n,(u,s) in enumerate(order if (vi==0 or not cfg.get('ORD',1)) else sorted(order,key=lambda t:(t[0]+t[1],t[0]))):
            t=u+s; a=vr(ACC+4*t,4)
            if n in waits: P.I(f"@wait c{vi}_{waits[n]}")
            P.I(f"v_mfma_f32_16x16x32_bf16 {a}, {ar(32*b+4*u,4)}, {ar(64+32*b+4*s,4)}, {a if t in first else 0}"); first.add(t)
            slots=2-((n+1) in waits or n==35)
            if vi==0 and FV==0 and n==0: P.extend(midbar); continue
            if vi in (LV,FV) and n==0 and vi:
                P.I("@wait"+(" wr dr" if vi==LV else "")+(" wdst" if vi==FV else "")+"\ns_waitcnt lgkmcnt(0)\ns_barrier")
                if vi==FV: P.extend(midbar)
                continue
            if vi==0 and n==QAT and LV: P.extend(chk); continue
            if (vi,n) in H.get('hook',{}):
                if vi==3: assert not v2s; go=True
                P.extend(H['hook'][(vi,n)]); slots-=len(H['hook'][(vi,n)])
            elif go and v3m and n%cfg.get('WDVS',2)==0:
                x=v3m.pop(0); P.extend(x); slots-=len(x)
            if nxt:
                P.extend([nxt.pop(0)]); slots-=1
                if n<start and slots and nxt: P.extend([nxt.pop(0)]); slots-=1
            while slots>0 and wd0 and vi==0 and not nxt and n<QAT: P.extend([wd0.pop(0)]); slots-=1
            while slots>0 and v2s and vi==0 and not nxt and (n<QAT and len(v2s)>2 or n>QAT and not side): P.extend([v2s.pop(0)]); slots-=1
            while slots>0 and side and n>=start:
                x=side.pop(0)
                if isinstance(x,list): P.extend(x); slots=0
                else: P.extend([x]); slots-=1
        assert not nxt, len(nxt)
        if vi==0 and LV: P.extend(side+wd0+v2s); print('  conv step 0 spill',len(side),len(wd0),len(v2s)); side=[]; wd0=[]; v2s=[]
        print('  conv step',vi,'side backlog',len(side))
    for x in v3m: side+=x
    assert not any(isinstance(x,list) for x in side)
    if SL: return ACC,side,rdsb+sums+tail
    return ACC,side+tail,[]

def conv_epilogue(P, ACC, tail, XST, pre=[], prebar=[], postbar=[], tmax=99, after=[]):
    tail=list(tail); P.extend(pre)
    for t in range(8):
        P.I(f"ds_write_b128 v{vYW}, {vr(ACC+4*t,4)} offset:{1280*t}")
        k=min(max(5,-(-len(tail)//(8-t))),len(tail),tmax)
        if len(tail)-k<4: k=len(tail)
        P.extend(tail[:k]); tail=tail[k:]
    P.extend(prebar)
    P.I(f"s_mul_i32 s{sT0}, s{sP}, {12288 if XIN else 128}\ns_add_u32 s{sT0}, s{sT0}, {WS_XG if XIN else WS_X1B}\ns_waitcnt lgkmcnt(0)\ns_barrier")
    Y=16
    for ch in range(2):
        for g in range(2):
            for vh in range(2):
                P.I(f"ds_read_b128 {vr(Y+16*ch+8*vh+4*g,4)}, v{vYR} offset:{L_Y+(2*ch+vh)*10240+320*g}")
    P.extend(postbar)
    for ch in range(2):
        y=Y+16*ch
        for r in range(0,8,2): P.I(f"v_pk_add_f32 {vr(y+r,2)}, {vr(y+r,2)}, {vr(y+8+r,2)}")
        for r in range(0,8,2): P.I(f"v_pk_fma_f32 {vr(y+r,2)}, {vr(y+r,2)}, {vr(vMOD+4,2)}, {vr(vXF+8*ch+r,2)} op_sel:[0,{ch},0] op_sel_hi:[1,{ch},1]")
        for r in range(0,8,2): P.I(f"v_cvt_pk_bf16_f32 v{4+4*ch+r//2}, v{y+r}, v{y+r+1}")
        P.I(f"buffer_store_dwordx4 {vr(4+4*ch,4)}, v{vXO}, {sp(rWS,4)}, s{sT0} offen offset:{64*ch} {XST}", tag='x1st')
    print('  after the x1 stores:', len(tail), '+', len(after))
    P.extend(tail); P.extend(after)

def body(P, n, diag, cfg, H):
    NT=cfg.get('NT','nt'); ST='sc1'
    entry(P,n,diag,256,cfg.get('PERM',[2,3,0,5,1,7,4,6] if cfg.get('QSYNC',0) else None)); role_addr(P,cfg.get('LOC',0))
    P.I("s_waitcnt lgkmcnt(0)"); stamp0_commit(P,diag)
    if cfg.get('WSB',0): P.I(f"s_add_u32 s{sWS}, s{sWS}, {cfg['WSB']<<20}\ns_addc_u32 s{sWS+1}, s{sWS+1}, 0")
    po=cfg.get('PORD',0); m2=cfg.get('M2AT',0); global JW
    assert not (po and cfg.get('CUT',0)) and not (m2 and cfg.get('CUT',0))
    JW=(8 if po else 0)
    early_loads(P,NT,not po)
    role_loads(P,cfg.get('XNT',NT),0)
    if po: param_loads(P,NT)
    table_loads(P); setup(P,False,cfg.get('X',''),cfg.get('WMAP',0) or cfg.get('QSYNC',0)); P.extend(H['setup'])
    if m2==0: role_loads(P,NT,1)
    P.I(f"s_waitcnt lgkmcnt(0)\ns_or_b32 s{sTAG}, s{sTAG}, 0x7f800000\ns_add_u32 s{sTAG}, s{sTAG}, 1\ns_or_b32 s{sTAG}, s{sTAG}, 0x7f800000\ns_barrier")
    stamp(P,1,diag)
    kgen_init(P)
    H['idle'](P)
    P.I("@forget "+" ".join(str(r) for r in list(range(vPAR,vPAR+6))+[vROLE]+list(range(vTAB,vTAB+8))))
    cut=cfg.get('CUT',0)
    if cut:
        P.I(f"s_waitcnt vmcnt(10)\ns_cmp_lg_u32 s{sW}, 2\ns_cbranch_scc1 L_f1\ns_waitcnt vmcnt(6)\nL_f1:")
        P.I("@forget "+" ".join(str(r) for r in list(range(vPAR,vPAR+6))+[vROLE]+list(range(vTAB,vTAB+8))))
        factor_gen(P,0,cut)
        stamp(P,10,diag)
        P.I(f"s_cmp_eq_u32 s{sW}, 3\ns_cbranch_scc1 L_xje")
    x_jobs(P,'sc1',diag,cfg.get('LOC',0))
    P.I("@forget "+" ".join(str(r) for r in list(range(vPAR,vPAR+6))+[vROLE]+list(range(vTAB,vTAB+8))))
    stamp(P,3,diag)
    da,wa=cfg.get('DAT',0),cfg.get('WAT',1)
    def raws(k):
        if da==k: raw_wd_loads(P,cfg.get('DNT',NT))
        if wa==k: raw_w_loads(P,NT)
    if m2==1: role_loads(P,NT,1)
    raws(0)
    factor_gen(P,cut)
    stamp(P,4,diag)
    if m2==2: role_loads(P,NT,1)
    raws(1)
    G=poll_groups((lambda Q: raw_w_loads(Q,NT)) if wa==3 else None, cfg.get('XLP','') if cfg.get('LOC',0)==1 else 'sc1', cfg.get('XFIRST',0), '')
    for _ in range(cfg.get('PEARLY',0)): P.extend(G.pop(0))
    npm=cfg.get('PMID',0); mid=G[:npm]; G=G[npm:]
    if wa==5:
        Q=Prog(); raw_w_loads(Q,NT); W4=[[]]
        for x in Q.ins:
            W4[-1].append(x)
            if x.kind=='vmem': W4.append([])
        mid=W4[:-1]+mid
    kgen(P,diag,mid,cfg.get('PMSKIP',0),cfg.get('PMORD',0)); stamp(P,5,diag)
    k_image(P,G,min(len(G),cfg.get('PPRE',5)),cfg.get('PSKIP',0),cfg.get('W0AT',0))
    raws(2)
    wdj=[]
    wj=cfg.get('WJAT',0); wd0=[]
    if cfg.get('Q2AT',1)==2: poll2_loads(P)
    if da<2 and wj:
        Q=Prog(); wd_job(Q,ST); wd0=[(x.text,x.tag) for x in Q.ins]
    elif da<2: wd_job(P,ST)
    else:
        Q=Prog(); wd_job(Q,ST); wdj=[(x.text,x.tag) for x in Q.ins[1:]]
    stamp(P,6,diag)
    P.I("s_waitcnt lgkmcnt(0)\ns_barrier")
    for k in conv_reads(0)[1]: P.extend(k)
    q2=cfg.get('Q2AT',1)
    if q2==0: poll2_loads(P)
    make_h(P,diag,q2==3)
    if q2==1: poll2_loads(P)
    raws(4)
    if cfg.get('LV',1)==0:
        chk,work,_=poll2_work(ST); P.extend(chk+work+["@wait wr"])
    if cfg.get('FV',1)==0: P.I("@wait wdst")
    P.I("s_waitcnt lgkmcnt(0)\ns_barrier")
    stamp(P,7,diag)
    acc,tail,after=conv(P,ST,cfg,H['midbar'] if da<2 else [],wdj,wd0,H); stamp(P,8,diag)
    conv_epilogue(P,acc,tail,ST,H.get('pre',[]),H.get('prebar',[]),H.get('postbar',[]),cfg.get('TMAX',99),after)
```

```python
from prog import *
from layout import *
import struct
def f32(x): return struct.unpack('<I',struct.pack('<f',x))[0]
LOG2E = 0x3fb8aa3b
XIN = 0
sX,sARE,sAIM,sBRE,sBIM,sCRE,sCIM,sLDT,sDSK,sBX,sWG,sWU,sWD,sC,sWM,sOUT,sDBG,sWS = [8+2*i for i in range(18)]
rR,rWG,rWU,rWD,rOUT,rWS,rWJ = 44,48,52,56,60,64,68
sXCD,sIDX,sP,sW,sTAG,sLD,sDS = 72,73,74,75,76,77,78
sT0,sT1,sT2,sT3,sT4,sT5 = 80,81,82,83,84,85
sWO,sWST,sWA = 86,87,88
sCG,sKE,sFS,sCNT = 26,27,97,98
def sp(a,n=2): return f"s[{a}:{a+n-1}]"
def vr(a,n): return f"v[{a}:{a+n-1}]"
def ar(a,n): return f"a[{a}:{a+n-1}]"
def mksrd(d,b,size):
    return [f"s_mov_b32 s{d}, s{b}", f"s_and_b32 s{d+1}, s{b+1}, 0xffff", f"s_mov_b32 s{d+2}, {size}", f"s_mov_b32 s{d+3}, 0x20000"]
vLANE = 1
vT16,vMC,vMW = 12,13,14
vPAR = 16
vTAB = 24
vRA = 32
vROLE = 40
vFG = 120
vPOLL = 160
vPOL2 = 152
vXF = 192
vHF = 208
vKA,vUA,vYW,vYR,vWRA,vXO,vGR,vL16 = 224,225,226,227,228,229,230,231
vMOD = 232
vKF,vKC,vGW,vSEL1,vSEL2 = 240,241,242,243,244

ONLY=None
import os
LATE0=int(os.environ.get('LATE0','0'))
JIT=os.environ.get('JIT','')
def stamp(P, n, diag):
    if JIT:
        P.I(f"s_waitcnt lgkmcnt(0)\ns_memtime s[100:101]\ns_waitcnt lgkmcnt(0)\ns_cselect_b32 s5, 1, 0\ns_lshr_b32 s100, s100, 3\ns_and_b32 s100, s100, {JIT}\ns_cbranch_scc1 L_jit{len(P.ins)}\ns_sleep 40\nL_jit{len(P.ins)}:\ns_cmp_lg_u32 s5, 0")
    if diag and (ONLY is None or n in ONLY): P.I(f"s_memrealtime s[4:5]\ns_memtime s[100:101]\ns_waitcnt lgkmcnt(0)\nv_writelane_b32 v255, s4, {n}\nv_writelane_b32 v255, s100, {32+n}")
def stamp0_issue(P, diag):
    if diag: P.I("v_mov_b32 v255, 0\ns_memrealtime s[4:5]\ns_memtime s[100:101]")
def stamp0_commit(P, diag):
    if diag: P.I("v_writelane_b32 v255, s4, 0\nv_writelane_b32 v255, s100, 32")
def stamp_out(P, kidx, diag):
    if diag:
        P.I(f"""s_lshl_b32 s4, s2, 10
s_add_u32 s4, s4, {WS_STAMP + kidx*0x40000}
v_lshlrev_b32 v2, 2, v0
buffer_store_dword v255, v2, {sp(rWS,4)}, s4 offen""")

def bf16_round(l):
    u=f32(float(l)); u=(u+0x7fff+((u>>16)&1))&0xffff0000
    return int(struct.unpack('<f',struct.pack('<I',u))[0])
def table_words():
    rec=[]
    for T in range(256):
        a=[]
        for j in range(11):
            lag=2047-8*T-j
            if lag<0: a.append(L_CZ); continue
            lam=bf16_round(lag); b=(lam>>3)&15; i=HI.index(lam-8*b)
            a.append(L_C+i*CP+4*b)
        a.append(0)
        w=T>>6; lane=T&63; ch=w>>1; vh=w&1
        ka_=L_KI+ch*4*KIP+(lane&3)*KIP+2*(2044-16)-3584-192-256*vh+(lane&48)-2*(lane&12)
        ua_=L_H+ch*HP+448-192-256*vh+32*(lane&15)+(lane&48)
        rec.append([a[2*k]|(a[2*k+1]<<16) for k in range(6)]+[ka_,ua_])
    return [rec[T][4*q+k] for q in range(2) for T in range(256) for k in range(4)]

def entry(P, name, diag, nlines, perm):
    P.I(f".globl {name}\n.p2align 8\n.type {name},@function\n{name}:\n@reset")
    ng=(nlines+15)//16; assert ng&(ng-1)==0 and ng<=32
    if LATE0: P.I(f"s_and_b32 s4, s2, 7\ns_cbranch_scc1 L_nolate\ns_sleep {LATE0}\nL_nolate:")
    P.I(f"""s_cmp_ge_u32 s2, 256
s_cbranch_scc1 L_{name}_exit
s_load_dwordx16 s[8:23], s[0:1], 0
s_load_dwordx16 s[24:39], s[0:1], 64
s_load_dwordx4 s[40:43], s[0:1], 128
s_getpc_b64 s[6:7]
L_pc:
s_mov_b64 exec, -1
v_lshrrev_b32 v2, 6, v0
v_and_b32 v{vLANE}, 63, v0
s_lshr_b32 s{sIDX}, s2, 3
v_readfirstlane_b32 s{sW}, v2
s_and_b32 s{sT0}, s{sIDX}, {ng-1}
s_lshl_b32 s{sT0}, s{sT0}, 11
v_lshl_add_u32 v3, v{vLANE}, 5, s{sT0}
s_cmp_lg_u32 s{sW}, 3
s_cbranch_scc1 L_nopf
global_load_dword v15, v3, s[6:7]
L_nopf:""")
    stamp0_issue(P,diag)
    P.I(f"s_and_b32 s{sXCD}, s2, 7")
    if perm: P.I(f"s_lshl_b32 s{sXCD}, s{sXCD}, 2\ns_lshr_b32 s{sXCD}, {hex(sum(v<<(4*k) for k,v in enumerate(perm)))}, s{sXCD}\ns_and_b32 s{sXCD}, s{sXCD}, 7")
    P.I(f"""s_lshl_b32 s{sP}, s{sXCD}, 5
s_add_u32 s{sP}, s{sP}, s{sIDX}""")

def role_addr(P, loc=0):
    P.I(f"""s_cmp_eq_u32 s{sW}, 0
s_cselect_b32 s{sT3}, 8, 1
s_lshl_b32 s{sT2}, s{sT3}, 10
s_lshl_b32 s{sT3}, s{sT3}, 7
s_and_b32 s{sT4}, s{sP}, 7
s_lshl_b32 s{sT4}, s{sT4}, 7""")
    if loc: P.I(f"s_lshl_b32 s{sT0}, s{sIDX}, 9\ns_add_u32 s{sT0}, s{sT0}, s{sXCD}\ns_lshl_b32 s{sT0}, s{sT0}, 7")
    else: P.I(f"s_lshr_b32 s{sT0}, s{sP}, 3\ns_lshl_b32 s{sT0}, s{sT0}, 16\ns_add_u32 s{sT0}, s{sT0}, s{sT4}")
    P.I(f"""s_lshl_b32 s{sT1}, s{sP}, 13
s_cmp_eq_u32 s{sW}, 0
s_cselect_b32 s{sT0}, s{sT0}, s{sT1}
s_and_b32 s{sT5}, s{sW}, 1
s_sub_u32 s92, 7, s{sT5}
s_lshr_b32 s{sT1}, s{sP}, s92
s_lshl1_add_u32 s{sT1}, s{sT5}, s{sT1}
s_lshl_b32 s{sT1}, s{sT1}, 10
s_add_u32 s{sT4}, s{sT4}, s{sT1}
s_and_b32 s{sT1}, s{sP}, 0xf8
s_add_u32 s92, s{sT5}, 2
s_lshl_b32 s{sT1}, s{sT1}, s92
s_and_b32 s{sT5}, s{sT1}, 511
s_mul_i32 s{sT1}, s{sT5}, 6144
s_add_u32 s{sT1}, s{sT1}, s{sT4}
s_mov_b32 s{sT4}, 3145728
s_cmp_lt_u32 s{sW}, 2
s_cselect_b32 s94, s{sT0}, s{sT1}
s_cselect_b32 s{sT2}, s{sT2}, 6144
s_cselect_b32 s79, s{sT3}, {8*6144}
s_cselect_b32 s{rR+2}, 2097152, s{sT4}
s_mov_b32 s{rR+3}, 0x20000
v_lshrrev_b32 v3, 3, v{vLANE}
v_mul_u32_u24 v3, s{sT2}, v3
v_lshrrev_b32 v4, 2, v{vLANE}
v_and_b32 v4, 4, v4
v_and_b32 v5, 7, v{vLANE}
v_xor_b32 v4, v4, v5
v_lshl_add_u32 v22, v4, 4, v3
v_xor_b32 v23, 32, v22
s_lshl_b32 s3, s{sW}, 13
s_add_u32 s3, s3, {L_RR}
v_add_u32 v5, s{sT5}, v{vLANE}
v_and_b32 v5, 511, v5
v_lshlrev_b32 v5, 1, v5
s_lshl_b32 s{sT5}, s{sP}, 9
v_lshl_add_u32 v2, v0, 1, s{sT5}""")
    for i in range(6): P.I(f"v_mov_b32 v{vPAR+i}, 0")
    P.I(f"v_mov_b32 v{vROLE}, 0\ns_lshl_b32 s93, s{sP}, 2")
def param_loads(P, NT):
    P.extend([f"global_load_short_d16_hi v{vPAR+i}, v2, {sp(b)} {NT}" for i,b in enumerate((sARE,sAIM,sBRE,sBIM,sCRE,sCIM))])
def early_loads(P, NT, pfirst):
    if pfirst: param_loads(P,NT)
    P.I(f"""s_load_dword s{sTAG}, {sp(sWS)}, {WS_EPOCH}
s_load_dword s{sLD}, {sp(sLDT)}, s93
s_load_dword s{sDS}, {sp(sDSK)}, s93
s_cmp_lt_u32 s{sW}, 2
s_cselect_b64 {sp(rR)}, {sp(sX)}, {sp(sWM)}
s_and_b32 s{rR+1}, s{rR+1}, 0xffff""")
    P.I(f"global_load_short_d16_hi v{vROLE}, v5, {sp(sC)}")
    P.I(f"""s_add_u32 s6, s6, L_table-L_pc+4096
s_addc_u32 s7, s7, 0
v_lshlrev_b32 v{vT16}, 4, v0""")
def role_loads(P, XNT, late):
    lbl='L_rlb' if late else 'L_rla'
    P.I(f"s_cmp_eq_u32 s{sW}, 3\ns_cbranch_scc{0 if late else 1} {lbl}")
    for u in range(8):
        if u==4 and not late: P.I(f"s_cmp_eq_u32 s{sW}, 2\ns_cbranch_scc1 {lbl}")
        P.I(f"s_add_u32 m0, s3, {u*1024}")
        P.I(f"s_add_u32 s94, s94, s79" if u else "s_nop 0")
        P.I(f"buffer_load_dwordx4 v{22+(u&1)}, {sp(rR,4)}, s94 offen {XNT} lds", tag='rr')
    P.I(f"{lbl}:")
def table_loads(P):
    P.I(f"global_load_dwordx4 {vr(vTAB,4)}, v{vT16}, s[6:7] offset:-4096\nglobal_load_dwordx4 {vr(vTAB+4,4)}, v{vT16}, s[6:7]")

def setup(P, nowd=False, X='', wmap=0, defer=0):
    D=Prog() if defer else P; P0=P
    P.extend(mksrd(rWS,sWS,WS_USED))
    P.I(f"{f's_cmp_lg_u32 s{sXCD}, 0' if wmap>=2 else f's_cmp_lt_u32 s{sIDX}, 28'}\ns_cselect_b32 s{sT0}, 1835008, 0\ns_cselect_b32 s{sT1}, {WS_USED}, 0")
    P.extend(mksrd(rWD,sWD,f"s{sT0}"))
    for r,b in ((rWG,sWG),(rWU,sWU)): D.extend(mksrd(r,b,f"s{rWD+2}"))
    P.extend(mksrd(rWJ,sWS,f"s{sT1}"))
    if 'w' in X: P.I(f"s_mov_b32 s{rWG+2}, 0\ns_mov_b32 s{rWU+2}, 0")
    if 'm' in X: P.I(f"s_mov_b32 s{rR+2}, 0")
    if 'd' in X: P.I(f"s_mov_b32 s{rWD+2}, 0")
    if 's' in X: P.I(f"s_min_u32 s{rWJ+2}, s{rWJ+2}, {WS_XG}")
    assert not (defer and (wmap>=2 or X))
    P=D
    if wmap>=2:
        P.I(f"s_max_u32 s{sFS}, s{sP}, 32\ns_sub_u32 s{sFS}, s{sFS}, 32")
        if wmap==2: P.I(f"s_lshr_b32 s{sCG}, s{sFS}, 3\ns_and_b32 s{sKE}, s{sFS}, 7")
        else: P.I(f"s_mul_i32 s{sKE}, s{sFS}, 586\ns_lshr_b32 s{sKE}, s{sKE}, 14\ns_mul_i32 s{sCG}, s{sKE}, 28\ns_sub_u32 s{sCG}, s{sFS}, s{sCG}")
    elif wmap: P.I(f"s_mov_b32 s{sCG}, s{sIDX}\ns_mov_b32 s{sKE}, s{sXCD}")
    else: P.I(f"""s_and_b32 s{sCG}, s{sXCD}, 3
s_mul_i32 s{sCG}, s{sCG}, 7
s_lshr_b32 s{sT0}, s{sIDX}, 2
s_add_u32 s{sCG}, s{sCG}, s{sT0}
s_and_b32 s{sKE}, s{sXCD}, 4
s_and_b32 s{sT0}, s{sIDX}, 3
s_add_u32 s{sKE}, s{sKE}, s{sT0}""")
    P.I(f"""s_lshl2_add_u32 s{sT0}, s{sCG}, s{sW}
s_mul_i32 s{sT1}, s{sT0}, 147
s_lshr_b32 s{sT1}, s{sT1}, 10
s_mul_i32 s{sT2}, s{sT1}, 7
s_sub_u32 s{sT0}, s{sT0}, s{sT2}
s_mul_i32 s{sT1}, s{sT1}, 231
s_cmp_lt_u32 s{sT0}, {G1}
s_cselect_b32 s{sT2}, {G1}, 1
s_cselect_b32 s{sT3}, 1, 33
s_mul_i32 s{sT0}, s{sT0}, s{sT3}
s_add_u32 s{sT0}, s{sT0}, s{sT1}
s_lshl_b32 s{sT0}, s{sT0}, 10
s_add_u32 s{sT0}, s{sT0}, {WS_WPF}
s_lshl_b32 s{sWST}, s{sT2}, 10
s_mul_i32 s{sT3}, s{sWST}, s{sKE}
s_lshl2_add_u32 s{sWO}, s{sT3}, s{sT0}
s_lshl_b32 s{sT2}, s{sT2}, 15
s_add_u32 s{sWA}, s{sT2}, s{sT0}
s_lshl_b32 s{sT0}, s{sKE}, 7
s_add_u32 s{sWA}, s{sWA}, s{sT0}
s_mul_i32 s{sT0}, s{sKE}, {64*3584}
s_lshl_b32 s{sT1}, s{sCG}, 7
s_add_u32 s90, s{sT0}, s{sT1}""")
    P=P0
    L=vLANE
    P.I(f"""v_lshlrev_b32 v{vL16}, 4, v{L}
v_and_b32 v2, 15, v{L}
v_and_b32 v3, 48, v{L}
v_lshrrev_b32 v4, 4, v{L}
v_lshrrev_b32 v5, 5, v{L}
v_and_b32 v6, 3, v{L}
s_mul_i32 s{sT2}, s{sW}, 10240
s_add_u32 s{sT2}, s{sT2}, {L_Y}
v_mul_u32_u24 v7, 320, v4
v_lshl_add_u32 v7, v2, 4, v7
v_add_u32 v{vYW}, s{sT2}, v7
v_lshrrev_b32 v7, 5, v0
v_mul_u32_u24 v7, 1280, v7
v_and_b32 v8, 1, v0
v_mul_u32_u24 v9, 640, v8
v_bfe_u32 v10, v0, 1, 4
v_lshl_add_u32 v9, v10, 4, v9
v_add_u32 v{vYR}, v7, v9
v_lshrrev_b32 v7, 2, v0
{f"s_and_b32 s{sT2}, s{sP}, 7" if XIN else ""}
{f"v_xor_b32 v7, s{sT2}, v7" if XIN else ""}
v_lshlrev_b32 v7, {7 if XIN else 15}, v7
v_lshl_add_u32 v{vXO}, v6, 4, v7
v_mul_u32_u24 v7, {FP}, v2
v_add_u32 v7, v7, v3
v_add_u32 v{vKF}, {L_F}, v7
v_mul_u32_u24 v7, {CP}, v2
s_mul_i32 s{sT2}, s{sW}, {16*CP}
v_add3_u32 v{vKC}, v7, v3, s{sT2}
v_bfe_u32 v7, v{L}, 2, 2
v_cvt_f32_u32 v{vSEL2}, v5
v_and_b32 v9, 31, v{L}
v_lshlrev_b32 v{vMC}, 12, v9
v_and_b32 v9, 8, v{L}
v_lshl_add_u32 v9, v9, 1, v2
v_lshlrev_b32 v{vSEL1}, 12, v9
v_lshl_add_u32 v9, v5, 3, v6
v_bfe_u32 v10, v{L}, 2, 3
v_lshlrev_b32 v11, 4, v10
v_lshl_add_u32 v{vMW}, v9, 12, v11
s_lshl_b32 s{sT2}, s{sW}, 6
s_add_u32 s{sT2}, s{sT2}, {L_GT+256}
v_lshl_add_u32 v10, v10, 3, s{sT2}
v_lshlrev_b32 v11, 8, v5
v_sub_u32 v{vGW}, v10, v11
v_lshlrev_b32 v10, 5, v5
v_add_u32 v{vGR}, {L_GT}, v10
v_and_b32 v9, 1, v4
v_lshl_add_u32 v10, v9, 1, v5
v_lshl_add_u32 v10, v10, 3, v7
v_lshl_add_u32 v10, v10, 1, v9
v_bfe_u32 v11, v{L}, 3, 1
v_lshl_add_u32 v10, v10, 1, v11
v_xor_b32 v10, s{sW}, v10
v_lshl_add_u32 v10, v10, 1, v8
v_bfe_u32 v11, v{L}, 1, 1
v_lshl_add_u32 v10, v10, 1, v11
v_lshlrev_b32 v10, 3, v10
v_add_u32 v{vWRA}, {L_WR}, v10""")
    P.I(f"""v_mul_u32_u24 v7, {HP}, v5
v_and_b32 v9, 31, v{L}
v_min_u32 v9, 29, v9
v_lshl_add_u32 v7, v9, 4, v7
v_add_u32 v7, {L_H}, v7
v_cmp_gt_u32 vcc, 64, v0
v_mov_b32 v9, {L_CZ}
v_mov_b32 v{vFG}, 0
v_cndmask_b32 v7, v9, v7, vcc
v_mov_b32 v{vFG+1}, 0
v_mov_b32 v{vFG+2}, 0
v_mov_b32 v{vFG+3}, 0
ds_write_b128 v7, {vr(vFG,4)}""")
    A0=vRA
    P.I(f"""v_lshrrev_b32 v2, 3, v{L}
v_and_b32 v3, 2, v2
v_mul_u32_u24 v2, 3584, v2
v_and_b32 v4, 7, v{L}
v_xor_b32 v3, v3, v4
v_xor_b32 v4, 4, v3
v_lshl_add_u32 v{A0+2}, v3, 4, v2
v_lshl_add_u32 v{A0+3}, v4, 4, v2
v_and_b32 v8, 1, v{L}
v_bfe_u32 v7, v{L}, 1, 3
v_mul_u32_u24 v7, {KIP}, v7
v_lshl_add_u32 v7, v8, 4, v7
v_add_u32 v{A0+1}, {L_KI+4096}, v7
""")
    if not nowd: P.I(f"""v_lshrrev_b32 v2, 2, v{L}
v_and_b32 v5, 3, v{L}
v_lshlrev_b32 v5, 4, v5
v_lshl_add_u32 v{A0+4}, v2, 10, v5
v_lshrrev_b32 v6, 5, v{L}
v_and_b32 v7, 3, v2
v_lshl_add_u32 v6, v6, 3, v7
v_bfe_u32 v7, v{L}, 4, 1
v_lshl_add_u32 v6, v6, 1, v7
v_lshl_add_u32 v6, v6, 1, v8
v_bfe_u32 v7, v{L}, 1, 1
v_lshl_add_u32 v6, v6, 1, v7
v_lshlrev_b32 v6, 3, v6
v_add_u32 v{A0}, {L_DR}, v6
{"" if wmap>=2 else f"s_mul_i32 s{sFS}, s{sXCD}, 28"}
{"" if wmap>=2 else f"s_add_u32 s{sFS}, s{sFS}, s{sIDX}"}
s_lshr_b32 s{sT2}, s{sFS}, 1
s_lshl_b32 s{sT2}, s{sT2}, 14
s_and_b32 s{sT1}, s{sFS}, 1
s_lshl_b32 s{sT1}, s{sT1}, 9
s_add_u32 s91, s{sT2}, s{sT1}""")
    return [x.text for x in D.ins] if defer else []

def x_jobs(P, PUB, diag, loc=0):
    R=vROLE; G=vROLE+32; L=vLANE
    P.I(f"s_cmp_eq_u32 s{sW}, 2\ns_cbranch_scc1 L_rj2\ns_cmp_eq_u32 s{sW}, 1\ns_cbranch_scc1 L_rj1")
    P.I(f"""v_and_b32 v2, 7, v{L}
v_lshrrev_b32 v3, 3, v{L}
v_and_b32 v4, 2, v2
v_lshlrev_b32 v4, 1, v4
v_xor_b32 v4, v4, v3
v_lshlrev_b32 v4, 4, v4
v_lshl_add_u32 v4, v2, 7, v4
v_add_u32 v4, {L_RR}, v4
v_xor_b32 v5, 32, v4
v_mul_u32_u24 v3, {4*12288}, v3
v_lshl_add_u32 v2, v2, 4, v3
{f"s_mov_b32 s{sT0}, s{sXCD}" if loc else f"s_and_b32 s{sT0}, s{sP}, 7"}
s_mul_i32 s{sT0}, s{sT0}, {32*12288}
{f"s_lshl_b32 s{sT1}, s{sIDX}, 3" if loc else f"s_and_b32 s{sT1}, s{sP}, 0xf8"}
s_lshl4_add_u32 s{sT0}, s{sT1}, s{sT0}
s_add_u32 s{sT0}, s{sT0}, {WS_XG}""")
    for k in range(12): P.I(f"v_mov_b32 v{G+4*k+3}, s{sTAG}")
    if diag and ONLY and 27 in ONLY:
        for z,cn in ((25,63),(24,16),(27,10),(28,6),(29,2)): P.I(f"s_waitcnt vmcnt({cn})"); stamp(P,z,diag)
    P.I(f"s_waitcnt vmcnt({JW})"); stamp(P,2,diag)
    for r in range(8): P.I(f"ds_read_b128 {vr(R+4*r,4)}, v{4+(r&1)} offset:{r*1024}")
    for g in range(3):
        for j in range(4):
            k=g*4+j
            for e in range(3):
                if 3*g+e<8: P.I(f"v_mov_b32 v{G+4*k+e}, v{R+4*(3*g+e)+j}")
            P.I(f"s_add_u32 s{sT1}, s{sT0}, {j*12288+g*4096}")
            P.I(f"buffer_store_dwordx4 {vr(G+4*k,4)}, v2, {sp(rWS,4)}, s{sT1} offen {'' if loc==1 else PUB}")
    P.I(f"s_waitcnt vmcnt(12)\ns_branch L_xje\nL_rj1:")
    P.I(f"""v_mov_b32 v2, 0
v_mov_b32 v3, 0
v_mov_b32 v4, 0
v_mov_b32 v5, 0
s_mov_b32 s{sT1}, 0x3f803f80
v_add_u32 v6, {L_RR+8192}, v{vL16}
v_mul_u32_u24 v8, 96, v{L}
v_lshlrev_b32 v9, {4 if SGP else 12}, v{L}
s_lshl_b32 s{sT0}, s{sP}, {SGP or 4}
s_add_u32 s{sT0}, s{sT0}, {WS_SG}""")
    P.I(f"v_mov_b32 v{G+3}, s{sTAG}\ns_waitcnt vmcnt({JW})"); stamp(P,2,diag)
    for u in range(8): P.I(f"ds_read_b128 {vr(R+4*u,4)}, v6 offset:{u*1024}")
    for k in range(32):
        P.I(f"v_dot2c_f32_bf16 v{2+(k&1)}, s{sT1}, v{R+k}\nv_dot2c_f32_bf16 v{4+(k&1)}, v{R+k}, v{R+k}")
    P.I("v_add_f32 v2, v2, v3\nv_add_f32 v4, v4, v5")
    for m in ("quad_perm:[1,0,3,2]","quad_perm:[2,3,0,1]","row_half_mirror"):
        P.I(f"v_add_f32_dpp v2, v2, v2 {m} row_mask:0xf bank_mask:0xf\nv_add_f32_dpp v4, v4, v4 {m} row_mask:0xf bank_mask:0xf")
    P.I(f"""v_mul_f32 v2, 0x3b000000, v2
v_mul_f32 v4, 0x3b000000, v4
v_fma_f32 v4, -v2, v2, v4
v_max_f32 v4, 0, v4
v_cvt_pk_bf16_f32 v4, v4, v4
v_and_b32 v4, 0xffff0000, v4
v_add_f32 v4, 0x3727c5ac, v4
v_cvt_pk_bf16_f32 v4, v4, v4
v_and_b32 v4, 0xffff0000, v4
v_sqrt_f32 v4, v4
v_cvt_pk_bf16_f32 v2, v2, v4
ds_bpermute_b32 v{G}, v8, v2
ds_bpermute_b32 v{G+1}, v8, v2 offset:32
ds_bpermute_b32 v{G+2}, v8, v2 offset:64
s_waitcnt lgkmcnt(0)
s_mov_b64 exec, {(1<<(1<<(SGP-4)))-1 if SGP else 7}
buffer_store_dwordx4 {vr(G,4)}, v9, {sp(rWS,4)}, s{sT0} offen {PUB}
s_mov_b64 exec, -1
s_waitcnt vmcnt(1)
s_branch L_xje
{".p2align 12" if PG0 else ""}
{"L_page:" if PG0 else ""}
L_rj2:""")
    mod_job(P,PUB,diag,1)
    P.I("s_waitcnt vmcnt(1)")
    P.I("L_xje:")
def mod_job(P, PUB, diag, nks):
    R=vROLE; L=vLANE; A0=vRA; w=nks+1
    assert L_MR%128==0
    P.I(f"""v_lshrrev_b32 v2, 4, v{L}
v_bfe_u32 v3, v{L}, 2, 2
v_lshl_add_u32 v4, v2, 3, v3
v_bfe_u32 v3, v{L}, 3, 1
v_lshl_add_u32 v4, v4, 1, v3
v_and_b32 v3, 1, v2
v_lshl_add_u32 v4, v4, 1, v3
v_and_b32 v3, 3, v{L}
v_lshl_add_u32 v4, v4, 2, v3
v_lshlrev_b32 v4, 3, v4
v_add_u32 v8, {L_RR+w*8192}, v4
v_xor_b32 v9, 32, v8
v_xor_b32 v10, 64, v8
v_xor_b32 v11, 96, v8
v_bfe_u32 v4, v{L}, 1, 2
v_lshl_add_u32 v4, v4, 2, v2
v_and_b32 v3, 1, v{L}
v_lshl_add_u32 v4, v4, 1, v3
v_lshlrev_b32 v{A0+5}, 4, v4
s_mov_b32 s{sT0}, {L_SC+(w-2)*128}
v_lshl_add_u32 v6, v{L}, 1, s{sT0}
v_and_b32 v7, 48, v{L}
v_add_u32 v7, s{sT0}, v7
s_lshl_b32 s{sT0}, s{sP}, 9
s_add_u32 s99, s{sT0}, {WS_MG+(w-2)*0x20000}
s_mov_b32 s{sT0}, 0xaaaaaaaa
s_mov_b32 s{sT1}, 0xaaaaaaaa
s_mov_b32 s{sT2}, 0xcccccccc
s_mov_b32 s{sT3}, 0xcccccccc
s_mov_b32 s{sT4}, 0xf0f0f0f0
s_mov_b32 s{sT5}, 0xf0f0f0f0""")
    if nks==1: P.I(f"s_waitcnt vmcnt({12 if JW else 6})")
    P.I(f"""v_mul_f32 v4, 0xbfb8aa3b, v{R}
v_exp_f32 v4, v4
v_add_f32 v4, 1.0, v4
v_rcp_f32 v4, v4
v_mul_f32 v2, v{R}, v4
v_cvt_pk_bf16_f32 v2, v2, v2
ds_write_b16 v6, v2""")
    for ks in range(nks): P.I(f"ds_read_b128 {vr(R+4*ks,4)}, v7 offset:{ks*64}")
    P.I(f"s_waitcnt vmcnt({JW})" if nks==1 else "@wait rr"); stamp(P,2,diag)
    A=R+16; ACC=R+16+32
    seq=[(ks,ct) for ks in range(nks) for ct in range(4)]
    for n,(ks,ct) in enumerate(seq):
        for hf in range(2): P.I(f"ds_read_b64_tr_b16 {vr(A+4*n+2*hf,2)}, v{8+ct} offset:{ks*4096+hf*512}")
    for n,(ks,ct) in enumerate(seq):
        P.I(f"v_mfma_f32_16x16x32_bf16 {vr(ACC+4*ct,4)}, {vr(A+4*n,4)}, {vr(R+4*ks,4)}, {vr(ACC+4*ct,4) if ks else 0}")
    P.I(f"v_mov_b32 v{R+3}, s{sTAG}")
    for ct in range(4):
        for e in range(2): P.I(f"v_cndmask_b32 v{A+2*ct+e}, v{ACC+4*ct+e}, v{ACC+4*ct+2+e}, {sp(sT0)}")
    for c2 in range(2):
        for e in range(2): P.I(f"v_cndmask_b32 v{A+8+2*c2+e}, v{A+4*c2+e}, v{A+4*c2+2+e}, {sp(sT2)}")
    for e in range(2): P.I(f"v_cndmask_b32 v{R+e}, v{A+8+e}, v{A+10+e}, {sp(sT4)}")
    P.I(f"""s_mov_b32 exec_lo, 0x00ff00ff
s_mov_b32 exec_hi, 0x00ff00ff
buffer_store_dwordx4 {vr(R,4)}, v{A0+5}, {sp(rWS,4)}, s99 offen {PUB}
s_mov_b64 exec, -1""")
def raw_wd_loads(P, NT):
    P.I(f"s_lshl_b32 s{sT0}, s{sW}, 11\ns_lshl_b32 s{sT1}, s{sW}, 7\ns_add_u32 m0, s{sT0}, {L_DR}\ns_add_u32 s{sT1}, s{sT1}, s91")
    P.I(f"buffer_load_dwordx4 v{vRA+4}, {sp(rWD,4)}, s{sT1} offen {NT} lds", tag='dr')
    P.I(f"s_add_u32 m0, s{sT0}, {L_DR+1024-64}\nv_add_u32 v245, s{sT0}, v{vRA}")
    P.I(f"buffer_load_dwordx4 v{vRA+4}, {sp(rWD,4)}, s{sT1} offen offset:64 {NT} lds", tag='dr')
PRE_S=0
def wd_scalars(d):
    return f"""s_and_b32 s{d}, s{sFS}, 1
s_lshl2_add_u32 s{d}, s{d}, s{sW}
s_mul_i32 s{d}, s{d}, {2*112}
s_lshr_b32 s{d+1}, s{sFS}, 1
s_add_u32 s{d}, s{d}, s{d+1}
s_lshl_b32 s{d}, s{d}, 10
s_add_u32 s{d}, s{d}, {WS_WDF}
s_add_u32 s{d+1}, s{d}, {112*1024}""".split('\n')
def w_scalars(): return [f"s_mul_i32 s95, s{sW}, {16*3584}", "s_add_u32 s95, s95, s90", f"s_lshl_b32 s96, s{sW}, 12"]
def wd_job(P, ST):
    A=vHF+8; d=22 if PRE_S else sT0
    P.I("@wait dr")
    for f in range(2):
        for hf in range(2): P.I(f"ds_read_b64_tr_b16 {vr(A+4*f+2*hf,2)}, v245 offset:{f*1024+hf*256}")
    if not PRE_S: P.extend(wd_scalars(d))
    for f in range(2):
        P.I(f"buffer_store_dwordx4 {vr(A+4*f,4)}, v{vL16}, {sp(rWJ,4)}, s{d+f} offen {ST}", tag='wdst')
def raw_w_loads(P, NT):
    if not PRE_S: P.extend(w_scalars())
    for q in range(2):
        for mat,r in ((0,rWG),(1,rWU)):
            P.I(f"s_add_u32 m0, s96, {L_WR+mat*2048+q*1024}")
            P.I(f"s_add_u32 s95, s95, {8*3584}" if (q and not mat) else "s_nop 0")
            P.I(f"buffer_load_dwordx4 v{vRA+2+mat}, {sp(r,4)}, s95 offen {NT} lds", tag='wr')

def cmul(o,a,b,t):
    return [f"v_pk_mul_f32 {vr(t,2)}, {vr(a,2)}, {vr(b,2)} op_sel_hi:[0,1]",
            f"v_pk_fma_f32 {vr(o,2)}, {vr(a,2)}, {vr(b,2)}, {vr(t,2)} op_sel:[1,1,0] op_sel_hi:[1,0,1] neg_lo:[1,0,0]"]
def factor_gen(P, lo=0, hi=99, grp=1, fill=None):
    B=vFG; are,aim,bre,bim,cre,cim=[vPAR+i for i in range(6)]
    R1,R8,R128,LOc,TMP,PK = B,B+2,B+4,B+6,B+8,B+12
    Pc=[B+16+2*c for c in range(8)]
    zr,zi,dt=B+32,B+33,B+34; M=[2,4,6]; PH=[8,9,10]
    P.I(f"s_lshr_b32 s{sT0}, s{sW}, 1\ns_mul_i32 s{sT1}, s{sT0}, {64*FP-512}\ns_lshl_b32 s{sT2}, s{sW}, 8\ns_add_u32 m0, s{sT1}, s{sT2}")
    P0=P
    if lo: P=Prog()
    P.I(f"""s_lshl_b32 s{sT0}, s{sT0}, 4
s_lshr_b32 s{sT1}, s{sLD}, s{sT0}
s_lshl_b32 s{sT1}, s{sT1}, 16
v_mov_b32 v{dt}, {hex(LOG2E)}
v_mul_f32 v{dt}, s{sT1}, v{dt}
v_exp_f32 v{dt}, v{dt}""")
    P.extend(cmul(Pc[0],cre,bre,TMP))
    P.I(f"""v_cvt_pk_bf16_f32 v{dt}, v{dt}, v{dt}
v_and_b32 v{dt}, 0xffff0000, v{dt}
v_mul_f32 v{zr}, v{dt}, v{are}
v_mul_f32 v{zi}, v{dt}, v{aim}
v_mul_f32 v{zr}, {hex(LOG2E)}, v{zr}
v_mul_f32 v{zi}, 0.15915494, v{zi}
v_pk_mul_f32 {vr(Pc[0],2)}, {vr(Pc[0],2)}, {vr(dt,2)} op_sel_hi:[1,0] neg_hi:[1,0]""")
    cx=((R1,1,True),(R8,8,False),(R128,128,True))
    for (o,sc,cj),m,ph in zip(cx,M,PH):
        if sc==1: P.I(f"v_exp_f32 v{m}, v{zr}\nv_fract_f32 v{ph}, v{zi}")
        else: P.I(f"v_mul_f32 v{m}, {hex(f32(sc))}, v{zr}\nv_mul_f32 v{ph}, {hex(f32(sc))}, v{zi}\nv_exp_f32 v{m}, v{m}\nv_fract_f32 v{ph}, v{ph}")
        P.I(f"v_cos_f32 v{o}, v{ph}\nv_sin_f32 v{o+1}, v{ph}")
    for (o,sc,cj),m,ph in zip(cx,M,PH):
        P.I(f"v_pk_mul_f32 {vr(o,2)}, {vr(o,2)}, {vr(m,2)} op_sel_hi:[1,0]" + (" neg_hi:[1,0]" if cj else ""))
    P=P0
    steps_lo=[('one',48),('put',49,R8)]+[('mul',48+b,LOc,(R8 if b==2 else LOc),R8) for b in range(2,16)]
    steps_hi=[('put',0,Pc[0])]+[('mul',c,Pc[c],Pc[c-1],R1) for c in range(1,8)]
    row=8
    for e in range(1,17):
        cs = range(8) if e<2 else range(0,8,2) if e<4 else (0,4) if e<8 else (0,)
        for c in cs:
            assert HI[row]==128*e+c
            steps_hi.append(('mul',row,Pc[c],Pc[c],R128)); row+=1
    fill=fill if fill is not None else []; pend=[]
    def sz(t):
        Q=[Ins(t)]; sizes(Q); return Q[0].size
    def flush():
        odd=False; n=len(pend)+1; slot=0
        for i,w in enumerate(pend):
            for _ in range(1 if i else 2):
                slot+=1
                if slot==n and ALN:
                    if fill and (sz(fill[0])==4)==odd: P.I(fill.pop(0))
                    elif odd: P.I("s_nop 0")
                elif fill: odd^=(sz(fill[0])==4); P.I(fill.pop(0))
            P.I(w)
        pend.clear()
    for k,s in enumerate(steps_lo+steps_hi):
        if not lo<=k<hi: continue
        kk=PK+(k&3)
        if s[0]=='one': P.I(f"v_mov_b32 v{kk}, 0x3f80")
        else:
            if s[0]=='mul': P.extend(cmul(s[2],s[3],s[4],TMP+2*(k&1)))
            P.I(f"v_cvt_pk_bf16_f32 v{kk}, v{s[2]}, v{s[2]+1}")
        pend.append(f"ds_write_addtid_b32 v{kk} offset:{L_F+s[1]*FP}")
        if len(pend)==grp: flush()
    flush()

vKH=156
def kgen_init(P):
    ACC=vHF
    P.I(f"""s_lshl_b32 s{sT0}, s{sDS}, 16
s_and_b32 s{sT1}, s{sDS}, 0xffff0000
v_cmp_eq_u32 vcc, 0, v0
v_mov_b32 v2, s{sT0}
v_mov_b32 v3, s{sT1}
s_mul_i32 s{sT2}, s{sW}, {16*FP}
v_cndmask_b32 v{ACC}, 0, v2, vcc
v_cndmask_b32 v{ACC+4}, 0, v3, vcc
v_add_u32 v{vKH}, s{sT2}, v{vKF}""")
    for r in (1,2,3,5,6,7): P.I(f"v_mov_b32 v{ACC+r}, 0")
def kgen(P, diag, mid=[], skip=0, order=0):
    A=vROLE; ACC=vHF
    Q=Prog(); table_unpack(Q); tu=[x.text for x in Q.ins]
    P.I(f"s_cmp_eq_u32 s{sW}, 3\ns_cbranch_scc1 L_wdjob\ns_waitcnt lgkmcnt(0)\ns_barrier")
    def rd(n):
        ks,ch=n>>1,n&1; b=A+8*(n%9)
        return [f"ds_read_b128 {vr(b,4)}, v{vKF} offset:{ch*64*FP+48*FP+ks*64}", f"ds_read_b128 {vr(b+4,4)}, v{vKH} offset:{ch*64*FP+ks*64}"]
    for n in range(7): P.extend(rd(n))
    P.extend(tu[:5])
    m2=[[Ins(x.text,x.tag) for x in g] for g in mid]; mid=list(mid)
    for n in range(16):
        if mid and n>=skip: P.extend(mid.pop(0))
        b=A+8*(n%9); a=vr(ACC+4*(n&1),4)
        P.I(f"v_mfma_f32_16x16x32_bf16 {a}, {vr(b,4)}, {vr(b+4,4)}, {a}")
        if n+7<16: P.extend(rd(n+7))
    P.extend(tu[5:])
    for r in range(4): P.I(f"v_cvt_pk_bf16_f32 v{8+r}, v{ACC+r}, v{ACC+4+r}")
    P.I(f"ds_write_b128 v{vKC}, v[8:11]\ns_branch L_kgen_end\nL_wdjob:")
    P.I("s_waitcnt lgkmcnt(0)\ns_barrier")
    P.extend(tu)
    if order==0:
        for g in m2: P.extend(g)
    mod_job(P,'sc1',diag,2)
    if order==1:
        for g in m2: P.extend(g)
    P.I(f"ds_write_b128 v{vRA+1}, {vr(ACC,4)}")
    P.I("L_kgen_end:")

def poll_groups(extra=None, XL='sc1', xfirst=0, SL='sc1'):
    Q=Prog(); poll_loads(Q,XL,xfirst,SL); G=[[]]
    if extra: extra(Q)
    for x in Q.ins:
        G[-1].append(x)
        if x.kind=='vmem': G.append([])
    return G[:-1]
def poll_loads(P, XL='sc1', xfirst=0, SL='sc1'):
    LD='sc1'
    P.I(f"s_mul_i32 s94, s{sP}, 12288\ns_add_u32 s94, s94, {WS_XG}")
    X=[(f"s_add_u32 s94, s94, 4096\n" if g else "")+f"buffer_load_dwordx4 {vr(vPOLL+4*g,4)}, v{vT16}, {sp(rWS,4)}, s94 offen {XL}" for g in range(3)]
    S=[f"s_mov_b32 s79, {WS_SG+g*4096}\nbuffer_load_dwordx4 {vr(vPOLL+12+4*g,4)}, v{vT16}, {sp(rWS,4)}, s79 offen {LD}" for g in range(3)]
    if SGP: S=[(f"s_mov_b32 s79, {WS_SG}\nv_lshlrev_b32 v157, {SGP}, v0\n" if g==0 else "")+f"buffer_load_dwordx4 {vr(vPOLL+12+4*g,4)}, v157, {sp(rWS,4)}, s79 offen offset:{16*g} {SL}" for g in range(3)]
    M=[f"s_lshl4_add_u32 s3, s{sP}, {WS_MG}\nbuffer_load_dwordx4 {vr(vPOLL+24,4)}, v{vMC}, {sp(rWS,4)}, s3 offen {LD}"]
    for t in (X+S+M if xfirst==1 else S+M+X if xfirst==2 else M+S+X if xfirst==3 else [y for p in zip(X,S) for y in p]+M): P.I(t, tag='pollx' if t in X else 'poll')
vQ=144
def poll2_loads(P):
    P.I(f"""s_lshl4_add_u32 s3, s{sP}, {WS_MG+0x20000}
buffer_load_dwordx4 {vr(vQ,4)}, v{vSEL1}, {sp(rWS,4)}, s3 offen sc1
s_lshl2_add_u32 s3, s{sKE}, s{sW}
s_lshl_b32 s3, s3, 7
s_add_u32 s3, s3, {WS_MG+0x20000+8*4096}
buffer_load_dwordx4 {vr(vQ+4,4)}, v{vMW}, {sp(rWS,4)}, s3 offen sc1
s_add_u32 s3, s3, {4*4096}""")
    P.I(f"buffer_load_dwordx4 {vr(vQ+8,4)}, v{vMW}, {sp(rWS,4)}, s3 offen sc1", tag='poll2')
def poll2_work(ST):
    mc,mw=vQ,vQ+4; dpp=" row_mask:0xf bank_mask:0xf"
    L=[["L_p2_chk:","@wait poll2",f"v_min3_u32 v2, v{vQ+3}, v{vQ+7}, v{vQ+11}",f"v_max3_u32 v3, v{vQ+3}, v{vQ+7}, v{vQ+11}",f"v_min_u32 v2, s{sTAG}, v2",f"v_max_u32 v3, s{sTAG}, v3",
        "v_cmp_ne_u32 vcc, v2, v3","s_cbranch_vccnz L_q_retry","L_q_ok:"]]
    L[0][0]="L_q_chk:"
    X=[f"v_add_f32 v{mw}, v{mw}, v{vQ+8}",f"v_add_f32 v{mw+1}, v{mw+1}, v{vQ+9}"]
    for m in ("quad_perm:[1,0,3,2]","quad_perm:[2,3,0,1]"):
        X+=[f"v_add_f32_dpp v{r}, v{r}, v{r} {m}{dpp}" for r in (mc,mc+1,mw,mw+1)]
    X+=[f"v_add_f32_dpp v{r}, v{r}, v{r} row_half_mirror{dpp}" for r in (mc,mc+1)]
    X+=[f"v_cvt_pk_bf16_f32 v{mw+1}, v{mw}, v{mw+1}", f"v_cvt_pk_bf16_f32 v{mc+1}, v{mc}, v{mc+1}",
        f"v_lshlrev_b32 v{mw}, 16, v{mw+1}", f"v_and_b32 v{mw+1}, 0xffff0000, v{mw+1}", f"v_lshlrev_b32 v{mc}, 16, v{mc+1}", f"v_and_b32 v{mc+1}, 0xffff0000, v{mc+1}",
        f"v_add_f32 v{mw}, v{mw}, v{vSEL2}", f"v_add_f32 v{mw+1}, v{mw+1}, v{vSEL2}", f"v_cvt_pk_bf16_f32 v{mw+1}, v{mw}, v{mw+1}",
        f"v_lshlrev_b32 v{mw}, 16, v{mw+1}", f"v_and_b32 v{mw+1}, 0xffff0000, v{mw+1}", f"ds_write_b64 v{vGW}, {vr(mw,2)}"]
    late=[f"v_mov_b32_dpp v{vMOD+4+2*k+e}, v{mc+e} row_newbcast:{8*k}{dpp}" for k in range(2) for e in range(2)]
    return L[0],X,late
PG0=0; ALN=1; BACKOFF=0; PREW=0; SGP=0
def writeback(cnt, lbl, on):
    if not on: return (["s_waitcnt vmcnt(0)"] if PREW else [])+([f"s_sleep {BACKOFF}"] if BACKOFF else [])
    return [f"s_and_b32 s4, s{cnt}, 3","s_cmp_lg_u32 s4, 0",f"s_cbranch_scc1 {lbl}","buffer_wbl2 sc1","s_waitcnt vmcnt(0)",f"{lbl}:"] if on else []
def retry2_block(P, loc=0, mask=0):
    P.I(f"L_q_retry:\ns_add_u32 s{sCNT}, s{sCNT}, 1\ns_cmp_gt_u32 s{sCNT}, 20000\n@loopok\ns_cbranch_scc1 L_q_ok")
    P.extend(writeback(sCNT,'L_q_nowb',loc))
    if mask: P.I("s_mov_b64 exec, vcc")
    poll2_loads(P)
    if mask: P.I("s_mov_b64 exec, -1")
    P.I("s_waitcnt vmcnt(0) lgkmcnt(0)\ns_branch L_q_chk")

vGA=140
def table_unpack(P):
    P.I(f"v_mov_b32 v{vUA}, v{vTAB+7}\nv_mov_b32 v{vKA}, v{vTAB+6}")
    for j in range(11):
        P.I(f"v_lshrrev_b32 v{vGA+j}, 16, v{vTAB+j//2}" if j&1 else f"v_and_b32 v{vGA+j}, 0xffff, v{vTAB+j//2}")
def k_image(P, G, npre, skip, w0at=0):
    E=vROLE+40; O=vROLE; GA=vGA
    G0=[[Ins(x.text,x.tag) for x in g] for g in G[:npre]] if w0at else []
    if w0at: P.I(f"@wait dr\ns_cmp_eq_u32 s{sW}, 0\ns_cbranch_scc1 L_w0a")
    for _ in range(npre): P.extend(G.pop(0))
    if w0at: P.I("L_w0a:")
    P.I(f"""s_mov_b32 s{sT4}, 0x05040100
s_mov_b32 s{sT5}, 0x07060302
v_add_u32 v2, {L_KI}, v{vT16}
s_waitcnt lgkmcnt(0)
s_barrier""")
    for j in range(11): P.I(f"ds_read_b32 v{E+j}, v{GA+j}")
    k=0
    for c in (3,2,1,0):
        for ch in range(2):
            o=O+4*k; k+=1
            for i in range(4):
                j=3-c+2*i
                P.I(f"v_perm_b32 v{o+i}, v{E+j+1}, v{E+j}, s{sT4+ch}")
            P.I(f"ds_write_b128 v2, {vr(o,4)} offset:{(ch*4+c)*KIP}")
            if k==w0at:
                P.I(f"s_cmp_lg_u32 s{sW}, 0\ns_cbranch_scc1 L_w0b\n@forget "+" ".join(str(r) for r in range(vPOLL,vPOLL+28)))
                for g in G0: P.extend(g)
                P.I("L_w0b:")
            if G and k>skip: P.extend(G.pop(0))
    for g in G: P.extend(g)

def retry_block(P, loc=0, mask=0):
    P.I(f"L_ka_retry:\ns_add_u32 s{sCNT}, s{sCNT}, 1\ns_cmp_gt_u32 s{sCNT}, 20000\n@loopok\ns_cbranch_scc1 L_ka_ok")
    P.extend(writeback(sCNT,'L_ka_nowb',loc))
    if mask:
        G=poll_groups(None,'sc1',3)
        P.extend(G[0]); P.I("s_mov_b64 exec, vcc")
        for g in G[1:]: P.extend(g)
        P.I("s_mov_b64 exec, -1")
    else: poll_loads(P)
    P.I("s_waitcnt vmcnt(0) lgkmcnt(0)\ns_branch L_ka_chk")

def make_h(P, diag, q2=False):
    Q=vPOLL; mc=Q+24; Mm=vROLE; Mr=vROLE+8; O=vROLE+16; A=vROLE+24; B=vROLE+40
    dpp=" row_mask:0xf bank_mask:0xf"
    P.I(f"s_mov_b32 s{sCNT}, 0\nv_add_u32 v4, {L_H+480}, v{vT16}\nL_ka_chk:\n@wait poll")
    chain=[]
    for m in ("quad_perm:[1,0,3,2]","quad_perm:[2,3,0,1]","row_half_mirror","row_mirror"):
        chain.append([f"v_add_f32_dpp v{r}, v{r}, v{r} {m}{dpp}" for r in (mc,mc+1)])
    chain+=[[f"v_cvt_pk_bf16_f32 v{mc}, v{mc}, v{mc+1}", f"v_mov_b32 v{mc+1}, v{mc}"],
            [f"v_permlane16_swap_b32 v{mc}, v{mc+1}", f"v_lshlrev_b32 v{vMOD}, 16, v{mc}", f"v_and_b32 v{vMOD+1}, 0xffff0000, v{mc}", f"v_lshlrev_b32 v{mc}, 16, v{mc+1}", f"v_and_b32 v{mc+1}, 0xffff0000, v{mc+1}"],
            [f"v_add_f32 v{mc}, 1.0, v{mc}", f"v_add_f32 v{mc+1}, 1.0, v{mc+1}", f"v_cvt_pk_bf16_f32 v{mc}, v{mc}, v{mc+1}"],
            [f"v_lshlrev_b32 v{vMOD+2}, 16, v{mc}", f"v_and_b32 v{vMOD+3}, 0xffff0000, v{mc}"]]
    for r in range(8):
        st=Q+12+4*(r//3)+r%3
        P.extend(chain[r])
        P.I(f"v_and_b32 v{Mr+r}, 0xffff0000, v{st}\nv_lshlrev_b32 v{Mm+r}, 16, v{st}\nv_rcp_f32 v{Mr+r}, v{Mr+r}")
    P.I(f"""v_min3_u32 v2, s{sTAG}, v{Q+27}, v{Q+15}
v_max3_u32 v3, s{sTAG}, v{Q+27}, v{Q+15}
v_min3_u32 v2, v2, v{Q+19}, v{Q+23}
v_max3_u32 v3, v3, v{Q+19}, v{Q+23}""")
    for ch in range(2):
        for r in range(0,8,2): P.I(f"v_pk_mul_f32 {vr(A+8*ch+r,2)}, {vr(Mr+r,2)}, {vr(vMOD+2,2)} op_sel:[0,{ch}] op_sel_hi:[1,{ch}]")
    for ch in range(2):
        for r in range(0,8,2): P.I(f"v_pk_fma_f32 {vr(B+8*ch+r,2)}, {vr(Mm+r,2)}, {vr(A+8*ch+r,2)}, {vr(vMOD,2)} op_sel:[0,0,{ch}] op_sel_hi:[1,1,{ch}] neg_lo:[1,0,0] neg_hi:[1,0,0]")
    P.I(f"""@wait pollx
v_min3_u32 v2, v2, v{Q+3}, v{Q+7}
v_max3_u32 v3, v3, v{Q+3}, v{Q+7}
v_min_u32 v2, v2, v{Q+11}
v_max_u32 v3, v3, v{Q+11}
v_cmp_ne_u32 vcc, v2, v3""")
    xr=lambda r: Q+4*(r//3)+r%3
    P.I(f"v_lshlrev_b32 v{vXF}, 16, v{xr(0)}\ns_cbranch_vccnz L_ka_retry\nL_ka_ok:")
    if diag: P.I(f"s_add_u32 s{sCNT}, s{sCNT}, 1\nv_writelane_b32 v255, s{sCNT}, 31")
    stamp(P,11,diag)
    if q2: poll2_loads(P)
    for ch in range(2):
        for r in range(8):
            if ch or r: P.I(f"v_and_b32 v{vXF+8+r}, 0xffff0000, v{xr(r)}" if ch else f"v_lshlrev_b32 v{vXF+r}, 16, v{xr(r)}")
        for r in range(0,8,2): P.I(f"v_pk_fma_f32 {vr(A+8*ch+r,2)}, {vr(vXF+8*ch+r,2)}, {vr(A+8*ch+r,2)}, {vr(B+8*ch+r,2)}")
        for r in range(0,8,2): P.I(f"v_cvt_pk_bf16_f32 v{O+4*ch+r//2}, v{A+8*ch+r}, v{A+8*ch+r+1}")
        P.I(f"ds_write_b128 v4, {vr(O+4*ch,4)} offset:{ch*HP}")

def gb_store(P, ST):
    P.I(f"""s_cmp_lg_u32 s{sW}, 2
s_cbranch_scc1 L_nogb
s_lshl3_add_u32 s{sT2}, s{sP}, {WS_GBF}
s_mov_b64 exec, 1
buffer_store_dwordx2 {vr(vMOD+6,2)}, v{vL16}, {sp(rWS,4)}, s{sT2} offen {ST}
s_mov_b64 exec, -1
L_nogb:""")
def w_side(ST):
    RAW=vPOLL; WP=vPOLL+16; GB=[48,64,80,96]; U=112; S1,S2=vHF,vHF+2
    rd=[]; main=[]; sums=[]
    for k in range(4):
        g=GB[k]
        rd.append([f"ds_read_b64_tr_b16 {vr(RAW+4*k+2*hf,2)}, v{vWRA} offset:{k*4096+hf*512}" for hf in range(2)]
                 +[f"ds_read_b128 {vr(g+4*q,4)}, v{vGR} offset:{k*64+q*16}" for q in range(2)])
        L=[]
        for d in range(4):
            u=U+8*k+2*d
            L+=[f"v_lshlrev_b32 v{u}, 16, v{RAW+4*k+d}", f"v_and_b32 v{u+1}, 0xffff0000, v{RAW+4*k+d}",
                f"v_mul_f32 v{g+2*d}, v{u}, v{g+2*d}", f"v_mul_f32 v{g+2*d+1}, v{u+1}, v{g+2*d+1}", f"v_cvt_pk_bf16_f32 v{WP+4*k+d}, v{g+2*d}, v{g+2*d+1}"]
        L.append((f"buffer_store_dwordx4 {vr(WP+4*k,4)}, v{vL16}, {sp(rWJ,4)}, s{sWO} offen {ST}",'wpst'))
        if k<3: L.append(f"s_add_u32 s{sWO}, s{sWO}, s{sWST}")
        main.append(L)
        for i in range(8):
            e=i&1; first=(k==0 and i<2)
            sums.append(f"v_mul_f32 v{S2+e}, v{U+8*k+i}, v{g+8+i}" if first else f"v_fmac_f32 v{S2+e}, v{U+8*k+i}, v{g+8+i}")
            if k==0 and i<2: continue
            sums.append(f"v_add_f32 v{S1+e}, v{g+e}, v{g+i}" if (k==0 and i<4) else f"v_add_f32 v{S1+e}, v{S1+e}, v{g+i}")
    rdsb=[f"ds_read_b128 {vr(GB[k]+8+4*q,4)}, v{vGR} offset:{256+k*64+q*16}" for k in range(4) for q in range(2)]
    tail=[f"v_add_f32 v{S1}, v{S1}, v{S1+1}", f"v_add_f32 v{S2}, v{S2}, v{S2+1}", f"v_mov_b32 v{S1+1}, v{S1}", f"v_mov_b32 v{S2+1}, v{S2}",
          f"v_lshlrev_b32 v2, 2, v{vLANE}", "s_nop 0",
          f"v_permlane32_swap_b32 v{S1}, v{S1+1}", f"v_permlane32_swap_b32 v{S2}, v{S2+1}",
          f"v_add_f32 v{S1}, v{S1}, v{S1+1}", f"v_add_f32 v{S2}, v{S2}, v{S2+1}", f"v_cvt_pk_bf16_f32 v{S1}, v{S1}, v{S2}",
          "s_mov_b32 exec_hi, 0", (f"buffer_store_dword v{S1}, v2, {sp(rWJ,4)}, s{sWA} offen {ST}",'auxst'), "s_mov_b64 exec, -1"]
    return rd,main,rdsb,sums,tail

def conv_reads(vi):
    b=vi&1; o=192-64*vi
    U=[(f"ds_read_b128 {ar(64+32*b+4*k,4)}, v{vUA} offset:{512*k+o}",f"c{vi}_{k}") for k in range(8)]
    K=[[(f"ds_read_b64 {ar(32*b+4*k+2*hf,2)}, v{vKA} offset:{512*(7-k)+o+8*hf}",f"c{vi}_{k}") for hf in range(2)] for k in range(8)]
    return U,K
def conv(P, ST, cfg, midbar, wdj, wd0, H={}):
    ACC=16
    order=sorted([(u,s) for u in range(8) for s in range(8) if u+s<8], key=lambda t:(t[1],t[0]))
    rd,main,rdsb,sums,tail=w_side(ST)
    chk,work,bc=poll2_work(ST)
    Q=Prog(); gb_store(Q,ST); gbs=[[x.text for x in Q.ins]]
    P.extend(conv_reads(0)[0])
    v2s=list(H.get('v2side',[])); v3m=list(H.get('v3mem',[])); go=False
    first=set(); side=[]; QAT=cfg.get('QAT',20); LV=cfg.get('LV',1); FV=cfg.get('FV',LV); SL=cfg.get('SUMLATE',0)
    for vi in range(4):
        b=vi&1; nxt=[]
        if vi==LV: nxt+=[(x,'wtr') for r in rd[:2] for x in r]+wdj[:4]
        if vi<3:
            U,K=conv_reads(vi+1); nxt+=[y for k in range(8) for y in [U[k]]+K[k]]
        if vi==0 and LV: side+=work
        if vi==1 and LV>1: side+=bc+gbs
        if vi==LV: side+=['@wait wtr']+rd[2]+rd[3]+main[0]+wdj[4:]+main[1]+([] if SL else rdsb)+main[2]+main[3]+(bc+gbs if LV<=1 else [])+([] if SL else sums)
        waits = {0:0,8:1,15:7} if vi==0 else {0:7}
        start = 8 if vi==LV else QAT+1 if vi==0 else 0
        for n,(u,s) in enumerate(order if (vi==0 or not cfg.get('ORD',1)) else sorted(order,key=lambda t:(t[0]+t[1],t[0]))):
            t=u+s; a=vr(ACC+4*t,4)
            if n in waits: P.I(f"@wait c{vi}_{waits[n]}")
            P.I(f"v_mfma_f32_16x16x32_bf16 {a}, {ar(32*b+4*u,4)}, {ar(64+32*b+4*s,4)}, {a if t in first else 0}"); first.add(t)
            slots=2-((n+1) in waits or n==35)
            if vi==0 and FV==0 and n==0: P.extend(midbar); continue
            if vi in (LV,FV) and n==0 and vi:
                P.I("@wait"+(" wr dr" if vi==LV else "")+(" wdst" if vi==FV else "")+"\ns_waitcnt lgkmcnt(0)\ns_barrier")
                if vi==FV: P.extend(midbar)
                continue
            if vi==0 and n==QAT and LV: P.extend(chk); continue
            if (vi,n) in H.get('hook',{}):
                if vi==3: assert not v2s; go=True
                P.extend(H['hook'][(vi,n)]); slots-=len(H['hook'][(vi,n)])
            elif go and v3m and n%cfg.get('WDVS',2)==0:
                x=v3m.pop(0); P.extend(x); slots-=len(x)
            if nxt:
                P.extend([nxt.pop(0)]); slots-=1
                if n<start and slots and nxt: P.extend([nxt.pop(0)]); slots-=1
            while slots>0 and wd0 and vi==0 and not nxt and n<QAT: P.extend([wd0.pop(0)]); slots-=1
            while slots>0 and v2s and vi==0 and not nxt and (n<QAT and len(v2s)>2 or n>QAT and not side): P.extend([v2s.pop(0)]); slots-=1
            while slots>0 and side and n>=start:
                x=side.pop(0)
                if isinstance(x,list): P.extend(x); slots=0
                else: P.extend([x]); slots-=1
        assert not nxt, len(nxt)
        if vi==0 and LV: P.extend(side+wd0+v2s); print('  conv step 0 spill',len(side),len(wd0),len(v2s)); side=[]; wd0=[]; v2s=[]
        print('  conv step',vi,'side backlog',len(side))
    for x in v3m: side+=x
    assert not any(isinstance(x,list) for x in side)
    if SL: return ACC,side,rdsb+sums+tail
    return ACC,side+tail,[]

def conv_epilogue(P, ACC, tail, XST, pre=[], prebar=[], postbar=[], tmax=99, after=[]):
    tail=list(tail); P.extend(pre)
    for t in range(8):
        P.I(f"ds_write_b128 v{vYW}, {vr(ACC+4*t,4)} offset:{1280*t}")
        k=min(max(5,-(-len(tail)//(8-t))),len(tail),tmax)
        if len(tail)-k<4: k=len(tail)
        P.extend(tail[:k]); tail=tail[k:]
    P.extend(prebar)
    P.I(f"s_mul_i32 s{sT0}, s{sP}, {12288 if XIN else 128}\ns_add_u32 s{sT0}, s{sT0}, {WS_XG if XIN else WS_X1B}\ns_waitcnt lgkmcnt(0)\ns_barrier")
    Y=16
    for ch in range(2):
        for g in range(2):
            for vh in range(2):
                P.I(f"ds_read_b128 {vr(Y+16*ch+8*vh+4*g,4)}, v{vYR} offset:{L_Y+(2*ch+vh)*10240+320*g}")
    P.extend(postbar)
    for ch in range(2):
        y=Y+16*ch
        for r in range(0,8,2): P.I(f"v_pk_add_f32 {vr(y+r,2)}, {vr(y+r,2)}, {vr(y+8+r,2)}")
        for r in range(0,8,2): P.I(f"v_pk_fma_f32 {vr(y+r,2)}, {vr(y+r,2)}, {vr(vMOD+4,2)}, {vr(vXF+8*ch+r,2)} op_sel:[0,{ch},0] op_sel_hi:[1,{ch},1]")
        for r in range(0,8,2): P.I(f"v_cvt_pk_bf16_f32 v{4+4*ch+r//2}, v{y+r}, v{y+r+1}")
        P.I(f"buffer_store_dwordx4 {vr(4+4*ch,4)}, v{vXO}, {sp(rWS,4)}, s{sT0} offen offset:{64*ch} {XST}", tag='x1st')
    print('  after the x1 stores:', len(tail), '+', len(after))
    P.extend(tail); P.extend(after)

def body(P, n, diag, cfg, H):
    NT=cfg.get('NT','nt'); ST='sc1'
    entry(P,n,diag,256,cfg.get('PERM',[2,3,0,5,1,7,4,6] if cfg.get('QSYNC',0) else None)); role_addr(P,cfg.get('LOC',0))
    P.I("s_waitcnt lgkmcnt(0)"); stamp0_commit(P,diag)
    if cfg.get('WSB',0): P.I(f"s_add_u32 s{sWS}, s{sWS}, {cfg['WSB']<<20}\ns_addc_u32 s{sWS+1}, s{sWS+1}, 0")
    po=cfg.get('PORD',0); m2=cfg.get('M2AT',0); global JW
    assert not (po and cfg.get('CUT',0)) and not (m2 and cfg.get('CUT',0))
    JW=(8 if po else 0)
    stamp(P,26,diag and ONLY and 26 in ONLY)
    early_loads(P,NT,not po)
    role_loads(P,cfg.get('XNT',NT),0)
    if po: param_loads(P,NT)
    df=cfg.get('DEFER',0); global PRE_S; PRE_S=df; grp=cfg.get('GRP',1)
    table_loads(P); fill=setup(P,False,cfg.get('X',''),cfg.get('WMAP',0) or cfg.get('QSYNC',0),df); P.extend(H['setup'])
    if df:
        assert cfg.get('WAT',1)>=1 and cfg.get('DAT',0)<2 and not cfg.get('WJAT',0)
        fill+=w_scalars()+wd_scalars(22)+H['defer']
    if m2==0: role_loads(P,NT,1)
    P.I(f"s_waitcnt lgkmcnt(0)\ns_or_b32 s{sTAG}, s{sTAG}, 0x7f800000\ns_add_u32 s{sTAG}, s{sTAG}, 1\ns_or_b32 s{sTAG}, s{sTAG}, 0x7f800000\ns_barrier")
    stamp(P,1,diag)
    kgen_init(P)
    H['idle'](P)
    P.I("@forget "+" ".join(str(r) for r in list(range(vPAR,vPAR+6))+[vROLE]+list(range(vTAB,vTAB+8))))
    cut=cfg.get('CUT',0)
    if cut:
        P.I(f"s_waitcnt vmcnt(10)\ns_cmp_lg_u32 s{sW}, 2\ns_cbranch_scc1 L_f1\ns_waitcnt vmcnt(6)\nL_f1:")
        P.I("@forget "+" ".join(str(r) for r in list(range(vPAR,vPAR+6))+[vROLE]+list(range(vTAB,vTAB+8))))
        factor_gen(P,0,cut,grp)
        stamp(P,10,diag)
        P.I(f"s_cmp_eq_u32 s{sW}, 3\ns_cbranch_scc1 L_xje")
    x_jobs(P,'sc1',diag,cfg.get('LOC',0))
    P.I("@forget "+" ".join(str(r) for r in list(range(vPAR,vPAR+6))+[vROLE]+list(range(vTAB,vTAB+8))))
    stamp(P,3,diag)
    da,wa=cfg.get('DAT',0),cfg.get('WAT',1)
    def raws(k):
        if da==k: raw_wd_loads(P,cfg.get('DNT',NT))
        if wa==k: raw_w_loads(P,NT)
    if m2==1: role_loads(P,NT,1)
    raws(0)
    factor_gen(P,cut,99,grp,fill); print('  scalar set-up left after the chain:',len(fill)); P.extend(fill)
    stamp(P,4,diag)
    if m2==2: role_loads(P,NT,1)
    raws(1)
    G=poll_groups((lambda Q: raw_w_loads(Q,NT)) if wa==3 else None, cfg.get('XLP','') if cfg.get('LOC',0)==1 else 'sc1', cfg.get('XFIRST',0), '')
    for _ in range(cfg.get('PEARLY',0)): P.extend(G.pop(0))
    npm=cfg.get('PMID',0); mid=G[:npm]; G=G[npm:]
    if wa==5:
        Q=Prog(); raw_w_loads(Q,NT); W4=[[]]
        for x in Q.ins:
            W4[-1].append(x)
            if x.kind=='vmem': W4.append([])
        mid=W4[:-1]+mid
    kgen(P,diag,mid,cfg.get('PMSKIP',0),cfg.get('PMORD',0)); stamp(P,5,diag)
    k_image(P,G,min(len(G),cfg.get('PPRE',5)),cfg.get('PSKIP',0),cfg.get('W0AT',0))
    raws(2)
    wdj=[]
    wj=cfg.get('WJAT',0); wd0=[]
    if cfg.get('Q2AT',1)==2: poll2_loads(P)
    if da<2 and wj:
        Q=Prog(); wd_job(Q,ST); wd0=[(x.text,x.tag) for x in Q.ins]
    elif da<2: wd_job(P,ST)
    else:
        Q=Prog(); wd_job(Q,ST); wdj=[(x.text,x.tag) for x in Q.ins[1:]]
    stamp(P,6,diag)
    P.I("s_waitcnt lgkmcnt(0)\ns_barrier")
    for k in conv_reads(0)[1]: P.extend(k)
    q2=cfg.get('Q2AT',1)
    if q2==0: poll2_loads(P)
    make_h(P,diag,q2==3)
    if q2==1: poll2_loads(P)
    raws(4)
    if cfg.get('LV',1)==0:
        chk,work,_=poll2_work(ST); P.extend(chk+work+["@wait wr"])
    if cfg.get('FV',1)==0: P.I("@wait wdst")
    P.I("s_waitcnt lgkmcnt(0)\ns_barrier")
    stamp(P,7,diag)
    acc,tail,after=conv(P,ST,cfg,H['midbar'] if da<2 else [],wdj,wd0,H); stamp(P,8,diag)
    conv_epilogue(P,acc,tail,ST,H.get('pre',[]),H.get('prebar',[]),H.get('postbar',[]),cfg.get('TMAX',99),after)
```

```python
from prog import *
from layout import *
import ka, kc
from ka import sp, vr, mksrd, stamp, stamp_out, rWS, rWJ, rOUT, sW, sTAG, sP, sIDX, sXCD, sFS, sCG, sKE, sT0, sT1, sT2, sT3
NAME='adaLN_cond__ssm_conv_s4__geglu_ffn__prompt_kernel'
sFXo,sFDo,sFXi,sFDi,sFWo,sFWi = 40,41,99,93,89,92
vTG=251; vFV,vFA,vFB=247,246,252
T4=248
def build(P, diag, cfg):
    cfg=dict(cfg); cfg.update(XST='sc1',ST='sc1',WLD='sc1',XLD='sc1')
    kc.FS=cfg.get('FS',4); ka.XIN=cfg.get('XIN',0); ka.ONLY=cfg.get('ONLY'); ka.BACKOFF=cfg.get('BACKOFF',0); ka.PREW=cfg.get('PREW',1); ka.SGP=cfg.get('SGP',0)
    C=kc.PhaseC(cfg)
    L=ka.vLANE
    FS=cfg.get('FS',4)
    EX=hex((1<<(1<<(FS-4)))-1)
    def line(so, reg, r=rWS):
        return [f"s_mov_b64 exec, {EX}", f"buffer_store_dwordx4 {vr(reg,4)}, v{ka.vL16}, {sp(r,4)}, s{so} offen sc1", "s_mov_b64 exec, -1"]
    H={}
    DF=cfg.get('DEFER',0); PG0=ka.PG0=cfg.get('PG0',0); ka.ALN=cfg.get('ALN',1)
    own=f"""s_lshl_b32 s{sFXo}, s{sP}, {FS}
s_add_u32 s{sFXo}, s{sFXo}, {WS_FX}
s_and_b32 s{sT0}, s{sFS}, 1
s_mul_i32 s{sT0}, s{sT0}, 112
s_lshr_b32 s{sFDo}, s{sFS}, 1
s_add_u32 s{sFDo}, s{sFDo}, s{sT0}
s_lshl_b32 s{sFDo}, s{sFDo}, {FS}
s_add_u32 s{sFDo}, s{sFDo}, {WS_FD}""".split('\n')
    if cfg.get('FW',0) or not DF: own+=[f"s_lshl3_add_u32 s{sFWo}, s{sCG}, s{sKE}", f"s_lshl_b32 s{sFWo}, s{sFWo}, {FS}", f"s_add_u32 s{sFWo}, s{sFWo}, {WS_FW}"]
    assert not (DF and cfg.get('FW',0))
    fdi=f"""{f's_and_b32 s{sT0}, s{sXCD}, 1' if cfg.get('DM',0) else f's_bfe_u32 s{sT0}, s{sIDX}, 0x10002'}
s_lshl2_add_u32 s{sT0}, s{sT0}, s{sW}
s_mul_i32 s{sT0}, s{sT0}, {28<<FS}
s_add_u32 s{sFDi}, s{sT0}, {WS_FD}""".split('\n')
    va=[f"v_min_u32 v{vFA}, 27, v{L}", f"v_lshlrev_b32 v{vFA}, {FS}, v{vFA}"]
    H['setup']=va if DF else mksrd(rOUT,ka.sOUT,2097152)+own+va
    H['defer']=mksrd(rOUT,ka.sOUT,2097152)+fdi
    def idle(P):
        for i in ((3,) if DF else range(4)): P.I(f"v_mov_b32 v{T4+i}, s{sTAG}")
        if not DF: P.extend(fdi)
        P.I(f"s_cmp_lg_u32 s{sW}, 3\ns_cbranch_scc1 L_main")
        if DF: P.extend(own+[f"v_mov_b32 v{T4+i}, s{sTAG}" for i in range(3)])
        if cfg.get('TOUCH',1): P.I("s_mov_b64 exec, 0\ns_branch L_touch0\nL_touched:\ns_mov_b64 exec, -1")
        P.I(f"s_lshl_b32 s{sT0}, s{sP}, 9\ns_add_u32 s{sT0}, s{sT0}, {WS_FLAG}")
        for i in range(4): P.I(f"v_add_u32 v{4+i}, -1, v{T4}")
        P.I(f"s_waitcnt vmcnt({0 if cfg.get('M2AT',0) else 8})\ns_mov_b32 exec_hi, 0")
        P.I(line(sT0,4)[1]); P.I(f"s_mov_b64 exec, {EX}")
        P.I(line(sFXo,4)[1]); P.I(line(sFDo,4,rWJ)[1])
        if cfg.get('FW',0): P.I(line(sFWo,4,rWJ)[1])
        P.I(f"s_mov_b64 exec, -1\ns_branch {'L_f1' if cfg.get('CUT',0) else 'L_xje'}\n{'' if PG0 else '.p2align 12'}\n{'' if PG0 else 'L_page:'}\nL_main:")
    H['idle']=idle; H['own_param_wait']=True
    H['midbar']=[f"s_cmp_lg_u32 s{sW}, 3","s_cbranch_scc1 L_nofd"]+line(sFDo,T4,rWJ)+["L_nofd:"]
    H['postbar' if cfg.get('FDP',0) else 'pre']=[f"buffer_load_dword v{vFV}, v{vFA}, {sp(rWS,4)}, s{sFDi} offen sc1"]
    wd=kc.wd_load_list(cfg,'sc1'); dm=kc.d_maps(cfg.get('DM',0),cfg.get('M16',0),cfg.get('ROWO',0))
    if DF>=2:
        sc=[x for x in dm if x.startswith('s_') and 's52' not in x and 's53' not in x]
        H['defer']+=sc+[f"s_mov_b32 s{kc.sFB}, s{kc.sT3}"]
        dm=[x.replace(f"s{kc.sT3},",f"s{kc.sFB},") for x in dm if x not in sc]
    WV=cfg.get('WDV',0)
    if WV:
        assert cfg.get('WDLIN')==2 and WV<=24 and not cfg.get('M16',0)
        Q=Prog(); kc.poll_check(Q,'fd',vPV=vFV)
        H['setup']+=[x for x in dm if x.startswith('s_') and 's52' not in x and 's53' not in x]+[f"s_mov_b32 s{kc.sFB}, s{kc.sT3}", f"s_mov_b32 s{kc.sCNT}, 1"]
        H['v2side']=[x for x in dm if 's52' in x or 's53' in x]+["s_nop 0", f"v_xor_b32 v{kc.vWL}, s{kc.sFB}, v{ka.vL16}"]
        H['hook']={tuple(cfg.get('WDVP',[2,14])):H.pop('pre'), tuple(cfg.get('WDVC',[3,2])):[x.text for x in Q.ins]}
        H['v3mem']=[wd.pop(0) for _ in range(WV)]
    FW=cfg.get('FW',0)
    if FW:
        H['prebar']=["@wait wpst"]
        H['postbar']=[f"s_cmp_lg_u32 s{sW}, 3","s_cbranch_scc1 L_nofw"]+line(sFWo,T4,rWJ)+["L_nofw:"]
    ka.body(P,NAME,diag,cfg,H)
    stamp(P,9,diag)
    if WV: P.I(f"v_mov_b32 v{kc.vL16}, v{ka.vL16}")
    else:
        P.extend(dm); P.I(f"s_mov_b32 s{kc.sCNT}, 1")
        kc.poll_check(P,'fd',vPV=vFV)
    if diag: P.I(f"v_writelane_b32 v255, s{kc.sCNT}, 62\nv_writelane_b32 v255, s{ka.sCNT}, 61")
    for i in range(cfg.get('WDA',8)): P.extend(wd.pop(0))
    P.I(f"s_cmp_lg_u32 s{sW}, 3\n@wait x1st auxst wpst\ns_barrier\ns_cbranch_scc1 L_nofx")
    P.extend(line(sFXo,T4))
    P.I(f"""s_cmp_lg_u32 s2, 0
s_cbranch_scc1 L_nofx
s_mov_b64 exec, 1
buffer_store_dword v{vTG}, v{ka.vL16}, {sp(rWS,4)}, {WS_EPOCH} offen
s_mov_b64 exec, -1
L_nofx:""")
    stamp(P,19,diag)
    fill=kc.c_maps()+C.setup()+[f"v_lshlrev_b32 v{vFA}, {FS}, v0", f"s_mov_b32 s{sFXi}, {WS_FX}"]
    fill+=f"""s_and_b32 s{sT1}, s{sXCD}, 3
s_and_b32 s{sT2}, s{sIDX}, 3
s_lshl2_add_u32 s{sT1}, s{sT1}, s{sT2}
s_mul_i32 s{sT1}, s{sT1}, 7
s_lshr_b32 s{sT1}, s{sT1}, 2
s_lshl_b32 s{sT1}, s{sT1}, {3+FS}
s_add_u32 s{sFWi}, s{sT1}, {WS_FW}
v_and_b32 v{vFB}, {15<<FS}, v{vFA}""".split('\n')
    ot=cfg.get('OTOUCH',0)
    if ot:
        P.I(f"""v_lshrrev_b32 v4, 3, v{L}
v_and_b32 v5, 7, v{L}
v_lshlrev_b32 v4, 10, v4
v_lshl_add_u32 v4, v5, 4, v4
s_lshl1_add_u32 s{sT1}, s{kc.sNT}, s{sW}
s_lshl_b32 s{sT1}, s{sT1}, 14
s_lshr_b32 s{sT2}, s{kc.sMT}, 2
s_lshl_b32 s{sT2}, s{sT2}, 7
s_add_u32 s{sT1}, s{sT1}, s{sT2}
s_add_u32 s{sT2}, s{sT1}, 8192""")
        for u in range(2):
            if ot==1: P.I(f"buffer_store_dwordx4 v[16:19], v4, {sp(rOUT,4)}, s{sT1+u} offen sc1")
            else: P.I(f"buffer_load_dwordx4 v[{16+4*u}:{19+4*u}], v4, {sp(rOUT,4)}, s{sT1+u} offen")
    nB=cfg.get('WDB',8 if FW else 16)
    for i in range(nB):
        P.extend(wd.pop(0)); k=-(-len(fill)//(nB-i)); P.extend(fill[:k]); fill=fill[k:]
    P.extend(fill)
    if FW:
        P.I(f"buffer_load_dword v{vFV}, v{vFB}, {sp(rWS,4)}, s{sFWi} offen sc1")
        for i in range(cfg.get('WDB2',6)): P.extend(wd.pop(0))
        kc.poll_check(P,'fw',vPV=vFV)
        stamp(P,22,diag)
        C.pre(P,cfg.get('WPA',8),'w')
    QS=cfg.get('QSYNC',0)
    if QS:
        P.I(f"v_and_b32 v{kc.vQA}, 15, v{L}\ns_lshl_b32 s{sT1}, s{sW}, {4+FS}\nv_lshl_add_u32 v{kc.vQA}, v{kc.vQA}, {FS}, s{sT1}")
        P.extend(kc.qpoll(0))
        for i in range(cfg.get('WDC',6)): P.extend(wd.pop(0))
        stamp(P,20,diag)
        kc.poll_check(P,'fx0',vPV=kc.vQV)
        P.I("s_barrier")
        stamp(P,21,diag)
        C.pre(P,cfg.get('QPRE',5)); P.extend(kc.qpoll(1)); C.pre(P,99)
    else:
        P.I(f"buffer_load_dword v{vFV}, v{vFA}, {sp(rWS,4)}, s{sFXi} offen sc1")
        if FW: C.pre(P,8*G1-cfg.get('WPA',8),'w')
        for i in range(cfg.get('WDC',0 if FW else 6)): P.extend(wd.pop(0))
        stamp(P,20,diag)
        kc.poll_check(P,'fx',vPV=vFV)
        P.I("s_barrier")
        stamp(P,21,diag)
        C.pre(P,cfg.get('PRE',12 if FW else 16))
    if diag: P.I(f"v_writelane_b32 v255, s{kc.sCNT}, 63")
    D=kc.PhaseD(P,cfg,diag,wd)
    D.run(*C.run(P,diag,wd,[],D))
    if diag: P.I(f"v_writelane_b32 v255, s{kc.sCNT}, 30")
    if diag: P.I("s_getreg_b32 s4, hwreg(HW_REG_XCC_ID)\ns_and_b32 s4, s4, 15\nv_writelane_b32 v255, s4, 10")
    stamp(P,18,diag); stamp_out(P,0,diag)
    if cfg.get('DBGOUT') is not None:
        P.I(f"""s_cmp_ge_u32 s2, 8
s_cbranch_scc1 L_{NAME}_exit
s_cmp_lg_u32 s{sW}, 0
s_cbranch_scc1 L_{NAME}_exit
s_load_dwordx2 s[4:5], s[0:1], 128
v_readlane_b32 s6, v255, {cfg['DBGOUT']}
s_getreg_b32 s7, hwreg(HW_REG_XCC_ID)
s_and_b32 s7, s7, 15
s_and_b32 s6, s6, 0xffff
v_mov_b32 v4, s6
v_mov_b32 v5, s7
s_lshl_b32 s6, s2, 2
v_mov_b32 v6, s6
s_waitcnt lgkmcnt(0)
s_mov_b64 exec, 1
global_store_dword v6, v4, s[4:5]
global_store_dword v6, v5, s[4:5] offset:32""")
    P.I(f"L_{NAME}_exit:\ns_endpgm\n@nomore")
    loc=cfg.get('LOC',0)==1
    mk=cfg.get('RMASK',0)
    ka.retry_block(P,loc,mk); ka.retry2_block(P,loc,mk)
    kc.poll_retry(P,'fd',0,vFV,vFA,sFDi,loc,mk);
    if QS:
        for q in range(4): kc.poll_retry(P,f'fx{q}',0,kc.vQV,kc.vQA,kc.sQP,loc)
    else: kc.poll_retry(P,'fx',0,vFV,vFA,sFXi,loc,mk)
    if FW: kc.poll_retry(P,'fw',0,vFV,vFB,sFWi,loc)
    for s_ in range(len(kc.d_parts(cfg))):
        if s_ and cfg.get('SPOLL',0): kc.spoll_retry(P,f'p{s_}',s_)
        else: kc.poll_retry(P,f'p{s_}',128*s_)
    return [(NAME,256,256,kc.LDS_C,512)]
```

```python
from prog import *
from layout import *
import struct
def f32(x): return struct.unpack('<I',struct.pack('<f',x))[0]
LOG2E = 0x3fb8aa3b
sX,sARE,sAIM,sBRE,sBIM,sCRE,sCIM,sLDT,sDSK,sBX,sWG,sWU,sWD,sC,sWM,sOUT,sDBG,sWS = [8+2*i for i in range(18)]
rR,rWG,rWU,rWD,rOUT,rWS,rWJ = 44,48,52,56,60,64,68
sXCD,sIDX,sP,sW,sTAG,sLD,sDS = 72,73,74,75,76,77,78
sT0,sT1,sT2,sT3,sT4,sT5 = 80,81,82,83,84,85
sWO,sWST,sWA = 86,87,88
sCG,sKE,sFS,sCNT = 95,96,97,98
def sp(a,n=2): return f"s[{a}:{a+n-1}]"
def vr(a,n): return f"v[{a}:{a+n-1}]"
def ar(a,n): return f"a[{a}:{a+n-1}]"
def mksrd(d,b,size):
    return [f"s_mov_b32 s{d}, s{b}", f"s_and_b32 s{d+1}, s{b+1}, 0xffff", f"s_mov_b32 s{d+2}, {size}", f"s_mov_b32 s{d+3}, 0x20000"]
vLANE = 1
vT16,vMC,vMW = 12,13,14
vPAR = 16
vTAB = 24
vRA = 32
vROLE = 40
vFG = 120
vPOLL = 160
vPOL2 = 152
vXF = 192
vHF = 208
vKA,vUA,vYW,vYR,vWRA,vXO,vGR,vL16 = 224,225,226,227,228,229,230,231
vMOD = 232
vKF,vKC,vGW,vSEL1,vSEL2 = 240,241,242,243,244

def stamp(P, n, diag):
    if diag: P.I(f"s_memrealtime s[4:5]\ns_memtime s[100:101]\ns_waitcnt lgkmcnt(0)\nv_writelane_b32 v255, s4, {n}\nv_writelane_b32 v255, s100, {32+n}")
def stamp0_issue(P, diag):
    if diag: P.I("v_mov_b32 v255, 0\ns_memrealtime s[4:5]\ns_memtime s[100:101]")
def stamp0_commit(P, diag):
    if diag: P.I("v_writelane_b32 v255, s4, 0\nv_writelane_b32 v255, s100, 32")
def stamp_out(P, kidx, diag):
    if diag:
        P.I(f"""s_lshl_b32 s4, s2, 10
s_add_u32 s4, s4, {WS_STAMP + kidx*0x40000}
v_lshlrev_b32 v2, 2, v0
buffer_store_dword v255, v2, {sp(rWS,4)}, s4 offen""")

def bf16_round(l):
    u=f32(float(l)); u=(u+0x7fff+((u>>16)&1))&0xffff0000
    return int(struct.unpack('<f',struct.pack('<I',u))[0])
def table_words():
    rec=[]
    for T in range(256):
        a=[]
        for j in range(11):
            lag=2047-8*T-j
            if lag<0: a.append(L_CZ); continue
            lam=bf16_round(lag); b=(lam>>3)&15; i=HI.index(lam-8*b)
            a.append(L_C+i*CP+4*b)
        a.append(0)
        w=T>>6; lane=T&63; ch=w>>1; vh=w&1
        ka_=L_KI+ch*4*KIP+(lane&3)*KIP+2*(2044-16)-3584-192-256*vh+(lane&48)-2*(lane&12)
        ua_=L_H+ch*HP+448-192-256*vh+32*(lane&15)+(lane&48)
        rec.append([a[2*k]|(a[2*k+1]<<16) for k in range(6)]+[ka_,ua_])
    return [rec[T][4*q+k] for q in range(2) for T in range(256) for k in range(4)]

def entry(P, name, diag, nlines):
    P.I(f".globl {name}\n.p2align 8\n.type {name},@function\n{name}:\n@reset")
    ng=(nlines+15)//16; assert ng&(ng-1)==0 and ng<=32
    P.I(f"""s_cmp_ge_u32 s2, 256
s_cbranch_scc1 L_{name}_exit
s_load_dwordx16 s[8:23], s[0:1], 0
s_load_dwordx16 s[24:39], s[0:1], 64
s_load_dwordx4 s[40:43], s[0:1], 128
s_getpc_b64 s[6:7]
L_pc:
v_lshrrev_b32 v2, 6, v0
v_and_b32 v{vLANE}, 63, v0
s_lshr_b32 s{sIDX}, s2, 3
v_readfirstlane_b32 s{sW}, v2
s_and_b32 s{sT0}, s{sIDX}, {ng-1}
s_lshl_b32 s{sT0}, s{sT0}, 11
v_lshl_add_u32 v3, v{vLANE}, 5, s{sT0}
s_cmp_lg_u32 s{sW}, 3
s_cbranch_scc1 L_nopf
global_load_dword v15, v3, s[6:7]
L_nopf:""")
    stamp0_issue(P,diag)
    P.I(f"""s_and_b32 s{sXCD}, s2, 7
s_lshl_b32 s{sP}, s{sXCD}, 5
s_add_u32 s{sP}, s{sP}, s{sIDX}""")

def role_addr(P):
    P.I(f"""s_cmp_eq_u32 s{sW}, 0
s_cselect_b32 s{sT3}, 8, 1
s_lshl_b32 s{sT2}, s{sT3}, 10
s_lshl_b32 s{sT3}, s{sT3}, 7
s_lshr_b32 s{sT0}, s{sP}, 3
s_lshl_b32 s{sT0}, s{sT0}, 16
s_and_b32 s{sT4}, s{sP}, 7
s_lshl_b32 s{sT4}, s{sT4}, 7
s_add_u32 s{sT0}, s{sT0}, s{sT4}
s_lshl_b32 s{sT1}, s{sP}, 13
s_cmp_eq_u32 s{sW}, 0
s_cselect_b32 s{sT0}, s{sT0}, s{sT1}
s_lshr_b32 s92, s{sP}, 3
s_sub_u32 s92, s92, s{sXCD}
s_and_b32 s{sT5}, s{sW}, 1
s_lshl1_add_u32 s92, s92, s{sT5}
s_and_b32 s{sT5}, s92, 7
s_mul_i32 s{sT1}, s{sT5}, {64*6144}
s_add_u32 s{sT1}, s{sT1}, s{sT4}
s_and_b32 s{sT4}, s92, 56
s_lshl_b32 s{sT4}, s{sT4}, 7
s_add_u32 s{sT1}, s{sT1}, s{sT4}
s_cmp_lt_u32 s{sIDX}, 24
s_cselect_b32 s{sT4}, 3145728, 0
s_cmp_lt_u32 s{sW}, 2
s_cselect_b32 s94, s{sT0}, s{sT1}
s_cselect_b32 s{sT2}, s{sT2}, 6144
s_cselect_b32 s79, s{sT3}, {8*6144}
s_cselect_b32 s{rR+2}, 2097152, s{sT4}
s_mov_b32 s{rR+3}, 0x20000
v_lshrrev_b32 v3, 3, v{vLANE}
v_mul_u32_u24 v3, s{sT2}, v3
v_lshrrev_b32 v4, 2, v{vLANE}
v_and_b32 v4, 4, v4
v_and_b32 v5, 7, v{vLANE}
v_xor_b32 v4, v4, v5
v_lshl_add_u32 v22, v4, 4, v3
v_xor_b32 v23, 32, v22
s_lshl_b32 s3, s{sW}, 13
s_add_u32 s3, s3, {L_RR}
s_lshl_b32 s{sT5}, s{sT5}, 7
v_lshl_add_u32 v5, v{vLANE}, 1, s{sT5}
s_lshl_b32 s{sT5}, s{sP}, 9
v_lshl_add_u32 v2, v0, 1, s{sT5}""")
    for i in range(6): P.I(f"v_mov_b32 v{vPAR+i}, 0")
    P.I(f"v_mov_b32 v{vROLE}, 0\ns_lshl_b32 s93, s{sP}, 2")
def early_loads(P, NT, XNT):
    par=[f"global_load_short_d16_hi v{vPAR+i}, v2, {sp(b)} {NT}" for i,b in enumerate((sARE,sAIM,sBRE,sBIM,sCRE,sCIM))]
    P.extend(par)
    P.I(f"""s_load_dword s{sTAG}, {sp(sWS)}, {WS_EPOCH}
s_load_dword s{sLD}, {sp(sLDT)}, s93
s_load_dword s{sDS}, {sp(sDSK)}, s93
s_cmp_lt_u32 s{sW}, 2
s_cselect_b64 {sp(rR)}, {sp(sX)}, {sp(sWM)}
s_and_b32 s{rR+1}, s{rR+1}, 0xffff""")
    P.I(f"global_load_short_d16_hi v{vROLE}, v5, {sp(sC)}")
    P.I(f"""s_add_u32 s6, s6, L_table-L_pc+4096
s_addc_u32 s7, s7, 0
v_lshlrev_b32 v{vT16}, 4, v0""")
def role_loads(P, XNT, cond, lbl):
    if cond: P.I(f"{cond} s{sW}, 2\ns_cbranch_scc0 {lbl}")
    for u in range(8):
        P.I(f"s_add_u32 m0, s3, {u*1024}")
        P.I(f"s_add_u32 s94, s94, s79" if u else "s_nop 0")
        P.I(f"buffer_load_dwordx4 v{22+(u&1)}, {sp(rR,4)}, s94 offen {XNT} lds", tag='rr')
    if cond: P.I(f"{lbl}:")
def table_loads(P):
    P.I(f"global_load_dwordx4 {vr(vTAB,4)}, v{vT16}, s[6:7] offset:-4096\nglobal_load_dwordx4 {vr(vTAB+4,4)}, v{vT16}, s[6:7]")

def setup(P):
    P.extend(mksrd(rWS,sWS,WS_USED))
    P.I(f"s_cmp_lt_u32 s{sIDX}, 28\ns_cselect_b32 s{sT0}, 1835008, 0\ns_cselect_b32 s{sT1}, {WS_USED}, 0")
    for r,b in ((rWG,sWG),(rWU,sWU),(rWD,sWD)): P.extend(mksrd(r,b,f"s{sT0}"))
    P.extend(mksrd(rWJ,sWS,f"s{sT1}"))
    P.I(f"""s_and_b32 s{sCG}, s{sXCD}, 3
s_mul_i32 s{sCG}, s{sCG}, 7
s_lshr_b32 s{sT0}, s{sIDX}, 2
s_add_u32 s{sCG}, s{sCG}, s{sT0}
s_and_b32 s{sKE}, s{sXCD}, 4
s_and_b32 s{sT0}, s{sIDX}, 3
s_add_u32 s{sKE}, s{sKE}, s{sT0}
s_mul_i32 s{sFS}, s{sXCD}, 28
s_add_u32 s{sFS}, s{sFS}, s{sIDX}""")
    P.I(f"""s_lshl2_add_u32 s{sT0}, s{sCG}, s{sW}
s_mul_i32 s{sT1}, s{sT0}, 147
s_lshr_b32 s{sT1}, s{sT1}, 10
s_mul_i32 s{sT2}, s{sT1}, 7
s_sub_u32 s{sT0}, s{sT0}, s{sT2}
s_mul_i32 s{sT1}, s{sT1}, 231
s_cmp_lt_u32 s{sT0}, {G1}
s_cselect_b32 s{sT2}, {G1}, 1
s_cselect_b32 s{sT3}, 1, 33
s_mul_i32 s{sT0}, s{sT0}, s{sT3}
s_add_u32 s{sT0}, s{sT0}, s{sT1}
s_lshl_b32 s{sT0}, s{sT0}, 10
s_add_u32 s{sT0}, s{sT0}, {WS_WPF}
s_lshl_b32 s{sWST}, s{sT2}, 10
s_mul_i32 s{sT3}, s{sWST}, s{sKE}
s_lshl2_add_u32 s{sWO}, s{sT3}, s{sT0}
s_lshl_b32 s{sT2}, s{sT2}, 15
s_add_u32 s{sWA}, s{sT2}, s{sT0}
s_lshl_b32 s{sT0}, s{sKE}, 7
s_add_u32 s{sWA}, s{sWA}, s{sT0}""")
    L=vLANE
    P.I(f"""v_lshlrev_b32 v{vL16}, 4, v{L}
v_and_b32 v2, 15, v{L}
v_and_b32 v3, 48, v{L}
v_lshrrev_b32 v4, 4, v{L}
v_lshrrev_b32 v5, 5, v{L}
v_and_b32 v6, 3, v{L}
s_mul_i32 s{sT2}, s{sW}, 10240
s_add_u32 s{sT2}, s{sT2}, {L_Y}
v_mul_u32_u24 v7, 320, v4
v_lshl_add_u32 v7, v2, 4, v7
v_add_u32 v{vYW}, s{sT2}, v7
v_lshrrev_b32 v7, 5, v0
v_mul_u32_u24 v7, 1280, v7
v_and_b32 v8, 1, v0
v_mul_u32_u24 v9, 640, v8
v_bfe_u32 v10, v0, 1, 4
v_lshl_add_u32 v9, v10, 4, v9
v_add_u32 v{vYR}, v7, v9
v_lshrrev_b32 v7, 2, v0
v_lshlrev_b32 v7, 15, v7
v_lshl_add_u32 v{vXO}, v6, 4, v7
v_mul_u32_u24 v7, {FP}, v2
v_add_u32 v7, v7, v3
v_add_u32 v{vKF}, {L_F}, v7
v_mul_u32_u24 v7, {CP}, v2
s_mul_i32 s{sT2}, s{sW}, {16*CP}
v_add3_u32 v{vKC}, v7, v3, s{sT2}
v_bfe_u32 v7, v{L}, 2, 2
v_cmp_eq_u32 vcc, 3, v7
v_cmp_eq_u32 {sp(sT2)}, 1, v7
v_cvt_f32_u32 v{vSEL2}, v5
v_cndmask_b32 v9, v7, 5, vcc
v_cndmask_b32 v{vSEL1}, 0, 1.0, {sp(sT2)}
v_lshl_add_u32 v9, v9, 3, v6
v_lshlrev_b32 v{vMC}, 12, v9
v_lshl_add_u32 v9, v5, 3, v6
v_bfe_u32 v10, v{L}, 2, 3
v_lshlrev_b32 v11, 4, v10
v_lshl_add_u32 v{vMW}, v9, 12, v11
s_lshl_b32 s{sT2}, s{sW}, 6
s_add_u32 s{sT2}, s{sT2}, {L_GT+256}
v_lshl_add_u32 v10, v10, 3, s{sT2}
v_lshlrev_b32 v11, 8, v5
v_sub_u32 v{vGW}, v10, v11
v_lshlrev_b32 v10, 5, v5
v_add_u32 v{vGR}, {L_GT}, v10
v_and_b32 v9, 1, v4
v_lshl_add_u32 v10, v9, 1, v5
v_lshl_add_u32 v10, v10, 3, v7
v_lshl_add_u32 v10, v10, 1, v9
v_bfe_u32 v11, v{L}, 3, 1
v_lshl_add_u32 v10, v10, 1, v11
v_xor_b32 v10, s{sW}, v10
v_lshl_add_u32 v10, v10, 1, v8
v_bfe_u32 v11, v{L}, 1, 1
v_lshl_add_u32 v10, v10, 1, v11
v_lshlrev_b32 v10, 3, v10
v_add_u32 v{vWRA}, {L_WR}, v10""")
    P.I(f"""v_mul_u32_u24 v7, {HP}, v5
v_and_b32 v9, 31, v{L}
v_min_u32 v9, 29, v9
v_lshl_add_u32 v7, v9, 4, v7
v_add_u32 v7, {L_H}, v7
v_cmp_gt_u32 vcc, 64, v0
v_mov_b32 v9, {L_CZ}
v_mov_b32 v{vFG}, 0
v_cndmask_b32 v7, v9, v7, vcc
v_mov_b32 v{vFG+1}, 0
v_mov_b32 v{vFG+2}, 0
v_mov_b32 v{vFG+3}, 0
ds_write_b128 v7, {vr(vFG,4)}""")
    A0=vRA
    P.I(f"""v_lshrrev_b32 v2, 3, v{L}
v_and_b32 v3, 2, v2
v_mul_u32_u24 v2, 3584, v2
v_and_b32 v4, 7, v{L}
v_xor_b32 v3, v3, v4
v_xor_b32 v4, 4, v3
v_lshl_add_u32 v{A0+2}, v3, 4, v2
v_lshl_add_u32 v{A0+3}, v4, 4, v2
v_lshrrev_b32 v2, 2, v{L}
v_and_b32 v5, 3, v{L}
v_lshlrev_b32 v5, 4, v5
v_lshl_add_u32 v{A0+4}, v2, 10, v5
v_lshrrev_b32 v6, 5, v{L}
v_and_b32 v7, 3, v2
v_lshl_add_u32 v6, v6, 3, v7
v_bfe_u32 v7, v{L}, 4, 1
v_lshl_add_u32 v6, v6, 1, v7
v_and_b32 v8, 1, v{L}
v_lshl_add_u32 v6, v6, 1, v8
v_bfe_u32 v7, v{L}, 1, 1
v_lshl_add_u32 v6, v6, 1, v7
v_lshlrev_b32 v6, 3, v6
v_add_u32 v{A0}, {L_DR}, v6
v_bfe_u32 v7, v{L}, 1, 3
v_mul_u32_u24 v7, {KIP}, v7
v_lshl_add_u32 v7, v8, 4, v7
v_add_u32 v{A0+1}, {L_KI+4096}, v7
s_mul_i32 s{sT0}, s{sKE}, {64*3584}
s_lshl_b32 s{sT1}, s{sCG}, 7
s_add_u32 s90, s{sT0}, s{sT1}
s_lshr_b32 s{sT2}, s{sFS}, 1
s_lshl_b32 s{sT2}, s{sT2}, 14
s_and_b32 s{sT1}, s{sFS}, 1
s_lshl_b32 s{sT1}, s{sT1}, 9
s_add_u32 s91, s{sT2}, s{sT1}""")

def x_jobs(P, PUB, diag):
    R=vROLE; G=vROLE+32; L=vLANE
    P.I(f"s_cmp_ge_u32 s{sW}, 2\ns_cbranch_scc1 L_xje\ns_cmp_eq_u32 s{sW}, 1\ns_cbranch_scc1 L_rj1")
    P.I(f"""v_and_b32 v2, 7, v{L}
v_lshrrev_b32 v3, 3, v{L}
v_and_b32 v4, 2, v2
v_lshlrev_b32 v4, 1, v4
v_xor_b32 v4, v4, v3
v_lshlrev_b32 v4, 4, v4
v_lshl_add_u32 v4, v2, 7, v4
v_add_u32 v4, {L_RR}, v4
v_xor_b32 v5, 32, v4
v_mul_u32_u24 v3, {4*12288}, v3
v_lshl_add_u32 v2, v2, 4, v3
s_and_b32 s{sT0}, s{sP}, 7
s_mul_i32 s{sT0}, s{sT0}, {32*12288}
s_and_b32 s{sT1}, s{sP}, 0xf8
s_lshl4_add_u32 s{sT0}, s{sT1}, s{sT0}
s_add_u32 s{sT0}, s{sT0}, {WS_XG}""")
    for k in range(12): P.I(f"v_mov_b32 v{G+4*k+3}, s{sTAG}")
    P.I("s_waitcnt vmcnt(0)"); stamp(P,2,diag)
    for r in range(8): P.I(f"ds_read_b128 {vr(R+4*r,4)}, v{4+(r&1)} offset:{r*1024}")
    for g in range(3):
        for j in range(4):
            k=g*4+j
            for e in range(3):
                if 3*g+e<8: P.I(f"v_mov_b32 v{G+4*k+e}, v{R+4*(3*g+e)+j}")
            P.I(f"s_add_u32 s{sT1}, s{sT0}, {j*12288+g*4096}")
            P.I(f"buffer_store_dwordx4 {vr(G+4*k,4)}, v2, {sp(rWS,4)}, s{sT1} offen {PUB}")
    P.I(f"s_branch L_xje\nL_rj1:")
    P.I(f"""v_mov_b32 v2, 0
v_mov_b32 v3, 0
v_mov_b32 v4, 0
v_mov_b32 v5, 0
s_mov_b32 s{sT1}, 0x3f803f80
v_add_u32 v6, {L_RR+8192}, v{vL16}
v_mul_u32_u24 v8, 96, v{L}
v_lshlrev_b32 v9, 12, v{L}
s_lshl4_add_u32 s{sT0}, s{sP}, {WS_SG}""")
    P.I(f"v_mov_b32 v{G+3}, s{sTAG}\ns_waitcnt vmcnt(0)"); stamp(P,2,diag)
    for u in range(8): P.I(f"ds_read_b128 {vr(R+4*u,4)}, v6 offset:{u*1024}")
    for k in range(32):
        P.I(f"v_dot2c_f32_bf16 v{2+(k&1)}, s{sT1}, v{R+k}\nv_dot2c_f32_bf16 v{4+(k&1)}, v{R+k}, v{R+k}")
    P.I("v_add_f32 v2, v2, v3\nv_add_f32 v4, v4, v5")
    for m in ("quad_perm:[1,0,3,2]","quad_perm:[2,3,0,1]","row_half_mirror"):
        P.I(f"v_add_f32_dpp v2, v2, v2 {m} row_mask:0xf bank_mask:0xf\nv_add_f32_dpp v4, v4, v4 {m} row_mask:0xf bank_mask:0xf")
    P.I(f"""v_mul_f32 v2, 0x3b000000, v2
v_mul_f32 v4, 0x3b000000, v4
v_fma_f32 v4, -v2, v2, v4
v_max_f32 v4, 0, v4
v_cvt_pk_bf16_f32 v4, v4, v4
v_and_b32 v4, 0xffff0000, v4
v_add_f32 v4, 0x3727c5ac, v4
v_cvt_pk_bf16_f32 v4, v4, v4
v_and_b32 v4, 0xffff0000, v4
v_sqrt_f32 v4, v4
v_cvt_pk_bf16_f32 v2, v2, v4
ds_bpermute_b32 v{G}, v8, v2
ds_bpermute_b32 v{G+1}, v8, v2 offset:32
ds_bpermute_b32 v{G+2}, v8, v2 offset:64
s_waitcnt lgkmcnt(0)
s_mov_b64 exec, 7
buffer_store_dwordx4 {vr(G,4)}, v9, {sp(rWS,4)}, s{sT0} offen {PUB}
s_mov_b64 exec, -1
L_xje:""")
def mod_job(P, PUB, diag):
    R=vROLE; L=vLANE; A0=vRA
    P.I(f"s_cmp_lt_u32 s{sW}, 2\ns_cbranch_scc1 L_rje")
    assert L_MR%128==0
    P.I(f"""v_lshrrev_b32 v2, 4, v{L}
v_bfe_u32 v3, v{L}, 2, 2
v_lshl_add_u32 v4, v2, 3, v3
v_bfe_u32 v3, v{L}, 3, 1
v_lshl_add_u32 v4, v4, 1, v3
v_and_b32 v3, 1, v2
v_lshl_add_u32 v4, v4, 1, v3
v_and_b32 v3, 3, v{L}
v_lshl_add_u32 v4, v4, 2, v3
v_lshlrev_b32 v4, 3, v4
s_lshl_b32 s{sT0}, s{sW}, 13
s_add_u32 s{sT0}, s{sT0}, {L_RR}
v_add_u32 v8, s{sT0}, v4
v_xor_b32 v9, 32, v8
v_xor_b32 v10, 64, v8
v_xor_b32 v11, 96, v8
v_bfe_u32 v4, v{L}, 1, 2
v_lshl_add_u32 v4, v4, 2, v2
v_and_b32 v3, 1, v{L}
v_lshl_add_u32 v4, v4, 1, v3
v_lshlrev_b32 v{A0+5}, 4, v4
s_lshl_b32 s{sT0}, s{sW}, 7
s_add_u32 s{sT0}, s{sT0}, {L_SC-256}
v_lshl_add_u32 v6, v{L}, 1, s{sT0}
v_and_b32 v7, 48, v{L}
v_add_u32 v7, s{sT0}, v7
s_lshl_b32 s{sT0}, s92, 12
s_and_b32 s{sT1}, s{sIDX}, 7
s_lshl_b32 s{sT1}, s{sT1}, 9
s_add_u32 s{sT0}, s{sT0}, s{sT1}
s_add_u32 s99, s{sT0}, {WS_MG}
s_mov_b32 s{sT0}, 0xaaaaaaaa
s_mov_b32 s{sT1}, 0xaaaaaaaa
s_mov_b32 s{sT2}, 0xcccccccc
s_mov_b32 s{sT3}, 0xcccccccc
s_mov_b32 s{sT4}, 0xf0f0f0f0
s_mov_b32 s{sT5}, 0xf0f0f0f0""")
    P.I(f"""v_mul_f32 v4, 0xbfb8aa3b, v{R}
v_exp_f32 v4, v4
v_add_f32 v4, 1.0, v4
v_rcp_f32 v4, v4
v_mul_f32 v2, v{R}, v4
v_cvt_pk_bf16_f32 v2, v2, v2
ds_write_b16 v6, v2""")
    for ks in range(2): P.I(f"ds_read_b128 {vr(R+4*ks,4)}, v7 offset:{ks*64}")
    P.I("s_waitcnt vmcnt(0)"); stamp(P,2,diag)
    P.I(f"s_cmp_ge_u32 s{sIDX}, 24\ns_cbranch_scc1 L_rje")
    A=R+16; ACC=R+16+32
    seq=[(ks,ct) for ks in range(2) for ct in range(4)]
    for n,(ks,ct) in enumerate(seq):
        for hf in range(2): P.I(f"ds_read_b64_tr_b16 {vr(A+4*n+2*hf,2)}, v{8+ct} offset:{ks*4096+hf*512}")
    for n,(ks,ct) in enumerate(seq):
        P.I(f"v_mfma_f32_16x16x32_bf16 {vr(ACC+4*ct,4)}, {vr(A+4*n,4)}, {vr(R+4*ks,4)}, {vr(ACC+4*ct,4) if ks else 0}")
    P.I(f"v_mov_b32 v{R+3}, s{sTAG}")
    for ct in range(4):
        for e in range(2): P.I(f"v_cndmask_b32 v{A+2*ct+e}, v{ACC+4*ct+e}, v{ACC+4*ct+2+e}, {sp(sT0)}")
    for c2 in range(2):
        for e in range(2): P.I(f"v_cndmask_b32 v{A+8+2*c2+e}, v{A+4*c2+e}, v{A+4*c2+2+e}, {sp(sT2)}")
    for e in range(2): P.I(f"v_cndmask_b32 v{R+e}, v{A+8+e}, v{A+10+e}, {sp(sT4)}")
    P.I(f"""s_mov_b32 exec_lo, 0x00ff00ff
s_mov_b32 exec_hi, 0x00ff00ff
buffer_store_dwordx4 {vr(R,4)}, v{A0+5}, {sp(rWS,4)}, s99 offen {PUB}
s_mov_b64 exec, -1""")
    P.I("L_rje:")
def raw_wd_loads(P):
    P.I(f"s_lshl_b32 s{sT0}, s{sW}, 11\ns_lshl_b32 s{sT1}, s{sW}, 7\ns_add_u32 m0, s{sT0}, {L_DR}\ns_add_u32 s{sT1}, s{sT1}, s91")
    P.I(f"buffer_load_dwordx4 v{vRA+4}, {sp(rWD,4)}, s{sT1} offen lds", tag='dr')
    P.I(f"s_add_u32 m0, s{sT0}, {L_DR+1024-64}\nv_add_u32 v245, s{sT0}, v{vRA}")
    P.I(f"buffer_load_dwordx4 v{vRA+4}, {sp(rWD,4)}, s{sT1} offen offset:64 lds", tag='dr')
def wd_job(P, ST):
    A=144
    P.I("@wait dr")
    for f in range(2):
        for hf in range(2): P.I(f"ds_read_b64_tr_b16 {vr(A+4*f+2*hf,2)}, v245 offset:{f*1024+hf*256}")
    P.I(f"""s_and_b32 s{sT0}, s{sFS}, 1
s_lshl2_add_u32 s{sT0}, s{sT0}, s{sW}
s_mul_i32 s{sT0}, s{sT0}, {2*112}
s_lshr_b32 s{sT1}, s{sFS}, 1
s_add_u32 s{sT0}, s{sT0}, s{sT1}
s_lshl_b32 s{sT0}, s{sT0}, 10
s_add_u32 s{sT0}, s{sT0}, {WS_WDF}
s_add_u32 s{sT1}, s{sT0}, {112*1024}""")
    for f in range(2):
        P.I(f"buffer_store_dwordx4 {vr(A+4*f,4)}, v{vL16}, {sp(rWJ,4)}, s{sT0+f} offen {ST}", tag='wdst')
def raw_w_loads(P, NT):
    P.I(f"s_mul_i32 s{sT0}, s{sW}, {16*3584}\ns_add_u32 s{sT0}, s{sT0}, s90\ns_lshl_b32 s{sT1}, s{sW}, 12")
    for q in range(2):
        for mat,r in ((0,rWG),(1,rWU)):
            P.I(f"s_add_u32 m0, s{sT1}, {L_WR+mat*2048+q*1024}")
            P.I(f"s_add_u32 s{sT0}, s{sT0}, {8*3584}" if (q and not mat) else "s_nop 0")
            P.I(f"buffer_load_dwordx4 v{vRA+2+mat}, {sp(r,4)}, s{sT0} offen {NT} lds", tag='wr')

def cmul(o,a,b,t):
    return [f"v_pk_mul_f32 {vr(t,2)}, {vr(a,2)}, {vr(b,2)} op_sel_hi:[0,1]",
            f"v_pk_fma_f32 {vr(o,2)}, {vr(a,2)}, {vr(b,2)}, {vr(t,2)} op_sel:[1,1,0] op_sel_hi:[1,0,1] neg_lo:[1,0,0]"]
def factor_gen(P):
    B=vFG; are,aim,bre,bim,cre,cim=[vPAR+i for i in range(6)]
    R1,R8,R128,LOc,TMP,PK = B,B+2,B+4,B+6,B+8,B+12
    Pc=[B+16+2*c for c in range(8)]
    zr,zi,dt=B+32,B+33,B+34; M=[2,4,6]; PH=[8,9,10]
    P.I(f"""s_lshr_b32 s{sT0}, s{sW}, 1
s_mul_i32 s{sT1}, s{sT0}, {64*FP-512}
s_lshl_b32 s{sT2}, s{sW}, 8
s_add_u32 m0, s{sT1}, s{sT2}
s_lshl_b32 s{sT0}, s{sT0}, 4
s_lshr_b32 s{sT1}, s{sLD}, s{sT0}
s_lshl_b32 s{sT1}, s{sT1}, 16
v_mov_b32 v{dt}, {hex(LOG2E)}
v_mul_f32 v{dt}, s{sT1}, v{dt}
v_exp_f32 v{dt}, v{dt}""")
    P.extend(cmul(Pc[0],cre,bre,TMP))
    P.I(f"""v_cvt_pk_bf16_f32 v{dt}, v{dt}, v{dt}
v_and_b32 v{dt}, 0xffff0000, v{dt}
v_mul_f32 v{zr}, v{dt}, v{are}
v_mul_f32 v{zi}, v{dt}, v{aim}
v_mul_f32 v{zr}, {hex(LOG2E)}, v{zr}
v_mul_f32 v{zi}, 0.15915494, v{zi}
v_pk_mul_f32 {vr(Pc[0],2)}, {vr(Pc[0],2)}, {vr(dt,2)} op_sel_hi:[1,0] neg_hi:[1,0]""")
    cx=((R1,1,True),(R8,8,False),(R128,128,True))
    for (o,sc,cj),m,ph in zip(cx,M,PH):
        if sc==1: P.I(f"v_exp_f32 v{m}, v{zr}\nv_fract_f32 v{ph}, v{zi}")
        else: P.I(f"v_mul_f32 v{m}, {hex(f32(sc))}, v{zr}\nv_mul_f32 v{ph}, {hex(f32(sc))}, v{zi}\nv_exp_f32 v{m}, v{m}\nv_fract_f32 v{ph}, v{ph}")
        P.I(f"v_cos_f32 v{o}, v{ph}\nv_sin_f32 v{o+1}, v{ph}")
    for (o,sc,cj),m,ph in zip(cx,M,PH):
        P.I(f"v_pk_mul_f32 {vr(o,2)}, {vr(o,2)}, {vr(m,2)} op_sel_hi:[1,0]" + (" neg_hi:[1,0]" if cj else ""))
    steps_lo=[('one',48),('put',49,R8)]+[('mul',48+b,LOc,(R8 if b==2 else LOc),R8) for b in range(2,16)]
    steps_hi=[('put',0,Pc[0])]+[('mul',c,Pc[c],Pc[c-1],R1) for c in range(1,8)]
    row=8
    for e in range(1,17):
        cs = range(8) if e<2 else range(0,8,2) if e<4 else (0,4) if e<8 else (0,)
        for c in cs:
            assert HI[row]==128*e+c
            steps_hi.append(('mul',row,Pc[c],Pc[c],R128)); row+=1
    for k,s in enumerate(steps_lo+steps_hi):
        kk=PK+(k&3)
        if s[0]=='one': P.I(f"v_mov_b32 v{kk}, 0x3f80")
        else:
            if s[0]=='mul': P.extend(cmul(s[2],s[3],s[4],TMP+2*(k&1)))
            P.I(f"v_cvt_pk_bf16_f32 v{kk}, v{s[2]}, v{s[2]+1}")
        P.I(f"ds_write_addtid_b32 v{kk} offset:{L_F+s[1]*FP}")

def kgen(P, ST):
    A=vROLE; ACC=vFG
    P.I(f"""s_lshl_b32 s{sT0}, s{sDS}, 16
s_and_b32 s{sT1}, s{sDS}, 0xffff0000
v_cmp_eq_u32 vcc, 0, v0
v_mov_b32 v2, s{sT0}
v_mov_b32 v3, s{sT1}
s_mul_i32 s{sT2}, s{sW}, {16*FP}
v_cndmask_b32 v{ACC}, 0, v2, vcc
v_cndmask_b32 v{ACC+4}, 0, v3, vcc
v_add_u32 v5, s{sT2}, v{vKF}""")
    for r in (1,2,3,5,6,7): P.I(f"v_mov_b32 v{ACC+r}, 0")
    P.I(f"s_cmp_eq_u32 s{sW}, 3\ns_waitcnt lgkmcnt(0)\ns_barrier\ns_cbranch_scc1 L_wdjob")
    def rd(n):
        ks,ch=n>>1,n&1; b=A+8*(n%9)
        return [f"ds_read_b128 {vr(b,4)}, v{vKF} offset:{ch*64*FP+48*FP+ks*64}", f"ds_read_b128 {vr(b+4,4)}, v5 offset:{ch*64*FP+ks*64}"]
    for n in range(7): P.extend(rd(n))
    for n in range(16):
        b=A+8*(n%9); a=vr(ACC+4*(n&1),4)
        P.I(f"v_mfma_f32_16x16x32_bf16 {a}, {vr(b,4)}, {vr(b+4,4)}, {a}")
        if n+7<16: P.extend(rd(n+7))
    for r in range(4): P.I(f"v_cvt_pk_bf16_f32 v{8+r}, v{ACC+r}, v{ACC+4+r}")
    P.I(f"ds_write_b128 v{vKC}, v[8:11]\ns_branch L_kgen_end\nL_wdjob:")
    P.I(f"ds_write_b128 v{vRA+1}, {vr(ACC,4)}")
    P.I("L_kgen_end:")

def poll_groups():
    Q=Prog(); poll_loads(Q); G=[[]]
    for x in Q.ins:
        G[-1].append(x)
        if x.kind=='vmem': G.append([])
    return G[:-1]
def poll_loads(P):
    LD='sc1'
    P.I(f"s_mul_i32 s94, s{sP}, 12288\ns_add_u32 s94, s94, {WS_XG}")
    for g in range(3):
        P.I(f"buffer_load_dwordx4 {vr(vPOLL+4*g,4)}, v{vT16}, {sp(rWS,4)}, s94 offen {LD}")
        P.I(f"s_mov_b32 s79, {WS_SG+g*4096}\nbuffer_load_dwordx4 {vr(vPOLL+12+4*g,4)}, v{vT16}, {sp(rWS,4)}, s79 offen {LD}")
        if g<2: P.I(f"s_add_u32 s94, s94, 4096")
    P.I(f"""s_lshl4_add_u32 s3, s{sP}, {WS_MG}
buffer_load_dwordx4 {vr(vPOLL+24,4)}, v{vMC}, {sp(rWS,4)}, s3 offen {LD}
s_add_u32 s3, s3, {4*4096}
buffer_load_dwordx4 {vr(vPOL2,4)}, v{vMC}, {sp(rWS,4)}, s3 offen {LD}
s_lshl2_add_u32 s3, s{sKE}, s{sW}
s_lshl_b32 s3, s3, 7
s_add_u32 s3, s3, {WS_MG+24*4096}
buffer_load_dwordx4 {vr(vPOLL+28,4)}, v{vMW}, {sp(rWS,4)}, s3 offen {LD}
s_add_u32 s3, s3, {4*4096}""")
    P.I(f"buffer_load_dwordx4 {vr(vPOL2+4,4)}, v{vMW}, {sp(rWS,4)}, s3 offen {LD}", tag='poll')

vGA=140
def table_unpack(P):
    P.I(f"v_mov_b32 v{vUA}, v{vTAB+7}\nv_mov_b32 v{vKA}, v{vTAB+6}")
    for j in range(11):
        P.I(f"v_lshrrev_b32 v{vGA+j}, 16, v{vTAB+j//2}" if j&1 else f"v_and_b32 v{vGA+j}, 0xffff, v{vTAB+j//2}")
def k_image(P, G, npre, skip):
    E=vROLE+40; O=vROLE; GA=vGA
    for _ in range(npre): P.extend(G.pop(0))
    P.I(f"""s_mov_b32 s{sT4}, 0x05040100
s_mov_b32 s{sT5}, 0x07060302
v_add_u32 v2, {L_KI}, v{vT16}
s_waitcnt lgkmcnt(0)
s_barrier""")
    for j in range(11): P.I(f"ds_read_b32 v{E+j}, v{GA+j}")
    k=0
    for c in (3,2,1,0):
        for ch in range(2):
            o=O+4*k; k+=1
            for i in range(4):
                j=3-c+2*i
                P.I(f"v_perm_b32 v{o+i}, v{E+j+1}, v{E+j}, s{sT4+ch}")
            P.I(f"ds_write_b128 v2, {vr(o,4)} offset:{(ch*4+c)*KIP}")
            if G and k>skip: P.extend(G.pop(0))
    for g in G: P.extend(g)

def check_tags(P, diag):
    P.I(f"s_mov_b32 s{sCNT}, 0\nL_ka_chk:")
    P.I(f"""@wait poll
v_min3_u32 v2, v{vPOLL+27}, v{vPOLL+31}, s{sTAG}
v_max3_u32 v3, v{vPOLL+27}, v{vPOLL+31}, s{sTAG}
v_min3_u32 v2, v2, v{vPOL2+3}, v{vPOL2+7}
v_max3_u32 v3, v3, v{vPOL2+3}, v{vPOL2+7}
v_min3_u32 v2, v2, v{vPOLL+15}, v{vPOLL+3}
v_max3_u32 v3, v3, v{vPOLL+15}, v{vPOLL+3}
v_min3_u32 v2, v2, v{vPOLL+19}, v{vPOLL+7}
v_max3_u32 v3, v3, v{vPOLL+19}, v{vPOLL+7}
v_min3_u32 v2, v2, v{vPOLL+23}, v{vPOLL+11}
v_max3_u32 v3, v3, v{vPOLL+23}, v{vPOLL+11}
v_cmp_ne_u32 vcc, v2, v3
s_cbranch_vccnz L_ka_retry
L_ka_ok:""")
    if diag: P.I(f"s_add_u32 s{sCNT}, s{sCNT}, 1\nv_writelane_b32 v255, s{sCNT}, 31")
def retry_block(P):
    P.I(f"L_ka_retry:\ns_add_u32 s{sCNT}, s{sCNT}, 1\ns_cmp_gt_u32 s{sCNT}, 20000\ns_cbranch_scc1 L_ka_ok")
    poll_loads(P)
    P.I("s_waitcnt vmcnt(0)\ns_branch L_ka_chk")

def make_h(P):
    Q=vPOLL; mc=Q+24; mw=Q+28; Mm=vROLE; Mr=vROLE+8; O=vROLE+16
    dpp=" row_mask:0xf bank_mask:0xf"
    P.I(f"v_pk_add_f32 {vr(mc,2)}, {vr(mc,2)}, {vr(vPOL2,2)}\nv_pk_add_f32 {vr(mw,2)}, {vr(mw,2)}, {vr(vPOL2+4,2)}")
    for m in ("quad_perm:[1,0,3,2]","quad_perm:[2,3,0,1]"):
        for r in (mc,mc+1,mw,mw+1): P.I(f"v_add_f32_dpp v{r}, v{r}, v{r} {m}{dpp}")
    for rnd in range(2):
        P.I(f"v_cvt_pk_bf16_f32 v{mc+1}, v{mc}, v{mc+1}\nv_cvt_pk_bf16_f32 v{mw+1}, v{mw}, v{mw+1}")
        P.I(f"v_lshlrev_b32 v{mc}, 16, v{mc+1}\nv_and_b32 v{mc+1}, 0xffff0000, v{mc+1}\nv_lshlrev_b32 v{mw}, 16, v{mw+1}\nv_and_b32 v{mw+1}, 0xffff0000, v{mw+1}")
        if rnd==0: P.I(f"v_add_f32 v{mc}, v{mc}, v{vSEL1}\nv_add_f32 v{mc+1}, v{mc+1}, v{vSEL1}\nv_add_f32 v{mw}, v{mw}, v{vSEL2}\nv_add_f32 v{mw+1}, v{mw+1}, v{vSEL2}")
    P.I(f"ds_write_b64 v{vGW}, {vr(mw,2)}")
    for k in range(4):
        for e in range(2): P.I(f"v_mov_b32_dpp v{vMOD+2*k+e}, v{mc+e} row_newbcast:{4*k}{dpp}")
    for r in range(8):
        st=Q+12+4*(r//3)+r%3; xr=Q+4*(r//3)+r%3
        P.I(f"""v_and_b32 v{Mr+r}, 0xffff0000, v{st}
v_lshlrev_b32 v{Mm+r}, 16, v{st}
v_rcp_f32 v{Mr+r}, v{Mr+r}
v_lshlrev_b32 v{vXF+r}, 16, v{xr}
v_and_b32 v{vXF+8+r}, 0xffff0000, v{xr}""")
    P.I(f"v_add_u32 v2, {L_H+480}, v{vT16}")
    for ch in range(2):
        sel=f"op_sel:[0,{ch},{ch}] op_sel_hi:[1,{ch},{ch}]"
        for r in range(0,8,2): P.I(f"v_pk_add_f32 {vr(vHF+8*ch+r,2)}, {vr(vXF+8*ch+r,2)}, {vr(Mm+r,2)} neg_lo:[0,1] neg_hi:[0,1]")
        for r in range(0,8,2): P.I(f"v_pk_mul_f32 {vr(vHF+8*ch+r,2)}, {vr(vHF+8*ch+r,2)}, {vr(Mr+r,2)}")
        for r in range(0,8,2): P.I(f"v_pk_fma_f32 {vr(vHF+8*ch+r,2)}, {vr(vHF+8*ch+r,2)}, {vr(vMOD+2,2)}, {vr(vMOD,2)} {sel}")
        for r in range(0,8,2): P.I(f"v_cvt_pk_bf16_f32 v{O+4*ch+r//2}, v{vHF+8*ch+r}, v{vHF+8*ch+r+1}")
        P.I(f"ds_write_b128 v2, {vr(O+4*ch,4)} offset:{ch*HP}")

def gb_store(P, ST):
    P.I(f"""s_cmp_lg_u32 s{sW}, 2
s_cbranch_scc1 L_nogb
s_lshl_b32 s{sT0}, s{sP}, 3
s_add_u32 s{sT0}, s{sT0}, {WS_GBF}
s_mov_b64 exec, 1
buffer_store_dwordx2 {vr(vMOD+6,2)}, v{vL16}, {sp(rWS,4)}, s{sT0} offen {ST}
s_mov_b64 exec, -1
L_nogb:""")
def w_side(ST):
    RAW=vPOLL; WP=vPOLL+16; GB=[48,64,80,96]; U=112; S1,S2=vHF,vHF+2
    rd=[]; main=[]; sums=[]
    for k in range(4):
        g=GB[k]
        rd.append([f"ds_read_b64_tr_b16 {vr(RAW+4*k+2*hf,2)}, v{vWRA} offset:{k*4096+hf*512}" for hf in range(2)]
                 +[f"ds_read_b128 {vr(g+4*q,4)}, v{vGR} offset:{k*64+q*16}" for q in range(2)])
        L=[]
        for d in range(4):
            u=U+8*k+2*d
            L+=[f"v_lshlrev_b32 v{u}, 16, v{RAW+4*k+d}", f"v_and_b32 v{u+1}, 0xffff0000, v{RAW+4*k+d}",
                f"v_mul_f32 v{g+2*d}, v{u}, v{g+2*d}", f"v_mul_f32 v{g+2*d+1}, v{u+1}, v{g+2*d+1}", f"v_cvt_pk_bf16_f32 v{WP+4*k+d}, v{g+2*d}, v{g+2*d+1}"]
        L.append((f"buffer_store_dwordx4 {vr(WP+4*k,4)}, v{vL16}, {sp(rWJ,4)}, s{sWO} offen {ST}",'wpst'))
        if k<3: L.append(f"s_add_u32 s{sWO}, s{sWO}, s{sWST}")
        main.append(L)
        for i in range(8):
            e=i&1; first=(k==0 and i<2)
            sums.append(f"v_mul_f32 v{S2+e}, v{U+8*k+i}, v{g+8+i}" if first else f"v_fmac_f32 v{S2+e}, v{U+8*k+i}, v{g+8+i}")
            if k==0 and i<2: continue
            sums.append(f"v_add_f32 v{S1+e}, v{g+e}, v{g+i}" if (k==0 and i<4) else f"v_add_f32 v{S1+e}, v{S1+e}, v{g+i}")
    rdsb=[f"ds_read_b128 {vr(GB[k]+8+4*q,4)}, v{vGR} offset:{256+k*64+q*16}" for k in range(4) for q in range(2)]
    tail=[f"v_add_f32 v{S1}, v{S1}, v{S1+1}", f"v_add_f32 v{S2}, v{S2}, v{S2+1}", f"v_mov_b32 v{S1+1}, v{S1}", f"v_mov_b32 v{S2+1}, v{S2}",
          f"v_lshlrev_b32 v2, 2, v{vLANE}", "s_nop 0",
          f"v_permlane32_swap_b32 v{S1}, v{S1+1}", f"v_permlane32_swap_b32 v{S2}, v{S2+1}",
          f"v_add_f32 v{S1}, v{S1}, v{S1+1}", f"v_add_f32 v{S2}, v{S2}, v{S2+1}", f"v_cvt_pk_bf16_f32 v{S1}, v{S1}, v{S2}",
          "s_mov_b32 exec_hi, 0", (f"buffer_store_dword v{S1}, v2, {sp(rWJ,4)}, s{sWA} offen {ST}",'auxst'), "s_mov_b32 exec_hi, -1"]
    return rd,main,rdsb,sums,tail

def conv(P, ST, late):
    ACC=16
    def kf(b,u): return ar(32*b+4*u,4)
    def uf(b,s): return ar(64+32*b+4*s,4)
    def reads(vi):
        b=vi&1; L=[]
        for k in range(8):
            o=192-64*vi
            L.append((f"ds_read_b128 {uf(b,k)}, v{vUA} offset:{512*k+o}",f"c{vi}_{k}"))
            for hf in range(2):
                L.append((f"ds_read_b64 {ar(32*b+4*k+2*hf,2)}, v{vKA} offset:{512*(7-k)+o+8*hf}",f"c{vi}_{k}"))
        return L
    order=sorted([(u,s) for u in range(8) for s in range(8) if u+s<8], key=lambda t:(max(t),t))
    rd,main,rdsb,sums,tail=w_side(ST)
    r0=reads(0)
    if late:
        Q=Prog(); wd_job(Q,ST); wdj=[(x.text,x.tag) for x in Q.ins[1:]]
        tabs=[x for r in rd for x in r[2:]]+rdsb+wdj[4:12]; trs=[(x,'wtr') for r in rd for x in r[:2]]+wdj[:4]
        P.extend(r0)
        steps=[[[],tabs] if v==0 else [[],[]] for v in range(5)]
        steps[late+1][0]=trs; steps[late][1]=steps[late][1]+['@wait wtr']+main[0]+wdj[12:]+main[1]+main[2]+main[3]+sums
    else:
        P.extend(r0[:12]); P.extend(rd[0]+rd[1]); P.extend(r0[12:])
        steps=[(None,main[0]+main[1]),(rd[2]+rd[3],main[2]+main[3]),(rdsb,sums),([],[]),([],[])]
    first=set(); side=[]
    for vi in range(4):
        b=vi&1
        nxt = steps[vi+1][0]+(reads(vi+1) if vi<3 else [])
        side+=steps[vi][1]
        waits = {0:0,1:1,4:2,9:3,16:5,30:7} if vi==0 else {0:7}
        start = 17 if vi==0 else 12 if vi==late else 0
        for n,(u,s) in enumerate(order):
            t=u+s; a=vr(ACC+4*t,4)
            if n in waits: P.I(f"@wait c{vi}_{waits[n]}")
            P.I(f"v_mfma_f32_16x16x32_bf16 {a}, {kf(b,u)}, {uf(b,s)}, {a if t in first else 0}"); first.add(t)
            slots=2-((n+1) in waits or n==35)
            if late and vi==late and n==0: P.I("@wait wr dr\ns_barrier"); continue
            if nxt and (vi>0 or n>=4):
                P.extend([nxt.pop(0)]); slots-=1
                if n<start and slots and nxt: P.extend([nxt.pop(0)]); slots-=1
            while slots>0 and side and n>=start:
                P.extend([side.pop(0)]); slots-=1
        assert not nxt, len(nxt)
        print('  conv step',vi,'side backlog',len(side))
    print('conv: side instrs left', len(side))
    return ACC,side+tail

def conv_epilogue(P, ACC, tail, XST):
    tail=list(tail)
    for t in range(8):
        P.I(f"ds_write_b128 v{vYW}, {vr(ACC+4*t,4)} offset:{1280*t}")
        k=min(max(5,-(-len(tail)//(8-t))),len(tail))
        if len(tail)-k<4: k=len(tail)
        P.extend(tail[:k]); tail=tail[k:]
    P.I(f"s_lshl_b32 s{sT0}, s{sP}, 7\ns_add_u32 s{sT0}, s{sT0}, {WS_X1B}\ns_waitcnt lgkmcnt(0)\ns_barrier")
    Y=48
    for ch in range(2):
        for g in range(2):
            for vh in range(2):
                P.I(f"ds_read_b128 {vr(Y+16*ch+8*vh+4*g,4)}, v{vYR} offset:{L_Y+(2*ch+vh)*10240+320*g}")
    for ch in range(2):
        y=Y+16*ch
        for r in range(0,8,2): P.I(f"v_pk_add_f32 {vr(y+r,2)}, {vr(y+r,2)}, {vr(y+8+r,2)}")
        for r in range(0,8,2): P.I(f"v_pk_fma_f32 {vr(y+r,2)}, {vr(y+r,2)}, {vr(vMOD+4,2)}, {vr(vXF+8*ch+r,2)} op_sel:[0,{ch},0] op_sel_hi:[1,{ch},1]")
        for r in range(0,8,2): P.I(f"v_cvt_pk_bf16_f32 v{80+4*ch+r//2}, v{y+r}, v{y+r+1}")
        P.I(f"buffer_store_dwordx4 {vr(80+4*ch,4)}, v{vXO}, {sp(rWS,4)}, s{sT0} offen offset:{64*ch} {XST}", tag='x1st')

def zero_flags(P):
    P.I(f"""s_cmp_lg_u32 s{sW}, 0
s_cbranch_scc1 L_nozf
s_lshl_b32 s{sT0}, s2, 6
s_add_u32 s{sT0}, s{sT0}, {WS_FLAG}
v_mov_b32 v2, 0
v_lshlrev_b32 v3, 2, v0
s_mov_b64 exec, 0xffff
buffer_store_dword v2, v3, {sp(rWS,4)}, s{sT0} offen
s_mov_b64 exec, -1
s_cmp_lg_u32 s2, 0
s_cbranch_scc1 L_nozf
v_mov_b32 v2, s{sTAG}
s_mov_b64 exec, 1
buffer_store_dword v2, v3, {sp(rWS,4)}, {WS_EPOCH} offen
s_mov_b64 exec, -1
L_nozf:""")

def body(P, n, diag, cfg):
    NT=cfg.get('NT','nt'); ST=cfg.get('ST','sc1')
    entry(P,n,diag,256); role_addr(P)
    P.I("s_waitcnt lgkmcnt(0)"); stamp0_commit(P,diag); early_loads(P,NT,NT)
    if cfg.get('MDELAY',1):
        role_loads(P,NT,'s_cmp_lt_u32','L_rla'); table_loads(P); setup(P); role_loads(P,NT,'s_cmp_ge_u32','L_rlb')
    else:
        role_loads(P,NT,None,None); table_loads(P); setup(P)
    P.I(f"s_waitcnt lgkmcnt(0)\ns_add_u32 s{sTAG}, s{sTAG}, 1\ns_barrier")
    stamp(P,1,diag)
    P.I(f"s_waitcnt vmcnt({8 if cfg.get('MDELAY',1) else 10})\n@forget "+" ".join(str(r) for r in list(range(vPAR,vPAR+6))+[vROLE]))
    x_jobs(P,'sc1',diag)
    stamp(P,3,diag)
    factor_gen(P)
    stamp(P,4,diag)
    mod_job(P,'sc1',diag)
    P.I("@forget "+" ".join(str(r) for r in range(vTAB,vTAB+8)))
    stamp(P,10,diag)
    wat=cfg.get('WAT',2)
    if wat<2: raw_wd_loads(P)
    if wat==0: raw_w_loads(P,NT)
    G=poll_groups()
    for _ in range(cfg.get('PEARLY',0)): P.extend(G.pop(0))
    table_unpack(P)
    kgen(P,ST); stamp(P,5,diag)
    k_image(P,G,cfg.get('PPRE',2),cfg.get('PSKIP',0))
    if wat==2: raw_wd_loads(P)
    if wat>=1: raw_w_loads(P,NT)
    if wat<2: wd_job(P,ST)
    stamp(P,6,diag)
    check_tags(P,diag); stamp(P,11,diag)
    make_h(P)
    late=cfg.get('LATE',1) if wat==2 else 0
    if not late:
        if wat==2: wd_job(P,ST)
        P.I("@wait wr")
    gb_store(P,ST)
    P.I("s_waitcnt lgkmcnt(0)\ns_barrier")
    stamp(P,7,diag)
    acc,tail=conv(P,ST,late); stamp(P,8,diag); conv_epilogue(P,acc,tail,cfg.get('XST',''))
def build(P, diag, cfg):
    n='ka_kernel'
    body(P,n,diag,cfg); zero_flags(P)
    stamp(P,9,diag); stamp_out(P,0,diag)
    P.I(f"L_{n}_exit:\ns_endpgm")
    retry_block(P)
    return [(n,256,256,LDS_A,384)]
```

```python
from prog import *
from layout import *
from ka import sp, vr, ar, mksrd, f32, stamp, stamp_out, rWS, rOUT, sXCD, sIDX, sW
import ka
sXB,sWB,sAB,sXM,sFL,sPL,sA0,sA1,sD0,sD1,sNT,sMT,sFB,sCNT = range(8,22)
sQ=22
sT0,sT1,sT2,sT3,sT4 = 80,81,82,83,84
vLANE,vL16 = 1,2
NS=16; L_XS=0; L_RING=4*NS*1024; RING=96
LDS_C=L_RING+RING*1024
def entry(P,name,diag):
    P.I(f".globl {name}\n.p2align 8\n.type {name},@function\n{name}:\n@reset")
    P.I(f"""s_cmp_ge_u32 s2, 256
s_cbranch_scc1 L_{name}_exit
s_load_dwordx2 s[42:43], s[0:1], 136
s_load_dwordx2 s[38:39], s[0:1], 120
s_and_b32 s{sXCD}, s2, 7
s_lshr_b32 s{sIDX}, s2, 3
v_lshrrev_b32 v3, 6, v0
v_and_b32 v{vLANE}, 63, v0
v_readfirstlane_b32 s{sW}, v3""")
    ka.stamp0_issue(P,diag)
def srds(P,diag):
    P.I("s_waitcnt lgkmcnt(0)"); ka.stamp0_commit(P,diag)
    P.extend(mksrd(rWS,42,WS_USED)); P.extend(mksrd(rOUT,38,2097152))

def c_maps():
    return f"""s_lshr_b32 s{sT0}, s{sXCD}, 2
s_lshl_b32 s{sT0}, s{sT0}, 5
s_and_b32 s{sT1}, s{sIDX}, 28
s_add_u32 s{sT0}, s{sT0}, s{sT1}
s_add_u32 s{sT0}, s{sT0}, s{sW}
s_and_b32 s{sT1}, s{sXCD}, 3
s_and_b32 s{sT3}, s{sIDX}, 3
s_lshl2_add_u32 s{sT2}, s{sT1}, s{sT3}
s_lshl_b32 s{sXB}, s{sT0}, 15
s_add_u32 s{sXB}, s{sXB}, {WS_X1B}
s_mul_i32 s{sWB}, s{sT2}, {231*1024}
s_add_u32 s{sWB}, s{sWB}, {WS_WPF}
s_mul_i32 s{sXM}, s{sW}, {NS*1024}
s_mul_i32 s{sAB}, s{sT0}, 112
s_mul_i32 s{sT2}, s{sT2}, 7
s_add_u32 s{sAB}, s{sAB}, s{sT2}
s_lshl_b32 s{sAB}, s{sAB}, 10
s_add_u32 s{sAB}, s{sAB}, {WS_ACT}
s_lshr_b32 s{sFL}, s{sT0}, 1
s_lshl2_add_u32 s{sFL}, s{sFL}, s{sT1}
s_lshl_b32 s{sFL}, s{sFL}, 7
s_and_b32 s{sT0}, s{sT0}, 1
s_lshl2_add_u32 s{sT0}, s{sT0}, s{sT3}
s_lshl2_add_u32 s{sFL}, s{sT0}, s{sFL}
s_add_u32 s{sFL}, s{sFL}, {WS_FLAG}""".split('\n')
def d_maps():
    return f"""s_lshr_b32 s{sT1}, s{sIDX}, 3
s_lshl2_add_u32 s{sT2}, s{sXCD}, s{sT1}
s_and_b32 s{sT1}, s{sIDX}, 7
s_mul_i32 s{sT3}, s{sW}, {28*1024}
s_mul_i32 s{sA0}, s{sT2}, {224*1024}
s_add_u32 s{sA0}, s{sA0}, s{sT3}
s_add_u32 s{sA0}, s{sA0}, {WS_ACT}
s_mul_i32 s{sD0}, s{sT1}, {224*1024}
s_add_u32 s{sD0}, s{sD0}, s{sT3}
s_add_u32 s{sD0}, s{sD0}, {WS_WDF}
s_lshl2_add_u32 s{sPL}, s{sT2}, s{sW}
s_lshl_b32 s{sPL}, s{sPL}, 7
s_add_u32 s{sPL}, s{sPL}, {WS_FLAG}
s_lshl_b32 s{sNT}, s{sT2}, 1
s_and_b32 s{sT3}, s{sW}, 1
s_lshl_b32 s{sT3}, s{sT3}, 1
s_lshl2_add_u32 s{sMT}, s{sT1}, s{sT3}
s_lshr_b32 s{sT3}, s{sW}, 1
s_add_u32 s{sMT}, s{sMT}, s{sT3}""".split('\n')

class Stream:
    def __init__(s, base, tmp): s.base=base; s.tmp=tmp; s.cur=None
    def at(s, off):
        L=[]
        if s.cur is None or not (0<=off-s.cur<4096):
            s.cur=off; L.append(f"s_add_u32 s{s.tmp}, s{s.base}, {off}")
        return L, f"s{s.tmp} offen offset:{off-s.cur}"
def d_order(NA):
    p1=[7*jj+mt for jj in range(4) for mt in range(NA)]; p2=[7*jj+mt for jj in range(4) for mt in range(NA,7)]
    return p1,p2
def wd_load_list(NA):
    p1,p2=d_order(NA); S=[Stream(sD0,34),Stream(sD0,35)]; L=[]
    for f in p1+p2:
        for m in range(2):
            pre,o=S[m].at(m*112*1024+f*1024)
            L.append(pre+[f"buffer_load_dwordx4 {ar(8*f+4*m,4)}, v{vL16}, {sp(rWS,4)}, {o}"])
    return L
AX,AG=240,224
vXA,vPA,vPV,vONE1=253,254,252,251
def cost(x):
    s=x[0] if isinstance(x,tuple) else x
    o=s.split()[0]
    return 2 if (o in TRANS or o=='s_barrier') else 1

class PhaseC:
    def __init__(s, cfg):
        s.cfg=cfg
        seq=[(t,ks) for ks in range(32) for t in range(G1)]
        AUXAT=cfg.get('AUXAT',16-G1)
        t3=[(G1,ks) for ks in range(33)]
        seq+= t3[:AUXAT]+[(t,32) for t in range(G1)]+t3[AUXAT:]
        for t in range(G1+1,7): seq+=[(t,ks) for ks in range(33)]
        s.seq=seq; s.N=N=len(seq); assert N==231
        s.P1=32*G1
        b=cfg.get('STG') or ([0,8,16]+list(range(32,232,16))+[232])
        s.bounds=b; s.nst=len(b)-1
        for q in range(s.nst):
            assert sorted(s.gpos(*x) for x in seq[b[q]:b[q+1]])==list(range(b[q],min(b[q+1],N))), q
            assert b[q]//RING==(b[q+1]-1)//RING
        s.QR={c:sQ+2*i for i,c in enumerate(sorted({(b[q+1]-b[q])//4 for q in range(s.nst)}))}
        s.LOOK=cfg.get('LOOK',6); s.XL=cfg.get('XL',6)
        s.mem=[]; s.m0=None; s.now=-1
        for q in range(s.nst):
            gate=-1
            if b[q+1]>RING: gate=max(z for z in range(s.nst) if b[z]<b[q+1]-RING)+2
            for u in range((b[q+1]-b[q])//4): s.mem.append((max(b[q]-s.LOOK,0),gate,('w',q,u)))
        XG=cfg.get('XGRP',2)
        for ks in range(32): s.mem.append((max(G1*(ks-ks%XG)-s.XL,0),-1,('x',ks)))
        s.mem.sort(key=lambda e:e[0])
    def gpos(s,t,ks): return (G1*ks+t) if t<G1 else 33*t+ks
    def setup(s):
        L=[]
        for c,r in s.QR.items(): L+=[f"s_mul_i32 s{r}, s{sW}, {c*1024}", f"s_add_u32 s{r+1}, s{r}, s{sWB}"]
        L+=f"""v_lshlrev_b32 v{vL16}, 4, v{vLANE}
v_lshrrev_b32 v8, 5, v{vLANE}
v_bfe_u32 v9, v{vLANE}, 2, 2
v_lshl_add_u32 v8, v8, 3, v9
v_bfe_u32 v9, v{vLANE}, 4, 1
v_lshl_add_u32 v8, v8, 1, v9
v_and_b32 v10, 3, v{vLANE}
v_lshl_add_u32 v8, v8, 2, v10
v_lshl_add_u32 v{vXA}, v8, 3, s{sXM}
v_add_u32 v3, {L_RING}, v{vL16}
v_add_u32 v7, {L_RING+0x10000}, v{vL16}
v_and_b32 v8, 31, v{vLANE}
v_and_b32 v10, 32, v{vLANE}
v_lshlrev_b32 v10, 4, v10
v_lshl_add_u32 v8, v8, 2, v10
v_add_u32 v249, {L_RING}, v8
v_add_u32 v250, {L_RING+0x10000}, v8
v_and_b32 v8, 15, v{vLANE}
v_cmp_eq_u32 vcc, v8, v9
v_mov_b32 v10, 0x3f803f80
v_and_b32 v{vPA}, 7, v{vLANE}
v_lshlrev_b32 v{vPA}, 2, v{vPA}
v_cndmask_b32 v56, 0, v10, vcc
v_cndmask_b32 v57, 0, v10, vcc
v_cndmask_b32 v58, 0, v10, vcc
v_cndmask_b32 v59, 0, v10, vcc""".split('\n')
        return L
    def memop(s,e):
        if e[0]=='w':
            _,q,u=e; c=(s.bounds[q+1]-s.bounds[q])//4; key=('w',q,u//4); u0=u-u%4
            pre=[f"s_add_u32 m0, s{s.QR[c]}, {L_RING+(s.bounds[q]%RING+u0)*1024}", f"s_add_u32 s{sT0}, s{s.QR[c]+1}, {(s.bounds[q]+u0)*1024}"]
            tag=f"w{q}"; off=(u%4)*1024; ld=s.cfg.get('WLD','')
        else:
            ks=e[1]; key=('x',ks//4); k0=ks-ks%4
            assert ks<NS or s.now>=G1*(ks-NS), (ks,s.now)
            pre=[f"s_add_u32 m0, s{sXM}, {L_XS+(k0%NS)*1024}", f"s_add_u32 s{sT0}, s{sXB}, {k0*1024}"]
            tag=f"x{ks}"; off=(ks%4)*1024; ld=s.cfg.get('XLD','')
        L=[] if s.m0==key else pre
        s.m0=key
        return L+[(f"buffer_load_dwordx4 v{vL16}, {sp(rWS,4)}, s{sT0} offen offset:{off} {ld} lds",tag)]
    def pre(s,P,n,kinds='wx'):
        k=0
        while n>0 and k<len(s.mem):
            if s.mem[k][2][0] in kinds and s.mem[k][1]<0: P.extend(s.memop(s.mem.pop(k)[2])); n-=1
            else: k+=1
    def run(s,P,diag,wd,extra_side):
        cfg=s.cfg; seq=s.seq; N=s.N; bounds=s.bounds; mem=s.mem; LOOK=s.LOOK; XL=s.XL; P1=s.P1
        ST='sc1'; NA=cfg.get('NA',4)
        X0=120
        xr=lambda ks: vr(X0+4*ks,4) if ks<32 else vr(44,4)
        NACC=4; ACC=[72,88,104,56]
        WF=[20+4*i for i in range(6)]; NWF=6
        SQ,SM,ONE,SQ2=48,52,56,16
        C0,C1,IR2=4,5,6; TA=8
        RA=[3,7]; RA2=[249,250]
        def rd(n):
            pos=(s.gpos(*seq[n])%RING)*1024
            if seq[n][1]==32:
                return [(f"ds_read_b32 v{WF[n%NWF]+q}, v{RA2[pos>>16]} offset:{(pos&0xffff)+128*q}", f"r{n}") for q in range(4)]
            return [(f"ds_read_b128 {vr(WF[n%NWF],4)}, v{RA[pos>>16]} offset:{pos&0xffff}", f"r{n}")]
        def xrd(ks): return [f"@wait x{ks}"]+[f"ds_read_b64_tr_b16 {vr(X0+4*ks+2*hf,2)}, v{vXA} offset:{L_XS+(ks%NS)*1024+hf*256}" for hf in range(2)]
        accof=lambda t: ACC[t%NACC]
        EW=cfg.get('EW',4)
        def epi(t):
            a=accof(t); L=[]
            for g in range(8//EW):
                ia=list(range(EW*g,EW*g+EW)); T=TA
                L+=[f"v_mul_f32 v{T+k}, v{a+i}, v{a+i}" for k,i in enumerate(ia)]
                L+=[f"v_fma_f32 v{T+k}, v{T+k}, v{C1}, v{C0}" for k,i in enumerate(ia)]
                L+=[f"v_mul_f32 v{T+k}, v{T+k}, v{a+i}" for k,i in enumerate(ia)]
                for k,i in enumerate(ia): L+=[f"v_exp_f32 v{T+k}, v{T+k}", f"v_mul_f32 v{a+8+i}, v{a+i}, v{a+8+i}"]
                for k,i in enumerate(ia):
                    L+=[f"v_fma_f32 v{a+i}, v{T+k}, v{IR2}, v{IR2}"]
                    if k: L+=[f"v_rcp_f32 v{a+i-1}, v{a+i-1}"]
                L+=[f"v_mul_f32 v{a+8+ia[0]}, v{a+8+ia[0]}, v{a+ia[0]}", f"v_rcp_f32 v{a+ia[-1]}, v{a+ia[-1]}"]
                L+=[f"v_mul_f32 v{a+8+i}, v{a+8+i}, v{a+i}" for i in ia[1:]]
                L+=[f"v_cvt_pk_bf16_f32 v{16+i//2}, v{a+8+i}, v{a+9+i}" for i in ia[::2]]
            L.append((f"buffer_store_dwordx4 v[16:19], v{vL16}, {sp(rWS,4)}, s{sAB} offen offset:{(t%4)*1024} {ST}",f'act{t}'))
            if t==3: L.append(f"s_add_u32 s{sAB}, s{sAB}, 4096")
            return L
        if cfg.get('NOTRANS'):
            e0=epi; epi=lambda t:[y for x in e0(t) for y in ([x.replace('v_exp_f32','v_mov_b32').replace('v_rcp_f32','v_mov_b32')]*2 if isinstance(x,str) and x.split()[0] in TRANS else [x])]
        if cfg.get('NOEPI'):
            e1=epi; epi=lambda t:[x for x in e1(t) if not (isinstance(x,str) and x.startswith('v_'))]
        k0=-2*0.7978845608028654*1.4426950408889634; k1=k0*0.044715
        fin=f"""v_and_b32 v11, 15, v{vLANE}
v_lshlrev_b32 v11, 2, v11
v_and_b32 v8, 3, v{vLANE}
v_cmp_eq_u32 vcc, 1, v8
v_cmp_eq_u32 {sp(sT2)}, 2, v8
v_and_b32 v10, 16, v{vLANE}
ds_bpermute_b32 v12, v11, v{SM}
ds_bpermute_b32 v13, v11, v{SM+1}
v_add_f32 v{SQ}, v{SQ}, v{SQ2}
v_add_f32 v{SQ+1}, v{SQ+1}, v{SQ2+1}
v_add_f32 v{SQ+2}, v{SQ+2}, v{SQ2+2}
v_add_f32 v{SQ+3}, v{SQ+3}, v{SQ2+3}
v_cndmask_b32 v9, v{SQ}, v{SQ+1}, vcc
v_cmp_eq_u32 vcc, 3, v8
v_cndmask_b32 v9, v9, v{SQ+2}, {sp(sT2)}
v_cmp_eq_u32 {sp(sT2)}, 0, v10
v_cndmask_b32 v9, v9, v{SQ+3}, vcc
v_mov_b32 v8, v9
v_nop
v_nop
v_permlane32_swap_b32 v8, v9
v_add_f32 v9, v8, v9
v_mul_f32 v9, 0x3b000000, v9
v_cndmask_b32 v12, v13, v12, {sp(sT2)}
v_mul_f32 v12, 0x3b000000, v12
v_fma_f32 v9, -v12, v12, v9
v_max_f32 v9, 0, v9
v_cvt_pk_bf16_f32 v9, v9, v9
v_and_b32 v9, 0xffff0000, v9
v_add_f32 v9, 0x3727c5ac, v9
v_cvt_pk_bf16_f32 v9, v9, v9
v_and_b32 v9, 0xffff0000, v9
v_sqrt_f32 v9, v9
v_nop
v_cvt_pk_bf16_f32 v44, -v12, v9
v_and_b32 v9, 0xffff0000, v44
v_mov_b32 v45, v44
v_rcp_f32 v8, v9
v_mov_b32 v46, v44
v_mov_b32 v47, v44
v_mul_f32 v{IR2}, v9, v9
v_mul_f32 v{C0}, {hex(f32(k0))}, v8
v_mul_f32 v10, v8, v8
v_mul_f32 v{C1}, {hex(f32(k1))}, v8
v_mul_f32 v{C1}, v{C1}, v10""".split('\n')
        done_at={}
        for n,(t,ks) in enumerate(seq):
            if ks==32: done_at[t]=n
        side=[(0,x) for x in extra_side]+[(P1,x) for x in fin]
        for t in range(6): side+=[(done_at[t]+3,x) for x in epi(t)]
        RX=cfg.get('RXAT',P1+40)
        blocks={RX:[f"s_lshl_b32 s{sT1}, s{sNT}, 5",f"s_add_u32 s{sT1}, s{sT1}, s{sMT}",f"s_lshl_b32 s{sT1}, s{sT1}, 10",f"s_add_u32 s{sT1}, s{sT1}, {WS_X1B}"],
                RX+1:['@m0',f"s_add_u32 m0, s{sXM}, {L_XS}",f"s_add_u32 s{sT4}, s{sT1}, {32768-1024}",(f"buffer_load_dwordx4 v{vL16}, {sp(rWS,4)}, s{sT1} offen {cfg.get('XLD','')} lds",'rx'),
                      (f"buffer_load_dwordx4 v{vL16}, {sp(rWS,4)}, s{sT4} offen offset:1024 {cfg.get('XLD','')} lds",'rx')],
                RX+3:[f"s_lshl_b32 s{sT1}, s{sMT}, 6",f"s_add_u32 s{sT1}, s{sT1}, {WS_GBF}",f"v_and_b32 v{vPV}, 32, v{vLANE}"],
                RX+4:[f"buffer_load_dwordx4 {ar(AG+4*q,4)}, v{vPV}, {sp(rWS,4)}, s{sT1} offen offset:{16*q} {cfg.get('WLD','')}" for q in range(2)],
                RX+44:["@wait rx"]+[f"ds_read_b64_tr_b16 {ar(AX+2*q,2)}, v{vXA} offset:{L_XS+(q>>1)*1024+(q&1)*256}" for q in range(4)],
                N-cfg.get('POLLB',8):[f"buffer_load_dword v{vPV}, v{vPA}, {sp(rWS,4)}, s{sPL} offen sc1"]}
        flagblk=[f"@wait act{NA-1}","s_mov_b64 exec, 1",f"buffer_store_dword v{vONE1}, v{vL16}, {sp(rWS,4)}, s{sFL} offen sc1","s_mov_b64 exec, -1"]
        flag_at=None
        opened=[-1]
        def emit(L):
            c=0
            for x in L:
                if x=='@m0': s.m0=None; continue
                P.extend([x]); c+=cost(x)
            return c
        def force(pred):
            c=0
            while any(pred(e[2]) for e in mem):
                assert mem[0][1]<=opened[0], mem[0]
                c+=emit(s.memop(mem.pop(0)[2]))
            return c
        def open_stage(q):
            c=force(lambda e: e[0]=='w' and e[1]==q)
            opened[0]=q
            return c+emit([f"@wait w{q}","s_barrier"])
        xnext=0
        open_stage(0)
        while G1*xnext<XL: force(lambda e: e==('x',xnext)); emit(xrd(xnext)); xnext+=1
        for n in range(LOOK): P.extend(rd(n))
        DIST=cfg.get('DIST',24); DIST2=cfg.get('DIST2',48); WB=cfg.get('WB',3)
        started=set(); mb=0.0; wdb=0.0
        P.I("@mark c1")
        for n,(t,ks) in enumerate(seq):
            a=accof(t)
            if n==P1: P.I("@mark c2")
            if t>=NACC and ks==0:
                while side and side[0][0]<=done_at[t-NACC]+3: emit([side.pop(0)[1]])
            if ks==32 and t==0:
                while side and side[0][0]<=P1: emit([side.pop(0)[1]])
            if n%WB==0: P.I(f"@wait r{min(n+WB-1,N-1)}")
            P.I(f"v_mfma_f32_32x32x16_bf16 {vr(a,16)}, {vr(WF[n%NWF],4)}, {xr(ks)}, {vr(a,16) if t in started else 0}"); started.add(t)
            s.now=n
            free=cfg.get('CAP',6)-((n+1)%WB==0)
            if xnext<32 and G1*xnext-XL<=n:
                free-=force(lambda e: e==('x',xnext)); free-=emit(xrd(xnext)); xnext+=1
            m=n+LOOK
            if m<N:
                if m in bounds: free-=open_stage(bounds.index(m))
                free-=emit(rd(m))
            used=False
            if n in blocks: free-=emit(blocks.pop(n)); used=True
            elif flag_at is not None and n>=flag_at and flagblk and free>=4: free-=emit(flagblk); flagblk=None; used=True
            rate = cfg.get('RATE1',0.9) if n<P1 else cfg.get('RATE2',0.5)
            mb=min(mb+rate,1.0+rate)
            if not used and mem and mb>=1 and mem[0][0]-(DIST if n<P1 else DIST2)<=n and mem[0][1]<=opened[0] and (free>=3 or n<P1) and (mem[0][2][0]=='w' or n>=G1*(mem[0][2][1]-NS)):
                free-=emit(s.memop(mem.pop(0)[2])); used=True; mb-=1
            if not used and wd and n>=cfg.get('WDFROM',P1+4):
                wdb=min(wdb+cfg.get('WDPER',0.2),2)
                if wdb>=1 and mb>=1 and free>=2: free-=emit(wd.pop(0)); wdb-=1; mb-=1
            while side and side[0][0]<=n and cost(side[0][1])<=free:
                x=side.pop(0)[1]; free-=emit([x])
                if isinstance(x,tuple) and x[1]==f'act{NA-1}': flag_at=n+cfg.get('FLAGD',30)
            if n<P1 and t==G1-1:
                x=X0+4*ks
                P.I(f"v_mfma_f32_4x4x4_16b_bf16 {vr(SQ,4)}, {vr(x,2)}, {vr(x,2)}, {vr(SQ,4) if ks else 0}")
                P.I(f"v_mfma_f32_4x4x4_16b_bf16 {vr(SQ2,4)}, {vr(x+2,2)}, {vr(x+2,2)}, {vr(SQ2,4) if ks else 0}")
                P.I(f"v_mfma_f32_16x16x32_bf16 {vr(SM,4)}, {vr(ONE,4)}, {vr(x,4)}, {vr(SM,4) if ks else 0}")
            if n==P1-1: stamp(P,12,diag)
        P.I("@mark end")
        assert not flagblk and not blocks and not mem
        print('phase C: side left', len(side), 'flag at', flag_at, 'Wd left', len(wd))
        stamp(P,13,diag)
        return [x for _,x in side]+epi(6)

def poll_check(P, name, need, diag):
    P.I(f"""L_{name}_chk:
v_cmp_ne_u32 vcc, v{vONE1}, v{vPV}
s_cbranch_vccnz L_{name}_retry
L_{name}_ok:""")
def poll_retry(P, name, off):
    P.I(f"""L_{name}_retry:
s_add_u32 s{sCNT}, s{sCNT}, 1
s_cmp_gt_u32 s{sCNT}, 40000
s_waitcnt vmcnt(0) lgkmcnt(0)
s_cbranch_scc1 L_{name}_ok
buffer_load_dword v{vPV}, v{vPA}, {sp(rWS,4)}, s{sPL} offen offset:{off} sc1
s_waitcnt vmcnt(0)
s_branch L_{name}_chk""")

def phase_d(P, cfg, diag, wd, ctail):
    NA=cfg.get('NA',4); p1,p2=d_order(NA)
    ACC=[[120,136],[152,168]]
    BUF=[184+4*i for i in range(16)]+[20+4*i for i in range(6)]
    NB=len(BUF)
    work=[(f,n) for f in p1 for n in range(2)]+[(f,0) for f in p2]+[(f,1) for f in p2]
    n1=2*len(p1); nA=n1+len(p2)
    S=[Stream(sA0,36),Stream(sA0,37)]
    order=p1+p2
    nwd0=56-len(wd)
    def load(k):
        nonlocal nwd0
        f,n=work[k]; L=[]
        while wd and nwd0<2*order.index(f)+2: L+=wd.pop(0); nwd0+=1
        pre,o=S[n].at(n*112*1024+f*1024)
        return L+pre+[f"buffer_load_dwordx4 {vr(BUF[k%NB],4)}, v{vL16}, {sp(rWS,4)}, {o} sc1"]
    AH=cfg.get('DAHEAD',14); assert AH<=NB
    poll_check(P,'p1',1,diag)
    stamp(P,14,diag)
    li=0; per=max(1,len(ctail)//AH)
    while ctail or li<AH:
        if li<AH: P.extend(load(li)); li+=1
        P.extend(ctail[:per]); ctail=ctail[per:]
    stamp(P,15,diag)
    P.I(f"v_add_u32 v3, s{sXM}, v{vL16}")
    started=set(); fl2=cfg.get('FL2',AH-4); pl2=n1-AH-cfg.get('PL2',6)
    assert fl2<pl2
    wr0=[f"ds_write_b128 v3, {vr(ACC[0][k&1]+8*((k>>1)&1)+4*(k>>2),4)} offset:{L_XS+(k&3)*2048+(k>>2)*1024}" for k in range(8)]
    wr1=[f"ds_write_b128 v3, {vr(ACC[1][k&1]+8*((k>>1)&1)+4*(k>>2),4)} offset:{L_XS+8192+(k&3)*2048+(k>>2)*1024}" for k in range(8)]
    for k,(f,n) in enumerate(work):
        for m in range(2):
            a=vr(ACC[n][m],16)
            P.I(f"v_mfma_f32_32x32x16_bf16 {a}, {ar(8*f+4*m,4)}, {vr(BUF[k%NB],4)}, {a if (n,m) in started else 0}"); started.add((n,m))
        if k==fl2: P.I(f"@wait act6\ns_mov_b64 exec, 1\nbuffer_store_dword v{vONE1}, v{vL16}, {sp(rWS,4)}, s{sFL} offen offset:64 sc1\ns_mov_b64 exec, -1")
        if k==pl2: P.I(f"buffer_load_dword v{vPV}, v{vPA}, {sp(rWS,4)}, s{sPL} offen offset:64 sc1")
        if li==n1: poll_check(P,'p2',2,diag); stamp(P,16,diag)
        if li<len(work): P.extend(load(li)); li+=1
        if k>nA+1 and wr0: P.I(wr0.pop(0))
    P.extend(wr0)
    stamp(P,17,diag)
    GB=44; XF=52; R=[184,216]
    P.I(f"""s_lshl_b32 s{sT0}, s{sW}, 11
v_add_u32 v4, s{sT0}, v{vL16}
s_lshl_b32 s{sT0}, s{sNT}, 15
s_lshl_b32 s{sT1}, s{sMT}, 5
s_add_u32 s{sT0}, s{sT0}, s{sT1}
s_add_u32 s{sT1}, s{sT0}, 32768
s_waitcnt lgkmcnt(0)
s_barrier""")
    def reads(n): return [f"ds_read_b128 {vr(R[n]+8*w+4*q,4)}, v4 offset:{L_XS+w*NS*1024+n*8192+q*1024}" for w in range(4) for q in range(2)]
    def final(n):
        r=R[n]; L=[]
        for k in range(0,8,2): L+=[f"v_pk_add_f32 {vr(r+k,2)}, {vr(r+k,2)}, {vr(r+8+k,2)}"]
        for k in range(0,8,2): L+=[f"v_pk_add_f32 {vr(r+16+k,2)}, {vr(r+16+k,2)}, {vr(r+24+k,2)}"]
        for k in range(0,8,2): L+=[f"v_pk_add_f32 {vr(r+k,2)}, {vr(r+k,2)}, {vr(r+16+k,2)}"]
        for k in range(0,8,2): L+=[f"v_pk_fma_f32 {vr(r+k,2)}, {vr(r+k,2)}, {vr(GB+k,2)}, {vr(XF+8*n+k,2)}"]
        for k in range(0,8,2): L+=[f"v_cvt_pk_bf16_f32 v{8+4*n+k//2}, v{r+k}, v{r+k+1}"]
        L.append(f"buffer_store_dwordx4 {vr(8+4*n,4)}, v5, {sp(rOUT,4)}, s{sT0+n} offen")
        return L
    P.extend(reads(0))
    fill=[f"v_and_b32 v5, 31, v{vLANE}", f"v_lshrrev_b32 v6, 5, v{vLANE}", f"v_lshlrev_b32 v5, 10, v5", f"v_lshl_add_u32 v5, v6, 4, v5"]
    fill+=[f"v_accvgpr_read_b32 v{GB+k}, a{AG+k}" for k in range(8)]
    for k in range(8): fill+=[f"v_accvgpr_read_b32 v{XF+2*k+1}, a{AX+k}"]
    for k in range(8): fill+=[f"v_lshlrev_b32 v{XF+2*k}, 16, v{XF+2*k+1}", f"v_and_b32 v{XF+2*k+1}, 0xffff0000, v{XF+2*k+1}"]
    for k in range(8):
        P.I(wr1[k]); P.extend(fill[:5]); fill=fill[5:]
    P.extend(fill)
    P.I("s_waitcnt lgkmcnt(0)\ns_barrier")
    P.extend(reads(1)); P.extend(final(0)); P.extend(final(1))

def build(P, diag, cfg):
    n='kc_kernel'
    C=PhaseC(cfg)
    entry(P,n,diag); P.extend(c_maps()); P.extend(C.setup())
    srds(P,diag); stamp(P,1,diag)
    C.pre(P,cfg.get('PRE',16))
    wd=wd_load_list(cfg.get('NA',4))
    extra=d_maps()+[f"s_mov_b32 s{sCNT}, 1",f"v_mov_b32 v{vONE1}, 1"]
    P.extend(extra)
    tail=C.run(P,diag,wd,[])
    phase_d(P,cfg,diag,wd,tail)
    if diag: P.I(f"v_writelane_b32 v255, s{sCNT}, 31")
    stamp(P,18,diag); stamp_out(P,1,diag)
    P.I(f"L_{n}_exit:\ns_endpgm")
    poll_retry(P,'p1',0); poll_retry(P,'p2',64)
    return [(n,256,256,LDS_C,512)]
```

```python
WS_EPOCH = 0x0
WS_GBF   = 0x1000
WS_SG    = 0x10000
WS_MG    = 0x80000
WS_FLAG  = 0x40000
WS_FX    = 0x48000
WS_FW    = 0x4A000
WS_XG    = 0x100000
WS_X1B   = 0x400000
WS_WPF   = 0x600000
WS_WDF   = 0xA00000
WS_ACT   = 0xC00000
WS_STAMP = 0x1400000
WS_USED  = 0x2000000
L_C  = 0
CP   = 80
L_CZ = 3840
FP   = 544
L_F  = 4096
L_Y  = 4096
L_KI = 73728
KIP  = 4160
L_RR = L_KI
L_MR = L_RR+16384
L_H  = 107008
HP   = 4608
L_WR = 116224
L_DR = 132608
L_SC = 140800
L_GT = 141056
LDS_A = 141568
HI = [c+128*e for e in range(2) for c in range(8)] + [256+2*c+128*e for e in range(2) for c in range(4)] + [512+4*c+128*e for e in range(4) for c in range(2)] + [1024+128*e for e in range(8)] + [2048]
import os
G1 = int(os.environ.get('G1','2'))
```

```python
import re, subprocess, collections

TRANS = ('v_exp_f32','v_log_f32','v_rcp_f32','v_rsq_f32','v_sqrt_f32','v_sin_f32','v_cos_f32','v_rcp_iflag_f32')
def regs_of(tok):
    tok = tok.strip()
    tok = tok.lstrip('-')
    if tok.startswith('abs('): tok = tok[4:-1]
    if tok.startswith('|'): tok = tok.strip('|')
    m = re.fullmatch(r'([vsa])(\d+)', tok)
    if m: return [(m.group(1), int(m.group(2)))]
    m = re.fullmatch(r'([vsa])\[(\d+):(\d+)\]', tok)
    if m: return [(m.group(1), i) for i in range(int(m.group(2)), int(m.group(3))+1)]
    if tok == 'vcc': return [('s','vcc')]
    if tok in ('vcc_lo','vcc_hi'): return [('s','vcc')]
    if tok == 'exec' or tok in ('exec_lo','exec_hi'): return [('s','exec')]
    if tok == 'm0': return [('s','m0')]
    return []

class Ins:
    __slots__=('text','op','ops','mods','defs','uses','kind','tag','label','target','passes','srcc','size','note','srcab')
    def __init__(self, text, tag=None):
        self.text = text; self.tag = tag; self.label=None; self.target=None; self.passes=0; self.srcc=[]; self.srcab=[]; self.size=None; self.note=None
        t = text.split(';')[0].strip()
        if t.endswith(':'):
            self.label = t[:-1]; self.op='label'; self.kind='label'; self.defs=[]; self.uses=[]; self.ops=[]; self.mods=''
            return
        if t.startswith('.') or t.startswith('@'):
            self.op = t.split()[0]; self.kind='pseudo'; self.defs=[]; self.uses=[]; self.ops=t.split()[1:]; self.mods=''
            return
        sp = t.split(None,1)
        op = sp[0]; rest = sp[1] if len(sp)>1 else ''
        parts=[]; cur=''; d=0
        for ch in rest:
            if ch in '[(': d+=1
            if ch in '])': d-=1
            if ch==',' and d==0: parts.append(cur); cur=''
            else: cur+=ch
        if cur.strip(): parts.append(cur)
        mods=''
        if parts:
            last = parts[-1].strip().split(None,1)
            parts[-1]=last[0]
            if len(last)>1: mods=last[1]
        self.ops=[p.strip() for p in parts]; self.mods=mods
        base = re.sub(r'_(e32|e64|dpp|sdwa)$','',op)
        self.op = base
        R=[regs_of(p) for p in self.ops]
        flat=lambda L:[x for l in L for x in l]
        defs=[]; uses=[]
        if base.startswith('v_mfma'):
            self.kind='mfma'; defs=R[0]; uses=flat(R[1:]); self.srcc=R[3]; self.srcab=R[1]+R[2]
            self.passes = 8 if '32x32x16' in base else 4 if '16x16x32' in base else 2 if '4x4x4' in base else None
            assert self.passes, base
        elif base.startswith(('buffer_','global_')):
            self.kind='vmem'
            islds = ' lds' in (' '+mods) or '_lds_' in base
            if base.startswith(('buffer_wbl2','buffer_inv')): pass
            elif 'load' in base and not islds:
                defs=R[0]; uses=flat(R[1:])
                if 'd16' in base: uses+=R[0]
            elif 'atomic' in base and 'sc0' in mods:
                defs=R[0]; uses=flat(R) if base.startswith('buffer') else flat(R[1:])
            else: uses=flat(R)
            if islds: uses.append(('s','m0'))
        elif base.startswith('ds_'):
            self.kind='ds'
            if base.startswith(('ds_read','ds_bpermute','ds_permute','ds_swizzle')):
                defs=R[0]; uses=flat(R[1:])
                if 'd16' in base: uses+=R[0]
            else: uses=flat(R)
            if 'addtid' in base: uses.append(('s','m0'))
        elif base.startswith(('s_load','s_buffer_load','s_memtime','s_memrealtime')):
            self.kind='smem'; defs=R[0]; uses=flat(R[1:])
        elif base in ('s_waitcnt','s_nop','s_barrier','s_endpgm','s_sleep','s_setprio'):
            self.kind='sopp'
        elif base in ('s_branch',) or base.startswith('s_cbranch'):
            self.kind='branch'; self.target=self.ops[0]
            if 'vcc' in base: uses=[('s','vcc')]
            if 'exec' in base: uses=[('s','exec')]
        elif base.startswith('s_'):
            self.kind='salu'
            if base.startswith(('s_cmp','s_bitcmp')): uses=flat(R)
            else:
                defs=R[0]; uses=flat(R[1:])
                if 'saveexec' in base: defs=defs+[('s','exec')]; uses.append(('s','exec'))
                if base in ('s_addk_i32','s_mulk_i32'): uses+=R[0]
        elif base.startswith('v_'):
            self.kind='valu'
            if base.startswith('v_permlane') and 'swap' in base: defs=R[0]+R[1]; uses=R[0]+R[1]
            elif base in ('v_add_co_u32','v_sub_co_u32','v_addc_co_u32','v_subb_co_u32'): defs=R[0]+R[1]; uses=flat(R[2:])
            elif base=='v_nop': pass
            else:
                defs=R[0]; uses=flat(R[1:])
                if base.startswith(('v_fmac','v_dot2c','v_writelane','v_pk_fmac')) or 'dpp' in op or 'row_' in mods or 'quad_perm' in mods or 'sdwa' in op: uses+=R[0]
                if base.startswith('v_cmpx'): defs=defs+[('s','exec')]
        else:
            raise ValueError('unknown instr '+text)
        self.defs=defs; self.uses=uses
    def states(self):
        if self.kind in ('label','pseudo'): return 0
        if self.op=='s_nop': return int(self.ops[0],0)+1
        return 1
    def is_dpp(self): return self.kind=='valu' and ('row_' in self.mods or 'quad_perm' in self.mods or 'wave_' in self.mods or 'dpp' in self.text.split()[0])
    def is_dot(self): return self.op.startswith('v_dot')

def hazard(p, c):
    need=0
    pd=set(p.defs); cu=set(c.uses); cd=set(c.defs)
    pv = {r for r in pd if r[0] in 'va'}; ps = {r for r in pd if r[0]=='s'}
    if p.kind=='valu':
        if c.kind=='mfma' and pv & cu: need=max(need, 3 if p.is_dot() else 2)
        if p.op in TRANS and c.kind in ('valu','vmem','ds') and pv & cu: need=max(need,1)
        if c.kind=='vmem' and ps & cu: need=max(need,5)
        if c.kind=='valu' and ps & cu:
            need=max(need, 4 if c.op in ('v_readlane_b32','v_writelane_b32') else 2)
        if c.kind in ('salu','branch','smem') and ps & cu: need=max(need,1)
        if c.op in ('v_readlane_b32','v_readfirstlane_b32') and pv & cu: need=max(need,1)
        if c.kind=='valu' and c.is_dpp() and pv & cu: need=max(need,2)
        if c.op.startswith('v_permlane') and pv & cu: need=max(need,2)
        if ('s','exec') in ps:
            if c.kind=='mfma': need=max(need,4)
            if c.kind=='valu' and c.is_dpp(): need=max(need,5)
            if c.op.startswith(('v_permlane','v_readlane','v_readfirstlane','v_writelane')): need=max(need,4)
        if p.is_dot() and pv & (cu|cd) and c.kind in ('valu','vmem','ds'):
            if c.op==p.op and not (pv & set(x for o in c.ops[1:3] for x in regs_of(o))): pass
            else: need=max(need,3)
        if ('sdwa' in p.text or 'op_sel' in p.mods and not p.op.startswith('v_pk_')) and c.kind=='valu' and pv & (cu|cd): need=max(need,1)
    if p.kind=='mfma':
        idx={2:0,4:1,8:2}[p.passes]
        if c.kind=='mfma':
            if pv & set(c.srcab): need=max(need,(5,8,12)[idx])
            if pv & set(c.srcc):
                if list(p.defs)==list(c.srcc) and p.passes==c.passes: need=max(need,(2,0,0)[idx])
                else: need=max(need,(4,6,10)[idx])
            elif pv & cd: need=max(need,(5,8,12)[idx])
        elif c.kind in ('valu','vmem','ds') and pv & (cu|cd): need=max(need,(5,8,12)[idx])
        if c.kind=='valu' and set(p.srcc) & cd: need=max(need,(1,3,7)[idx])
    if p.kind=='vmem' and 'store' in p.op and ('x4' in p.op or 'x3' in p.op):
        data = regs_of(p.ops[0]) if p.op.startswith('buffer') else regs_of(p.ops[1])
        if set(data) & cd: need=max(need, 2 if c.kind=='valu' else 1)
    if p.kind=='salu' and ('s','m0') in ps and c.kind in ('vmem','ds') and ('s','m0') in cu: need=max(need,1)
    return need

class Prog:
    def __init__(self): self.ins=[]
    def I(self, text, tag=None):
        for line in text.split('\n'):
            if line.strip(): self.ins.append(Ins(line.strip(), tag))
    def extend(self, L):
        for x in L:
            if isinstance(x, Ins): self.ins.append(x)
            elif isinstance(x, tuple): self.I(x[0], x[1])
            else: self.I(x)
    def insert_waits(self):
        out=[]; saved=collections.defaultdict(list); seen=set(); loopok=False
        st=[([],[])]
        def need_wait(pred):
            nv=None; nl=None
            for vm,lg in st:
                for i,e in enumerate(vm):
                    if pred(e):
                        n=len(vm)-1-i; nv = n if nv is None else min(nv,n)
                for i,e in enumerate(lg):
                    if pred(e):
                        n=len(lg)-1-i
                        if any(x[2] for x in lg): n=0
                        nl = n if nl is None else min(nl,n)
            return nv,nl
        def apply(nv,nl):
            for k,(vm,lg) in enumerate(st):
                if nv is not None and len(vm)>nv: del vm[:len(vm)-nv]
                if nl is not None and len(lg)>nl:
                    if nl==0 or not any(x[2] for x in lg): del lg[:len(lg)-nl]
        def emit(nv,nl):
            if nv is not None: nv=min(nv,63)
            if nl is not None: nl=min(nl,15)
            t='s_waitcnt'+(f' vmcnt({nv})' if nv is not None else '')+(f' lgkmcnt({nl})' if nl is not None else '')
            if out and out[-1].op=='s_waitcnt' and out[-1].note=='auto':
                pv=re.search(r'vmcnt\((\d+)\)',out[-1].text); pl=re.search(r'lgkmcnt\((\d+)\)',out[-1].text)
                mv = nv if pv is None else (int(pv.group(1)) if nv is None else min(nv,int(pv.group(1))))
                ml = nl if pl is None else (int(pl.group(1)) if nl is None else min(nl,int(pl.group(1))))
                out.pop()
                t='s_waitcnt'+(f' vmcnt({mv})' if mv is not None else '')+(f' lgkmcnt({ml})' if ml is not None else '')
            w=Ins(t); w.note='auto'; out.append(w); apply(nv,nl)
        for x in self.ins:
            if x.kind=='label':
                seen.add(x.label)
                st = st + saved.pop(x.label,[])
                u=[]
                for s in st:
                    if s not in u: u.append(s)
                st=u
                out.append(x); continue
            if x.op=='@wait':
                tags=set(x.ops)
                nv,nl=need_wait(lambda e: e[1] in tags)
                if nv is not None or nl is not None: emit(nv,nl)
                continue
            if x.op=='@loopok': loopok=True; continue
            if x.op=='@forget':
                rs={('v',int(o)) for o in x.ops}
                for vm,lg in st:
                    for i,e in enumerate(vm): vm[i]=(e[0]-rs,e[1],e[2])
                continue
            if x.op=='@reset':
                st=[([],[])]; continue
            if x.kind=='pseudo': out.append(x); continue
            touched=set(x.uses)|set(x.defs)
            if touched:
                if x.kind=='ds' and x.defs and 'd16' in x.op:
                    touched2=set(x.uses)-set(x.defs)
                    nv,_=need_wait(lambda e: e[0] & touched); _,nl=need_wait(lambda e: e[0] & touched2)
                else:
                    nv,nl=need_wait(lambda e: e[0] & touched)
                if nv is not None or nl is not None: emit(nv,nl)
            if x.op=='s_waitcnt':
                pv=re.search(r'vmcnt\((\d+)\)',x.text); pl=re.search(r'lgkmcnt\((\d+)\)',x.text)
                apply(int(pv.group(1)) if pv else None, int(pl.group(1)) if pl else None)
            out.append(x)
            if x.kind=='vmem':
                for vm,lg in st: vm.append((frozenset(x.defs),x.tag,False))
            elif x.kind=='ds':
                for vm,lg in st: lg.append((frozenset(x.defs),x.tag,False))
            elif x.kind=='smem':
                for vm,lg in st: lg.append((frozenset(x.defs),x.tag,True))
            elif x.kind=='branch':
                if x.target in seen and loopok: loopok=False
                elif x.target in seen:
                    for vm,lg in st:
                        assert not any(e[0] for e in vm) and not any(e[0] for e in lg), f'loads pending at backward branch {x.text}'
                else:
                    saved[x.target] += [(list(vm),list(lg)) for vm,lg in st]
                if x.op=='s_branch': st=[]
            elif x.op=='s_endpgm': st=[]
        self.ins=out
    def insert_nops(self, verbose=False):
        total=0
        while True:
            L=self.ins; added=0
            brs=collections.defaultdict(list)
            for x in L:
                if x.kind=='branch': brs[x.target].append(x)
            i=0
            while i<len(L):
                c=L[i]
                if c.kind in ('label','pseudo','sopp'): i+=1; continue
                worst=0; who=None
                stack=[(i-1,0)]; visited=set()
                while stack:
                    j,dist=stack.pop()
                    while j>=0 and dist<13:
                        p=L[j]
                        if p.kind=='label':
                            if (j,dist) in visited: break
                            visited.add((j,dist))
                            for b in brs.get(p.label,[]): stack.append((L.index(b),dist))
                            k=j-1
                            while k>=0 and L[k].kind=='pseudo': k-=1
                            if k>=0 and L[k].op in ('s_branch','s_endpgm'): break
                            j-=1; continue
                        if p.kind!='pseudo':
                            if p.kind in ('valu','mfma','vmem','salu'):
                                h=hazard(p,c)
                                if h-dist>worst: worst=h-dist; who=p
                            dist+=p.states()
                        j-=1
                if worst>0:
                    n=Ins(f's_nop {worst-1}'); n.note='hz'
                    if verbose: print(f'  nop {worst}: {who.text}  ->  {c.text}')
                    L.insert(i,n); added+=worst; i+=1
                i+=1
            total+=added
            if not added: return total
    def text(self):
        out=[]
        for x in self.ins:
            if x.kind=='label' or x.text.startswith('.'): out.append(x.text)
            elif x.op.startswith('@'): continue
            else: out.append('    '+x.text)
        return '\n'.join(out)

_sz={}
def sizes(ins):
    for x in ins:
        if 'L_' in x.text and x.kind=='salu': _sz[x.text.split(';')[0].strip()]=8
    todo=sorted({x.text.split(';')[0].strip() for x in ins if x.kind not in ('label','pseudo','branch')} - set(_sz))
    if todo:
        r=subprocess.run(['llvm-mc','-triple=amdgcn-amd-amdhsa','-mcpu=gfx950','-show-encoding'],input='\n'.join(todo)+'\n',capture_output=True,text=True)
        if r.returncode or r.stderr.strip(): print(r.stderr[:3000]); raise SystemExit('llvm-mc failed')
        enc=[l for l in r.stdout.split('\n') if 'encoding:' in l]
        assert len(enc)==len(todo),(len(enc),len(todo))
        for t,l in zip(todo,enc): _sz[t]=len(l.split('encoding:')[1].split(','))
    for x in ins:
        x.size = 0 if x.kind in ('label','pseudo') else 4 if x.kind=='branch' else _sz[x.text.split(';')[0].strip()]

E64_OK = ('v_mul_f32','v_add_f32','v_sub_f32','v_exp_f32','v_rcp_f32','v_mov_b32','v_lshlrev_b32','v_lshrrev_b32','v_and_b32','v_or_b32','v_add_u32','v_sub_u32',
          'v_sin_f32','v_cos_f32','v_fract_f32','v_sqrt_f32','v_rsq_f32','v_max_f32','v_min_f32','v_cvt_f32_u32','v_cvt_u32_f32','v_xor_b32','v_fmac_f32','v_subrev_u32','v_ashrrev_i32','v_mul_u32_u24','v_cvt_f32_i32','v_max_i32','v_min_i32','v_min_u32','v_max_u32','v_cndmask_b32','v_cmp_eq_u32','v_cmp_ne_u32','v_cmp_gt_u32','v_cmp_lt_u32')
def align8(P):
    sizes(P.ins)
    segs=[[]]
    for x in P.ins:
        if x.kind=='pseudo' and x.op=='.p2align': segs.append([])
        elif x.kind not in ('pseudo','label'): segs[-1].append(x)
    bad=0
    for S in segs:
        INF=10**9; cost=[0,INF]; back=[]
        for x in S:
            flex = x.size==4 and x.kind=='valu' and x.text.split()[0] in E64_OK and not x.is_dpp()
            nc=[INF,INF]; bk=[None,None]
            for par in (0,1):
                if cost[par]>=INF: continue
                for sz in ((4,8) if flex else (x.size,)):
                    c=cost[par]+(100 if (sz>=8 and par) else 0)+(1 if sz!=x.size else 0)
                    np_=(par+sz//4)&1
                    if c<nc[np_]: nc[np_]=c; bk[np_]=(par,sz)
            back.append(bk); cost=nc
        par=0 if cost[0]<=cost[1] else 1
        bad+=cost[par]//100
        for x,bk in zip(reversed(S),reversed(back)):
            par,sz=bk[par]
            if sz!=x.size:
                w=x.text.split(None,1); x.text=w[0]+'_e64 '+w[1]; x.size=8
    return bad

def interleave(main, side, per):
    out=[]; side=list(side); k=0
    def cost(t):
        s=t[0] if isinstance(t,tuple) else t
        o=s.split()[0]
        if o.startswith('@'): return 0
        return 2 if o in TRANS else 1
    budget=0.0
    for m in main:
        out.append(m)
        s=m[0] if isinstance(m,tuple) else m
        if s.startswith('v_mfma'):
            budget+=per
            while k<len(side) and cost(side[k])<=budget+1e-9:
                budget-=cost(side[k]); out.append(side[k]); k+=1
    return out, side[k:]

def gap_report(P, start, end, shape='32x32x16', cap=6):
    on=False; cur=None; over=0; n=0; hist=collections.Counter()
    for x in P.ins:
        if x.op=='@mark': on = True if x.ops[0]==start else False if x.ops[0]==end else on; cur=None; continue
        if not on or x.kind in ('label','pseudo'): continue
        if x.kind=='mfma':
            if cur is not None: hist[cur]+=1; over+=max(0,cur-cap); n+=1
            cur = 0 if shape in x.op else None
        elif cur is not None:
            cur += 2 if (x.op in TRANS or x.op=='s_barrier') else x.states()
    print(f'gaps {start}: n={n} overflow slots={over} hist={sorted(hist.items())}')
```

```python
from prog import *
from layout import *
import struct
def f32(x): return struct.unpack('<I',struct.pack('<f',x))[0]
LOG2E = 0x3fb8aa3b
XIN = 0
sX,sARE,sAIM,sBRE,sBIM,sCRE,sCIM,sLDT,sDSK,sBX,sWG,sWU,sWD,sC,sWM,sOUT,sDBG,sWS = [8+2*i for i in range(18)]
rR,rWG,rWU,rWD,rOUT,rWS,rWJ = 44,48,52,56,60,64,68
sXCD,sIDX,sP,sW,sTAG,sLD,sDS = 72,73,74,75,76,77,78
sT0,sT1,sT2,sT3,sT4,sT5 = 80,81,82,83,84,85
sWO,sWST,sWA = 86,87,88
sCG,sKE,sFS,sCNT = 26,27,97,98
def sp(a,n=2): return f"s[{a}:{a+n-1}]"
def vr(a,n): return f"v[{a}:{a+n-1}]"
def ar(a,n): return f"a[{a}:{a+n-1}]"
def mksrd(d,b,size):
    return [f"s_mov_b32 s{d}, s{b}", f"s_and_b32 s{d+1}, s{b+1}, 0xffff", f"s_mov_b32 s{d+2}, {size}", f"s_mov_b32 s{d+3}, 0x20000"]
vLANE = 1
vT16,vMC,vMW = 12,13,14
vPAR = 16
vTAB = 24
vRA = 32
vROLE = 40
vFG = 120
vPOLL = 160
vPOL2 = 152
vXF = 192
vHF = 208
vKA,vUA,vYW,vYR,vWRA,vXO,vGR,vL16 = 224,225,226,227,228,229,230,231
vMOD = 232
vKF,vKC,vGW,vSEL1,vSEL2 = 240,241,242,243,244

ONLY=None
import os
LATE0=int(os.environ.get('LATE0','0'))
JIT=os.environ.get('JIT','')
def stamp(P, n, diag):
    if JIT:
        P.I(f"s_waitcnt lgkmcnt(0)\ns_memtime s[100:101]\ns_waitcnt lgkmcnt(0)\ns_cselect_b32 s5, 1, 0\ns_lshr_b32 s100, s100, 3\ns_and_b32 s100, s100, {JIT}\ns_cbranch_scc1 L_jit{len(P.ins)}\ns_sleep 40\nL_jit{len(P.ins)}:\ns_cmp_lg_u32 s5, 0")
    if diag and (ONLY is None or n in ONLY): P.I(f"s_memrealtime s[4:5]\ns_memtime s[100:101]\ns_waitcnt lgkmcnt(0)\nv_writelane_b32 v255, s4, {n}\nv_writelane_b32 v255, s100, {32+n}")
def stamp0_issue(P, diag):
    if diag: P.I("v_mov_b32 v255, 0\ns_memrealtime s[4:5]\ns_memtime s[100:101]")
def stamp0_commit(P, diag):
    if diag: P.I("v_writelane_b32 v255, s4, 0\nv_writelane_b32 v255, s100, 32")
def stamp_out(P, kidx, diag):
    if diag:
        P.I(f"""s_lshl_b32 s4, s2, 10
s_add_u32 s4, s4, {WS_STAMP + kidx*0x40000}
v_lshlrev_b32 v2, 2, v0
buffer_store_dword v255, v2, {sp(rWS,4)}, s4 offen""")

def bf16_round(l):
    u=f32(float(l)); u=(u+0x7fff+((u>>16)&1))&0xffff0000
    return int(struct.unpack('<f',struct.pack('<I',u))[0])
def table_words():
    rec=[]
    for T in range(256):
        a=[]
        for j in range(11):
            lag=2047-8*T-j
            if lag<0: a.append(L_CZ); continue
            lam=bf16_round(lag); b=(lam>>3)&15; i=HI.index(lam-8*b)
            a.append(L_C+i*CP+4*b)
        a.append(0)
        w=T>>6; lane=T&63; ch=w>>1; vh=w&1
        ka_=L_KI+ch*4*KIP+(lane&3)*KIP+2*(2044-16)-3584-192-256*vh+(lane&48)-2*(lane&12)
        ua_=L_H+ch*HP+448-192-256*vh+32*(lane&15)+(lane&48)
        rec.append([a[2*k]|(a[2*k+1]<<16) for k in range(6)]+[ka_,ua_])
    return [rec[T][4*q+k] for q in range(2) for T in range(256) for k in range(4)]

def entry(P, name, diag, nlines, perm):
    P.I(f".globl {name}\n.p2align 8\n.type {name},@function\n{name}:\n@reset")
    ng=(nlines+15)//16; assert ng&(ng-1)==0 and ng<=32
    if LATE0: P.I(f"s_and_b32 s4, s2, 7\ns_cbranch_scc1 L_nolate\ns_sleep {LATE0}\nL_nolate:")
    P.I(f"""s_cmp_ge_u32 s2, 256
s_cbranch_scc1 L_{name}_exit
s_load_dwordx16 s[8:23], s[0:1], 0
s_load_dwordx16 s[24:39], s[0:1], 64
s_load_dwordx4 s[40:43], s[0:1], 128
s_getpc_b64 s[6:7]
L_pc:
s_mov_b64 exec, -1
v_lshrrev_b32 v2, 6, v0
v_and_b32 v{vLANE}, 63, v0
s_lshr_b32 s{sIDX}, s2, 3
v_readfirstlane_b32 s{sW}, v2
s_and_b32 s{sT0}, s{sIDX}, {ng-1}
s_lshl_b32 s{sT0}, s{sT0}, 11
v_lshl_add_u32 v3, v{vLANE}, 5, s{sT0}
s_cmp_lg_u32 s{sW}, 3
s_cbranch_scc1 L_nopf
global_load_dword v15, v3, s[6:7]
L_nopf:""")
    stamp0_issue(P,diag)
    P.I(f"s_and_b32 s{sXCD}, s2, 7")
    if perm: P.I(f"s_lshl_b32 s{sXCD}, s{sXCD}, 2\ns_lshr_b32 s{sXCD}, {hex(sum(v<<(4*k) for k,v in enumerate(perm)))}, s{sXCD}\ns_and_b32 s{sXCD}, s{sXCD}, 7")
    P.I(f"""s_lshl_b32 s{sP}, s{sXCD}, 5
s_add_u32 s{sP}, s{sP}, s{sIDX}""")

def role_addr(P, loc=0):
    P.I(f"""s_cmp_eq_u32 s{sW}, 0
s_cselect_b32 s{sT3}, 8, 1
s_lshl_b32 s{sT2}, s{sT3}, 10
s_lshl_b32 s{sT3}, s{sT3}, 7
s_and_b32 s{sT4}, s{sP}, 7
s_lshl_b32 s{sT4}, s{sT4}, 7""")
    if loc: P.I(f"s_lshl_b32 s{sT0}, s{sIDX}, 9\ns_add_u32 s{sT0}, s{sT0}, s{sXCD}\ns_lshl_b32 s{sT0}, s{sT0}, 7")
    else: P.I(f"s_lshr_b32 s{sT0}, s{sP}, 3\ns_lshl_b32 s{sT0}, s{sT0}, 16\ns_add_u32 s{sT0}, s{sT0}, s{sT4}")
    P.I(f"""s_lshl_b32 s{sT1}, s{sP}, 13
s_cmp_eq_u32 s{sW}, 0
s_cselect_b32 s{sT0}, s{sT0}, s{sT1}
s_and_b32 s{sT5}, s{sW}, 1
s_sub_u32 s92, 7, s{sT5}
s_lshr_b32 s{sT1}, s{sP}, s92
s_lshl1_add_u32 s{sT1}, s{sT5}, s{sT1}
s_lshl_b32 s{sT1}, s{sT1}, 10
s_add_u32 s{sT4}, s{sT4}, s{sT1}
s_and_b32 s{sT1}, s{sP}, 0xf8
s_add_u32 s92, s{sT5}, 2
s_lshl_b32 s{sT1}, s{sT1}, s92
s_and_b32 s{sT5}, s{sT1}, 511
s_mul_i32 s{sT1}, s{sT5}, 6144
s_add_u32 s{sT1}, s{sT1}, s{sT4}
s_mov_b32 s{sT4}, 3145728
s_cmp_lt_u32 s{sW}, 2
s_cselect_b32 s94, s{sT0}, s{sT1}
s_cselect_b32 s{sT2}, s{sT2}, 6144
s_cselect_b32 s79, s{sT3}, {8*6144}
s_cselect_b32 s{rR+2}, 2097152, s{sT4}
s_mov_b32 s{rR+3}, 0x20000
v_lshrrev_b32 v3, 3, v{vLANE}
v_mul_u32_u24 v3, s{sT2}, v3
v_lshrrev_b32 v4, 2, v{vLANE}
v_and_b32 v4, 4, v4
v_and_b32 v5, 7, v{vLANE}
v_xor_b32 v4, v4, v5
v_lshl_add_u32 v22, v4, 4, v3
v_xor_b32 v23, 32, v22
s_lshl_b32 s3, s{sW}, 13
s_add_u32 s3, s3, {L_RR}
v_add_u32 v5, s{sT5}, v{vLANE}
v_and_b32 v5, 511, v5
v_lshlrev_b32 v5, 1, v5
s_lshl_b32 s{sT5}, s{sP}, 9
v_lshl_add_u32 v2, v0, 1, s{sT5}""")
    for i in range(6): P.I(f"v_mov_b32 v{vPAR+i}, 0")
    P.I(f"v_mov_b32 v{vROLE}, 0\ns_lshl_b32 s93, s{sP}, 2")
def param_loads(P, NT):
    P.extend([f"global_load_short_d16_hi v{vPAR+i}, v2, {sp(b)} {NT}" for i,b in enumerate((sARE,sAIM,sBRE,sBIM,sCRE,sCIM))])
def early_loads(P, NT, pfirst):
    if pfirst: param_loads(P,NT)
    P.I(f"""s_load_dword s{sTAG}, {sp(sWS)}, {WS_EPOCH}
s_load_dword s{sLD}, {sp(sLDT)}, s93
s_load_dword s{sDS}, {sp(sDSK)}, s93
s_cmp_lt_u32 s{sW}, 2
s_cselect_b64 {sp(rR)}, {sp(sX)}, {sp(sWM)}
s_and_b32 s{rR+1}, s{rR+1}, 0xffff""")
    P.I(f"global_load_short_d16_hi v{vROLE}, v5, {sp(sC)}")
    P.I(f"""s_add_u32 s6, s6, L_table-L_pc+4096
s_addc_u32 s7, s7, 0
v_lshlrev_b32 v{vT16}, 4, v0""")
def role_loads(P, XNT, late, sd=0):
    lbl='L_rlb' if late else 'L_rla'
    P.I(f"s_cmp_eq_u32 s{sW}, 3\ns_cbranch_scc{0 if late else 1} {lbl}")
    if sd and not late:
        P.I(f"s_cmp_lg_u32 s{sW}, 1\ns_cbranch_scc1 L_rl0")
        for u in range(8): P.I(f"buffer_load_dwordx4 {vr(vROLE+40+4*u,4)}, v22, {sp(rR,4)}, s94 offen offset:{u*128} {XNT}")
        P.I("@forget "+" ".join(str(r) for r in range(vROLE+40,vROLE+72))+f"\ns_branch {lbl}\nL_rl0:")
    for u in range(8):
        if u==4 and not late: P.I(f"s_cmp_eq_u32 s{sW}, 2\ns_cbranch_scc1 {lbl}")
        P.I(f"s_add_u32 m0, s3, {u*1024}")
        P.I(f"s_add_u32 s94, s94, s79" if u else "s_nop 0")
        P.I(f"buffer_load_dwordx4 v{22+(u&1)}, {sp(rR,4)}, s94 offen {XNT} lds", tag='rr')
    P.I(f"{lbl}:")
def table_loads(P):
    P.I(f"global_load_dwordx4 {vr(vTAB,4)}, v{vT16}, s[6:7] offset:-4096\nglobal_load_dwordx4 {vr(vTAB+4,4)}, v{vT16}, s[6:7]")

def setup(P, nowd=False, X='', wmap=0, defer=0):
    D=Prog() if defer else P; P0=P
    P.extend(mksrd(rWS,sWS,WS_USED))
    P.I(f"{f's_cmp_lg_u32 s{sXCD}, 0' if wmap>=2 else f's_cmp_lt_u32 s{sIDX}, 28'}\ns_cselect_b32 s{sT0}, 1835008, 0\ns_cselect_b32 s{sT1}, {WS_USED}, 0")
    P.extend(mksrd(rWD,sWD,f"s{sT0}"))
    for r,b in ((rWG,sWG),(rWU,sWU)): D.extend(mksrd(r,b,f"s{rWD+2}"))
    P.extend(mksrd(rWJ,sWS,f"s{sT1}"))
    if 'w' in X: P.I(f"s_mov_b32 s{rWG+2}, 0\ns_mov_b32 s{rWU+2}, 0")
    if 'm' in X: P.I(f"s_mov_b32 s{rR+2}, 0")
    if 'd' in X: P.I(f"s_mov_b32 s{rWD+2}, 0")
    if 's' in X: P.I(f"s_min_u32 s{rWJ+2}, s{rWJ+2}, {WS_XG}")
    assert not (defer and (wmap>=2 or X))
    P=D
    if wmap>=2:
        P.I(f"s_max_u32 s{sFS}, s{sP}, 32\ns_sub_u32 s{sFS}, s{sFS}, 32")
        if wmap==2: P.I(f"s_lshr_b32 s{sCG}, s{sFS}, 3\ns_and_b32 s{sKE}, s{sFS}, 7")
        else: P.I(f"s_mul_i32 s{sKE}, s{sFS}, 586\ns_lshr_b32 s{sKE}, s{sKE}, 14\ns_mul_i32 s{sCG}, s{sKE}, 28\ns_sub_u32 s{sCG}, s{sFS}, s{sCG}")
    elif wmap: P.I(f"s_mov_b32 s{sCG}, s{sIDX}\ns_mov_b32 s{sKE}, s{sXCD}")
    else: P.I(f"""s_and_b32 s{sCG}, s{sXCD}, 3
s_mul_i32 s{sCG}, s{sCG}, 7
s_lshr_b32 s{sT0}, s{sIDX}, 2
s_add_u32 s{sCG}, s{sCG}, s{sT0}
s_and_b32 s{sKE}, s{sXCD}, 4
s_and_b32 s{sT0}, s{sIDX}, 3
s_add_u32 s{sKE}, s{sKE}, s{sT0}""")
    P.I(f"""s_lshl2_add_u32 s{sT0}, s{sCG}, s{sW}
s_mul_i32 s{sT1}, s{sT0}, 147
s_lshr_b32 s{sT1}, s{sT1}, 10
s_mul_i32 s{sT2}, s{sT1}, 7
s_sub_u32 s{sT0}, s{sT0}, s{sT2}
s_mul_i32 s{sT1}, s{sT1}, 231
s_cmp_lt_u32 s{sT0}, {G1}
s_cselect_b32 s{sT2}, {G1}, 1
s_cselect_b32 s{sT3}, 1, 33
s_mul_i32 s{sT0}, s{sT0}, s{sT3}
s_add_u32 s{sT0}, s{sT0}, s{sT1}
s_lshl_b32 s{sT0}, s{sT0}, 10
s_add_u32 s{sT0}, s{sT0}, {WS_WPF}
s_lshl_b32 s{sWST}, s{sT2}, 10
s_mul_i32 s{sT3}, s{sWST}, s{sKE}
s_lshl2_add_u32 s{sWO}, s{sT3}, s{sT0}
s_lshl_b32 s{sT2}, s{sT2}, 15
s_add_u32 s{sWA}, s{sT2}, s{sT0}
s_lshl_b32 s{sT0}, s{sKE}, 7
s_add_u32 s{sWA}, s{sWA}, s{sT0}
s_mul_i32 s{sT0}, s{sKE}, {64*3584}
s_lshl_b32 s{sT1}, s{sCG}, 7
s_add_u32 s90, s{sT0}, s{sT1}""")
    P=P0
    L=vLANE
    P.I(f"""v_lshlrev_b32 v{vL16}, 4, v{L}
v_and_b32 v2, 15, v{L}
v_and_b32 v3, 48, v{L}
v_lshrrev_b32 v4, 4, v{L}
v_lshrrev_b32 v5, 5, v{L}
v_and_b32 v6, 3, v{L}
s_mul_i32 s{sT2}, s{sW}, 10240
s_add_u32 s{sT2}, s{sT2}, {L_Y}
v_mul_u32_u24 v7, 320, v4
v_lshl_add_u32 v7, v2, 4, v7
v_add_u32 v{vYW}, s{sT2}, v7
v_lshrrev_b32 v7, 5, v0
v_mul_u32_u24 v7, 1280, v7
v_and_b32 v8, 1, v0
v_mul_u32_u24 v9, 640, v8
v_bfe_u32 v10, v0, 1, 4
v_lshl_add_u32 v9, v10, 4, v9
v_add_u32 v{vYR}, v7, v9
v_lshrrev_b32 v7, 2, v0
{f"s_and_b32 s{sT2}, s{sP}, 7" if XIN else ""}
{f"v_xor_b32 v7, s{sT2}, v7" if XIN else ""}
v_lshlrev_b32 v7, {7 if XIN else 15}, v7
v_lshl_add_u32 v{vXO}, v6, 4, v7
v_mul_u32_u24 v7, {FP}, v2
v_add_u32 v7, v7, v3
v_add_u32 v{vKF}, {L_F}, v7
v_mul_u32_u24 v7, {CP}, v2
s_mul_i32 s{sT2}, s{sW}, {16*CP}
v_add3_u32 v{vKC}, v7, v3, s{sT2}
v_bfe_u32 v7, v{L}, 2, 2
v_cvt_f32_u32 v{vSEL2}, v5
v_and_b32 v9, 31, v{L}
v_lshlrev_b32 v{vMC}, 12, v9
v_and_b32 v9, 8, v{L}
v_lshl_add_u32 v9, v9, 1, v2
v_lshlrev_b32 v{vSEL1}, 12, v9
v_lshl_add_u32 v9, v5, 3, v6
v_bfe_u32 v10, v{L}, 2, 3
v_lshlrev_b32 v11, 4, v10
v_lshl_add_u32 v{vMW}, v9, 12, v11
s_lshl_b32 s{sT2}, s{sW}, 6
s_add_u32 s{sT2}, s{sT2}, {L_GT+256}
v_lshl_add_u32 v10, v10, 3, s{sT2}
v_lshlrev_b32 v11, 8, v5
v_sub_u32 v{vGW}, v10, v11
v_lshlrev_b32 v10, 5, v5
v_add_u32 v{vGR}, {L_GT}, v10
v_and_b32 v9, 1, v4
v_lshl_add_u32 v10, v9, 1, v5
v_lshl_add_u32 v10, v10, 3, v7
v_lshl_add_u32 v10, v10, 1, v9
v_bfe_u32 v11, v{L}, 3, 1
v_lshl_add_u32 v10, v10, 1, v11
v_xor_b32 v10, s{sW}, v10
v_lshl_add_u32 v10, v10, 1, v8
v_bfe_u32 v11, v{L}, 1, 1
v_lshl_add_u32 v10, v10, 1, v11
v_lshlrev_b32 v10, 3, v10
v_add_u32 v{vWRA}, {L_WR}, v10""")
    P.I(f"""v_mul_u32_u24 v7, {HP}, v5
v_and_b32 v9, 31, v{L}
v_min_u32 v9, 29, v9
v_lshl_add_u32 v7, v9, 4, v7
v_add_u32 v7, {L_H}, v7
v_cmp_gt_u32 vcc, 64, v0
v_mov_b32 v9, {L_CZ}
v_mov_b32 v{vFG}, 0
v_cndmask_b32 v7, v9, v7, vcc
v_mov_b32 v{vFG+1}, 0
v_mov_b32 v{vFG+2}, 0
v_mov_b32 v{vFG+3}, 0
ds_write_b128 v7, {vr(vFG,4)}""")
    A0=vRA
    P.I(f"""v_lshrrev_b32 v2, 3, v{L}
v_and_b32 v3, 2, v2
v_mul_u32_u24 v2, 3584, v2
v_and_b32 v4, 7, v{L}
v_xor_b32 v3, v3, v4
v_xor_b32 v4, 4, v3
v_lshl_add_u32 v{A0+2}, v3, 4, v2
v_lshl_add_u32 v{A0+3}, v4, 4, v2
v_and_b32 v8, 1, v{L}
v_bfe_u32 v7, v{L}, 1, 3
v_mul_u32_u24 v7, {KIP}, v7
v_lshl_add_u32 v7, v8, 4, v7
v_add_u32 v{A0+1}, {L_KI+4096}, v7
""")
    if not nowd: P.I(f"""v_lshrrev_b32 v2, 2, v{L}
v_and_b32 v5, 3, v{L}
v_lshlrev_b32 v5, 4, v5
v_lshl_add_u32 v{A0+4}, v2, 10, v5
v_lshrrev_b32 v6, 5, v{L}
v_and_b32 v7, 3, v2
v_lshl_add_u32 v6, v6, 3, v7
v_bfe_u32 v7, v{L}, 4, 1
v_lshl_add_u32 v6, v6, 1, v7
v_lshl_add_u32 v6, v6, 1, v8
v_bfe_u32 v7, v{L}, 1, 1
v_lshl_add_u32 v6, v6, 1, v7
v_lshlrev_b32 v6, 3, v6
v_add_u32 v{A0}, {L_DR}, v6
{"" if wmap>=2 else f"s_mul_i32 s{sFS}, s{sXCD}, 28"}
{"" if wmap>=2 else f"s_add_u32 s{sFS}, s{sFS}, s{sIDX}"}
s_lshr_b32 s{sT2}, s{sFS}, 1
s_lshl_b32 s{sT2}, s{sT2}, 14
s_and_b32 s{sT1}, s{sFS}, 1
s_lshl_b32 s{sT1}, s{sT1}, 9
s_add_u32 s91, s{sT2}, s{sT1}""")
    return [x.text for x in D.ins] if defer else []

def x_jobs(P, PUB, diag, loc=0):
    R=vROLE; G=vROLE+32; L=vLANE
    P.I(f"s_cmp_eq_u32 s{sW}, 2\ns_cbranch_scc1 L_rj2\ns_cmp_eq_u32 s{sW}, 1\ns_cbranch_scc1 L_rj1")
    P.I(f"""v_and_b32 v2, 7, v{L}
v_lshrrev_b32 v3, 3, v{L}
v_and_b32 v4, 2, v2
v_lshlrev_b32 v4, 1, v4
v_xor_b32 v4, v4, v3
v_lshlrev_b32 v4, 4, v4
v_lshl_add_u32 v4, v2, 7, v4
v_add_u32 v4, {L_RR}, v4
v_xor_b32 v5, 32, v4
v_mul_u32_u24 v3, {4*12288}, v3
v_lshl_add_u32 v2, v2, 4, v3
{f"s_mov_b32 s{sT0}, s{sXCD}" if loc else f"s_and_b32 s{sT0}, s{sP}, 7"}
s_mul_i32 s{sT0}, s{sT0}, {32*12288}
{f"s_lshl_b32 s{sT1}, s{sIDX}, 3" if loc else f"s_and_b32 s{sT1}, s{sP}, 0xf8"}
s_lshl4_add_u32 s{sT0}, s{sT1}, s{sT0}
s_add_u32 s{sT0}, s{sT0}, {WS_XG}""")
    if LB: epoch_sync(P); kgen_init(P,2)
    for k in range(12): P.I(f"v_mov_b32 v{G+4*k+3}, s{sTAG}")
    if diag and ONLY and 27 in ONLY:
        for z,cn in ((25,63),(24,16),(27,10),(28,6),(29,2)): P.I(f"s_waitcnt vmcnt({cn})"); stamp(P,z,diag)
    P.I(f"s_waitcnt vmcnt({JW})"); stamp(P,2,diag)
    for r in range(8): P.I(f"ds_read_b128 {vr(R+4*r,4)}, v{4+(r&1)} offset:{r*1024}")
    for g in range(3):
        for j in range(4):
            k=g*4+j
            for e in range(3):
                if 3*g+e<8: P.I(f"v_mov_b32 v{G+4*k+e}, v{R+4*(3*g+e)+j}")
            P.I(f"s_add_u32 s{sT1}, s{sT0}, {j*12288+g*4096}")
            P.I(f"buffer_store_dwordx4 {vr(G+4*k,4)}, v2, {sp(rWS,4)}, s{sT1} offen {'' if loc==1 else PUB}")
    P.I(f"s_waitcnt vmcnt(12)\ns_branch L_xje\nL_rj1:")
    P.I(f"""v_mov_b32 v2, 0
v_mov_b32 v3, 0
v_mov_b32 v4, 0
v_mov_b32 v5, 0
s_mov_b32 s{sT1}, 0x3f803f80
v_add_u32 v6, {L_RR+8192}, v{vL16}
v_mul_u32_u24 v8, 96, v{L}
v_lshlrev_b32 v9, {4 if SGP else 12}, v{L}
s_lshl_b32 s{sT0}, s{sP}, {SGP or 4}
s_add_u32 s{sT0}, s{sT0}, {WS_SG}""")
    if LB: epoch_sync(P)
    P.I(f"v_mov_b32 v{G+3}, s{sTAG}")
    if SD: R=vROLE+40
    else:
        P.I(f"s_waitcnt vmcnt({JW})"); stamp(P,2,diag)
        for u in range(8): P.I(f"ds_read_b128 {vr(R+4*u,4)}, v6 offset:{u*1024}")
    for k in range(32):
        if SD and k%8==0: P.I(f"s_waitcnt vmcnt({(8 if JW else 2)+6-k//4})")
        P.I(f"v_dot2c_f32_bf16 v{2+(k&1)}, s{sT1}, v{R+k}\nv_dot2c_f32_bf16 v{4+(k&1)}, v{R+k}, v{R+k}")
    P.I("v_add_f32 v2, v2, v3\nv_add_f32 v4, v4, v5")
    for m in ("quad_perm:[1,0,3,2]","quad_perm:[2,3,0,1]","row_half_mirror"):
        P.I(f"v_add_f32_dpp v2, v2, v2 {m} row_mask:0xf bank_mask:0xf\nv_add_f32_dpp v4, v4, v4 {m} row_mask:0xf bank_mask:0xf")
    P.I(f"""v_mul_f32 v2, 0x3b000000, v2
v_mul_f32 v4, 0x3b000000, v4
v_fma_f32 v4, -v2, v2, v4
v_max_f32 v4, 0, v4
v_cvt_pk_bf16_f32 v4, v4, v4
v_and_b32 v4, 0xffff0000, v4
v_add_f32 v4, 0x3727c5ac, v4
v_cvt_pk_bf16_f32 v4, v4, v4
v_and_b32 v4, 0xffff0000, v4
v_sqrt_f32 v4, v4
v_cvt_pk_bf16_f32 v2, v2, v4
ds_bpermute_b32 v{G}, v8, v2
ds_bpermute_b32 v{G+1}, v8, v2 offset:32
ds_bpermute_b32 v{G+2}, v8, v2 offset:64
s_waitcnt lgkmcnt(0)
s_mov_b64 exec, {(1<<(1<<(SGP-4)))-1 if SGP else 7}
buffer_store_dwordx4 {vr(G,4)}, v9, {sp(rWS,4)}, s{sT0} offen {PUB}
s_mov_b64 exec, -1
s_waitcnt vmcnt(1)
s_branch L_xje
{".p2align 12" if PG0 else ""}
{"L_page:" if PG0 else ""}
L_rj2:""")
    mod_job(P,PUB,diag,1)
    P.I("s_waitcnt vmcnt(1)")
    P.I("L_xje:")
def mod_job(P, PUB, diag, nks):
    R=vROLE; L=vLANE; A0=vRA; w=nks+1
    assert L_MR%128==0
    P.I(f"""v_lshrrev_b32 v2, 4, v{L}
v_bfe_u32 v3, v{L}, 2, 2
v_lshl_add_u32 v4, v2, 3, v3
v_bfe_u32 v3, v{L}, 3, 1
v_lshl_add_u32 v4, v4, 1, v3
v_and_b32 v3, 1, v2
v_lshl_add_u32 v4, v4, 1, v3
v_and_b32 v3, 3, v{L}
v_lshl_add_u32 v4, v4, 2, v3
v_lshlrev_b32 v4, 3, v4
v_add_u32 v8, {L_RR+w*8192}, v4
v_xor_b32 v9, 32, v8
v_xor_b32 v10, 64, v8
v_xor_b32 v11, 96, v8
v_bfe_u32 v4, v{L}, 1, 2
v_lshl_add_u32 v4, v4, 2, v2
v_and_b32 v3, 1, v{L}
v_lshl_add_u32 v4, v4, 1, v3
v_lshlrev_b32 v{A0+5}, 4, v4
s_mov_b32 s{sT0}, {L_SC+(w-2)*128}
v_lshl_add_u32 v6, v{L}, 1, s{sT0}
v_and_b32 v7, 48, v{L}
v_add_u32 v7, s{sT0}, v7
s_lshl_b32 s{sT0}, s{sP}, 9
s_add_u32 s99, s{sT0}, {WS_MG+(w-2)*0x20000}
s_mov_b32 s{sT0}, 0xaaaaaaaa
s_mov_b32 s{sT1}, 0xaaaaaaaa
s_mov_b32 s{sT2}, 0xcccccccc
s_mov_b32 s{sT3}, 0xcccccccc
s_mov_b32 s{sT4}, 0xf0f0f0f0
s_mov_b32 s{sT5}, 0xf0f0f0f0""")
    if nks==1 and LB: epoch_sync(P)
    if nks==1: P.I(f"s_waitcnt vmcnt({12 if JW else 6})")
    P.I(f"""v_mul_f32 v4, 0xbfb8aa3b, v{R}
v_exp_f32 v4, v4
v_add_f32 v4, 1.0, v4
v_rcp_f32 v4, v4
v_mul_f32 v2, v{R}, v4
v_cvt_pk_bf16_f32 v2, v2, v2
ds_write_b16 v6, v2""")
    for ks in range(nks): P.I(f"ds_read_b128 {vr(R+4*ks,4)}, v7 offset:{ks*64}")
    P.I(f"s_waitcnt vmcnt({JW})" if nks==1 else "@wait rr"); stamp(P,2,diag)
    A=R+16; ACC=R+16+32
    seq=[(ks,ct) for ks in range(nks) for ct in range(4)]
    for n,(ks,ct) in enumerate(seq):
        for hf in range(2): P.I(f"ds_read_b64_tr_b16 {vr(A+4*n+2*hf,2)}, v{8+ct} offset:{ks*4096+hf*512}")
    for n,(ks,ct) in enumerate(seq):
        P.I(f"v_mfma_f32_16x16x32_bf16 {vr(ACC+4*ct,4)}, {vr(A+4*n,4)}, {vr(R+4*ks,4)}, {vr(ACC+4*ct,4) if ks else 0}")
    P.I(f"v_mov_b32 v{R+3}, s{sTAG}")
    for ct in range(4):
        for e in range(2): P.I(f"v_cndmask_b32 v{A+2*ct+e}, v{ACC+4*ct+e}, v{ACC+4*ct+2+e}, {sp(sT0)}")
    for c2 in range(2):
        for e in range(2): P.I(f"v_cndmask_b32 v{A+8+2*c2+e}, v{A+4*c2+e}, v{A+4*c2+2+e}, {sp(sT2)}")
    for e in range(2): P.I(f"v_cndmask_b32 v{R+e}, v{A+8+e}, v{A+10+e}, {sp(sT4)}")
    P.I(f"""s_mov_b32 exec_lo, 0x00ff00ff
s_mov_b32 exec_hi, 0x00ff00ff
buffer_store_dwordx4 {vr(R,4)}, v{A0+5}, {sp(rWS,4)}, s99 offen {PUB}
s_mov_b64 exec, -1""")
def raw_wd_loads(P, NT):
    P.I(f"s_lshl_b32 s{sT0}, s{sW}, 11\ns_lshl_b32 s{sT1}, s{sW}, 7\ns_add_u32 m0, s{sT0}, {L_DR}\ns_add_u32 s{sT1}, s{sT1}, s91")
    P.I(f"buffer_load_dwordx4 v{vRA+4}, {sp(rWD,4)}, s{sT1} offen {NT} lds", tag='dr')
    P.I(f"s_add_u32 m0, s{sT0}, {L_DR+1024-64}\nv_add_u32 v245, s{sT0}, v{vRA}")
    P.I(f"buffer_load_dwordx4 v{vRA+4}, {sp(rWD,4)}, s{sT1} offen offset:64 {NT} lds", tag='dr')
PRE_S=0
def wd_scalars(d):
    return f"""s_and_b32 s{d}, s{sFS}, 1
s_lshl2_add_u32 s{d}, s{d}, s{sW}
s_mul_i32 s{d}, s{d}, {2*112}
s_lshr_b32 s{d+1}, s{sFS}, 1
s_add_u32 s{d}, s{d}, s{d+1}
s_lshl_b32 s{d}, s{d}, 10
s_add_u32 s{d}, s{d}, {WS_WDF}
s_add_u32 s{d+1}, s{d}, {112*1024}""".split('\n')
def w_scalars(): return [f"s_mul_i32 s95, s{sW}, {16*3584}", "s_add_u32 s95, s95, s90", f"s_lshl_b32 s96, s{sW}, 12"]
def wd_job(P, ST):
    A=vHF+8; d=22 if PRE_S else sT0
    P.I("@wait dr")
    for f in range(2):
        for hf in range(2): P.I(f"ds_read_b64_tr_b16 {vr(A+4*f+2*hf,2)}, v245 offset:{f*1024+hf*256}")
    if not PRE_S: P.extend(wd_scalars(d))
    for f in range(2):
        P.I(f"buffer_store_dwordx4 {vr(A+4*f,4)}, v{vL16}, {sp(rWJ,4)}, s{d+f} offen {ST}", tag='wdst')
def raw_w_loads(P, NT):
    if not PRE_S: P.extend(w_scalars())
    for q in range(2):
        for mat,r in ((0,rWG),(1,rWU)):
            P.I(f"s_add_u32 m0, s96, {L_WR+mat*2048+q*1024}")
            P.I(f"s_add_u32 s95, s95, {8*3584}" if (q and not mat) else "s_nop 0")
            P.I(f"buffer_load_dwordx4 v{vRA+2+mat}, {sp(r,4)}, s95 offen {NT} lds", tag='wr')

def cmul(o,a,b,t):
    return [f"v_pk_mul_f32 {vr(t,2)}, {vr(a,2)}, {vr(b,2)} op_sel_hi:[0,1]",
            f"v_pk_fma_f32 {vr(o,2)}, {vr(a,2)}, {vr(b,2)}, {vr(t,2)} op_sel:[1,1,0] op_sel_hi:[1,0,1] neg_lo:[1,0,0]"]
def factor_gen(P, lo=0, hi=99, grp=1, fill=None):
    B=vFG; are,aim,bre,bim,cre,cim=[vPAR+i for i in range(6)]
    R1,R8,R128,LOc,TMP,PK = B,B+2,B+4,B+6,B+8,B+12
    Pc=[B+16+2*c for c in range(8)]
    zr,zi,dt=B+32,B+33,B+34; M=[2,4,6]; PH=[8,9,10]
    if lo: P.I("s_mov_b32 m0, s92")
    else: P.I(f"s_lshr_b32 s{sT0}, s{sW}, 1\ns_mul_i32 s{sT1}, s{sT0}, {64*FP-512}\ns_lshl_b32 s{sT2}, s{sW}, 8\ns_add_u32 m0, s{sT1}, s{sT2}"+("\ns_mov_b32 s92, m0" if hi<57 else ""))
    P0=P
    if lo: P=Prog()
    P.I(f"""s_lshl_b32 s{sT0}, s{sT0}, 4
s_lshr_b32 s{sT1}, s{sLD}, s{sT0}
s_lshl_b32 s{sT1}, s{sT1}, 16
v_mov_b32 v{dt}, {hex(LOG2E)}
v_mul_f32 v{dt}, s{sT1}, v{dt}
v_exp_f32 v{dt}, v{dt}""")
    P.extend(cmul(Pc[0],cre,bre,TMP))
    P.I(f"""v_cvt_pk_bf16_f32 v{dt}, v{dt}, v{dt}
v_and_b32 v{dt}, 0xffff0000, v{dt}
v_mul_f32 v{zr}, v{dt}, v{are}
v_mul_f32 v{zi}, v{dt}, v{aim}
v_mul_f32 v{zr}, {hex(LOG2E)}, v{zr}
v_mul_f32 v{zi}, 0.15915494, v{zi}
v_pk_mul_f32 {vr(Pc[0],2)}, {vr(Pc[0],2)}, {vr(dt,2)} op_sel_hi:[1,0] neg_hi:[1,0]""")
    cx=((R1,1,True),(R8,8,False),(R128,128,True))
    for (o,sc,cj),m,ph in zip(cx,M,PH):
        if sc==1: P.I(f"v_exp_f32 v{m}, v{zr}\nv_fract_f32 v{ph}, v{zi}")
        else: P.I(f"v_mul_f32 v{m}, {hex(f32(sc))}, v{zr}\nv_mul_f32 v{ph}, {hex(f32(sc))}, v{zi}\nv_exp_f32 v{m}, v{m}\nv_fract_f32 v{ph}, v{ph}")
        P.I(f"v_cos_f32 v{o}, v{ph}\nv_sin_f32 v{o+1}, v{ph}")
    for (o,sc,cj),m,ph in zip(cx,M,PH):
        P.I(f"v_pk_mul_f32 {vr(o,2)}, {vr(o,2)}, {vr(m,2)} op_sel_hi:[1,0]" + (" neg_hi:[1,0]" if cj else ""))
    P=P0
    steps_lo=[('one',48),('put',49,R8)]+[('mul',48+b,LOc,(R8 if b==2 else LOc),R8) for b in range(2,16)]
    steps_hi=[('put',0,Pc[0])]+[('mul',c,Pc[c],Pc[c-1],R1) for c in range(1,8)]
    row=8
    for e in range(1,17):
        cs = range(8) if e<2 else range(0,8,2) if e<4 else (0,4) if e<8 else (0,)
        for c in cs:
            assert HI[row]==128*e+c
            steps_hi.append(('mul',row,Pc[c],Pc[c],R128)); row+=1
    fill=fill if fill is not None else []; pend=[]
    def sz(t):
        Q=[Ins(t)]; sizes(Q); return Q[0].size
    def flush():
        odd=False; n=len(pend)+1; slot=0
        for i,w in enumerate(pend):
            for _ in range(1 if i else 2):
                slot+=1
                if slot==n and ALN:
                    if fill and (sz(fill[0])==4)==odd: P.I(fill.pop(0))
                    elif odd: P.I("s_nop 0")
                elif fill: odd^=(sz(fill[0])==4); P.I(fill.pop(0))
            P.I(w)
        pend.clear()
    for k,s in enumerate(steps_lo+steps_hi):
        if not lo<=k<hi: continue
        kk=PK+(k&3)
        if s[0]=='one': P.I(f"v_mov_b32 v{kk}, 0x3f80")
        else:
            if s[0]=='mul': P.extend(cmul(s[2],s[3],s[4],TMP+2*(k&1)))
            P.I(f"v_cvt_pk_bf16_f32 v{kk}, v{s[2]}, v{s[2]+1}")
        pend.append(f"ds_write_addtid_b32 v{kk} offset:{L_F+s[1]*FP}")
        if len(pend)==grp: flush()
    flush()

vKH=156
LB=0; SD=0
def epoch_sync(P):
    P.I(f"s_waitcnt lgkmcnt(0)\ns_or_b32 s{sTAG}, s{sTAG}, 0x7f800000\ns_add_u32 s{sTAG}, s{sTAG}, 1\ns_or_b32 s{sTAG}, s{sTAG}, 0x7f800000\ns_barrier")
def kgen_init(P, part=0):
    ACC=vHF
    if part==1:
        P.I(f"s_mul_i32 s{sT2}, s{sW}, {16*FP}\nv_add_u32 v{vKH}, s{sT2}, v{vKF}")
        for r in range(8): P.I(f"v_mov_b32 v{ACC+r}, 0")
        return
    if part==2:
        P.I(f"s_lshl_b32 s{sT2}, s{sDS}, 16\ns_and_b32 s{sT3}, s{sDS}, 0xffff0000\nv_writelane_b32 v{ACC}, s{sT2}, 0\nv_writelane_b32 v{ACC+4}, s{sT3}, 0")
        return
    P.I(f"""s_lshl_b32 s{sT0}, s{sDS}, 16
s_and_b32 s{sT1}, s{sDS}, 0xffff0000
v_cmp_eq_u32 vcc, 0, v0
v_mov_b32 v2, s{sT0}
v_mov_b32 v3, s{sT1}
s_mul_i32 s{sT2}, s{sW}, {16*FP}
v_cndmask_b32 v{ACC}, 0, v2, vcc
v_cndmask_b32 v{ACC+4}, 0, v3, vcc
v_add_u32 v{vKH}, s{sT2}, v{vKF}""")
    for r in (1,2,3,5,6,7): P.I(f"v_mov_b32 v{ACC+r}, 0")
def kgen(P, diag, mid=[], skip=0, order=0):
    A=vROLE; ACC=vHF
    Q=Prog(); table_unpack(Q); tu=[x.text for x in Q.ins]
    P.I(f"s_cmp_eq_u32 s{sW}, 3\ns_cbranch_scc1 L_wdjob\ns_waitcnt lgkmcnt(0)\ns_barrier")
    def rd(n):
        ks,ch=n>>1,n&1; b=A+8*(n%9)
        return [f"ds_read_b128 {vr(b,4)}, v{vKF} offset:{ch*64*FP+48*FP+ks*64}", f"ds_read_b128 {vr(b+4,4)}, v{vKH} offset:{ch*64*FP+ks*64}"]
    for n in range(7): P.extend(rd(n))
    P.extend(tu[:5])
    m2=[[Ins(x.text,x.tag) for x in g] for g in mid]; mid=list(mid)
    for n in range(16):
        if mid and n>=skip: P.extend(mid.pop(0))
        b=A+8*(n%9); a=vr(ACC+4*(n&1),4)
        P.I(f"v_mfma_f32_16x16x32_bf16 {a}, {vr(b,4)}, {vr(b+4,4)}, {a}")
        if n+7<16: P.extend(rd(n+7))
    P.extend(tu[5:])
    for r in range(4): P.I(f"v_cvt_pk_bf16_f32 v{8+r}, v{ACC+r}, v{ACC+4+r}")
    P.I(f"ds_write_b128 v{vKC}, v[8:11]\ns_branch L_kgen_end\nL_wdjob:")
    P.I("s_waitcnt lgkmcnt(0)\ns_barrier")
    P.extend(tu)
    if order==0:
        for g in m2: P.extend(g)
    mod_job(P,'sc1',diag,2)
    if order==1:
        for g in m2: P.extend(g)
    P.I(f"ds_write_b128 v{vRA+1}, {vr(ACC,4)}")
    P.I("L_kgen_end:")

def poll_groups(extra=None, XL='sc1', xfirst=0, SL='sc1'):
    Q=Prog(); poll_loads(Q,XL,xfirst,SL); G=[[]]
    if extra: extra(Q)
    for x in Q.ins:
        G[-1].append(x)
        if x.kind=='vmem': G.append([])
    return G[:-1]
def poll_loads(P, XL='sc1', xfirst=0, SL='sc1'):
    LD='sc1'
    P.I(f"s_mul_i32 s94, s{sP}, 12288\ns_add_u32 s94, s94, {WS_XG}")
    X=[(f"s_add_u32 s94, s94, 4096\n" if g else "")+f"buffer_load_dwordx4 {vr(vPOLL+4*g,4)}, v{vT16}, {sp(rWS,4)}, s94 offen {XL}" for g in range(3)]
    S=[f"s_mov_b32 s79, {WS_SG+g*4096}\nbuffer_load_dwordx4 {vr(vPOLL+12+4*g,4)}, v{vT16}, {sp(rWS,4)}, s79 offen {LD}" for g in range(3)]
    if SGP: S=[(f"s_mov_b32 s79, {WS_SG}\nv_lshlrev_b32 v157, {SGP}, v0\n" if g==0 else "")+f"buffer_load_dwordx4 {vr(vPOLL+12+4*g,4)}, v157, {sp(rWS,4)}, s79 offen offset:{16*g} {SL}" for g in range(3)]
    M=[f"s_lshl4_add_u32 s3, s{sP}, {WS_MG}\nbuffer_load_dwordx4 {vr(vPOLL+24,4)}, v{vMC}, {sp(rWS,4)}, s3 offen {LD}"]
    for t in (X+S+M if xfirst==1 else S+M+X if xfirst==2 else M+S+X if xfirst==3 else [y for p in zip(X,S) for y in p]+M): P.I(t, tag='pollx' if t in X else 'poll')
vQ=144
def poll2_loads(P):
    P.I(f"""s_lshl4_add_u32 s3, s{sP}, {WS_MG+0x20000}
buffer_load_dwordx4 {vr(vQ,4)}, v{vSEL1}, {sp(rWS,4)}, s3 offen sc1
s_lshl2_add_u32 s3, s{sKE}, s{sW}
s_lshl_b32 s3, s3, 7
s_add_u32 s3, s3, {WS_MG+0x20000+8*4096}
buffer_load_dwordx4 {vr(vQ+4,4)}, v{vMW}, {sp(rWS,4)}, s3 offen sc1
s_add_u32 s3, s3, {4*4096}""")
    P.I(f"buffer_load_dwordx4 {vr(vQ+8,4)}, v{vMW}, {sp(rWS,4)}, s3 offen sc1", tag='poll2')
def poll2_work(ST):
    mc,mw=vQ,vQ+4; dpp=" row_mask:0xf bank_mask:0xf"
    L=[["L_p2_chk:","@wait poll2",f"v_min3_u32 v2, v{vQ+3}, v{vQ+7}, v{vQ+11}",f"v_max3_u32 v3, v{vQ+3}, v{vQ+7}, v{vQ+11}",f"v_min_u32 v2, s{sTAG}, v2",f"v_max_u32 v3, s{sTAG}, v3",
        "v_cmp_ne_u32 vcc, v2, v3","s_cbranch_vccnz L_q_retry","L_q_ok:"]]
    L[0][0]="L_q_chk:"
    X=[f"v_add_f32 v{mw}, v{mw}, v{vQ+8}",f"v_add_f32 v{mw+1}, v{mw+1}, v{vQ+9}"]
    for m in ("quad_perm:[1,0,3,2]","quad_perm:[2,3,0,1]"):
        X+=[f"v_add_f32_dpp v{r}, v{r}, v{r} {m}{dpp}" for r in (mc,mc+1,mw,mw+1)]
    X+=[f"v_add_f32_dpp v{r}, v{r}, v{r} row_half_mirror{dpp}" for r in (mc,mc+1)]
    X+=[f"v_cvt_pk_bf16_f32 v{mw+1}, v{mw}, v{mw+1}", f"v_cvt_pk_bf16_f32 v{mc+1}, v{mc}, v{mc+1}",
        f"v_lshlrev_b32 v{mw}, 16, v{mw+1}", f"v_and_b32 v{mw+1}, 0xffff0000, v{mw+1}", f"v_lshlrev_b32 v{mc}, 16, v{mc+1}", f"v_and_b32 v{mc+1}, 0xffff0000, v{mc+1}",
        f"v_add_f32 v{mw}, v{mw}, v{vSEL2}", f"v_add_f32 v{mw+1}, v{mw+1}, v{vSEL2}", f"v_cvt_pk_bf16_f32 v{mw+1}, v{mw}, v{mw+1}",
        f"v_lshlrev_b32 v{mw}, 16, v{mw+1}", f"v_and_b32 v{mw+1}, 0xffff0000, v{mw+1}", f"ds_write_b64 v{vGW}, {vr(mw,2)}"]
    late=[f"v_mov_b32_dpp v{vMOD+4+2*k+e}, v{mc+e} row_newbcast:{8*k}{dpp}" for k in range(2) for e in range(2)]
    return L[0],X,late
PG0=0; ALN=1; BACKOFF=0; PREW=0; SGP=0
def writeback(cnt, lbl, on):
    if not on: return (["s_waitcnt vmcnt(0)"] if PREW else [])+([f"s_sleep {BACKOFF}"] if BACKOFF else [])
    return [f"s_and_b32 s4, s{cnt}, 3","s_cmp_lg_u32 s4, 0",f"s_cbranch_scc1 {lbl}","buffer_wbl2 sc1","s_waitcnt vmcnt(0)",f"{lbl}:"] if on else []
def retry2_block(P, loc=0, mask=0):
    P.I(f"L_q_retry:\ns_add_u32 s{sCNT}, s{sCNT}, 1\ns_cmp_gt_u32 s{sCNT}, 20000\n@loopok\ns_cbranch_scc1 L_q_ok")
    P.extend(writeback(sCNT,'L_q_nowb',loc))
    if mask: P.I("s_mov_b64 exec, vcc")
    poll2_loads(P)
    if mask: P.I("s_mov_b64 exec, -1")
    P.I("s_waitcnt vmcnt(0) lgkmcnt(0)\ns_branch L_q_chk")

vGA=140
def table_unpack(P):
    P.I(f"v_mov_b32 v{vUA}, v{vTAB+7}\nv_mov_b32 v{vKA}, v{vTAB+6}")
    for j in range(11):
        P.I(f"v_lshrrev_b32 v{vGA+j}, 16, v{vTAB+j//2}" if j&1 else f"v_and_b32 v{vGA+j}, 0xffff, v{vTAB+j//2}")
def k_image(P, G, npre, skip, w0at=0):
    E=vROLE+40; O=vROLE; GA=vGA
    G0=[[Ins(x.text,x.tag) for x in g] for g in G[:npre]] if w0at else []
    if w0at: P.I(f"@wait dr\ns_cmp_eq_u32 s{sW}, 0\ns_cbranch_scc1 L_w0a")
    for _ in range(npre): P.extend(G.pop(0))
    if w0at: P.I("L_w0a:")
    P.I(f"""s_mov_b32 s{sT4}, 0x05040100
s_mov_b32 s{sT5}, 0x07060302
v_add_u32 v2, {L_KI}, v{vT16}
s_waitcnt lgkmcnt(0)
s_barrier""")
    for j in range(11): P.I(f"ds_read_b32 v{E+j}, v{GA+j}")
    k=0
    for c in (3,2,1,0):
        for ch in range(2):
            o=O+4*k; k+=1
            for i in range(4):
                j=3-c+2*i
                P.I(f"v_perm_b32 v{o+i}, v{E+j+1}, v{E+j}, s{sT4+ch}")
            P.I(f"ds_write_b128 v2, {vr(o,4)} offset:{(ch*4+c)*KIP}")
            if k==w0at:
                P.I(f"s_cmp_lg_u32 s{sW}, 0\ns_cbranch_scc1 L_w0b\n@forget "+" ".join(str(r) for r in range(vPOLL,vPOLL+28)))
                for g in G0: P.extend(g)
                P.I("L_w0b:")
            if G and k>skip: P.extend(G.pop(0))
    for g in G: P.extend(g)

def retry_block(P, loc=0, mask=0):
    P.I(f"L_ka_retry:\ns_add_u32 s{sCNT}, s{sCNT}, 1\ns_cmp_gt_u32 s{sCNT}, 20000\n@loopok\ns_cbranch_scc1 L_ka_ok")
    P.extend(writeback(sCNT,'L_ka_nowb',loc))
    if mask:
        G=poll_groups(None,'sc1',3)
        P.extend(G[0]); P.I("s_mov_b64 exec, vcc")
        for g in G[1:]: P.extend(g)
        P.I("s_mov_b64 exec, -1")
    else: poll_loads(P)
    P.I("s_waitcnt vmcnt(0) lgkmcnt(0)\ns_branch L_ka_chk")

def make_h(P, diag, q2=False):
    Q=vPOLL; mc=Q+24; Mm=vROLE; Mr=vROLE+8; O=vROLE+16; A=vROLE+24; B=vROLE+40
    dpp=" row_mask:0xf bank_mask:0xf"
    P.I(f"s_mov_b32 s{sCNT}, 0\nv_add_u32 v4, {L_H+480}, v{vT16}\nL_ka_chk:\n@wait poll")
    chain=[]
    for m in ("quad_perm:[1,0,3,2]","quad_perm:[2,3,0,1]","row_half_mirror","row_mirror"):
        chain.append([f"v_add_f32_dpp v{r}, v{r}, v{r} {m}{dpp}" for r in (mc,mc+1)])
    chain+=[[f"v_cvt_pk_bf16_f32 v{mc}, v{mc}, v{mc+1}", f"v_mov_b32 v{mc+1}, v{mc}"],
            [f"v_permlane16_swap_b32 v{mc}, v{mc+1}", f"v_lshlrev_b32 v{vMOD}, 16, v{mc}", f"v_and_b32 v{vMOD+1}, 0xffff0000, v{mc}", f"v_lshlrev_b32 v{mc}, 16, v{mc+1}", f"v_and_b32 v{mc+1}, 0xffff0000, v{mc+1}"],
            [f"v_add_f32 v{mc}, 1.0, v{mc}", f"v_add_f32 v{mc+1}, 1.0, v{mc+1}", f"v_cvt_pk_bf16_f32 v{mc}, v{mc}, v{mc+1}"],
            [f"v_lshlrev_b32 v{vMOD+2}, 16, v{mc}", f"v_and_b32 v{vMOD+3}, 0xffff0000, v{mc}"]]
    for r in range(8):
        st=Q+12+4*(r//3)+r%3
        P.extend(chain[r])
        P.I(f"v_and_b32 v{Mr+r}, 0xffff0000, v{st}\nv_lshlrev_b32 v{Mm+r}, 16, v{st}\nv_rcp_f32 v{Mr+r}, v{Mr+r}")
    P.I(f"""v_min3_u32 v2, s{sTAG}, v{Q+27}, v{Q+15}
v_max3_u32 v3, s{sTAG}, v{Q+27}, v{Q+15}
v_min3_u32 v2, v2, v{Q+19}, v{Q+23}
v_max3_u32 v3, v3, v{Q+19}, v{Q+23}""")
    for ch in range(2):
        for r in range(0,8,2): P.I(f"v_pk_mul_f32 {vr(A+8*ch+r,2)}, {vr(Mr+r,2)}, {vr(vMOD+2,2)} op_sel:[0,{ch}] op_sel_hi:[1,{ch}]")
    for ch in range(2):
        for r in range(0,8,2): P.I(f"v_pk_fma_f32 {vr(B+8*ch+r,2)}, {vr(Mm+r,2)}, {vr(A+8*ch+r,2)}, {vr(vMOD,2)} op_sel:[0,0,{ch}] op_sel_hi:[1,1,{ch}] neg_lo:[1,0,0] neg_hi:[1,0,0]")
    P.I(f"""@wait pollx
v_min3_u32 v2, v2, v{Q+3}, v{Q+7}
v_max3_u32 v3, v3, v{Q+3}, v{Q+7}
v_min_u32 v2, v2, v{Q+11}
v_max_u32 v3, v3, v{Q+11}
v_cmp_ne_u32 vcc, v2, v3""")
    xr=lambda r: Q+4*(r//3)+r%3
    P.I(f"v_lshlrev_b32 v{vXF}, 16, v{xr(0)}\ns_cbranch_vccnz L_ka_retry\nL_ka_ok:")
    if diag: P.I(f"s_add_u32 s{sCNT}, s{sCNT}, 1\nv_writelane_b32 v255, s{sCNT}, 31")
    stamp(P,11,diag)
    if q2: poll2_loads(P)
    for ch in range(2):
        for r in range(8):
            if ch or r: P.I(f"v_and_b32 v{vXF+8+r}, 0xffff0000, v{xr(r)}" if ch else f"v_lshlrev_b32 v{vXF+r}, 16, v{xr(r)}")
        for r in range(0,8,2): P.I(f"v_pk_fma_f32 {vr(A+8*ch+r,2)}, {vr(vXF+8*ch+r,2)}, {vr(A+8*ch+r,2)}, {vr(B+8*ch+r,2)}")
        for r in range(0,8,2): P.I(f"v_cvt_pk_bf16_f32 v{O+4*ch+r//2}, v{A+8*ch+r}, v{A+8*ch+r+1}")
        P.I(f"ds_write_b128 v4, {vr(O+4*ch,4)} offset:{ch*HP}")

def gb_store(P, ST):
    P.I(f"""s_cmp_lg_u32 s{sW}, 2
s_cbranch_scc1 L_nogb
s_lshl3_add_u32 s{sT2}, s{sP}, {WS_GBF}
s_mov_b64 exec, 1
buffer_store_dwordx2 {vr(vMOD+6,2)}, v{vL16}, {sp(rWS,4)}, s{sT2} offen {ST}
s_mov_b64 exec, -1
L_nogb:""")
def w_side(ST):
    RAW=vPOLL; WP=vPOLL+16; GB=[48,64,80,96]; U=112; S1,S2=vHF,vHF+2
    rd=[]; main=[]; sums=[]
    for k in range(4):
        g=GB[k]
        rd.append([f"ds_read_b64_tr_b16 {vr(RAW+4*k+2*hf,2)}, v{vWRA} offset:{k*4096+hf*512}" for hf in range(2)]
                 +[f"ds_read_b128 {vr(g+4*q,4)}, v{vGR} offset:{k*64+q*16}" for q in range(2)])
        L=[]
        for d in range(4):
            u=U+8*k+2*d
            L+=[f"v_lshlrev_b32 v{u}, 16, v{RAW+4*k+d}", f"v_and_b32 v{u+1}, 0xffff0000, v{RAW+4*k+d}",
                f"v_mul_f32 v{g+2*d}, v{u}, v{g+2*d}", f"v_mul_f32 v{g+2*d+1}, v{u+1}, v{g+2*d+1}", f"v_cvt_pk_bf16_f32 v{WP+4*k+d}, v{g+2*d}, v{g+2*d+1}"]
        L.append((f"buffer_store_dwordx4 {vr(WP+4*k,4)}, v{vL16}, {sp(rWJ,4)}, s{sWO} offen {ST}",'wpst'))
        if k<3: L.append(f"s_add_u32 s{sWO}, s{sWO}, s{sWST}")
        main.append(L)
        for i in range(8):
            e=i&1; first=(k==0 and i<2)
            sums.append(f"v_mul_f32 v{S2+e}, v{U+8*k+i}, v{g+8+i}" if first else f"v_fmac_f32 v{S2+e}, v{U+8*k+i}, v{g+8+i}")
            if k==0 and i<2: continue
            sums.append(f"v_add_f32 v{S1+e}, v{g+e}, v{g+i}" if (k==0 and i<4) else f"v_add_f32 v{S1+e}, v{S1+e}, v{g+i}")
    rdsb=[f"ds_read_b128 {vr(GB[k]+8+4*q,4)}, v{vGR} offset:{256+k*64+q*16}" for k in range(4) for q in range(2)]
    tail=[f"v_add_f32 v{S1}, v{S1}, v{S1+1}", f"v_add_f32 v{S2}, v{S2}, v{S2+1}", f"v_mov_b32 v{S1+1}, v{S1}", f"v_mov_b32 v{S2+1}, v{S2}",
          f"v_lshlrev_b32 v2, 2, v{vLANE}", "s_nop 0",
          f"v_permlane32_swap_b32 v{S1}, v{S1+1}", f"v_permlane32_swap_b32 v{S2}, v{S2+1}",
          f"v_add_f32 v{S1}, v{S1}, v{S1+1}", f"v_add_f32 v{S2}, v{S2}, v{S2+1}", f"v_cvt_pk_bf16_f32 v{S1}, v{S1}, v{S2}",
          "s_mov_b32 exec_hi, 0", (f"buffer_store_dword v{S1}, v2, {sp(rWJ,4)}, s{sWA} offen {ST}",'auxst'), "s_mov_b64 exec, -1"]
    return rd,main,rdsb,sums,tail

def conv_reads(vi):
    b=vi&1; o=192-64*vi
    U=[(f"ds_read_b128 {ar(64+32*b+4*k,4)}, v{vUA} offset:{512*k+o}",f"c{vi}_{k}") for k in range(8)]
    K=[[(f"ds_read_b64 {ar(32*b+4*k+2*hf,2)}, v{vKA} offset:{512*(7-k)+o+8*hf}",f"c{vi}_{k}") for hf in range(2)] for k in range(8)]
    return U,K
def conv(P, ST, cfg, midbar, wdj, wd0, H={}):
    ACC=16
    order=sorted([(u,s) for u in range(8) for s in range(8) if u+s<8], key=lambda t:(t[1],t[0]))
    rd,main,rdsb,sums,tail=w_side(ST)
    chk,work,bc=poll2_work(ST)
    Q=Prog(); gb_store(Q,ST); gbs=[[x.text for x in Q.ins]]
    P.extend(conv_reads(0)[0])
    v2s=list(H.get('v2side',[])); v3m=list(H.get('v3mem',[])); go=False
    first=set(); side=[]; QAT=cfg.get('QAT',20); LV=cfg.get('LV',1); FV=cfg.get('FV',LV); SL=cfg.get('SUMLATE',0)
    for vi in range(4):
        b=vi&1; nxt=[]
        if vi==LV: nxt+=[(x,'wtr') for r in rd[:2] for x in r]+wdj[:4]
        if vi<3:
            U,K=conv_reads(vi+1); nxt+=[y for k in range(8) for y in [U[k]]+K[k]]
        if vi==0 and LV: side+=work
        if vi==1 and LV>1: side+=bc+gbs
        if vi==LV: side+=['@wait wtr']+rd[2]+rd[3]+main[0]+wdj[4:]+main[1]+([] if SL else rdsb)+main[2]+main[3]+(bc+gbs if LV<=1 else [])+([] if SL else sums)
        waits = {0:0,8:1,15:7} if vi==0 else {0:7}
        start = 8 if vi==LV else QAT+1 if vi==0 else 0
        for n,(u,s) in enumerate(order if (vi==0 or not cfg.get('ORD',1)) else sorted(order,key=lambda t:(t[0]+t[1],t[0]))):
            t=u+s; a=vr(ACC+4*t,4)
            if n in waits: P.I(f"@wait c{vi}_{waits[n]}")
            P.I(f"v_mfma_f32_16x16x32_bf16 {a}, {ar(32*b+4*u,4)}, {ar(64+32*b+4*s,4)}, {a if t in first else 0}"); first.add(t)
            slots=2-((n+1) in waits or n==35)
            if vi==0 and FV==0 and n==0: P.extend(midbar); continue
            if vi in (LV,FV) and n==0 and vi:
                P.I("@wait"+(" wr dr" if vi==LV else "")+(" wdst" if vi==FV else "")+"\ns_waitcnt lgkmcnt(0)\ns_barrier")
                if vi==FV: P.extend(midbar)
                continue
            if vi==0 and n==QAT and LV: P.extend(chk); continue
            if (vi,n) in H.get('hook',{}):
                if vi==3: assert not v2s; go=True
                P.extend(H['hook'][(vi,n)]); slots-=len(H['hook'][(vi,n)])
            elif go and v3m and n%cfg.get('WDVS',2)==0:
                x=v3m.pop(0); P.extend(x); slots-=len(x)
            if nxt:
                P.extend([nxt.pop(0)]); slots-=1
                if n<start and slots and nxt: P.extend([nxt.pop(0)]); slots-=1
            while slots>0 and wd0 and vi==0 and not nxt and n<QAT: P.extend([wd0.pop(0)]); slots-=1
            while slots>0 and v2s and vi==0 and not nxt and (n<QAT and len(v2s)>2 or n>QAT and not side): P.extend([v2s.pop(0)]); slots-=1
            while slots>0 and side and n>=start:
                x=side.pop(0)
                if isinstance(x,list): P.extend(x); slots=0
                else: P.extend([x]); slots-=1
        assert not nxt, len(nxt)
        if vi==0 and LV: P.extend(side+wd0+v2s); print('  conv step 0 spill',len(side),len(wd0),len(v2s)); side=[]; wd0=[]; v2s=[]
        print('  conv step',vi,'side backlog',len(side))
    for x in v3m: side+=x
    assert not any(isinstance(x,list) for x in side)
    if SL: return ACC,side,rdsb+sums+tail
    return ACC,side+tail,[]

def conv_epilogue(P, ACC, tail, XST, pre=[], prebar=[], postbar=[], tmax=99, after=[]):
    tail=list(tail); P.extend(pre)
    for t in range(8):
        P.I(f"ds_write_b128 v{vYW}, {vr(ACC+4*t,4)} offset:{1280*t}")
        k=min(max(5,-(-len(tail)//(8-t))),len(tail),tmax)
        if len(tail)-k<4: k=len(tail)
        P.extend(tail[:k]); tail=tail[k:]
    P.extend(prebar)
    P.I(f"s_mul_i32 s{sT0}, s{sP}, {12288 if XIN else 128}\ns_add_u32 s{sT0}, s{sT0}, {WS_XG if XIN else WS_X1B}\ns_waitcnt lgkmcnt(0)\ns_barrier")
    Y=16
    for ch in range(2):
        for g in range(2):
            for vh in range(2):
                P.I(f"ds_read_b128 {vr(Y+16*ch+8*vh+4*g,4)}, v{vYR} offset:{L_Y+(2*ch+vh)*10240+320*g}")
    P.extend(postbar)
    for ch in range(2):
        y=Y+16*ch
        for r in range(0,8,2): P.I(f"v_pk_add_f32 {vr(y+r,2)}, {vr(y+r,2)}, {vr(y+8+r,2)}")
        for r in range(0,8,2): P.I(f"v_pk_fma_f32 {vr(y+r,2)}, {vr(y+r,2)}, {vr(vMOD+4,2)}, {vr(vXF+8*ch+r,2)} op_sel:[0,{ch},0] op_sel_hi:[1,{ch},1]")
        for r in range(0,8,2): P.I(f"v_cvt_pk_bf16_f32 v{4+4*ch+r//2}, v{y+r}, v{y+r+1}")
        P.I(f"buffer_store_dwordx4 {vr(4+4*ch,4)}, v{vXO}, {sp(rWS,4)}, s{sT0} offen offset:{64*ch} {XST}", tag='x1st')
    print('  after the x1 stores:', len(tail), '+', len(after))
    P.extend(tail); P.extend(after)

def body(P, n, diag, cfg, H):
    NT=cfg.get('NT','nt'); ST='sc1'
    entry(P,n,diag,256,cfg.get('PERM',[2,3,0,5,1,7,4,6] if cfg.get('QSYNC',0) else None)); role_addr(P,cfg.get('LOC',0))
    P.I("s_waitcnt lgkmcnt(0)"); stamp0_commit(P,diag)
    if cfg.get('WSB',0): P.I(f"s_add_u32 s{sWS}, s{sWS}, {cfg['WSB']<<20}\ns_addc_u32 s{sWS+1}, s{sWS+1}, 0")
    po=cfg.get('PORD',0); m2=cfg.get('M2AT',0); global JW
    assert not (po and cfg.get('CUT',0)) and not (m2>0 and cfg.get('CUT',0))
    JW=(8 if po else 0)
    stamp(P,26,diag and ONLY and 26 in ONLY)
    early_loads(P,NT,not po)
    role_loads(P,cfg.get('XNT',NT),0,cfg.get('SD',0))
    if po: param_loads(P,NT)
    df=cfg.get('DEFER',0); global PRE_S; PRE_S=df; grp=cfg.get('GRP',1)
    table_loads(P)
    if m2==-1: role_loads(P,NT,1)
    fill=setup(P,False,cfg.get('X',''),cfg.get('WMAP',0) or cfg.get('QSYNC',0),df); P.extend(H['setup'])
    if df:
        assert cfg.get('WAT',1)>=1 and cfg.get('DAT',0)<2 and not cfg.get('WJAT',0)
        fill+=w_scalars()+wd_scalars(22)+H['defer']
    if m2==0: role_loads(P,NT,1)
    global LB, SD; LB=cfg.get('LB',0); SD=cfg.get('SD',0); assert not (LB and cfg.get('CUT',0))
    if not LB: epoch_sync(P)
    stamp(P,1,diag)
    kgen_init(P, 1 if LB else 0)
    H['idle'](P)
    P.I("@forget "+" ".join(str(r) for r in list(range(vPAR,vPAR+6))+[vROLE]+list(range(vTAB,vTAB+8))))
    cut=cfg.get('CUT',0)
    if cut:
        P.I(f"s_waitcnt vmcnt(10)\ns_cmp_lg_u32 s{sW}, 2\ns_cbranch_scc1 L_f1\ns_waitcnt vmcnt(6)\nL_f1:")
        P.I("@forget "+" ".join(str(r) for r in list(range(vPAR,vPAR+6))+[vROLE]+list(range(vTAB,vTAB+8))))
        factor_gen(P,0,cut,grp)
        stamp(P,10,diag)
        P.I(f"s_cmp_eq_u32 s{sW}, 3\ns_cbranch_scc1 L_xje")
    x_jobs(P,'sc1',diag,cfg.get('LOC',0))
    P.I("@forget "+" ".join(str(r) for r in list(range(vPAR,vPAR+6))+[vROLE]+list(range(vTAB,vTAB+8))))
    if LB: P.extend(H['tagreg'])
    stamp(P,3,diag)
    da,wa=cfg.get('DAT',0),cfg.get('WAT',1)
    def raws(k):
        if da==k: raw_wd_loads(P,cfg.get('DNT',NT))
        if wa==k: raw_w_loads(P,NT)
    if m2==1: role_loads(P,NT,1)
    raws(0)
    if wa>=10:
        factor_gen(P,cut,wa-10,grp,fill)
        while any('s95' in x or 's96' in x for x in fill): P.I(fill.pop(0))
        raw_w_loads(P,NT); cut=wa-10
    factor_gen(P,cut,99,grp,fill); print('  scalar set-up left after the chain:',len(fill)); P.extend(fill)
    stamp(P,4,diag)
    if m2==2: role_loads(P,NT,1)
    raws(1)
    G=poll_groups((lambda Q: raw_w_loads(Q,NT)) if wa==3 else None, cfg.get('XLP','') if cfg.get('LOC',0)==1 else 'sc1', cfg.get('XFIRST',0), '')
    for _ in range(cfg.get('PEARLY',0)): P.extend(G.pop(0))
    npm=cfg.get('PMID',0); mid=G[:npm]; G=G[npm:]
    if wa==5:
        Q=Prog(); raw_w_loads(Q,NT); W4=[[]]
        for x in Q.ins:
            W4[-1].append(x)
            if x.kind=='vmem': W4.append([])
        mid=W4[:-1]+mid
    kgen(P,diag,mid,cfg.get('PMSKIP',0),cfg.get('PMORD',0)); stamp(P,5,diag)
    k_image(P,G,min(len(G),cfg.get('PPRE',5)),cfg.get('PSKIP',0),cfg.get('W0AT',0))
    raws(2)
    wdj=[]
    wj=cfg.get('WJAT',0); wd0=[]
    if cfg.get('Q2AT',1)==2: poll2_loads(P)
    if da<2 and wj:
        Q=Prog(); wd_job(Q,ST); wd0=[(x.text,x.tag) for x in Q.ins]
    elif da<2: wd_job(P,ST)
    else:
        Q=Prog(); wd_job(Q,ST); wdj=[(x.text,x.tag) for x in Q.ins[1:]]
    stamp(P,6,diag)
    P.I("s_waitcnt lgkmcnt(0)\ns_barrier")
    for k in conv_reads(0)[1]: P.extend(k)
    q2=cfg.get('Q2AT',1)
    if q2==0: poll2_loads(P)
    make_h(P,diag,q2==3)
    if q2==1: poll2_loads(P)
    raws(4)
    if cfg.get('LV',1)==0:
        chk,work,_=poll2_work(ST); P.extend(chk+work+["@wait wr"])
    if cfg.get('FV',1)==0: P.I("@wait wdst")
    P.I("s_waitcnt lgkmcnt(0)\ns_barrier")
    stamp(P,7,diag)
    acc,tail,after=conv(P,ST,cfg,H['midbar'] if da<2 else [],wdj,wd0,H); stamp(P,8,diag)
    conv_epilogue(P,acc,tail,ST,H.get('pre',[]),H.get('prebar',[]),H.get('postbar',[]),cfg.get('TMAX',99),after)
```

```python
from prog import *
from layout import *
import ka, kc
from ka import sp, vr, mksrd, stamp, stamp_out, rWS, rWJ, rOUT, sW, sTAG, sP, sIDX, sXCD, sFS, sCG, sKE, sT0, sT1, sT2, sT3
NAME='adaLN_cond__ssm_conv_s4__geglu_ffn__prompt_kernel'
sFXo,sFDo,sFXi,sFDi,sFWo,sFWi = 40,41,99,93,89,92
vTG=251; vFV,vFA,vFB=247,246,252
T4=248
def build(P, diag, cfg):
    cfg=dict(cfg); cfg.update(XST='sc1',ST='sc1',WLD='sc1',XLD='sc1')
    kc.FS=cfg.get('FS',4); ka.XIN=cfg.get('XIN',0); ka.ONLY=cfg.get('ONLY'); ka.BACKOFF=cfg.get('BACKOFF',0); ka.PREW=cfg.get('PREW',1); ka.SGP=cfg.get('SGP',0)
    C=kc.PhaseC(cfg)
    L=ka.vLANE
    FS=cfg.get('FS',4)
    EX=hex((1<<(1<<(FS-4)))-1)
    def line(so, reg, r=rWS):
        return [f"s_mov_b64 exec, {EX}", f"buffer_store_dwordx4 {vr(reg,4)}, v{ka.vL16}, {sp(r,4)}, s{so} offen sc1", "s_mov_b64 exec, -1"]
    H={}
    DF=cfg.get('DEFER',0); PG0=ka.PG0=cfg.get('PG0',0); ka.ALN=cfg.get('ALN',1)
    own=f"""s_lshl_b32 s{sFXo}, s{sP}, {FS}
s_add_u32 s{sFXo}, s{sFXo}, {WS_FX}
s_and_b32 s{sT0}, s{sFS}, 1
s_mul_i32 s{sT0}, s{sT0}, 112
s_lshr_b32 s{sFDo}, s{sFS}, 1
s_add_u32 s{sFDo}, s{sFDo}, s{sT0}
s_lshl_b32 s{sFDo}, s{sFDo}, {FS}
s_add_u32 s{sFDo}, s{sFDo}, {WS_FD}""".split('\n')
    if cfg.get('FW',0) or not DF: own+=[f"s_lshl3_add_u32 s{sFWo}, s{sCG}, s{sKE}", f"s_lshl_b32 s{sFWo}, s{sFWo}, {FS}", f"s_add_u32 s{sFWo}, s{sFWo}, {WS_FW}"]
    assert not (DF and cfg.get('FW',0))
    fdi=f"""{f's_and_b32 s{sT0}, s{sXCD}, 1' if cfg.get('DM',0) else f's_bfe_u32 s{sT0}, s{sIDX}, 0x10002'}
s_lshl2_add_u32 s{sT0}, s{sT0}, s{sW}
s_mul_i32 s{sT0}, s{sT0}, {28<<FS}
s_add_u32 s{sFDi}, s{sT0}, {WS_FD}""".split('\n')
    va=[f"v_min_u32 v{vFA}, 27, v{L}", f"v_lshlrev_b32 v{vFA}, {FS}, v{vFA}"]
    H['setup']=va if DF else mksrd(rOUT,ka.sOUT,2097152)+own+va
    H['defer']=mksrd(rOUT,ka.sOUT,2097152)+fdi
    def idle(P):
        LB=cfg.get('LB',0); assert DF or not LB
        for i in (() if LB else (3,) if DF else range(4)): P.I(f"v_mov_b32 v{T4+i}, s{sTAG}")
        if not DF: P.extend(fdi)
        P.I(f"s_cmp_lg_u32 s{sW}, 3\ns_cbranch_scc1 L_main")
        if DF: P.extend(own)
        if LB: ka.epoch_sync(P)
        if cfg.get('M2AT',0)==3: ka.role_loads(P,cfg.get('NT',''),1)
        if DF: P.extend([f"v_mov_b32 v{T4+i}, s{sTAG}" for i in range(3)])
        if cfg.get('TOUCH',1): P.I("s_mov_b64 exec, 0\ns_branch L_touch0\nL_touched:\ns_mov_b64 exec, -1")
        if cfg.get('M2AT',0)==4: ka.role_loads(P,cfg.get('NT',''),1)
        P.I(f"s_lshl_b32 s{sT0}, s{sP}, 9\ns_add_u32 s{sT0}, s{sT0}, {WS_FLAG}")
        for i in range(4): P.I(f"v_add_u32 v{4+i}, -1, v{T4}")
        P.I(f"s_waitcnt vmcnt({0 if cfg.get('M2AT',0) in (1,2) else 8})\ns_mov_b32 exec_hi, 0")
        P.I(line(sT0,4)[1]); P.I(f"s_mov_b64 exec, {EX}")
        P.I(line(sFXo,4)[1]); P.I(line(sFDo,4,rWJ)[1])
        if cfg.get('FW',0): P.I(line(sFWo,4,rWJ)[1])
        P.I(f"s_mov_b64 exec, -1\ns_branch {'L_f1' if cfg.get('CUT',0) else 'L_xje'}\n{'' if PG0 else '.p2align 12'}\n{'' if PG0 else 'L_page:'}\nL_main:")
    H['tagreg']=[f"v_mov_b32 v{T4+3}, s{sTAG}"]
    H['idle']=idle; H['own_param_wait']=True
    H['midbar']=[f"s_cmp_lg_u32 s{sW}, 3","s_cbranch_scc1 L_nofd"]+line(sFDo,T4,rWJ)+["L_nofd:"]
    H['postbar' if cfg.get('FDP',0) else 'pre']=[f"buffer_load_dword v{vFV}, v{vFA}, {sp(rWS,4)}, s{sFDi} offen sc1"]
    wd=kc.wd_load_list(cfg,'sc1'); dm=kc.d_maps(cfg.get('DM',0),cfg.get('M16',0),cfg.get('ROWO',0))
    if DF>=2:
        sc=[x for x in dm if x.startswith('s_') and 's52' not in x and 's53' not in x]
        H['defer']+=sc+[f"s_mov_b32 s{kc.sFB}, s{kc.sT3}"]
        dm=[x.replace(f"s{kc.sT3},",f"s{kc.sFB},") for x in dm if x not in sc]
    WV=cfg.get('WDV',0)
    if WV:
        assert cfg.get('WDLIN')==2 and WV<=24 and not cfg.get('M16',0)
        Q=Prog(); kc.poll_check(Q,'fd',vPV=vFV)
        H['setup']+=[x for x in dm if x.startswith('s_') and 's52' not in x and 's53' not in x]+[f"s_mov_b32 s{kc.sFB}, s{kc.sT3}", f"s_mov_b32 s{kc.sCNT}, 1"]
        H['v2side']=[x for x in dm if 's52' in x or 's53' in x]+["s_nop 0", f"v_xor_b32 v{kc.vWL}, s{kc.sFB}, v{ka.vL16}"]
        H['hook']={tuple(cfg.get('WDVP',[2,14])):H.pop('pre'), tuple(cfg.get('WDVC',[3,2])):[x.text for x in Q.ins]}
        H['v3mem']=[wd.pop(0) for _ in range(WV)]
    FW=cfg.get('FW',0)
    if FW:
        H['prebar']=["@wait wpst"]
        H['postbar']=[f"s_cmp_lg_u32 s{sW}, 3","s_cbranch_scc1 L_nofw"]+line(sFWo,T4,rWJ)+["L_nofw:"]
    ka.body(P,NAME,diag,cfg,H)
    stamp(P,9,diag)
    if WV: P.I(f"v_mov_b32 v{kc.vL16}, v{ka.vL16}")
    else:
        P.extend(dm); P.I(f"s_mov_b32 s{kc.sCNT}, 1")
        kc.poll_check(P,'fd',vPV=vFV)
    if diag: P.I(f"v_writelane_b32 v255, s{kc.sCNT}, 62\nv_writelane_b32 v255, s{ka.sCNT}, 61")
    for i in range(cfg.get('WDA',8)): P.extend(wd.pop(0))
    P.I(f"s_cmp_lg_u32 s{sW}, 3\n@wait x1st auxst wpst\ns_barrier\ns_cbranch_scc1 L_nofx")
    P.extend(line(sFXo,T4))
    P.I(f"""s_cmp_lg_u32 s2, 0
s_cbranch_scc1 L_nofx
s_mov_b64 exec, 1
buffer_store_dword v{vTG}, v{ka.vL16}, {sp(rWS,4)}, {WS_EPOCH} offen
s_mov_b64 exec, -1
L_nofx:""")
    stamp(P,19,diag)
    fill=kc.c_maps()+C.setup()+[f"v_lshlrev_b32 v{vFA}, {FS}, v0", f"s_mov_b32 s{sFXi}, {WS_FX}"]
    fill+=f"""s_and_b32 s{sT1}, s{sXCD}, 3
s_and_b32 s{sT2}, s{sIDX}, 3
s_lshl2_add_u32 s{sT1}, s{sT1}, s{sT2}
s_mul_i32 s{sT1}, s{sT1}, 7
s_lshr_b32 s{sT1}, s{sT1}, 2
s_lshl_b32 s{sT1}, s{sT1}, {3+FS}
s_add_u32 s{sFWi}, s{sT1}, {WS_FW}
v_and_b32 v{vFB}, {15<<FS}, v{vFA}""".split('\n')
    ot=cfg.get('OTOUCH',0)
    if ot:
        P.I(f"""v_lshrrev_b32 v4, 3, v{L}
v_and_b32 v5, 7, v{L}
v_lshlrev_b32 v4, 10, v4
v_lshl_add_u32 v4, v5, 4, v4
s_lshl1_add_u32 s{sT1}, s{kc.sNT}, s{sW}
s_lshl_b32 s{sT1}, s{sT1}, 14
s_lshr_b32 s{sT2}, s{kc.sMT}, 2
s_lshl_b32 s{sT2}, s{sT2}, 7
s_add_u32 s{sT1}, s{sT1}, s{sT2}
s_add_u32 s{sT2}, s{sT1}, 8192""")
        for u in range(2):
            if ot==1: P.I(f"buffer_store_dwordx4 v[16:19], v4, {sp(rOUT,4)}, s{sT1+u} offen sc1")
            else: P.I(f"buffer_load_dwordx4 v[{16+4*u}:{19+4*u}], v4, {sp(rOUT,4)}, s{sT1+u} offen")
    nB=cfg.get('WDB',8 if FW else 16)
    for i in range(nB):
        P.extend(wd.pop(0)); k=-(-len(fill)//(nB-i)); P.extend(fill[:k]); fill=fill[k:]
    P.extend(fill)
    if FW:
        P.I(f"buffer_load_dword v{vFV}, v{vFB}, {sp(rWS,4)}, s{sFWi} offen sc1")
        for i in range(cfg.get('WDB2',6)): P.extend(wd.pop(0))
        kc.poll_check(P,'fw',vPV=vFV)
        stamp(P,22,diag)
        C.pre(P,cfg.get('WPA',8),'w')
    QS=cfg.get('QSYNC',0)
    if QS:
        P.I(f"v_and_b32 v{kc.vQA}, 15, v{L}\ns_lshl_b32 s{sT1}, s{sW}, {4+FS}\nv_lshl_add_u32 v{kc.vQA}, v{kc.vQA}, {FS}, s{sT1}")
        P.extend(kc.qpoll(0))
        for i in range(cfg.get('WDC',6)): P.extend(wd.pop(0))
        stamp(P,20,diag)
        kc.poll_check(P,'fx0',vPV=kc.vQV)
        P.I("s_barrier")
        stamp(P,21,diag)
        C.pre(P,cfg.get('QPRE',5)); P.extend(kc.qpoll(1)); C.pre(P,99)
    else:
        P.I(f"buffer_load_dword v{vFV}, v{vFA}, {sp(rWS,4)}, s{sFXi} offen sc1")
        if FW: C.pre(P,8*G1-cfg.get('WPA',8),'w')
        for i in range(cfg.get('WDC',0 if FW else 6)): P.extend(wd.pop(0))
        stamp(P,20,diag)
        kc.poll_check(P,'fx',vPV=vFV)
        P.I("s_barrier")
        stamp(P,21,diag)
        C.pre(P,cfg.get('PRE',12 if FW else 16))
    if diag: P.I(f"v_writelane_b32 v255, s{kc.sCNT}, 63")
    D=kc.PhaseD(P,cfg,diag,wd)
    D.run(*C.run(P,diag,wd,[],D))
    if diag: P.I(f"v_writelane_b32 v255, s{kc.sCNT}, 30")
    if diag: P.I("s_getreg_b32 s4, hwreg(HW_REG_XCC_ID)\ns_and_b32 s4, s4, 15\nv_writelane_b32 v255, s4, 10")
    stamp(P,18,diag); stamp_out(P,0,diag)
    if cfg.get('DBGOUT') is not None:
        P.I(f"""s_cmp_ge_u32 s2, 8
s_cbranch_scc1 L_{NAME}_exit
s_cmp_lg_u32 s{sW}, 0
s_cbranch_scc1 L_{NAME}_exit
s_load_dwordx2 s[4:5], s[0:1], 128
v_readlane_b32 s6, v255, {cfg['DBGOUT']}
s_getreg_b32 s7, hwreg(HW_REG_XCC_ID)
s_and_b32 s7, s7, 15
s_and_b32 s6, s6, 0xffff
v_mov_b32 v4, s6
v_mov_b32 v5, s7
s_lshl_b32 s6, s2, 2
v_mov_b32 v6, s6
s_waitcnt lgkmcnt(0)
s_mov_b64 exec, 1
global_store_dword v6, v4, s[4:5]
global_store_dword v6, v5, s[4:5] offset:32""")
    P.I(f"L_{NAME}_exit:\ns_endpgm\n@nomore")
    loc=cfg.get('LOC',0)==1
    mk=cfg.get('RMASK',0)
    ka.retry_block(P,loc,mk); ka.retry2_block(P,loc,mk)
    kc.poll_retry(P,'fd',0,vFV,vFA,sFDi,loc,mk);
    if QS:
        for q in range(4): kc.poll_retry(P,f'fx{q}',0,kc.vQV,kc.vQA,kc.sQP,loc)
    else: kc.poll_retry(P,'fx',0,vFV,vFA,sFXi,loc,mk)
    if FW: kc.poll_retry(P,'fw',0,vFV,vFB,sFWi,loc)
    for s_ in range(len(kc.d_parts(cfg))):
        if s_ and cfg.get('SPOLL',0): kc.spoll_retry(P,f'p{s_}',s_)
        else: kc.poll_retry(P,f'p{s_}',128*s_)
    return [(NAME,256,256,kc.LDS_C,512)]
```

```python
from prog import *
from layout import *
import struct
def f32(x): return struct.unpack('<I',struct.pack('<f',x))[0]
LOG2E = 0x3fb8aa3b
XIN = 0
sX,sARE,sAIM,sBRE,sBIM,sCRE,sCIM,sLDT,sDSK,sBX,sWG,sWU,sWD,sC,sWM,sOUT,sDBG,sWS = [8+2*i for i in range(18)]
rR,rWG,rWU,rWD,rOUT,rWS,rWJ = 44,48,52,56,60,64,68
sXCD,sIDX,sP,sW,sTAG,sLD,sDS = 72,73,74,75,76,77,78
sT0,sT1,sT2,sT3,sT4,sT5 = 80,81,82,83,84,85
sWO,sWST,sWA = 86,87,88
sCG,sKE,sFS,sCNT = 26,27,97,98
def sp(a,n=2): return f"s[{a}:{a+n-1}]"
def vr(a,n): return f"v[{a}:{a+n-1}]"
def ar(a,n): return f"a[{a}:{a+n-1}]"
def mksrd(d,b,size):
    return [f"s_mov_b32 s{d}, s{b}", f"s_and_b32 s{d+1}, s{b+1}, 0xffff", f"s_mov_b32 s{d+2}, {size}", f"s_mov_b32 s{d+3}, 0x20000"]
vLANE = 1
vT16,vMC,vMW = 12,13,14
vPAR = 16
vTAB = 24
vRA = 32
vROLE = 40
vFG = 120
vPOLL = 160
vPOL2 = 152
vXF = 192
vHF = 208
vKA,vUA,vYW,vYR,vWRA,vXO,vGR,vL16 = 224,225,226,227,228,229,230,231
vMOD = 232
vKF,vKC,vGW,vSEL1,vSEL2 = 240,241,242,243,244

ONLY=None
import os
LATE0=int(os.environ.get('LATE0','0'))
JIT=os.environ.get('JIT','')
def stamp(P, n, diag):
    if JIT:
        P.I(f"s_waitcnt lgkmcnt(0)\ns_memtime s[100:101]\ns_waitcnt lgkmcnt(0)\ns_cselect_b32 s5, 1, 0\ns_lshr_b32 s100, s100, 3\ns_and_b32 s100, s100, {JIT}\ns_cbranch_scc1 L_jit{len(P.ins)}\ns_sleep 40\nL_jit{len(P.ins)}:\ns_cmp_lg_u32 s5, 0")
    if diag and (ONLY is None or n in ONLY): P.I(f"s_memrealtime s[4:5]\ns_memtime s[100:101]\ns_waitcnt lgkmcnt(0)\nv_writelane_b32 v255, s4, {n}\nv_writelane_b32 v255, s100, {32+n}")
def stamp0_issue(P, diag):
    if diag: P.I("v_mov_b32 v255, 0\ns_memrealtime s[4:5]\ns_memtime s[100:101]")
def stamp0_commit(P, diag):
    if diag: P.I("v_writelane_b32 v255, s4, 0\nv_writelane_b32 v255, s100, 32")
def stamp_out(P, kidx, diag):
    if diag:
        P.I(f"""s_lshl_b32 s4, s2, 10
s_add_u32 s4, s4, {WS_STAMP + kidx*0x40000}
v_lshlrev_b32 v2, 2, v0
buffer_store_dword v255, v2, {sp(rWS,4)}, s4 offen""")

def bf16_round(l):
    u=f32(float(l)); u=(u+0x7fff+((u>>16)&1))&0xffff0000
    return int(struct.unpack('<f',struct.pack('<I',u))[0])
def table_words():
    rec=[]
    for T in range(256):
        a=[]
        for j in range(11):
            lag=2047-8*T-j
            if lag<0: a.append(L_CZ); continue
            lam=bf16_round(lag); b=(lam>>3)&15; i=HI.index(lam-8*b)
            a.append(L_C+i*CP+4*b)
        a.append(0)
        w=T>>6; lane=T&63; ch=w>>1; vh=w&1
        ka_=L_KI+ch*4*KIP+(lane&3)*KIP+2*(2044-16)-3584-192-256*vh+(lane&48)-2*(lane&12)
        ua_=L_H+ch*HP+448-192-256*vh+32*(lane&15)+(lane&48)
        rec.append([a[2*k]|(a[2*k+1]<<16) for k in range(6)]+[ka_,ua_])
    return [rec[T][4*q+k] for q in range(2) for T in range(256) for k in range(4)]

def entry(P, name, diag, nlines, perm):
    P.I(f".globl {name}\n.p2align 8\n.type {name},@function\n{name}:\n@reset")
    ng=(nlines+15)//16; assert ng&(ng-1)==0 and ng<=32
    if LATE0: P.I(f"s_and_b32 s4, s2, 7\ns_cbranch_scc1 L_nolate\ns_sleep {LATE0}\nL_nolate:")
    P.I(f"""s_cmp_ge_u32 s2, 256
s_cbranch_scc1 L_{name}_exit
s_load_dwordx16 s[8:23], s[0:1], 0
s_load_dwordx16 s[24:39], s[0:1], 64
s_load_dwordx4 s[40:43], s[0:1], 128
s_getpc_b64 s[6:7]
L_pc:
s_mov_b64 exec, -1
v_lshrrev_b32 v2, 6, v0
v_and_b32 v{vLANE}, 63, v0
s_lshr_b32 s{sIDX}, s2, 3
v_readfirstlane_b32 s{sW}, v2
s_and_b32 s{sT0}, s{sIDX}, {ng-1}
s_lshl_b32 s{sT0}, s{sT0}, 11
v_lshl_add_u32 v3, v{vLANE}, 5, s{sT0}
s_cmp_lg_u32 s{sW}, 3
s_cbranch_scc1 L_nopf
global_load_dword v15, v3, s[6:7]
L_nopf:""")
    stamp0_issue(P,diag)
    P.I(f"s_and_b32 s{sXCD}, s2, 7")
    if perm: P.I(f"s_lshl_b32 s{sXCD}, s{sXCD}, 2\ns_lshr_b32 s{sXCD}, {hex(sum(v<<(4*k) for k,v in enumerate(perm)))}, s{sXCD}\ns_and_b32 s{sXCD}, s{sXCD}, 7")
    P.I(f"""s_lshl_b32 s{sP}, s{sXCD}, 5
s_add_u32 s{sP}, s{sP}, s{sIDX}""")

def role_addr(P, loc=0):
    P.I(f"""s_cmp_eq_u32 s{sW}, 0
s_cselect_b32 s{sT3}, 8, 1
s_lshl_b32 s{sT2}, s{sT3}, 10
s_lshl_b32 s{sT3}, s{sT3}, 7
s_and_b32 s{sT4}, s{sP}, 7
s_lshl_b32 s{sT4}, s{sT4}, 7""")
    if loc: P.I(f"s_lshl_b32 s{sT0}, s{sIDX}, 9\ns_add_u32 s{sT0}, s{sT0}, s{sXCD}\ns_lshl_b32 s{sT0}, s{sT0}, 7")
    else: P.I(f"s_lshr_b32 s{sT0}, s{sP}, 3\ns_lshl_b32 s{sT0}, s{sT0}, 16\ns_add_u32 s{sT0}, s{sT0}, s{sT4}")
    P.I(f"""s_lshl_b32 s{sT1}, s{sP}, 13
s_cmp_eq_u32 s{sW}, 0
s_cselect_b32 s{sT0}, s{sT0}, s{sT1}
s_and_b32 s{sT5}, s{sW}, 1
s_sub_u32 s92, 7, s{sT5}
s_lshr_b32 s{sT1}, s{sP}, s92
s_lshl1_add_u32 s{sT1}, s{sT5}, s{sT1}
s_lshl_b32 s{sT1}, s{sT1}, 10
s_add_u32 s{sT4}, s{sT4}, s{sT1}
s_and_b32 s{sT1}, s{sP}, 0xf8
s_add_u32 s92, s{sT5}, 2
s_lshl_b32 s{sT1}, s{sT1}, s92
s_and_b32 s{sT5}, s{sT1}, 511
s_mul_i32 s{sT1}, s{sT5}, 6144
s_add_u32 s{sT1}, s{sT1}, s{sT4}
s_mov_b32 s{sT4}, 3145728
s_cmp_lt_u32 s{sW}, 2
s_cselect_b32 s94, s{sT0}, s{sT1}
s_cselect_b32 s{sT2}, s{sT2}, 6144
s_cselect_b32 s79, s{sT3}, {8*6144}
s_cselect_b32 s{rR+2}, 2097152, s{sT4}
s_mov_b32 s{rR+3}, 0x20000
v_lshrrev_b32 v3, 3, v{vLANE}
v_mul_u32_u24 v3, s{sT2}, v3
v_lshrrev_b32 v4, 2, v{vLANE}
v_and_b32 v4, 4, v4
v_and_b32 v5, 7, v{vLANE}
v_xor_b32 v4, v4, v5
v_lshl_add_u32 v22, v4, 4, v3
v_xor_b32 v23, 32, v22
s_lshl_b32 s3, s{sW}, 13
s_add_u32 s3, s3, {L_RR}
v_add_u32 v5, s{sT5}, v{vLANE}
v_and_b32 v5, 511, v5
v_lshlrev_b32 v5, 1, v5
s_lshl_b32 s{sT5}, s{sP}, 9
v_lshl_add_u32 v2, v0, 1, s{sT5}""")
    for i in range(6): P.I(f"v_mov_b32 v{vPAR+i}, 0")
    P.I(f"v_mov_b32 v{vROLE}, 0\ns_lshl_b32 s93, s{sP}, 2")
def param_loads(P, NT):
    P.extend([f"global_load_short_d16_hi v{vPAR+i}, v2, {sp(b)} {NT}" for i,b in enumerate((sARE,sAIM,sBRE,sBIM,sCRE,sCIM))])
def early_loads(P, NT, pfirst):
    if pfirst: param_loads(P,NT)
    P.I(f"""s_load_dword s{sTAG}, {sp(sWS)}, {WS_EPOCH}
s_load_dword s{sLD}, {sp(sLDT)}, s93
s_load_dword s{sDS}, {sp(sDSK)}, s93
s_cmp_lt_u32 s{sW}, 2
s_cselect_b64 {sp(rR)}, {sp(sX)}, {sp(sWM)}
s_and_b32 s{rR+1}, s{rR+1}, 0xffff""")
    P.I(f"global_load_short_d16_hi v{vROLE}, v5, {sp(sC)}")
    P.I(f"""s_add_u32 s6, s6, L_table-L_pc+4096
s_addc_u32 s7, s7, 0
v_lshlrev_b32 v{vT16}, 4, v0""")
def role_loads(P, XNT, late, sd=0):
    lbl='L_rlb' if late else 'L_rla'
    P.I(f"s_cmp_eq_u32 s{sW}, 3\ns_cbranch_scc{0 if late else 1} {lbl}")
    if sd and not late:
        P.I(f"s_cmp_lg_u32 s{sW}, 1\ns_cbranch_scc1 L_rl0")
        for u in range(8): P.I(f"buffer_load_dwordx4 {vr(vROLE+40+4*u,4)}, v22, {sp(rR,4)}, s94 offen offset:{u*128} {XNT}")
        P.I("@forget "+" ".join(str(r) for r in range(vROLE+40,vROLE+72))+f"\ns_branch {lbl}\nL_rl0:")
    for u in range(8):
        if u==4 and not late: P.I(f"s_cmp_eq_u32 s{sW}, 2\ns_cbranch_scc1 {lbl}")
        P.I(f"s_add_u32 m0, s3, {u*1024}")
        P.I(f"s_add_u32 s94, s94, s79" if u else "s_nop 0")
        P.I(f"buffer_load_dwordx4 v{22+(u&1)}, {sp(rR,4)}, s94 offen {XNT} lds", tag='rr')
    P.I(f"{lbl}:")
def table_loads(P):
    P.I(f"global_load_dwordx4 {vr(vTAB,4)}, v{vT16}, s[6:7] offset:-4096\nglobal_load_dwordx4 {vr(vTAB+4,4)}, v{vT16}, s[6:7]")

def setup(P, nowd=False, X='', wmap=0, defer=0):
    D=Prog() if defer else P; P0=P
    P.extend(mksrd(rWS,sWS,WS_USED))
    P.I(f"{f's_cmp_lg_u32 s{sXCD}, 0' if wmap>=2 else f's_cmp_lt_u32 s{sIDX}, 28'}\ns_cselect_b32 s{sT0}, 1835008, 0\ns_cselect_b32 s{sT1}, {WS_USED}, 0")
    P.extend(mksrd(rWD,sWD,f"s{sT0}"))
    for r,b in ((rWG,sWG),(rWU,sWU)): D.extend(mksrd(r,b,f"s{rWD+2}"))
    P.extend(mksrd(rWJ,sWS,f"s{sT1}"))
    if 'w' in X: P.I(f"s_mov_b32 s{rWG+2}, 0\ns_mov_b32 s{rWU+2}, 0")
    if 'm' in X: P.I(f"s_mov_b32 s{rR+2}, 0")
    if 'd' in X: P.I(f"s_mov_b32 s{rWD+2}, 0")
    if 's' in X: P.I(f"s_min_u32 s{rWJ+2}, s{rWJ+2}, {WS_XG}")
    assert not (defer and (wmap>=2 or X))
    P=D
    if wmap>=2:
        P.I(f"s_max_u32 s{sFS}, s{sP}, 32\ns_sub_u32 s{sFS}, s{sFS}, 32")
        if wmap==2: P.I(f"s_lshr_b32 s{sCG}, s{sFS}, 3\ns_and_b32 s{sKE}, s{sFS}, 7")
        else: P.I(f"s_mul_i32 s{sKE}, s{sFS}, 586\ns_lshr_b32 s{sKE}, s{sKE}, 14\ns_mul_i32 s{sCG}, s{sKE}, 28\ns_sub_u32 s{sCG}, s{sFS}, s{sCG}")
    elif wmap: P.I(f"s_mov_b32 s{sCG}, s{sIDX}\ns_mov_b32 s{sKE}, s{sXCD}")
    else: P.I(f"""s_and_b32 s{sCG}, s{sXCD}, 3
s_mul_i32 s{sCG}, s{sCG}, 7
s_lshr_b32 s{sT0}, s{sIDX}, 2
s_add_u32 s{sCG}, s{sCG}, s{sT0}
s_and_b32 s{sKE}, s{sXCD}, 4
s_and_b32 s{sT0}, s{sIDX}, 3
s_add_u32 s{sKE}, s{sKE}, s{sT0}""")
    P.I(f"""s_lshl2_add_u32 s{sT0}, s{sCG}, s{sW}
s_mul_i32 s{sT1}, s{sT0}, 147
s_lshr_b32 s{sT1}, s{sT1}, 10
s_mul_i32 s{sT2}, s{sT1}, 7
s_sub_u32 s{sT0}, s{sT0}, s{sT2}
s_mul_i32 s{sT1}, s{sT1}, 231
s_cmp_lt_u32 s{sT0}, {G1}
s_cselect_b32 s{sT2}, {G1}, 1
s_cselect_b32 s{sT3}, 1, 33
s_mul_i32 s{sT0}, s{sT0}, s{sT3}
s_add_u32 s{sT0}, s{sT0}, s{sT1}
s_lshl_b32 s{sT0}, s{sT0}, 10
s_add_u32 s{sT0}, s{sT0}, {WS_WPF}
s_lshl_b32 s{sWST}, s{sT2}, 10
s_mul_i32 s{sT3}, s{sWST}, s{sKE}
s_lshl2_add_u32 s{sWO}, s{sT3}, s{sT0}
s_lshl_b32 s{sT2}, s{sT2}, 15
s_add_u32 s{sWA}, s{sT2}, s{sT0}
s_lshl_b32 s{sT0}, s{sKE}, 7
s_add_u32 s{sWA}, s{sWA}, s{sT0}
s_mul_i32 s{sT0}, s{sKE}, {64*3584}
s_lshl_b32 s{sT1}, s{sCG}, 7
s_add_u32 s90, s{sT0}, s{sT1}""")
    P=P0
    L=vLANE
    P.I(f"""v_lshlrev_b32 v{vL16}, 4, v{L}
v_and_b32 v2, 15, v{L}
v_and_b32 v3, 48, v{L}
v_lshrrev_b32 v4, 4, v{L}
v_lshrrev_b32 v5, 5, v{L}
v_and_b32 v6, 3, v{L}
s_mul_i32 s{sT2}, s{sW}, 10240
s_add_u32 s{sT2}, s{sT2}, {L_Y}
v_mul_u32_u24 v7, 320, v4
v_lshl_add_u32 v7, v2, 4, v7
v_add_u32 v{vYW}, s{sT2}, v7
v_lshrrev_b32 v7, 5, v0
v_mul_u32_u24 v7, 1280, v7
v_and_b32 v8, 1, v0
v_mul_u32_u24 v9, 640, v8
v_bfe_u32 v10, v0, 1, 4
v_lshl_add_u32 v9, v10, 4, v9
v_add_u32 v{vYR}, v7, v9
v_lshrrev_b32 v7, 2, v0
{f"s_and_b32 s{sT2}, s{sP}, 7" if XIN else ""}
{f"v_xor_b32 v7, s{sT2}, v7" if XIN else ""}
v_lshlrev_b32 v7, {7 if XIN else 15}, v7
v_lshl_add_u32 v{vXO}, v6, 4, v7
v_mul_u32_u24 v7, {FP}, v2
v_add_u32 v7, v7, v3
v_add_u32 v{vKF}, {L_F}, v7
v_mul_u32_u24 v7, {CP}, v2
s_mul_i32 s{sT2}, s{sW}, {16*CP}
v_add3_u32 v{vKC}, v7, v3, s{sT2}
v_bfe_u32 v7, v{L}, 2, 2
v_cvt_f32_u32 v{vSEL2}, v5
v_and_b32 v9, 31, v{L}
v_lshlrev_b32 v{vMC}, 12, v9
v_and_b32 v9, 8, v{L}
v_lshl_add_u32 v9, v9, 1, v2
v_lshlrev_b32 v{vSEL1}, 12, v9
v_lshl_add_u32 v9, v5, 3, v6
v_bfe_u32 v10, v{L}, 2, 3
v_lshlrev_b32 v11, 4, v10
v_lshl_add_u32 v{vMW}, v9, 12, v11
s_lshl_b32 s{sT2}, s{sW}, 6
s_add_u32 s{sT2}, s{sT2}, {L_GT+256}
v_lshl_add_u32 v10, v10, 3, s{sT2}
v_lshlrev_b32 v11, 8, v5
v_sub_u32 v{vGW}, v10, v11
v_lshlrev_b32 v10, 5, v5
v_add_u32 v{vGR}, {L_GT}, v10
v_and_b32 v9, 1, v4
v_lshl_add_u32 v10, v9, 1, v5
v_lshl_add_u32 v10, v10, 3, v7
v_lshl_add_u32 v10, v10, 1, v9
v_bfe_u32 v11, v{L}, 3, 1
v_lshl_add_u32 v10, v10, 1, v11
v_xor_b32 v10, s{sW}, v10
v_lshl_add_u32 v10, v10, 1, v8
v_bfe_u32 v11, v{L}, 1, 1
v_lshl_add_u32 v10, v10, 1, v11
v_lshlrev_b32 v10, 3, v10
v_add_u32 v{vWRA}, {L_WR}, v10""")
    P.I(f"""v_mul_u32_u24 v7, {HP}, v5
v_and_b32 v9, 31, v{L}
v_min_u32 v9, 29, v9
v_lshl_add_u32 v7, v9, 4, v7
v_add_u32 v7, {L_H}, v7
v_cmp_gt_u32 vcc, 64, v0
v_mov_b32 v9, {L_CZ}
v_mov_b32 v{vFG}, 0
v_cndmask_b32 v7, v9, v7, vcc
v_mov_b32 v{vFG+1}, 0
v_mov_b32 v{vFG+2}, 0
v_mov_b32 v{vFG+3}, 0
ds_write_b128 v7, {vr(vFG,4)}""")
    A0=vRA
    P.I(f"""v_lshrrev_b32 v2, 3, v{L}
v_and_b32 v3, 2, v2
v_mul_u32_u24 v2, 3584, v2
v_and_b32 v4, 7, v{L}
v_xor_b32 v3, v3, v4
v_xor_b32 v4, 4, v3
v_lshl_add_u32 v{A0+2}, v3, 4, v2
v_lshl_add_u32 v{A0+3}, v4, 4, v2
v_and_b32 v8, 1, v{L}
v_bfe_u32 v7, v{L}, 1, 3
v_mul_u32_u24 v7, {KIP}, v7
v_lshl_add_u32 v7, v8, 4, v7
v_add_u32 v{A0+1}, {L_KI+4096}, v7
""")
    if not nowd: P.I(f"""v_lshrrev_b32 v2, 2, v{L}
v_and_b32 v5, 3, v{L}
v_lshlrev_b32 v5, 4, v5
v_lshl_add_u32 v{A0+4}, v2, 10, v5
v_lshrrev_b32 v6, 5, v{L}
v_and_b32 v7, 3, v2
v_lshl_add_u32 v6, v6, 3, v7
v_bfe_u32 v7, v{L}, 4, 1
v_lshl_add_u32 v6, v6, 1, v7
v_lshl_add_u32 v6, v6, 1, v8
v_bfe_u32 v7, v{L}, 1, 1
v_lshl_add_u32 v6, v6, 1, v7
v_lshlrev_b32 v6, 3, v6
v_add_u32 v{A0}, {L_DR}, v6
{"" if wmap>=2 else f"s_mul_i32 s{sFS}, s{sXCD}, 28"}
{"" if wmap>=2 else f"s_add_u32 s{sFS}, s{sFS}, s{sIDX}"}
s_lshr_b32 s{sT2}, s{sFS}, 1
s_lshl_b32 s{sT2}, s{sT2}, 14
s_and_b32 s{sT1}, s{sFS}, 1
s_lshl_b32 s{sT1}, s{sT1}, 9
s_add_u32 s91, s{sT2}, s{sT1}""")
    return [x.text for x in D.ins] if defer else []

def x_jobs(P, PUB, diag, loc=0):
    R=vROLE; G=vROLE+32; L=vLANE
    P.I(f"s_cmp_eq_u32 s{sW}, 2\ns_cbranch_scc1 L_rj2\ns_cmp_eq_u32 s{sW}, 1\ns_cbranch_scc1 L_rj1")
    P.I(f"""v_and_b32 v2, 7, v{L}
v_lshrrev_b32 v3, 3, v{L}
v_and_b32 v4, 2, v2
v_lshlrev_b32 v4, 1, v4
v_xor_b32 v4, v4, v3
v_lshlrev_b32 v4, 4, v4
v_lshl_add_u32 v4, v2, 7, v4
v_add_u32 v4, {L_RR}, v4
v_xor_b32 v5, 32, v4
v_mul_u32_u24 v3, {4*12288}, v3
v_lshl_add_u32 v2, v2, 4, v3
{f"s_mov_b32 s{sT0}, s{sXCD}" if loc else f"s_and_b32 s{sT0}, s{sP}, 7"}
s_mul_i32 s{sT0}, s{sT0}, {32*12288}
{f"s_lshl_b32 s{sT1}, s{sIDX}, 3" if loc else f"s_and_b32 s{sT1}, s{sP}, 0xf8"}
s_lshl4_add_u32 s{sT0}, s{sT1}, s{sT0}
s_add_u32 s{sT0}, s{sT0}, {WS_XG}""")
    if LB: epoch_sync(P); kgen_init(P,2)
    for k in range(12): P.I(f"v_mov_b32 v{G+4*k+3}, s{sTAG}")
    if diag and ONLY and 27 in ONLY:
        for z,cn in ((25,63),(24,16),(27,10),(28,6),(29,2)): P.I(f"s_waitcnt vmcnt({cn})"); stamp(P,z,diag)
    P.I(f"s_waitcnt vmcnt({JW})"); stamp(P,2,diag)
    for r in range(8): P.I(f"ds_read_b128 {vr(R+4*r,4)}, v{4+(r&1)} offset:{r*1024}")
    for g in range(3):
        for j in range(4):
            k=g*4+j
            for e in range(3):
                if 3*g+e<8: P.I(f"v_mov_b32 v{G+4*k+e}, v{R+4*(3*g+e)+j}")
            P.I(f"s_add_u32 s{sT1}, s{sT0}, {j*12288+g*4096}")
            P.I(f"buffer_store_dwordx4 {vr(G+4*k,4)}, v2, {sp(rWS,4)}, s{sT1} offen {'' if loc==1 else PUB}")
    P.I(f"s_waitcnt vmcnt(12)\ns_branch L_xje\nL_rj1:")
    P.I(f"""v_mov_b32 v2, 0
v_mov_b32 v3, 0
v_mov_b32 v4, 0
v_mov_b32 v5, 0
s_mov_b32 s{sT1}, 0x3f803f80
v_add_u32 v6, {L_RR+8192}, v{vL16}
v_mul_u32_u24 v8, 96, v{L}
v_lshlrev_b32 v9, {4 if SGP else 12}, v{L}
s_lshl_b32 s{sT0}, s{sP}, {SGP or 4}
s_add_u32 s{sT0}, s{sT0}, {WS_SG}""")
    if LB: epoch_sync(P)
    P.I(f"v_mov_b32 v{G+3}, s{sTAG}")
    if SD: R=vROLE+40
    else:
        P.I(f"s_waitcnt vmcnt({JW})"); stamp(P,2,diag)
        for u in range(8): P.I(f"ds_read_b128 {vr(R+4*u,4)}, v6 offset:{u*1024}")
    for k in range(32):
        if SD and k%8==0: P.I(f"s_waitcnt vmcnt({(8 if JW else 2)+6-k//4})")
        P.I(f"v_dot2c_f32_bf16 v{2+(k&1)}, s{sT1}, v{R+k}\nv_dot2c_f32_bf16 v{4+(k&1)}, v{R+k}, v{R+k}")
    P.I("v_add_f32 v2, v2, v3\nv_add_f32 v4, v4, v5")
    for m in ("quad_perm:[1,0,3,2]","quad_perm:[2,3,0,1]","row_half_mirror"):
        P.I(f"v_add_f32_dpp v2, v2, v2 {m} row_mask:0xf bank_mask:0xf\nv_add_f32_dpp v4, v4, v4 {m} row_mask:0xf bank_mask:0xf")
    P.I(f"""v_mul_f32 v2, 0x3b000000, v2
v_mul_f32 v4, 0x3b000000, v4
v_fma_f32 v4, -v2, v2, v4
v_max_f32 v4, 0, v4
v_cvt_pk_bf16_f32 v4, v4, v4
v_and_b32 v4, 0xffff0000, v4
v_add_f32 v4, 0x3727c5ac, v4
v_cvt_pk_bf16_f32 v4, v4, v4
v_and_b32 v4, 0xffff0000, v4
v_sqrt_f32 v4, v4
v_cvt_pk_bf16_f32 v2, v2, v4
ds_bpermute_b32 v{G}, v8, v2
ds_bpermute_b32 v{G+1}, v8, v2 offset:32
ds_bpermute_b32 v{G+2}, v8, v2 offset:64
s_waitcnt lgkmcnt(0)
s_mov_b64 exec, {(1<<(1<<(SGP-4)))-1 if SGP else 7}
buffer_store_dwordx4 {vr(G,4)}, v9, {sp(rWS,4)}, s{sT0} offen {PUB}
s_mov_b64 exec, -1
s_waitcnt vmcnt(1)
s_branch L_xje
{".p2align 12" if PG0 else ""}
{"L_page:" if PG0 else ""}
L_rj2:""")
    mod_job(P,PUB,diag,1)
    P.I("s_waitcnt vmcnt(1)")
    P.I("L_xje:")
def mod_job(P, PUB, diag, nks):
    R=vROLE; L=vLANE; A0=vRA; w=nks+1
    assert L_MR%128==0
    P.I(f"""v_lshrrev_b32 v2, 4, v{L}
v_bfe_u32 v3, v{L}, 2, 2
v_lshl_add_u32 v4, v2, 3, v3
v_bfe_u32 v3, v{L}, 3, 1
v_lshl_add_u32 v4, v4, 1, v3
v_and_b32 v3, 1, v2
v_lshl_add_u32 v4, v4, 1, v3
v_and_b32 v3, 3, v{L}
v_lshl_add_u32 v4, v4, 2, v3
v_lshlrev_b32 v4, 3, v4
v_add_u32 v8, {L_RR+w*8192}, v4
v_xor_b32 v9, 32, v8
v_xor_b32 v10, 64, v8
v_xor_b32 v11, 96, v8
v_bfe_u32 v4, v{L}, 1, 2
v_lshl_add_u32 v4, v4, 2, v2
v_and_b32 v3, 1, v{L}
v_lshl_add_u32 v4, v4, 1, v3
v_lshlrev_b32 v{A0+5}, 4, v4
s_mov_b32 s{sT0}, {L_SC+(w-2)*128}
v_lshl_add_u32 v6, v{L}, 1, s{sT0}
v_and_b32 v7, 48, v{L}
v_add_u32 v7, s{sT0}, v7
s_lshl_b32 s{sT0}, s{sP}, 9
s_add_u32 s99, s{sT0}, {WS_MG+(w-2)*0x20000}
s_mov_b32 s{sT0}, 0xaaaaaaaa
s_mov_b32 s{sT1}, 0xaaaaaaaa
s_mov_b32 s{sT2}, 0xcccccccc
s_mov_b32 s{sT3}, 0xcccccccc
s_mov_b32 s{sT4}, 0xf0f0f0f0
s_mov_b32 s{sT5}, 0xf0f0f0f0""")
    if nks==1 and LB: epoch_sync(P)
    if nks==1: P.I(f"s_waitcnt vmcnt({12 if JW else 6})")
    P.I(f"""v_mul_f32 v4, 0xbfb8aa3b, v{R}
v_exp_f32 v4, v4
v_add_f32 v4, 1.0, v4
v_rcp_f32 v4, v4
v_mul_f32 v2, v{R}, v4
v_cvt_pk_bf16_f32 v2, v2, v2
ds_write_b16 v6, v2""")
    for ks in range(nks): P.I(f"ds_read_b128 {vr(R+4*ks,4)}, v7 offset:{ks*64}")
    P.I(f"s_waitcnt vmcnt({JW})" if nks==1 else "@wait rr"); stamp(P,2,diag)
    A=R+16; ACC=R+16+32
    seq=[(ks,ct) for ks in range(nks) for ct in range(4)]
    for n,(ks,ct) in enumerate(seq):
        for hf in range(2): P.I(f"ds_read_b64_tr_b16 {vr(A+4*n+2*hf,2)}, v{8+ct} offset:{ks*4096+hf*512}")
    for n,(ks,ct) in enumerate(seq):
        P.I(f"v_mfma_f32_16x16x32_bf16 {vr(ACC+4*ct,4)}, {vr(A+4*n,4)}, {vr(R+4*ks,4)}, {vr(ACC+4*ct,4) if ks else 0}")
    P.I(f"v_mov_b32 v{R+3}, s{sTAG}")
    for ct in range(4):
        for e in range(2): P.I(f"v_cndmask_b32 v{A+2*ct+e}, v{ACC+4*ct+e}, v{ACC+4*ct+2+e}, {sp(sT0)}")
    for c2 in range(2):
        for e in range(2): P.I(f"v_cndmask_b32 v{A+8+2*c2+e}, v{A+4*c2+e}, v{A+4*c2+2+e}, {sp(sT2)}")
    for e in range(2): P.I(f"v_cndmask_b32 v{R+e}, v{A+8+e}, v{A+10+e}, {sp(sT4)}")
    P.I(f"""s_mov_b32 exec_lo, 0x00ff00ff
s_mov_b32 exec_hi, 0x00ff00ff
buffer_store_dwordx4 {vr(R,4)}, v{A0+5}, {sp(rWS,4)}, s99 offen {PUB}
s_mov_b64 exec, -1""")
def raw_wd_loads(P, NT):
    P.I(f"s_lshl_b32 s{sT0}, s{sW}, 11\ns_lshl_b32 s{sT1}, s{sW}, 7\ns_add_u32 m0, s{sT0}, {L_DR}\ns_add_u32 s{sT1}, s{sT1}, s91")
    P.I(f"buffer_load_dwordx4 v{vRA+4}, {sp(rWD,4)}, s{sT1} offen {NT} lds", tag='dr')
    P.I(f"s_add_u32 m0, s{sT0}, {L_DR+1024-64}\nv_add_u32 v245, s{sT0}, v{vRA}")
    P.I(f"buffer_load_dwordx4 v{vRA+4}, {sp(rWD,4)}, s{sT1} offen offset:64 {NT} lds", tag='dr')
PRE_S=0
def wd_scalars(d):
    return f"""s_and_b32 s{d}, s{sFS}, 1
s_lshl2_add_u32 s{d}, s{d}, s{sW}
s_mul_i32 s{d}, s{d}, {2*112}
s_lshr_b32 s{d+1}, s{sFS}, 1
s_add_u32 s{d}, s{d}, s{d+1}
s_lshl_b32 s{d}, s{d}, 10
s_add_u32 s{d}, s{d}, {WS_WDF}
s_add_u32 s{d+1}, s{d}, {112*1024}""".split('\n')
def w_scalars(): return [f"s_mul_i32 s95, s{sW}, {16*3584}", "s_add_u32 s95, s95, s90", f"s_lshl_b32 s96, s{sW}, 12"]
def wd_job(P, ST):
    A=vHF+8; d=22 if PRE_S else sT0
    P.I("@wait dr")
    for f in range(2):
        for hf in range(2): P.I(f"ds_read_b64_tr_b16 {vr(A+4*f+2*hf,2)}, v245 offset:{f*1024+hf*256}")
    if not PRE_S: P.extend(wd_scalars(d))
    for f in range(2):
        P.I(f"buffer_store_dwordx4 {vr(A+4*f,4)}, v{vL16}, {sp(rWJ,4)}, s{d+f} offen {ST}", tag='wdst')
def raw_w_loads(P, NT):
    if not PRE_S: P.extend(w_scalars())
    for q in range(2):
        for mat,r in ((0,rWG),(1,rWU)):
            P.I(f"s_add_u32 m0, s96, {L_WR+mat*2048+q*1024}")
            P.I(f"s_add_u32 s95, s95, {8*3584}" if (q and not mat) else "s_nop 0")
            P.I(f"buffer_load_dwordx4 v{vRA+2+mat}, {sp(r,4)}, s95 offen {NT} lds", tag='wr')

def cmul(o,a,b,t):
    return [f"v_pk_mul_f32 {vr(t,2)}, {vr(a,2)}, {vr(b,2)} op_sel_hi:[0,1]",
            f"v_pk_fma_f32 {vr(o,2)}, {vr(a,2)}, {vr(b,2)}, {vr(t,2)} op_sel:[1,1,0] op_sel_hi:[1,0,1] neg_lo:[1,0,0]"]
def factor_gen(P, lo=0, hi=99, grp=1, fill=None):
    B=vFG; are,aim,bre,bim,cre,cim=[vPAR+i for i in range(6)]
    R1,R8,R128,LOc,TMP,PK = B,B+2,B+4,B+6,B+8,B+12
    Pc=[B+16+2*c for c in range(8)]
    zr,zi,dt=B+32,B+33,B+34; M=[2,4,6]; PH=[8,9,10]
    if lo: P.I("s_mov_b32 m0, s92")
    else: P.I(f"s_lshr_b32 s{sT0}, s{sW}, 1\ns_mul_i32 s{sT1}, s{sT0}, {64*FP-512}\ns_lshl_b32 s{sT2}, s{sW}, 8\ns_add_u32 m0, s{sT1}, s{sT2}"+("\ns_mov_b32 s92, m0" if hi<57 else ""))
    P0=P
    if lo: P=Prog()
    P.I(f"""s_lshl_b32 s{sT0}, s{sT0}, 4
s_lshr_b32 s{sT1}, s{sLD}, s{sT0}
s_lshl_b32 s{sT1}, s{sT1}, 16
v_mov_b32 v{dt}, {hex(LOG2E)}
v_mul_f32 v{dt}, s{sT1}, v{dt}
v_exp_f32 v{dt}, v{dt}""")
    P.extend(cmul(Pc[0],cre,bre,TMP))
    P.I(f"""v_cvt_pk_bf16_f32 v{dt}, v{dt}, v{dt}
v_and_b32 v{dt}, 0xffff0000, v{dt}
v_mul_f32 v{zr}, v{dt}, v{are}
v_mul_f32 v{zi}, v{dt}, v{aim}
v_mul_f32 v{zr}, {hex(LOG2E)}, v{zr}
v_mul_f32 v{zi}, 0.15915494, v{zi}
v_pk_mul_f32 {vr(Pc[0],2)}, {vr(Pc[0],2)}, {vr(dt,2)} op_sel_hi:[1,0] neg_hi:[1,0]""")
    cx=((R1,1,True),(R8,8,False),(R128,128,True))
    for (o,sc,cj),m,ph in zip(cx,M,PH):
        if sc==1: P.I(f"v_exp_f32 v{m}, v{zr}\nv_fract_f32 v{ph}, v{zi}")
        else: P.I(f"v_mul_f32 v{m}, {hex(f32(sc))}, v{zr}\nv_mul_f32 v{ph}, {hex(f32(sc))}, v{zi}\nv_exp_f32 v{m}, v{m}\nv_fract_f32 v{ph}, v{ph}")
        P.I(f"v_cos_f32 v{o}, v{ph}\nv_sin_f32 v{o+1}, v{ph}")
    for (o,sc,cj),m,ph in zip(cx,M,PH):
        P.I(f"v_pk_mul_f32 {vr(o,2)}, {vr(o,2)}, {vr(m,2)} op_sel_hi:[1,0]" + (" neg_hi:[1,0]" if cj else ""))
    P=P0
    steps_lo=[('one',48),('put',49,R8)]+[('mul',48+b,LOc,(R8 if b==2 else LOc),R8) for b in range(2,16)]
    steps_hi=[('put',0,Pc[0])]+[('mul',c,Pc[c],Pc[c-1],R1) for c in range(1,8)]
    row=8
    for e in range(1,17):
        cs = range(8) if e<2 else range(0,8,2) if e<4 else (0,4) if e<8 else (0,)
        for c in cs:
            assert HI[row]==128*e+c
            steps_hi.append(('mul',row,Pc[c],Pc[c],R128)); row+=1
    fill=fill if fill is not None else []; pend=[]
    def sz(t):
        Q=[Ins(t)]; sizes(Q); return Q[0].size
    def flush():
        odd=False; n=len(pend)+1; slot=0
        for i,w in enumerate(pend):
            for _ in range(1 if i else 2):
                slot+=1
                if slot==n and ALN:
                    if fill and (sz(fill[0])==4)==odd: P.I(fill.pop(0))
                    elif odd: P.I("s_nop 0")
                elif fill: odd^=(sz(fill[0])==4); P.I(fill.pop(0))
            P.I(w)
        pend.clear()
    for k,s in enumerate(steps_lo+steps_hi):
        if not lo<=k<hi: continue
        kk=PK+(k&3)
        if s[0]=='one': P.I(f"v_mov_b32 v{kk}, 0x3f80")
        else:
            if s[0]=='mul': P.extend(cmul(s[2],s[3],s[4],TMP+2*(k&1)))
            P.I(f"v_cvt_pk_bf16_f32 v{kk}, v{s[2]}, v{s[2]+1}")
        pend.append(f"ds_write_addtid_b32 v{kk} offset:{L_F+s[1]*FP}")
        if len(pend)==grp: flush()
    flush()

vKH=156
LB=0; SD=0; M2H=0
def epoch_sync(P):
    P.I(f"s_waitcnt lgkmcnt(0)\ns_or_b32 s{sTAG}, s{sTAG}, 0x7f800000\ns_add_u32 s{sTAG}, s{sTAG}, 1\ns_or_b32 s{sTAG}, s{sTAG}, 0x7f800000\ns_barrier")
def kgen_init(P, part=0):
    ACC=vHF
    if part==1:
        P.I(f"s_mul_i32 s{sT2}, s{sW}, {16*FP}\nv_add_u32 v{vKH}, s{sT2}, v{vKF}")
        for r in range(8): P.I(f"v_mov_b32 v{ACC+r}, 0")
        return
    if part==2:
        P.I(f"s_lshl_b32 s{sT2}, s{sDS}, 16\ns_and_b32 s{sT3}, s{sDS}, 0xffff0000\nv_writelane_b32 v{ACC}, s{sT2}, 0\nv_writelane_b32 v{ACC+4}, s{sT3}, 0")
        return
    P.I(f"""s_lshl_b32 s{sT0}, s{sDS}, 16
s_and_b32 s{sT1}, s{sDS}, 0xffff0000
v_cmp_eq_u32 vcc, 0, v0
v_mov_b32 v2, s{sT0}
v_mov_b32 v3, s{sT1}
s_mul_i32 s{sT2}, s{sW}, {16*FP}
v_cndmask_b32 v{ACC}, 0, v2, vcc
v_cndmask_b32 v{ACC+4}, 0, v3, vcc
v_add_u32 v{vKH}, s{sT2}, v{vKF}""")
    for r in (1,2,3,5,6,7): P.I(f"v_mov_b32 v{ACC+r}, 0")
def kgen(P, diag, mid=[], skip=0, order=0):
    A=vROLE; ACC=vHF
    Q=Prog(); table_unpack(Q); tu=[x.text for x in Q.ins]
    P.I(f"s_cmp_eq_u32 s{sW}, 3\ns_cbranch_scc1 L_wdjob\ns_waitcnt lgkmcnt(0)\ns_barrier")
    def rd(n):
        ks,ch=n>>1,n&1; b=A+8*(n%9)
        return [f"ds_read_b128 {vr(b,4)}, v{vKF} offset:{ch*64*FP+48*FP+ks*64}", f"ds_read_b128 {vr(b+4,4)}, v{vKH} offset:{ch*64*FP+ks*64}"]
    for n in range(7): P.extend(rd(n))
    P.extend(tu[:5])
    m2=[[Ins(x.text,x.tag) for x in g] for g in mid]; mid=list(mid)
    for n in range(16):
        if mid and n>=skip: P.extend(mid.pop(0))
        b=A+8*(n%9); a=vr(ACC+4*(n&1),4)
        P.I(f"v_mfma_f32_16x16x32_bf16 {a}, {vr(b,4)}, {vr(b+4,4)}, {a}")
        if n+7<16: P.extend(rd(n+7))
    P.extend(tu[5:])
    for r in range(4): P.I(f"v_cvt_pk_bf16_f32 v{8+r}, v{ACC+r}, v{ACC+4+r}")
    P.I(f"ds_write_b128 v{vKC}, v[8:11]\ns_branch L_kgen_end\nL_wdjob:")
    Q=Prog(); mod_job(Q,'sc1',diag,2); cutq=[i for i,x in enumerate(Q.ins) if x.op=='@wait'][0]
    cutq = 0 if not M2H else cutq if M2H==1 else len(Q.ins)
    P.extend(Q.ins[:cutq])
    P.I("s_waitcnt lgkmcnt(0)\ns_barrier")
    if not M2H: P.extend(tu)
    if order==0:
        for g in m2: P.extend(g)
    P.extend(Q.ins[cutq:])
    if M2H: P.extend(tu)
    if order==1:
        for g in m2: P.extend(g)
    P.I(f"ds_write_b128 v{vRA+1}, {vr(ACC,4)}")
    P.I("L_kgen_end:")

def poll_groups(extra=None, XL='sc1', xfirst=0, SL='sc1'):
    Q=Prog(); poll_loads(Q,XL,xfirst,SL); G=[[]]
    if extra: extra(Q)
    for x in Q.ins:
        G[-1].append(x)
        if x.kind=='vmem': G.append([])
    return G[:-1]
def poll_loads(P, XL='sc1', xfirst=0, SL='sc1'):
    LD='sc1'
    P.I(f"s_mul_i32 s94, s{sP}, 12288\ns_add_u32 s94, s94, {WS_XG}")
    X=[(f"s_add_u32 s94, s94, 4096\n" if g else "")+f"buffer_load_dwordx4 {vr(vPOLL+4*g,4)}, v{vT16}, {sp(rWS,4)}, s94 offen {XL}" for g in range(3)]
    S=[f"s_mov_b32 s79, {WS_SG+g*4096}\nbuffer_load_dwordx4 {vr(vPOLL+12+4*g,4)}, v{vT16}, {sp(rWS,4)}, s79 offen {LD}" for g in range(3)]
    if SGP: S=[(f"s_mov_b32 s79, {WS_SG}\nv_lshlrev_b32 v157, {SGP}, v0\n" if g==0 else "")+f"buffer_load_dwordx4 {vr(vPOLL+12+4*g,4)}, v157, {sp(rWS,4)}, s79 offen offset:{16*g} {SL}" for g in range(3)]
    M=[f"s_lshl4_add_u32 s3, s{sP}, {WS_MG}\nbuffer_load_dwordx4 {vr(vPOLL+24,4)}, v{vMC}, {sp(rWS,4)}, s3 offen {LD}"]
    for t in (X+S+M if xfirst==1 else S+M+X if xfirst==2 else M+S+X if xfirst==3 else [y for p in zip(X,S) for y in p]+M): P.I(t, tag='pollx' if t in X else 'poll')
vQ=144
def poll2_loads(P):
    P.I(f"""s_lshl4_add_u32 s3, s{sP}, {WS_MG+0x20000}
buffer_load_dwordx4 {vr(vQ,4)}, v{vSEL1}, {sp(rWS,4)}, s3 offen sc1
s_lshl2_add_u32 s3, s{sKE}, s{sW}
s_lshl_b32 s3, s3, 7
s_add_u32 s3, s3, {WS_MG+0x20000+8*4096}
buffer_load_dwordx4 {vr(vQ+4,4)}, v{vMW}, {sp(rWS,4)}, s3 offen sc1
s_add_u32 s3, s3, {4*4096}""")
    P.I(f"buffer_load_dwordx4 {vr(vQ+8,4)}, v{vMW}, {sp(rWS,4)}, s3 offen sc1", tag='poll2')
def poll2_work(ST):
    mc,mw=vQ,vQ+4; dpp=" row_mask:0xf bank_mask:0xf"
    L=[["L_p2_chk:","@wait poll2",f"v_min3_u32 v2, v{vQ+3}, v{vQ+7}, v{vQ+11}",f"v_max3_u32 v3, v{vQ+3}, v{vQ+7}, v{vQ+11}",f"v_min_u32 v2, s{sTAG}, v2",f"v_max_u32 v3, s{sTAG}, v3",
        "v_cmp_ne_u32 vcc, v2, v3","s_cbranch_vccnz L_q_retry","L_q_ok:"]]
    L[0][0]="L_q_chk:"
    X=[f"v_add_f32 v{mw}, v{mw}, v{vQ+8}",f"v_add_f32 v{mw+1}, v{mw+1}, v{vQ+9}"]
    for m in ("quad_perm:[1,0,3,2]","quad_perm:[2,3,0,1]"):
        X+=[f"v_add_f32_dpp v{r}, v{r}, v{r} {m}{dpp}" for r in (mc,mc+1,mw,mw+1)]
    X+=[f"v_add_f32_dpp v{r}, v{r}, v{r} row_half_mirror{dpp}" for r in (mc,mc+1)]
    X+=[f"v_cvt_pk_bf16_f32 v{mw+1}, v{mw}, v{mw+1}", f"v_cvt_pk_bf16_f32 v{mc+1}, v{mc}, v{mc+1}",
        f"v_lshlrev_b32 v{mw}, 16, v{mw+1}", f"v_and_b32 v{mw+1}, 0xffff0000, v{mw+1}", f"v_lshlrev_b32 v{mc}, 16, v{mc+1}", f"v_and_b32 v{mc+1}, 0xffff0000, v{mc+1}",
        f"v_add_f32 v{mw}, v{mw}, v{vSEL2}", f"v_add_f32 v{mw+1}, v{mw+1}, v{vSEL2}", f"v_cvt_pk_bf16_f32 v{mw+1}, v{mw}, v{mw+1}",
        f"v_lshlrev_b32 v{mw}, 16, v{mw+1}", f"v_and_b32 v{mw+1}, 0xffff0000, v{mw+1}", f"ds_write_b64 v{vGW}, {vr(mw,2)}"]
    late=[f"v_mov_b32_dpp v{vMOD+4+2*k+e}, v{mc+e} row_newbcast:{8*k}{dpp}" for k in range(2) for e in range(2)]
    return L[0],X,late
PG0=0; ALN=1; BACKOFF=0; PREW=0; SGP=0
def writeback(cnt, lbl, on):
    if not on: return (["s_waitcnt vmcnt(0)"] if PREW else [])+([f"s_sleep {BACKOFF}"] if BACKOFF else [])
    return [f"s_and_b32 s4, s{cnt}, 3","s_cmp_lg_u32 s4, 0",f"s_cbranch_scc1 {lbl}","buffer_wbl2 sc1","s_waitcnt vmcnt(0)",f"{lbl}:"] if on else []
def retry2_block(P, loc=0, mask=0):
    P.I(f"L_q_retry:\ns_add_u32 s{sCNT}, s{sCNT}, 1\ns_cmp_gt_u32 s{sCNT}, 20000\n@loopok\ns_cbranch_scc1 L_q_ok")
    P.extend(writeback(sCNT,'L_q_nowb',loc))
    if mask: P.I("s_mov_b64 exec, vcc")
    poll2_loads(P)
    if mask: P.I("s_mov_b64 exec, -1")
    P.I("s_waitcnt vmcnt(0) lgkmcnt(0)\ns_branch L_q_chk")

vGA=140
def table_unpack(P):
    P.I(f"v_mov_b32 v{vUA}, v{vTAB+7}\nv_mov_b32 v{vKA}, v{vTAB+6}")
    for j in range(11):
        P.I(f"v_lshrrev_b32 v{vGA+j}, 16, v{vTAB+j//2}" if j&1 else f"v_and_b32 v{vGA+j}, 0xffff, v{vTAB+j//2}")
def k_image(P, G, npre, skip, w0at=0):
    E=vROLE+40; O=vROLE; GA=vGA
    G0=[[Ins(x.text,x.tag) for x in g] for g in G[:npre]] if w0at else []
    if w0at: P.I(f"@wait dr\ns_cmp_eq_u32 s{sW}, 0\ns_cbranch_scc1 L_w0a")
    for _ in range(npre): P.extend(G.pop(0))
    if w0at: P.I("L_w0a:")
    P.I(f"""s_mov_b32 s{sT4}, 0x05040100
s_mov_b32 s{sT5}, 0x07060302
v_add_u32 v2, {L_KI}, v{vT16}
s_waitcnt lgkmcnt(0)
s_barrier""")
    for j in range(11): P.I(f"ds_read_b32 v{E+j}, v{GA+j}")
    k=0
    for c in (3,2,1,0):
        for ch in range(2):
            o=O+4*k; k+=1
            for i in range(4):
                j=3-c+2*i
                P.I(f"v_perm_b32 v{o+i}, v{E+j+1}, v{E+j}, s{sT4+ch}")
            P.I(f"ds_write_b128 v2, {vr(o,4)} offset:{(ch*4+c)*KIP}")
            if k==w0at:
                P.I(f"s_cmp_lg_u32 s{sW}, 0\ns_cbranch_scc1 L_w0b\n@forget "+" ".join(str(r) for r in range(vPOLL,vPOLL+28)))
                for g in G0: P.extend(g)
                P.I("L_w0b:")
            if G and k>skip: P.extend(G.pop(0))
    for g in G: P.extend(g)

def retry_block(P, loc=0, mask=0):
    P.I(f"L_ka_retry:\ns_add_u32 s{sCNT}, s{sCNT}, 1\ns_cmp_gt_u32 s{sCNT}, 20000\n@loopok\ns_cbranch_scc1 L_ka_ok")
    P.extend(writeback(sCNT,'L_ka_nowb',loc))
    if mask:
        G=poll_groups(None,'sc1',3)
        P.extend(G[0]); P.I("s_mov_b64 exec, vcc")
        for g in G[1:]: P.extend(g)
        P.I("s_mov_b64 exec, -1")
    else: poll_loads(P)
    P.I("s_waitcnt vmcnt(0) lgkmcnt(0)\ns_branch L_ka_chk")

def make_h(P, diag, q2=False):
    Q=vPOLL; mc=Q+24; Mm=vROLE; Mr=vROLE+8; O=vROLE+16; A=vROLE+24; B=vROLE+40
    dpp=" row_mask:0xf bank_mask:0xf"
    P.I(f"s_mov_b32 s{sCNT}, 0\nv_add_u32 v4, {L_H+480}, v{vT16}\nL_ka_chk:\n@wait poll")
    chain=[]
    for m in ("quad_perm:[1,0,3,2]","quad_perm:[2,3,0,1]","row_half_mirror","row_mirror"):
        chain.append([f"v_add_f32_dpp v{r}, v{r}, v{r} {m}{dpp}" for r in (mc,mc+1)])
    chain+=[[f"v_cvt_pk_bf16_f32 v{mc}, v{mc}, v{mc+1}", f"v_mov_b32 v{mc+1}, v{mc}"],
            [f"v_permlane16_swap_b32 v{mc}, v{mc+1}", f"v_lshlrev_b32 v{vMOD}, 16, v{mc}", f"v_and_b32 v{vMOD+1}, 0xffff0000, v{mc}", f"v_lshlrev_b32 v{mc}, 16, v{mc+1}", f"v_and_b32 v{mc+1}, 0xffff0000, v{mc+1}"],
            [f"v_add_f32 v{mc}, 1.0, v{mc}", f"v_add_f32 v{mc+1}, 1.0, v{mc+1}", f"v_cvt_pk_bf16_f32 v{mc}, v{mc}, v{mc+1}"],
            [f"v_lshlrev_b32 v{vMOD+2}, 16, v{mc}", f"v_and_b32 v{vMOD+3}, 0xffff0000, v{mc}"]]
    for r in range(8):
        st=Q+12+4*(r//3)+r%3
        P.extend(chain[r])
        P.I(f"v_and_b32 v{Mr+r}, 0xffff0000, v{st}\nv_lshlrev_b32 v{Mm+r}, 16, v{st}\nv_rcp_f32 v{Mr+r}, v{Mr+r}")
    P.I(f"""v_min3_u32 v2, s{sTAG}, v{Q+27}, v{Q+15}
v_max3_u32 v3, s{sTAG}, v{Q+27}, v{Q+15}
v_min3_u32 v2, v2, v{Q+19}, v{Q+23}
v_max3_u32 v3, v3, v{Q+19}, v{Q+23}""")
    for ch in range(2):
        for r in range(0,8,2): P.I(f"v_pk_mul_f32 {vr(A+8*ch+r,2)}, {vr(Mr+r,2)}, {vr(vMOD+2,2)} op_sel:[0,{ch}] op_sel_hi:[1,{ch}]")
    for ch in range(2):
        for r in range(0,8,2): P.I(f"v_pk_fma_f32 {vr(B+8*ch+r,2)}, {vr(Mm+r,2)}, {vr(A+8*ch+r,2)}, {vr(vMOD,2)} op_sel:[0,0,{ch}] op_sel_hi:[1,1,{ch}] neg_lo:[1,0,0] neg_hi:[1,0,0]")
    P.I(f"""@wait pollx
v_min3_u32 v2, v2, v{Q+3}, v{Q+7}
v_max3_u32 v3, v3, v{Q+3}, v{Q+7}
v_min_u32 v2, v2, v{Q+11}
v_max_u32 v3, v3, v{Q+11}
v_cmp_ne_u32 vcc, v2, v3""")
    xr=lambda r: Q+4*(r//3)+r%3
    P.I(f"v_lshlrev_b32 v{vXF}, 16, v{xr(0)}\ns_cbranch_vccnz L_ka_retry\nL_ka_ok:")
    if diag: P.I(f"s_add_u32 s{sCNT}, s{sCNT}, 1\nv_writelane_b32 v255, s{sCNT}, 31")
    stamp(P,11,diag)
    if q2: poll2_loads(P)
    for ch in range(2):
        for r in range(8):
            if ch or r: P.I(f"v_and_b32 v{vXF+8+r}, 0xffff0000, v{xr(r)}" if ch else f"v_lshlrev_b32 v{vXF+r}, 16, v{xr(r)}")
        for r in range(0,8,2): P.I(f"v_pk_fma_f32 {vr(A+8*ch+r,2)}, {vr(vXF+8*ch+r,2)}, {vr(A+8*ch+r,2)}, {vr(B+8*ch+r,2)}")
        for r in range(0,8,2): P.I(f"v_cvt_pk_bf16_f32 v{O+4*ch+r//2}, v{A+8*ch+r}, v{A+8*ch+r+1}")
        P.I(f"ds_write_b128 v4, {vr(O+4*ch,4)} offset:{ch*HP}")

def gb_store(P, ST):
    P.I(f"""s_cmp_lg_u32 s{sW}, 2
s_cbranch_scc1 L_nogb
s_lshl3_add_u32 s{sT2}, s{sP}, {WS_GBF}
s_mov_b64 exec, 1
buffer_store_dwordx2 {vr(vMOD+6,2)}, v{vL16}, {sp(rWS,4)}, s{sT2} offen {ST}
s_mov_b64 exec, -1
L_nogb:""")
def w_side(ST):
    RAW=vPOLL; WP=vPOLL+16; GB=[48,64,80,96]; U=112; S1,S2=vHF,vHF+2
    rd=[]; main=[]; sums=[]
    for k in range(4):
        g=GB[k]
        rd.append([f"ds_read_b64_tr_b16 {vr(RAW+4*k+2*hf,2)}, v{vWRA} offset:{k*4096+hf*512}" for hf in range(2)]
                 +[f"ds_read_b128 {vr(g+4*q,4)}, v{vGR} offset:{k*64+q*16}" for q in range(2)])
        L=[]
        for d in range(4):
            u=U+8*k+2*d
            L+=[f"v_lshlrev_b32 v{u}, 16, v{RAW+4*k+d}", f"v_and_b32 v{u+1}, 0xffff0000, v{RAW+4*k+d}",
                f"v_mul_f32 v{g+2*d}, v{u}, v{g+2*d}", f"v_mul_f32 v{g+2*d+1}, v{u+1}, v{g+2*d+1}", f"v_cvt_pk_bf16_f32 v{WP+4*k+d}, v{g+2*d}, v{g+2*d+1}"]
        L.append((f"buffer_store_dwordx4 {vr(WP+4*k,4)}, v{vL16}, {sp(rWJ,4)}, s{sWO} offen {ST}",'wpst'))
        if k<3: L.append(f"s_add_u32 s{sWO}, s{sWO}, s{sWST}")
        main.append(L)
        for i in range(8):
            e=i&1; first=(k==0 and i<2)
            sums.append(f"v_mul_f32 v{S2+e}, v{U+8*k+i}, v{g+8+i}" if first else f"v_fmac_f32 v{S2+e}, v{U+8*k+i}, v{g+8+i}")
            if k==0 and i<2: continue
            sums.append(f"v_add_f32 v{S1+e}, v{g+e}, v{g+i}" if (k==0 and i<4) else f"v_add_f32 v{S1+e}, v{S1+e}, v{g+i}")
    rdsb=[f"ds_read_b128 {vr(GB[k]+8+4*q,4)}, v{vGR} offset:{256+k*64+q*16}" for k in range(4) for q in range(2)]
    tail=[f"v_add_f32 v{S1}, v{S1}, v{S1+1}", f"v_add_f32 v{S2}, v{S2}, v{S2+1}", f"v_mov_b32 v{S1+1}, v{S1}", f"v_mov_b32 v{S2+1}, v{S2}",
          f"v_lshlrev_b32 v2, 2, v{vLANE}", "s_nop 0",
          f"v_permlane32_swap_b32 v{S1}, v{S1+1}", f"v_permlane32_swap_b32 v{S2}, v{S2+1}",
          f"v_add_f32 v{S1}, v{S1}, v{S1+1}", f"v_add_f32 v{S2}, v{S2}, v{S2+1}", f"v_cvt_pk_bf16_f32 v{S1}, v{S1}, v{S2}",
          "s_mov_b32 exec_hi, 0", (f"buffer_store_dword v{S1}, v2, {sp(rWJ,4)}, s{sWA} offen {ST}",'auxst'), "s_mov_b64 exec, -1"]
    return rd,main,rdsb,sums,tail

def conv_reads(vi):
    b=vi&1; o=192-64*vi
    U=[(f"ds_read_b128 {ar(64+32*b+4*k,4)}, v{vUA} offset:{512*k+o}",f"c{vi}_{k}") for k in range(8)]
    K=[[(f"ds_read_b64 {ar(32*b+4*k+2*hf,2)}, v{vKA} offset:{512*(7-k)+o+8*hf}",f"c{vi}_{k}") for hf in range(2)] for k in range(8)]
    return U,K
def conv(P, ST, cfg, midbar, wdj, wd0, H={}):
    ACC=16
    order=sorted([(u,s) for u in range(8) for s in range(8) if u+s<8], key=lambda t:(t[1],t[0]))
    rd,main,rdsb,sums,tail=w_side(ST)
    chk,work,bc=poll2_work(ST)
    Q=Prog(); gb_store(Q,ST); gbs=[[x.text for x in Q.ins]]
    P.extend(conv_reads(0)[0])
    v2s=list(H.get('v2side',[])); v3m=list(H.get('v3mem',[])); go=False
    first=set(); side=[]; QAT=cfg.get('QAT',20); LV=cfg.get('LV',1); FV=cfg.get('FV',LV); SL=cfg.get('SUMLATE',0)
    for vi in range(4):
        b=vi&1; nxt=[]
        if vi==LV: nxt+=[(x,'wtr') for r in rd[:2] for x in r]+wdj[:4]
        if vi<3:
            U,K=conv_reads(vi+1); nxt+=[y for k in range(8) for y in [U[k]]+K[k]]
        if vi==0 and LV: side+=work
        if vi==1 and LV>1: side+=bc+gbs
        if vi==LV: side+=['@wait wtr']+rd[2]+rd[3]+main[0]+wdj[4:]+main[1]+([] if SL else rdsb)+main[2]+main[3]+(bc+gbs if LV<=1 else [])+([] if SL else sums)
        waits = {0:0,8:1,15:7} if vi==0 else {0:7}
        start = 8 if vi==LV else QAT+1 if vi==0 else 0
        for n,(u,s) in enumerate(order if (vi==0 or not cfg.get('ORD',1)) else sorted(order,key=lambda t:(t[0]+t[1],t[0]))):
            t=u+s; a=vr(ACC+4*t,4)
            if n in waits: P.I(f"@wait c{vi}_{waits[n]}")
            P.I(f"v_mfma_f32_16x16x32_bf16 {a}, {ar(32*b+4*u,4)}, {ar(64+32*b+4*s,4)}, {a if t in first else 0}"); first.add(t)
            slots=2-((n+1) in waits or n==35)
            if vi==0 and FV==0 and n==0: P.extend(midbar); continue
            if vi in (LV,FV) and n==0 and vi:
                P.I("@wait"+(" wr dr" if vi==LV else "")+(" wdst" if vi==FV else "")+"\ns_waitcnt lgkmcnt(0)\ns_barrier")
                if vi==FV: P.extend(midbar)
                continue
            if vi==0 and n==QAT and LV: P.extend(chk); continue
            if (vi,n) in H.get('hook',{}):
                if vi==3: assert not v2s; go=True
                P.extend(H['hook'][(vi,n)]); slots-=len(H['hook'][(vi,n)])
            elif go and v3m and n%cfg.get('WDVS',2)==0:
                x=v3m.pop(0); P.extend(x); slots-=len(x)
            if nxt:
                P.extend([nxt.pop(0)]); slots-=1
                if n<start and slots and nxt: P.extend([nxt.pop(0)]); slots-=1
            while slots>0 and wd0 and vi==0 and not nxt and n<QAT: P.extend([wd0.pop(0)]); slots-=1
            while slots>0 and v2s and vi==0 and not nxt and (n<QAT and len(v2s)>2 or n>QAT and not side): P.extend([v2s.pop(0)]); slots-=1
            while slots>0 and side and n>=start:
                x=side.pop(0)
                if isinstance(x,list): P.extend(x); slots=0
                else: P.extend([x]); slots-=1
        assert not nxt, len(nxt)
        if vi==0 and LV: P.extend(side+wd0+v2s); print('  conv step 0 spill',len(side),len(wd0),len(v2s)); side=[]; wd0=[]; v2s=[]
        print('  conv step',vi,'side backlog',len(side))
    for x in v3m: side+=x
    assert not any(isinstance(x,list) for x in side)
    if SL: return ACC,side,rdsb+sums+tail
    return ACC,side+tail,[]

def conv_epilogue(P, ACC, tail, XST, pre=[], prebar=[], postbar=[], tmax=99, after=[]):
    tail=list(tail); P.extend(pre)
    for t in range(8):
        P.I(f"ds_write_b128 v{vYW}, {vr(ACC+4*t,4)} offset:{1280*t}")
        k=min(max(5,-(-len(tail)//(8-t))),len(tail),tmax)
        if len(tail)-k<4: k=len(tail)
        P.extend(tail[:k]); tail=tail[k:]
    P.extend(prebar)
    P.I(f"s_mul_i32 s{sT0}, s{sP}, {12288 if XIN else 128}\ns_add_u32 s{sT0}, s{sT0}, {WS_XG if XIN else WS_X1B}\ns_waitcnt lgkmcnt(0)\ns_barrier")
    Y=16
    for ch in range(2):
        for g in range(2):
            for vh in range(2):
                P.I(f"ds_read_b128 {vr(Y+16*ch+8*vh+4*g,4)}, v{vYR} offset:{L_Y+(2*ch+vh)*10240+320*g}")
    P.extend(postbar)
    for ch in range(2):
        y=Y+16*ch
        for r in range(0,8,2): P.I(f"v_pk_add_f32 {vr(y+r,2)}, {vr(y+r,2)}, {vr(y+8+r,2)}")
        for r in range(0,8,2): P.I(f"v_pk_fma_f32 {vr(y+r,2)}, {vr(y+r,2)}, {vr(vMOD+4,2)}, {vr(vXF+8*ch+r,2)} op_sel:[0,{ch},0] op_sel_hi:[1,{ch},1]")
        for r in range(0,8,2): P.I(f"v_cvt_pk_bf16_f32 v{4+4*ch+r//2}, v{y+r}, v{y+r+1}")
        P.I(f"buffer_store_dwordx4 {vr(4+4*ch,4)}, v{vXO}, {sp(rWS,4)}, s{sT0} offen offset:{64*ch} {XST}", tag='x1st')
    print('  after the x1 stores:', len(tail), '+', len(after))
    P.extend(tail); P.extend(after)

def body(P, n, diag, cfg, H):
    NT=cfg.get('NT','nt'); ST='sc1'
    entry(P,n,diag,256,cfg.get('PERM',[2,3,0,5,1,7,4,6] if cfg.get('QSYNC',0) else None)); role_addr(P,cfg.get('LOC',0))
    P.I("s_waitcnt lgkmcnt(0)"); stamp0_commit(P,diag)
    if cfg.get('WSB',0): P.I(f"s_add_u32 s{sWS}, s{sWS}, {cfg['WSB']<<20}\ns_addc_u32 s{sWS+1}, s{sWS+1}, 0")
    po=cfg.get('PORD',0); m2=cfg.get('M2AT',0); global JW
    assert not (po and cfg.get('CUT',0)) and not (m2>0 and cfg.get('CUT',0))
    JW=(8 if po else 0)
    stamp(P,26,diag and ONLY and 26 in ONLY)
    early_loads(P,NT,not po)
    role_loads(P,cfg.get('XNT',NT),0,cfg.get('SD',0))
    if po: param_loads(P,NT)
    df=cfg.get('DEFER',0); global PRE_S; PRE_S=df; grp=cfg.get('GRP',1)
    table_loads(P)
    if m2==-1: role_loads(P,NT,1)
    fill=setup(P,False,cfg.get('X',''),cfg.get('WMAP',0) or cfg.get('QSYNC',0),df); P.extend(H['setup'])
    if df:
        assert cfg.get('WAT',1)>=1 and cfg.get('DAT',0)<2 and not cfg.get('WJAT',0)
        fill+=w_scalars()+wd_scalars(22)+H['defer']
    if m2==0: role_loads(P,NT,1)
    global LB, SD, M2H; M2H=cfg.get('M2H',0); LB=cfg.get('LB',0); SD=cfg.get('SD',0); assert not (LB and cfg.get('CUT',0))
    if not LB: epoch_sync(P)
    stamp(P,1,diag)
    kgen_init(P, 1 if LB else 0)
    H['idle'](P)
    P.I("@forget "+" ".join(str(r) for r in list(range(vPAR,vPAR+6))+[vROLE]+list(range(vTAB,vTAB+8))))
    cut=cfg.get('CUT',0)
    if cut:
        P.I(f"s_waitcnt vmcnt(10)\ns_cmp_lg_u32 s{sW}, 2\ns_cbranch_scc1 L_f1\ns_waitcnt vmcnt(6)\nL_f1:")
        P.I("@forget "+" ".join(str(r) for r in list(range(vPAR,vPAR+6))+[vROLE]+list(range(vTAB,vTAB+8))))
        factor_gen(P,0,cut,grp)
        stamp(P,10,diag)
        P.I(f"s_cmp_eq_u32 s{sW}, 3\ns_cbranch_scc1 L_xje")
    x_jobs(P,'sc1',diag,cfg.get('LOC',0))
    P.I("@forget "+" ".join(str(r) for r in list(range(vPAR,vPAR+6))+[vROLE]+list(range(vTAB,vTAB+8))))
    if LB: P.extend(H['tagreg'])
    stamp(P,3,diag)
    da,wa=cfg.get('DAT',0),cfg.get('WAT',1)
    def raws(k):
        if da==k: raw_wd_loads(P,cfg.get('DNT',NT))
        if wa==k: raw_w_loads(P,NT)
    if m2==1: role_loads(P,NT,1)
    raws(0)
    if wa>=10:
        factor_gen(P,cut,wa-10,grp,fill)
        while any('s95' in x or 's96' in x for x in fill): P.I(fill.pop(0))
        raw_w_loads(P,NT); cut=wa-10
    factor_gen(P,cut,99,grp,fill); print('  scalar set-up left after the chain:',len(fill)); P.extend(fill)
    stamp(P,4,diag)
    if m2==2: role_loads(P,NT,1)
    raws(1)
    G=poll_groups((lambda Q: raw_w_loads(Q,NT)) if wa==3 else None, cfg.get('XLP','') if cfg.get('LOC',0)==1 else 'sc1', cfg.get('XFIRST',0), '')
    for _ in range(cfg.get('PEARLY',0)): P.extend(G.pop(0))
    npm=cfg.get('PMID',0); mid=G[:npm]; G=G[npm:]
    if wa==5:
        Q=Prog(); raw_w_loads(Q,NT); W4=[[]]
        for x in Q.ins:
            W4[-1].append(x)
            if x.kind=='vmem': W4.append([])
        mid=W4[:-1]+mid
    kgen(P,diag,mid,cfg.get('PMSKIP',0),cfg.get('PMORD',0)); stamp(P,5,diag)
    k_image(P,G,min(len(G),cfg.get('PPRE',5)),cfg.get('PSKIP',0),cfg.get('W0AT',0))
    raws(2)
    wdj=[]
    wj=cfg.get('WJAT',0); wd0=[]
    if cfg.get('Q2AT',1)==2: poll2_loads(P)
    if da<2 and wj:
        Q=Prog(); wd_job(Q,ST); wd0=[(x.text,x.tag) for x in Q.ins]
    elif da<2: wd_job(P,ST)
    else:
        Q=Prog(); wd_job(Q,ST); wdj=[(x.text,x.tag) for x in Q.ins[1:]]
    stamp(P,6,diag)
    P.I("s_waitcnt lgkmcnt(0)\ns_barrier")
    for k in conv_reads(0)[1]: P.extend(k)
    q2=cfg.get('Q2AT',1)
    if q2==0: poll2_loads(P)
    make_h(P,diag,q2==3)
    if q2==1: poll2_loads(P)
    raws(4)
    if cfg.get('LV',1)==0:
        chk,work,_=poll2_work(ST); P.extend(chk+work+["@wait wr"])
    if cfg.get('FV',1)==0: P.I("@wait wdst")
    P.I("s_waitcnt lgkmcnt(0)\ns_barrier")
    stamp(P,7,diag)
    acc,tail,after=conv(P,ST,cfg,H['midbar'] if da<2 else [],wdj,wd0,H); stamp(P,8,diag)
    conv_epilogue(P,acc,tail,ST,H.get('pre',[]),H.get('prebar',[]),H.get('postbar',[]),cfg.get('TMAX',99),after)
```

```python
from prog import *
from layout import *
from ka import sp, vr, ar, mksrd, f32, stamp, stamp_out, rWS, rOUT, sXCD, sIDX, sW
import ka, re
sXB,sWB,sAB,sXM,sFL,sPL,sA0,sA1,sD0,sD1,sNT,sMT,sFB,sCNT = range(8,22)
sQ=22
sT0,sT1,sT2,sT3,sT4 = 80,81,82,83,84
vLANE,vL16,vWL = 1,2,14
NS=16; L_XS=0; L_RING=4*NS*1024; RING=96
LDS_C=L_RING+RING*1024
def entry(P,name,diag):
    P.I(f".globl {name}\n.p2align 8\n.type {name},@function\n{name}:\n@reset")
    P.I(f"""s_cmp_ge_u32 s2, 256
s_cbranch_scc1 L_{name}_exit
s_load_dwordx2 s[42:43], s[0:1], 136
s_load_dwordx2 s[38:39], s[0:1], 120
s_and_b32 s{sXCD}, s2, 7
s_lshr_b32 s{sIDX}, s2, 3
v_lshrrev_b32 v3, 6, v0
v_and_b32 v{vLANE}, 63, v0
v_readfirstlane_b32 s{sW}, v3""")
    ka.stamp0_issue(P,diag)
def srds(P,diag):
    P.I("s_waitcnt lgkmcnt(0)"); ka.stamp0_commit(P,diag)
    P.extend(mksrd(rWS,42,WS_USED)); P.extend(mksrd(rOUT,38,2097152))

def xsrc(v, snt):
    return [f"v_lshrrev_b32 v12, 3, v{vLANE}", f"v_xor_b32 v{v}, s{snt}, v12", f"v_mul_u32_u24 v12, 96, v12", f"v_add_u32 v12, v12, v{v}",
            f"v_and_b32 v{v}, 7, v{vLANE}", f"v_lshl_add_u32 v{v}, v12, 3, v{v}", f"v_lshlrev_b32 v{v}, 4, v{v}"]
def c_maps():
    xb=f"s_lshl_b32 s{sXB}, s{sT0}, 15\ns_add_u32 s{sXB}, s{sXB}, {WS_X1B}"
    if ka.XIN: xb="\n".join(xsrc(13,sT0))
    return f"""s_lshr_b32 s{sT0}, s{sXCD}, 2
s_lshl_b32 s{sT0}, s{sT0}, 5
s_and_b32 s{sT1}, s{sIDX}, 28
s_add_u32 s{sT0}, s{sT0}, s{sT1}
s_add_u32 s{sT0}, s{sT0}, s{sW}
s_and_b32 s{sT1}, s{sXCD}, 3
s_and_b32 s{sT3}, s{sIDX}, 3
s_lshl2_add_u32 s{sT2}, s{sT1}, s{sT3}
{xb}
s_mul_i32 s{sWB}, s{sT2}, {231*1024}
s_add_u32 s{sWB}, s{sWB}, {WS_WPF}
s_mul_i32 s{sXM}, s{sW}, {NS*1024}
s_mul_i32 s{sAB}, s{sT0}, 112
s_mul_i32 s{sT2}, s{sT2}, 7
s_add_u32 s{sAB}, s{sAB}, s{sT2}
s_lshl_b32 s{sAB}, s{sAB}, 10
s_add_u32 s{sAB}, s{sAB}, {WS_ACT}
s_lshr_b32 s{sFL}, s{sT0}, 1
s_lshl2_add_u32 s{sFL}, s{sFL}, s{sT1}
s_lshl_b32 s{sFL}, s{sFL}, 10
s_and_b32 s{sT0}, s{sT0}, 1
s_lshl2_add_u32 s{sT0}, s{sT0}, s{sT3}
s_lshl2_add_u32 s{sFL}, s{sT0}, s{sFL}
s_add_u32 s{sFL}, s{sFL}, {WS_FLAG}""".split('\n')
def d_maps(DM=0, M16=0, ROWO=0):
    head=f"""s_lshr_b32 s{sT1}, s{sIDX}, 3
s_lshl2_add_u32 s{sT2}, s{sXCD}, s{sT1}
s_and_b32 s{sT1}, s{sIDX}, 7""" if not DM else f"""s_lshr_b32 s{sT1}, s{sIDX}, 2
s_lshr_b32 s{sT2}, s{sXCD}, 1
s_lshl3_add_u32 s{sT2}, s{sT2}, s{sT1}
s_and_b32 s{sT1}, s{sIDX}, 3
s_and_b32 s{sT3}, s{sXCD}, 1
s_lshl2_add_u32 s{sT1}, s{sT3}, s{sT1}"""
    return f"""{head}
s_mul_i32 s{sT3}, s{sW}, {28*1024}
s_mul_i32 s{sA0}, s{sT2}, {224*1024}
s_add_u32 s{sA0}, s{sA0}, s{sT3}
s_add_u32 s{sA0}, s{sA0}, {WS_ACT}
s_mul_i32 s{sD0}, s{sT1}, {224*1024}
s_add_u32 s{sD0}, s{sD0}, s{sT3}
s_add_u32 s{sD0}, s{sD0}, {WS_WDF}
s_add_u32 s{sD1}, s{sD0}, {112*1024}
s_bitcmp1_b32 s{sW}, 0
s_cselect_b32 s{sPL}, {0 if ROWO else 112*1024}, 0
s_add_u32 s{sD0}, s{sD0}, s{sPL}
s_sub_u32 s{sD1}, s{sD1}, s{sPL}
s_lshl2_add_u32 s{sPL}, s{sT2}, s{sW}
s_lshl_b32 s{sPL}, s{sPL}, 10
s_add_u32 s{sPL}, s{sPL}, {WS_FLAG}
s_mov_b32 s52, s{ka.sTAG}
s_mov_b32 s53, s{ka.sTAG}
s_lshl_b32 s{sNT}, s{sT2}, 1
s_and_b32 s{sT3}, s{sW}, 1
s_lshl_b32 s{sT3}, s{sT3}, 1
s_lshl2_add_u32 s{sMT}, s{sT1}, s{sT3}
s_lshr_b32 s{sT3}, s{sW}, 1
s_add_u32 s{sMT}, s{sMT}, s{sT3}
{f"s_mov_b32 s{sT3}, 0" if ROWO else f"s_lshl_b32 s{sT3}, s{sT3}, 8"}
v_lshlrev_b32 v{vL16}, 4, v{vLANE}
v_xor_b32 v{vWL}, s{sT3}, v{vL16}""".split('\n')[:-1 if M16 else None]+(f"""v_lshrrev_b32 v{vWL}, 5, v{vLANE}
v_mul_u32_u24 v{vWL}, 7168, v{vWL}
v_and_b32 v{vWL+1}, 16, v{vLANE}
v_lshl_add_u32 v{vWL}, v{vWL+1}, 5, v{vWL}
v_and_b32 v{vWL+1}, 15, v{vLANE}
v_lshl_add_u32 v{vWL}, v{vWL+1}, 4, v{vWL}
v_or_b32 v{vWL}, s{sT3}, v{vWL}
v_xor_b32 v{vWL+1}, 0x100, v{vWL}""".split('\n') if M16 else [])

class Stream:
    def __init__(s, base, tmp): s.base=base; s.tmp=tmp; s.cur=None
    def at(s, off):
        L=[]
        if s.cur is None or not (0<=off-s.cur<4096):
            s.cur=off; L.append(f"s_add_u32 s{s.tmp}, s{s.base}, {off}")
        return L, f"s{s.tmp} offen offset:{off-s.cur}"
ASTG0=[3,5,7]
def d_parts(cfg):
    e=[0]+cfg.get('ASTG',ASTG0)
    return [[7*jj+mt for jj in ((0,2) if cfg.get('M16',0) else range(4)) for mt in range(a,b)] for a,b in zip(e,e[1:])]
def kap(f): return 16*(f if f<7 else f-7)
def wd_order(cfg):
    if cfg.get('WDLIN',0)==2: return list(range(16,28))+list(range(16))
    return sorted(sum(d_parts(cfg),[])) if cfg.get('WDLIN',0) else sum(d_parts(cfg),[])
def flag_store(s):
    return ["s_mov_b64 exec, 1",f"buffer_store_dword v{vONE1}, v{vL16}, {sp(rWS,4)}, s{sFL} offen offset:{128*s} sc1","s_mov_b64 exec, -1"]
def flag_poll(s): return f"buffer_load_dword v{vPV}, v{vPA}, {sp(rWS,4)}, s{sPL} offen offset:{128*s} sc1"
def sflag_poll(s): return f"s_buffer_load_dwordx8 s[44:51], {sp(rWS,4)}, s{sPL} offset:{128*s} glc"
def spoll_check(P, name):
    P.I(f"L_{name}_chk:\ns_waitcnt lgkmcnt(0)")
    for i in range(4): P.I(f"s_xor_b64 s[{44+2*i}:{45+2*i}], s[{44+2*i}:{45+2*i}], s[52:53]")
    P.I(f"s_or_b64 s[44:45], s[44:45], s[46:47]\ns_or_b64 s[48:49], s[48:49], s[50:51]\ns_or_b64 s[44:45], s[44:45], s[48:49]\ns_cbranch_scc1 L_{name}_retry\nL_{name}_ok:")
def spoll_retry(P, name, s):
    P.I(f"L_{name}_retry:\ns_add_u32 s{sCNT}, s{sCNT}, 1\ns_cmp_gt_u32 s{sCNT}, 40000\n@loopok\ns_cbranch_scc1 L_{name}_ok\n{sflag_poll(s)}\n@loopok\ns_branch L_{name}_chk")
def wd_load_list(cfg,LD=''):
    S=[Stream(sD0,34),Stream(sD1,35)]; L=[]
    if cfg.get('M16',0):
        for f in wd_order(cfg):
            for j in range(4):
                pre,o=S[j&1].at(f*1024)
                L.append(pre+[f"buffer_load_dwordx4 {ar(kap(f)+4*j,4)}, v{vWL+(j>>1)}, {sp(rWS,4)}, {o} {LD}"])
        return L
    for f in wd_order(cfg):
        for m in range(2):
            pre,o=S[m].at(f*1024)
            L.append(pre+[f"buffer_load_dwordx4 {ar(8*f+4*m,4)}, v{vWL}, {sp(rWS,4)}, {o} {LD}"])
    return L
AX,AG=240,224
vXA,vPA,vPV,vONE1=253,254,252,251
vQV,vQA,sQP=15,248,99
def qpoll(q): return [f"s_mov_b32 s{sQP}, {WS_FX+(q<<(6+FS))}", f"buffer_load_dword v{vQV}, v{vQA}, {sp(rWS,4)}, s{sQP} offen sc1"]
def cost(x):
    s=x[0] if isinstance(x,tuple) else x
    o=s.split()[0]
    return 2 if (o in TRANS or o=='s_barrier') else 1

class RawWd:
    def __init__(s, order, srd, vsrc, sbase, stmp, pol=''):
        s.todo=list(order); s.flying=[]; s.done=set(); s.srd=srd; s.vsrc=vsrc; s.sbase=sbase; s.stmp=stmp; s.half=0; s.chalf=0; s.pol=pol; s.n=0
    def area(s, slots):
        assert not s.half
        s.slots=list(slots); s.n=0
    def issue_half(s, now):
        f=s.todo[0]; sl=s.slots[s.n%len(s.slots)]; u=s.half
        assert all(x[1]!=sl for x in s.flying)
        L=[f"s_add_u32 m0, s{sl[0]}, {sl[1]+u*1024}", f"s_add_u32 s{s.stmp}, s{s.sbase}, {f*16384+u*8192}",
           (f"buffer_load_dwordx4 v{s.vsrc}, {sp(s.srd,4)}, s{s.stmp} offen {s.pol} lds", f"rw{f}")]
        s.half^=1
        if not s.half: s.todo.pop(0); s.flying.append((f,sl,now)); s.n+=1
        return L
    def convert_half(s):
        f,sl,_=s.flying[0]; m=s.chalf
        L=([f"@wait rw{f}"] if m==0 else [])+[f"ds_read_b64_tr_b16 {ar(8*f+4*m+2*hf,2)}, v{sl[2][m]} offset:{sl[3]+hf*512}" for hf in range(2)]
        s.chalf^=1
        if not s.chalf: s.flying.pop(0); s.done.add(f)
        return L

class PhaseC:
    def __init__(s, cfg):
        s.cfg=cfg
        seq=[(t,ks) for ks in range(32) for t in range(G1)]
        AUXAT=cfg.get('AUXAT',16-G1)
        t3=[(G1,ks) for ks in range(33)]
        seq+= t3[:AUXAT]+[(t,32) for t in range(G1)]+t3[AUXAT:]
        for t in range(G1+1,7): seq+=[(t,ks) for ks in range(33)]
        s.seq=seq; s.N=N=len(seq); assert N==231
        s.P1=32*G1
        b=cfg.get('STG') or ([0,8,16]+list(range(32,232,16))+[232])
        s.bounds=b; s.nst=len(b)-1
        for q in range(s.nst):
            assert sorted(s.gpos(*x) for x in seq[b[q]:b[q+1]])==list(range(b[q],min(b[q+1],N))), q
            assert s.lpos(b[q+1]-1)-s.lpos(b[q])==(b[q+1]-1-b[q])*1024
        s.QR={c:sQ+2*i for i,c in enumerate(sorted({(b[q+1]-b[q])//4 for q in range(s.nst)}))}
        s.LOOK=cfg.get('LOOK',6); s.XL=cfg.get('XL',6)
        s.mem=[]; s.m0=None; s.now=-1
        QG=s.QG=cfg.get('QG',[-1,0,2,3])
        for q in range(s.nst):
            gate=-1
            if cfg.get('BIG',0):
                if b[q]>=224: gate=max(z for z in range(s.nst) if b[z]<b[q+1]-160)+2
                elif 96<=b[q]<160: gate=max(z for z in range(s.nst) if b[z]<b[q+1]-96)+2
                elif b[q]>=160: gate=min(z for z in range(s.nst) if b[z]-s.LOOK>=s.P1)
            elif b[q+1]>RING: gate=max(z for z in range(s.nst) if b[z]<b[q+1]-RING)+2
            if cfg.get('QSYNC',0): gate=max(gate,QG[min(3,(b[q+1]-1)//(8*G1))])
            for u in range((b[q+1]-b[q])//4): s.mem.append((max(b[q]-s.LOOK,0),gate,('w',q,u)))
        XG=cfg.get('XGRP',2)
        for ks in range(32): s.mem.append((max(G1*(ks-ks%XG)-s.XL,0),QG[ks>>3] if cfg.get('QSYNC',0) else -1,('x',ks)))
        s.mem.sort(key=lambda e:e[0])
    def lpos(s,g):
        if s.cfg.get('BIG',0): return L_RING+(g%96)*1024 if g<160 else (g-160)*1024 if g<224 else L_RING+(g-160)*1024
        return L_RING+(g%RING)*1024
    def gpos(s,t,ks): return (G1*ks+t) if t<G1 else 33*t+ks
    def setup(s):
        L=[]
        for c,r in s.QR.items(): L+=[f"s_mul_i32 s{r}, s{sW}, {c*1024}", f"s_add_u32 s{r+1}, s{r}, s{sWB}"]
        L+=f"""v_lshlrev_b32 v{vL16}, 4, v{vLANE}
v_lshrrev_b32 v8, 5, v{vLANE}
v_bfe_u32 v9, v{vLANE}, 2, 2
v_lshl_add_u32 v8, v8, 3, v9
v_bfe_u32 v9, v{vLANE}, 4, 1
v_lshl_add_u32 v8, v8, 1, v9
v_and_b32 v10, 3, v{vLANE}
v_lshl_add_u32 v8, v8, 2, v10
v_lshl_add_u32 v{vXA}, v8, 3, s{sXM}
v_add_u32 v3, {L_RING}, v{vL16}
v_add_u32 v7, {L_RING+0x10000}, v{vL16}
v_and_b32 v8, 31, v{vLANE}
v_and_b32 v10, 32, v{vLANE}
v_lshlrev_b32 v10, 4, v10
v_lshl_add_u32 v8, v8, 2, v10
v_add_u32 v249, {L_RING}, v8
v_add_u32 v250, {L_RING+0x10000}, v8
v_and_b32 v8, 15, v{vLANE}
v_cmp_eq_u32 vcc, v8, v9
v_mov_b32 v10, 0x3f803f80
v_and_b32 v{vPA}, 7, v{vLANE}
v_lshlrev_b32 v{vPA}, 2, v{vPA}
v_cndmask_b32 v56, 0, v10, vcc
v_cndmask_b32 v57, 0, v10, vcc
v_cndmask_b32 v58, 0, v10, vcc
v_cndmask_b32 v59, 0, v10, vcc""".split('\n')
        if s.cfg.get('BIG',0):
            assert not s.cfg.get('M16',0) and s.cfg.get('RXD',0)
            L.append(f"v_add_u32 v248, {-L_RING}, v249")
        if s.cfg.get('M16',0): L.append(f"v_and_b32 v248, v{vWL}, v{vWL+1}")
        return L
    def memop(s,e):
        if e[0]=='w':
            _,q,u=e; c=(s.bounds[q+1]-s.bounds[q])//4; key=('w',q,u//4); u0=u-u%4
            pre=[f"s_add_u32 m0, s{s.QR[c]}, {s.lpos(s.bounds[q])+u0*1024}", f"s_add_u32 s{sT0}, s{s.QR[c]+1}, {(s.bounds[q]+u0)*1024}"]
            tag=f"w{q}"; off=(u%4)*1024; ld=s.cfg.get('WLD','')
        else:
            ks=e[1]; key=('x',ks//4); k0=ks-ks%4
            assert ks<NS or s.now>=G1*(ks-NS), (ks,s.now)
            pre=[f"s_add_u32 m0, s{sXM}, {L_XS+(k0%NS)*1024}", f"s_add_u32 s{sT0}, s{sXB}, {k0*1024}"]
            tag=f"x{ks}"; off=(ks%4)*1024; ld=s.cfg.get('XLD','')
        L=[] if s.m0==key else pre
        s.m0=key
        if e[0]=='x' and ka.XIN:
            return L[:1]+[f"s_mov_b32 s{sXB}, {WS_XG+ks*98304-off}",(f"buffer_load_dwordx4 v13, {sp(rWS,4)}, s{sXB} offen offset:{off} {ld} lds",tag)]
        return L+[(f"buffer_load_dwordx4 v{vL16}, {sp(rWS,4)}, s{sT0} offen offset:{off} {ld} lds",tag)]
    def pre(s,P,n,kinds='wx'):
        k=0
        while n>0 and k<len(s.mem):
            if s.mem[k][2][0] in kinds and s.mem[k][1]<0: P.extend(s.memop(s.mem.pop(k)[2])); n-=1
            else: k+=1
    def run(s,P,diag,wd,extra_side,D,raw=None):
        cfg=s.cfg; seq=s.seq; N=s.N; bounds=s.bounds; mem=s.mem; LOOK=s.LOOK; XL=s.XL; P1=s.P1
        ST='sc1'; ends=cfg.get('ASTG',ASTG0)
        X0=120
        xr=lambda ks: vr(X0+4*ks,4) if ks<32 else vr(44,4)
        NACC=4; ACC=[72,88,104,56]
        WF=[20+4*i for i in range(6)]; NWF=6
        SQ,SM,ONE,SQ2=48,52,56,16
        C0,C1,IR2=4,5,6; TA=8
        RA=[vL16,3,7]; RA2=[248,249,250]
        def rd(n):
            pos=s.lpos(s.gpos(*seq[n]))
            if seq[n][1]==32:
                return [(f"ds_read_b32 v{WF[n%NWF]+q}, v{RA2[pos>>16]} offset:{(pos&0xffff)+128*q}", f"r{n}") for q in range(4)]
            return [(f"ds_read_b128 {vr(WF[n%NWF],4)}, v{RA[pos>>16]} offset:{pos&0xffff}", f"r{n}")]
        def xrd(ks): return [f"@wait x{ks}"]+[f"ds_read_b64_tr_b16 {vr(X0+4*ks+2*hf,2)}, v{vXA} offset:{L_XS+(ks%NS)*1024+hf*256}" for hf in range(2)]
        accof=lambda t: ACC[t%NACC]
        EW=cfg.get('EW',4)
        def epi(t):
            a=accof(t); L=[]
            for g in range(8//EW):
                ia=list(range(EW*g,EW*g+EW)); T=TA
                L+=[f"v_mul_f32 v{T+k}, v{a+i}, v{a+i}" for k,i in enumerate(ia)]
                L+=[f"v_fma_f32 v{T+k}, v{T+k}, v{C1}, v{C0}" for k,i in enumerate(ia)]
                L+=[f"v_mul_f32 v{T+k}, v{T+k}, v{a+i}" for k,i in enumerate(ia)]
                for k,i in enumerate(ia): L+=[f"v_exp_f32 v{T+k}, v{T+k}", f"v_mul_f32 v{a+8+i}, v{a+i}, v{a+8+i}"]
                for k,i in enumerate(ia):
                    L+=[f"v_fma_f32 v{a+i}, v{T+k}, v{IR2}, v{IR2}"]
                    if k: L+=[f"v_rcp_f32 v{a+i-1}, v{a+i-1}"]
                L+=[f"v_mul_f32 v{a+8+ia[0]}, v{a+8+ia[0]}, v{a+ia[0]}", f"v_rcp_f32 v{a+ia[-1]}, v{a+ia[-1]}"]
                L+=[f"v_mul_f32 v{a+8+i}, v{a+8+i}, v{a+i}" for i in ia[1:]]
                L+=[f"v_cvt_pk_bf16_f32 v{16+i//2}, v{a+8+i}, v{a+9+i}" for i in ia[::2]]
            L.append((f"buffer_store_dwordx4 v[16:19], v{vL16}, {sp(rWS,4)}, s{sAB} offen offset:{(t%4)*1024} {ST}",f'act{t}'))
            if t==3: L.append(f"s_add_u32 s{sAB}, s{sAB}, 4096")
            return L
        if cfg.get('NOTRANS'):
            e0=epi; epi=lambda t:[y for x in e0(t) for y in ([x.replace('v_exp_f32','v_mov_b32').replace('v_rcp_f32','v_mov_b32')]*2 if isinstance(x,str) and x.split()[0] in TRANS else [x])]
        if cfg.get('NOST'):
            e2=epi; epi=lambda t:[(('s_nop 0',x[1]) if isinstance(x,tuple) else x) for x in e2(t)]
        if cfg.get('NOEPI'):
            e1=epi; epi=lambda t:[x for x in e1(t) if not (isinstance(x,str) and x.startswith('v_'))]
        k0=-2*0.7978845608028654*1.4426950408889634; k1=k0*0.044715
        fin=f"""v_and_b32 v11, 15, v{vLANE}
v_lshlrev_b32 v11, 2, v11
v_and_b32 v8, 3, v{vLANE}
v_cmp_eq_u32 vcc, 1, v8
v_cmp_eq_u32 {sp(sT2)}, 2, v8
v_and_b32 v10, 16, v{vLANE}
ds_bpermute_b32 v12, v11, v{SM}
ds_bpermute_b32 v13, v11, v{SM+1}
v_add_f32 v{SQ}, v{SQ}, v{SQ2}
v_add_f32 v{SQ+1}, v{SQ+1}, v{SQ2+1}
v_add_f32 v{SQ+2}, v{SQ+2}, v{SQ2+2}
v_add_f32 v{SQ+3}, v{SQ+3}, v{SQ2+3}
v_cndmask_b32 v9, v{SQ}, v{SQ+1}, vcc
v_cmp_eq_u32 vcc, 3, v8
v_cndmask_b32 v9, v9, v{SQ+2}, {sp(sT2)}
v_cmp_eq_u32 {sp(sT2)}, 0, v10
v_cndmask_b32 v9, v9, v{SQ+3}, vcc
v_mov_b32 v8, v9
v_nop
v_nop
v_permlane32_swap_b32 v8, v9
v_add_f32 v9, v8, v9
v_mul_f32 v9, 0x3b000000, v9
v_cndmask_b32 v12, v13, v12, {sp(sT2)}
v_mul_f32 v12, 0x3b000000, v12
v_fma_f32 v9, -v12, v12, v9
v_max_f32 v9, 0, v9
v_cvt_pk_bf16_f32 v9, v9, v9
v_and_b32 v9, 0xffff0000, v9
v_add_f32 v9, 0x3727c5ac, v9
v_cvt_pk_bf16_f32 v9, v9, v9
v_and_b32 v9, 0xffff0000, v9
v_sqrt_f32 v9, v9
v_nop
v_cvt_pk_bf16_f32 v44, -v12, v9
v_and_b32 v9, 0xffff0000, v44
v_mov_b32 v45, v44
v_rcp_f32 v8, v9
v_mov_b32 v46, v44
v_mov_b32 v47, v44
v_mul_f32 v{IR2}, v9, v9
v_mul_f32 v{C0}, {hex(f32(k0))}, v8
v_mul_f32 v10, v8, v8
v_mul_f32 v{C1}, {hex(f32(k1))}, v8
v_mul_f32 v{C1}, v{C1}, v10""".split('\n')
        done_at={}
        for n,(t,ks) in enumerate(seq):
            if ks==32: done_at[t]=n
        side=[(0,x) for x in extra_side]+[(P1,x) for x in fin]
        for t in range(6): side+=[(done_at[t]+3,x) for x in epi(t)]
        RX=cfg.get('RXAT',P1+40)
        blocks={RX:[f"s_lshl_b32 s{sT1}, s{sNT}, 5",f"s_add_u32 s{sT1}, s{sT1}, s{sMT}",f"s_lshl_b32 s{sT1}, s{sT1}, 10",f"s_add_u32 s{sT1}, s{sT1}, {WS_X1B}"],
                RX+1:['@m0',f"s_add_u32 m0, s{sXM}, {L_XS}",f"s_add_u32 s{sT4}, s{sT1}, {32768-1024}",(f"buffer_load_dwordx4 v{vL16}, {sp(rWS,4)}, s{sT1} offen {cfg.get('XLD','')} lds",'rx'),
                      (f"buffer_load_dwordx4 v{vL16}, {sp(rWS,4)}, s{sT4} offen offset:1024 {cfg.get('XLD','')} lds",'rx')],
                RX+3:[f"s_lshl_b32 s{sT1}, s{sMT}, 6",f"s_add_u32 s{sT1}, s{sT1}, {WS_GBF}",f"v_and_b32 v{vPV}, 32, v{vLANE}"],
                RX+4:[f"buffer_load_dwordx4 {ar(AG+4*q,4)}, v{vPV}, {sp(rWS,4)}, s{sT1} offen offset:{16*q} {cfg.get('WLD','')}" for q in range(2)],
                RX+44:["@wait rx"]+[f"ds_read_b64_tr_b16 {ar(AX+2*q,2)}, v{vXA} offset:{L_XS+(q>>1)*1024+(q&1)*256}" for q in range(4)],
                cfg.get('P0AT',217):[flag_poll(0)]}
        if ka.XIN:
            xs=xsrc(13,sNT)
            blocks[RX-2]=xs[:4]; blocks[RX-1]=xs[4:]+["v_xor_b32 v12, 128, v13"]
            blocks[RX]=[f"s_mul_i32 s{sT1}, s{sMT}, 98304",f"s_add_u32 s{sT1}, s{sT1}, {WS_XG}"]
            blocks[RX+1]=['@m0',f"s_add_u32 m0, s{sXM}, {L_XS}",f"s_sub_u32 s{sT4}, s{sT1}, 1024",(f"buffer_load_dwordx4 v13, {sp(rWS,4)}, s{sT1} offen sc1 lds",'rx'),
                      (f"buffer_load_dwordx4 v12, {sp(rWS,4)}, s{sT4} offen offset:1024 sc1 lds",'rx')]
        if cfg.get('RXD',0):
            for z in (RX-2,RX-1,RX,RX+1,RX+3,RX+4,RX+44): blocks.pop(z,None)
        if cfg.get('QSYNC',0):
            for q,at in zip((2,3),cfg.get('QAT2',[1,14])): blocks[at]=qpoll(q)
        C0AT=cfg.get('C0AT',999)
        D.nflag=0; flag_at={}; log=[]
        opened=[-1]
        def emit(L):
            c=0
            for x in L:
                if x=='@m0': s.m0=None; continue
                P.extend([x]); c+=cost(x)
            return c
        def force(pred):
            c=0
            while any(pred(e[2]) for e in mem):
                assert mem[0][1]<=opened[0], mem[0]
                c+=emit(s.memop(mem.pop(0)[2]))
            return c
        def open_stage(q):
            c=force(lambda e: e[0]=='w' and e[1]==q)
            opened[0]=q
            if cfg.get('QSYNC',0) and q in s.QG: poll_check(P,f'fx{s.QG.index(q)}',vPV=vQV); c+=3; stamp(P,25+s.QG.index(q),diag)
            x_=cfg.get('XBAR',0) if bounds[q]>P1 else 0
            c+=emit([[f"@wait w{q}","s_barrier"],[f"@wait w{q}"],["s_barrier"],[]][x_])
            if cfg.get('QSYNC',0) and q in s.QG:
                for _ in range(cfg.get('QBURST',[5,3,2])[s.QG.index(q)-1]):
                    if mem[0][1]<=q and (mem[0][2][0]=='w' or s.now>=G1*(mem[0][2][1]-NS)): c+=emit(s.memop(mem.pop(0)[2]))
            if cfg.get('SSTAMP'): stamp(P,(2+q if q<10 else 9+q),diag)
            return c
        xnext=0
        open_stage(0)
        while G1*xnext<XL: force(lambda e: e==('x',xnext)); emit(xrd(xnext)); xnext+=1
        for n in range(LOOK): P.extend(rd(n))
        DIST=cfg.get('DIST',24); DIST2=cfg.get('DIST2',48); WB=cfg.get('WB',3)
        started=set(); mb=0.0; wdb=0.0; quiet=0
        P.I("@mark c1")
        for n,(t,ks) in enumerate(seq):
            a=accof(t)
            if n==P1: P.I("@mark c2")
            if t>=NACC and ks==0:
                while side and side[0][0]<=done_at[t-NACC]+3:
                    x=side.pop(0)[1]; emit([x])
                    if isinstance(x,tuple):
                        log.append((x[1],n))
                        if int(x[1][3:])+1 in ends: flag_at[ends.index(int(x[1][3:])+1)]=n+cfg.get('FLAGD',26)
            if ks==32 and t==0:
                while side and side[0][0]<=P1: emit([side.pop(0)[1]])
            if n%WB==0: P.I(f"@wait r{min(n+WB-1,N-1)}")
            P.I(f"v_mfma_f32_32x32x16_bf16 {vr(a,16)}, {vr(WF[n%NWF],4)}, {xr(ks)}, {vr(a,16) if t in started else 0}"); started.add(t)
            s.now=n
            free=cfg.get('CAP',6)-((n+1)%WB==0)
            if xnext<32 and G1*xnext-XL<=n:
                free-=force(lambda e: e==('x',xnext)); free-=emit(xrd(xnext)); xnext+=1
            m=n+LOOK
            if m<N:
                if m in bounds: free-=open_stage(bounds.index(m))+cfg.get('BARPAD',0); quiet=max(quiet,n+(cfg.get('BQUIET',0) if n>=P1 else 0))
                free-=emit(rd(m))
            used=False
            if n in blocks: free-=emit(blocks.pop(n)); used=True
            elif n>=flag_at.get(D.nflag,999) and free>=4:
                free-=emit([f"@wait act{ends[D.nflag]-1}"]+flag_store(D.nflag)); D.nflag+=1; used=True; log.append(n)
            if n==C0AT: poll_check(P,'p0'); stamp(P,14,diag); free-=3; used=True
            rate = cfg.get('RATE1',0.9) if n<P1 else cfg.get('RATE2',0.5)
            mb=min(mb+rate,1.0+(rate if n<P1 else cfg.get('BURST2',rate)))
            if n<quiet: mb=min(mb,0.99)
            nxt_st=[i for i,(r_,x_) in enumerate(side[:cfg.get('PREQ',0)]) if isinstance(x_,tuple) and r_<=n]
            if nxt_st: mb=min(mb,0.99)
            if not used and mem and mb>=1 and mem[0][0]-(DIST if n<P1 else DIST2)<=n and mem[0][1]<=opened[0] and (free>=3 or n<P1) and (mem[0][2][0]=='w' or n>=G1*(mem[0][2][1]-NS)):
                free-=emit(s.memop(mem.pop(0)[2])); used=True; mb-=1
            if raw:
                if raw.flying and n>=raw.flying[0][2]+cfg.get('RAWD',40) and free>=3: free-=emit(raw.convert_half())
                if not used and raw.todo and len(raw.flying)<len(raw.slots) and cfg.get('WDFROM',P1+4)<=n<N-cfg.get('RAWD',40):
                    wdb=min(wdb+cfg.get('WDPER',0.2),2)
                    if wdb>=1 and mb>=1 and free>=3: free-=emit(['@m0']+raw.issue_half(n)); wdb-=1; mb-=1
            if not used and n>C0AT and mb>=1 and free>=2 and D.li<min(cfg.get('DAHEAD',14),n-197) and D.can_load():
                free-=emit(D.load()); mb-=1; used=True
            if not used and wd and cfg.get('WDFROM',P1+4)<=n<C0AT:
                wdb=min(wdb+(cfg.get('WDPER1',0.2) if n<P1 else cfg.get('WDPER',0.2)),2)
                if wdb>=1 and mb>=1 and free>=2: free-=emit(wd.pop(0)); wdb-=1; mb-=1
            while side and side[0][0]<=n and cost(side[0][1])<=free:
                if isinstance(side[0][1],tuple) and any(0<b_-LOOK-n<=cfg.get('STB',0) for b_ in bounds) and len(side)>1 and not side[1][1].startswith(('v_cvt','s_add')) and side[1][0]<=n:
                    side.insert(0,side.pop(1)); continue
                x=side.pop(0)[1]; free-=emit([x])
                if isinstance(x,tuple) and x[1].startswith('act'):
                    log.append((x[1],n)); quiet=n+1+cfg.get('QUIET',0)
                    if cfg.get('STEND',0): free=0
                    if int(x[1][3:])+1 in ends: flag_at[ends.index(int(x[1][3:])+1)]=n+cfg.get('FLAGD',26)
            if n<P1 and t==G1-1:
                x=X0+4*ks
                P.I(f"v_mfma_f32_4x4x4_16b_bf16 {vr(SQ,4)}, {vr(x,2)}, {vr(x,2)}, {vr(SQ,4) if ks else 0}")
                P.I(f"v_mfma_f32_4x4x4_16b_bf16 {vr(SQ2,4)}, {vr(x+2,2)}, {vr(x+2,2)}, {vr(SQ2,4) if ks else 0}")
                P.I(f"v_mfma_f32_16x16x32_bf16 {vr(SM,4)}, {vr(ONE,4)}, {vr(x,4)}, {vr(SM,4) if ks else 0}")
            if n==P1-1: stamp(P,12,diag)
        P.I("@mark end")
        assert D.nflag and not blocks and not mem
        print('phase C: side left', len(side), 'stores/flags', log, 'Wd left', len(wd), 'raw todo/flying', (len(raw.todo),len(raw.flying),raw.half,raw.chalf) if raw else None)
        stamp(P,13,diag)
        return [x for _,x in side]+epi(6), {q:v-N for q,v in flag_at.items()}

def poll_check(P, name, need=None, diag=None, vPV=vPV):
    P.I(f"""L_{name}_chk:
v_cmp_ne_u32 vcc, v{vONE1}, v{vPV}
s_cbranch_vccnz L_{name}_retry
L_{name}_ok:""")
def poll_retry(P, name, off, vPV=vPV, vPA=vPA, sPL=sPL, loc=0, mask=0):
    P.I(f"""L_{name}_retry:
s_add_u32 s{sCNT}, s{sCNT}, 1
s_cmp_gt_u32 s{sCNT}, 40000
@loopok
s_cbranch_scc1 L_{name}_ok""")
    P.extend(ka.writeback(sCNT,f'L_{name}_nowb',loc))
    P.I(f"""{"s_mov_b64 exec, vcc" if mask else ""}
buffer_load_dword v{vPV}, v{vPA}, {sp(rWS,4)}, s{sPL} offen offset:{off} sc1
{"s_mov_b64 exec, -1" if mask else ""}
s_waitcnt vmcnt(0) lgkmcnt(0)
s_branch L_{name}_chk""")

class PhaseD:
    def __init__(s, P, cfg, diag, wd):
        s.P=P; s.cfg=cfg; s.diag=diag; s.wd=wd
        s.parts=d_parts(cfg); s.ends=cfg.get('ASTG',ASTG0); s.order=sum(s.parts,[])
        s.ACC=[[184,200],[216,232]]; s.BUF=[120+4*i for i in range(16)]; s.NB=16
        SK=cfg.get('DSKEW',8)
        s.M16=cfg.get('M16',0)
        if s.M16:
            s.work=[(f,nb) for i,f in enumerate(s.order) for nb in range(4) if nb<2 or i<14-SK//2]+[(f,nb) for f in s.order[14-SK//2:] for nb in (2,3)]
        else: s.work=[(f,n) for i,f in enumerate(s.order) for n in range(2) if n==0 or i<28-SK]+[(f,1) for f in s.order[28-SK:]]
        s.first={q:min(k for k,(f,n) in enumerate(s.work) if f in s.parts[q]) for q in range(len(s.parts))}
        s.S=[Stream(sA0,36),Stream(sA0,37)]; s.li=0; s.nflag=0; s.polled=0; s.inD=False
    def can_load(s):
        for q,k0 in s.first.items():
            if q and s.li==k0 and s.nflag<(len(s.ends) if q>=s.cfg.get('CK',1) else q+1): return False
        return True
    def load(s):
        k=s.li; s.li+=1; f,n=s.work[k]; L=[]; PL=s.cfg.get('PL2',8)
        nxt=s.polled+1
        if nxt in s.first and k>=max(s.first[nxt]-PL,s.first[nxt-1]+1) and s.nflag>nxt and (s.inD or not s.cfg.get('SPOLL',0)): L.append((sflag_poll if s.cfg.get('SPOLL',0) else flag_poll)(nxt)); s.polled=nxt
        for q,k0 in s.first.items():
            if q and k==k0:
                assert s.polled>=q
                s.P.extend(L); L=[]; (spoll_check if s.cfg.get('SPOLL',0) else poll_check)(s.P,f'p{q}'); stamp(s.P,22+q,s.diag)
        while s.wd and 56-len(s.wd)<(4 if s.M16 else 2)*(wd_order(s.cfg).index(f)+1): L+=s.wd.pop(0)
        if s.M16:
            pre,o=s.S[n>>1].at((n>>1)*112*1024+f*1024+(n&1)*256)
            return L+pre+[f"buffer_load_dwordx4 {vr(s.BUF[k%s.NB],4)}, v248, {sp(rWS,4)}, {o} sc1"]
        pre,o=s.S[n].at(n*112*1024+f*1024)
        return L+pre+[f"buffer_load_dwordx4 {vr(s.BUF[k%s.NB],4)}, v{vL16}, {sp(rWS,4)}, {o} sc1"]
    def run(s, ctail, flag_due):
        P=s.P; cfg=s.cfg; diag=s.diag; work=s.work; ACC=s.ACC; ends=s.ends
        AH=cfg.get('DAHEAD',14); assert AH<=s.NB; s.inD=True
        M16=s.M16; NM=4 if M16 else 2
        nA=max(k for k,(f,n) in enumerate(work) if n<(2 if M16 else 1))
        GB=44; XF=56; R=[120,144]; RD=[72,73,74]; VO,VW=75,76
        fill=f"""v_add_u32 v{VW}, s{sXM}, v{vL16}
s_lshl_b32 s{sT2}, s{sNT}, 15
s_lshl_b32 s{sT1}, s{sMT}, 5
s_add_u32 s{sT2}, s{sT2}, s{sT1}
s_add_u32 s{sT3}, s{sT2}, 32768
v_and_b32 v{VO}, 31, v{vLANE}
v_lshrrev_b32 v77, 5, v{vLANE}
v_lshlrev_b32 v{VO}, 10, v{VO}
v_lshl_add_u32 v{VO}, v77, 4, v{VO}""".split('\n')
        XA=vXA
        if M16:
            assert cfg.get('RXD',0); XA=79
            fill=fill[:-4]+f"""v_lshrrev_b32 v77, 5, v{vLANE}
v_and_b32 v{VO}, 15, v{vLANE}
v_lshl_add_u32 v{VO}, v77, 4, v{VO}
v_and_b32 v78, 16, v{vLANE}
v_lshl_add_u32 v{VO}, v{VO}, 10, v78
v_bfe_u32 v79, v{vLANE}, 2, 2
v_lshlrev_b32 v79, 1, v79
v_add3_u32 v79, v79, v78, v77
v_and_b32 v77, 3, v{vLANE}
v_lshl_add_u32 v79, v79, 2, v77
v_lshl_add_u32 v79, v79, 3, s{sXM}""".split('\n')
        fill+=[f"v_xor_b32 v{RD[j-1]}, {j*NS*1024}, v{VW}" for j in (1,2,3)]
        late={}
        if cfg.get('RXD',0):
            assert ka.XIN
            fill+=xsrc(13,sNT)+["v_xor_b32 v12, 128, v13", f"s_mul_i32 s{sT1}, s{sMT}, 98304", f"s_add_u32 s{sT1}, s{sT1}, {WS_XG}", f"s_add_u32 m0, s{sXM}, {L_XS}", f"s_sub_u32 s{sT4}, s{sT1}, 1024",
                  f"s_lshl_b32 s{sT0}, s{sMT}, 6", f"s_add_u32 s{sT0}, s{sT0}, {WS_GBF}", (f"v_lshlrev_b32 v78, 1, v78" if M16 else f"v_and_b32 v78, 32, v{vLANE}")]
            r0=cfg.get('RXD')
            late[r0]=[(f"buffer_load_dwordx4 v13, {sp(rWS,4)}, s{sT1} offen sc1 lds",'rx')]
            late[r0+1]=[(f"buffer_load_dwordx4 v12, {sp(rWS,4)}, s{sT4} offen offset:1024 sc1 lds",'rx')]
            late[r0+2]=[f"buffer_load_dwordx4 {vr(GB+4*q,4)}, v78, {sp(rWS,4)}, s{sT0} offen offset:{16*q} sc1" for q in range(2)]
            late[r0+3+AH]=["@wait rx"]+[f"ds_read_b64_tr_b16 {vr(80+2*q,2)}, v{XA} offset:{L_XS+(q>>1)*1024+(q&1)*256}" for q in range(4)]
            for z in range(4): late[r0+6+AH+z]=[y for k in (2*z,2*z+1) for y in (f"v_lshlrev_b32 v{XF+2*k}, 16, v{80+k}", f"v_and_b32 v{XF+2*k+1}, 0xffff0000, v{80+k}")]
        else:
            fill+=[f"v_accvgpr_read_b32 v{GB+k}, a{AG+k}" for k in range(8)]
            fill+=[f"v_accvgpr_read_b32 v{XF+2*k+1}, a{AX+k}" for k in range(8)]
            for k in range(8): fill+=[f"v_lshlrev_b32 v{XF+2*k}, 16, v{XF+2*k+1}", f"v_and_b32 v{XF+2*k+1}, 0xffff0000, v{XF+2*k+1}"]
        ROWO=cfg.get('ROWO',0)
        if ROWO:
            assert cfg.get('RXD',0) and cfg.get('EARLY0',0) and not M16
            L_XE=L_RING+48*1024; VW1,RA_,RX_,XW=77,72,73,74
            fill=f"""v_lshrrev_b32 v79, 5, v{vLANE}
v_lshlrev_b32 v79, 6, v79
v_xor_b32 v79, v79, v{vL16}
v_add_u32 v{VW}, s{sXM}, v79
v_xor_b32 v{VW1}, 128, v{VW}
s_lshr_b32 s{sT1}, s{sW}, 1
s_lshl_b32 s{sT1}, s{sT1}, 7
v_xor_b32 v79, s{sT1}, v79
s_lshl_b32 s{sT1}, s{sW}, 11
s_add_u32 s{sT1}, s{sT1}, {L_XE}
v_add_u32 v{XW}, s{sT1}, v79
v_lshrrev_b32 v{VO}, 3, v{vLANE}
s_lshl_b32 s{sT1}, s{sW}, 3
v_add_u32 v{VO}, s{sT1}, v{VO}
v_and_b32 v78, 3, v{vLANE}
v_lshlrev_b32 v78, 2, v78
v_xor_b32 v{RA_}, v78, v{VO}
v_and_b32 v78, 1, v{vLANE}
v_lshl_add_u32 v{RA_}, v78, 5, v{RA_}
v_bfe_u32 v78, v{vLANE}, 2, 1
v_lshl_add_u32 v{RA_}, v78, 7, v{RA_}
v_and_b32 v78, 2, v{vLANE}
v_lshl_add_u32 v{RA_}, v78, 7, v{RA_}
v_lshlrev_b32 v{RA_}, 4, v{RA_}
v_add_u32 v{RX_}, {L_XE}, v{RA_}
v_and_b32 v78, 7, v{vLANE}
v_lshlrev_b32 v{VO}, 10, v{VO}
v_lshl_add_u32 v{VO}, v78, 4, v{VO}
v_lshlrev_b32 v78, 5, v78
s_lshr_b32 s{sT0}, s{sMT}, 2
s_lshl_b32 s{sT2}, s{sNT}, 8
s_add_u32 s{sT2}, s{sT2}, s{sT0}
s_lshl_b32 s{sT2}, s{sT2}, 7
s_add_u32 s{sT3}, s{sT2}, 32768
s_lshl_b32 s{sT0}, s{sT0}, 8
s_add_u32 s{sT0}, s{sT0}, {WS_GBF}""".split('\n')
            fill+=xsrc(13,sNT)+["v_xor_b32 v12, 128, v13", f"s_mul_i32 s{sT1}, s{sMT}, 98304", f"s_add_u32 s{sT1}, s{sT1}, {WS_XG}", f"s_add_u32 m0, s{sXM}, {L_XS}", f"s_sub_u32 s{sT4}, s{sT1}, 1024"]
            for z in range(4): late.pop(r0+6+AH+z)
            for n in range(2): late[r0+6+AH+n]=[f"ds_write_b128 v{XW}, {vr(80+4*n,4)} offset:{n*1024}"]
        side=list(ctail)+fill
        piece=(lambda n,j,q: 184+16*(2*n+q)+4*j) if M16 else (lambda n,j,q: ACC[n][j&1]+8*(j>>1)+4*q)
        wr=[[f"ds_write_b128 v{VW}, {vr(piece(n,j,q),4)} offset:{L_XS+n*8192+j*2048+q*1024}" for j,q in ([(j,q) for q in range(2) for j in (1,2,3)] if M16 else [(j,q) for j in (2,1,3) for q in range(2)])] for n in range(2)]
        def reads(n): return [f"ds_read_b128 {vr(R[n]+8*(j-1)+4*q,4)}, v{RD[j-1]} offset:{L_XS+n*8192+j*2048+q*1024}" for j in (1,2,3) for q in range(2)]
        if ROWO:
            R=[88,120]
            wr=[[f"ds_write_b128 v{VW1 if j>>1 else VW}, {vr(piece(n,j,q),4)} offset:{L_XS+n*8192+j*2048+q*1024}" for j in (0,2,1,3) for q in range(2)] for n in range(2)]
            def reads(n):
                L=[f"ds_read_b128 {vr(80+4*z,4)}, v{RX_} offset:{z*1024}" for z in range(2)] if n==0 else []
                return L+[f"ds_read_b128 {vr(R[n]+8*z+4*q,4)}, v{RA_} offset:{L_XS+z*NS*1024+n*8192+q*1024}" for z in range(4) for q in range(2)]
        def plain(L):
            o=[]
            for x in L:
                m=re.match(r"v_pk_(add|fma)_f32 (.*)",x)
                if not m: o.append(x); continue
                rs=[int(t) for t in re.findall(r"v\[(\d+):",x)]
                o+=[f"v_{m.group(1)}_f32 "+", ".join(f"v{r+e}" for r in rs) for e in range(2)]
            return o
        def final(n):
            r=R[n]; L=[]
            unp=lambda z:[y for k in range(4*z,4*z+4) for y in (f"v_lshlrev_b32 v{XF+2*k}, 16, v{80+k}", f"v_and_b32 v{XF+2*k+1}, 0xffff0000, v{80+k}")]
            if ROWO:
                L+=unp(n)
                for k in range(0,8,2): L+=[f"v_pk_add_f32 {vr(r+k,2)}, {vr(r+k,2)}, {vr(r+8+k,2)}"]
                for k in range(0,8,2): L+=[f"v_pk_add_f32 {vr(r+16+k,2)}, {vr(r+16+k,2)}, {vr(r+24+k,2)}"]
                for k in range(0,8,2): L+=[f"v_pk_add_f32 {vr(r+k,2)}, {vr(r+k,2)}, {vr(r+16+k,2)}"]
            else:
                for k in range(0,8,2): L+=[f"v_pk_add_f32 {vr(r+k,2)}, {vr(r+k,2)}, {vr(piece(n,0,k>>2)+(k&3),2)}"]
                for k in range(0,8,2): L+=[f"v_pk_add_f32 {vr(r+8+k,2)}, {vr(r+8+k,2)}, {vr(r+16+k,2)}"]
                for k in range(0,8,2): L+=[f"v_pk_add_f32 {vr(r+k,2)}, {vr(r+k,2)}, {vr(r+8+k,2)}"]
            if M16: L+=[f"v_permlane32_swap_b32 v{r+k}, v{r+4+k}" for k in range(4)]
            for k in range(0,8,2): L+=[f"v_pk_fma_f32 {vr(r+k,2)}, {vr(r+k,2)}, {vr(GB+k,2)}, {vr(XF+8*n+k,2)}"]
            for k in range(0,8,2): L+=[f"v_cvt_pk_bf16_f32 v{8+4*n+k//2}, v{r+k}, v{r+k+1}"]
            if not cfg.get('NOOUT'): L.append(f"buffer_store_dwordx4 {vr(8+4*n,4)}, v{VO}, {sp(rOUT,4)}, s{sT2+n} offen {cfg.get('OST','')}")
            return L
        E0=cfg.get('EARLY0',0); e0=None
        if E0: R[0]=88
        started=set(); g=0; FD=cfg.get('FLAGD2',26)
        if cfg.get('C0AT',999)>=231: poll_check(P,'p0'); stamp(P,14,diag)
        TL=cfg.get('TAILLD',6)
        if TL:
            nt=len(ctail); per=-(-nt//TL)
            while nt>0:
                if s.li<AH and s.can_load(): P.extend(s.load())
                c=min(per,nt); P.extend(side[:c]); side=side[c:]; nt-=c
            while s.nflag<len(ends)-1:
                P.I(f"@wait act{ends[s.nflag]-1}"); P.extend(flag_store(s.nflag)); s.nflag+=1
            while s.li<AH and s.can_load(): P.extend(s.load())
            flag_due[len(ends)-1]=cfg.get('FL2',10)
        stamp(P,15,diag)
        P.I("@mark d")
        for k,(f,n) in enumerate(work):
            while s.li<=k:
                if not s.can_load():
                    P.extend(side); side=[]
                    P.I(f"@wait act{ends[s.nflag]-1}"); P.extend(flag_store(s.nflag)); s.nflag+=1; print('  D: forced flag at',k)
                else: P.extend(s.load())
            for m4 in range(NM):
                if M16:
                    j=(1,2,3,0)[m4]; a=vr(184+16*n+4*j,4)
                    P.I(f"v_mfma_f32_16x16x32_bf16 {a}, {ar(kap(f)+4*j,4)}, {vr(s.BUF[k%s.NB],4)}, {a if (n,j) in started else 0}"); started.add((n,j))
                    free=2-(m4==3); m=m4>>1
                    if not m4&1:
                        if m4==0 and s.li<len(work) and s.li<=k+AH-1 and s.li-s.NB<k and s.can_load():
                            L=s.load(); P.extend(L); free-=len(L)
                        while side and g>=2 and cost(side[0])<=free and not isinstance(side[0],tuple):
                            x=side.pop(0); P.extend([x]); free-=cost(x)
                        continue
                    g+=1
                else:
                    m=m4; a=vr(ACC[n][m],16)
                    P.I(f"v_mfma_f32_32x32x16_bf16 {a}, {ar(8*f+4*m,4)}, {vr(s.BUF[k%s.NB],4)}, {a if (n,m) in started else 0}"); started.add((n,m))
                    g+=1; free=6-m
                if s.nflag<len(ends) and g>=flag_due.get(s.nflag,999):
                    P.I(f"@wait act{ends[s.nflag]-1}"); P.extend(flag_store(s.nflag)); print('  D: flag',s.nflag,'at item',k,'li',s.li); s.nflag+=1; free-=4
                if s.li<len(work) and s.li<=k+AH-(1-m)-(1 if M16 else 0) and s.li-s.NB<k+m and s.can_load():
                    L=s.load(); P.extend(L); free-=len(L)
                if m==0 and k in late:
                    assert not side
                    L=late.pop(k); P.extend(L); free-=len(L)
                if (m or E0==2) and k>nA+1 and wr[0]: P.I(wr[0].pop(0)); free=0
                elif E0 and not wr[0] and e0 is None and m:
                    assert not side and not late
                    P.I("s_waitcnt lgkmcnt(0)\ns_barrier"); e0=g; side=reads(0)+['s_waitcnt lgkmcnt(0)']+plain(final(0)); free-=3
                while side and g>=2 and cost(side[0])<=free and not (e0 is not None and g<e0+3+ROWO and not side[0].startswith('ds_')):
                    x=side.pop(0); P.extend([x]); free-=cost(x)
                    if isinstance(x,tuple) and int(x[1][3:])+1 in ends: flag_due[ends.index(int(x[1][3:])+1)]=g+FD
        P.I("@mark end")
        if E0: print('  D: early finish left',len(side),e0)
        rest0=side if E0 else []; side=[] if E0 else side
        assert not side and not late and s.nflag==len(ends) and (e0 is not None or not E0)
        P.extend(wr[0])
        stamp(P,17,diag)
        for i,x in enumerate(wr[1]):
            if i==0: P.extend(rest0[:8]); rest0=rest0[8:]
            P.I(x); P.extend(rest0[:3]); rest0=rest0[3:]
        P.I("s_waitcnt lgkmcnt(0)\ns_barrier")
        if E0: P.extend(reads(1)); P.extend(rest0); P.extend(final(1))
        else: P.extend(reads(0)); P.extend(reads(1)); P.extend(final(0)); P.extend(final(1))
```

```python
from prog import *
from layout import *
import struct
def f32(x): return struct.unpack('<I',struct.pack('<f',x))[0]
LOG2E = 0x3fb8aa3b
XIN = 0
sX,sARE,sAIM,sBRE,sBIM,sCRE,sCIM,sLDT,sDSK,sBX,sWG,sWU,sWD,sC,sWM,sOUT,sDBG,sWS = [8+2*i for i in range(18)]
rR,rWG,rWU,rWD,rOUT,rWS,rWJ = 44,48,52,56,60,64,68
sXCD,sIDX,sP,sW,sTAG,sLD,sDS = 72,73,74,75,76,77,78
sT0,sT1,sT2,sT3,sT4,sT5 = 80,81,82,83,84,85
sWO,sWST,sWA = 86,87,88
sCG,sKE,sFS,sCNT = 26,27,97,98
def sp(a,n=2): return f"s[{a}:{a+n-1}]"
def vr(a,n): return f"v[{a}:{a+n-1}]"
def ar(a,n): return f"a[{a}:{a+n-1}]"
def mksrd(d,b,size):
    return [f"s_mov_b32 s{d}, s{b}", f"s_and_b32 s{d+1}, s{b+1}, 0xffff", f"s_mov_b32 s{d+2}, {size}", f"s_mov_b32 s{d+3}, 0x20000"]
vLANE = 1
vT16,vMC,vMW = 12,13,14
vPAR = 16
vTAB = 24
vRA = 32
vROLE = 40
vFG = 120
vPOLL = 160
vPOL2 = 152
vXF = 192
vHF = 208
vKA,vUA,vYW,vYR,vWRA,vXO,vGR,vL16 = 224,225,226,227,228,229,230,231
vMOD = 232
vKF,vKC,vGW,vSEL1,vSEL2 = 240,241,242,243,244

ONLY=None
import os
LATE0=int(os.environ.get('LATE0','0'))
JIT=os.environ.get('JIT','')
def stamp(P, n, diag):
    if JIT:
        P.I(f"s_waitcnt lgkmcnt(0)\ns_memtime s[100:101]\ns_waitcnt lgkmcnt(0)\ns_cselect_b32 s5, 1, 0\ns_lshr_b32 s100, s100, 3\ns_and_b32 s100, s100, {JIT}\ns_cbranch_scc1 L_jit{len(P.ins)}\ns_sleep 40\nL_jit{len(P.ins)}:\ns_cmp_lg_u32 s5, 0")
    if diag and (ONLY is None or n in ONLY): P.I(f"s_memrealtime s[4:5]\ns_memtime s[100:101]\ns_waitcnt lgkmcnt(0)\nv_writelane_b32 v255, s4, {n}\nv_writelane_b32 v255, s100, {32+n}")
def stamp0_issue(P, diag):
    if diag: P.I("v_mov_b32 v255, 0\ns_memrealtime s[4:5]\ns_memtime s[100:101]")
def stamp0_commit(P, diag):
    if diag: P.I("v_writelane_b32 v255, s4, 0\nv_writelane_b32 v255, s100, 32")
def stamp_out(P, kidx, diag):
    if diag:
        P.I(f"""s_lshl_b32 s4, s2, 10
s_add_u32 s4, s4, {WS_STAMP + kidx*0x40000}
v_lshlrev_b32 v2, 2, v0
buffer_store_dword v255, v2, {sp(rWS,4)}, s4 offen""")

def bf16_round(l):
    u=f32(float(l)); u=(u+0x7fff+((u>>16)&1))&0xffff0000
    return int(struct.unpack('<f',struct.pack('<I',u))[0])
def table_words():
    rec=[]
    for T in range(256):
        a=[]
        for j in range(11):
            lag=2047-8*T-j
            if lag<0: a.append(L_CZ); continue
            lam=bf16_round(lag); b=(lam>>3)&15; i=HI.index(lam-8*b)
            a.append(L_C+i*CP+4*b)
        a.append(0)
        w=T>>6; lane=T&63; ch=w>>1; vh=w&1
        ka_=L_KI+ch*4*KIP+(lane&3)*KIP+2*(2044-16)-3584-192-256*vh+(lane&48)-2*(lane&12)
        ua_=L_H+ch*HP+448-192-256*vh+32*(lane&15)+(lane&48)
        rec.append([a[2*k]|(a[2*k+1]<<16) for k in range(6)]+[ka_,ua_])
    return [rec[T][4*q+k] for q in range(2) for T in range(256) for k in range(4)]

def entry(P, name, diag, nlines, perm):
    P.I(f".globl {name}\n.p2align 8\n.type {name},@function\n{name}:\n@reset")
    ng=(nlines+15)//16; assert ng&(ng-1)==0 and ng<=32
    if LATE0: P.I(f"s_and_b32 s4, s2, 7\ns_cbranch_scc1 L_nolate\ns_sleep {LATE0}\nL_nolate:")
    P.I(f"""s_cmp_ge_u32 s2, 256
s_cbranch_scc1 L_{name}_exit
s_load_dwordx16 s[8:23], s[0:1], 0
s_load_dwordx16 s[24:39], s[0:1], 64
s_load_dwordx4 s[40:43], s[0:1], 128
s_getpc_b64 s[6:7]
L_pc:
s_mov_b64 exec, -1
v_lshrrev_b32 v2, 6, v0
v_and_b32 v{vLANE}, 63, v0
s_lshr_b32 s{sIDX}, s2, 3
v_readfirstlane_b32 s{sW}, v2
s_and_b32 s{sT0}, s{sIDX}, {ng-1}
s_lshl_b32 s{sT0}, s{sT0}, 11
v_lshl_add_u32 v3, v{vLANE}, 5, s{sT0}
s_cmp_lg_u32 s{sW}, 3
s_cbranch_scc1 L_nopf
global_load_dword v15, v3, s[6:7]
L_nopf:""")
    stamp0_issue(P,diag)
    P.I(f"s_and_b32 s{sXCD}, s2, 7")
    if perm: P.I(f"s_lshl_b32 s{sXCD}, s{sXCD}, 2\ns_lshr_b32 s{sXCD}, {hex(sum(v<<(4*k) for k,v in enumerate(perm)))}, s{sXCD}\ns_and_b32 s{sXCD}, s{sXCD}, 7")
    P.I(f"""s_lshl_b32 s{sP}, s{sXCD}, 5
s_add_u32 s{sP}, s{sP}, s{sIDX}""")

def role_addr(P, loc=0):
    P.I(f"""s_cmp_eq_u32 s{sW}, 0
s_cselect_b32 s{sT3}, 8, 1
s_lshl_b32 s{sT2}, s{sT3}, 10
s_lshl_b32 s{sT3}, s{sT3}, 7
s_and_b32 s{sT4}, s{sP}, 7
s_lshl_b32 s{sT4}, s{sT4}, 7""")
    if loc: P.I(f"s_lshl_b32 s{sT0}, s{sIDX}, 9\ns_add_u32 s{sT0}, s{sT0}, s{sXCD}\ns_lshl_b32 s{sT0}, s{sT0}, 7")
    else: P.I(f"s_lshr_b32 s{sT0}, s{sP}, 3\ns_lshl_b32 s{sT0}, s{sT0}, 16\ns_add_u32 s{sT0}, s{sT0}, s{sT4}")
    P.I(f"""s_lshl_b32 s{sT1}, s{sP}, 13
s_cmp_eq_u32 s{sW}, 0
s_cselect_b32 s{sT0}, s{sT0}, s{sT1}
s_and_b32 s{sT5}, s{sW}, 1
s_sub_u32 s92, 7, s{sT5}
s_lshr_b32 s{sT1}, s{sP}, s92
s_lshl1_add_u32 s{sT1}, s{sT5}, s{sT1}
s_lshl_b32 s{sT1}, s{sT1}, 10
s_add_u32 s{sT4}, s{sT4}, s{sT1}
s_and_b32 s{sT1}, s{sP}, 0xf8
s_add_u32 s92, s{sT5}, 2
s_lshl_b32 s{sT1}, s{sT1}, s92
s_and_b32 s{sT5}, s{sT1}, 511
s_mul_i32 s{sT1}, s{sT5}, 6144
s_add_u32 s{sT1}, s{sT1}, s{sT4}
s_mov_b32 s{sT4}, 3145728
s_cmp_lt_u32 s{sW}, 2
s_cselect_b32 s94, s{sT0}, s{sT1}
s_cselect_b32 s{sT2}, s{sT2}, 6144
s_cselect_b32 s79, s{sT3}, {8*6144}
s_cselect_b32 s{rR+2}, 2097152, s{sT4}
s_mov_b32 s{rR+3}, 0x20000
v_lshrrev_b32 v3, 3, v{vLANE}
v_mul_u32_u24 v3, s{sT2}, v3
v_lshrrev_b32 v4, 2, v{vLANE}
v_and_b32 v4, 4, v4
v_and_b32 v5, 7, v{vLANE}
v_xor_b32 v4, v4, v5
v_lshl_add_u32 v22, v4, 4, v3
v_xor_b32 v23, 32, v22
s_lshl_b32 s3, s{sW}, 13
s_add_u32 s3, s3, {L_RR}
v_add_u32 v5, s{sT5}, v{vLANE}
v_and_b32 v5, 511, v5
v_lshlrev_b32 v5, 1, v5
s_lshl_b32 s{sT5}, s{sP}, 9
v_lshl_add_u32 v2, v0, 1, s{sT5}""")
    for i in range(6): P.I(f"v_mov_b32 v{vPAR+i}, 0")
    P.I(f"v_mov_b32 v{vROLE}, 0\ns_lshl_b32 s93, s{sP}, 2")
def param_loads(P, NT):
    P.extend([f"global_load_short_d16_hi v{vPAR+i}, v2, {sp(b)} {NT}" for i,b in enumerate((sARE,sAIM,sBRE,sBIM,sCRE,sCIM))])
def early_loads(P, NT, pfirst):
    if pfirst: param_loads(P,NT)
    P.I(f"""s_load_dword s{sTAG}, {sp(sWS)}, {WS_EPOCH}
s_load_dword s{sLD}, {sp(sLDT)}, s93
s_load_dword s{sDS}, {sp(sDSK)}, s93
s_cmp_lt_u32 s{sW}, 2
s_cselect_b64 {sp(rR)}, {sp(sX)}, {sp(sWM)}
s_and_b32 s{rR+1}, s{rR+1}, 0xffff""")
    P.I(f"global_load_short_d16_hi v{vROLE}, v5, {sp(sC)}")
    P.I(f"""s_add_u32 s6, s6, L_table-L_pc+4096
s_addc_u32 s7, s7, 0
v_lshlrev_b32 v{vT16}, 4, v0""")
def role_loads(P, XNT, late, sd=0):
    lbl='L_rlb' if late else 'L_rla'
    P.I(f"s_cmp_eq_u32 s{sW}, 3\ns_cbranch_scc{0 if late else 1} {lbl}")
    if sd and not late:
        P.I(f"s_cmp_lg_u32 s{sW}, 1\ns_cbranch_scc1 L_rl0")
        for u in range(8): P.I(f"buffer_load_dwordx4 {vr(vROLE+40+4*u,4)}, v22, {sp(rR,4)}, s94 offen offset:{u*128} {XNT}")
        P.I("@forget "+" ".join(str(r) for r in range(vROLE+40,vROLE+72))+f"\ns_branch {lbl}\nL_rl0:")
    for u in range(8):
        if u==4 and not late: P.I(f"s_cmp_eq_u32 s{sW}, 2\ns_cbranch_scc1 {lbl}")
        P.I(f"s_add_u32 m0, s3, {u*1024}")
        P.I(f"s_add_u32 s94, s94, s79" if u else "s_nop 0")
        P.I(f"buffer_load_dwordx4 v{22+(u&1)}, {sp(rR,4)}, s94 offen {XNT} lds", tag='rr')
    P.I(f"{lbl}:")
def table_loads(P):
    P.I(f"global_load_dwordx4 {vr(vTAB,4)}, v{vT16}, s[6:7] offset:-4096\nglobal_load_dwordx4 {vr(vTAB+4,4)}, v{vT16}, s[6:7]")

def setup(P, nowd=False, X='', wmap=0, defer=0):
    D=Prog() if defer else P; P0=P
    P.extend(mksrd(rWS,sWS,WS_USED))
    P.I(f"{f's_cmp_lg_u32 s{sXCD}, 0' if wmap>=2 else f's_cmp_lt_u32 s{sIDX}, 28'}\ns_cselect_b32 s{sT0}, 1835008, 0\ns_cselect_b32 s{sT1}, {WS_USED}, 0")
    P.extend(mksrd(rWD,sWD,f"s{sT0}"))
    for r,b in ((rWG,sWG),(rWU,sWU)): D.extend(mksrd(r,b,f"s{rWD+2}"))
    P.extend(mksrd(rWJ,sWS,f"s{sT1}"))
    if 'w' in X: P.I(f"s_mov_b32 s{rWG+2}, 0\ns_mov_b32 s{rWU+2}, 0")
    if 'm' in X: P.I(f"s_mov_b32 s{rR+2}, 0")
    if 'd' in X: P.I(f"s_mov_b32 s{rWD+2}, 0")
    if 's' in X: P.I(f"s_min_u32 s{rWJ+2}, s{rWJ+2}, {WS_XG}")
    assert not (defer and (wmap>=2 or X))
    P=D
    if wmap>=2:
        P.I(f"s_max_u32 s{sFS}, s{sP}, 32\ns_sub_u32 s{sFS}, s{sFS}, 32")
        if wmap==2: P.I(f"s_lshr_b32 s{sCG}, s{sFS}, 3\ns_and_b32 s{sKE}, s{sFS}, 7")
        else: P.I(f"s_mul_i32 s{sKE}, s{sFS}, 586\ns_lshr_b32 s{sKE}, s{sKE}, 14\ns_mul_i32 s{sCG}, s{sKE}, 28\ns_sub_u32 s{sCG}, s{sFS}, s{sCG}")
    elif wmap: P.I(f"s_mov_b32 s{sCG}, s{sIDX}\ns_mov_b32 s{sKE}, s{sXCD}")
    else: P.I(f"""s_and_b32 s{sCG}, s{sXCD}, 3
s_mul_i32 s{sCG}, s{sCG}, 7
s_lshr_b32 s{sT0}, s{sIDX}, 2
s_add_u32 s{sCG}, s{sCG}, s{sT0}
s_and_b32 s{sKE}, s{sXCD}, 4
s_and_b32 s{sT0}, s{sIDX}, 3
s_add_u32 s{sKE}, s{sKE}, s{sT0}""")
    P.I(f"""s_lshl2_add_u32 s{sT0}, s{sCG}, s{sW}
s_mul_i32 s{sT1}, s{sT0}, 147
s_lshr_b32 s{sT1}, s{sT1}, 10
s_mul_i32 s{sT2}, s{sT1}, 7
s_sub_u32 s{sT0}, s{sT0}, s{sT2}
s_mul_i32 s{sT1}, s{sT1}, 231
s_cmp_lt_u32 s{sT0}, {G1}
s_cselect_b32 s{sT2}, {G1}, 1
s_cselect_b32 s{sT3}, 1, 33
s_mul_i32 s{sT0}, s{sT0}, s{sT3}
s_add_u32 s{sT0}, s{sT0}, s{sT1}
s_lshl_b32 s{sT0}, s{sT0}, 10
s_add_u32 s{sT0}, s{sT0}, {WS_WPF}
s_lshl_b32 s{sWST}, s{sT2}, 10
s_mul_i32 s{sT3}, s{sWST}, s{sKE}
s_lshl2_add_u32 s{sWO}, s{sT3}, s{sT0}
s_lshl_b32 s{sT2}, s{sT2}, 15
s_add_u32 s{sWA}, s{sT2}, s{sT0}
s_lshl_b32 s{sT0}, s{sKE}, 7
s_add_u32 s{sWA}, s{sWA}, s{sT0}
s_mul_i32 s{sT0}, s{sKE}, {64*3584}
s_lshl_b32 s{sT1}, s{sCG}, 7
s_add_u32 s90, s{sT0}, s{sT1}""")
    P=P0
    L=vLANE
    P.I(f"""v_lshlrev_b32 v{vL16}, 4, v{L}
v_and_b32 v2, 15, v{L}
v_and_b32 v3, 48, v{L}
v_lshrrev_b32 v4, 4, v{L}
v_lshrrev_b32 v5, 5, v{L}
v_and_b32 v6, 3, v{L}
s_mul_i32 s{sT2}, s{sW}, 10240
s_add_u32 s{sT2}, s{sT2}, {L_Y}
v_mul_u32_u24 v7, 320, v4
v_lshl_add_u32 v7, v2, 4, v7
v_add_u32 v{vYW}, s{sT2}, v7
v_lshrrev_b32 v7, 5, v0
v_mul_u32_u24 v7, 1280, v7
v_and_b32 v8, 1, v0
v_mul_u32_u24 v9, 640, v8
v_bfe_u32 v10, v0, 1, 4
v_lshl_add_u32 v9, v10, 4, v9
v_add_u32 v{vYR}, v7, v9
v_lshrrev_b32 v7, 2, v0
{f"s_and_b32 s{sT2}, s{sP}, 7" if XIN else ""}
{f"v_xor_b32 v7, s{sT2}, v7" if XIN else ""}
v_lshlrev_b32 v7, {7 if XIN else 15}, v7
v_lshl_add_u32 v{vXO}, v6, 4, v7
v_mul_u32_u24 v7, {FP}, v2
v_add_u32 v7, v7, v3
v_add_u32 v{vKF}, {L_F}, v7
v_mul_u32_u24 v7, {CP}, v2
s_mul_i32 s{sT2}, s{sW}, {16*CP}
v_add3_u32 v{vKC}, v7, v3, s{sT2}
v_bfe_u32 v7, v{L}, 2, 2
v_cvt_f32_u32 v{vSEL2}, v5
v_and_b32 v9, 31, v{L}
v_lshlrev_b32 v{vMC}, 12, v9
v_and_b32 v9, 8, v{L}
v_lshl_add_u32 v9, v9, 1, v2
v_lshlrev_b32 v{vSEL1}, 12, v9
v_lshl_add_u32 v9, v5, 3, v6
v_bfe_u32 v10, v{L}, 2, 3
v_lshlrev_b32 v11, 4, v10
v_lshl_add_u32 v{vMW}, v9, 12, v11
s_lshl_b32 s{sT2}, s{sW}, 6
s_add_u32 s{sT2}, s{sT2}, {L_GT+256}
v_lshl_add_u32 v10, v10, 3, s{sT2}
v_lshlrev_b32 v11, 8, v5
v_sub_u32 v{vGW}, v10, v11
v_lshlrev_b32 v10, 5, v5
v_add_u32 v{vGR}, {L_GT}, v10
v_and_b32 v9, 1, v4
v_lshl_add_u32 v10, v9, 1, v5
v_lshl_add_u32 v10, v10, 3, v7
v_lshl_add_u32 v10, v10, 1, v9
v_bfe_u32 v11, v{L}, 3, 1
v_lshl_add_u32 v10, v10, 1, v11
v_xor_b32 v10, s{sW}, v10
v_lshl_add_u32 v10, v10, 1, v8
v_bfe_u32 v11, v{L}, 1, 1
v_lshl_add_u32 v10, v10, 1, v11
v_lshlrev_b32 v10, 3, v10
v_add_u32 v{vWRA}, {L_WR}, v10""")
    P.I(f"""v_mul_u32_u24 v7, {HP}, v5
v_and_b32 v9, 31, v{L}
v_min_u32 v9, 29, v9
v_lshl_add_u32 v7, v9, 4, v7
v_add_u32 v7, {L_H}, v7
v_cmp_gt_u32 vcc, 64, v0
v_mov_b32 v9, {L_CZ}
v_mov_b32 v{vFG}, 0
v_cndmask_b32 v7, v9, v7, vcc
v_mov_b32 v{vFG+1}, 0
v_mov_b32 v{vFG+2}, 0
v_mov_b32 v{vFG+3}, 0
ds_write_b128 v7, {vr(vFG,4)}""")
    A0=vRA
    P.I(f"""v_lshrrev_b32 v2, 3, v{L}
v_and_b32 v3, 2, v2
v_mul_u32_u24 v2, 3584, v2
v_and_b32 v4, 7, v{L}
v_xor_b32 v3, v3, v4
v_xor_b32 v4, 4, v3
v_lshl_add_u32 v{A0+2}, v3, 4, v2
v_lshl_add_u32 v{A0+3}, v4, 4, v2
v_and_b32 v8, 1, v{L}
v_bfe_u32 v7, v{L}, 1, 3
v_mul_u32_u24 v7, {KIP}, v7
v_lshl_add_u32 v7, v8, 4, v7
v_add_u32 v{A0+1}, {L_KI+4096}, v7
""")
    if not nowd: P.I(f"""v_lshrrev_b32 v2, 2, v{L}
v_and_b32 v5, 3, v{L}
v_lshlrev_b32 v5, 4, v5
v_lshl_add_u32 v{A0+4}, v2, 10, v5
v_lshrrev_b32 v6, 5, v{L}
v_and_b32 v7, 3, v2
v_lshl_add_u32 v6, v6, 3, v7
v_bfe_u32 v7, v{L}, 4, 1
v_lshl_add_u32 v6, v6, 1, v7
v_lshl_add_u32 v6, v6, 1, v8
v_bfe_u32 v7, v{L}, 1, 1
v_lshl_add_u32 v6, v6, 1, v7
v_lshlrev_b32 v6, 3, v6
v_add_u32 v{A0}, {L_DR}, v6
{"" if wmap>=2 else f"s_mul_i32 s{sFS}, s{sXCD}, 28"}
{"" if wmap>=2 else f"s_add_u32 s{sFS}, s{sFS}, s{sIDX}"}
s_lshr_b32 s{sT2}, s{sFS}, 1
s_lshl_b32 s{sT2}, s{sT2}, 14
s_and_b32 s{sT1}, s{sFS}, 1
s_lshl_b32 s{sT1}, s{sT1}, 9
s_add_u32 s91, s{sT2}, s{sT1}""")
    return [x.text for x in D.ins] if defer else []

def x_jobs(P, PUB, diag, loc=0):
    R=vROLE; G=vROLE+32; L=vLANE
    P.I(f"s_cmp_eq_u32 s{sW}, 2\ns_cbranch_scc1 L_rj2\ns_cmp_eq_u32 s{sW}, 1\ns_cbranch_scc1 L_rj1")
    P.I(f"""v_and_b32 v2, 7, v{L}
v_lshrrev_b32 v3, 3, v{L}
v_and_b32 v4, 2, v2
v_lshlrev_b32 v4, 1, v4
v_xor_b32 v4, v4, v3
v_lshlrev_b32 v4, 4, v4
v_lshl_add_u32 v4, v2, 7, v4
v_add_u32 v4, {L_RR}, v4
v_xor_b32 v5, 32, v4
v_mul_u32_u24 v3, {4*12288}, v3
v_lshl_add_u32 v2, v2, 4, v3
{f"s_mov_b32 s{sT0}, s{sXCD}" if loc else f"s_and_b32 s{sT0}, s{sP}, 7"}
s_mul_i32 s{sT0}, s{sT0}, {32*12288}
{f"s_lshl_b32 s{sT1}, s{sIDX}, 3" if loc else f"s_and_b32 s{sT1}, s{sP}, 0xf8"}
s_lshl4_add_u32 s{sT0}, s{sT1}, s{sT0}
s_add_u32 s{sT0}, s{sT0}, {WS_XG}""")
    if LB: epoch_sync(P); kgen_init(P,2)
    for k in range(12): P.I(f"v_mov_b32 v{G+4*k+3}, s{sTAG}")
    if diag and ONLY and 27 in ONLY:
        for z,cn in ((25,63),(24,16),(27,10),(28,6),(29,2)): P.I(f"s_waitcnt vmcnt({cn})"); stamp(P,z,diag)
    P.I(f"s_waitcnt vmcnt({JW})"); stamp(P,2,diag)
    for r in range(8): P.I(f"ds_read_b128 {vr(R+4*r,4)}, v{4+(r&1)} offset:{r*1024}")
    for g in range(3):
        for j in range(4):
            k=g*4+j
            for e in range(3):
                if 3*g+e<8: P.I(f"v_mov_b32 v{G+4*k+e}, v{R+4*(3*g+e)+j}")
            P.I(f"s_add_u32 s{sT1}, s{sT0}, {j*12288+g*4096}")
            P.I(f"buffer_store_dwordx4 {vr(G+4*k,4)}, v2, {sp(rWS,4)}, s{sT1} offen {'' if loc==1 else PUB}")
    P.I(f"s_waitcnt vmcnt(12)\ns_branch L_xje\nL_rj1:")
    P.I(f"""v_mov_b32 v2, 0
v_mov_b32 v3, 0
v_mov_b32 v4, 0
v_mov_b32 v5, 0
s_mov_b32 s{sT1}, 0x3f803f80
v_add_u32 v6, {L_RR+8192}, v{vL16}
v_mul_u32_u24 v8, 96, v{L}
v_lshlrev_b32 v9, {4 if SGP else 12}, v{L}
s_lshl_b32 s{sT0}, s{sP}, {SGP or 4}
s_add_u32 s{sT0}, s{sT0}, {WS_SG}""")
    if LB: epoch_sync(P)
    P.I(f"v_mov_b32 v{G+3}, s{sTAG}")
    if SD: R=vROLE+40
    else:
        P.I(f"s_waitcnt vmcnt({JW})"); stamp(P,2,diag)
        for u in range(8): P.I(f"ds_read_b128 {vr(R+4*u,4)}, v6 offset:{u*1024}")
    for k in range(32):
        if SD and k%8==0: P.I(f"s_waitcnt vmcnt({(8 if JW else 2)+6-k//4})")
        P.I(f"v_dot2c_f32_bf16 v{2+(k&1)}, s{sT1}, v{R+k}\nv_dot2c_f32_bf16 v{4+(k&1)}, v{R+k}, v{R+k}")
    P.I("v_add_f32 v2, v2, v3\nv_add_f32 v4, v4, v5")
    for m in ("quad_perm:[1,0,3,2]","quad_perm:[2,3,0,1]","row_half_mirror"):
        P.I(f"v_add_f32_dpp v2, v2, v2 {m} row_mask:0xf bank_mask:0xf\nv_add_f32_dpp v4, v4, v4 {m} row_mask:0xf bank_mask:0xf")
    P.I(f"""v_mul_f32 v2, 0x3b000000, v2
v_mul_f32 v4, 0x3b000000, v4
v_fma_f32 v4, -v2, v2, v4
v_max_f32 v4, 0, v4
v_cvt_pk_bf16_f32 v4, v4, v4
v_and_b32 v4, 0xffff0000, v4
v_add_f32 v4, 0x3727c5ac, v4
v_cvt_pk_bf16_f32 v4, v4, v4
v_and_b32 v4, 0xffff0000, v4
v_sqrt_f32 v4, v4
v_cvt_pk_bf16_f32 v2, v2, v4
ds_bpermute_b32 v{G}, v8, v2
ds_bpermute_b32 v{G+1}, v8, v2 offset:32
ds_bpermute_b32 v{G+2}, v8, v2 offset:64
s_waitcnt lgkmcnt(0)
s_mov_b64 exec, {(1<<(1<<(SGP-4)))-1 if SGP else 7}
buffer_store_dwordx4 {vr(G,4)}, v9, {sp(rWS,4)}, s{sT0} offen {PUB}
s_mov_b64 exec, -1
s_waitcnt vmcnt(1)
s_branch L_xje
{".p2align 12" if PG0 else ""}
{"L_page:" if PG0 else ""}
L_rj2:""")
    mod_job(P,PUB,diag,1)
    P.I("s_waitcnt vmcnt(1)")
    P.I("L_xje:")
def mod_job(P, PUB, diag, nks):
    R=vROLE; L=vLANE; A0=vRA; w=nks+1
    assert L_MR%128==0
    P.I(f"""v_lshrrev_b32 v2, 4, v{L}
v_bfe_u32 v3, v{L}, 2, 2
v_lshl_add_u32 v4, v2, 3, v3
v_bfe_u32 v3, v{L}, 3, 1
v_lshl_add_u32 v4, v4, 1, v3
v_and_b32 v3, 1, v2
v_lshl_add_u32 v4, v4, 1, v3
v_and_b32 v3, 3, v{L}
v_lshl_add_u32 v4, v4, 2, v3
v_lshlrev_b32 v4, 3, v4
v_add_u32 v8, {L_RR+w*8192}, v4
v_xor_b32 v9, 32, v8
v_xor_b32 v10, 64, v8
v_xor_b32 v11, 96, v8
v_bfe_u32 v4, v{L}, 1, 2
v_lshl_add_u32 v4, v4, 2, v2
v_and_b32 v3, 1, v{L}
v_lshl_add_u32 v4, v4, 1, v3
v_lshlrev_b32 v{A0+5}, 4, v4
s_mov_b32 s{sT0}, {L_SC+(w-2)*128}
v_lshl_add_u32 v6, v{L}, 1, s{sT0}
v_and_b32 v7, 48, v{L}
v_add_u32 v7, s{sT0}, v7
s_lshl_b32 s{sT0}, s{sP}, 9
s_add_u32 s99, s{sT0}, {WS_MG+(w-2)*0x20000}
s_mov_b32 s{sT0}, 0xaaaaaaaa
s_mov_b32 s{sT1}, 0xaaaaaaaa
s_mov_b32 s{sT2}, 0xcccccccc
s_mov_b32 s{sT3}, 0xcccccccc
s_mov_b32 s{sT4}, 0xf0f0f0f0
s_mov_b32 s{sT5}, 0xf0f0f0f0""")
    if nks==1 and LB: epoch_sync(P)
    if nks==1: P.I(f"s_waitcnt vmcnt({12 if JW else 6})")
    P.I(f"""v_mul_f32 v4, 0xbfb8aa3b, v{R}
v_exp_f32 v4, v4
v_add_f32 v4, 1.0, v4
v_rcp_f32 v4, v4
v_mul_f32 v2, v{R}, v4
v_cvt_pk_bf16_f32 v2, v2, v2
ds_write_b16 v6, v2""")
    for ks in range(nks): P.I(f"ds_read_b128 {vr(R+4*ks,4)}, v7 offset:{ks*64}")
    P.I(f"s_waitcnt vmcnt({JW})" if nks==1 else "@wait rr"); stamp(P,2,diag)
    A=R+16; ACC=R+16+32
    seq=[(ks,ct) for ks in range(nks) for ct in range(4)]
    for n,(ks,ct) in enumerate(seq):
        for hf in range(2): P.I(f"ds_read_b64_tr_b16 {vr(A+4*n+2*hf,2)}, v{8+ct} offset:{ks*4096+hf*512}")
    for n,(ks,ct) in enumerate(seq):
        P.I(f"v_mfma_f32_16x16x32_bf16 {vr(ACC+4*ct,4)}, {vr(A+4*n,4)}, {vr(R+4*ks,4)}, {vr(ACC+4*ct,4) if ks else 0}")
    P.I(f"v_mov_b32 v{R+3}, s{sTAG}")
    for ct in range(4):
        for e in range(2): P.I(f"v_cndmask_b32 v{A+2*ct+e}, v{ACC+4*ct+e}, v{ACC+4*ct+2+e}, {sp(sT0)}")
    for c2 in range(2):
        for e in range(2): P.I(f"v_cndmask_b32 v{A+8+2*c2+e}, v{A+4*c2+e}, v{A+4*c2+2+e}, {sp(sT2)}")
    for e in range(2): P.I(f"v_cndmask_b32 v{R+e}, v{A+8+e}, v{A+10+e}, {sp(sT4)}")
    P.I(f"""s_mov_b32 exec_lo, 0x00ff00ff
s_mov_b32 exec_hi, 0x00ff00ff
buffer_store_dwordx4 {vr(R,4)}, v{A0+5}, {sp(rWS,4)}, s99 offen {PUB}
s_mov_b64 exec, -1""")
def raw_wd_loads(P, NT):
    P.I(f"s_lshl_b32 s{sT0}, s{sW}, 11\ns_lshl_b32 s{sT1}, s{sW}, 7\ns_add_u32 m0, s{sT0}, {L_DR}\ns_add_u32 s{sT1}, s{sT1}, s91")
    P.I(f"buffer_load_dwordx4 v{vRA+4}, {sp(rWD,4)}, s{sT1} offen {NT} lds", tag='dr')
    P.I(f"s_add_u32 m0, s{sT0}, {L_DR+1024-64}\nv_add_u32 v245, s{sT0}, v{vRA}")
    P.I(f"buffer_load_dwordx4 v{vRA+4}, {sp(rWD,4)}, s{sT1} offen offset:64 {NT} lds", tag='dr')
PRE_S=0
def wd_scalars(d):
    return f"""s_and_b32 s{d}, s{sFS}, 1
s_lshl2_add_u32 s{d}, s{d}, s{sW}
s_mul_i32 s{d}, s{d}, {2*112}
s_lshr_b32 s{d+1}, s{sFS}, 1
s_add_u32 s{d}, s{d}, s{d+1}
s_lshl_b32 s{d}, s{d}, 10
s_add_u32 s{d}, s{d}, {WS_WDF}
s_add_u32 s{d+1}, s{d}, {112*1024}""".split('\n')
def w_scalars(): return [f"s_mul_i32 s95, s{sW}, {16*3584}", "s_add_u32 s95, s95, s90", f"s_lshl_b32 s96, s{sW}, 12"]
def wd_job(P, ST):
    A=vHF+8; d=22 if PRE_S else sT0
    P.I("@wait dr")
    for f in range(2):
        for hf in range(2): P.I(f"ds_read_b64_tr_b16 {vr(A+4*f+2*hf,2)}, v245 offset:{f*1024+hf*256}")
    if not PRE_S: P.extend(wd_scalars(d))
    for f in range(2):
        P.I(f"buffer_store_dwordx4 {vr(A+4*f,4)}, v{vL16}, {sp(rWJ,4)}, s{d+f} offen {ST}", tag='wdst')
def raw_w_loads(P, NT):
    if not PRE_S: P.extend(w_scalars())
    for q in range(2):
        for mat,r in ((0,rWG),(1,rWU)):
            P.I(f"s_add_u32 m0, s96, {L_WR+mat*2048+q*1024}")
            P.I(f"s_add_u32 s95, s95, {8*3584}" if (q and not mat) else "s_nop 0")
            P.I(f"buffer_load_dwordx4 v{vRA+2+mat}, {sp(r,4)}, s95 offen {NT} lds", tag='wr')

def cmul(o,a,b,t):
    return [f"v_pk_mul_f32 {vr(t,2)}, {vr(a,2)}, {vr(b,2)} op_sel_hi:[0,1]",
            f"v_pk_fma_f32 {vr(o,2)}, {vr(a,2)}, {vr(b,2)}, {vr(t,2)} op_sel:[1,1,0] op_sel_hi:[1,0,1] neg_lo:[1,0,0]"]
def factor_gen(P, lo=0, hi=99, grp=1, fill=None):
    B=vFG; are,aim,bre,bim,cre,cim=[vPAR+i for i in range(6)]
    R1,R8,R128,LOc,TMP,PK = B,B+2,B+4,B+6,B+8,B+12
    Pc=[B+16+2*c for c in range(8)]
    zr,zi,dt=B+32,B+33,B+34; M=[2,4,6]; PH=[8,9,10]
    if lo: P.I("s_mov_b32 m0, s92")
    else: P.I(f"s_lshr_b32 s{sT0}, s{sW}, 1\ns_mul_i32 s{sT1}, s{sT0}, {64*FP-512}\ns_lshl_b32 s{sT2}, s{sW}, 8\ns_add_u32 m0, s{sT1}, s{sT2}"+("\ns_mov_b32 s92, m0" if hi<57 else ""))
    P0=P
    if lo: P=Prog()
    P.I(f"""s_lshl_b32 s{sT0}, s{sT0}, 4
s_lshr_b32 s{sT1}, s{sLD}, s{sT0}
s_lshl_b32 s{sT1}, s{sT1}, 16
v_mov_b32 v{dt}, {hex(LOG2E)}
v_mul_f32 v{dt}, s{sT1}, v{dt}
v_exp_f32 v{dt}, v{dt}""")
    P.extend(cmul(Pc[0],cre,bre,TMP))
    P.I(f"""v_cvt_pk_bf16_f32 v{dt}, v{dt}, v{dt}
v_and_b32 v{dt}, 0xffff0000, v{dt}
v_mul_f32 v{zr}, v{dt}, v{are}
v_mul_f32 v{zi}, v{dt}, v{aim}
v_mul_f32 v{zr}, {hex(LOG2E)}, v{zr}
v_mul_f32 v{zi}, 0.15915494, v{zi}
v_pk_mul_f32 {vr(Pc[0],2)}, {vr(Pc[0],2)}, {vr(dt,2)} op_sel_hi:[1,0] neg_hi:[1,0]""")
    cx=((R1,1,True),(R8,8,False),(R128,128,True))
    for (o,sc,cj),m,ph in zip(cx,M,PH):
        if sc==1: P.I(f"v_exp_f32 v{m}, v{zr}\nv_fract_f32 v{ph}, v{zi}")
        else: P.I(f"v_mul_f32 v{m}, {hex(f32(sc))}, v{zr}\nv_mul_f32 v{ph}, {hex(f32(sc))}, v{zi}\nv_exp_f32 v{m}, v{m}\nv_fract_f32 v{ph}, v{ph}")
        P.I(f"v_cos_f32 v{o}, v{ph}\nv_sin_f32 v{o+1}, v{ph}")
    for (o,sc,cj),m,ph in zip(cx,M,PH):
        P.I(f"v_pk_mul_f32 {vr(o,2)}, {vr(o,2)}, {vr(m,2)} op_sel_hi:[1,0]" + (" neg_hi:[1,0]" if cj else ""))
    P=P0
    steps_lo=[('one',48),('put',49,R8)]+[('mul',48+b,LOc,(R8 if b==2 else LOc),R8) for b in range(2,16)]
    steps_hi=[('put',0,Pc[0])]+[('mul',c,Pc[c],Pc[c-1],R1) for c in range(1,8)]
    row=8
    for e in range(1,17):
        cs = range(8) if e<2 else range(0,8,2) if e<4 else (0,4) if e<8 else (0,)
        for c in cs:
            assert HI[row]==128*e+c
            steps_hi.append(('mul',row,Pc[c],Pc[c],R128)); row+=1
    fill=fill if fill is not None else []; pend=[]
    def sz(t):
        Q=[Ins(t)]; sizes(Q); return Q[0].size
    def flush():
        odd=False; n=len(pend)+1; slot=0
        for i,w in enumerate(pend):
            for _ in range(1 if i else 2):
                slot+=1
                if slot==n and ALN:
                    if fill and (sz(fill[0])==4)==odd: P.I(fill.pop(0))
                    elif odd: P.I("s_nop 0")
                elif fill: odd^=(sz(fill[0])==4); P.I(fill.pop(0))
            P.I(w)
        pend.clear()
    for k,s in enumerate(steps_lo+steps_hi):
        if not lo<=k<hi: continue
        kk=PK+(k&3)
        if s[0]=='one': P.I(f"v_mov_b32 v{kk}, 0x3f80")
        else:
            if s[0]=='mul': P.extend(cmul(s[2],s[3],s[4],TMP+2*(k&1)))
            P.I(f"v_cvt_pk_bf16_f32 v{kk}, v{s[2]}, v{s[2]+1}")
        pend.append(f"ds_write_addtid_b32 v{kk} offset:{L_F+s[1]*FP}")
        if len(pend)==grp: flush()
    flush()

vKH=156
LB=0; SD=0; M2H=0
def epoch_sync(P):
    P.I(f"s_waitcnt lgkmcnt(0)\ns_or_b32 s{sTAG}, s{sTAG}, 0x7f800000\ns_add_u32 s{sTAG}, s{sTAG}, 1\ns_or_b32 s{sTAG}, s{sTAG}, 0x7f800000\ns_barrier")
def kgen_init(P, part=0):
    ACC=vHF
    if part==1:
        P.I(f"s_mul_i32 s{sT2}, s{sW}, {16*FP}\nv_add_u32 v{vKH}, s{sT2}, v{vKF}")
        for r in range(8): P.I(f"v_mov_b32 v{ACC+r}, 0")
        return
    if part==2:
        P.I(f"s_lshl_b32 s{sT2}, s{sDS}, 16\ns_and_b32 s{sT3}, s{sDS}, 0xffff0000\nv_writelane_b32 v{ACC}, s{sT2}, 0\nv_writelane_b32 v{ACC+4}, s{sT3}, 0")
        return
    P.I(f"""s_lshl_b32 s{sT0}, s{sDS}, 16
s_and_b32 s{sT1}, s{sDS}, 0xffff0000
v_cmp_eq_u32 vcc, 0, v0
v_mov_b32 v2, s{sT0}
v_mov_b32 v3, s{sT1}
s_mul_i32 s{sT2}, s{sW}, {16*FP}
v_cndmask_b32 v{ACC}, 0, v2, vcc
v_cndmask_b32 v{ACC+4}, 0, v3, vcc
v_add_u32 v{vKH}, s{sT2}, v{vKF}""")
    for r in (1,2,3,5,6,7): P.I(f"v_mov_b32 v{ACC+r}, 0")
def kgen(P, diag, mid=[], skip=0, order=0):
    A=vROLE; ACC=vHF
    Q=Prog(); table_unpack(Q); tu=[x.text for x in Q.ins]
    P.I(f"s_cmp_eq_u32 s{sW}, 3\ns_cbranch_scc1 L_wdjob\ns_waitcnt lgkmcnt(0)\ns_barrier")
    def rd(n):
        ks,ch=n>>1,n&1; b=A+8*(n%9)
        return [f"ds_read_b128 {vr(b,4)}, v{vKF} offset:{ch*64*FP+48*FP+ks*64}", f"ds_read_b128 {vr(b+4,4)}, v{vKH} offset:{ch*64*FP+ks*64}"]
    for n in range(7): P.extend(rd(n))
    P.extend(tu[:5])
    m2=[[Ins(x.text,x.tag) for x in g] for g in mid]; mid=list(mid)
    for n in range(16):
        if mid and n>=skip: P.extend(mid.pop(0))
        b=A+8*(n%9); a=vr(ACC+4*(n&1),4)
        P.I(f"v_mfma_f32_16x16x32_bf16 {a}, {vr(b,4)}, {vr(b+4,4)}, {a}")
        if n+7<16: P.extend(rd(n+7))
    P.extend(tu[5:])
    for r in range(4): P.I(f"v_cvt_pk_bf16_f32 v{8+r}, v{ACC+r}, v{ACC+4+r}")
    P.I(f"ds_write_b128 v{vKC}, v[8:11]\ns_branch L_kgen_end\nL_wdjob:")
    Q=Prog(); mod_job(Q,'sc1',diag,2); cutq=[i for i,x in enumerate(Q.ins) if x.op=='@wait'][0]
    cutq = 0 if not M2H else cutq if M2H==1 else len(Q.ins)
    P.extend(Q.ins[:cutq])
    P.I("s_waitcnt lgkmcnt(0)\ns_barrier")
    if not M2H: P.extend(tu)
    if order==0:
        for g in m2: P.extend(g)
    P.extend(Q.ins[cutq:])
    if M2H: P.extend(tu)
    if order==1:
        for g in m2: P.extend(g)
    P.I(f"ds_write_b128 v{vRA+1}, {vr(ACC,4)}")
    P.I("L_kgen_end:")

def poll_groups(extra=None, XL='sc1', xfirst=0, SL='sc1'):
    Q=Prog(); poll_loads(Q,XL,xfirst,SL); G=[[]]
    if extra: extra(Q)
    for x in Q.ins:
        G[-1].append(x)
        if x.kind=='vmem': G.append([])
    return G[:-1]
def poll_loads(P, XL='sc1', xfirst=0, SL='sc1'):
    LD='sc1'
    P.I(f"s_mul_i32 s94, s{sP}, 12288\ns_add_u32 s94, s94, {WS_XG}")
    X=[(f"s_add_u32 s94, s94, 4096\n" if g else "")+f"buffer_load_dwordx4 {vr(vPOLL+4*g,4)}, v{vT16}, {sp(rWS,4)}, s94 offen {XL}" for g in range(3)]
    S=[f"s_mov_b32 s79, {WS_SG+g*4096}\nbuffer_load_dwordx4 {vr(vPOLL+12+4*g,4)}, v{vT16}, {sp(rWS,4)}, s79 offen {LD}" for g in range(3)]
    if SGP: S=[(f"s_mov_b32 s79, {WS_SG}\nv_lshlrev_b32 v157, {SGP}, v0\n" if g==0 else "")+f"buffer_load_dwordx4 {vr(vPOLL+12+4*g,4)}, v157, {sp(rWS,4)}, s79 offen offset:{16*g} {SL}" for g in range(3)]
    M=[f"s_lshl4_add_u32 s3, s{sP}, {WS_MG}\nbuffer_load_dwordx4 {vr(vPOLL+24,4)}, v{vMC}, {sp(rWS,4)}, s3 offen {LD}"]
    for t in (X+S+M if xfirst==1 else S+M+X if xfirst==2 else M+S+X if xfirst==3 else [y for p in zip(X,S) for y in p]+M): P.I(t, tag='pollx' if t in X else 'poll')
vQ=144
def poll2_loads(P):
    P.I(f"""s_lshl4_add_u32 s3, s{sP}, {WS_MG+0x20000}
buffer_load_dwordx4 {vr(vQ,4)}, v{vSEL1}, {sp(rWS,4)}, s3 offen sc1
s_lshl2_add_u32 s3, s{sKE}, s{sW}
s_lshl_b32 s3, s3, 7
s_add_u32 s3, s3, {WS_MG+0x20000+8*4096}
buffer_load_dwordx4 {vr(vQ+4,4)}, v{vMW}, {sp(rWS,4)}, s3 offen sc1
s_add_u32 s3, s3, {4*4096}""")
    P.I(f"buffer_load_dwordx4 {vr(vQ+8,4)}, v{vMW}, {sp(rWS,4)}, s3 offen sc1", tag='poll2')
def poll2_work(ST):
    mc,mw=vQ,vQ+4; dpp=" row_mask:0xf bank_mask:0xf"
    L=[["L_p2_chk:","@wait poll2",f"v_min3_u32 v2, v{vQ+3}, v{vQ+7}, v{vQ+11}",f"v_max3_u32 v3, v{vQ+3}, v{vQ+7}, v{vQ+11}",f"v_min_u32 v2, s{sTAG}, v2",f"v_max_u32 v3, s{sTAG}, v3",
        "v_cmp_ne_u32 vcc, v2, v3","s_cbranch_vccnz L_q_retry","L_q_ok:"]]
    L[0][0]="L_q_chk:"
    X=[f"v_add_f32 v{mw}, v{mw}, v{vQ+8}",f"v_add_f32 v{mw+1}, v{mw+1}, v{vQ+9}"]
    for m in ("quad_perm:[1,0,3,2]","quad_perm:[2,3,0,1]"):
        X+=[f"v_add_f32_dpp v{r}, v{r}, v{r} {m}{dpp}" for r in (mc,mc+1,mw,mw+1)]
    X+=[f"v_add_f32_dpp v{r}, v{r}, v{r} row_half_mirror{dpp}" for r in (mc,mc+1)]
    X+=[f"v_cvt_pk_bf16_f32 v{mw+1}, v{mw}, v{mw+1}", f"v_cvt_pk_bf16_f32 v{mc+1}, v{mc}, v{mc+1}",
        f"v_lshlrev_b32 v{mw}, 16, v{mw+1}", f"v_and_b32 v{mw+1}, 0xffff0000, v{mw+1}", f"v_lshlrev_b32 v{mc}, 16, v{mc+1}", f"v_and_b32 v{mc+1}, 0xffff0000, v{mc+1}",
        f"v_add_f32 v{mw}, v{mw}, v{vSEL2}", f"v_add_f32 v{mw+1}, v{mw+1}, v{vSEL2}", f"v_cvt_pk_bf16_f32 v{mw+1}, v{mw}, v{mw+1}",
        f"v_lshlrev_b32 v{mw}, 16, v{mw+1}", f"v_and_b32 v{mw+1}, 0xffff0000, v{mw+1}", f"ds_write_b64 v{vGW}, {vr(mw,2)}"]
    late=[f"v_mov_b32_dpp v{vMOD+4+2*k+e}, v{mc+e} row_newbcast:{8*k}{dpp}" for k in range(2) for e in range(2)]
    return L[0],X,late
PG0=0; ALN=1; BACKOFF=0; PREW=0; SGP=0
def writeback(cnt, lbl, on):
    if not on: return (["s_waitcnt vmcnt(0)"] if PREW else [])+([f"s_sleep {BACKOFF}"] if BACKOFF else [])
    return [f"s_and_b32 s4, s{cnt}, 3","s_cmp_lg_u32 s4, 0",f"s_cbranch_scc1 {lbl}","buffer_wbl2 sc1","s_waitcnt vmcnt(0)",f"{lbl}:"] if on else []
def retry2_block(P, loc=0, mask=0):
    P.I(f"L_q_retry:\ns_add_u32 s{sCNT}, s{sCNT}, 1\ns_cmp_gt_u32 s{sCNT}, 20000\n@loopok\ns_cbranch_scc1 L_q_ok")
    P.extend(writeback(sCNT,'L_q_nowb',loc))
    if mask: P.I("s_mov_b64 exec, vcc")
    poll2_loads(P)
    if mask: P.I("s_mov_b64 exec, -1")
    P.I("s_waitcnt vmcnt(0) lgkmcnt(0)\ns_branch L_q_chk")

vGA=140
def table_unpack(P):
    P.I(f"v_mov_b32 v{vUA}, v{vTAB+7}\nv_mov_b32 v{vKA}, v{vTAB+6}")
    for j in range(11):
        P.I(f"v_lshrrev_b32 v{vGA+j}, 16, v{vTAB+j//2}" if j&1 else f"v_and_b32 v{vGA+j}, 0xffff, v{vTAB+j//2}")
def k_image(P, G, npre, skip, w0at=0):
    E=vROLE+40; O=vROLE; GA=vGA
    G0=[[Ins(x.text,x.tag) for x in g] for g in G[:npre]] if w0at else []
    if w0at: P.I(f"@wait dr\ns_cmp_eq_u32 s{sW}, 0\ns_cbranch_scc1 L_w0a")
    for _ in range(npre): P.extend(G.pop(0))
    if w0at: P.I("L_w0a:")
    P.I(f"""s_mov_b32 s{sT4}, 0x05040100
s_mov_b32 s{sT5}, 0x07060302
v_add_u32 v2, {L_KI}, v{vT16}
s_waitcnt lgkmcnt(0)
s_barrier""")
    for j in range(11): P.I(f"ds_read_b32 v{E+j}, v{GA+j}")
    k=0
    for c in (3,2,1,0):
        for ch in range(2):
            o=O+4*k; k+=1
            for i in range(4):
                j=3-c+2*i
                P.I(f"v_perm_b32 v{o+i}, v{E+j+1}, v{E+j}, s{sT4+ch}")
            P.I(f"ds_write_b128 v2, {vr(o,4)} offset:{(ch*4+c)*KIP}")
            if k==w0at:
                P.I(f"s_cmp_lg_u32 s{sW}, 0\ns_cbranch_scc1 L_w0b\n@forget "+" ".join(str(r) for r in range(vPOLL,vPOLL+28)))
                for g in G0: P.extend(g)
                P.I("L_w0b:")
            if G and k>skip: P.extend(G.pop(0))
    for g in G: P.extend(g)

def retry_block(P, loc=0, mask=0):
    P.I(f"L_ka_retry:\ns_add_u32 s{sCNT}, s{sCNT}, 1\ns_cmp_gt_u32 s{sCNT}, 20000\n@loopok\ns_cbranch_scc1 L_ka_ok")
    P.extend(writeback(sCNT,'L_ka_nowb',loc))
    if mask:
        G=poll_groups(None,'sc1',3)
        P.extend(G[0]); P.I("s_mov_b64 exec, vcc")
        for g in G[1:]: P.extend(g)
        P.I("s_mov_b64 exec, -1")
    else: poll_loads(P)
    P.I("s_waitcnt vmcnt(0) lgkmcnt(0)\ns_branch L_ka_chk")

def make_h(P, diag, q2=False):
    Q=vPOLL; mc=Q+24; Mm=vROLE; Mr=vROLE+8; O=vROLE+16; A=vROLE+24; B=vROLE+40
    dpp=" row_mask:0xf bank_mask:0xf"
    P.I(f"s_mov_b32 s{sCNT}, 0\nv_add_u32 v4, {L_H+480}, v{vT16}\nL_ka_chk:\n@wait poll")
    chain=[]
    for m in ("quad_perm:[1,0,3,2]","quad_perm:[2,3,0,1]","row_half_mirror","row_mirror"):
        chain.append([f"v_add_f32_dpp v{r}, v{r}, v{r} {m}{dpp}" for r in (mc,mc+1)])
    chain+=[[f"v_cvt_pk_bf16_f32 v{mc}, v{mc}, v{mc+1}", f"v_mov_b32 v{mc+1}, v{mc}"],
            [f"v_permlane16_swap_b32 v{mc}, v{mc+1}", f"v_lshlrev_b32 v{vMOD}, 16, v{mc}", f"v_and_b32 v{vMOD+1}, 0xffff0000, v{mc}", f"v_lshlrev_b32 v{mc}, 16, v{mc+1}", f"v_and_b32 v{mc+1}, 0xffff0000, v{mc+1}"],
            [f"v_add_f32 v{mc}, 1.0, v{mc}", f"v_add_f32 v{mc+1}, 1.0, v{mc+1}", f"v_cvt_pk_bf16_f32 v{mc}, v{mc}, v{mc+1}"],
            [f"v_lshlrev_b32 v{vMOD+2}, 16, v{mc}", f"v_and_b32 v{vMOD+3}, 0xffff0000, v{mc}"]]
    for r in range(8):
        st=Q+12+4*(r//3)+r%3
        P.extend(chain[r])
        P.I(f"v_and_b32 v{Mr+r}, 0xffff0000, v{st}\nv_lshlrev_b32 v{Mm+r}, 16, v{st}\nv_rcp_f32 v{Mr+r}, v{Mr+r}")
    P.I(f"""v_min3_u32 v2, s{sTAG}, v{Q+27}, v{Q+15}
v_max3_u32 v3, s{sTAG}, v{Q+27}, v{Q+15}
v_min3_u32 v2, v2, v{Q+19}, v{Q+23}
v_max3_u32 v3, v3, v{Q+19}, v{Q+23}""")
    for ch in range(2):
        for r in range(0,8,2): P.I(f"v_pk_mul_f32 {vr(A+8*ch+r,2)}, {vr(Mr+r,2)}, {vr(vMOD+2,2)} op_sel:[0,{ch}] op_sel_hi:[1,{ch}]")
    for ch in range(2):
        for r in range(0,8,2): P.I(f"v_pk_fma_f32 {vr(B+8*ch+r,2)}, {vr(Mm+r,2)}, {vr(A+8*ch+r,2)}, {vr(vMOD,2)} op_sel:[0,0,{ch}] op_sel_hi:[1,1,{ch}] neg_lo:[1,0,0] neg_hi:[1,0,0]")
    P.I(f"""@wait pollx
v_min3_u32 v2, v2, v{Q+3}, v{Q+7}
v_max3_u32 v3, v3, v{Q+3}, v{Q+7}
v_min_u32 v2, v2, v{Q+11}
v_max_u32 v3, v3, v{Q+11}
v_cmp_ne_u32 vcc, v2, v3""")
    xr=lambda r: Q+4*(r//3)+r%3
    P.I(f"v_lshlrev_b32 v{vXF}, 16, v{xr(0)}\ns_cbranch_vccnz L_ka_retry\nL_ka_ok:")
    if diag: P.I(f"s_add_u32 s{sCNT}, s{sCNT}, 1\nv_writelane_b32 v255, s{sCNT}, 31")
    stamp(P,11,diag)
    if q2: poll2_loads(P)
    for ch in range(2):
        for r in range(8):
            if ch or r: P.I(f"v_and_b32 v{vXF+8+r}, 0xffff0000, v{xr(r)}" if ch else f"v_lshlrev_b32 v{vXF+r}, 16, v{xr(r)}")
        for r in range(0,8,2): P.I(f"v_pk_fma_f32 {vr(A+8*ch+r,2)}, {vr(vXF+8*ch+r,2)}, {vr(A+8*ch+r,2)}, {vr(B+8*ch+r,2)}")
        for r in range(0,8,2): P.I(f"v_cvt_pk_bf16_f32 v{O+4*ch+r//2}, v{A+8*ch+r}, v{A+8*ch+r+1}")
        P.I(f"ds_write_b128 v4, {vr(O+4*ch,4)} offset:{ch*HP}")

def gb_store(P, ST):
    P.I(f"""s_cmp_lg_u32 s{sW}, 2
s_cbranch_scc1 L_nogb
s_lshl3_add_u32 s{sT2}, s{sP}, {WS_GBF}
s_mov_b64 exec, 1
buffer_store_dwordx2 {vr(vMOD+6,2)}, v{vL16}, {sp(rWS,4)}, s{sT2} offen {ST}
s_mov_b64 exec, -1
L_nogb:""")
def w_side(ST):
    RAW=vPOLL; WP=vPOLL+16; GB=[48,64,80,96]; U=112; S1,S2=vHF,vHF+2
    rd=[]; main=[]; sums=[]
    for k in range(4):
        g=GB[k]
        rd.append([f"ds_read_b64_tr_b16 {vr(RAW+4*k+2*hf,2)}, v{vWRA} offset:{k*4096+hf*512}" for hf in range(2)]
                 +[f"ds_read_b128 {vr(g+4*q,4)}, v{vGR} offset:{k*64+q*16}" for q in range(2)])
        L=[]
        for d in range(4):
            u=U+8*k+2*d
            L+=[f"v_lshlrev_b32 v{u}, 16, v{RAW+4*k+d}", f"v_and_b32 v{u+1}, 0xffff0000, v{RAW+4*k+d}",
                f"v_mul_f32 v{g+2*d}, v{u}, v{g+2*d}", f"v_mul_f32 v{g+2*d+1}, v{u+1}, v{g+2*d+1}", f"v_cvt_pk_bf16_f32 v{WP+4*k+d}, v{g+2*d}, v{g+2*d+1}"]
        L.append((f"buffer_store_dwordx4 {vr(WP+4*k,4)}, v{vL16}, {sp(rWJ,4)}, s{sWO} offen {ST}",'wpst'))
        if k<3: L.append(f"s_add_u32 s{sWO}, s{sWO}, s{sWST}")
        main.append(L)
        for i in range(8):
            e=i&1; first=(k==0 and i<2)
            sums.append(f"v_mul_f32 v{S2+e}, v{U+8*k+i}, v{g+8+i}" if first else f"v_fmac_f32 v{S2+e}, v{U+8*k+i}, v{g+8+i}")
            if k==0 and i<2: continue
            sums.append(f"v_add_f32 v{S1+e}, v{g+e}, v{g+i}" if (k==0 and i<4) else f"v_add_f32 v{S1+e}, v{S1+e}, v{g+i}")
    rdsb=[f"ds_read_b128 {vr(GB[k]+8+4*q,4)}, v{vGR} offset:{256+k*64+q*16}" for k in range(4) for q in range(2)]
    tail=[f"v_add_f32 v{S1}, v{S1}, v{S1+1}", f"v_add_f32 v{S2}, v{S2}, v{S2+1}", f"v_mov_b32 v{S1+1}, v{S1}", f"v_mov_b32 v{S2+1}, v{S2}",
          f"v_lshlrev_b32 v2, 2, v{vLANE}", "s_nop 0",
          f"v_permlane32_swap_b32 v{S1}, v{S1+1}", f"v_permlane32_swap_b32 v{S2}, v{S2+1}",
          f"v_add_f32 v{S1}, v{S1}, v{S1+1}", f"v_add_f32 v{S2}, v{S2}, v{S2+1}", f"v_cvt_pk_bf16_f32 v{S1}, v{S1}, v{S2}",
          "s_mov_b32 exec_hi, 0", (f"buffer_store_dword v{S1}, v2, {sp(rWJ,4)}, s{sWA} offen {ST}",'auxst'), "s_mov_b64 exec, -1"]
    return rd,main,rdsb,sums,tail

YDONE=[0]
def conv_reads(vi):
    b=vi&1; o=192-64*vi
    U=[(f"ds_read_b128 {ar(64+32*b+4*k,4)}, v{vUA} offset:{512*k+o}",f"c{vi}_{k}") for k in range(8)]
    K=[[(f"ds_read_b64 {ar(32*b+4*k+2*hf,2)}, v{vKA} offset:{512*(7-k)+o+8*hf}",f"c{vi}_{k}") for hf in range(2)] for k in range(8)]
    return U,K
def conv(P, ST, cfg, midbar, wdj, wd0, H={}):
    ACC=16
    order=sorted([(u,s) for u in range(8) for s in range(8) if u+s<8], key=lambda t:(t[1],t[0]))
    rd,main,rdsb,sums,tail=w_side(ST)
    chk,work,bc=poll2_work(ST)
    Q=Prog(); gb_store(Q,ST); gbs=[[x.text for x in Q.ins]]
    P.extend(conv_reads(0)[0])
    YIN=cfg.get('YIN',0); YDONE[0]=0; assert not YIN or cfg.get('ORD',1)
    v2s=list(H.get('v2side',[])); v3m=list(H.get('v3mem',[])); go=False
    first=set(); side=[]; QAT=cfg.get('QAT',20); LV=cfg.get('LV',1); FV=cfg.get('FV',LV); SL=cfg.get('SUMLATE',0)
    for vi in range(4):
        b=vi&1; nxt=[]
        if vi==LV: nxt+=[(x,'wtr') for r in rd[:2] for x in r]+wdj[:4]
        if vi<3:
            U,K=conv_reads(vi+1); nxt+=[y for k in range(8) for y in [U[k]]+K[k]]
        if vi==0 and LV: side+=work
        if vi==1 and LV>1: side+=bc+gbs
        if vi==LV: side+=['@wait wtr']+rd[2]+rd[3]+main[0]+wdj[4:]+main[1]+([] if SL else rdsb)+main[2]+main[3]+(bc+gbs if LV<=1 else [])+([] if SL else sums)
        waits = {0:0,8:1,15:7} if vi==0 else {0:7}
        start = 8 if vi==LV else QAT+1 if vi==0 else 0
        for n,(u,s) in enumerate(order if (vi==0 or not cfg.get('ORD',1)) else sorted(order,key=lambda t:(t[0]+t[1],t[0]))):
            t=u+s; a=vr(ACC+4*t,4)
            if n in waits: P.I(f"@wait c{vi}_{waits[n]}")
            P.I(f"v_mfma_f32_16x16x32_bf16 {a}, {ar(32*b+4*u,4)}, {ar(64+32*b+4*s,4)}, {a if t in first else 0}"); first.add(t)
            slots=2-((n+1) in waits or n==35)
            if vi==3 and YIN:
                rdy=[t_ for t_ in range(YDONE[0],7) if (t_+1)*(t_+2)//2+3<=n]
                if rdy and n>=YIN and (n-YIN)%cfg.get('YST',3)==0:
                    P.I(f"ds_write_b128 v{vYW}, {vr(ACC+4*rdy[0],4)} offset:{1280*rdy[0]}"); YDONE[0]+=1; continue
            if vi==0 and FV==0 and n==0: P.extend(midbar); continue
            if vi in (LV,FV) and n==0 and vi:
                P.I("@wait"+(" wr dr" if vi==LV else "")+(" wdst" if vi==FV else "")+"\ns_waitcnt lgkmcnt(0)\ns_barrier")
                if vi==FV: P.extend(midbar)
                continue
            if vi==0 and n==QAT and LV: P.extend(chk+H.get('chkq',[])); continue
            if 'chkq' in H and (vi,n)==tuple(cfg.get('WDV0',[1,9])): go=True
            if (vi,n) in H.get('hook',{}):
                if vi==3: assert not v2s; go=True
                P.extend(H['hook'][(vi,n)]); slots-=len(H['hook'][(vi,n)])
            elif go and v3m and n%cfg.get('WDVS',2)==0 and not (n==0):
                x=v3m.pop(0); P.extend(x); slots-=len(x)
            if nxt:
                P.extend([nxt.pop(0)]); slots-=1
                if n<start and slots and nxt: P.extend([nxt.pop(0)]); slots-=1
            while slots>0 and wd0 and vi==0 and not nxt and n<QAT: P.extend([wd0.pop(0)]); slots-=1
            while slots>0 and v2s and vi==0 and not nxt and (n<QAT and len(v2s)>2 or n>QAT and not side): P.extend([v2s.pop(0)]); slots-=1
            while slots>0 and side and n>=start:
                x=side.pop(0)
                if isinstance(x,list): P.extend(x); slots=0
                else: P.extend([x]); slots-=1
        assert not nxt, len(nxt)
        if vi==0 and LV: P.extend(side+wd0+v2s); print('  conv step 0 spill',len(side),len(wd0),len(v2s)); side=[]; wd0=[]; v2s=[]
        print('  conv step',vi,'side backlog',len(side))
    for x in v3m: side+=x
    assert not any(isinstance(x,list) for x in side)
    if SL: return ACC,side,rdsb+sums+tail
    return ACC,side+tail,[]

def conv_epilogue(P, ACC, tail, XST, pre=[], prebar=[], postbar=[], tmax=99, after=[]):
    tail=list(tail); P.extend(pre)
    if YDONE[0]:
        k=min(8,max(0,len(tail)-4)); P.extend(tail[:k]); tail=tail[k:]
    for t in range(YDONE[0],8):
        P.I(f"ds_write_b128 v{vYW}, {vr(ACC+4*t,4)} offset:{1280*t}")
        k=min(max(5,-(-len(tail)//(8-t))),len(tail),tmax)
        if len(tail)-k<4: k=len(tail)
        P.extend(tail[:k]); tail=tail[k:]
    P.extend(prebar)
    P.I(f"s_mul_i32 s{sT0}, s{sP}, {12288 if XIN else 128}\ns_add_u32 s{sT0}, s{sT0}, {WS_XG if XIN else WS_X1B}\ns_waitcnt lgkmcnt(0)\ns_barrier")
    Y=16
    for ch in range(2):
        for g in range(2):
            for vh in range(2):
                P.I(f"ds_read_b128 {vr(Y+16*ch+8*vh+4*g,4)}, v{vYR} offset:{L_Y+(2*ch+vh)*10240+320*g}")
    P.extend(postbar)
    for ch in range(2):
        y=Y+16*ch
        for r in range(0,8,2): P.I(f"v_pk_add_f32 {vr(y+r,2)}, {vr(y+r,2)}, {vr(y+8+r,2)}")
        for r in range(0,8,2): P.I(f"v_pk_fma_f32 {vr(y+r,2)}, {vr(y+r,2)}, {vr(vMOD+4,2)}, {vr(vXF+8*ch+r,2)} op_sel:[0,{ch},0] op_sel_hi:[1,{ch},1]")
        for r in range(0,8,2): P.I(f"v_cvt_pk_bf16_f32 v{4+4*ch+r//2}, v{y+r}, v{y+r+1}")
        P.I(f"buffer_store_dwordx4 {vr(4+4*ch,4)}, v{vXO}, {sp(rWS,4)}, s{sT0} offen offset:{64*ch} {XST}", tag='x1st')
    print('  after the x1 stores:', len(tail), '+', len(after))
    P.extend(tail); P.extend(after)

def body(P, n, diag, cfg, H):
    NT=cfg.get('NT','nt'); ST='sc1'
    entry(P,n,diag,256,cfg.get('PERM',[2,3,0,5,1,7,4,6] if cfg.get('QSYNC',0) else None)); role_addr(P,cfg.get('LOC',0))
    P.I("s_waitcnt lgkmcnt(0)"); stamp0_commit(P,diag)
    if cfg.get('WSB',0): P.I(f"s_add_u32 s{sWS}, s{sWS}, {cfg['WSB']<<20}\ns_addc_u32 s{sWS+1}, s{sWS+1}, 0")
    po=cfg.get('PORD',0); m2=cfg.get('M2AT',0); global JW
    assert not (po and cfg.get('CUT',0)) and not (m2>0 and cfg.get('CUT',0))
    JW=(8 if po else 0)
    stamp(P,26,diag and ONLY and 26 in ONLY)
    early_loads(P,NT,not po)
    role_loads(P,cfg.get('XNT',NT),0,cfg.get('SD',0))
    if po: param_loads(P,NT)
    df=cfg.get('DEFER',0); global PRE_S; PRE_S=df; grp=cfg.get('GRP',1)
    table_loads(P)
    if m2==-1: role_loads(P,NT,1)
    fill=setup(P,False,cfg.get('X',''),cfg.get('WMAP',0) or cfg.get('QSYNC',0),df); P.extend(H['setup'])
    if df:
        assert cfg.get('WAT',1)>=1 and cfg.get('DAT',0)<2 and cfg.get('WJAT',0)<=0
        fill+=w_scalars()+wd_scalars(22)+H['defer']
    if m2==0: role_loads(P,NT,1)
    global LB, SD, M2H; M2H=cfg.get('M2H',0); LB=cfg.get('LB',0); SD=cfg.get('SD',0); assert not (LB and cfg.get('CUT',0))
    if not LB: epoch_sync(P)
    stamp(P,1,diag)
    kgen_init(P, 1 if LB else 0)
    H['idle'](P)
    P.I("@forget "+" ".join(str(r) for r in list(range(vPAR,vPAR+6))+[vROLE]+list(range(vTAB,vTAB+8))))
    cut=cfg.get('CUT',0)
    if cut:
        P.I(f"s_waitcnt vmcnt(10)\ns_cmp_lg_u32 s{sW}, 2\ns_cbranch_scc1 L_f1\ns_waitcnt vmcnt(6)\nL_f1:")
        P.I("@forget "+" ".join(str(r) for r in list(range(vPAR,vPAR+6))+[vROLE]+list(range(vTAB,vTAB+8))))
        factor_gen(P,0,cut,grp)
        stamp(P,10,diag)
        P.I(f"s_cmp_eq_u32 s{sW}, 3\ns_cbranch_scc1 L_xje")
    x_jobs(P,'sc1',diag,cfg.get('LOC',0))
    P.I("@forget "+" ".join(str(r) for r in list(range(vPAR,vPAR+6))+[vROLE]+list(range(vTAB,vTAB+8))))
    if LB: P.extend(H['tagreg'])
    stamp(P,3,diag)
    da,wa=cfg.get('DAT',0),cfg.get('WAT',1)
    def raws(k):
        if da==k: raw_wd_loads(P,cfg.get('DNT',NT))
        if wa==k: raw_w_loads(P,NT)
    if m2==1: role_loads(P,NT,1)
    raws(0)
    if wa>=10:
        factor_gen(P,cut,wa-10,grp,fill)
        while any('s95' in x or 's96' in x for x in fill): P.I(fill.pop(0))
        raw_w_loads(P,NT); cut=wa-10
    factor_gen(P,cut,99,grp,fill); print('  scalar set-up left after the chain:',len(fill)); P.extend(fill)
    stamp(P,4,diag)
    if m2==2: role_loads(P,NT,1)
    if cfg.get('WJAT',0)==-1: wd_job(P,ST)
    raws(1)
    if cfg.get('WJAT',0)==-2: wd_job(P,ST)
    G=poll_groups((lambda Q: raw_w_loads(Q,NT)) if wa==3 else None, cfg.get('XLP','') if cfg.get('LOC',0)==1 else 'sc1', cfg.get('XFIRST',0), '')
    for _ in range(cfg.get('PEARLY',0)): P.extend(G.pop(0))
    npm=cfg.get('PMID',0); mid=G[:npm]; G=G[npm:]
    if wa==5:
        Q=Prog(); raw_w_loads(Q,NT); W4=[[]]
        for x in Q.ins:
            W4[-1].append(x)
            if x.kind=='vmem': W4.append([])
        mid=W4[:-1]+mid
    kgen(P,diag,mid,cfg.get('PMSKIP',0),cfg.get('PMORD',0)); stamp(P,5,diag)
    k_image(P,G,min(len(G),cfg.get('PPRE',5)),cfg.get('PSKIP',0),cfg.get('W0AT',0))
    raws(2)
    wdj=[]
    wj=cfg.get('WJAT',0); wd0=[]
    if cfg.get('Q2AT',1)==2: poll2_loads(P)
    if wj<0: pass
    elif da<2 and wj:
        Q=Prog(); wd_job(Q,ST); wd0=[(x.text,x.tag) for x in Q.ins]
    elif da<2: wd_job(P,ST)
    else:
        Q=Prog(); wd_job(Q,ST); wdj=[(x.text,x.tag) for x in Q.ins[1:]]
    stamp(P,6,diag)
    if cfg.get('FV',1)==-1: P.I(f"s_waitcnt vmcnt({11 if cfg.get('WJAT')==-1 else 7})")
    P.I("s_waitcnt lgkmcnt(0)\ns_barrier")
    for k in conv_reads(0)[1]: P.extend(k)
    if cfg.get('FV',1)==-1:
        assert cfg.get('XFIRST')==1
        P.extend(H['midbar'][:-1]+["s_waitcnt vmcnt(1)","s_branch L_fd2",H['midbar'][-1],"s_waitcnt vmcnt(0)","L_fd2:"])
    q2=cfg.get('Q2AT',1)
    if q2==0: poll2_loads(P)
    make_h(P,diag,q2==3)
    if q2==1: poll2_loads(P)
    P.extend(H.get('withq',[]))
    raws(4)
    if cfg.get('LV',1)==0:
        chk,work,_=poll2_work(ST); P.extend(chk+work+["@wait wr"])
    if cfg.get('FV',1)==0: P.I("@wait wdst")
    P.I("s_waitcnt lgkmcnt(0)\ns_barrier")
    stamp(P,7,diag)
    acc,tail,after=conv(P,ST,cfg,H['midbar'] if da<2 else [],wdj,wd0,H); stamp(P,8,diag)
    conv_epilogue(P,acc,tail,ST,H.get('pre',[]),H.get('prebar',[]),H.get('postbar',[]),cfg.get('TMAX',99),after)
```

```python
from prog import *
from layout import *
from ka import sp, vr, ar, mksrd, f32, stamp, stamp_out, rWS, rOUT, sXCD, sIDX, sW
import ka, re
sXB,sWB,sAB,sXM,sFL,sPL,sA0,sA1,sD0,sD1,sNT,sMT,sFB,sCNT = range(8,22)
sQ=22
sT0,sT1,sT2,sT3,sT4 = 80,81,82,83,84
vLANE,vL16,vWL = 1,2,14
NS=16; L_XS=0; L_RING=4*NS*1024; RING=96
LDS_C=L_RING+RING*1024
def entry(P,name,diag):
    P.I(f".globl {name}\n.p2align 8\n.type {name},@function\n{name}:\n@reset")
    P.I(f"""s_cmp_ge_u32 s2, 256
s_cbranch_scc1 L_{name}_exit
s_load_dwordx2 s[42:43], s[0:1], 136
s_load_dwordx2 s[38:39], s[0:1], 120
s_and_b32 s{sXCD}, s2, 7
s_lshr_b32 s{sIDX}, s2, 3
v_lshrrev_b32 v3, 6, v0
v_and_b32 v{vLANE}, 63, v0
v_readfirstlane_b32 s{sW}, v3""")
    ka.stamp0_issue(P,diag)
def srds(P,diag):
    P.I("s_waitcnt lgkmcnt(0)"); ka.stamp0_commit(P,diag)
    P.extend(mksrd(rWS,42,WS_USED)); P.extend(mksrd(rOUT,38,2097152))

def xsrc(v, snt):
    return [f"v_lshrrev_b32 v12, 3, v{vLANE}", f"v_xor_b32 v{v}, s{snt}, v12", f"v_mul_u32_u24 v12, 96, v12", f"v_add_u32 v12, v12, v{v}",
            f"v_and_b32 v{v}, 7, v{vLANE}", f"v_lshl_add_u32 v{v}, v12, 3, v{v}", f"v_lshlrev_b32 v{v}, 4, v{v}"]
def c_maps():
    xb=f"s_lshl_b32 s{sXB}, s{sT0}, 15\ns_add_u32 s{sXB}, s{sXB}, {WS_X1B}"
    if ka.XIN: xb="\n".join(xsrc(13,sT0))
    return f"""s_lshr_b32 s{sT0}, s{sXCD}, 2
s_lshl_b32 s{sT0}, s{sT0}, 5
s_and_b32 s{sT1}, s{sIDX}, 28
s_add_u32 s{sT0}, s{sT0}, s{sT1}
s_add_u32 s{sT0}, s{sT0}, s{sW}
s_and_b32 s{sT1}, s{sXCD}, 3
s_and_b32 s{sT3}, s{sIDX}, 3
s_lshl2_add_u32 s{sT2}, s{sT1}, s{sT3}
{xb}
s_mul_i32 s{sWB}, s{sT2}, {231*1024}
s_add_u32 s{sWB}, s{sWB}, {WS_WPF}
s_mul_i32 s{sXM}, s{sW}, {NS*1024}
s_mul_i32 s{sAB}, s{sT0}, 112
s_mul_i32 s{sT2}, s{sT2}, 7
s_add_u32 s{sAB}, s{sAB}, s{sT2}
s_lshl_b32 s{sAB}, s{sAB}, 10
s_add_u32 s{sAB}, s{sAB}, {WS_ACT}
s_lshr_b32 s{sFL}, s{sT0}, 1
s_lshl2_add_u32 s{sFL}, s{sFL}, s{sT1}
s_lshl_b32 s{sFL}, s{sFL}, 10
s_and_b32 s{sT0}, s{sT0}, 1
s_lshl2_add_u32 s{sT0}, s{sT0}, s{sT3}
s_lshl2_add_u32 s{sFL}, s{sT0}, s{sFL}
s_add_u32 s{sFL}, s{sFL}, {WS_FLAG}""".split('\n')
def d_maps(DM=0, M16=0, ROWO=0):
    head=f"""s_lshr_b32 s{sT1}, s{sIDX}, 3
s_lshl2_add_u32 s{sT2}, s{sXCD}, s{sT1}
s_and_b32 s{sT1}, s{sIDX}, 7""" if not DM else f"""s_lshr_b32 s{sT1}, s{sIDX}, 2
s_lshr_b32 s{sT2}, s{sXCD}, 1
s_lshl3_add_u32 s{sT2}, s{sT2}, s{sT1}
s_and_b32 s{sT1}, s{sIDX}, 3
s_and_b32 s{sT3}, s{sXCD}, 1
s_lshl2_add_u32 s{sT1}, s{sT3}, s{sT1}"""
    return f"""{head}
s_mul_i32 s{sT3}, s{sW}, {28*1024}
s_mul_i32 s{sA0}, s{sT2}, {224*1024}
s_add_u32 s{sA0}, s{sA0}, s{sT3}
s_add_u32 s{sA0}, s{sA0}, {WS_ACT}
s_mul_i32 s{sD0}, s{sT1}, {224*1024}
s_add_u32 s{sD0}, s{sD0}, s{sT3}
s_add_u32 s{sD0}, s{sD0}, {WS_WDF}
s_add_u32 s{sD1}, s{sD0}, {112*1024}
s_bitcmp1_b32 s{sW}, 0
s_cselect_b32 s{sPL}, {0 if ROWO else 112*1024}, 0
s_add_u32 s{sD0}, s{sD0}, s{sPL}
s_sub_u32 s{sD1}, s{sD1}, s{sPL}
s_lshl2_add_u32 s{sPL}, s{sT2}, s{sW}
s_lshl_b32 s{sPL}, s{sPL}, 10
s_add_u32 s{sPL}, s{sPL}, {WS_FLAG}
s_mov_b32 s52, s{ka.sTAG}
s_mov_b32 s53, s{ka.sTAG}
s_lshl_b32 s{sNT}, s{sT2}, 1
s_and_b32 s{sT3}, s{sW}, 1
s_lshl_b32 s{sT3}, s{sT3}, 1
s_lshl2_add_u32 s{sMT}, s{sT1}, s{sT3}
s_lshr_b32 s{sT3}, s{sW}, 1
s_add_u32 s{sMT}, s{sMT}, s{sT3}
{f"s_mov_b32 s{sT3}, 0" if ROWO else f"s_lshl_b32 s{sT3}, s{sT3}, 8"}
v_lshlrev_b32 v{vL16}, 4, v{vLANE}
v_xor_b32 v{vWL}, s{sT3}, v{vL16}""".split('\n')[:-1 if M16 else None]+(f"""v_lshrrev_b32 v{vWL}, 5, v{vLANE}
v_mul_u32_u24 v{vWL}, 7168, v{vWL}
v_and_b32 v{vWL+1}, 16, v{vLANE}
v_lshl_add_u32 v{vWL}, v{vWL+1}, 5, v{vWL}
v_and_b32 v{vWL+1}, 15, v{vLANE}
v_lshl_add_u32 v{vWL}, v{vWL+1}, 4, v{vWL}
v_or_b32 v{vWL}, s{sT3}, v{vWL}
v_xor_b32 v{vWL+1}, 0x100, v{vWL}""".split('\n') if M16 else [])

class Stream:
    def __init__(s, base, tmp): s.base=base; s.tmp=tmp; s.cur=None
    def at(s, off):
        L=[]
        if s.cur is None or not (0<=off-s.cur<4096):
            s.cur=off; L.append(f"s_add_u32 s{s.tmp}, s{s.base}, {off}")
        return L, f"s{s.tmp} offen offset:{off-s.cur}"
ASTG0=[3,5,7]
def d_parts(cfg):
    e=[0]+cfg.get('ASTG',ASTG0)
    return [[7*jj+mt for jj in ((0,2) if cfg.get('M16',0) else range(4)) for mt in range(a,b)] for a,b in zip(e,e[1:])]
def kap(f): return 16*(f if f<7 else f-7)
def wd_order(cfg):
    if cfg.get('WDLIN',0)==2: return list(range(16,28))+list(range(16))
    return sorted(sum(d_parts(cfg),[])) if cfg.get('WDLIN',0) else sum(d_parts(cfg),[])
def flag_store(s):
    return ["s_mov_b64 exec, 1",f"buffer_store_dword v{vONE1}, v{vL16}, {sp(rWS,4)}, s{sFL} offen offset:{128*s} sc1","s_mov_b64 exec, -1"]
def flag_poll(s): return f"buffer_load_dword v{vPV}, v{vPA}, {sp(rWS,4)}, s{sPL} offen offset:{128*s} sc1"
def sflag_poll(s): return f"s_buffer_load_dwordx8 s[44:51], {sp(rWS,4)}, s{sPL} offset:{128*s} glc"
def spoll_check(P, name):
    P.I(f"L_{name}_chk:\ns_waitcnt lgkmcnt(0)")
    for i in range(4): P.I(f"s_xor_b64 s[{44+2*i}:{45+2*i}], s[{44+2*i}:{45+2*i}], s[52:53]")
    P.I(f"s_or_b64 s[44:45], s[44:45], s[46:47]\ns_or_b64 s[48:49], s[48:49], s[50:51]\ns_or_b64 s[44:45], s[44:45], s[48:49]\ns_cbranch_scc1 L_{name}_retry\nL_{name}_ok:")
def spoll_retry(P, name, s):
    P.I(f"L_{name}_retry:\ns_add_u32 s{sCNT}, s{sCNT}, 1\ns_cmp_gt_u32 s{sCNT}, 40000\n@loopok\ns_cbranch_scc1 L_{name}_ok\n{sflag_poll(s)}\n@loopok\ns_branch L_{name}_chk")
def wd_load_list(cfg,LD=''):
    S=[Stream(sD0,34),Stream(sD1,35)]; L=[]
    if cfg.get('M16',0):
        for f in wd_order(cfg):
            for j in range(4):
                pre,o=S[j&1].at(f*1024)
                L.append(pre+[f"buffer_load_dwordx4 {ar(kap(f)+4*j,4)}, v{vWL+(j>>1)}, {sp(rWS,4)}, {o} {LD}"])
        return L
    for f in wd_order(cfg):
        for m in range(2):
            pre,o=S[m].at(f*1024)
            L.append(pre+[f"buffer_load_dwordx4 {ar(8*f+4*m,4)}, v{vWL}, {sp(rWS,4)}, {o} {LD}"])
    return L
AX,AG=240,224
vXA,vPA,vPV,vONE1=253,254,252,251
vQV,vQA,sQP=15,248,99
def qpoll(q): return [f"s_mov_b32 s{sQP}, {WS_FX+(q<<(6+FS))}", f"buffer_load_dword v{vQV}, v{vQA}, {sp(rWS,4)}, s{sQP} offen sc1"]
def cost(x):
    s=x[0] if isinstance(x,tuple) else x
    o=s.split()[0]
    return 2 if (o in TRANS or o=='s_barrier') else 1

class RawWd:
    def __init__(s, order, srd, vsrc, sbase, stmp, pol=''):
        s.todo=list(order); s.flying=[]; s.done=set(); s.srd=srd; s.vsrc=vsrc; s.sbase=sbase; s.stmp=stmp; s.half=0; s.chalf=0; s.pol=pol; s.n=0
    def area(s, slots):
        assert not s.half
        s.slots=list(slots); s.n=0
    def issue_half(s, now):
        f=s.todo[0]; sl=s.slots[s.n%len(s.slots)]; u=s.half
        assert all(x[1]!=sl for x in s.flying)
        L=[f"s_add_u32 m0, s{sl[0]}, {sl[1]+u*1024}", f"s_add_u32 s{s.stmp}, s{s.sbase}, {f*16384+u*8192}",
           (f"buffer_load_dwordx4 v{s.vsrc}, {sp(s.srd,4)}, s{s.stmp} offen {s.pol} lds", f"rw{f}")]
        s.half^=1
        if not s.half: s.todo.pop(0); s.flying.append((f,sl,now)); s.n+=1
        return L
    def convert_half(s):
        f,sl,_=s.flying[0]; m=s.chalf
        L=([f"@wait rw{f}"] if m==0 else [])+[f"ds_read_b64_tr_b16 {ar(8*f+4*m+2*hf,2)}, v{sl[2][m]} offset:{sl[3]+hf*512}" for hf in range(2)]
        s.chalf^=1
        if not s.chalf: s.flying.pop(0); s.done.add(f)
        return L

class PhaseC:
    def __init__(s, cfg):
        s.cfg=cfg
        seq=[(t,ks) for ks in range(32) for t in range(G1)]
        AUXAT=cfg.get('AUXAT',16-G1)
        t3=[(G1,ks) for ks in range(33)]
        seq+= t3[:AUXAT]+[(t,32) for t in range(G1)]+t3[AUXAT:]
        for t in range(G1+1,7): seq+=[(t,ks) for ks in range(33)]
        s.seq=seq; s.N=N=len(seq); assert N==231
        s.P1=32*G1
        b=cfg.get('STG') or ([0,8,16]+list(range(32,232,16))+[232])
        s.bounds=b; s.nst=len(b)-1
        for q in range(s.nst):
            assert sorted(s.gpos(*x) for x in seq[b[q]:b[q+1]])==list(range(b[q],min(b[q+1],N))), q
            assert s.lpos(b[q+1]-1)-s.lpos(b[q])==(b[q+1]-1-b[q])*1024
        s.QR={c:sQ+2*i for i,c in enumerate(sorted({(b[q+1]-b[q])//4 for q in range(s.nst)}))}
        s.LOOK=cfg.get('LOOK',6); s.XL=cfg.get('XL',6)
        s.mem=[]; s.m0=None; s.now=-1
        QG=s.QG=cfg.get('QG',[-1,0,2,3])
        for q in range(s.nst):
            gate=-1
            if cfg.get('BIG',0):
                if b[q]>=224: gate=max(z for z in range(s.nst) if b[z]<b[q+1]-160)+2
                elif 96<=b[q]<160: gate=max(z for z in range(s.nst) if b[z]<b[q+1]-96)+2
                elif b[q]>=160: gate=min(z for z in range(s.nst) if b[z]-s.LOOK>=s.P1)
            elif b[q+1]>RING: gate=max(z for z in range(s.nst) if b[z]<b[q+1]-RING)+2
            if cfg.get('FA',0) and b[q+1]>s.P1: gate=max(gate,cfg.get('FAS',3))
            if cfg.get('QSYNC',0): gate=max(gate,QG[min(3,(b[q+1]-1)//(8*G1))])
            for u in range((b[q+1]-b[q])//4): s.mem.append((max(b[q]-s.LOOK,0),gate,('w',q,u)))
        XG=cfg.get('XGRP',2)
        for ks in range(32): s.mem.append((max(G1*(ks-ks%XG)-s.XL,0),QG[ks>>3] if cfg.get('QSYNC',0) else -1,('x',ks)))
        s.mem.sort(key=lambda e:e[0])
    def lpos(s,g):
        if s.cfg.get('BIG',0): return L_RING+(g%96)*1024 if g<160 else (g-160)*1024 if g<224 else L_RING+(g-160)*1024
        return L_RING+(g%RING)*1024
    def gpos(s,t,ks): return (G1*ks+t) if t<G1 else 33*t+ks
    def setup(s):
        L=[]
        for c,r in s.QR.items(): L+=[f"s_mul_i32 s{r}, s{sW}, {c*1024}", f"s_add_u32 s{r+1}, s{r}, s{sWB}"]
        L+=f"""v_lshlrev_b32 v{vL16}, 4, v{vLANE}
v_lshrrev_b32 v8, 5, v{vLANE}
v_bfe_u32 v9, v{vLANE}, 2, 2
v_lshl_add_u32 v8, v8, 3, v9
v_bfe_u32 v9, v{vLANE}, 4, 1
v_lshl_add_u32 v8, v8, 1, v9
v_and_b32 v10, 3, v{vLANE}
v_lshl_add_u32 v8, v8, 2, v10
v_lshl_add_u32 v{vXA}, v8, 3, s{sXM}
v_add_u32 v3, {L_RING}, v{vL16}
v_add_u32 v7, {L_RING+0x10000}, v{vL16}
v_and_b32 v8, 31, v{vLANE}
v_and_b32 v10, 32, v{vLANE}
v_lshlrev_b32 v10, 4, v10
v_lshl_add_u32 v8, v8, 2, v10
v_add_u32 v249, {L_RING}, v8
v_add_u32 v250, {L_RING+0x10000}, v8
v_and_b32 v8, 15, v{vLANE}
v_cmp_eq_u32 vcc, v8, v9
v_mov_b32 v10, 0x3f803f80
v_and_b32 v{vPA}, 7, v{vLANE}
v_lshlrev_b32 v{vPA}, 2, v{vPA}
v_cndmask_b32 v56, 0, v10, vcc
v_cndmask_b32 v57, 0, v10, vcc
v_cndmask_b32 v58, 0, v10, vcc
v_cndmask_b32 v59, 0, v10, vcc""".split('\n')
        if s.cfg.get('BIG',0):
            assert not s.cfg.get('M16',0) and s.cfg.get('RXD',0)
            L.append(f"v_add_u32 v248, {-L_RING}, v249")
        if s.cfg.get('M16',0): L.append(f"v_and_b32 v248, v{vWL}, v{vWL+1}")
        return L
    def memop(s,e):
        if e[0]=='w':
            _,q,u=e; c=(s.bounds[q+1]-s.bounds[q])//4; key=('w',q,u//4); u0=u-u%4
            pre=[f"s_add_u32 m0, s{s.QR[c]}, {s.lpos(s.bounds[q])+u0*1024}", f"s_add_u32 s{sT0}, s{s.QR[c]+1}, {(s.bounds[q]+u0)*1024}"]
            tag=f"w{q}"; off=(u%4)*1024; ld=s.cfg.get('WLD','')
        else:
            ks=e[1]; key=('x',ks//4); k0=ks-ks%4
            assert ks<NS or s.now>=G1*(ks-NS), (ks,s.now)
            pre=[f"s_add_u32 m0, s{sXM}, {L_XS+(k0%NS)*1024}", f"s_add_u32 s{sT0}, s{sXB}, {k0*1024}"]
            tag=f"x{ks}"; off=(ks%4)*1024; ld=s.cfg.get('XLD','')
        L=[] if s.m0==key else pre
        s.m0=key
        if e[0]=='x' and ka.XIN:
            return L[:1]+[f"s_mov_b32 s{sXB}, {WS_XG+ks*98304-off}",(f"buffer_load_dwordx4 v13, {sp(rWS,4)}, s{sXB} offen offset:{off} {ld} lds",tag)]
        return L+[(f"buffer_load_dwordx4 v{vL16}, {sp(rWS,4)}, s{sT0} offen offset:{off} {ld} lds",tag)]
    def pre(s,P,n,kinds='wx'):
        k=0
        while n>0 and k<len(s.mem):
            if s.mem[k][2][0] in kinds and s.mem[k][1]<0: P.extend(s.memop(s.mem.pop(k)[2])); n-=1
            else: k+=1
    def run(s,P,diag,wd,extra_side,D,raw=None):
        cfg=s.cfg; seq=s.seq; N=s.N; bounds=s.bounds; mem=s.mem; LOOK=s.LOOK; XL=s.XL; P1=s.P1
        ST='sc1'; ends=cfg.get('ASTG',ASTG0)
        X0=120
        xr=lambda ks: vr(X0+4*ks,4) if ks<32 else vr(44,4)
        NACC=4; ACC=[72,88,104,56]
        WF=[20+4*i for i in range(6)]; NWF=6
        SQ,SM,ONE,SQ2=48,52,56,16
        C0,C1,IR2=4,5,6; TA=8
        RA=[vL16,3,7]; RA2=[248,249,250]
        def rd(n):
            pos=s.lpos(s.gpos(*seq[n]))
            if seq[n][1]==32:
                return [(f"ds_read_b32 v{WF[n%NWF]+q}, v{RA2[pos>>16]} offset:{(pos&0xffff)+128*q}", f"r{n}") for q in range(4)]
            return [(f"ds_read_b128 {vr(WF[n%NWF],4)}, v{RA[pos>>16]} offset:{pos&0xffff}", f"r{n}")]
        def xrd(ks): return [f"@wait x{ks}"]+[f"ds_read_b64_tr_b16 {vr(X0+4*ks+2*hf,2)}, v{vXA} offset:{L_XS+(ks%NS)*1024+hf*256}" for hf in range(2)]
        accof=lambda t: ACC[t%NACC]
        EW=cfg.get('EW',4)
        def epi(t):
            a=accof(t); L=[]
            for g in range(8//EW):
                ia=list(range(EW*g,EW*g+EW)); T=TA
                L+=[f"v_mul_f32 v{T+k}, v{a+i}, v{a+i}" for k,i in enumerate(ia)]
                L+=[f"v_fma_f32 v{T+k}, v{T+k}, v{C1}, v{C0}" for k,i in enumerate(ia)]
                L+=[f"v_mul_f32 v{T+k}, v{T+k}, v{a+i}" for k,i in enumerate(ia)]
                for k,i in enumerate(ia): L+=[f"v_exp_f32 v{T+k}, v{T+k}", f"v_mul_f32 v{a+8+i}, v{a+i}, v{a+8+i}"]
                for k,i in enumerate(ia):
                    L+=[f"v_fma_f32 v{a+i}, v{T+k}, v{IR2}, v{IR2}"]
                    if k: L+=[f"v_rcp_f32 v{a+i-1}, v{a+i-1}"]
                L+=[f"v_mul_f32 v{a+8+ia[0]}, v{a+8+ia[0]}, v{a+ia[0]}", f"v_rcp_f32 v{a+ia[-1]}, v{a+ia[-1]}"]
                L+=[f"v_mul_f32 v{a+8+i}, v{a+8+i}, v{a+i}" for i in ia[1:]]
                L+=[f"v_cvt_pk_bf16_f32 v{16+i//2}, v{a+8+i}, v{a+9+i}" for i in ia[::2]]
            L.append((f"buffer_store_dwordx4 v[16:19], v{vL16}, {sp(rWS,4)}, s{sAB} offen offset:{(t%4)*1024} {ST}",f'act{t}'))
            if t==3: L.append(f"s_add_u32 s{sAB}, s{sAB}, 4096")
            return L
        if cfg.get('NOTRANS'):
            e0=epi; epi=lambda t:[y for x in e0(t) for y in ([x.replace('v_exp_f32','v_mov_b32').replace('v_rcp_f32','v_mov_b32')]*2 if isinstance(x,str) and x.split()[0] in TRANS else [x])]
        if cfg.get('NOST'):
            e2=epi; epi=lambda t:[(('s_nop 0',x[1]) if isinstance(x,tuple) else x) for x in e2(t)]
        if cfg.get('NOEPI'):
            e1=epi; epi=lambda t:[x for x in e1(t) if not (isinstance(x,str) and x.startswith('v_'))]
        k0=-2*0.7978845608028654*1.4426950408889634; k1=k0*0.044715
        fin=f"""v_and_b32 v11, 15, v{vLANE}
v_lshlrev_b32 v11, 2, v11
v_and_b32 v8, 3, v{vLANE}
v_cmp_eq_u32 vcc, 1, v8
v_cmp_eq_u32 {sp(sT2)}, 2, v8
v_and_b32 v10, 16, v{vLANE}
ds_bpermute_b32 v12, v11, v{SM}
ds_bpermute_b32 v13, v11, v{SM+1}
v_add_f32 v{SQ}, v{SQ}, v{SQ2}
v_add_f32 v{SQ+1}, v{SQ+1}, v{SQ2+1}
v_add_f32 v{SQ+2}, v{SQ+2}, v{SQ2+2}
v_add_f32 v{SQ+3}, v{SQ+3}, v{SQ2+3}
v_cndmask_b32 v9, v{SQ}, v{SQ+1}, vcc
v_cmp_eq_u32 vcc, 3, v8
v_cndmask_b32 v9, v9, v{SQ+2}, {sp(sT2)}
v_cmp_eq_u32 {sp(sT2)}, 0, v10
v_cndmask_b32 v9, v9, v{SQ+3}, vcc
v_mov_b32 v8, v9
v_nop
v_nop
v_permlane32_swap_b32 v8, v9
v_add_f32 v9, v8, v9
v_mul_f32 v9, 0x3b000000, v9
v_cndmask_b32 v12, v13, v12, {sp(sT2)}
v_mul_f32 v12, 0x3b000000, v12
v_fma_f32 v9, -v12, v12, v9
v_max_f32 v9, 0, v9
v_cvt_pk_bf16_f32 v9, v9, v9
v_and_b32 v9, 0xffff0000, v9
v_add_f32 v9, 0x3727c5ac, v9
v_cvt_pk_bf16_f32 v9, v9, v9
v_and_b32 v9, 0xffff0000, v9
v_sqrt_f32 v9, v9
v_nop
v_cvt_pk_bf16_f32 v44, -v12, v9
v_and_b32 v9, 0xffff0000, v44
v_mov_b32 v45, v44
v_rcp_f32 v8, v9
v_mov_b32 v46, v44
v_mov_b32 v47, v44
v_mul_f32 v{IR2}, v9, v9
v_mul_f32 v{C0}, {hex(f32(k0))}, v8
v_mul_f32 v10, v8, v8
v_mul_f32 v{C1}, {hex(f32(k1))}, v8
v_mul_f32 v{C1}, v{C1}, v10""".split('\n')
        done_at={}
        for n,(t,ks) in enumerate(seq):
            if ks==32: done_at[t]=n
        side=[(0,x) for x in extra_side]+[(P1,x) for x in fin]
        for t in range(6): side+=[(done_at[t]+3,x) for x in epi(t)]
        RX=cfg.get('RXAT',P1+40)
        blocks={RX:[f"s_lshl_b32 s{sT1}, s{sNT}, 5",f"s_add_u32 s{sT1}, s{sT1}, s{sMT}",f"s_lshl_b32 s{sT1}, s{sT1}, 10",f"s_add_u32 s{sT1}, s{sT1}, {WS_X1B}"],
                RX+1:['@m0',f"s_add_u32 m0, s{sXM}, {L_XS}",f"s_add_u32 s{sT4}, s{sT1}, {32768-1024}",(f"buffer_load_dwordx4 v{vL16}, {sp(rWS,4)}, s{sT1} offen {cfg.get('XLD','')} lds",'rx'),
                      (f"buffer_load_dwordx4 v{vL16}, {sp(rWS,4)}, s{sT4} offen offset:1024 {cfg.get('XLD','')} lds",'rx')],
                RX+3:[f"s_lshl_b32 s{sT1}, s{sMT}, 6",f"s_add_u32 s{sT1}, s{sT1}, {WS_GBF}",f"v_and_b32 v{vPV}, 32, v{vLANE}"],
                RX+4:[f"buffer_load_dwordx4 {ar(AG+4*q,4)}, v{vPV}, {sp(rWS,4)}, s{sT1} offen offset:{16*q} {cfg.get('WLD','')}" for q in range(2)],
                RX+44:["@wait rx"]+[f"ds_read_b64_tr_b16 {ar(AX+2*q,2)}, v{vXA} offset:{L_XS+(q>>1)*1024+(q&1)*256}" for q in range(4)],
                cfg.get('P0AT',217):[flag_poll(0)]}
        if ka.XIN:
            xs=xsrc(13,sNT)
            blocks[RX-2]=xs[:4]; blocks[RX-1]=xs[4:]+["v_xor_b32 v12, 128, v13"]
            blocks[RX]=[f"s_mul_i32 s{sT1}, s{sMT}, 98304",f"s_add_u32 s{sT1}, s{sT1}, {WS_XG}"]
            blocks[RX+1]=['@m0',f"s_add_u32 m0, s{sXM}, {L_XS}",f"s_sub_u32 s{sT4}, s{sT1}, 1024",(f"buffer_load_dwordx4 v13, {sp(rWS,4)}, s{sT1} offen sc1 lds",'rx'),
                      (f"buffer_load_dwordx4 v12, {sp(rWS,4)}, s{sT4} offen offset:1024 sc1 lds",'rx')]
        if cfg.get('RXD',0):
            for z in (RX-2,RX-1,RX,RX+1,RX+3,RX+4,RX+44): blocks.pop(z,None)
        if cfg.get('QSYNC',0):
            for q,at in zip((2,3),cfg.get('QAT2',[1,14])): blocks[at]=qpoll(q)
        if cfg.get('FA',0): blocks[cfg.get('FAP',11)]=[f"buffer_load_dword v15, v248, {sp(rWS,4)}, s92 offen sc1"]
        C0AT=cfg.get('C0AT',999)
        D.nflag=0; flag_at={}; log=[]
        opened=[-1]
        def emit(L):
            c=0
            for x in L:
                if x=='@m0': s.m0=None; continue
                P.extend([x]); c+=cost(x)
            return c
        def force(pred):
            c=0
            while any(pred(e[2]) for e in mem):
                assert mem[0][1]<=opened[0], mem[0]
                c+=emit(s.memop(mem.pop(0)[2]))
            return c
        def open_stage(q):
            c=force(lambda e: e[0]=='w' and e[1]==q)
            opened[0]=q
            if cfg.get('FA',0) and q==cfg.get('FAS',3): poll_check(P,'fa',vPV=15); c+=3
            if cfg.get('QSYNC',0) and q in s.QG: poll_check(P,f'fx{s.QG.index(q)}',vPV=vQV); c+=3; stamp(P,25+s.QG.index(q),diag)
            x_=cfg.get('XBAR',0) if bounds[q]>P1 else 0
            c+=emit([[f"@wait w{q}","s_barrier"],[f"@wait w{q}"],["s_barrier"],[]][x_])
            if cfg.get('QSYNC',0) and q in s.QG:
                for _ in range(cfg.get('QBURST',[5,3,2])[s.QG.index(q)-1]):
                    if mem[0][1]<=q and (mem[0][2][0]=='w' or s.now>=G1*(mem[0][2][1]-NS)): c+=emit(s.memop(mem.pop(0)[2]))
            if cfg.get('SSTAMP'): stamp(P,(2+q if q<10 else 9+q),diag)
            return c
        xnext=0
        open_stage(0)
        while G1*xnext<XL: force(lambda e: e==('x',xnext)); emit(xrd(xnext)); xnext+=1
        for n in range(LOOK): P.extend(rd(n))
        DIST=cfg.get('DIST',24); DIST2=cfg.get('DIST2',48); WB=cfg.get('WB',3)
        started=set(); mb=0.0; wdb=0.0; quiet=0
        P.I("@mark c1")
        for n,(t,ks) in enumerate(seq):
            a=accof(t)
            if n==P1: P.I("@mark c2")
            if t>=NACC and ks==0:
                while side and side[0][0]<=done_at[t-NACC]+3:
                    x=side.pop(0)[1]; emit([x])
                    if isinstance(x,tuple):
                        log.append((x[1],n))
                        if int(x[1][3:])+1 in ends: flag_at[ends.index(int(x[1][3:])+1)]=n+cfg.get('FLAGD',26)
            if ks==32 and t==0:
                while side and side[0][0]<=P1: emit([side.pop(0)[1]])
            if n%WB==0: P.I(f"@wait r{min(n+WB-1,N-1)}")
            P.I(f"v_mfma_f32_32x32x16_bf16 {vr(a,16)}, {vr(WF[n%NWF],4)}, {xr(ks)}, {vr(a,16) if t in started else 0}"); started.add(t)
            s.now=n
            free=cfg.get('CAP',6)-((n+1)%WB==0)
            if xnext<32 and G1*xnext-XL<=n:
                free-=force(lambda e: e==('x',xnext)); free-=emit(xrd(xnext)); xnext+=1
            m=n+LOOK
            if m<N:
                if m in bounds: free-=open_stage(bounds.index(m))+cfg.get('BARPAD',0); quiet=max(quiet,n+(cfg.get('BQUIET',0) if n>=P1 else 0))
                free-=emit(rd(m))
            used=False
            if n in blocks: free-=emit(blocks.pop(n)); used=True
            elif n>=flag_at.get(D.nflag,999) and free>=4:
                free-=emit([f"@wait act{ends[D.nflag]-1}"]+flag_store(D.nflag)); D.nflag+=1; used=True; log.append(n)
            if n==C0AT: poll_check(P,'p0'); stamp(P,14,diag); free-=3; used=True
            rate = cfg.get('RATE1',0.9) if n<P1 else cfg.get('RATE2',0.5)
            mb=min(mb+rate,1.0+(rate if n<P1 else cfg.get('BURST2',rate)))
            if n<quiet: mb=min(mb,0.99)
            nxt_st=[i for i,(r_,x_) in enumerate(side[:cfg.get('PREQ',0)]) if isinstance(x_,tuple) and r_<=n]
            if nxt_st: mb=min(mb,0.99)
            if not used and mem and mb>=1 and mem[0][0]-(DIST if n<P1 else DIST2)<=n and mem[0][1]<=opened[0] and (free>=3 or n<P1) and (mem[0][2][0]=='w' or n>=G1*(mem[0][2][1]-NS)):
                free-=emit(s.memop(mem.pop(0)[2])); used=True; mb-=1
            if raw:
                if raw.flying and n>=raw.flying[0][2]+cfg.get('RAWD',40) and free>=3: free-=emit(raw.convert_half())
                if not used and raw.todo and len(raw.flying)<len(raw.slots) and cfg.get('WDFROM',P1+4)<=n<N-cfg.get('RAWD',40):
                    wdb=min(wdb+cfg.get('WDPER',0.2),2)
                    if wdb>=1 and mb>=1 and free>=3: free-=emit(['@m0']+raw.issue_half(n)); wdb-=1; mb-=1
            if not used and n>C0AT and mb>=1 and free>=2 and D.li<min(cfg.get('EARLYN') or cfg.get('DAHEAD',14),n-197) and D.can_load() and not (cfg.get('SPOLL') and D.li in list(D.first.values())[1:]):
                free-=emit(D.load()); mb-=1; used=True
            if not used and wd and cfg.get('WDFROM',P1+4)<=n<C0AT:
                wdb=min(wdb+(cfg.get('WDPER1',0.2) if n<P1 else cfg.get('WDPER',0.2)),2)
                if wdb>=1 and mb>=1 and free>=2: free-=emit(wd.pop(0)); wdb-=1; mb-=1
            while side and side[0][0]<=n and cost(side[0][1])<=free:
                if isinstance(side[0][1],tuple) and any(0<b_-LOOK-n<=cfg.get('STB',0) for b_ in bounds) and len(side)>1 and not side[1][1].startswith(('v_cvt','s_add')) and side[1][0]<=n:
                    side.insert(0,side.pop(1)); continue
                x=side.pop(0)[1]; free-=emit([x])
                if isinstance(x,tuple) and x[1].startswith('act'):
                    log.append((x[1],n)); quiet=n+1+cfg.get('QUIET',0)
                    if cfg.get('STEND',0): free=0
                    if int(x[1][3:])+1 in ends: flag_at[ends.index(int(x[1][3:])+1)]=n+cfg.get('FLAGD',26)
            if n<P1 and t==G1-1:
                x=X0+4*ks
                P.I(f"v_mfma_f32_4x4x4_16b_bf16 {vr(SQ,4)}, {vr(x,2)}, {vr(x,2)}, {vr(SQ,4) if ks else 0}")
                P.I(f"v_mfma_f32_4x4x4_16b_bf16 {vr(SQ2,4)}, {vr(x+2,2)}, {vr(x+2,2)}, {vr(SQ2,4) if ks else 0}")
                P.I(f"v_mfma_f32_16x16x32_bf16 {vr(SM,4)}, {vr(ONE,4)}, {vr(x,4)}, {vr(SM,4) if ks else 0}")
            if n==P1-1: stamp(P,12,diag)
        P.I("@mark end")
        assert D.nflag and not blocks and not mem
        print('phase C: side left', len(side), 'stores/flags', log, 'Wd left', len(wd), 'raw todo/flying', (len(raw.todo),len(raw.flying),raw.half,raw.chalf) if raw else None)
        stamp(P,13,diag)
        return [x for _,x in side]+epi(6), {q:v-N for q,v in flag_at.items()}

def poll_check(P, name, need=None, diag=None, vPV=vPV):
    P.I(f"""L_{name}_chk:
v_cmp_ne_u32 vcc, v{vONE1}, v{vPV}
s_cbranch_vccnz L_{name}_retry
L_{name}_ok:""")
def poll_retry(P, name, off, vPV=vPV, vPA=vPA, sPL=sPL, loc=0, mask=0):
    P.I(f"""L_{name}_retry:
s_add_u32 s{sCNT}, s{sCNT}, 1
s_cmp_gt_u32 s{sCNT}, 40000
@loopok
s_cbranch_scc1 L_{name}_ok""")
    P.extend(ka.writeback(sCNT,f'L_{name}_nowb',loc))
    P.I(f"""{"s_mov_b64 exec, vcc" if mask else ""}
buffer_load_dword v{vPV}, v{vPA}, {sp(rWS,4)}, s{sPL} offen offset:{off} sc1
{"s_mov_b64 exec, -1" if mask else ""}
s_waitcnt vmcnt(0) lgkmcnt(0)
s_branch L_{name}_chk""")

class PhaseD:
    def __init__(s, P, cfg, diag, wd):
        s.P=P; s.cfg=cfg; s.diag=diag; s.wd=wd
        s.parts=d_parts(cfg); s.ends=cfg.get('ASTG',ASTG0); s.order=sum(s.parts,[])
        s.ACC=[[184,200],[216,232]]; s.BUF=[vr(120+4*i,4) for i in range(16)]
        if cfg.get('EARLYN',0): assert cfg.get('RXD',0); s.BUF+=[ar(224+4*i,4) for i in range(8)]
        s.NB=len(s.BUF)
        SK=cfg.get('DSKEW',8)
        s.M16=cfg.get('M16',0)
        if s.M16:
            s.work=[(f,nb) for i,f in enumerate(s.order) for nb in range(4) if nb<2 or i<14-SK//2]+[(f,nb) for f in s.order[14-SK//2:] for nb in (2,3)]
        else: s.work=[(f,n) for i,f in enumerate(s.order) for n in range(2) if n==0 or i<28-SK]+[(f,1) for f in s.order[28-SK:]]
        s.first={q:min(k for k,(f,n) in enumerate(s.work) if f in s.parts[q]) for q in range(len(s.parts))}
        s.S=[Stream(sA0,36),Stream(sA0,37)]; s.li=0; s.nflag=0; s.polled=0; s.inD=False
    def can_load(s):
        for q,k0 in s.first.items():
            if q and s.li==k0 and s.nflag<(len(s.ends) if q>=s.cfg.get('CK',1) else q+1): return False
        return True
    def load(s):
        k=s.li; s.li+=1; f,n=s.work[k]; L=[]; PL=s.cfg.get('PL2',8)
        nxt=s.polled+1
        if nxt in s.first and k>=max(s.first[nxt]-PL,s.first[nxt-1]+1) and s.nflag>nxt and (s.inD or not s.cfg.get('SPOLL',0)): L.append((sflag_poll if s.cfg.get('SPOLL',0) else flag_poll)(nxt)); s.polled=nxt
        for q,k0 in s.first.items():
            if q and k==k0:
                assert s.polled>=q
                s.P.extend(L); L=[]; (spoll_check if s.cfg.get('SPOLL',0) else poll_check)(s.P,f'p{q}'); stamp(s.P,22+q,s.diag)
        while s.wd and 56-len(s.wd)<(4 if s.M16 else 2)*(wd_order(s.cfg).index(f)+1): L+=s.wd.pop(0)
        if s.M16:
            pre,o=s.S[n>>1].at((n>>1)*112*1024+f*1024+(n&1)*256)
            return L+pre+[f"buffer_load_dwordx4 {s.BUF[k%s.NB]}, v248, {sp(rWS,4)}, {o} sc1"]
        pre,o=s.S[n].at(n*112*1024+f*1024)
        return L+pre+[f"buffer_load_dwordx4 {s.BUF[k%s.NB]}, v{vL16}, {sp(rWS,4)}, {o} sc1"]
    def run(s, ctail, flag_due):
        P=s.P; cfg=s.cfg; diag=s.diag; work=s.work; ACC=s.ACC; ends=s.ends
        AH=cfg.get('DAHEAD',14); assert AH<=s.NB; s.inD=True
        M16=s.M16; NM=4 if M16 else 2
        nA=max(k for k,(f,n) in enumerate(work) if n<(2 if M16 else 1))
        GB=44; XF=56; R=[120,144]; RD=[72,73,74]; VO,VW=75,76
        fill=f"""v_add_u32 v{VW}, s{sXM}, v{vL16}
s_lshl_b32 s{sT2}, s{sNT}, 15
s_lshl_b32 s{sT1}, s{sMT}, 5
s_add_u32 s{sT2}, s{sT2}, s{sT1}
s_add_u32 s{sT3}, s{sT2}, 32768
v_and_b32 v{VO}, 31, v{vLANE}
v_lshrrev_b32 v77, 5, v{vLANE}
v_lshlrev_b32 v{VO}, 10, v{VO}
v_lshl_add_u32 v{VO}, v77, 4, v{VO}""".split('\n')
        XA=vXA
        if M16:
            assert cfg.get('RXD',0); XA=79
            fill=fill[:-4]+f"""v_lshrrev_b32 v77, 5, v{vLANE}
v_and_b32 v{VO}, 15, v{vLANE}
v_lshl_add_u32 v{VO}, v77, 4, v{VO}
v_and_b32 v78, 16, v{vLANE}
v_lshl_add_u32 v{VO}, v{VO}, 10, v78
v_bfe_u32 v79, v{vLANE}, 2, 2
v_lshlrev_b32 v79, 1, v79
v_add3_u32 v79, v79, v78, v77
v_and_b32 v77, 3, v{vLANE}
v_lshl_add_u32 v79, v79, 2, v77
v_lshl_add_u32 v79, v79, 3, s{sXM}""".split('\n')
        fill+=[f"v_xor_b32 v{RD[j-1]}, {j*NS*1024}, v{VW}" for j in (1,2,3)]
        late={}
        if cfg.get('RXD',0):
            assert ka.XIN
            fill+=xsrc(13,sNT)+["v_xor_b32 v12, 128, v13", f"s_mul_i32 s{sT1}, s{sMT}, 98304", f"s_add_u32 s{sT1}, s{sT1}, {WS_XG}", f"s_add_u32 m0, s{sXM}, {L_XS}", f"s_sub_u32 s{sT4}, s{sT1}, 1024",
                  f"s_lshl_b32 s{sT0}, s{sMT}, 6", f"s_add_u32 s{sT0}, s{sT0}, {WS_GBF}", (f"v_lshlrev_b32 v78, 1, v78" if M16 else f"v_and_b32 v78, 32, v{vLANE}")]
            r0=cfg.get('RXD')
            late[r0]=[(f"buffer_load_dwordx4 v13, {sp(rWS,4)}, s{sT1} offen sc1 lds",'rx')]
            late[r0+1]=[(f"buffer_load_dwordx4 v12, {sp(rWS,4)}, s{sT4} offen offset:1024 sc1 lds",'rx')]
            late[r0+2]=[f"buffer_load_dwordx4 {vr(GB+4*q,4)}, v78, {sp(rWS,4)}, s{sT0} offen offset:{16*q} sc1" for q in range(2)]
            late[r0+3+AH]=["@wait rx"]+[f"ds_read_b64_tr_b16 {vr(80+2*q,2)}, v{XA} offset:{L_XS+(q>>1)*1024+(q&1)*256}" for q in range(4)]
            for z in range(4): late[r0+6+AH+z]=[y for k in (2*z,2*z+1) for y in (f"v_lshlrev_b32 v{XF+2*k}, 16, v{80+k}", f"v_and_b32 v{XF+2*k+1}, 0xffff0000, v{80+k}")]
        else:
            fill+=[f"v_accvgpr_read_b32 v{GB+k}, a{AG+k}" for k in range(8)]
            fill+=[f"v_accvgpr_read_b32 v{XF+2*k+1}, a{AX+k}" for k in range(8)]
            for k in range(8): fill+=[f"v_lshlrev_b32 v{XF+2*k}, 16, v{XF+2*k+1}", f"v_and_b32 v{XF+2*k+1}, 0xffff0000, v{XF+2*k+1}"]
        ROWO=cfg.get('ROWO',0)
        if ROWO:
            assert cfg.get('RXD',0) and cfg.get('EARLY0',0) and not M16
            L_XE=L_RING+48*1024; VW1,RA_,RX_,XW=77,72,73,74
            fill=f"""v_lshrrev_b32 v79, 5, v{vLANE}
v_lshlrev_b32 v79, 6, v79
v_xor_b32 v79, v79, v{vL16}
v_add_u32 v{VW}, s{sXM}, v79
v_xor_b32 v{VW1}, 128, v{VW}
s_lshr_b32 s{sT1}, s{sW}, 1
s_lshl_b32 s{sT1}, s{sT1}, 7
v_xor_b32 v79, s{sT1}, v79
s_lshl_b32 s{sT1}, s{sW}, 11
s_add_u32 s{sT1}, s{sT1}, {L_XE}
v_add_u32 v{XW}, s{sT1}, v79
v_lshrrev_b32 v{VO}, 3, v{vLANE}
s_lshl_b32 s{sT1}, s{sW}, 3
v_add_u32 v{VO}, s{sT1}, v{VO}
v_and_b32 v78, 3, v{vLANE}
v_lshlrev_b32 v78, 2, v78
v_xor_b32 v{RA_}, v78, v{VO}
v_and_b32 v78, 1, v{vLANE}
v_lshl_add_u32 v{RA_}, v78, 5, v{RA_}
v_bfe_u32 v78, v{vLANE}, 2, 1
v_lshl_add_u32 v{RA_}, v78, 7, v{RA_}
v_and_b32 v78, 2, v{vLANE}
v_lshl_add_u32 v{RA_}, v78, 7, v{RA_}
v_lshlrev_b32 v{RA_}, 4, v{RA_}
v_add_u32 v{RX_}, {L_XE}, v{RA_}
v_and_b32 v78, 7, v{vLANE}
v_lshlrev_b32 v{VO}, 10, v{VO}
v_lshl_add_u32 v{VO}, v78, 4, v{VO}
v_lshlrev_b32 v78, 5, v78
s_lshr_b32 s{sT0}, s{sMT}, 2
s_lshl_b32 s{sT2}, s{sNT}, 8
s_add_u32 s{sT2}, s{sT2}, s{sT0}
s_lshl_b32 s{sT2}, s{sT2}, 7
s_add_u32 s{sT3}, s{sT2}, 32768
s_lshl_b32 s{sT0}, s{sT0}, 8
s_add_u32 s{sT0}, s{sT0}, {WS_GBF}""".split('\n')
            fill+=xsrc(13,sNT)+["v_xor_b32 v12, 128, v13", f"s_mul_i32 s{sT1}, s{sMT}, 98304", f"s_add_u32 s{sT1}, s{sT1}, {WS_XG}", f"s_add_u32 m0, s{sXM}, {L_XS}", f"s_sub_u32 s{sT4}, s{sT1}, 1024"]
            for z in range(4): late.pop(r0+6+AH+z)
            for n in range(2): late[r0+6+AH+n]=[f"ds_write_b128 v{XW}, {vr(80+4*n,4)} offset:{n*1024}"]
        side=list(ctail)+fill
        piece=(lambda n,j,q: 184+16*(2*n+q)+4*j) if M16 else (lambda n,j,q: ACC[n][j&1]+8*(j>>1)+4*q)
        wr=[[f"ds_write_b128 v{VW}, {vr(piece(n,j,q),4)} offset:{L_XS+n*8192+j*2048+q*1024}" for j,q in ([(j,q) for q in range(2) for j in (1,2,3)] if M16 else [(j,q) for j in (2,1,3) for q in range(2)])] for n in range(2)]
        def reads(n): return [f"ds_read_b128 {vr(R[n]+8*(j-1)+4*q,4)}, v{RD[j-1]} offset:{L_XS+n*8192+j*2048+q*1024}" for j in (1,2,3) for q in range(2)]
        if ROWO:
            R=[88,120]
            wr=[[f"ds_write_b128 v{VW1 if j>>1 else VW}, {vr(piece(n,j,q),4)} offset:{L_XS+n*8192+j*2048+q*1024}" for j in (0,2,1,3) for q in range(2)] for n in range(2)]
            def reads(n):
                L=[f"ds_read_b128 {vr(80+4*z,4)}, v{RX_} offset:{z*1024}" for z in range(2)] if n==0 else []
                return L+[f"ds_read_b128 {vr(R[n]+8*z+4*q,4)}, v{RA_} offset:{L_XS+z*NS*1024+n*8192+q*1024}" for z in range(4) for q in range(2)]
        def plain(L):
            o=[]
            for x in L:
                m=re.match(r"v_pk_(add|fma)_f32 (.*)",x)
                if not m: o.append(x); continue
                rs=[int(t) for t in re.findall(r"v\[(\d+):",x)]
                o+=[f"v_{m.group(1)}_f32 "+", ".join(f"v{r+e}" for r in rs) for e in range(2)]
            return o
        def final(n):
            r=R[n]; L=[]
            unp=lambda z:[y for k in range(4*z,4*z+4) for y in (f"v_lshlrev_b32 v{XF+2*k}, 16, v{80+k}", f"v_and_b32 v{XF+2*k+1}, 0xffff0000, v{80+k}")]
            if ROWO:
                L+=unp(n)
                for k in range(0,8,2): L+=[f"v_pk_add_f32 {vr(r+k,2)}, {vr(r+k,2)}, {vr(r+8+k,2)}"]
                for k in range(0,8,2): L+=[f"v_pk_add_f32 {vr(r+16+k,2)}, {vr(r+16+k,2)}, {vr(r+24+k,2)}"]
                for k in range(0,8,2): L+=[f"v_pk_add_f32 {vr(r+k,2)}, {vr(r+k,2)}, {vr(r+16+k,2)}"]
            else:
                for k in range(0,8,2): L+=[f"v_pk_add_f32 {vr(r+k,2)}, {vr(r+k,2)}, {vr(piece(n,0,k>>2)+(k&3),2)}"]
                for k in range(0,8,2): L+=[f"v_pk_add_f32 {vr(r+8+k,2)}, {vr(r+8+k,2)}, {vr(r+16+k,2)}"]
                for k in range(0,8,2): L+=[f"v_pk_add_f32 {vr(r+k,2)}, {vr(r+k,2)}, {vr(r+8+k,2)}"]
            if M16: L+=[f"v_permlane32_swap_b32 v{r+k}, v{r+4+k}" for k in range(4)]
            for k in range(0,8,2): L+=[f"v_pk_fma_f32 {vr(r+k,2)}, {vr(r+k,2)}, {vr(GB+k,2)}, {vr(XF+8*n+k,2)}"]
            for k in range(0,8,2): L+=[f"v_cvt_pk_bf16_f32 v{8+4*n+k//2}, v{r+k}, v{r+k+1}"]
            if not cfg.get('NOOUT'): L.append(f"buffer_store_dwordx4 {vr(8+4*n,4)}, v{VO}, {sp(rOUT,4)}, s{sT2+n} offen {cfg.get('OST','')}")
            return L
        E0=cfg.get('EARLY0',0); e0=None
        if E0: R[0]=88
        started=set(); g=0; FD=cfg.get('FLAGD2',26)
        if cfg.get('C0AT',999)>=231: poll_check(P,'p0'); stamp(P,14,diag)
        TL=cfg.get('TAILLD',6); EN0=cfg.get('EARLYN',0); hold=0
        if TL:
            nt=len(ctail); per=-(-nt//TL)
            while nt>0:
                if EN0 and s.polled==0 and s.nflag>1: P.I(sflag_poll(1)); s.polled=1; hold=cfg.get('HOLD',2)
                if hold and s.li in s.first.values(): hold-=1
                elif s.li<max(AH,EN0+TL) and s.can_load(): P.extend(s.load())
                c=min(per,nt); P.extend(side[:c]); side=side[c:]; nt-=c
            while s.nflag<len(ends)-1:
                P.I(f"@wait act{ends[s.nflag]-1}"); P.extend(flag_store(s.nflag)); s.nflag+=1
            while s.li<AH and s.can_load(): P.extend(s.load())
            flag_due[len(ends)-1]=cfg.get('FL2',10)
        stamp(P,15,diag)
        li0=s.li; EN=cfg.get('EARLYN',0)
        lim=(lambda k,m: li0+(k+0.5*m+0.5)*(56-li0)/(56-AH)-1e-9) if EN else (lambda k,m: k+AH-(1-m)+0.5)
        P.I("@mark d")
        for k,(f,n) in enumerate(work):
            while s.li<=k:
                if not s.can_load():
                    P.extend(side); side=[]
                    P.I(f"@wait act{ends[s.nflag]-1}"); P.extend(flag_store(s.nflag)); s.nflag+=1; print('  D: forced flag at',k)
                else: P.extend(s.load())
            for m4 in range(NM):
                if M16:
                    j=(1,2,3,0)[m4]; a=vr(184+16*n+4*j,4)
                    P.I(f"v_mfma_f32_16x16x32_bf16 {a}, {ar(kap(f)+4*j,4)}, {s.BUF[k%s.NB]}, {a if (n,j) in started else 0}"); started.add((n,j))
                    free=2-(m4==3); m=m4>>1
                    if not m4&1:
                        if m4==0 and s.li<len(work) and s.li<=k+AH-1 and s.li-s.NB<k and s.can_load():
                            L=s.load(); P.extend(L); free-=len(L)
                        while side and g>=2 and cost(side[0])<=free and not isinstance(side[0],tuple):
                            x=side.pop(0); P.extend([x]); free-=cost(x)
                        continue
                    g+=1
                else:
                    m=m4; kk,mm=k,m; J=cfg.get('MS',0); i_=2*(k-56+J)+m
                    if i_>=0:
                        assert s.li==len(work) and k>nA and ROWO
                        kk,mm=(56-J+i_,0) if i_<J else (56-2*J+i_,1)
                    a=vr(ACC[n][mm],16)
                    P.I(f"v_mfma_f32_32x32x16_bf16 {a}, {ar(8*work[kk][0]+4*mm,4)}, {s.BUF[kk%s.NB]}, {a if (n,mm) in started else 0}"); started.add((n,mm))
                    g+=1; free=6-m
                    if J and i_>=2*J-4 and e0 is not None and len(wr[1])>4 and not (side and side[0].startswith(('ds_','s_wait'))):
                        P.extend(side[:2]); side=side[2:]; P.I(wr[1].pop(0)); continue
                if s.nflag<len(ends) and g>=flag_due.get(s.nflag,999):
                    P.I(f"@wait act{ends[s.nflag]-1}"); P.extend(flag_store(s.nflag)); print('  D: flag',s.nflag,'at item',k,'li',s.li); s.nflag+=1; free-=4
                if s.li<len(work) and s.li<lim(k,m)-(1 if M16 else 0) and s.li-s.NB<k+m and s.can_load():
                    L=s.load(); P.extend(L); free-=len(L)
                if m==0 and k in late:
                    assert not side
                    L=late.pop(k); P.extend(L); free-=len(L)
                if (m or E0==2) and k>nA+1 and wr[0]: P.I(wr[0].pop(0)); free=0
                elif E0 and not wr[0] and e0 is None and m:
                    assert not side and not late
                    P.I("s_waitcnt lgkmcnt(0)\ns_barrier"); e0=g; side=reads(0)+['s_waitcnt lgkmcnt(0)']+plain(final(0)); free-=3
                while side and g>=2 and cost(side[0])<=free and not (e0 is not None and g<e0+3+ROWO and not side[0].startswith('ds_')):
                    x=side.pop(0); P.extend([x]); free-=cost(x)
                    if isinstance(x,tuple) and int(x[1][3:])+1 in ends: flag_due[ends.index(int(x[1][3:])+1)]=g+FD
        P.I("@mark end")
        if E0: print('  D: early finish left',len(side),e0)
        rest0=side if E0 else []; side=[] if E0 else side
        assert not side and not late and s.nflag==len(ends) and (e0 is not None or not E0)
        P.extend(wr[0])
        stamp(P,17,diag)
        for i,x in enumerate(wr[1]):
            if i==0: P.extend(rest0[:8]); rest0=rest0[8:]
            P.I(x); P.extend(rest0[:3]); rest0=rest0[3:]
        P.I("s_waitcnt lgkmcnt(0)\ns_barrier")
        if E0: P.extend(reads(1)); P.extend(rest0); P.extend(final(1))
        else: P.extend(reads(0)); P.extend(reads(1)); P.extend(final(0)); P.extend(final(1))
```

```python
from prog import *
from layout import *
import ka, kc
from ka import sp, vr, mksrd, stamp, stamp_out, rWS, rWJ, rOUT, sW, sTAG, sP, sIDX, sXCD, sFS, sCG, sKE, sT0, sT1, sT2, sT3
NAME='adaLN_cond__ssm_conv_s4__geglu_ffn__prompt_kernel'
sFXo,sFDo,sFXi,sFDi,sFWo,sFWi = 40,41,99,93,89,92
vTG=251; vFV,vFA,vFB=247,246,252
T4=248
def build(P, diag, cfg):
    cfg=dict(cfg); cfg.update(XST='sc1',ST='sc1',WLD='sc1',XLD='sc1')
    kc.FS=cfg.get('FS',4); ka.XIN=cfg.get('XIN',0); ka.ONLY=cfg.get('ONLY'); ka.BACKOFF=cfg.get('BACKOFF',0); ka.PREW=cfg.get('PREW',1); ka.SGP=cfg.get('SGP',0)
    C=kc.PhaseC(cfg)
    L=ka.vLANE
    FS=cfg.get('FS',4)
    EX=hex((1<<(1<<(FS-4)))-1)
    def line(so, reg, r=rWS):
        return [f"s_mov_b64 exec, {EX}", f"buffer_store_dwordx4 {vr(reg,4)}, v{ka.vL16}, {sp(r,4)}, s{so} offen sc1", "s_mov_b64 exec, -1"]
    H={}
    DF=cfg.get('DEFER',0); PG0=ka.PG0=cfg.get('PG0',0); ka.ALN=cfg.get('ALN',1)
    own=f"""s_lshl_b32 s{sFXo}, s{sP}, {FS}
s_add_u32 s{sFXo}, s{sFXo}, {WS_FX}
s_and_b32 s{sT0}, s{sFS}, 1
s_mul_i32 s{sT0}, s{sT0}, 112
s_lshr_b32 s{sFDo}, s{sFS}, 1
s_add_u32 s{sFDo}, s{sFDo}, s{sT0}
s_lshl_b32 s{sFDo}, s{sFDo}, {FS}
s_add_u32 s{sFDo}, s{sFDo}, {WS_FD}""".split('\n')
    FA=cfg.get('FA',0)
    if FA: own+=f"""s_and_b32 s{sT0}, s{sXCD}, 3
s_mul_i32 s{sT0}, s{sT0}, 7
s_lshr_b32 s{sT1}, s{sIDX}, 2
s_add_u32 s{sT0}, s{sT0}, s{sT1}
s_and_b32 s{sT1}, s{sXCD}, 4
s_lshl3_add_u32 s{sT0}, s{sT0}, s{sT1}
s_and_b32 s{sT1}, s{sIDX}, 3
s_add_u32 s{sT0}, s{sT0}, s{sT1}
s_lshl_b32 s{sT0}, s{sT0}, {FS}
s_add_u32 s{sFWo}, s{sT0}, {WS_FW}""".split('\n'); assert DF and not cfg.get('WMAP',0)
    if cfg.get('FW',0) or not DF: own+=[f"s_lshl3_add_u32 s{sFWo}, s{sCG}, s{sKE}", f"s_lshl_b32 s{sFWo}, s{sFWo}, {FS}", f"s_add_u32 s{sFWo}, s{sFWo}, {WS_FW}"]
    assert not (DF and cfg.get('FW',0))
    fdi=f"""{f's_and_b32 s{sT0}, s{sXCD}, 1' if cfg.get('DM',0) else f's_bfe_u32 s{sT0}, s{sIDX}, 0x10002'}
s_lshl2_add_u32 s{sT0}, s{sT0}, s{sW}
s_mul_i32 s{sT0}, s{sT0}, {28<<FS}
s_add_u32 s{sFDi}, s{sT0}, {WS_FD}""".split('\n')
    va=[f"v_min_u32 v{vFA}, 27, v{L}", f"v_lshlrev_b32 v{vFA}, {FS}, v{vFA}"]
    H['setup']=va if DF else mksrd(rOUT,ka.sOUT,2097152)+own+va
    H['defer']=mksrd(rOUT,ka.sOUT,2097152)+fdi
    def idle(P):
        LB=cfg.get('LB',0); assert DF or not LB
        for i in (() if LB else (3,) if DF else range(4)): P.I(f"v_mov_b32 v{T4+i}, s{sTAG}")
        if not DF: P.extend(fdi)
        P.I(f"s_cmp_lg_u32 s{sW}, 3\ns_cbranch_scc1 L_main")
        if DF: P.extend(own)
        if LB: ka.epoch_sync(P)
        if cfg.get('M2AT',0)==3: ka.role_loads(P,cfg.get('NT',''),1)
        if DF: P.extend([f"v_mov_b32 v{T4+i}, s{sTAG}" for i in range(3)])
        if cfg.get('TOUCH',1): P.I("s_mov_b64 exec, 0\ns_branch L_touch0\nL_touched:\ns_mov_b64 exec, -1")
        if cfg.get('M2AT',0)==4: ka.role_loads(P,cfg.get('NT',''),1)
        P.I(f"s_lshl_b32 s{sT0}, s{sP}, 9\ns_add_u32 s{sT0}, s{sT0}, {WS_FLAG}")
        for i in range(4): P.I(f"v_add_u32 v{4+i}, -1, v{T4}")
        P.I(f"s_waitcnt vmcnt({0 if cfg.get('M2AT',0) in (1,2) else 8})\ns_mov_b32 exec_hi, 0")
        P.I(line(sT0,4)[1]); P.I(f"s_mov_b64 exec, {EX}")
        P.I(line(sFXo,4)[1]); P.I(line(sFDo,4,rWJ)[1])
        if cfg.get('FW',0) or FA: P.I(line(sFWo,4,rWJ)[1])
        P.I(f"s_mov_b64 exec, -1\ns_branch {'L_f1' if cfg.get('CUT',0) else 'L_xje'}\n{'' if PG0 else '.p2align 12'}\n{'' if PG0 else 'L_page:'}\nL_main:")
    H['tagreg']=[f"v_mov_b32 v{T4+3}, s{sTAG}"]
    H['idle']=idle; H['own_param_wait']=True
    H['midbar']=[f"s_cmp_lg_u32 s{sW}, 3","s_cbranch_scc1 L_nofd"]+line(sFDo,T4,rWJ)+["L_nofd:"]
    H['postbar' if cfg.get('FDP',0) else 'pre']=[f"buffer_load_dword v{vFV}, v{vFA}, {sp(rWS,4)}, s{sFDi} offen sc1"]
    wd=kc.wd_load_list(cfg,'sc1'); dm=kc.d_maps(cfg.get('DM',0),cfg.get('M16',0),cfg.get('ROWO',0))
    if DF>=2:
        sc=[x for x in dm if x.startswith('s_') and 's52' not in x and 's53' not in x]
        H['defer']+=sc+[f"s_mov_b32 s{kc.sFB}, s{kc.sT3}"]
        dm=[x.replace(f"s{kc.sT3},",f"s{kc.sFB},") for x in dm if x not in sc]
    WV=cfg.get('WDV',0)
    if WV:
        assert cfg.get('WDLIN')==2 and WV<=24 and not cfg.get('M16',0)
        Q=Prog(); kc.poll_check(Q,'fd',vPV=vFV)
        H['defer' if DF else 'setup']+=[x for x in dm if x.startswith('s_') and 's52' not in x and 's53' not in x]+[f"s_mov_b32 s{kc.sFB}, s{kc.sT3}", f"s_mov_b32 s{kc.sCNT}, 1"]
        H['v2side']=[x for x in dm if 's52' in x or 's53' in x]+["s_nop 0", f"v_xor_b32 v{kc.vWL}, s{kc.sFB}, v{ka.vL16}"]
        if cfg.get('FV',1)==-1: H['withq']=H.pop('pre'); H['chkq']=[x.text for x in Q.ins]
        else: H['hook']={tuple(cfg.get('WDVP',[2,14])):H.pop('pre'), tuple(cfg.get('WDVC',[3,2])):[x.text for x in Q.ins]}
        H['v3mem']=[wd.pop(0) for _ in range(WV)]
    FW=cfg.get('FW',0)
    if FW:
        H['prebar']=["@wait wpst"]
        H['postbar']=[f"s_cmp_lg_u32 s{sW}, 3","s_cbranch_scc1 L_nofw"]+line(sFWo,T4,rWJ)+["L_nofw:"]
    ka.body(P,NAME,diag,cfg,H)
    stamp(P,9,diag)
    if WV: P.I(f"v_mov_b32 v{kc.vL16}, v{ka.vL16}")
    else:
        P.extend(dm); P.I(f"s_mov_b32 s{kc.sCNT}, 1")
        kc.poll_check(P,'fd',vPV=vFV)
    if diag: P.I(f"v_writelane_b32 v255, s{kc.sCNT}, 62\nv_writelane_b32 v255, s{ka.sCNT}, 61")
    for i in range(cfg.get('WDA',8)): P.extend(wd.pop(0))
    P.I(f"s_cmp_lg_u32 s{sW}, 3\n@wait x1st wpst {'' if FA else 'auxst'}\ns_barrier\ns_cbranch_scc1 L_nofx")
    P.extend(line(sFXo,T4))
    P.I(f"""s_cmp_lg_u32 s2, 0
s_cbranch_scc1 L_nofx
s_mov_b64 exec, 1
buffer_store_dword v{vTG}, v{ka.vL16}, {sp(rWS,4)}, {WS_EPOCH} offen
s_mov_b64 exec, -1
L_nofx:""")
    stamp(P,19,diag)
    fill=kc.c_maps()+C.setup()+[f"v_lshlrev_b32 v{vFA}, {FS}, v0", f"s_mov_b32 s{sFXi}, {WS_FX}"]
    fill+=f"""s_and_b32 s{sT1}, s{sXCD}, 3
s_and_b32 s{sT2}, s{sIDX}, 3
s_lshl2_add_u32 s{sT1}, s{sT1}, s{sT2}
s_mul_i32 s{sT1}, s{sT1}, 7
s_lshr_b32 s{sT1}, s{sT1}, 2
s_lshl_b32 s{sT1}, s{sT1}, {3+FS}
s_add_u32 s{sFWi}, s{sT1}, {WS_FW}
v_and_b32 v{vFB}, {15<<FS}, v{vFA}""".split('\n')
    if FA:
        fill=fill[:-1]+[f"s_lshr_b32 s{sT1}, s{sT1}, {FS}", f"v_add_u32 v248, s{sT1}, v{L}", f"s_add_u32 s{sT1}, s{sT1}, 23", f"s_min_u32 s{sT1}, s{sT1}, 223", f"v_min_u32 v248, s{sT1}, v248", f"v_lshlrev_b32 v248, {FS}, v248", f"s_mov_b32 s{sFWi}, {WS_FW}"]
    elif not FW: fill=fill[:-8]
    ot=cfg.get('OTOUCH',0)
    if ot:
        P.I(f"""v_lshrrev_b32 v4, 3, v{L}
v_and_b32 v5, 7, v{L}
v_lshlrev_b32 v4, 10, v4
v_lshl_add_u32 v4, v5, 4, v4
s_lshl1_add_u32 s{sT1}, s{kc.sNT}, s{sW}
s_lshl_b32 s{sT1}, s{sT1}, 14
s_lshr_b32 s{sT2}, s{kc.sMT}, 2
s_lshl_b32 s{sT2}, s{sT2}, 7
s_add_u32 s{sT1}, s{sT1}, s{sT2}
s_add_u32 s{sT2}, s{sT1}, 8192""")
        for u in range(2):
            if ot==1: P.I(f"buffer_store_dwordx4 v[16:19], v4, {sp(rOUT,4)}, s{sT1+u} offen sc1")
            else: P.I(f"buffer_load_dwordx4 v[{16+4*u}:{19+4*u}], v4, {sp(rOUT,4)}, s{sT1+u} offen")
    nB=cfg.get('WDB',8 if FW else 16)
    for i in range(nB):
        P.extend(wd.pop(0)); k=-(-len(fill)//(nB-i)); P.extend(fill[:k]); fill=fill[k:]
    P.extend(fill)
    if FW:
        P.I(f"buffer_load_dword v{vFV}, v{vFB}, {sp(rWS,4)}, s{sFWi} offen sc1")
        for i in range(cfg.get('WDB2',6)): P.extend(wd.pop(0))
        kc.poll_check(P,'fw',vPV=vFV)
        stamp(P,22,diag)
        C.pre(P,cfg.get('WPA',8),'w')
    QS=cfg.get('QSYNC',0)
    if QS:
        P.I(f"v_and_b32 v{kc.vQA}, 15, v{L}\ns_lshl_b32 s{sT1}, s{sW}, {4+FS}\nv_lshl_add_u32 v{kc.vQA}, v{kc.vQA}, {FS}, s{sT1}")
        P.extend(kc.qpoll(0))
        for i in range(cfg.get('WDC',6)): P.extend(wd.pop(0))
        stamp(P,20,diag)
        kc.poll_check(P,'fx0',vPV=kc.vQV)
        P.I("s_barrier")
        stamp(P,21,diag)
        C.pre(P,cfg.get('QPRE',5)); P.extend(kc.qpoll(1)); C.pre(P,99)
    else:
        P.I(f"buffer_load_dword v{vFV}, v{vFA}, {sp(rWS,4)}, s{sFXi} offen sc1")
        if FW: C.pre(P,8*G1-cfg.get('WPA',8),'w')
        for i in range(cfg.get('WDC',0 if FW else 6)): P.extend(wd.pop(0))
        stamp(P,20,diag)
        kc.poll_check(P,'fx',vPV=vFV)
        if FA:
            for i in range(4): P.I(f"v_mov_b32 v{8+i}, s{sTAG}")
            P.I(f"s_cmp_lg_u32 s{sW}, 3\n@wait auxst")
        P.I("s_barrier")
        if FA: P.extend(["s_cbranch_scc1 L_nofa"]+line(sFWo,8,rWJ)+["L_nofa:"])
        stamp(P,21,diag)
        C.pre(P,cfg.get('PRE',12 if FW else 16))
    if diag: P.I(f"v_writelane_b32 v255, s{kc.sCNT}, 63")
    D=kc.PhaseD(P,cfg,diag,wd)
    D.run(*C.run(P,diag,wd,[],D))
    if diag: P.I(f"v_writelane_b32 v255, s{kc.sCNT}, 30")
    if diag: P.I("s_getreg_b32 s4, hwreg(HW_REG_XCC_ID)\ns_and_b32 s4, s4, 15\nv_writelane_b32 v255, s4, 10")
    stamp(P,18,diag); stamp_out(P,0,diag)
    if cfg.get('DBGOUT') is not None:
        P.I(f"""s_cmp_ge_u32 s2, 8
s_cbranch_scc1 L_{NAME}_exit
s_cmp_lg_u32 s{sW}, 0
s_cbranch_scc1 L_{NAME}_exit
s_load_dwordx2 s[4:5], s[0:1], 128
v_readlane_b32 s6, v255, {cfg['DBGOUT']}
s_getreg_b32 s7, hwreg(HW_REG_XCC_ID)
s_and_b32 s7, s7, 15
s_and_b32 s6, s6, 0xffff
v_mov_b32 v4, s6
v_mov_b32 v5, s7
s_lshl_b32 s6, s2, 2
v_mov_b32 v6, s6
s_waitcnt lgkmcnt(0)
s_mov_b64 exec, 1
global_store_dword v6, v4, s[4:5]
global_store_dword v6, v5, s[4:5] offset:32""")
    P.I(f"@nomore\nL_{NAME}_exit:\ns_endpgm")
    loc=cfg.get('LOC',0)==1
    mk=cfg.get('RMASK',0)
    ka.retry_block(P,loc,mk); ka.retry2_block(P,loc,mk)
    kc.poll_retry(P,'fd',0,vFV,vFA,sFDi,loc,mk);
    if QS:
        for q in range(4): kc.poll_retry(P,f'fx{q}',0,kc.vQV,kc.vQA,kc.sQP,loc)
    else: kc.poll_retry(P,'fx',0,vFV,vFA,sFXi,loc,mk)
    if FW: kc.poll_retry(P,'fw',0,vFV,vFB,sFWi,loc)
    if FA: kc.poll_retry(P,'fa',0,15,248,sFWi,loc)
    for s_ in range(len(kc.d_parts(cfg))):
        if s_ and cfg.get('SPOLL',0): kc.spoll_retry(P,f'p{s_}',s_)
        else: kc.poll_retry(P,f'p{s_}',128*s_)
    return [(NAME,256,256,kc.LDS_C,512)]
```

```python
import sys, json
sys.path.insert(0,'gen')
from prog import *
import ka, kc, mega
REF='adaLN_cond__ssm_conv_s4__geglu_ffn__prompt.s.ref'
DOC="""; ---------------------------------------------------------------------------------------------------------------
; ---------------------------------------------------------------------------------------------------------------
"""
def kdesc(k,vg):
    return f""".p2align 6
.amdhsa_kernel {k}
  .amdhsa_next_free_vgpr {vg}
  .amdhsa_next_free_sgpr 102
  .amdhsa_accum_offset {min(vg,256)}
  .amdhsa_group_segment_fixed_size 0
  .amdhsa_kernarg_size 144
  .amdhsa_user_sgpr_count 2
  .amdhsa_user_sgpr_kernarg_segment_ptr 1
  .amdhsa_system_sgpr_workgroup_id_x 1
  .amdhsa_float_denorm_mode_32 3
.end_amdhsa_kernel"""
def build(out, cfg, diag=False, verbose=False):
    cfg=dict(json.load(open('best.json')),**cfg)
    P=Prog()
    L = mega.build(P,diag,cfg)
    if cfg.get('empty'):
        P.I(".globl e_kernel\n.p2align 8\n.type e_kernel,@function\ne_kernel:\n@reset\ns_endpgm")
        E=[('e_kernel',256,256,0,32)]*cfg['empty']
        L = E+L if cfg.get('empty_first') else L+E
    if cfg.get('probe'):
        ib,stat,mask,val,mul=cfg['probe'][:5]; pm=(cfg['probe']+[''])[5]
        from layout import WS_STAMP
        P.I(f""".globl m_kernel
.p2align 8
.type m_kernel,@function
m_kernel:
@reset
s_cmp_lg_u32 s2, 0
s_cbranch_scc1 L_m_exit
s_load_dwordx2 s[4:5], s[0:1], 136
s_waitcnt lgkmcnt(0)
s_add_u32 s4, s4, {WS_STAMP}
s_addc_u32 s5, s5, 0
s_load_dword s16, s[4:5], 0
v_lshlrev_b32 v1, 10, v0
global_load_dword v2, v1, s[4:5]
global_load_dword v3, v1, s[4:5] offset:{ib*4}
v_mov_b32 v4, 0
v_mov_b32 v5, -1
v_mov_b32 v6, {0 if stat!='min' else -1}
ds_write_b32 v4, v5
ds_write_b32 v4, v6 offset:4
s_waitcnt vmcnt(0) lgkmcnt(0)
s_barrier
s_sub_u32 s16, s16, 1000
{'s_mov_b32 s16, 0' if pm else ''}
v_subrev_u32 v2, s16, v2
v_subrev_u32 v3, s16, v3
{'ds_min_u32 v4, v2' if not pm else 'ds_min_u32 v4, v4' if pm=='raw' else ''}
v_and_b32 v7, {mask}, v0
v_cmp_eq_u32 vcc, {val}, v7
s_and_saveexec_b64 s[18:19], vcc
{dict(min='ds_min_u32',max='ds_max_u32',avg='ds_add_u32',sum='ds_add_u32')[stat]} v4, v3 offset:4
{'ds_min_u32 v4, v3' if pm=='self' else ''}
s_mov_b64 exec, s[18:19]
s_waitcnt lgkmcnt(0)
s_barrier
ds_read_b64 v[8:9], v4
s_waitcnt lgkmcnt(0)
v_readfirstlane_b32 s14, v8
v_readfirstlane_b32 s15, v9
s_lshr_b32 s15, s15, {(8-bin(mask).count('1')) if stat=='avg' else 0}
s_sub_u32 s6, s15, s14
s_min_u32 s6, s6, 5000
s_mul_i32 s6, s6, {mul}
s_memrealtime s[10:11]
s_waitcnt lgkmcnt(0)
L_m_spin:
s_memrealtime s[12:13]
s_waitcnt lgkmcnt(0)
s_sub_u32 s12, s12, s10
s_cmp_lt_u32 s12, s6
s_cbranch_scc1 L_m_spin
L_m_exit:
s_endpgm""")
        L=L+[('m_kernel',1,256,64,32)]
    P.insert_waits(); nn=P.insert_nops(verbose); bad=align8(P)
    if cfg.get('TOUCH',1): print('pages touched', page_touch(P,'L_page',['L_touched']))
    gap_report(P,'c1','c2'); gap_report(P,'c2','end'); gap_report(P,'d','end',*(('16x16x32',2) if cfg.get('M16') else ()))
    size=sum(x.size for x in P.ins)
    print(f'{out}: {len(P.ins)} lines, {size} bytes, nop states {nn}, misaligned 8B {bad}')
    hdr=[l for l in open(REF).read().split('\n') if l.startswith(';') and '@launch' not in l and 'Override launch' not in l and 'grid=ceil' not in l]
    hdr+=[f"; @launch {'kernel='+k+' ' if len(L)>1 else ''}grid=({g},1,1) block=({b},1,1) lds={l}" for k,g,b,l,v in L]
    tw=ka.table_words()
    tab='\n.p2align 8\n.type L_table,@object\nL_table:\n'+'\n'.join('.long '+','.join(hex(w) for w in tw[i:i+8]) for i in range(0,len(tw),8))
    pad = max(0,(33*1024-size-4*len(tw))//4)
    tab+=f'\n.fill {pad}, 4, 0\n.size L_table, {4*len(tw)+4*pad}'
    txt='\n'.join(hdr)+'\n.amdgcn_target "amdgcn-amd-amdhsa--gfx950"\n'+DOC+'.text\n'+P.text()+tab+'\n.section .rodata,"a"\n'+'\n'.join(dict.fromkeys(kdesc(k,v) for k,g,b,l,v in L))+'\n'
    open(out,'w').write(txt)
if __name__=='__main__':
    out=sys.argv[1]; cfg=json.loads(sys.argv[2]) if len(sys.argv)>2 else {}
    build(out,cfg,diag=cfg.get('diag',False),verbose=cfg.get('verbose',False))
```

```python
from prog import *
from layout import *
import struct
def f32(x): return struct.unpack('<I',struct.pack('<f',x))[0]
LOG2E = 0x3fb8aa3b
XIN = 0
sX,sARE,sAIM,sBRE,sBIM,sCRE,sCIM,sLDT,sDSK,sBX,sWG,sWU,sWD,sC,sWM,sOUT,sDBG,sWS = [8+2*i for i in range(18)]
rR,rWG,rWU,rWD,rOUT,rWS,rWJ = 44,48,52,56,60,64,68
sXCD,sIDX,sP,sW,sTAG,sLD,sDS = 72,73,74,75,76,77,78
sT0,sT1,sT2,sT3,sT4,sT5 = 80,81,82,83,84,85
sWO,sWST,sWA = 86,87,88
sCG,sKE,sFS,sCNT = 26,27,97,98
def sp(a,n=2): return f"s[{a}:{a+n-1}]"
def vr(a,n): return f"v[{a}:{a+n-1}]"
def ar(a,n): return f"a[{a}:{a+n-1}]"
def mksrd(d,b,size):
    return [f"s_mov_b32 s{d}, s{b}", f"s_and_b32 s{d+1}, s{b+1}, 0xffff", f"s_mov_b32 s{d+2}, {size}", f"s_mov_b32 s{d+3}, 0x20000"]
vLANE = 1
vT16,vMC,vMW = 12,13,14
vPAR = 16
vTAB = 24
vRA = 32
vROLE = 40
vFG = 120
vPOLL = 160
vPOL2 = 152
vXF = 192
vHF = 208
vKA,vUA,vYW,vYR,vWRA,vXO,vGR,vL16 = 224,225,226,227,228,229,230,231
vMOD = 232
vKF,vKC,vGW,vSEL1,vSEL2 = 240,241,242,243,244

ONLY=None
import os
LATE0=int(os.environ.get('LATE0','0'))
JIT=os.environ.get('JIT','')
def stamp(P, n, diag):
    if JIT:
        P.I(f"s_waitcnt lgkmcnt(0)\ns_memtime s[100:101]\ns_waitcnt lgkmcnt(0)\ns_cselect_b32 s5, 1, 0\ns_lshr_b32 s100, s100, 3\ns_and_b32 s100, s100, {JIT}\ns_cbranch_scc1 L_jit{len(P.ins)}\ns_sleep 40\nL_jit{len(P.ins)}:\ns_cmp_lg_u32 s5, 0")
    if diag and (ONLY is None or n in ONLY): P.I(f"s_memrealtime s[4:5]\ns_memtime s[100:101]\ns_waitcnt lgkmcnt(0)\nv_writelane_b32 v255, s4, {n}\nv_writelane_b32 v255, s100, {32+n}")
def stamp0_issue(P, diag):
    if diag: P.I("v_mov_b32 v255, 0\ns_memrealtime s[4:5]\ns_memtime s[100:101]")
def stamp0_commit(P, diag):
    if diag: P.I("v_writelane_b32 v255, s4, 0\nv_writelane_b32 v255, s100, 32")
def stamp_out(P, kidx, diag):
    if diag:
        P.I(f"""s_lshl_b32 s4, s2, 10
s_add_u32 s4, s4, {WS_STAMP + kidx*0x40000}
v_lshlrev_b32 v2, 2, v0
buffer_store_dword v255, v2, {sp(rWS,4)}, s4 offen""")

def bf16_round(l):
    u=f32(float(l)); u=(u+0x7fff+((u>>16)&1))&0xffff0000
    return int(struct.unpack('<f',struct.pack('<I',u))[0])
def table_words():
    rec=[]
    for T in range(256):
        a=[]
        for j in range(11):
            lag=2047-8*T-j
            if lag<0: a.append(L_CZ); continue
            lam=bf16_round(lag); b=(lam>>3)&15; i=HI.index(lam-8*b)
            a.append(L_C+i*CP+4*b)
        a.append(0)
        w=T>>6; lane=T&63; ch=w>>1; vh=w&1
        ka_=L_KI+ch*4*KIP+(lane&3)*KIP+2*(2044-16)-3584-192-256*vh+(lane&48)-2*(lane&12)
        ua_=L_H+ch*HP+448-192-256*vh+32*(lane&15)+(lane&48)
        rec.append([a[2*k]|(a[2*k+1]<<16) for k in range(6)]+[ka_,ua_])
    return [rec[T][4*q+k] for q in range(2) for T in range(256) for k in range(4)]

def entry(P, name, diag, nlines, perm):
    P.I(f".globl {name}\n.p2align 8\n.type {name},@function\n{name}:\n@reset")
    ng=(nlines+15)//16; assert ng&(ng-1)==0 and ng<=32
    if LATE0: P.I(f"s_and_b32 s4, s2, 7\ns_cbranch_scc1 L_nolate\ns_sleep {LATE0}\nL_nolate:")
    P.I(f"""s_cmp_ge_u32 s2, 256
s_cbranch_scc1 L_{name}_exit
s_load_dwordx16 s[8:23], s[0:1], 0
s_load_dwordx16 s[24:39], s[0:1], 64
s_load_dwordx4 s[40:43], s[0:1], 128
s_getpc_b64 s[6:7]
L_pc:
s_mov_b64 exec, -1
v_lshrrev_b32 v2, 6, v0
v_and_b32 v{vLANE}, 63, v0
s_lshr_b32 s{sIDX}, s2, 3
v_readfirstlane_b32 s{sW}, v2
s_and_b32 s{sT0}, s{sIDX}, {ng-1}
s_lshl_b32 s{sT0}, s{sT0}, 11
v_lshl_add_u32 v3, v{vLANE}, 5, s{sT0}
s_cmp_lg_u32 s{sW}, 3
s_cbranch_scc1 L_nopf
global_load_dword v15, v3, s[6:7]
L_nopf:""")
    stamp0_issue(P,diag)
    P.I(f"s_and_b32 s{sXCD}, s2, 7")
    if perm: P.I(f"s_lshl_b32 s{sXCD}, s{sXCD}, 2\ns_lshr_b32 s{sXCD}, {hex(sum(v<<(4*k) for k,v in enumerate(perm)))}, s{sXCD}\ns_and_b32 s{sXCD}, s{sXCD}, 7")
    P.I(f"""s_lshl_b32 s{sP}, s{sXCD}, 5
s_add_u32 s{sP}, s{sP}, s{sIDX}""")

def role_addr(P, loc=0):
    P.I(f"""s_cmp_eq_u32 s{sW}, 0
s_cselect_b32 s{sT3}, 8, 1
s_lshl_b32 s{sT2}, s{sT3}, 10
s_lshl_b32 s{sT3}, s{sT3}, 7
s_and_b32 s{sT4}, s{sP}, 7
s_lshl_b32 s{sT4}, s{sT4}, 7""")
    if loc: P.I(f"s_lshl_b32 s{sT0}, s{sIDX}, 9\ns_add_u32 s{sT0}, s{sT0}, s{sXCD}\ns_lshl_b32 s{sT0}, s{sT0}, 7")
    else: P.I(f"s_lshr_b32 s{sT0}, s{sP}, 3\ns_lshl_b32 s{sT0}, s{sT0}, 16\ns_add_u32 s{sT0}, s{sT0}, s{sT4}")
    P.I(f"""s_lshl_b32 s{sT1}, s{sP}, 13
s_cmp_eq_u32 s{sW}, 0
s_cselect_b32 s{sT0}, s{sT0}, s{sT1}
s_and_b32 s{sT5}, s{sW}, 1
s_sub_u32 s92, 7, s{sT5}
s_lshr_b32 s{sT1}, s{sP}, s92
s_lshl1_add_u32 s{sT1}, s{sT5}, s{sT1}
s_lshl_b32 s{sT1}, s{sT1}, 10
s_add_u32 s{sT4}, s{sT4}, s{sT1}
s_and_b32 s{sT1}, s{sP}, 0xf8
s_add_u32 s92, s{sT5}, 2
s_lshl_b32 s{sT1}, s{sT1}, s92
s_and_b32 s{sT5}, s{sT1}, 511
s_mul_i32 s{sT1}, s{sT5}, 6144
s_add_u32 s{sT1}, s{sT1}, s{sT4}
s_mov_b32 s{sT4}, 3145728
s_cmp_lt_u32 s{sW}, 2
s_cselect_b32 s94, s{sT0}, s{sT1}
s_cselect_b32 s{sT2}, s{sT2}, 6144
s_cselect_b32 s79, s{sT3}, {8*6144}
s_cselect_b32 s{rR+2}, 2097152, s{sT4}
s_mov_b32 s{rR+3}, 0x20000
v_lshrrev_b32 v3, 3, v{vLANE}
v_mul_u32_u24 v3, s{sT2}, v3
v_lshrrev_b32 v4, 2, v{vLANE}
v_and_b32 v4, 4, v4
v_and_b32 v5, 7, v{vLANE}
v_xor_b32 v4, v4, v5
v_lshl_add_u32 v22, v4, 4, v3
v_xor_b32 v23, 32, v22
s_lshl_b32 s3, s{sW}, 13
s_add_u32 s3, s3, {L_RR}
v_add_u32 v5, s{sT5}, v{vLANE}
v_and_b32 v5, 511, v5
v_lshlrev_b32 v5, 1, v5
s_lshl_b32 s{sT5}, s{sP}, 9
v_lshl_add_u32 v2, v0, 1, s{sT5}""")
    for i in range(6): P.I(f"v_mov_b32 v{vPAR+i}, 0")
    P.I(f"v_mov_b32 v{vROLE}, 0\ns_lshl_b32 s93, s{sP}, 2")
def param_loads(P, NT):
    P.extend([f"global_load_short_d16_hi v{vPAR+i}, v2, {sp(b)} {NT}" for i,b in enumerate((sARE,sAIM,sBRE,sBIM,sCRE,sCIM))])
def early_loads(P, NT, pfirst):
    if pfirst: param_loads(P,NT)
    P.I(f"""s_load_dword s{sTAG}, {sp(sWS)}, {WS_EPOCH}
s_load_dword s{sLD}, {sp(sLDT)}, s93
s_load_dword s{sDS}, {sp(sDSK)}, s93
s_cmp_lt_u32 s{sW}, 2
s_cselect_b64 {sp(rR)}, {sp(sX)}, {sp(sWM)}
s_and_b32 s{rR+1}, s{rR+1}, 0xffff""")
    P.I(f"global_load_short_d16_hi v{vROLE}, v5, {sp(sC)}")
    P.I(f"""s_add_u32 s6, s6, L_table-L_pc+4096
s_addc_u32 s7, s7, 0
v_lshlrev_b32 v{vT16}, 4, v0""")
def role_loads(P, XNT, late, sd=0):
    lbl='L_rlb' if late else 'L_rla'
    P.I(f"s_cmp_eq_u32 s{sW}, 3\ns_cbranch_scc{0 if late else 1} {lbl}")
    if sd and not late:
        P.I(f"s_cmp_lg_u32 s{sW}, 1\ns_cbranch_scc1 L_rl0")
        for u in range(8): P.I(f"buffer_load_dwordx4 {vr(vROLE+40+4*u,4)}, v22, {sp(rR,4)}, s94 offen offset:{u*128} {XNT}")
        P.I("@forget "+" ".join(str(r) for r in range(vROLE+40,vROLE+72))+f"\ns_branch {lbl}\nL_rl0:")
    for u in range(8):
        if u==4 and not late: P.I(f"s_cmp_eq_u32 s{sW}, 2\ns_cbranch_scc1 {lbl}")
        P.I(f"s_add_u32 m0, s3, {u*1024}")
        P.I(f"s_add_u32 s94, s94, s79" if u else "s_nop 0")
        P.I(f"buffer_load_dwordx4 v{22+(u&1)}, {sp(rR,4)}, s94 offen {XNT} lds", tag='rr')
    P.I(f"{lbl}:")
def table_loads(P):
    P.I(f"global_load_dwordx4 {vr(vTAB,4)}, v{vT16}, s[6:7] offset:-4096\nglobal_load_dwordx4 {vr(vTAB+4,4)}, v{vT16}, s[6:7]")

def setup(P, nowd=False, X='', wmap=0, defer=0):
    D=Prog() if defer else P; P0=P
    P.extend(mksrd(rWS,sWS,WS_USED))
    P.I(f"{f's_cmp_lg_u32 s{sXCD}, 0' if wmap>=2 else f's_cmp_lt_u32 s{sIDX}, 28'}\ns_cselect_b32 s{sT0}, 1835008, 0\ns_cselect_b32 s{sT1}, {WS_USED}, 0")
    P.extend(mksrd(rWD,sWD,f"s{sT0}"))
    for r,b in ((rWG,sWG),(rWU,sWU)): D.extend(mksrd(r,b,f"s{rWD+2}"))
    P.extend(mksrd(rWJ,sWS,f"s{sT1}"))
    if 'w' in X: P.I(f"s_mov_b32 s{rWG+2}, 0\ns_mov_b32 s{rWU+2}, 0")
    if 'm' in X: P.I(f"s_mov_b32 s{rR+2}, 0")
    if 'd' in X: P.I(f"s_mov_b32 s{rWD+2}, 0")
    if 's' in X: P.I(f"s_min_u32 s{rWJ+2}, s{rWJ+2}, {WS_XG}")
    assert not (defer and (wmap>=2 or X))
    P=D
    if wmap>=2:
        P.I(f"s_max_u32 s{sFS}, s{sP}, 32\ns_sub_u32 s{sFS}, s{sFS}, 32")
        if wmap==2: P.I(f"s_lshr_b32 s{sCG}, s{sFS}, 3\ns_and_b32 s{sKE}, s{sFS}, 7")
        else: P.I(f"s_mul_i32 s{sKE}, s{sFS}, 586\ns_lshr_b32 s{sKE}, s{sKE}, 14\ns_mul_i32 s{sCG}, s{sKE}, 28\ns_sub_u32 s{sCG}, s{sFS}, s{sCG}")
    elif wmap: P.I(f"s_mov_b32 s{sCG}, s{sIDX}\ns_mov_b32 s{sKE}, s{sXCD}")
    else: P.I(f"""s_and_b32 s{sCG}, s{sXCD}, 3
s_mul_i32 s{sCG}, s{sCG}, 7
s_lshr_b32 s{sT0}, s{sIDX}, 2
s_add_u32 s{sCG}, s{sCG}, s{sT0}
s_and_b32 s{sKE}, s{sXCD}, 4
s_and_b32 s{sT0}, s{sIDX}, 3
s_add_u32 s{sKE}, s{sKE}, s{sT0}""")
    P.I(f"""s_lshl2_add_u32 s{sT0}, s{sCG}, s{sW}
s_mul_i32 s{sT1}, s{sT0}, 147
s_lshr_b32 s{sT1}, s{sT1}, 10
s_mul_i32 s{sT2}, s{sT1}, 7
s_sub_u32 s{sT0}, s{sT0}, s{sT2}
s_mul_i32 s{sT1}, s{sT1}, 231
s_cmp_lt_u32 s{sT0}, {G1}
s_cselect_b32 s{sT2}, {G1}, 1
s_cselect_b32 s{sT3}, 1, 33
s_mul_i32 s{sT0}, s{sT0}, s{sT3}
s_add_u32 s{sT0}, s{sT0}, s{sT1}
s_lshl_b32 s{sT0}, s{sT0}, 10
s_add_u32 s{sT0}, s{sT0}, {WS_WPF}
s_lshl_b32 s{sWST}, s{sT2}, 10
s_mul_i32 s{sT3}, s{sWST}, s{sKE}
s_lshl2_add_u32 s{sWO}, s{sT3}, s{sT0}
s_lshl_b32 s{sT2}, s{sT2}, 15
s_add_u32 s{sWA}, s{sT2}, s{sT0}
s_lshl_b32 s{sT0}, s{sKE}, 7
s_add_u32 s{sWA}, s{sWA}, s{sT0}
s_mul_i32 s{sT0}, s{sKE}, {64*3584}
s_lshl_b32 s{sT1}, s{sCG}, 7
s_add_u32 s90, s{sT0}, s{sT1}""")
    P=P0
    L=vLANE
    P.I(f"""v_lshlrev_b32 v{vL16}, 4, v{L}
v_and_b32 v2, 15, v{L}
v_and_b32 v3, 48, v{L}
v_lshrrev_b32 v4, 4, v{L}
v_lshrrev_b32 v5, 5, v{L}
v_and_b32 v6, 3, v{L}
s_mul_i32 s{sT2}, s{sW}, 10240
s_add_u32 s{sT2}, s{sT2}, {L_Y}
v_mul_u32_u24 v7, 320, v4
v_lshl_add_u32 v7, v2, 4, v7
v_add_u32 v{vYW}, s{sT2}, v7
v_lshrrev_b32 v7, 5, v0
v_mul_u32_u24 v7, 1280, v7
v_and_b32 v8, 1, v0
v_mul_u32_u24 v9, 640, v8
v_bfe_u32 v10, v0, 1, 4
v_lshl_add_u32 v9, v10, 4, v9
v_add_u32 v{vYR}, v7, v9
v_lshrrev_b32 v7, 2, v0
{f"s_and_b32 s{sT2}, s{sP}, 7" if XIN else ""}
{f"v_xor_b32 v7, s{sT2}, v7" if XIN else ""}
v_lshlrev_b32 v7, {7 if XIN else 15}, v7
v_lshl_add_u32 v{vXO}, v6, 4, v7
v_mul_u32_u24 v7, {FP}, v2
v_add_u32 v7, v7, v3
v_add_u32 v{vKF}, {L_F}, v7
v_mul_u32_u24 v7, {CP}, v2
s_mul_i32 s{sT2}, s{sW}, {16*CP}
v_add3_u32 v{vKC}, v7, v3, s{sT2}
v_bfe_u32 v7, v{L}, 2, 2
v_cvt_f32_u32 v{vSEL2}, v5
v_and_b32 v9, 31, v{L}
v_lshlrev_b32 v{vMC}, 12, v9
v_and_b32 v9, 8, v{L}
v_lshl_add_u32 v9, v9, 1, v2
v_lshlrev_b32 v{vSEL1}, 12, v9
v_lshl_add_u32 v9, v5, 3, v6
v_bfe_u32 v10, v{L}, 2, 3
v_lshlrev_b32 v11, 4, v10
v_lshl_add_u32 v{vMW}, v9, 12, v11
s_lshl_b32 s{sT2}, s{sW}, 6
s_add_u32 s{sT2}, s{sT2}, {L_GT+256}
v_lshl_add_u32 v10, v10, 3, s{sT2}
v_lshlrev_b32 v11, 8, v5
v_sub_u32 v{vGW}, v10, v11
v_lshlrev_b32 v10, 5, v5
v_add_u32 v{vGR}, {L_GT}, v10
v_and_b32 v9, 1, v4
v_lshl_add_u32 v10, v9, 1, v5
v_lshl_add_u32 v10, v10, 3, v7
v_lshl_add_u32 v10, v10, 1, v9
v_bfe_u32 v11, v{L}, 3, 1
v_lshl_add_u32 v10, v10, 1, v11
v_xor_b32 v10, s{sW}, v10
v_lshl_add_u32 v10, v10, 1, v8
v_bfe_u32 v11, v{L}, 1, 1
v_lshl_add_u32 v10, v10, 1, v11
v_lshlrev_b32 v10, 3, v10
v_add_u32 v{vWRA}, {L_WR}, v10""")
    P.I(f"""v_mul_u32_u24 v7, {HP}, v5
v_and_b32 v9, 31, v{L}
v_min_u32 v9, 29, v9
v_lshl_add_u32 v7, v9, 4, v7
v_add_u32 v7, {L_H}, v7
v_cmp_gt_u32 vcc, 64, v0
v_mov_b32 v9, {L_CZ}
v_mov_b32 v{vFG}, 0
v_cndmask_b32 v7, v9, v7, vcc
v_mov_b32 v{vFG+1}, 0
v_mov_b32 v{vFG+2}, 0
v_mov_b32 v{vFG+3}, 0
ds_write_b128 v7, {vr(vFG,4)}""")
    A0=vRA
    P.I(f"""v_lshrrev_b32 v2, 3, v{L}
v_and_b32 v3, 2, v2
v_mul_u32_u24 v2, 3584, v2
v_and_b32 v4, 7, v{L}
v_xor_b32 v3, v3, v4
v_xor_b32 v4, 4, v3
v_lshl_add_u32 v{A0+2}, v3, 4, v2
v_lshl_add_u32 v{A0+3}, v4, 4, v2
v_and_b32 v8, 1, v{L}
v_bfe_u32 v7, v{L}, 1, 3
v_mul_u32_u24 v7, {KIP}, v7
v_lshl_add_u32 v7, v8, 4, v7
v_add_u32 v{A0+1}, {L_KI+4096}, v7
""")
    if not nowd: P.I(f"""v_lshrrev_b32 v2, 2, v{L}
v_and_b32 v5, 3, v{L}
v_lshlrev_b32 v5, 4, v5
v_lshl_add_u32 v{A0+4}, v2, 10, v5
v_lshrrev_b32 v6, 5, v{L}
v_and_b32 v7, 3, v2
v_lshl_add_u32 v6, v6, 3, v7
v_bfe_u32 v7, v{L}, 4, 1
v_lshl_add_u32 v6, v6, 1, v7
v_lshl_add_u32 v6, v6, 1, v8
v_bfe_u32 v7, v{L}, 1, 1
v_lshl_add_u32 v6, v6, 1, v7
v_lshlrev_b32 v6, 3, v6
v_add_u32 v{A0}, {L_DR}, v6
{"" if wmap>=2 else f"s_mul_i32 s{sFS}, s{sXCD}, 28"}
{"" if wmap>=2 else f"s_add_u32 s{sFS}, s{sFS}, s{sIDX}"}
s_lshr_b32 s{sT2}, s{sFS}, 1
s_lshl_b32 s{sT2}, s{sT2}, 14
s_and_b32 s{sT1}, s{sFS}, 1
s_lshl_b32 s{sT1}, s{sT1}, 9
s_add_u32 s91, s{sT2}, s{sT1}""")
    return [x.text for x in D.ins] if defer else []

def x_jobs(P, PUB, diag, loc=0):
    R=vROLE; G=vROLE+32; L=vLANE
    P.I(f"s_cmp_eq_u32 s{sW}, 2\ns_cbranch_scc1 L_rj2\ns_cmp_eq_u32 s{sW}, 1\ns_cbranch_scc1 L_rj1")
    P.I(f"""v_and_b32 v2, 7, v{L}
v_lshrrev_b32 v3, 3, v{L}
v_and_b32 v4, 2, v2
v_lshlrev_b32 v4, 1, v4
v_xor_b32 v4, v4, v3
v_lshlrev_b32 v4, 4, v4
v_lshl_add_u32 v4, v2, 7, v4
v_add_u32 v4, {L_RR}, v4
v_xor_b32 v5, 32, v4
v_mul_u32_u24 v3, {4*12288}, v3
v_lshl_add_u32 v2, v2, 4, v3
{f"s_mov_b32 s{sT0}, s{sXCD}" if loc else f"s_and_b32 s{sT0}, s{sP}, 7"}
s_mul_i32 s{sT0}, s{sT0}, {32*12288}
{f"s_lshl_b32 s{sT1}, s{sIDX}, 3" if loc else f"s_and_b32 s{sT1}, s{sP}, 0xf8"}
s_lshl4_add_u32 s{sT0}, s{sT1}, s{sT0}
s_add_u32 s{sT0}, s{sT0}, {WS_XG}""")
    if LB: epoch_sync(P); kgen_init(P,2)
    for k in range(12): P.I(f"v_mov_b32 v{G+4*k+3}, s{sTAG}")
    if diag and ONLY and 27 in ONLY:
        for z,cn in ((25,63),(24,16),(27,10),(28,6),(29,2)): P.I(f"s_waitcnt vmcnt({cn})"); stamp(P,z,diag)
    P.I(f"s_waitcnt vmcnt({JW})"); stamp(P,2,diag)
    for r in range(8): P.I(f"ds_read_b128 {vr(R+4*r,4)}, v{4+(r&1)} offset:{r*1024}")
    for g in range(3):
        for j in range(4):
            k=g*4+j
            for e in range(3):
                if 3*g+e<8: P.I(f"v_mov_b32 v{G+4*k+e}, v{R+4*(3*g+e)+j}")
            P.I(f"s_add_u32 s{sT1}, s{sT0}, {j*12288+g*4096}")
            P.I(f"buffer_store_dwordx4 {vr(G+4*k,4)}, v2, {sp(rWS,4)}, s{sT1} offen {'' if loc==1 else PUB}")
    P.I(f"s_waitcnt vmcnt(12)\ns_branch L_xje\nL_rj1:")
    P.I(f"""v_mov_b32 v2, 0
v_mov_b32 v3, 0
v_mov_b32 v4, 0
v_mov_b32 v5, 0
s_mov_b32 s{sT1}, 0x3f803f80
v_add_u32 v6, {L_RR+8192}, v{vL16}
v_mul_u32_u24 v8, 96, v{L}
v_lshlrev_b32 v9, {4 if SGP else 12}, v{L}
s_lshl_b32 s{sT0}, s{sP}, {SGP or 4}
s_add_u32 s{sT0}, s{sT0}, {WS_SG}""")
    if LB: epoch_sync(P)
    P.I(f"v_mov_b32 v{G+3}, s{sTAG}")
    if SD: R=vROLE+40
    else:
        P.I(f"s_waitcnt vmcnt({JW})"); stamp(P,2,diag)
        for u in range(8): P.I(f"ds_read_b128 {vr(R+4*u,4)}, v6 offset:{u*1024}")
    for k in range(32):
        if SD and k%8==0: P.I(f"s_waitcnt vmcnt({(8 if JW else 2)+6-k//4})")
        P.I(f"v_dot2c_f32_bf16 v{2+(k&1)}, s{sT1}, v{R+k}\nv_dot2c_f32_bf16 v{4+(k&1)}, v{R+k}, v{R+k}")
    P.I("v_add_f32 v2, v2, v3\nv_add_f32 v4, v4, v5")
    for m in ("quad_perm:[1,0,3,2]","quad_perm:[2,3,0,1]","row_half_mirror"):
        P.I(f"v_add_f32_dpp v2, v2, v2 {m} row_mask:0xf bank_mask:0xf\nv_add_f32_dpp v4, v4, v4 {m} row_mask:0xf bank_mask:0xf")
    P.I(f"""v_mul_f32 v2, 0x3b000000, v2
v_mul_f32 v4, 0x3b000000, v4
v_fma_f32 v4, -v2, v2, v4
v_max_f32 v4, 0, v4
v_cvt_pk_bf16_f32 v4, v4, v4
v_and_b32 v4, 0xffff0000, v4
v_add_f32 v4, 0x3727c5ac, v4
v_cvt_pk_bf16_f32 v4, v4, v4
v_and_b32 v4, 0xffff0000, v4
v_sqrt_f32 v4, v4
v_cvt_pk_bf16_f32 v2, v2, v4
ds_bpermute_b32 v{G}, v8, v2
ds_bpermute_b32 v{G+1}, v8, v2 offset:32
ds_bpermute_b32 v{G+2}, v8, v2 offset:64
s_waitcnt lgkmcnt(0)
s_mov_b64 exec, {(1<<(1<<(SGP-4)))-1 if SGP else 7}
buffer_store_dwordx4 {vr(G,4)}, v9, {sp(rWS,4)}, s{sT0} offen {PUB}
s_mov_b64 exec, -1
s_waitcnt vmcnt(1)
s_branch L_xje
{".p2align 12" if PG0 else ""}
{"L_page:" if PG0 else ""}
L_rj2:""")
    mod_job(P,PUB,diag,1)
    P.I("s_waitcnt vmcnt(1)")
    P.I("L_xje:")
def mod_job(P, PUB, diag, nks):
    R=vROLE; L=vLANE; A0=vRA; w=nks+1
    assert L_MR%128==0
    P.I(f"""v_lshrrev_b32 v2, 4, v{L}
v_bfe_u32 v3, v{L}, 2, 2
v_lshl_add_u32 v4, v2, 3, v3
v_bfe_u32 v3, v{L}, 3, 1
v_lshl_add_u32 v4, v4, 1, v3
v_and_b32 v3, 1, v2
v_lshl_add_u32 v4, v4, 1, v3
v_and_b32 v3, 3, v{L}
v_lshl_add_u32 v4, v4, 2, v3
v_lshlrev_b32 v4, 3, v4
v_add_u32 v8, {L_RR+w*8192}, v4
v_xor_b32 v9, 32, v8
v_xor_b32 v10, 64, v8
v_xor_b32 v11, 96, v8
v_bfe_u32 v4, v{L}, 1, 2
v_lshl_add_u32 v4, v4, 2, v2
v_and_b32 v3, 1, v{L}
v_lshl_add_u32 v4, v4, 1, v3
v_lshlrev_b32 v{A0+5}, 4, v4
s_mov_b32 s{sT0}, {L_SC+(w-2)*128}
v_lshl_add_u32 v6, v{L}, 1, s{sT0}
v_and_b32 v7, 48, v{L}
v_add_u32 v7, s{sT0}, v7
s_lshl_b32 s{sT0}, s{sP}, 9
s_add_u32 s99, s{sT0}, {WS_MG+(w-2)*0x20000}
s_mov_b32 s{sT0}, 0xaaaaaaaa
s_mov_b32 s{sT1}, 0xaaaaaaaa
s_mov_b32 s{sT2}, 0xcccccccc
s_mov_b32 s{sT3}, 0xcccccccc
s_mov_b32 s{sT4}, 0xf0f0f0f0
s_mov_b32 s{sT5}, 0xf0f0f0f0""")
    if nks==1 and LB: epoch_sync(P)
    if nks==1: P.I(f"s_waitcnt vmcnt({12 if JW else 6})")
    P.I(f"""v_mul_f32 v4, 0xbfb8aa3b, v{R}
v_exp_f32 v4, v4
v_add_f32 v4, 1.0, v4
v_rcp_f32 v4, v4
v_mul_f32 v2, v{R}, v4
v_cvt_pk_bf16_f32 v2, v2, v2
ds_write_b16 v6, v2""")
    for ks in range(nks): P.I(f"ds_read_b128 {vr(R+4*ks,4)}, v7 offset:{ks*64}")
    P.I(f"s_waitcnt vmcnt({JW})" if nks==1 else "@wait rr"); stamp(P,2,diag)
    A=R+16; ACC=R+16+32
    seq=[(ks,ct) for ks in range(nks) for ct in range(4)]
    for n,(ks,ct) in enumerate(seq):
        for hf in range(2): P.I(f"ds_read_b64_tr_b16 {vr(A+4*n+2*hf,2)}, v{8+ct} offset:{ks*4096+hf*512}")
    for n,(ks,ct) in enumerate(seq):
        P.I(f"v_mfma_f32_16x16x32_bf16 {vr(ACC+4*ct,4)}, {vr(A+4*n,4)}, {vr(R+4*ks,4)}, {vr(ACC+4*ct,4) if ks else 0}")
    P.I(f"v_mov_b32 v{R+3}, s{sTAG}")
    for ct in range(4):
        for e in range(2): P.I(f"v_cndmask_b32 v{A+2*ct+e}, v{ACC+4*ct+e}, v{ACC+4*ct+2+e}, {sp(sT0)}")
    for c2 in range(2):
        for e in range(2): P.I(f"v_cndmask_b32 v{A+8+2*c2+e}, v{A+4*c2+e}, v{A+4*c2+2+e}, {sp(sT2)}")
    for e in range(2): P.I(f"v_cndmask_b32 v{R+e}, v{A+8+e}, v{A+10+e}, {sp(sT4)}")
    P.I(f"""s_mov_b32 exec_lo, 0x00ff00ff
s_mov_b32 exec_hi, 0x00ff00ff
buffer_store_dwordx4 {vr(R,4)}, v{A0+5}, {sp(rWS,4)}, s99 offen {PUB}
s_mov_b64 exec, -1""")
def raw_wd_loads(P, NT):
    P.I(f"s_lshl_b32 s{sT0}, s{sW}, 11\ns_lshl_b32 s{sT1}, s{sW}, 7\ns_add_u32 m0, s{sT0}, {L_DR}\ns_add_u32 s{sT1}, s{sT1}, s91")
    P.I(f"buffer_load_dwordx4 v{vRA+4}, {sp(rWD,4)}, s{sT1} offen {NT} lds", tag='dr')
    P.I(f"s_add_u32 m0, s{sT0}, {L_DR+1024-64}\nv_add_u32 v245, s{sT0}, v{vRA}")
    P.I(f"buffer_load_dwordx4 v{vRA+4}, {sp(rWD,4)}, s{sT1} offen offset:64 {NT} lds", tag='dr')
PRE_S=0
def wd_scalars(d):
    return f"""s_and_b32 s{d}, s{sFS}, 1
s_lshl2_add_u32 s{d}, s{d}, s{sW}
s_mul_i32 s{d}, s{d}, {2*112}
s_lshr_b32 s{d+1}, s{sFS}, 1
s_add_u32 s{d}, s{d}, s{d+1}
s_lshl_b32 s{d}, s{d}, 10
s_add_u32 s{d}, s{d}, {WS_WDF}
s_add_u32 s{d+1}, s{d}, {112*1024}""".split('\n')
def w_scalars(): return [f"s_mul_i32 s95, s{sW}, {16*3584}", "s_add_u32 s95, s95, s90", f"s_lshl_b32 s96, s{sW}, 12"]
def wd_job(P, ST):
    A=vHF+8; d=22 if PRE_S else sT0
    P.I("@wait dr")
    for f in range(2):
        for hf in range(2): P.I(f"ds_read_b64_tr_b16 {vr(A+4*f+2*hf,2)}, v245 offset:{f*1024+hf*256}")
    if not PRE_S: P.extend(wd_scalars(d))
    for f in range(2):
        P.I(f"buffer_store_dwordx4 {vr(A+4*f,4)}, v{vL16}, {sp(rWJ,4)}, s{d+f} offen {ST}", tag='wdst')
def raw_w_loads(P, NT):
    if not PRE_S: P.extend(w_scalars())
    for q in range(2):
        for mat,r in ((0,rWG),(1,rWU)):
            P.I(f"s_add_u32 m0, s96, {L_WR+mat*2048+q*1024}")
            P.I(f"s_add_u32 s95, s95, {8*3584}" if (q and not mat) else "s_nop 0")
            P.I(f"buffer_load_dwordx4 v{vRA+2+mat}, {sp(r,4)}, s95 offen {NT} lds", tag='wr')

def cmul(o,a,b,t):
    return [f"v_pk_mul_f32 {vr(t,2)}, {vr(a,2)}, {vr(b,2)} op_sel_hi:[0,1]",
            f"v_pk_fma_f32 {vr(o,2)}, {vr(a,2)}, {vr(b,2)}, {vr(t,2)} op_sel:[1,1,0] op_sel_hi:[1,0,1] neg_lo:[1,0,0]"]
def factor_gen(P, lo=0, hi=99, grp=1, fill=None):
    B=vFG; are,aim,bre,bim,cre,cim=[vPAR+i for i in range(6)]
    R1,R8,R128,LOc,TMP,PK = B,B+2,B+4,B+6,B+8,B+12
    Pc=[B+16+2*c for c in range(8)]
    zr,zi,dt=B+32,B+33,B+34; M=[2,4,6]; PH=[8,9,10]
    if lo: P.I("s_mov_b32 m0, s92")
    else: P.I(f"s_lshr_b32 s{sT0}, s{sW}, 1\ns_mul_i32 s{sT1}, s{sT0}, {64*FP-512}\ns_lshl_b32 s{sT2}, s{sW}, 8\ns_add_u32 m0, s{sT1}, s{sT2}"+("\ns_mov_b32 s92, m0" if hi<57 else ""))
    P0=P
    if lo: P=Prog()
    P.I(f"""s_lshl_b32 s{sT0}, s{sT0}, 4
s_lshr_b32 s{sT1}, s{sLD}, s{sT0}
s_lshl_b32 s{sT1}, s{sT1}, 16
v_mov_b32 v{dt}, {hex(LOG2E)}
v_mul_f32 v{dt}, s{sT1}, v{dt}
v_exp_f32 v{dt}, v{dt}""")
    P.extend(cmul(Pc[0],cre,bre,TMP))
    P.I(f"""v_cvt_pk_bf16_f32 v{dt}, v{dt}, v{dt}
v_and_b32 v{dt}, 0xffff0000, v{dt}
v_mul_f32 v{zr}, v{dt}, v{are}
v_mul_f32 v{zi}, v{dt}, v{aim}
v_mul_f32 v{zr}, {hex(LOG2E)}, v{zr}
v_mul_f32 v{zi}, 0.15915494, v{zi}
v_pk_mul_f32 {vr(Pc[0],2)}, {vr(Pc[0],2)}, {vr(dt,2)} op_sel_hi:[1,0] neg_hi:[1,0]""")
    cx=((R1,1,True),(R8,8,False),(R128,128,True))
    for (o,sc,cj),m,ph in zip(cx,M,PH):
        if sc==1: P.I(f"v_exp_f32 v{m}, v{zr}\nv_fract_f32 v{ph}, v{zi}")
        else: P.I(f"v_mul_f32 v{m}, {hex(f32(sc))}, v{zr}\nv_mul_f32 v{ph}, {hex(f32(sc))}, v{zi}\nv_exp_f32 v{m}, v{m}\nv_fract_f32 v{ph}, v{ph}")
        P.I(f"v_cos_f32 v{o}, v{ph}\nv_sin_f32 v{o+1}, v{ph}")
    for (o,sc,cj),m,ph in zip(cx,M,PH):
        P.I(f"v_pk_mul_f32 {vr(o,2)}, {vr(o,2)}, {vr(m,2)} op_sel_hi:[1,0]" + (" neg_hi:[1,0]" if cj else ""))
    P=P0
    steps_lo=[('one',48),('put',49,R8)]+[('mul',48+b,LOc,(R8 if b==2 else LOc),R8) for b in range(2,16)]
    steps_hi=[('put',0,Pc[0])]+[('mul',c,Pc[c],Pc[c-1],R1) for c in range(1,8)]
    row=8
    for e in range(1,17):
        cs = range(8) if e<2 else range(0,8,2) if e<4 else (0,4) if e<8 else (0,)
        for c in cs:
            assert HI[row]==128*e+c
            steps_hi.append(('mul',row,Pc[c],Pc[c],R128)); row+=1
    fill=fill if fill is not None else []; pend=[]
    def sz(t):
        Q=[Ins(t)]; sizes(Q); return Q[0].size
    def flush():
        odd=False; n=len(pend)+1; slot=0
        for i,w in enumerate(pend):
            for _ in range(1 if i else 2):
                slot+=1
                if slot==n and ALN:
                    if fill and (sz(fill[0])==4)==odd: P.I(fill.pop(0))
                    elif odd: P.I("s_nop 0")
                elif fill: odd^=(sz(fill[0])==4); P.I(fill.pop(0))
            P.I(w)
        pend.clear()
    for k,s in enumerate(steps_lo+steps_hi):
        if not lo<=k<hi: continue
        kk=PK+(k&3)
        if s[0]=='one': P.I(f"v_mov_b32 v{kk}, 0x3f80")
        else:
            if s[0]=='mul': P.extend(cmul(s[2],s[3],s[4],TMP+2*(k&1)))
            P.I(f"v_cvt_pk_bf16_f32 v{kk}, v{s[2]}, v{s[2]+1}")
        pend.append(f"ds_write_addtid_b32 v{kk} offset:{L_F+s[1]*FP}")
        if len(pend)==grp: flush()
    flush()

vKH=156
LB=0; SD=0; M2H=0
def epoch_sync(P):
    P.I(f"s_waitcnt lgkmcnt(0)\ns_or_b32 s{sTAG}, s{sTAG}, 0x7f800000\ns_add_u32 s{sTAG}, s{sTAG}, 1\ns_or_b32 s{sTAG}, s{sTAG}, 0x7f800000\ns_barrier")
def kgen_init(P, part=0):
    ACC=vHF
    if part==1:
        P.I(f"s_mul_i32 s{sT2}, s{sW}, {16*FP}\nv_add_u32 v{vKH}, s{sT2}, v{vKF}")
        for r in range(8): P.I(f"v_mov_b32 v{ACC+r}, 0")
        return
    if part==2:
        P.I(f"s_lshl_b32 s{sT2}, s{sDS}, 16\ns_and_b32 s{sT3}, s{sDS}, 0xffff0000\nv_writelane_b32 v{ACC}, s{sT2}, 0\nv_writelane_b32 v{ACC+4}, s{sT3}, 0")
        return
    P.I(f"""s_lshl_b32 s{sT0}, s{sDS}, 16
s_and_b32 s{sT1}, s{sDS}, 0xffff0000
v_cmp_eq_u32 vcc, 0, v0
v_mov_b32 v2, s{sT0}
v_mov_b32 v3, s{sT1}
s_mul_i32 s{sT2}, s{sW}, {16*FP}
v_cndmask_b32 v{ACC}, 0, v2, vcc
v_cndmask_b32 v{ACC+4}, 0, v3, vcc
v_add_u32 v{vKH}, s{sT2}, v{vKF}""")
    for r in (1,2,3,5,6,7): P.I(f"v_mov_b32 v{ACC+r}, 0")
def kgen(P, diag, mid=[], skip=0, order=0):
    A=vROLE; ACC=vHF
    Q=Prog(); table_unpack(Q); tu=[x.text for x in Q.ins]
    P.I(f"s_cmp_eq_u32 s{sW}, 3\ns_cbranch_scc1 L_wdjob\ns_waitcnt lgkmcnt(0)\ns_barrier")
    def rd(n):
        ks,ch=n>>1,n&1; b=A+8*(n%9)
        return [f"ds_read_b128 {vr(b,4)}, v{vKF} offset:{ch*64*FP+48*FP+ks*64}", f"ds_read_b128 {vr(b+4,4)}, v{vKH} offset:{ch*64*FP+ks*64}"]
    for n in range(7): P.extend(rd(n))
    P.extend(tu[:5])
    m2=[[Ins(x.text,x.tag) for x in g] for g in mid]; mid=list(mid)
    for n in range(16):
        if mid and n>=skip: P.extend(mid.pop(0))
        b=A+8*(n%9); a=vr(ACC+4*(n&1),4)
        P.I(f"v_mfma_f32_16x16x32_bf16 {a}, {vr(b,4)}, {vr(b+4,4)}, {a}")
        if n+7<16: P.extend(rd(n+7))
    P.extend(tu[5:])
    for r in range(4): P.I(f"v_cvt_pk_bf16_f32 v{8+r}, v{ACC+r}, v{ACC+4+r}")
    P.I(f"ds_write_b128 v{vKC}, v[8:11]\ns_branch L_kgen_end\nL_wdjob:")
    Q=Prog(); mod_job(Q,'sc1',diag,2); cutq=[i for i,x in enumerate(Q.ins) if x.op=='@wait'][0]
    cutq = 0 if not M2H else cutq if M2H==1 else len(Q.ins)
    P.extend(Q.ins[:cutq])
    P.I("s_waitcnt lgkmcnt(0)\ns_barrier")
    if not M2H: P.extend(tu)
    if order==0:
        for g in m2: P.extend(g)
    P.extend(Q.ins[cutq:])
    if M2H: P.extend(tu)
    if order==1:
        for g in m2: P.extend(g)
    P.I(f"ds_write_b128 v{vRA+1}, {vr(ACC,4)}")
    P.I("L_kgen_end:")

def poll_groups(extra=None, XL='sc1', xfirst=0, SL='sc1'):
    Q=Prog(); poll_loads(Q,XL,xfirst,SL); G=[[]]
    if extra: extra(Q)
    for x in Q.ins:
        G[-1].append(x)
        if x.kind=='vmem': G.append([])
    return G[:-1]
def poll_loads(P, XL='sc1', xfirst=0, SL='sc1'):
    LD='sc1'
    P.I(f"s_mul_i32 s94, s{sP}, 12288\ns_add_u32 s94, s94, {WS_XG}")
    X=[(f"s_add_u32 s94, s94, 4096\n" if g else "")+f"buffer_load_dwordx4 {vr(vPOLL+4*g,4)}, v{vT16}, {sp(rWS,4)}, s94 offen {XL}" for g in range(3)]
    S=[f"s_mov_b32 s79, {WS_SG+g*4096}\nbuffer_load_dwordx4 {vr(vPOLL+12+4*g,4)}, v{vT16}, {sp(rWS,4)}, s79 offen {LD}" for g in range(3)]
    if SGP: S=[(f"s_mov_b32 s79, {WS_SG}\nv_lshlrev_b32 v157, {SGP}, v0\n" if g==0 else "")+f"buffer_load_dwordx4 {vr(vPOLL+12+4*g,4)}, v157, {sp(rWS,4)}, s79 offen offset:{16*g} {SL}" for g in range(3)]
    M=[f"s_lshl4_add_u32 s3, s{sP}, {WS_MG}\nbuffer_load_dwordx4 {vr(vPOLL+24,4)}, v{vMC}, {sp(rWS,4)}, s3 offen {LD}"]
    for t in (X+S+M if xfirst==1 else S+M+X if xfirst==2 else M+S+X if xfirst==3 else [y for p in zip(X,S) for y in p]+M): P.I(t, tag='pollx' if t in X else 'poll')
vQ=144
def poll2_loads(P):
    P.I(f"""s_lshl4_add_u32 s3, s{sP}, {WS_MG+0x20000}
buffer_load_dwordx4 {vr(vQ,4)}, v{vSEL1}, {sp(rWS,4)}, s3 offen sc1
s_lshl2_add_u32 s3, s{sKE}, s{sW}
s_lshl_b32 s3, s3, 7
s_add_u32 s3, s3, {WS_MG+0x20000+8*4096}
buffer_load_dwordx4 {vr(vQ+4,4)}, v{vMW}, {sp(rWS,4)}, s3 offen sc1
s_add_u32 s3, s3, {4*4096}""")
    P.I(f"buffer_load_dwordx4 {vr(vQ+8,4)}, v{vMW}, {sp(rWS,4)}, s3 offen sc1", tag='poll2')
def poll2_work(ST):
    mc,mw=vQ,vQ+4; dpp=" row_mask:0xf bank_mask:0xf"
    L=[["L_p2_chk:","@wait poll2",f"v_min3_u32 v2, v{vQ+3}, v{vQ+7}, v{vQ+11}",f"v_max3_u32 v3, v{vQ+3}, v{vQ+7}, v{vQ+11}",f"v_min_u32 v2, s{sTAG}, v2",f"v_max_u32 v3, s{sTAG}, v3",
        "v_cmp_ne_u32 vcc, v2, v3","s_cbranch_vccnz L_q_retry","L_q_ok:"]]
    L[0][0]="L_q_chk:"
    X=[f"v_add_f32 v{mw}, v{mw}, v{vQ+8}",f"v_add_f32 v{mw+1}, v{mw+1}, v{vQ+9}"]
    for m in ("quad_perm:[1,0,3,2]","quad_perm:[2,3,0,1]"):
        X+=[f"v_add_f32_dpp v{r}, v{r}, v{r} {m}{dpp}" for r in (mc,mc+1,mw,mw+1)]
    X+=[f"v_add_f32_dpp v{r}, v{r}, v{r} row_half_mirror{dpp}" for r in (mc,mc+1)]
    X+=[f"v_cvt_pk_bf16_f32 v{mw+1}, v{mw}, v{mw+1}", f"v_cvt_pk_bf16_f32 v{mc+1}, v{mc}, v{mc+1}",
        f"v_lshlrev_b32 v{mw}, 16, v{mw+1}", f"v_and_b32 v{mw+1}, 0xffff0000, v{mw+1}", f"v_lshlrev_b32 v{mc}, 16, v{mc+1}", f"v_and_b32 v{mc+1}, 0xffff0000, v{mc+1}",
        f"v_add_f32 v{mw}, v{mw}, v{vSEL2}", f"v_add_f32 v{mw+1}, v{mw+1}, v{vSEL2}", f"v_cvt_pk_bf16_f32 v{mw+1}, v{mw}, v{mw+1}",
        f"v_lshlrev_b32 v{mw}, 16, v{mw+1}", f"v_and_b32 v{mw+1}, 0xffff0000, v{mw+1}", f"ds_write_b64 v{vGW}, {vr(mw,2)}"]
    late=[f"v_mov_b32_dpp v{vMOD+4+2*k+e}, v{mc+e} row_newbcast:{8*k}{dpp}" for k in range(2) for e in range(2)]
    return L[0],X,late
PG0=0; ALN=1; BACKOFF=0; PREW=0; SGP=0
def writeback(cnt, lbl, on):
    if not on: return (["s_waitcnt vmcnt(0)"] if PREW else [])+([f"s_sleep {BACKOFF}"] if BACKOFF else [])
    return [f"s_and_b32 s4, s{cnt}, 3","s_cmp_lg_u32 s4, 0",f"s_cbranch_scc1 {lbl}","buffer_wbl2 sc1","s_waitcnt vmcnt(0)",f"{lbl}:"] if on else []
def retry2_block(P, loc=0, mask=0):
    P.I(f"L_q_retry:\ns_add_u32 s{sCNT}, s{sCNT}, 1\ns_cmp_gt_u32 s{sCNT}, 20000\n@loopok\ns_cbranch_scc1 L_q_ok")
    P.extend(writeback(sCNT,'L_q_nowb',loc))
    if mask: P.I("s_mov_b64 exec, vcc")
    poll2_loads(P)
    if mask: P.I("s_mov_b64 exec, -1")
    P.I("s_waitcnt vmcnt(0) lgkmcnt(0)\ns_branch L_q_chk")

vGA=140
def table_unpack(P):
    P.I(f"v_mov_b32 v{vUA}, v{vTAB+7}\nv_mov_b32 v{vKA}, v{vTAB+6}")
    for j in range(11):
        P.I(f"v_lshrrev_b32 v{vGA+j}, 16, v{vTAB+j//2}" if j&1 else f"v_and_b32 v{vGA+j}, 0xffff, v{vTAB+j//2}")
def k_image(P, G, npre, skip, w0at=0):
    E=vROLE+40; O=vROLE; GA=vGA
    G0=[[Ins(x.text,x.tag) for x in g] for g in G[:npre]] if w0at else []
    if w0at: P.I(f"@wait dr\ns_cmp_eq_u32 s{sW}, 0\ns_cbranch_scc1 L_w0a")
    for _ in range(npre): P.extend(G.pop(0))
    if w0at: P.I("L_w0a:")
    P.I(f"""s_mov_b32 s{sT4}, 0x05040100
s_mov_b32 s{sT5}, 0x07060302
v_add_u32 v2, {L_KI}, v{vT16}
s_waitcnt lgkmcnt(0)
s_barrier""")
    for j in range(11): P.I(f"ds_read_b32 v{E+j}, v{GA+j}")
    k=0
    for c in (3,2,1,0):
        for ch in range(2):
            o=O+4*k; k+=1
            for i in range(4):
                j=3-c+2*i
                P.I(f"v_perm_b32 v{o+i}, v{E+j+1}, v{E+j}, s{sT4+ch}")
            P.I(f"ds_write_b128 v2, {vr(o,4)} offset:{(ch*4+c)*KIP}")
            if k==w0at:
                P.I(f"s_cmp_lg_u32 s{sW}, 0\ns_cbranch_scc1 L_w0b\n@forget "+" ".join(str(r) for r in range(vPOLL,vPOLL+28)))
                for g in G0: P.extend(g)
                P.I("L_w0b:")
            if G and k>skip: P.extend(G.pop(0))
    for g in G: P.extend(g)

def retry_block(P, loc=0, mask=0):
    P.I(f"L_ka_retry:\ns_add_u32 s{sCNT}, s{sCNT}, 1\ns_cmp_gt_u32 s{sCNT}, 20000\n@loopok\ns_cbranch_scc1 L_ka_ok")
    P.extend(writeback(sCNT,'L_ka_nowb',loc))
    if mask:
        G=poll_groups(None,'sc1',3)
        P.extend(G[0]); P.I("s_mov_b64 exec, vcc")
        for g in G[1:]: P.extend(g)
        P.I("s_mov_b64 exec, -1")
    else: poll_loads(P)
    P.I("s_waitcnt vmcnt(0) lgkmcnt(0)\ns_branch L_ka_chk")

def make_h(P, diag, q2=False):
    Q=vPOLL; mc=Q+24; Mm=vROLE; Mr=vROLE+8; O=vROLE+16; A=vROLE+24; B=vROLE+40
    dpp=" row_mask:0xf bank_mask:0xf"
    P.I(f"s_mov_b32 s{sCNT}, 0\nv_add_u32 v4, {L_H+480}, v{vT16}\nL_ka_chk:\n@wait poll")
    chain=[]
    for m in ("quad_perm:[1,0,3,2]","quad_perm:[2,3,0,1]","row_half_mirror","row_mirror"):
        chain.append([f"v_add_f32_dpp v{r}, v{r}, v{r} {m}{dpp}" for r in (mc,mc+1)])
    chain+=[[f"v_cvt_pk_bf16_f32 v{mc}, v{mc}, v{mc+1}", f"v_mov_b32 v{mc+1}, v{mc}"],
            [f"v_permlane16_swap_b32 v{mc}, v{mc+1}", f"v_lshlrev_b32 v{vMOD}, 16, v{mc}", f"v_and_b32 v{vMOD+1}, 0xffff0000, v{mc}", f"v_lshlrev_b32 v{mc}, 16, v{mc+1}", f"v_and_b32 v{mc+1}, 0xffff0000, v{mc+1}"],
            [f"v_add_f32 v{mc}, 1.0, v{mc}", f"v_add_f32 v{mc+1}, 1.0, v{mc+1}", f"v_cvt_pk_bf16_f32 v{mc}, v{mc}, v{mc+1}"],
            [f"v_lshlrev_b32 v{vMOD+2}, 16, v{mc}", f"v_and_b32 v{vMOD+3}, 0xffff0000, v{mc}"]]
    for r in range(8):
        st=Q+12+4*(r//3)+r%3
        P.extend(chain[r])
        P.I(f"v_and_b32 v{Mr+r}, 0xffff0000, v{st}\nv_lshlrev_b32 v{Mm+r}, 16, v{st}\nv_rcp_f32 v{Mr+r}, v{Mr+r}")
    P.I(f"""v_min3_u32 v2, s{sTAG}, v{Q+27}, v{Q+15}
v_max3_u32 v3, s{sTAG}, v{Q+27}, v{Q+15}
v_min3_u32 v2, v2, v{Q+19}, v{Q+23}
v_max3_u32 v3, v3, v{Q+19}, v{Q+23}""")
    for ch in range(2):
        for r in range(0,8,2): P.I(f"v_pk_mul_f32 {vr(A+8*ch+r,2)}, {vr(Mr+r,2)}, {vr(vMOD+2,2)} op_sel:[0,{ch}] op_sel_hi:[1,{ch}]")
    for ch in range(2):
        for r in range(0,8,2): P.I(f"v_pk_fma_f32 {vr(B+8*ch+r,2)}, {vr(Mm+r,2)}, {vr(A+8*ch+r,2)}, {vr(vMOD,2)} op_sel:[0,0,{ch}] op_sel_hi:[1,1,{ch}] neg_lo:[1,0,0] neg_hi:[1,0,0]")
    P.I(f"""@wait pollx
v_min3_u32 v2, v2, v{Q+3}, v{Q+7}
v_max3_u32 v3, v3, v{Q+3}, v{Q+7}
v_min_u32 v2, v2, v{Q+11}
v_max_u32 v3, v3, v{Q+11}
v_cmp_ne_u32 vcc, v2, v3""")
    xr=lambda r: Q+4*(r//3)+r%3
    P.I(f"v_lshlrev_b32 v{vXF}, 16, v{xr(0)}\ns_cbranch_vccnz L_ka_retry\nL_ka_ok:")
    if diag: P.I(f"s_add_u32 s{sCNT}, s{sCNT}, 1\nv_writelane_b32 v255, s{sCNT}, 31")
    stamp(P,11,diag)
    if q2: poll2_loads(P)
    for ch in range(2):
        for r in range(8):
            if ch or r: P.I(f"v_and_b32 v{vXF+8+r}, 0xffff0000, v{xr(r)}" if ch else f"v_lshlrev_b32 v{vXF+r}, 16, v{xr(r)}")
        for r in range(0,8,2): P.I(f"v_pk_fma_f32 {vr(A+8*ch+r,2)}, {vr(vXF+8*ch+r,2)}, {vr(A+8*ch+r,2)}, {vr(B+8*ch+r,2)}")
        for r in range(0,8,2): P.I(f"v_cvt_pk_bf16_f32 v{O+4*ch+r//2}, v{A+8*ch+r}, v{A+8*ch+r+1}")
        P.I(f"ds_write_b128 v4, {vr(O+4*ch,4)} offset:{ch*HP}")

def gb_store(P, ST):
    P.I(f"""s_cmp_lg_u32 s{sW}, 2
s_cbranch_scc1 L_nogb
s_lshl3_add_u32 s{sT2}, s{sP}, {WS_GBF}
s_mov_b64 exec, 1
buffer_store_dwordx2 {vr(vMOD+6,2)}, v{vL16}, {sp(rWS,4)}, s{sT2} offen {ST}
s_mov_b64 exec, -1
L_nogb:""")
def w_side(ST):
    RAW=vPOLL; WP=vPOLL+16; GB=[48,64,80,96]; U=112; S1,S2=vHF,vHF+2
    rd=[]; main=[]; sums=[]
    for k in range(4):
        g=GB[k]
        rd.append([f"ds_read_b64_tr_b16 {vr(RAW+4*k+2*hf,2)}, v{vWRA} offset:{k*4096+hf*512}" for hf in range(2)]
                 +[f"ds_read_b128 {vr(g+4*q,4)}, v{vGR} offset:{k*64+q*16}" for q in range(2)])
        L=[]
        for d in range(4):
            u=U+8*k+2*d
            L+=[f"v_lshlrev_b32 v{u}, 16, v{RAW+4*k+d}", f"v_and_b32 v{u+1}, 0xffff0000, v{RAW+4*k+d}",
                f"v_mul_f32 v{g+2*d}, v{u}, v{g+2*d}", f"v_mul_f32 v{g+2*d+1}, v{u+1}, v{g+2*d+1}", f"v_cvt_pk_bf16_f32 v{WP+4*k+d}, v{g+2*d}, v{g+2*d+1}"]
        L.append((f"buffer_store_dwordx4 {vr(WP+4*k,4)}, v{vL16}, {sp(rWJ,4)}, s{sWO} offen {ST}",'wpst'))
        if k<3: L.append(f"s_add_u32 s{sWO}, s{sWO}, s{sWST}")
        main.append(L)
        for i in range(8):
            e=i&1; first=(k==0 and i<2)
            sums.append(f"v_mul_f32 v{S2+e}, v{U+8*k+i}, v{g+8+i}" if first else f"v_fmac_f32 v{S2+e}, v{U+8*k+i}, v{g+8+i}")
            if k==0 and i<2: continue
            sums.append(f"v_add_f32 v{S1+e}, v{g+e}, v{g+i}" if (k==0 and i<4) else f"v_add_f32 v{S1+e}, v{S1+e}, v{g+i}")
    rdsb=[f"ds_read_b128 {vr(GB[k]+8+4*q,4)}, v{vGR} offset:{256+k*64+q*16}" for k in range(4) for q in range(2)]
    tail=[f"v_add_f32 v{S1}, v{S1}, v{S1+1}", f"v_add_f32 v{S2}, v{S2}, v{S2+1}", f"v_mov_b32 v{S1+1}, v{S1}", f"v_mov_b32 v{S2+1}, v{S2}",
          f"v_lshlrev_b32 v2, 2, v{vLANE}", "s_nop 0",
          f"v_permlane32_swap_b32 v{S1}, v{S1+1}", f"v_permlane32_swap_b32 v{S2}, v{S2+1}",
          f"v_add_f32 v{S1}, v{S1}, v{S1+1}", f"v_add_f32 v{S2}, v{S2}, v{S2+1}", f"v_cvt_pk_bf16_f32 v{S1}, v{S1}, v{S2}",
          "s_mov_b32 exec_hi, 0", (f"buffer_store_dword v{S1}, v2, {sp(rWJ,4)}, s{sWA} offen {ST}",'auxst'), "s_mov_b64 exec, -1"]
    return rd,main,rdsb,sums,tail

YDONE=[0]
def conv_reads(vi):
    b=vi&1; o=192-64*vi
    U=[(f"ds_read_b128 {ar(64+32*b+4*k,4)}, v{vUA} offset:{512*k+o}",f"c{vi}_{k}") for k in range(8)]
    K=[[(f"ds_read_b64 {ar(32*b+4*k+2*hf,2)}, v{vKA} offset:{512*(7-k)+o+8*hf}",f"c{vi}_{k}") for hf in range(2)] for k in range(8)]
    return U,K
def conv(P, ST, cfg, midbar, wdj, wd0, H={}):
    ACC=16
    order=sorted([(u,s) for u in range(8) for s in range(8) if u+s<8], key=lambda t:(t[1],t[0]))
    rd,main,rdsb,sums,tail=w_side(ST)
    chk,work,bc=poll2_work(ST)
    Q=Prog(); gb_store(Q,ST); gbs=[[x.text for x in Q.ins]]
    P.extend(conv_reads(0)[0])
    YIN=cfg.get('YIN',0); YDONE[0]=0; assert not YIN or cfg.get('ORD',1)
    v2s=list(H.get('v2side',[])); v3m=list(H.get('v3mem',[])); go=False
    first=set(); side=[]; QAT=cfg.get('QAT',20); LV=cfg.get('LV',1); FV=cfg.get('FV',LV); SL=cfg.get('SUMLATE',0)
    for vi in range(4):
        b=vi&1; nxt=[]
        if vi==LV: nxt+=[(x,'wtr') for r in rd[:2] for x in r]+wdj[:4]
        if vi<3:
            U,K=conv_reads(vi+1); nxt+=[y for k in range(8) for y in [U[k]]+K[k]]
        if vi==0 and LV: side+=work
        if vi==1 and LV>1: side+=bc+gbs
        if vi==LV: side+=['@wait wtr']+rd[2]+rd[3]+main[0]+wdj[4:]+main[1]+([] if SL else rdsb)+main[2]+main[3]+(bc+gbs if LV<=1 else [])+([] if SL else sums)
        waits = {0:0,8:1,15:7} if vi==0 else {0:7}
        start = 8 if vi==LV else QAT+1 if vi==0 else 0
        for n,(u,s) in enumerate(order if (vi==0 or not cfg.get('ORD',1)) else sorted(order,key=lambda t:(t[0]+t[1],t[0]))):
            t=u+s; a=vr(ACC+4*t,4)
            if n in waits: P.I(f"@wait c{vi}_{waits[n]}")
            P.I(f"v_mfma_f32_16x16x32_bf16 {a}, {ar(32*b+4*u,4)}, {ar(64+32*b+4*s,4)}, {a if t in first else 0}"); first.add(t)
            slots=2-((n+1) in waits or n==35)
            if vi==3 and YIN:
                rdy=[t_ for t_ in range(YDONE[0],7) if (t_+1)*(t_+2)//2+3<=n]
                if rdy and n>=YIN and (n-YIN)%cfg.get('YST',3)==0:
                    P.I(f"ds_write_b128 v{vYW}, {vr(ACC+4*rdy[0],4)} offset:{1280*rdy[0]}"); YDONE[0]+=1; continue
            if vi==0 and FV==0 and n==0: P.extend(midbar); continue
            if vi in (LV,FV) and n==0 and vi:
                P.I("@wait"+(" wr dr" if vi==LV else "")+(" wdst" if vi==FV else "")+"\ns_waitcnt lgkmcnt(0)\ns_barrier")
                if vi==FV: P.extend(midbar)
                continue
            if vi==0 and n==QAT and LV: P.extend(chk+H.get('chkq',[])); continue
            if 'chkq' in H and (vi,n)==tuple(cfg.get('WDV0',[1,9])): go=True
            if (vi,n) in H.get('hook',{}):
                if vi==3: assert not v2s; go=True
                P.extend(H['hook'][(vi,n)]); slots-=len(H['hook'][(vi,n)])
            elif go and v3m and n%cfg.get('WDVS',2)==0 and not (n==0):
                x=v3m.pop(0); P.extend(x); slots-=len(x)
            if nxt:
                P.extend([nxt.pop(0)]); slots-=1
                if n<start and slots and nxt: P.extend([nxt.pop(0)]); slots-=1
            while slots>0 and wd0 and vi==0 and not nxt and n<QAT: P.extend([wd0.pop(0)]); slots-=1
            while slots>0 and v2s and vi==0 and not nxt and (n<QAT and len(v2s)>2 or n>QAT and not side): P.extend([v2s.pop(0)]); slots-=1
            while slots>0 and side and n>=start:
                x=side.pop(0)
                if isinstance(x,list): P.extend(x); slots=0
                else: P.extend([x]); slots-=1
        assert not nxt, len(nxt)
        if vi==0 and LV: P.extend(side+wd0+v2s); print('  conv step 0 spill',len(side),len(wd0),len(v2s)); side=[]; wd0=[]; v2s=[]
        print('  conv step',vi,'side backlog',len(side))
    for x in v3m: side+=x
    assert not any(isinstance(x,list) for x in side)
    if SL: return ACC,side,rdsb+sums+tail
    return ACC,side+tail,[]

def conv2(P, ST, cfg, midbar):
    ACC=16
    order=sorted([(u,s) for u in range(8) for s in range(8) if u+s<8], key=lambda t:(t[1],t[0]))
    rd,main,rdsb,sums,tail=w_side(ST)
    chk,work,bc=poll2_work(ST)
    Q=Prog(); gb_store(Q,ST); gbs=[[x.text for x in Q.ins]]
    isun=lambda x: isinstance(x,str) and x.startswith(('v_lshlrev','v_and'))
    unp=[x for m in main for x in m if isun(x)]; scale=[x for m in main for x in m if not isun(x)]
    QG=cfg.get('QG2',33); YDONE[0]=0
    side=[(x,'wtr') for r in rd for x in r[:2]]+[('@hold',4),'@wait wtr']+unp[:cfg.get('UN0',32)]+[('@at',QG),chk]+work
    side+=[["@wait wdst","s_waitcnt lgkmcnt(0)","s_barrier"]+midbar]+[(x,'gtr') for r in rd for x in r[2:]]+unp[cfg.get('UN0',32):]+bc+rdsb[:4]+['@wait gtr']+scale+rdsb[4:]+gbs+sums
    P.extend(conv_reads(0)[0])
    first=set(); g=0; until=cfg.get('S0',2)
    for vi in range(4):
        b=vi&1; nxt=[]
        if vi<3:
            U,K=conv_reads(vi+1); nxt=[y for k in range(8) for y in [U[k]]+K[k]]
        waits = {0:0,8:1,15:7} if vi==0 else {0:7}
        for n,(u,s) in enumerate(order if vi==0 else sorted(order,key=lambda t:(t[0]+t[1],t[0]))):
            t=u+s; a=vr(ACC+4*t,4)
            if n in waits: P.I(f"@wait c{vi}_{waits[n]}")
            P.I(f"v_mfma_f32_16x16x32_bf16 {a}, {ar(32*b+4*u,4)}, {ar(64+32*b+4*s,4)}, {a if t in first else 0}"); first.add(t)
            slots=2-((n+1) in waits or n==35); g+=1
            YIN=cfg.get('YIN',0)
            if vi==3 and YIN:
                rdy=[t_ for t_ in range(YDONE[0],7) if (t_+1)*(t_+2)//2+3<=n]
                if rdy and n>=YIN and (n-YIN)%cfg.get('YST',3)==0:
                    P.I(f"ds_write_b128 v{vYW}, {vr(ACC+4*rdy[0],4)} offset:{1280*rdy[0]}"); YDONE[0]+=1; continue
            must = len(nxt)>=31-n or not (vi==1 and n<cfg.get('SK1',7))
            if nxt and must: P.extend([nxt.pop(0)]); slots-=1
            while slots>0 and side and g>until:
                x=side[0]
                if isinstance(x,tuple) and x[0]=='@hold': until=g+x[1]; side.pop(0); break
                if isinstance(x,tuple) and x[0]=='@at': until=max(until,x[1]); side.pop(0); continue
                side.pop(0)
                if isinstance(x,list): P.extend(x); slots=0; print('  conv block at',g)
                else: P.extend([x]); slots-=1
            while slots>0 and nxt: P.extend([nxt.pop(0)]); slots-=1
        assert not nxt, len(nxt)
        print('  conv step',vi,'side backlog',len(side))
    assert not any(isinstance(x,list) for x in side)
    return ACC,side+tail,[]

def conv_epilogue(P, ACC, tail, XST, pre=[], prebar=[], postbar=[], tmax=99, after=[]):
    tail=list(tail); P.extend(pre)
    if YDONE[0]:
        k=min(8,max(0,len(tail)-4)); P.extend(tail[:k]); tail=tail[k:]
    for t in range(YDONE[0],8):
        P.I(f"ds_write_b128 v{vYW}, {vr(ACC+4*t,4)} offset:{1280*t}")
        k=min(max(5,-(-len(tail)//(8-t))),len(tail),tmax)
        if len(tail)-k<4: k=len(tail)
        P.extend(tail[:k]); tail=tail[k:]
    P.extend(prebar)
    P.I(f"s_mul_i32 s{sT0}, s{sP}, {12288 if XIN else 128}\ns_add_u32 s{sT0}, s{sT0}, {WS_XG if XIN else WS_X1B}\ns_waitcnt lgkmcnt(0)\ns_barrier")
    Y=16
    for ch in range(2):
        for g in range(2):
            for vh in range(2):
                P.I(f"ds_read_b128 {vr(Y+16*ch+8*vh+4*g,4)}, v{vYR} offset:{L_Y+(2*ch+vh)*10240+320*g}")
    P.extend(postbar)
    for ch in range(2):
        y=Y+16*ch
        for r in range(0,8,2): P.I(f"v_pk_add_f32 {vr(y+r,2)}, {vr(y+r,2)}, {vr(y+8+r,2)}")
        for r in range(0,8,2): P.I(f"v_pk_fma_f32 {vr(y+r,2)}, {vr(y+r,2)}, {vr(vMOD+4,2)}, {vr(vXF+8*ch+r,2)} op_sel:[0,{ch},0] op_sel_hi:[1,{ch},1]")
        for r in range(0,8,2): P.I(f"v_cvt_pk_bf16_f32 v{4+4*ch+r//2}, v{y+r}, v{y+r+1}")
        P.I(f"buffer_store_dwordx4 {vr(4+4*ch,4)}, v{vXO}, {sp(rWS,4)}, s{sT0} offen offset:{64*ch} {XST}", tag='x1st')
    print('  after the x1 stores:', len(tail), '+', len(after))
    P.extend(tail); P.extend(after)

def body(P, n, diag, cfg, H):
    NT=cfg.get('NT','nt'); ST='sc1'
    entry(P,n,diag,256,cfg.get('PERM',[2,3,0,5,1,7,4,6] if cfg.get('QSYNC',0) else None)); role_addr(P,cfg.get('LOC',0))
    P.I("s_waitcnt lgkmcnt(0)"); stamp0_commit(P,diag)
    if cfg.get('WSB',0): P.I(f"s_add_u32 s{sWS}, s{sWS}, {cfg['WSB']<<20}\ns_addc_u32 s{sWS+1}, s{sWS+1}, 0")
    po=cfg.get('PORD',0); m2=cfg.get('M2AT',0); global JW
    assert not (po and cfg.get('CUT',0)) and not (m2>0 and cfg.get('CUT',0))
    JW=(8 if po else 0)
    stamp(P,26,diag and ONLY and 26 in ONLY)
    early_loads(P,NT,not po)
    role_loads(P,cfg.get('XNT',NT),0,cfg.get('SD',0))
    if po: param_loads(P,NT)
    df=cfg.get('DEFER',0); global PRE_S; PRE_S=df; grp=cfg.get('GRP',1)
    table_loads(P)
    if m2==-1: role_loads(P,NT,1)
    fill=setup(P,False,cfg.get('X',''),cfg.get('WMAP',0) or cfg.get('QSYNC',0),df); P.extend(H['setup'])
    if df:
        assert cfg.get('WAT',1)>=1 and cfg.get('DAT',0)<2 and cfg.get('WJAT',0)<=0
        fill+=w_scalars()+wd_scalars(22)+H['defer']
    if m2==0: role_loads(P,NT,1)
    global LB, SD, M2H; M2H=cfg.get('M2H',0); LB=cfg.get('LB',0); SD=cfg.get('SD',0); assert not (LB and cfg.get('CUT',0))
    if not LB: epoch_sync(P)
    stamp(P,1,diag)
    kgen_init(P, 1 if LB else 0)
    H['idle'](P)
    P.I("@forget "+" ".join(str(r) for r in list(range(vPAR,vPAR+6))+[vROLE]+list(range(vTAB,vTAB+8))))
    cut=cfg.get('CUT',0)
    if cut:
        P.I(f"s_waitcnt vmcnt(10)\ns_cmp_lg_u32 s{sW}, 2\ns_cbranch_scc1 L_f1\ns_waitcnt vmcnt(6)\nL_f1:")
        P.I("@forget "+" ".join(str(r) for r in list(range(vPAR,vPAR+6))+[vROLE]+list(range(vTAB,vTAB+8))))
        factor_gen(P,0,cut,grp)
        stamp(P,10,diag)
        P.I(f"s_cmp_eq_u32 s{sW}, 3\ns_cbranch_scc1 L_xje")
    x_jobs(P,'sc1',diag,cfg.get('LOC',0))
    P.I("@forget "+" ".join(str(r) for r in list(range(vPAR,vPAR+6))+[vROLE]+list(range(vTAB,vTAB+8))))
    if LB: P.extend(H['tagreg'])
    stamp(P,3,diag)
    da,wa=cfg.get('DAT',0),cfg.get('WAT',1)
    def raws(k):
        if da==k: raw_wd_loads(P,cfg.get('DNT',NT))
        if wa==k: raw_w_loads(P,NT)
    if m2==1: role_loads(P,NT,1)
    raws(0)
    if wa>=10:
        factor_gen(P,cut,wa-10,grp,fill)
        while any('s95' in x or 's96' in x for x in fill): P.I(fill.pop(0))
        raw_w_loads(P,NT); cut=wa-10
    factor_gen(P,cut,99,grp,fill); print('  scalar set-up left after the chain:',len(fill)); P.extend(fill)
    stamp(P,4,diag)
    if m2==2: role_loads(P,NT,1)
    if cfg.get('WJAT',0)==-1: wd_job(P,ST)
    raws(1)
    if cfg.get('WJAT',0)==-2: wd_job(P,ST)
    G=poll_groups((lambda Q: raw_w_loads(Q,NT)) if wa==3 else None, cfg.get('XLP','') if cfg.get('LOC',0)==1 else 'sc1', cfg.get('XFIRST',0), '')
    for _ in range(cfg.get('PEARLY',0)): P.extend(G.pop(0))
    npm=cfg.get('PMID',0); mid=G[:npm]; G=G[npm:]
    if wa==5:
        Q=Prog(); raw_w_loads(Q,NT); W4=[[]]
        for x in Q.ins:
            W4[-1].append(x)
            if x.kind=='vmem': W4.append([])
        mid=W4[:-1]+mid
    kgen(P,diag,mid,cfg.get('PMSKIP',0),cfg.get('PMORD',0)); stamp(P,5,diag)
    k_image(P,G,min(len(G),cfg.get('PPRE',5)),cfg.get('PSKIP',0),cfg.get('W0AT',0))
    raws(2)
    wdj=[]
    wj=cfg.get('WJAT',0); wd0=[]
    if cfg.get('Q2AT',1)==2: poll2_loads(P)
    if wj<0: pass
    elif da<2 and wj:
        Q=Prog(); wd_job(Q,ST); wd0=[(x.text,x.tag) for x in Q.ins]
    elif da<2: wd_job(P,ST)
    else:
        Q=Prog(); wd_job(Q,ST); wdj=[(x.text,x.tag) for x in Q.ins[1:]]
    stamp(P,6,diag)
    if cfg.get('FV',1)==-1: P.I(f"s_waitcnt vmcnt({11 if cfg.get('WJAT')==-1 else 7})")
    P.I("s_waitcnt lgkmcnt(0)\ns_barrier")
    for k in conv_reads(0)[1]: P.extend(k)
    if cfg.get('FV',1)==-1:
        assert cfg.get('XFIRST')==1
        P.extend(H['midbar'][:-1]+["s_waitcnt vmcnt(1)","s_branch L_fd2",H['midbar'][-1],"s_waitcnt vmcnt(0)","L_fd2:"])
    q2=cfg.get('Q2AT',1)
    if q2==0: poll2_loads(P)
    make_h(P,diag,q2==3)
    if q2==1: poll2_loads(P)
    P.extend(H.get('withq',[]))
    raws(4)
    if cfg.get('LV',1)==0:
        chk,work,_=poll2_work(ST); P.extend(chk+work+["@wait wr"])
    if cfg.get('CV2',0): P.I("@wait wr")
    if cfg.get('FV',1)==0: P.I("@wait wdst")
    P.I("s_waitcnt lgkmcnt(0)\ns_barrier")
    stamp(P,7,diag)
    if cfg.get('CV2',0): acc,tail,after=conv2(P,ST,cfg,H['midbar'])
    else: acc,tail,after=conv(P,ST,cfg,H['midbar'] if da<2 else [],wdj,wd0,H)
    stamp(P,8,diag)
    conv_epilogue(P,acc,tail,ST,H.get('pre',[]),H.get('prebar',[]),H.get('postbar',[]),cfg.get('TMAX',99),after)
```
